```python
import torch

def _softmax(x, axis=-1):
    return torch.softmax(x, dim=axis)

def _gelu(x):
    return torch.nn.functional.gelu(x, approximate='tanh')

def _silu(x):
    return torch.nn.functional.silu(x)

def _sigmoid(x):
    return torch.sigmoid(x)

def _layernorm(x, axis=-1, eps=1e-05):
    m = x.mean(dim=axis, keepdim=True)
    v = x.var(dim=axis, keepdim=True, unbiased=False)
    return (x - m) / torch.sqrt(v + eps)

def _scatter_add(tgt, idx, src, axis=0):
    return tgt.clone().index_add_(axis, idx, src)

def _segment_sum(src, seg, n):
    out = torch.zeros((n,) + src.shape[1:], dtype=src.dtype)
    return out.index_add_(0, seg, src)

def _pad(x, pw):
    flat = tuple((v for pair in reversed(pw) for v in pair))
    return torch.nn.functional.pad(x, flat)
kernel_name = 'sequential_preLN__memory_aug_recurrent_mem_tr__mixer_token_mlp__prompt'

def setup_inputs():

    _w = lambda a: (lambda t: t.to(torch.bfloat16) if t.is_floating_point() else t)(torch.as_tensor(a))

    def _A_setup():
        B, S, Dm = (1, 2048, 512)
        H, Dh = (32, 128)
        M, seg = (8, 32)
        seg = min(seg, S)
        S = S // seg * seg
        return {'x': _w((lambda *s: torch.randn(*s, dtype=torch.bfloat16) * 0.05)(B, S, Dm)), 'mem0': _w((lambda *s: torch.randn(*s, dtype=torch.bfloat16) * 0.2)(B, M, Dm)), 'Wq': _w((lambda *s: torch.randn(*s, dtype=torch.bfloat16) * 1.6)(Dm, H, Dh) * Dm ** (-0.5)), 'Wk': _w((lambda *s: torch.randn(*s, dtype=torch.bfloat16) * 1.6)(Dm, H, Dh) * Dm ** (-0.5)), 'Wv': _w((lambda *s: torch.randn(*s, dtype=torch.bfloat16) * 0.2)(Dm, H, Dh) * Dm ** (-0.5)), 'Wo': _w((lambda *s: torch.randn(*s, dtype=torch.bfloat16) * 0.2)(H, Dh, Dm) * (H * Dh) ** (-0.5)), 'seg_len': seg}
    _A_in = _A_setup()

    def _B_setup():
        B, S, D, F = (1, 2048, 512, 1792)
        return {'x': _w((lambda *s: torch.randn(*s, dtype=torch.bfloat16) * 0.05)(B, S, D)), 'w1': _w((lambda *s: torch.randn(*s, dtype=torch.bfloat16) * 0.4)(S, F) * S ** (-0.5)), 'b1': _w((lambda *s: torch.randn(*s, dtype=torch.bfloat16) * 3.2)(F) * 0.02), 'w2': _w((lambda *s: torch.randn(*s, dtype=torch.bfloat16) * 0.2)(F, S) * F ** (-0.5)), 'b2': _w((lambda *s: torch.randn(*s, dtype=torch.bfloat16) * 0.4)(S) * 0.02)}
    _B_in = _B_setup()
    return {'A_x': _A_in['x'], 'A_mem0': _A_in['mem0'], 'A_Wq': _A_in['Wq'], 'A_Wk': _A_in['Wk'], 'A_Wv': _A_in['Wv'], 'A_Wo': _A_in['Wo'], 'A_seg_len': _A_in['seg_len'], 'B_x': _B_in['x'], 'B_w1': _B_in['w1'], 'B_b1': _B_in['b1'], 'B_w2': _B_in['w2'], 'B_b2': _B_in['b2']}

def reference(A_x, A_mem0, A_Wq, A_Wk, A_Wv, A_Wo, A_seg_len, B_x, B_w1, B_b1, B_w2, B_b2):

    def _A_ref(x, mem0, Wq, Wk, Wv, Wo, seg_len):
        B, S, Dm = x.shape
        H, Dh = (Wq.shape[1], Wq.shape[2])
        M = mem0.shape[1]
        scale = Dh ** (-0.5)
        n_seg = S // seg_len
        L = M + seg_len
        idx = torch.arange(L)
        mask = (idx[:, None] < M) | (idx[:, None] >= idx[None, :])
        mem = mem0
        outs = []
        for s in range(n_seg):
            xs = x[:, s * seg_len:(s + 1) * seg_len, :].clone()
            h = torch.concatenate([mem, xs], axis=1)
            q = torch.einsum('btd,dhe->bhte', h, Wq)
            k = torch.einsum('btd,dhe->bhte', h, Wk)
            v = torch.einsum('btd,dhe->bhte', h, Wv)
            scores = torch.einsum('bhqe,bhke->bhqk', q, k) * scale
            scores = torch.where(mask[None, None], scores, -1000000000.0)
            p = _softmax(scores, axis=-1)
            o = torch.einsum('bhqk,bhke->bhqe', p, v)
            o = torch.einsum('bhte,hed->btd', o, Wo)
            mem = o[:, :M, :].clone()
            outs.append(o[:, M:, :])
        return torch.concatenate(outs, axis=1)

    def _B_ref(x, w1, b1, w2, b2):
        B, S, D = x.shape
        h = _layernorm(x, axis=-1)
        u = torch.einsum('bsd,sf->bdf', h, w1) + b1
        u = _gelu(u)
        y = torch.einsum('bdf,fs->bds', u, w2) + b2
        return (lambda x, *d: x.permute(*d))(y, 0, 2, 1)
    x = A_x
    h = x + _A_ref(_layernorm(x, axis=-1), A_mem0, A_Wq, A_Wk, A_Wv, A_Wo, A_seg_len)
    h2 = h + _B_ref(_layernorm(h, axis=-1), B_w1, B_b1, B_w2, B_b2)
    return h2
```

```python
import re

_REG = re.compile(r'^(-|abs\()?([vas])(\d+|\[(\d+):(\d+)\])\)?$')


def regs_of(tok):
    tok = tok.strip()
    if tok in ('vcc', 'exec'):
        return [tok + '_lo', tok + '_hi']
    if tok in ('vcc_lo', 'vcc_hi', 'exec_lo', 'exec_hi', 'm0', 'scc'):
        return [tok]
    m = _REG.match(tok)
    if not m:
        return []
    k = m.group(2)
    if m.group(4) is not None:
        return [f'{k}{i}' for i in range(int(m.group(4)), int(m.group(5)) + 1)]
    return [f'{k}{int(m.group(3))}']


def split_ops(s):
    out, depth, cur = [], 0, ''
    for ch in s:
        if ch in '[(':
            depth += 1
        if ch in '])':
            depth -= 1
        if ch == ',' and depth == 0:
            out.append(cur.strip())
            cur = ''
        else:
            cur += ch
    if cur.strip():
        out.append(cur.strip())
    return out


TRANS = ('v_exp_f32', 'v_log_f32', 'v_rcp_f32', 'v_rsq_f32', 'v_sqrt_f32', 'v_sin_f32', 'v_cos_f32')


def mfma_passes(op):
    if '32x32' in op:
        return 8
    return 4


class Asm:
    def __init__(self):
        self.lines = []
        self.pos = 0
        self.w = {}
        self.rc = {}
        self.sd = {}
        self.vm = []
        self.lg = []
        self.check = True
        self.nlabel = 0

    def raw(self, s):
        self.lines.append(s)

    def c(self, s):
        self.lines.append('    ; ' + s)

    def newlabel(self, base='L'):
        self.nlabel += 1
        return f'{base}_{self.nlabel}'

    def flush(self):
        need = 0
        for r, (kind, p, ex) in self.w.items():
            d = {'valu': 2, 'trans': 2, 'valu_s': 5, 'm0': 1}.get(kind)
            if kind == 'mfma':
                d = 8 if ex[0] == 4 else 12
            if d is None:
                continue
            need = max(need, d - (self.pos - p - 1))
        for r, (p, ps) in self.rc.items():
            need = max(need, (3 if ps == 4 else 7) - (self.pos - p - 1))
        for r, p in self.sd.items():
            need = max(need, 2 - (self.pos - p - 1))
        self._nop(need)
        self.w.clear(); self.rc.clear(); self.sd.clear()

    def label(self, name, flush=True):
        if flush:
            self.flush()
        self.lines.append(f'{name}:')

    def forget_loads(self):
        self.vm = []; self.lg = []

    def _nop(self, n):
        while n > 0:
            k = min(n, 16)
            self.lines.append(f'    s_nop {k - 1}')
            self.pos += k
            n -= k

    def _parse(self, text):
        t = text.split(';')[0].strip()
        parts = t.split(None, 1)
        op = parts[0]
        rest = parts[1] if len(parts) > 1 else ''
        ops = split_ops(rest)
        clean = []
        mods = []
        for o in ops:
            ws = o.split()
            clean.append(ws[0])
            mods += ws[1:]
        return op, clean, mods

    def I(self, text):
        if '\n' in text:
            for t in text.split('\n'):
                self.I(t)
            return
        op, ops, mods = self._parse(text)
        dst, src = [], []
        kind = None
        R = regs_of
        isdpp = op.endswith('_dpp') or any(m.startswith(('quad_perm', 'row_')) for m in mods)
        if op.startswith('v_mfma'):
            kind = 'mfma'
            dst = R(ops[0]); a = R(ops[1]); b = R(ops[2]); cc = R(ops[3])
            src = a + b + cc
        elif op.startswith('v_smfmac'):
            kind = 'mfma'
            dst = R(ops[0]); a = R(ops[1]); b = R(ops[2]) + R(ops[3]); cc = R(ops[0])
            src = a + b + cc
        elif op.startswith('v_cmp'):
            kind = 'valu_s'
            dst = R(ops[0]); src = sum((R(o) for o in ops[1:]), [])
        elif op.startswith(('v_readfirstlane', 'v_readlane')):
            kind = 'valu_s'
            dst = R(ops[0]); src = sum((R(o) for o in ops[1:]), [])
        elif op.startswith('v_permlane'):
            kind = 'valu'
            dst = R(ops[0]) + R(ops[1]); src = list(dst)
        elif op.startswith(('v_add_co', 'v_sub_co', 'v_addc_co', 'v_subb_co')):
            kind = 'valu'
            dst = R(ops[0]) + R(ops[1]); src = sum((R(o) for o in ops[2:]), [])
        elif op.startswith('v_'):
            kind = 'trans' if op.replace('_e32', '').replace('_e64', '') in TRANS else 'valu'
            dst = R(ops[0]); src = sum((R(o) for o in ops[1:]), [])
            if op.startswith(('v_fmac', 'v_dot2c', 'v_pk_fmac')) or isdpp:
                src += dst
            if op.startswith('v_cndmask') and len(ops) == 3:
                src += ['vcc_lo', 'vcc_hi']
        elif op.startswith('ds_read') or op.startswith('ds_bpermute') or op.startswith('ds_swizzle') or op.startswith('ds_permute'):
            kind = 'ds'
            dst = R(ops[0]); src = sum((R(o) for o in ops[1:]), [])
        elif op.startswith('ds_'):
            kind = 'ds'
            src = sum((R(o) for o in ops), [])
        elif op.startswith(('buffer_load', 'global_load')):
            kind = 'vm'
            if 'lds' in mods or '_lds_' in op:
                src = sum((R(o) for o in ops), []) + ['m0']
            else:
                dst = R(ops[0]); src = sum((R(o) for o in ops[1:]), [])
        elif op.startswith(('buffer_store', 'global_store')):
            kind = 'vm'
            src = sum((R(o) for o in ops), [])
        elif op.startswith(('buffer_atomic', 'global_atomic')):
            kind = 'vm'
            src = sum((R(o) for o in ops), [])
            if 'sc0' in mods:
                dst = R(ops[0])
        elif op.startswith(('buffer_inv', 'buffer_wbl2')):
            kind = 'vm'
        elif op.startswith('s_'):
            kind = 'salu'
            if op.startswith(('s_load', 's_buffer_load', 's_memtime', 's_memrealtime')):
                kind = 'smem'
                dst = R(ops[0]); src = sum((R(o) for o in ops[1:]), [])
            elif op.startswith(('s_cmp', 's_bitcmp')):
                src = sum((R(o) for o in ops), [])
            elif op.startswith(('s_waitcnt', 's_nop', 's_barrier', 's_branch', 's_cbranch', 's_endpgm', 's_sleep', 's_setprio')):
                pass
            else:
                dst = R(ops[0]) if ops else []
                src = sum((R(o) for o in ops[1:]), [])
        else:
            raise ValueError('unknown op ' + text)

        need = 0

        def req(p, d):
            nonlocal need
            need = max(need, d - (self.pos - p - 1))

        isvalu = kind in ('valu', 'trans', 'valu_s')
        for r in src:
            wr = self.w.get(r)
            if not wr:
                continue
            wk, p, ex = wr
            if wk in ('valu', 'trans'):
                if kind == 'mfma':
                    req(p, 2)
                if op.startswith('v_permlane') or isdpp:
                    req(p, 2)
                if op.startswith(('v_readfirstlane', 'v_readlane')):
                    req(p, 1)
                if wk == 'trans' and isvalu and kind != 'trans':
                    req(p, 1)
                if wk == 'trans' and kind == 'trans':
                    req(p, 1)
            elif wk == 'valu_s':
                if isvalu:
                    req(p, 4 if op.startswith(('v_readlane', 'v_writelane')) else 2)
                elif kind == 'vm':
                    req(p, 5)
                elif kind in ('salu', 'smem'):
                    req(p, 2)
            elif wk == 'm0':
                req(p, 1)
            elif wk == 'mfma':
                ps, dregs, wop = ex
                if kind == 'mfma' and r in cc and r not in a and r not in b:
                    if cc == dregs and wop == op:
                        pass
                    else:
                        req(p, 6 if ps == 4 else 10)
                else:
                    req(p, 8 if ps == 4 else 12)
        for r in dst:
            wr = self.w.get(r)
            if wr and wr[0] == 'mfma':
                ps, dregs, wop = wr[2]
                if kind == 'mfma':
                    if not (cc == dregs and dst == dregs and wop == op):
                        req(wr[1], 6 if ps == 4 else 10)
                else:
                    req(wr[1], 8 if ps == 4 else 12)
            if r in self.rc and kind != 'mfma':
                p, ps = self.rc[r]
                req(p, 3 if ps == 4 else 7)
            if r in self.sd:
                req(self.sd[r], 2)
        self._nop(need)

        if self.check:
            for r in src + dst:
                for q, nm in ((self.vm, 'vm'), (self.lg, 'lgkm')):
                    for d in q:
                        if r in d:
                            raise AssertionError(f'use of {r} with outstanding {nm} load: {text}')
        if op == 's_waitcnt':
            m = re.search(r'vmcnt\((\d+)\)', text)
            if m:
                n = int(m.group(1))
                while len(self.vm) > n:
                    self.vm.pop(0)
            m = re.search(r'lgkmcnt\((\d+)\)', text)
            if m:
                n = int(m.group(1))
                while len(self.lg) > n:
                    self.lg.pop(0)
        if kind == 'vm':
            self.vm.append(set(dst))
            assert len(self.vm) <= 63 or not self.check, 'too many outstanding vmem'
        if kind in ('ds', 'smem'):
            self.lg.append(set(dst))

        self.lines.append('    ' + text)
        if op == 's_nop':
            self.pos += int(ops[0], 0) + 1
            return
        for r in dst:
            if kind == 'mfma':
                self.w[r] = ('mfma', self.pos, (mfma_passes(op), dst, op))
            elif kind in ('valu', 'trans'):
                if r[0] in 'va' and not r.startswith('vcc'):
                    self.w[r] = (kind, self.pos, None)
                else:
                    self.w[r] = ('valu_s', self.pos, None)
            elif kind == 'valu_s':
                self.w[r] = ('valu_s', self.pos, None)
            elif kind == 'salu' and r == 'm0':
                self.w[r] = ('m0', self.pos, None)
            else:
                self.w.pop(r, None)
        if kind == 'mfma':
            for r in cc:
                self.rc[r] = (self.pos, mfma_passes(op))
        if kind == 'vm' and op.endswith(('x3', 'x4')) and 'store' in op:
            for r in R(ops[0] if op.startswith('buffer') else ops[1]):
                self.sd[r] = self.pos
        self.pos += 1
        if op.startswith(('s_branch', 's_cbranch')):
            pass

    def br(self, text):
        self.flush_keep_vcc(text)

    def flush_keep_vcc(self, text):
        self.flush()
        self.lines.append('    ' + text)
        self.pos += 1

    def text(self):
        return '\n'.join(self.lines) + '\n'


def v(i, n=1):
    return f'v{i}' if n == 1 else f'v[{i}:{i + n - 1}]'


def a(i, n=1):
    return f'a{i}' if n == 1 else f'a[{i}:{i + n - 1}]'


def s(i, n=1):
    return f's{i}' if n == 1 else f's[{i}:{i + n - 1}]'


def u(i, n=1):
    if i < 256:
        assert i + n <= 256
        return v(i, n)
    return a(i - 256, n)
```

```python
from asmlib import *

NAME = 'sequential_preLN__memory_aug_recurrent_mem_tr__mixer_token_mlp__prompt'

KA_X, KA_MEM0, KA_WQ, KA_WK, KA_WV, KA_WO, KA_SEG, KA_BX, KA_W1, KA_B1, KA_W2, KA_B2, KA_OUT, KA_DBG, KA_WS = [8 * i for i in range(15)]

WS_XN = 0x0000000
WS_QF = 0x0200000
WS_KF = 0x1200000
WS_VF = 0x2200000
WS_KM = 0xA020000
WS_VM = 0xAA10000
WS_PB = 0x3E00000
WS_MB = 0x3F00000
WS_FLAG = 0x3F80000
WS_OP = 0x4000000
WS_H = 0x8000000
WS_HP = 0x8200000
WS_U = 0x8400000
WS_DBG = 0x9000000
WS_SIZE = 0x10000000

SRD3 = 0x00020000


def header(launches):
    ref = open(f'cdna_kernels/{NAME}.s.ref').read().split('\n')
    out = []
    for ln in ref:
        if ln.startswith('; @launch') or ln.startswith('; Override') or ln.startswith('; grid=ceil'):
            continue
        if not ln.startswith(';'):
            break
        out.append(ln)
    for (k, g, b, lds) in launches:
        out.append(f'; @launch kernel={k} grid=({g},1,1) block=({b},1,1) lds={lds}')
    out.append('.amdgcn_target "amdgcn-amd-amdhsa--gfx950"')
    out.append('.text')
    return '\n'.join(out) + '\n'


def kernel_begin(A, name):
    A.raw(f'.globl {name}')
    A.raw('.p2align 8')
    A.raw(f'.type {name},@function')
    A.raw(f'{name}:')
    A.w.clear(); A.rc.clear(); A.sd.clear(); A.forget_loads()


def kernel_desc(name, nvgpr, accum, nsgpr=102):
    return f'''.p2align 6
.amdhsa_kernel {name}
  .amdhsa_next_free_vgpr {nvgpr}
  .amdhsa_next_free_sgpr {nsgpr}
  .amdhsa_accum_offset {accum}
  .amdhsa_group_segment_fixed_size 0
  .amdhsa_kernarg_size 120
  .amdhsa_user_sgpr_count 2
  .amdhsa_user_sgpr_kernarg_segment_ptr 1
  .amdhsa_system_sgpr_workgroup_id_x 1
.end_amdhsa_kernel
'''


def make_srd(A, d, base, nbytes):
    A.I(f's_mov_b32 s{d}, s{base}')
    A.I(f's_and_b32 s{d + 1}, s{base + 1}, 0xffff')
    A.I(f's_mov_b32 s{d + 2}, 0x{nbytes:x}')
    A.I(f's_mov_b32 s{d + 3}, 0x{SRD3:x}')
```

```python
from common import *
import os, math, struct
STAMPS = bool(os.environ.get('STAMPS'))
NSTEPS = 63
LDF = os.environ.get('LDF', 'sc1').replace('_', ' ')
STF = os.environ.get('STF', '').replace('_', ' ')
EXF = os.environ.get('EXF', 'sc1')
E = lambda k, d: int(os.environ.get(k, d))
TOUCH_AHEAD = E('TOUCH_AHEAD', 1)
PB_DELAY, PB_GAP, AF_DELAY, AF_GAP = E('PB_DELAY', 0), E('PB_GAP', 0), E('AF_DELAY', 0), E('AF_GAP', 3)
OUT = os.environ.get('OUT', 'rec_test.s')

L_QX = 0
L_KX_ = 2560
L_VM = 5120
L_AF = 7168
L_OX = L_AF
L_KV = 15360
L_WO = 31744
L_HALF = 65792
L_TOTAL = L_WO + 2 * L_HALF

PB_GRP = 8448
PB_SLOT = 0x48000

S_WS, S_W, S_DBG = 4, 8, 12
S_H, S_WV, S_STEP = 32, 33, 34
S_SPIN = 35
S_MBR, S_MBW = 36, 37
S_TAG = 47
S_PB0, S_PB1 = 38, 39
S_PB0H = 40
S_AFO = 41
S_TCH = 42
S_KVN = 44
S_KMO, S_VMO = 45, 46
S_T0, S_T1, S_T2, S_T3 = 48, 49, 50, 51
S_C = 52
S_ONE = 54
S_TS = 56
S_M0, S_M1 = 16, 18
S_W640 = 20
S_KVM0 = 62
S_W11 = 63

AF = 0
ACC = 32
KX = 56
VX = 88
T = 96
V_IDX, V_L16, V_QKW, V_QR, V_KR, V_OW, V_WO0, V_WO1, V_PBW, V_RDR, V_MBW, V_SEL, V_VX, V_SP, V_MX, V_TM = range(112, 128)
S_PZ = 43
LANE = 100

LDS_SLOT = {}
_l0 = [('q', 0, 0), ('q', 1, 0), ('q', 0, 1), ('q', 1, 1), ('k', 0, 0), ('k', 1, 0), ('o', 6, 0), ('o', 7, 0)]
_l1 = [('k', 0, 1), ('k', 1, 1), ('k', 0, 2), ('k', 1, 2), ('k', 0, 3), ('k', 1, 3), ('o', 6, 1), ('o', 7, 1)]
for i, f in enumerate(_l0):
    LDS_SLOT[f] = (0, i)
for i, f in enumerate(_l1):
    LDS_SLOT[f] = (1, i)
HOME = {}
_h = 0
for mat in 'qkv':
    for nb in range(2):
        for t in range(8):
            HOME[(mat, nb, t)] = (256 + _h * 8) if _h < 32 else (128 + (_h - 32) * 8)
            _h += 1
for t2 in range(2):
    vac = [f for f, (hf, sl) in LDS_SLOT.items() if hf == t2 and f[0] != 'o']
    assert len(vac) == 6
    for nbo in range(6):
        HOME[('o', nbo, t2)] = HOME[vac[nbo]]


def lds_frag_read(A, f, b):
    hf, sl = LDS_SLOT[f]
    va = V_WO1 if hf else V_WO0
    A.I(f'ds_read_b128 {v(b, 4)}, v{va} offset:{sl * 2048}')
    A.I(f'ds_read_b128 {v(b + 4, 4)}, v{va} offset:{sl * 2048 + 1024}')


def lane_fields(A, vt, vg, vn):
    A.I(f'v_and_b32 v{vn}, 15, v{vt}')
    A.I(f'v_bfe_u32 v{vg}, v{vt}, 4, 2')


def stage_weights(A, ptr_sgprs):
    g, n = 2, 3
    lane_fields(A, LANE, g, n)
    VD0, VD1 = 4, 5
    A.I(f'v_lshrrev_b32 v6, 5, v{LANE}')
    A.I(f's_and_b32 s{S_T0}, s{S_WV}, 1')
    A.I(f's_lshl_b32 s{S_T0}, s{S_T0}, 1')
    A.I(f'v_or_b32 v6, s{S_T0}, v6')
    A.I(f'v_lshlrev_b32 v6, 1, v6')
    A.I(f'v_xor_b32 v6, v6, v{n}')
    A.I(f'v_lshlrev_b32 v6, 4, v6')
    A.I(f'v_lshlrev_b32 v7, 13, v{g}')
    A.I(f'v_or_b32 v{VD0}, v6, v7')
    A.I(f'v_xor_b32 v{VD1}, 0x80, v{VD0}')
    A.I(f'v_lshrrev_b32 v6, 2, v{n}')
    A.I(f'v_and_b32 v7, 3, v{n}')
    A.I(f'v_and_b32 v8, 1, v6')
    A.I(f'v_lshrrev_b32 v9, 1, v6')
    A.I(f'v_and_b32 v10, 1, v{g}')
    A.I(f'v_lshrrev_b32 v11, 1, v{g}')
    A.I(f'v_lshlrev_b32 v12, 7, v11')
    A.I(f'v_lshl_add_u32 v12, v10, 1, v12')
    A.I(f'v_lshl_add_u32 v12, v8, 4, v12')
    A.I(f'v_lshl_add_u32 v12, v9, 2, v12')
    A.I(f'v_lshl_add_u32 v13, v9, 1, v10')
    A.I(f'v_lshl_add_u32 v13, v8, 2, v13')
    A.I(f's_lshl_b32 s{S_T0}, s{S_WV}, 1')
    A.I(f'v_xor_b32 v13, s{S_T0}, v13')
    A.I(f'v_lshlrev_b32 v14, 8, v12')
    A.I(f'v_lshl_add_u32 v14, v13, 5, v14')
    A.I(f'v_lshl_add_u32 v14, v7, 3, v14')
    VT = {}
    A.I(f'v_xor_b32 v15, 32, v14')
    r = 64
    for cu in range(4):
        A.I(f's_xor_b32 s{S_T0}, s{S_WV}, {cu}')
        A.I(f's_lshl_b32 s{S_T0}, s{S_T0}, 13')
        for bf in range(2):
            A.I(f's_add_u32 s{S_T1}, s{S_T0}, {L_WO + bf * L_HALF}')
            for nb in range(2):
                VT[(nb, bf, cu)] = r
                A.I(f'v_add_u32 v{r}, s{S_T1}, v{14 + nb}')
                r += 1
    A.I(f'v_lshl_add_u32 v13, v9, 1, v8')
    A.I(f'v_lshl_add_u32 v13, v10, 2, v13')
    A.I(f'v_lshlrev_b32 v14, 13, v13')
    A.I(f'v_lshl_add_u32 v14, v11, 11, v14')
    A.I(f'v_lshl_add_u32 v14, v13, 5, v14')
    A.I(f'v_lshl_add_u32 v14, v7, 3, v14')
    A.I(f's_lshl_b32 s{S_T0}, s{S_WV}, 8')
    A.I(f'v_add_u32 v14, s{S_T0}, v14')
    VTO = {0: 20, 1: 21}
    A.I(f'v_add_u32 v20, {L_WO}, v14')
    A.I(f'v_add_u32 v21, {L_WO + L_HALF}, v14')
    WOT = 32

    def dma(sc):
        buf = L_WO + (sc & 1) * L_HALF
        if sc < 6:
            mat, hh = sc >> 1, sc & 1
            make_srd(A, S_W, ptr_sgprs[mat], 512 * 8192)
            A.I(f's_lshl_b32 s{S_T0}, s{S_WV}, 15')
            A.I(f's_lshl_b32 s{S_T1}, s{S_H}, 8')
            A.I(f's_add_u32 s{S_T0}, s{S_T0}, s{S_T1}')
            A.I(f's_add_u32 s{S_T0}, s{S_T0}, {hh << 21}')
            A.I(f's_lshl_b32 s{S_T1}, s{S_WV}, 10')
            A.I(f's_add_u32 s{S_T1}, s{S_T1}, {buf}')
            for i in range(16):
                A.I(f's_mov_b32 m0, s{S_T1}')
                A.I(f'buffer_load_dwordx4 v{VD1 if i & 1 else VD0}, s[{S_W}:{S_W + 3}], s{S_T0} offen lds')
                if i < 15:
                    A.I(f's_add_u32 s{S_T0}, s{S_T0}, {4 * 32768}')
                    A.I(f's_add_u32 s{S_T1}, s{S_T1}, 4096')
        else:
            t2 = sc & 1
            make_srd(A, S_W, ptr_sgprs[3], 4096 * 1024)
            A.I(f's_and_b32 s{S_T0}, s{S_WV}, 1')
            A.I(f's_lshl_b32 s{S_T0}, s{S_T0}, 13')
            A.I(f's_lshr_b32 s{S_T1}, s{S_WV}, 1')
            A.I(f's_lshl_b32 s{S_T1}, s{S_T1}, 15')
            A.I(f's_add_u32 s{S_T0}, s{S_T0}, s{S_T1}')
            A.I(f's_lshl_b32 s{S_T1}, s{S_H}, 17')
            A.I(f's_add_u32 s{S_T0}, s{S_T0}, s{S_T1}')
            A.I(f's_add_u32 s{S_T0}, s{S_T0}, {t2 << 16}')
            A.I(f's_lshl_b32 s{S_T1}, s{S_WV}, 11')
            A.I(f's_add_u32 s{S_T1}, s{S_T1}, {buf}')
            for f in range(8):
                for x in range(2):
                    row = (f & 1) + 2 * x + 4 * ((f >> 1) & 1) + 16 * (f >> 2)
                    A.I(f's_add_u32 s{S_T2}, s{S_T1}, {(8 * f + x) * 1024 + 32 * f}')
                    A.I(f's_add_u32 s{S_T3}, s{S_T0}, {row * 1024}')
                    A.I(f's_mov_b32 m0, s{S_T2}')
                    A.I(f'buffer_load_dwordx4 v{V_L16}, s[{S_W}:{S_W + 3}], s{S_T3} offen lds')

    dma(0)
    dma(1)
    for sc in range(8):
        A.I(f's_waitcnt vmcnt({16 if sc < 7 else 0})')
        A.I('s_barrier')
        cnt = 0
        if sc < 6:
            mat, hh = 'qkv'[sc >> 1], sc & 1
            for nb in range(2):
                for t in range(8):
                    for x in range(2):
                        c, nhi = t >> 1, t & 1
                        imm = (8 * nhi + x) * 256
                        if cnt >= 12:
                            A.I('s_waitcnt lgkmcnt(8)')
                            cnt = 8
                        A.I(f'ds_read_b64_tr_b16 {u(HOME[(mat, nb, t)] + 4 * hh + 2 * x, 2)}, v{VT[(nb, sc & 1, c)]} offset:{imm}')
                        cnt += 1
        else:
            for nbo in range(8):
                for hh in range(2):
                    for x in range(2):
                        imm = (x + 4 * hh) * 1024 + 32 * nbo
                        if cnt >= 12:
                            A.I('s_waitcnt lgkmcnt(8)')
                            cnt = 8
                        A.I(f'ds_read_b64_tr_b16 {v(WOT + nbo * 8 + 4 * hh + 2 * x, 2)}, v{VTO[sc & 1]} offset:{imm}')
                        cnt += 1
        A.I('s_waitcnt lgkmcnt(0)')
        A.I('s_barrier')
        if sc + 2 < 8:
            dma(sc + 2)
        if sc >= 6:
            t2 = sc & 1
            va = V_WO1 if t2 else V_WO0
            k = 0
            for f, (hf, sl) in LDS_SLOT.items():
                if hf != t2:
                    continue
                src = (WOT + f[1] * 8) if f[0] == 'o' else HOME[f]
                for hh in range(2):
                    A.I(f'ds_write_b128 v{va}, {u(src + 4 * hh, 4)} offset:{sl * 2048 + hh * 1024}')
                k += 1
                if k & 1 == 0:
                    A.I('s_waitcnt lgkmcnt(4)')
            A.I('s_waitcnt lgkmcnt(0)')
            for nbo in range(6):
                hm = HOME[('o', nbo, t2)]
                for r in range(8):
                    if hm >= 256:
                        A.I(f'v_accvgpr_write_b32 a{hm - 256 + r}, v{WOT + nbo * 8 + r}')
                    else:
                        A.I(f'v_mov_b32 v{hm + r}, v{WOT + nbo * 8 + r}')


def setup_consts(A):
    g, n = 2, 3
    lane_fields(A, LANE, g, n)
    A.I(f's_lshl_b32 s{S_W11}, s{S_WV}, 11')
    A.I(f'v_bfe_u32 v4, v{n}, 1, 1')
    A.I(f'v_mul_u32_u24 v4, 0xaaaa, v4')
    A.I(f'v_add_u32 v{V_IDX}, 0x4444, v4')
    A.I(f'v_lshlrev_b32 v{V_L16}, 4, v{LANE}')
    A.I(f's_mul_i32 s{S_T0}, s{S_WV}, 640')
    A.I(f'v_lshrrev_b32 v4, 2, v{n}')
    A.I(f'v_mul_u32_u24 v4, 160, v4')
    A.I(f'v_lshl_add_u32 v4, v{g}, 4, v4')
    A.I(f'v_and_b32 v5, 3, v{n}')
    A.I(f'v_lshl_add_u32 v4, v5, 2, v4')
    A.I(f'v_add_u32 v{V_QKW}, s{S_T0}, v4')
    A.I(f'v_mul_u32_u24 v6, 160, v{g}')
    A.I(f'v_and_b32 v4, 1, v{n}')
    A.I(f'v_bfe_u32 v5, v{n}, 1, 2')
    A.I(f'v_lshl_add_u32 v4, v4, 2, v5')
    A.I(f'v_lshl_add_u32 v{V_QR}, v4, 4, v6')
    A.I(f'v_and_b32 v4, 1, v{n}')
    A.I(f'v_lshrrev_b32 v5, 2, v{n}')
    A.I(f'v_and_b32 v7, 2, v{n}')
    A.I(f'v_xor_b32 v5, v5, v7')
    A.I(f'v_lshl_add_u32 v4, v4, 2, v5')
    A.I(f'v_lshl_add_u32 v{V_KR}, v4, 4, v6')
    A.I(f'v_add_u32 v{V_KR}, {L_KX_}, v{V_KR}')
    A.I(f's_lshl_b32 s{S_T0}, s{S_WV}, 9')
    A.I(f's_add_u32 s{S_T0}, s{S_T0}, {L_OX}')
    A.I(f'v_lshrrev_b32 v4, 1, v{g}')
    A.I(f'v_lshlrev_b32 v4, 8, v4')
    A.I(f'v_lshrrev_b32 v5, 1, v{n}')
    A.I(f'v_lshl_add_u32 v4, v5, 6, v4')
    A.I(f'v_and_b32 v5, 1, v{g}')
    A.I(f'v_lshl_add_u32 v4, v5, 5, v4')
    A.I(f'v_and_b32 v5, 1, v{n}')
    A.I(f'v_lshl_add_u32 v4, v5, 4, v4')
    A.I(f'v_add_u32 v4, s{S_T0}, v4')
    A.I(f'v_add_u32 v5, {L_QX}, v{V_L16}')
    A.I(f'v_cmp_gt_u32 vcc, 8, v{n}')
    A.I(f'v_cndmask_b32 v{V_OW}, v5, v4, vcc')
    A.I(f's_lshl_b32 s{S_T0}, s{S_WV}, 14')
    A.I(f's_add_u32 s{S_T0}, s{S_T0}, {L_WO}')
    A.I(f'v_add_u32 v{V_WO0}, s{S_T0}, v{V_L16}')
    A.I(f'v_add_u32 v{V_WO1}, {L_HALF}, v{V_WO0}')
    A.I(f'v_add_u32 v{V_VX}, s{S_W11}, v{V_L16}')
    A.I(f'v_lshrrev_b32 v4, 3, v{n}')
    A.I(f'v_lshl_add_u32 v4, v{g}, 1, v4')
    A.I(f'v_mul_u32_u24 v4, {PB_GRP}, v4')
    A.I(f'v_and_b32 v5, 7, v{n}')
    A.I(f'v_lshl_add_u32 v4, v5, 4, v4')
    A.I(f's_mul_i32 s{S_T0}, s{S_WV}, {8 * PB_GRP}')
    A.I(f's_lshl_b32 s{S_T1}, s{S_H}, 8')
    A.I(f's_add_u32 s{S_T0}, s{S_T0}, s{S_T1}')
    A.I(f'v_add_u32 v{V_PBW}, s{S_T0}, v4')
    A.I(f's_mul_i32 s{S_T0}, s{S_H}, {PB_GRP}')
    A.I(f's_add_u32 s{S_PZ}, s{S_T0}, s{S_W11}')
    A.I(f's_lshl_b32 s{S_T1}, s{S_WV}, 7')
    A.I(f's_add_u32 s{S_T0}, s{S_T0}, s{S_T1}')
    A.I(f'v_lshlrev_b32 v4, 8, v{g}')
    A.I(f'v_lshl_add_u32 v4, v{n}, 3, v4')
    A.I(f'v_add_u32 v{V_RDR}, s{S_T0}, v4')
    A.I(f's_and_b32 s{S_T1}, s{S_H}, 1')
    A.I(f's_lshl_b32 s{S_T1}, s{S_T1}, 10')
    A.I(f's_lshl_b32 s{S_T0}, s{S_WV}, 12')
    A.I(f's_add_u32 s{S_T0}, s{S_T0}, s{S_T1}')
    A.I(f's_lshr_b32 s{S_T1}, s{S_H}, 1')
    A.I(f's_lshl_b32 s{S_T1}, s{S_T1}, 6')
    A.I(f's_add_u32 s{S_T0}, s{S_T0}, s{S_T1}')
    A.I(f'v_lshrrev_b32 v4, 3, v{n}')
    A.I(f'v_lshlrev_b32 v4, 5, v4')
    A.I(f'v_and_b32 v5, 1, v{n}')
    A.I(f'v_lshl_add_u32 v4, v5, 11, v4')
    A.I(f'v_bfe_u32 v5, v{n}, 1, 2')
    A.I(f'v_lshl_add_u32 v4, v5, 2, v4')
    A.I(f'v_add_u32 v4, s{S_T0}, v4')
    A.I(f'v_mov_b32 v5, 0x7f000000')
    A.I(f'v_cmp_gt_u32 vcc, 16, v{LANE}')
    A.I(f'v_cndmask_b32 v{V_MBW}, v5, v4, vcc')
    A.I(f'v_mov_b32 v4, 0x3f80')
    A.I(f'v_mov_b32 v5, 0x3f800000')
    A.I(f'v_and_b32 v6, 1, v{n}')
    A.I(f'v_cmp_eq_u32 vcc, 1, v6')
    A.I(f'v_cndmask_b32 v{V_SEL}, v4, v5, vcc')
    A.I(f'v_lshrrev_b32 v6, 1, v{n}')
    A.I(f'v_cmp_eq_u32 s[{S_M0}:{S_M0 + 1}], 0, v6')
    A.I(f'v_cmp_eq_u32 s[{S_M1}:{S_M1 + 1}], 1, v6')
    c = (128 ** -0.5) * math.log2(math.e)
    cb = struct.unpack("<I", struct.pack("<f", c))[0]
    A.I(f's_mov_b32 s{S_C}, 0x{cb:08x}')
    A.I(f's_mov_b32 s{S_C + 1}, 0x{cb:08x}')
    A.I(f's_mov_b32 s{S_ONE}, 0x3f803f80')
    A.I(f's_mov_b32 s{S_ONE + 1}, 0x3f803f80')


def init_exchange(A, s_mem0, st):
    ws = f's[{S_WS}:{S_WS + 3}]'
    for r in range(4, 8):
        A.I(f'v_mov_b32 v{r}, -1')
    for r in range(3):
        A.I(f's_add_u32 s{S_T0}, s{S_PZ}, 0x{WS_PB + r * PB_SLOT:x}')
        for c in range(2):
            A.I(f'buffer_store_dwordx4 v[4:7], v{V_L16}, {ws}, s{S_T0} offen offset:{1024 * c} {st}')
    le = A.newlabel('L_ie')
    A.I(f's_cmp_ge_u32 s{S_WV}, 2')
    A.br(f's_cbranch_scc1 {le}')
    A.I(f's_mov_b32 s{S_T0}, 0x{WS_MB + 8192:x}')
    A.I(f'buffer_store_dword v4, v{V_MBW}, {ws}, s{S_T0} offen {st}')
    A.I(f'buffer_store_dword v4, v{V_MBW}, {ws}, s{S_T0} offen offset:16 {st}')
    make_srd(A, S_W, s_mem0, 8192)
    n = 3
    A.I(f'v_and_b32 v{n}, 15, v{LANE}')
    A.I(f's_bfe_u32 s{S_T0}, s{S_H}, 0x20001')
    A.I(f's_lshl_b32 s{S_T0}, s{S_T0}, 11')
    A.I(f's_lshr_b32 s{S_T1}, s{S_H}, 3')
    A.I(f's_lshl_b32 s{S_T1}, s{S_T1}, 8')
    A.I(f's_add_u32 s{S_T0}, s{S_T0}, s{S_T1}')
    A.I(f's_lshl_b32 s{S_T1}, s{S_WV}, 7')
    A.I(f's_add_u32 s{S_T0}, s{S_T0}, s{S_T1}')
    A.I(f's_and_b32 s{S_T1}, s{S_H}, 1')
    A.I(f's_lshl_b32 s{S_T1}, s{S_T1}, 4')
    A.I(f's_add_u32 s{S_T0}, s{S_T0}, s{S_T1}')
    A.I(f'v_and_b32 v12, 1, v{n}')
    A.I(f'v_lshlrev_b32 v12, 6, v12')
    A.I(f'v_lshrrev_b32 v13, 1, v{n}')
    A.I(f'v_lshl_add_u32 v12, v13, 1, v12')
    w = f's[{S_W}:{S_W + 3}]'
    A.I(f'buffer_load_ushort v8, v12, {w}, s{S_T0} offen')
    A.I(f'buffer_load_ushort v9, v12, {w}, s{S_T0} offen offset:32')
    A.I(f'buffer_load_ushort v10, v12, {w}, s{S_T0} offen offset:1024')
    A.I(f'buffer_load_ushort v11, v12, {w}, s{S_T0} offen offset:1056')
    A.I('s_waitcnt vmcnt(0)')
    A.I('v_lshl_or_b32 v8, v9, 16, v8')
    A.I('v_lshl_or_b32 v10, v11, 16, v10')
    A.I('v_min_u32 v8, -2, v8')
    A.I('v_min_u32 v10, -2, v10')
    A.I(f's_mov_b32 s{S_T0}, 0x{WS_MB:x}')
    A.I(f'buffer_store_dword v8, v{V_MBW}, {ws}, s{S_T0} offen {st}')
    A.I(f'buffer_store_dword v10, v{V_MBW}, {ws}, s{S_T0} offen offset:16 {st}')
    A.label(le)
    A.I('s_waitcnt vmcnt(0)')


HS = [('q', 0, 0), ('q', 1, 0), ('q', 0, 1), ('q', 1, 1), ('k', 0, 0), ('k', 1, 0), ('k', 0, 1), ('k', 1, 1)]
QBUF = dict(zip(HS, [KX, KX + 8, KX + 16, KX + 24, VX, T, T + 8, ACC + 16]))


def zero(A, r0, n):
    for i in range(0, n, 2):
        A.I(f'v_mov_b64 {v(r0 + i, 2)}, 0')


def q_prefetch(A, part=None):
    for i, f in enumerate(HS):
        if part is not None and (i >> 2) != part:
            continue
        lds_frag_read(A, f, QBUF[f])
        if i == 5:
            A.I('s_waitcnt lgkmcnt(8)')


def kv_dma(A):
    ws = f's[{S_WS}:{S_WS + 3}]'
    A.I(f's_mov_b32 m0, s{S_KVM0}')
    A.I(f's_add_u32 s{S_T0}, s{S_KVN}, 0x{WS_VF - WS_KF:x}')
    A.I(f'buffer_load_dwordx4 v{V_L16}, {ws}, s{S_KVN} offen lds')
    A.I(f'buffer_load_dwordx4 v{V_L16}, {ws}, s{S_KVN} offen offset:1024 lds')
    A.I(f's_add_u32 m0, s{S_KVM0}, 8192')
    A.I(f's_add_u32 s{S_KVN}, s{S_KVN}, 0x40000')
    A.I(f'buffer_load_dwordx4 v{V_L16}, {ws}, s{S_T0} offen lds')
    A.I(f'buffer_load_dwordx4 v{V_L16}, {ws}, s{S_T0} offen offset:1024 lds')


def main_loop(A, st, l_exit):
    ws = f's[{S_WS}:{S_WS + 3}]'
    A.I(f's_mov_b32 s{S_STEP}, 0')
    A.I(f's_mov_b32 s{S_MBR}, 0x{WS_MB:x}')
    A.I(f's_mov_b32 s{S_MBW}, 0x{WS_MB + 8192:x}')
    A.I(f's_mov_b32 s{S_PB0}, 0x{WS_PB:x}')
    A.I(f's_mov_b32 s{S_PB1}, 0x{WS_PB + PB_SLOT:x}')
    A.I(f's_lshl_b32 s{S_KMO}, s{S_H}, 12')
    A.I(f's_lshl_b32 s{S_T0}, s{S_WV}, 10')
    A.I(f's_add_u32 s{S_KMO}, s{S_KMO}, s{S_T0}')
    A.I(f's_add_u32 s{S_KMO}, s{S_KMO}, 0x{WS_KM - 0x20000:x}')
    A.I(f's_mul_i32 s{S_W640}, s{S_WV}, 640')
    A.I(f's_lshl_b32 s{S_VMO}, s{S_H}, 11')
    A.I(f's_lshl_b32 s{S_T0}, s{S_WV}, 9')
    A.I(f's_add_u32 s{S_VMO}, s{S_VMO}, s{S_T0}')
    A.I(f's_add_u32 s{S_VMO}, s{S_VMO}, 0x{WS_VM - 0x10000:x}')
    A.I(f's_lshr_b32 s{S_T0}, s{S_WV}, 1')
    A.I(f's_mul_i32 s{S_TCH}, s{S_T0}, 0x{WS_VF - WS_KF:x}')
    A.I(f's_and_b32 s{S_T0}, s{S_WV}, 1')
    A.I(f's_lshl_b32 s{S_T0}, s{S_T0}, 12')
    A.I(f's_add_u32 s{S_TCH}, s{S_TCH}, s{S_T0}')
    A.I(f's_lshl_b32 s{S_T0}, s{S_H}, 13')
    A.I(f's_add_u32 s{S_TCH}, s{S_TCH}, s{S_T0}')
    A.I(f's_add_u32 s{S_TCH}, s{S_TCH}, 0x{WS_KF + TOUCH_AHEAD * 0x40000:x}')

    NST = 12
    order = []

    def stamp(i):
        if not STAMPS:
            return
        order.append(i)
        A.raw(f'    s_memtime s[{64 + 2 * i}:{65 + 2 * i}]')
        A.pos += 1

    def stamp_acc():
        if not STAMPS:
            return
        A.I('s_waitcnt lgkmcnt(0)')
        if E('RAW', 0):
            lk = A.newlabel('L_raw')
            A.I(f's_cmp_lg_u32 s{S_STEP}, {E("RAW", 0)}')
            A.I(f's_cbranch_scc1 {lk}')
            for i in range(NST):
                if i != 6:
                    A.I(f's_mov_b32 s{88 + i}, s{64 + 2 * i}')
            A.label(lk)
            lk = A.newlabel('L_raw')
            A.I(f's_cmp_lg_u32 s{S_STEP}, {E("RAW", 0) - 1}')
            A.I(f's_cbranch_scc1 {lk}')
            A.I(f's_mov_b32 s{88 + 6}, s{64 + 12}')
            A.label(lk)
            return
        prev = 100
        for i in order:
            A.I(f's_sub_u32 s101, s{64 + 2 * i}, s{prev}')
            A.I(f's_add_u32 s{88 + i}, s{88 + i}, s101')
            prev = 64 + 2 * i
        A.I(f's_mov_b32 s100, s{prev}')
    if STAMPS:
        for i in range(NST):
            A.I(f's_mov_b32 s{88 + i}, 0')
        A.I(f's_memtime s[64:65]')
        A.I('s_waitcnt lgkmcnt(0)')
        for i in range(NST):
            A.I(f's_mov_b32 s{64 + 2 * i}, s64')
        A.I(f's_mov_b32 s100, s64')

    L_top = A.newlabel('L_rec')
    L_af = A.newlabel('L_afpoll')
    L_red = A.newlabel('L_red')
    L_bh = A.newlabel('L_bh')
    L_w23 = A.newlabel('L_w23')
    L_fin = A.newlabel('L_fin')
    HS_ = E('HSTAMP', 0)
    _stamp = stamp
    if HS_:
        order.extend([2, 3, 7, 9, 10])

    def hstamp(i):
        if STAMPS and HS_:
            A.raw(f'    s_memtime s[{64 + 2 * i}:{65 + 2 * i}]')
            A.pos += 1

    def stamp(i):
        if HS_ and i in (2, 3, 9, 10):
            return
        if HS_ and i == 7:
            return hstamp(7)
        _stamp(i)

    L_pslow = A.newlabel('L_pslow')
    L_aslow = A.newlabel('L_aslow')
    L_afok = A.newlabel('L_afok')
    L_afchk = A.newlabel('L_afchk')
    RA, RB, SEL, RD = 0, 16, ACC + 8, ACC + 12
    mx, tm = V_MX, V_TM
    TWO_PB, TWO_AF = E('TWO_PB', 1), E('TWO_AF', 1)

    def addr3():
        A.I(f'v_xor_b32 v{V_MX}, 2048, v{V_VX}')
        A.I(f'v_xor_b32 v{V_TM}, 4096, v{V_VX}')
        A.I(f'v_xor_b32 v{V_SP}, 6144, v{V_VX}')

    A.I(f's_mov_b32 s{S_TAG}, 0')
    zero(A, ACC, 8)
    q_prefetch(A)
    A.br(f's_branch {L_af}')

    def pb_loads(b):
        for i in range(8):
            so = S_PB0 if i < 4 else S_PB0H
            A.I(f'buffer_load_dwordx2 {v(b + 2 * i, 2)}, v{V_RDR}, {ws}, s{so} offen offset:{(i & 3) * 1024} {LDF}')

    def red(b, base):
        for i in range(4):
            A.I(f's_waitcnt vmcnt({base + 6 - 2 * i})')
            c = '0' if i == 0 else v(RD, 4)
            A.I(f'v_mfma_f32_16x16x32_bf16 {v(RD, 4)}, {v(SEL, 4)}, {v(b + 4 * i, 4)}, {c}')
            r = b + 4 * i
            tt = 0
            for idx in range(8):
                a_, b_, s_ = (idx >> 2) & 1, (idx >> 1) & 1, idx & 1
                if (a_ ^ s_) | (b_ ^ s_):
                    tt |= 1 << idx
            d = mx if i == 0 else tm
            A.I(f'v_bitop3_b32 v{d}, v{r}, v{r + 2}, s{S_TAG} bitop3:0x{tt:x}')
            if i:
                A.I(f'v_or_b32 v{mx}, v{mx}, v{tm}')
        A.I(f'v_and_b32 v{mx}, 1, v{mx}')
        A.I(f'v_cmp_eq_u32 vcc, 1, v{mx}')

    def af_loads(b):
        for i in range(2):
            A.I(f'buffer_load_dwordx4 {v(b + 4 * i, 4)}, v{V_L16}, {ws}, s{S_AFO} offen offset:{i * 1024} {LDF}')

    def af_chk(b, tmp):
        A.I(f'ds_write_b128 v{V_VX}, {v(b, 4)} offset:{L_AF}')
        A.I(f'v_max3_u32 v{tmp}, v{b}, v{b + 1}, v{b + 2}')
        A.I(f'v_max3_u32 v{tmp}, v{tmp}, v{b + 3}, v{b + 4}')
        A.I(f'ds_write_b128 v{V_VX}, {v(b + 4, 4)} offset:{L_AF + 1024}')
        A.I(f'v_max3_u32 v{tmp}, v{tmp}, v{b + 5}, v{b + 6}')
        A.I(f'v_max_u32 v{tmp}, v{tmp}, v{b + 7}')
        A.I(f'v_cmp_eq_u32 vcc, -1, v{tmp}')

    A.raw('.p2align 6')
    A.label(L_top)
    A.forget_loads()
    A.check = False
    red(RA, 8 if TWO_PB else 0)
    hstamp(3)
    A.I(f's_cbranch_vccnz {L_pslow}')
    A.label(L_red, flush=False)
    A.I(f'v_mov_b32 v{tm}, -1')
    A.I('s_nop 2')
    A.I(f'v_cvt_pk_bf16_f32 v{RD}, v{RD}, v{RD + 1}')
    A.I(f'v_cvt_pk_bf16_f32 v{RD + 2}, v{RD + 2}, v{RD + 3}')
    A.I(f'buffer_store_dword v{RD}, v{V_MBW}, {ws}, s{S_MBW} offen {st}')
    A.I(f'buffer_store_dword v{RD + 2}, v{V_MBW}, {ws}, s{S_MBW} offen offset:16 {st}')
    A.I(f'buffer_store_dword v{tm}, v{V_MBW}, {ws}, s{S_MBR} offen {st}')
    A.I(f'buffer_store_dword v{tm}, v{V_MBW}, {ws}, s{S_MBR} offen offset:16 {st}')
    A.label(L_bh, flush=False)
    stamp(7)
    A.I('s_barrier')
    A.I(f's_mov_b32 s{S_T0}, s{S_MBR}')
    A.I(f's_mov_b32 s{S_MBR}, s{S_MBW}')
    A.I(f's_mov_b32 s{S_MBW}, s{S_T0}')
    A.I(f's_mov_b32 s{S_T0}, s{S_PB0}')
    A.I(f's_mov_b32 s{S_PB0}, s{S_PB1}')
    A.I(f's_mov_b32 s{S_PB1}, s{S_T0}')
    A.I(f's_add_u32 s{S_STEP}, s{S_STEP}, 1')
    A.I(f's_bfe_u32 s{S_TAG}, s{S_STEP}, 0x10001')
    A.label(L_af, flush=False)
    A.I(f's_add_u32 s{S_AFO}, s{S_MBR}, s{S_W11}')
    zero(A, ACC + 8, 8)
    addr3()
    for i in range(AF_DELAY):
        A.I('s_nop 7')
    ASETS = [0, 24, 16]
    af_loads(0)
    hstamp(9)
    for b in ASETS[1:]:
        for i in range(AF_GAP):
            A.I('s_nop 7')
        af_loads(b)

    def mf(mat, nb, t, src=None):
        acc = ACC + ('qkv'.index(mat) * 2 + nb) * 4
        if src is None:
            src = QBUF.get((mat, nb, t))
        b = v(src, 8) if src is not None else u(HOME[(mat, nb, t)], 8)
        A.I(f'v_smfmac_f32_16x16x64_bf16 {v(acc, 4)}, {v(AF + 4 * t, 4)}, {b}, v{V_IDX}')

    A.label(L_afchk, flush=False)
    A.I(f's_waitcnt vmcnt(4) lgkmcnt(0)')
    A.label(L_afok, flush=False)
    hstamp(10)
    tmp = 8
    A.I(f'ds_write_b128 v{V_VX}, {v(0, 4)} offset:{L_AF}')
    A.I(f'ds_write_b128 v{V_VX}, {v(4, 4)} offset:{L_AF + 1024}')
    mf('q', 0, 0)
    A.I(f'v_max3_u32 v{tmp}, v0, v1, v2')
    A.I(f'v_max3_u32 v{tmp}, v{tmp}, v3, v4')
    mf('q', 1, 0)
    A.I(f'v_max3_u32 v{tmp}, v{tmp}, v5, v6')
    A.I(f'v_max_u32 v{tmp}, v{tmp}, v7')
    A.I(f'v_cmp_eq_u32 vcc, -1, v{tmp}')
    A.I(f's_cbranch_vccnz {L_aslow}')
    stamp(8)
    A.check = True
    A.forget_loads()
    A.I('s_waitcnt lgkmcnt(0)')
    A.I('s_barrier')
    stamp(0)
    pend = []
    ar = {1: V_MX, 2: V_TM, 3: V_SP}
    hs = [('q', 0, 1), ('q', 1, 1), ('k', 0, 0), ('k', 1, 0), ('k', 0, 1), ('k', 1, 1)]

    def afr(uu):
        A.I(f'ds_read_b128 {v(AF + 4 * uu, 4)}, v{ar[uu >> 1]} offset:{L_AF + 1024 * (uu & 1)}')
        pend.append(('af', uu))
    afr(2); afr(3)
    mf(*hs[0])
    A.I(f'v_lshlrev_b32 v{V_MX}, 2, v{V_L16}')
    mf(*hs[1])
    mf(*hs[2])
    mf(*hs[3])
    KBUF = {}

    def kload(nb, t, b):
        KBUF[(nb, t)] = b
        lds_frag_read(A, ('k', nb, t), b)
        pend.extend([('k', t), ('k', t)])

    kload(0, 2, QBUF[('q', 0, 0)])
    mf(*hs[4])
    kload(1, 2, QBUF[('q', 1, 0)])
    mf(*hs[5])
    A.I('s_waitcnt vmcnt(0)')
    for uu in range(4, 8):
        afr(uu)
    A.I(f'v_lshrrev_b32 v{V_TM}, 2, v{V_L16}')
    if not E('NODMA', 0):
        A.I(f'buffer_load_dword v{V_SP}, v{V_MX}, {ws}, s{S_TCH} offen')

    def wait_for(name):
        if name not in pend:
            return
        idx = max(i for i, p in enumerate(pend) if p == name)
        n = len(pend) - 1 - idx
        A.I(f's_waitcnt lgkmcnt({n})')
        del pend[:idx + 1]

    EXP, EXV = ACC + 16, ACC + 20
    for t in range(2, 8):
        wait_for(('af', t))
        mf('q', 0, t)
        if t == 2:
            kload(0, 3, QBUF[('q', 0, 1)])
        if t == 3:
            kload(1, 3, QBUF[('q', 1, 1)])
        if t == 4:
            A.I(f'v_add_u32 v{EXP}, s{S_W640}, v{V_KR}')
        if t == 5:
            A.I(f'v_lshrrev_b32 v{EXV}, 2, v{V_VX}')
        if t == 6:
            A.I(f'ds_read_b64 {v(EXV, 2)}, v{EXV} offset:{L_VM}')
            pend.append(('ex', 1))
        mf('q', 1, t)
        if t == 4:
            A.I(f'ds_read_b128 {v(EXP, 4)}, v{EXP}')
            pend.append(('ex', 0))
        if t == 5:
            A.I(f'v_lshl_add_u32 v{EXV}, v{V_MX}, 0, v{EXV}' if False else f'v_add_u32 v{EXV}, v{EXV}, v{V_TM}')
        if t >= 6:
            A.I(f'ds_read_b128 {v(VX + 4 * (t - 6), 4)}, v{V_VX} offset:{L_KV + 8192 + 1024 * (t - 6)}')
            pend.append(('vx', t))
    stamp(1)
    q0, q1, k0, k1 = ACC, ACC + 4, ACC + 8, ACC + 12
    QF = T

    def kmf(t, nb):
        mf('k', nb, t, KBUF.get((nb, t)))

    def pack(b0, b1):
        return [f'v_add_f32 v{b0}, v{b0}, v{b0 + 2}',
                f'v_add_f32 v{b0 + 1}, v{b0 + 1}, v{b0 + 3}',
                f'v_add_f32 v{b1}, v{b1}, v{b1 + 2}',
                f'v_add_f32 v{b1 + 1}, v{b1 + 1}, v{b1 + 3}',
                f'v_cvt_pk_bf16_f32 v{b0}, v{b0}, v{b1}',
                f'v_cvt_pk_bf16_f32 v{b0 + 1}, v{b0 + 1}, v{b1 + 1}']

    wait_for(('k', 2))
    kmf(2, 0)
    A.I(f's_add_u32 s{S_TCH}, s{S_TCH}, 0x40000')
    A.I(f'v_lshrrev_b32 v{V_TM}, 1, v{V_L16}')
    kmf(2, 1)
    wait_for(('ex', 1))
    if not E('NOEXP', 0):
        A.I(f'buffer_store_dwordx4 {v(EXP, 4)}, v{V_L16}, {ws}, s{S_KMO} offen {EXF}')
    kmf(3, 0)
    if not E('NOEXP', 0):
        A.I(f'buffer_store_dwordx2 {v(EXV, 2)}, v{V_TM}, {ws}, s{S_VMO} offen {EXF}')
    A.I(f's_add_u32 s{S_KMO}, s{S_KMO}, 0x20000')
    A.I(f's_add_u32 s{S_VMO}, s{S_VMO}, 0x10000')
    kmf(3, 1)
    kxr = [f'ds_read_b128 {v(KX + 4 * f, 4)}, v{V_L16} offset:{L_KV + 1024 * f}' for f in range(8)]
    pq = pack(q0, q1) + [f'ds_write2_b32 v{V_QKW}, v{q0}, v{q0 + 1} offset0:0 offset1:16']
    fl = []
    for i in range(8):
        fl.append([kxr[i]] + ([pq[i]] if i < 7 else []) + ([f'v_mov_b64 {v(ACC + 16 + (i - 4) * 2, 2)}, 0'] if i >= 4 else []))
    for i, (t, nb) in enumerate([(t, nb) for t in range(4, 8) for nb in range(2)]):
        for x in fl[i]:
            A.I(x)
        kmf(t, nb)
    stamp(2)
    pk = pack(k0, k1)
    mf('v', 0, 0)
    mf('v', 1, 0)
    A.I('s_nop 4')
    A.I(pk[0]); A.I(pk[1]); A.I(pk[2])
    mf('v', 0, 1)
    A.I(pk[3]); A.I(pk[4]); A.I(pk[5])
    A.I(f'ds_write_b32 v{V_QKW}, v{k0} offset:{L_KX_}')
    A.I(f'ds_write_b32 v{V_QKW}, v{k0 + 1} offset:{L_KX_ + 64}')
    mf('v', 1, 1)
    mf('v', 0, 2)
    mf('v', 1, 2)
    mf('v', 0, 3)
    A.I('s_waitcnt lgkmcnt(0)')
    A.I('s_barrier')
    stamp(3)
    KMF, ONES = 0, 20
    for ks in range(4):
        A.I(f'ds_read_b128 {v(QF + 4 * ks, 4)}, v{V_QR} offset:{640 * ks}')
        if ks == 1:
            mf('v', 1, 3)
    mf('v', 0, 4)
    for ks in range(4):
        A.I(f'ds_read_b128 {v(KMF + 4 * ks, 4)}, v{V_KR} offset:{640 * ks}')
        if ks == 1:
            mf('v', 1, 4)
    dm = []
    if not E('NODMA', 0):
        dm = [f's_mov_b32 m0, s{S_KVM0}\ns_add_u32 s{S_T0}, s{S_KVN}, 0x{WS_VF - WS_KF:x}\nbuffer_load_dwordx4 v{V_L16}, {ws}, s{S_KVN} offen lds',
              f'buffer_load_dwordx4 v{V_L16}, {ws}, s{S_KVN} offen offset:1024 lds\ns_add_u32 m0, s{S_KVM0}, 8192\ns_add_u32 s{S_KVN}, s{S_KVN}, 0x40000',
              f'buffer_load_dwordx4 v{V_L16}, {ws}, s{S_T0} offen lds',
              f'buffer_load_dwordx4 v{V_L16}, {ws}, s{S_T0} offen offset:1024 lds']
    else:
        dm = ['s_nop 0'] * 4
    mf('v', 0, 5)
    mf('v', 1, 5)
    mf('v', 0, 6)
    mf('v', 1, 6)
    X0, X1, M, P = q0, q1, k0, k1
    O0, O1, Lr, PMA, PMB = KX + 16, KX + 20, KX + 24, KX + 28, KX + 30

    def sx(i):
        ks, kb = i >> 1, i & 1
        X = X1 if kb else X0
        c = '0' if ks == 0 else v(X, 4)
        A.I(f'v_mfma_f32_16x16x32_bf16 {v(X, 4)}, {v(KX + 16 * kb + 4 * ks, 4)}, {v(QF + 4 * ks, 4)}, {c}')

    for ks in range(4):
        A.I(f's_waitcnt lgkmcnt({7 - ks})')
        sx(2 * ks)
        if ks == 2:
            A.I(f'v_mov_b64 {v(ONES, 2)}, s[{S_ONE}:{S_ONE + 1}]')
        if ks == 3:
            A.I(f'v_mov_b64 {v(ONES + 2, 2)}, s[{S_ONE}:{S_ONE + 1}]')
        sx(2 * ks + 1)
    stamp(9)
    A.I('s_waitcnt lgkmcnt(0)')
    for ks in range(4):
        cm = '0' if ks == 0 else v(M, 4)
        A.I(f'v_mfma_f32_16x16x32_bf16 {v(M, 4)}, {v(KMF + 4 * ks, 4)}, {v(QF + 4 * ks, 4)}, {cm}')
        if ks == 0:
            A.I(f'v_mov_b32 v{PMA + 1}, 0')
            A.I(f'v_mov_b32 v{PMB}, 0')
        if ks == 1:
            A.I('s_nop 1')
            A.I(f'v_max3_f32 v{mx}, v{X0}, v{X0 + 1}, v{X0 + 2}')
            A.I(f'v_max3_f32 v{tm}, v{X1}, v{X1 + 1}, v{X1 + 2}')
        if ks == 2:
            A.I(f'v_max3_f32 v{mx}, v{mx}, v{X0 + 3}, v{X1 + 3}')
            A.I(f'v_max_f32 v{mx}, v{mx}, v{tm}')
        if ks == 3:
            A.I(f'v_mov_b32 v{tm}, v{mx}')
    mf('v', 0, 7)
    A.I('s_nop 0')
    A.I(f'v_permlane32_swap_b32 v{mx}, v{tm}')
    mf('v', 1, 7)
    A.I(f'v_max_f32 v{mx}, v{mx}, v{tm}')
    A.I('s_nop 1')
    A.I(f'v_max3_f32 v{tm}, v{M}, v{M + 1}, v{M + 2}')
    A.I(f'v_max3_f32 v{mx}, v{tm}, v{M + 3}, v{mx}')
    A.I(f'v_mov_b32 v{tm}, v{mx}')
    sets = [X1, KX, O0, T]
    A.I(f'v_mov_b64 {v(sets[1], 2)}, 0')
    A.I(f'v_mov_b64 {v(sets[1] + 2, 2)}, 0')
    A.I(f'v_permlane16_swap_b32 v{mx}, v{tm}')
    A.I(f'v_max_f32 v{mx}, v{mx}, v{tm}')
    A.I(f'v_mul_f32_e64 v{mx}, -s{S_C}, v{mx}')

    def pkfma(r):
        A.I(f'v_pk_fma_f32 {v(r, 2)}, {v(r, 2)}, s[{S_C}:{S_C + 1}], {v(mx, 2)} op_sel:[0,0,0] op_sel_hi:[1,1,0]')

    va, vb = ACC + 16, ACC + 20
    VMP = va + 2
    for r in (M, X0, X0 + 2, X1, X1 + 2):
        pkfma(r)
    A.I(f'v_exp_f32 v{M}, v{M}')
    A.I(f'v_exp_f32 v{M + 1}, v{M + 1}')
    A.I(f'v_pk_add_f32 {v(va, 2)}, {v(va, 2)}, {v(va + 2, 2)}')
    A.I(f'v_pk_add_f32 {v(vb, 2)}, {v(vb, 2)}, {v(vb + 2, 2)}')
    A.I(f'v_cvt_pk_bf16_f32 v{PMA}, v{M}, v{M + 1}')
    A.I(f'v_cvt_pk_bf16_f32 v{PMB + 1}, v{M}, v{M + 1}')
    A.I(f'v_cvt_pk_bf16_f32 v{VMP}, v{va}, v{va + 1}')
    A.I(f'v_cvt_pk_bf16_f32 v{VMP + 1}, v{vb}, v{vb + 1}')
    A.I(f'v_exp_f32 v{X0}, v{X0}')
    stamp(10)
    A.I(f'v_mfma_f32_16x16x16_bf16 {v(Lr, 4)}, {v(ONES, 2)}, {v(PMA, 2)}, 0')
    A.I(f'v_exp_f32 v{X0 + 1}, v{X0 + 1}')
    A.I(f'v_mfma_f32_16x16x16_bf16 {v(O0, 4)}, {v(VMP, 2)}, {v(PMA, 2)}, 0')
    A.I(f'v_exp_f32 v{X0 + 2}, v{X0 + 2}')
    A.I(f'v_mfma_f32_16x16x16_bf16 {v(O1, 4)}, {v(VMP, 2)}, {v(PMB, 2)}, 0')
    A.I(f'v_exp_f32 v{X0 + 3}, v{X0 + 3}')
    A.I(f'v_cvt_pk_bf16_f32 v{P}, v{X0}, v{X0 + 1}')
    A.I(f'v_exp_f32 v{X1}, v{X1}')
    A.I(f'v_exp_f32 v{X1 + 1}, v{X1 + 1}')
    A.I(f'v_cvt_pk_bf16_f32 v{P + 1}, v{X0 + 2}, v{X0 + 3}')
    A.I(f'v_exp_f32 v{X1 + 2}, v{X1 + 2}')
    A.I(f'v_exp_f32 v{X1 + 3}, v{X1 + 3}')
    A.I(f'v_cvt_pk_bf16_f32 v{P + 2}, v{X1}, v{X1 + 1}')
    A.I(f'v_cvt_pk_bf16_f32 v{P + 3}, v{X1 + 2}, v{X1 + 3}')
    A.I(f'v_lshrrev_b32 v{tm}, 2, v{V_VX}')
    A.I(f'v_mov_b64 {v(sets[0], 2)}, 0')
    A.I(f'v_mfma_f32_16x16x32_bf16 {v(Lr, 4)}, {v(ONES, 4)}, {v(P, 4)}, {v(Lr, 4)}')
    A.I(f'v_mov_b64 {v(sets[0] + 2, 2)}, 0')
    A.I(f'v_mov_b64 {v(sets[0] + 4, 2)}, 0')
    A.I(f'v_mfma_f32_16x16x32_bf16 {v(O0, 4)}, {v(VX, 4)}, {v(P, 4)}, {v(O0, 4)}')
    A.I(f'v_mov_b64 {v(sets[0] + 6, 2)}, 0')
    A.I(f'v_mov_b64 {v(sets[1] + 4, 2)}, 0')
    A.I(f'v_mfma_f32_16x16x32_bf16 {v(O1, 4)}, {v(VX + 4, 4)}, {v(P, 4)}, {v(O1, 4)}')
    A.I(f'v_mov_b64 {v(sets[1] + 6, 2)}, 0')
    A.I(f'v_mov_b64 {v(sets[3], 2)}, 0')
    A.I(f'v_rcp_f32 v{mx}, v{Lr}')
    A.I(f'v_mov_b64 {v(sets[3] + 2, 2)}, 0')
    A.I(f'v_mov_b64 {v(sets[3] + 4, 2)}, 0')
    OW = X0

    def pkmul(r):
        A.I(f'v_pk_mul_f32 {v(r, 2)}, {v(r, 2)}, {v(mx, 2)} op_sel:[0,0] op_sel_hi:[1,0]')

    pkmul(O0)
    pkmul(O0 + 2)
    A.I(f'v_cvt_pk_bf16_f32 v{OW}, v{O0}, v{O0 + 1}')
    A.I(f'v_cvt_pk_bf16_f32 v{OW + 1}, v{O0 + 2}, v{O0 + 3}')
    pkmul(O1)
    pkmul(O1 + 2)
    A.I(f'v_cvt_pk_bf16_f32 v{OW + 2}, v{O1}, v{O1 + 1}')
    A.I(f'v_cvt_pk_bf16_f32 v{OW + 3}, v{O1 + 2}, v{O1 + 3}')
    A.I(f'ds_write_b128 v{V_OW}, {v(OW, 4)}')
    stamp(4)
    A.I(f'v_lshrrev_b32 v{mx}, 2, v{V_L16}')
    A.I(f'v_add_u32 v{tm}, v{tm}, v{mx}')
    A.I(f'ds_write_b64 v{tm}, {v(VMP, 2)} offset:{L_VM}')
    zero(A, sets[2], 8)
    A.I(f'v_mov_b64 {v(sets[3] + 6, 2)}, 0')
    A.I('s_waitcnt lgkmcnt(1)')
    A.I('s_barrier')
    OF = VX
    A.I(f'ds_read_b128 {v(OF, 4)}, v{V_L16} offset:{L_OX}')
    A.I(f'ds_read_b128 {v(OF + 4, 4)}, v{V_L16} offset:{L_OX + 1024}')
    A.I(f's_cmp_eq_u32 s{S_STEP}, {NSTEPS}')
    A.I(f's_cbranch_scc1 {L_fin}')
    OBUF = {(6, 0): 0, (7, 0): 8, (6, 1): 24, (7, 1): KX + 8}
    A.I(f's_add_u32 s{S_PB0H}, s{S_PB0}, 4096')
    A.I('s_waitcnt lgkmcnt(1)')
    stamp(5)

    def post(c):
        a0, b0 = sets[c], sets[c] + 4
        o = (OW if c < 2 else P) + 2 * (c & 1)
        if c == 3:
            l = [f'v_pk_add_f32 {v(a0, 2)}, {v(a0, 2)}, {v(a0 + 2, 2)}',
                 f'v_pk_add_f32 {v(b0, 2)}, {v(b0, 2)}, {v(b0 + 2, 2)}']
        else:
            l = [f'v_add_f32 v{a0}, v{a0}, v{a0 + 2}', f'v_add_f32 v{a0 + 1}, v{a0 + 1}, v{a0 + 3}',
                 f'v_add_f32 v{b0}, v{b0}, v{b0 + 2}', f'v_add_f32 v{b0 + 1}, v{b0 + 1}, v{b0 + 3}']
        l += [f'v_cvt_pk_bf16_f32 v{o}, v{a0}, v{b0}',
              f'v_cvt_pk_bf16_f32 v{o + 1}, v{a0 + 1}, v{b0 + 1}',
              f'v_bfi_b32 v{o}, 1, s{S_TAG}, v{o}']
        if c & 1:
            l.append(f'buffer_store_dwordx4 {v(o - 2, 4)}, v{V_PBW}, {ws}, s{S_PB0} offen offset:{128 * (c >> 1)} {st}')
        return l

    def womf(c, t2, bb):
        nbo = 2 * c + bb
        b = v(OBUF[(nbo, t2)], 8) if (nbo, t2) in OBUF else u(HOME[('o', nbo, t2)], 8)
        A.I(f'v_smfmac_f32_16x16x64_bf16 {v(sets[c] + 4 * bb, 4)}, {v(OF + 4 * t2, 4)}, {b}, v{V_IDX}')

    obr = []
    for f, b in OBUF.items():
        hf, sl = LDS_SLOT[('o',) + f]
        va_ = V_WO1 if hf else V_WO0
        obr.append(f'ds_read_b128 {v(b, 4)}, v{va_} offset:{sl * 2048}')
        obr.append(f'ds_read_b128 {v(b + 4, 4)}, v{va_} offset:{sl * 2048 + 1024}')
    seq = [(c, t2, bb) for c in range(4) for t2 in range(2) for bb in range(2)]
    fill = {i: [] for i in range(16)}
    for i in range(8):
        fill[2 + i // 2 if i < 6 else 5].append(obr[i])
    DM0 = E('DM0', 0)
    for i in range(4):
        fill[DM0 + i].append(dm[i])
    p0, p1, p2 = post(0), post(1), post(2)
    for k, x in enumerate(p0):
        fill[6 + k // 2].append(x)
    for k, x in enumerate(p1):
        fill[10 + k // 2].append(x)
    for k, x in enumerate(p2):
        fill[14 + min(k // 2, 1)].append(x)
    for i, (c, t2, bb) in enumerate(seq):
        if i == 2:
            A.I('s_waitcnt lgkmcnt(0)')
        if i == 12:
            A.I('s_waitcnt lgkmcnt(0)')
        womf(c, t2, bb)
        for x in fill[i]:
            A.I(x)
    A.I(f's_cmp_ge_u32 s{S_WV}, 2')
    for x in post(3):
        A.I(x)
    stamp(6)
    stamp_acc()
    if STAMPS:
        A.I(f's_cmp_ge_u32 s{S_WV}, 2')
    zero(A, ACC, 8)
    A.I(f's_cbranch_scc1 {L_w23}')
    A.I(f'v_cndmask_b32 v{SEL}, 0, v{V_SEL}, s[{S_M0}:{S_M0 + 1}]')
    A.I(f'v_cndmask_b32 v{SEL + 1}, 0, v{V_SEL}, s[{S_M1}:{S_M1 + 1}]')
    A.I(f'v_mov_b64 {v(SEL + 2, 2)}, {v(SEL, 2)}')
    for i in range(PB_DELAY):
        A.I('s_nop 7')
    pb_loads(RA)
    hstamp(2)
    q_prefetch(A, 0)
    for i in range(PB_GAP):
        A.I('s_nop 7')
    if TWO_PB:
        pb_loads(RB)
    q_prefetch(A, 1)
    A.br(f's_branch {L_top}')
    A.label(L_w23)
    A.forget_loads()
    q_prefetch(A)
    hstamp(2); hstamp(3)
    A.br(f's_branch {L_bh}')

    A.check = False
    A.label(L_pslow)
    if TWO_PB:
        red(RB, 0)
        A.I(f's_cbranch_vccz {L_red}')
    pb_loads(RA)
    A.I(f's_sub_u32 s{S_SPIN}, s{S_SPIN}, 1')
    A.I(f's_cbranch_scc1 {l_exit}')
    if TWO_PB:
        for i in range(3):
            A.I('s_nop 7')
        pb_loads(RB)
    A.br(f's_branch {L_top}')
    A.label(L_aslow)
    af_loads(0)
    zero(A, ACC, 8)
    for b in ASETS[1:]:
        A.I('s_waitcnt vmcnt(4)')
        A.I(f'v_max3_u32 v8, v{b}, v{b + 1}, v{b + 2}')
        A.I(f'v_max3_u32 v9, v{b + 3}, v{b + 4}, v{b + 5}')
        A.I(f'v_mov_b64 {v(10, 2)}, {v(b, 2)}')
        A.I(f'v_max3_u32 v8, v8, v{b + 6}, v{b + 7}')
        A.I(f'v_max_u32 v8, v8, v9')
        A.I(f'v_cmp_eq_u32 vcc, -1, v8')
        lf = A.newlabel('L_af_f')
        A.I(f's_cbranch_vccnz {lf}')
        for i in range(0, 8, 2):
            A.I(f'v_mov_b64 {v(i, 2)}, {v(b + i, 2)}')
        A.br(f's_branch {L_afok}')
        A.label(lf)
        af_loads(b)
    A.I(f's_sub_u32 s{S_SPIN}, s{S_SPIN}, 1')
    A.I(f's_cbranch_scc1 {l_exit}')
    A.br(f's_branch {L_afchk}')
    A.label(L_fin)
    A.I(f'v_add_u32 v12, s{S_W640}, v{V_KR}')
    A.I(f'v_lshrrev_b32 v13, 2, v{V_VX}')
    A.I(f'v_lshrrev_b32 v14, 2, v{V_L16}')
    A.I(f'v_add_u32 v13, v13, v14')
    A.I(f'ds_read_b128 v[0:3], v12')
    A.I(f'ds_read_b64 v[4:5], v13 offset:{L_VM}')
    A.I(f'v_lshrrev_b32 v14, 1, v{V_L16}')
    A.I('s_waitcnt lgkmcnt(0)')
    A.I(f'buffer_store_dwordx4 v[0:3], v{V_L16}, {ws}, s{S_KMO} offen sc1')
    A.I(f'buffer_store_dwordx2 v[4:5], v14, {ws}, s{S_VMO} offen sc1')
    A.br(f's_branch {l_exit}')
    A.check = True
    A.forget_loads()


def rec_kernel(A, name):
    kernel_begin(A, name)
    l_exit = A.newlabel('L_exit')
    P_WS, P_DBG, P_Q, P_K, P_V, P_O, P_M0 = 16, 18, 20, 22, 24, 26, 28
    A.I(f's_cmp_ge_u32 s2, 256')
    A.I(f's_cbranch_scc1 {l_exit}')
    A.I(f's_load_dwordx2 s[{P_WS}:{P_WS + 1}], s[0:1], {KA_WS}')
    A.I(f's_load_dwordx2 s[{P_DBG}:{P_DBG + 1}], s[0:1], {KA_DBG}')
    A.I(f's_load_dwordx4 s[{P_Q}:{P_Q + 3}], s[0:1], {KA_WQ}')
    A.I(f's_load_dwordx4 s[{P_V}:{P_V + 3}], s[0:1], {KA_WV}')
    A.I(f's_load_dwordx2 s[{P_M0}:{P_M0 + 1}], s[0:1], {KA_MEM0}')
    A.I('v_lshrrev_b32 v1, 6, v0')
    A.I(f'v_and_b32 v{LANE}, 63, v0')
    A.I(f'v_readfirstlane_b32 s{S_WV}, v1')
    A.I(f's_getreg_b32 s{S_T0}, hwreg(HW_REG_XCC_ID)')
    A.I(f's_and_b32 s{S_T0}, s{S_T0}, 15')
    A.I('s_waitcnt lgkmcnt(0)')
    make_srd(A, S_WS, P_WS, WS_SIZE)
    make_srd(A, S_DBG, P_DBG, 256)
    A.I(f's_cmp_lg_u32 s{S_T0}, 0')
    A.I(f's_cbranch_scc1 {l_exit}')
    A.I(f's_mov_b32 s{S_SPIN}, 2000000')
    dbg = f's[{S_DBG}:{S_DBG + 3}]'
    A.I('v_mov_b32 v2, 1')
    A.I('v_mov_b32 v3, 0')
    A.I('v_cmp_eq_u32 vcc, 0, v0')
    A.I('s_and_saveexec_b64 s[30:31], vcc')
    lsk = A.newlabel('L_sk')
    A.I(f's_cbranch_execz {lsk}')
    A.I(f'buffer_atomic_add v2, v3, {dbg}, 0 offen sc0')
    A.I('s_waitcnt vmcnt(0)')
    A.I('ds_write_b32 v3, v2')
    A.I('s_waitcnt lgkmcnt(0)')
    A.label(lsk)
    A.I('s_mov_b64 exec, s[30:31]')
    A.I('s_barrier')
    A.I('ds_read_b32 v2, v3')
    A.I('s_waitcnt lgkmcnt(0)')
    A.I(f'v_readfirstlane_b32 s{S_H}, v2')
    A.I('s_barrier')
    A.I(f's_cmp_ge_u32 s{S_H}, 32')
    A.I(f's_cbranch_scc1 {l_exit}')
    A.I(f's_memrealtime s[{S_TS}:{S_TS + 1}]')
    setup_consts(A)
    st = STF
    init_exchange(A, P_M0, st)
    A.I('s_barrier')
    A.I('v_mov_b32 v2, 1')
    A.I('v_mov_b32 v3, 64')
    A.I('v_cmp_eq_u32 vcc, 0, v0')
    A.I('s_and_saveexec_b64 s[30:31], vcc')
    lsk = A.newlabel('L_sk')
    A.I(f's_cbranch_execz {lsk}')
    A.I(f'buffer_atomic_add v2, v3, {dbg}, 0 offen')
    A.label(lsk)
    A.I('s_mov_b64 exec, s[30:31]')
    A.I('s_waitcnt vmcnt(0)')
    stage_weights(A, [P_Q, P_K, P_V, P_O])
    A.I(f's_lshl_b32 s{S_KVN}, s{S_H}, 13')
    A.I(f's_add_u32 s{S_KVN}, s{S_KVN}, s{S_W11}')
    A.I(f's_add_u32 s{S_KVN}, s{S_KVN}, 0x{WS_KF:x}')
    A.I(f's_add_u32 s{S_KVM0}, s{S_W11}, {L_KV}')
    kv_dma(A)
    lw = A.newlabel('L_tw')
    A.I('v_mov_b32 v3, 64')
    A.label(lw)
    A.I(f'buffer_load_dword v2, v3, {dbg}, 0 offen sc1')
    A.I(f's_sub_u32 s{S_SPIN}, s{S_SPIN}, 1')
    A.I(f's_cbranch_scc1 {l_exit}')
    A.I('s_waitcnt vmcnt(0)')
    A.I(f'v_readfirstlane_b32 s{S_T0}, v2')
    A.I(f's_cmp_lt_u32 s{S_T0}, 32')
    A.I(f's_cbranch_scc1 {lw}')
    A.I('s_barrier')
    A.I(f's_memrealtime s[{S_TS + 2}:{S_TS + 3}]')
    A.I('s_waitcnt lgkmcnt(0)')
    l_done = A.newlabel('L_done')
    main_loop(A, st, l_done)
    A.label(l_done)
    A.forget_loads()
    A.I(f's_memrealtime s[{S_TS + 4}:{S_TS + 5}]')
    A.I('s_waitcnt lgkmcnt(0) vmcnt(0)')
    A.I(f's_lshl_b32 s{S_T0}, s{S_H}, 2')
    A.I(f's_add_u32 s{S_T0}, s{S_T0}, s{S_WV}')
    A.I(f's_lshl_b32 s{S_T0}, s{S_T0}, 5')
    A.I(f's_add_u32 s{S_T0}, s{S_T0}, 0x{WS_DBG:x}')
    for i in range(6):
        A.I(f'v_mov_b32 v{i}, s{S_TS + i}')
    A.I(f'v_mov_b32 v6, s{S_STEP}')
    A.I(f'v_mov_b32 v7, s{S_SPIN}')
    A.I('v_mov_b32 v8, 0')
    A.I(f'buffer_store_dwordx4 v[0:3], v8, s[{S_WS}:{S_WS + 3}], s{S_T0} offen')
    A.I(f'buffer_store_dwordx4 v[4:7], v8, s[{S_WS}:{S_WS + 3}], s{S_T0} offen offset:16')
    if STAMPS:
        A.I(f's_add_u32 s{S_T0}, s{S_T0}, s{S_T0}')
        A.I(f's_sub_u32 s{S_T0}, s{S_T0}, 0x{WS_DBG - 0x10000:x}')
        for i in range(12):
            A.I(f'v_mov_b32 v{12 + i}, s{88 + i}')
        for i in range(3):
            A.I(f'buffer_store_dwordx4 {v(12 + 4 * i, 4)}, v8, s[{S_WS}:{S_WS + 3}], s{S_T0} offen offset:{16 * i}')
    A.label(l_exit)
    A.I('s_endpgm')


if __name__ == '__main__':
    A = Asm()
    rec_kernel(A, 'rec_kernel')
    txt = header([('rec_kernel', 256, 256, L_TOTAL)]) + A.text() + '.section .rodata,"a"\n' + kernel_desc('rec_kernel', 512, 256)
    open('work/' + OUT, 'w').write(txt)
    print('ok', len(txt))
```

```python
from common import *
import math, struct, os

def f32(x):
    return '0x%08x' % struct.unpack('<I', struct.pack('<f', x))[0]

S_WS, S_W, S_X = 4, 8, 12
S_H, S_WV, S_G = 32, 33, 34
S_T0, S_T1, S_T2, S_T3 = 48, 49, 50, 51


def prologue(A, ptrs, nwg, l_exit):
    A.I(f's_cmp_ge_u32 s2, {nwg}')
    A.I(f's_cbranch_scc1 {l_exit}')
    for sg, off in ptrs.items():
        A.I(f's_load_dwordx2 s[{sg}:{sg + 1}], s[0:1], {off}')
    A.I('v_lshrrev_b32 v1, 6, v0')
    A.I('v_and_b32 v0, 63, v0')
    A.I(f'v_readfirstlane_b32 s{S_WV}, v1')
    A.I('s_waitcnt lgkmcnt(0)')


def xreduce(A, op, r, t, rows16=True):
    for sw in ('v_permlane32_swap_b32', 'v_permlane16_swap_b32'):
        A.I(f'v_mov_b32 v{t}, v{r}')
        A.I(f'{sw} v{r}, v{t}')
        A.I(f'{op} v{r}, v{r}, v{t}')


def ln1_body(A, s_task, srd_x, srd_ws, st=''):
    X, F = 8, 72
    A.I('v_and_b32 v2, 15, v0')
    A.I('v_lshrrev_b32 v3, 4, v0')
    A.I('v_lshlrev_b32 v4, 10, v2')
    A.I('v_lshl_add_u32 v4, v3, 4, v4')
    A.I(f's_lshl_b32 s{S_T0}, s{s_task}, 14')
    for ks in range(16):
        A.I(f'buffer_load_dwordx4 {v(X + 4 * ks, 4)}, v4, {srd_x}, s{S_T0} offen offset:{64 * ks}')
    A.I('v_mov_b32 v5, 0')
    A.I('v_mov_b32 v6, 0')
    for ks in range(16):
        A.I(f's_waitcnt vmcnt({15 - ks})')
        for i in range(4):
            r = X + 4 * ks + i
            f = F + 8 * ks + 2 * i
            A.I(f'v_lshlrev_b32 v{f}, 16, v{r}')
            A.I(f'v_and_b32 v{f + 1}, 0xffff0000, v{r}')
            A.I(f'v_add_f32 v5, v5, v{f}')
            A.I(f'v_add_f32 v6, v6, v{f + 1}')
    A.I('v_add_f32 v5, v5, v6')
    xreduce(A, 'v_add_f32', 5, 6)
    A.I(f'v_mul_f32 v5, {f32(1 / 512)}, v5')
    A.I('v_mov_b32 v6, 0')
    A.I('v_mov_b32 v7, 0')
    for i in range(0, 128, 2):
        A.I(f'v_sub_f32 v{F + i}, v{F + i}, v5')
        A.I(f'v_sub_f32 v{F + i + 1}, v{F + i + 1}, v5')
        A.I(f'v_fmac_f32 v6, v{F + i}, v{F + i}')
        A.I(f'v_fmac_f32 v7, v{F + i + 1}, v{F + i + 1}')
    A.I('v_add_f32 v6, v6, v7')
    xreduce(A, 'v_add_f32', 6, 7)
    A.I(f'v_mov_b32 v7, {f32(1e-5)}')
    A.I(f'v_fmac_f32 v7, {f32(1 / 512)}, v6')
    A.I('v_rsq_f32 v7, v7')
    A.I('v_lshlrev_b32 v4, 4, v0')
    A.I(f's_add_u32 s{S_T0}, s{S_T0}, 0x{WS_XN:x}')
    for ks in range(16):
        for i in range(4):
            f = F + 8 * ks + 2 * i
            A.I(f'v_mul_f32 v{f}, v{f}, v7')
            A.I(f'v_mul_f32 v{f + 1}, v{f + 1}, v7')
            A.I(f'v_cvt_pk_bf16_f32 v{X + 4 * ks + i}, v{f}, v{f + 1}')
        if ks and ks % 4 == 0:
            A.I(f's_add_u32 s{S_T0}, s{S_T0}, 4096')
        A.I(f'buffer_store_dwordx4 {v(X + 4 * ks, 4)}, v4, {srd_ws}, s{S_T0} offen offset:{1024 * (ks & 3)} {st}')


def ln1_kernel(A, name):
    kernel_begin(A, name)
    le = A.newlabel('L_exit')
    prologue(A, {16: KA_WS, 18: KA_X}, 32, le)
    make_srd(A, S_WS, 16, WS_SIZE)
    make_srd(A, S_X, 18, 2048 * 1024)
    A.I(f's_lshl_b32 s{S_G}, s2, 2')
    A.I(f's_add_u32 s{S_G}, s{S_G}, s{S_WV}')
    ln1_body(A, S_G, f's[{S_X}:{S_X + 3}]', f's[{S_WS}:{S_WS + 3}]')
    A.label(le)
    A.I('s_endpgm')


def wt(mat, nb, ks):
    f = (mat * 2 + nb) * 16 + ks
    return (256 + 4 * f) if f < 64 else (128 + 4 * (f - 64))


Q_BUF0, Q_BUF1 = 0, 65536


def qkv_stage(A, ptrs, order=(1, 2, 0)):
    A.I('v_and_b32 v3, 15, v0')
    A.I('v_lshrrev_b32 v2, 4, v0')
    A.I(f's_lshr_b32 s{S_T0}, s{S_WV}, 1')
    A.I(f's_lshl_b32 s{S_T0}, s{S_T0}, 2')
    A.I(f'v_or_b32 v6, s{S_T0}, v2')
    A.I('v_lshlrev_b32 v6, 1, v6')
    A.I('v_xor_b32 v6, v6, v3')
    A.I('v_lshlrev_b32 v6, 4, v6')
    A.I('v_lshl_add_u32 v4, v2, 13, v6')
    A.I('v_lshrrev_b32 v6, 2, v3')
    A.I('v_and_b32 v7, 3, v3')
    A.I('v_lshl_add_u32 v8, v2, 3, v6')
    A.I('v_and_b32 v9, 1, v2')
    A.I('v_lshl_add_u32 v9, v9, 2, v6')
    A.I(f's_lshl_b32 s{S_T0}, s{S_WV}, 1')
    A.I(f'v_xor_b32 v9, s{S_T0}, v9')
    A.I('v_lshlrev_b32 v10, 8, v8')
    A.I('v_lshl_add_u32 v10, v9, 5, v10')
    A.I('v_lshl_add_u32 v10, v7, 3, v10')
    A.I('v_xor_b32 v11, 32, v10')
    A.I(f'v_add_u32 v12, {Q_BUF1}, v10')
    A.I(f'v_add_u32 v13, {Q_BUF1}, v11')
    VT = {(0, 0): 10, (1, 0): 11, (0, 1): 12, (1, 1): 13}
    chunks = [(m, hh) for m in order for hh in range(2)]

    def dma(sc):
        mat, hh = chunks[sc]
        buf = Q_BUF1 if sc & 1 else Q_BUF0
        make_srd(A, S_W, ptrs[mat], 512 * 8192)
        A.I(f's_lshl_b32 s{S_T0}, s{S_WV}, 15')
        A.I(f's_lshl_b32 s{S_T1}, s{S_H}, 8')
        A.I(f's_add_u32 s{S_T0}, s{S_T0}, s{S_T1}')
        A.I(f's_add_u32 s{S_T0}, s{S_T0}, {hh << 21}')
        A.I(f's_lshl_b32 s{S_T1}, s{S_WV}, 10')
        A.I(f's_add_u32 s{S_T1}, s{S_T1}, {buf}')
        for i in range(16):
            A.I(f's_mov_b32 m0, s{S_T1}')
            A.I(f'buffer_load_dwordx4 v4, s[{S_W}:{S_W + 3}], s{S_T0} offen lds')
            if i < 15:
                A.I(f's_add_u32 s{S_T0}, s{S_T0}, {4 * 32768}')
                A.I(f's_add_u32 s{S_T1}, s{S_T1}, 4096')

    dma(0)
    dma(1)
    n = len(chunks)
    for sc in range(n):
        mat, hh = chunks[sc]
        A.I(f's_waitcnt vmcnt({16 if sc < n - 1 else 0})')
        A.I('s_barrier')
        cnt = 0
        for nb in range(2):
            for k8 in range(8):
                for x in range(2):
                    if cnt >= 12:
                        A.I('s_waitcnt lgkmcnt(8)')
                        cnt = 8
                    A.I(f'ds_read_b64_tr_b16 {u(wt(mat, nb, 8 * hh + k8) + 2 * x, 2)}, v{VT[(nb, sc & 1)]} offset:{(32 * k8 + 4 * x) * 256}')
                    cnt += 1
        A.I('s_waitcnt lgkmcnt(0)')
        A.I('s_barrier')
        if sc + 2 < n:
            dma(sc + 2)


def qkv_segments(A, stride, st='', after_seg=None):
    ws = f's[{S_WS}:{S_WS + 3}]'
    ACC, XB = 8, 56
    NB = 8
    S_SEG, S_XO, S_XN, S_OO = 36, 37, 38, 39
    A.I('v_lshlrev_b32 v1, 4, v0')
    A.I(f's_mov_b32 s{S_SEG}, s{S_G}')
    A.I(f's_lshl_b32 s{S_XO}, s{S_SEG}, 15')
    A.I(f's_add_u32 s{S_XO}, s{S_XO}, 0x{WS_XN:x}')

    def acc(mat, nb, tb):
        return ACC + ((mat * 2 + nb) * 2 + tb) * 4

    def xload(ks, base):
        b = XB + 8 * (ks % NB)
        l = []
        for tb in range(2):
            off = tb * 16384 + ks * 1024
            l.append(f's_add_u32 s{S_T0 + tb}, s{base}, {off & ~4095}\n'
                     f'buffer_load_dwordx4 {v(b + 4 * tb, 4)}, v1, {ws}, s{S_T0 + tb} offen offset:{off & 4095}')
        return l

    for ks in range(NB - 1):
        for x in xload(ks, S_XO):
            A.I(x)
    L = A.newlabel('L_seg')
    A.label(L)
    A.check = False
    A.I(f's_add_u32 s{S_T2}, s{S_SEG}, {stride}')
    A.I(f's_cmp_lt_u32 s{S_T2}, 64')
    A.I(f's_cselect_b32 s{S_T2}, s{S_T2}, s{S_SEG}')
    A.I(f's_lshl_b32 s{S_XN}, s{S_T2}, 15')
    A.I(f's_add_u32 s{S_XN}, s{S_XN}, 0x{WS_XN:x}')
    for ks in range(16):
        nk = ks + NB - 1
        ld = xload(nk, S_XO) if nk < 16 else xload(nk - 16, S_XN)
        A.I(f's_waitcnt vmcnt({2 * (NB - 2)})')
        b = XB + 8 * (ks % NB)
        i = 0
        for mat in (1, 2, 0):
            for nb in range(2):
                for tb in range(2):
                    d = acc(mat, nb, tb)
                    c = '0' if ks == 0 else v(d, 4)
                    w_ = u(wt(mat, nb, ks), 4)
                    x_ = v(b + 4 * tb, 4)
                    if mat == 2:
                        A.I(f'v_mfma_f32_16x16x32_bf16 {v(d, 4)}, {x_}, {w_}, {c}')
                    else:
                        A.I(f'v_mfma_f32_16x16x32_bf16 {v(d, 4)}, {w_}, {x_}, {c}')
                    if i in (1, 3):
                        A.I(ld[i >> 1])
                    i += 1
    A.I(f's_lshl_b32 s{S_OO}, s{S_SEG}, 5')
    A.I(f's_add_u32 s{S_OO}, s{S_OO}, s{S_H}')
    A.I(f's_lshl_b32 s{S_OO}, s{S_OO}, 13')
    A.I(f's_lshl_b32 s{S_T2}, s{S_WV}, 10')
    A.I(f's_add_u32 s{S_T3}, s{S_OO}, s{S_T2}')
    for mat, base in ((1, WS_KF), (2, WS_VF), (0, WS_QF)):
        if mat == 2:
            A.I(f's_add_u32 s{S_T0}, s{S_T3}, s{S_T2}')
            A.I(f's_add_u32 s{S_T0}, s{S_T0}, 0x{base:x}')
            for nb in range(2):
                a_, b_ = acc(2, nb, 0), acc(2, nb, 1)
                A.I(f'v_cvt_pk_bf16_f32 v{a_}, v{a_}, v{a_ + 1}')
                A.I(f'v_cvt_pk_bf16_f32 v{a_ + 1}, v{a_ + 2}, v{a_ + 3}')
                A.I(f'v_cvt_pk_bf16_f32 v{a_ + 2}, v{b_}, v{b_ + 1}')
                A.I(f'v_cvt_pk_bf16_f32 v{a_ + 3}, v{b_ + 2}, v{b_ + 3}')
                A.I(f'buffer_store_dwordx4 {v(a_, 4)}, v1, {ws}, s{S_T0} offen offset:{1024 * nb} {st}')
        else:
            for tb in range(2):
                A.I(f's_add_u32 s{S_T0}, s{S_T3}, 0x{base + 4096 * tb:x}')
                a_, b_ = acc(mat, 0, tb), acc(mat, 1, tb)
                for r in range(4):
                    A.I(f'v_cvt_pk_bf16_f32 v{a_ + r}, v{a_ + r}, v{b_ + r}')
                A.I(f'buffer_store_dwordx4 {v(a_, 4)}, v1, {ws}, s{S_T0} offen {st}')
    if after_seg:
        after_seg()
    A.I(f's_add_u32 s{S_SEG}, s{S_SEG}, {stride}')
    A.I(f's_mov_b32 s{S_XO}, s{S_XN}')
    A.I(f's_cmp_lt_u32 s{S_SEG}, 64')
    A.br(f's_cbranch_scc1 {L}')
    A.check = True
    A.forget_loads()


def qkv_kernel(A, name):
    kernel_begin(A, name)
    le = A.newlabel('L_exit')
    prologue(A, {16: KA_WS, 20: KA_WQ, 22: KA_WK, 24: KA_WV}, 256, le)
    make_srd(A, S_WS, 16, WS_SIZE)
    A.I(f's_lshr_b32 s{S_H}, s2, 3')
    A.I(f's_and_b32 s{S_G}, s2, 7')
    qkv_stage(A, [20, 22, 24])
    qkv_segments(A, 8)
    A.label(le)
    A.I('s_endpgm')


def att_stage(A, p_wo):
    A.I('v_and_b32 v3, 15, v0')
    A.I('v_lshrrev_b32 v2, 4, v0')
    A.I('v_lshlrev_b32 v1, 4, v0')
    make_srd(A, S_W, p_wo, 4096 * 1024)
    A.I(f's_lshl_b32 s{S_T0}, s{S_H}, 17')
    A.I(f's_lshl_b32 s{S_T1}, s{S_WV}, 13')
    A.I(f's_add_u32 s{S_T0}, s{S_T0}, s{S_T1}')
    A.I(f's_lshl_b32 s{S_T1}, s{S_WV}, 10')
    for f in range(8):
        for a_ in range(4):
            A.I(f's_add_u32 m0, s{S_T1}, {(16 * f + 4 * a_) * 1024 + 32 * f}')
            A.I(f's_add_u32 s{S_T3}, s{S_T0}, {(f + 32 * a_) * 1024}')
            A.I(f'buffer_load_dwordx4 v1, s[{S_W}:{S_W + 3}], s{S_T3} offen lds')
    A.I('v_lshrrev_b32 v6, 2, v3')
    A.I('v_and_b32 v7, 3, v3')
    A.I('v_and_b32 v8, 1, v2')
    A.I('v_lshl_add_u32 v8, v8, 2, v6')
    A.I('v_lshrrev_b32 v9, 1, v2')
    A.I('v_lshlrev_b32 v10, 14, v8')
    A.I('v_lshl_add_u32 v10, v9, 10, v10')
    A.I('v_lshl_add_u32 v10, v8, 5, v10')
    A.I('v_lshl_add_u32 v10, v7, 3, v10')
    A.I(f's_lshr_b32 s{S_T0}, s{S_WV}, 1')
    A.I(f's_lshl_b32 s{S_T0}, s{S_T0}, 9')
    A.I(f'v_add_u32 v10, s{S_T0}, v10')
    A.I('s_waitcnt vmcnt(0)')
    A.I('s_barrier')
    cnt = 0
    for mb in range(16):
        for ks in range(4):
            for x in range(2):
                if cnt >= 12:
                    A.I('s_waitcnt lgkmcnt(8)')
                    cnt = 8
                A.I(f'ds_read_b64_tr_b16 {a((mb * 4 + ks) * 4 + 2 * x, 2)}, v10 offset:{(4 * ks + 2 * x) * 1024 + 32 * mb}')
                cnt += 1
    A.I('s_waitcnt lgkmcnt(0)')
    A.I('s_barrier')


S_MASK = 64
S_CC, S_ONE = 52, 54


def att_consts(A):
    A.I('v_and_b32 v3, 15, v0')
    A.I('v_lshrrev_b32 v2, 4, v0')
    A.I('v_lshlrev_b32 v1, 4, v0')
    A.I(f's_and_b32 s{S_T0}, s{S_WV}, 1')
    A.I(f's_lshl_b32 s{S_T0}, s{S_T0}, 4')
    A.I(f'v_add_u32 v4, s{S_T0}, v3')
    A.I('v_lshlrev_b32 v5, 2, v2')
    A.I('v_sub_u32 v4, v4, v5')
    for kb in range(2):
        for r in range(4):
            m = S_MASK + 2 * (4 * kb + r)
            A.I(f'v_cmp_le_i32 s[{m}:{m + 1}], {16 * kb + r}, v4')
    c = (128 ** -0.5) * math.log2(math.e)
    A.I(f's_mov_b32 s{S_CC}, {f32(c)}')
    A.I(f's_mov_b32 s{S_CC + 1}, {f32(c)}')
    A.I('v_lshlrev_b32 v5, 15, v3')
    A.I('v_lshl_add_u32 v3, v2, 4, v5')
    A.I('v_lshlrev_b32 v2, 3, v0')
    A.I(f'v_mov_b32 v4, {f32(-1e9 * 128 ** 0.5)}')
    for i in range(4):
        A.I(f'v_mov_b32 v{8 + i}, 0x3f803f80')


AT_Q, AT_K, AT_V, AT_KM, AT_VM = 16, 32, 64, 96, 112
AT_S, AT_P, AT_PM, AT_L = 120, 132, 136, 140
AT_O, AT_OB, AT_ACC = 144, 176, 192


def att_load_qkv(A, s_seg, ld=''):
    ws = f's[{S_WS}:{S_WS + 3}]'
    A.I(f's_lshl_b32 s{S_T0}, s{s_seg}, 5')
    A.I(f's_add_u32 s{S_T0}, s{S_T0}, s{S_H}')
    A.I(f's_lshl_b32 s{S_T0}, s{S_T0}, 13')
    A.I(f's_and_b32 s{S_T1}, s{S_WV}, 1')
    A.I(f's_lshl_b32 s{S_T1}, s{S_T1}, 12')
    A.I(f's_add_u32 s{S_T1}, s{S_T1}, s{S_T0}')
    A.I(f's_add_u32 s{S_T1}, s{S_T1}, 0x{WS_QF:x}')
    for ks in range(4):
        A.I(f'buffer_load_dwordx4 {v(AT_Q + 4 * ks, 4)}, v1, {ws}, s{S_T1} offen offset:{1024 * ks} {ld}')
    for base, reg in ((WS_KF, AT_K), (WS_VF, AT_V)):
        for hf in range(2):
            A.I(f's_add_u32 s{S_T1}, s{S_T0}, 0x{base + 4096 * hf:x}')
            for i in range(4):
                A.I(f'buffer_load_dwordx4 {v(reg + 16 * hf + 4 * i, 4)}, v1, {ws}, s{S_T1} offen offset:{1024 * i} {ld}')


def att_load_mem(A, s_seg, ld=''):
    ws = f's[{S_WS}:{S_WS + 3}]'
    A.I(f's_lshl_b32 s{S_T0}, s{s_seg}, 5')
    A.I(f's_add_u32 s{S_T0}, s{S_T0}, s{S_H}')
    A.I(f's_lshl_b32 s{S_T1}, s{S_T0}, 12')
    A.I(f's_add_u32 s{S_T1}, s{S_T1}, 0x{WS_KM:x}')
    for ks in range(4):
        A.I(f'buffer_load_dwordx4 {v(AT_KM + 4 * ks, 4)}, v1, {ws}, s{S_T1} offen offset:{1024 * ks} {ld}')
    A.I(f's_lshl_b32 s{S_T1}, s{S_T0}, 11')
    A.I(f's_add_u32 s{S_T1}, s{S_T1}, 0x{WS_VM:x}')
    for w_ in range(4):
        A.I(f'buffer_load_dwordx2 {v(AT_VM + 2 * w_, 2)}, v2, {ws}, s{S_T1} offen offset:{512 * w_} {ld}')


def att_compute1(A):
    X0, X1, M = AT_S, AT_S + 4, AT_S + 8
    ONES = 8
    mx, tm = 6, 7
    for ks in range(4):
        for (d, k_) in ((X0, AT_K + 4 * ks), (X1, AT_K + 16 + 4 * ks), (M, AT_KM + 4 * ks)):
            c = '0' if ks == 0 else v(d, 4)
            A.I(f'v_mfma_f32_16x16x32_bf16 {v(d, 4)}, {v(k_, 4)}, {v(AT_Q + 4 * ks, 4)}, {c}')
    A.I(f'v_mov_b32 v{AT_PM + 1}, 0')
    A.I(f'v_mov_b32 v{AT_PM + 2}, 0')
    for i in range(8):
        m = S_MASK + 2 * i
        A.I(f'v_cndmask_b32 v{X0 + i}, v4, v{X0 + i}, s[{m}:{m + 1}]')
    A.I(f'v_max3_f32 v{mx}, v{X0}, v{X0 + 1}, v{X0 + 2}')
    A.I(f'v_max3_f32 v{tm}, v{X0 + 3}, v{X1}, v{X1 + 1}')
    A.I(f'v_max3_f32 v{mx}, v{mx}, v{X1 + 2}, v{X1 + 3}')
    A.I(f'v_max3_f32 v{tm}, v{tm}, v{M}, v{M + 1}')
    A.I(f'v_max_f32 v{mx}, v{mx}, v{tm}')
    xreduce(A, 'v_max_f32', mx, tm)
    A.I(f'v_mul_f32_e64 v{mx}, -s{S_CC}, v{mx}')
    for r in (M, X0, X0 + 2, X1, X1 + 2):
        A.I(f'v_pk_fma_f32 {v(r, 2)}, {v(r, 2)}, s[{S_CC}:{S_CC + 1}], {v(mx, 2)} op_sel:[0,0,0] op_sel_hi:[1,1,0]')
    A.I(f'v_exp_f32 v{M}, v{M}')
    A.I(f'v_exp_f32 v{M + 1}, v{M + 1}')
    for i in range(8):
        A.I(f'v_exp_f32 v{X0 + i}, v{X0 + i}')
    A.I(f'v_cvt_pk_bf16_f32 v{AT_PM}, v{M}, v{M + 1}')
    A.I(f'v_cvt_pk_bf16_f32 v{AT_PM + 3}, v{M}, v{M + 1}')
    for i in range(4):
        A.I(f'v_cvt_pk_bf16_f32 v{AT_P + i}, v{X0 + 2 * i}, v{X0 + 2 * i + 1}')
    A.I(f'v_mfma_f32_16x16x16_bf16 {v(AT_L, 4)}, {v(ONES, 2)}, {v(AT_PM, 2)}, 0')
    for mb in range(8):
        A.I(f'v_mfma_f32_16x16x16_bf16 {v(AT_O + 4 * mb, 4)}, {v(AT_VM + 2 * (mb >> 1), 2)}, {v(AT_PM + 2 * (mb & 1), 2)}, 0')
    A.I(f'v_mfma_f32_16x16x32_bf16 {v(AT_L, 4)}, {v(ONES, 4)}, {v(AT_P, 4)}, {v(AT_L, 4)}')
    for mb in range(8):
        A.I(f'v_mfma_f32_16x16x32_bf16 {v(AT_O + 4 * mb, 4)}, {v(AT_V + 4 * mb, 4)}, {v(AT_P, 4)}, {v(AT_O + 4 * mb, 4)}')
    A.I(f'v_rcp_f32 v{mx}, v{AT_L}')
    for mb in range(8):
        o = AT_O + 4 * mb
        for r in range(4):
            A.I(f'v_mul_f32 v{o + r}, v{o + r}, v{mx}')
        A.I(f'v_cvt_pk_bf16_f32 v{AT_OB + 2 * mb}, v{o}, v{o + 1}')
        A.I(f'v_cvt_pk_bf16_f32 v{AT_OB + 2 * mb + 1}, v{o + 2}, v{o + 3}')


def att_compute2(A, s_seg, st=''):
    ws = f's[{S_WS}:{S_WS + 3}]'
    S_OO = 39
    A.I(f's_lshl_b32 s{S_OO}, s{s_seg}, 1')
    A.I(f's_and_b32 s{S_T2}, s{S_WV}, 1')
    A.I(f's_add_u32 s{S_OO}, s{S_OO}, s{S_T2}')
    A.I(f's_lshl_b32 s{S_OO}, s{S_OO}, 19')
    A.I(f's_lshl_b32 s{S_T2}, s{S_H}, 10')
    A.I(f's_add_u32 s{S_OO}, s{S_OO}, s{S_T2}')
    A.I(f's_lshr_b32 s{S_T2}, s{S_WV}, 1')
    A.I(f's_lshl_b32 s{S_T2}, s{S_T2}, 9')
    A.I(f's_add_u32 s{S_OO}, s{S_OO}, s{S_T2}')
    A.I(f's_add_u32 s{S_OO}, s{S_OO}, 0x{WS_OP:x}')

    def post(c):
        a_, b_ = AT_ACC + 8 * c, AT_ACC + 8 * c + 4
        return [f'v_cvt_pk_bf16_f32 v{a_}, v{a_}, v{a_ + 1}',
                f'v_cvt_pk_bf16_f32 v{a_ + 1}, v{a_ + 2}, v{a_ + 3}',
                f'v_cvt_pk_bf16_f32 v{a_ + 2}, v{b_}, v{b_ + 1}',
                f'v_cvt_pk_bf16_f32 v{a_ + 3}, v{b_ + 2}, v{b_ + 3}',
                f'buffer_store_dwordx4 {v(a_, 4)}, v3, {ws}, s{S_OO} offen offset:{64 * c} {st}']

    pend = []
    for c in range(8):
        i = 0
        for ks in range(4):
            for bb in range(2):
                mb = 2 * c + bb
                d = AT_ACC + 4 * mb
                cc = '0' if ks == 0 else v(d, 4)
                A.I(f'v_mfma_f32_16x16x32_bf16 {v(d, 4)}, {a((mb * 4 + ks) * 4, 4)}, {v(AT_OB + 4 * ks, 4)}, {cc}')
                if i >= 3 and pend:
                    A.I(pend.pop(0))
                i += 1
        pend = post(c)
    for x in pend:
        A.I(x)


def att_kernel(A, name):
    kernel_begin(A, name)
    le = A.newlabel('L_exit')
    prologue(A, {16: KA_WS, 26: KA_WO}, 256, le)
    make_srd(A, S_WS, 16, WS_SIZE)
    A.I(f's_lshr_b32 s{S_H}, s2, 3')
    A.I(f's_and_b32 s{S_G}, s2, 7')
    att_stage(A, 26)
    att_consts(A)
    S_SEG, S_NX = 36, 37
    A.I(f's_mov_b32 s{S_SEG}, s{S_G}')
    att_load_qkv(A, S_SEG)
    att_load_mem(A, S_SEG)
    L = A.newlabel('L_att')
    A.label(L)
    A.I('s_waitcnt vmcnt(0)')
    att_compute1(A)
    A.I(f's_add_u32 s{S_NX}, s{S_SEG}, 8')
    A.I(f's_cmp_lt_u32 s{S_NX}, 64')
    A.I(f's_cselect_b32 s{S_T3}, s{S_NX}, s{S_SEG}')
    A.I(f's_mov_b32 s40, s{S_T3}')
    att_load_qkv(A, 40)
    att_load_mem(A, 40)
    att_compute2(A, S_SEG)
    A.I(f's_mov_b32 s{S_SEG}, s{S_NX}')
    A.I(f's_cmp_lt_u32 s{S_SEG}, 64')
    A.br(f's_cbranch_scc1 {L}')
    A.forget_loads()
    A.label(le)
    A.I('s_endpgm')


def wave_sum(A, r, t):
    for k in (8, 4, 2, 1):
        A.I(f'v_add_f32_dpp v{r}, v{r}, v{r} row_ror:{k} row_mask:0xf bank_mask:0xf')
    xreduce(A, 'v_add_f32', r, t)


def ln_regs(A, Z, t0, t1):
    A.I(f'v_add_f32 v{t0}, v{Z}, v{Z + 1}')
    for i in range(2, 8):
        A.I(f'v_add_f32 v{t0}, v{t0}, v{Z + i}')
    wave_sum(A, t0, t1)
    A.I(f'v_mul_f32 v{t0}, {f32(1 / 512)}, v{t0}')
    for i in range(8):
        A.I(f'v_sub_f32 v{Z + i}, v{Z + i}, v{t0}')
    A.I(f'v_mul_f32 v{t0}, v{Z}, v{Z}')
    for i in range(1, 8):
        A.I(f'v_fmac_f32 v{t0}, v{Z + i}, v{Z + i}')
    wave_sum(A, t0, t1)
    A.I(f'v_mov_b32 v{t1}, {f32(1e-5)}')
    A.I(f'v_fmac_f32 v{t1}, {f32(1 / 512)}, v{t0}')
    A.I(f'v_rsq_f32 v{t1}, v{t1}')
    for i in range(8):
        A.I(f'v_mul_f32 v{Z + i}, v{Z + i}, v{t1}')


def round_bf16(A, Z, Pk):
    for i in range(4):
        A.I(f'v_cvt_pk_bf16_f32 v{Pk + i}, v{Z + 2 * i}, v{Z + 2 * i + 1}')
    for i in range(4):
        A.I(f'v_lshlrev_b32 v{Z + 2 * i}, 16, v{Pk + i}')
        A.I(f'v_and_b32 v{Z + 2 * i + 1}, 0xffff0000, v{Pk + i}')


def red_row(A, s_row, srd_x, ld='', st='', B=32):
    ws = f's[{S_WS}:{S_WS + 3}]'
    Z, Pk, XR = 8, 16, 20
    A.I('v_lshlrev_b32 v1, 4, v0')
    A.I(f's_lshl_b32 s{S_T0}, s{s_row}, 15')
    A.I(f's_add_u32 s{S_T0}, s{S_T0}, 0x{WS_OP:x}')
    for hh in range(32):
        if hh and hh % 4 == 0:
            A.I(f's_add_u32 s{S_T0}, s{S_T0}, 4096')
        A.I(f'buffer_load_dwordx4 {v(B + 4 * hh, 4)}, v1, {ws}, s{S_T0} offen offset:{1024 * (hh & 3)} {ld}')
    A.I('v_lshrrev_b32 v2, 2, v0')
    A.I('v_lshlrev_b32 v2, 6, v2')
    A.I('v_and_b32 v3, 3, v0')
    A.I('v_lshl_add_u32 v2, v3, 3, v2')
    A.I(f's_lshl_b32 s{S_T1}, s{s_row}, 10')
    A.I(f'buffer_load_dwordx2 {v(XR, 2)}, v2, {srd_x}, s{S_T1} offen')
    A.I(f'buffer_load_dwordx2 {v(XR + 2, 2)}, v2, {srd_x}, s{S_T1} offen offset:32')
    for i in range(8):
        A.I(f'v_mov_b32 v{Z + i}, 0')
    for hh in range(32):
        A.I(f's_waitcnt vmcnt({33 - hh})')
        for i in range(4):
            r = B + 4 * hh + i
            A.I(f'v_lshlrev_b32 v4, 16, v{r}')
            A.I(f'v_and_b32 v5, 0xffff0000, v{r}')
            A.I(f'v_add_f32 v{Z + 2 * i}, v{Z + 2 * i}, v4')
            A.I(f'v_add_f32 v{Z + 2 * i + 1}, v{Z + 2 * i + 1}, v5')
    round_bf16(A, Z, Pk)
    A.I('s_waitcnt vmcnt(0)')
    for i in range(4):
        A.I(f'v_lshlrev_b32 v4, 16, v{XR + i}')
        A.I(f'v_and_b32 v5, 0xffff0000, v{XR + i}')
        A.I(f'v_add_f32 v{Z + 2 * i}, v{Z + 2 * i}, v4')
        A.I(f'v_add_f32 v{Z + 2 * i + 1}, v{Z + 2 * i + 1}, v5')
    round_bf16(A, Z, Pk)
    A.I(f's_add_u32 s{S_T0}, s{S_T1}, 0x{WS_H:x}')
    A.I(f'buffer_store_dwordx2 {v(Pk, 2)}, v2, {ws}, s{S_T0} offen {st}')
    A.I(f'buffer_store_dwordx2 {v(Pk + 2, 2)}, v2, {ws}, s{S_T0} offen offset:32 {st}')
    ln_regs(A, Z, 4, 5)
    round_bf16(A, Z, XR)
    ln_regs(A, Z, 4, 5)
    for i in range(4):
        A.I(f'v_cvt_pk_bf16_f32 v{XR + i}, v{Z + 2 * i}, v{Z + 2 * i + 1}')
    A.I(f's_add_u32 s{S_T0}, s{S_T1}, 0x{WS_HP:x}')
    A.I(f'buffer_store_dwordx2 {v(XR, 2)}, v2, {ws}, s{S_T0} offen {st}')
    A.I(f'buffer_store_dwordx2 {v(XR + 2, 2)}, v2, {ws}, s{S_T0} offen offset:32 {st}')


def red_kernel(A, name):
    kernel_begin(A, name)
    le = A.newlabel('L_exit')
    prologue(A, {16: KA_WS, 18: KA_X}, 512, le)
    make_srd(A, S_WS, 16, WS_SIZE)
    make_srd(A, S_X, 18, 2048 * 1024)
    A.I(f's_lshl_b32 s{S_G}, s2, 2')
    A.I(f's_add_u32 s{S_G}, s{S_G}, s{S_WV}')
    red_row(A, S_G, f's[{S_X}:{S_X + 3}]')
    A.label(le)
    A.I('s_endpgm')


def g1_kernel(A, name):
    kernel_begin(A, name)
    le = A.newlabel('L_exit')
    prologue(A, {16: KA_WS, 18: KA_W1, 20: KA_B1}, 224, le)
    make_srd(A, S_WS, 16, WS_SIZE)
    make_srd(A, S_W, 18, 2048 * 3584)
    make_srd(A, S_X, 20, 3584)
    ws, w1, b1 = f's[{S_WS}:{S_WS + 3}]', f's[{S_W}:{S_W + 3}]', f's[{S_X}:{S_X + 3}]'
    S_FT, S_DT, S_AO, S_BO, S_LB = 36, 37, 38, 39, 40
    A.I(f's_and_b32 s{S_DT}, s2, 7')
    A.I(f's_lshr_b32 s{S_FT}, s2, 3')
    A.I('v_lshrrev_b32 v1, 3, v0')
    A.I('v_and_b32 v2, 7, v0')
    A.I('v_bfe_u32 v3, v0, 4, 1')
    A.I(f's_and_b32 s{S_T0}, s{S_WV}, 1')
    A.I(f's_lshl_b32 s{S_T0}, s{S_T0}, 1')
    A.I(f'v_or_b32 v3, s{S_T0}, v3')
    A.I('v_lshlrev_b32 v3, 1, v3')
    A.I('v_xor_b32 v2, v2, v3')
    A.I('v_lshlrev_b32 v2, 4, v2')
    A.I('v_mul_u32_u24 v4, 3584, v1')
    A.I('v_add_u32 v4, v4, v2')
    A.I('v_lshl_add_u32 v5, v1, 10, v2')
    A.I(f's_mul_i32 s{S_AO}, s{S_WV}, {8 * 3584}')
    A.I(f's_lshl_b32 s{S_T0}, s{S_FT}, 7')
    A.I(f's_add_u32 s{S_AO}, s{S_AO}, s{S_T0}')
    A.I(f's_lshl_b32 s{S_BO}, s{S_WV}, 13')
    A.I(f's_lshl_b32 s{S_T0}, s{S_DT}, 7')
    A.I(f's_add_u32 s{S_BO}, s{S_BO}, s{S_T0}')
    A.I(f's_add_u32 s{S_BO}, s{S_BO}, 0x{WS_HP:x}')
    A.I(f's_lshl_b32 s{S_LB}, s{S_WV}, 10')
    A.I('v_and_b32 v1, 15, v0')
    A.I('v_lshrrev_b32 v2, 4, v0')
    A.I('v_lshrrev_b32 v3, 2, v1')
    A.I('v_and_b32 v6, 3, v1')
    A.I('v_lshl_add_u32 v7, v2, 3, v3')
    A.I('v_lshlrev_b32 v7, 7, v7')
    A.I('v_lshl_add_u32 v7, v6, 3, v7')
    A.I('v_lshrrev_b32 v8, 1, v3')
    A.I('v_and_b32 v9, 1, v2')
    A.I('v_lshl_add_u32 v8, v9, 1, v8')
    A.I(f's_and_b32 s{S_T0}, s{S_WV}, 1')
    A.I(f's_lshl_b32 s{S_T0}, s{S_T0}, 1')
    A.I(f'v_xor_b32 v9, s{S_T0}, v8')
    A.I('v_lshl_add_u32 v10, v9, 5, v7')
    A.I('v_xor_b32 v11, 32, v10')
    A.I(f's_and_b32 s{S_T0}, s{S_WV}, 2')
    A.I(f'v_xor_b32 v9, s{S_T0}, v8')
    A.I('v_lshl_add_u32 v12, v9, 5, v7')
    A.I('v_add_u32 v12, 16384, v12')
    A.I('v_xor_b32 v13, 32, v12')
    for i in range(4):
        A.I(f'v_add_u32 v{14 + i}, 0x10000, v{10 + i}')
    A.I(f's_lshl_b32 s{S_T0}, s{S_FT}, 7')
    A.I(f's_and_b32 s{S_T1}, s{S_WV}, 1')
    A.I(f's_lshl_b32 s{S_T1}, s{S_T1}, 6')
    A.I(f's_add_u32 s{S_T0}, s{S_T0}, s{S_T1}')
    A.I('v_lshlrev_b32 v1, 3, v2')
    A.I(f'buffer_load_dwordx2 v[20:21], v1, {b1}, s{S_T0} offen')
    A.I(f'buffer_load_dwordx2 v[22:23], v1, {b1}, s{S_T0} offen offset:32')
    ACC, FR = 24, 40
    NS = 4

    def dma(k):
        st = (k % NS) * 32768
        for i in range(4):
            A.I(f's_add_u32 m0, s{S_LB}, {st + i * 4096}')
            A.I(f's_add_u32 s{S_T0}, s{S_AO}, {(k * 128 + i * 32) * 3584}')
            A.I(f'buffer_load_dwordx4 v4, {w1}, s{S_T0} offen lds')
            A.I(f's_add_u32 m0, s{S_LB}, {st + 16384 + i * 4096}')
            A.I(f's_add_u32 s{S_T1}, s{S_BO}, {(k * 128 + i * 32) * 1024}')
            A.I(f'buffer_load_dwordx4 v5, {ws}, s{S_T1} offen lds')

    NK = 16
    for k in range(NS - 1):
        dma(k)
    for k in range(NK):
        rem = min(NS - 2, NK - 1 - k)
        A.I(f's_waitcnt vmcnt({8 * rem})')
        A.I('s_barrier')
        if k + NS - 1 < NK:
            dma(k + NS - 1)
        sl = k % NS
        ab = 10 if sl < 2 else 14
        so = (sl & 1) * 32768

        def rd(ks):
            for j in range(4):
                for x in range(2):
                    A.I(f'ds_read_b64_tr_b16 {v(FR + 16 * ks + 4 * j + 2 * x, 2)}, v{ab + j} offset:{so + (32 * ks + 4 * x) * 128}')

        rd(0)
        for ks in range(4):
            if ks < 3:
                if ks:
                    pass
                A.I('s_waitcnt lgkmcnt(0)') if False else None
                rd(ks + 1)
                A.I('s_waitcnt lgkmcnt(8)')
            else:
                A.I('s_waitcnt lgkmcnt(0)')
            f = FR + 16 * ks
            for mbp in range(2):
                for nbp in range(2):
                    d = ACC + (mbp * 2 + nbp) * 4
                    c = '0' if (k == 0 and ks == 0) else v(d, 4)
                    A.I(f'v_mfma_f32_16x16x32_bf16 {v(d, 4)}, {v(f + 4 * mbp, 4)}, {v(f + 8 + 4 * nbp, 4)}, {c}')
    BI = 40
    for i in range(4):
        A.I(f'v_lshlrev_b32 v{BI + 2 * i}, 16, v{20 + i}')
        A.I(f'v_and_b32 v{BI + 2 * i + 1}, 0xffff0000, v{20 + i}')
    k1 = -2 * math.sqrt(2 / math.pi) * math.log2(math.e)
    A.I(f's_mov_b32 s{S_T2}, {f32(k1)}')
    A.I(f's_mov_b32 s{S_T3}, {f32(k1 * 0.044715)}')
    A.I(f's_lshl_b32 s{S_T0}, s{S_DT}, 2')
    A.I(f's_and_b32 s{S_T1}, s{S_WV}, 2')
    A.I(f's_add_u32 s{S_T0}, s{S_T0}, s{S_T1}')
    A.I(f's_mul_i32 s{S_T0}, s{S_T0}, 56')
    A.I(f's_lshl_b32 s{S_T1}, s{S_FT}, 1')
    A.I(f's_add_u32 s{S_T0}, s{S_T0}, s{S_T1}')
    A.I(f's_and_b32 s{S_T1}, s{S_WV}, 1')
    A.I(f's_add_u32 s{S_T0}, s{S_T0}, s{S_T1}')
    A.I(f's_lshl_b32 s{S_T0}, s{S_T0}, 10')
    A.I(f's_add_u32 s{S_T0}, s{S_T0}, 0x{WS_U:x}')
    A.I('v_lshlrev_b32 v1, 4, v0')
    for nbp in range(2):
        Z, Pk = 48, 56
        for mbp in range(2):
            for r in range(4):
                A.I(f'v_mov_b32 v{Z + 4 * mbp + r}, v{ACC + (mbp * 2 + nbp) * 4 + r}')
        round_bf16(A, Z, Pk)
        for i in range(8):
            A.I(f'v_add_f32 v{Z + i}, v{Z + i}, v{BI + i}')
        round_bf16(A, Z, Pk)
        for i in range(8):
            t = 60 + i
            A.I(f'v_mul_f32 v{t}, v{Z + i}, v{Z + i}')
            A.I(f'v_mov_b32 v{t + 8}, s{S_T2}')
            A.I(f'v_fmac_f32 v{t + 8}, s{S_T3}, v{t}')
            A.I(f'v_mul_f32 v{t}, v{t + 8}, v{Z + i}')
            A.I(f'v_exp_f32 v{t}, v{t}')
        for i in range(8):
            t = 60 + i
            A.I(f'v_add_f32 v{t}, 1.0, v{t}')
            A.I(f'v_rcp_f32 v{t}, v{t}')
        for i in range(8):
            A.I(f'v_mul_f32 v{Z + i}, v{Z + i}, v{60 + i}')
        o = 76 + 4 * nbp
        for i in range(4):
            A.I(f'v_cvt_pk_bf16_f32 v{o + i}, v{Z + 2 * i}, v{Z + 2 * i + 1}')
        A.I(f'buffer_store_dwordx4 {v(o, 4)}, v1, {ws}, s{S_T0} offen')
        A.I(f's_add_u32 s{S_T0}, s{S_T0}, {56 * 1024}')
    A.label(le)
    A.I('s_endpgm')


def g2_kernel(A, name):
    kernel_begin(A, name)
    le = A.newlabel('L_exit')
    prologue(A, {16: KA_WS, 18: KA_W2, 20: KA_B2, 22: KA_OUT}, 256, le)
    S_O = 24
    make_srd(A, S_WS, 16, WS_SIZE)
    make_srd(A, S_W, 18, 1792 * 4096)
    make_srd(A, S_X, 20, 4096)
    make_srd(A, S_O, 22, 2048 * 1024)
    ws, w2, b2, out = (f's[{x}:{x + 3}]' for x in (S_WS, S_W, S_X, S_O))
    S_ST, S_DT, S_AO, S_BO, S_LB = 36, 37, 38, 39, 40
    A.I(f's_and_b32 s{S_DT}, s2, 7')
    A.I(f's_lshr_b32 s{S_ST}, s2, 3')
    A.I('v_lshrrev_b32 v1, 3, v0')
    A.I('v_and_b32 v2, 7, v0')
    A.I('v_lshrrev_b32 v3, 4, v0')
    A.I('v_lshlrev_b32 v3, 1, v3')
    A.I('v_xor_b32 v2, v2, v3')
    A.I('v_lshlrev_b32 v2, 4, v2')
    A.I('v_lshl_add_u32 v4, v1, 12, v2')
    A.I('v_lshlrev_b32 v5, 4, v0')
    A.I(f's_lshl_b32 s{S_BO}, s{S_WV}, 15')
    A.I(f's_lshl_b32 s{S_T0}, s{S_ST}, 7')
    A.I(f's_add_u32 s{S_BO}, s{S_BO}, s{S_T0}')
    A.I(f's_lshl_b32 s{S_T0}, s{S_DT}, 2')
    A.I(f's_add_u32 s{S_T0}, s{S_T0}, s{S_WV}')
    A.I(f's_mul_i32 s{S_AO}, s{S_T0}, {56 * 1024}')
    A.I(f's_add_u32 s{S_AO}, s{S_AO}, 0x{WS_U:x}')
    A.I(f's_lshl_b32 s{S_LB}, s{S_WV}, 10')
    A.I('v_and_b32 v1, 15, v0')
    A.I('v_lshrrev_b32 v2, 4, v0')
    A.I('v_lshrrev_b32 v3, 2, v1')
    A.I('v_and_b32 v6, 3, v1')
    A.I('v_lshl_add_u32 v7, v2, 2, v3')
    A.I('v_bfe_u32 v8, v7, 1, 2')
    A.I('v_lshlrev_b32 v7, 7, v7')
    A.I('v_lshl_add_u32 v7, v6, 3, v7')
    A.I('v_lshl_add_u32 v10, v8, 5, v7')
    for j in range(1, 4):
        A.I(f'v_xor_b32 v{10 + j}, {32 * j}, v10')
    A.I('v_lshlrev_b32 v14, 10, v1')
    A.I('v_lshl_add_u32 v14, v2, 3, v14')
    A.I(f's_lshl_b32 s41, s{S_ST}, 16')
    A.I(f's_lshl_b32 s{S_T0}, s{S_T0}, 5')
    A.I(f's_add_u32 s41, s41, s{S_T0}')
    A.I('v_lshlrev_b32 v15, 1, v1')
    A.I(f's_lshl_b32 s{S_T1}, s{S_ST}, 7')
    HB, BB = 16, 24
    for nb in range(4):
        A.I(f's_add_u32 s{S_T0}, s41, 0x{WS_H + nb * 16384:x}')
        A.I(f'buffer_load_dwordx2 {v(HB + 2 * nb, 2)}, v14, {ws}, s{S_T0} offen')
        A.I(f'buffer_load_ushort v{BB + nb}, v15, {b2}, s{S_T1} offen offset:{32 * nb}')
    ACC, FR, AR = 28, 44, 108
    NS, NK = 4, 14

    def dma(k):
        st = (k % NS) * 16384
        for i in range(4):
            A.I(f's_add_u32 m0, s{S_LB}, {st + i * 4096}')
            A.I(f's_add_u32 s{S_T0}, s{S_BO}, {(k * 128 + i * 32) * 4096}')
            A.I(f'buffer_load_dwordx4 v4, {w2}, s{S_T0} offen lds')
        A.I(f's_add_u32 s{S_T1}, s{S_AO}, {k * 4096}')
        for ks in range(4):
            A.I(f'buffer_load_dwordx4 {v(AR + 16 * (k % NS) + 4 * ks, 4)}, v5, {ws}, s{S_T1} offen offset:{1024 * ks}')

    for k in range(NS - 1):
        dma(k)
    for k in range(NK):
        rem = min(NS - 2, NK - 1 - k)
        A.I(f's_waitcnt vmcnt({8 * rem})')
        A.I('s_barrier')
        if k + NS - 1 < NK:
            dma(k + NS - 1)
        so = (k % NS) * 16384

        def rd(ks):
            for j in range(4):
                for x in range(2):
                    A.I(f'ds_read_b64_tr_b16 {v(FR + 16 * ks + 4 * j + 2 * x, 2)}, v{10 + j} offset:{so + (32 * ks + 16 * x) * 128}')

        rd(0)
        for ks in range(4):
            if ks < 3:
                rd(ks + 1)
                A.I('s_waitcnt lgkmcnt(8)')
            else:
                A.I('s_waitcnt lgkmcnt(0)')
            for nb in range(4):
                d = ACC + 4 * nb
                c = '0' if (k == 0 and ks == 0) else v(d, 4)
                A.I(f'v_mfma_f32_16x16x32_bf16 {v(d, 4)}, {v(AR + 16 * (k % NS) + 4 * ks, 4)}, {v(FR + 16 * ks + 4 * nb, 4)}, {c}')
    for nb in range(4):
        d = ACC + 4 * nb
        t = 44
        A.I(f'v_cvt_pk_bf16_f32 v{t}, v{d}, v{d + 1}')
        A.I(f'v_cvt_pk_bf16_f32 v{t + 1}, v{d + 2}, v{d + 3}')
        A.I(f'v_lshlrev_b32 v{t + 2}, 16, v{BB + nb}')
        for i in range(2):
            A.I(f'v_lshlrev_b32 v{d + 2 * i}, 16, v{t + i}')
            A.I(f'v_and_b32 v{d + 2 * i + 1}, 0xffff0000, v{t + i}')
        for r in range(4):
            A.I(f'v_add_f32 v{d + r}, v{d + r}, v{t + 2}')
        A.I(f'v_cvt_pk_bf16_f32 v{t}, v{d}, v{d + 1}')
        A.I(f'v_cvt_pk_bf16_f32 v{t + 1}, v{d + 2}, v{d + 3}')
        for i in range(2):
            A.I(f'v_lshlrev_b32 v{d + 2 * i}, 16, v{t + i}')
            A.I(f'v_and_b32 v{d + 2 * i + 1}, 0xffff0000, v{t + i}')
            A.I(f'v_lshlrev_b32 v{t + 2}, 16, v{HB + 2 * nb + i}')
            A.I(f'v_and_b32 v{t + 3}, 0xffff0000, v{HB + 2 * nb + i}')
            A.I(f'v_add_f32 v{d + 2 * i}, v{d + 2 * i}, v{t + 2}')
            A.I(f'v_add_f32 v{d + 2 * i + 1}, v{d + 2 * i + 1}, v{t + 3}')
        o = 48 + 2 * nb
        A.I(f'v_cvt_pk_bf16_f32 v{o}, v{d}, v{d + 1}')
        A.I(f'v_cvt_pk_bf16_f32 v{o + 1}, v{d + 2}, v{d + 3}')
        A.I(f's_add_u32 s{S_T0}, s41, {nb * 16384}')
        A.I(f'buffer_store_dwordx2 {v(o, 2)}, v14, {out}, s{S_T0} offen')
    A.label(le)
    A.I('s_endpgm')
```

```python
import sys, os
os.environ.update(PB_DELAY='7',AF_DELAY='2',AF_GAP='2')
from tok import *
import rec7
A=Asm()
K=[('ln1_kernel',ln1_kernel,32,0,200,200),('qkv_kernel',qkv_kernel,256,131072,512,256),('rec_kernel',rec7.rec_kernel,256,rec7.L_TOTAL,512,256),
   ('att_kernel',att_kernel,256,131328,512,256),('red_kernel',red_kernel,512,0,160,160),('g1_kernel',g1_kernel,224,131072,128,128),('g2_kernel',g2_kernel,256,65536,176,176)]
for k in K: k[1](A,k[0])
txt=header([(k[0],k[2],256,k[3]) for k in K])+A.text()+'.section .rodata,"a"\n'+''.join(kernel_desc(k[0],k[4],k[5]) for k in K)
open('t3.s','w').write(txt)
open(f'cdna_kernels/{NAME}.s','w').write(txt)
print(len(txt))
```

```python
from common import *
import os, math, struct
STAMPS = bool(os.environ.get('STAMPS'))
NSTEPS = 63
LDF = os.environ.get('LDF', 'sc1').replace('_', ' ')
STF = os.environ.get('STF', '').replace('_', ' ')
EXF = os.environ.get('EXF', 'sc1')
E = lambda k, d: int(os.environ.get(k, d))
TOUCH_AHEAD = E('TOUCH_AHEAD', 1)
PB_DELAY, PB_GAP, AF_DELAY, AF_GAP = E('PB_DELAY', 0), E('PB_GAP', 0), E('AF_DELAY', 0), E('AF_GAP', 3)
OUT = os.environ.get('OUT', 'rec_test.s')

L_QX = 0
L_KX_ = 2560
L_VM = 5120
L_AF = 7168
L_OX = L_AF
L_KV = 15360
L_WO = 31744
L_HALF = 65792
L_TOTAL = L_WO + 2 * L_HALF

PB_GRP = 8448
PB_SLOT = 0x48000

S_WS, S_W, S_DBG = 4, 8, 12
S_H, S_WV, S_STEP = 32, 33, 34
S_SPIN = 35
S_MBR, S_MBW = 36, 37
S_TAG = 47
S_PB0, S_PB1 = 38, 39
S_PB0H = 40
S_AFO = 41
S_TCH = 42
S_KVN = 44
S_KMO, S_VMO = 45, 46
S_T0, S_T1, S_T2, S_T3 = 48, 49, 50, 51
S_C = 52
S_ONE = 54
S_TS = 56
S_M0, S_M1 = 16, 18
S_W640 = 20
S_KVM0 = 62
S_W11 = 63

AF = 0
ACC = 32
KX = 56
VX = 88
T = 96
V_IDX, V_L16, V_QKW, V_QR, V_KR, V_OW, V_WO0, V_WO1, V_PBW, V_RDR, V_MBW, V_SEL, V_VX, V_SP, V_MX, V_TM = range(112, 128)
S_PZ = 43
LANE = 100

LDS_SLOT = {}
_l0 = [('q', 0, 0), ('q', 1, 0), ('q', 0, 1), ('q', 1, 1), ('k', 0, 0), ('k', 1, 0), ('o', 6, 0), ('o', 7, 0)]
_l1 = [('k', 0, 1), ('k', 1, 1), ('k', 0, 2), ('k', 1, 2), ('k', 0, 3), ('k', 1, 3), ('o', 6, 1), ('o', 7, 1)]
for i, f in enumerate(_l0):
    LDS_SLOT[f] = (0, i)
for i, f in enumerate(_l1):
    LDS_SLOT[f] = (1, i)
HOME = {}
_h = 0
for mat in 'qkv':
    for nb in range(2):
        for t in range(8):
            HOME[(mat, nb, t)] = (256 + _h * 8) if _h < 32 else (128 + (_h - 32) * 8)
            _h += 1
for t2 in range(2):
    vac = [f for f, (hf, sl) in LDS_SLOT.items() if hf == t2 and f[0] != 'o']
    assert len(vac) == 6
    for nbo in range(6):
        HOME[('o', nbo, t2)] = HOME[vac[nbo]]


def lds_frag_read(A, f, b):
    hf, sl = LDS_SLOT[f]
    va = V_WO1 if hf else V_WO0
    A.I(f'ds_read_b128 {v(b, 4)}, v{va} offset:{sl * 2048}')
    A.I(f'ds_read_b128 {v(b + 4, 4)}, v{va} offset:{sl * 2048 + 1024}')


def lane_fields(A, vt, vg, vn):
    A.I(f'v_and_b32 v{vn}, 15, v{vt}')
    A.I(f'v_bfe_u32 v{vg}, v{vt}, 4, 2')


def stage_weights(A, ptr_sgprs):
    g, n = 2, 3
    lane_fields(A, LANE, g, n)
    VD0, VD1 = 4, 5
    A.I(f'v_lshrrev_b32 v6, 5, v{LANE}')
    A.I(f's_and_b32 s{S_T0}, s{S_WV}, 1')
    A.I(f's_lshl_b32 s{S_T0}, s{S_T0}, 1')
    A.I(f'v_or_b32 v6, s{S_T0}, v6')
    A.I(f'v_lshlrev_b32 v6, 1, v6')
    A.I(f'v_xor_b32 v6, v6, v{n}')
    A.I(f'v_lshlrev_b32 v6, 4, v6')
    A.I(f'v_lshlrev_b32 v7, 13, v{g}')
    A.I(f'v_or_b32 v{VD0}, v6, v7')
    A.I(f'v_xor_b32 v{VD1}, 0x80, v{VD0}')
    A.I(f'v_lshrrev_b32 v6, 2, v{n}')
    A.I(f'v_and_b32 v7, 3, v{n}')
    A.I(f'v_and_b32 v8, 1, v6')
    A.I(f'v_lshrrev_b32 v9, 1, v6')
    A.I(f'v_and_b32 v10, 1, v{g}')
    A.I(f'v_lshrrev_b32 v11, 1, v{g}')
    A.I(f'v_lshlrev_b32 v12, 7, v11')
    A.I(f'v_lshl_add_u32 v12, v10, 1, v12')
    A.I(f'v_lshl_add_u32 v12, v8, 4, v12')
    A.I(f'v_lshl_add_u32 v12, v9, 2, v12')
    A.I(f'v_lshl_add_u32 v13, v9, 1, v10')
    A.I(f'v_lshl_add_u32 v13, v8, 2, v13')
    A.I(f's_lshl_b32 s{S_T0}, s{S_WV}, 1')
    A.I(f'v_xor_b32 v13, s{S_T0}, v13')
    A.I(f'v_lshlrev_b32 v14, 8, v12')
    A.I(f'v_lshl_add_u32 v14, v13, 5, v14')
    A.I(f'v_lshl_add_u32 v14, v7, 3, v14')
    VT = {}
    A.I(f'v_xor_b32 v15, 32, v14')
    r = 64
    for cu in range(4):
        A.I(f's_xor_b32 s{S_T0}, s{S_WV}, {cu}')
        A.I(f's_lshl_b32 s{S_T0}, s{S_T0}, 13')
        for bf in range(2):
            A.I(f's_add_u32 s{S_T1}, s{S_T0}, {L_WO + bf * L_HALF}')
            for nb in range(2):
                VT[(nb, bf, cu)] = r
                A.I(f'v_add_u32 v{r}, s{S_T1}, v{14 + nb}')
                r += 1
    A.I(f'v_lshl_add_u32 v13, v9, 1, v8')
    A.I(f'v_lshl_add_u32 v13, v10, 2, v13')
    A.I(f'v_lshlrev_b32 v14, 13, v13')
    A.I(f'v_lshl_add_u32 v14, v11, 11, v14')
    A.I(f'v_lshl_add_u32 v14, v13, 5, v14')
    A.I(f'v_lshl_add_u32 v14, v7, 3, v14')
    A.I(f's_lshl_b32 s{S_T0}, s{S_WV}, 8')
    A.I(f'v_add_u32 v14, s{S_T0}, v14')
    VTO = {0: 20, 1: 21}
    A.I(f'v_add_u32 v20, {L_WO}, v14')
    A.I(f'v_add_u32 v21, {L_WO + L_HALF}, v14')
    WOT = 32

    def dma(sc):
        buf = L_WO + (sc & 1) * L_HALF
        if sc < 6:
            mat, hh = sc >> 1, sc & 1
            make_srd(A, S_W, ptr_sgprs[mat], 512 * 8192)
            A.I(f's_lshl_b32 s{S_T0}, s{S_WV}, 15')
            A.I(f's_lshl_b32 s{S_T1}, s{S_H}, 8')
            A.I(f's_add_u32 s{S_T0}, s{S_T0}, s{S_T1}')
            A.I(f's_add_u32 s{S_T0}, s{S_T0}, {hh << 21}')
            A.I(f's_lshl_b32 s{S_T1}, s{S_WV}, 10')
            A.I(f's_add_u32 s{S_T1}, s{S_T1}, {buf}')
            for i in range(16):
                A.I(f's_mov_b32 m0, s{S_T1}')
                A.I(f'buffer_load_dwordx4 v{VD1 if i & 1 else VD0}, s[{S_W}:{S_W + 3}], s{S_T0} offen lds')
                if i < 15:
                    A.I(f's_add_u32 s{S_T0}, s{S_T0}, {4 * 32768}')
                    A.I(f's_add_u32 s{S_T1}, s{S_T1}, 4096')
        else:
            t2 = sc & 1
            make_srd(A, S_W, ptr_sgprs[3], 4096 * 1024)
            A.I(f's_and_b32 s{S_T0}, s{S_WV}, 1')
            A.I(f's_lshl_b32 s{S_T0}, s{S_T0}, 13')
            A.I(f's_lshr_b32 s{S_T1}, s{S_WV}, 1')
            A.I(f's_lshl_b32 s{S_T1}, s{S_T1}, 15')
            A.I(f's_add_u32 s{S_T0}, s{S_T0}, s{S_T1}')
            A.I(f's_lshl_b32 s{S_T1}, s{S_H}, 17')
            A.I(f's_add_u32 s{S_T0}, s{S_T0}, s{S_T1}')
            A.I(f's_add_u32 s{S_T0}, s{S_T0}, {t2 << 16}')
            A.I(f's_lshl_b32 s{S_T1}, s{S_WV}, 11')
            A.I(f's_add_u32 s{S_T1}, s{S_T1}, {buf}')
            for f in range(8):
                for x in range(2):
                    row = (f & 1) + 2 * x + 4 * ((f >> 1) & 1) + 16 * (f >> 2)
                    A.I(f's_add_u32 s{S_T2}, s{S_T1}, {(8 * f + x) * 1024 + 32 * f}')
                    A.I(f's_add_u32 s{S_T3}, s{S_T0}, {row * 1024}')
                    A.I(f's_mov_b32 m0, s{S_T2}')
                    A.I(f'buffer_load_dwordx4 v{V_L16}, s[{S_W}:{S_W + 3}], s{S_T3} offen lds')

    dma(0)
    dma(1)
    for sc in range(8):
        A.I(f's_waitcnt vmcnt({16 if sc < 7 else 0})')
        A.I('s_barrier')
        cnt = 0
        if sc < 6:
            mat, hh = 'qkv'[sc >> 1], sc & 1
            for nb in range(2):
                for t in range(8):
                    for x in range(2):
                        c, nhi = t >> 1, t & 1
                        imm = (8 * nhi + x) * 256
                        if cnt >= 12:
                            A.I('s_waitcnt lgkmcnt(8)')
                            cnt = 8
                        A.I(f'ds_read_b64_tr_b16 {u(HOME[(mat, nb, t)] + 4 * hh + 2 * x, 2)}, v{VT[(nb, sc & 1, c)]} offset:{imm}')
                        cnt += 1
        else:
            for nbo in range(8):
                for hh in range(2):
                    for x in range(2):
                        imm = (x + 4 * hh) * 1024 + 32 * nbo
                        if cnt >= 12:
                            A.I('s_waitcnt lgkmcnt(8)')
                            cnt = 8
                        A.I(f'ds_read_b64_tr_b16 {v(WOT + nbo * 8 + 4 * hh + 2 * x, 2)}, v{VTO[sc & 1]} offset:{imm}')
                        cnt += 1
        A.I('s_waitcnt lgkmcnt(0)')
        A.I('s_barrier')
        if sc + 2 < 8:
            dma(sc + 2)
        if sc >= 6:
            t2 = sc & 1
            va = V_WO1 if t2 else V_WO0
            k = 0
            for f, (hf, sl) in LDS_SLOT.items():
                if hf != t2:
                    continue
                src = (WOT + f[1] * 8) if f[0] == 'o' else HOME[f]
                for hh in range(2):
                    A.I(f'ds_write_b128 v{va}, {u(src + 4 * hh, 4)} offset:{sl * 2048 + hh * 1024}')
                k += 1
                if k & 1 == 0:
                    A.I('s_waitcnt lgkmcnt(4)')
            A.I('s_waitcnt lgkmcnt(0)')
            for nbo in range(6):
                hm = HOME[('o', nbo, t2)]
                for r in range(8):
                    if hm >= 256:
                        A.I(f'v_accvgpr_write_b32 a{hm - 256 + r}, v{WOT + nbo * 8 + r}')
                    else:
                        A.I(f'v_mov_b32 v{hm + r}, v{WOT + nbo * 8 + r}')


def setup_consts(A):
    g, n = 2, 3
    lane_fields(A, LANE, g, n)
    A.I(f's_lshl_b32 s{S_W11}, s{S_WV}, 11')
    A.I(f'v_bfe_u32 v4, v{n}, 1, 1')
    A.I(f'v_mul_u32_u24 v4, 0xaaaa, v4')
    A.I(f'v_add_u32 v{V_IDX}, 0x4444, v4')
    A.I(f'v_lshlrev_b32 v{V_L16}, 4, v{LANE}')
    A.I(f's_mul_i32 s{S_T0}, s{S_WV}, 640')
    A.I(f'v_lshrrev_b32 v4, 2, v{n}')
    A.I(f'v_mul_u32_u24 v4, 160, v4')
    A.I(f'v_lshl_add_u32 v4, v{g}, 4, v4')
    A.I(f'v_and_b32 v5, 3, v{n}')
    A.I(f'v_lshl_add_u32 v4, v5, 2, v4')
    A.I(f'v_add_u32 v{V_QKW}, s{S_T0}, v4')
    A.I(f'v_mul_u32_u24 v6, 160, v{g}')
    A.I(f'v_and_b32 v4, 1, v{n}')
    A.I(f'v_bfe_u32 v5, v{n}, 1, 2')
    A.I(f'v_lshl_add_u32 v4, v4, 2, v5')
    A.I(f'v_lshl_add_u32 v{V_QR}, v4, 4, v6')
    A.I(f'v_and_b32 v4, 1, v{n}')
    A.I(f'v_lshrrev_b32 v5, 2, v{n}')
    A.I(f'v_and_b32 v7, 2, v{n}')
    A.I(f'v_xor_b32 v5, v5, v7')
    A.I(f'v_lshl_add_u32 v4, v4, 2, v5')
    A.I(f'v_lshl_add_u32 v{V_KR}, v4, 4, v6')
    A.I(f'v_add_u32 v{V_KR}, {L_KX_}, v{V_KR}')
    A.I(f's_lshl_b32 s{S_T0}, s{S_WV}, 9')
    A.I(f's_add_u32 s{S_T0}, s{S_T0}, {L_OX}')
    A.I(f'v_lshrrev_b32 v4, 1, v{g}')
    A.I(f'v_lshlrev_b32 v4, 8, v4')
    A.I(f'v_lshrrev_b32 v5, 1, v{n}')
    A.I(f'v_lshl_add_u32 v4, v5, 6, v4')
    A.I(f'v_and_b32 v5, 1, v{g}')
    A.I(f'v_lshl_add_u32 v4, v5, 5, v4')
    A.I(f'v_and_b32 v5, 1, v{n}')
    A.I(f'v_lshl_add_u32 v4, v5, 4, v4')
    A.I(f'v_add_u32 v4, s{S_T0}, v4')
    A.I(f'v_add_u32 v5, {L_QX}, v{V_L16}')
    A.I(f'v_cmp_gt_u32 vcc, 8, v{n}')
    A.I(f'v_cndmask_b32 v{V_OW}, v5, v4, vcc')
    A.I(f's_lshl_b32 s{S_T0}, s{S_WV}, 14')
    A.I(f's_add_u32 s{S_T0}, s{S_T0}, {L_WO}')
    A.I(f'v_add_u32 v{V_WO0}, s{S_T0}, v{V_L16}')
    A.I(f'v_add_u32 v{V_WO1}, {L_HALF}, v{V_WO0}')
    A.I(f'v_add_u32 v{V_VX}, s{S_W11}, v{V_L16}')
    A.I(f'v_lshrrev_b32 v4, 3, v{n}')
    A.I(f'v_lshl_add_u32 v4, v{g}, 1, v4')
    A.I(f'v_mul_u32_u24 v4, {PB_GRP}, v4')
    A.I(f'v_and_b32 v5, 7, v{n}')
    A.I(f'v_lshl_add_u32 v4, v5, 4, v4')
    A.I(f's_mul_i32 s{S_T0}, s{S_WV}, {8 * PB_GRP}')
    A.I(f's_lshl_b32 s{S_T1}, s{S_H}, 8')
    A.I(f's_add_u32 s{S_T0}, s{S_T0}, s{S_T1}')
    A.I(f'v_add_u32 v{V_PBW}, s{S_T0}, v4')
    A.I(f's_mul_i32 s{S_T0}, s{S_H}, {PB_GRP}')
    A.I(f's_add_u32 s{S_PZ}, s{S_T0}, s{S_W11}')
    A.I(f's_lshl_b32 s{S_T1}, s{S_WV}, 7')
    A.I(f's_add_u32 s{S_T0}, s{S_T0}, s{S_T1}')
    A.I(f'v_lshlrev_b32 v4, 8, v{g}')
    A.I(f'v_lshl_add_u32 v4, v{n}, 3, v4')
    A.I(f'v_add_u32 v{V_RDR}, s{S_T0}, v4')
    A.I(f's_and_b32 s{S_T1}, s{S_H}, 1')
    A.I(f's_lshl_b32 s{S_T1}, s{S_T1}, 10')
    A.I(f's_lshl_b32 s{S_T0}, s{S_WV}, 12')
    A.I(f's_add_u32 s{S_T0}, s{S_T0}, s{S_T1}')
    A.I(f's_lshr_b32 s{S_T1}, s{S_H}, 1')
    A.I(f's_lshl_b32 s{S_T1}, s{S_T1}, 6')
    A.I(f's_add_u32 s{S_T0}, s{S_T0}, s{S_T1}')
    A.I(f'v_lshrrev_b32 v4, 3, v{n}')
    A.I(f'v_lshlrev_b32 v4, 5, v4')
    A.I(f'v_and_b32 v5, 1, v{n}')
    A.I(f'v_lshl_add_u32 v4, v5, 11, v4')
    A.I(f'v_bfe_u32 v5, v{n}, 1, 2')
    A.I(f'v_lshl_add_u32 v4, v5, 2, v4')
    A.I(f'v_add_u32 v4, s{S_T0}, v4')
    A.I(f'v_mov_b32 v5, 0x7f000000')
    A.I(f'v_cmp_gt_u32 vcc, 16, v{LANE}')
    A.I(f'v_cndmask_b32 v{V_MBW}, v5, v4, vcc')
    A.I(f'v_mov_b32 v4, 0x3f80')
    A.I(f'v_mov_b32 v5, 0x3f800000')
    A.I(f'v_and_b32 v6, 1, v{n}')
    A.I(f'v_cmp_eq_u32 vcc, 1, v6')
    A.I(f'v_cndmask_b32 v{V_SEL}, v4, v5, vcc')
    A.I(f'v_lshrrev_b32 v6, 1, v{n}')
    A.I(f'v_cmp_eq_u32 s[{S_M0}:{S_M0 + 1}], 0, v6')
    A.I(f'v_cmp_eq_u32 s[{S_M1}:{S_M1 + 1}], 1, v6')
    c = (128 ** -0.5) * math.log2(math.e)
    cb = struct.unpack("<I", struct.pack("<f", c))[0]
    A.I(f's_mov_b32 s{S_C}, 0x{cb:08x}')
    A.I(f's_mov_b32 s{S_C + 1}, 0x{cb:08x}')
    A.I(f's_mov_b32 s{S_ONE}, 0x3f803f80')
    A.I(f's_mov_b32 s{S_ONE + 1}, 0x3f803f80')


def init_exchange(A, s_mem0, st):
    ws = f's[{S_WS}:{S_WS + 3}]'
    for r in range(4, 8):
        A.I(f'v_mov_b32 v{r}, -1')
    for r in range(3):
        A.I(f's_add_u32 s{S_T0}, s{S_PZ}, 0x{WS_PB + r * PB_SLOT:x}')
        for c in range(2):
            A.I(f'buffer_store_dwordx4 v[4:7], v{V_L16}, {ws}, s{S_T0} offen offset:{1024 * c} {st}')
    le = A.newlabel('L_ie')
    A.I(f's_cmp_ge_u32 s{S_WV}, 2')
    A.br(f's_cbranch_scc1 {le}')
    A.I(f's_mov_b32 s{S_T0}, 0x{WS_MB + 8192:x}')
    A.I(f'buffer_store_dword v4, v{V_MBW}, {ws}, s{S_T0} offen {st}')
    A.I(f'buffer_store_dword v4, v{V_MBW}, {ws}, s{S_T0} offen offset:16 {st}')
    make_srd(A, S_W, s_mem0, 8192)
    n = 3
    A.I(f'v_and_b32 v{n}, 15, v{LANE}')
    A.I(f's_bfe_u32 s{S_T0}, s{S_H}, 0x20001')
    A.I(f's_lshl_b32 s{S_T0}, s{S_T0}, 11')
    A.I(f's_lshr_b32 s{S_T1}, s{S_H}, 3')
    A.I(f's_lshl_b32 s{S_T1}, s{S_T1}, 8')
    A.I(f's_add_u32 s{S_T0}, s{S_T0}, s{S_T1}')
    A.I(f's_lshl_b32 s{S_T1}, s{S_WV}, 7')
    A.I(f's_add_u32 s{S_T0}, s{S_T0}, s{S_T1}')
    A.I(f's_and_b32 s{S_T1}, s{S_H}, 1')
    A.I(f's_lshl_b32 s{S_T1}, s{S_T1}, 4')
    A.I(f's_add_u32 s{S_T0}, s{S_T0}, s{S_T1}')
    A.I(f'v_and_b32 v12, 1, v{n}')
    A.I(f'v_lshlrev_b32 v12, 6, v12')
    A.I(f'v_lshrrev_b32 v13, 1, v{n}')
    A.I(f'v_lshl_add_u32 v12, v13, 1, v12')
    w = f's[{S_W}:{S_W + 3}]'
    A.I(f'buffer_load_ushort v8, v12, {w}, s{S_T0} offen')
    A.I(f'buffer_load_ushort v9, v12, {w}, s{S_T0} offen offset:32')
    A.I(f'buffer_load_ushort v10, v12, {w}, s{S_T0} offen offset:1024')
    A.I(f'buffer_load_ushort v11, v12, {w}, s{S_T0} offen offset:1056')
    A.I('s_waitcnt vmcnt(0)')
    A.I('v_lshl_or_b32 v8, v9, 16, v8')
    A.I('v_lshl_or_b32 v10, v11, 16, v10')
    A.I('v_min_u32 v8, -2, v8')
    A.I('v_min_u32 v10, -2, v10')
    A.I(f's_mov_b32 s{S_T0}, 0x{WS_MB:x}')
    A.I(f'buffer_store_dword v8, v{V_MBW}, {ws}, s{S_T0} offen {st}')
    A.I(f'buffer_store_dword v10, v{V_MBW}, {ws}, s{S_T0} offen offset:16 {st}')
    A.label(le)
    A.I('s_waitcnt vmcnt(0)')


HS = [('q', 0, 0), ('q', 1, 0), ('q', 0, 1), ('q', 1, 1), ('k', 0, 0), ('k', 1, 0), ('k', 0, 1), ('k', 1, 1)]
QBUF = dict(zip(HS, [KX, KX + 8, KX + 16, KX + 24, VX, T, T + 8, ACC + 16]))


def zero(A, r0, n):
    for i in range(0, n, 2):
        A.I(f'v_mov_b64 {v(r0 + i, 2)}, 0')


def q_prefetch(A, part=None):
    for i, f in enumerate(HS):
        if part is not None and (i >> 2) != part:
            continue
        lds_frag_read(A, f, QBUF[f])
        if i == 5:
            A.I('s_waitcnt lgkmcnt(8)')


def kv_dma(A):
    ws = f's[{S_WS}:{S_WS + 3}]'
    A.I(f's_mov_b32 m0, s{S_KVM0}')
    A.I(f's_add_u32 s{S_T0}, s{S_KVN}, 0x{WS_VF - WS_KF:x}')
    A.I(f'buffer_load_dwordx4 v{V_L16}, {ws}, s{S_KVN} offen lds')
    A.I(f'buffer_load_dwordx4 v{V_L16}, {ws}, s{S_KVN} offen offset:1024 lds')
    A.I(f's_add_u32 m0, s{S_KVM0}, 8192')
    A.I(f's_add_u32 s{S_KVN}, s{S_KVN}, 0x40000')
    A.I(f'buffer_load_dwordx4 v{V_L16}, {ws}, s{S_T0} offen lds')
    A.I(f'buffer_load_dwordx4 v{V_L16}, {ws}, s{S_T0} offen offset:1024 lds')


S_RC, S_RA = 21, 22


def kv_wait(A, l_exit):
    ws = f's[{S_WS}:{S_WS + 3}]'
    l = A.newlabel('L_kvw')
    A.label(l)
    A.I(f'buffer_load_dword v{V_SP}, off, {ws}, s{S_RA} sc1')
    A.I(f's_sub_u32 s{S_SPIN}, s{S_SPIN}, 1')
    A.I(f's_cbranch_scc1 {l_exit}')
    A.I('s_waitcnt vmcnt(0)')
    A.I(f'v_readfirstlane_b32 s{S_T0}, v{V_SP}')
    A.I(f's_cmp_lg_u32 s{S_T0}, s{S_T1}')
    A.br(f's_cbranch_scc1 {l}')


def main_loop(A, st, l_exit, kvcheck=False):
    ws = f's[{S_WS}:{S_WS + 3}]'
    A.I(f's_mov_b32 s{S_STEP}, 0')
    A.I(f's_mov_b32 s{S_MBR}, 0x{WS_MB:x}')
    A.I(f's_mov_b32 s{S_MBW}, 0x{WS_MB + 8192:x}')
    A.I(f's_mov_b32 s{S_PB0}, 0x{WS_PB:x}')
    A.I(f's_mov_b32 s{S_PB1}, 0x{WS_PB + PB_SLOT:x}')
    A.I(f's_lshl_b32 s{S_KMO}, s{S_H}, 12')
    A.I(f's_lshl_b32 s{S_T0}, s{S_WV}, 10')
    A.I(f's_add_u32 s{S_KMO}, s{S_KMO}, s{S_T0}')
    A.I(f's_add_u32 s{S_KMO}, s{S_KMO}, 0x{WS_KM - 0x20000:x}')
    A.I(f's_mul_i32 s{S_W640}, s{S_WV}, 640')
    A.I(f's_lshl_b32 s{S_VMO}, s{S_H}, 11')
    A.I(f's_lshl_b32 s{S_T0}, s{S_WV}, 9')
    A.I(f's_add_u32 s{S_VMO}, s{S_VMO}, s{S_T0}')
    A.I(f's_add_u32 s{S_VMO}, s{S_VMO}, 0x{WS_VM - 0x10000:x}')
    A.I(f's_lshr_b32 s{S_T0}, s{S_WV}, 1')
    A.I(f's_mul_i32 s{S_TCH}, s{S_T0}, 0x{WS_VF - WS_KF:x}')
    A.I(f's_and_b32 s{S_T0}, s{S_WV}, 1')
    A.I(f's_lshl_b32 s{S_T0}, s{S_T0}, 12')
    A.I(f's_add_u32 s{S_TCH}, s{S_TCH}, s{S_T0}')
    A.I(f's_lshl_b32 s{S_T0}, s{S_H}, 13')
    A.I(f's_add_u32 s{S_TCH}, s{S_TCH}, s{S_T0}')
    A.I(f's_add_u32 s{S_TCH}, s{S_TCH}, 0x{WS_KF + TOUCH_AHEAD * 0x40000:x}')

    NST = 12
    order = []

    def stamp(i):
        if not STAMPS:
            return
        order.append(i)
        A.raw(f'    s_memtime s[{64 + 2 * i}:{65 + 2 * i}]')
        A.pos += 1

    def stamp_acc():
        if not STAMPS:
            return
        A.I('s_waitcnt lgkmcnt(0)')
        if E('RAW', 0):
            lk = A.newlabel('L_raw')
            A.I(f's_cmp_lg_u32 s{S_STEP}, {E("RAW", 0)}')
            A.I(f's_cbranch_scc1 {lk}')
            for i in range(NST):
                if i != 6:
                    A.I(f's_mov_b32 s{88 + i}, s{64 + 2 * i}')
            A.label(lk)
            lk = A.newlabel('L_raw')
            A.I(f's_cmp_lg_u32 s{S_STEP}, {E("RAW", 0) - 1}')
            A.I(f's_cbranch_scc1 {lk}')
            A.I(f's_mov_b32 s{88 + 6}, s{64 + 12}')
            A.label(lk)
            return
        prev = 100
        for i in order:
            A.I(f's_sub_u32 s101, s{64 + 2 * i}, s{prev}')
            A.I(f's_add_u32 s{88 + i}, s{88 + i}, s101')
            prev = 64 + 2 * i
        A.I(f's_mov_b32 s100, s{prev}')
    if STAMPS:
        for i in range(NST):
            A.I(f's_mov_b32 s{88 + i}, 0')
        A.I(f's_memtime s[64:65]')
        A.I('s_waitcnt lgkmcnt(0)')
        for i in range(NST):
            A.I(f's_mov_b32 s{64 + 2 * i}, s64')
        A.I(f's_mov_b32 s100, s64')

    L_top = A.newlabel('L_rec')
    L_af = A.newlabel('L_afpoll')
    L_red = A.newlabel('L_red')
    L_bh = A.newlabel('L_bh')
    L_w23 = A.newlabel('L_w23')
    L_fin = A.newlabel('L_fin')
    HS_ = E('HSTAMP', 0)
    _stamp = stamp
    if HS_:
        order.extend([2, 3, 7, 9, 10])

    def hstamp(i):
        if STAMPS and HS_:
            A.raw(f'    s_memtime s[{64 + 2 * i}:{65 + 2 * i}]')
            A.pos += 1

    def stamp(i):
        if HS_ and i in (2, 3, 9, 10):
            return
        if HS_ and i == 7:
            return hstamp(7)
        _stamp(i)

    L_pslow = A.newlabel('L_pslow')
    L_aslow = A.newlabel('L_aslow')
    L_afok = A.newlabel('L_afok')
    L_afchk = A.newlabel('L_afchk')
    RA, RB, SEL, RD = 0, 16, ACC + 8, ACC + 12
    mx, tm = V_MX, V_TM
    TWO_PB, TWO_AF = E('TWO_PB', 1), E('TWO_AF', 1)

    def addr3():
        A.I(f'v_xor_b32 v{V_MX}, 2048, v{V_VX}')
        A.I(f'v_xor_b32 v{V_TM}, 4096, v{V_VX}')
        A.I(f'v_xor_b32 v{V_SP}, 6144, v{V_VX}')

    A.I(f's_mov_b32 s{S_TAG}, 0')
    zero(A, ACC, 8)
    q_prefetch(A)
    A.br(f's_branch {L_af}')

    def pb_loads(b):
        for i in range(8):
            so = S_PB0 if i < 4 else S_PB0H
            A.I(f'buffer_load_dwordx2 {v(b + 2 * i, 2)}, v{V_RDR}, {ws}, s{so} offen offset:{(i & 3) * 1024} {LDF}')

    def red(b, base):
        for i in range(4):
            A.I(f's_waitcnt vmcnt({base + 6 - 2 * i})')
            c = '0' if i == 0 else v(RD, 4)
            A.I(f'v_mfma_f32_16x16x32_bf16 {v(RD, 4)}, {v(SEL, 4)}, {v(b + 4 * i, 4)}, {c}')
            r = b + 4 * i
            tt = 0
            for idx in range(8):
                a_, b_, s_ = (idx >> 2) & 1, (idx >> 1) & 1, idx & 1
                if (a_ ^ s_) | (b_ ^ s_):
                    tt |= 1 << idx
            d = mx if i == 0 else tm
            A.I(f'v_bitop3_b32 v{d}, v{r}, v{r + 2}, s{S_TAG} bitop3:0x{tt:x}')
            if i:
                A.I(f'v_or_b32 v{mx}, v{mx}, v{tm}')
        A.I(f'v_and_b32 v{mx}, 1, v{mx}')
        A.I(f'v_cmp_eq_u32 vcc, 1, v{mx}')

    def af_loads(b):
        for i in range(2):
            A.I(f'buffer_load_dwordx4 {v(b + 4 * i, 4)}, v{V_L16}, {ws}, s{S_AFO} offen offset:{i * 1024} {LDF}')

    def af_chk(b, tmp):
        A.I(f'ds_write_b128 v{V_VX}, {v(b, 4)} offset:{L_AF}')
        A.I(f'v_max3_u32 v{tmp}, v{b}, v{b + 1}, v{b + 2}')
        A.I(f'v_max3_u32 v{tmp}, v{tmp}, v{b + 3}, v{b + 4}')
        A.I(f'ds_write_b128 v{V_VX}, {v(b + 4, 4)} offset:{L_AF + 1024}')
        A.I(f'v_max3_u32 v{tmp}, v{tmp}, v{b + 5}, v{b + 6}')
        A.I(f'v_max_u32 v{tmp}, v{tmp}, v{b + 7}')
        A.I(f'v_cmp_eq_u32 vcc, -1, v{tmp}')

    A.raw('.p2align 6')
    A.label(L_top)
    A.forget_loads()
    A.check = False
    red(RA, 8 if TWO_PB else 0)
    hstamp(3)
    A.I(f's_cbranch_vccnz {L_pslow}')
    A.label(L_red, flush=False)
    A.I(f'v_mov_b32 v{tm}, -1')
    A.I('s_nop 2')
    A.I(f'v_cvt_pk_bf16_f32 v{RD}, v{RD}, v{RD + 1}')
    A.I(f'v_cvt_pk_bf16_f32 v{RD + 2}, v{RD + 2}, v{RD + 3}')
    A.I(f'buffer_store_dword v{RD}, v{V_MBW}, {ws}, s{S_MBW} offen {st}')
    A.I(f'buffer_store_dword v{RD + 2}, v{V_MBW}, {ws}, s{S_MBW} offen offset:16 {st}')
    A.I(f'buffer_store_dword v{tm}, v{V_MBW}, {ws}, s{S_MBR} offen {st}')
    A.I(f'buffer_store_dword v{tm}, v{V_MBW}, {ws}, s{S_MBR} offen offset:16 {st}')
    A.label(L_bh, flush=False)
    stamp(7)
    A.I('s_barrier')
    A.I(f's_mov_b32 s{S_T0}, s{S_MBR}')
    A.I(f's_mov_b32 s{S_MBR}, s{S_MBW}')
    A.I(f's_mov_b32 s{S_MBW}, s{S_T0}')
    A.I(f's_mov_b32 s{S_T0}, s{S_PB0}')
    A.I(f's_mov_b32 s{S_PB0}, s{S_PB1}')
    A.I(f's_mov_b32 s{S_PB1}, s{S_T0}')
    A.I(f's_add_u32 s{S_STEP}, s{S_STEP}, 1')
    A.I(f's_bfe_u32 s{S_TAG}, s{S_STEP}, 0x10001')
    A.label(L_af, flush=False)
    A.I(f's_add_u32 s{S_AFO}, s{S_MBR}, s{S_W11}')
    zero(A, ACC + 8, 8)
    addr3()
    for i in range(AF_DELAY):
        A.I('s_nop 7')
    ASETS = [0, 24, 16]
    af_loads(0)
    hstamp(9)
    for b in ASETS[1:]:
        for i in range(AF_GAP):
            A.I('s_nop 7')
        af_loads(b)

    def mf(mat, nb, t, src=None):
        acc = ACC + ('qkv'.index(mat) * 2 + nb) * 4
        if src is None:
            src = QBUF.get((mat, nb, t))
        b = v(src, 8) if src is not None else u(HOME[(mat, nb, t)], 8)
        A.I(f'v_smfmac_f32_16x16x64_bf16 {v(acc, 4)}, {v(AF + 4 * t, 4)}, {b}, v{V_IDX}')

    A.label(L_afchk, flush=False)
    A.I(f's_waitcnt vmcnt(4) lgkmcnt(0)')
    A.label(L_afok, flush=False)
    hstamp(10)
    tmp = 8
    A.I(f'ds_write_b128 v{V_VX}, {v(0, 4)} offset:{L_AF}')
    A.I(f'ds_write_b128 v{V_VX}, {v(4, 4)} offset:{L_AF + 1024}')
    mf('q', 0, 0)
    A.I(f'v_max3_u32 v{tmp}, v0, v1, v2')
    A.I(f'v_max3_u32 v{tmp}, v{tmp}, v3, v4')
    mf('q', 1, 0)
    A.I(f'v_max3_u32 v{tmp}, v{tmp}, v5, v6')
    A.I(f'v_max_u32 v{tmp}, v{tmp}, v7')
    A.I(f'v_cmp_eq_u32 vcc, -1, v{tmp}')
    A.I(f's_cbranch_vccnz {L_aslow}')
    stamp(8)
    A.check = True
    A.forget_loads()
    A.I('s_waitcnt lgkmcnt(0)')
    A.I('s_barrier')
    stamp(0)
    pend = []
    ar = {1: V_MX, 2: V_TM, 3: V_SP}
    hs = [('q', 0, 1), ('q', 1, 1), ('k', 0, 0), ('k', 1, 0), ('k', 0, 1), ('k', 1, 1)]

    def afr(uu):
        A.I(f'ds_read_b128 {v(AF + 4 * uu, 4)}, v{ar[uu >> 1]} offset:{L_AF + 1024 * (uu & 1)}')
        pend.append(('af', uu))
    afr(2); afr(3)
    mf(*hs[0])
    A.I(f'v_lshlrev_b32 v{V_MX}, 2, v{V_L16}')
    mf(*hs[1])
    mf(*hs[2])
    mf(*hs[3])
    KBUF = {}

    def kload(nb, t, b):
        KBUF[(nb, t)] = b
        lds_frag_read(A, ('k', nb, t), b)
        pend.extend([('k', t), ('k', t)])

    kload(0, 2, QBUF[('q', 0, 0)])
    mf(*hs[4])
    kload(1, 2, QBUF[('q', 1, 0)])
    mf(*hs[5])
    A.I('s_waitcnt vmcnt(0)')
    for uu in range(4, 8):
        afr(uu)
    A.I(f'v_lshrrev_b32 v{V_TM}, 2, v{V_L16}')
    if kvcheck:
        L_kvc, L_kvr = A.newlabel('L_kvc'), A.newlabel('L_kvr')
        A.I(f's_sub_u32 s{S_RC}, s{S_RC}, 1')
        A.I(f's_cbranch_scc1 {L_kvc}')
        A.label(L_kvr, flush=False)
    if not E('NODMA', 0):
        A.I(f'buffer_load_dword v{V_SP}, v{V_MX}, {ws}, s{S_TCH} offen')

    def wait_for(name):
        if name not in pend:
            return
        idx = max(i for i, p in enumerate(pend) if p == name)
        n = len(pend) - 1 - idx
        A.I(f's_waitcnt lgkmcnt({n})')
        del pend[:idx + 1]

    EXP, EXV = ACC + 16, ACC + 20
    for t in range(2, 8):
        wait_for(('af', t))
        mf('q', 0, t)
        if t == 2:
            kload(0, 3, QBUF[('q', 0, 1)])
        if t == 3:
            kload(1, 3, QBUF[('q', 1, 1)])
        if t == 4:
            A.I(f'v_add_u32 v{EXP}, s{S_W640}, v{V_KR}')
        if t == 5:
            A.I(f'v_lshrrev_b32 v{EXV}, 2, v{V_VX}')
        if t == 6:
            A.I(f'ds_read_b64 {v(EXV, 2)}, v{EXV} offset:{L_VM}')
            pend.append(('ex', 1))
        mf('q', 1, t)
        if t == 4:
            A.I(f'ds_read_b128 {v(EXP, 4)}, v{EXP}')
            pend.append(('ex', 0))
        if t == 5:
            A.I(f'v_lshl_add_u32 v{EXV}, v{V_MX}, 0, v{EXV}' if False else f'v_add_u32 v{EXV}, v{EXV}, v{V_TM}')
        if t >= 6:
            A.I(f'ds_read_b128 {v(VX + 4 * (t - 6), 4)}, v{V_VX} offset:{L_KV + 8192 + 1024 * (t - 6)}')
            pend.append(('vx', t))
    stamp(1)
    q0, q1, k0, k1 = ACC, ACC + 4, ACC + 8, ACC + 12
    QF = T

    def kmf(t, nb):
        mf('k', nb, t, KBUF.get((nb, t)))

    def pack(b0, b1):
        return [f'v_add_f32 v{b0}, v{b0}, v{b0 + 2}',
                f'v_add_f32 v{b0 + 1}, v{b0 + 1}, v{b0 + 3}',
                f'v_add_f32 v{b1}, v{b1}, v{b1 + 2}',
                f'v_add_f32 v{b1 + 1}, v{b1 + 1}, v{b1 + 3}',
                f'v_cvt_pk_bf16_f32 v{b0}, v{b0}, v{b1}',
                f'v_cvt_pk_bf16_f32 v{b0 + 1}, v{b0 + 1}, v{b1 + 1}']

    wait_for(('k', 2))
    kmf(2, 0)
    A.I(f's_add_u32 s{S_TCH}, s{S_TCH}, 0x40000')
    A.I(f'v_lshrrev_b32 v{V_TM}, 1, v{V_L16}')
    kmf(2, 1)
    wait_for(('ex', 1))
    if not E('NOEXP', 0):
        A.I(f'buffer_store_dwordx4 {v(EXP, 4)}, v{V_L16}, {ws}, s{S_KMO} offen {EXF}')
    kmf(3, 0)
    if not E('NOEXP', 0):
        A.I(f'buffer_store_dwordx2 {v(EXV, 2)}, v{V_TM}, {ws}, s{S_VMO} offen {EXF}')
    A.I(f's_add_u32 s{S_KMO}, s{S_KMO}, 0x20000')
    A.I(f's_add_u32 s{S_VMO}, s{S_VMO}, 0x10000')
    kmf(3, 1)
    kxr = [f'ds_read_b128 {v(KX + 4 * f, 4)}, v{V_L16} offset:{L_KV + 1024 * f}' for f in range(8)]
    pq = pack(q0, q1) + [f'ds_write2_b32 v{V_QKW}, v{q0}, v{q0 + 1} offset0:0 offset1:16']
    fl = []
    for i in range(8):
        fl.append([kxr[i]] + ([pq[i]] if i < 7 else []) + ([f'v_mov_b64 {v(ACC + 16 + (i - 4) * 2, 2)}, 0'] if i >= 4 else []))
    for i, (t, nb) in enumerate([(t, nb) for t in range(4, 8) for nb in range(2)]):
        for x in fl[i]:
            A.I(x)
        kmf(t, nb)
    stamp(2)
    pk = pack(k0, k1)
    mf('v', 0, 0)
    mf('v', 1, 0)
    A.I('s_nop 4')
    A.I(pk[0]); A.I(pk[1]); A.I(pk[2])
    mf('v', 0, 1)
    A.I(pk[3]); A.I(pk[4]); A.I(pk[5])
    A.I(f'ds_write_b32 v{V_QKW}, v{k0} offset:{L_KX_}')
    A.I(f'ds_write_b32 v{V_QKW}, v{k0 + 1} offset:{L_KX_ + 64}')
    mf('v', 1, 1)
    mf('v', 0, 2)
    mf('v', 1, 2)
    mf('v', 0, 3)
    A.I('s_waitcnt lgkmcnt(0)')
    A.I('s_barrier')
    stamp(3)
    KMF, ONES = 0, 20
    for ks in range(4):
        A.I(f'ds_read_b128 {v(QF + 4 * ks, 4)}, v{V_QR} offset:{640 * ks}')
        if ks == 1:
            mf('v', 1, 3)
    mf('v', 0, 4)
    for ks in range(4):
        A.I(f'ds_read_b128 {v(KMF + 4 * ks, 4)}, v{V_KR} offset:{640 * ks}')
        if ks == 1:
            mf('v', 1, 4)
    dm = []
    if not E('NODMA', 0):
        dm = [f's_mov_b32 m0, s{S_KVM0}\ns_add_u32 s{S_T0}, s{S_KVN}, 0x{WS_VF - WS_KF:x}\nbuffer_load_dwordx4 v{V_L16}, {ws}, s{S_KVN} offen lds',
              f'buffer_load_dwordx4 v{V_L16}, {ws}, s{S_KVN} offen offset:1024 lds\ns_add_u32 m0, s{S_KVM0}, 8192\ns_add_u32 s{S_KVN}, s{S_KVN}, 0x40000',
              f'buffer_load_dwordx4 v{V_L16}, {ws}, s{S_T0} offen lds',
              f'buffer_load_dwordx4 v{V_L16}, {ws}, s{S_T0} offen offset:1024 lds']
    else:
        dm = ['s_nop 0'] * 4
    mf('v', 0, 5)
    mf('v', 1, 5)
    mf('v', 0, 6)
    mf('v', 1, 6)
    X0, X1, M, P = q0, q1, k0, k1
    O0, O1, Lr, PMA, PMB = KX + 16, KX + 20, KX + 24, KX + 28, KX + 30

    def sx(i):
        ks, kb = i >> 1, i & 1
        X = X1 if kb else X0
        c = '0' if ks == 0 else v(X, 4)
        A.I(f'v_mfma_f32_16x16x32_bf16 {v(X, 4)}, {v(KX + 16 * kb + 4 * ks, 4)}, {v(QF + 4 * ks, 4)}, {c}')

    for ks in range(4):
        A.I(f's_waitcnt lgkmcnt({7 - ks})')
        sx(2 * ks)
        if ks == 2:
            A.I(f'v_mov_b64 {v(ONES, 2)}, s[{S_ONE}:{S_ONE + 1}]')
        if ks == 3:
            A.I(f'v_mov_b64 {v(ONES + 2, 2)}, s[{S_ONE}:{S_ONE + 1}]')
        sx(2 * ks + 1)
    stamp(9)
    A.I('s_waitcnt lgkmcnt(0)')
    for ks in range(4):
        cm = '0' if ks == 0 else v(M, 4)
        A.I(f'v_mfma_f32_16x16x32_bf16 {v(M, 4)}, {v(KMF + 4 * ks, 4)}, {v(QF + 4 * ks, 4)}, {cm}')
        if ks == 0:
            A.I(f'v_mov_b32 v{PMA + 1}, 0')
            A.I(f'v_mov_b32 v{PMB}, 0')
        if ks == 1:
            A.I('s_nop 1')
            A.I(f'v_max3_f32 v{mx}, v{X0}, v{X0 + 1}, v{X0 + 2}')
            A.I(f'v_max3_f32 v{tm}, v{X1}, v{X1 + 1}, v{X1 + 2}')
        if ks == 2:
            A.I(f'v_max3_f32 v{mx}, v{mx}, v{X0 + 3}, v{X1 + 3}')
            A.I(f'v_max_f32 v{mx}, v{mx}, v{tm}')
        if ks == 3:
            A.I(f'v_mov_b32 v{tm}, v{mx}')
    mf('v', 0, 7)
    A.I('s_nop 0')
    A.I(f'v_permlane32_swap_b32 v{mx}, v{tm}')
    mf('v', 1, 7)
    A.I(f'v_max_f32 v{mx}, v{mx}, v{tm}')
    A.I('s_nop 1')
    A.I(f'v_max3_f32 v{tm}, v{M}, v{M + 1}, v{M + 2}')
    A.I(f'v_max3_f32 v{mx}, v{tm}, v{M + 3}, v{mx}')
    A.I(f'v_mov_b32 v{tm}, v{mx}')
    sets = [X1, KX, O0, T]
    A.I(f'v_mov_b64 {v(sets[1], 2)}, 0')
    A.I(f'v_mov_b64 {v(sets[1] + 2, 2)}, 0')
    A.I(f'v_permlane16_swap_b32 v{mx}, v{tm}')
    A.I(f'v_max_f32 v{mx}, v{mx}, v{tm}')
    A.I(f'v_mul_f32_e64 v{mx}, -s{S_C}, v{mx}')

    def pkfma(r):
        A.I(f'v_pk_fma_f32 {v(r, 2)}, {v(r, 2)}, s[{S_C}:{S_C + 1}], {v(mx, 2)} op_sel:[0,0,0] op_sel_hi:[1,1,0]')

    va, vb = ACC + 16, ACC + 20
    VMP = va + 2
    for r in (M, X0, X0 + 2, X1, X1 + 2):
        pkfma(r)
    A.I(f'v_exp_f32 v{M}, v{M}')
    A.I(f'v_exp_f32 v{M + 1}, v{M + 1}')
    A.I(f'v_pk_add_f32 {v(va, 2)}, {v(va, 2)}, {v(va + 2, 2)}')
    A.I(f'v_pk_add_f32 {v(vb, 2)}, {v(vb, 2)}, {v(vb + 2, 2)}')
    A.I(f'v_cvt_pk_bf16_f32 v{PMA}, v{M}, v{M + 1}')
    A.I(f'v_cvt_pk_bf16_f32 v{PMB + 1}, v{M}, v{M + 1}')
    A.I(f'v_cvt_pk_bf16_f32 v{VMP}, v{va}, v{va + 1}')
    A.I(f'v_cvt_pk_bf16_f32 v{VMP + 1}, v{vb}, v{vb + 1}')
    A.I(f'v_exp_f32 v{X0}, v{X0}')
    stamp(10)
    A.I(f'v_mfma_f32_16x16x16_bf16 {v(Lr, 4)}, {v(ONES, 2)}, {v(PMA, 2)}, 0')
    A.I(f'v_exp_f32 v{X0 + 1}, v{X0 + 1}')
    A.I(f'v_mfma_f32_16x16x16_bf16 {v(O0, 4)}, {v(VMP, 2)}, {v(PMA, 2)}, 0')
    A.I(f'v_exp_f32 v{X0 + 2}, v{X0 + 2}')
    A.I(f'v_mfma_f32_16x16x16_bf16 {v(O1, 4)}, {v(VMP, 2)}, {v(PMB, 2)}, 0')
    A.I(f'v_exp_f32 v{X0 + 3}, v{X0 + 3}')
    A.I(f'v_cvt_pk_bf16_f32 v{P}, v{X0}, v{X0 + 1}')
    A.I(f'v_exp_f32 v{X1}, v{X1}')
    A.I(f'v_exp_f32 v{X1 + 1}, v{X1 + 1}')
    A.I(f'v_cvt_pk_bf16_f32 v{P + 1}, v{X0 + 2}, v{X0 + 3}')
    A.I(f'v_exp_f32 v{X1 + 2}, v{X1 + 2}')
    A.I(f'v_exp_f32 v{X1 + 3}, v{X1 + 3}')
    A.I(f'v_cvt_pk_bf16_f32 v{P + 2}, v{X1}, v{X1 + 1}')
    A.I(f'v_cvt_pk_bf16_f32 v{P + 3}, v{X1 + 2}, v{X1 + 3}')
    A.I(f'v_lshrrev_b32 v{tm}, 2, v{V_VX}')
    A.I(f'v_mov_b64 {v(sets[0], 2)}, 0')
    A.I(f'v_mfma_f32_16x16x32_bf16 {v(Lr, 4)}, {v(ONES, 4)}, {v(P, 4)}, {v(Lr, 4)}')
    A.I(f'v_mov_b64 {v(sets[0] + 2, 2)}, 0')
    A.I(f'v_mov_b64 {v(sets[0] + 4, 2)}, 0')
    A.I(f'v_mfma_f32_16x16x32_bf16 {v(O0, 4)}, {v(VX, 4)}, {v(P, 4)}, {v(O0, 4)}')
    A.I(f'v_mov_b64 {v(sets[0] + 6, 2)}, 0')
    A.I(f'v_mov_b64 {v(sets[1] + 4, 2)}, 0')
    A.I(f'v_mfma_f32_16x16x32_bf16 {v(O1, 4)}, {v(VX + 4, 4)}, {v(P, 4)}, {v(O1, 4)}')
    A.I(f'v_mov_b64 {v(sets[1] + 6, 2)}, 0')
    A.I(f'v_mov_b64 {v(sets[3], 2)}, 0')
    A.I(f'v_rcp_f32 v{mx}, v{Lr}')
    A.I(f'v_mov_b64 {v(sets[3] + 2, 2)}, 0')
    A.I(f'v_mov_b64 {v(sets[3] + 4, 2)}, 0')
    OW = X0

    def pkmul(r):
        A.I(f'v_pk_mul_f32 {v(r, 2)}, {v(r, 2)}, {v(mx, 2)} op_sel:[0,0] op_sel_hi:[1,0]')

    pkmul(O0)
    pkmul(O0 + 2)
    A.I(f'v_cvt_pk_bf16_f32 v{OW}, v{O0}, v{O0 + 1}')
    A.I(f'v_cvt_pk_bf16_f32 v{OW + 1}, v{O0 + 2}, v{O0 + 3}')
    pkmul(O1)
    pkmul(O1 + 2)
    A.I(f'v_cvt_pk_bf16_f32 v{OW + 2}, v{O1}, v{O1 + 1}')
    A.I(f'v_cvt_pk_bf16_f32 v{OW + 3}, v{O1 + 2}, v{O1 + 3}')
    A.I(f'ds_write_b128 v{V_OW}, {v(OW, 4)}')
    stamp(4)
    A.I(f'v_lshrrev_b32 v{mx}, 2, v{V_L16}')
    A.I(f'v_add_u32 v{tm}, v{tm}, v{mx}')
    A.I(f'ds_write_b64 v{tm}, {v(VMP, 2)} offset:{L_VM}')
    zero(A, sets[2], 8)
    A.I(f'v_mov_b64 {v(sets[3] + 6, 2)}, 0')
    A.I('s_waitcnt lgkmcnt(1)')
    A.I('s_barrier')
    OF = VX
    A.I(f'ds_read_b128 {v(OF, 4)}, v{V_L16} offset:{L_OX}')
    A.I(f'ds_read_b128 {v(OF + 4, 4)}, v{V_L16} offset:{L_OX + 1024}')
    A.I(f's_cmp_eq_u32 s{S_STEP}, {NSTEPS}')
    A.I(f's_cbranch_scc1 {L_fin}')
    OBUF = {(6, 0): 0, (7, 0): 8, (6, 1): 24, (7, 1): KX + 8}
    A.I(f's_add_u32 s{S_PB0H}, s{S_PB0}, 4096')
    A.I('s_waitcnt lgkmcnt(1)')
    stamp(5)

    def post(c):
        a0, b0 = sets[c], sets[c] + 4
        o = (OW if c < 2 else P) + 2 * (c & 1)
        if c == 3:
            l = [f'v_pk_add_f32 {v(a0, 2)}, {v(a0, 2)}, {v(a0 + 2, 2)}',
                 f'v_pk_add_f32 {v(b0, 2)}, {v(b0, 2)}, {v(b0 + 2, 2)}']
        else:
            l = [f'v_add_f32 v{a0}, v{a0}, v{a0 + 2}', f'v_add_f32 v{a0 + 1}, v{a0 + 1}, v{a0 + 3}',
                 f'v_add_f32 v{b0}, v{b0}, v{b0 + 2}', f'v_add_f32 v{b0 + 1}, v{b0 + 1}, v{b0 + 3}']
        l += [f'v_cvt_pk_bf16_f32 v{o}, v{a0}, v{b0}',
              f'v_cvt_pk_bf16_f32 v{o + 1}, v{a0 + 1}, v{b0 + 1}',
              f'v_bfi_b32 v{o}, 1, s{S_TAG}, v{o}']
        if c & 1:
            l.append(f'buffer_store_dwordx4 {v(o - 2, 4)}, v{V_PBW}, {ws}, s{S_PB0} offen offset:{128 * (c >> 1)} {st}')
        return l

    def womf(c, t2, bb):
        nbo = 2 * c + bb
        b = v(OBUF[(nbo, t2)], 8) if (nbo, t2) in OBUF else u(HOME[('o', nbo, t2)], 8)
        A.I(f'v_smfmac_f32_16x16x64_bf16 {v(sets[c] + 4 * bb, 4)}, {v(OF + 4 * t2, 4)}, {b}, v{V_IDX}')

    obr = []
    for f, b in OBUF.items():
        hf, sl = LDS_SLOT[('o',) + f]
        va_ = V_WO1 if hf else V_WO0
        obr.append(f'ds_read_b128 {v(b, 4)}, v{va_} offset:{sl * 2048}')
        obr.append(f'ds_read_b128 {v(b + 4, 4)}, v{va_} offset:{sl * 2048 + 1024}')
    seq = [(c, t2, bb) for c in range(4) for t2 in range(2) for bb in range(2)]
    fill = {i: [] for i in range(16)}
    for i in range(8):
        fill[2 + i // 2 if i < 6 else 5].append(obr[i])
    DM0 = E('DM0', 0)
    for i in range(4):
        fill[DM0 + i].append(dm[i])
    p0, p1, p2 = post(0), post(1), post(2)
    for k, x in enumerate(p0):
        fill[6 + k // 2].append(x)
    for k, x in enumerate(p1):
        fill[10 + k // 2].append(x)
    for k, x in enumerate(p2):
        fill[14 + min(k // 2, 1)].append(x)
    for i, (c, t2, bb) in enumerate(seq):
        if i == 2:
            A.I('s_waitcnt lgkmcnt(0)')
        if i == 12:
            A.I('s_waitcnt lgkmcnt(0)')
        womf(c, t2, bb)
        for x in fill[i]:
            A.I(x)
    A.I(f's_cmp_ge_u32 s{S_WV}, 2')
    for x in post(3):
        A.I(x)
    stamp(6)
    stamp_acc()
    if STAMPS:
        A.I(f's_cmp_ge_u32 s{S_WV}, 2')
    zero(A, ACC, 8)
    A.I(f's_cbranch_scc1 {L_w23}')
    A.I(f'v_cndmask_b32 v{SEL}, 0, v{V_SEL}, s[{S_M0}:{S_M0 + 1}]')
    A.I(f'v_cndmask_b32 v{SEL + 1}, 0, v{V_SEL}, s[{S_M1}:{S_M1 + 1}]')
    A.I(f'v_mov_b64 {v(SEL + 2, 2)}, {v(SEL, 2)}')
    for i in range(PB_DELAY):
        A.I('s_nop 7')
    pb_loads(RA)
    hstamp(2)
    q_prefetch(A, 0)
    for i in range(PB_GAP):
        A.I('s_nop 7')
    if TWO_PB:
        pb_loads(RB)
    q_prefetch(A, 1)
    A.br(f's_branch {L_top}')
    A.label(L_w23)
    A.forget_loads()
    q_prefetch(A)
    hstamp(2); hstamp(3)
    A.br(f's_branch {L_bh}')

    A.check = False
    A.label(L_pslow)
    if TWO_PB:
        red(RB, 0)
        A.I(f's_cbranch_vccz {L_red}')
    pb_loads(RA)
    A.I(f's_sub_u32 s{S_SPIN}, s{S_SPIN}, 1')
    A.I(f's_cbranch_scc1 {l_exit}')
    if TWO_PB:
        for i in range(3):
            A.I('s_nop 7')
        pb_loads(RB)
    A.br(f's_branch {L_top}')
    A.label(L_aslow)
    af_loads(0)
    zero(A, ACC, 8)
    for b in ASETS[1:]:
        A.I('s_waitcnt vmcnt(4)')
        A.I(f'v_max3_u32 v8, v{b}, v{b + 1}, v{b + 2}')
        A.I(f'v_max3_u32 v9, v{b + 3}, v{b + 4}, v{b + 5}')
        A.I(f'v_mov_b64 {v(10, 2)}, {v(b, 2)}')
        A.I(f'v_max3_u32 v8, v8, v{b + 6}, v{b + 7}')
        A.I(f'v_max_u32 v8, v8, v9')
        A.I(f'v_cmp_eq_u32 vcc, -1, v8')
        lf = A.newlabel('L_af_f')
        A.I(f's_cbranch_vccnz {lf}')
        for i in range(0, 8, 2):
            A.I(f'v_mov_b64 {v(i, 2)}, {v(b + i, 2)}')
        A.br(f's_branch {L_afok}')
        A.label(lf)
        af_loads(b)
    A.I(f's_sub_u32 s{S_SPIN}, s{S_SPIN}, 1')
    A.I(f's_cbranch_scc1 {l_exit}')
    A.br(f's_branch {L_afchk}')
    if kvcheck:
        A.label(L_kvc)
        A.I(f's_mov_b32 s{S_RC}, 6')
        A.I(f's_add_u32 s{S_RA}, s{S_RA}, 4')
        A.I(f's_cmp_eq_u32 s{S_STEP}, 62')
        A.I(f's_cselect_b32 s{S_T1}, 4, 28')
        kv_wait(A, l_exit)
        A.br(f's_branch {L_kvr}')
    A.label(L_fin)
    A.I(f'v_add_u32 v12, s{S_W640}, v{V_KR}')
    A.I(f'v_lshrrev_b32 v13, 2, v{V_VX}')
    A.I(f'v_lshrrev_b32 v14, 2, v{V_L16}')
    A.I(f'v_add_u32 v13, v13, v14')
    A.I(f'ds_read_b128 v[0:3], v12')
    A.I(f'ds_read_b64 v[4:5], v13 offset:{L_VM}')
    A.I(f'v_lshrrev_b32 v14, 1, v{V_L16}')
    A.I('s_waitcnt lgkmcnt(0)')
    A.I(f'buffer_store_dwordx4 v[0:3], v{V_L16}, {ws}, s{S_KMO} offen sc1')
    A.I(f'buffer_store_dwordx2 v[4:5], v14, {ws}, s{S_VMO} offen sc1')
    A.br(f's_branch {l_exit}')
    A.check = True
    A.forget_loads()


def rec_kernel(A, name):
    kernel_begin(A, name)
    l_exit = A.newlabel('L_exit')
    P_WS, P_DBG, P_Q, P_K, P_V, P_O, P_M0 = 16, 18, 20, 22, 24, 26, 28
    A.I(f's_cmp_ge_u32 s2, 256')
    A.I(f's_cbranch_scc1 {l_exit}')
    A.I(f's_load_dwordx2 s[{P_WS}:{P_WS + 1}], s[0:1], {KA_WS}')
    A.I(f's_load_dwordx2 s[{P_DBG}:{P_DBG + 1}], s[0:1], {KA_DBG}')
    A.I(f's_load_dwordx4 s[{P_Q}:{P_Q + 3}], s[0:1], {KA_WQ}')
    A.I(f's_load_dwordx4 s[{P_V}:{P_V + 3}], s[0:1], {KA_WV}')
    A.I(f's_load_dwordx2 s[{P_M0}:{P_M0 + 1}], s[0:1], {KA_MEM0}')
    A.I('v_lshrrev_b32 v1, 6, v0')
    A.I(f'v_and_b32 v{LANE}, 63, v0')
    A.I(f'v_readfirstlane_b32 s{S_WV}, v1')
    A.I(f's_getreg_b32 s{S_T0}, hwreg(HW_REG_XCC_ID)')
    A.I(f's_and_b32 s{S_T0}, s{S_T0}, 15')
    A.I('s_waitcnt lgkmcnt(0)')
    make_srd(A, S_WS, P_WS, WS_SIZE)
    make_srd(A, S_DBG, P_DBG, 256)
    A.I(f's_cmp_lg_u32 s{S_T0}, 0')
    A.I(f's_cbranch_scc1 {l_exit}')
    A.I(f's_mov_b32 s{S_SPIN}, 2000000')
    dbg = f's[{S_DBG}:{S_DBG + 3}]'
    A.I('v_mov_b32 v2, 1')
    A.I('v_mov_b32 v3, 0')
    A.I('v_cmp_eq_u32 vcc, 0, v0')
    A.I('s_and_saveexec_b64 s[30:31], vcc')
    lsk = A.newlabel('L_sk')
    A.I(f's_cbranch_execz {lsk}')
    A.I(f'buffer_atomic_add v2, v3, {dbg}, 0 offen sc0')
    A.I('s_waitcnt vmcnt(0)')
    A.I('ds_write_b32 v3, v2')
    A.I('s_waitcnt lgkmcnt(0)')
    A.label(lsk)
    A.I('s_mov_b64 exec, s[30:31]')
    A.I('s_barrier')
    A.I('ds_read_b32 v2, v3')
    A.I('s_waitcnt lgkmcnt(0)')
    A.I(f'v_readfirstlane_b32 s{S_H}, v2')
    A.I('s_barrier')
    A.I(f's_cmp_ge_u32 s{S_H}, 32')
    A.I(f's_cbranch_scc1 {l_exit}')
    A.I(f's_memrealtime s[{S_TS}:{S_TS + 1}]')
    setup_consts(A)
    st = STF
    init_exchange(A, P_M0, st)
    A.I('s_barrier')
    A.I('v_mov_b32 v2, 1')
    A.I('v_mov_b32 v3, 64')
    A.I('v_cmp_eq_u32 vcc, 0, v0')
    A.I('s_and_saveexec_b64 s[30:31], vcc')
    lsk = A.newlabel('L_sk')
    A.I(f's_cbranch_execz {lsk}')
    A.I(f'buffer_atomic_add v2, v3, {dbg}, 0 offen')
    A.label(lsk)
    A.I('s_mov_b64 exec, s[30:31]')
    A.I('s_waitcnt vmcnt(0)')
    stage_weights(A, [P_Q, P_K, P_V, P_O])
    A.I(f's_lshl_b32 s{S_KVN}, s{S_H}, 13')
    A.I(f's_add_u32 s{S_KVN}, s{S_KVN}, s{S_W11}')
    A.I(f's_add_u32 s{S_KVN}, s{S_KVN}, 0x{WS_KF:x}')
    A.I(f's_add_u32 s{S_KVM0}, s{S_W11}, {L_KV}')
    kv_dma(A)
    lw = A.newlabel('L_tw')
    A.I('v_mov_b32 v3, 64')
    A.label(lw)
    A.I(f'buffer_load_dword v2, v3, {dbg}, 0 offen sc1')
    A.I(f's_sub_u32 s{S_SPIN}, s{S_SPIN}, 1')
    A.I(f's_cbranch_scc1 {l_exit}')
    A.I('s_waitcnt vmcnt(0)')
    A.I(f'v_readfirstlane_b32 s{S_T0}, v2')
    A.I(f's_cmp_lt_u32 s{S_T0}, 32')
    A.I(f's_cbranch_scc1 {lw}')
    A.I('s_barrier')
    A.I(f's_memrealtime s[{S_TS + 2}:{S_TS + 3}]')
    A.I('s_waitcnt lgkmcnt(0)')
    l_done = A.newlabel('L_done')
    main_loop(A, st, l_done)
    A.label(l_done)
    A.forget_loads()
    A.I(f's_memrealtime s[{S_TS + 4}:{S_TS + 5}]')
    A.I('s_waitcnt lgkmcnt(0) vmcnt(0)')
    A.I(f's_lshl_b32 s{S_T0}, s{S_H}, 2')
    A.I(f's_add_u32 s{S_T0}, s{S_T0}, s{S_WV}')
    A.I(f's_lshl_b32 s{S_T0}, s{S_T0}, 5')
    A.I(f's_add_u32 s{S_T0}, s{S_T0}, 0x{WS_DBG:x}')
    for i in range(6):
        A.I(f'v_mov_b32 v{i}, s{S_TS + i}')
    A.I(f'v_mov_b32 v6, s{S_STEP}')
    A.I(f'v_mov_b32 v7, s{S_SPIN}')
    A.I('v_mov_b32 v8, 0')
    A.I(f'buffer_store_dwordx4 v[0:3], v8, s[{S_WS}:{S_WS + 3}], s{S_T0} offen')
    A.I(f'buffer_store_dwordx4 v[4:7], v8, s[{S_WS}:{S_WS + 3}], s{S_T0} offen offset:16')
    if STAMPS:
        A.I(f's_add_u32 s{S_T0}, s{S_T0}, s{S_T0}')
        A.I(f's_sub_u32 s{S_T0}, s{S_T0}, 0x{WS_DBG - 0x10000:x}')
        for i in range(12):
            A.I(f'v_mov_b32 v{12 + i}, s{88 + i}')
        for i in range(3):
            A.I(f'buffer_store_dwordx4 {v(12 + 4 * i, 4)}, v8, s[{S_WS}:{S_WS + 3}], s{S_T0} offen offset:{16 * i}')
    A.label(l_exit)
    A.I('s_endpgm')


if __name__ == '__main__':
    A = Asm()
    rec_kernel(A, 'rec_kernel')
    txt = header([('rec_kernel', 256, 256, L_TOTAL)]) + A.text() + '.section .rodata,"a"\n' + kernel_desc('rec_kernel', 512, 256)
    open('work/' + OUT, 'w').write(txt)
    print('ok', len(txt))
```

```python
from common import *
import math, struct, os

def f32(x):
    return '0x%08x' % struct.unpack('<I', struct.pack('<f', x))[0]

S_WS, S_W, S_X = 4, 8, 12
S_H, S_WV, S_G = 32, 33, 34
S_T0, S_T1, S_T2, S_T3 = 48, 49, 50, 51


def prologue(A, ptrs, nwg, l_exit):
    A.I(f's_cmp_ge_u32 s2, {nwg}')
    A.I(f's_cbranch_scc1 {l_exit}')
    for sg, off in ptrs.items():
        A.I(f's_load_dwordx2 s[{sg}:{sg + 1}], s[0:1], {off}')
    A.I('v_lshrrev_b32 v1, 6, v0')
    A.I('v_and_b32 v0, 63, v0')
    A.I(f'v_readfirstlane_b32 s{S_WV}, v1')
    A.I('s_waitcnt lgkmcnt(0)')


def xreduce(A, op, r, t, rows16=True):
    for sw in ('v_permlane32_swap_b32', 'v_permlane16_swap_b32'):
        A.I(f'v_mov_b32 v{t}, v{r}')
        A.I(f'{sw} v{r}, v{t}')
        A.I(f'{op} v{r}, v{r}, v{t}')


LN_X, LN_F, LN_T = 32, 96, 24


def ln1_load(A, s_task, srd_x, s_off):
    X, T_ = LN_X, LN_T
    A.I(f'v_and_b32 v{T_}, 15, v0')
    A.I(f'v_lshrrev_b32 v{T_ + 1}, 4, v0')
    A.I(f'v_lshlrev_b32 v{T_}, 10, v{T_}')
    A.I(f'v_lshl_add_u32 v{T_}, v{T_ + 1}, 4, v{T_}')
    A.I(f's_lshl_b32 s{s_off}, s{s_task}, 14')
    for ks in range(16):
        A.I(f'buffer_load_dwordx4 {v(X + 4 * ks, 4)}, v{T_}, {srd_x}, s{s_off} offen offset:{64 * ks}')


def ln1_compute(A, srd_ws, s_off, st='', younger=0):
    X, F = LN_X, LN_F
    a0, a1, a2, ad = LN_T + 1, LN_T + 2, LN_T + 3, LN_T
    A.I(f'v_mov_b32 v{a0}, 0')
    A.I(f'v_mov_b32 v{a1}, 0')
    A.I(f's_waitcnt vmcnt({younger})')
    for ks in range(16):
        for i in range(4):
            r = X + 4 * ks + i
            f = F + 8 * ks + 2 * i
            A.I(f'v_lshlrev_b32 v{f}, 16, v{r}')
            A.I(f'v_and_b32 v{f + 1}, 0xffff0000, v{r}')
            A.I(f'v_add_f32 v{a0}, v{a0}, v{f}')
            A.I(f'v_add_f32 v{a1}, v{a1}, v{f + 1}')
    A.I(f'v_add_f32 v{a0}, v{a0}, v{a1}')
    xreduce(A, 'v_add_f32', a0, a1)
    A.I(f'v_mul_f32 v{a0}, {f32(1 / 512)}, v{a0}')
    A.I(f'v_mov_b32 v{a1}, 0')
    A.I(f'v_mov_b32 v{a2}, 0')
    for i in range(0, 128, 2):
        A.I(f'v_sub_f32 v{F + i}, v{F + i}, v{a0}')
        A.I(f'v_sub_f32 v{F + i + 1}, v{F + i + 1}, v{a0}')
        A.I(f'v_fmac_f32 v{a1}, v{F + i}, v{F + i}')
        A.I(f'v_fmac_f32 v{a2}, v{F + i + 1}, v{F + i + 1}')
    A.I(f'v_add_f32 v{a1}, v{a1}, v{a2}')
    xreduce(A, 'v_add_f32', a1, a2)
    A.I(f'v_mov_b32 v{a2}, {f32(1e-5)}')
    A.I(f'v_fmac_f32 v{a2}, {f32(1 / 512)}, v{a1}')
    A.I(f'v_rsq_f32 v{a2}, v{a2}')
    A.I(f'v_lshlrev_b32 v{ad}, 4, v0')
    A.I(f's_add_u32 s{s_off}, s{s_off}, 0x{WS_XN:x}')
    for ks in range(16):
        for i in range(4):
            f = F + 8 * ks + 2 * i
            A.I(f'v_mul_f32 v{f}, v{f}, v{a2}')
            A.I(f'v_mul_f32 v{f + 1}, v{f + 1}, v{a2}')
            A.I(f'v_cvt_pk_bf16_f32 v{X + 4 * ks + i}, v{f}, v{f + 1}')
        if ks and ks % 4 == 0:
            A.I(f's_add_u32 s{s_off}, s{s_off}, 4096')
        A.I(f'buffer_store_dwordx4 {v(X + 4 * ks, 4)}, v{ad}, {srd_ws}, s{s_off} offen offset:{1024 * (ks & 3)} {st}')


def ln1_body(A, s_task, srd_x, srd_ws, st=''):
    ln1_load(A, s_task, srd_x, 47)
    ln1_compute(A, srd_ws, 47, st)


def ln1_kernel(A, name):
    kernel_begin(A, name)
    le = A.newlabel('L_exit')
    prologue(A, {16: KA_WS, 18: KA_X}, 32, le)
    make_srd(A, S_WS, 16, WS_SIZE)
    make_srd(A, S_X, 18, 2048 * 1024)
    A.I(f's_lshl_b32 s{S_G}, s2, 2')
    A.I(f's_add_u32 s{S_G}, s{S_G}, s{S_WV}')
    ln1_body(A, S_G, f's[{S_X}:{S_X + 3}]', f's[{S_WS}:{S_WS + 3}]')
    A.label(le)
    A.I('s_endpgm')


def wt(mat, nb, ks):
    f = (mat * 2 + nb) * 16 + ks
    return (256 + 4 * f) if f < 64 else (128 + 4 * (f - 64))


Q_BUF0, Q_BUF1 = 0, 65536


def qkv_stage(A, ptrs, order=(1, 2, 0)):
    A.I('v_and_b32 v3, 15, v0')
    A.I('v_lshrrev_b32 v2, 4, v0')
    A.I(f's_lshr_b32 s{S_T0}, s{S_WV}, 1')
    A.I(f's_lshl_b32 s{S_T0}, s{S_T0}, 2')
    A.I(f'v_or_b32 v6, s{S_T0}, v2')
    A.I('v_lshlrev_b32 v6, 1, v6')
    A.I('v_xor_b32 v6, v6, v3')
    A.I('v_lshlrev_b32 v6, 4, v6')
    A.I('v_lshl_add_u32 v4, v2, 13, v6')
    A.I('v_lshrrev_b32 v6, 2, v3')
    A.I('v_and_b32 v7, 3, v3')
    A.I('v_lshl_add_u32 v8, v2, 3, v6')
    A.I('v_and_b32 v9, 1, v2')
    A.I('v_lshl_add_u32 v9, v9, 2, v6')
    A.I(f's_lshl_b32 s{S_T0}, s{S_WV}, 1')
    A.I(f'v_xor_b32 v9, s{S_T0}, v9')
    A.I('v_lshlrev_b32 v10, 8, v8')
    A.I('v_lshl_add_u32 v10, v9, 5, v10')
    A.I('v_lshl_add_u32 v10, v7, 3, v10')
    A.I('v_xor_b32 v11, 32, v10')
    A.I(f'v_add_u32 v12, {Q_BUF1}, v10')
    A.I(f'v_add_u32 v13, {Q_BUF1}, v11')
    VT = {(0, 0): 10, (1, 0): 11, (0, 1): 12, (1, 1): 13}
    chunks = [(m, hh) for m in order for hh in range(2)]

    def dma(sc):
        mat, hh = chunks[sc]
        buf = Q_BUF1 if sc & 1 else Q_BUF0
        make_srd(A, S_W, ptrs[mat], 512 * 8192)
        A.I(f's_lshl_b32 s{S_T0}, s{S_WV}, 15')
        A.I(f's_lshl_b32 s{S_T1}, s{S_H}, 8')
        A.I(f's_add_u32 s{S_T0}, s{S_T0}, s{S_T1}')
        A.I(f's_add_u32 s{S_T0}, s{S_T0}, {hh << 21}')
        A.I(f's_lshl_b32 s{S_T1}, s{S_WV}, 10')
        A.I(f's_add_u32 s{S_T1}, s{S_T1}, {buf}')
        for i in range(16):
            A.I(f's_mov_b32 m0, s{S_T1}')
            A.I(f'buffer_load_dwordx4 v4, s[{S_W}:{S_W + 3}], s{S_T0} offen lds')
            if i < 15:
                A.I(f's_add_u32 s{S_T0}, s{S_T0}, {4 * 32768}')
                A.I(f's_add_u32 s{S_T1}, s{S_T1}, 4096')

    dma(0)
    dma(1)
    n = len(chunks)
    for sc in range(n):
        mat, hh = chunks[sc]
        A.I(f's_waitcnt vmcnt({16 if sc < n - 1 else 0})')
        A.I('s_barrier')
        cnt = 0
        for nb in range(2):
            for k8 in range(8):
                for x in range(2):
                    if cnt >= 12:
                        A.I('s_waitcnt lgkmcnt(8)')
                        cnt = 8
                    A.I(f'ds_read_b64_tr_b16 {u(wt(mat, nb, 8 * hh + k8) + 2 * x, 2)}, v{VT[(nb, sc & 1)]} offset:{(32 * k8 + 4 * x) * 256}')
                    cnt += 1
        A.I('s_waitcnt lgkmcnt(0)')
        A.I('s_barrier')
        if sc + 2 < n:
            dma(sc + 2)


def qkv_segments(A, stride, st='', after_seg=None, mid_seg=None):
    ws = f's[{S_WS}:{S_WS + 3}]'
    ACC, XB = 8, 56
    NB = 8
    S_SEG, S_XO, S_XN, S_OO = 36, 37, 38, 39
    A.I('v_lshlrev_b32 v1, 4, v0')
    A.I(f's_mov_b32 s{S_SEG}, s{S_G}')
    A.I(f's_lshl_b32 s{S_XO}, s{S_SEG}, 15')
    A.I(f's_add_u32 s{S_XO}, s{S_XO}, 0x{WS_XN:x}')

    def acc(mat, nb, tb):
        return ACC + ((mat * 2 + nb) * 2 + tb) * 4

    def xload(ks, base):
        b = XB + 8 * (ks % NB)
        l = []
        for tb in range(2):
            off = tb * 16384 + ks * 1024
            l.append(f's_add_u32 s{S_T0 + tb}, s{base}, {off & ~4095}\n'
                     f'buffer_load_dwordx4 {v(b + 4 * tb, 4)}, v1, {ws}, s{S_T0 + tb} offen offset:{off & 4095}')
        return l

    for ks in range(NB - 1):
        for x in xload(ks, S_XO):
            A.I(x)
    L = A.newlabel('L_seg')
    A.label(L)
    A.check = False
    A.I(f's_add_u32 s{S_T2}, s{S_SEG}, {stride}')
    A.I(f's_cmp_lt_u32 s{S_T2}, 64')
    A.I(f's_cselect_b32 s{S_T2}, s{S_T2}, s{S_SEG}')
    A.I(f's_lshl_b32 s{S_XN}, s{S_T2}, 15')
    A.I(f's_add_u32 s{S_XN}, s{S_XN}, 0x{WS_XN:x}')
    for ks in range(16):
        nk = ks + NB - 1
        ld = xload(nk, S_XO) if nk < 16 else xload(nk - 16, S_XN)
        A.I(f's_waitcnt vmcnt({2 * (NB - 2)})')
        if ks == 8 and mid_seg:
            mid_seg()
        b = XB + 8 * (ks % NB)
        i = 0
        for mat in (1, 2, 0):
            for nb in range(2):
                for tb in range(2):
                    d = acc(mat, nb, tb)
                    c = '0' if ks == 0 else v(d, 4)
                    w_ = u(wt(mat, nb, ks), 4)
                    x_ = v(b + 4 * tb, 4)
                    if mat == 2:
                        A.I(f'v_mfma_f32_16x16x32_bf16 {v(d, 4)}, {x_}, {w_}, {c}')
                    else:
                        A.I(f'v_mfma_f32_16x16x32_bf16 {v(d, 4)}, {w_}, {x_}, {c}')
                    if i in (1, 3):
                        A.I(ld[i >> 1])
                    i += 1
    A.I(f's_lshl_b32 s{S_OO}, s{S_SEG}, 5')
    A.I(f's_add_u32 s{S_OO}, s{S_OO}, s{S_H}')
    A.I(f's_lshl_b32 s{S_OO}, s{S_OO}, 13')
    A.I(f's_lshl_b32 s{S_T2}, s{S_WV}, 10')
    A.I(f's_add_u32 s{S_T3}, s{S_OO}, s{S_T2}')
    for mat, base in ((1, WS_KF), (2, WS_VF), (0, WS_QF)):
        if mat == 2:
            A.I(f's_add_u32 s{S_T0}, s{S_T3}, s{S_T2}')
            A.I(f's_add_u32 s{S_T0}, s{S_T0}, 0x{base:x}')
            for nb in range(2):
                a_, b_ = acc(2, nb, 0), acc(2, nb, 1)
                A.I(f'v_cvt_pk_bf16_f32 v{a_}, v{a_}, v{a_ + 1}')
                A.I(f'v_cvt_pk_bf16_f32 v{a_ + 1}, v{a_ + 2}, v{a_ + 3}')
                A.I(f'v_cvt_pk_bf16_f32 v{a_ + 2}, v{b_}, v{b_ + 1}')
                A.I(f'v_cvt_pk_bf16_f32 v{a_ + 3}, v{b_ + 2}, v{b_ + 3}')
                A.I(f'buffer_store_dwordx4 {v(a_, 4)}, v1, {ws}, s{S_T0} offen offset:{1024 * nb} {st}')
        else:
            for tb in range(2):
                A.I(f's_add_u32 s{S_T0}, s{S_T3}, 0x{base + 4096 * tb:x}')
                a_, b_ = acc(mat, 0, tb), acc(mat, 1, tb)
                for r in range(4):
                    A.I(f'v_cvt_pk_bf16_f32 v{a_ + r}, v{a_ + r}, v{b_ + r}')
                A.I(f'buffer_store_dwordx4 {v(a_, 4)}, v1, {ws}, s{S_T0} offen {st}')
    if after_seg:
        after_seg()
    A.I(f's_add_u32 s{S_SEG}, s{S_SEG}, {stride}')
    A.I(f's_mov_b32 s{S_XO}, s{S_XN}')
    A.I(f's_cmp_lt_u32 s{S_SEG}, 64')
    A.br(f's_cbranch_scc1 {L}')
    A.check = True
    A.forget_loads()


def qkv_kernel(A, name):
    kernel_begin(A, name)
    le = A.newlabel('L_exit')
    prologue(A, {16: KA_WS, 20: KA_WQ, 22: KA_WK, 24: KA_WV}, 256, le)
    make_srd(A, S_WS, 16, WS_SIZE)
    A.I(f's_lshr_b32 s{S_H}, s2, 3')
    A.I(f's_and_b32 s{S_G}, s2, 7')
    qkv_stage(A, [20, 22, 24])
    qkv_segments(A, 8)
    A.label(le)
    A.I('s_endpgm')


def att_stage(A, p_wo):
    A.I('v_and_b32 v3, 15, v0')
    A.I('v_lshrrev_b32 v2, 4, v0')
    A.I('v_lshlrev_b32 v1, 4, v0')
    make_srd(A, S_W, p_wo, 4096 * 1024)
    A.I(f's_lshl_b32 s{S_T0}, s{S_H}, 17')
    A.I(f's_lshl_b32 s{S_T1}, s{S_WV}, 13')
    A.I(f's_add_u32 s{S_T0}, s{S_T0}, s{S_T1}')
    A.I(f's_lshl_b32 s{S_T1}, s{S_WV}, 10')
    for f in range(8):
        for a_ in range(4):
            A.I(f's_add_u32 m0, s{S_T1}, {(16 * f + 4 * a_) * 1024 + 32 * f}')
            A.I(f's_add_u32 s{S_T3}, s{S_T0}, {(f + 32 * a_) * 1024}')
            A.I(f'buffer_load_dwordx4 v1, s[{S_W}:{S_W + 3}], s{S_T3} offen lds')
    A.I('v_lshrrev_b32 v6, 2, v3')
    A.I('v_and_b32 v7, 3, v3')
    A.I('v_and_b32 v8, 1, v2')
    A.I('v_lshl_add_u32 v8, v8, 2, v6')
    A.I('v_lshrrev_b32 v9, 1, v2')
    A.I('v_lshlrev_b32 v10, 14, v8')
    A.I('v_lshl_add_u32 v10, v9, 10, v10')
    A.I('v_lshl_add_u32 v10, v8, 5, v10')
    A.I('v_lshl_add_u32 v10, v7, 3, v10')
    A.I(f's_lshr_b32 s{S_T0}, s{S_WV}, 1')
    A.I(f's_lshl_b32 s{S_T0}, s{S_T0}, 9')
    A.I(f'v_add_u32 v10, s{S_T0}, v10')
    A.I('s_waitcnt vmcnt(0)')
    A.I('s_barrier')
    cnt = 0
    for mb in range(16):
        for ks in range(4):
            for x in range(2):
                if cnt >= 12:
                    A.I('s_waitcnt lgkmcnt(8)')
                    cnt = 8
                A.I(f'ds_read_b64_tr_b16 {a((mb * 4 + ks) * 4 + 2 * x, 2)}, v10 offset:{(4 * ks + 2 * x) * 1024 + 32 * mb}')
                cnt += 1
    A.I('s_waitcnt lgkmcnt(0)')
    A.I('s_barrier')


S_MASK = 64
S_CC, S_ONE = 52, 54


def att_consts(A):
    A.I('v_and_b32 v3, 15, v0')
    A.I('v_lshrrev_b32 v2, 4, v0')
    A.I('v_lshlrev_b32 v1, 4, v0')
    A.I(f's_and_b32 s{S_T0}, s{S_WV}, 1')
    A.I(f's_lshl_b32 s{S_T0}, s{S_T0}, 4')
    A.I(f'v_add_u32 v4, s{S_T0}, v3')
    A.I('v_lshlrev_b32 v5, 2, v2')
    A.I('v_sub_u32 v4, v4, v5')
    for kb in range(2):
        for r in range(4):
            m = S_MASK + 2 * (4 * kb + r)
            A.I(f'v_cmp_le_i32 s[{m}:{m + 1}], {16 * kb + r}, v4')
    c = (128 ** -0.5) * math.log2(math.e)
    A.I(f's_mov_b32 s{S_CC}, {f32(c)}')
    A.I(f's_mov_b32 s{S_CC + 1}, {f32(c)}')
    A.I('v_lshlrev_b32 v5, 15, v3')
    A.I('v_lshl_add_u32 v3, v2, 4, v5')
    A.I('v_lshlrev_b32 v2, 3, v0')
    A.I(f'v_mov_b32 v4, {f32(-1e9 * 128 ** 0.5)}')
    for i in range(4):
        A.I(f'v_mov_b32 v{8 + i}, 0x3f803f80')


AT_Q, AT_K, AT_V, AT_KM, AT_VM = 16, 32, 64, 96, 112
AT_S, AT_P, AT_PM, AT_L = 120, 132, 136, 140
AT_O, AT_OB, AT_ACC = 144, 176, 192


def att_load_qkv(A, s_seg, ld=''):
    ws = f's[{S_WS}:{S_WS + 3}]'
    A.I(f's_lshl_b32 s{S_T0}, s{s_seg}, 5')
    A.I(f's_add_u32 s{S_T0}, s{S_T0}, s{S_H}')
    A.I(f's_lshl_b32 s{S_T0}, s{S_T0}, 13')
    A.I(f's_and_b32 s{S_T1}, s{S_WV}, 1')
    A.I(f's_lshl_b32 s{S_T1}, s{S_T1}, 12')
    A.I(f's_add_u32 s{S_T1}, s{S_T1}, s{S_T0}')
    A.I(f's_add_u32 s{S_T1}, s{S_T1}, 0x{WS_QF:x}')
    for ks in range(4):
        A.I(f'buffer_load_dwordx4 {v(AT_Q + 4 * ks, 4)}, v1, {ws}, s{S_T1} offen offset:{1024 * ks} {ld}')
    for base, reg in ((WS_KF, AT_K), (WS_VF, AT_V)):
        for hf in range(2):
            A.I(f's_add_u32 s{S_T1}, s{S_T0}, 0x{base + 4096 * hf:x}')
            for i in range(4):
                A.I(f'buffer_load_dwordx4 {v(reg + 16 * hf + 4 * i, 4)}, v1, {ws}, s{S_T1} offen offset:{1024 * i} {ld}')


def att_load_mem(A, s_seg, ld=''):
    ws = f's[{S_WS}:{S_WS + 3}]'
    A.I(f's_lshl_b32 s{S_T0}, s{s_seg}, 5')
    A.I(f's_add_u32 s{S_T0}, s{S_T0}, s{S_H}')
    A.I(f's_lshl_b32 s{S_T1}, s{S_T0}, 12')
    A.I(f's_add_u32 s{S_T1}, s{S_T1}, 0x{WS_KM:x}')
    for ks in range(4):
        A.I(f'buffer_load_dwordx4 {v(AT_KM + 4 * ks, 4)}, v1, {ws}, s{S_T1} offen offset:{1024 * ks} {ld}')
    A.I(f's_lshl_b32 s{S_T1}, s{S_T0}, 11')
    A.I(f's_add_u32 s{S_T1}, s{S_T1}, 0x{WS_VM:x}')
    for w_ in range(4):
        A.I(f'buffer_load_dwordx2 {v(AT_VM + 2 * w_, 2)}, v2, {ws}, s{S_T1} offen offset:{512 * w_} {ld}')


def att_compute1(A):
    X0, X1, M = AT_S, AT_S + 4, AT_S + 8
    ONES = 8
    mx, tm = 6, 7
    for ks in range(4):
        for (d, k_) in ((X0, AT_K + 4 * ks), (X1, AT_K + 16 + 4 * ks), (M, AT_KM + 4 * ks)):
            c = '0' if ks == 0 else v(d, 4)
            A.I(f'v_mfma_f32_16x16x32_bf16 {v(d, 4)}, {v(k_, 4)}, {v(AT_Q + 4 * ks, 4)}, {c}')
    A.I(f'v_mov_b32 v{AT_PM + 1}, 0')
    A.I(f'v_mov_b32 v{AT_PM + 2}, 0')
    for i in range(8):
        m = S_MASK + 2 * i
        A.I(f'v_cndmask_b32 v{X0 + i}, v4, v{X0 + i}, s[{m}:{m + 1}]')
    A.I(f'v_max3_f32 v{mx}, v{X0}, v{X0 + 1}, v{X0 + 2}')
    A.I(f'v_max3_f32 v{tm}, v{X0 + 3}, v{X1}, v{X1 + 1}')
    A.I(f'v_max3_f32 v{mx}, v{mx}, v{X1 + 2}, v{X1 + 3}')
    A.I(f'v_max3_f32 v{tm}, v{tm}, v{M}, v{M + 1}')
    A.I(f'v_max_f32 v{mx}, v{mx}, v{tm}')
    xreduce(A, 'v_max_f32', mx, tm)
    A.I(f'v_mul_f32_e64 v{mx}, -s{S_CC}, v{mx}')
    for r in (M, X0, X0 + 2, X1, X1 + 2):
        A.I(f'v_pk_fma_f32 {v(r, 2)}, {v(r, 2)}, s[{S_CC}:{S_CC + 1}], {v(mx, 2)} op_sel:[0,0,0] op_sel_hi:[1,1,0]')
    A.I(f'v_exp_f32 v{M}, v{M}')
    A.I(f'v_exp_f32 v{M + 1}, v{M + 1}')
    for i in range(8):
        A.I(f'v_exp_f32 v{X0 + i}, v{X0 + i}')
    A.I(f'v_cvt_pk_bf16_f32 v{AT_PM}, v{M}, v{M + 1}')
    A.I(f'v_cvt_pk_bf16_f32 v{AT_PM + 3}, v{M}, v{M + 1}')
    for i in range(4):
        A.I(f'v_cvt_pk_bf16_f32 v{AT_P + i}, v{X0 + 2 * i}, v{X0 + 2 * i + 1}')
    A.I(f'v_mfma_f32_16x16x16_bf16 {v(AT_L, 4)}, {v(ONES, 2)}, {v(AT_PM, 2)}, 0')
    for mb in range(8):
        A.I(f'v_mfma_f32_16x16x16_bf16 {v(AT_O + 4 * mb, 4)}, {v(AT_VM + 2 * (mb >> 1), 2)}, {v(AT_PM + 2 * (mb & 1), 2)}, 0')
    A.I(f'v_mfma_f32_16x16x32_bf16 {v(AT_L, 4)}, {v(ONES, 4)}, {v(AT_P, 4)}, {v(AT_L, 4)}')
    for mb in range(8):
        A.I(f'v_mfma_f32_16x16x32_bf16 {v(AT_O + 4 * mb, 4)}, {v(AT_V + 4 * mb, 4)}, {v(AT_P, 4)}, {v(AT_O + 4 * mb, 4)}')
    A.I(f'v_rcp_f32 v{mx}, v{AT_L}')
    for mb in range(8):
        o = AT_O + 4 * mb
        for r in range(4):
            A.I(f'v_mul_f32 v{o + r}, v{o + r}, v{mx}')
        A.I(f'v_cvt_pk_bf16_f32 v{AT_OB + 2 * mb}, v{o}, v{o + 1}')
        A.I(f'v_cvt_pk_bf16_f32 v{AT_OB + 2 * mb + 1}, v{o + 2}, v{o + 3}')


def att_compute2(A, s_seg, st=''):
    ws = f's[{S_WS}:{S_WS + 3}]'
    S_OO = 39
    A.I(f's_lshl_b32 s{S_OO}, s{s_seg}, 1')
    A.I(f's_and_b32 s{S_T2}, s{S_WV}, 1')
    A.I(f's_add_u32 s{S_OO}, s{S_OO}, s{S_T2}')
    A.I(f's_lshl_b32 s{S_OO}, s{S_OO}, 19')
    A.I(f's_lshl_b32 s{S_T2}, s{S_H}, 10')
    A.I(f's_add_u32 s{S_OO}, s{S_OO}, s{S_T2}')
    A.I(f's_lshr_b32 s{S_T2}, s{S_WV}, 1')
    A.I(f's_lshl_b32 s{S_T2}, s{S_T2}, 9')
    A.I(f's_add_u32 s{S_OO}, s{S_OO}, s{S_T2}')
    A.I(f's_add_u32 s{S_OO}, s{S_OO}, 0x{WS_OP:x}')

    def post(c):
        a_, b_ = AT_ACC + 8 * c, AT_ACC + 8 * c + 4
        return [f'v_cvt_pk_bf16_f32 v{a_}, v{a_}, v{a_ + 1}',
                f'v_cvt_pk_bf16_f32 v{a_ + 1}, v{a_ + 2}, v{a_ + 3}',
                f'v_cvt_pk_bf16_f32 v{a_ + 2}, v{b_}, v{b_ + 1}',
                f'v_cvt_pk_bf16_f32 v{a_ + 3}, v{b_ + 2}, v{b_ + 3}',
                f'buffer_store_dwordx4 {v(a_, 4)}, v3, {ws}, s{S_OO} offen offset:{64 * c} {st}']

    pend = []
    for c in range(8):
        i = 0
        for ks in range(4):
            for bb in range(2):
                mb = 2 * c + bb
                d = AT_ACC + 4 * mb
                cc = '0' if ks == 0 else v(d, 4)
                A.I(f'v_mfma_f32_16x16x32_bf16 {v(d, 4)}, {a((mb * 4 + ks) * 4, 4)}, {v(AT_OB + 4 * ks, 4)}, {cc}')
                if i >= 3 and pend:
                    A.I(pend.pop(0))
                i += 1
        pend = post(c)
    for x in pend:
        A.I(x)


def att_kernel(A, name):
    kernel_begin(A, name)
    le = A.newlabel('L_exit')
    prologue(A, {16: KA_WS, 26: KA_WO}, 256, le)
    make_srd(A, S_WS, 16, WS_SIZE)
    A.I(f's_lshr_b32 s{S_H}, s2, 3')
    A.I(f's_and_b32 s{S_G}, s2, 7')
    att_stage(A, 26)
    att_consts(A)
    S_SEG, S_NX = 36, 37
    A.I(f's_mov_b32 s{S_SEG}, s{S_G}')
    att_load_qkv(A, S_SEG)
    att_load_mem(A, S_SEG)
    L = A.newlabel('L_att')
    A.label(L)
    A.I('s_waitcnt vmcnt(0)')
    att_compute1(A)
    A.I(f's_add_u32 s{S_NX}, s{S_SEG}, 8')
    A.I(f's_cmp_lt_u32 s{S_NX}, 64')
    A.I(f's_cselect_b32 s{S_T3}, s{S_NX}, s{S_SEG}')
    A.I(f's_mov_b32 s40, s{S_T3}')
    att_load_qkv(A, 40)
    att_load_mem(A, 40)
    att_compute2(A, S_SEG)
    A.I(f's_mov_b32 s{S_SEG}, s{S_NX}')
    A.I(f's_cmp_lt_u32 s{S_SEG}, 64')
    A.br(f's_cbranch_scc1 {L}')
    A.forget_loads()
    A.label(le)
    A.I('s_endpgm')


def wave_sum(A, r, t):
    for k in (8, 4, 2, 1):
        A.I(f'v_add_f32_dpp v{r}, v{r}, v{r} row_ror:{k} row_mask:0xf bank_mask:0xf')
    xreduce(A, 'v_add_f32', r, t)


def ln_regs(A, Z, t0, t1):
    A.I(f'v_add_f32 v{t0}, v{Z}, v{Z + 1}')
    for i in range(2, 8):
        A.I(f'v_add_f32 v{t0}, v{t0}, v{Z + i}')
    wave_sum(A, t0, t1)
    A.I(f'v_mul_f32 v{t0}, {f32(1 / 512)}, v{t0}')
    for i in range(8):
        A.I(f'v_sub_f32 v{Z + i}, v{Z + i}, v{t0}')
    A.I(f'v_mul_f32 v{t0}, v{Z}, v{Z}')
    for i in range(1, 8):
        A.I(f'v_fmac_f32 v{t0}, v{Z + i}, v{Z + i}')
    wave_sum(A, t0, t1)
    A.I(f'v_mov_b32 v{t1}, {f32(1e-5)}')
    A.I(f'v_fmac_f32 v{t1}, {f32(1 / 512)}, v{t0}')
    A.I(f'v_rsq_f32 v{t1}, v{t1}')
    for i in range(8):
        A.I(f'v_mul_f32 v{Z + i}, v{Z + i}, v{t1}')


def round_bf16(A, Z, Pk):
    for i in range(4):
        A.I(f'v_cvt_pk_bf16_f32 v{Pk + i}, v{Z + 2 * i}, v{Z + 2 * i + 1}')
    for i in range(4):
        A.I(f'v_lshlrev_b32 v{Z + 2 * i}, 16, v{Pk + i}')
        A.I(f'v_and_b32 v{Z + 2 * i + 1}, 0xffff0000, v{Pk + i}')


def red_row(A, s_row, srd_x, ld='', st='', B=32):
    ws = f's[{S_WS}:{S_WS + 3}]'
    Z, Pk, XR = 8, 16, 20
    A.I('v_lshlrev_b32 v1, 4, v0')
    A.I(f's_lshl_b32 s{S_T0}, s{s_row}, 15')
    A.I(f's_add_u32 s{S_T0}, s{S_T0}, 0x{WS_OP:x}')
    for hh in range(32):
        if hh and hh % 4 == 0:
            A.I(f's_add_u32 s{S_T0}, s{S_T0}, 4096')
        A.I(f'buffer_load_dwordx4 {v(B + 4 * hh, 4)}, v1, {ws}, s{S_T0} offen offset:{1024 * (hh & 3)} {ld}')
    A.I('v_lshrrev_b32 v2, 2, v0')
    A.I('v_lshlrev_b32 v2, 6, v2')
    A.I('v_and_b32 v3, 3, v0')
    A.I('v_lshl_add_u32 v2, v3, 3, v2')
    A.I(f's_lshl_b32 s{S_T1}, s{s_row}, 10')
    A.I(f'buffer_load_dwordx2 {v(XR, 2)}, v2, {srd_x}, s{S_T1} offen')
    A.I(f'buffer_load_dwordx2 {v(XR + 2, 2)}, v2, {srd_x}, s{S_T1} offen offset:32')
    for i in range(8):
        A.I(f'v_mov_b32 v{Z + i}, 0')
    for hh in range(32):
        A.I(f's_waitcnt vmcnt({33 - hh})')
        for i in range(4):
            r = B + 4 * hh + i
            A.I(f'v_lshlrev_b32 v4, 16, v{r}')
            A.I(f'v_and_b32 v5, 0xffff0000, v{r}')
            A.I(f'v_add_f32 v{Z + 2 * i}, v{Z + 2 * i}, v4')
            A.I(f'v_add_f32 v{Z + 2 * i + 1}, v{Z + 2 * i + 1}, v5')
    round_bf16(A, Z, Pk)
    A.I('s_waitcnt vmcnt(0)')
    for i in range(4):
        A.I(f'v_lshlrev_b32 v4, 16, v{XR + i}')
        A.I(f'v_and_b32 v5, 0xffff0000, v{XR + i}')
        A.I(f'v_add_f32 v{Z + 2 * i}, v{Z + 2 * i}, v4')
        A.I(f'v_add_f32 v{Z + 2 * i + 1}, v{Z + 2 * i + 1}, v5')
    round_bf16(A, Z, Pk)
    A.I(f's_add_u32 s{S_T0}, s{S_T1}, 0x{WS_H:x}')
    A.I(f'buffer_store_dwordx2 {v(Pk, 2)}, v2, {ws}, s{S_T0} offen {st}')
    A.I(f'buffer_store_dwordx2 {v(Pk + 2, 2)}, v2, {ws}, s{S_T0} offen offset:32 {st}')
    ln_regs(A, Z, 4, 5)
    round_bf16(A, Z, XR)
    ln_regs(A, Z, 4, 5)
    for i in range(4):
        A.I(f'v_cvt_pk_bf16_f32 v{XR + i}, v{Z + 2 * i}, v{Z + 2 * i + 1}')
    A.I(f's_add_u32 s{S_T0}, s{S_T1}, 0x{WS_HP:x}')
    A.I(f'buffer_store_dwordx2 {v(XR, 2)}, v2, {ws}, s{S_T0} offen {st}')
    A.I(f'buffer_store_dwordx2 {v(XR + 2, 2)}, v2, {ws}, s{S_T0} offen offset:32 {st}')


def red_kernel(A, name):
    kernel_begin(A, name)
    le = A.newlabel('L_exit')
    prologue(A, {16: KA_WS, 18: KA_X}, 512, le)
    make_srd(A, S_WS, 16, WS_SIZE)
    make_srd(A, S_X, 18, 2048 * 1024)
    A.I(f's_lshl_b32 s{S_G}, s2, 2')
    A.I(f's_add_u32 s{S_G}, s{S_G}, s{S_WV}')
    red_row(A, S_G, f's[{S_X}:{S_X + 3}]')
    A.label(le)
    A.I('s_endpgm')


def g1_kernel(A, name):
    kernel_begin(A, name)
    le = A.newlabel('L_exit')
    prologue(A, {16: KA_WS, 18: KA_W1, 20: KA_B1}, 224, le)
    make_srd(A, S_WS, 16, WS_SIZE)
    make_srd(A, S_W, 18, 2048 * 3584)
    make_srd(A, S_X, 20, 3584)
    ws, w1, b1 = f's[{S_WS}:{S_WS + 3}]', f's[{S_W}:{S_W + 3}]', f's[{S_X}:{S_X + 3}]'
    S_FT, S_DT, S_AO, S_BO, S_LB = 36, 37, 38, 39, 40
    A.I(f's_and_b32 s{S_DT}, s2, 7')
    A.I(f's_lshr_b32 s{S_FT}, s2, 3')
    A.I('v_lshrrev_b32 v1, 3, v0')
    A.I('v_and_b32 v2, 7, v0')
    A.I('v_bfe_u32 v3, v0, 4, 1')
    A.I(f's_and_b32 s{S_T0}, s{S_WV}, 1')
    A.I(f's_lshl_b32 s{S_T0}, s{S_T0}, 1')
    A.I(f'v_or_b32 v3, s{S_T0}, v3')
    A.I('v_lshlrev_b32 v3, 1, v3')
    A.I('v_xor_b32 v2, v2, v3')
    A.I('v_lshlrev_b32 v2, 4, v2')
    A.I('v_mul_u32_u24 v4, 3584, v1')
    A.I('v_add_u32 v4, v4, v2')
    A.I('v_lshl_add_u32 v5, v1, 10, v2')
    A.I(f's_mul_i32 s{S_AO}, s{S_WV}, {8 * 3584}')
    A.I(f's_lshl_b32 s{S_T0}, s{S_FT}, 7')
    A.I(f's_add_u32 s{S_AO}, s{S_AO}, s{S_T0}')
    A.I(f's_lshl_b32 s{S_BO}, s{S_WV}, 13')
    A.I(f's_lshl_b32 s{S_T0}, s{S_DT}, 7')
    A.I(f's_add_u32 s{S_BO}, s{S_BO}, s{S_T0}')
    A.I(f's_add_u32 s{S_BO}, s{S_BO}, 0x{WS_HP:x}')
    A.I(f's_lshl_b32 s{S_LB}, s{S_WV}, 10')
    A.I('v_and_b32 v1, 15, v0')
    A.I('v_lshrrev_b32 v2, 4, v0')
    A.I('v_lshrrev_b32 v3, 2, v1')
    A.I('v_and_b32 v6, 3, v1')
    A.I('v_lshl_add_u32 v7, v2, 3, v3')
    A.I('v_lshlrev_b32 v7, 7, v7')
    A.I('v_lshl_add_u32 v7, v6, 3, v7')
    A.I('v_lshrrev_b32 v8, 1, v3')
    A.I('v_and_b32 v9, 1, v2')
    A.I('v_lshl_add_u32 v8, v9, 1, v8')
    A.I(f's_and_b32 s{S_T0}, s{S_WV}, 1')
    A.I(f's_lshl_b32 s{S_T0}, s{S_T0}, 1')
    A.I(f'v_xor_b32 v9, s{S_T0}, v8')
    A.I('v_lshl_add_u32 v10, v9, 5, v7')
    A.I('v_xor_b32 v11, 32, v10')
    A.I(f's_and_b32 s{S_T0}, s{S_WV}, 2')
    A.I(f'v_xor_b32 v9, s{S_T0}, v8')
    A.I('v_lshl_add_u32 v12, v9, 5, v7')
    A.I('v_add_u32 v12, 16384, v12')
    A.I('v_xor_b32 v13, 32, v12')
    for i in range(4):
        A.I(f'v_add_u32 v{14 + i}, 0x10000, v{10 + i}')
    A.I(f's_lshl_b32 s{S_T0}, s{S_FT}, 7')
    A.I(f's_and_b32 s{S_T1}, s{S_WV}, 1')
    A.I(f's_lshl_b32 s{S_T1}, s{S_T1}, 6')
    A.I(f's_add_u32 s{S_T0}, s{S_T0}, s{S_T1}')
    A.I('v_lshlrev_b32 v1, 3, v2')
    A.I(f'buffer_load_dwordx2 v[20:21], v1, {b1}, s{S_T0} offen')
    A.I(f'buffer_load_dwordx2 v[22:23], v1, {b1}, s{S_T0} offen offset:32')
    ACC, FR = 24, 40
    NS = 4

    def dma(k):
        st = (k % NS) * 32768
        for i in range(4):
            A.I(f's_add_u32 m0, s{S_LB}, {st + i * 4096}')
            A.I(f's_add_u32 s{S_T0}, s{S_AO}, {(k * 128 + i * 32) * 3584}')
            A.I(f'buffer_load_dwordx4 v4, {w1}, s{S_T0} offen lds')
            A.I(f's_add_u32 m0, s{S_LB}, {st + 16384 + i * 4096}')
            A.I(f's_add_u32 s{S_T1}, s{S_BO}, {(k * 128 + i * 32) * 1024}')
            A.I(f'buffer_load_dwordx4 v5, {ws}, s{S_T1} offen lds')

    NK = 16
    for k in range(NS - 1):
        dma(k)
    for k in range(NK):
        rem = min(NS - 2, NK - 1 - k)
        A.I(f's_waitcnt vmcnt({8 * rem})')
        A.I('s_barrier')
        if k + NS - 1 < NK:
            dma(k + NS - 1)
        sl = k % NS
        ab = 10 if sl < 2 else 14
        so = (sl & 1) * 32768

        def rd(ks):
            for j in range(4):
                for x in range(2):
                    A.I(f'ds_read_b64_tr_b16 {v(FR + 16 * ks + 4 * j + 2 * x, 2)}, v{ab + j} offset:{so + (32 * ks + 4 * x) * 128}')

        rd(0)
        for ks in range(4):
            if ks < 3:
                if ks:
                    pass
                A.I('s_waitcnt lgkmcnt(0)') if False else None
                rd(ks + 1)
                A.I('s_waitcnt lgkmcnt(8)')
            else:
                A.I('s_waitcnt lgkmcnt(0)')
            f = FR + 16 * ks
            for mbp in range(2):
                for nbp in range(2):
                    d = ACC + (mbp * 2 + nbp) * 4
                    c = '0' if (k == 0 and ks == 0) else v(d, 4)
                    A.I(f'v_mfma_f32_16x16x32_bf16 {v(d, 4)}, {v(f + 4 * mbp, 4)}, {v(f + 8 + 4 * nbp, 4)}, {c}')
    BI = 40
    for i in range(4):
        A.I(f'v_lshlrev_b32 v{BI + 2 * i}, 16, v{20 + i}')
        A.I(f'v_and_b32 v{BI + 2 * i + 1}, 0xffff0000, v{20 + i}')
    k1 = -2 * math.sqrt(2 / math.pi) * math.log2(math.e)
    A.I(f's_mov_b32 s{S_T2}, {f32(k1)}')
    A.I(f's_mov_b32 s{S_T3}, {f32(k1 * 0.044715)}')
    A.I(f's_lshl_b32 s{S_T0}, s{S_DT}, 2')
    A.I(f's_and_b32 s{S_T1}, s{S_WV}, 2')
    A.I(f's_add_u32 s{S_T0}, s{S_T0}, s{S_T1}')
    A.I(f's_mul_i32 s{S_T0}, s{S_T0}, 56')
    A.I(f's_lshl_b32 s{S_T1}, s{S_FT}, 1')
    A.I(f's_add_u32 s{S_T0}, s{S_T0}, s{S_T1}')
    A.I(f's_and_b32 s{S_T1}, s{S_WV}, 1')
    A.I(f's_add_u32 s{S_T0}, s{S_T0}, s{S_T1}')
    A.I(f's_lshl_b32 s{S_T0}, s{S_T0}, 10')
    A.I(f's_add_u32 s{S_T0}, s{S_T0}, 0x{WS_U:x}')
    A.I('v_lshlrev_b32 v1, 4, v0')
    for nbp in range(2):
        Z, Pk = 48, 56
        for mbp in range(2):
            for r in range(4):
                A.I(f'v_mov_b32 v{Z + 4 * mbp + r}, v{ACC + (mbp * 2 + nbp) * 4 + r}')
        round_bf16(A, Z, Pk)
        for i in range(8):
            A.I(f'v_add_f32 v{Z + i}, v{Z + i}, v{BI + i}')
        round_bf16(A, Z, Pk)
        for i in range(8):
            t = 60 + i
            A.I(f'v_mul_f32 v{t}, v{Z + i}, v{Z + i}')
            A.I(f'v_mov_b32 v{t + 8}, s{S_T2}')
            A.I(f'v_fmac_f32 v{t + 8}, s{S_T3}, v{t}')
            A.I(f'v_mul_f32 v{t}, v{t + 8}, v{Z + i}')
            A.I(f'v_exp_f32 v{t}, v{t}')
        for i in range(8):
            t = 60 + i
            A.I(f'v_add_f32 v{t}, 1.0, v{t}')
            A.I(f'v_rcp_f32 v{t}, v{t}')
        for i in range(8):
            A.I(f'v_mul_f32 v{Z + i}, v{Z + i}, v{60 + i}')
        o = 76 + 4 * nbp
        for i in range(4):
            A.I(f'v_cvt_pk_bf16_f32 v{o + i}, v{Z + 2 * i}, v{Z + 2 * i + 1}')
        A.I(f'buffer_store_dwordx4 {v(o, 4)}, v1, {ws}, s{S_T0} offen')
        A.I(f's_add_u32 s{S_T0}, s{S_T0}, {56 * 1024}')
    A.label(le)
    A.I('s_endpgm')


def g2_kernel(A, name):
    kernel_begin(A, name)
    le = A.newlabel('L_exit')
    prologue(A, {16: KA_WS, 18: KA_W2, 20: KA_B2, 22: KA_OUT}, 256, le)
    S_O = 24
    make_srd(A, S_WS, 16, WS_SIZE)
    make_srd(A, S_W, 18, 1792 * 4096)
    make_srd(A, S_X, 20, 4096)
    make_srd(A, S_O, 22, 2048 * 1024)
    ws, w2, b2, out = (f's[{x}:{x + 3}]' for x in (S_WS, S_W, S_X, S_O))
    S_ST, S_DT, S_AO, S_BO, S_LB = 36, 37, 38, 39, 40
    A.I(f's_and_b32 s{S_DT}, s2, 7')
    A.I(f's_lshr_b32 s{S_ST}, s2, 3')
    A.I('v_lshrrev_b32 v1, 3, v0')
    A.I('v_and_b32 v2, 7, v0')
    A.I('v_lshrrev_b32 v3, 4, v0')
    A.I('v_lshlrev_b32 v3, 1, v3')
    A.I('v_xor_b32 v2, v2, v3')
    A.I('v_lshlrev_b32 v2, 4, v2')
    A.I('v_lshl_add_u32 v4, v1, 12, v2')
    A.I('v_lshlrev_b32 v5, 4, v0')
    A.I(f's_lshl_b32 s{S_BO}, s{S_WV}, 15')
    A.I(f's_lshl_b32 s{S_T0}, s{S_ST}, 7')
    A.I(f's_add_u32 s{S_BO}, s{S_BO}, s{S_T0}')
    A.I(f's_lshl_b32 s{S_T0}, s{S_DT}, 2')
    A.I(f's_add_u32 s{S_T0}, s{S_T0}, s{S_WV}')
    A.I(f's_mul_i32 s{S_AO}, s{S_T0}, {56 * 1024}')
    A.I(f's_add_u32 s{S_AO}, s{S_AO}, 0x{WS_U:x}')
    A.I(f's_lshl_b32 s{S_LB}, s{S_WV}, 10')
    A.I('v_and_b32 v1, 15, v0')
    A.I('v_lshrrev_b32 v2, 4, v0')
    A.I('v_lshrrev_b32 v3, 2, v1')
    A.I('v_and_b32 v6, 3, v1')
    A.I('v_lshl_add_u32 v7, v2, 2, v3')
    A.I('v_bfe_u32 v8, v7, 1, 2')
    A.I('v_lshlrev_b32 v7, 7, v7')
    A.I('v_lshl_add_u32 v7, v6, 3, v7')
    A.I('v_lshl_add_u32 v10, v8, 5, v7')
    for j in range(1, 4):
        A.I(f'v_xor_b32 v{10 + j}, {32 * j}, v10')
    A.I('v_lshlrev_b32 v14, 10, v1')
    A.I('v_lshl_add_u32 v14, v2, 3, v14')
    A.I(f's_lshl_b32 s41, s{S_ST}, 16')
    A.I(f's_lshl_b32 s{S_T0}, s{S_T0}, 5')
    A.I(f's_add_u32 s41, s41, s{S_T0}')
    A.I('v_lshlrev_b32 v15, 1, v1')
    A.I(f's_lshl_b32 s{S_T1}, s{S_ST}, 7')
    HB, BB = 16, 24
    for nb in range(4):
        A.I(f's_add_u32 s{S_T0}, s41, 0x{WS_H + nb * 16384:x}')
        A.I(f'buffer_load_dwordx2 {v(HB + 2 * nb, 2)}, v14, {ws}, s{S_T0} offen')
        A.I(f'buffer_load_ushort v{BB + nb}, v15, {b2}, s{S_T1} offen offset:{32 * nb}')
    ACC, FR, AR = 28, 44, 108
    NS, NK = 4, 14

    def dma(k):
        st = (k % NS) * 16384
        for i in range(4):
            A.I(f's_add_u32 m0, s{S_LB}, {st + i * 4096}')
            A.I(f's_add_u32 s{S_T0}, s{S_BO}, {(k * 128 + i * 32) * 4096}')
            A.I(f'buffer_load_dwordx4 v4, {w2}, s{S_T0} offen lds')
        A.I(f's_add_u32 s{S_T1}, s{S_AO}, {k * 4096}')
        for ks in range(4):
            A.I(f'buffer_load_dwordx4 {v(AR + 16 * (k % NS) + 4 * ks, 4)}, v5, {ws}, s{S_T1} offen offset:{1024 * ks}')

    for k in range(NS - 1):
        dma(k)
    for k in range(NK):
        rem = min(NS - 2, NK - 1 - k)
        A.I(f's_waitcnt vmcnt({8 * rem})')
        A.I('s_barrier')
        if k + NS - 1 < NK:
            dma(k + NS - 1)
        so = (k % NS) * 16384

        def rd(ks):
            for j in range(4):
                for x in range(2):
                    A.I(f'ds_read_b64_tr_b16 {v(FR + 16 * ks + 4 * j + 2 * x, 2)}, v{10 + j} offset:{so + (32 * ks + 16 * x) * 128}')

        rd(0)
        for ks in range(4):
            if ks < 3:
                rd(ks + 1)
                A.I('s_waitcnt lgkmcnt(8)')
            else:
                A.I('s_waitcnt lgkmcnt(0)')
            for nb in range(4):
                d = ACC + 4 * nb
                c = '0' if (k == 0 and ks == 0) else v(d, 4)
                A.I(f'v_mfma_f32_16x16x32_bf16 {v(d, 4)}, {v(AR + 16 * (k % NS) + 4 * ks, 4)}, {v(FR + 16 * ks + 4 * nb, 4)}, {c}')
    for nb in range(4):
        d = ACC + 4 * nb
        t = 44
        A.I(f'v_cvt_pk_bf16_f32 v{t}, v{d}, v{d + 1}')
        A.I(f'v_cvt_pk_bf16_f32 v{t + 1}, v{d + 2}, v{d + 3}')
        A.I(f'v_lshlrev_b32 v{t + 2}, 16, v{BB + nb}')
        for i in range(2):
            A.I(f'v_lshlrev_b32 v{d + 2 * i}, 16, v{t + i}')
            A.I(f'v_and_b32 v{d + 2 * i + 1}, 0xffff0000, v{t + i}')
        for r in range(4):
            A.I(f'v_add_f32 v{d + r}, v{d + r}, v{t + 2}')
        A.I(f'v_cvt_pk_bf16_f32 v{t}, v{d}, v{d + 1}')
        A.I(f'v_cvt_pk_bf16_f32 v{t + 1}, v{d + 2}, v{d + 3}')
        for i in range(2):
            A.I(f'v_lshlrev_b32 v{d + 2 * i}, 16, v{t + i}')
            A.I(f'v_and_b32 v{d + 2 * i + 1}, 0xffff0000, v{t + i}')
            A.I(f'v_lshlrev_b32 v{t + 2}, 16, v{HB + 2 * nb + i}')
            A.I(f'v_and_b32 v{t + 3}, 0xffff0000, v{HB + 2 * nb + i}')
            A.I(f'v_add_f32 v{d + 2 * i}, v{d + 2 * i}, v{t + 2}')
            A.I(f'v_add_f32 v{d + 2 * i + 1}, v{d + 2 * i + 1}, v{t + 3}')
        o = 48 + 2 * nb
        A.I(f'v_cvt_pk_bf16_f32 v{o}, v{d}, v{d + 1}')
        A.I(f'v_cvt_pk_bf16_f32 v{o + 1}, v{d + 2}, v{d + 3}')
        A.I(f's_add_u32 s{S_T0}, s41, {nb * 16384}')
        A.I(f'buffer_store_dwordx2 {v(o, 2)}, v14, {out}, s{S_T0} offen')
    A.label(le)
    A.I('s_endpgm')
```

```python
import os
os.environ.setdefault('PB_DELAY', '7'); os.environ.setdefault('AF_DELAY', '2'); os.environ.setdefault('AF_GAP', '2')
from common import *
import tok as T
import rec9 as R
from tok import f32, S_WS, S_W, S_X, S_H, S_WV, S_G, S_T0, S_T1, S_T2, S_T3

S_DBG = 84
S_SPIN = R.S_SPIN
S_XCC = 83
S_LNO = 82
F_CNT = WS_FLAG
F_OPC = WS_FLAG + 0x1000
D_GB, D_OVF, D_WEIRD = 32, 36, 40
TIMING = bool(os.environ.get('TIMING'))


def lane0(A, body):
    A.I('s_mov_b64 exec, 1')
    body()
    A.I('s_mov_b64 exec, -1')


def poll_eq(A, srd, s_off, imm, expect, vt, l_exit, sleep=0):
    l = A.newlabel('L_poll')
    A.label(l)
    so = f's{s_off}' if s_off is not None else '0'
    A.I(f'buffer_load_dword v{vt}, off, {srd}, {so} offset:{imm} sc1')
    A.I(f's_sub_u32 s{S_SPIN}, s{S_SPIN}, 1')
    A.I(f's_cbranch_scc1 {l_exit}')
    A.I('s_waitcnt vmcnt(0)')
    A.I(f'v_readfirstlane_b32 s{S_T0}, v{vt}')
    ld = A.newlabel('L_pd')
    A.I(f's_cmp_eq_u32 s{S_T0}, {expect}')
    A.I(f's_cbranch_scc1 {ld}')
    if sleep:
        A.I(f's_sleep {sleep}')
    A.br(f's_branch {l}')
    A.label(ld)


def tstamp(A, idx):
    if not TIMING:
        return
    l = A.newlabel('L_ts')
    A.I(f's_cmp_lg_u32 s{S_WV}, 0')
    A.br(f's_cbranch_scc1 {l}')
    A.I('s_memrealtime s[80:81]')
    A.I('s_waitcnt lgkmcnt(0)')
    A.I('v_mov_b32 v126, s80')
    A.I('v_mov_b32 v127, s81')
    A.I(f's_lshl_b32 s80, s{S_G}, 5')
    A.I(f's_add_u32 s80, s80, s{S_H}')
    A.I('s_lshl_b32 s80, s80, 8')
    A.I(f's_add_u32 s80, s80, 0x{WS_DBG:x}')
    A.I(f'buffer_store_dwordx2 v[126:127], off, s[{S_WS}:{S_WS + 3}], s80 offset:{8 * idx}')
    A.label(l)


def mega_kernel(A, name):
    kernel_begin(A, name)
    l_exit = A.newlabel('L_exit')
    P_WS, P_DBG, P_Q, P_K, P_V, P_O, P_M0, P_X = 16, 18, 20, 22, 24, 26, 28, 30
    ws, dbg, sx = f's[{S_WS}:{S_WS + 3}]', f's[{S_DBG}:{S_DBG + 3}]', f's[{S_X}:{S_X + 3}]'
    A.I('s_cmp_ge_u32 s2, 256')
    A.I(f's_cbranch_scc1 {l_exit}')
    A.I(f's_load_dwordx2 s[{P_WS}:{P_WS + 1}], s[0:1], {KA_WS}')
    A.I(f's_load_dwordx2 s[{P_DBG}:{P_DBG + 1}], s[0:1], {KA_DBG}')
    A.I(f's_load_dwordx4 s[{P_Q}:{P_Q + 3}], s[0:1], {KA_WQ}')
    A.I(f's_load_dwordx4 s[{P_V}:{P_V + 3}], s[0:1], {KA_WV}')
    A.I(f's_load_dwordx2 s[{P_M0}:{P_M0 + 1}], s[0:1], {KA_MEM0}')
    A.I(f's_load_dwordx2 s[{P_X}:{P_X + 1}], s[0:1], {KA_X}')
    A.I('v_lshrrev_b32 v1, 6, v0')
    A.I('v_and_b32 v0, 63, v0')
    A.I(f'v_readfirstlane_b32 s{S_WV}, v1')
    A.I(f's_getreg_b32 s{S_XCC}, hwreg(HW_REG_XCC_ID)')
    A.I(f's_mov_b32 s{S_SPIN}, 0x80000')
    A.I('s_waitcnt lgkmcnt(0)')
    make_srd(A, S_WS, P_WS, WS_SIZE)
    make_srd(A, S_DBG, P_DBG, 256)
    make_srd(A, S_X, P_X, 2048 * 1024)
    A.I(f's_mov_b32 s{S_LNO}, -1')
    l1 = A.newlabel('L_nl')
    A.I(f's_cmp_lg_u32 s{S_WV}, 1')
    A.I(f's_cbranch_scc1 {l1}')
    A.I('s_cmp_ge_u32 s2, 128')
    A.I(f's_cbranch_scc1 {l1}')
    T.ln1_load(A, 2, sx, S_LNO)
    A.label(l1)
    A.forget_loads()
    lr = A.newlabel('L_role_done')
    A.I(f's_cmp_lg_u32 s{S_WV}, 0')
    A.br(f's_cbranch_scc1 {lr}')
    A.I('s_mov_b64 exec, 1')
    A.I('v_mov_b32 v2, 1')
    lw = A.newlabel('L_nw')
    A.I(f's_cmp_lt_u32 s{S_XCC}, 8')
    A.br(f's_cbranch_scc1 {lw}')
    A.I(f'buffer_atomic_or v2, off, {dbg}, 0 offset:{D_WEIRD}')
    A.I('s_waitcnt vmcnt(0)')
    A.label(lw)
    A.I(f's_and_b32 s{S_G}, s{S_XCC}, 7')
    A.I(f's_lshl_b32 s{S_T0}, s{S_G}, 2')
    A.I(f'buffer_atomic_add v2, off, {dbg}, s{S_T0} sc0')
    A.I('s_waitcnt vmcnt(0)')
    A.I(f'v_readfirstlane_b32 s{S_H}, v2')
    lok = A.newlabel('L_rok')
    A.I(f's_cmp_lt_u32 s{S_H}, 32')
    A.br(f's_cbranch_scc1 {lok}')
    A.I('v_mov_b32 v2, 1')
    A.I(f'buffer_atomic_add v2, off, {dbg}, 0 offset:{D_OVF} sc0')
    A.I('s_waitcnt vmcnt(0)')
    A.I(f'v_readfirstlane_b32 s{S_T3}, v2')
    lo = A.newlabel('L_ovf')
    A.label(lo)
    A.I(f'buffer_load_dwordx4 v[4:7], off, {dbg}, 0 sc1')
    A.I(f'buffer_load_dwordx4 v[8:11], off, {dbg}, 0 offset:16 sc1')
    A.I(f's_sub_u32 s{S_SPIN}, s{S_SPIN}, 1')
    A.I(f's_cbranch_scc1 {l_exit}')
    A.I('s_waitcnt vmcnt(0)')
    A.I(f's_mov_b32 s{S_T0}, 0')
    for i in range(8):
        A.I(f'v_readfirstlane_b32 s{64 + i}, v{4 + i}')
    for i in range(8):
        A.I(f's_add_u32 s{S_T0}, s{S_T0}, s{64 + i}')
    A.I(f's_cmp_lt_u32 s{S_T0}, 256')
    A.br(f's_cbranch_scc1 {lo}')
    for g in range(8):
        A.I(f's_min_u32 s{S_T0}, s{64 + g}, 32')
        A.I(f's_sub_u32 s{S_T1}, 32, s{S_T0}')
        A.I(f's_mov_b32 s{S_G}, {g}')
        A.I(f's_add_u32 s{S_H}, s{S_T0}, s{S_T3}')
        A.I(f's_cmp_lt_u32 s{S_T3}, s{S_T1}')
        A.br(f's_cbranch_scc1 {lok}')
        A.I(f's_sub_u32 s{S_T3}, s{S_T3}, s{S_T1}')
    A.label(lok)
    A.I(f's_lshl_b32 s{S_T0}, s{S_G}, 8')
    A.I(f's_or_b32 s{S_T0}, s{S_T0}, s{S_H}')
    A.I(f'v_mov_b32 v2, s{S_T0}')
    A.I('v_mov_b32 v3, 0')
    A.I('ds_write_b32 v3, v2')
    A.I('s_waitcnt lgkmcnt(0)')
    A.I('s_mov_b64 exec, -1')
    A.label(lr)
    A.I('s_barrier')
    A.I('v_mov_b32 v3, 0')
    A.I('ds_read_b32 v2, v3')
    A.I('s_waitcnt lgkmcnt(0)')
    A.I(f'v_readfirstlane_b32 s{S_T0}, v2')
    A.I(f's_and_b32 s{S_H}, s{S_T0}, 31')
    A.I(f's_bfe_u32 s{S_G}, s{S_T0}, 0x30008')
    A.I('s_barrier')
    tstamp(A, 0)

    def ln_and_arrive():
        l = A.newlabel('L_nl2')
        A.I(f's_cmp_eq_u32 s{S_LNO}, -1')
        A.br(f's_cbranch_scc1 {l}')
        A.check = False
        T.ln1_compute(A, ws, S_LNO, 'sc1', 0)
        A.check = True
        A.label(l)
        A.I('s_waitcnt vmcnt(0)')
        A.I('s_barrier')
        l = A.newlabel('L_na')
        A.I(f's_cmp_lg_u32 s{S_WV}, 0')
        A.br(f's_cbranch_scc1 {l}')
        A.I('v_mov_b32 v2, 1')
        lane0(A, lambda: A.I(f'buffer_atomic_add v2, off, {dbg}, 0 offset:{D_GB}'))
        A.I('s_waitcnt vmcnt(0)')
        A.label(l)

    l_tok = A.newlabel('L_tok')
    A.I(f's_cmp_lg_u32 s{S_G}, 0')
    A.br(f's_cbranch_scc1 {l_tok}')

    l = A.newlabel('L_nl3')
    A.I(f's_cmp_eq_u32 s{S_LNO}, -1')
    A.br(f's_cbranch_scc1 {l}')
    A.check = False
    T.ln1_compute(A, ws, S_LNO, 'sc1', 0)
    A.check = True
    A.I(f's_mov_b32 s{S_LNO}, -1')
    A.label(l)
    A.I(f'v_mov_b32 v{R.LANE}, v0')
    R.setup_consts(A)
    R.init_exchange(A, P_M0, 'sc1')
    A.I(f's_lshl_b32 s{R.S_RA + 1}, s{S_H}, 6')
    A.lines.pop()
    A.I(f's_lshl_b32 s{S_T0}, s{S_H}, 6')
    A.I(f's_add_u32 s{S_T0}, s{S_T0}, 0x{F_CNT:x}')
    A.I('v_mov_b32 v2, 0')
    A.I('v_lshlrev_b32 v3, 2, v0')
    A.I('s_mov_b64 exec, 0xffff')
    A.I(f'buffer_store_dword v2, v3, {ws}, s{S_T0} offen sc1')
    A.I('s_mov_b64 exec, -1')
    ln_and_arrive()
    R.stage_weights(A, [P_Q, P_K, P_V, P_O])
    tstamp(A, 1)
    poll_eq(A, dbg, None, D_GB, 256, 2, l_exit, sleep=2)
    A.I(f'buffer_load_dword v2, off, {dbg}, 0 sc1')
    A.I(f'buffer_load_dword v3, off, {dbg}, 0 offset:{D_WEIRD} sc1')
    A.I('s_waitcnt vmcnt(0)')
    A.I(f'v_readfirstlane_b32 s{S_T2}, v2')
    A.I(f'v_readfirstlane_b32 s{S_T3}, v3')
    A.I(f's_cmp_ge_u32 s{S_T2}, 32')
    A.I(f's_cselect_b32 s{S_XCC}, 1, 0')
    A.I(f's_cmp_eq_u32 s{S_T3}, 0')
    A.I(f's_cselect_b32 s{S_XCC}, s{S_XCC}, 0')
    A.I(f's_lshl_b32 s{R.S_RA}, s{S_H}, 6')
    A.I(f's_add_u32 s{R.S_RA}, s{R.S_RA}, 0x{F_CNT:x}')
    A.I(f's_mov_b32 s{R.S_RC}, 6')
    A.I(f's_mov_b32 s{S_T1}, 28')
    R.kv_wait(A, l_exit)
    A.I(f's_lshl_b32 s{R.S_KVN}, s{S_H}, 13')
    A.I(f's_add_u32 s{R.S_KVN}, s{R.S_KVN}, s{R.S_W11}')
    A.I(f's_add_u32 s{R.S_KVN}, s{R.S_KVN}, 0x{WS_KF:x}')
    A.I(f's_add_u32 s{R.S_KVM0}, s{R.S_W11}, {R.L_KV}')
    R.kv_dma(A)
    A.I('s_waitcnt vmcnt(0)')
    A.I('s_barrier')
    tstamp(A, 2)
    l_slow = A.newlabel('L_slowmode')
    l_tdone = A.newlabel('L_tdone')
    A.I(f's_cmp_eq_u32 s{S_XCC}, 0')
    if os.environ.get('FORCE_SLOW'):
        A.br(f's_branch {l_slow}')
    else:
        A.br(f's_cbranch_scc1 {l_slow}')
    R.main_loop(A, '', l_tdone, kvcheck=True)
    A.label(l_slow)
    R.main_loop(A, 'sc1', l_tdone, kvcheck=True)
    A.label(l_tdone)
    A.forget_loads()
    A.I(f's_mov_b32 s{S_G}, 0')
    tstamp(A, 3)
    A.br(f's_branch {l_exit}')

    A.label(l_tok)
    A.forget_loads()
    S_SEG, S_NX, S_CA = 36, 41, 42
    for r in range(4, 8):
        A.I(f'v_mov_b32 v{r}, -1')
    A.I('v_lshlrev_b32 v1, 4, v0')
    A.I('v_lshlrev_b32 v2, 3, v0')
    A.I(f's_sub_u32 s{S_G}, s{S_G}, 1')
    A.I(f's_mov_b32 s{S_SEG}, s{S_G}')
    lp = A.newlabel('L_pz')
    A.label(lp)
    A.I(f's_lshl_b32 s{S_T0}, s{S_SEG}, 5')
    A.I(f's_add_u32 s{S_T0}, s{S_T0}, s{S_H}')
    A.I(f's_lshl_b32 s{S_T0}, s{S_T0}, 2')
    A.I(f's_add_u32 s{S_T0}, s{S_T0}, s{S_WV}')
    A.I(f's_lshl_b32 s{S_T1}, s{S_T0}, 10')
    A.I(f's_add_u32 s{S_T1}, s{S_T1}, 0x{WS_KM:x}')
    A.I(f'buffer_store_dwordx4 v[4:7], v1, {ws}, s{S_T1} offen sc1')
    A.I(f's_lshl_b32 s{S_T1}, s{S_T0}, 9')
    A.I(f's_add_u32 s{S_T1}, s{S_T1}, 0x{WS_VM:x}')
    A.I(f'buffer_store_dwordx2 v[4:5], v2, {ws}, s{S_T1} offen sc1')
    A.I(f's_add_u32 s{S_SEG}, s{S_SEG}, 7')
    A.I(f's_cmp_lt_u32 s{S_SEG}, 64')
    A.br(f's_cbranch_scc1 {lp}')
    A.forget_loads()
    lz = A.newlabel('L_nz')
    A.I(f's_add_u32 s{S_T0}, s{S_H}, s{S_WV}')
    A.I(f's_cmp_lg_u32 s{S_T0}, 0')
    A.br(f's_cbranch_scc1 {lz}')
    A.I('v_mul_u32_u24 v3, 448, v0')
    A.I(f's_lshl_b32 s{S_T0}, s{S_G}, 6')
    A.I(f's_add_u32 s{S_T0}, s{S_T0}, 0x{F_OPC:x}')
    A.I('v_mov_b32 v8, 0')
    A.I('s_mov_b64 exec, 0x3ff')
    A.I(f'buffer_store_dword v8, v3, {ws}, s{S_T0} offen sc1')
    A.I('s_mov_b64 exec, -1')
    A.label(lz)
    ln_and_arrive()
    T.qkv_stage(A, [P_Q, P_K, P_V])
    A.I(f's_add_u32 s{S_G}, s{S_G}, 1'); tstamp(A, 1); A.I(f's_sub_u32 s{S_G}, s{S_G}, 1')
    poll_eq(A, dbg, None, D_GB, 256, 2, l_exit, sleep=2)
    A.I(f's_lshl_b32 s{S_CA}, s{S_H}, 6')
    A.I(f's_add_u32 s{S_CA}, s{S_CA}, 0x{F_CNT - 4:x}')
    A.I('v_mov_b32 v2, 0')

    def signal():
        lane0(A, lambda: A.I(f'buffer_atomic_add v2, off, {ws}, s{S_CA}'))
        A.I(f's_add_u32 s{S_CA}, s{S_CA}, 4')

    def after():
        A.I('v_mov_b32 v2, 1')

    T.qkv_segments(A, 7, 'sc1', after_seg=after, mid_seg=signal)
    A.I('s_waitcnt vmcnt(0)')
    signal()
    A.I(f's_add_u32 s{S_G}, s{S_G}, 1'); tstamp(A, 2); A.I(f's_sub_u32 s{S_G}, s{S_G}, 1')
    T.att_stage(A, P_O)
    T.att_consts(A)
    A.I(f's_mov_b32 s{S_SEG}, s{S_G}')
    T.att_load_qkv(A, S_SEG)
    L = A.newlabel('L_att')
    A.label(L)
    A.check = False
    A.I(f's_lshl_b32 s{S_CA}, s{S_SEG}, 5')
    A.I(f's_add_u32 s{S_CA}, s{S_CA}, s{S_H}')
    A.I(f's_lshl_b32 s{S_CA}, s{S_CA}, 11')
    A.I(f's_add_u32 s{S_CA}, s{S_CA}, 0x{WS_VM:x}')
    lq, lq2 = A.newlabel('L_lp'), A.newlabel('L_lp2')
    A.label(lq)
    A.I(f'buffer_load_dword v6, off, {ws}, s{S_CA} offset:2044 sc1')
    A.I(f's_sub_u32 s{S_SPIN}, s{S_SPIN}, 1')
    A.I(f's_cbranch_scc1 {l_exit}')
    A.I('s_waitcnt vmcnt(0)')
    A.I(f'v_readfirstlane_b32 s{S_T0}, v6')
    A.I(f's_cmp_lg_u32 s{S_T0}, -1')
    A.I(f's_cbranch_scc1 {lq2}')
    A.I('s_sleep 4')
    A.br(f's_branch {lq}')
    A.label(lq2)
    T.att_load_mem(A, S_SEG, 'sc1')
    A.I(f's_sub_u32 s{S_SPIN}, s{S_SPIN}, 1')
    A.I(f's_cbranch_scc1 {l_exit}')
    A.I('s_waitcnt vmcnt(0)')
    b = T.AT_KM
    A.I(f'v_max3_u32 v6, v{b}, v{b + 1}, v{b + 2}')
    A.I(f'v_max_u32 v6, v6, v{b + 3}')
    for i in range(4, 24, 2):
        A.I(f'v_max3_u32 v6, v6, v{b + i}, v{b + i + 1}')
    A.I('v_cmp_eq_u32 vcc, -1, v6')
    A.I(f's_cbranch_vccnz {lq2}')
    A.check = True
    A.forget_loads()
    T.att_compute1(A)
    A.I(f's_add_u32 s{S_NX}, s{S_SEG}, 7')
    A.I(f's_cmp_lt_u32 s{S_NX}, 64')
    A.I(f's_cselect_b32 s40, s{S_NX}, s{S_SEG}')
    T.att_load_qkv(A, 40)
    T.att_compute2(A, S_SEG, 'sc1')
    A.I('s_waitcnt vmcnt(0)')
    A.I('s_barrier')
    A.I(f's_lshl_b32 s{S_CA}, s{S_SEG}, 6')
    A.I(f's_add_u32 s{S_CA}, s{S_CA}, 0x{F_OPC:x}')
    l0 = A.newlabel('L_n0')
    A.I(f's_cmp_lg_u32 s{S_WV}, 0')
    A.br(f's_cbranch_scc1 {l0}')
    A.I('v_mov_b32 v6, 1')
    lane0(A, lambda: A.I(f'buffer_atomic_add v6, off, {ws}, s{S_CA}'))
    poll_eq(A, ws, S_CA, 0, 32, 6, l_exit, sleep=1)
    A.label(l0)
    A.I('s_barrier')
    red4(A, S_SEG, sx)
    A.I(f's_mov_b32 s{S_SEG}, s{S_NX}')
    A.I(f's_cmp_lt_u32 s{S_SEG}, 64')
    A.br(f's_cbranch_scc1 {L}')
    A.forget_loads()
    A.I(f's_add_u32 s{S_G}, s{S_G}, 1'); tstamp(A, 3)
    A.label(l_exit)
    A.I('s_endpgm')


def red4(A, s_seg, srd_x):
    ws = f's[{S_WS}:{S_WS + 3}]'
    B, Z, Pk, XR, t0, t1, va = 192, 144, 152, 156, 160, 161, 162
    A.I(f's_lshl_b32 s{S_T2}, s{s_seg}, 5')
    A.I(f's_add_u32 s{S_T2}, s{S_T2}, s{S_H}')
    A.I(f's_lshl_b32 s{S_T0}, s{S_T2}, 15')
    A.I(f's_lshl_b32 s{S_T1}, s{S_WV}, 13')
    A.I(f's_add_u32 s{S_T0}, s{S_T0}, s{S_T1}')
    A.I(f's_add_u32 s{S_T0}, s{S_T0}, 0x{WS_OP:x}')
    A.I(f's_add_u32 s{S_T1}, s{S_T0}, 4096')
    for hh in range(8):
        so = S_T0 if hh < 4 else S_T1
        A.I(f'buffer_load_dwordx4 {v(B + 4 * hh, 4)}, v1, {ws}, s{so} offen offset:{1024 * (hh & 3)} sc1')
    A.I(f'v_lshrrev_b32 v{va}, 2, v0')
    A.I(f'v_lshlrev_b32 v{va}, 6, v{va}')
    A.I(f'v_and_b32 v{t0}, 3, v0')
    A.I(f'v_lshl_add_u32 v{va}, v{t0}, 3, v{va}')
    A.I(f's_lshl_b32 s{S_T3}, s{S_T2}, 10')
    A.I(f'buffer_load_dwordx2 {v(XR, 2)}, v{va}, {srd_x}, s{S_T3} offen')
    A.I(f'buffer_load_dwordx2 {v(XR + 2, 2)}, v{va}, {srd_x}, s{S_T3} offen offset:32')
    for hh in range(8):
        A.I(f's_waitcnt vmcnt({9 - hh})')
        for i in range(4):
            r = B + 4 * hh + i
            if hh == 0:
                A.I(f'v_lshlrev_b32 v{Z + 2 * i}, 16, v{r}')
                A.I(f'v_and_b32 v{Z + 2 * i + 1}, 0xffff0000, v{r}')
            else:
                A.I(f'v_lshlrev_b32 v{t0}, 16, v{r}')
                A.I(f'v_and_b32 v{t1}, 0xffff0000, v{r}')
                A.I(f'v_add_f32 v{Z + 2 * i}, v{Z + 2 * i}, v{t0}')
                A.I(f'v_add_f32 v{Z + 2 * i + 1}, v{Z + 2 * i + 1}, v{t1}')
    A.I(f's_lshl_b32 s{S_T0}, s{S_WV}, 11')
    A.I(f'v_add_u32 v{t0}, s{S_T0}, v1')
    A.I(f'ds_write_b128 v{t0}, {v(Z, 4)}')
    A.I(f'ds_write_b128 v{t0}, {v(Z + 4, 4)} offset:1024')
    A.I('s_waitcnt lgkmcnt(0) vmcnt(0)')
    A.I('s_barrier')
    l = A.newlabel('L_r4')
    A.I(f's_cmp_lg_u32 s{S_WV}, 0')
    A.br(f's_cbranch_scc1 {l}')
    for w_ in range(1, 4):
        for j in range(2):
            A.I(f'ds_read_b128 {v(B + 8 * w_ + 4 * j, 4)}, v1 offset:{2048 * w_ + 1024 * j}')
    A.I('s_waitcnt lgkmcnt(0)')
    for w_ in range(1, 4):
        for i in range(8):
            A.I(f'v_add_f32 v{Z + i}, v{Z + i}, v{B + 8 * w_ + i}')
    T.round_bf16(A, Z, Pk)
    for i in range(4):
        A.I(f'v_lshlrev_b32 v{t0}, 16, v{XR + i}')
        A.I(f'v_and_b32 v{t1}, 0xffff0000, v{XR + i}')
        A.I(f'v_add_f32 v{Z + 2 * i}, v{Z + 2 * i}, v{t0}')
        A.I(f'v_add_f32 v{Z + 2 * i + 1}, v{Z + 2 * i + 1}, v{t1}')
    T.round_bf16(A, Z, Pk)
    A.I(f's_add_u32 s{S_T0}, s{S_T3}, 0x{WS_H:x}')
    A.I(f'buffer_store_dwordx2 {v(Pk, 2)}, v{va}, {ws}, s{S_T0} offen')
    A.I(f'buffer_store_dwordx2 {v(Pk + 2, 2)}, v{va}, {ws}, s{S_T0} offen offset:32')
    T.ln_regs(A, Z, t0, t1)
    T.round_bf16(A, Z, XR)
    T.ln_regs(A, Z, t0, t1)
    for i in range(4):
        A.I(f'v_cvt_pk_bf16_f32 v{XR + i}, v{Z + 2 * i}, v{Z + 2 * i + 1}')
    A.I(f's_add_u32 s{S_T0}, s{S_T3}, 0x{WS_HP:x}')
    A.I(f'buffer_store_dwordx2 {v(XR, 2)}, v{va}, {ws}, s{S_T0} offen')
    A.I(f'buffer_store_dwordx2 {v(XR + 2, 2)}, v{va}, {ws}, s{S_T0} offen offset:32')
    A.label(l)


if __name__ == '__main__':
    A = Asm()
    K = [('mega_kernel', mega_kernel, 256, R.L_TOTAL, 512, 256), ('g1_kernel', T.g1_kernel, 224, 131072, 128, 128), ('g2_kernel', T.g2_kernel, 256, 65536, 176, 176)]
    for k in K:
        k[1](A, k[0])
    txt = header([(k[0], k[2], 256, k[3]) for k in K]) + A.text() + '.section .rodata,"a"\n' + ''.join(kernel_desc(k[0], k[4], k[5]) for k in K)
    out = os.environ.get('OUT', 'm1.s')
    open(out, 'w').write(txt)
    print(len(txt))
```

```python
from common import *
import os, math, struct
STAMPS = bool(os.environ.get('STAMPS'))
NSTEPS = 63
LDF = os.environ.get('LDF', 'sc1').replace('_', ' ')
STF = os.environ.get('STF', '').replace('_', ' ')
EXF = os.environ.get('EXF', 'sc1')
E = lambda k, d: int(os.environ.get(k, d))
TOUCH_AHEAD = E('TOUCH_AHEAD', 1)
PB_DELAY, PB_GAP, AF_DELAY, AF_GAP = E('PB_DELAY', 0), E('PB_GAP', 0), E('AF_DELAY', 0), E('AF_GAP', 3)
OUT = os.environ.get('OUT', 'rec_test.s')

L_QX = 0
L_KX_ = 2560
L_VM = 5120
L_AF = 7168
L_OX = L_AF
L_KV = 15360
L_WO = 31744
L_HALF = 65792
L_TOTAL = L_WO + 2 * L_HALF

PB_GRP = 8448
PB_SLOT = 0x48000

S_WS, S_W, S_DBG = 4, 8, 12
S_H, S_WV, S_STEP = 32, 33, 34
S_SPIN = 35
S_MBR, S_MBW = 36, 37
S_TAG = 47
S_PB0, S_PB1 = 38, 39
S_PB0H = 40
S_AFO = 41
S_TCH = 42
S_KVN = 44
S_KMO, S_VMO = 45, 46
S_T0, S_T1, S_T2, S_T3 = 48, 49, 50, 51
S_C = 52
S_ONE = 54
S_TS = 56
S_M0, S_M1 = 16, 18
S_W640 = 20
S_KVM0 = 62
S_W11 = 63

AF = 0
ACC = 32
KX = 56
VX = 88
T = 96
V_IDX, V_L16, V_QKW, V_QR, V_KR, V_OW, V_WO0, V_WO1, V_PBW, V_RDR, V_MBW, V_SEL, V_VX, V_SP, V_MX, V_TM = range(112, 128)
S_PZ = 43
LANE = 100

LDS_SLOT = {}
_l0 = [('q', 0, 0), ('q', 1, 0), ('q', 0, 1), ('q', 1, 1), ('k', 0, 0), ('k', 1, 0), ('o', 6, 0), ('o', 7, 0)]
_l1 = [('k', 0, 1), ('k', 1, 1), ('k', 0, 2), ('k', 1, 2), ('k', 0, 3), ('k', 1, 3), ('o', 6, 1), ('o', 7, 1)]
for i, f in enumerate(_l0):
    LDS_SLOT[f] = (0, i)
for i, f in enumerate(_l1):
    LDS_SLOT[f] = (1, i)
HOME = {}
_h = 0
for mat in 'qkv':
    for nb in range(2):
        for t in range(8):
            HOME[(mat, nb, t)] = (256 + _h * 8) if _h < 32 else (128 + (_h - 32) * 8)
            _h += 1
for t2 in range(2):
    vac = [f for f, (hf, sl) in LDS_SLOT.items() if hf == t2 and f[0] != 'o']
    assert len(vac) == 6
    for nbo in range(6):
        HOME[('o', nbo, t2)] = HOME[vac[nbo]]


def lds_frag_read(A, f, b):
    hf, sl = LDS_SLOT[f]
    va = V_WO1 if hf else V_WO0
    A.I(f'ds_read_b128 {v(b, 4)}, v{va} offset:{sl * 2048}')
    A.I(f'ds_read_b128 {v(b + 4, 4)}, v{va} offset:{sl * 2048 + 1024}')


def lane_fields(A, vt, vg, vn):
    A.I(f'v_and_b32 v{vn}, 15, v{vt}')
    A.I(f'v_bfe_u32 v{vg}, v{vt}, 4, 2')


def stage_weights(A, ptr_sgprs, hook=None, hook_issue=None, hook_check=None):
    g, n = 2, 3
    lane_fields(A, LANE, g, n)
    VD0, VD1 = 4, 5
    A.I(f'v_lshrrev_b32 v6, 5, v{LANE}')
    A.I(f's_and_b32 s{S_T0}, s{S_WV}, 1')
    A.I(f's_lshl_b32 s{S_T0}, s{S_T0}, 1')
    A.I(f'v_or_b32 v6, s{S_T0}, v6')
    A.I(f'v_lshlrev_b32 v6, 1, v6')
    A.I(f'v_xor_b32 v6, v6, v{n}')
    A.I(f'v_lshlrev_b32 v6, 4, v6')
    A.I(f'v_lshlrev_b32 v7, 13, v{g}')
    A.I(f'v_or_b32 v{VD0}, v6, v7')
    A.I(f'v_xor_b32 v{VD1}, 0x80, v{VD0}')
    A.I(f'v_lshrrev_b32 v6, 2, v{n}')
    A.I(f'v_and_b32 v7, 3, v{n}')
    A.I(f'v_and_b32 v8, 1, v6')
    A.I(f'v_lshrrev_b32 v9, 1, v6')
    A.I(f'v_and_b32 v10, 1, v{g}')
    A.I(f'v_lshrrev_b32 v11, 1, v{g}')
    A.I(f'v_lshlrev_b32 v12, 7, v11')
    A.I(f'v_lshl_add_u32 v12, v10, 1, v12')
    A.I(f'v_lshl_add_u32 v12, v8, 4, v12')
    A.I(f'v_lshl_add_u32 v12, v9, 2, v12')
    A.I(f'v_lshl_add_u32 v13, v9, 1, v10')
    A.I(f'v_lshl_add_u32 v13, v8, 2, v13')
    A.I(f's_lshl_b32 s{S_T0}, s{S_WV}, 1')
    A.I(f'v_xor_b32 v13, s{S_T0}, v13')
    A.I(f'v_lshlrev_b32 v14, 8, v12')
    A.I(f'v_lshl_add_u32 v14, v13, 5, v14')
    A.I(f'v_lshl_add_u32 v14, v7, 3, v14')
    VT = {}
    A.I(f'v_xor_b32 v15, 32, v14')
    r = 64
    for cu in range(4):
        A.I(f's_xor_b32 s{S_T0}, s{S_WV}, {cu}')
        A.I(f's_lshl_b32 s{S_T0}, s{S_T0}, 13')
        for bf in range(2):
            A.I(f's_add_u32 s{S_T1}, s{S_T0}, {L_WO + bf * L_HALF}')
            for nb in range(2):
                VT[(nb, bf, cu)] = r
                A.I(f'v_add_u32 v{r}, s{S_T1}, v{14 + nb}')
                r += 1
    A.I(f'v_lshl_add_u32 v13, v9, 1, v8')
    A.I(f'v_lshl_add_u32 v13, v10, 2, v13')
    A.I(f'v_lshlrev_b32 v14, 13, v13')
    A.I(f'v_lshl_add_u32 v14, v11, 11, v14')
    A.I(f'v_lshl_add_u32 v14, v13, 5, v14')
    A.I(f'v_lshl_add_u32 v14, v7, 3, v14')
    A.I(f's_lshl_b32 s{S_T0}, s{S_WV}, 8')
    A.I(f'v_add_u32 v14, s{S_T0}, v14')
    VTO = {0: 20, 1: 21}
    A.I(f'v_add_u32 v20, {L_WO}, v14')
    A.I(f'v_add_u32 v21, {L_WO + L_HALF}, v14')
    WOT = 32

    def dma(sc):
        buf = L_WO + (sc & 1) * L_HALF
        if sc < 6:
            mat, hh = sc >> 1, sc & 1
            make_srd(A, S_W, ptr_sgprs[mat], 512 * 8192)
            A.I(f's_lshl_b32 s{S_T0}, s{S_WV}, 15')
            A.I(f's_lshl_b32 s{S_T1}, s{S_H}, 8')
            A.I(f's_add_u32 s{S_T0}, s{S_T0}, s{S_T1}')
            A.I(f's_add_u32 s{S_T0}, s{S_T0}, {hh << 21}')
            A.I(f's_lshl_b32 s{S_T1}, s{S_WV}, 10')
            A.I(f's_add_u32 s{S_T1}, s{S_T1}, {buf}')
            for i in range(16):
                A.I(f's_mov_b32 m0, s{S_T1}')
                A.I(f'buffer_load_dwordx4 v{VD1 if i & 1 else VD0}, s[{S_W}:{S_W + 3}], s{S_T0} offen lds')
                if i < 15:
                    A.I(f's_add_u32 s{S_T0}, s{S_T0}, {4 * 32768}')
                    A.I(f's_add_u32 s{S_T1}, s{S_T1}, 4096')
        else:
            t2 = sc & 1
            make_srd(A, S_W, ptr_sgprs[3], 4096 * 1024)
            A.I(f's_and_b32 s{S_T0}, s{S_WV}, 1')
            A.I(f's_lshl_b32 s{S_T0}, s{S_T0}, 13')
            A.I(f's_lshr_b32 s{S_T1}, s{S_WV}, 1')
            A.I(f's_lshl_b32 s{S_T1}, s{S_T1}, 15')
            A.I(f's_add_u32 s{S_T0}, s{S_T0}, s{S_T1}')
            A.I(f's_lshl_b32 s{S_T1}, s{S_H}, 17')
            A.I(f's_add_u32 s{S_T0}, s{S_T0}, s{S_T1}')
            A.I(f's_add_u32 s{S_T0}, s{S_T0}, {t2 << 16}')
            A.I(f's_lshl_b32 s{S_T1}, s{S_WV}, 11')
            A.I(f's_add_u32 s{S_T1}, s{S_T1}, {buf}')
            for f in range(8):
                for x in range(2):
                    row = (f & 1) + 2 * x + 4 * ((f >> 1) & 1) + 16 * (f >> 2)
                    A.I(f's_add_u32 s{S_T2}, s{S_T1}, {(8 * f + x) * 1024 + 32 * f}')
                    A.I(f's_add_u32 s{S_T3}, s{S_T0}, {row * 1024}')
                    A.I(f's_mov_b32 m0, s{S_T2}')
                    A.I(f'buffer_load_dwordx4 v{V_L16}, s[{S_W}:{S_W + 3}], s{S_T3} offen lds')

    dma(0)
    dma(1)
    if hook:
        hook()
    for sc in range(8):
        A.I(f's_waitcnt vmcnt({16 if sc < 7 else 0})')
        A.I('s_barrier')
        if sc == 7 and hook_check:
            hook_check()
        cnt = 0
        if sc < 6:
            mat, hh = 'qkv'[sc >> 1], sc & 1
            for nb in range(2):
                for t in range(8):
                    for x in range(2):
                        c, nhi = t >> 1, t & 1
                        imm = (8 * nhi + x) * 256
                        if cnt >= 12:
                            A.I('s_waitcnt lgkmcnt(8)')
                            cnt = 8
                        A.I(f'ds_read_b64_tr_b16 {u(HOME[(mat, nb, t)] + 4 * hh + 2 * x, 2)}, v{VT[(nb, sc & 1, c)]} offset:{imm}')
                        cnt += 1
        else:
            for nbo in range(8):
                for hh in range(2):
                    for x in range(2):
                        imm = (x + 4 * hh) * 1024 + 32 * nbo
                        if cnt >= 12:
                            A.I('s_waitcnt lgkmcnt(8)')
                            cnt = 8
                        A.I(f'ds_read_b64_tr_b16 {v(WOT + nbo * 8 + 4 * hh + 2 * x, 2)}, v{VTO[sc & 1]} offset:{imm}')
                        cnt += 1
        A.I('s_waitcnt lgkmcnt(0)')
        A.I('s_barrier')
        if sc + 2 < 8:
            dma(sc + 2)
        if sc in (3, 5) and hook_issue:
            hook_issue(sc)
        if sc >= 6:
            t2 = sc & 1
            va = V_WO1 if t2 else V_WO0
            k = 0
            for f, (hf, sl) in LDS_SLOT.items():
                if hf != t2:
                    continue
                src = (WOT + f[1] * 8) if f[0] == 'o' else HOME[f]
                for hh in range(2):
                    A.I(f'ds_write_b128 v{va}, {u(src + 4 * hh, 4)} offset:{sl * 2048 + hh * 1024}')
                k += 1
                if k & 1 == 0:
                    A.I('s_waitcnt lgkmcnt(4)')
            A.I('s_waitcnt lgkmcnt(0)')
            for nbo in range(6):
                hm = HOME[('o', nbo, t2)]
                for r in range(8):
                    if hm >= 256:
                        A.I(f'v_accvgpr_write_b32 a{hm - 256 + r}, v{WOT + nbo * 8 + r}')
                    else:
                        A.I(f'v_mov_b32 v{hm + r}, v{WOT + nbo * 8 + r}')


def setup_consts(A):
    g, n = 2, 3
    lane_fields(A, LANE, g, n)
    A.I(f's_lshl_b32 s{S_W11}, s{S_WV}, 11')
    A.I(f'v_bfe_u32 v4, v{n}, 1, 1')
    A.I(f'v_mul_u32_u24 v4, 0xaaaa, v4')
    A.I(f'v_add_u32 v{V_IDX}, 0x4444, v4')
    A.I(f'v_lshlrev_b32 v{V_L16}, 4, v{LANE}')
    A.I(f's_mul_i32 s{S_T0}, s{S_WV}, 640')
    A.I(f'v_lshrrev_b32 v4, 2, v{n}')
    A.I(f'v_mul_u32_u24 v4, 160, v4')
    A.I(f'v_lshl_add_u32 v4, v{g}, 4, v4')
    A.I(f'v_and_b32 v5, 3, v{n}')
    A.I(f'v_lshl_add_u32 v4, v5, 2, v4')
    A.I(f'v_add_u32 v{V_QKW}, s{S_T0}, v4')
    A.I(f'v_mul_u32_u24 v6, 160, v{g}')
    A.I(f'v_and_b32 v4, 1, v{n}')
    A.I(f'v_bfe_u32 v5, v{n}, 1, 2')
    A.I(f'v_lshl_add_u32 v4, v4, 2, v5')
    A.I(f'v_lshl_add_u32 v{V_QR}, v4, 4, v6')
    A.I(f'v_and_b32 v4, 1, v{n}')
    A.I(f'v_lshrrev_b32 v5, 2, v{n}')
    A.I(f'v_and_b32 v7, 2, v{n}')
    A.I(f'v_xor_b32 v5, v5, v7')
    A.I(f'v_lshl_add_u32 v4, v4, 2, v5')
    A.I(f'v_lshl_add_u32 v{V_KR}, v4, 4, v6')
    A.I(f'v_add_u32 v{V_KR}, {L_KX_}, v{V_KR}')
    A.I(f's_lshl_b32 s{S_T0}, s{S_WV}, 9')
    A.I(f's_add_u32 s{S_T0}, s{S_T0}, {L_OX}')
    A.I(f'v_lshrrev_b32 v4, 1, v{g}')
    A.I(f'v_lshlrev_b32 v4, 8, v4')
    A.I(f'v_lshrrev_b32 v5, 1, v{n}')
    A.I(f'v_lshl_add_u32 v4, v5, 6, v4')
    A.I(f'v_and_b32 v5, 1, v{g}')
    A.I(f'v_lshl_add_u32 v4, v5, 5, v4')
    A.I(f'v_and_b32 v5, 1, v{n}')
    A.I(f'v_lshl_add_u32 v4, v5, 4, v4')
    A.I(f'v_add_u32 v4, s{S_T0}, v4')
    A.I(f'v_add_u32 v5, {L_QX}, v{V_L16}')
    A.I(f'v_cmp_gt_u32 vcc, 8, v{n}')
    A.I(f'v_cndmask_b32 v{V_OW}, v5, v4, vcc')
    A.I(f's_lshl_b32 s{S_T0}, s{S_WV}, 14')
    A.I(f's_add_u32 s{S_T0}, s{S_T0}, {L_WO}')
    A.I(f'v_add_u32 v{V_WO0}, s{S_T0}, v{V_L16}')
    A.I(f'v_add_u32 v{V_WO1}, {L_HALF}, v{V_WO0}')
    A.I(f'v_add_u32 v{V_VX}, s{S_W11}, v{V_L16}')
    A.I(f'v_lshrrev_b32 v4, 3, v{n}')
    A.I(f'v_lshl_add_u32 v4, v{g}, 1, v4')
    A.I(f'v_mul_u32_u24 v4, {PB_GRP}, v4')
    A.I(f'v_and_b32 v5, 7, v{n}')
    A.I(f'v_lshl_add_u32 v4, v5, 4, v4')
    A.I(f's_mul_i32 s{S_T0}, s{S_WV}, {8 * PB_GRP}')
    A.I(f's_lshl_b32 s{S_T1}, s{S_H}, 8')
    A.I(f's_add_u32 s{S_T0}, s{S_T0}, s{S_T1}')
    A.I(f'v_add_u32 v{V_PBW}, s{S_T0}, v4')
    A.I(f's_mul_i32 s{S_T0}, s{S_H}, {PB_GRP}')
    A.I(f's_add_u32 s{S_PZ}, s{S_T0}, s{S_W11}')
    A.I(f's_lshl_b32 s{S_T1}, s{S_WV}, 7')
    A.I(f's_add_u32 s{S_T0}, s{S_T0}, s{S_T1}')
    A.I(f'v_lshlrev_b32 v4, 8, v{g}')
    A.I(f'v_lshl_add_u32 v4, v{n}, 3, v4')
    A.I(f'v_add_u32 v{V_RDR}, s{S_T0}, v4')
    A.I(f's_and_b32 s{S_T1}, s{S_H}, 1')
    A.I(f's_lshl_b32 s{S_T1}, s{S_T1}, 10')
    A.I(f's_lshl_b32 s{S_T0}, s{S_WV}, 12')
    A.I(f's_add_u32 s{S_T0}, s{S_T0}, s{S_T1}')
    A.I(f's_lshr_b32 s{S_T1}, s{S_H}, 1')
    A.I(f's_lshl_b32 s{S_T1}, s{S_T1}, 6')
    A.I(f's_add_u32 s{S_T0}, s{S_T0}, s{S_T1}')
    A.I(f'v_lshrrev_b32 v4, 3, v{n}')
    A.I(f'v_lshlrev_b32 v4, 5, v4')
    A.I(f'v_and_b32 v5, 1, v{n}')
    A.I(f'v_lshl_add_u32 v4, v5, 11, v4')
    A.I(f'v_bfe_u32 v5, v{n}, 1, 2')
    A.I(f'v_lshl_add_u32 v4, v5, 2, v4')
    A.I(f'v_add_u32 v4, s{S_T0}, v4')
    A.I(f'v_mov_b32 v5, 0x7f000000')
    A.I(f'v_cmp_gt_u32 vcc, 16, v{LANE}')
    A.I(f'v_cndmask_b32 v{V_MBW}, v5, v4, vcc')
    A.I(f'v_mov_b32 v4, 0x3f80')
    A.I(f'v_mov_b32 v5, 0x3f800000')
    A.I(f'v_and_b32 v6, 1, v{n}')
    A.I(f'v_cmp_eq_u32 vcc, 1, v6')
    A.I(f'v_cndmask_b32 v{V_SEL}, v4, v5, vcc')
    A.I(f'v_lshrrev_b32 v6, 1, v{n}')
    A.I(f'v_cmp_eq_u32 s[{S_M0}:{S_M0 + 1}], 0, v6')
    A.I(f'v_cmp_eq_u32 s[{S_M1}:{S_M1 + 1}], 1, v6')
    c = (128 ** -0.5) * math.log2(math.e)
    cb = struct.unpack("<I", struct.pack("<f", c))[0]
    A.I(f's_mov_b32 s{S_C}, 0x{cb:08x}')
    A.I(f's_mov_b32 s{S_C + 1}, 0x{cb:08x}')
    A.I(f's_mov_b32 s{S_ONE}, 0x3f803f80')
    A.I(f's_mov_b32 s{S_ONE + 1}, 0x3f803f80')


def init_exchange(A, s_mem0, st, rb=0):
    ws = f's[{S_WS}:{S_WS + 3}]'
    import re as _re
    _I = A.I

    def I(t):
        t = _re.sub(r'\bv(\d+)\b', lambda m: f'v{int(m.group(1)) + rb}' if int(m.group(1)) < 16 else m.group(0), t)
        t = t.replace('v[4:7]', f'v[{4 + rb}:{7 + rb}]')
        _I(t)
    for r in range(4, 8):
        I(f'v_mov_b32 v{r}, -1')
    for r in range(3):
        I(f's_add_u32 s{S_T0}, s{S_PZ}, 0x{WS_PB + r * PB_SLOT:x}')
        for c in range(2):
            I(f'buffer_store_dwordx4 v[4:7], v{V_L16}, {ws}, s{S_T0} offen offset:{1024 * c} {st}')
    le = A.newlabel('L_ie')
    I(f's_cmp_ge_u32 s{S_WV}, 2')
    A.br(f's_cbranch_scc1 {le}')
    I(f's_mov_b32 s{S_T0}, 0x{WS_MB + 8192:x}')
    I(f'buffer_store_dword v4, v{V_MBW}, {ws}, s{S_T0} offen {st}')
    I(f'buffer_store_dword v4, v{V_MBW}, {ws}, s{S_T0} offen offset:16 {st}')
    make_srd(A, S_W, s_mem0, 8192)
    n = 3
    I(f'v_and_b32 v{n}, 15, v{LANE}')
    I(f's_bfe_u32 s{S_T0}, s{S_H}, 0x20001')
    I(f's_lshl_b32 s{S_T0}, s{S_T0}, 11')
    I(f's_lshr_b32 s{S_T1}, s{S_H}, 3')
    I(f's_lshl_b32 s{S_T1}, s{S_T1}, 8')
    I(f's_add_u32 s{S_T0}, s{S_T0}, s{S_T1}')
    I(f's_lshl_b32 s{S_T1}, s{S_WV}, 7')
    I(f's_add_u32 s{S_T0}, s{S_T0}, s{S_T1}')
    I(f's_and_b32 s{S_T1}, s{S_H}, 1')
    I(f's_lshl_b32 s{S_T1}, s{S_T1}, 4')
    I(f's_add_u32 s{S_T0}, s{S_T0}, s{S_T1}')
    I(f'v_and_b32 v12, 1, v{n}')
    I(f'v_lshlrev_b32 v12, 6, v12')
    I(f'v_lshrrev_b32 v13, 1, v{n}')
    I(f'v_lshl_add_u32 v12, v13, 1, v12')
    w = f's[{S_W}:{S_W + 3}]'
    I(f'buffer_load_ushort v8, v12, {w}, s{S_T0} offen')
    I(f'buffer_load_ushort v9, v12, {w}, s{S_T0} offen offset:32')
    I(f'buffer_load_ushort v10, v12, {w}, s{S_T0} offen offset:1024')
    I(f'buffer_load_ushort v11, v12, {w}, s{S_T0} offen offset:1056')
    I('s_waitcnt vmcnt(0)')
    I('v_lshl_or_b32 v8, v9, 16, v8')
    I('v_lshl_or_b32 v10, v11, 16, v10')
    I('v_min_u32 v8, -2, v8')
    I('v_min_u32 v10, -2, v10')
    I(f's_mov_b32 s{S_T0}, 0x{WS_MB:x}')
    I(f'buffer_store_dword v8, v{V_MBW}, {ws}, s{S_T0} offen {st}')
    I(f'buffer_store_dword v10, v{V_MBW}, {ws}, s{S_T0} offen offset:16 {st}')
    A.label(le)
    I('s_waitcnt vmcnt(0)')


HS = [('q', 0, 0), ('q', 1, 0), ('q', 0, 1), ('q', 1, 1), ('k', 0, 0), ('k', 1, 0), ('k', 0, 1), ('k', 1, 1)]
QBUF = dict(zip(HS, [KX, KX + 8, KX + 16, KX + 24, VX, T, T + 8, ACC + 16]))


def zero(A, r0, n):
    for i in range(0, n, 2):
        A.I(f'v_mov_b64 {v(r0 + i, 2)}, 0')


def q_prefetch(A, part=None):
    for i, f in enumerate(HS):
        if part is not None and (i >> 2) != part:
            continue
        lds_frag_read(A, f, QBUF[f])
        if i == 5:
            A.I('s_waitcnt lgkmcnt(8)')


def kv_dma(A):
    ws = f's[{S_WS}:{S_WS + 3}]'
    A.I(f's_mov_b32 m0, s{S_KVM0}')
    A.I(f's_add_u32 s{S_T0}, s{S_KVN}, 0x{WS_VF - WS_KF:x}')
    A.I(f'buffer_load_dwordx4 v{V_L16}, {ws}, s{S_KVN} offen lds')
    A.I(f'buffer_load_dwordx4 v{V_L16}, {ws}, s{S_KVN} offen offset:1024 lds')
    A.I(f's_add_u32 m0, s{S_KVM0}, 8192')
    A.I(f's_add_u32 s{S_KVN}, s{S_KVN}, 0x40000')
    A.I(f'buffer_load_dwordx4 v{V_L16}, {ws}, s{S_T0} offen lds')
    A.I(f'buffer_load_dwordx4 v{V_L16}, {ws}, s{S_T0} offen offset:1024 lds')


S_AV, S_RA, S_KP = 21, 22, 24
F_KMP = WS_FLAG + 0x3000
F_PROG = WS_FLAG


def kv_eval(A, vt, vlane16, s_av):
    p, t, u_ = vt, vt + 1, vt + 2
    A.I(f'v_bfe_u32 v{t}, v{vlane16}, 6, 1')
    A.I(f'v_lshl_add_u32 v{t}, v{p}, 1, v{t}')
    A.I(f'v_bfe_u32 v{u_}, v{vlane16}, 7, 1')
    A.I(f'v_lshl_add_u32 v{t}, v{u_}, 5, v{t}')
    A.I(f'v_cmp_le_u32 vcc, 16, v{p}')
    A.I(f'v_mov_b32 v{u_}, 64')
    A.I(f'v_cndmask_b32 v{t}, v{t}, v{u_}, vcc')
    for k in (8, 4, 2, 1):
        A.I(f'v_min_u32_dpp v{t}, v{t}, v{t} row_ror:{k} row_mask:0xf bank_mask:0xf')
    A.I(f'v_readfirstlane_b32 s{s_av}, v{t}')


def kv_load(A, vt, vlane16, s_base):
    ws = f's[{S_WS}:{S_WS + 3}]'
    A.I(f'v_lshrrev_b32 v{vt + 1}, 2, v{vlane16}')
    A.I(f'v_and_b32 v{vt + 1}, 0x7c, v{vt + 1}')
    A.I(f'buffer_load_dword v{vt}, v{vt + 1}, {ws}, s{s_base} offen sc1')


def kv_wait(A, l_exit, s_need, vt, s_av=S_AV, s_base=S_RA, sleep=0, vlane16=V_L16):
    l = A.newlabel('L_kvw')
    A.label(l)
    kv_load(A, vt, vlane16, s_base)
    A.I(f's_sub_u32 s{S_SPIN}, s{S_SPIN}, 1')
    A.I(f's_cbranch_scc1 {l_exit}')
    A.I('s_waitcnt vmcnt(0)')
    kv_eval(A, vt, vlane16, s_av)
    if sleep:
        ld = A.newlabel('L_kvd')
        A.I(f's_cmp_gt_u32 s{s_av}, s{s_need}')
        A.I(f's_cbranch_scc1 {ld}')
        A.I(f's_sleep {sleep}')
        A.br(f's_branch {l}')
        A.label(ld)
    else:
        A.I(f's_cmp_le_u32 s{s_av}, s{s_need}')
        A.br(f's_cbranch_scc1 {l}')


def main_loop(A, st, l_exit, kvcheck=False):
    ws = f's[{S_WS}:{S_WS + 3}]'
    A.I(f's_mov_b32 s{S_STEP}, 0')
    A.I(f's_mov_b32 s{S_MBR}, 0x{WS_MB:x}')
    A.I(f's_mov_b32 s{S_MBW}, 0x{WS_MB + 8192:x}')
    A.I(f's_mov_b32 s{S_PB0}, 0x{WS_PB:x}')
    A.I(f's_mov_b32 s{S_PB1}, 0x{WS_PB + PB_SLOT:x}')
    A.I(f's_lshl_b32 s{S_KMO}, s{S_H}, 12')
    A.I(f's_lshl_b32 s{S_T0}, s{S_WV}, 10')
    A.I(f's_add_u32 s{S_KMO}, s{S_KMO}, s{S_T0}')
    A.I(f's_add_u32 s{S_KMO}, s{S_KMO}, 0x{WS_KM - 0x20000:x}')
    A.I(f's_mul_i32 s{S_W640}, s{S_WV}, 640')
    A.I(f's_lshl_b32 s{S_VMO}, s{S_H}, 11')
    A.I(f's_lshl_b32 s{S_T0}, s{S_WV}, 9')
    A.I(f's_add_u32 s{S_VMO}, s{S_VMO}, s{S_T0}')
    A.I(f's_add_u32 s{S_VMO}, s{S_VMO}, 0x{WS_VM - 0x10000:x}')
    A.I(f's_lshr_b32 s{S_T0}, s{S_WV}, 1')
    A.I(f's_mul_i32 s{S_TCH}, s{S_T0}, 0x{WS_VF - WS_KF:x}')
    A.I(f's_and_b32 s{S_T0}, s{S_WV}, 1')
    A.I(f's_lshl_b32 s{S_T0}, s{S_T0}, 12')
    A.I(f's_add_u32 s{S_TCH}, s{S_TCH}, s{S_T0}')
    A.I(f's_lshl_b32 s{S_T0}, s{S_H}, 13')
    A.I(f's_add_u32 s{S_TCH}, s{S_TCH}, s{S_T0}')
    A.I(f's_add_u32 s{S_TCH}, s{S_TCH}, 0x{WS_KF + TOUCH_AHEAD * 0x40000:x}')

    NST = 12
    order = []

    def stamp(i):
        if not STAMPS:
            return
        order.append(i)
        A.raw(f'    s_memtime s[{64 + 2 * i}:{65 + 2 * i}]')
        A.pos += 1

    def stamp_acc():
        if not STAMPS:
            return
        A.I('s_waitcnt lgkmcnt(0)')
        if E('RAW', 0):
            lk = A.newlabel('L_raw')
            A.I(f's_cmp_lg_u32 s{S_STEP}, {E("RAW", 0)}')
            A.I(f's_cbranch_scc1 {lk}')
            for i in range(NST):
                if i != 6:
                    A.I(f's_mov_b32 s{88 + i}, s{64 + 2 * i}')
            A.label(lk)
            lk = A.newlabel('L_raw')
            A.I(f's_cmp_lg_u32 s{S_STEP}, {E("RAW", 0) - 1}')
            A.I(f's_cbranch_scc1 {lk}')
            A.I(f's_mov_b32 s{88 + 6}, s{64 + 12}')
            A.label(lk)
            return
        prev = 100
        for i in order:
            A.I(f's_sub_u32 s101, s{64 + 2 * i}, s{prev}')
            A.I(f's_add_u32 s{88 + i}, s{88 + i}, s101')
            prev = 64 + 2 * i
        A.I(f's_mov_b32 s100, s{prev}')
    if STAMPS:
        for i in range(NST):
            A.I(f's_mov_b32 s{88 + i}, 0')
        A.I(f's_memtime s[64:65]')
        A.I('s_waitcnt lgkmcnt(0)')
        for i in range(NST):
            A.I(f's_mov_b32 s{64 + 2 * i}, s64')
        A.I(f's_mov_b32 s100, s64')

    L_top = A.newlabel('L_rec')
    L_af = A.newlabel('L_afpoll')
    L_red = A.newlabel('L_red')
    L_bh = A.newlabel('L_bh')
    L_w23 = A.newlabel('L_w23')
    L_fin = A.newlabel('L_fin')
    HS_ = E('HSTAMP', 0)
    _stamp = stamp
    if HS_:
        order.extend([2, 3, 7, 9, 10])

    def hstamp(i):
        if STAMPS and HS_:
            A.raw(f'    s_memtime s[{64 + 2 * i}:{65 + 2 * i}]')
            A.pos += 1

    def stamp(i):
        if HS_ and i in (2, 3, 9, 10):
            return
        if HS_ and i == 7:
            return hstamp(7)
        _stamp(i)

    L_pslow = A.newlabel('L_pslow')
    L_aslow = A.newlabel('L_aslow')
    L_afok = A.newlabel('L_afok')
    L_afchk = A.newlabel('L_afchk')
    RA, RB, SEL, RD = 0, 16, ACC + 8, ACC + 12
    mx, tm = V_MX, V_TM
    TWO_PB, TWO_AF = E('TWO_PB', 1), E('TWO_AF', 1)

    def addr3():
        A.I(f'v_xor_b32 v{V_MX}, 2048, v{V_VX}')
        A.I(f'v_xor_b32 v{V_TM}, 4096, v{V_VX}')
        A.I(f'v_xor_b32 v{V_SP}, 6144, v{V_VX}')

    A.I(f's_mov_b32 s{S_TAG}, 0')
    zero(A, ACC, 8)
    q_prefetch(A)
    A.br(f's_branch {L_af}')

    def pb_loads(b):
        for i in range(8):
            so = S_PB0 if i < 4 else S_PB0H
            A.I(f'buffer_load_dwordx2 {v(b + 2 * i, 2)}, v{V_RDR}, {ws}, s{so} offen offset:{(i & 3) * 1024} {LDF}')

    def red(b, base):
        for i in range(4):
            A.I(f's_waitcnt vmcnt({base + 6 - 2 * i})')
            c = '0' if i == 0 else v(RD, 4)
            A.I(f'v_mfma_f32_16x16x32_bf16 {v(RD, 4)}, {v(SEL, 4)}, {v(b + 4 * i, 4)}, {c}')
            r = b + 4 * i
            tt = 0
            for idx in range(8):
                a_, b_, s_ = (idx >> 2) & 1, (idx >> 1) & 1, idx & 1
                if (a_ ^ s_) | (b_ ^ s_):
                    tt |= 1 << idx
            d = mx if i == 0 else tm
            A.I(f'v_bitop3_b32 v{d}, v{r}, v{r + 2}, s{S_TAG} bitop3:0x{tt:x}')
            if i:
                A.I(f'v_or_b32 v{mx}, v{mx}, v{tm}')
        A.I(f'v_and_b32 v{mx}, 1, v{mx}')
        A.I(f'v_cmp_eq_u32 vcc, 1, v{mx}')

    def af_loads(b):
        for i in range(2):
            A.I(f'buffer_load_dwordx4 {v(b + 4 * i, 4)}, v{V_L16}, {ws}, s{S_AFO} offen offset:{i * 1024} {LDF}')

    def af_chk(b, tmp):
        A.I(f'ds_write_b128 v{V_VX}, {v(b, 4)} offset:{L_AF}')
        A.I(f'v_max3_u32 v{tmp}, v{b}, v{b + 1}, v{b + 2}')
        A.I(f'v_max3_u32 v{tmp}, v{tmp}, v{b + 3}, v{b + 4}')
        A.I(f'ds_write_b128 v{V_VX}, {v(b + 4, 4)} offset:{L_AF + 1024}')
        A.I(f'v_max3_u32 v{tmp}, v{tmp}, v{b + 5}, v{b + 6}')
        A.I(f'v_max_u32 v{tmp}, v{tmp}, v{b + 7}')
        A.I(f'v_cmp_eq_u32 vcc, -1, v{tmp}')

    A.raw('.p2align 6')
    A.label(L_top)
    A.forget_loads()
    A.check = False
    red(RA, 8 if TWO_PB else 0)
    hstamp(3)
    A.I(f's_cbranch_vccnz {L_pslow}')
    A.label(L_red, flush=False)
    A.I(f'v_mov_b32 v{tm}, -1')
    A.I('s_nop 2')
    A.I(f'v_cvt_pk_bf16_f32 v{RD}, v{RD}, v{RD + 1}')
    A.I(f'v_cvt_pk_bf16_f32 v{RD + 2}, v{RD + 2}, v{RD + 3}')
    A.I(f'buffer_store_dword v{RD}, v{V_MBW}, {ws}, s{S_MBW} offen {st}')
    A.I(f'buffer_store_dword v{RD + 2}, v{V_MBW}, {ws}, s{S_MBW} offen offset:16 {st}')
    A.I(f'buffer_store_dword v{tm}, v{V_MBW}, {ws}, s{S_MBR} offen {st}')
    A.I(f'buffer_store_dword v{tm}, v{V_MBW}, {ws}, s{S_MBR} offen offset:16 {st}')
    A.label(L_bh, flush=False)
    stamp(7)
    A.I('s_barrier')
    A.I(f's_mov_b32 s{S_T0}, s{S_MBR}')
    A.I(f's_mov_b32 s{S_MBR}, s{S_MBW}')
    A.I(f's_mov_b32 s{S_MBW}, s{S_T0}')
    A.I(f's_mov_b32 s{S_T0}, s{S_PB0}')
    A.I(f's_mov_b32 s{S_PB0}, s{S_PB1}')
    A.I(f's_mov_b32 s{S_PB1}, s{S_T0}')
    A.I(f's_add_u32 s{S_STEP}, s{S_STEP}, 1')
    A.I(f's_bfe_u32 s{S_TAG}, s{S_STEP}, 0x10001')
    A.label(L_af, flush=False)
    A.I(f's_add_u32 s{S_AFO}, s{S_MBR}, s{S_W11}')
    zero(A, ACC + 8, 8)
    addr3()
    for i in range(AF_DELAY):
        A.I('s_nop 7')
    ASETS = [0, 24, 16]
    af_loads(0)
    hstamp(9)
    for b in ASETS[1:]:
        for i in range(AF_GAP):
            A.I('s_nop 7')
        af_loads(b)

    def mf(mat, nb, t, src=None):
        acc = ACC + ('qkv'.index(mat) * 2 + nb) * 4
        if src is None:
            src = QBUF.get((mat, nb, t))
        b = v(src, 8) if src is not None else u(HOME[(mat, nb, t)], 8)
        A.I(f'v_smfmac_f32_16x16x64_bf16 {v(acc, 4)}, {v(AF + 4 * t, 4)}, {b}, v{V_IDX}')

    A.label(L_afchk, flush=False)
    A.I(f's_waitcnt vmcnt(4) lgkmcnt(0)')
    A.label(L_afok, flush=False)
    hstamp(10)
    tmp = 8
    A.I(f'ds_write_b128 v{V_VX}, {v(0, 4)} offset:{L_AF}')
    A.I(f'ds_write_b128 v{V_VX}, {v(4, 4)} offset:{L_AF + 1024}')
    mf('q', 0, 0)
    A.I(f'v_max3_u32 v{tmp}, v0, v1, v2')
    A.I(f'v_max3_u32 v{tmp}, v{tmp}, v3, v4')
    mf('q', 1, 0)
    A.I(f'v_max3_u32 v{tmp}, v{tmp}, v5, v6')
    A.I(f'v_max_u32 v{tmp}, v{tmp}, v7')
    A.I(f'v_cmp_eq_u32 vcc, -1, v{tmp}')
    A.I(f's_cbranch_vccnz {L_aslow}')
    stamp(8)
    A.check = True
    A.forget_loads()
    A.I('s_waitcnt lgkmcnt(0)')
    A.I('s_barrier')
    stamp(0)
    pend = []
    ar = {1: V_MX, 2: V_TM, 3: V_SP}
    hs = [('q', 0, 1), ('q', 1, 1), ('k', 0, 0), ('k', 1, 0), ('k', 0, 1), ('k', 1, 1)]

    def afr(uu):
        A.I(f'ds_read_b128 {v(AF + 4 * uu, 4)}, v{ar[uu >> 1]} offset:{L_AF + 1024 * (uu & 1)}')
        pend.append(('af', uu))
    afr(2); afr(3)
    mf(*hs[0])
    A.I(f'v_lshlrev_b32 v{V_MX}, 2, v{V_L16}')
    mf(*hs[1])
    mf(*hs[2])
    mf(*hs[3])
    KBUF = {}

    def kload(nb, t, b):
        KBUF[(nb, t)] = b
        lds_frag_read(A, ('k', nb, t), b)
        pend.extend([('k', t), ('k', t)])

    kload(0, 2, QBUF[('q', 0, 0)])
    mf(*hs[4])
    kload(1, 2, QBUF[('q', 1, 0)])
    mf(*hs[5])
    A.I('s_waitcnt vmcnt(0)')
    for uu in range(4, 8):
        afr(uu)
    A.I(f'v_lshrrev_b32 v{V_TM}, 2, v{V_L16}')
    if kvcheck:
        L_kvc, L_kvr = A.newlabel('L_kvc'), A.newlabel('L_kvr')
        A.I(f's_add_u32 s23, s{S_STEP}, 1')
        A.I(f's_cmp_ge_u32 s23, s{S_AV}')
        A.I(f's_cbranch_scc1 {L_kvc}')
        A.label(L_kvr, flush=False)
    if not E('NODMA', 0):
        A.I(f'buffer_load_dword v{V_SP}, v{V_MX}, {ws}, s{S_TCH} offen')
    if kvcheck:
        A.check = False
        A.I(f'buffer_load_dword v{V_SP}, v{V_TM}, {ws}, s{S_RA} offen sc1')
        A.check = True

    def wait_for(name):
        if name not in pend:
            return
        idx = max(i for i, p in enumerate(pend) if p == name)
        n = len(pend) - 1 - idx
        A.I(f's_waitcnt lgkmcnt({n})')
        del pend[:idx + 1]

    EXP, EXV = ACC + 16, ACC + 20
    for t in range(2, 8):
        wait_for(('af', t))
        mf('q', 0, t)
        if t == 2:
            kload(0, 3, QBUF[('q', 0, 1)])
        if t == 3:
            kload(1, 3, QBUF[('q', 1, 1)])
        if t == 4:
            A.I(f'v_add_u32 v{EXP}, s{S_W640}, v{V_KR}')
        if t == 5:
            A.I(f'v_lshrrev_b32 v{EXV}, 2, v{V_VX}')
        if t == 6:
            A.I(f'ds_read_b64 {v(EXV, 2)}, v{EXV} offset:{L_VM}')
            pend.append(('ex', 1))
        mf('q', 1, t)
        if t == 4:
            A.I(f'ds_read_b128 {v(EXP, 4)}, v{EXP}')
            pend.append(('ex', 0))
        if t == 5:
            A.I(f'v_lshl_add_u32 v{EXV}, v{V_MX}, 0, v{EXV}' if False else f'v_add_u32 v{EXV}, v{EXV}, v{V_TM}')
        if t >= 6:
            A.I(f'ds_read_b128 {v(VX + 4 * (t - 6), 4)}, v{V_VX} offset:{L_KV + 8192 + 1024 * (t - 6)}')
            pend.append(('vx', t))
    stamp(1)
    q0, q1, k0, k1 = ACC, ACC + 4, ACC + 8, ACC + 12
    QF = T

    def kmf(t, nb):
        mf('k', nb, t, KBUF.get((nb, t)))

    def pack(b0, b1):
        return [f'v_add_f32 v{b0}, v{b0}, v{b0 + 2}',
                f'v_add_f32 v{b0 + 1}, v{b0 + 1}, v{b0 + 3}',
                f'v_add_f32 v{b1}, v{b1}, v{b1 + 2}',
                f'v_add_f32 v{b1 + 1}, v{b1 + 1}, v{b1 + 3}',
                f'v_cvt_pk_bf16_f32 v{b0}, v{b0}, v{b1}',
                f'v_cvt_pk_bf16_f32 v{b0 + 1}, v{b0 + 1}, v{b1 + 1}']

    wait_for(('k', 2))
    kmf(2, 0)
    A.I(f's_add_u32 s{S_TCH}, s{S_TCH}, 0x40000')
    A.I(f'v_lshrrev_b32 v{V_TM}, 1, v{V_L16}')
    kmf(2, 1)
    wait_for(('ex', 1))
    if not E('NOEXP', 0):
        A.I(f'buffer_store_dwordx4 {v(EXP, 4)}, v{V_L16}, {ws}, s{S_KMO} offen {EXF}')
    kmf(3, 0)
    if not E('NOEXP', 0):
        A.I(f'buffer_store_dwordx2 {v(EXV, 2)}, v{V_TM}, {ws}, s{S_VMO} offen {EXF}')
    A.I(f's_add_u32 s{S_KMO}, s{S_KMO}, 0x20000')
    A.I(f's_add_u32 s{S_VMO}, s{S_VMO}, 0x10000')
    kmf(3, 1)
    if kvcheck:
        A.I(f'v_mov_b32 v{V_TM}, s{S_STEP}')
        A.I('s_mov_b64 exec, 1')
        A.I(f'buffer_store_dword v{V_TM}, off, {ws}, s{S_KP} sc1')
        A.I('s_mov_b64 exec, -1')
    kxr = [f'ds_read_b128 {v(KX + 4 * f, 4)}, v{V_L16} offset:{L_KV + 1024 * f}' for f in range(8)]
    pq = pack(q0, q1) + [f'ds_write2_b32 v{V_QKW}, v{q0}, v{q0 + 1} offset0:0 offset1:16']
    fl = []
    for i in range(8):
        fl.append([kxr[i]] + ([pq[i]] if i < 7 else []) + ([f'v_mov_b64 {v(ACC + 16 + (i - 4) * 2, 2)}, 0'] if i >= 4 else []))
    for i, (t, nb) in enumerate([(t, nb) for t in range(4, 8) for nb in range(2)]):
        for x in fl[i]:
            A.I(x)
        kmf(t, nb)
    stamp(2)
    pk = pack(k0, k1)
    mf('v', 0, 0)
    mf('v', 1, 0)
    A.I('s_nop 4')
    A.I(pk[0]); A.I(pk[1]); A.I(pk[2])
    mf('v', 0, 1)
    A.I(pk[3]); A.I(pk[4]); A.I(pk[5])
    A.I(f'ds_write_b32 v{V_QKW}, v{k0} offset:{L_KX_}')
    A.I(f'ds_write_b32 v{V_QKW}, v{k0 + 1} offset:{L_KX_ + 64}')
    mf('v', 1, 1)
    mf('v', 0, 2)
    mf('v', 1, 2)
    mf('v', 0, 3)
    A.I('s_waitcnt lgkmcnt(0)')
    A.I('s_barrier')
    stamp(3)
    KMF, ONES = 0, 20
    for ks in range(4):
        A.I(f'ds_read_b128 {v(QF + 4 * ks, 4)}, v{V_QR} offset:{640 * ks}')
        if ks == 1:
            mf('v', 1, 3)
    mf('v', 0, 4)
    for ks in range(4):
        A.I(f'ds_read_b128 {v(KMF + 4 * ks, 4)}, v{V_KR} offset:{640 * ks}')
        if ks == 1:
            mf('v', 1, 4)
    dm = []
    if not E('NODMA', 0):
        dm = [f's_mov_b32 m0, s{S_KVM0}\ns_add_u32 s{S_T0}, s{S_KVN}, 0x{WS_VF - WS_KF:x}\nbuffer_load_dwordx4 v{V_L16}, {ws}, s{S_KVN} offen lds',
              f'buffer_load_dwordx4 v{V_L16}, {ws}, s{S_KVN} offen offset:1024 lds\ns_add_u32 m0, s{S_KVM0}, 8192\ns_add_u32 s{S_KVN}, s{S_KVN}, 0x40000',
              f'buffer_load_dwordx4 v{V_L16}, {ws}, s{S_T0} offen lds',
              f'buffer_load_dwordx4 v{V_L16}, {ws}, s{S_T0} offen offset:1024 lds']
    else:
        dm = ['s_nop 0'] * 4
    mf('v', 0, 5)
    mf('v', 1, 5)
    mf('v', 0, 6)
    mf('v', 1, 6)
    X0, X1, M, P = q0, q1, k0, k1
    O0, O1, Lr, PMA, PMB = KX + 16, KX + 20, KX + 24, KX + 28, KX + 30

    def sx(i):
        ks, kb = i >> 1, i & 1
        X = X1 if kb else X0
        c = '0' if ks == 0 else v(X, 4)
        A.I(f'v_mfma_f32_16x16x32_bf16 {v(X, 4)}, {v(KX + 16 * kb + 4 * ks, 4)}, {v(QF + 4 * ks, 4)}, {c}')

    for ks in range(4):
        A.I(f's_waitcnt lgkmcnt({7 - ks})')
        sx(2 * ks)
        if ks == 2:
            A.I(f'v_mov_b64 {v(ONES, 2)}, s[{S_ONE}:{S_ONE + 1}]')
        if ks == 3:
            A.I(f'v_mov_b64 {v(ONES + 2, 2)}, s[{S_ONE}:{S_ONE + 1}]')
        sx(2 * ks + 1)
    stamp(9)
    A.I('s_waitcnt lgkmcnt(0)')
    for ks in range(4):
        cm = '0' if ks == 0 else v(M, 4)
        A.I(f'v_mfma_f32_16x16x32_bf16 {v(M, 4)}, {v(KMF + 4 * ks, 4)}, {v(QF + 4 * ks, 4)}, {cm}')
        if ks == 0:
            A.I(f'v_mov_b32 v{PMA + 1}, 0')
            A.I(f'v_mov_b32 v{PMB}, 0')
        if ks == 1:
            A.I('s_nop 1')
            A.I(f'v_max3_f32 v{mx}, v{X0}, v{X0 + 1}, v{X0 + 2}')
            A.I(f'v_max3_f32 v{tm}, v{X1}, v{X1 + 1}, v{X1 + 2}')
        if ks == 2:
            A.I(f'v_max3_f32 v{mx}, v{mx}, v{X0 + 3}, v{X1 + 3}')
            A.I(f'v_max_f32 v{mx}, v{mx}, v{tm}')
        if ks == 3:
            A.I(f'v_mov_b32 v{tm}, v{mx}')
    mf('v', 0, 7)
    A.I('s_nop 0')
    A.I(f'v_permlane32_swap_b32 v{mx}, v{tm}')
    mf('v', 1, 7)
    A.I(f'v_max_f32 v{mx}, v{mx}, v{tm}')
    A.I('s_nop 1')
    A.I(f'v_max3_f32 v{tm}, v{M}, v{M + 1}, v{M + 2}')
    A.I(f'v_max3_f32 v{mx}, v{tm}, v{M + 3}, v{mx}')
    A.I(f'v_mov_b32 v{tm}, v{mx}')
    sets = [X1, KX, O0, T]
    A.I(f'v_mov_b64 {v(sets[1], 2)}, 0')
    A.I(f'v_mov_b64 {v(sets[1] + 2, 2)}, 0')
    A.I(f'v_permlane16_swap_b32 v{mx}, v{tm}')
    A.I(f'v_max_f32 v{mx}, v{mx}, v{tm}')
    A.I(f'v_mul_f32_e64 v{mx}, -s{S_C}, v{mx}')

    def pkfma(r):
        A.I(f'v_pk_fma_f32 {v(r, 2)}, {v(r, 2)}, s[{S_C}:{S_C + 1}], {v(mx, 2)} op_sel:[0,0,0] op_sel_hi:[1,1,0]')

    va, vb = ACC + 16, ACC + 20
    VMP = va + 2
    for r in (M, X0, X0 + 2, X1, X1 + 2):
        pkfma(r)
    A.I(f'v_exp_f32 v{M}, v{M}')
    A.I(f'v_exp_f32 v{M + 1}, v{M + 1}')
    A.I(f'v_pk_add_f32 {v(va, 2)}, {v(va, 2)}, {v(va + 2, 2)}')
    A.I(f'v_pk_add_f32 {v(vb, 2)}, {v(vb, 2)}, {v(vb + 2, 2)}')
    A.I(f'v_cvt_pk_bf16_f32 v{PMA}, v{M}, v{M + 1}')
    A.I(f'v_cvt_pk_bf16_f32 v{PMB + 1}, v{M}, v{M + 1}')
    A.I(f'v_cvt_pk_bf16_f32 v{VMP}, v{va}, v{va + 1}')
    A.I(f'v_cvt_pk_bf16_f32 v{VMP + 1}, v{vb}, v{vb + 1}')
    A.I(f'v_exp_f32 v{X0}, v{X0}')
    stamp(10)
    A.I(f'v_mfma_f32_16x16x16_bf16 {v(Lr, 4)}, {v(ONES, 2)}, {v(PMA, 2)}, 0')
    A.I(f'v_exp_f32 v{X0 + 1}, v{X0 + 1}')
    A.I(f'v_mfma_f32_16x16x16_bf16 {v(O0, 4)}, {v(VMP, 2)}, {v(PMA, 2)}, 0')
    A.I(f'v_exp_f32 v{X0 + 2}, v{X0 + 2}')
    A.I(f'v_mfma_f32_16x16x16_bf16 {v(O1, 4)}, {v(VMP, 2)}, {v(PMB, 2)}, 0')
    A.I(f'v_exp_f32 v{X0 + 3}, v{X0 + 3}')
    A.I(f'v_cvt_pk_bf16_f32 v{P}, v{X0}, v{X0 + 1}')
    A.I(f'v_exp_f32 v{X1}, v{X1}')
    A.I(f'v_exp_f32 v{X1 + 1}, v{X1 + 1}')
    A.I(f'v_cvt_pk_bf16_f32 v{P + 1}, v{X0 + 2}, v{X0 + 3}')
    A.I(f'v_exp_f32 v{X1 + 2}, v{X1 + 2}')
    A.I(f'v_exp_f32 v{X1 + 3}, v{X1 + 3}')
    A.I(f'v_cvt_pk_bf16_f32 v{P + 2}, v{X1}, v{X1 + 1}')
    A.I(f'v_cvt_pk_bf16_f32 v{P + 3}, v{X1 + 2}, v{X1 + 3}')
    A.I(f'v_lshrrev_b32 v{tm}, 2, v{V_VX}')
    A.I(f'v_mov_b64 {v(sets[0], 2)}, 0')
    A.I(f'v_mfma_f32_16x16x32_bf16 {v(Lr, 4)}, {v(ONES, 4)}, {v(P, 4)}, {v(Lr, 4)}')
    A.I(f'v_mov_b64 {v(sets[0] + 2, 2)}, 0')
    A.I(f'v_mov_b64 {v(sets[0] + 4, 2)}, 0')
    A.I(f'v_mfma_f32_16x16x32_bf16 {v(O0, 4)}, {v(VX, 4)}, {v(P, 4)}, {v(O0, 4)}')
    A.I(f'v_mov_b64 {v(sets[0] + 6, 2)}, 0')
    A.I(f'v_mov_b64 {v(sets[1] + 4, 2)}, 0')
    A.I(f'v_mfma_f32_16x16x32_bf16 {v(O1, 4)}, {v(VX + 4, 4)}, {v(P, 4)}, {v(O1, 4)}')
    A.I(f'v_mov_b64 {v(sets[1] + 6, 2)}, 0')
    A.I(f'v_mov_b64 {v(sets[3], 2)}, 0')
    A.I(f'v_rcp_f32 v{mx}, v{Lr}')
    A.I(f'v_mov_b64 {v(sets[3] + 2, 2)}, 0')
    A.I(f'v_mov_b64 {v(sets[3] + 4, 2)}, 0')
    OW = X0

    def pkmul(r):
        A.I(f'v_pk_mul_f32 {v(r, 2)}, {v(r, 2)}, {v(mx, 2)} op_sel:[0,0] op_sel_hi:[1,0]')

    pkmul(O0)
    pkmul(O0 + 2)
    A.I(f'v_cvt_pk_bf16_f32 v{OW}, v{O0}, v{O0 + 1}')
    A.I(f'v_cvt_pk_bf16_f32 v{OW + 1}, v{O0 + 2}, v{O0 + 3}')
    pkmul(O1)
    pkmul(O1 + 2)
    A.I(f'v_cvt_pk_bf16_f32 v{OW + 2}, v{O1}, v{O1 + 1}')
    A.I(f'v_cvt_pk_bf16_f32 v{OW + 3}, v{O1 + 2}, v{O1 + 3}')
    A.I(f'ds_write_b128 v{V_OW}, {v(OW, 4)}')
    stamp(4)
    A.I(f'v_lshrrev_b32 v{mx}, 2, v{V_L16}')
    A.I(f'v_add_u32 v{tm}, v{tm}, v{mx}')
    A.I(f'ds_write_b64 v{tm}, {v(VMP, 2)} offset:{L_VM}')
    zero(A, sets[2], 8)
    A.I(f'v_mov_b64 {v(sets[3] + 6, 2)}, 0')
    A.I('s_waitcnt lgkmcnt(1)')
    A.I('s_barrier')
    OF = VX
    A.I(f'ds_read_b128 {v(OF, 4)}, v{V_L16} offset:{L_OX}')
    A.I(f'ds_read_b128 {v(OF + 4, 4)}, v{V_L16} offset:{L_OX + 1024}')
    A.I(f's_cmp_eq_u32 s{S_STEP}, {NSTEPS}')
    A.I(f's_cbranch_scc1 {L_fin}')
    OBUF = {(6, 0): 0, (7, 0): 8, (6, 1): 24, (7, 1): KX + 8}
    A.I(f's_add_u32 s{S_PB0H}, s{S_PB0}, 4096')
    A.I('s_waitcnt lgkmcnt(1)')
    stamp(5)

    def post(c):
        a0, b0 = sets[c], sets[c] + 4
        o = (OW if c < 2 else P) + 2 * (c & 1)
        if c == 3:
            l = [f'v_pk_add_f32 {v(a0, 2)}, {v(a0, 2)}, {v(a0 + 2, 2)}',
                 f'v_pk_add_f32 {v(b0, 2)}, {v(b0, 2)}, {v(b0 + 2, 2)}']
        else:
            l = [f'v_add_f32 v{a0}, v{a0}, v{a0 + 2}', f'v_add_f32 v{a0 + 1}, v{a0 + 1}, v{a0 + 3}',
                 f'v_add_f32 v{b0}, v{b0}, v{b0 + 2}', f'v_add_f32 v{b0 + 1}, v{b0 + 1}, v{b0 + 3}']
        l += [f'v_cvt_pk_bf16_f32 v{o}, v{a0}, v{b0}',
              f'v_cvt_pk_bf16_f32 v{o + 1}, v{a0 + 1}, v{b0 + 1}',
              f'v_bfi_b32 v{o}, 1, s{S_TAG}, v{o}']
        if c & 1:
            l.append(f'buffer_store_dwordx4 {v(o - 2, 4)}, v{V_PBW}, {ws}, s{S_PB0} offen offset:{128 * (c >> 1)} {st}')
        return l

    def womf(c, t2, bb):
        nbo = 2 * c + bb
        b = v(OBUF[(nbo, t2)], 8) if (nbo, t2) in OBUF else u(HOME[('o', nbo, t2)], 8)
        A.I(f'v_smfmac_f32_16x16x64_bf16 {v(sets[c] + 4 * bb, 4)}, {v(OF + 4 * t2, 4)}, {b}, v{V_IDX}')

    obr = []
    for f, b in OBUF.items():
        hf, sl = LDS_SLOT[('o',) + f]
        va_ = V_WO1 if hf else V_WO0
        obr.append(f'ds_read_b128 {v(b, 4)}, v{va_} offset:{sl * 2048}')
        obr.append(f'ds_read_b128 {v(b + 4, 4)}, v{va_} offset:{sl * 2048 + 1024}')
    seq = [(c, t2, bb) for c in range(4) for t2 in range(2) for bb in range(2)]
    fill = {i: [] for i in range(16)}
    for i in range(8):
        fill[2 + i // 2 if i < 6 else 5].append(obr[i])
    DM0 = E('DM0', 0)
    for i in range(4):
        fill[DM0 + i].append(dm[i])
    p0, p1, p2 = post(0), post(1), post(2)
    for k, x in enumerate(p0):
        fill[6 + k // 2].append(x)
    for k, x in enumerate(p1):
        fill[10 + k // 2].append(x)
    for k, x in enumerate(p2):
        fill[14 + min(k // 2, 1)].append(x)
    for i, (c, t2, bb) in enumerate(seq):
        if i == 2:
            A.I('s_waitcnt lgkmcnt(0)')
        if i == 12:
            A.I('s_waitcnt lgkmcnt(0)')
        womf(c, t2, bb)
        for x in fill[i]:
            A.I(x)
    A.I(f's_cmp_ge_u32 s{S_WV}, 2')
    for x in post(3):
        A.I(x)
    stamp(6)
    stamp_acc()
    if STAMPS:
        A.I(f's_cmp_ge_u32 s{S_WV}, 2')
    if kvcheck:
        lke = A.newlabel('L_ke')
        A.I(f's_cmp_ge_u32 s{S_AV}, 64')
        A.I(f's_cbranch_scc1 {lke}')
        A.I('s_waitcnt vmcnt(9)')
        A.I(f'v_mov_b32 v{T + 8}, v{V_SP}')
        kv_eval(A, T + 8, V_L16, S_AV)
        A.I(f's_cmp_lt_u32 s{S_AV}, 64')
        A.I(f's_cselect_b32 s{S_RA}, s{S_RA}, 0x7f000000')
        lk2 = A.newlabel('L_ke2')
        A.br(f's_branch {lk2}')
        A.label(lke)
        for i in range(3):
            A.I('s_nop 7')
        A.label(lk2)
        A.I(f's_cmp_ge_u32 s{S_WV}, 2')
    zero(A, ACC, 8)
    A.I(f's_cbranch_scc1 {L_w23}')
    A.I(f'v_cndmask_b32 v{SEL}, 0, v{V_SEL}, s[{S_M0}:{S_M0 + 1}]')
    A.I(f'v_cndmask_b32 v{SEL + 1}, 0, v{V_SEL}, s[{S_M1}:{S_M1 + 1}]')
    A.I(f'v_mov_b64 {v(SEL + 2, 2)}, {v(SEL, 2)}')
    for i in range(PB_DELAY - (4 if kvcheck else 0)):
        A.I('s_nop 7')
    pb_loads(RA)
    hstamp(2)
    q_prefetch(A, 0)
    for i in range(PB_GAP):
        A.I('s_nop 7')
    if TWO_PB:
        pb_loads(RB)
    q_prefetch(A, 1)
    A.br(f's_branch {L_top}')
    A.label(L_w23)
    A.forget_loads()
    q_prefetch(A)
    if os.environ.get('STEPT'):
        A.I('s_memrealtime s[80:81]')
        A.I('s_waitcnt lgkmcnt(0)')
        A.I('v_mov_b32 v0, s80')
        A.I(f's_lshl_b32 s80, s{S_STEP}, 2')
        A.I(f's_lshl_b32 s81, s{S_H}, 8')
        A.I('s_add_u32 s80, s80, s81')
        A.I(f's_add_u32 s80, s80, 0x{WS_DBG + 0x20000:x}')
        A.I(f'buffer_store_dword v0, off, {ws}, s80')
    hstamp(2); hstamp(3)
    A.br(f's_branch {L_bh}')

    A.check = False
    A.label(L_pslow)
    if TWO_PB:
        red(RB, 0)
        A.I(f's_cbranch_vccz {L_red}')
    pb_loads(RA)
    A.I(f's_sub_u32 s{S_SPIN}, s{S_SPIN}, 1')
    A.I(f's_cbranch_scc1 {l_exit}')
    if TWO_PB:
        for i in range(3):
            A.I('s_nop 7')
        pb_loads(RB)
    A.br(f's_branch {L_top}')
    A.label(L_aslow)
    af_loads(0)
    zero(A, ACC, 8)
    for b in ASETS[1:]:
        A.I('s_waitcnt vmcnt(4)')
        A.I(f'v_max3_u32 v8, v{b}, v{b + 1}, v{b + 2}')
        A.I(f'v_max3_u32 v9, v{b + 3}, v{b + 4}, v{b + 5}')
        A.I(f'v_mov_b64 {v(10, 2)}, {v(b, 2)}')
        A.I(f'v_max3_u32 v8, v8, v{b + 6}, v{b + 7}')
        A.I(f'v_max_u32 v8, v8, v9')
        A.I(f'v_cmp_eq_u32 vcc, -1, v8')
        lf = A.newlabel('L_af_f')
        A.I(f's_cbranch_vccnz {lf}')
        for i in range(0, 8, 2):
            A.I(f'v_mov_b64 {v(i, 2)}, {v(b + i, 2)}')
        A.br(f's_branch {L_afok}')
        A.label(lf)
        af_loads(b)
    A.I(f's_sub_u32 s{S_SPIN}, s{S_SPIN}, 1')
    A.I(f's_cbranch_scc1 {l_exit}')
    A.br(f's_branch {L_afchk}')
    if kvcheck:
        A.label(L_kvc)
        A.I(f's_cmp_eq_u32 s23, 64')
        A.I(f's_cbranch_scc1 {L_kvr}')
        kv_wait(A, l_exit, 23, ACC + 16)
        A.br(f's_branch {L_kvr}')
    A.label(L_fin)
    A.I(f'v_add_u32 v12, s{S_W640}, v{V_KR}')
    A.I(f'v_lshrrev_b32 v13, 2, v{V_VX}')
    A.I(f'v_lshrrev_b32 v14, 2, v{V_L16}')
    A.I(f'v_add_u32 v13, v13, v14')
    A.I(f'ds_read_b128 v[0:3], v12')
    A.I(f'ds_read_b64 v[4:5], v13 offset:{L_VM}')
    A.I(f'v_lshrrev_b32 v14, 1, v{V_L16}')
    A.I('s_waitcnt lgkmcnt(0)')
    A.I(f'buffer_store_dwordx4 v[0:3], v{V_L16}, {ws}, s{S_KMO} offen sc1')
    A.I(f'buffer_store_dwordx2 v[4:5], v14, {ws}, s{S_VMO} offen sc1')
    if kvcheck:
        A.I('v_mov_b32 v6, 65')
        A.I('s_waitcnt vmcnt(0)')
        A.I('s_mov_b64 exec, 1')
        A.I(f'buffer_store_dword v6, off, {ws}, s{S_KP} sc1')
        A.I('s_mov_b64 exec, -1')
    A.br(f's_branch {l_exit}')
    A.check = True
    A.forget_loads()


def rec_kernel(A, name):
    kernel_begin(A, name)
    l_exit = A.newlabel('L_exit')
    P_WS, P_DBG, P_Q, P_K, P_V, P_O, P_M0 = 16, 18, 20, 22, 24, 26, 28
    A.I(f's_cmp_ge_u32 s2, 256')
    A.I(f's_cbranch_scc1 {l_exit}')
    A.I(f's_load_dwordx2 s[{P_WS}:{P_WS + 1}], s[0:1], {KA_WS}')
    A.I(f's_load_dwordx2 s[{P_DBG}:{P_DBG + 1}], s[0:1], {KA_DBG}')
    A.I(f's_load_dwordx4 s[{P_Q}:{P_Q + 3}], s[0:1], {KA_WQ}')
    A.I(f's_load_dwordx4 s[{P_V}:{P_V + 3}], s[0:1], {KA_WV}')
    A.I(f's_load_dwordx2 s[{P_M0}:{P_M0 + 1}], s[0:1], {KA_MEM0}')
    A.I('v_lshrrev_b32 v1, 6, v0')
    A.I(f'v_and_b32 v{LANE}, 63, v0')
    A.I(f'v_readfirstlane_b32 s{S_WV}, v1')
    A.I(f's_getreg_b32 s{S_T0}, hwreg(HW_REG_XCC_ID)')
    A.I(f's_and_b32 s{S_T0}, s{S_T0}, 15')
    A.I('s_waitcnt lgkmcnt(0)')
    make_srd(A, S_WS, P_WS, WS_SIZE)
    make_srd(A, S_DBG, P_DBG, 256)
    A.I(f's_cmp_lg_u32 s{S_T0}, 0')
    A.I(f's_cbranch_scc1 {l_exit}')
    A.I(f's_mov_b32 s{S_SPIN}, 2000000')
    dbg = f's[{S_DBG}:{S_DBG + 3}]'
    A.I('v_mov_b32 v2, 1')
    A.I('v_mov_b32 v3, 0')
    A.I('v_cmp_eq_u32 vcc, 0, v0')
    A.I('s_and_saveexec_b64 s[30:31], vcc')
    lsk = A.newlabel('L_sk')
    A.I(f's_cbranch_execz {lsk}')
    A.I(f'buffer_atomic_add v2, v3, {dbg}, 0 offen sc0')
    A.I('s_waitcnt vmcnt(0)')
    A.I('ds_write_b32 v3, v2')
    A.I('s_waitcnt lgkmcnt(0)')
    A.label(lsk)
    A.I('s_mov_b64 exec, s[30:31]')
    A.I('s_barrier')
    A.I('ds_read_b32 v2, v3')
    A.I('s_waitcnt lgkmcnt(0)')
    A.I(f'v_readfirstlane_b32 s{S_H}, v2')
    A.I('s_barrier')
    A.I(f's_cmp_ge_u32 s{S_H}, 32')
    A.I(f's_cbranch_scc1 {l_exit}')
    A.I(f's_memrealtime s[{S_TS}:{S_TS + 1}]')
    setup_consts(A)
    st = STF
    init_exchange(A, P_M0, st)
    A.I('s_barrier')
    A.I('v_mov_b32 v2, 1')
    A.I('v_mov_b32 v3, 64')
    A.I('v_cmp_eq_u32 vcc, 0, v0')
    A.I('s_and_saveexec_b64 s[30:31], vcc')
    lsk = A.newlabel('L_sk')
    A.I(f's_cbranch_execz {lsk}')
    A.I(f'buffer_atomic_add v2, v3, {dbg}, 0 offen')
    A.label(lsk)
    A.I('s_mov_b64 exec, s[30:31]')
    A.I('s_waitcnt vmcnt(0)')
    stage_weights(A, [P_Q, P_K, P_V, P_O])
    A.I(f's_lshl_b32 s{S_KVN}, s{S_H}, 13')
    A.I(f's_add_u32 s{S_KVN}, s{S_KVN}, s{S_W11}')
    A.I(f's_add_u32 s{S_KVN}, s{S_KVN}, 0x{WS_KF:x}')
    A.I(f's_add_u32 s{S_KVM0}, s{S_W11}, {L_KV}')
    kv_dma(A)
    lw = A.newlabel('L_tw')
    A.I('v_mov_b32 v3, 64')
    A.label(lw)
    A.I(f'buffer_load_dword v2, v3, {dbg}, 0 offen sc1')
    A.I(f's_sub_u32 s{S_SPIN}, s{S_SPIN}, 1')
    A.I(f's_cbranch_scc1 {l_exit}')
    A.I('s_waitcnt vmcnt(0)')
    A.I(f'v_readfirstlane_b32 s{S_T0}, v2')
    A.I(f's_cmp_lt_u32 s{S_T0}, 32')
    A.I(f's_cbranch_scc1 {lw}')
    A.I('s_barrier')
    A.I(f's_memrealtime s[{S_TS + 2}:{S_TS + 3}]')
    A.I('s_waitcnt lgkmcnt(0)')
    l_done = A.newlabel('L_done')
    main_loop(A, st, l_done)
    A.label(l_done)
    A.forget_loads()
    A.I(f's_memrealtime s[{S_TS + 4}:{S_TS + 5}]')
    A.I('s_waitcnt lgkmcnt(0) vmcnt(0)')
    A.I(f's_lshl_b32 s{S_T0}, s{S_H}, 2')
    A.I(f's_add_u32 s{S_T0}, s{S_T0}, s{S_WV}')
    A.I(f's_lshl_b32 s{S_T0}, s{S_T0}, 5')
    A.I(f's_add_u32 s{S_T0}, s{S_T0}, 0x{WS_DBG:x}')
    for i in range(6):
        A.I(f'v_mov_b32 v{i}, s{S_TS + i}')
    A.I(f'v_mov_b32 v6, s{S_STEP}')
    A.I(f'v_mov_b32 v7, s{S_SPIN}')
    A.I('v_mov_b32 v8, 0')
    A.I(f'buffer_store_dwordx4 v[0:3], v8, s[{S_WS}:{S_WS + 3}], s{S_T0} offen')
    A.I(f'buffer_store_dwordx4 v[4:7], v8, s[{S_WS}:{S_WS + 3}], s{S_T0} offen offset:16')
    if STAMPS:
        A.I(f's_add_u32 s{S_T0}, s{S_T0}, s{S_T0}')
        A.I(f's_sub_u32 s{S_T0}, s{S_T0}, 0x{WS_DBG - 0x10000:x}')
        for i in range(12):
            A.I(f'v_mov_b32 v{12 + i}, s{88 + i}')
        for i in range(3):
            A.I(f'buffer_store_dwordx4 {v(12 + 4 * i, 4)}, v8, s[{S_WS}:{S_WS + 3}], s{S_T0} offen offset:{16 * i}')
    A.label(l_exit)
    A.I('s_endpgm')


if __name__ == '__main__':
    A = Asm()
    rec_kernel(A, 'rec_kernel')
    txt = header([('rec_kernel', 256, 256, L_TOTAL)]) + A.text() + '.section .rodata,"a"\n' + kernel_desc('rec_kernel', 512, 256)
    open('work/' + OUT, 'w').write(txt)
    print('ok', len(txt))
```

```python
from common import *
import math, struct, os

def f32(x):
    return '0x%08x' % struct.unpack('<I', struct.pack('<f', x))[0]

S_WS, S_W, S_X = 4, 8, 12
S_H, S_WV, S_G = 32, 33, 34
S_T0, S_T1, S_T2, S_T3 = 48, 49, 50, 51


def prologue(A, ptrs, nwg, l_exit):
    A.I(f's_cmp_ge_u32 s2, {nwg}')
    A.I(f's_cbranch_scc1 {l_exit}')
    for sg, off in ptrs.items():
        A.I(f's_load_dwordx2 s[{sg}:{sg + 1}], s[0:1], {off}')
    A.I('v_lshrrev_b32 v1, 6, v0')
    A.I('v_and_b32 v0, 63, v0')
    A.I(f'v_readfirstlane_b32 s{S_WV}, v1')
    A.I('s_waitcnt lgkmcnt(0)')


def xreduce(A, op, r, t, rows16=True):
    for sw in ('v_permlane32_swap_b32', 'v_permlane16_swap_b32'):
        A.I(f'v_mov_b32 v{t}, v{r}')
        A.I(f'{sw} v{r}, v{t}')
        A.I(f'{op} v{r}, v{r}, v{t}')


LN_X, LN_F, LN_T = 32, 96, 24


def ln1_load(A, s_task, srd_x, s_off):
    X, T_ = LN_X, LN_T
    A.I(f'v_and_b32 v{T_}, 15, v0')
    A.I(f'v_lshrrev_b32 v{T_ + 1}, 4, v0')
    A.I(f'v_lshlrev_b32 v{T_}, 10, v{T_}')
    A.I(f'v_lshl_add_u32 v{T_}, v{T_ + 1}, 4, v{T_}')
    A.I(f's_lshl_b32 s{s_off}, s{s_task}, 14')
    for ks in range(16):
        A.I(f'buffer_load_dwordx4 {v(X + 4 * ks, 4)}, v{T_}, {srd_x}, s{s_off} offen offset:{64 * ks}')


def ln1_compute(A, srd_ws, s_off, st='', younger=0):
    X, F = LN_X, LN_F
    a0, a1, a2, ad = LN_T + 1, LN_T + 2, LN_T + 3, LN_T
    A.I(f'v_mov_b32 v{a0}, 0')
    A.I(f'v_mov_b32 v{a1}, 0')
    A.I(f's_waitcnt vmcnt({younger})')
    for ks in range(16):
        for i in range(4):
            r = X + 4 * ks + i
            f = F + 8 * ks + 2 * i
            A.I(f'v_lshlrev_b32 v{f}, 16, v{r}')
            A.I(f'v_and_b32 v{f + 1}, 0xffff0000, v{r}')
            A.I(f'v_add_f32 v{a0}, v{a0}, v{f}')
            A.I(f'v_add_f32 v{a1}, v{a1}, v{f + 1}')
    A.I(f'v_add_f32 v{a0}, v{a0}, v{a1}')
    xreduce(A, 'v_add_f32', a0, a1)
    A.I(f'v_mul_f32 v{a0}, {f32(1 / 512)}, v{a0}')
    A.I(f'v_mov_b32 v{a1}, 0')
    A.I(f'v_mov_b32 v{a2}, 0')
    for i in range(0, 128, 2):
        A.I(f'v_sub_f32 v{F + i}, v{F + i}, v{a0}')
        A.I(f'v_sub_f32 v{F + i + 1}, v{F + i + 1}, v{a0}')
        A.I(f'v_fmac_f32 v{a1}, v{F + i}, v{F + i}')
        A.I(f'v_fmac_f32 v{a2}, v{F + i + 1}, v{F + i + 1}')
    A.I(f'v_add_f32 v{a1}, v{a1}, v{a2}')
    xreduce(A, 'v_add_f32', a1, a2)
    A.I(f'v_mov_b32 v{a2}, {f32(1e-5)}')
    A.I(f'v_fmac_f32 v{a2}, {f32(1 / 512)}, v{a1}')
    A.I(f'v_rsq_f32 v{a2}, v{a2}')
    A.I(f'v_lshlrev_b32 v{ad}, 4, v0')
    A.I(f's_add_u32 s{s_off}, s{s_off}, 0x{WS_XN:x}')
    for ks in range(16):
        for i in range(4):
            f = F + 8 * ks + 2 * i
            A.I(f'v_mul_f32 v{f}, v{f}, v{a2}')
            A.I(f'v_mul_f32 v{f + 1}, v{f + 1}, v{a2}')
            A.I(f'v_cvt_pk_bf16_f32 v{X + 4 * ks + i}, v{f}, v{f + 1}')
        if ks and ks % 4 == 0:
            A.I(f's_add_u32 s{s_off}, s{s_off}, 4096')
        A.I(f'buffer_store_dwordx4 {v(X + 4 * ks, 4)}, v{ad}, {srd_ws}, s{s_off} offen offset:{1024 * (ks & 3)} {st}')


def ln1_body(A, s_task, srd_x, srd_ws, st=''):
    ln1_load(A, s_task, srd_x, 47)
    ln1_compute(A, srd_ws, 47, st)


def ln1_kernel(A, name):
    kernel_begin(A, name)
    le = A.newlabel('L_exit')
    prologue(A, {16: KA_WS, 18: KA_X}, 32, le)
    make_srd(A, S_WS, 16, WS_SIZE)
    make_srd(A, S_X, 18, 2048 * 1024)
    A.I(f's_lshl_b32 s{S_G}, s2, 2')
    A.I(f's_add_u32 s{S_G}, s{S_G}, s{S_WV}')
    ln1_body(A, S_G, f's[{S_X}:{S_X + 3}]', f's[{S_WS}:{S_WS + 3}]')
    A.label(le)
    A.I('s_endpgm')


def wt(mat, nb, ks):
    f = (mat * 2 + nb) * 16 + ks
    return (256 + 4 * f) if f < 64 else (128 + 4 * (f - 64))


Q_BUF0, Q_BUF1 = 0, 65536


def qkv_stage(A, ptrs, order=(1, 2, 0), hook=None, hook_sc=None):
    A.I('v_and_b32 v3, 15, v0')
    A.I('v_lshrrev_b32 v2, 4, v0')
    A.I(f's_lshr_b32 s{S_T0}, s{S_WV}, 1')
    A.I(f's_lshl_b32 s{S_T0}, s{S_T0}, 2')
    A.I(f'v_or_b32 v6, s{S_T0}, v2')
    A.I('v_lshlrev_b32 v6, 1, v6')
    A.I('v_xor_b32 v6, v6, v3')
    A.I('v_lshlrev_b32 v6, 4, v6')
    A.I('v_lshl_add_u32 v4, v2, 13, v6')
    A.I('v_lshrrev_b32 v6, 2, v3')
    A.I('v_and_b32 v7, 3, v3')
    A.I('v_lshl_add_u32 v8, v2, 3, v6')
    A.I('v_and_b32 v9, 1, v2')
    A.I('v_lshl_add_u32 v9, v9, 2, v6')
    A.I(f's_lshl_b32 s{S_T0}, s{S_WV}, 1')
    A.I(f'v_xor_b32 v9, s{S_T0}, v9')
    A.I('v_lshlrev_b32 v10, 8, v8')
    A.I('v_lshl_add_u32 v10, v9, 5, v10')
    A.I('v_lshl_add_u32 v10, v7, 3, v10')
    A.I('v_xor_b32 v11, 32, v10')
    A.I(f'v_add_u32 v12, {Q_BUF1}, v10')
    A.I(f'v_add_u32 v13, {Q_BUF1}, v11')
    VT = {(0, 0): 10, (1, 0): 11, (0, 1): 12, (1, 1): 13}
    chunks = [(m, hh) for m in order for hh in range(2)]

    def dma(sc):
        mat, hh = chunks[sc]
        buf = Q_BUF1 if sc & 1 else Q_BUF0
        make_srd(A, S_W, ptrs[mat], 512 * 8192)
        A.I(f's_lshl_b32 s{S_T0}, s{S_WV}, 15')
        A.I(f's_lshl_b32 s{S_T1}, s{S_H}, 8')
        A.I(f's_add_u32 s{S_T0}, s{S_T0}, s{S_T1}')
        A.I(f's_add_u32 s{S_T0}, s{S_T0}, {hh << 21}')
        A.I(f's_lshl_b32 s{S_T1}, s{S_WV}, 10')
        A.I(f's_add_u32 s{S_T1}, s{S_T1}, {buf}')
        for i in range(16):
            A.I(f's_mov_b32 m0, s{S_T1}')
            A.I(f'buffer_load_dwordx4 v4, s[{S_W}:{S_W + 3}], s{S_T0} offen lds')
            if i < 15:
                A.I(f's_add_u32 s{S_T0}, s{S_T0}, {4 * 32768}')
                A.I(f's_add_u32 s{S_T1}, s{S_T1}, 4096')

    dma(0)
    dma(1)
    if hook:
        hook()
    n = len(chunks)
    for sc in range(n):
        mat, hh = chunks[sc]
        A.I(f's_waitcnt vmcnt({16 if sc < n - 1 else 0})')
        A.I('s_barrier')
        if hook_sc:
            hook_sc(sc)
        cnt = 0
        for nb in range(2):
            for k8 in range(8):
                for x in range(2):
                    if cnt >= 12:
                        A.I('s_waitcnt lgkmcnt(8)')
                        cnt = 8
                    A.I(f'ds_read_b64_tr_b16 {u(wt(mat, nb, 8 * hh + k8) + 2 * x, 2)}, v{VT[(nb, sc & 1)]} offset:{(32 * k8 + 4 * x) * 256}')
                    cnt += 1
        A.I('s_waitcnt lgkmcnt(0)')
        A.I('s_barrier')
        if sc + 2 < n:
            dma(sc + 2)


def qkv_segments(A, stride, st='', after_seg=None, mid_seg=None, first=None, end='64'):
    ws = f's[{S_WS}:{S_WS + 3}]'
    ACC, XB = 8, 56
    NB = 8
    S_SEG, S_XO, S_XN, S_OO = 36, 37, 38, 39
    A.I('v_lshlrev_b32 v1, 4, v0')
    A.I(f's_mov_b32 s{S_SEG}, s{S_G if first is None else first}')
    A.I(f's_lshl_b32 s{S_XO}, s{S_SEG}, 15')
    A.I(f's_add_u32 s{S_XO}, s{S_XO}, 0x{WS_XN:x}')

    def acc(mat, nb, tb):
        return ACC + ((mat * 2 + nb) * 2 + tb) * 4

    def xload(ks, base):
        b = XB + 8 * (ks % NB)
        l = []
        for tb in range(2):
            off = tb * 16384 + ks * 1024
            l.append(f's_add_u32 s{S_T0 + tb}, s{base}, {off & ~4095}\n'
                     f'buffer_load_dwordx4 {v(b + 4 * tb, 4)}, v1, {ws}, s{S_T0 + tb} offen offset:{off & 4095}')
        return l

    for ks in range(NB - 1):
        for x in xload(ks, S_XO):
            A.I(x)
    L = A.newlabel('L_seg')
    A.label(L)
    A.check = False
    A.I(f's_add_u32 s{S_T2}, s{S_SEG}, {stride}')
    A.I(f's_cmp_lt_u32 s{S_T2}, {end}')
    A.I(f's_cselect_b32 s{S_T2}, s{S_T2}, s{S_SEG}')
    A.I(f's_lshl_b32 s{S_XN}, s{S_T2}, 15')
    A.I(f's_add_u32 s{S_XN}, s{S_XN}, 0x{WS_XN:x}')
    for ks in range(16):
        nk = ks + NB - 1
        ld = xload(nk, S_XO) if nk < 16 else xload(nk - 16, S_XN)
        A.I(f's_waitcnt vmcnt({2 * (NB - 2)})')
        if ks == 8 and mid_seg:
            mid_seg()
        b = XB + 8 * (ks % NB)
        i = 0
        for mat in (1, 2, 0):
            for nb in range(2):
                for tb in range(2):
                    d = acc(mat, nb, tb)
                    c = '0' if ks == 0 else v(d, 4)
                    w_ = u(wt(mat, nb, ks), 4)
                    x_ = v(b + 4 * tb, 4)
                    if mat == 2:
                        A.I(f'v_mfma_f32_16x16x32_bf16 {v(d, 4)}, {x_}, {w_}, {c}')
                    else:
                        A.I(f'v_mfma_f32_16x16x32_bf16 {v(d, 4)}, {w_}, {x_}, {c}')
                    if i in (1, 3):
                        A.I(ld[i >> 1])
                    i += 1
    A.I(f's_lshl_b32 s{S_OO}, s{S_SEG}, 5')
    A.I(f's_add_u32 s{S_OO}, s{S_OO}, s{S_H}')
    A.I(f's_lshl_b32 s{S_OO}, s{S_OO}, 13')
    A.I(f's_lshl_b32 s{S_T2}, s{S_WV}, 10')
    A.I(f's_add_u32 s{S_T3}, s{S_OO}, s{S_T2}')
    for mat, base in ((1, WS_KF), (2, WS_VF), (0, WS_QF)):
        if mat == 2:
            A.I(f's_add_u32 s{S_T0}, s{S_T3}, s{S_T2}')
            A.I(f's_add_u32 s{S_T0}, s{S_T0}, 0x{base:x}')
            for nb in range(2):
                a_, b_ = acc(2, nb, 0), acc(2, nb, 1)
                A.I(f'v_cvt_pk_bf16_f32 v{a_}, v{a_}, v{a_ + 1}')
                A.I(f'v_cvt_pk_bf16_f32 v{a_ + 1}, v{a_ + 2}, v{a_ + 3}')
                A.I(f'v_cvt_pk_bf16_f32 v{a_ + 2}, v{b_}, v{b_ + 1}')
                A.I(f'v_cvt_pk_bf16_f32 v{a_ + 3}, v{b_ + 2}, v{b_ + 3}')
                A.I(f'buffer_store_dwordx4 {v(a_, 4)}, v1, {ws}, s{S_T0} offen offset:{1024 * nb} {st}')
        else:
            for tb in range(2):
                A.I(f's_add_u32 s{S_T0}, s{S_T3}, 0x{base + 4096 * tb:x}')
                a_, b_ = acc(mat, 0, tb), acc(mat, 1, tb)
                for r in range(4):
                    A.I(f'v_cvt_pk_bf16_f32 v{a_ + r}, v{a_ + r}, v{b_ + r}')
                A.I(f'buffer_store_dwordx4 {v(a_, 4)}, v1, {ws}, s{S_T0} offen {st}')
    if after_seg:
        after_seg()
    A.I(f's_add_u32 s{S_SEG}, s{S_SEG}, {stride}')
    A.I(f's_mov_b32 s{S_XO}, s{S_XN}')
    A.I(f's_cmp_lt_u32 s{S_SEG}, {end}')
    A.br(f's_cbranch_scc1 {L}')
    A.check = True
    A.forget_loads()


def qkv_kernel(A, name):
    kernel_begin(A, name)
    le = A.newlabel('L_exit')
    prologue(A, {16: KA_WS, 20: KA_WQ, 22: KA_WK, 24: KA_WV}, 256, le)
    make_srd(A, S_WS, 16, WS_SIZE)
    A.I(f's_lshr_b32 s{S_H}, s2, 3')
    A.I(f's_and_b32 s{S_G}, s2, 7')
    qkv_stage(A, [20, 22, 24])
    qkv_segments(A, 8)
    A.label(le)
    A.I('s_endpgm')


def att_stage(A, p_wo):
    A.I('v_and_b32 v3, 15, v0')
    A.I('v_lshrrev_b32 v2, 4, v0')
    A.I('v_lshlrev_b32 v1, 4, v0')
    make_srd(A, S_W, p_wo, 4096 * 1024)
    A.I(f's_lshl_b32 s{S_T0}, s{S_H}, 17')
    A.I(f's_lshl_b32 s{S_T1}, s{S_WV}, 13')
    A.I(f's_add_u32 s{S_T0}, s{S_T0}, s{S_T1}')
    A.I(f's_lshl_b32 s{S_T1}, s{S_WV}, 10')
    for f in range(8):
        for a_ in range(4):
            A.I(f's_add_u32 m0, s{S_T1}, {(16 * f + 4 * a_) * 1024 + 32 * f}')
            A.I(f's_add_u32 s{S_T3}, s{S_T0}, {(f + 32 * a_) * 1024}')
            A.I(f'buffer_load_dwordx4 v1, s[{S_W}:{S_W + 3}], s{S_T3} offen lds')
    A.I('v_lshrrev_b32 v6, 2, v3')
    A.I('v_and_b32 v7, 3, v3')
    A.I('v_and_b32 v8, 1, v2')
    A.I('v_lshl_add_u32 v8, v8, 2, v6')
    A.I('v_lshrrev_b32 v9, 1, v2')
    A.I('v_lshlrev_b32 v10, 14, v8')
    A.I('v_lshl_add_u32 v10, v9, 10, v10')
    A.I('v_lshl_add_u32 v10, v8, 5, v10')
    A.I('v_lshl_add_u32 v10, v7, 3, v10')
    A.I(f's_lshr_b32 s{S_T0}, s{S_WV}, 1')
    A.I(f's_lshl_b32 s{S_T0}, s{S_T0}, 9')
    A.I(f'v_add_u32 v10, s{S_T0}, v10')
    A.I('s_waitcnt vmcnt(0)')
    A.I('s_barrier')
    cnt = 0
    for mb in range(16):
        for ks in range(4):
            for x in range(2):
                if cnt >= 12:
                    A.I('s_waitcnt lgkmcnt(8)')
                    cnt = 8
                A.I(f'ds_read_b64_tr_b16 {a((mb * 4 + ks) * 4 + 2 * x, 2)}, v10 offset:{(4 * ks + 2 * x) * 1024 + 32 * mb}')
                cnt += 1
    A.I('s_waitcnt lgkmcnt(0)')
    A.I('s_barrier')


S_MASK = 64
S_CC, S_ONE = 52, 54


def att_consts(A):
    A.I('v_and_b32 v3, 15, v0')
    A.I('v_lshrrev_b32 v2, 4, v0')
    A.I('v_lshlrev_b32 v1, 4, v0')
    A.I(f's_and_b32 s{S_T0}, s{S_WV}, 1')
    A.I(f's_lshl_b32 s{S_T0}, s{S_T0}, 4')
    A.I(f'v_add_u32 v4, s{S_T0}, v3')
    A.I('v_lshlrev_b32 v5, 2, v2')
    A.I('v_sub_u32 v4, v4, v5')
    for kb in range(2):
        for r in range(4):
            m = S_MASK + 2 * (4 * kb + r)
            A.I(f'v_cmp_le_i32 s[{m}:{m + 1}], {16 * kb + r}, v4')
    c = (128 ** -0.5) * math.log2(math.e)
    A.I(f's_mov_b32 s{S_CC}, {f32(c)}')
    A.I(f's_mov_b32 s{S_CC + 1}, {f32(c)}')
    A.I('v_lshlrev_b32 v5, 15, v3')
    A.I('v_lshl_add_u32 v3, v2, 4, v5')
    A.I('v_lshlrev_b32 v2, 3, v0')
    A.I(f'v_mov_b32 v4, {f32(-1e9 * 128 ** 0.5)}')
    for i in range(4):
        A.I(f'v_mov_b32 v{8 + i}, 0x3f803f80')


AT_Q, AT_K, AT_V, AT_KM, AT_VM = 16, 32, 64, 96, 112
AT_S, AT_P, AT_PM, AT_L = 192, 204, 208, 212
AT_O, AT_OB, AT_ACC = 144, 176, 192


def att_load_qkv(A, s_seg, ld=''):
    ws = f's[{S_WS}:{S_WS + 3}]'
    A.I(f's_lshl_b32 s{S_T0}, s{s_seg}, 5')
    A.I(f's_add_u32 s{S_T0}, s{S_T0}, s{S_H}')
    A.I(f's_lshl_b32 s{S_T0}, s{S_T0}, 13')
    A.I(f's_and_b32 s{S_T1}, s{S_WV}, 1')
    A.I(f's_lshl_b32 s{S_T1}, s{S_T1}, 12')
    A.I(f's_add_u32 s{S_T1}, s{S_T1}, s{S_T0}')
    A.I(f's_add_u32 s{S_T1}, s{S_T1}, 0x{WS_QF:x}')
    for ks in range(4):
        A.I(f'buffer_load_dwordx4 {v(AT_Q + 4 * ks, 4)}, v1, {ws}, s{S_T1} offen offset:{1024 * ks} {ld}')
    for base, reg in ((WS_KF, AT_K), (WS_VF, AT_V)):
        for hf in range(2):
            A.I(f's_add_u32 s{S_T1}, s{S_T0}, 0x{base + 4096 * hf:x}')
            for i in range(4):
                A.I(f'buffer_load_dwordx4 {v(reg + 16 * hf + 4 * i, 4)}, v1, {ws}, s{S_T1} offen offset:{1024 * i} {ld}')


def att_load_mem(A, s_seg, ld=''):
    ws = f's[{S_WS}:{S_WS + 3}]'
    A.I(f's_lshl_b32 s{S_T0}, s{s_seg}, 5')
    A.I(f's_add_u32 s{S_T0}, s{S_T0}, s{S_H}')
    A.I(f's_lshl_b32 s{S_T1}, s{S_T0}, 12')
    A.I(f's_add_u32 s{S_T1}, s{S_T1}, 0x{WS_KM:x}')
    for ks in range(4):
        A.I(f'buffer_load_dwordx4 {v(AT_KM + 4 * ks, 4)}, v1, {ws}, s{S_T1} offen offset:{1024 * ks} {ld}')
    A.I(f's_lshl_b32 s{S_T1}, s{S_T0}, 11')
    A.I(f's_add_u32 s{S_T1}, s{S_T1}, 0x{WS_VM:x}')
    for w_ in range(4):
        A.I(f'buffer_load_dwordx2 {v(AT_VM + 2 * w_, 2)}, v2, {ws}, s{S_T1} offen offset:{512 * w_} {ld}')


def att_compute1(A):
    X0, X1, M = AT_S, AT_S + 4, AT_S + 8
    ONES = 8
    mx, tm = 6, 7
    for ks in range(4):
        for (d, k_) in ((X0, AT_K + 4 * ks), (X1, AT_K + 16 + 4 * ks), (M, AT_KM + 4 * ks)):
            c = '0' if ks == 0 else v(d, 4)
            A.I(f'v_mfma_f32_16x16x32_bf16 {v(d, 4)}, {v(k_, 4)}, {v(AT_Q + 4 * ks, 4)}, {c}')
    A.I(f'v_mov_b32 v{AT_PM + 1}, 0')
    A.I(f'v_mov_b32 v{AT_PM + 2}, 0')
    for i in range(8):
        m = S_MASK + 2 * i
        A.I(f'v_cndmask_b32 v{X0 + i}, v4, v{X0 + i}, s[{m}:{m + 1}]')
    A.I(f'v_max3_f32 v{mx}, v{X0}, v{X0 + 1}, v{X0 + 2}')
    A.I(f'v_max3_f32 v{tm}, v{X0 + 3}, v{X1}, v{X1 + 1}')
    A.I(f'v_max3_f32 v{mx}, v{mx}, v{X1 + 2}, v{X1 + 3}')
    A.I(f'v_max3_f32 v{tm}, v{tm}, v{M}, v{M + 1}')
    A.I(f'v_max_f32 v{mx}, v{mx}, v{tm}')
    xreduce(A, 'v_max_f32', mx, tm)
    A.I(f'v_mul_f32_e64 v{mx}, -s{S_CC}, v{mx}')
    for r in (M, X0, X0 + 2, X1, X1 + 2):
        A.I(f'v_pk_fma_f32 {v(r, 2)}, {v(r, 2)}, s[{S_CC}:{S_CC + 1}], {v(mx, 2)} op_sel:[0,0,0] op_sel_hi:[1,1,0]')
    A.I(f'v_exp_f32 v{M}, v{M}')
    A.I(f'v_exp_f32 v{M + 1}, v{M + 1}')
    for i in range(8):
        A.I(f'v_exp_f32 v{X0 + i}, v{X0 + i}')
    A.I(f'v_cvt_pk_bf16_f32 v{AT_PM}, v{M}, v{M + 1}')
    A.I(f'v_cvt_pk_bf16_f32 v{AT_PM + 3}, v{M}, v{M + 1}')
    for i in range(4):
        A.I(f'v_cvt_pk_bf16_f32 v{AT_P + i}, v{X0 + 2 * i}, v{X0 + 2 * i + 1}')
    A.I(f'v_mfma_f32_16x16x16_bf16 {v(AT_L, 4)}, {v(ONES, 2)}, {v(AT_PM, 2)}, 0')
    for mb in range(8):
        A.I(f'v_mfma_f32_16x16x16_bf16 {v(AT_O + 4 * mb, 4)}, {v(AT_VM + 2 * (mb >> 1), 2)}, {v(AT_PM + 2 * (mb & 1), 2)}, 0')
    A.I(f'v_mfma_f32_16x16x32_bf16 {v(AT_L, 4)}, {v(ONES, 4)}, {v(AT_P, 4)}, {v(AT_L, 4)}')
    for mb in range(8):
        A.I(f'v_mfma_f32_16x16x32_bf16 {v(AT_O + 4 * mb, 4)}, {v(AT_V + 4 * mb, 4)}, {v(AT_P, 4)}, {v(AT_O + 4 * mb, 4)}')
    A.I(f'v_rcp_f32 v{mx}, v{AT_L}')
    for mb in range(8):
        o = AT_O + 4 * mb
        for r in range(4):
            A.I(f'v_mul_f32 v{o + r}, v{o + r}, v{mx}')
        A.I(f'v_cvt_pk_bf16_f32 v{AT_OB + 2 * mb}, v{o}, v{o + 1}')
        A.I(f'v_cvt_pk_bf16_f32 v{AT_OB + 2 * mb + 1}, v{o + 2}, v{o + 3}')


def att_compute2(A, s_seg, st=''):
    ws = f's[{S_WS}:{S_WS + 3}]'
    S_OO = 39
    A.I(f's_lshl_b32 s{S_OO}, s{s_seg}, 1')
    A.I(f's_and_b32 s{S_T2}, s{S_WV}, 1')
    A.I(f's_add_u32 s{S_OO}, s{S_OO}, s{S_T2}')
    A.I(f's_lshl_b32 s{S_OO}, s{S_OO}, 19')
    A.I(f's_lshl_b32 s{S_T2}, s{S_H}, 10')
    A.I(f's_add_u32 s{S_OO}, s{S_OO}, s{S_T2}')
    A.I(f's_lshr_b32 s{S_T2}, s{S_WV}, 1')
    A.I(f's_lshl_b32 s{S_T2}, s{S_T2}, 9')
    A.I(f's_add_u32 s{S_OO}, s{S_OO}, s{S_T2}')
    A.I(f's_add_u32 s{S_OO}, s{S_OO}, 0x{WS_OP:x}')

    def post(c):
        a_, b_ = AT_ACC + 8 * c, AT_ACC + 8 * c + 4
        return [f'v_cvt_pk_bf16_f32 v{a_}, v{a_}, v{a_ + 1}',
                f'v_cvt_pk_bf16_f32 v{a_ + 1}, v{a_ + 2}, v{a_ + 3}',
                f'v_cvt_pk_bf16_f32 v{a_ + 2}, v{b_}, v{b_ + 1}',
                f'v_cvt_pk_bf16_f32 v{a_ + 3}, v{b_ + 2}, v{b_ + 3}',
                f'buffer_store_dwordx4 {v(a_, 4)}, v3, {ws}, s{S_OO} offen offset:{64 * c} {st}']

    pend = []
    for c in range(8):
        i = 0
        for ks in range(4):
            for bb in range(2):
                mb = 2 * c + bb
                d = AT_ACC + 4 * mb
                cc = '0' if ks == 0 else v(d, 4)
                A.I(f'v_mfma_f32_16x16x32_bf16 {v(d, 4)}, {a((mb * 4 + ks) * 4, 4)}, {v(AT_OB + 4 * ks, 4)}, {cc}')
                if i >= 3 and pend:
                    A.I(pend.pop(0))
                i += 1
        pend = post(c)
    for x in pend:
        A.I(x)


def att_kernel(A, name):
    kernel_begin(A, name)
    le = A.newlabel('L_exit')
    prologue(A, {16: KA_WS, 26: KA_WO}, 256, le)
    make_srd(A, S_WS, 16, WS_SIZE)
    A.I(f's_lshr_b32 s{S_H}, s2, 3')
    A.I(f's_and_b32 s{S_G}, s2, 7')
    att_stage(A, 26)
    att_consts(A)
    S_SEG, S_NX = 36, 37
    A.I(f's_mov_b32 s{S_SEG}, s{S_G}')
    att_load_qkv(A, S_SEG)
    att_load_mem(A, S_SEG)
    L = A.newlabel('L_att')
    A.label(L)
    A.I('s_waitcnt vmcnt(0)')
    att_compute1(A)
    A.I(f's_add_u32 s{S_NX}, s{S_SEG}, 8')
    A.I(f's_cmp_lt_u32 s{S_NX}, 64')
    A.I(f's_cselect_b32 s{S_T3}, s{S_NX}, s{S_SEG}')
    A.I(f's_mov_b32 s40, s{S_T3}')
    att_load_qkv(A, 40)
    att_load_mem(A, 40)
    att_compute2(A, S_SEG)
    A.I(f's_mov_b32 s{S_SEG}, s{S_NX}')
    A.I(f's_cmp_lt_u32 s{S_SEG}, 64')
    A.br(f's_cbranch_scc1 {L}')
    A.forget_loads()
    A.label(le)
    A.I('s_endpgm')


def wave_sum(A, r, t):
    for k in (8, 4, 2, 1):
        A.I(f'v_add_f32_dpp v{r}, v{r}, v{r} row_ror:{k} row_mask:0xf bank_mask:0xf')
    xreduce(A, 'v_add_f32', r, t)


def ln_regs(A, Z, t0, t1):
    A.I(f'v_add_f32 v{t0}, v{Z}, v{Z + 1}')
    for i in range(2, 8):
        A.I(f'v_add_f32 v{t0}, v{t0}, v{Z + i}')
    wave_sum(A, t0, t1)
    A.I(f'v_mul_f32 v{t0}, {f32(1 / 512)}, v{t0}')
    for i in range(8):
        A.I(f'v_sub_f32 v{Z + i}, v{Z + i}, v{t0}')
    A.I(f'v_mul_f32 v{t0}, v{Z}, v{Z}')
    for i in range(1, 8):
        A.I(f'v_fmac_f32 v{t0}, v{Z + i}, v{Z + i}')
    wave_sum(A, t0, t1)
    A.I(f'v_mov_b32 v{t1}, {f32(1e-5)}')
    A.I(f'v_fmac_f32 v{t1}, {f32(1 / 512)}, v{t0}')
    A.I(f'v_rsq_f32 v{t1}, v{t1}')
    for i in range(8):
        A.I(f'v_mul_f32 v{Z + i}, v{Z + i}, v{t1}')


def round_bf16(A, Z, Pk):
    for i in range(4):
        A.I(f'v_cvt_pk_bf16_f32 v{Pk + i}, v{Z + 2 * i}, v{Z + 2 * i + 1}')
    for i in range(4):
        A.I(f'v_lshlrev_b32 v{Z + 2 * i}, 16, v{Pk + i}')
        A.I(f'v_and_b32 v{Z + 2 * i + 1}, 0xffff0000, v{Pk + i}')


def red_row(A, s_row, srd_x, ld='', st='', B=32):
    ws = f's[{S_WS}:{S_WS + 3}]'
    Z, Pk, XR = 8, 16, 20
    A.I('v_lshlrev_b32 v1, 4, v0')
    A.I(f's_lshl_b32 s{S_T0}, s{s_row}, 15')
    A.I(f's_add_u32 s{S_T0}, s{S_T0}, 0x{WS_OP:x}')
    for hh in range(32):
        if hh and hh % 4 == 0:
            A.I(f's_add_u32 s{S_T0}, s{S_T0}, 4096')
        A.I(f'buffer_load_dwordx4 {v(B + 4 * hh, 4)}, v1, {ws}, s{S_T0} offen offset:{1024 * (hh & 3)} {ld}')
    A.I('v_lshrrev_b32 v2, 2, v0')
    A.I('v_lshlrev_b32 v2, 6, v2')
    A.I('v_and_b32 v3, 3, v0')
    A.I('v_lshl_add_u32 v2, v3, 3, v2')
    A.I(f's_lshl_b32 s{S_T1}, s{s_row}, 10')
    A.I(f'buffer_load_dwordx2 {v(XR, 2)}, v2, {srd_x}, s{S_T1} offen')
    A.I(f'buffer_load_dwordx2 {v(XR + 2, 2)}, v2, {srd_x}, s{S_T1} offen offset:32')
    for i in range(8):
        A.I(f'v_mov_b32 v{Z + i}, 0')
    for hh in range(32):
        A.I(f's_waitcnt vmcnt({33 - hh})')
        for i in range(4):
            r = B + 4 * hh + i
            A.I(f'v_lshlrev_b32 v4, 16, v{r}')
            A.I(f'v_and_b32 v5, 0xffff0000, v{r}')
            A.I(f'v_add_f32 v{Z + 2 * i}, v{Z + 2 * i}, v4')
            A.I(f'v_add_f32 v{Z + 2 * i + 1}, v{Z + 2 * i + 1}, v5')
    round_bf16(A, Z, Pk)
    A.I('s_waitcnt vmcnt(0)')
    for i in range(4):
        A.I(f'v_lshlrev_b32 v4, 16, v{XR + i}')
        A.I(f'v_and_b32 v5, 0xffff0000, v{XR + i}')
        A.I(f'v_add_f32 v{Z + 2 * i}, v{Z + 2 * i}, v4')
        A.I(f'v_add_f32 v{Z + 2 * i + 1}, v{Z + 2 * i + 1}, v5')
    round_bf16(A, Z, Pk)
    A.I(f's_add_u32 s{S_T0}, s{S_T1}, 0x{WS_H:x}')
    A.I(f'buffer_store_dwordx2 {v(Pk, 2)}, v2, {ws}, s{S_T0} offen {st}')
    A.I(f'buffer_store_dwordx2 {v(Pk + 2, 2)}, v2, {ws}, s{S_T0} offen offset:32 {st}')
    ln_regs(A, Z, 4, 5)
    round_bf16(A, Z, XR)
    ln_regs(A, Z, 4, 5)
    for i in range(4):
        A.I(f'v_cvt_pk_bf16_f32 v{XR + i}, v{Z + 2 * i}, v{Z + 2 * i + 1}')
    A.I(f's_add_u32 s{S_T0}, s{S_T1}, 0x{WS_HP:x}')
    A.I(f'buffer_store_dwordx2 {v(XR, 2)}, v2, {ws}, s{S_T0} offen {st}')
    A.I(f'buffer_store_dwordx2 {v(XR + 2, 2)}, v2, {ws}, s{S_T0} offen offset:32 {st}')


def red_kernel(A, name):
    kernel_begin(A, name)
    le = A.newlabel('L_exit')
    prologue(A, {16: KA_WS, 18: KA_X}, 512, le)
    make_srd(A, S_WS, 16, WS_SIZE)
    make_srd(A, S_X, 18, 2048 * 1024)
    A.I(f's_lshl_b32 s{S_G}, s2, 2')
    A.I(f's_add_u32 s{S_G}, s{S_G}, s{S_WV}')
    red_row(A, S_G, f's[{S_X}:{S_X + 3}]')
    A.label(le)
    A.I('s_endpgm')


def g1_kernel(A, name):
    kernel_begin(A, name)
    le = A.newlabel('L_exit')
    prologue(A, {16: KA_WS, 18: KA_W1, 20: KA_B1}, 224, le)
    make_srd(A, S_WS, 16, WS_SIZE)
    make_srd(A, S_W, 18, 2048 * 3584)
    make_srd(A, S_X, 20, 3584)
    ws, w1, b1 = f's[{S_WS}:{S_WS + 3}]', f's[{S_W}:{S_W + 3}]', f's[{S_X}:{S_X + 3}]'
    S_FT, S_DT, S_AO, S_BO, S_LB = 36, 37, 38, 39, 40
    A.I(f's_and_b32 s{S_DT}, s2, 7')
    A.I(f's_lshr_b32 s{S_FT}, s2, 3')
    A.I('v_lshrrev_b32 v1, 3, v0')
    A.I('v_and_b32 v2, 7, v0')
    A.I('v_bfe_u32 v3, v0, 4, 1')
    A.I(f's_and_b32 s{S_T0}, s{S_WV}, 1')
    A.I(f's_lshl_b32 s{S_T0}, s{S_T0}, 1')
    A.I(f'v_or_b32 v3, s{S_T0}, v3')
    A.I('v_lshlrev_b32 v3, 1, v3')
    A.I('v_xor_b32 v2, v2, v3')
    A.I('v_lshlrev_b32 v2, 4, v2')
    A.I('v_mul_u32_u24 v4, 3584, v1')
    A.I('v_add_u32 v4, v4, v2')
    A.I('v_lshl_add_u32 v5, v1, 10, v2')
    A.I(f's_mul_i32 s{S_AO}, s{S_WV}, {8 * 3584}')
    A.I(f's_lshl_b32 s{S_T0}, s{S_FT}, 7')
    A.I(f's_add_u32 s{S_AO}, s{S_AO}, s{S_T0}')
    A.I(f's_lshl_b32 s{S_BO}, s{S_WV}, 13')
    A.I(f's_lshl_b32 s{S_T0}, s{S_DT}, 7')
    A.I(f's_add_u32 s{S_BO}, s{S_BO}, s{S_T0}')
    A.I(f's_add_u32 s{S_BO}, s{S_BO}, 0x{WS_HP:x}')
    A.I(f's_lshl_b32 s{S_LB}, s{S_WV}, 10')
    A.I('v_and_b32 v1, 15, v0')
    A.I('v_lshrrev_b32 v2, 4, v0')
    A.I('v_lshrrev_b32 v3, 2, v1')
    A.I('v_and_b32 v6, 3, v1')
    A.I('v_lshl_add_u32 v7, v2, 3, v3')
    A.I('v_lshlrev_b32 v7, 7, v7')
    A.I('v_lshl_add_u32 v7, v6, 3, v7')
    A.I('v_lshrrev_b32 v8, 1, v3')
    A.I('v_and_b32 v9, 1, v2')
    A.I('v_lshl_add_u32 v8, v9, 1, v8')
    A.I(f's_and_b32 s{S_T0}, s{S_WV}, 1')
    A.I(f's_lshl_b32 s{S_T0}, s{S_T0}, 1')
    A.I(f'v_xor_b32 v9, s{S_T0}, v8')
    A.I('v_lshl_add_u32 v10, v9, 5, v7')
    A.I('v_xor_b32 v11, 32, v10')
    A.I(f's_and_b32 s{S_T0}, s{S_WV}, 2')
    A.I(f'v_xor_b32 v9, s{S_T0}, v8')
    A.I('v_lshl_add_u32 v12, v9, 5, v7')
    A.I('v_add_u32 v12, 16384, v12')
    A.I('v_xor_b32 v13, 32, v12')
    for i in range(4):
        A.I(f'v_add_u32 v{14 + i}, 0x10000, v{10 + i}')
    A.I(f's_lshl_b32 s{S_T0}, s{S_FT}, 7')
    A.I(f's_and_b32 s{S_T1}, s{S_WV}, 1')
    A.I(f's_lshl_b32 s{S_T1}, s{S_T1}, 6')
    A.I(f's_add_u32 s{S_T0}, s{S_T0}, s{S_T1}')
    A.I('v_lshlrev_b32 v1, 3, v2')
    A.I(f'buffer_load_dwordx2 v[20:21], v1, {b1}, s{S_T0} offen')
    A.I(f'buffer_load_dwordx2 v[22:23], v1, {b1}, s{S_T0} offen offset:32')
    ACC, FR = 24, 40
    NS = 4

    def dma(k):
        st = (k % NS) * 32768
        for i in range(4):
            A.I(f's_add_u32 m0, s{S_LB}, {st + i * 4096}')
            A.I(f's_add_u32 s{S_T0}, s{S_AO}, {(k * 128 + i * 32) * 3584}')
            A.I(f'buffer_load_dwordx4 v4, {w1}, s{S_T0} offen lds')
            A.I(f's_add_u32 m0, s{S_LB}, {st + 16384 + i * 4096}')
            A.I(f's_add_u32 s{S_T1}, s{S_BO}, {(k * 128 + i * 32) * 1024}')
            A.I(f'buffer_load_dwordx4 v5, {ws}, s{S_T1} offen lds')

    NK = 16
    for k in range(NS - 1):
        dma(k)
    for k in range(NK):
        rem = min(NS - 2, NK - 1 - k)
        A.I(f's_waitcnt vmcnt({8 * rem})')
        A.I('s_barrier')
        if k + NS - 1 < NK:
            dma(k + NS - 1)
        sl = k % NS
        ab = 10 if sl < 2 else 14
        so = (sl & 1) * 32768

        def rd(ks):
            for j in range(4):
                for x in range(2):
                    A.I(f'ds_read_b64_tr_b16 {v(FR + 16 * ks + 4 * j + 2 * x, 2)}, v{ab + j} offset:{so + (32 * ks + 4 * x) * 128}')

        rd(0)
        for ks in range(4):
            if ks < 3:
                if ks:
                    pass
                A.I('s_waitcnt lgkmcnt(0)') if False else None
                rd(ks + 1)
                A.I('s_waitcnt lgkmcnt(8)')
            else:
                A.I('s_waitcnt lgkmcnt(0)')
            f = FR + 16 * ks
            for mbp in range(2):
                for nbp in range(2):
                    d = ACC + (mbp * 2 + nbp) * 4
                    c = '0' if (k == 0 and ks == 0) else v(d, 4)
                    A.I(f'v_mfma_f32_16x16x32_bf16 {v(d, 4)}, {v(f + 4 * mbp, 4)}, {v(f + 8 + 4 * nbp, 4)}, {c}')
    BI = 40
    for i in range(4):
        A.I(f'v_lshlrev_b32 v{BI + 2 * i}, 16, v{20 + i}')
        A.I(f'v_and_b32 v{BI + 2 * i + 1}, 0xffff0000, v{20 + i}')
    k1 = -2 * math.sqrt(2 / math.pi) * math.log2(math.e)
    A.I(f's_mov_b32 s{S_T2}, {f32(k1)}')
    A.I(f's_mov_b32 s{S_T3}, {f32(k1 * 0.044715)}')
    A.I(f's_lshl_b32 s{S_T0}, s{S_DT}, 2')
    A.I(f's_and_b32 s{S_T1}, s{S_WV}, 2')
    A.I(f's_add_u32 s{S_T0}, s{S_T0}, s{S_T1}')
    A.I(f's_mul_i32 s{S_T0}, s{S_T0}, 56')
    A.I(f's_lshl_b32 s{S_T1}, s{S_FT}, 1')
    A.I(f's_add_u32 s{S_T0}, s{S_T0}, s{S_T1}')
    A.I(f's_and_b32 s{S_T1}, s{S_WV}, 1')
    A.I(f's_add_u32 s{S_T0}, s{S_T0}, s{S_T1}')
    A.I(f's_lshl_b32 s{S_T0}, s{S_T0}, 10')
    A.I(f's_add_u32 s{S_T0}, s{S_T0}, 0x{WS_U:x}')
    A.I('v_lshlrev_b32 v1, 4, v0')
    for nbp in range(2):
        Z, Pk = 48, 56
        for mbp in range(2):
            for r in range(4):
                A.I(f'v_mov_b32 v{Z + 4 * mbp + r}, v{ACC + (mbp * 2 + nbp) * 4 + r}')
        round_bf16(A, Z, Pk)
        for i in range(8):
            A.I(f'v_add_f32 v{Z + i}, v{Z + i}, v{BI + i}')
        round_bf16(A, Z, Pk)
        for i in range(8):
            t = 60 + i
            A.I(f'v_mul_f32 v{t}, v{Z + i}, v{Z + i}')
            A.I(f'v_mov_b32 v{t + 8}, s{S_T2}')
            A.I(f'v_fmac_f32 v{t + 8}, s{S_T3}, v{t}')
            A.I(f'v_mul_f32 v{t}, v{t + 8}, v{Z + i}')
            A.I(f'v_exp_f32 v{t}, v{t}')
        for i in range(8):
            t = 60 + i
            A.I(f'v_add_f32 v{t}, 1.0, v{t}')
            A.I(f'v_rcp_f32 v{t}, v{t}')
        for i in range(8):
            A.I(f'v_mul_f32 v{Z + i}, v{Z + i}, v{60 + i}')
        o = 76 + 4 * nbp
        for i in range(4):
            A.I(f'v_cvt_pk_bf16_f32 v{o + i}, v{Z + 2 * i}, v{Z + 2 * i + 1}')
        A.I(f'buffer_store_dwordx4 {v(o, 4)}, v1, {ws}, s{S_T0} offen')
        A.I(f's_add_u32 s{S_T0}, s{S_T0}, {56 * 1024}')
    A.label(le)
    A.I('s_endpgm')


def g2_kernel(A, name):
    kernel_begin(A, name)
    le = A.newlabel('L_exit')
    prologue(A, {16: KA_WS, 18: KA_W2, 20: KA_B2, 22: KA_OUT}, 256, le)
    S_O = 24
    make_srd(A, S_WS, 16, WS_SIZE)
    make_srd(A, S_W, 18, 1792 * 4096)
    make_srd(A, S_X, 20, 4096)
    make_srd(A, S_O, 22, 2048 * 1024)
    ws, w2, b2, out = (f's[{x}:{x + 3}]' for x in (S_WS, S_W, S_X, S_O))
    S_ST, S_DT, S_AO, S_BO, S_LB = 36, 37, 38, 39, 40
    A.I(f's_and_b32 s{S_DT}, s2, 7')
    A.I(f's_lshr_b32 s{S_ST}, s2, 3')
    A.I('v_lshrrev_b32 v1, 3, v0')
    A.I('v_and_b32 v2, 7, v0')
    A.I('v_lshrrev_b32 v3, 4, v0')
    A.I('v_lshlrev_b32 v3, 1, v3')
    A.I('v_xor_b32 v2, v2, v3')
    A.I('v_lshlrev_b32 v2, 4, v2')
    A.I('v_lshl_add_u32 v4, v1, 12, v2')
    A.I('v_lshlrev_b32 v5, 4, v0')
    A.I(f's_lshl_b32 s{S_BO}, s{S_WV}, 15')
    A.I(f's_lshl_b32 s{S_T0}, s{S_ST}, 7')
    A.I(f's_add_u32 s{S_BO}, s{S_BO}, s{S_T0}')
    A.I(f's_lshl_b32 s{S_T0}, s{S_DT}, 2')
    A.I(f's_add_u32 s{S_T0}, s{S_T0}, s{S_WV}')
    A.I(f's_mul_i32 s{S_AO}, s{S_T0}, {56 * 1024}')
    A.I(f's_add_u32 s{S_AO}, s{S_AO}, 0x{WS_U:x}')
    A.I(f's_lshl_b32 s{S_LB}, s{S_WV}, 10')
    A.I('v_and_b32 v1, 15, v0')
    A.I('v_lshrrev_b32 v2, 4, v0')
    A.I('v_lshrrev_b32 v3, 2, v1')
    A.I('v_and_b32 v6, 3, v1')
    A.I('v_lshl_add_u32 v7, v2, 2, v3')
    A.I('v_bfe_u32 v8, v7, 1, 2')
    A.I('v_lshlrev_b32 v7, 7, v7')
    A.I('v_lshl_add_u32 v7, v6, 3, v7')
    A.I('v_lshl_add_u32 v10, v8, 5, v7')
    for j in range(1, 4):
        A.I(f'v_xor_b32 v{10 + j}, {32 * j}, v10')
    A.I('v_lshlrev_b32 v14, 10, v1')
    A.I('v_lshl_add_u32 v14, v2, 3, v14')
    A.I(f's_lshl_b32 s41, s{S_ST}, 16')
    A.I(f's_lshl_b32 s{S_T0}, s{S_T0}, 5')
    A.I(f's_add_u32 s41, s41, s{S_T0}')
    A.I('v_lshlrev_b32 v15, 1, v1')
    A.I(f's_lshl_b32 s{S_T1}, s{S_ST}, 7')
    HB, BB = 16, 24
    for nb in range(4):
        A.I(f's_add_u32 s{S_T0}, s41, 0x{WS_H + nb * 16384:x}')
        A.I(f'buffer_load_dwordx2 {v(HB + 2 * nb, 2)}, v14, {ws}, s{S_T0} offen')
        A.I(f'buffer_load_ushort v{BB + nb}, v15, {b2}, s{S_T1} offen offset:{32 * nb}')
    ACC, FR, AR = 28, 44, 108
    NS, NK = 4, 14

    def dma(k):
        st = (k % NS) * 16384
        for i in range(4):
            A.I(f's_add_u32 m0, s{S_LB}, {st + i * 4096}')
            A.I(f's_add_u32 s{S_T0}, s{S_BO}, {(k * 128 + i * 32) * 4096}')
            A.I(f'buffer_load_dwordx4 v4, {w2}, s{S_T0} offen lds')
        A.I(f's_add_u32 s{S_T1}, s{S_AO}, {k * 4096}')
        for ks in range(4):
            A.I(f'buffer_load_dwordx4 {v(AR + 16 * (k % NS) + 4 * ks, 4)}, v5, {ws}, s{S_T1} offen offset:{1024 * ks}')

    for k in range(NS - 1):
        dma(k)
    for k in range(NK):
        rem = min(NS - 2, NK - 1 - k)
        A.I(f's_waitcnt vmcnt({8 * rem})')
        A.I('s_barrier')
        if k + NS - 1 < NK:
            dma(k + NS - 1)
        so = (k % NS) * 16384

        def rd(ks):
            for j in range(4):
                for x in range(2):
                    A.I(f'ds_read_b64_tr_b16 {v(FR + 16 * ks + 4 * j + 2 * x, 2)}, v{10 + j} offset:{so + (32 * ks + 16 * x) * 128}')

        rd(0)
        for ks in range(4):
            if ks < 3:
                rd(ks + 1)
                A.I('s_waitcnt lgkmcnt(8)')
            else:
                A.I('s_waitcnt lgkmcnt(0)')
            for nb in range(4):
                d = ACC + 4 * nb
                c = '0' if (k == 0 and ks == 0) else v(d, 4)
                A.I(f'v_mfma_f32_16x16x32_bf16 {v(d, 4)}, {v(AR + 16 * (k % NS) + 4 * ks, 4)}, {v(FR + 16 * ks + 4 * nb, 4)}, {c}')
    for nb in range(4):
        d = ACC + 4 * nb
        t = 44
        A.I(f'v_cvt_pk_bf16_f32 v{t}, v{d}, v{d + 1}')
        A.I(f'v_cvt_pk_bf16_f32 v{t + 1}, v{d + 2}, v{d + 3}')
        A.I(f'v_lshlrev_b32 v{t + 2}, 16, v{BB + nb}')
        for i in range(2):
            A.I(f'v_lshlrev_b32 v{d + 2 * i}, 16, v{t + i}')
            A.I(f'v_and_b32 v{d + 2 * i + 1}, 0xffff0000, v{t + i}')
        for r in range(4):
            A.I(f'v_add_f32 v{d + r}, v{d + r}, v{t + 2}')
        A.I(f'v_cvt_pk_bf16_f32 v{t}, v{d}, v{d + 1}')
        A.I(f'v_cvt_pk_bf16_f32 v{t + 1}, v{d + 2}, v{d + 3}')
        for i in range(2):
            A.I(f'v_lshlrev_b32 v{d + 2 * i}, 16, v{t + i}')
            A.I(f'v_and_b32 v{d + 2 * i + 1}, 0xffff0000, v{t + i}')
            A.I(f'v_lshlrev_b32 v{t + 2}, 16, v{HB + 2 * nb + i}')
            A.I(f'v_and_b32 v{t + 3}, 0xffff0000, v{HB + 2 * nb + i}')
            A.I(f'v_add_f32 v{d + 2 * i}, v{d + 2 * i}, v{t + 2}')
            A.I(f'v_add_f32 v{d + 2 * i + 1}, v{d + 2 * i + 1}, v{t + 3}')
        o = 48 + 2 * nb
        A.I(f'v_cvt_pk_bf16_f32 v{o}, v{d}, v{d + 1}')
        A.I(f'v_cvt_pk_bf16_f32 v{o + 1}, v{d + 2}, v{d + 3}')
        A.I(f's_add_u32 s{S_T0}, s41, {nb * 16384}')
        A.I(f'buffer_store_dwordx2 {v(o, 2)}, v14, {out}, s{S_T0} offen')
    A.label(le)
    A.I('s_endpgm')
```

```python
import os
os.environ.setdefault('PB_DELAY', '7'); os.environ.setdefault('AF_DELAY', '2'); os.environ.setdefault('AF_GAP', '2')
from common import *
import tok as T
import rec9 as R
from tok import f32, S_WS, S_W, S_X, S_H, S_WV, S_G, S_T0, S_T1, S_T2, S_T3

S_DBG = 84
S_SPIN = R.S_SPIN
S_XCC = 83
S_LNO = 82
F_OPC = WS_FLAG + 0x4000
F_LH = WS_FLAG + 0x6000
F_LU = WS_FLAG + 0x8000
F_GF = WS_FLAG + 0x8400
S_FAST = S_XCC
D_GB, D_OVF, D_WEIRD, D_TS = 128, 36, 40, 192
S_J, S_BO2, S_LB2 = 100, 101, 3
S_J2 = 63
S_W1, S_B1, S_W2 = 88, 92, 96
NEARLY = int(os.environ.get('NEARLY', 2))
STAG = int(os.environ.get('STAG', 4))
STAG0 = int(os.environ.get('STAG0', 1))
TIMING = bool(os.environ.get('TIMING'))
PLF = os.environ.get('PLF', 'sc1').replace('_', ' ')


def lane0(A, body):
    A.I('s_mov_b64 exec, 1')
    body()
    A.I('s_mov_b64 exec, -1')


def poll_eq(A, srd, s_off, imm, expect, vt, l_exit, sleep=0):
    l = A.newlabel('L_poll')
    A.label(l)
    so = f's{s_off}' if s_off is not None else '0'
    A.I(f'buffer_load_dword v{vt}, off, {srd}, {so} offset:{imm} sc1')
    A.I(f's_sub_u32 s{S_SPIN}, s{S_SPIN}, 1')
    A.I(f's_cbranch_scc1 {l_exit}')
    A.I('s_waitcnt vmcnt(0)')
    A.I(f'v_readfirstlane_b32 s{S_T0}, v{vt}')
    ld = A.newlabel('L_pd')
    A.I(f's_cmp_eq_u32 s{S_T0}, {expect}')
    A.I(f's_cbranch_scc1 {ld}')
    if sleep:
        A.I(f's_sleep {sleep}')
    A.br(f's_branch {l}')
    A.label(ld)


def poll_flags(A, s_off, nlanes, width, vt, va, l_exit, sleep=0):
    ws = f's[{S_WS}:{S_WS + 3}]'
    l, ld = A.newlabel('L_pf'), A.newlabel('L_pfd')
    A.I(f'v_lshlrev_b32 v{va}, {2 if width == 1 else 3}, v0')
    assert nlanes <= 32
    A.I(f's_mov_b32 exec_lo, 0x{(1 << nlanes) - 1:x}')
    A.I('s_mov_b32 exec_hi, 0')
    A.label(l)
    if width == 1:
        A.I(f'buffer_load_dword v{vt}, v{va}, {ws}, s{s_off} offen {PLF}')
    else:
        A.I(f'buffer_load_dwordx2 {v(vt, 2)}, v{va}, {ws}, s{s_off} offen {PLF}')
    A.I(f's_sub_u32 s{S_SPIN}, s{S_SPIN}, 1')
    A.I(f's_cbranch_scc1 {l_exit}')
    A.I('s_waitcnt vmcnt(0)')
    if width == 2:
        A.I(f'v_min_u32 v{vt}, v{vt}, v{vt + 1}')
    A.I(f'v_cmp_eq_u32 vcc, 0, v{vt}')
    A.I(f's_cbranch_vccz {ld}')
    if sleep:
        A.I(f's_sleep {sleep}')
    A.br(f's_branch {l}')
    A.label(ld)
    A.I('s_mov_b64 exec, -1')


def flag_store(A, s_addr, vt):
    ws = f's[{S_WS}:{S_WS + 3}]'
    l1, l2 = A.newlabel('L_fs'), A.newlabel('L_fs')
    A.I(f'v_mov_b32 v{vt}, 1')
    A.I('s_mov_b64 exec, 1')
    A.I(f's_cmp_eq_u32 s{S_FAST}, 0')
    A.br(f's_cbranch_scc1 {l1}')
    A.I(f'buffer_store_dword v{vt}, off, {ws}, s{s_addr}')
    A.br(f's_branch {l2}')
    A.label(l1)
    A.I(f'buffer_store_dword v{vt}, off, {ws}, s{s_addr} sc1')
    A.label(l2)
    A.I('s_mov_b64 exec, -1')


def garrive(A, s_line, s_goff, vt, l_exit):
    ws = f's[{S_WS}:{S_WS + 3}]'
    A.I(f's_lshl_b32 s{S_T1}, s{S_H}, 2')
    A.I(f's_add_u32 s{S_T1}, s{S_T1}, s{s_line}')
    flag_store(A, S_T1, vt)
    l = A.newlabel('L_ga')
    A.I(f's_cmp_lg_u32 s{S_H}, 0')
    A.br(f's_cbranch_scc1 {l}')
    poll_flags(A, s_line, 32, 1, vt, vt + 1, l_exit)
    A.I(f'v_lshlrev_b32 v{vt + 1}, 9, v0')
    A.I(f'v_mov_b32 v{vt}, 1')
    A.I('s_mov_b64 exec, 0xff')
    A.I(f'buffer_store_dword v{vt}, v{vt + 1}, {ws}, s{s_goff} offen sc1')
    A.I('s_mov_b64 exec, -1')
    A.label(l)


def wg_poll_eq(A, srd, s_off, imm, expect, vt, l_exit, sleep=0):
    l0 = A.newlabel('L_wgp')
    A.I(f's_cmp_lg_u32 s{S_WV}, 0')
    A.br(f's_cbranch_scc1 {l0}')
    poll_eq(A, srd, s_off, imm, expect, vt, l_exit, sleep)
    A.label(l0)
    A.I('s_barrier')


def tstamp(A, idx, r=14):
    if not TIMING:
        return
    l = A.newlabel('L_ts')
    A.I(f's_cmp_lg_u32 s{S_WV}, 0')
    A.br(f's_cbranch_scc1 {l}')
    A.I('s_memrealtime s[80:81]')
    A.I('s_waitcnt lgkmcnt(0)')
    A.I(f'v_mov_b32 v{r}, s80')
    A.I(f'v_mov_b32 v{r + 1}, s81')
    A.I(f's_lshl_b32 s80, s{S_G}, 5')
    A.I(f's_add_u32 s80, s80, s{S_H}')
    A.I('s_lshl_b32 s80, s80, 8')
    A.I(f's_add_u32 s80, s80, 0x{WS_DBG:x}')
    A.I(f'buffer_store_dwordx2 {v(r, 2)}, off, s[{S_WS}:{S_WS + 3}], s80 offset:{8 * idx}')
    A.label(l)


def mega_kernel(A, name):
    kernel_begin(A, name)
    l_exit = A.newlabel('L_exit')
    P_WS, P_DBG, P_Q, P_K, P_V, P_O, P_M0, P_X = 16, 18, 20, 22, 24, 26, 28, 30
    ws, dbg, sx = f's[{S_WS}:{S_WS + 3}]', f's[{S_DBG}:{S_DBG + 3}]', f's[{S_X}:{S_X + 3}]'
    A.I('s_cmp_ge_u32 s2, 256')
    A.I(f's_cbranch_scc1 {l_exit}')
    A.I(f's_load_dwordx2 s[{P_WS}:{P_WS + 1}], s[0:1], {KA_WS}')
    A.I(f's_load_dwordx2 s[{P_DBG}:{P_DBG + 1}], s[0:1], {KA_DBG}')
    A.I(f's_load_dwordx4 s[{P_Q}:{P_Q + 3}], s[0:1], {KA_WQ}')
    A.I(f's_load_dwordx4 s[{P_V}:{P_V + 3}], s[0:1], {KA_WV}')
    A.I(f's_load_dwordx2 s[{P_M0}:{P_M0 + 1}], s[0:1], {KA_MEM0}')
    A.I(f's_load_dwordx2 s[{P_X}:{P_X + 1}], s[0:1], {KA_X}')
    A.I('v_lshrrev_b32 v1, 6, v0')
    A.I('v_and_b32 v0, 63, v0')
    A.I(f'v_readfirstlane_b32 s{S_WV}, v1')
    A.I(f's_getreg_b32 s{S_XCC}, hwreg(HW_REG_XCC_ID)')
    A.I(f's_mov_b32 s{S_SPIN}, 0x80000')
    A.I('s_waitcnt lgkmcnt(0)')
    make_srd(A, S_WS, P_WS, WS_SIZE)
    make_srd(A, S_DBG, P_DBG, 256)
    make_srd(A, S_X, P_X, 2048 * 1024)
    A.I(f's_mov_b32 s{S_LNO}, -1')
    lr = A.newlabel('L_role_done')
    A.I(f's_cmp_lg_u32 s{S_WV}, 0')
    A.br(f's_cbranch_scc1 {lr}')
    A.I('s_mov_b64 exec, 1')
    A.I('v_mov_b32 v2, 1')
    lw = A.newlabel('L_nw')
    A.I(f's_cmp_lt_u32 s{S_XCC}, 8')
    A.br(f's_cbranch_scc1 {lw}')
    A.I(f'buffer_atomic_or v2, off, {dbg}, 0 offset:{D_WEIRD}')
    A.I('s_waitcnt vmcnt(0)')
    A.label(lw)
    A.I(f's_and_b32 s{S_G}, s{S_XCC}, 7')
    A.I(f's_lshl_b32 s{S_T0}, s{S_G}, 2')
    A.I(f'buffer_atomic_add v2, off, {dbg}, s{S_T0} sc0')
    A.I('s_waitcnt vmcnt(0)')
    A.I(f'v_readfirstlane_b32 s{S_H}, v2')
    lok = A.newlabel('L_rok')
    A.I(f's_cmp_lt_u32 s{S_H}, 32')
    A.br(f's_cbranch_scc1 {lok}')
    A.I('v_mov_b32 v2, 1')
    A.I(f'buffer_atomic_add v2, off, {dbg}, 0 offset:{D_OVF} sc0')
    A.I('s_waitcnt vmcnt(0)')
    A.I(f'v_readfirstlane_b32 s{S_T3}, v2')
    lo = A.newlabel('L_ovf')
    A.label(lo)
    A.I(f'buffer_load_dwordx4 v[4:7], off, {dbg}, 0 sc1')
    A.I(f'buffer_load_dwordx4 v[8:11], off, {dbg}, 0 offset:16 sc1')
    A.I(f's_sub_u32 s{S_SPIN}, s{S_SPIN}, 1')
    A.I(f's_cbranch_scc1 {l_exit}')
    A.I('s_waitcnt vmcnt(0)')
    A.I(f's_mov_b32 s{S_T0}, 0')
    for i in range(8):
        A.I(f'v_readfirstlane_b32 s{64 + i}, v{4 + i}')
    for i in range(8):
        A.I(f's_add_u32 s{S_T0}, s{S_T0}, s{64 + i}')
    A.I(f's_cmp_lt_u32 s{S_T0}, 256')
    A.br(f's_cbranch_scc1 {lo}')
    for g in range(8):
        A.I(f's_min_u32 s{S_T0}, s{64 + g}, 32')
        A.I(f's_sub_u32 s{S_T1}, 32, s{S_T0}')
        A.I(f's_mov_b32 s{S_G}, {g}')
        A.I(f's_add_u32 s{S_H}, s{S_T0}, s{S_T3}')
        A.I(f's_cmp_lt_u32 s{S_T3}, s{S_T1}')
        A.br(f's_cbranch_scc1 {lok}')
        A.I(f's_sub_u32 s{S_T3}, s{S_T3}, s{S_T1}')
    A.label(lok)
    A.I(f's_lshl_b32 s{S_T0}, s{S_G}, 8')
    A.I(f's_or_b32 s{S_T0}, s{S_T0}, s{S_H}')
    A.I(f'v_mov_b32 v2, s{S_T0}')
    A.I('v_mov_b32 v3, 0')
    A.I('ds_write_b32 v3, v2')
    A.I('s_waitcnt lgkmcnt(0)')
    A.I('s_mov_b64 exec, -1')
    A.label(lr)
    A.I('s_barrier')
    A.I('v_mov_b32 v3, 0')
    A.I('ds_read_b32 v2, v3')
    A.I('s_waitcnt lgkmcnt(0)')
    A.I(f'v_readfirstlane_b32 s{S_T0}, v2')
    A.I(f's_and_b32 s{S_H}, s{S_T0}, 31')
    A.I(f's_bfe_u32 s{S_G}, s{S_T0}, 0x30008')
    A.I('s_barrier')
    tstamp(A, 0)

    def ln_and_arrive(ln=True):
        if ln:
            l = A.newlabel('L_nl2')
            A.I(f's_cmp_eq_u32 s{S_LNO}, -1')
            A.br(f's_cbranch_scc1 {l}')
            A.check = False
            T.ln1_compute(A, ws, S_LNO, 'sc1', 0)
            A.check = True
            A.label(l)
        A.I('s_waitcnt vmcnt(0)')
        A.I('s_barrier')
        l = A.newlabel('L_na')
        A.I(f's_cmp_lg_u32 s{S_WV}, 0')
        A.br(f's_cbranch_scc1 {l}')
        A.I('v_mov_b32 v23, 1')
        lane0(A, lambda: A.I(f'buffer_atomic_add v23, off, {dbg}, 0 offset:{D_GB}'))
        A.I('s_waitcnt vmcnt(0)')
        A.label(l)

    l_tok = A.newlabel('L_tok')
    l_g2 = A.newlabel('L_g2')
    A.I(f's_cmp_lg_u32 s{S_G}, 0')
    A.br(f's_cbranch_scc1 {l_tok}')

    A.I(f'v_mov_b32 v{R.LANE}, v0')
    R.setup_consts(A)

    def thook():
        A.check = False
        A.I(f's_lshl_b32 s{S_T0}, s{S_H}, 6')
        A.I(f's_lshl_b32 s{S_T1}, s{S_WV}, 2')
        A.I(f's_add_u32 s{S_T0}, s{S_T0}, s{S_T1}')
        A.I(f's_add_u32 s{S_LNO}, s{S_T0}, 0x{R.F_KMP:x}')
        A.I('v_mov_b32 v24, 0')
        lane0(A, lambda: A.I(f'buffer_store_dword v24, off, {ws}, s{S_LNO} sc1'))
        R.init_exchange(A, P_M0, 'sc1', rb=24)
        ln_and_arrive(ln=False)
        tstamp(A, 8, 24)
        A.check = True
        A.forget_loads()

    S_OK = 25

    def batch():
        A.I(f'buffer_load_dword v25, off, {dbg}, 0 sc1')
        A.I(f'buffer_load_dword v26, off, {dbg}, 0 offset:{D_WEIRD} sc1')
        R.kv_load(A, 28, R.V_L16, R.S_RA)

    def h_issue(sc):
        if sc == 3:
            A.I(f'buffer_load_dword v24, off, {dbg}, 0 offset:{D_GB} sc1')
            return
        A.I(f's_lshl_b32 s{R.S_RA}, s{S_H}, 7')
        A.I(f's_add_u32 s{R.S_RA}, s{R.S_RA}, 0x{R.F_PROG:x}')
        A.I(f's_lshl_b32 s{R.S_KVN}, s{S_H}, 13')
        A.I(f's_add_u32 s{R.S_KVN}, s{R.S_KVN}, s{R.S_W11}')
        A.I(f's_add_u32 s{R.S_KVN}, s{R.S_KVN}, 0x{WS_KF:x}')
        A.I(f's_add_u32 s{R.S_KVM0}, s{R.S_W11}, {R.L_KV}')
        batch()

    def evaluate(l_fail):
        R.kv_eval(A, 28, R.V_L16, R.S_AV)
        A.I(f'v_readfirstlane_b32 s{S_T0}, v24')
        A.I(f'v_readfirstlane_b32 s{S_T2}, v25')
        A.I(f'v_readfirstlane_b32 s{S_T3}, v26')
        A.I(f's_cmp_lg_u32 s{S_T0}, 256')
        A.I(f's_cbranch_scc1 {l_fail}')
        A.I(f's_cmp_eq_u32 s{R.S_AV}, 0')
        A.I(f's_cbranch_scc1 {l_fail}')
        A.I(f's_cmp_ge_u32 s{S_T2}, 32')
        A.I(f's_cselect_b32 s{S_XCC}, 1, 0')
        A.I(f's_cmp_eq_u32 s{S_T3}, 0')
        A.I(f's_cselect_b32 s{S_XCC}, s{S_XCC}, 0')
        R.kv_dma(A)

    def h_check():
        lf = A.newlabel('L_hf')
        A.I(f's_mov_b32 s{S_OK}, 0')
        evaluate(lf)
        A.I(f's_mov_b32 s{S_OK}, 1')
        A.label(lf)

    R.stage_weights(A, [P_Q, P_K, P_V, P_O], hook=thook, hook_issue=h_issue, hook_check=h_check)
    l = A.newlabel('L_ns')
    A.I(f's_cmp_lg_u32 s{S_WV}, 0')
    A.br(f's_cbranch_scc1 {l}')
    A.I('v_mov_b32 v2, 1')
    lane0(A, lambda: A.I(f'buffer_atomic_add v2, off, {dbg}, 0 offset:{D_TS}'))
    A.label(l)
    tstamp(A, 1)
    A.I(f's_mov_b32 s{R.S_KP}, s{S_LNO}')
    lgo_, lre = A.newlabel('L_tgo'), A.newlabel('L_tre')
    A.I(f's_cmp_eq_u32 s{S_OK}, 1')
    A.br(f's_cbranch_scc1 {lgo_}')
    A.label(lre)
    A.I('s_sleep 4')
    A.I(f'buffer_load_dword v24, off, {dbg}, 0 offset:{D_GB} sc1')
    A.I('s_waitcnt vmcnt(0)')
    batch()
    A.I(f's_sub_u32 s{S_SPIN}, s{S_SPIN}, 1')
    A.I(f's_cbranch_scc1 {l_exit}')
    A.I('s_waitcnt vmcnt(0)')
    evaluate(lre)
    A.label(lgo_)
    A.I('s_waitcnt vmcnt(0)')
    A.I('s_barrier')
    tstamp(A, 2)
    l_slow = A.newlabel('L_slowmode')
    l_tdone = A.newlabel('L_tdone')
    A.I(f's_cmp_eq_u32 s{S_XCC}, 0')
    if os.environ.get('FORCE_SLOW'):
        A.br(f's_branch {l_slow}')
    else:
        A.br(f's_cbranch_scc1 {l_slow}')
    R.main_loop(A, '', l_tdone, kvcheck=True)
    A.label(l_slow)
    R.main_loop(A, 'sc1', l_tdone, kvcheck=True)
    A.label(l_tdone)
    A.forget_loads()
    A.I(f's_mov_b32 s{S_G}, 0')
    tstamp(A, 3)
    A.I(f'v_lshrrev_b32 v0, 4, v{R.V_L16}')
    A.I(f's_lshl_b32 s{S_J2}, s{S_H}, 3')
    A.I('s_waitcnt vmcnt(0) lgkmcnt(0)')
    A.I('s_barrier')
    g2_setup(A)
    for k in range(5):
        g2_dma(A, k)
    A.br(f's_branch {l_g2}')

    A.label(l_tok)
    A.forget_loads()
    S_SEG, S_NX, S_CA, S_END, S_K1, S_AV, S_PB = 36, 41, 42, 43, 44, 45, 46
    A.I(f's_lshl_b32 s{S_J2}, s{S_H}, 3')
    A.I(f's_add_u32 s{S_J2}, s{S_J2}, s{S_G}')
    A.I(f's_sub_u32 s{S_G}, s{S_G}, 1')
    A.I(f's_lshl_b32 s{S_J}, s{S_G}, 5')
    A.I(f's_add_u32 s{S_J}, s{S_J}, s{S_H}')

    def tok_init(ln=True):
        A.I(f's_lshl_b32 s{S_CA}, s{S_H}, 7')
        A.I(f's_lshl_b32 s{S_T0}, s{S_G}, 4')
        A.I(f's_add_u32 s{S_CA}, s{S_CA}, s{S_T0}')
        A.I(f's_lshl_b32 s{S_T0}, s{S_WV}, 2')
        A.I(f's_add_u32 s{S_CA}, s{S_CA}, s{S_T0}')
        A.I(f's_add_u32 s{S_CA}, s{S_CA}, 0x{R.F_PROG:x}')
        A.I('v_mov_b32 v22, 0')
        lane0(A, lambda: A.I(f'buffer_store_dword v22, off, {ws}, s{S_CA} sc1'))
        lz = A.newlabel('L_nz')
        A.I(f's_cmp_lg_u32 s{S_J}, 64')
        A.br(f's_cbranch_scc1 {lz}')
        A.I('v_lshlrev_b32 v23, 4, v0')
        for r in range(16, 20):
            A.I(f'v_mov_b32 v{r}, 0')
        A.I(f's_mul_i32 s{S_T0}, s{S_WV}, 6144')
        A.I(f's_add_u32 s{S_T0}, s{S_T0}, 0x{F_OPC:x}')
        A.I(f's_add_u32 s{S_T1}, s{S_T0}, 4096')
        for i in range(4):
            A.I(f'buffer_store_dwordx4 v[16:19], v23, {ws}, s{S_T0} offen offset:{1024 * i} sc1')
        A.I(f'buffer_store_dwordx4 v[16:19], v23, {ws}, s{S_T1} offen sc1')
        A.I(f'buffer_store_dwordx4 v[16:19], v23, {ws}, s{S_T1} offen offset:1024 sc1')
        A.label(lz)
        A.forget_loads()
        ln_and_arrive(ln)
        ts_tok(A, 8)

    l_late = A.newlabel('L_late')
    l_st = A.newlabel('L_st')
    A.I(f's_mov_b32 s{S_K1}, 0')
    A.I(f's_cmp_lt_u32 s{S_G}, {NEARLY}')
    A.br(f's_cbranch_scc1 {l_st}')
    l1 = A.newlabel('L_nl')
    A.I(f's_cmp_lg_u32 s{S_WV}, 1')
    A.I(f's_cbranch_scc1 {l1}')
    A.I(f's_cmp_lt_u32 s{S_G}, 3')
    A.I(f's_cbranch_scc1 {l1}')
    A.I(f's_sub_u32 s{S_T3}, s{S_J}, 96')
    T.ln1_load(A, S_T3, sx, S_LNO)
    A.label(l1)
    A.forget_loads()
    tok_init()
    l_nost = A.newlabel('L_nost')
    A.I(f's_cmp_ge_u32 s{S_G}, 4')
    A.br(f's_cbranch_scc1 {l_nost}')
    wg_poll_eq(A, dbg, None, D_TS, 32, 2, l_exit, sleep=32)
    lsg, lsd = A.newlabel('L_sg'), A.newlabel('L_sd')
    A.I(f's_cmp_lg_u32 s{S_WV}, 0')
    A.br(f's_cbranch_scc1 {lsd}')
    A.I(f's_cmp_eq_u32 s{S_G}, 3')
    A.I(f's_cselect_b32 s{S_T1}, {STAG}, {STAG0}')
    A.I(f's_lshl_b32 s{S_T2}, s{S_H}, 6')
    A.I(f's_add_u32 s{S_T2}, s{S_T2}, 0x{R.F_KMP:x}')
    A.label(lsg)
    A.I(f'buffer_load_dword v2, off, {ws}, s{S_T2} sc1')
    A.I(f's_sub_u32 s{S_SPIN}, s{S_SPIN}, 1')
    A.I(f's_cbranch_scc1 {l_exit}')
    A.I('s_waitcnt vmcnt(0)')
    A.I(f'v_readfirstlane_b32 s{S_T0}, v2')
    A.I(f's_cmp_ge_u32 s{S_T0}, s{S_T1}')
    A.I(f's_cbranch_scc1 {lsd}')
    A.I('s_sleep 16')
    A.br(f's_branch {lsg}')
    A.label(lsd)
    A.I('s_barrier')
    A.I(f's_mov_b32 s{S_K1}, 1')
    A.label(l_st)

    def hook():
        l = A.newlabel('L_hk')
        A.I(f's_cmp_eq_u32 s{S_K1}, 1')
        A.br(f's_cbranch_scc1 {l}')
        A.check = False
        tok_init(False)
        A.check = True
        A.label(l)
        A.forget_loads()

    T.qkv_stage(A, [P_Q, P_K, P_V], hook=hook)
    A.label(l_nost)
    ts_tok(A, 1)
    wg_poll_eq(A, dbg, None, D_GB, 256, 2, l_exit, sleep=8)
    ts_tok(A, 7)
    A.I(f's_lshl_b32 s{S_T0}, s{S_G}, 2')
    A.I(f'buffer_load_dword v2, off, {dbg}, s{S_T0} offset:4 sc1')
    A.I(f'buffer_load_dword v3, off, {dbg}, 0 offset:{D_WEIRD} sc1')
    A.I('s_waitcnt vmcnt(0)')
    A.I(f'v_readfirstlane_b32 s{S_T2}, v2')
    A.I(f'v_readfirstlane_b32 s{S_T3}, v3')
    A.I(f's_cmp_ge_u32 s{S_T2}, 32')
    A.I(f's_cselect_b32 s{S_FAST}, 1, 0')
    A.I(f's_cmp_eq_u32 s{S_T3}, 0')
    A.I(f's_cselect_b32 s{S_FAST}, s{S_FAST}, 0')
    if os.environ.get('FORCE_SLOW'):
        A.I(f's_mov_b32 s{S_FAST}, 0')
    l_nop1 = A.newlabel('L_nop1')
    A.I(f's_cmp_ge_u32 s{S_G}, 4')
    A.br(f's_cbranch_scc1 {l_nop1}')
    A.I(f's_lshr_b32 s{S_T0}, s{S_G}, 1')
    A.I(f's_lshl_b32 s{S_T0}, s{S_T0}, 5')
    A.I(f's_add_u32 s{S_END}, s{S_T0}, 32')
    A.I(f's_and_b32 s{S_NX}, s{S_G}, 1')
    A.I(f's_add_u32 s{S_NX}, s{S_NX}, s{S_T0}')
    A.I('v_mov_b32 v2, 0')

    def signal():
        lane0(A, lambda: A.I(f'buffer_store_dword v2, off, {ws}, s{S_CA} sc1'))

    def after():
        A.I('v_add_u32 v2, 1, v2')

    T.qkv_segments(A, 2, 'sc1', after_seg=after, mid_seg=signal, first=S_NX, end=f's{S_END}')
    A.I('s_waitcnt vmcnt(0)')
    signal()
    A.label(l_nop1)
    ts_tok(A, 2)
    T.att_stage(A, P_O)
    T.att_consts(A)
    A.I(f's_load_dwordx4 s[16:19], s[0:1], {KA_W1}')
    A.I('s_waitcnt lgkmcnt(0)')
    make_srd(A, S_W1, 16, 2048 * 3584)
    make_srd(A, S_B1, 18, 3584)
    g2_setup(A)
    for i in range(16):
        A.I(f'v_mov_b32 v{G1ACC + i}, 0')
    A.I(f's_mov_b32 s{S_K1}, 0')
    g1_w1_dma(A, S_K1, first=True)
    masks = seg_masks()
    for g in range(7):
        A.I(f's_cmp_eq_u32 s{S_G}, {g}')
        A.I(f's_cselect_b32 s{S_MSK}, 0x{masks[g] & 0xffffffff:x}, s{S_MSK}')
        A.I(f's_cselect_b32 s{S_MSK + 1}, 0x{masks[g] >> 32:x}, s{S_MSK + 1}')
    A.I(f's_ff1_i32_b64 s{S_SEG}, s[{S_MSK}:{S_MSK + 1}]')
    A.I(f's_bitset0_b64 s[{S_MSK}:{S_MSK + 1}], s{S_SEG}')
    A.I(f's_mov_b32 s{S_AV}, 0')
    A.I(f's_lshl_b32 s{S_PB}, s{S_H}, 7')
    A.I(f's_add_u32 s{S_PB}, s{S_PB}, 0x{R.F_PROG:x}')
    R.kv_wait(A, l_exit, S_SEG, 192, s_av=S_AV, s_base=S_PB, sleep=4, vlane16=1)
    T.att_load_qkv(A, S_SEG)
    L = A.newlabel('L_p2')
    L_att = A.newlabel('L_att')
    L_fin = A.newlabel('L_p2fin')
    A.label(L)
    A.check = False
    A.I(f's_cmp_ge_u32 s{S_K1}, 16')
    A.I(f's_cbranch_scc1 {L_fin}')
    lq2 = A.newlabel('L_lp2')
    ldec = A.newlabel('L_dec')
    A.I(f's_cmp_lg_u32 s{S_WV}, 0')
    A.br(f's_cbranch_scc1 {ldec}')
    A.I(f's_lshl_b32 s{S_CA}, s{S_H}, 6')
    A.I(f's_add_u32 s{S_CA}, s{S_CA}, 0x{R.F_KMP:x}')
    A.I(f's_add_u32 s40, s{S_SEG}, 2')
    A.I(f's_lshl_b32 s{S_T1}, s{S_K1}, 4')
    A.I(f's_lshl_b32 s{S_T2}, s{S_G}, 9')
    A.I(f's_add_u32 s{S_T1}, s{S_T1}, s{S_T2}')
    A.I(f's_add_u32 s{S_T1}, s{S_T1}, 0x{F_GF + 512:x}')
    lq, lgo, lnk = A.newlabel('L_lp'), A.newlabel('L_go'), A.newlabel('L_nk')
    A.label(lq)
    A.I(f'buffer_load_dwordx4 v[192:195], off, {ws}, s{S_CA} {PLF}')
    A.I(f'buffer_load_dwordx4 v[196:199], off, {ws}, s{S_T1} {PLF}')
    A.I(f's_sub_u32 s{S_SPIN}, s{S_SPIN}, 1')
    A.I(f's_cbranch_scc1 {l_exit}')
    A.I('s_waitcnt vmcnt(0)')
    A.I('v_min_u32 v6, v192, v193')
    A.I('v_min3_u32 v6, v6, v194, v195')
    A.I(f'v_readfirstlane_b32 s{S_T0}, v6')
    A.I('v_min_u32 v7, v196, v197')
    A.I('v_min3_u32 v7, v7, v198, v199')
    A.I('v_cmp_eq_u32 vcc, 0, v7')
    A.I(f's_mov_b32 s{S_T3}, 1')
    A.I(f's_cmp_ge_u32 s{S_T0}, s40')
    A.I(f's_cbranch_scc1 {lgo}')
    A.label(lnk)
    lsl = A.newlabel('L_sl')
    A.I(f's_add_u32 s{S_T0}, s{S_T0}, 2')
    A.I(f's_cmp_ge_u32 s{S_T0}, s40')
    A.I(f's_cbranch_scc1 {lq}')
    A.I(f's_mov_b32 s{S_T3}, 2')
    A.I(f's_cbranch_vccz {lgo}')
    A.I('s_sleep 4')
    A.br(f's_branch {lq}')
    A.label(lgo)
    A.I(f'v_mov_b32 v6, s{S_T3}')
    A.I(f'v_mov_b32 v7, {L_RED + 8192 - 16}')
    A.I('ds_write_b32 v7, v6')
    A.I('s_waitcnt lgkmcnt(0)')
    A.label(ldec)
    A.I('s_barrier')
    A.I(f'v_mov_b32 v7, {L_RED + 8192 - 16}')
    A.I('ds_read_b32 v6, v7')
    A.I('s_waitcnt lgkmcnt(0)')
    A.I(f'v_readfirstlane_b32 s{S_T0}, v6')
    A.I(f's_cmp_eq_u32 s{S_T0}, 1')
    A.br(f's_cbranch_scc1 {lq2}')
    ts_tok(A, 16)
    g1_chunk(A, S_K1, l_exit)
    A.I(f's_add_u32 s{S_K1}, s{S_K1}, 1')
    lw2 = A.newlabel('L_w2')
    A.I(f's_cmp_lg_u32 s{S_K1}, 3')
    A.br(f's_cbranch_scc1 {lw2}')
    for k in range(5):
        g2_dma(A, k)
    A.br(f's_branch {L}')
    A.label(lw2)
    A.I(f's_cmp_lg_u32 s{S_K1}, 6')
    A.br(f's_cbranch_scc1 {L}')
    A.I(f's_mul_i32 s{S_T0}, s{S_H}, 37')
    A.I(f's_lshr_b32 s{S_T0}, s{S_T0}, 8')
    A.I(f's_mul_i32 s{S_T0}, s{S_T0}, 7')
    A.I(f's_sub_u32 s{S_T0}, s{S_H}, s{S_T0}')
    A.I(f's_cmp_lg_u32 s{S_T0}, s{S_G}')
    A.br(f's_cbranch_scc1 {L}')
    g2_touch(A, 5)
    A.br(f's_branch {L}')
    A.label(lq2)
    ts_tok(A, 10)
    T.att_load_mem(A, S_SEG, 'sc1')
    A.I('s_waitcnt vmcnt(0)')
    ts_tok(A, 11)
    A.check = True
    A.forget_loads()
    T.att_compute1(A)
    lc1, lc2 = A.newlabel('L_c2s'), A.newlabel('L_c2e')
    A.I(f's_cmp_eq_u32 s{S_FAST}, 0')
    A.br(f's_cbranch_scc1 {lc1}')
    T.att_compute2(A, S_SEG, '')
    A.br(f's_branch {lc2}')
    A.label(lc1)
    T.att_compute2(A, S_SEG, 'sc1')
    A.label(lc2)
    ts_tok(A, 12)
    A.I('s_waitcnt vmcnt(0)')
    A.I('s_barrier')
    ts_tok(A, 13)
    A.I(f's_lshl_b32 s{S_CA}, s{S_SEG}, 7')
    A.I(f's_add_u32 s{S_CA}, s{S_CA}, 0x{F_OPC:x}')
    l0 = A.newlabel('L_n0')
    A.I(f's_cmp_lg_u32 s{S_WV}, 0')
    A.br(f's_cbranch_scc1 {l0}')
    A.I(f's_lshl_b32 s{S_T1}, s{S_H}, 2')
    A.I(f's_add_u32 s{S_T1}, s{S_T1}, s{S_CA}')
    flag_store(A, S_T1, 6)
    poll_flags(A, S_CA, 32, 1, 6, 7, l_exit)
    A.label(l0)
    A.I('s_barrier')
    ts_tok(A, 14)
    red4(A, S_SEG, sx, l_exit)
    A.I(f's_ff1_i32_b64 s{S_SEG}, s[{S_MSK}:{S_MSK + 1}]')
    A.I(f's_bitset0_b64 s[{S_MSK}:{S_MSK + 1}], s{S_SEG}')
    lnn = A.newlabel('L_nn')
    A.I(f's_cmp_lt_u32 s{S_SEG}, 64')
    A.br(f's_cbranch_scc1 {lnn}')
    A.I(f's_mov_b32 s{S_SEG}, 999')
    ts_tok(A, 3)
    A.br(f's_branch {L}')
    A.label(lnn)
    lav = A.newlabel('L_av')
    A.I(f's_cmp_gt_u32 s{S_AV}, s{S_SEG}')
    A.br(f's_cbranch_scc1 {lav}')
    R.kv_wait(A, l_exit, S_SEG, 192, s_av=S_AV, s_base=S_PB, sleep=4, vlane16=1)
    A.label(lav)
    T.att_load_qkv(A, S_SEG)
    A.br(f's_branch {L}')
    A.label(L_fin)
    A.forget_loads()
    ts_tok(A, 4)
    g1_epilogue(A, l_exit)
    A.I(f's_add_u32 s{S_G}, s{S_G}, 1')
    tstamp(A, 17)
    A.label(l_g2)
    A.forget_loads()
    g2_main(A, l_exit)
    tstamp(A, 6, 8)
    A.label(l_exit)
    A.I('s_endpgm')


S_MSK = 56


def seg_masks():
    c1, c2 = int(os.environ.get('C1', 14)), int(os.environ.get('C2', 27))
    m = [0] * 7
    last = {g: -100 for g in range(7)}
    for s_ in range(64):
        cand = [4, 5, 6] if s_ < c1 else ([4, 5, 6, 0, 1] if s_ < c2 else list(range(7)))
        g = min(cand, key=lambda x: last[x])
        last[g] = s_
        m[g] |= 1 << s_
    return m


def ts_tok(A, i):
    if TIMING:
        A.I(f's_add_u32 s{S_G}, s{S_G}, 1')
        tstamp(A, i)
        A.I(f's_sub_u32 s{S_G}, s{S_G}, 1')


G1ACC = 120
G1T = 144
L_G1 = 0
L_RED = 65536
L_W2 = 73728


def g1_lane(A):
    t = G1T
    A.I(f'v_lshrrev_b32 v{t}, 3, v0')
    A.I(f'v_and_b32 v{t + 1}, 7, v0')
    A.I(f'v_bfe_u32 v{t + 2}, v0, 4, 1')
    A.I(f's_and_b32 s{S_T0}, s{S_WV}, 1')
    A.I(f's_lshl_b32 s{S_T0}, s{S_T0}, 1')
    A.I(f'v_or_b32 v{t + 2}, s{S_T0}, v{t + 2}')
    A.I(f'v_lshlrev_b32 v{t + 2}, 1, v{t + 2}')
    A.I(f'v_xor_b32 v{t + 1}, v{t + 1}, v{t + 2}')
    A.I(f'v_lshlrev_b32 v{t + 1}, 4, v{t + 1}')
    A.I(f'v_mul_u32_u24 v136, 3584, v{t}')
    A.I(f'v_add_u32 v136, v136, v{t + 1}')
    A.I(f'v_lshl_add_u32 v137, v{t}, 10, v{t + 1}')
    A.I(f'v_and_b32 v{t}, 15, v0')
    A.I(f'v_lshrrev_b32 v{t + 1}, 4, v0')
    A.I(f'v_lshrrev_b32 v{t + 2}, 2, v{t}')
    A.I(f'v_and_b32 v{t + 3}, 3, v{t}')
    A.I(f'v_lshl_add_u32 v{t + 4}, v{t + 1}, 3, v{t + 2}')
    A.I(f'v_lshlrev_b32 v{t + 4}, 7, v{t + 4}')
    A.I(f'v_lshl_add_u32 v{t + 4}, v{t + 3}, 3, v{t + 4}')
    A.I(f'v_lshrrev_b32 v{t + 5}, 1, v{t + 2}')
    A.I(f'v_and_b32 v{t + 6}, 1, v{t + 1}')
    A.I(f'v_lshl_add_u32 v{t + 5}, v{t + 6}, 1, v{t + 5}')
    A.I(f'v_xor_b32 v{t + 6}, s{S_T0}, v{t + 5}')
    A.I(f'v_lshl_add_u32 v138, v{t + 6}, 5, v{t + 4}')
    A.I(f'v_xor_b32 v139, 32, v138')
    A.I(f's_and_b32 s{S_T0}, s{S_WV}, 2')
    A.I(f'v_xor_b32 v{t + 6}, s{S_T0}, v{t + 5}')
    A.I(f'v_lshl_add_u32 v140, v{t + 6}, 5, v{t + 4}')
    A.I(f'v_add_u32 v140, 16384, v140')
    A.I(f'v_xor_b32 v141, 32, v140')


def g1_w1_dma(A, s_k, first=False, plus=0):
    if first:
        g1_lane(A)
    w1 = f's[{S_W1}:{S_W1 + 3}]'
    A.I(f's_add_u32 s{S_T2}, s{s_k}, {plus}')
    A.I(f's_mul_i32 s{S_T0}, s{S_T2}, {128 * 3584}')
    A.I(f's_mul_i32 s{S_T1}, s{S_WV}, {8 * 3584}')
    A.I(f's_add_u32 s{S_T0}, s{S_T0}, s{S_T1}')
    A.I(f's_lshr_b32 s{S_T1}, s{S_J}, 3')
    A.I(f's_lshl_b32 s{S_T1}, s{S_T1}, 7')
    A.I(f's_add_u32 s{S_T0}, s{S_T0}, s{S_T1}')
    A.I(f's_and_b32 s{S_T1}, s{S_T2}, 1')
    A.I(f's_lshl_b32 s{S_T1}, s{S_T1}, 15')
    A.I(f's_lshl_b32 s{S_T2}, s{S_WV}, 10')
    A.I(f's_add_u32 s{S_T1}, s{S_T1}, s{S_T2}')
    for i in range(4):
        A.I(f's_add_u32 m0, s{S_T1}, {L_G1 + i * 4096}')
        A.I(f's_add_u32 s{S_T2}, s{S_T0}, {i * 32 * 3584}')
        A.I(f'buffer_load_dwordx4 v136, {w1}, s{S_T2} offen lds')


def g1_chunk(A, s_k, l_exit):
    ws = f's[{S_WS}:{S_WS + 3}]'
    A.I(f's_lshl_b32 s{S_T0}, s{s_k}, 17')
    A.I(f's_lshl_b32 s{S_T1}, s{S_WV}, 13')
    A.I(f's_add_u32 s{S_T0}, s{S_T0}, s{S_T1}')
    A.I(f's_and_b32 s{S_T1}, s{S_J}, 7')
    A.I(f's_lshl_b32 s{S_T1}, s{S_T1}, 7')
    A.I(f's_add_u32 s{S_T0}, s{S_T0}, s{S_T1}')
    A.I(f's_add_u32 s{S_T0}, s{S_T0}, 0x{WS_HP:x}')
    A.I(f's_and_b32 s{S_T3}, s{s_k}, 1')
    A.I(f's_lshl_b32 s{S_T3}, s{S_T3}, 15')
    A.I(f's_lshl_b32 s{S_T2}, s{S_WV}, 10')
    A.I(f's_add_u32 s{S_T1}, s{S_T3}, s{S_T2}')
    for i in range(4):
        A.I(f's_add_u32 m0, s{S_T1}, {L_G1 + 16384 + i * 4096}')
        A.I(f's_add_u32 s{S_T2}, s{S_T0}, {i * 32 * 1024}')
        A.I(f'buffer_load_dwordx4 v137, {ws}, s{S_T2} offen lds')
    AD = G1T
    for j in range(4):
        A.I(f'v_add_u32 v{AD + j}, s{S_T3}, v{138 + j}')
    g1_w1_dma(A, s_k, plus=1)
    A.I('s_waitcnt vmcnt(4)')
    A.I('s_barrier')
    FR = G1T + 8

    def rd(ks):
        for j in range(4):
            for x in range(2):
                A.I(f'ds_read_b64_tr_b16 {v(FR + 16 * ks + 4 * j + 2 * x, 2)}, v{AD + j} offset:{L_G1 + (32 * ks + 4 * x) * 128}')

    rd(0)
    for ks in range(4):
        if ks < 3:
            rd(ks + 1)
            A.I('s_waitcnt lgkmcnt(8)')
        else:
            A.I('s_waitcnt lgkmcnt(0)')
        f = FR + 16 * ks
        for mbp in range(2):
            for nbp in range(2):
                d = G1ACC + (mbp * 2 + nbp) * 4
                A.I(f'v_mfma_f32_16x16x32_bf16 {v(d, 4)}, {v(f + 4 * mbp, 4)}, {v(f + 8 + 4 * nbp, 4)}, {v(d, 4)}')


def g1_epilogue(A, l_exit):
    import math
    ws, b1 = f's[{S_WS}:{S_WS + 3}]', f's[{S_B1}:{S_B1 + 3}]'
    ACC, BI, Z, Pk, TT, O = G1ACC, 150, 160, 168, 172, 188
    A.I(f's_lshr_b32 s{S_T2}, s{S_J}, 3')
    A.I(f's_lshl_b32 s{S_T0}, s{S_T2}, 7')
    A.I(f's_and_b32 s{S_T1}, s{S_WV}, 1')
    A.I(f's_lshl_b32 s{S_T1}, s{S_T1}, 6')
    A.I(f's_add_u32 s{S_T0}, s{S_T0}, s{S_T1}')
    A.I('v_lshrrev_b32 v144, 4, v0')
    A.I('v_lshlrev_b32 v144, 3, v144')
    A.I(f'buffer_load_dwordx2 v[146:147], v144, {b1}, s{S_T0} offen')
    A.I(f'buffer_load_dwordx2 v[148:149], v144, {b1}, s{S_T0} offen offset:32')
    A.I(f's_and_b32 s{S_T0}, s{S_J}, 7')
    A.I(f's_lshl_b32 s{S_T0}, s{S_T0}, 2')
    A.I(f's_and_b32 s{S_T1}, s{S_WV}, 2')
    A.I(f's_add_u32 s{S_T0}, s{S_T0}, s{S_T1}')
    A.I(f's_mul_i32 s{S_T0}, s{S_T0}, 56')
    A.I(f's_lshl_b32 s{S_T1}, s{S_T2}, 1')
    A.I(f's_add_u32 s{S_T0}, s{S_T0}, s{S_T1}')
    A.I(f's_and_b32 s{S_T1}, s{S_WV}, 1')
    A.I(f's_add_u32 s{S_T0}, s{S_T0}, s{S_T1}')
    A.I(f's_lshl_b32 s{S_T0}, s{S_T0}, 10')
    A.I(f's_add_u32 s{S_T0}, s{S_T0}, 0x{WS_U:x}')
    k1 = -2 * math.sqrt(2 / math.pi) * math.log2(math.e)
    A.I(f's_mov_b32 s{S_T2}, {f32(k1)}')
    A.I(f's_mov_b32 s{S_T3}, {f32(k1 * 0.044715)}')
    A.I('v_lshlrev_b32 v145, 4, v0')
    A.I('s_waitcnt vmcnt(0)')
    for i in range(4):
        A.I(f'v_lshlrev_b32 v{BI + 2 * i}, 16, v{146 + i}')
        A.I(f'v_and_b32 v{BI + 2 * i + 1}, 0xffff0000, v{146 + i}')
    for nbp in range(2):
        for mbp in range(2):
            for r in range(4):
                A.I(f'v_mov_b32 v{Z + 4 * mbp + r}, v{ACC + (mbp * 2 + nbp) * 4 + r}')
        T.round_bf16(A, Z, Pk)
        for i in range(8):
            A.I(f'v_add_f32 v{Z + i}, v{Z + i}, v{BI + i}')
        T.round_bf16(A, Z, Pk)
        for i in range(8):
            t = TT + i
            A.I(f'v_mul_f32 v{t}, v{Z + i}, v{Z + i}')
            A.I(f'v_mov_b32 v{t + 8}, s{S_T2}')
            A.I(f'v_fmac_f32 v{t + 8}, s{S_T3}, v{t}')
            A.I(f'v_mul_f32 v{t}, v{t + 8}, v{Z + i}')
            A.I(f'v_exp_f32 v{t}, v{t}')
        for i in range(8):
            A.I(f'v_add_f32 v{TT + i}, 1.0, v{TT + i}')
            A.I(f'v_rcp_f32 v{TT + i}, v{TT + i}')
        for i in range(8):
            A.I(f'v_mul_f32 v{Z + i}, v{Z + i}, v{TT + i}')
        o = O + 4 * nbp
        for i in range(4):
            A.I(f'v_cvt_pk_bf16_f32 v{o + i}, v{Z + 2 * i}, v{Z + 2 * i + 1}')
        A.I(f'buffer_store_dwordx4 {v(o, 4)}, v145, {ws}, s{S_T0} offen sc1')
        A.I(f's_add_u32 s{S_T0}, s{S_T0}, {56 * 1024}')
    A.I('s_waitcnt vmcnt(0)')
    A.I('s_barrier')
    l = A.newlabel('L_ue')
    A.I(f's_cmp_lg_u32 s{S_WV}, 0')
    A.br(f's_cbranch_scc1 {l}')
    A.I(f's_lshl_b32 s{S_T2}, s{S_G}, 7')
    A.I(f's_add_u32 s{S_T2}, s{S_T2}, 0x{F_LU:x}')
    A.I(f's_lshl_b32 s{S_T3}, s{S_G}, 2')
    A.I(f's_add_u32 s{S_T3}, s{S_T3}, 0x{F_GF + 256:x}')
    garrive(A, S_T2, S_T3, 144, l_exit)
    A.label(l)


def g2_slot(k):
    k %= 9
    return (L_W2 + 16384 * k) if k < 5 else 16384 * (k - 5)


def g2_setup(A):
    A.I(f's_load_dwordx2 s[16:17], s[0:1], {KA_W2}')
    A.I('s_waitcnt lgkmcnt(0)')
    make_srd(A, S_W2, 16, 1792 * 4096)
    t = G1T
    A.I(f'v_lshrrev_b32 v{t}, 3, v0')
    A.I(f'v_and_b32 v{t + 1}, 7, v0')
    A.I(f'v_lshrrev_b32 v{t + 2}, 4, v0')
    A.I(f'v_lshlrev_b32 v{t + 2}, 1, v{t + 2}')
    A.I(f'v_xor_b32 v{t + 1}, v{t + 1}, v{t + 2}')
    A.I(f'v_lshlrev_b32 v{t + 1}, 4, v{t + 1}')
    A.I(f'v_lshl_add_u32 v142, v{t}, 12, v{t + 1}')
    A.I(f's_lshl_b32 s{S_BO2}, s{S_WV}, 15')
    A.I(f's_lshr_b32 s{S_T0}, s{S_J2}, 3')
    A.I(f's_lshl_b32 s{S_T0}, s{S_T0}, 7')
    A.I(f's_add_u32 s{S_BO2}, s{S_BO2}, s{S_T0}')
    A.I(f's_lshl_b32 s{S_LB2}, s{S_WV}, 10')


def g2_dma(A, k, vr=142):
    w2 = f's[{S_W2}:{S_W2 + 3}]'
    for i in range(4):
        A.I(f's_add_u32 m0, s{S_LB2}, {g2_slot(k) + i * 4096}')
        A.I(f's_add_u32 s{S_T0}, s{S_BO2}, {(k * 128 + i * 32) * 4096}')
        A.I(f'buffer_load_dwordx4 v{vr}, {w2}, s{S_T0} offen lds')


def g2_touch(A, k0):
    w2 = f's[{S_W2}:{S_W2 + 3}]'
    A.I('v_lshlrev_b32 v143, 12, v0')
    A.I(f's_lshr_b32 s{S_T0}, s{S_J2}, 3')
    A.I(f's_lshl_b32 s{S_T0}, s{S_T0}, 7')
    A.I(f's_lshl_b32 s{S_T1}, s{S_WV}, 18')
    A.I(f's_add_u32 s{S_T0}, s{S_T0}, s{S_T1}')
    for r0 in range(k0 * 128, 1792, 256):
        A.I(f's_add_u32 s{S_T1}, s{S_T0}, {r0 * 4096}')
        A.I(f'buffer_load_dword v12, v143, {w2}, s{S_T1} offen')


def g2_main(A, l_exit):
    ws = f's[{S_WS}:{S_WS + 3}]'
    S_O, S_B2 = S_W1, S_B1
    A.I(f's_load_dwordx4 s[16:19], s[0:1], {KA_B2}')
    for k in range(5, 9):
        g2_dma(A, k)
    A.check = False
    A.I('s_waitcnt lgkmcnt(0)')
    A.check = True
    make_srd(A, S_B2, 16, 4096)
    make_srd(A, S_O, 18, 2048 * 1024)
    b2, out = f's[{S_B2}:{S_B2 + 3}]', f's[{S_O}:{S_O + 3}]'
    S_AO, S_EO = 36, 37
    A.I(f's_and_b32 s{S_T0}, s{S_J2}, 7')
    A.I(f's_lshl_b32 s{S_T0}, s{S_T0}, 2')
    A.I(f's_add_u32 s{S_T0}, s{S_T0}, s{S_WV}')
    A.I(f's_mul_i32 s{S_AO}, s{S_T0}, {56 * 1024}')
    A.I(f's_add_u32 s{S_AO}, s{S_AO}, 0x{WS_U:x}')
    A.I(f's_lshr_b32 s{S_T1}, s{S_J2}, 3')
    A.I(f's_lshl_b32 s{S_EO}, s{S_T1}, 16')
    A.I(f's_lshl_b32 s{S_T0}, s{S_T0}, 5')
    A.I(f's_add_u32 s{S_EO}, s{S_EO}, s{S_T0}')
    A.I('v_lshlrev_b32 v5, 4, v0')
    A.I('v_and_b32 v1, 15, v0')
    A.I('v_lshrrev_b32 v2, 4, v0')
    A.I('v_lshrrev_b32 v3, 2, v1')
    A.I('v_and_b32 v6, 3, v1')
    A.I('v_lshl_add_u32 v7, v2, 2, v3')
    A.I('v_bfe_u32 v8, v7, 1, 2')
    A.I('v_lshlrev_b32 v7, 7, v7')
    A.I('v_lshl_add_u32 v7, v6, 3, v7')
    A.I('v_lshl_add_u32 v10, v8, 5, v7')
    for j in range(1, 4):
        A.I(f'v_xor_b32 v{10 + j}, {32 * j}, v10')
    WIN = [0, L_W2, L_W2 + 49152]
    for wi in (1, 2):
        for j in range(4):
            A.I(f'v_add_u32 v{10 + 4 * wi + j}, {WIN[wi]}, v{10 + j}')
    A.I('v_lshlrev_b32 v22, 10, v1')
    A.I('v_lshl_add_u32 v22, v2, 3, v22')
    A.I('v_lshlrev_b32 v23, 1, v1')
    A.I(f's_lshl_b32 s{S_T1}, s{S_T1}, 7')
    HB, BB = 24, 32
    for nb in range(4):
        A.I(f'buffer_load_ushort v{BB + nb}, v23, {b2}, s{S_T1} offen offset:{32 * nb}')
    ACC, FR = 36, 64
    NBUF = 12
    A.I('s_waitcnt vmcnt(0)')
    A.I('s_barrier')
    A.I('v_mov_b32 v4, v142')

    def rd(g):
        k, ks = g >> 2, g & 3
        sl = g2_slot(k)
        wi = 0 if sl < 65536 else (1 if sl < WIN[2] else 2)
        so = sl - WIN[wi]
        b = FR + 16 * (g % NBUF)
        for j in range(4):
            for x in range(2):
                A.I(f'ds_read_b64_tr_b16 {v(b + 4 * j + 2 * x, 2)}, v{10 + 4 * wi + j} offset:{so + (32 * ks + 16 * x) * 128}')

    for g in range(NBUF):
        rd(g)
        A.I('s_waitcnt lgkmcnt(4)')
    A.I('s_waitcnt lgkmcnt(0)')
    A.I('s_barrier')
    for k in (9, 10, 11):
        g2_dma(A, k, 4)
    l0 = A.newlabel('L_g20')
    A.I(f's_cmp_lg_u32 s{S_WV}, 0')
    A.br(f's_cbranch_scc1 {l0}')
    A.I(f's_and_b32 s{S_T1}, s{S_J2}, 7')
    A.I(f's_lshl_b32 s{S_T1}, s{S_T1}, 9')
    A.I(f's_add_u32 s{S_T1}, s{S_T1}, 0x{F_GF + 256:x}')
    poll_flags(A, S_T1, 7, 1, 6, 7, l_exit, sleep=2)
    A.label(l0)
    A.I('s_waitcnt vmcnt(0)')
    A.I('s_barrier')
    tstamp(A, 5, 8)
    vmq = []

    def aload(k):
        A.I(f's_add_u32 s{S_T1}, s{S_AO}, {k * 4096}')
        for ks in range(4):
            A.I(f'buffer_load_dwordx4 {a(16 * k + 4 * ks, 4)}, v5, {ws}, s{S_T1} offen offset:{1024 * ks}')
            vmq.append(('a', 4 * k + ks))

    def need(names):
        idx = max([i for i, p in enumerate(vmq) if p in names] + [-1])
        if idx >= 0:
            A.I(f's_waitcnt vmcnt({len(vmq) - 1 - idx})')
            del vmq[:idx + 1]

    for k in range(14):
        aload(k)
    for nb in range(4):
        A.I(f's_add_u32 s{S_T0}, s{S_EO}, 0x{WS_H + nb * 16384:x}')
        A.I(f'buffer_load_dwordx2 {v(HB + 2 * nb, 2)}, v22, {ws}, s{S_T0} offen')
        vmq.append(('h', 0))
    for g in range(56):
        need([('a', g)])
        if g == 0 and TIMING:
            A.check = False
            tstamp(A, 19, 8)
            vmq.append(('ts', 0))
            A.check = True
        if g >= NBUF:
            A.I('s_waitcnt lgkmcnt(8)' if g < 45 else 's_waitcnt lgkmcnt(0)')
        b = FR + 16 * (g % NBUF)
        for nb in range(4):
            d = ACC + 4 * nb
            c = '0' if g == 0 else v(d, 4)
            A.I(f'v_mfma_f32_16x16x32_bf16 {v(d, 4)}, {a(4 * g, 4)}, {v(b + 4 * nb, 4)}, {c}')
        ng = g + NBUF
        if ng < 56:
            if ng == 20 + 0:
                pass
            if ng == 20:
                A.I('s_waitcnt lgkmcnt(0)')
                A.I('s_barrier')
                for k in (12, 13):
                    g2_dma(A, k, 4)
                    vmq.extend([('w', k)] * 4)
            if ng == 48:
                need([('w', 13)])
                A.I('s_barrier')
            rd(ng)
    A.I('s_waitcnt lgkmcnt(0)')
    A.I('s_waitcnt vmcnt(0)')
    tstamp(A, 18, 8)
    for nb in range(4):
        d = ACC + 4 * nb
        t = 52
        A.I(f'v_cvt_pk_bf16_f32 v{t}, v{d}, v{d + 1}')
        A.I(f'v_cvt_pk_bf16_f32 v{t + 1}, v{d + 2}, v{d + 3}')
        A.I(f'v_lshlrev_b32 v{t + 2}, 16, v{BB + nb}')
        for i in range(2):
            A.I(f'v_lshlrev_b32 v{d + 2 * i}, 16, v{t + i}')
            A.I(f'v_and_b32 v{d + 2 * i + 1}, 0xffff0000, v{t + i}')
        for r in range(4):
            A.I(f'v_add_f32 v{d + r}, v{d + r}, v{t + 2}')
        A.I(f'v_cvt_pk_bf16_f32 v{t}, v{d}, v{d + 1}')
        A.I(f'v_cvt_pk_bf16_f32 v{t + 1}, v{d + 2}, v{d + 3}')
        for i in range(2):
            A.I(f'v_lshlrev_b32 v{d + 2 * i}, 16, v{t + i}')
            A.I(f'v_and_b32 v{d + 2 * i + 1}, 0xffff0000, v{t + i}')
            A.I(f'v_lshlrev_b32 v{t + 2}, 16, v{HB + 2 * nb + i}')
            A.I(f'v_and_b32 v{t + 3}, 0xffff0000, v{HB + 2 * nb + i}')
            A.I(f'v_add_f32 v{d + 2 * i}, v{d + 2 * i}, v{t + 2}')
            A.I(f'v_add_f32 v{d + 2 * i + 1}, v{d + 2 * i + 1}, v{t + 3}')
        o = 56 + 2 * nb
        A.I(f'v_cvt_pk_bf16_f32 v{o}, v{d}, v{d + 1}')
        A.I(f'v_cvt_pk_bf16_f32 v{o + 1}, v{d + 2}, v{d + 3}')
        A.I(f's_add_u32 s{S_T0}, s{S_EO}, {nb * 16384}')
        A.I(f'buffer_store_dwordx2 {v(o, 2)}, v22, {out}, s{S_T0} offen')


def red4(A, s_seg, srd_x, l_exit):
    ws = f's[{S_WS}:{S_WS + 3}]'
    B, Z, Pk, XR, t0, t1, va = 192, 144, 152, 156, 160, 161, 162
    A.I(f's_lshl_b32 s{S_T2}, s{s_seg}, 5')
    A.I(f's_add_u32 s{S_T2}, s{S_T2}, s{S_H}')
    A.I(f's_lshl_b32 s{S_T0}, s{S_T2}, 15')
    A.I(f's_lshl_b32 s{S_T1}, s{S_WV}, 13')
    A.I(f's_add_u32 s{S_T0}, s{S_T0}, s{S_T1}')
    A.I(f's_add_u32 s{S_T0}, s{S_T0}, 0x{WS_OP:x}')
    A.I(f's_add_u32 s{S_T1}, s{S_T0}, 4096')
    for hh in range(8):
        so = S_T0 if hh < 4 else S_T1
        A.I(f'buffer_load_dwordx4 {v(B + 4 * hh, 4)}, v1, {ws}, s{so} offen offset:{1024 * (hh & 3)} sc1')
    A.I(f'v_lshrrev_b32 v{va}, 2, v0')
    A.I(f'v_lshlrev_b32 v{va}, 6, v{va}')
    A.I(f'v_and_b32 v{t0}, 3, v0')
    A.I(f'v_lshl_add_u32 v{va}, v{t0}, 3, v{va}')
    A.I(f's_lshl_b32 s{S_T3}, s{S_T2}, 10')
    A.I(f'buffer_load_dwordx2 {v(XR, 2)}, v{va}, {srd_x}, s{S_T3} offen')
    A.I(f'buffer_load_dwordx2 {v(XR + 2, 2)}, v{va}, {srd_x}, s{S_T3} offen offset:32')
    for hh in range(8):
        A.I(f's_waitcnt vmcnt({9 - hh})')
        for i in range(4):
            r = B + 4 * hh + i
            if hh == 0:
                A.I(f'v_lshlrev_b32 v{Z + 2 * i}, 16, v{r}')
                A.I(f'v_and_b32 v{Z + 2 * i + 1}, 0xffff0000, v{r}')
            else:
                A.I(f'v_lshlrev_b32 v{t0}, 16, v{r}')
                A.I(f'v_and_b32 v{t1}, 0xffff0000, v{r}')
                A.I(f'v_add_f32 v{Z + 2 * i}, v{Z + 2 * i}, v{t0}')
                A.I(f'v_add_f32 v{Z + 2 * i + 1}, v{Z + 2 * i + 1}, v{t1}')
    A.I(f's_lshl_b32 s{S_T0}, s{S_WV}, 11')
    A.I(f'v_add_u32 v{t0}, s{S_T0}, v1')
    A.I(f'v_add_u32 v{t0}, {L_RED}, v{t0}')
    A.I(f'ds_write_b128 v{t0}, {v(Z, 4)}')
    A.I(f'ds_write_b128 v{t0}, {v(Z + 4, 4)} offset:1024')
    A.I('s_waitcnt lgkmcnt(0) vmcnt(0)')
    A.I('s_barrier')
    ts_tok(A, 15)
    l = A.newlabel('L_r4')
    A.I(f's_cmp_lg_u32 s{S_WV}, 0')
    A.br(f's_cbranch_scc1 {l}')
    for w_ in range(1, 4):
        for j in range(2):
            A.I(f'ds_read_b128 {v(B + 8 * w_ + 4 * j, 4)}, v{t0} offset:{2048 * w_ + 1024 * j}')
    A.I('s_waitcnt lgkmcnt(0)')
    for w_ in range(1, 4):
        for i in range(8):
            A.I(f'v_add_f32 v{Z + i}, v{Z + i}, v{B + 8 * w_ + i}')
    T.round_bf16(A, Z, Pk)
    for i in range(4):
        A.I(f'v_lshlrev_b32 v{t0}, 16, v{XR + i}')
        A.I(f'v_and_b32 v{t1}, 0xffff0000, v{XR + i}')
        A.I(f'v_add_f32 v{Z + 2 * i}, v{Z + 2 * i}, v{t0}')
        A.I(f'v_add_f32 v{Z + 2 * i + 1}, v{Z + 2 * i + 1}, v{t1}')
    T.round_bf16(A, Z, Pk)
    A.I(f's_add_u32 s{S_T0}, s{S_T3}, 0x{WS_H:x}')
    A.I(f'buffer_store_dwordx2 {v(Pk, 2)}, v{va}, {ws}, s{S_T0} offen sc1')
    A.I(f'buffer_store_dwordx2 {v(Pk + 2, 2)}, v{va}, {ws}, s{S_T0} offen offset:32 sc1')
    T.ln_regs(A, Z, t0, t1)
    T.round_bf16(A, Z, XR)
    T.ln_regs(A, Z, t0, t1)
    for i in range(4):
        A.I(f'v_cvt_pk_bf16_f32 v{XR + i}, v{Z + 2 * i}, v{Z + 2 * i + 1}')
    A.I(f's_add_u32 s{S_T0}, s{S_T3}, 0x{WS_HP:x}')
    A.I(f'buffer_store_dwordx2 {v(XR, 2)}, v{va}, {ws}, s{S_T0} offen sc1')
    A.I(f'buffer_store_dwordx2 {v(XR + 2, 2)}, v{va}, {ws}, s{S_T0} offen offset:32 sc1')
    A.I(f's_lshl_b32 s{S_T2}, s{s_seg}, 7')
    A.I(f's_add_u32 s{S_T2}, s{S_T2}, 0x{F_LH:x}')
    A.I(f's_lshl_b32 s{S_T3}, s{s_seg}, 2')
    A.I(f's_add_u32 s{S_T3}, s{S_T3}, 0x{F_GF:x}')
    A.I('s_waitcnt vmcnt(0)')
    garrive(A, S_T2, S_T3, t0, l_exit)
    A.label(l)


if __name__ == '__main__':
    A = Asm()
    nm = NAME + '_kernel'
    mega_kernel(A, nm)
    hd = header([(nm, 256, 256, R.L_TOTAL)])
    if os.environ.get('FINAL'):
        hd = hd.replace(f'@launch kernel={nm} ', '@launch ')
    txt = hd + A.text() + '.section .rodata,"a"\n' + kernel_desc(nm, 512, 256)
    out = os.environ.get('OUT', 'm3.s')
    open(out, 'w').write(txt)
    print(len(txt))
```

```python
import os
os.environ.setdefault('PB_DELAY', '7'); os.environ.setdefault('AF_DELAY', '2'); os.environ.setdefault('AF_GAP', '2')
from common import *
import tok as T
import rec9 as R
from tok import f32, S_WS, S_W, S_X, S_H, S_WV, S_G, S_T0, S_T1, S_T2, S_T3

S_DBG = 84
S_SPIN = R.S_SPIN
S_XCC = 83
S_LNO = 82
F_OPC = WS_FLAG + 0x4000
F_LH = WS_FLAG + 0x6000
F_LU = WS_FLAG + 0x8000
F_GF = WS_FLAG + 0x8400
S_FAST = S_XCC
D_GB, D_OVF, D_WEIRD, D_TS = 128, 36, 40, 192
S_J, S_BO2, S_LB2 = 100, 101, 3
S_J2 = 63
S_W1, S_B1, S_W2 = 88, 92, 96
NEARLY = int(os.environ.get('NEARLY', 2))
STAG = int(os.environ.get('STAG', 4))
STAG0 = int(os.environ.get('STAG0', 1))
TIMING = bool(os.environ.get('TIMING'))
PLF = os.environ.get('PLF', 'sc1').replace('_', ' ')


def lane0(A, body):
    A.I('s_mov_b64 exec, 1')
    body()
    A.I('s_mov_b64 exec, -1')


def poll_eq(A, srd, s_off, imm, expect, vt, l_exit, sleep=0):
    l = A.newlabel('L_poll')
    A.label(l)
    so = f's{s_off}' if s_off is not None else '0'
    A.I(f'buffer_load_dword v{vt}, off, {srd}, {so} offset:{imm} sc1')
    A.I(f's_sub_u32 s{S_SPIN}, s{S_SPIN}, 1')
    A.I(f's_cbranch_scc1 {l_exit}')
    A.I('s_waitcnt vmcnt(0)')
    A.I(f'v_readfirstlane_b32 s{S_T0}, v{vt}')
    ld = A.newlabel('L_pd')
    A.I(f's_cmp_eq_u32 s{S_T0}, {expect}')
    A.I(f's_cbranch_scc1 {ld}')
    if sleep:
        A.I(f's_sleep {sleep}')
    A.br(f's_branch {l}')
    A.label(ld)


def poll_flags(A, s_off, nlanes, width, vt, va, l_exit, sleep=0):
    ws = f's[{S_WS}:{S_WS + 3}]'
    l, ld = A.newlabel('L_pf'), A.newlabel('L_pfd')
    A.I(f'v_lshlrev_b32 v{va}, {2 if width == 1 else 3}, v0')
    assert nlanes <= 32
    A.I(f's_mov_b32 exec_lo, 0x{(1 << nlanes) - 1:x}')
    A.I('s_mov_b32 exec_hi, 0')
    A.label(l)
    if width == 1:
        A.I(f'buffer_load_dword v{vt}, v{va}, {ws}, s{s_off} offen {PLF}')
    else:
        A.I(f'buffer_load_dwordx2 {v(vt, 2)}, v{va}, {ws}, s{s_off} offen {PLF}')
    A.I(f's_sub_u32 s{S_SPIN}, s{S_SPIN}, 1')
    A.I(f's_cbranch_scc1 {l_exit}')
    A.I('s_waitcnt vmcnt(0)')
    if width == 2:
        A.I(f'v_min_u32 v{vt}, v{vt}, v{vt + 1}')
    A.I(f'v_cmp_eq_u32 vcc, 0, v{vt}')
    A.I(f's_cbranch_vccz {ld}')
    if sleep:
        A.I(f's_sleep {sleep}')
    A.br(f's_branch {l}')
    A.label(ld)
    A.I('s_mov_b64 exec, -1')


def flag_store(A, s_addr, vt):
    ws = f's[{S_WS}:{S_WS + 3}]'
    l1, l2 = A.newlabel('L_fs'), A.newlabel('L_fs')
    A.I(f'v_mov_b32 v{vt}, 1')
    A.I('s_mov_b64 exec, 1')
    A.I(f's_cmp_eq_u32 s{S_FAST}, 0')
    A.br(f's_cbranch_scc1 {l1}')
    A.I(f'buffer_store_dword v{vt}, off, {ws}, s{s_addr}')
    A.br(f's_branch {l2}')
    A.label(l1)
    A.I(f'buffer_store_dword v{vt}, off, {ws}, s{s_addr} sc1')
    A.label(l2)
    A.I('s_mov_b64 exec, -1')


def garrive(A, s_line, s_goff, vt, l_exit):
    ws = f's[{S_WS}:{S_WS + 3}]'
    A.I(f's_lshl_b32 s{S_T1}, s{S_H}, 2')
    A.I(f's_add_u32 s{S_T1}, s{S_T1}, s{s_line}')
    flag_store(A, S_T1, vt)
    l = A.newlabel('L_ga')
    A.I(f's_cmp_lg_u32 s{S_H}, 0')
    A.br(f's_cbranch_scc1 {l}')
    poll_flags(A, s_line, 32, 1, vt, vt + 1, l_exit)
    A.I(f'v_lshlrev_b32 v{vt + 1}, 9, v0')
    A.I(f'v_mov_b32 v{vt}, 1')
    A.I('s_mov_b64 exec, 0xff')
    A.I(f'buffer_store_dword v{vt}, v{vt + 1}, {ws}, s{s_goff} offen sc1')
    A.I('s_mov_b64 exec, -1')
    A.label(l)


def wg_poll_eq(A, srd, s_off, imm, expect, vt, l_exit, sleep=0):
    l0 = A.newlabel('L_wgp')
    A.I(f's_cmp_lg_u32 s{S_WV}, 0')
    A.br(f's_cbranch_scc1 {l0}')
    poll_eq(A, srd, s_off, imm, expect, vt, l_exit, sleep)
    A.label(l0)
    A.I('s_barrier')


def tstamp(A, idx, r=14):
    if not TIMING:
        return
    l = A.newlabel('L_ts')
    A.I(f's_cmp_lg_u32 s{S_WV}, 0')
    A.br(f's_cbranch_scc1 {l}')
    A.I('s_memrealtime s[80:81]')
    A.I('s_waitcnt lgkmcnt(0)')
    A.I(f'v_mov_b32 v{r}, s80')
    A.I(f'v_mov_b32 v{r + 1}, s81')
    A.I(f's_lshl_b32 s80, s{S_G}, 5')
    A.I(f's_add_u32 s80, s80, s{S_H}')
    A.I('s_lshl_b32 s80, s80, 8')
    A.I(f's_add_u32 s80, s80, 0x{WS_DBG:x}')
    A.I(f'buffer_store_dwordx2 {v(r, 2)}, off, s[{S_WS}:{S_WS + 3}], s80 offset:{8 * idx}')
    A.label(l)


def mega_kernel(A, name):
    kernel_begin(A, name)
    l_exit = A.newlabel('L_exit')
    P_WS, P_DBG, P_Q, P_K, P_V, P_O, P_M0, P_X = 16, 18, 20, 22, 24, 26, 28, 30
    ws, dbg, sx = f's[{S_WS}:{S_WS + 3}]', f's[{S_DBG}:{S_DBG + 3}]', f's[{S_X}:{S_X + 3}]'
    A.I('s_cmp_ge_u32 s2, 256')
    A.I(f's_cbranch_scc1 {l_exit}')
    A.I(f's_load_dwordx2 s[{P_WS}:{P_WS + 1}], s[0:1], {KA_WS}')
    A.I(f's_load_dwordx2 s[{P_DBG}:{P_DBG + 1}], s[0:1], {KA_DBG}')
    A.I(f's_load_dwordx4 s[{P_Q}:{P_Q + 3}], s[0:1], {KA_WQ}')
    A.I(f's_load_dwordx4 s[{P_V}:{P_V + 3}], s[0:1], {KA_WV}')
    A.I(f's_load_dwordx2 s[{P_M0}:{P_M0 + 1}], s[0:1], {KA_MEM0}')
    A.I(f's_load_dwordx2 s[{P_X}:{P_X + 1}], s[0:1], {KA_X}')
    A.I('v_lshrrev_b32 v1, 6, v0')
    A.I('v_and_b32 v0, 63, v0')
    A.I(f'v_readfirstlane_b32 s{S_WV}, v1')
    A.I(f's_getreg_b32 s{S_XCC}, hwreg(HW_REG_XCC_ID)')
    A.I(f's_mov_b32 s{S_SPIN}, 0x80000')
    A.I('s_waitcnt lgkmcnt(0)')
    make_srd(A, S_WS, P_WS, WS_SIZE)
    make_srd(A, S_DBG, P_DBG, 256)
    make_srd(A, S_X, P_X, 2048 * 1024)
    A.I(f's_mov_b32 s{S_LNO}, -1')
    lr = A.newlabel('L_role_done')
    A.I(f's_cmp_lg_u32 s{S_WV}, 0')
    A.br(f's_cbranch_scc1 {lr}')
    A.I('s_mov_b64 exec, 1')
    A.I('v_mov_b32 v2, 1')
    lw = A.newlabel('L_nw')
    A.I(f's_cmp_lt_u32 s{S_XCC}, 8')
    A.br(f's_cbranch_scc1 {lw}')
    A.I(f'buffer_atomic_or v2, off, {dbg}, 0 offset:{D_WEIRD}')
    A.I('s_waitcnt vmcnt(0)')
    A.label(lw)
    A.I(f's_and_b32 s{S_G}, s{S_XCC}, 7')
    A.I(f's_lshl_b32 s{S_T0}, s{S_G}, 2')
    A.I(f'buffer_atomic_add v2, off, {dbg}, s{S_T0} sc0')
    A.I('s_waitcnt vmcnt(0)')
    A.I(f'v_readfirstlane_b32 s{S_H}, v2')
    lok = A.newlabel('L_rok')
    A.I(f's_cmp_lt_u32 s{S_H}, 32')
    A.br(f's_cbranch_scc1 {lok}')
    A.I('v_mov_b32 v2, 1')
    A.I(f'buffer_atomic_add v2, off, {dbg}, 0 offset:{D_OVF} sc0')
    A.I('s_waitcnt vmcnt(0)')
    A.I(f'v_readfirstlane_b32 s{S_T3}, v2')
    lo = A.newlabel('L_ovf')
    A.label(lo)
    A.I(f'buffer_load_dwordx4 v[4:7], off, {dbg}, 0 sc1')
    A.I(f'buffer_load_dwordx4 v[8:11], off, {dbg}, 0 offset:16 sc1')
    A.I(f's_sub_u32 s{S_SPIN}, s{S_SPIN}, 1')
    A.I(f's_cbranch_scc1 {l_exit}')
    A.I('s_waitcnt vmcnt(0)')
    A.I(f's_mov_b32 s{S_T0}, 0')
    for i in range(8):
        A.I(f'v_readfirstlane_b32 s{64 + i}, v{4 + i}')
    for i in range(8):
        A.I(f's_add_u32 s{S_T0}, s{S_T0}, s{64 + i}')
    A.I(f's_cmp_lt_u32 s{S_T0}, 256')
    A.br(f's_cbranch_scc1 {lo}')
    for g in range(8):
        A.I(f's_min_u32 s{S_T0}, s{64 + g}, 32')
        A.I(f's_sub_u32 s{S_T1}, 32, s{S_T0}')
        A.I(f's_mov_b32 s{S_G}, {g}')
        A.I(f's_add_u32 s{S_H}, s{S_T0}, s{S_T3}')
        A.I(f's_cmp_lt_u32 s{S_T3}, s{S_T1}')
        A.br(f's_cbranch_scc1 {lok}')
        A.I(f's_sub_u32 s{S_T3}, s{S_T3}, s{S_T1}')
    A.label(lok)
    A.I(f's_lshl_b32 s{S_T0}, s{S_G}, 8')
    A.I(f's_or_b32 s{S_T0}, s{S_T0}, s{S_H}')
    A.I(f'v_mov_b32 v2, s{S_T0}')
    A.I('v_mov_b32 v3, 0')
    A.I('ds_write_b32 v3, v2')
    A.I('s_waitcnt lgkmcnt(0)')
    A.I('s_mov_b64 exec, -1')
    A.label(lr)
    A.I('s_barrier')
    A.I('v_mov_b32 v3, 0')
    A.I('ds_read_b32 v2, v3')
    A.I('s_waitcnt lgkmcnt(0)')
    A.I(f'v_readfirstlane_b32 s{S_T0}, v2')
    A.I(f's_and_b32 s{S_H}, s{S_T0}, 31')
    A.I(f's_bfe_u32 s{S_G}, s{S_T0}, 0x30008')
    A.I('s_barrier')
    tstamp(A, 0)

    def ln_and_arrive(ln=True):
        if ln:
            l = A.newlabel('L_nl2')
            A.I(f's_cmp_eq_u32 s{S_LNO}, -1')
            A.br(f's_cbranch_scc1 {l}')
            A.check = False
            T.ln1_compute(A, ws, S_LNO, 'sc1', 0)
            A.check = True
            A.label(l)
        A.I('s_waitcnt vmcnt(0)')
        A.I('s_barrier')
        l = A.newlabel('L_na')
        A.I(f's_cmp_lg_u32 s{S_WV}, 0')
        A.br(f's_cbranch_scc1 {l}')
        A.I('v_mov_b32 v23, 1')
        lane0(A, lambda: A.I(f'buffer_atomic_add v23, off, {dbg}, 0 offset:{D_GB}'))
        A.I('s_waitcnt vmcnt(0)')
        A.label(l)

    l_tok = A.newlabel('L_tok')
    l_g2 = A.newlabel('L_g2')
    A.I(f's_cmp_lg_u32 s{S_G}, 0')
    A.br(f's_cbranch_scc1 {l_tok}')

    A.I(f'v_mov_b32 v{R.LANE}, v0')
    R.setup_consts(A)

    def thook():
        A.check = False
        A.I(f's_lshl_b32 s{S_T0}, s{S_H}, 6')
        A.I(f's_lshl_b32 s{S_T1}, s{S_WV}, 2')
        A.I(f's_add_u32 s{S_T0}, s{S_T0}, s{S_T1}')
        A.I(f's_add_u32 s{S_LNO}, s{S_T0}, 0x{R.F_KMP:x}')
        A.I('v_mov_b32 v24, 0')
        lane0(A, lambda: A.I(f'buffer_store_dword v24, off, {ws}, s{S_LNO} sc1'))
        R.init_exchange(A, P_M0, 'sc1', rb=24)
        ln_and_arrive(ln=False)
        tstamp(A, 8, 24)
        A.check = True
        A.forget_loads()

    S_OK = 25

    def batch():
        A.I(f'buffer_load_dword v25, off, {dbg}, 0 sc1')
        A.I(f'buffer_load_dword v26, off, {dbg}, 0 offset:{D_WEIRD} sc1')
        R.kv_load(A, 28, R.V_L16, R.S_RA)

    def h_issue(sc):
        if sc == 3:
            A.I(f'buffer_load_dword v24, off, {dbg}, 0 offset:{D_GB} sc1')
            return
        A.I(f's_lshl_b32 s{R.S_RA}, s{S_H}, 7')
        A.I(f's_add_u32 s{R.S_RA}, s{R.S_RA}, 0x{R.F_PROG:x}')
        A.I(f's_lshl_b32 s{R.S_KVN}, s{S_H}, 13')
        A.I(f's_add_u32 s{R.S_KVN}, s{R.S_KVN}, s{R.S_W11}')
        A.I(f's_add_u32 s{R.S_KVN}, s{R.S_KVN}, 0x{WS_KF:x}')
        A.I(f's_add_u32 s{R.S_KVM0}, s{R.S_W11}, {R.L_KV}')
        batch()

    def evaluate(l_fail):
        R.kv_eval(A, 28, R.V_L16, R.S_AV)
        A.I(f'v_readfirstlane_b32 s{S_T0}, v24')
        A.I(f'v_readfirstlane_b32 s{S_T2}, v25')
        A.I(f'v_readfirstlane_b32 s{S_T3}, v26')
        A.I(f's_cmp_lg_u32 s{S_T0}, 256')
        A.I(f's_cbranch_scc1 {l_fail}')
        A.I(f's_cmp_eq_u32 s{R.S_AV}, 0')
        A.I(f's_cbranch_scc1 {l_fail}')
        A.I(f's_cmp_ge_u32 s{S_T2}, 32')
        A.I(f's_cselect_b32 s{S_XCC}, 1, 0')
        A.I(f's_cmp_eq_u32 s{S_T3}, 0')
        A.I(f's_cselect_b32 s{S_XCC}, s{S_XCC}, 0')
        R.kv_dma(A)

    def h_check():
        lf = A.newlabel('L_hf')
        A.I(f's_mov_b32 s{S_OK}, 0')
        evaluate(lf)
        A.I(f's_mov_b32 s{S_OK}, 1')
        A.label(lf)

    R.stage_weights(A, [P_Q, P_K, P_V, P_O], hook=thook, hook_issue=h_issue, hook_check=h_check)
    l = A.newlabel('L_ns')
    A.I(f's_cmp_lg_u32 s{S_WV}, 0')
    A.br(f's_cbranch_scc1 {l}')
    A.I('v_mov_b32 v2, 1')
    lane0(A, lambda: A.I(f'buffer_atomic_add v2, off, {dbg}, 0 offset:{D_TS}'))
    A.label(l)
    tstamp(A, 1)
    A.I(f's_mov_b32 s{R.S_KP}, s{S_LNO}')
    lgo_, lre = A.newlabel('L_tgo'), A.newlabel('L_tre')
    A.I(f's_cmp_eq_u32 s{S_OK}, 1')
    A.br(f's_cbranch_scc1 {lgo_}')
    A.label(lre)
    A.I('s_sleep 4')
    A.I(f'buffer_load_dword v24, off, {dbg}, 0 offset:{D_GB} sc1')
    A.I('s_waitcnt vmcnt(0)')
    batch()
    A.I(f's_sub_u32 s{S_SPIN}, s{S_SPIN}, 1')
    A.I(f's_cbranch_scc1 {l_exit}')
    A.I('s_waitcnt vmcnt(0)')
    evaluate(lre)
    A.label(lgo_)
    A.I('s_waitcnt vmcnt(0)')
    A.I('s_barrier')
    tstamp(A, 2)
    l_slow = A.newlabel('L_slowmode')
    l_tdone = A.newlabel('L_tdone')
    A.I(f's_cmp_eq_u32 s{S_XCC}, 0')
    if os.environ.get('FORCE_SLOW'):
        A.br(f's_branch {l_slow}')
    else:
        A.br(f's_cbranch_scc1 {l_slow}')
    R.main_loop(A, '', l_tdone, kvcheck=True)
    A.label(l_slow)
    R.main_loop(A, 'sc1', l_tdone, kvcheck=True)
    A.label(l_tdone)
    A.forget_loads()
    A.I(f's_mov_b32 s{S_G}, 0')
    tstamp(A, 3)
    A.I(f'v_lshrrev_b32 v0, 4, v{R.V_L16}')
    j2_calc(A)
    A.I('s_waitcnt vmcnt(0) lgkmcnt(0)')
    A.I('s_barrier')
    g2_setup(A)
    for k in range(5):
        g2_dma(A, k)
    A.I(f's_mov_b32 s{S_PRE}, 0')
    A.br(f's_branch {l_g2}')

    A.label(l_tok)
    A.forget_loads()
    S_SEG, S_NX, S_CA, S_END, S_K1, S_AV, S_PB = 36, 41, 42, 43, 44, 45, 46
    j2_calc(A)
    A.I(f's_sub_u32 s{S_G}, s{S_G}, 1')
    A.I(f's_lshl_b32 s{S_J}, s{S_G}, 5')
    A.I(f's_add_u32 s{S_J}, s{S_J}, s{S_H}')

    def tok_init(ln=True):
        A.I(f's_lshl_b32 s{S_CA}, s{S_H}, 7')
        A.I(f's_lshl_b32 s{S_T0}, s{S_G}, 4')
        A.I(f's_add_u32 s{S_CA}, s{S_CA}, s{S_T0}')
        A.I(f's_lshl_b32 s{S_T0}, s{S_WV}, 2')
        A.I(f's_add_u32 s{S_CA}, s{S_CA}, s{S_T0}')
        A.I(f's_add_u32 s{S_CA}, s{S_CA}, 0x{R.F_PROG:x}')
        A.I('v_mov_b32 v22, 0')
        lane0(A, lambda: A.I(f'buffer_store_dword v22, off, {ws}, s{S_CA} sc1'))
        lz = A.newlabel('L_nz')
        A.I(f's_cmp_lg_u32 s{S_J}, 64')
        A.br(f's_cbranch_scc1 {lz}')
        A.I('v_lshlrev_b32 v23, 4, v0')
        for r in range(16, 20):
            A.I(f'v_mov_b32 v{r}, 0')
        A.I(f's_mul_i32 s{S_T0}, s{S_WV}, 6144')
        A.I(f's_add_u32 s{S_T0}, s{S_T0}, 0x{F_OPC:x}')
        A.I(f's_add_u32 s{S_T1}, s{S_T0}, 4096')
        for i in range(4):
            A.I(f'buffer_store_dwordx4 v[16:19], v23, {ws}, s{S_T0} offen offset:{1024 * i} sc1')
        A.I(f'buffer_store_dwordx4 v[16:19], v23, {ws}, s{S_T1} offen sc1')
        A.I(f'buffer_store_dwordx4 v[16:19], v23, {ws}, s{S_T1} offen offset:1024 sc1')
        A.label(lz)
        A.forget_loads()
        ln_and_arrive(ln)
        ts_tok(A, 8)

    l_late = A.newlabel('L_late')
    l_st = A.newlabel('L_st')
    A.I(f's_mov_b32 s{S_K1}, 0')
    A.I(f's_cmp_lt_u32 s{S_G}, {NEARLY}')
    A.br(f's_cbranch_scc1 {l_st}')
    l1 = A.newlabel('L_nl')
    A.I(f's_cmp_lg_u32 s{S_WV}, 1')
    A.I(f's_cbranch_scc1 {l1}')
    A.I(f's_cmp_lt_u32 s{S_G}, 3')
    A.I(f's_cbranch_scc1 {l1}')
    A.I(f's_sub_u32 s{S_T3}, s{S_J}, 96')
    T.ln1_load(A, S_T3, sx, S_LNO)
    A.label(l1)
    A.forget_loads()
    tok_init()
    l_nost = A.newlabel('L_nost')
    A.I(f's_cmp_ge_u32 s{S_G}, 4')
    A.br(f's_cbranch_scc1 {l_nost}')
    wg_poll_eq(A, dbg, None, D_TS, 32, 2, l_exit, sleep=32)
    lsg, lsd = A.newlabel('L_sg'), A.newlabel('L_sd')
    A.I(f's_cmp_lg_u32 s{S_WV}, 0')
    A.br(f's_cbranch_scc1 {lsd}')
    A.I(f's_cmp_eq_u32 s{S_G}, 3')
    A.I(f's_cselect_b32 s{S_T1}, {STAG}, {STAG0}')
    A.I(f's_lshl_b32 s{S_T2}, s{S_H}, 6')
    A.I(f's_add_u32 s{S_T2}, s{S_T2}, 0x{R.F_KMP:x}')
    A.label(lsg)
    A.I(f'buffer_load_dword v2, off, {ws}, s{S_T2} sc1')
    A.I(f's_sub_u32 s{S_SPIN}, s{S_SPIN}, 1')
    A.I(f's_cbranch_scc1 {l_exit}')
    A.I('s_waitcnt vmcnt(0)')
    A.I(f'v_readfirstlane_b32 s{S_T0}, v2')
    A.I(f's_cmp_ge_u32 s{S_T0}, s{S_T1}')
    A.I(f's_cbranch_scc1 {lsd}')
    A.I('s_sleep 16')
    A.br(f's_branch {lsg}')
    A.label(lsd)
    A.I('s_barrier')
    A.I(f's_mov_b32 s{S_K1}, 1')
    A.label(l_st)

    def hook():
        l = A.newlabel('L_hk')
        A.I(f's_cmp_eq_u32 s{S_K1}, 1')
        A.br(f's_cbranch_scc1 {l}')
        A.check = False
        tok_init(False)
        A.check = True
        A.label(l)
        A.forget_loads()

    T.qkv_stage(A, [P_Q, P_K, P_V], hook=hook)
    A.label(l_nost)
    ts_tok(A, 1)
    wg_poll_eq(A, dbg, None, D_GB, 256, 2, l_exit, sleep=8)
    ts_tok(A, 7)
    A.I(f's_lshl_b32 s{S_T0}, s{S_G}, 2')
    A.I(f'buffer_load_dword v2, off, {dbg}, s{S_T0} offset:4 sc1')
    A.I(f'buffer_load_dword v3, off, {dbg}, 0 offset:{D_WEIRD} sc1')
    A.I('s_waitcnt vmcnt(0)')
    A.I(f'v_readfirstlane_b32 s{S_T2}, v2')
    A.I(f'v_readfirstlane_b32 s{S_T3}, v3')
    A.I(f's_cmp_ge_u32 s{S_T2}, 32')
    A.I(f's_cselect_b32 s{S_FAST}, 1, 0')
    A.I(f's_cmp_eq_u32 s{S_T3}, 0')
    A.I(f's_cselect_b32 s{S_FAST}, s{S_FAST}, 0')
    if os.environ.get('FORCE_SLOW'):
        A.I(f's_mov_b32 s{S_FAST}, 0')
    l_nop1 = A.newlabel('L_nop1')
    A.I(f's_cmp_ge_u32 s{S_G}, 4')
    A.br(f's_cbranch_scc1 {l_nop1}')
    A.I(f's_lshr_b32 s{S_T0}, s{S_G}, 1')
    A.I(f's_lshl_b32 s{S_T0}, s{S_T0}, 5')
    A.I(f's_add_u32 s{S_END}, s{S_T0}, 32')
    A.I(f's_and_b32 s{S_NX}, s{S_G}, 1')
    A.I(f's_add_u32 s{S_NX}, s{S_NX}, s{S_T0}')
    A.I('v_mov_b32 v2, 0')

    def signal():
        lane0(A, lambda: A.I(f'buffer_store_dword v2, off, {ws}, s{S_CA} sc1'))

    def after():
        A.I('v_add_u32 v2, 1, v2')

    T.qkv_segments(A, 2, 'sc1', after_seg=after, mid_seg=signal, first=S_NX, end=f's{S_END}')
    A.I('s_waitcnt vmcnt(0)')
    signal()
    A.label(l_nop1)
    ts_tok(A, 2)
    T.att_stage(A, P_O)
    T.att_consts(A)
    A.I(f's_load_dwordx4 s[16:19], s[0:1], {KA_W1}')
    A.I('s_waitcnt lgkmcnt(0)')
    make_srd(A, S_W1, 16, 2048 * 3584)
    make_srd(A, S_B1, 18, 3584)
    g2_setup(A)
    A.I(f's_mov_b32 s{S_PRE}, 0')
    for i in range(16):
        A.I(f'v_mov_b32 v{G1ACC + i}, 0')
    A.I(f's_mov_b32 s{S_K1}, 0')
    g1_w1_dma(A, S_K1, first=True)
    masks = seg_masks()
    for g in range(7):
        A.I(f's_cmp_eq_u32 s{S_G}, {g}')
        A.I(f's_cselect_b32 s{S_MSK}, 0x{masks[g] & 0xffffffff:x}, s{S_MSK}')
        A.I(f's_cselect_b32 s{S_MSK + 1}, 0x{masks[g] >> 32:x}, s{S_MSK + 1}')
    A.I(f's_ff1_i32_b64 s{S_SEG}, s[{S_MSK}:{S_MSK + 1}]')
    A.I(f's_bitset0_b64 s[{S_MSK}:{S_MSK + 1}], s{S_SEG}')
    A.I(f's_mov_b32 s{S_AV}, 0')
    A.I(f's_lshl_b32 s{S_PB}, s{S_H}, 7')
    A.I(f's_add_u32 s{S_PB}, s{S_PB}, 0x{R.F_PROG:x}')
    R.kv_wait(A, l_exit, S_SEG, 192, s_av=S_AV, s_base=S_PB, sleep=4, vlane16=1)
    T.att_load_qkv(A, S_SEG)
    x_prefetch(A, S_SEG, sx)
    L = A.newlabel('L_p2')
    L_att = A.newlabel('L_att')
    L_fin = A.newlabel('L_p2fin')
    A.label(L)
    A.check = False
    A.I(f's_cmp_ge_u32 s{S_K1}, 16')
    A.I(f's_cbranch_scc1 {L_fin}')
    lq2 = A.newlabel('L_lp2')
    ldec = A.newlabel('L_dec')
    A.I(f's_cmp_lg_u32 s{S_WV}, 0')
    A.br(f's_cbranch_scc1 {ldec}')
    A.I(f's_lshl_b32 s{S_CA}, s{S_H}, 6')
    A.I(f's_add_u32 s{S_CA}, s{S_CA}, 0x{R.F_KMP:x}')
    A.I(f's_add_u32 s40, s{S_SEG}, 2')
    A.I(f's_lshl_b32 s{S_T1}, s{S_K1}, 4')
    A.I(f's_lshl_b32 s{S_T2}, s{S_G}, 9')
    A.I(f's_add_u32 s{S_T1}, s{S_T1}, s{S_T2}')
    A.I(f's_add_u32 s{S_T1}, s{S_T1}, 0x{F_GF + 512:x}')
    lq, lgo, lnk = A.newlabel('L_lp'), A.newlabel('L_go'), A.newlabel('L_nk')
    A.label(lq)
    A.I(f'buffer_load_dwordx4 v[192:195], off, {ws}, s{S_CA} {PLF}')
    A.I(f'buffer_load_dwordx4 v[196:199], off, {ws}, s{S_T1} {PLF}')
    A.I(f's_sub_u32 s{S_SPIN}, s{S_SPIN}, 1')
    A.I(f's_cbranch_scc1 {l_exit}')
    A.I('s_waitcnt vmcnt(0)')
    A.I('v_min_u32 v6, v192, v193')
    A.I('v_min3_u32 v6, v6, v194, v195')
    A.I(f'v_readfirstlane_b32 s{S_T0}, v6')
    A.I('v_min_u32 v7, v196, v197')
    A.I('v_min3_u32 v7, v7, v198, v199')
    A.I('v_cmp_eq_u32 vcc, 0, v7')
    A.I(f's_mov_b32 s{S_T3}, 1')
    A.I(f's_cmp_ge_u32 s{S_T0}, s40')
    A.I(f's_cbranch_scc1 {lgo}')
    A.label(lnk)
    lsl = A.newlabel('L_sl')
    A.I(f's_add_u32 s{S_T0}, s{S_T0}, 2')
    A.I(f's_cmp_ge_u32 s{S_T0}, s40')
    A.I(f's_cbranch_scc1 {lq}')
    A.I(f's_mov_b32 s{S_T3}, 2')
    A.I(f's_cbranch_vccz {lgo}')
    lns = A.newlabel('L_nsl')
    A.I(f's_mov_b32 s{S_T3}, 3')
    A.I(f's_cmp_lt_u32 s{S_SEG}, 64')
    A.I(f's_cbranch_scc1 {lns}')
    A.I(f's_cmp_lt_u32 s{S_K1}, 3')
    A.I(f's_cbranch_scc1 {lns}')
    A.I(f's_cmp_lt_u32 s{S_PRE}, 3')
    A.I(f's_cbranch_scc1 {lgo}')
    A.label(lns)
    A.I('s_sleep 4')
    A.br(f's_branch {lq}')
    A.label(lgo)
    A.I(f'v_mov_b32 v6, s{S_T3}')
    A.I(f'v_mov_b32 v7, {L_RED + 8192 - 16}')
    A.I('ds_write_b32 v7, v6')
    A.I('s_waitcnt lgkmcnt(0)')
    A.label(ldec)
    A.I('s_barrier')
    A.I(f'v_mov_b32 v7, {L_RED + 8192 - 16}')
    A.I('ds_read_b32 v6, v7')
    A.I('s_waitcnt lgkmcnt(0)')
    A.I(f'v_readfirstlane_b32 s{S_T0}, v6')
    A.I(f's_cmp_eq_u32 s{S_T0}, 1')
    A.br(f's_cbranch_scc1 {lq2}')
    lch = A.newlabel('L_ch')
    A.I(f's_cmp_eq_u32 s{S_T0}, 2')
    A.br(f's_cbranch_scc1 {lch}')
    for rnd in range(3):
        lpr = A.newlabel('L_pr')
        A.I(f's_cmp_lg_u32 s{S_PRE}, {rnd}')
        A.br(f's_cbranch_scc1 {lpr}')
        g2_pre(A, rnd)
        A.br(f's_branch {L}')
        A.label(lpr)
    A.label(lch)
    ts_tok(A, 16)
    g1_chunk(A, S_K1, l_exit)
    A.I(f's_add_u32 s{S_K1}, s{S_K1}, 1')
    lw2 = A.newlabel('L_w2')
    A.I(f's_cmp_lg_u32 s{S_K1}, 3')
    A.br(f's_cbranch_scc1 {lw2}')
    for k in range(5):
        g2_dma(A, k)
    A.br(f's_branch {L}')
    A.label(lw2)
    A.I(f's_cmp_lg_u32 s{S_K1}, 6')
    A.br(f's_cbranch_scc1 {L}')
    A.I(f's_and_b32 s{S_T0}, s{S_J2}, 7')
    A.I(f's_cmp_lg_u32 s{S_T0}, 4')
    A.br(f's_cbranch_scc1 {L}')
    g2_touch(A, 5)
    A.br(f's_branch {L}')
    A.label(lq2)
    ts_tok(A, 10)
    T.att_load_mem(A, S_SEG, 'sc1')
    A.I('s_waitcnt vmcnt(0)')
    ts_tok(A, 11)
    A.check = True
    A.forget_loads()
    T.att_compute1(A)
    lc1, lc2 = A.newlabel('L_c2s'), A.newlabel('L_c2e')
    A.I(f's_cmp_eq_u32 s{S_FAST}, 0')
    A.br(f's_cbranch_scc1 {lc1}')
    T.att_compute2(A, S_SEG, '')
    A.br(f's_branch {lc2}')
    A.label(lc1)
    T.att_compute2(A, S_SEG, 'sc1')
    A.label(lc2)
    ts_tok(A, 12)
    A.I('s_waitcnt vmcnt(0)')
    A.I('s_barrier')
    ts_tok(A, 13)
    A.I(f's_lshl_b32 s{S_CA}, s{S_SEG}, 7')
    A.I(f's_add_u32 s{S_CA}, s{S_CA}, 0x{F_OPC:x}')
    l0 = A.newlabel('L_n0')
    A.I(f's_cmp_lg_u32 s{S_WV}, 0')
    A.br(f's_cbranch_scc1 {l0}')
    A.I(f's_lshl_b32 s{S_T1}, s{S_H}, 2')
    A.I(f's_add_u32 s{S_T1}, s{S_T1}, s{S_CA}')
    flag_store(A, S_T1, 6)
    poll_flags(A, S_CA, 32, 1, 6, 7, l_exit)
    A.label(l0)
    A.I('s_barrier')
    ts_tok(A, 14)
    red4(A, S_SEG, sx, l_exit)
    A.I(f's_ff1_i32_b64 s{S_SEG}, s[{S_MSK}:{S_MSK + 1}]')
    A.I(f's_bitset0_b64 s[{S_MSK}:{S_MSK + 1}], s{S_SEG}')
    lnn = A.newlabel('L_nn')
    A.I(f's_cmp_lt_u32 s{S_SEG}, 64')
    A.br(f's_cbranch_scc1 {lnn}')
    A.I(f's_mov_b32 s{S_SEG}, 999')
    ts_tok(A, 3)
    A.br(f's_branch {L}')
    A.label(lnn)
    lav = A.newlabel('L_av')
    A.I(f's_cmp_gt_u32 s{S_AV}, s{S_SEG}')
    A.br(f's_cbranch_scc1 {lav}')
    R.kv_wait(A, l_exit, S_SEG, 192, s_av=S_AV, s_base=S_PB, sleep=4, vlane16=1)
    A.label(lav)
    T.att_load_qkv(A, S_SEG)
    x_prefetch(A, S_SEG, sx)
    A.br(f's_branch {L}')
    A.label(L_fin)
    A.forget_loads()
    ts_tok(A, 4)
    g1_epilogue(A, l_exit)
    A.I(f's_add_u32 s{S_G}, s{S_G}, 1')
    tstamp(A, 17)
    A.label(l_g2)
    A.forget_loads()
    g2_main(A, l_exit)
    tstamp(A, 6, 8)
    A.label(l_exit)
    A.I('s_endpgm')


S_MSK = 56


def seg_masks():
    c1, c2 = int(os.environ.get('C1', 14)), int(os.environ.get('C2', 27))
    m = [0] * 7
    last = {g: -100 for g in range(7)}
    for s_ in range(64):
        cand = [4, 5, 6] if s_ < c1 else ([4, 5, 6, 0, 1] if s_ < c2 else list(range(7)))
        g = min(cand, key=lambda x: last[x])
        last[g] = s_
        m[g] |= 1 << s_
    return m


def j2_calc(A):
    A.I(f's_lshr_b32 s{S_T0}, s{S_G}, 1')
    A.I(f's_lshl_b32 s{S_T0}, s{S_T0}, 3')
    A.I(f's_lshr_b32 s{S_T1}, s{S_H}, 2')
    A.I(f's_add_u32 s{S_T0}, s{S_T0}, s{S_T1}')
    A.I(f's_lshl_b32 s{S_J2}, s{S_T0}, 3')
    A.I(f's_and_b32 s{S_T0}, s{S_G}, 1')
    A.I(f's_lshl_b32 s{S_T0}, s{S_T0}, 2')
    A.I(f's_and_b32 s{S_T1}, s{S_H}, 3')
    A.I(f's_add_u32 s{S_T0}, s{S_T0}, s{S_T1}')
    A.I(f's_add_u32 s{S_J2}, s{S_J2}, s{S_T0}')


def x_prefetch(A, s_seg, sx):
    A.I('v_lshrrev_b32 v6, 2, v0')
    A.I('v_lshlrev_b32 v6, 6, v6')
    A.I('v_and_b32 v7, 3, v0')
    A.I('v_lshl_add_u32 v6, v7, 3, v6')
    A.I(f's_lshl_b32 s{S_T3}, s{s_seg}, 5')
    A.I(f's_add_u32 s{S_T3}, s{S_T3}, s{S_H}')
    A.I(f's_lshl_b32 s{S_T3}, s{S_T3}, 10')
    A.I(f'buffer_load_dwordx2 v[12:13], v6, {sx}, s{S_T3} offen')
    A.I(f'buffer_load_dwordx2 v[14:15], v6, {sx}, s{S_T3} offen offset:32')


def ts_tok(A, i):
    if TIMING:
        A.I(f's_add_u32 s{S_G}, s{S_G}, 1')
        tstamp(A, i, 14 if i in (1, 2, 7, 8) else 6)
        A.I(f's_sub_u32 s{S_G}, s{S_G}, 1')


G1ACC = 120
G1T = 144
L_G1 = 0
L_RED = 65536
L_W2 = 73728


def g1_lane(A):
    t = G1T
    A.I(f'v_lshrrev_b32 v{t}, 3, v0')
    A.I(f'v_and_b32 v{t + 1}, 7, v0')
    A.I(f'v_bfe_u32 v{t + 2}, v0, 4, 1')
    A.I(f's_and_b32 s{S_T0}, s{S_WV}, 1')
    A.I(f's_lshl_b32 s{S_T0}, s{S_T0}, 1')
    A.I(f'v_or_b32 v{t + 2}, s{S_T0}, v{t + 2}')
    A.I(f'v_lshlrev_b32 v{t + 2}, 1, v{t + 2}')
    A.I(f'v_xor_b32 v{t + 1}, v{t + 1}, v{t + 2}')
    A.I(f'v_lshlrev_b32 v{t + 1}, 4, v{t + 1}')
    A.I(f'v_mul_u32_u24 v136, 3584, v{t}')
    A.I(f'v_add_u32 v136, v136, v{t + 1}')
    A.I(f'v_lshl_add_u32 v137, v{t}, 10, v{t + 1}')
    A.I(f'v_and_b32 v{t}, 15, v0')
    A.I(f'v_lshrrev_b32 v{t + 1}, 4, v0')
    A.I(f'v_lshrrev_b32 v{t + 2}, 2, v{t}')
    A.I(f'v_and_b32 v{t + 3}, 3, v{t}')
    A.I(f'v_lshl_add_u32 v{t + 4}, v{t + 1}, 3, v{t + 2}')
    A.I(f'v_lshlrev_b32 v{t + 4}, 7, v{t + 4}')
    A.I(f'v_lshl_add_u32 v{t + 4}, v{t + 3}, 3, v{t + 4}')
    A.I(f'v_lshrrev_b32 v{t + 5}, 1, v{t + 2}')
    A.I(f'v_and_b32 v{t + 6}, 1, v{t + 1}')
    A.I(f'v_lshl_add_u32 v{t + 5}, v{t + 6}, 1, v{t + 5}')
    A.I(f'v_xor_b32 v{t + 6}, s{S_T0}, v{t + 5}')
    A.I(f'v_lshl_add_u32 v138, v{t + 6}, 5, v{t + 4}')
    A.I(f'v_xor_b32 v139, 32, v138')
    A.I(f's_and_b32 s{S_T0}, s{S_WV}, 2')
    A.I(f'v_xor_b32 v{t + 6}, s{S_T0}, v{t + 5}')
    A.I(f'v_lshl_add_u32 v140, v{t + 6}, 5, v{t + 4}')
    A.I(f'v_add_u32 v140, 16384, v140')
    A.I(f'v_xor_b32 v141, 32, v140')


def g1_w1_dma(A, s_k, first=False, plus=0):
    if first:
        g1_lane(A)
    w1 = f's[{S_W1}:{S_W1 + 3}]'
    A.I(f's_add_u32 s{S_T2}, s{s_k}, {plus}')
    A.I(f's_mul_i32 s{S_T0}, s{S_T2}, {128 * 3584}')
    A.I(f's_mul_i32 s{S_T1}, s{S_WV}, {8 * 3584}')
    A.I(f's_add_u32 s{S_T0}, s{S_T0}, s{S_T1}')
    A.I(f's_lshr_b32 s{S_T1}, s{S_J}, 3')
    A.I(f's_lshl_b32 s{S_T1}, s{S_T1}, 7')
    A.I(f's_add_u32 s{S_T0}, s{S_T0}, s{S_T1}')
    A.I(f's_and_b32 s{S_T1}, s{S_T2}, 1')
    A.I(f's_lshl_b32 s{S_T1}, s{S_T1}, 15')
    A.I(f's_lshl_b32 s{S_T2}, s{S_WV}, 10')
    A.I(f's_add_u32 s{S_T1}, s{S_T1}, s{S_T2}')
    for i in range(4):
        A.I(f's_add_u32 m0, s{S_T1}, {L_G1 + i * 4096}')
        A.I(f's_add_u32 s{S_T2}, s{S_T0}, {i * 32 * 3584}')
        A.I(f'buffer_load_dwordx4 v136, {w1}, s{S_T2} offen lds')


def g1_chunk(A, s_k, l_exit):
    ws = f's[{S_WS}:{S_WS + 3}]'
    A.I(f's_lshl_b32 s{S_T0}, s{s_k}, 17')
    A.I(f's_lshl_b32 s{S_T1}, s{S_WV}, 13')
    A.I(f's_add_u32 s{S_T0}, s{S_T0}, s{S_T1}')
    A.I(f's_and_b32 s{S_T1}, s{S_J}, 7')
    A.I(f's_lshl_b32 s{S_T1}, s{S_T1}, 7')
    A.I(f's_add_u32 s{S_T0}, s{S_T0}, s{S_T1}')
    A.I(f's_add_u32 s{S_T0}, s{S_T0}, 0x{WS_HP:x}')
    A.I(f's_and_b32 s{S_T3}, s{s_k}, 1')
    A.I(f's_lshl_b32 s{S_T3}, s{S_T3}, 15')
    A.I(f's_lshl_b32 s{S_T2}, s{S_WV}, 10')
    A.I(f's_add_u32 s{S_T1}, s{S_T3}, s{S_T2}')
    for i in range(4):
        A.I(f's_add_u32 m0, s{S_T1}, {L_G1 + 16384 + i * 4096}')
        A.I(f's_add_u32 s{S_T2}, s{S_T0}, {i * 32 * 1024}')
        A.I(f'buffer_load_dwordx4 v137, {ws}, s{S_T2} offen lds')
    AD = G1T
    for j in range(4):
        A.I(f'v_add_u32 v{AD + j}, s{S_T3}, v{138 + j}')
    g1_w1_dma(A, s_k, plus=1)
    A.I('s_waitcnt vmcnt(4)')
    A.I('s_barrier')
    FR = G1T + 8

    def rd(ks):
        for j in range(4):
            for x in range(2):
                A.I(f'ds_read_b64_tr_b16 {v(FR + 16 * ks + 4 * j + 2 * x, 2)}, v{AD + j} offset:{L_G1 + (32 * ks + 4 * x) * 128}')

    rd(0)
    for ks in range(4):
        if ks < 3:
            rd(ks + 1)
            A.I('s_waitcnt lgkmcnt(8)')
        else:
            A.I('s_waitcnt lgkmcnt(0)')
        f = FR + 16 * ks
        for mbp in range(2):
            for nbp in range(2):
                d = G1ACC + (mbp * 2 + nbp) * 4
                A.I(f'v_mfma_f32_16x16x32_bf16 {v(d, 4)}, {v(f + 4 * mbp, 4)}, {v(f + 8 + 4 * nbp, 4)}, {v(d, 4)}')


def g1_epilogue(A, l_exit):
    import math
    ws, b1 = f's[{S_WS}:{S_WS + 3}]', f's[{S_B1}:{S_B1 + 3}]'
    ACC, BI, Z, Pk, TT, O = G1ACC, 150, 160, 168, 172, 188
    A.I(f's_lshr_b32 s{S_T2}, s{S_J}, 3')
    A.I(f's_lshl_b32 s{S_T0}, s{S_T2}, 7')
    A.I(f's_and_b32 s{S_T1}, s{S_WV}, 1')
    A.I(f's_lshl_b32 s{S_T1}, s{S_T1}, 6')
    A.I(f's_add_u32 s{S_T0}, s{S_T0}, s{S_T1}')
    A.I('v_lshrrev_b32 v144, 4, v0')
    A.I('v_lshlrev_b32 v144, 3, v144')
    A.I(f'buffer_load_dwordx2 v[146:147], v144, {b1}, s{S_T0} offen')
    A.I(f'buffer_load_dwordx2 v[148:149], v144, {b1}, s{S_T0} offen offset:32')
    A.I(f's_and_b32 s{S_T0}, s{S_J}, 7')
    A.I(f's_lshl_b32 s{S_T0}, s{S_T0}, 2')
    A.I(f's_and_b32 s{S_T1}, s{S_WV}, 2')
    A.I(f's_add_u32 s{S_T0}, s{S_T0}, s{S_T1}')
    A.I(f's_mul_i32 s{S_T0}, s{S_T0}, 56')
    A.I(f's_lshl_b32 s{S_T1}, s{S_T2}, 1')
    A.I(f's_add_u32 s{S_T0}, s{S_T0}, s{S_T1}')
    A.I(f's_and_b32 s{S_T1}, s{S_WV}, 1')
    A.I(f's_add_u32 s{S_T0}, s{S_T0}, s{S_T1}')
    A.I(f's_lshl_b32 s{S_T0}, s{S_T0}, 10')
    A.I(f's_add_u32 s{S_T0}, s{S_T0}, 0x{WS_U:x}')
    k1 = -2 * math.sqrt(2 / math.pi) * math.log2(math.e)
    A.I(f's_mov_b32 s{S_T2}, {f32(k1)}')
    A.I(f's_mov_b32 s{S_T3}, {f32(k1 * 0.044715)}')
    A.I('v_lshlrev_b32 v145, 4, v0')
    A.I('s_waitcnt vmcnt(0)')
    for i in range(4):
        A.I(f'v_lshlrev_b32 v{BI + 2 * i}, 16, v{146 + i}')
        A.I(f'v_and_b32 v{BI + 2 * i + 1}, 0xffff0000, v{146 + i}')
    for nbp in range(2):
        for mbp in range(2):
            for r in range(4):
                A.I(f'v_mov_b32 v{Z + 4 * mbp + r}, v{ACC + (mbp * 2 + nbp) * 4 + r}')
        T.round_bf16(A, Z, Pk)
        for i in range(8):
            A.I(f'v_add_f32 v{Z + i}, v{Z + i}, v{BI + i}')
        T.round_bf16(A, Z, Pk)
        for i in range(8):
            t = TT + i
            A.I(f'v_mul_f32 v{t}, v{Z + i}, v{Z + i}')
            A.I(f'v_mov_b32 v{t + 8}, s{S_T2}')
            A.I(f'v_fmac_f32 v{t + 8}, s{S_T3}, v{t}')
            A.I(f'v_mul_f32 v{t}, v{t + 8}, v{Z + i}')
            A.I(f'v_exp_f32 v{t}, v{t}')
        for i in range(8):
            A.I(f'v_add_f32 v{TT + i}, 1.0, v{TT + i}')
            A.I(f'v_rcp_f32 v{TT + i}, v{TT + i}')
        for i in range(8):
            A.I(f'v_mul_f32 v{Z + i}, v{Z + i}, v{TT + i}')
        o = O + 4 * nbp
        for i in range(4):
            A.I(f'v_cvt_pk_bf16_f32 v{o + i}, v{Z + 2 * i}, v{Z + 2 * i + 1}')
        A.I(f'buffer_store_dwordx4 {v(o, 4)}, v145, {ws}, s{S_T0} offen sc1')
        A.I(f's_add_u32 s{S_T0}, s{S_T0}, {56 * 1024}')
    A.I('s_waitcnt vmcnt(0)')
    A.I('s_barrier')
    l = A.newlabel('L_ue')
    A.I(f's_cmp_lg_u32 s{S_WV}, 0')
    A.br(f's_cbranch_scc1 {l}')
    A.I(f's_lshl_b32 s{S_T2}, s{S_G}, 7')
    A.I(f's_add_u32 s{S_T2}, s{S_T2}, 0x{F_LU:x}')
    A.I(f's_lshl_b32 s{S_T3}, s{S_G}, 2')
    A.I(f's_add_u32 s{S_T3}, s{S_T3}, 0x{F_GF + 256:x}')
    garrive(A, S_T2, S_T3, 144, l_exit)
    A.label(l)


def g2_slot(k):
    return L_W2 + 16384 * (k % 5)


S_PRE = 62


def g2_pre(A, rnd):
    t = G1T
    A.I(f'v_and_b32 v{t}, 15, v0')
    A.I(f'v_lshrrev_b32 v{t + 1}, 4, v0')
    A.I(f'v_lshrrev_b32 v{t + 2}, 2, v{t}')
    A.I(f'v_and_b32 v{t + 3}, 3, v{t}')
    A.I(f'v_lshl_add_u32 v{t + 2}, v{t + 1}, 2, v{t + 2}')
    A.I(f'v_bfe_u32 v{t + 1}, v{t + 2}, 1, 2')
    A.I(f'v_lshlrev_b32 v{t + 2}, 7, v{t + 2}')
    A.I(f'v_lshl_add_u32 v{t + 2}, v{t + 3}, 3, v{t + 2}')
    A.I(f'v_lshl_add_u32 v{t + 2}, v{t + 1}, 5, v{t + 2}')
    A.I(f's_lshl_b32 s{S_T0}, s{S_WV}, 12')
    A.I(f's_add_u32 s{S_T0}, s{S_T0}, {L_W2}')
    for j in range(4):
        A.I(f'v_xor_b32 v{t + 4 + j}, {32 * j}, v{t + 2}')
        A.I(f'v_add_u32 v{t + 4 + j}, s{S_T0}, v{t + 4 + j}')
        A.I(f'v_add_u32 v{t + 8 + j}, 49152, v{t + 4 + j}')
    A.I('s_waitcnt vmcnt(0)')
    A.I('s_barrier')
    ks_ = list(range(5 * rnd, min(5 * rnd + 5, 14)))
    for k in ks_:
        so = 16384 * (k % 5)
        ab = t + 4
        if so >= 49152:
            so -= 49152
            ab = t + 8
        for j in range(4):
            for x in range(2):
                A.I(f'ds_read_b64_tr_b16 {a(16 * k + 4 * j + 2 * x, 2)}, v{ab + j} offset:{so + 16 * x * 128}')
        A.I('s_waitcnt lgkmcnt(4)')
    A.I('s_waitcnt lgkmcnt(0)')
    if rnd < 2:
        A.I('s_barrier')
        for k in range(5 * rnd + 5, min(5 * rnd + 10, 14)):
            g2_dma(A, k)
    A.I(f's_mov_b32 s{S_PRE}, {rnd + 1}')


def g2_setup(A):
    A.I(f's_load_dwordx2 s[16:17], s[0:1], {KA_W2}')
    A.I('s_waitcnt lgkmcnt(0)')
    make_srd(A, S_W2, 16, 1792 * 4096)
    t = G1T
    A.I(f'v_lshrrev_b32 v{t}, 3, v0')
    A.I(f'v_and_b32 v{t + 1}, 7, v0')
    A.I(f'v_lshrrev_b32 v{t + 2}, 4, v0')
    A.I(f'v_lshlrev_b32 v{t + 2}, 1, v{t + 2}')
    A.I(f'v_xor_b32 v{t + 1}, v{t + 1}, v{t + 2}')
    A.I(f'v_lshlrev_b32 v{t + 1}, 4, v{t + 1}')
    A.I(f'v_lshl_add_u32 v142, v{t}, 12, v{t + 1}')
    A.I(f's_lshl_b32 s{S_BO2}, s{S_WV}, 15')
    A.I(f's_lshr_b32 s{S_T0}, s{S_J2}, 3')
    A.I(f's_lshl_b32 s{S_T0}, s{S_T0}, 7')
    A.I(f's_add_u32 s{S_BO2}, s{S_BO2}, s{S_T0}')
    A.I(f's_lshl_b32 s{S_LB2}, s{S_WV}, 10')


def g2_dma(A, k, vr=142):
    w2 = f's[{S_W2}:{S_W2 + 3}]'
    for i in range(4):
        A.I(f's_add_u32 m0, s{S_LB2}, {g2_slot(k) + i * 4096}')
        A.I(f's_add_u32 s{S_T0}, s{S_BO2}, {(k * 128 + i * 32) * 4096}')
        A.I(f'buffer_load_dwordx4 v{vr}, {w2}, s{S_T0} offen lds')


def g2_touch(A, k0):
    w2 = f's[{S_W2}:{S_W2 + 3}]'
    A.I('v_lshlrev_b32 v143, 12, v0')
    A.I(f's_lshr_b32 s{S_T0}, s{S_J2}, 3')
    A.I(f's_lshl_b32 s{S_T0}, s{S_T0}, 7')
    A.I(f's_lshl_b32 s{S_T1}, s{S_WV}, 18')
    A.I(f's_add_u32 s{S_T0}, s{S_T0}, s{S_T1}')
    for r0 in range(k0 * 128, 1792, 256):
        A.I(f's_add_u32 s{S_T1}, s{S_T0}, {r0 * 4096}')
        A.I(f'buffer_load_dword v5, v143, {w2}, s{S_T1} offen')


def g2_main(A, l_exit):
    ws = f's[{S_WS}:{S_WS + 3}]'
    S_O, S_B2 = S_W1, S_B1
    A.I(f's_load_dwordx4 s[16:19], s[0:1], {KA_B2}')
    for rnd in range(3):
        l = A.newlabel('L_pre')
        A.I(f's_cmp_gt_u32 s{S_PRE}, {rnd}')
        A.br(f's_cbranch_scc1 {l}')
        g2_pre(A, rnd)
        A.label(l)
        A.forget_loads()
    A.I('s_waitcnt lgkmcnt(0)')
    make_srd(A, S_B2, 16, 4096)
    make_srd(A, S_O, 18, 2048 * 1024)
    b2, out = f's[{S_B2}:{S_B2 + 3}]', f's[{S_O}:{S_O + 3}]'
    S_AO, S_EO = 36, 37
    A.I(f's_and_b32 s{S_T0}, s{S_J2}, 7')
    A.I(f's_mul_i32 s{S_AO}, s{S_T0}, {4 * 56 * 1024}')
    A.I(f's_lshl_b32 s{S_T1}, s{S_WV}, 10')
    A.I(f's_add_u32 s{S_AO}, s{S_AO}, s{S_T1}')
    A.I(f's_add_u32 s{S_AO}, s{S_AO}, 0x{WS_U:x}')
    A.I(f's_lshl_b32 s{S_T0}, s{S_T0}, 2')
    A.I(f's_add_u32 s{S_T0}, s{S_T0}, s{S_WV}')
    A.I(f's_lshr_b32 s{S_T1}, s{S_J2}, 3')
    A.I(f's_lshl_b32 s{S_EO}, s{S_T1}, 16')
    A.I(f's_lshl_b32 s{S_T0}, s{S_T0}, 5')
    A.I(f's_add_u32 s{S_EO}, s{S_EO}, s{S_T0}')
    A.I('v_lshlrev_b32 v5, 4, v0')
    A.I('v_and_b32 v1, 15, v0')
    A.I('v_lshrrev_b32 v2, 4, v0')
    A.I('v_lshlrev_b32 v3, 10, v1')
    A.I('v_lshl_add_u32 v3, v2, 3, v3')
    A.I('v_lshlrev_b32 v4, 1, v1')
    A.I(f's_lshl_b32 s{S_T1}, s{S_T1}, 7')
    HB, BB, ACC, AR = 10, 18, 24, 88
    NA = 42
    for nb in range(4):
        A.I(f'buffer_load_ushort v{BB + nb}, v4, {b2}, s{S_T1} offen offset:{32 * nb}')
    l0 = A.newlabel('L_g20')
    A.I(f's_cmp_lg_u32 s{S_WV}, 0')
    A.br(f's_cbranch_scc1 {l0}')
    A.I(f's_lshl_b32 s{S_T1}, s{S_G}, 9')
    A.I(f's_add_u32 s{S_T1}, s{S_T1}, 0x{F_GF + 256:x}')
    poll_flags(A, S_T1, 7, 1, 6, 7, l_exit, sleep=1)
    A.label(l0)
    A.I('s_waitcnt vmcnt(0)')
    A.I('s_barrier')
    tstamp(A, 5, 8)
    vmq = []

    def aload(i):
        k, db = i >> 2, i & 3
        off = db * 56 * 1024 + k * 4096
        A.I(f's_add_u32 s{S_T1}, s{S_AO}, {off}')
        A.I(f'buffer_load_dwordx4 {v(AR + 4 * (i % NA), 4)}, v5, {ws}, s{S_T1} offen')
        vmq.append(('a', i))

    def need(names):
        idx = max([i for i, p in enumerate(vmq) if p in names] + [-1])
        if idx >= 0:
            A.I(f's_waitcnt vmcnt({len(vmq) - 1 - idx})')
            del vmq[:idx + 1]

    for i in range(NA):
        aload(i)
    for nb in range(4):
        A.I(f's_add_u32 s{S_T0}, s{S_EO}, 0x{WS_H + nb * 16384:x}')
        A.I(f'buffer_load_dwordx2 {v(HB + 2 * nb, 2)}, v3, {ws}, s{S_T0} offen')
        vmq.append(('h', 0))
    for i in range(56):
        k, db = i >> 2, i & 3
        need([('a', i)])
        if i == 0 and TIMING:
            A.check = False
            tstamp(A, 19, 8)
            vmq.append(('ts', 0))
            A.check = True
        for nb in range(4):
            d = ACC + 16 * db + 4 * nb
            c = '0' if k == 0 else v(d, 4)
            A.I(f'v_mfma_f32_16x16x32_bf16 {v(d, 4)}, {v(AR + 4 * (i % NA), 4)}, {a(16 * k + 4 * nb, 4)}, {c}')
        if i + NA < 56:
            aload(i + NA)
    A.I(f's_lshl_b32 s{S_T0}, s{S_WV}, 12')
    A.I(f'v_add_u32 v6, s{S_T0}, v5')
    for db in range(4):
        for nb in range(4):
            A.I(f'ds_write_b128 v6, {v(ACC + 16 * db + 4 * nb, 4)} offset:{db * 16384 + nb * 1024}')
        A.I('s_waitcnt lgkmcnt(8)')
    A.I(f's_lshl_b32 s{S_T0}, s{S_WV}, 14')
    A.I(f'v_add_u32 v6, s{S_T0}, v5')
    A.I('s_waitcnt lgkmcnt(0)')
    A.I('s_barrier')
    for j in range(16):
        A.I(f'ds_read_b128 {v(ACC + 4 * j, 4)}, v6 offset:{1024 * j}')
        if j == 11:
            A.I('s_waitcnt lgkmcnt(8)')
    A.I('s_waitcnt lgkmcnt(0) vmcnt(0)')
    tstamp(A, 18, 8)
    for r in range(0, 16, 2):
        A.I(f'v_pk_add_f32 {v(ACC + r, 2)}, {v(ACC + r, 2)}, {v(ACC + 16 + r, 2)}')
        A.I(f'v_pk_add_f32 {v(ACC + 32 + r, 2)}, {v(ACC + 32 + r, 2)}, {v(ACC + 48 + r, 2)}')
    for r in range(0, 16, 2):
        A.I(f'v_pk_add_f32 {v(ACC + r, 2)}, {v(ACC + r, 2)}, {v(ACC + 32 + r, 2)}')
    for nb in range(4):
        d = ACC + 4 * nb
        t = 88
        A.I(f'v_cvt_pk_bf16_f32 v{t}, v{d}, v{d + 1}')
        A.I(f'v_cvt_pk_bf16_f32 v{t + 1}, v{d + 2}, v{d + 3}')
        A.I(f'v_lshlrev_b32 v{t + 2}, 16, v{BB + nb}')
        for i in range(2):
            A.I(f'v_lshlrev_b32 v{d + 2 * i}, 16, v{t + i}')
            A.I(f'v_and_b32 v{d + 2 * i + 1}, 0xffff0000, v{t + i}')
        for r in range(4):
            A.I(f'v_add_f32 v{d + r}, v{d + r}, v{t + 2}')
        A.I(f'v_cvt_pk_bf16_f32 v{t}, v{d}, v{d + 1}')
        A.I(f'v_cvt_pk_bf16_f32 v{t + 1}, v{d + 2}, v{d + 3}')
        for i in range(2):
            A.I(f'v_lshlrev_b32 v{d + 2 * i}, 16, v{t + i}')
            A.I(f'v_and_b32 v{d + 2 * i + 1}, 0xffff0000, v{t + i}')
            A.I(f'v_lshlrev_b32 v{t + 2}, 16, v{HB + 2 * nb + i}')
            A.I(f'v_and_b32 v{t + 3}, 0xffff0000, v{HB + 2 * nb + i}')
            A.I(f'v_add_f32 v{d + 2 * i}, v{d + 2 * i}, v{t + 2}')
            A.I(f'v_add_f32 v{d + 2 * i + 1}, v{d + 2 * i + 1}, v{t + 3}')
        o = 92 + 2 * nb
        A.I(f'v_cvt_pk_bf16_f32 v{o}, v{d}, v{d + 1}')
        A.I(f'v_cvt_pk_bf16_f32 v{o + 1}, v{d + 2}, v{d + 3}')
        A.I(f's_add_u32 s{S_T0}, s{S_EO}, {nb * 16384}')
        A.I(f'buffer_store_dwordx2 {v(o, 2)}, v3, {out}, s{S_T0} offen')


def red4(A, s_seg, srd_x, l_exit):
    ws = f's[{S_WS}:{S_WS + 3}]'
    B, Z, Pk, XR, t0, t1, va = 192, 144, 152, 12, 160, 161, 162
    A.I(f's_lshl_b32 s{S_T2}, s{s_seg}, 5')
    A.I(f's_add_u32 s{S_T2}, s{S_T2}, s{S_H}')
    A.I(f's_lshl_b32 s{S_T0}, s{S_T2}, 15')
    A.I(f's_lshl_b32 s{S_T1}, s{S_WV}, 13')
    A.I(f's_add_u32 s{S_T0}, s{S_T0}, s{S_T1}')
    A.I(f's_add_u32 s{S_T0}, s{S_T0}, 0x{WS_OP:x}')
    A.I(f's_add_u32 s{S_T1}, s{S_T0}, 4096')
    for hh in range(8):
        so = S_T0 if hh < 4 else S_T1
        A.I(f'buffer_load_dwordx4 {v(B + 4 * hh, 4)}, v1, {ws}, s{so} offen offset:{1024 * (hh & 3)}')
    A.I(f's_lshl_b32 s{S_T3}, s{S_T2}, 10')
    A.I(f'v_lshrrev_b32 v{va}, 2, v0')
    A.I(f'v_lshlrev_b32 v{va}, 6, v{va}')
    A.I(f'v_and_b32 v{t0}, 3, v0')
    A.I(f'v_lshl_add_u32 v{va}, v{t0}, 3, v{va}')
    for hh in range(8):
        A.I(f's_waitcnt vmcnt({7 - hh})')
        for i in range(4):
            r = B + 4 * hh + i
            if hh == 0:
                A.I(f'v_lshlrev_b32 v{Z + 2 * i}, 16, v{r}')
                A.I(f'v_and_b32 v{Z + 2 * i + 1}, 0xffff0000, v{r}')
            else:
                A.I(f'v_lshlrev_b32 v{t0}, 16, v{r}')
                A.I(f'v_and_b32 v{t1}, 0xffff0000, v{r}')
                A.I(f'v_add_f32 v{Z + 2 * i}, v{Z + 2 * i}, v{t0}')
                A.I(f'v_add_f32 v{Z + 2 * i + 1}, v{Z + 2 * i + 1}, v{t1}')
    A.I(f's_lshl_b32 s{S_T0}, s{S_WV}, 11')
    A.I(f'v_add_u32 v{t0}, s{S_T0}, v1')
    A.I(f'v_add_u32 v{t0}, {L_RED}, v{t0}')
    A.I(f'ds_write_b128 v{t0}, {v(Z, 4)}')
    A.I(f'ds_write_b128 v{t0}, {v(Z + 4, 4)} offset:1024')
    A.I('s_waitcnt lgkmcnt(0) vmcnt(0)')
    A.I('s_barrier')
    ts_tok(A, 15)
    l = A.newlabel('L_r4')
    A.I(f's_cmp_lg_u32 s{S_WV}, 0')
    A.br(f's_cbranch_scc1 {l}')
    for w_ in range(1, 4):
        for j in range(2):
            A.I(f'ds_read_b128 {v(B + 8 * w_ + 4 * j, 4)}, v{t0} offset:{2048 * w_ + 1024 * j}')
    A.I('s_waitcnt lgkmcnt(0)')
    for w_ in range(1, 4):
        for i in range(8):
            A.I(f'v_add_f32 v{Z + i}, v{Z + i}, v{B + 8 * w_ + i}')
    T.round_bf16(A, Z, Pk)
    for i in range(4):
        A.I(f'v_lshlrev_b32 v{t0}, 16, v{XR + i}')
        A.I(f'v_and_b32 v{t1}, 0xffff0000, v{XR + i}')
        A.I(f'v_add_f32 v{Z + 2 * i}, v{Z + 2 * i}, v{t0}')
        A.I(f'v_add_f32 v{Z + 2 * i + 1}, v{Z + 2 * i + 1}, v{t1}')
    T.round_bf16(A, Z, Pk)
    A.I(f's_add_u32 s{S_T0}, s{S_T3}, 0x{WS_H:x}')
    A.I(f'buffer_store_dwordx2 {v(Pk, 2)}, v{va}, {ws}, s{S_T0} offen sc1')
    A.I(f'buffer_store_dwordx2 {v(Pk + 2, 2)}, v{va}, {ws}, s{S_T0} offen offset:32 sc1')
    T.ln_regs(A, Z, t0, t1)
    T.round_bf16(A, Z, XR)
    T.ln_regs(A, Z, t0, t1)
    for i in range(4):
        A.I(f'v_cvt_pk_bf16_f32 v{XR + i}, v{Z + 2 * i}, v{Z + 2 * i + 1}')
    A.I(f's_add_u32 s{S_T0}, s{S_T3}, 0x{WS_HP:x}')
    A.I(f'buffer_store_dwordx2 {v(XR, 2)}, v{va}, {ws}, s{S_T0} offen sc1')
    A.I(f'buffer_store_dwordx2 {v(XR + 2, 2)}, v{va}, {ws}, s{S_T0} offen offset:32 sc1')
    A.I(f's_lshl_b32 s{S_T2}, s{s_seg}, 7')
    A.I(f's_add_u32 s{S_T2}, s{S_T2}, 0x{F_LH:x}')
    A.I(f's_lshl_b32 s{S_T3}, s{s_seg}, 2')
    A.I(f's_add_u32 s{S_T3}, s{S_T3}, 0x{F_GF:x}')
    A.I('s_waitcnt vmcnt(0)')
    garrive(A, S_T2, S_T3, t0, l_exit)
    A.label(l)


if __name__ == '__main__':
    A = Asm()
    nm = NAME + '_kernel'
    mega_kernel(A, nm)
    hd = header([(nm, 256, 256, R.L_TOTAL)])
    if os.environ.get('FINAL'):
        hd = hd.replace(f'@launch kernel={nm} ', '@launch ')
    txt = hd + A.text() + '.section .rodata,"a"\n' + kernel_desc(nm, 512, 256)
    out = os.environ.get('OUT', 'm3.s')
    open(out, 'w').write(txt)
    print(len(txt))
```

```python
import os
os.environ.setdefault('PB_DELAY', '7'); os.environ.setdefault('AF_DELAY', '2'); os.environ.setdefault('AF_GAP', '2')
from common import *
import tok as T
import rec9 as R
from tok import f32, S_WS, S_W, S_X, S_H, S_WV, S_G, S_T0, S_T1, S_T2, S_T3

S_DBG = 84
S_SPIN = R.S_SPIN
S_XCC = 83
S_LNO = 82
F_OPC = WS_FLAG + 0x4000
F_LH = WS_FLAG + 0x6000
F_LU = WS_FLAG + 0x8000
F_GF = WS_FLAG + 0x8400
S_FAST = S_XCC
D_GB, D_OVF, D_WEIRD, D_TS = 128, 36, 40, 192
S_J, S_BO2, S_LB2 = 100, 101, 3
S_J2 = 63
S_W1, S_B1, S_W2 = 88, 92, 96
NEARLY = int(os.environ.get('NEARLY', 2))
STAG = int(os.environ.get('STAG', 4))
STAG0 = int(os.environ.get('STAG0', 1))
TIMING = bool(os.environ.get('TIMING'))
TAIL_BYTES = int(os.environ.get('TAIL_BYTES', 24576))
CODET = int(os.environ.get('CODET', 1))
CODE_BYTES = int(os.environ.get('CODE_BYTES', 57344))
PLF = os.environ.get('PLF', 'sc1').replace('_', ' ')


def lane0(A, body):
    A.I('s_mov_b64 exec, 1')
    body()
    A.I('s_mov_b64 exec, -1')


def poll_eq(A, srd, s_off, imm, expect, vt, l_exit, sleep=0):
    l = A.newlabel('L_poll')
    A.label(l)
    so = f's{s_off}' if s_off is not None else '0'
    A.I(f'buffer_load_dword v{vt}, off, {srd}, {so} offset:{imm} sc1')
    A.I(f's_sub_u32 s{S_SPIN}, s{S_SPIN}, 1')
    A.I(f's_cbranch_scc1 {l_exit}')
    A.I('s_waitcnt vmcnt(0)')
    A.I(f'v_readfirstlane_b32 s{S_T0}, v{vt}')
    ld = A.newlabel('L_pd')
    A.I(f's_cmp_eq_u32 s{S_T0}, {expect}')
    A.I(f's_cbranch_scc1 {ld}')
    if sleep:
        A.I(f's_sleep {sleep}')
    A.br(f's_branch {l}')
    A.label(ld)


def poll_flags(A, s_off, nlanes, width, vt, va, l_exit, sleep=0):
    ws = f's[{S_WS}:{S_WS + 3}]'
    l, ld = A.newlabel('L_pf'), A.newlabel('L_pfd')
    A.I(f'v_lshlrev_b32 v{va}, {2 if width == 1 else 3}, v0')
    assert nlanes <= 32
    A.I(f's_mov_b32 exec_lo, 0x{(1 << nlanes) - 1:x}')
    A.I('s_mov_b32 exec_hi, 0')
    A.label(l)
    if width == 1:
        A.I(f'buffer_load_dword v{vt}, v{va}, {ws}, s{s_off} offen {PLF}')
    else:
        A.I(f'buffer_load_dwordx2 {v(vt, 2)}, v{va}, {ws}, s{s_off} offen {PLF}')
    A.I(f's_sub_u32 s{S_SPIN}, s{S_SPIN}, 1')
    A.I(f's_cbranch_scc1 {l_exit}')
    A.I('s_waitcnt vmcnt(0)')
    if width == 2:
        A.I(f'v_min_u32 v{vt}, v{vt}, v{vt + 1}')
    A.I(f'v_cmp_eq_u32 vcc, 0, v{vt}')
    A.I(f's_cbranch_vccz {ld}')
    if sleep:
        A.I(f's_sleep {sleep}')
    A.br(f's_branch {l}')
    A.label(ld)
    A.I('s_mov_b64 exec, -1')


def flag_store(A, s_addr, vt):
    ws = f's[{S_WS}:{S_WS + 3}]'
    l1, l2 = A.newlabel('L_fs'), A.newlabel('L_fs')
    A.I(f'v_mov_b32 v{vt}, 1')
    A.I('s_mov_b64 exec, 1')
    A.I(f's_cmp_eq_u32 s{S_FAST}, 0')
    A.br(f's_cbranch_scc1 {l1}')
    A.I(f'buffer_store_dword v{vt}, off, {ws}, s{s_addr}')
    A.br(f's_branch {l2}')
    A.label(l1)
    A.I(f'buffer_store_dword v{vt}, off, {ws}, s{s_addr} sc1')
    A.label(l2)
    A.I('s_mov_b64 exec, -1')


def garrive(A, s_line, s_goff, vt, l_exit):
    ws = f's[{S_WS}:{S_WS + 3}]'
    A.I(f's_lshl_b32 s{S_T1}, s{S_H}, 2')
    A.I(f's_add_u32 s{S_T1}, s{S_T1}, s{s_line}')
    flag_store(A, S_T1, vt)
    l = A.newlabel('L_ga')
    A.I(f's_cmp_lg_u32 s{S_H}, 0')
    A.br(f's_cbranch_scc1 {l}')
    poll_flags(A, s_line, 32, 1, vt, vt + 1, l_exit)
    A.I(f'v_lshlrev_b32 v{vt + 1}, 9, v0')
    A.I(f'v_mov_b32 v{vt}, 1')
    A.I('s_mov_b64 exec, 0xff')
    A.I(f'buffer_store_dword v{vt}, v{vt + 1}, {ws}, s{s_goff} offen sc1')
    A.I('s_mov_b64 exec, -1')
    A.label(l)


def wg_poll_eq(A, srd, s_off, imm, expect, vt, l_exit, sleep=0):
    l0 = A.newlabel('L_wgp')
    A.I(f's_cmp_lg_u32 s{S_WV}, 0')
    A.br(f's_cbranch_scc1 {l0}')
    poll_eq(A, srd, s_off, imm, expect, vt, l_exit, sleep)
    A.label(l0)
    A.I('s_barrier')


def tstamp(A, idx, r=14):
    if not TIMING:
        return
    l = A.newlabel('L_ts')
    A.I(f's_cmp_lg_u32 s{S_WV}, 0')
    A.br(f's_cbranch_scc1 {l}')
    A.I('s_memrealtime s[80:81]')
    A.I('s_waitcnt lgkmcnt(0)')
    A.I(f'v_mov_b32 v{r}, s80')
    A.I(f'v_mov_b32 v{r + 1}, s81')
    A.I(f's_lshl_b32 s80, s{S_G}, 5')
    A.I(f's_add_u32 s80, s80, s{S_H}')
    A.I('s_lshl_b32 s80, s80, 8')
    A.I(f's_add_u32 s80, s80, 0x{WS_DBG:x}')
    A.I(f'buffer_store_dwordx2 {v(r, 2)}, off, s[{S_WS}:{S_WS + 3}], s80 offset:{8 * idx}')
    A.label(l)


def mega_kernel(A, name):
    kernel_begin(A, name)
    l_exit = A.newlabel('L_exit')
    P_WS, P_DBG, P_Q, P_K, P_V, P_O, P_M0, P_X = 16, 18, 20, 22, 24, 26, 28, 30
    ws, dbg, sx = f's[{S_WS}:{S_WS + 3}]', f's[{S_DBG}:{S_DBG + 3}]', f's[{S_X}:{S_X + 3}]'
    A.I('s_cmp_ge_u32 s2, 256')
    A.I(f's_cbranch_scc1 {l_exit}')
    A.I(f's_load_dwordx2 s[{P_WS}:{P_WS + 1}], s[0:1], {KA_WS}')
    A.I(f's_load_dwordx2 s[{P_DBG}:{P_DBG + 1}], s[0:1], {KA_DBG}')
    A.I(f's_load_dwordx4 s[{P_Q}:{P_Q + 3}], s[0:1], {KA_WQ}')
    A.I(f's_load_dwordx4 s[{P_V}:{P_V + 3}], s[0:1], {KA_WV}')
    A.I(f's_load_dwordx2 s[{P_M0}:{P_M0 + 1}], s[0:1], {KA_MEM0}')
    A.I(f's_load_dwordx2 s[{P_X}:{P_X + 1}], s[0:1], {KA_X}')
    A.I('v_lshrrev_b32 v1, 6, v0')
    A.I('v_and_b32 v0, 63, v0')
    A.I(f'v_readfirstlane_b32 s{S_WV}, v1')
    A.I(f's_getreg_b32 s{S_XCC}, hwreg(HW_REG_XCC_ID)')
    A.I(f's_mov_b32 s{S_SPIN}, 0x80000')
    A.I('s_waitcnt lgkmcnt(0)')
    make_srd(A, S_WS, P_WS, WS_SIZE)
    make_srd(A, S_DBG, P_DBG, 256)
    make_srd(A, S_X, P_X, 2048 * 1024)
    A.I(f's_mov_b32 s{S_LNO}, -1')
    if CODET:
        lct = A.newlabel('L_ct')
        A.I(f's_cmp_lg_u32 s{S_WV}, 3')
        A.br(f's_cbranch_scc1 {lct}')
        A.I('s_cmp_ge_u32 s2, 16')
        A.br(f's_cbranch_scc1 {lct}')
        code_touch(A, name, l_exit, CODE_BYTES, 2, 3)
        A.label(lct)
    lr = A.newlabel('L_role_done')
    A.I(f's_cmp_lg_u32 s{S_WV}, 0')
    A.br(f's_cbranch_scc1 {lr}')
    A.I('s_mov_b64 exec, 1')
    A.I('v_mov_b32 v2, 1')
    lw = A.newlabel('L_nw')
    A.I(f's_cmp_lt_u32 s{S_XCC}, 8')
    A.br(f's_cbranch_scc1 {lw}')
    A.I(f'buffer_atomic_or v2, off, {dbg}, 0 offset:{D_WEIRD}')
    A.I('s_waitcnt vmcnt(0)')
    A.label(lw)
    A.I(f's_and_b32 s{S_G}, s{S_XCC}, 7')
    A.I(f's_lshl_b32 s{S_T0}, s{S_G}, 2')
    A.I(f'buffer_atomic_add v2, off, {dbg}, s{S_T0} sc0')
    A.I('s_waitcnt vmcnt(0)')
    A.I(f'v_readfirstlane_b32 s{S_H}, v2')
    lok = A.newlabel('L_rok')
    A.I(f's_cmp_lt_u32 s{S_H}, 32')
    A.br(f's_cbranch_scc1 {lok}')
    A.I('v_mov_b32 v2, 1')
    A.I(f'buffer_atomic_add v2, off, {dbg}, 0 offset:{D_OVF} sc0')
    A.I('s_waitcnt vmcnt(0)')
    A.I(f'v_readfirstlane_b32 s{S_T3}, v2')
    lo = A.newlabel('L_ovf')
    A.label(lo)
    A.I(f'buffer_load_dwordx4 v[4:7], off, {dbg}, 0 sc1')
    A.I(f'buffer_load_dwordx4 v[8:11], off, {dbg}, 0 offset:16 sc1')
    A.I(f's_sub_u32 s{S_SPIN}, s{S_SPIN}, 1')
    A.I(f's_cbranch_scc1 {l_exit}')
    A.I('s_waitcnt vmcnt(0)')
    A.I(f's_mov_b32 s{S_T0}, 0')
    for i in range(8):
        A.I(f'v_readfirstlane_b32 s{64 + i}, v{4 + i}')
    for i in range(8):
        A.I(f's_add_u32 s{S_T0}, s{S_T0}, s{64 + i}')
    A.I(f's_cmp_lt_u32 s{S_T0}, 256')
    A.br(f's_cbranch_scc1 {lo}')
    for g in range(8):
        A.I(f's_min_u32 s{S_T0}, s{64 + g}, 32')
        A.I(f's_sub_u32 s{S_T1}, 32, s{S_T0}')
        A.I(f's_mov_b32 s{S_G}, {g}')
        A.I(f's_add_u32 s{S_H}, s{S_T0}, s{S_T3}')
        A.I(f's_cmp_lt_u32 s{S_T3}, s{S_T1}')
        A.br(f's_cbranch_scc1 {lok}')
        A.I(f's_sub_u32 s{S_T3}, s{S_T3}, s{S_T1}')
    A.label(lok)
    A.I(f's_lshl_b32 s{S_T0}, s{S_G}, 8')
    A.I(f's_or_b32 s{S_T0}, s{S_T0}, s{S_H}')
    A.I(f'v_mov_b32 v2, s{S_T0}')
    A.I('v_mov_b32 v3, 0')
    A.I('ds_write_b32 v3, v2')
    A.I('s_waitcnt lgkmcnt(0)')
    A.I('s_mov_b64 exec, -1')
    A.label(lr)
    A.I('s_barrier')
    A.I('v_mov_b32 v3, 0')
    A.I('ds_read_b32 v2, v3')
    A.I('s_waitcnt lgkmcnt(0)')
    A.I(f'v_readfirstlane_b32 s{S_T0}, v2')
    A.I(f's_and_b32 s{S_H}, s{S_T0}, 31')
    A.I(f's_bfe_u32 s{S_G}, s{S_T0}, 0x30008')
    A.I('s_barrier')
    tstamp(A, 0)

    def ln_and_arrive(ln=True):
        if ln:
            l = A.newlabel('L_nl2')
            A.I(f's_cmp_eq_u32 s{S_LNO}, -1')
            A.br(f's_cbranch_scc1 {l}')
            A.check = False
            T.ln1_compute(A, ws, S_LNO, 'sc1', 0)
            A.check = True
            A.label(l)
        A.I('s_waitcnt vmcnt(0)')
        A.I('s_barrier')
        l = A.newlabel('L_na')
        A.I(f's_cmp_lg_u32 s{S_WV}, 0')
        A.br(f's_cbranch_scc1 {l}')
        A.I('v_mov_b32 v23, 1')
        lane0(A, lambda: A.I(f'buffer_atomic_add v23, off, {dbg}, 0 offset:{D_GB}'))
        A.I('s_waitcnt vmcnt(0)')
        A.label(l)

    l_tok = A.newlabel('L_tok')
    l_g2 = A.newlabel('L_g2')
    A.I(f's_cmp_lg_u32 s{S_G}, 0')
    A.br(f's_cbranch_scc1 {l_tok}')

    A.I(f'v_mov_b32 v{R.LANE}, v0')
    R.setup_consts(A)

    def thook():
        A.check = False
        A.I(f's_lshl_b32 s{S_T0}, s{S_H}, 6')
        A.I(f's_lshl_b32 s{S_T1}, s{S_WV}, 2')
        A.I(f's_add_u32 s{S_T0}, s{S_T0}, s{S_T1}')
        A.I(f's_add_u32 s{S_LNO}, s{S_T0}, 0x{R.F_KMP:x}')
        A.I('v_mov_b32 v24, 0')
        lane0(A, lambda: A.I(f'buffer_store_dword v24, off, {ws}, s{S_LNO} sc1'))
        R.init_exchange(A, P_M0, 'sc1', rb=24)
        ln_and_arrive(ln=False)
        tstamp(A, 8, 24)
        A.check = True
        A.forget_loads()

    S_OK = 25

    def batch():
        A.I(f'buffer_load_dword v25, off, {dbg}, 0 sc1')
        A.I(f'buffer_load_dword v26, off, {dbg}, 0 offset:{D_WEIRD} sc1')
        R.kv_load(A, 28, R.V_L16, R.S_RA)

    def h_issue(sc):
        if sc == 3:
            A.I(f'buffer_load_dword v24, off, {dbg}, 0 offset:{D_GB} sc1')
            return
        A.I(f's_lshl_b32 s{R.S_RA}, s{S_H}, 7')
        A.I(f's_add_u32 s{R.S_RA}, s{R.S_RA}, 0x{R.F_PROG:x}')
        A.I(f's_lshl_b32 s{R.S_KVN}, s{S_H}, 13')
        A.I(f's_add_u32 s{R.S_KVN}, s{R.S_KVN}, s{R.S_W11}')
        A.I(f's_add_u32 s{R.S_KVN}, s{R.S_KVN}, 0x{WS_KF:x}')
        A.I(f's_add_u32 s{R.S_KVM0}, s{R.S_W11}, {R.L_KV}')
        batch()

    def evaluate(l_fail):
        R.kv_eval(A, 28, R.V_L16, R.S_AV)
        A.I(f'v_readfirstlane_b32 s{S_T0}, v24')
        A.I(f'v_readfirstlane_b32 s{S_T2}, v25')
        A.I(f'v_readfirstlane_b32 s{S_T3}, v26')
        A.I(f's_cmp_lg_u32 s{S_T0}, 256')
        A.I(f's_cbranch_scc1 {l_fail}')
        A.I(f's_cmp_eq_u32 s{R.S_AV}, 0')
        A.I(f's_cbranch_scc1 {l_fail}')
        A.I(f's_cmp_ge_u32 s{S_T2}, 32')
        A.I(f's_cselect_b32 s{S_XCC}, 1, 0')
        A.I(f's_cmp_eq_u32 s{S_T3}, 0')
        A.I(f's_cselect_b32 s{S_XCC}, s{S_XCC}, 0')
        R.kv_dma(A)

    def h_check():
        lf = A.newlabel('L_hf')
        A.I(f's_mov_b32 s{S_OK}, 0')
        evaluate(lf)
        A.I(f's_mov_b32 s{S_OK}, 1')
        A.label(lf)

    R.stage_weights(A, [P_Q, P_K, P_V, P_O], hook=thook, hook_issue=h_issue, hook_check=h_check)
    l = A.newlabel('L_ns')
    A.I(f's_cmp_lg_u32 s{S_WV}, 0')
    A.br(f's_cbranch_scc1 {l}')
    A.I('v_mov_b32 v2, 1')
    lane0(A, lambda: A.I(f'buffer_atomic_add v2, off, {dbg}, 0 offset:{D_TS}'))
    A.label(l)
    tstamp(A, 1)
    A.I(f's_mov_b32 s{R.S_KP}, s{S_LNO}')
    lgo_, lre = A.newlabel('L_tgo'), A.newlabel('L_tre')
    A.I(f's_cmp_eq_u32 s{S_OK}, 1')
    A.br(f's_cbranch_scc1 {lgo_}')
    A.label(lre)
    A.I('s_sleep 4')
    A.I(f'buffer_load_dword v24, off, {dbg}, 0 offset:{D_GB} sc1')
    A.I('s_waitcnt vmcnt(0)')
    batch()
    A.I(f's_sub_u32 s{S_SPIN}, s{S_SPIN}, 1')
    A.I(f's_cbranch_scc1 {l_exit}')
    A.I('s_waitcnt vmcnt(0)')
    evaluate(lre)
    A.label(lgo_)
    A.I('s_waitcnt vmcnt(0)')
    A.I('s_barrier')
    tstamp(A, 2)
    l_slow = A.newlabel('L_slowmode')
    l_tdone = A.newlabel('L_tdone')
    A.I(f's_cmp_eq_u32 s{S_XCC}, 0')
    if os.environ.get('FORCE_SLOW'):
        A.br(f's_branch {l_slow}')
    else:
        A.br(f's_cbranch_scc1 {l_slow}')
    R.main_loop(A, '', l_tdone, kvcheck=True)
    A.label(l_slow)
    R.main_loop(A, 'sc1', l_tdone, kvcheck=True)
    A.label(l_tdone)
    A.forget_loads()
    A.I(f's_mov_b32 s{S_G}, 0')
    tstamp(A, 3)
    A.I(f'v_lshrrev_b32 v0, 4, v{R.V_L16}')
    j2_calc(A)
    A.I('s_waitcnt vmcnt(0) lgkmcnt(0)')
    A.I('s_barrier')
    g2_setup(A)
    for k in range(5):
        g2_dma(A, k)
    A.I(f's_mov_b32 s{S_PRE}, 0')
    A.br(f's_branch {l_g2}')

    A.label(l_tok)
    A.forget_loads()
    S_SEG, S_NX, S_CA, S_END, S_K1, S_AV, S_PB = 36, 41, 42, 43, 44, 45, 46
    j2_calc(A)
    A.I(f's_sub_u32 s{S_G}, s{S_G}, 1')
    A.I(f's_lshl_b32 s{S_J}, s{S_G}, 5')
    A.I(f's_add_u32 s{S_J}, s{S_J}, s{S_H}')

    def tok_init(ln=True):
        A.I(f's_lshl_b32 s{S_CA}, s{S_H}, 7')
        A.I(f's_lshl_b32 s{S_T0}, s{S_G}, 4')
        A.I(f's_add_u32 s{S_CA}, s{S_CA}, s{S_T0}')
        A.I(f's_lshl_b32 s{S_T0}, s{S_WV}, 2')
        A.I(f's_add_u32 s{S_CA}, s{S_CA}, s{S_T0}')
        A.I(f's_add_u32 s{S_CA}, s{S_CA}, 0x{R.F_PROG:x}')
        A.I('v_mov_b32 v22, 0')
        lane0(A, lambda: A.I(f'buffer_store_dword v22, off, {ws}, s{S_CA} sc1'))
        lz = A.newlabel('L_nz')
        A.I(f's_cmp_lg_u32 s{S_J}, 64')
        A.br(f's_cbranch_scc1 {lz}')
        A.I('v_lshlrev_b32 v23, 4, v0')
        for r in range(16, 20):
            A.I(f'v_mov_b32 v{r}, 0')
        A.I(f's_mul_i32 s{S_T0}, s{S_WV}, 6144')
        A.I(f's_add_u32 s{S_T0}, s{S_T0}, 0x{F_OPC:x}')
        A.I(f's_add_u32 s{S_T1}, s{S_T0}, 4096')
        for i in range(4):
            A.I(f'buffer_store_dwordx4 v[16:19], v23, {ws}, s{S_T0} offen offset:{1024 * i} sc1')
        A.I(f'buffer_store_dwordx4 v[16:19], v23, {ws}, s{S_T1} offen sc1')
        A.I(f'buffer_store_dwordx4 v[16:19], v23, {ws}, s{S_T1} offen offset:1024 sc1')
        A.label(lz)
        A.forget_loads()
        ln_and_arrive(ln)
        ts_tok(A, 8)

    l_late = A.newlabel('L_late')
    l_st = A.newlabel('L_st')
    A.I(f's_mov_b32 s{S_K1}, 0')
    A.I(f's_cmp_lt_u32 s{S_G}, {NEARLY}')
    A.br(f's_cbranch_scc1 {l_st}')
    l1 = A.newlabel('L_nl')
    A.I(f's_cmp_lg_u32 s{S_WV}, 1')
    A.I(f's_cbranch_scc1 {l1}')
    A.I(f's_cmp_lt_u32 s{S_G}, 3')
    A.I(f's_cbranch_scc1 {l1}')
    A.I(f's_sub_u32 s{S_T3}, s{S_J}, 96')
    T.ln1_load(A, S_T3, sx, S_LNO)
    A.label(l1)
    A.forget_loads()
    tok_init()
    l_nost = A.newlabel('L_nost')
    A.I(f's_cmp_ge_u32 s{S_G}, 4')
    A.br(f's_cbranch_scc1 {l_nost}')
    wg_poll_eq(A, dbg, None, D_TS, 32, 2, l_exit, sleep=32)
    lsg, lsd = A.newlabel('L_sg'), A.newlabel('L_sd')
    A.I(f's_cmp_lg_u32 s{S_WV}, 0')
    A.br(f's_cbranch_scc1 {lsd}')
    A.I(f's_cmp_eq_u32 s{S_G}, 3')
    A.I(f's_cselect_b32 s{S_T1}, {STAG}, {STAG0}')
    A.I(f's_lshl_b32 s{S_T2}, s{S_H}, 6')
    A.I(f's_add_u32 s{S_T2}, s{S_T2}, 0x{R.F_KMP:x}')
    A.label(lsg)
    A.I(f'buffer_load_dword v2, off, {ws}, s{S_T2} sc1')
    A.I(f's_sub_u32 s{S_SPIN}, s{S_SPIN}, 1')
    A.I(f's_cbranch_scc1 {l_exit}')
    A.I('s_waitcnt vmcnt(0)')
    A.I(f'v_readfirstlane_b32 s{S_T0}, v2')
    A.I(f's_cmp_ge_u32 s{S_T0}, s{S_T1}')
    A.I(f's_cbranch_scc1 {lsd}')
    A.I('s_sleep 16')
    A.br(f's_branch {lsg}')
    A.label(lsd)
    A.I('s_barrier')
    A.I(f's_mov_b32 s{S_K1}, 1')
    A.label(l_st)

    def hook():
        l = A.newlabel('L_hk')
        A.I(f's_cmp_eq_u32 s{S_K1}, 1')
        A.br(f's_cbranch_scc1 {l}')
        A.check = False
        tok_init(False)
        A.check = True
        A.label(l)
        A.forget_loads()

    T.qkv_stage(A, [P_Q, P_K, P_V], hook=hook)
    A.label(l_nost)
    ts_tok(A, 1)
    wg_poll_eq(A, dbg, None, D_GB, 256, 2, l_exit, sleep=8)
    ts_tok(A, 7)
    A.I(f's_lshl_b32 s{S_T0}, s{S_G}, 2')
    A.I(f'buffer_load_dword v2, off, {dbg}, s{S_T0} offset:4 sc1')
    A.I(f'buffer_load_dword v3, off, {dbg}, 0 offset:{D_WEIRD} sc1')
    A.I('s_waitcnt vmcnt(0)')
    A.I(f'v_readfirstlane_b32 s{S_T2}, v2')
    A.I(f'v_readfirstlane_b32 s{S_T3}, v3')
    A.I(f's_cmp_ge_u32 s{S_T2}, 32')
    A.I(f's_cselect_b32 s{S_FAST}, 1, 0')
    A.I(f's_cmp_eq_u32 s{S_T3}, 0')
    A.I(f's_cselect_b32 s{S_FAST}, s{S_FAST}, 0')
    if os.environ.get('FORCE_SLOW'):
        A.I(f's_mov_b32 s{S_FAST}, 0')
    l_nop1 = A.newlabel('L_nop1')
    A.I(f's_cmp_ge_u32 s{S_G}, 4')
    A.br(f's_cbranch_scc1 {l_nop1}')
    A.I(f's_lshr_b32 s{S_T0}, s{S_G}, 1')
    A.I(f's_lshl_b32 s{S_T0}, s{S_T0}, 5')
    A.I(f's_add_u32 s{S_END}, s{S_T0}, 32')
    A.I(f's_and_b32 s{S_NX}, s{S_G}, 1')
    A.I(f's_add_u32 s{S_NX}, s{S_NX}, s{S_T0}')
    A.I('v_mov_b32 v2, 0')

    def signal():
        lane0(A, lambda: A.I(f'buffer_store_dword v2, off, {ws}, s{S_CA} sc1'))

    def after():
        A.I('v_add_u32 v2, 1, v2')

    T.qkv_segments(A, 2, 'sc1', after_seg=after, mid_seg=signal, first=S_NX, end=f's{S_END}')
    A.I('s_waitcnt vmcnt(0)')
    signal()
    A.label(l_nop1)
    ts_tok(A, 2)
    T.att_stage(A, P_O)
    T.att_consts(A)
    A.I(f's_load_dwordx4 s[16:19], s[0:1], {KA_W1}')
    A.I('s_waitcnt lgkmcnt(0)')
    make_srd(A, S_W1, 16, 2048 * 3584)
    make_srd(A, S_B1, 18, 3584)
    g2_setup(A)
    A.I(f's_mov_b32 s{S_PRE}, 0')
    for i in range(16):
        A.I(f'v_mov_b32 v{G1ACC + i}, 0')
    A.I(f's_mov_b32 s{S_K1}, 0')
    g1_w1_dma(A, S_K1, first=True)
    masks = seg_masks()
    for g in range(7):
        A.I(f's_cmp_eq_u32 s{S_G}, {g}')
        A.I(f's_cselect_b32 s{S_MSK}, 0x{masks[g] & 0xffffffff:x}, s{S_MSK}')
        A.I(f's_cselect_b32 s{S_MSK + 1}, 0x{masks[g] >> 32:x}, s{S_MSK + 1}')
    A.I(f's_ff1_i32_b64 s{S_SEG}, s[{S_MSK}:{S_MSK + 1}]')
    A.I(f's_bitset0_b64 s[{S_MSK}:{S_MSK + 1}], s{S_SEG}')
    A.I(f's_mov_b32 s{S_AV}, 0')
    A.I(f's_lshl_b32 s{S_PB}, s{S_H}, 7')
    A.I(f's_add_u32 s{S_PB}, s{S_PB}, 0x{R.F_PROG:x}')
    R.kv_wait(A, l_exit, S_SEG, 192, s_av=S_AV, s_base=S_PB, sleep=4, vlane16=1)
    T.att_load_qkv(A, S_SEG)
    x_prefetch(A, S_SEG, sx)
    L = A.newlabel('L_p2')
    L_att = A.newlabel('L_att')
    L_fin = A.newlabel('L_p2fin')
    A.label(L)
    A.check = False
    A.I(f's_cmp_ge_u32 s{S_K1}, 16')
    A.I(f's_cbranch_scc1 {L_fin}')
    lq2 = A.newlabel('L_lp2')
    ldec = A.newlabel('L_dec')
    A.I(f's_cmp_lg_u32 s{S_WV}, 0')
    A.br(f's_cbranch_scc1 {ldec}')
    A.I(f's_lshl_b32 s{S_CA}, s{S_H}, 6')
    A.I(f's_add_u32 s{S_CA}, s{S_CA}, 0x{R.F_KMP:x}')
    A.I(f's_add_u32 s40, s{S_SEG}, 2')
    A.I(f's_lshl_b32 s{S_T1}, s{S_K1}, 4')
    A.I(f's_lshl_b32 s{S_T2}, s{S_G}, 9')
    A.I(f's_add_u32 s{S_T1}, s{S_T1}, s{S_T2}')
    A.I(f's_add_u32 s{S_T1}, s{S_T1}, 0x{F_GF + 512:x}')
    lq, lgo, lnk = A.newlabel('L_lp'), A.newlabel('L_go'), A.newlabel('L_nk')
    A.label(lq)
    A.I(f'buffer_load_dwordx4 v[192:195], off, {ws}, s{S_CA} {PLF}')
    A.I(f'buffer_load_dwordx4 v[196:199], off, {ws}, s{S_T1} {PLF}')
    A.I(f's_sub_u32 s{S_SPIN}, s{S_SPIN}, 1')
    A.I(f's_cbranch_scc1 {l_exit}')
    A.I('s_waitcnt vmcnt(0)')
    A.I('v_min_u32 v6, v192, v193')
    A.I('v_min3_u32 v6, v6, v194, v195')
    A.I(f'v_readfirstlane_b32 s{S_T0}, v6')
    A.I('v_min_u32 v7, v196, v197')
    A.I('v_min3_u32 v7, v7, v198, v199')
    A.I('v_cmp_eq_u32 vcc, 0, v7')
    A.I(f's_mov_b32 s{S_T3}, 1')
    A.I(f's_cmp_ge_u32 s{S_T0}, s40')
    A.I(f's_cbranch_scc1 {lgo}')
    A.label(lnk)
    lsl = A.newlabel('L_sl')
    A.I(f's_add_u32 s{S_T0}, s{S_T0}, 2')
    A.I(f's_cmp_ge_u32 s{S_T0}, s40')
    A.I(f's_cbranch_scc1 {lq}')
    A.I(f's_mov_b32 s{S_T3}, 2')
    A.I(f's_cbranch_vccz {lgo}')
    lns = A.newlabel('L_nsl')
    A.I(f's_mov_b32 s{S_T3}, 3')
    A.I(f's_cmp_lt_u32 s{S_SEG}, 64')
    A.I(f's_cbranch_scc1 {lns}')
    A.I(f's_cmp_lt_u32 s{S_K1}, 3')
    A.I(f's_cbranch_scc1 {lns}')
    A.I(f's_cmp_lt_u32 s{S_PRE}, 3')
    A.I(f's_cbranch_scc1 {lgo}')
    A.label(lns)
    A.I('s_sleep 4')
    A.br(f's_branch {lq}')
    A.label(lgo)
    A.I(f'v_mov_b32 v6, s{S_T3}')
    A.I(f'v_mov_b32 v7, {L_RED + 8192 - 16}')
    A.I('ds_write_b32 v7, v6')
    A.I('s_waitcnt lgkmcnt(0)')
    A.label(ldec)
    A.I('s_barrier')
    A.I(f'v_mov_b32 v7, {L_RED + 8192 - 16}')
    A.I('ds_read_b32 v6, v7')
    A.I('s_waitcnt lgkmcnt(0)')
    A.I(f'v_readfirstlane_b32 s{S_T0}, v6')
    A.I(f's_cmp_eq_u32 s{S_T0}, 1')
    A.br(f's_cbranch_scc1 {lq2}')
    lch = A.newlabel('L_ch')
    A.I(f's_cmp_eq_u32 s{S_T0}, 2')
    A.br(f's_cbranch_scc1 {lch}')
    for rnd in range(3):
        lpr = A.newlabel('L_pr')
        A.I(f's_cmp_lg_u32 s{S_PRE}, {rnd}')
        A.br(f's_cbranch_scc1 {lpr}')
        g2_pre(A, rnd)
        A.br(f's_branch {L}')
        A.label(lpr)
    A.label(lch)
    ts_tok(A, 16)
    g1_chunk(A, S_K1, l_exit)
    A.I(f's_add_u32 s{S_K1}, s{S_K1}, 1')
    if CODET:
        lct = A.newlabel('L_ct')
        A.I(f's_cmp_lg_u32 s{S_K1}, 12')
        A.br(f's_cbranch_scc1 {lct}')
        A.I(f's_lshl_b32 s{S_T0}, s{S_H}, 2')
        A.I(f's_add_u32 s{S_T0}, s{S_T0}, s{S_WV}')
        A.I(f's_cmp_lg_u32 s{S_T0}, 7')
        A.br(f's_cbranch_scc1 {L}')
        code_touch(A, L, l_exit, TAIL_BYTES, 5, 143)
        A.br(f's_branch {L}')
        A.label(lct)
    lw2 = A.newlabel('L_w2')
    A.I(f's_cmp_lg_u32 s{S_K1}, 3')
    A.br(f's_cbranch_scc1 {lw2}')
    for k in range(5):
        g2_dma(A, k)
    A.br(f's_branch {L}')
    A.label(lw2)
    A.I(f's_cmp_lg_u32 s{S_K1}, 6')
    A.br(f's_cbranch_scc1 {L}')
    A.I(f's_and_b32 s{S_T0}, s{S_J2}, 7')
    A.I(f's_cmp_lg_u32 s{S_T0}, 4')
    A.br(f's_cbranch_scc1 {L}')
    g2_touch(A, 5)
    A.br(f's_branch {L}')
    A.label(lq2)
    ts_tok(A, 10)
    T.att_load_mem(A, S_SEG, 'sc1')
    A.I('s_waitcnt vmcnt(0)')
    ts_tok(A, 11)
    A.check = True
    A.forget_loads()
    T.att_compute1(A)
    lc1, lc2 = A.newlabel('L_c2s'), A.newlabel('L_c2e')
    A.I(f's_cmp_eq_u32 s{S_FAST}, 0')
    A.br(f's_cbranch_scc1 {lc1}')
    T.att_compute2(A, S_SEG, '')
    A.br(f's_branch {lc2}')
    A.label(lc1)
    T.att_compute2(A, S_SEG, 'sc1')
    A.label(lc2)
    ts_tok(A, 12)
    A.I('s_waitcnt vmcnt(0)')
    A.I('s_barrier')
    ts_tok(A, 13)
    A.I(f's_lshl_b32 s{S_CA}, s{S_SEG}, 7')
    A.I(f's_add_u32 s{S_CA}, s{S_CA}, 0x{F_OPC:x}')
    l0 = A.newlabel('L_n0')
    A.I(f's_cmp_lg_u32 s{S_WV}, 0')
    A.br(f's_cbranch_scc1 {l0}')
    A.I(f's_lshl_b32 s{S_T1}, s{S_H}, 2')
    A.I(f's_add_u32 s{S_T1}, s{S_T1}, s{S_CA}')
    flag_store(A, S_T1, 6)
    poll_flags(A, S_CA, 32, 1, 6, 7, l_exit)
    A.label(l0)
    A.I('s_barrier')
    ts_tok(A, 14)
    red4(A, S_SEG, sx, l_exit)
    A.I(f's_ff1_i32_b64 s{S_SEG}, s[{S_MSK}:{S_MSK + 1}]')
    A.I(f's_bitset0_b64 s[{S_MSK}:{S_MSK + 1}], s{S_SEG}')
    lnn = A.newlabel('L_nn')
    A.I(f's_cmp_lt_u32 s{S_SEG}, 64')
    A.br(f's_cbranch_scc1 {lnn}')
    A.I(f's_mov_b32 s{S_SEG}, 999')
    ts_tok(A, 3)
    A.br(f's_branch {L}')
    A.label(lnn)
    lav = A.newlabel('L_av')
    A.I(f's_cmp_gt_u32 s{S_AV}, s{S_SEG}')
    A.br(f's_cbranch_scc1 {lav}')
    R.kv_wait(A, l_exit, S_SEG, 192, s_av=S_AV, s_base=S_PB, sleep=4, vlane16=1)
    A.label(lav)
    T.att_load_qkv(A, S_SEG)
    x_prefetch(A, S_SEG, sx)
    A.br(f's_branch {L}')
    A.label(L_fin)
    A.forget_loads()
    ts_tok(A, 4)
    g1_epilogue(A, l_exit)
    A.I(f's_add_u32 s{S_G}, s{S_G}, 1')
    tstamp(A, 17)
    A.label(l_g2)
    A.forget_loads()
    g2_main(A, l_exit)
    tstamp(A, 6, 8)
    A.label(l_exit)
    A.I('s_endpgm')


S_MSK = 56


def seg_masks():
    c1, c2 = int(os.environ.get('C1', 14)), int(os.environ.get('C2', 27))
    m = [0] * 7
    last = {g: -100 for g in range(7)}
    for s_ in range(64):
        cand = [4, 5, 6] if s_ < c1 else ([4, 5, 6, 0, 1] if s_ < c2 else list(range(7)))
        g = min(cand, key=lambda x: last[x])
        last[g] = s_
        m[g] |= 1 << s_
    return m


def j2_calc(A):
    A.I(f's_lshr_b32 s{S_T0}, s{S_G}, 1')
    A.I(f's_lshl_b32 s{S_T0}, s{S_T0}, 3')
    A.I(f's_lshr_b32 s{S_T1}, s{S_H}, 2')
    A.I(f's_add_u32 s{S_T0}, s{S_T0}, s{S_T1}')
    A.I(f's_lshl_b32 s{S_J2}, s{S_T0}, 3')
    A.I(f's_and_b32 s{S_T0}, s{S_G}, 1')
    A.I(f's_lshl_b32 s{S_T0}, s{S_T0}, 2')
    A.I(f's_and_b32 s{S_T1}, s{S_H}, 3')
    A.I(f's_add_u32 s{S_T0}, s{S_T0}, s{S_T1}')
    A.I(f's_add_u32 s{S_J2}, s{S_J2}, s{S_T0}')


def code_touch(A, l_from, l_end, nbytes, vd, va):
    lh = A.newlabel('L_pc')
    A.I('s_getpc_b64 s[80:81]')
    A.raw(f'{lh}:')
    A.raw(f'    s_sub_u32 s80, s80, {lh}-{l_from}')
    A.raw('    s_subb_u32 s81, s81, 0')
    A.I(f'v_lshlrev_b32 v{va}, 7, v0')
    for i in range(0, nbytes, 8192):
        A.raw(f'    v_min_u32 v{va}, {l_end}-{l_from}, v{va}')
        A.raw(f'    global_load_dword v{vd}, v{va}, s[80:81]')
        A.I(f'v_add_u32 v{va}, 8192, v{va}')


def x_prefetch(A, s_seg, sx):
    A.I('v_lshrrev_b32 v6, 2, v0')
    A.I('v_lshlrev_b32 v6, 6, v6')
    A.I('v_and_b32 v7, 3, v0')
    A.I('v_lshl_add_u32 v6, v7, 3, v6')
    A.I(f's_lshl_b32 s{S_T3}, s{s_seg}, 5')
    A.I(f's_add_u32 s{S_T3}, s{S_T3}, s{S_H}')
    A.I(f's_lshl_b32 s{S_T3}, s{S_T3}, 10')
    A.I(f'buffer_load_dwordx2 v[12:13], v6, {sx}, s{S_T3} offen')
    A.I(f'buffer_load_dwordx2 v[14:15], v6, {sx}, s{S_T3} offen offset:32')


def ts_tok(A, i):
    if TIMING:
        A.I(f's_add_u32 s{S_G}, s{S_G}, 1')
        tstamp(A, i, 14 if i in (1, 2, 7, 8) else 6)
        A.I(f's_sub_u32 s{S_G}, s{S_G}, 1')


G1ACC = 120
G1T = 144
L_G1 = 0
L_RED = 65536
L_W2 = 73728


def g1_lane(A):
    t = G1T
    A.I(f'v_lshrrev_b32 v{t}, 3, v0')
    A.I(f'v_and_b32 v{t + 1}, 7, v0')
    A.I(f'v_bfe_u32 v{t + 2}, v0, 4, 1')
    A.I(f's_and_b32 s{S_T0}, s{S_WV}, 1')
    A.I(f's_lshl_b32 s{S_T0}, s{S_T0}, 1')
    A.I(f'v_or_b32 v{t + 2}, s{S_T0}, v{t + 2}')
    A.I(f'v_lshlrev_b32 v{t + 2}, 1, v{t + 2}')
    A.I(f'v_xor_b32 v{t + 1}, v{t + 1}, v{t + 2}')
    A.I(f'v_lshlrev_b32 v{t + 1}, 4, v{t + 1}')
    A.I(f'v_mul_u32_u24 v136, 3584, v{t}')
    A.I(f'v_add_u32 v136, v136, v{t + 1}')
    A.I(f'v_lshl_add_u32 v137, v{t}, 10, v{t + 1}')
    A.I(f'v_and_b32 v{t}, 15, v0')
    A.I(f'v_lshrrev_b32 v{t + 1}, 4, v0')
    A.I(f'v_lshrrev_b32 v{t + 2}, 2, v{t}')
    A.I(f'v_and_b32 v{t + 3}, 3, v{t}')
    A.I(f'v_lshl_add_u32 v{t + 4}, v{t + 1}, 3, v{t + 2}')
    A.I(f'v_lshlrev_b32 v{t + 4}, 7, v{t + 4}')
    A.I(f'v_lshl_add_u32 v{t + 4}, v{t + 3}, 3, v{t + 4}')
    A.I(f'v_lshrrev_b32 v{t + 5}, 1, v{t + 2}')
    A.I(f'v_and_b32 v{t + 6}, 1, v{t + 1}')
    A.I(f'v_lshl_add_u32 v{t + 5}, v{t + 6}, 1, v{t + 5}')
    A.I(f'v_xor_b32 v{t + 6}, s{S_T0}, v{t + 5}')
    A.I(f'v_lshl_add_u32 v138, v{t + 6}, 5, v{t + 4}')
    A.I(f'v_xor_b32 v139, 32, v138')
    A.I(f's_and_b32 s{S_T0}, s{S_WV}, 2')
    A.I(f'v_xor_b32 v{t + 6}, s{S_T0}, v{t + 5}')
    A.I(f'v_lshl_add_u32 v140, v{t + 6}, 5, v{t + 4}')
    A.I(f'v_add_u32 v140, 16384, v140')
    A.I(f'v_xor_b32 v141, 32, v140')


def g1_w1_dma(A, s_k, first=False, plus=0):
    if first:
        g1_lane(A)
    w1 = f's[{S_W1}:{S_W1 + 3}]'
    A.I(f's_add_u32 s{S_T2}, s{s_k}, {plus}')
    A.I(f's_mul_i32 s{S_T0}, s{S_T2}, {128 * 3584}')
    A.I(f's_mul_i32 s{S_T1}, s{S_WV}, {8 * 3584}')
    A.I(f's_add_u32 s{S_T0}, s{S_T0}, s{S_T1}')
    A.I(f's_lshr_b32 s{S_T1}, s{S_J}, 3')
    A.I(f's_lshl_b32 s{S_T1}, s{S_T1}, 7')
    A.I(f's_add_u32 s{S_T0}, s{S_T0}, s{S_T1}')
    A.I(f's_and_b32 s{S_T1}, s{S_T2}, 1')
    A.I(f's_lshl_b32 s{S_T1}, s{S_T1}, 15')
    A.I(f's_lshl_b32 s{S_T2}, s{S_WV}, 10')
    A.I(f's_add_u32 s{S_T1}, s{S_T1}, s{S_T2}')
    for i in range(4):
        A.I(f's_add_u32 m0, s{S_T1}, {L_G1 + i * 4096}')
        A.I(f's_add_u32 s{S_T2}, s{S_T0}, {i * 32 * 3584}')
        A.I(f'buffer_load_dwordx4 v136, {w1}, s{S_T2} offen lds')


def g1_chunk(A, s_k, l_exit):
    ws = f's[{S_WS}:{S_WS + 3}]'
    A.I(f's_lshl_b32 s{S_T0}, s{s_k}, 17')
    A.I(f's_lshl_b32 s{S_T1}, s{S_WV}, 13')
    A.I(f's_add_u32 s{S_T0}, s{S_T0}, s{S_T1}')
    A.I(f's_and_b32 s{S_T1}, s{S_J}, 7')
    A.I(f's_lshl_b32 s{S_T1}, s{S_T1}, 7')
    A.I(f's_add_u32 s{S_T0}, s{S_T0}, s{S_T1}')
    A.I(f's_add_u32 s{S_T0}, s{S_T0}, 0x{WS_HP:x}')
    A.I(f's_and_b32 s{S_T3}, s{s_k}, 1')
    A.I(f's_lshl_b32 s{S_T3}, s{S_T3}, 15')
    A.I(f's_lshl_b32 s{S_T2}, s{S_WV}, 10')
    A.I(f's_add_u32 s{S_T1}, s{S_T3}, s{S_T2}')
    for i in range(4):
        A.I(f's_add_u32 m0, s{S_T1}, {L_G1 + 16384 + i * 4096}')
        A.I(f's_add_u32 s{S_T2}, s{S_T0}, {i * 32 * 1024}')
        A.I(f'buffer_load_dwordx4 v137, {ws}, s{S_T2} offen lds')
    AD = G1T
    for j in range(4):
        A.I(f'v_add_u32 v{AD + j}, s{S_T3}, v{138 + j}')
    g1_w1_dma(A, s_k, plus=1)
    A.I('s_waitcnt vmcnt(4)')
    A.I('s_barrier')
    FR = G1T + 8

    def rd(ks):
        for j in range(4):
            for x in range(2):
                A.I(f'ds_read_b64_tr_b16 {v(FR + 16 * ks + 4 * j + 2 * x, 2)}, v{AD + j} offset:{L_G1 + (32 * ks + 4 * x) * 128}')

    rd(0)
    for ks in range(4):
        if ks < 3:
            rd(ks + 1)
            A.I('s_waitcnt lgkmcnt(8)')
        else:
            A.I('s_waitcnt lgkmcnt(0)')
        f = FR + 16 * ks
        for mbp in range(2):
            for nbp in range(2):
                d = G1ACC + (mbp * 2 + nbp) * 4
                A.I(f'v_mfma_f32_16x16x32_bf16 {v(d, 4)}, {v(f + 4 * mbp, 4)}, {v(f + 8 + 4 * nbp, 4)}, {v(d, 4)}')


def g1_epilogue(A, l_exit):
    import math
    ws, b1 = f's[{S_WS}:{S_WS + 3}]', f's[{S_B1}:{S_B1 + 3}]'
    ACC, BI, Z, Pk, TT, O = G1ACC, 150, 160, 168, 172, 188
    A.I(f's_lshr_b32 s{S_T2}, s{S_J}, 3')
    A.I(f's_lshl_b32 s{S_T0}, s{S_T2}, 7')
    A.I(f's_and_b32 s{S_T1}, s{S_WV}, 1')
    A.I(f's_lshl_b32 s{S_T1}, s{S_T1}, 6')
    A.I(f's_add_u32 s{S_T0}, s{S_T0}, s{S_T1}')
    A.I('v_lshrrev_b32 v144, 4, v0')
    A.I('v_lshlrev_b32 v144, 3, v144')
    A.I(f'buffer_load_dwordx2 v[146:147], v144, {b1}, s{S_T0} offen')
    A.I(f'buffer_load_dwordx2 v[148:149], v144, {b1}, s{S_T0} offen offset:32')
    A.I(f's_and_b32 s{S_T0}, s{S_J}, 7')
    A.I(f's_lshl_b32 s{S_T0}, s{S_T0}, 2')
    A.I(f's_and_b32 s{S_T1}, s{S_WV}, 2')
    A.I(f's_add_u32 s{S_T0}, s{S_T0}, s{S_T1}')
    A.I(f's_mul_i32 s{S_T0}, s{S_T0}, 56')
    A.I(f's_lshl_b32 s{S_T1}, s{S_T2}, 1')
    A.I(f's_add_u32 s{S_T0}, s{S_T0}, s{S_T1}')
    A.I(f's_and_b32 s{S_T1}, s{S_WV}, 1')
    A.I(f's_add_u32 s{S_T0}, s{S_T0}, s{S_T1}')
    A.I(f's_lshl_b32 s{S_T0}, s{S_T0}, 10')
    A.I(f's_add_u32 s{S_T0}, s{S_T0}, 0x{WS_U:x}')
    k1 = -2 * math.sqrt(2 / math.pi) * math.log2(math.e)
    A.I(f's_mov_b32 s{S_T2}, {f32(k1)}')
    A.I(f's_mov_b32 s{S_T3}, {f32(k1 * 0.044715)}')
    A.I('v_lshlrev_b32 v145, 4, v0')
    A.I('s_waitcnt vmcnt(0)')
    for i in range(4):
        A.I(f'v_lshlrev_b32 v{BI + 2 * i}, 16, v{146 + i}')
        A.I(f'v_and_b32 v{BI + 2 * i + 1}, 0xffff0000, v{146 + i}')
    for nbp in range(2):
        for mbp in range(2):
            for r in range(4):
                A.I(f'v_mov_b32 v{Z + 4 * mbp + r}, v{ACC + (mbp * 2 + nbp) * 4 + r}')
        T.round_bf16(A, Z, Pk)
        for i in range(8):
            A.I(f'v_add_f32 v{Z + i}, v{Z + i}, v{BI + i}')
        T.round_bf16(A, Z, Pk)
        for i in range(8):
            t = TT + i
            A.I(f'v_mul_f32 v{t}, v{Z + i}, v{Z + i}')
            A.I(f'v_mov_b32 v{t + 8}, s{S_T2}')
            A.I(f'v_fmac_f32 v{t + 8}, s{S_T3}, v{t}')
            A.I(f'v_mul_f32 v{t}, v{t + 8}, v{Z + i}')
            A.I(f'v_exp_f32 v{t}, v{t}')
        for i in range(8):
            A.I(f'v_add_f32 v{TT + i}, 1.0, v{TT + i}')
            A.I(f'v_rcp_f32 v{TT + i}, v{TT + i}')
        for i in range(8):
            A.I(f'v_mul_f32 v{Z + i}, v{Z + i}, v{TT + i}')
        o = O + 4 * nbp
        for i in range(4):
            A.I(f'v_cvt_pk_bf16_f32 v{o + i}, v{Z + 2 * i}, v{Z + 2 * i + 1}')
        A.I(f'buffer_store_dwordx4 {v(o, 4)}, v145, {ws}, s{S_T0} offen sc1')
        A.I(f's_add_u32 s{S_T0}, s{S_T0}, {56 * 1024}')
    A.I('s_waitcnt vmcnt(0)')
    A.I('s_barrier')
    l = A.newlabel('L_ue')
    A.I(f's_cmp_lg_u32 s{S_WV}, 0')
    A.br(f's_cbranch_scc1 {l}')
    A.I(f's_lshl_b32 s{S_T2}, s{S_G}, 7')
    A.I(f's_add_u32 s{S_T2}, s{S_T2}, 0x{F_LU:x}')
    A.I(f's_lshl_b32 s{S_T3}, s{S_G}, 2')
    A.I(f's_add_u32 s{S_T3}, s{S_T3}, 0x{F_GF + 256:x}')
    garrive(A, S_T2, S_T3, 144, l_exit)
    A.label(l)


def g2_slot(k):
    return L_W2 + 16384 * (k % 5)


S_PRE = 62


def g2_pre(A, rnd):
    t = G1T
    A.I(f'v_and_b32 v{t}, 15, v0')
    A.I(f'v_lshrrev_b32 v{t + 1}, 4, v0')
    A.I(f'v_lshrrev_b32 v{t + 2}, 2, v{t}')
    A.I(f'v_and_b32 v{t + 3}, 3, v{t}')
    A.I(f'v_lshl_add_u32 v{t + 2}, v{t + 1}, 2, v{t + 2}')
    A.I(f'v_bfe_u32 v{t + 1}, v{t + 2}, 1, 2')
    A.I(f'v_lshlrev_b32 v{t + 2}, 7, v{t + 2}')
    A.I(f'v_lshl_add_u32 v{t + 2}, v{t + 3}, 3, v{t + 2}')
    A.I(f'v_lshl_add_u32 v{t + 2}, v{t + 1}, 5, v{t + 2}')
    A.I(f's_lshl_b32 s{S_T0}, s{S_WV}, 12')
    A.I(f's_add_u32 s{S_T0}, s{S_T0}, {L_W2}')
    for j in range(4):
        A.I(f'v_xor_b32 v{t + 4 + j}, {32 * j}, v{t + 2}')
        A.I(f'v_add_u32 v{t + 4 + j}, s{S_T0}, v{t + 4 + j}')
        A.I(f'v_add_u32 v{t + 8 + j}, 49152, v{t + 4 + j}')
    A.I('s_waitcnt vmcnt(0)')
    A.I('s_barrier')
    ks_ = list(range(5 * rnd, min(5 * rnd + 5, 14)))
    for k in ks_:
        so = 16384 * (k % 5)
        ab = t + 4
        if so >= 49152:
            so -= 49152
            ab = t + 8
        for j in range(4):
            for x in range(2):
                A.I(f'ds_read_b64_tr_b16 {a(16 * k + 4 * j + 2 * x, 2)}, v{ab + j} offset:{so + 16 * x * 128}')
        A.I('s_waitcnt lgkmcnt(4)')
    A.I('s_waitcnt lgkmcnt(0)')
    if rnd < 2:
        A.I('s_barrier')
        for k in range(5 * rnd + 5, min(5 * rnd + 10, 14)):
            g2_dma(A, k)
    A.I(f's_mov_b32 s{S_PRE}, {rnd + 1}')


def g2_setup(A):
    A.I(f's_load_dwordx2 s[16:17], s[0:1], {KA_W2}')
    A.I('s_waitcnt lgkmcnt(0)')
    make_srd(A, S_W2, 16, 1792 * 4096)
    t = G1T
    A.I(f'v_lshrrev_b32 v{t}, 3, v0')
    A.I(f'v_and_b32 v{t + 1}, 7, v0')
    A.I(f'v_lshrrev_b32 v{t + 2}, 4, v0')
    A.I(f'v_lshlrev_b32 v{t + 2}, 1, v{t + 2}')
    A.I(f'v_xor_b32 v{t + 1}, v{t + 1}, v{t + 2}')
    A.I(f'v_lshlrev_b32 v{t + 1}, 4, v{t + 1}')
    A.I(f'v_lshl_add_u32 v142, v{t}, 12, v{t + 1}')
    A.I(f's_lshl_b32 s{S_BO2}, s{S_WV}, 15')
    A.I(f's_lshr_b32 s{S_T0}, s{S_J2}, 3')
    A.I(f's_lshl_b32 s{S_T0}, s{S_T0}, 7')
    A.I(f's_add_u32 s{S_BO2}, s{S_BO2}, s{S_T0}')
    A.I(f's_lshl_b32 s{S_LB2}, s{S_WV}, 10')


def g2_dma(A, k, vr=142):
    w2 = f's[{S_W2}:{S_W2 + 3}]'
    for i in range(4):
        A.I(f's_add_u32 m0, s{S_LB2}, {g2_slot(k) + i * 4096}')
        A.I(f's_add_u32 s{S_T0}, s{S_BO2}, {(k * 128 + i * 32) * 4096}')
        A.I(f'buffer_load_dwordx4 v{vr}, {w2}, s{S_T0} offen lds')


def g2_touch(A, k0):
    w2 = f's[{S_W2}:{S_W2 + 3}]'
    A.I('v_lshlrev_b32 v143, 12, v0')
    A.I(f's_lshr_b32 s{S_T0}, s{S_J2}, 3')
    A.I(f's_lshl_b32 s{S_T0}, s{S_T0}, 7')
    A.I(f's_lshl_b32 s{S_T1}, s{S_WV}, 18')
    A.I(f's_add_u32 s{S_T0}, s{S_T0}, s{S_T1}')
    for r0 in range(k0 * 128, 1792, 256):
        A.I(f's_add_u32 s{S_T1}, s{S_T0}, {r0 * 4096}')
        A.I(f'buffer_load_dword v5, v143, {w2}, s{S_T1} offen')


def g2_main(A, l_exit):
    ws = f's[{S_WS}:{S_WS + 3}]'
    S_O, S_B2 = S_W1, S_B1
    A.I(f's_load_dwordx4 s[16:19], s[0:1], {KA_B2}')
    for rnd in range(3):
        l = A.newlabel('L_pre')
        A.I(f's_cmp_gt_u32 s{S_PRE}, {rnd}')
        A.br(f's_cbranch_scc1 {l}')
        g2_pre(A, rnd)
        A.label(l)
        A.forget_loads()
    A.I('s_waitcnt lgkmcnt(0)')
    make_srd(A, S_B2, 16, 4096)
    make_srd(A, S_O, 18, 2048 * 1024)
    b2, out = f's[{S_B2}:{S_B2 + 3}]', f's[{S_O}:{S_O + 3}]'
    S_AO, S_EO = 36, 37
    A.I(f's_and_b32 s{S_T0}, s{S_J2}, 7')
    A.I(f's_mul_i32 s{S_AO}, s{S_T0}, {4 * 56 * 1024}')
    A.I(f's_lshl_b32 s{S_T1}, s{S_WV}, 10')
    A.I(f's_add_u32 s{S_AO}, s{S_AO}, s{S_T1}')
    A.I(f's_add_u32 s{S_AO}, s{S_AO}, 0x{WS_U:x}')
    A.I(f's_lshl_b32 s{S_T0}, s{S_T0}, 2')
    A.I(f's_add_u32 s{S_T0}, s{S_T0}, s{S_WV}')
    A.I(f's_lshr_b32 s{S_T1}, s{S_J2}, 3')
    A.I(f's_lshl_b32 s{S_EO}, s{S_T1}, 16')
    A.I(f's_lshl_b32 s{S_T0}, s{S_T0}, 5')
    A.I(f's_add_u32 s{S_EO}, s{S_EO}, s{S_T0}')
    A.I('v_lshlrev_b32 v5, 4, v0')
    A.I('v_and_b32 v1, 15, v0')
    A.I('v_lshrrev_b32 v2, 4, v0')
    A.I('v_lshlrev_b32 v3, 10, v1')
    A.I('v_lshl_add_u32 v3, v2, 3, v3')
    A.I('v_lshlrev_b32 v4, 1, v1')
    A.I(f's_lshl_b32 s{S_T1}, s{S_T1}, 7')
    HB, BB, ACC, AR = 10, 18, 24, 88
    NA = 42
    for nb in range(4):
        A.I(f'buffer_load_ushort v{BB + nb}, v4, {b2}, s{S_T1} offen offset:{32 * nb}')
    l0 = A.newlabel('L_g20')
    A.I(f's_cmp_lg_u32 s{S_WV}, 0')
    A.br(f's_cbranch_scc1 {l0}')
    A.I(f's_lshl_b32 s{S_T1}, s{S_G}, 9')
    A.I(f's_add_u32 s{S_T1}, s{S_T1}, 0x{F_GF + 256:x}')
    poll_flags(A, S_T1, 7, 1, 6, 7, l_exit, sleep=1)
    A.label(l0)
    A.I('s_waitcnt vmcnt(0)')
    A.I('s_barrier')
    tstamp(A, 5, 8)
    vmq = []

    def aload(i):
        k, db = i >> 2, i & 3
        off = db * 56 * 1024 + k * 4096
        A.I(f's_add_u32 s{S_T1}, s{S_AO}, {off}')
        A.I(f'buffer_load_dwordx4 {v(AR + 4 * (i % NA), 4)}, v5, {ws}, s{S_T1} offen')
        vmq.append(('a', i))

    def need(names):
        idx = max([i for i, p in enumerate(vmq) if p in names] + [-1])
        if idx >= 0:
            A.I(f's_waitcnt vmcnt({len(vmq) - 1 - idx})')
            del vmq[:idx + 1]

    for i in range(NA):
        aload(i)
    for nb in range(4):
        A.I(f's_add_u32 s{S_T0}, s{S_EO}, 0x{WS_H + nb * 16384:x}')
        A.I(f'buffer_load_dwordx2 {v(HB + 2 * nb, 2)}, v3, {ws}, s{S_T0} offen')
        vmq.append(('h', 0))
    for i in range(56):
        k, db = i >> 2, i & 3
        need([('a', i)])
        if i == 0 and TIMING:
            A.check = False
            tstamp(A, 19, 8)
            vmq.append(('ts', 0))
            A.check = True
        for nb in range(4):
            d = ACC + 16 * db + 4 * nb
            c = '0' if k == 0 else v(d, 4)
            A.I(f'v_mfma_f32_16x16x32_bf16 {v(d, 4)}, {v(AR + 4 * (i % NA), 4)}, {a(16 * k + 4 * nb, 4)}, {c}')
        if i + NA < 56:
            aload(i + NA)
    A.I(f's_lshl_b32 s{S_T0}, s{S_WV}, 12')
    A.I(f'v_add_u32 v6, s{S_T0}, v5')
    for db in range(4):
        for nb in range(4):
            A.I(f'ds_write_b128 v6, {v(ACC + 16 * db + 4 * nb, 4)} offset:{db * 16384 + nb * 1024}')
        A.I('s_waitcnt lgkmcnt(8)')
    A.I(f's_lshl_b32 s{S_T0}, s{S_WV}, 14')
    A.I(f'v_add_u32 v6, s{S_T0}, v5')
    A.I('s_waitcnt lgkmcnt(0)')
    A.I('s_barrier')
    for j in range(16):
        A.I(f'ds_read_b128 {v(ACC + 4 * j, 4)}, v6 offset:{1024 * j}')
        if j == 11:
            A.I('s_waitcnt lgkmcnt(8)')
    A.I('s_waitcnt lgkmcnt(0) vmcnt(0)')
    tstamp(A, 18, 8)
    for r in range(0, 16, 2):
        A.I(f'v_pk_add_f32 {v(ACC + r, 2)}, {v(ACC + r, 2)}, {v(ACC + 16 + r, 2)}')
        A.I(f'v_pk_add_f32 {v(ACC + 32 + r, 2)}, {v(ACC + 32 + r, 2)}, {v(ACC + 48 + r, 2)}')
    for r in range(0, 16, 2):
        A.I(f'v_pk_add_f32 {v(ACC + r, 2)}, {v(ACC + r, 2)}, {v(ACC + 32 + r, 2)}')
    for nb in range(4):
        d = ACC + 4 * nb
        t = 88
        A.I(f'v_cvt_pk_bf16_f32 v{t}, v{d}, v{d + 1}')
        A.I(f'v_cvt_pk_bf16_f32 v{t + 1}, v{d + 2}, v{d + 3}')
        A.I(f'v_lshlrev_b32 v{t + 2}, 16, v{BB + nb}')
        for i in range(2):
            A.I(f'v_lshlrev_b32 v{d + 2 * i}, 16, v{t + i}')
            A.I(f'v_and_b32 v{d + 2 * i + 1}, 0xffff0000, v{t + i}')
        for r in range(4):
            A.I(f'v_add_f32 v{d + r}, v{d + r}, v{t + 2}')
        A.I(f'v_cvt_pk_bf16_f32 v{t}, v{d}, v{d + 1}')
        A.I(f'v_cvt_pk_bf16_f32 v{t + 1}, v{d + 2}, v{d + 3}')
        for i in range(2):
            A.I(f'v_lshlrev_b32 v{d + 2 * i}, 16, v{t + i}')
            A.I(f'v_and_b32 v{d + 2 * i + 1}, 0xffff0000, v{t + i}')
            A.I(f'v_lshlrev_b32 v{t + 2}, 16, v{HB + 2 * nb + i}')
            A.I(f'v_and_b32 v{t + 3}, 0xffff0000, v{HB + 2 * nb + i}')
            A.I(f'v_add_f32 v{d + 2 * i}, v{d + 2 * i}, v{t + 2}')
            A.I(f'v_add_f32 v{d + 2 * i + 1}, v{d + 2 * i + 1}, v{t + 3}')
        o = 92 + 2 * nb
        A.I(f'v_cvt_pk_bf16_f32 v{o}, v{d}, v{d + 1}')
        A.I(f'v_cvt_pk_bf16_f32 v{o + 1}, v{d + 2}, v{d + 3}')
        A.I(f's_add_u32 s{S_T0}, s{S_EO}, {nb * 16384}')
        A.I(f'buffer_store_dwordx2 {v(o, 2)}, v3, {out}, s{S_T0} offen')


def red4(A, s_seg, srd_x, l_exit):
    ws = f's[{S_WS}:{S_WS + 3}]'
    B, Z, Pk, XR, t0, t1, va = 192, 144, 152, 12, 160, 161, 162
    A.I(f's_lshl_b32 s{S_T2}, s{s_seg}, 5')
    A.I(f's_add_u32 s{S_T2}, s{S_T2}, s{S_H}')
    A.I(f's_lshl_b32 s{S_T0}, s{S_T2}, 15')
    A.I(f's_lshl_b32 s{S_T1}, s{S_WV}, 13')
    A.I(f's_add_u32 s{S_T0}, s{S_T0}, s{S_T1}')
    A.I(f's_add_u32 s{S_T0}, s{S_T0}, 0x{WS_OP:x}')
    A.I(f's_add_u32 s{S_T1}, s{S_T0}, 4096')
    for hh in range(8):
        so = S_T0 if hh < 4 else S_T1
        A.I(f'buffer_load_dwordx4 {v(B + 4 * hh, 4)}, v1, {ws}, s{so} offen offset:{1024 * (hh & 3)}')
    A.I(f's_lshl_b32 s{S_T3}, s{S_T2}, 10')
    A.I(f'v_lshrrev_b32 v{va}, 2, v0')
    A.I(f'v_lshlrev_b32 v{va}, 6, v{va}')
    A.I(f'v_and_b32 v{t0}, 3, v0')
    A.I(f'v_lshl_add_u32 v{va}, v{t0}, 3, v{va}')
    for hh in range(8):
        A.I(f's_waitcnt vmcnt({7 - hh})')
        for i in range(4):
            r = B + 4 * hh + i
            if hh == 0:
                A.I(f'v_lshlrev_b32 v{Z + 2 * i}, 16, v{r}')
                A.I(f'v_and_b32 v{Z + 2 * i + 1}, 0xffff0000, v{r}')
            else:
                A.I(f'v_lshlrev_b32 v{t0}, 16, v{r}')
                A.I(f'v_and_b32 v{t1}, 0xffff0000, v{r}')
                A.I(f'v_add_f32 v{Z + 2 * i}, v{Z + 2 * i}, v{t0}')
                A.I(f'v_add_f32 v{Z + 2 * i + 1}, v{Z + 2 * i + 1}, v{t1}')
    A.I(f's_lshl_b32 s{S_T0}, s{S_WV}, 11')
    A.I(f'v_add_u32 v{t0}, s{S_T0}, v1')
    A.I(f'v_add_u32 v{t0}, {L_RED}, v{t0}')
    A.I(f'ds_write_b128 v{t0}, {v(Z, 4)}')
    A.I(f'ds_write_b128 v{t0}, {v(Z + 4, 4)} offset:1024')
    A.I('s_waitcnt lgkmcnt(0) vmcnt(0)')
    A.I('s_barrier')
    ts_tok(A, 15)
    l = A.newlabel('L_r4')
    A.I(f's_cmp_lg_u32 s{S_WV}, 0')
    A.br(f's_cbranch_scc1 {l}')
    for w_ in range(1, 4):
        for j in range(2):
            A.I(f'ds_read_b128 {v(B + 8 * w_ + 4 * j, 4)}, v{t0} offset:{2048 * w_ + 1024 * j}')
    A.I('s_waitcnt lgkmcnt(0)')
    for w_ in range(1, 4):
        for i in range(8):
            A.I(f'v_add_f32 v{Z + i}, v{Z + i}, v{B + 8 * w_ + i}')
    T.round_bf16(A, Z, Pk)
    for i in range(4):
        A.I(f'v_lshlrev_b32 v{t0}, 16, v{XR + i}')
        A.I(f'v_and_b32 v{t1}, 0xffff0000, v{XR + i}')
        A.I(f'v_add_f32 v{Z + 2 * i}, v{Z + 2 * i}, v{t0}')
        A.I(f'v_add_f32 v{Z + 2 * i + 1}, v{Z + 2 * i + 1}, v{t1}')
    T.round_bf16(A, Z, Pk)
    A.I(f's_add_u32 s{S_T0}, s{S_T3}, 0x{WS_H:x}')
    A.I(f'buffer_store_dwordx2 {v(Pk, 2)}, v{va}, {ws}, s{S_T0} offen sc1')
    A.I(f'buffer_store_dwordx2 {v(Pk + 2, 2)}, v{va}, {ws}, s{S_T0} offen offset:32 sc1')
    T.ln_regs(A, Z, t0, t1)
    T.round_bf16(A, Z, XR)
    T.ln_regs(A, Z, t0, t1)
    for i in range(4):
        A.I(f'v_cvt_pk_bf16_f32 v{XR + i}, v{Z + 2 * i}, v{Z + 2 * i + 1}')
    A.I(f's_add_u32 s{S_T0}, s{S_T3}, 0x{WS_HP:x}')
    A.I(f'buffer_store_dwordx2 {v(XR, 2)}, v{va}, {ws}, s{S_T0} offen sc1')
    A.I(f'buffer_store_dwordx2 {v(XR + 2, 2)}, v{va}, {ws}, s{S_T0} offen offset:32 sc1')
    A.I(f's_lshl_b32 s{S_T2}, s{s_seg}, 7')
    A.I(f's_add_u32 s{S_T2}, s{S_T2}, 0x{F_LH:x}')
    A.I(f's_lshl_b32 s{S_T3}, s{s_seg}, 2')
    A.I(f's_add_u32 s{S_T3}, s{S_T3}, 0x{F_GF:x}')
    A.I('s_waitcnt vmcnt(0)')
    garrive(A, S_T2, S_T3, t0, l_exit)
    A.label(l)


if __name__ == '__main__':
    A = Asm()
    nm = NAME + '_kernel'
    mega_kernel(A, nm)
    hd = header([(nm, 256, 256, R.L_TOTAL)])
    if os.environ.get('FINAL'):
        hd = hd.replace(f'@launch kernel={nm} ', '@launch ')
    txt = hd + A.text() + '.section .rodata,"a"\n' + kernel_desc(nm, 512, 256)
    out = os.environ.get('OUT', 'm3.s')
    open(out, 'w').write(txt)
    print(len(txt))
```

```python
import os
os.environ.setdefault('PB_DELAY', '7'); os.environ.setdefault('AF_DELAY', '2'); os.environ.setdefault('AF_GAP', '2')
from common import *
import tok as T
import rec9 as R
from tok import f32, S_WS, S_W, S_X, S_H, S_WV, S_G, S_T0, S_T1, S_T2, S_T3

S_DBG = 84
S_SPIN = R.S_SPIN
S_XCC = 83
S_LNO = 82
F_OPC = WS_FLAG + 0x4000
F_LH = WS_FLAG + 0x6000
F_LU = WS_FLAG + 0x8000
F_GF = WS_FLAG + 0x8400
S_FAST = S_XCC
D_GB, D_OVF, D_WEIRD, D_TS = 128, 36, 40, 192
S_J, S_BO2, S_LB2 = 100, 101, 3
S_J2 = 63
S_W1, S_B1, S_W2 = 88, 92, 96
NEARLY = int(os.environ.get('NEARLY', 2))
STAG = int(os.environ.get('STAG', 4))
STAG0 = int(os.environ.get('STAG0', 1))
TIMING = bool(os.environ.get('TIMING'))
DIAG = bool(os.environ.get('DIAG'))
TAIL_BYTES = int(os.environ.get('TAIL_BYTES', 24576))
CODET = int(os.environ.get('CODET', 0))
CODE_BYTES = int(os.environ.get('CODE_BYTES', 57344))
PLF = os.environ.get('PLF', 'sc1').replace('_', ' ')


def lane0(A, body):
    A.I('s_mov_b64 exec, 1')
    body()
    A.I('s_mov_b64 exec, -1')


def poll_eq(A, srd, s_off, imm, expect, vt, l_exit, sleep=0):
    l = A.newlabel('L_poll')
    A.label(l)
    so = f's{s_off}' if s_off is not None else '0'
    A.I(f'buffer_load_dword v{vt}, off, {srd}, {so} offset:{imm} sc1')
    A.I(f's_sub_u32 s{S_SPIN}, s{S_SPIN}, 1')
    A.I(f's_cbranch_scc1 {l_exit}')
    A.I('s_waitcnt vmcnt(0)')
    A.I(f'v_readfirstlane_b32 s{S_T0}, v{vt}')
    ld = A.newlabel('L_pd')
    A.I(f's_cmp_eq_u32 s{S_T0}, {expect}')
    A.I(f's_cbranch_scc1 {ld}')
    if sleep:
        A.I(f's_sleep {sleep}')
    A.br(f's_branch {l}')
    A.label(ld)


def poll_flags(A, s_off, nlanes, width, vt, va, l_exit, sleep=0):
    ws = f's[{S_WS}:{S_WS + 3}]'
    l, ld = A.newlabel('L_pf'), A.newlabel('L_pfd')
    A.I(f'v_lshlrev_b32 v{va}, {2 if width == 1 else 3}, v0')
    assert nlanes <= 32
    A.I(f's_mov_b32 exec_lo, 0x{(1 << nlanes) - 1:x}')
    A.I('s_mov_b32 exec_hi, 0')
    A.label(l)
    if width == 1:
        A.I(f'buffer_load_dword v{vt}, v{va}, {ws}, s{s_off} offen {PLF}')
    else:
        A.I(f'buffer_load_dwordx2 {v(vt, 2)}, v{va}, {ws}, s{s_off} offen {PLF}')
    A.I(f's_sub_u32 s{S_SPIN}, s{S_SPIN}, 1')
    A.I(f's_cbranch_scc1 {l_exit}')
    A.I('s_waitcnt vmcnt(0)')
    if width == 2:
        A.I(f'v_min_u32 v{vt}, v{vt}, v{vt + 1}')
    A.I(f'v_cmp_eq_u32 vcc, 0, v{vt}')
    A.I(f's_cbranch_vccz {ld}')
    if sleep:
        A.I(f's_sleep {sleep}')
    A.br(f's_branch {l}')
    A.label(ld)
    A.I('s_mov_b64 exec, -1')


def flag_store(A, s_addr, vt):
    ws = f's[{S_WS}:{S_WS + 3}]'
    l1, l2 = A.newlabel('L_fs'), A.newlabel('L_fs')
    A.I(f'v_mov_b32 v{vt}, 1')
    A.I('s_mov_b64 exec, 1')
    A.I(f's_cmp_eq_u32 s{S_FAST}, 0')
    A.br(f's_cbranch_scc1 {l1}')
    A.I(f'buffer_store_dword v{vt}, off, {ws}, s{s_addr}')
    A.br(f's_branch {l2}')
    A.label(l1)
    A.I(f'buffer_store_dword v{vt}, off, {ws}, s{s_addr} sc1')
    A.label(l2)
    A.I('s_mov_b64 exec, -1')


def garrive(A, s_line, s_goff, vt, l_exit):
    ws = f's[{S_WS}:{S_WS + 3}]'
    A.I(f's_lshl_b32 s{S_T1}, s{S_H}, 2')
    A.I(f's_add_u32 s{S_T1}, s{S_T1}, s{s_line}')
    flag_store(A, S_T1, vt)
    l = A.newlabel('L_ga')
    A.I(f's_cmp_lg_u32 s{S_H}, 0')
    A.br(f's_cbranch_scc1 {l}')
    poll_flags(A, s_line, 32, 1, vt, vt + 1, l_exit)
    A.I(f'v_lshlrev_b32 v{vt + 1}, 9, v0')
    A.I(f'v_mov_b32 v{vt}, 1')
    A.I('s_mov_b64 exec, 0xff')
    A.I(f'buffer_store_dword v{vt}, v{vt + 1}, {ws}, s{s_goff} offen sc1')
    A.I('s_mov_b64 exec, -1')
    A.label(l)


def wg_poll_eq(A, srd, s_off, imm, expect, vt, l_exit, sleep=0):
    l0 = A.newlabel('L_wgp')
    A.I(f's_cmp_lg_u32 s{S_WV}, 0')
    A.br(f's_cbranch_scc1 {l0}')
    poll_eq(A, srd, s_off, imm, expect, vt, l_exit, sleep)
    A.label(l0)
    A.I('s_barrier')


def tstamp(A, idx, r=14):
    if not TIMING:
        return
    l = A.newlabel('L_ts')
    A.I(f's_cmp_lg_u32 s{S_WV}, 0')
    A.br(f's_cbranch_scc1 {l}')
    A.I('s_memrealtime s[80:81]')
    A.I('s_waitcnt lgkmcnt(0)')
    A.I(f'v_mov_b32 v{r}, s80')
    A.I(f'v_mov_b32 v{r + 1}, s81')
    A.I(f's_lshl_b32 s80, s{S_G}, 5')
    A.I(f's_add_u32 s80, s80, s{S_H}')
    A.I('s_lshl_b32 s80, s80, 8')
    A.I(f's_add_u32 s80, s80, 0x{WS_DBG:x}')
    A.I(f'buffer_store_dwordx2 {v(r, 2)}, off, s[{S_WS}:{S_WS + 3}], s80 offset:{8 * idx}')
    A.label(l)


def mega_kernel(A, name):
    kernel_begin(A, name)
    l_exit = A.newlabel('L_exit')
    P_WS, P_DBG, P_Q, P_K, P_V, P_O, P_M0, P_X = 16, 18, 20, 22, 24, 26, 28, 30
    ws, dbg, sx = f's[{S_WS}:{S_WS + 3}]', f's[{S_DBG}:{S_DBG + 3}]', f's[{S_X}:{S_X + 3}]'
    A.I('s_cmp_ge_u32 s2, 256')
    A.I(f's_cbranch_scc1 {l_exit}')
    if DIAG:
        A.I('s_memrealtime s[58:59]')
    A.I(f's_load_dwordx2 s[{P_WS}:{P_WS + 1}], s[0:1], {KA_WS}')
    A.I(f's_load_dwordx2 s[{P_DBG}:{P_DBG + 1}], s[0:1], {KA_DBG}')
    A.I(f's_load_dwordx4 s[{P_Q}:{P_Q + 3}], s[0:1], {KA_WQ}')
    A.I(f's_load_dwordx4 s[{P_V}:{P_V + 3}], s[0:1], {KA_WV}')
    A.I(f's_load_dwordx2 s[{P_M0}:{P_M0 + 1}], s[0:1], {KA_MEM0}')
    A.I(f's_load_dwordx2 s[{P_X}:{P_X + 1}], s[0:1], {KA_X}')
    A.I('v_lshrrev_b32 v1, 6, v0')
    A.I('v_and_b32 v0, 63, v0')
    A.I(f'v_readfirstlane_b32 s{S_WV}, v1')
    A.I(f's_getreg_b32 s{S_XCC}, hwreg(HW_REG_XCC_ID)')
    A.I(f's_mov_b32 s{S_SPIN}, 0x80000')
    A.I('s_waitcnt lgkmcnt(0)')
    make_srd(A, S_WS, P_WS, WS_SIZE)
    make_srd(A, S_DBG, P_DBG, 256)
    make_srd(A, S_X, P_X, 2048 * 1024)
    A.I(f's_mov_b32 s{S_LNO}, -1')
    if CODET:
        lct = A.newlabel('L_ct')
        A.I(f's_cmp_lg_u32 s{S_WV}, 3')
        A.br(f's_cbranch_scc1 {lct}')
        A.I('s_cmp_ge_u32 s2, 16')
        A.br(f's_cbranch_scc1 {lct}')
        code_touch(A, name, l_exit, CODE_BYTES, 255, 3)
        A.label(lct)
    lr = A.newlabel('L_role_done')
    A.I(f's_cmp_lg_u32 s{S_WV}, 0')
    A.br(f's_cbranch_scc1 {lr}')
    A.I('s_mov_b64 exec, 1')
    A.I('v_mov_b32 v2, 1')
    lw = A.newlabel('L_nw')
    A.I(f's_cmp_lt_u32 s{S_XCC}, 8')
    A.br(f's_cbranch_scc1 {lw}')
    A.I(f'buffer_atomic_or v2, off, {dbg}, 0 offset:{D_WEIRD}')
    A.I('s_waitcnt vmcnt(0)')
    A.label(lw)
    A.I(f's_and_b32 s{S_G}, s{S_XCC}, 7')
    A.I(f's_lshl_b32 s{S_T0}, s{S_G}, 2')
    A.I(f'buffer_atomic_add v2, off, {dbg}, s{S_T0} sc0')
    A.I('s_waitcnt vmcnt(0)')
    A.I(f'v_readfirstlane_b32 s{S_H}, v2')
    lok = A.newlabel('L_rok')
    A.I(f's_cmp_lt_u32 s{S_H}, 32')
    A.br(f's_cbranch_scc1 {lok}')
    A.I('v_mov_b32 v2, 1')
    A.I(f'buffer_atomic_add v2, off, {dbg}, 0 offset:{D_OVF} sc0')
    A.I('s_waitcnt vmcnt(0)')
    A.I(f'v_readfirstlane_b32 s{S_T3}, v2')
    lo = A.newlabel('L_ovf')
    A.label(lo)
    A.I(f'buffer_load_dwordx4 v[4:7], off, {dbg}, 0 sc1')
    A.I(f'buffer_load_dwordx4 v[8:11], off, {dbg}, 0 offset:16 sc1')
    A.I(f's_sub_u32 s{S_SPIN}, s{S_SPIN}, 1')
    A.I(f's_cbranch_scc1 {l_exit}')
    A.I('s_waitcnt vmcnt(0)')
    A.I(f's_mov_b32 s{S_T0}, 0')
    for i in range(8):
        A.I(f'v_readfirstlane_b32 s{64 + i}, v{4 + i}')
    for i in range(8):
        A.I(f's_add_u32 s{S_T0}, s{S_T0}, s{64 + i}')
    A.I(f's_cmp_lt_u32 s{S_T0}, 256')
    A.br(f's_cbranch_scc1 {lo}')
    for g in range(8):
        A.I(f's_min_u32 s{S_T0}, s{64 + g}, 32')
        A.I(f's_sub_u32 s{S_T1}, 32, s{S_T0}')
        A.I(f's_mov_b32 s{S_G}, {g}')
        A.I(f's_add_u32 s{S_H}, s{S_T0}, s{S_T3}')
        A.I(f's_cmp_lt_u32 s{S_T3}, s{S_T1}')
        A.br(f's_cbranch_scc1 {lok}')
        A.I(f's_sub_u32 s{S_T3}, s{S_T3}, s{S_T1}')
    A.label(lok)
    A.I(f's_lshl_b32 s{S_T0}, s{S_G}, 8')
    A.I(f's_or_b32 s{S_T0}, s{S_T0}, s{S_H}')
    A.I(f'v_mov_b32 v2, s{S_T0}')
    A.I('v_mov_b32 v3, 0')
    A.I('ds_write_b32 v3, v2')
    A.I('s_waitcnt lgkmcnt(0)')
    A.I('s_mov_b64 exec, -1')
    A.label(lr)
    A.I('s_barrier')
    A.I('v_mov_b32 v3, 0')
    A.I('ds_read_b32 v2, v3')
    A.I('s_waitcnt lgkmcnt(0)')
    A.I(f'v_readfirstlane_b32 s{S_T0}, v2')
    A.I(f's_and_b32 s{S_H}, s{S_T0}, 31')
    A.I(f's_bfe_u32 s{S_G}, s{S_T0}, 0x30008')
    A.I('s_barrier')
    tstamp(A, 0)

    def ln_and_arrive(ln=True):
        if ln:
            l = A.newlabel('L_nl2')
            A.I(f's_cmp_eq_u32 s{S_LNO}, -1')
            A.br(f's_cbranch_scc1 {l}')
            A.check = False
            T.ln1_compute(A, ws, S_LNO, 'sc1', 0)
            A.check = True
            A.label(l)
        A.I('s_waitcnt vmcnt(0)')
        A.I('s_barrier')
        l = A.newlabel('L_na')
        A.I(f's_cmp_lg_u32 s{S_WV}, 0')
        A.br(f's_cbranch_scc1 {l}')
        A.I('v_mov_b32 v23, 1')
        lane0(A, lambda: A.I(f'buffer_atomic_add v23, off, {dbg}, 0 offset:{D_GB}'))
        A.I('s_waitcnt vmcnt(0)')
        A.label(l)

    l_tok = A.newlabel('L_tok')
    l_g2 = A.newlabel('L_g2')
    A.I(f's_cmp_lg_u32 s{S_G}, 0')
    A.br(f's_cbranch_scc1 {l_tok}')

    A.I(f'v_mov_b32 v{R.LANE}, v0')
    R.setup_consts(A)

    def thook():
        A.check = False
        A.I(f's_lshl_b32 s{S_T0}, s{S_H}, 6')
        A.I(f's_lshl_b32 s{S_T1}, s{S_WV}, 2')
        A.I(f's_add_u32 s{S_T0}, s{S_T0}, s{S_T1}')
        A.I(f's_add_u32 s{S_LNO}, s{S_T0}, 0x{R.F_KMP:x}')
        A.I('v_mov_b32 v24, 0')
        lane0(A, lambda: A.I(f'buffer_store_dword v24, off, {ws}, s{S_LNO} sc1'))
        R.init_exchange(A, P_M0, 'sc1', rb=24)
        ln_and_arrive(ln=False)
        tstamp(A, 8, 24)
        A.check = True
        A.forget_loads()

    S_OK = 25

    def batch():
        A.I(f'buffer_load_dword v25, off, {dbg}, 0 sc1')
        A.I(f'buffer_load_dword v26, off, {dbg}, 0 offset:{D_WEIRD} sc1')
        R.kv_load(A, 28, R.V_L16, R.S_RA)

    def h_issue(sc):
        if sc == 3:
            A.I(f'buffer_load_dword v24, off, {dbg}, 0 offset:{D_GB} sc1')
            return
        A.I(f's_lshl_b32 s{R.S_RA}, s{S_H}, 7')
        A.I(f's_add_u32 s{R.S_RA}, s{R.S_RA}, 0x{R.F_PROG:x}')
        A.I(f's_lshl_b32 s{R.S_KVN}, s{S_H}, 13')
        A.I(f's_add_u32 s{R.S_KVN}, s{R.S_KVN}, s{R.S_W11}')
        A.I(f's_add_u32 s{R.S_KVN}, s{R.S_KVN}, 0x{WS_KF:x}')
        A.I(f's_add_u32 s{R.S_KVM0}, s{R.S_W11}, {R.L_KV}')
        batch()

    def evaluate(l_fail):
        R.kv_eval(A, 28, R.V_L16, R.S_AV)
        A.I(f'v_readfirstlane_b32 s{S_T0}, v24')
        A.I(f'v_readfirstlane_b32 s{S_T2}, v25')
        A.I(f'v_readfirstlane_b32 s{S_T3}, v26')
        A.I(f's_cmp_lg_u32 s{S_T0}, 256')
        A.I(f's_cbranch_scc1 {l_fail}')
        A.I(f's_cmp_eq_u32 s{R.S_AV}, 0')
        A.I(f's_cbranch_scc1 {l_fail}')
        A.I(f's_cmp_ge_u32 s{S_T2}, 32')
        A.I(f's_cselect_b32 s{S_XCC}, 1, 0')
        A.I(f's_cmp_eq_u32 s{S_T3}, 0')
        A.I(f's_cselect_b32 s{S_XCC}, s{S_XCC}, 0')
        R.kv_dma(A)

    def h_check():
        lf = A.newlabel('L_hf')
        A.I(f's_mov_b32 s{S_OK}, 0')
        evaluate(lf)
        A.I(f's_mov_b32 s{S_OK}, 1')
        A.label(lf)

    R.stage_weights(A, [P_Q, P_K, P_V, P_O], hook=thook, hook_issue=h_issue, hook_check=h_check)
    l = A.newlabel('L_ns')
    A.I(f's_cmp_lg_u32 s{S_WV}, 0')
    A.br(f's_cbranch_scc1 {l}')
    A.I('v_mov_b32 v2, 1')
    lane0(A, lambda: A.I(f'buffer_atomic_add v2, off, {dbg}, 0 offset:{D_TS}'))
    A.label(l)
    tstamp(A, 1)
    A.I(f's_mov_b32 s{R.S_KP}, s{S_LNO}')
    lgo_, lre = A.newlabel('L_tgo'), A.newlabel('L_tre')
    A.I(f's_cmp_eq_u32 s{S_OK}, 1')
    A.br(f's_cbranch_scc1 {lgo_}')
    A.label(lre)
    A.I('s_sleep 4')
    A.I(f'buffer_load_dword v24, off, {dbg}, 0 offset:{D_GB} sc1')
    A.I('s_waitcnt vmcnt(0)')
    batch()
    A.I(f's_sub_u32 s{S_SPIN}, s{S_SPIN}, 1')
    A.I(f's_cbranch_scc1 {l_exit}')
    A.I('s_waitcnt vmcnt(0)')
    evaluate(lre)
    A.label(lgo_)
    A.I('s_waitcnt vmcnt(0)')
    A.I('s_barrier')
    tstamp(A, 2)
    if DIAG:
        A.I('s_memrealtime s[80:81]')
        A.I('s_waitcnt lgkmcnt(0)')
        A.I('s_sub_u32 s60, s80, s58')
    l_slow = A.newlabel('L_slowmode')
    l_tdone = A.newlabel('L_tdone')
    A.I(f's_cmp_eq_u32 s{S_XCC}, 0')
    if os.environ.get('FORCE_SLOW'):
        A.br(f's_branch {l_slow}')
    else:
        A.br(f's_cbranch_scc1 {l_slow}')
    R.main_loop(A, '', l_tdone, kvcheck=True)
    A.label(l_slow)
    R.main_loop(A, 'sc1', l_tdone, kvcheck=True)
    A.label(l_tdone)
    A.forget_loads()
    A.I(f's_mov_b32 s{S_G}, 0')
    tstamp(A, 3)
    if DIAG:
        A.I('s_memrealtime s[80:81]')
        A.I('s_waitcnt lgkmcnt(0)')
        A.I('s_sub_u32 s61, s80, s58')
    A.I(f'v_lshrrev_b32 v0, 4, v{R.V_L16}')
    j2_calc(A)
    A.I('s_waitcnt vmcnt(0) lgkmcnt(0)')
    A.I('s_barrier')
    g2_setup(A)
    for k in range(5):
        g2_dma(A, k)
    A.I(f's_mov_b32 s{S_PRE}, 0')
    A.br(f's_branch {l_g2}')

    A.label(l_tok)
    A.forget_loads()
    S_SEG, S_NX, S_CA, S_END, S_K1, S_AV, S_PB = 36, 41, 42, 43, 44, 45, 46
    j2_calc(A)
    A.I(f's_sub_u32 s{S_G}, s{S_G}, 1')
    A.I(f's_lshl_b32 s{S_J}, s{S_G}, 5')
    A.I(f's_add_u32 s{S_J}, s{S_J}, s{S_H}')

    def tok_init(ln=True):
        A.I(f's_lshl_b32 s{S_CA}, s{S_H}, 7')
        A.I(f's_lshl_b32 s{S_T0}, s{S_G}, 4')
        A.I(f's_add_u32 s{S_CA}, s{S_CA}, s{S_T0}')
        A.I(f's_lshl_b32 s{S_T0}, s{S_WV}, 2')
        A.I(f's_add_u32 s{S_CA}, s{S_CA}, s{S_T0}')
        A.I(f's_add_u32 s{S_CA}, s{S_CA}, 0x{R.F_PROG:x}')
        A.I('v_mov_b32 v22, 0')
        lane0(A, lambda: A.I(f'buffer_store_dword v22, off, {ws}, s{S_CA} sc1'))
        lz = A.newlabel('L_nz')
        A.I(f's_cmp_lg_u32 s{S_J}, 64')
        A.br(f's_cbranch_scc1 {lz}')
        A.I('v_lshlrev_b32 v23, 4, v0')
        for r in range(16, 20):
            A.I(f'v_mov_b32 v{r}, 0')
        A.I(f's_mul_i32 s{S_T0}, s{S_WV}, 6144')
        A.I(f's_add_u32 s{S_T0}, s{S_T0}, 0x{F_OPC:x}')
        A.I(f's_add_u32 s{S_T1}, s{S_T0}, 4096')
        for i in range(4):
            A.I(f'buffer_store_dwordx4 v[16:19], v23, {ws}, s{S_T0} offen offset:{1024 * i} sc1')
        A.I(f'buffer_store_dwordx4 v[16:19], v23, {ws}, s{S_T1} offen sc1')
        A.I(f'buffer_store_dwordx4 v[16:19], v23, {ws}, s{S_T1} offen offset:1024 sc1')
        A.label(lz)
        A.forget_loads()
        ln_and_arrive(ln)
        ts_tok(A, 8)

    l_late = A.newlabel('L_late')
    l_st = A.newlabel('L_st')
    A.I(f's_mov_b32 s{S_K1}, 0')
    A.I(f's_cmp_lt_u32 s{S_G}, {NEARLY}')
    A.br(f's_cbranch_scc1 {l_st}')
    l1 = A.newlabel('L_nl')
    A.I(f's_cmp_lg_u32 s{S_WV}, 1')
    A.I(f's_cbranch_scc1 {l1}')
    A.I(f's_cmp_lt_u32 s{S_G}, 3')
    A.I(f's_cbranch_scc1 {l1}')
    A.I(f's_sub_u32 s{S_T3}, s{S_J}, 96')
    T.ln1_load(A, S_T3, sx, S_LNO)
    A.label(l1)
    A.forget_loads()
    tok_init()
    l_nost = A.newlabel('L_nost')
    A.I(f's_cmp_ge_u32 s{S_G}, 4')
    A.br(f's_cbranch_scc1 {l_nost}')
    wg_poll_eq(A, dbg, None, D_TS, 32, 2, l_exit, sleep=32)
    lsg, lsd = A.newlabel('L_sg'), A.newlabel('L_sd')
    A.I(f's_cmp_lg_u32 s{S_WV}, 0')
    A.br(f's_cbranch_scc1 {lsd}')
    A.I(f's_cmp_eq_u32 s{S_G}, 3')
    A.I(f's_cselect_b32 s{S_T1}, {STAG}, {STAG0}')
    A.I(f's_lshl_b32 s{S_T2}, s{S_H}, 6')
    A.I(f's_add_u32 s{S_T2}, s{S_T2}, 0x{R.F_KMP:x}')
    A.label(lsg)
    A.I(f'buffer_load_dword v2, off, {ws}, s{S_T2} sc1')
    A.I(f's_sub_u32 s{S_SPIN}, s{S_SPIN}, 1')
    A.I(f's_cbranch_scc1 {l_exit}')
    A.I('s_waitcnt vmcnt(0)')
    A.I(f'v_readfirstlane_b32 s{S_T0}, v2')
    A.I(f's_cmp_ge_u32 s{S_T0}, s{S_T1}')
    A.I(f's_cbranch_scc1 {lsd}')
    A.I('s_sleep 16')
    A.br(f's_branch {lsg}')
    A.label(lsd)
    A.I('s_barrier')
    A.I(f's_mov_b32 s{S_K1}, 1')
    A.label(l_st)

    def hook():
        l = A.newlabel('L_hk')
        A.I(f's_cmp_eq_u32 s{S_K1}, 1')
        A.br(f's_cbranch_scc1 {l}')
        A.check = False
        tok_init(False)
        A.check = True
        A.label(l)
        A.forget_loads()

    T.qkv_stage(A, [P_Q, P_K, P_V], hook=hook)
    A.label(l_nost)
    ts_tok(A, 1)
    wg_poll_eq(A, dbg, None, D_GB, 256, 2, l_exit, sleep=8)
    ts_tok(A, 7)
    A.I(f's_lshl_b32 s{S_T0}, s{S_G}, 2')
    A.I(f'buffer_load_dword v2, off, {dbg}, s{S_T0} offset:4 sc1')
    A.I(f'buffer_load_dword v3, off, {dbg}, 0 offset:{D_WEIRD} sc1')
    A.I('s_waitcnt vmcnt(0)')
    A.I(f'v_readfirstlane_b32 s{S_T2}, v2')
    A.I(f'v_readfirstlane_b32 s{S_T3}, v3')
    A.I(f's_cmp_ge_u32 s{S_T2}, 32')
    A.I(f's_cselect_b32 s{S_FAST}, 1, 0')
    A.I(f's_cmp_eq_u32 s{S_T3}, 0')
    A.I(f's_cselect_b32 s{S_FAST}, s{S_FAST}, 0')
    if os.environ.get('FORCE_SLOW'):
        A.I(f's_mov_b32 s{S_FAST}, 0')
    l_nop1 = A.newlabel('L_nop1')
    A.I(f's_cmp_ge_u32 s{S_G}, 4')
    A.br(f's_cbranch_scc1 {l_nop1}')
    A.I(f's_lshr_b32 s{S_T0}, s{S_G}, 1')
    A.I(f's_lshl_b32 s{S_T0}, s{S_T0}, 5')
    A.I(f's_add_u32 s{S_END}, s{S_T0}, 32')
    A.I(f's_and_b32 s{S_NX}, s{S_G}, 1')
    A.I(f's_add_u32 s{S_NX}, s{S_NX}, s{S_T0}')
    A.I('v_mov_b32 v2, 0')

    def signal():
        lane0(A, lambda: A.I(f'buffer_store_dword v2, off, {ws}, s{S_CA} sc1'))

    def after():
        A.I('v_add_u32 v2, 1, v2')

    T.qkv_segments(A, 2, 'sc1', after_seg=after, mid_seg=signal, first=S_NX, end=f's{S_END}')
    A.I('s_waitcnt vmcnt(0)')
    signal()
    A.label(l_nop1)
    ts_tok(A, 2)
    T.att_stage(A, P_O)
    T.att_consts(A)
    A.I(f's_load_dwordx4 s[16:19], s[0:1], {KA_W1}')
    A.I('s_waitcnt lgkmcnt(0)')
    make_srd(A, S_W1, 16, 2048 * 3584)
    make_srd(A, S_B1, 18, 3584)
    g2_setup(A)
    A.I(f's_mov_b32 s{S_PRE}, 0')
    for i in range(16):
        A.I(f'v_mov_b32 v{G1ACC + i}, 0')
    A.I(f's_mov_b32 s{S_K1}, 0')
    g1_w1_dma(A, S_K1, first=True)
    masks = seg_masks()
    for g in range(7):
        A.I(f's_cmp_eq_u32 s{S_G}, {g}')
        A.I(f's_cselect_b32 s{S_MSK}, 0x{masks[g] & 0xffffffff:x}, s{S_MSK}')
        A.I(f's_cselect_b32 s{S_MSK + 1}, 0x{masks[g] >> 32:x}, s{S_MSK + 1}')
    A.I(f's_ff1_i32_b64 s{S_SEG}, s[{S_MSK}:{S_MSK + 1}]')
    A.I(f's_bitset0_b64 s[{S_MSK}:{S_MSK + 1}], s{S_SEG}')
    A.I(f's_mov_b32 s{S_AV}, 0')
    A.I(f's_lshl_b32 s{S_PB}, s{S_H}, 7')
    A.I(f's_add_u32 s{S_PB}, s{S_PB}, 0x{R.F_PROG:x}')
    R.kv_wait(A, l_exit, S_SEG, 192, s_av=S_AV, s_base=S_PB, sleep=4, vlane16=1)
    T.att_load_qkv(A, S_SEG)
    x_prefetch(A, S_SEG, sx)
    L = A.newlabel('L_p2')
    L_att = A.newlabel('L_att')
    L_fin = A.newlabel('L_p2fin')
    A.label(L)
    A.check = False
    A.I(f's_cmp_ge_u32 s{S_K1}, 16')
    A.I(f's_cbranch_scc1 {L_fin}')
    lq2 = A.newlabel('L_lp2')
    ldec = A.newlabel('L_dec')
    A.I(f's_cmp_lg_u32 s{S_WV}, 0')
    A.br(f's_cbranch_scc1 {ldec}')
    A.I(f's_lshl_b32 s{S_CA}, s{S_H}, 6')
    A.I(f's_add_u32 s{S_CA}, s{S_CA}, 0x{R.F_KMP:x}')
    A.I(f's_add_u32 s40, s{S_SEG}, 2')
    A.I(f's_lshl_b32 s{S_T1}, s{S_K1}, 4')
    A.I(f's_lshl_b32 s{S_T2}, s{S_G}, 9')
    A.I(f's_add_u32 s{S_T1}, s{S_T1}, s{S_T2}')
    A.I(f's_add_u32 s{S_T1}, s{S_T1}, 0x{F_GF + 512:x}')
    lq, lgo, lnk = A.newlabel('L_lp'), A.newlabel('L_go'), A.newlabel('L_nk')
    A.label(lq)
    A.I(f'buffer_load_dwordx4 v[192:195], off, {ws}, s{S_CA} {PLF}')
    A.I(f'buffer_load_dwordx4 v[196:199], off, {ws}, s{S_T1} {PLF}')
    A.I(f's_sub_u32 s{S_SPIN}, s{S_SPIN}, 1')
    A.I(f's_cbranch_scc1 {l_exit}')
    A.I('s_waitcnt vmcnt(0)')
    A.I('v_min_u32 v6, v192, v193')
    A.I('v_min3_u32 v6, v6, v194, v195')
    A.I(f'v_readfirstlane_b32 s{S_T0}, v6')
    A.I('v_min_u32 v7, v196, v197')
    A.I('v_min3_u32 v7, v7, v198, v199')
    A.I('v_cmp_eq_u32 vcc, 0, v7')
    A.I(f's_mov_b32 s{S_T3}, 1')
    A.I(f's_cmp_ge_u32 s{S_T0}, s40')
    A.I(f's_cbranch_scc1 {lgo}')
    A.label(lnk)
    lsl = A.newlabel('L_sl')
    A.I(f's_add_u32 s{S_T0}, s{S_T0}, 2')
    A.I(f's_cmp_ge_u32 s{S_T0}, s40')
    A.I(f's_cbranch_scc1 {lq}')
    A.I(f's_mov_b32 s{S_T3}, 2')
    A.I(f's_cbranch_vccz {lgo}')
    lns = A.newlabel('L_nsl')
    A.I(f's_mov_b32 s{S_T3}, 3')
    A.I(f's_cmp_lt_u32 s{S_SEG}, 64')
    A.I(f's_cbranch_scc1 {lns}')
    A.I(f's_cmp_lt_u32 s{S_K1}, 3')
    A.I(f's_cbranch_scc1 {lns}')
    A.I(f's_cmp_lt_u32 s{S_PRE}, 3')
    A.I(f's_cbranch_scc1 {lgo}')
    A.label(lns)
    A.I('s_sleep 4')
    A.br(f's_branch {lq}')
    A.label(lgo)
    A.I(f'v_mov_b32 v6, s{S_T3}')
    A.I(f'v_mov_b32 v7, {L_RED + 8192 - 16}')
    A.I('ds_write_b32 v7, v6')
    A.I('s_waitcnt lgkmcnt(0)')
    A.label(ldec)
    A.I('s_barrier')
    A.I(f'v_mov_b32 v7, {L_RED + 8192 - 16}')
    A.I('ds_read_b32 v6, v7')
    A.I('s_waitcnt lgkmcnt(0)')
    A.I(f'v_readfirstlane_b32 s{S_T0}, v6')
    A.I(f's_cmp_eq_u32 s{S_T0}, 1')
    A.br(f's_cbranch_scc1 {lq2}')
    lch = A.newlabel('L_ch')
    A.I(f's_cmp_eq_u32 s{S_T0}, 2')
    A.br(f's_cbranch_scc1 {lch}')
    for rnd in range(3):
        lpr = A.newlabel('L_pr')
        A.I(f's_cmp_lg_u32 s{S_PRE}, {rnd}')
        A.br(f's_cbranch_scc1 {lpr}')
        g2_pre(A, rnd)
        A.br(f's_branch {L}')
        A.label(lpr)
    A.label(lch)
    ts_tok(A, 16)
    g1_chunk(A, S_K1, l_exit)
    A.I(f's_add_u32 s{S_K1}, s{S_K1}, 1')
    if CODET:
        lct = A.newlabel('L_ct')
        A.I(f's_cmp_lg_u32 s{S_K1}, 12')
        A.br(f's_cbranch_scc1 {lct}')
        A.I(f's_lshl_b32 s{S_T0}, s{S_H}, 2')
        A.I(f's_add_u32 s{S_T0}, s{S_T0}, s{S_WV}')
        A.I(f's_cmp_lg_u32 s{S_T0}, 7')
        A.br(f's_cbranch_scc1 {L}')
        code_touch(A, L, l_exit, TAIL_BYTES, 5, 143)
        A.br(f's_branch {L}')
        A.label(lct)
    lw2 = A.newlabel('L_w2')
    A.I(f's_cmp_lg_u32 s{S_K1}, 3')
    A.br(f's_cbranch_scc1 {lw2}')
    for k in range(5):
        g2_dma(A, k)
    A.br(f's_branch {L}')
    A.label(lw2)
    A.I(f's_cmp_lg_u32 s{S_K1}, 6')
    A.br(f's_cbranch_scc1 {L}')
    A.I(f's_and_b32 s{S_T0}, s{S_J2}, 7')
    A.I(f's_cmp_lg_u32 s{S_T0}, 4')
    A.br(f's_cbranch_scc1 {L}')
    g2_touch(A, 5)
    A.br(f's_branch {L}')
    A.label(lq2)
    ts_tok(A, 10)
    T.att_load_mem(A, S_SEG, 'sc1')
    A.I('s_waitcnt vmcnt(0)')
    ts_tok(A, 11)
    A.check = True
    A.forget_loads()
    T.att_compute1(A)
    lc1, lc2 = A.newlabel('L_c2s'), A.newlabel('L_c2e')
    A.I(f's_cmp_eq_u32 s{S_FAST}, 0')
    A.br(f's_cbranch_scc1 {lc1}')
    T.att_compute2(A, S_SEG, '')
    A.br(f's_branch {lc2}')
    A.label(lc1)
    T.att_compute2(A, S_SEG, 'sc1')
    A.label(lc2)
    ts_tok(A, 12)
    A.I('s_waitcnt vmcnt(0)')
    A.I('s_barrier')
    ts_tok(A, 13)
    A.I(f's_lshl_b32 s{S_CA}, s{S_SEG}, 7')
    A.I(f's_add_u32 s{S_CA}, s{S_CA}, 0x{F_OPC:x}')
    l0 = A.newlabel('L_n0')
    A.I(f's_cmp_lg_u32 s{S_WV}, 0')
    A.br(f's_cbranch_scc1 {l0}')
    A.I(f's_lshl_b32 s{S_T1}, s{S_H}, 2')
    A.I(f's_add_u32 s{S_T1}, s{S_T1}, s{S_CA}')
    flag_store(A, S_T1, 6)
    poll_flags(A, S_CA, 32, 1, 6, 7, l_exit)
    A.label(l0)
    A.I('s_barrier')
    ts_tok(A, 14)
    red4(A, S_SEG, sx, l_exit)
    A.I(f's_ff1_i32_b64 s{S_SEG}, s[{S_MSK}:{S_MSK + 1}]')
    A.I(f's_bitset0_b64 s[{S_MSK}:{S_MSK + 1}], s{S_SEG}')
    lnn = A.newlabel('L_nn')
    A.I(f's_cmp_lt_u32 s{S_SEG}, 64')
    A.br(f's_cbranch_scc1 {lnn}')
    A.I(f's_mov_b32 s{S_SEG}, 999')
    ts_tok(A, 3)
    A.br(f's_branch {L}')
    A.label(lnn)
    lav = A.newlabel('L_av')
    A.I(f's_cmp_gt_u32 s{S_AV}, s{S_SEG}')
    A.br(f's_cbranch_scc1 {lav}')
    R.kv_wait(A, l_exit, S_SEG, 192, s_av=S_AV, s_base=S_PB, sleep=4, vlane16=1)
    A.label(lav)
    T.att_load_qkv(A, S_SEG)
    x_prefetch(A, S_SEG, sx)
    A.br(f's_branch {L}')
    A.label(L_fin)
    A.forget_loads()
    ts_tok(A, 4)
    g1_epilogue(A, l_exit)
    A.I(f's_add_u32 s{S_G}, s{S_G}, 1')
    tstamp(A, 17)
    A.label(l_g2)
    A.forget_loads()
    g2_main(A, l_exit)
    tstamp(A, 6, 8)
    if DIAG:
        A.I(f's_add_u32 s{S_T0}, s{S_G}, s{S_H}')
        A.I(f's_add_u32 s{S_T0}, s{S_T0}, s{S_WV}')
        A.I(f's_cmp_lg_u32 s{S_T0}, 0')
        A.br(f's_cbranch_scc1 {l_exit}')
        A.I('s_memrealtime s[80:81]')
        A.I('s_waitcnt lgkmcnt(0)')
        A.I('s_sub_u32 s80, s80, s58')
        A.I('v_mov_b32 v8, s60')
        A.I('v_mov_b32 v9, s61')
        A.I('v_mov_b32 v10, s80')
        A.I('v_mov_b32 v11, 0')
        A.I(f'buffer_store_dwordx4 v[8:11], off, {dbg}, 0 offset:48')
    A.label(l_exit)
    A.I('s_endpgm')


S_MSK = 56


def seg_masks():
    c1, c2 = int(os.environ.get('C1', 14)), int(os.environ.get('C2', 27))
    m = [0] * 7
    last = {g: -100 for g in range(7)}
    for s_ in range(64):
        cand = [4, 5, 6] if s_ < c1 else ([4, 5, 6, 0, 1] if s_ < c2 else list(range(7)))
        g = min(cand, key=lambda x: last[x])
        last[g] = s_
        m[g] |= 1 << s_
    return m


def j2_calc(A):
    A.I(f's_lshr_b32 s{S_T0}, s{S_G}, 1')
    A.I(f's_lshl_b32 s{S_T0}, s{S_T0}, 3')
    A.I(f's_lshr_b32 s{S_T1}, s{S_H}, 2')
    A.I(f's_add_u32 s{S_T0}, s{S_T0}, s{S_T1}')
    A.I(f's_lshl_b32 s{S_J2}, s{S_T0}, 3')
    A.I(f's_and_b32 s{S_T0}, s{S_G}, 1')
    A.I(f's_lshl_b32 s{S_T0}, s{S_T0}, 2')
    A.I(f's_and_b32 s{S_T1}, s{S_H}, 3')
    A.I(f's_add_u32 s{S_T0}, s{S_T0}, s{S_T1}')
    A.I(f's_add_u32 s{S_J2}, s{S_J2}, s{S_T0}')


def code_touch(A, l_from, l_end, nbytes, vd, va):
    lh = A.newlabel('L_pc')
    A.I('s_getpc_b64 s[80:81]')
    A.raw(f'{lh}:')
    A.raw(f'    s_sub_u32 s80, s80, {lh}-{l_from}')
    A.raw('    s_subb_u32 s81, s81, 0')
    A.I(f'v_lshlrev_b32 v{va}, 7, v0')
    for i in range(0, nbytes, 8192):
        A.raw(f'    v_min_u32 v{va}, {l_end}-{l_from}, v{va}')
        A.raw(f'    global_load_dword v{vd}, v{va}, s[80:81]')
        A.I(f'v_add_u32 v{va}, 8192, v{va}')


def x_prefetch(A, s_seg, sx):
    A.I('v_lshrrev_b32 v6, 2, v0')
    A.I('v_lshlrev_b32 v6, 6, v6')
    A.I('v_and_b32 v7, 3, v0')
    A.I('v_lshl_add_u32 v6, v7, 3, v6')
    A.I(f's_lshl_b32 s{S_T3}, s{s_seg}, 5')
    A.I(f's_add_u32 s{S_T3}, s{S_T3}, s{S_H}')
    A.I(f's_lshl_b32 s{S_T3}, s{S_T3}, 10')
    A.I(f'buffer_load_dwordx2 v[12:13], v6, {sx}, s{S_T3} offen')
    A.I(f'buffer_load_dwordx2 v[14:15], v6, {sx}, s{S_T3} offen offset:32')


def ts_tok(A, i):
    if TIMING:
        A.I(f's_add_u32 s{S_G}, s{S_G}, 1')
        tstamp(A, i, 14 if i in (1, 2, 7, 8) else 6)
        A.I(f's_sub_u32 s{S_G}, s{S_G}, 1')


G1ACC = 120
G1T = 144
L_G1 = 0
L_RED = 65536
L_W2 = 73728


def g1_lane(A):
    t = G1T
    A.I(f'v_lshrrev_b32 v{t}, 3, v0')
    A.I(f'v_and_b32 v{t + 1}, 7, v0')
    A.I(f'v_bfe_u32 v{t + 2}, v0, 4, 1')
    A.I(f's_and_b32 s{S_T0}, s{S_WV}, 1')
    A.I(f's_lshl_b32 s{S_T0}, s{S_T0}, 1')
    A.I(f'v_or_b32 v{t + 2}, s{S_T0}, v{t + 2}')
    A.I(f'v_lshlrev_b32 v{t + 2}, 1, v{t + 2}')
    A.I(f'v_xor_b32 v{t + 1}, v{t + 1}, v{t + 2}')
    A.I(f'v_lshlrev_b32 v{t + 1}, 4, v{t + 1}')
    A.I(f'v_mul_u32_u24 v136, 3584, v{t}')
    A.I(f'v_add_u32 v136, v136, v{t + 1}')
    A.I(f'v_lshl_add_u32 v137, v{t}, 10, v{t + 1}')
    A.I(f'v_and_b32 v{t}, 15, v0')
    A.I(f'v_lshrrev_b32 v{t + 1}, 4, v0')
    A.I(f'v_lshrrev_b32 v{t + 2}, 2, v{t}')
    A.I(f'v_and_b32 v{t + 3}, 3, v{t}')
    A.I(f'v_lshl_add_u32 v{t + 4}, v{t + 1}, 3, v{t + 2}')
    A.I(f'v_lshlrev_b32 v{t + 4}, 7, v{t + 4}')
    A.I(f'v_lshl_add_u32 v{t + 4}, v{t + 3}, 3, v{t + 4}')
    A.I(f'v_lshrrev_b32 v{t + 5}, 1, v{t + 2}')
    A.I(f'v_and_b32 v{t + 6}, 1, v{t + 1}')
    A.I(f'v_lshl_add_u32 v{t + 5}, v{t + 6}, 1, v{t + 5}')
    A.I(f'v_xor_b32 v{t + 6}, s{S_T0}, v{t + 5}')
    A.I(f'v_lshl_add_u32 v138, v{t + 6}, 5, v{t + 4}')
    A.I(f'v_xor_b32 v139, 32, v138')
    A.I(f's_and_b32 s{S_T0}, s{S_WV}, 2')
    A.I(f'v_xor_b32 v{t + 6}, s{S_T0}, v{t + 5}')
    A.I(f'v_lshl_add_u32 v140, v{t + 6}, 5, v{t + 4}')
    A.I(f'v_add_u32 v140, 16384, v140')
    A.I(f'v_xor_b32 v141, 32, v140')


def g1_w1_dma(A, s_k, first=False, plus=0):
    if first:
        g1_lane(A)
    w1 = f's[{S_W1}:{S_W1 + 3}]'
    A.I(f's_add_u32 s{S_T2}, s{s_k}, {plus}')
    A.I(f's_mul_i32 s{S_T0}, s{S_T2}, {128 * 3584}')
    A.I(f's_mul_i32 s{S_T1}, s{S_WV}, {8 * 3584}')
    A.I(f's_add_u32 s{S_T0}, s{S_T0}, s{S_T1}')
    A.I(f's_lshr_b32 s{S_T1}, s{S_J}, 3')
    A.I(f's_lshl_b32 s{S_T1}, s{S_T1}, 7')
    A.I(f's_add_u32 s{S_T0}, s{S_T0}, s{S_T1}')
    A.I(f's_and_b32 s{S_T1}, s{S_T2}, 1')
    A.I(f's_lshl_b32 s{S_T1}, s{S_T1}, 15')
    A.I(f's_lshl_b32 s{S_T2}, s{S_WV}, 10')
    A.I(f's_add_u32 s{S_T1}, s{S_T1}, s{S_T2}')
    for i in range(4):
        A.I(f's_add_u32 m0, s{S_T1}, {L_G1 + i * 4096}')
        A.I(f's_add_u32 s{S_T2}, s{S_T0}, {i * 32 * 3584}')
        A.I(f'buffer_load_dwordx4 v136, {w1}, s{S_T2} offen lds')


def g1_chunk(A, s_k, l_exit):
    ws = f's[{S_WS}:{S_WS + 3}]'
    A.I(f's_lshl_b32 s{S_T0}, s{s_k}, 17')
    A.I(f's_lshl_b32 s{S_T1}, s{S_WV}, 13')
    A.I(f's_add_u32 s{S_T0}, s{S_T0}, s{S_T1}')
    A.I(f's_and_b32 s{S_T1}, s{S_J}, 7')
    A.I(f's_lshl_b32 s{S_T1}, s{S_T1}, 7')
    A.I(f's_add_u32 s{S_T0}, s{S_T0}, s{S_T1}')
    A.I(f's_add_u32 s{S_T0}, s{S_T0}, 0x{WS_HP:x}')
    A.I(f's_and_b32 s{S_T3}, s{s_k}, 1')
    A.I(f's_lshl_b32 s{S_T3}, s{S_T3}, 15')
    A.I(f's_lshl_b32 s{S_T2}, s{S_WV}, 10')
    A.I(f's_add_u32 s{S_T1}, s{S_T3}, s{S_T2}')
    for i in range(4):
        A.I(f's_add_u32 m0, s{S_T1}, {L_G1 + 16384 + i * 4096}')
        A.I(f's_add_u32 s{S_T2}, s{S_T0}, {i * 32 * 1024}')
        A.I(f'buffer_load_dwordx4 v137, {ws}, s{S_T2} offen lds')
    AD = G1T
    for j in range(4):
        A.I(f'v_add_u32 v{AD + j}, s{S_T3}, v{138 + j}')
    g1_w1_dma(A, s_k, plus=1)
    A.I('s_waitcnt vmcnt(4)')
    A.I('s_barrier')
    FR = G1T + 8

    def rd(ks):
        for j in range(4):
            for x in range(2):
                A.I(f'ds_read_b64_tr_b16 {v(FR + 16 * ks + 4 * j + 2 * x, 2)}, v{AD + j} offset:{L_G1 + (32 * ks + 4 * x) * 128}')

    rd(0)
    for ks in range(4):
        if ks < 3:
            rd(ks + 1)
            A.I('s_waitcnt lgkmcnt(8)')
        else:
            A.I('s_waitcnt lgkmcnt(0)')
        f = FR + 16 * ks
        for mbp in range(2):
            for nbp in range(2):
                d = G1ACC + (mbp * 2 + nbp) * 4
                A.I(f'v_mfma_f32_16x16x32_bf16 {v(d, 4)}, {v(f + 4 * mbp, 4)}, {v(f + 8 + 4 * nbp, 4)}, {v(d, 4)}')


def g1_epilogue(A, l_exit):
    import math
    ws, b1 = f's[{S_WS}:{S_WS + 3}]', f's[{S_B1}:{S_B1 + 3}]'
    ACC, BI, Z, Pk, TT, O = G1ACC, 150, 160, 168, 172, 188
    A.I(f's_lshr_b32 s{S_T2}, s{S_J}, 3')
    A.I(f's_lshl_b32 s{S_T0}, s{S_T2}, 7')
    A.I(f's_and_b32 s{S_T1}, s{S_WV}, 1')
    A.I(f's_lshl_b32 s{S_T1}, s{S_T1}, 6')
    A.I(f's_add_u32 s{S_T0}, s{S_T0}, s{S_T1}')
    A.I('v_lshrrev_b32 v144, 4, v0')
    A.I('v_lshlrev_b32 v144, 3, v144')
    A.I(f'buffer_load_dwordx2 v[146:147], v144, {b1}, s{S_T0} offen')
    A.I(f'buffer_load_dwordx2 v[148:149], v144, {b1}, s{S_T0} offen offset:32')
    A.I(f's_and_b32 s{S_T0}, s{S_J}, 7')
    A.I(f's_lshl_b32 s{S_T0}, s{S_T0}, 2')
    A.I(f's_and_b32 s{S_T1}, s{S_WV}, 2')
    A.I(f's_add_u32 s{S_T0}, s{S_T0}, s{S_T1}')
    A.I(f's_mul_i32 s{S_T0}, s{S_T0}, 56')
    A.I(f's_lshl_b32 s{S_T1}, s{S_T2}, 1')
    A.I(f's_add_u32 s{S_T0}, s{S_T0}, s{S_T1}')
    A.I(f's_and_b32 s{S_T1}, s{S_WV}, 1')
    A.I(f's_add_u32 s{S_T0}, s{S_T0}, s{S_T1}')
    A.I(f's_lshl_b32 s{S_T0}, s{S_T0}, 10')
    A.I(f's_add_u32 s{S_T0}, s{S_T0}, 0x{WS_U:x}')
    k1 = -2 * math.sqrt(2 / math.pi) * math.log2(math.e)
    A.I(f's_mov_b32 s{S_T2}, {f32(k1)}')
    A.I(f's_mov_b32 s{S_T3}, {f32(k1 * 0.044715)}')
    A.I('v_lshlrev_b32 v145, 4, v0')
    A.I('s_waitcnt vmcnt(0)')
    for i in range(4):
        A.I(f'v_lshlrev_b32 v{BI + 2 * i}, 16, v{146 + i}')
        A.I(f'v_and_b32 v{BI + 2 * i + 1}, 0xffff0000, v{146 + i}')
    for nbp in range(2):
        for mbp in range(2):
            for r in range(4):
                A.I(f'v_mov_b32 v{Z + 4 * mbp + r}, v{ACC + (mbp * 2 + nbp) * 4 + r}')
        T.round_bf16(A, Z, Pk)
        for i in range(8):
            A.I(f'v_add_f32 v{Z + i}, v{Z + i}, v{BI + i}')
        T.round_bf16(A, Z, Pk)
        for i in range(8):
            t = TT + i
            A.I(f'v_mul_f32 v{t}, v{Z + i}, v{Z + i}')
            A.I(f'v_mov_b32 v{t + 8}, s{S_T2}')
            A.I(f'v_fmac_f32 v{t + 8}, s{S_T3}, v{t}')
            A.I(f'v_mul_f32 v{t}, v{t + 8}, v{Z + i}')
            A.I(f'v_exp_f32 v{t}, v{t}')
        for i in range(8):
            A.I(f'v_add_f32 v{TT + i}, 1.0, v{TT + i}')
            A.I(f'v_rcp_f32 v{TT + i}, v{TT + i}')
        for i in range(8):
            A.I(f'v_mul_f32 v{Z + i}, v{Z + i}, v{TT + i}')
        o = O + 4 * nbp
        for i in range(4):
            A.I(f'v_cvt_pk_bf16_f32 v{o + i}, v{Z + 2 * i}, v{Z + 2 * i + 1}')
        A.I(f'buffer_store_dwordx4 {v(o, 4)}, v145, {ws}, s{S_T0} offen sc1')
        A.I(f's_add_u32 s{S_T0}, s{S_T0}, {56 * 1024}')
    A.I('s_waitcnt vmcnt(0)')
    A.I('s_barrier')
    l = A.newlabel('L_ue')
    A.I(f's_cmp_lg_u32 s{S_WV}, 0')
    A.br(f's_cbranch_scc1 {l}')
    A.I(f's_lshl_b32 s{S_T2}, s{S_G}, 7')
    A.I(f's_add_u32 s{S_T2}, s{S_T2}, 0x{F_LU:x}')
    A.I(f's_lshl_b32 s{S_T3}, s{S_G}, 2')
    A.I(f's_add_u32 s{S_T3}, s{S_T3}, 0x{F_GF + 256:x}')
    garrive(A, S_T2, S_T3, 144, l_exit)
    A.label(l)


def g2_slot(k):
    return L_W2 + 16384 * (k % 5)


S_PRE = 62


def g2_pre(A, rnd):
    t = G1T
    A.I(f'v_and_b32 v{t}, 15, v0')
    A.I(f'v_lshrrev_b32 v{t + 1}, 4, v0')
    A.I(f'v_lshrrev_b32 v{t + 2}, 2, v{t}')
    A.I(f'v_and_b32 v{t + 3}, 3, v{t}')
    A.I(f'v_lshl_add_u32 v{t + 2}, v{t + 1}, 2, v{t + 2}')
    A.I(f'v_bfe_u32 v{t + 1}, v{t + 2}, 1, 2')
    A.I(f'v_lshlrev_b32 v{t + 2}, 7, v{t + 2}')
    A.I(f'v_lshl_add_u32 v{t + 2}, v{t + 3}, 3, v{t + 2}')
    A.I(f'v_lshl_add_u32 v{t + 2}, v{t + 1}, 5, v{t + 2}')
    A.I(f's_lshl_b32 s{S_T0}, s{S_WV}, 12')
    A.I(f's_add_u32 s{S_T0}, s{S_T0}, {L_W2}')
    for j in range(4):
        A.I(f'v_xor_b32 v{t + 4 + j}, {32 * j}, v{t + 2}')
        A.I(f'v_add_u32 v{t + 4 + j}, s{S_T0}, v{t + 4 + j}')
        A.I(f'v_add_u32 v{t + 8 + j}, 49152, v{t + 4 + j}')
    A.I('s_waitcnt vmcnt(0)')
    A.I('s_barrier')
    ks_ = list(range(5 * rnd, min(5 * rnd + 5, 14)))
    for k in ks_:
        so = 16384 * (k % 5)
        ab = t + 4
        if so >= 49152:
            so -= 49152
            ab = t + 8
        for j in range(4):
            for x in range(2):
                A.I(f'ds_read_b64_tr_b16 {a(16 * k + 4 * j + 2 * x, 2)}, v{ab + j} offset:{so + 16 * x * 128}')
        A.I('s_waitcnt lgkmcnt(4)')
    A.I('s_waitcnt lgkmcnt(0)')
    if rnd < 2:
        A.I('s_barrier')
        for k in range(5 * rnd + 5, min(5 * rnd + 10, 14)):
            g2_dma(A, k)
    A.I(f's_mov_b32 s{S_PRE}, {rnd + 1}')


def g2_setup(A):
    A.I(f's_load_dwordx2 s[16:17], s[0:1], {KA_W2}')
    A.I('s_waitcnt lgkmcnt(0)')
    make_srd(A, S_W2, 16, 1792 * 4096)
    t = G1T
    A.I(f'v_lshrrev_b32 v{t}, 3, v0')
    A.I(f'v_and_b32 v{t + 1}, 7, v0')
    A.I(f'v_lshrrev_b32 v{t + 2}, 4, v0')
    A.I(f'v_lshlrev_b32 v{t + 2}, 1, v{t + 2}')
    A.I(f'v_xor_b32 v{t + 1}, v{t + 1}, v{t + 2}')
    A.I(f'v_lshlrev_b32 v{t + 1}, 4, v{t + 1}')
    A.I(f'v_lshl_add_u32 v142, v{t}, 12, v{t + 1}')
    A.I(f's_lshl_b32 s{S_BO2}, s{S_WV}, 15')
    A.I(f's_lshr_b32 s{S_T0}, s{S_J2}, 3')
    A.I(f's_lshl_b32 s{S_T0}, s{S_T0}, 7')
    A.I(f's_add_u32 s{S_BO2}, s{S_BO2}, s{S_T0}')
    A.I(f's_lshl_b32 s{S_LB2}, s{S_WV}, 10')


def g2_dma(A, k, vr=142):
    w2 = f's[{S_W2}:{S_W2 + 3}]'
    for i in range(4):
        A.I(f's_add_u32 m0, s{S_LB2}, {g2_slot(k) + i * 4096}')
        A.I(f's_add_u32 s{S_T0}, s{S_BO2}, {(k * 128 + i * 32) * 4096}')
        A.I(f'buffer_load_dwordx4 v{vr}, {w2}, s{S_T0} offen lds')


def g2_touch(A, k0):
    w2 = f's[{S_W2}:{S_W2 + 3}]'
    A.I('v_lshlrev_b32 v143, 12, v0')
    A.I(f's_lshr_b32 s{S_T0}, s{S_J2}, 3')
    A.I(f's_lshl_b32 s{S_T0}, s{S_T0}, 7')
    A.I(f's_lshl_b32 s{S_T1}, s{S_WV}, 18')
    A.I(f's_add_u32 s{S_T0}, s{S_T0}, s{S_T1}')
    for r0 in range(k0 * 128, 1792, 256):
        A.I(f's_add_u32 s{S_T1}, s{S_T0}, {r0 * 4096}')
        A.I(f'buffer_load_dword v5, v143, {w2}, s{S_T1} offen')


def g2_main(A, l_exit):
    ws = f's[{S_WS}:{S_WS + 3}]'
    S_O, S_B2 = S_W1, S_B1
    A.I(f's_load_dwordx4 s[16:19], s[0:1], {KA_B2}')
    for rnd in range(3):
        l = A.newlabel('L_pre')
        A.I(f's_cmp_gt_u32 s{S_PRE}, {rnd}')
        A.br(f's_cbranch_scc1 {l}')
        g2_pre(A, rnd)
        A.label(l)
        A.forget_loads()
    A.I('s_waitcnt lgkmcnt(0)')
    make_srd(A, S_B2, 16, 4096)
    make_srd(A, S_O, 18, 2048 * 1024)
    b2, out = f's[{S_B2}:{S_B2 + 3}]', f's[{S_O}:{S_O + 3}]'
    S_AO, S_EO = 36, 37
    A.I(f's_and_b32 s{S_T0}, s{S_J2}, 7')
    A.I(f's_mul_i32 s{S_AO}, s{S_T0}, {4 * 56 * 1024}')
    A.I(f's_lshl_b32 s{S_T1}, s{S_WV}, 10')
    A.I(f's_add_u32 s{S_AO}, s{S_AO}, s{S_T1}')
    A.I(f's_add_u32 s{S_AO}, s{S_AO}, 0x{WS_U:x}')
    A.I(f's_lshl_b32 s{S_T0}, s{S_T0}, 2')
    A.I(f's_add_u32 s{S_T0}, s{S_T0}, s{S_WV}')
    A.I(f's_lshr_b32 s{S_T1}, s{S_J2}, 3')
    A.I(f's_lshl_b32 s{S_EO}, s{S_T1}, 16')
    A.I(f's_lshl_b32 s{S_T0}, s{S_T0}, 5')
    A.I(f's_add_u32 s{S_EO}, s{S_EO}, s{S_T0}')
    A.I('v_lshlrev_b32 v5, 4, v0')
    A.I('v_and_b32 v1, 15, v0')
    A.I('v_lshrrev_b32 v2, 4, v0')
    A.I('v_lshlrev_b32 v3, 10, v1')
    A.I('v_lshl_add_u32 v3, v2, 3, v3')
    A.I('v_lshlrev_b32 v4, 1, v1')
    A.I(f's_lshl_b32 s{S_T1}, s{S_T1}, 7')
    HB, BB, ACC, AR = 10, 18, 24, 88
    NA = 42
    for nb in range(4):
        A.I(f'buffer_load_ushort v{BB + nb}, v4, {b2}, s{S_T1} offen offset:{32 * nb}')
    l0 = A.newlabel('L_g20')
    A.I(f's_cmp_lg_u32 s{S_WV}, 0')
    A.br(f's_cbranch_scc1 {l0}')
    A.I(f's_lshl_b32 s{S_T1}, s{S_G}, 9')
    A.I(f's_add_u32 s{S_T1}, s{S_T1}, 0x{F_GF + 256:x}')
    poll_flags(A, S_T1, 7, 1, 6, 7, l_exit, sleep=1)
    A.label(l0)
    A.I('s_waitcnt vmcnt(0)')
    A.I('s_barrier')
    tstamp(A, 5, 8)
    vmq = []

    def aload(i):
        k, db = i >> 2, i & 3
        off = db * 56 * 1024 + k * 4096
        A.I(f's_add_u32 s{S_T1}, s{S_AO}, {off}')
        A.I(f'buffer_load_dwordx4 {v(AR + 4 * (i % NA), 4)}, v5, {ws}, s{S_T1} offen')
        vmq.append(('a', i))

    def need(names):
        idx = max([i for i, p in enumerate(vmq) if p in names] + [-1])
        if idx >= 0:
            A.I(f's_waitcnt vmcnt({len(vmq) - 1 - idx})')
            del vmq[:idx + 1]

    for i in range(NA):
        aload(i)
    for nb in range(4):
        A.I(f's_add_u32 s{S_T0}, s{S_EO}, 0x{WS_H + nb * 16384:x}')
        A.I(f'buffer_load_dwordx2 {v(HB + 2 * nb, 2)}, v3, {ws}, s{S_T0} offen')
        vmq.append(('h', 0))
    for i in range(56):
        k, db = i >> 2, i & 3
        need([('a', i)])
        if i == 0 and TIMING:
            A.check = False
            tstamp(A, 19, 8)
            vmq.append(('ts', 0))
            A.check = True
        for nb in range(4):
            d = ACC + 16 * db + 4 * nb
            c = '0' if k == 0 else v(d, 4)
            A.I(f'v_mfma_f32_16x16x32_bf16 {v(d, 4)}, {v(AR + 4 * (i % NA), 4)}, {a(16 * k + 4 * nb, 4)}, {c}')
        if i + NA < 56:
            aload(i + NA)
    A.I(f's_lshl_b32 s{S_T0}, s{S_WV}, 12')
    A.I(f'v_add_u32 v6, s{S_T0}, v5')
    for db in range(4):
        for nb in range(4):
            A.I(f'ds_write_b128 v6, {v(ACC + 16 * db + 4 * nb, 4)} offset:{db * 16384 + nb * 1024}')
        A.I('s_waitcnt lgkmcnt(8)')
    A.I(f's_lshl_b32 s{S_T0}, s{S_WV}, 14')
    A.I(f'v_add_u32 v6, s{S_T0}, v5')
    A.I('s_waitcnt lgkmcnt(0)')
    A.I('s_barrier')
    for j in range(16):
        A.I(f'ds_read_b128 {v(ACC + 4 * j, 4)}, v6 offset:{1024 * j}')
        if j == 11:
            A.I('s_waitcnt lgkmcnt(8)')
    A.I('s_waitcnt lgkmcnt(0) vmcnt(0)')
    tstamp(A, 18, 8)
    for r in range(0, 16, 2):
        A.I(f'v_pk_add_f32 {v(ACC + r, 2)}, {v(ACC + r, 2)}, {v(ACC + 16 + r, 2)}')
        A.I(f'v_pk_add_f32 {v(ACC + 32 + r, 2)}, {v(ACC + 32 + r, 2)}, {v(ACC + 48 + r, 2)}')
    for r in range(0, 16, 2):
        A.I(f'v_pk_add_f32 {v(ACC + r, 2)}, {v(ACC + r, 2)}, {v(ACC + 32 + r, 2)}')
    for nb in range(4):
        d = ACC + 4 * nb
        t = 88
        A.I(f'v_cvt_pk_bf16_f32 v{t}, v{d}, v{d + 1}')
        A.I(f'v_cvt_pk_bf16_f32 v{t + 1}, v{d + 2}, v{d + 3}')
        A.I(f'v_lshlrev_b32 v{t + 2}, 16, v{BB + nb}')
        for i in range(2):
            A.I(f'v_lshlrev_b32 v{d + 2 * i}, 16, v{t + i}')
            A.I(f'v_and_b32 v{d + 2 * i + 1}, 0xffff0000, v{t + i}')
        for r in range(4):
            A.I(f'v_add_f32 v{d + r}, v{d + r}, v{t + 2}')
        A.I(f'v_cvt_pk_bf16_f32 v{t}, v{d}, v{d + 1}')
        A.I(f'v_cvt_pk_bf16_f32 v{t + 1}, v{d + 2}, v{d + 3}')
        for i in range(2):
            A.I(f'v_lshlrev_b32 v{d + 2 * i}, 16, v{t + i}')
            A.I(f'v_and_b32 v{d + 2 * i + 1}, 0xffff0000, v{t + i}')
            A.I(f'v_lshlrev_b32 v{t + 2}, 16, v{HB + 2 * nb + i}')
            A.I(f'v_and_b32 v{t + 3}, 0xffff0000, v{HB + 2 * nb + i}')
            A.I(f'v_add_f32 v{d + 2 * i}, v{d + 2 * i}, v{t + 2}')
            A.I(f'v_add_f32 v{d + 2 * i + 1}, v{d + 2 * i + 1}, v{t + 3}')
        o = 92 + 2 * nb
        A.I(f'v_cvt_pk_bf16_f32 v{o}, v{d}, v{d + 1}')
        A.I(f'v_cvt_pk_bf16_f32 v{o + 1}, v{d + 2}, v{d + 3}')
        A.I(f's_add_u32 s{S_T0}, s{S_EO}, {nb * 16384}')
        A.I(f'buffer_store_dwordx2 {v(o, 2)}, v3, {out}, s{S_T0} offen')


def red4(A, s_seg, srd_x, l_exit):
    ws = f's[{S_WS}:{S_WS + 3}]'
    B, Z, Pk, XR, t0, t1, va = 192, 144, 152, 12, 160, 161, 162
    A.I(f's_lshl_b32 s{S_T2}, s{s_seg}, 5')
    A.I(f's_add_u32 s{S_T2}, s{S_T2}, s{S_H}')
    A.I(f's_lshl_b32 s{S_T0}, s{S_T2}, 15')
    A.I(f's_lshl_b32 s{S_T1}, s{S_WV}, 13')
    A.I(f's_add_u32 s{S_T0}, s{S_T0}, s{S_T1}')
    A.I(f's_add_u32 s{S_T0}, s{S_T0}, 0x{WS_OP:x}')
    A.I(f's_add_u32 s{S_T1}, s{S_T0}, 4096')
    for hh in range(8):
        so = S_T0 if hh < 4 else S_T1
        A.I(f'buffer_load_dwordx4 {v(B + 4 * hh, 4)}, v1, {ws}, s{so} offen offset:{1024 * (hh & 3)}')
    A.I(f's_lshl_b32 s{S_T3}, s{S_T2}, 10')
    A.I(f'v_lshrrev_b32 v{va}, 2, v0')
    A.I(f'v_lshlrev_b32 v{va}, 6, v{va}')
    A.I(f'v_and_b32 v{t0}, 3, v0')
    A.I(f'v_lshl_add_u32 v{va}, v{t0}, 3, v{va}')
    for hh in range(8):
        A.I(f's_waitcnt vmcnt({7 - hh})')
        for i in range(4):
            r = B + 4 * hh + i
            if hh == 0:
                A.I(f'v_lshlrev_b32 v{Z + 2 * i}, 16, v{r}')
                A.I(f'v_and_b32 v{Z + 2 * i + 1}, 0xffff0000, v{r}')
            else:
                A.I(f'v_lshlrev_b32 v{t0}, 16, v{r}')
                A.I(f'v_and_b32 v{t1}, 0xffff0000, v{r}')
                A.I(f'v_add_f32 v{Z + 2 * i}, v{Z + 2 * i}, v{t0}')
                A.I(f'v_add_f32 v{Z + 2 * i + 1}, v{Z + 2 * i + 1}, v{t1}')
    A.I(f's_lshl_b32 s{S_T0}, s{S_WV}, 11')
    A.I(f'v_add_u32 v{t0}, s{S_T0}, v1')
    A.I(f'v_add_u32 v{t0}, {L_RED}, v{t0}')
    A.I(f'ds_write_b128 v{t0}, {v(Z, 4)}')
    A.I(f'ds_write_b128 v{t0}, {v(Z + 4, 4)} offset:1024')
    A.I('s_waitcnt lgkmcnt(0) vmcnt(0)')
    A.I('s_barrier')
    ts_tok(A, 15)
    l = A.newlabel('L_r4')
    A.I(f's_cmp_lg_u32 s{S_WV}, 0')
    A.br(f's_cbranch_scc1 {l}')
    for w_ in range(1, 4):
        for j in range(2):
            A.I(f'ds_read_b128 {v(B + 8 * w_ + 4 * j, 4)}, v{t0} offset:{2048 * w_ + 1024 * j}')
    A.I('s_waitcnt lgkmcnt(0)')
    for w_ in range(1, 4):
        for i in range(8):
            A.I(f'v_add_f32 v{Z + i}, v{Z + i}, v{B + 8 * w_ + i}')
    T.round_bf16(A, Z, Pk)
    for i in range(4):
        A.I(f'v_lshlrev_b32 v{t0}, 16, v{XR + i}')
        A.I(f'v_and_b32 v{t1}, 0xffff0000, v{XR + i}')
        A.I(f'v_add_f32 v{Z + 2 * i}, v{Z + 2 * i}, v{t0}')
        A.I(f'v_add_f32 v{Z + 2 * i + 1}, v{Z + 2 * i + 1}, v{t1}')
    T.round_bf16(A, Z, Pk)
    A.I(f's_add_u32 s{S_T0}, s{S_T3}, 0x{WS_H:x}')
    A.I(f'buffer_store_dwordx2 {v(Pk, 2)}, v{va}, {ws}, s{S_T0} offen sc1')
    A.I(f'buffer_store_dwordx2 {v(Pk + 2, 2)}, v{va}, {ws}, s{S_T0} offen offset:32 sc1')
    T.ln_regs(A, Z, t0, t1)
    T.round_bf16(A, Z, XR)
    T.ln_regs(A, Z, t0, t1)
    for i in range(4):
        A.I(f'v_cvt_pk_bf16_f32 v{XR + i}, v{Z + 2 * i}, v{Z + 2 * i + 1}')
    A.I(f's_add_u32 s{S_T0}, s{S_T3}, 0x{WS_HP:x}')
    A.I(f'buffer_store_dwordx2 {v(XR, 2)}, v{va}, {ws}, s{S_T0} offen sc1')
    A.I(f'buffer_store_dwordx2 {v(XR + 2, 2)}, v{va}, {ws}, s{S_T0} offen offset:32 sc1')
    A.I(f's_lshl_b32 s{S_T2}, s{s_seg}, 7')
    A.I(f's_add_u32 s{S_T2}, s{S_T2}, 0x{F_LH:x}')
    A.I(f's_lshl_b32 s{S_T3}, s{s_seg}, 2')
    A.I(f's_add_u32 s{S_T3}, s{S_T3}, 0x{F_GF:x}')
    A.I('s_waitcnt vmcnt(0)')
    garrive(A, S_T2, S_T3, t0, l_exit)
    A.label(l)


if __name__ == '__main__':
    A = Asm()
    nm = NAME + '_kernel'
    mega_kernel(A, nm)
    hd = header([(nm, 256, 256, R.L_TOTAL)])
    if os.environ.get('FINAL'):
        hd = hd.replace(f'@launch kernel={nm} ', '@launch ')
    txt = hd + A.text() + '.section .rodata,"a"\n' + kernel_desc(nm, 512, 256)
    out = os.environ.get('OUT', 'm3.s')
    open(out, 'w').write(txt)
    print(len(txt))
```

```python
import os
os.environ.setdefault('PB_DELAY', '7'); os.environ.setdefault('AF_DELAY', '2'); os.environ.setdefault('AF_GAP', '2')
from common import *
import tok as T
import rec9 as R
from tok import f32, S_WS, S_W, S_X, S_H, S_WV, S_G, S_T0, S_T1, S_T2, S_T3

S_DBG = 84
S_SPIN = R.S_SPIN
S_XCC = 83
S_LNO = 82
F_OPC = WS_FLAG + 0x4000
F_LH = WS_FLAG + 0x6000
F_LU = WS_FLAG + 0x8000
F_GF = WS_FLAG + 0x8400
S_FAST = S_XCC
D_GB, D_OVF, D_WEIRD, D_TS = 128, 36, 40, 192
S_J, S_BO2, S_LB2 = 100, 101, 3
S_J2 = 63
S_W1, S_B1, S_W2 = 88, 92, 96
NEARLY = int(os.environ.get('NEARLY', 2))
STAG = int(os.environ.get('STAG', 4))
STAG0 = int(os.environ.get('STAG0', 1))
TIMING = bool(os.environ.get('TIMING'))
OPRING = int(os.environ.get('OPRING', 0))
DIAG = bool(os.environ.get('DIAG'))
TAIL_BYTES = int(os.environ.get('TAIL_BYTES', 24576))
CODET = int(os.environ.get('CODET', 0))
CODE_BYTES = int(os.environ.get('CODE_BYTES', 57344))
PLF = os.environ.get('PLF', 'sc1').replace('_', ' ')


def lane0(A, body):
    A.I('s_mov_b64 exec, 1')
    body()
    A.I('s_mov_b64 exec, -1')


def poll_eq(A, srd, s_off, imm, expect, vt, l_exit, sleep=0):
    l = A.newlabel('L_poll')
    A.label(l)
    so = f's{s_off}' if s_off is not None else '0'
    A.I(f'buffer_load_dword v{vt}, off, {srd}, {so} offset:{imm} sc1')
    A.I(f's_sub_u32 s{S_SPIN}, s{S_SPIN}, 1')
    A.I(f's_cbranch_scc1 {l_exit}')
    A.I('s_waitcnt vmcnt(0)')
    A.I(f'v_readfirstlane_b32 s{S_T0}, v{vt}')
    ld = A.newlabel('L_pd')
    A.I(f's_cmp_eq_u32 s{S_T0}, {expect}')
    A.I(f's_cbranch_scc1 {ld}')
    if sleep:
        A.I(f's_sleep {sleep}')
    A.br(f's_branch {l}')
    A.label(ld)


def poll_flags(A, s_off, nlanes, width, vt, va, l_exit, sleep=0):
    ws = f's[{S_WS}:{S_WS + 3}]'
    l, ld = A.newlabel('L_pf'), A.newlabel('L_pfd')
    A.I(f'v_lshlrev_b32 v{va}, {2 if width == 1 else 3}, v0')
    assert nlanes <= 32
    A.I(f's_mov_b32 exec_lo, 0x{(1 << nlanes) - 1:x}')
    A.I('s_mov_b32 exec_hi, 0')
    A.label(l)
    if width == 1:
        A.I(f'buffer_load_dword v{vt}, v{va}, {ws}, s{s_off} offen {PLF}')
    else:
        A.I(f'buffer_load_dwordx2 {v(vt, 2)}, v{va}, {ws}, s{s_off} offen {PLF}')
    A.I(f's_sub_u32 s{S_SPIN}, s{S_SPIN}, 1')
    A.I(f's_cbranch_scc1 {l_exit}')
    A.I('s_waitcnt vmcnt(0)')
    if width == 2:
        A.I(f'v_min_u32 v{vt}, v{vt}, v{vt + 1}')
    A.I(f'v_cmp_eq_u32 vcc, 0, v{vt}')
    A.I(f's_cbranch_vccz {ld}')
    if sleep:
        A.I(f's_sleep {sleep}')
    A.br(f's_branch {l}')
    A.label(ld)
    A.I('s_mov_b64 exec, -1')


def flag_store(A, s_addr, vt):
    ws = f's[{S_WS}:{S_WS + 3}]'
    l1, l2 = A.newlabel('L_fs'), A.newlabel('L_fs')
    A.I(f'v_mov_b32 v{vt}, 1')
    A.I('s_mov_b64 exec, 1')
    A.I(f's_cmp_eq_u32 s{S_FAST}, 0')
    A.br(f's_cbranch_scc1 {l1}')
    A.I(f'buffer_store_dword v{vt}, off, {ws}, s{s_addr}')
    A.br(f's_branch {l2}')
    A.label(l1)
    A.I(f'buffer_store_dword v{vt}, off, {ws}, s{s_addr} sc1')
    A.label(l2)
    A.I('s_mov_b64 exec, -1')


def garrive(A, s_line, s_goff, vt, l_exit):
    ws = f's[{S_WS}:{S_WS + 3}]'
    A.I(f's_lshl_b32 s{S_T1}, s{S_H}, 2')
    A.I(f's_add_u32 s{S_T1}, s{S_T1}, s{s_line}')
    flag_store(A, S_T1, vt)
    l = A.newlabel('L_ga')
    A.I(f's_cmp_lg_u32 s{S_H}, 0')
    A.br(f's_cbranch_scc1 {l}')
    poll_flags(A, s_line, 32, 1, vt, vt + 1, l_exit)
    A.I(f'v_lshlrev_b32 v{vt + 1}, 9, v0')
    A.I(f'v_mov_b32 v{vt}, 1')
    A.I('s_mov_b64 exec, 0xff')
    A.I(f'buffer_store_dword v{vt}, v{vt + 1}, {ws}, s{s_goff} offen sc1')
    A.I('s_mov_b64 exec, -1')
    A.label(l)


def wg_poll_eq(A, srd, s_off, imm, expect, vt, l_exit, sleep=0):
    l0 = A.newlabel('L_wgp')
    A.I(f's_cmp_lg_u32 s{S_WV}, 0')
    A.br(f's_cbranch_scc1 {l0}')
    poll_eq(A, srd, s_off, imm, expect, vt, l_exit, sleep)
    A.label(l0)
    A.I('s_barrier')


def tstamp(A, idx, r=14):
    if not TIMING:
        return
    l = A.newlabel('L_ts')
    A.I(f's_cmp_lg_u32 s{S_WV}, 0')
    A.br(f's_cbranch_scc1 {l}')
    A.I('s_memrealtime s[80:81]')
    A.I('s_waitcnt lgkmcnt(0)')
    A.I(f'v_mov_b32 v{r}, s80')
    A.I(f'v_mov_b32 v{r + 1}, s81')
    A.I(f's_lshl_b32 s80, s{S_G}, 5')
    A.I(f's_add_u32 s80, s80, s{S_H}')
    A.I('s_lshl_b32 s80, s80, 8')
    A.I(f's_add_u32 s80, s80, 0x{WS_DBG:x}')
    A.I(f'buffer_store_dwordx2 {v(r, 2)}, off, s[{S_WS}:{S_WS + 3}], s80 offset:{8 * idx}')
    A.label(l)


def mega_kernel(A, name):
    kernel_begin(A, name)
    l_exit = A.newlabel('L_exit')
    P_WS, P_DBG, P_Q, P_K, P_V, P_O, P_M0, P_X = 16, 18, 20, 22, 24, 26, 28, 30
    ws, dbg, sx = f's[{S_WS}:{S_WS + 3}]', f's[{S_DBG}:{S_DBG + 3}]', f's[{S_X}:{S_X + 3}]'
    A.I('s_cmp_ge_u32 s2, 256')
    A.I(f's_cbranch_scc1 {l_exit}')
    if DIAG:
        A.I('s_memrealtime s[58:59]')
    A.I(f's_load_dwordx2 s[{P_WS}:{P_WS + 1}], s[0:1], {KA_WS}')
    A.I(f's_load_dwordx2 s[{P_DBG}:{P_DBG + 1}], s[0:1], {KA_DBG}')
    A.I(f's_load_dwordx4 s[{P_Q}:{P_Q + 3}], s[0:1], {KA_WQ}')
    A.I(f's_load_dwordx4 s[{P_V}:{P_V + 3}], s[0:1], {KA_WV}')
    A.I(f's_load_dwordx2 s[{P_M0}:{P_M0 + 1}], s[0:1], {KA_MEM0}')
    A.I(f's_load_dwordx2 s[{P_X}:{P_X + 1}], s[0:1], {KA_X}')
    A.I('v_lshrrev_b32 v1, 6, v0')
    A.I('v_and_b32 v0, 63, v0')
    A.I(f'v_readfirstlane_b32 s{S_WV}, v1')
    A.I(f's_getreg_b32 s{S_XCC}, hwreg(HW_REG_XCC_ID)')
    A.I(f's_mov_b32 s{S_SPIN}, 0x80000')
    A.I('s_waitcnt lgkmcnt(0)')
    make_srd(A, S_WS, P_WS, WS_SIZE)
    make_srd(A, S_DBG, P_DBG, 256)
    make_srd(A, S_X, P_X, 2048 * 1024)
    A.I(f's_mov_b32 s{S_LNO}, -1')
    if CODET:
        lct = A.newlabel('L_ct')
        A.I(f's_cmp_lg_u32 s{S_WV}, 3')
        A.br(f's_cbranch_scc1 {lct}')
        A.I('s_cmp_ge_u32 s2, 16')
        A.br(f's_cbranch_scc1 {lct}')
        code_touch(A, name, l_exit, CODE_BYTES, 255, 3)
        A.label(lct)
    lr = A.newlabel('L_role_done')
    A.I(f's_cmp_lg_u32 s{S_WV}, 0')
    A.br(f's_cbranch_scc1 {lr}')
    A.I('s_mov_b64 exec, 1')
    A.I('v_mov_b32 v2, 1')
    lw = A.newlabel('L_nw')
    A.I(f's_cmp_lt_u32 s{S_XCC}, 8')
    A.br(f's_cbranch_scc1 {lw}')
    A.I(f'buffer_atomic_or v2, off, {dbg}, 0 offset:{D_WEIRD}')
    A.I('s_waitcnt vmcnt(0)')
    A.label(lw)
    A.I(f's_and_b32 s{S_G}, s{S_XCC}, 7')
    A.I(f's_lshl_b32 s{S_T0}, s{S_G}, 2')
    A.I(f'buffer_atomic_add v2, off, {dbg}, s{S_T0} sc0')
    A.I('s_waitcnt vmcnt(0)')
    A.I(f'v_readfirstlane_b32 s{S_H}, v2')
    lok = A.newlabel('L_rok')
    A.I(f's_cmp_lt_u32 s{S_H}, 32')
    A.br(f's_cbranch_scc1 {lok}')
    A.I('v_mov_b32 v2, 1')
    A.I(f'buffer_atomic_add v2, off, {dbg}, 0 offset:{D_OVF} sc0')
    A.I('s_waitcnt vmcnt(0)')
    A.I(f'v_readfirstlane_b32 s{S_T3}, v2')
    lo = A.newlabel('L_ovf')
    A.label(lo)
    A.I(f'buffer_load_dwordx4 v[4:7], off, {dbg}, 0 sc1')
    A.I(f'buffer_load_dwordx4 v[8:11], off, {dbg}, 0 offset:16 sc1')
    A.I(f's_sub_u32 s{S_SPIN}, s{S_SPIN}, 1')
    A.I(f's_cbranch_scc1 {l_exit}')
    A.I('s_waitcnt vmcnt(0)')
    A.I(f's_mov_b32 s{S_T0}, 0')
    for i in range(8):
        A.I(f'v_readfirstlane_b32 s{64 + i}, v{4 + i}')
    for i in range(8):
        A.I(f's_add_u32 s{S_T0}, s{S_T0}, s{64 + i}')
    A.I(f's_cmp_lt_u32 s{S_T0}, 256')
    A.br(f's_cbranch_scc1 {lo}')
    for g in range(8):
        A.I(f's_min_u32 s{S_T0}, s{64 + g}, 32')
        A.I(f's_sub_u32 s{S_T1}, 32, s{S_T0}')
        A.I(f's_mov_b32 s{S_G}, {g}')
        A.I(f's_add_u32 s{S_H}, s{S_T0}, s{S_T3}')
        A.I(f's_cmp_lt_u32 s{S_T3}, s{S_T1}')
        A.br(f's_cbranch_scc1 {lok}')
        A.I(f's_sub_u32 s{S_T3}, s{S_T3}, s{S_T1}')
    A.label(lok)
    A.I(f's_lshl_b32 s{S_T0}, s{S_G}, 8')
    A.I(f's_or_b32 s{S_T0}, s{S_T0}, s{S_H}')
    A.I(f'v_mov_b32 v2, s{S_T0}')
    A.I('v_mov_b32 v3, 0')
    A.I('ds_write_b32 v3, v2')
    A.I('s_waitcnt lgkmcnt(0)')
    A.I('s_mov_b64 exec, -1')
    A.label(lr)
    A.I('s_barrier')
    A.I('v_mov_b32 v3, 0')
    A.I('ds_read_b32 v2, v3')
    A.I('s_waitcnt lgkmcnt(0)')
    A.I(f'v_readfirstlane_b32 s{S_T0}, v2')
    A.I(f's_and_b32 s{S_H}, s{S_T0}, 31')
    A.I(f's_bfe_u32 s{S_G}, s{S_T0}, 0x30008')
    A.I('s_barrier')
    tstamp(A, 0)

    def ln_and_arrive(ln=True):
        if ln:
            l = A.newlabel('L_nl2')
            A.I(f's_cmp_eq_u32 s{S_LNO}, -1')
            A.br(f's_cbranch_scc1 {l}')
            A.check = False
            T.ln1_compute(A, ws, S_LNO, 'sc1', 0)
            A.check = True
            A.label(l)
        A.I('s_waitcnt vmcnt(0)')
        A.I('s_barrier')
        l = A.newlabel('L_na')
        A.I(f's_cmp_lg_u32 s{S_WV}, 0')
        A.br(f's_cbranch_scc1 {l}')
        A.I('v_mov_b32 v23, 1')
        lane0(A, lambda: A.I(f'buffer_atomic_add v23, off, {dbg}, 0 offset:{D_GB}'))
        A.I('s_waitcnt vmcnt(0)')
        A.label(l)

    l_tok = A.newlabel('L_tok')
    l_g2 = A.newlabel('L_g2')
    A.I(f's_cmp_lg_u32 s{S_G}, 0')
    A.br(f's_cbranch_scc1 {l_tok}')

    A.I(f'v_mov_b32 v{R.LANE}, v0')
    R.setup_consts(A)

    def thook():
        A.check = False
        A.I(f's_lshl_b32 s{S_T0}, s{S_H}, 6')
        A.I(f's_lshl_b32 s{S_T1}, s{S_WV}, 2')
        A.I(f's_add_u32 s{S_T0}, s{S_T0}, s{S_T1}')
        A.I(f's_add_u32 s{S_LNO}, s{S_T0}, 0x{R.F_KMP:x}')
        A.I('v_mov_b32 v24, 0')
        lane0(A, lambda: A.I(f'buffer_store_dword v24, off, {ws}, s{S_LNO} sc1'))
        R.init_exchange(A, P_M0, 'sc1', rb=24)
        ln_and_arrive(ln=False)
        tstamp(A, 8, 24)
        A.check = True
        A.forget_loads()

    S_OK = 25

    def batch():
        A.I(f'buffer_load_dword v25, off, {dbg}, 0 sc1')
        A.I(f'buffer_load_dword v26, off, {dbg}, 0 offset:{D_WEIRD} sc1')
        R.kv_load(A, 28, R.V_L16, R.S_RA)

    def h_issue(sc):
        if sc == 3:
            A.I(f'buffer_load_dword v24, off, {dbg}, 0 offset:{D_GB} sc1')
            return
        A.I(f's_lshl_b32 s{R.S_RA}, s{S_H}, 7')
        A.I(f's_add_u32 s{R.S_RA}, s{R.S_RA}, 0x{R.F_PROG:x}')
        A.I(f's_lshl_b32 s{R.S_KVN}, s{S_H}, 13')
        A.I(f's_add_u32 s{R.S_KVN}, s{R.S_KVN}, s{R.S_W11}')
        A.I(f's_add_u32 s{R.S_KVN}, s{R.S_KVN}, 0x{WS_KF:x}')
        A.I(f's_add_u32 s{R.S_KVM0}, s{R.S_W11}, {R.L_KV}')
        batch()

    def evaluate(l_fail):
        R.kv_eval(A, 28, R.V_L16, R.S_AV)
        A.I(f'v_readfirstlane_b32 s{S_T0}, v24')
        A.I(f'v_readfirstlane_b32 s{S_T2}, v25')
        A.I(f'v_readfirstlane_b32 s{S_T3}, v26')
        A.I(f's_cmp_lg_u32 s{S_T0}, 256')
        A.I(f's_cbranch_scc1 {l_fail}')
        A.I(f's_cmp_eq_u32 s{R.S_AV}, 0')
        A.I(f's_cbranch_scc1 {l_fail}')
        A.I(f's_cmp_ge_u32 s{S_T2}, 32')
        A.I(f's_cselect_b32 s{S_XCC}, 1, 0')
        A.I(f's_cmp_eq_u32 s{S_T3}, 0')
        A.I(f's_cselect_b32 s{S_XCC}, s{S_XCC}, 0')
        R.kv_dma(A)

    def h_check():
        lf = A.newlabel('L_hf')
        A.I(f's_mov_b32 s{S_OK}, 0')
        evaluate(lf)
        A.I(f's_mov_b32 s{S_OK}, 1')
        A.label(lf)

    R.stage_weights(A, [P_Q, P_K, P_V, P_O], hook=thook, hook_issue=h_issue, hook_check=h_check)
    l = A.newlabel('L_ns')
    A.I(f's_cmp_lg_u32 s{S_WV}, 0')
    A.br(f's_cbranch_scc1 {l}')
    A.I('v_mov_b32 v2, 1')
    lane0(A, lambda: A.I(f'buffer_atomic_add v2, off, {dbg}, 0 offset:{D_TS}'))
    A.label(l)
    tstamp(A, 1)
    A.I(f's_mov_b32 s{R.S_KP}, s{S_LNO}')
    lgo_, lre = A.newlabel('L_tgo'), A.newlabel('L_tre')
    A.I(f's_cmp_eq_u32 s{S_OK}, 1')
    A.br(f's_cbranch_scc1 {lgo_}')
    A.label(lre)
    A.I('s_sleep 4')
    A.I(f'buffer_load_dword v24, off, {dbg}, 0 offset:{D_GB} sc1')
    A.I('s_waitcnt vmcnt(0)')
    batch()
    A.I(f's_sub_u32 s{S_SPIN}, s{S_SPIN}, 1')
    A.I(f's_cbranch_scc1 {l_exit}')
    A.I('s_waitcnt vmcnt(0)')
    evaluate(lre)
    A.label(lgo_)
    A.I('s_waitcnt vmcnt(0)')
    A.I('s_barrier')
    tstamp(A, 2)
    if DIAG:
        A.I('s_memrealtime s[80:81]')
        A.I('s_waitcnt lgkmcnt(0)')
        A.I('s_sub_u32 s60, s80, s58')
    l_slow = A.newlabel('L_slowmode')
    l_tdone = A.newlabel('L_tdone')
    A.I(f's_cmp_eq_u32 s{S_XCC}, 0')
    if os.environ.get('FORCE_SLOW'):
        A.br(f's_branch {l_slow}')
    else:
        A.br(f's_cbranch_scc1 {l_slow}')
    R.main_loop(A, '', l_tdone, kvcheck=True)
    A.label(l_slow)
    R.main_loop(A, 'sc1', l_tdone, kvcheck=True)
    A.label(l_tdone)
    A.forget_loads()
    A.I(f's_mov_b32 s{S_G}, 0')
    tstamp(A, 3)
    if DIAG:
        A.I('s_memrealtime s[80:81]')
        A.I('s_waitcnt lgkmcnt(0)')
        A.I('s_sub_u32 s61, s80, s58')
    A.I(f'v_lshrrev_b32 v0, 4, v{R.V_L16}')
    j2_calc(A)
    A.I('s_waitcnt vmcnt(0) lgkmcnt(0)')
    A.I('s_barrier')
    g2_setup(A)
    for k in range(5):
        g2_dma(A, k)
    A.I(f's_mov_b32 s{S_PRE}, 0')
    A.br(f's_branch {l_g2}')

    A.label(l_tok)
    A.forget_loads()
    S_SEG, S_NX, S_CA, S_END, S_K1, S_AV, S_PB = 36, 41, 42, 43, 44, 45, 46
    j2_calc(A)
    A.I(f's_sub_u32 s{S_G}, s{S_G}, 1')
    A.I(f's_lshl_b32 s{S_J}, s{S_G}, 5')
    A.I(f's_add_u32 s{S_J}, s{S_J}, s{S_H}')

    def tok_init(ln=True):
        A.I(f's_lshl_b32 s{S_CA}, s{S_H}, 7')
        A.I(f's_lshl_b32 s{S_T0}, s{S_G}, 4')
        A.I(f's_add_u32 s{S_CA}, s{S_CA}, s{S_T0}')
        A.I(f's_lshl_b32 s{S_T0}, s{S_WV}, 2')
        A.I(f's_add_u32 s{S_CA}, s{S_CA}, s{S_T0}')
        A.I(f's_add_u32 s{S_CA}, s{S_CA}, 0x{R.F_PROG:x}')
        A.I('v_mov_b32 v22, 0')
        lane0(A, lambda: A.I(f'buffer_store_dword v22, off, {ws}, s{S_CA} sc1'))
        lz = A.newlabel('L_nz')
        A.I(f's_cmp_lg_u32 s{S_J}, 64')
        A.br(f's_cbranch_scc1 {lz}')
        A.I('v_lshlrev_b32 v23, 4, v0')
        for r in range(16, 20):
            A.I(f'v_mov_b32 v{r}, 0')
        A.I(f's_mul_i32 s{S_T0}, s{S_WV}, 6144')
        A.I(f's_add_u32 s{S_T0}, s{S_T0}, 0x{F_OPC:x}')
        A.I(f's_add_u32 s{S_T1}, s{S_T0}, 4096')
        for i in range(4):
            A.I(f'buffer_store_dwordx4 v[16:19], v23, {ws}, s{S_T0} offen offset:{1024 * i} sc1')
        A.I(f'buffer_store_dwordx4 v[16:19], v23, {ws}, s{S_T1} offen sc1')
        A.I(f'buffer_store_dwordx4 v[16:19], v23, {ws}, s{S_T1} offen offset:1024 sc1')
        A.label(lz)
        A.forget_loads()
        ln_and_arrive(ln)
        ts_tok(A, 8)

    l_late = A.newlabel('L_late')
    l_st = A.newlabel('L_st')
    A.I(f's_mov_b32 s{S_K1}, 0')
    A.I(f's_cmp_lt_u32 s{S_G}, {NEARLY}')
    A.br(f's_cbranch_scc1 {l_st}')
    l1 = A.newlabel('L_nl')
    A.I(f's_cmp_lg_u32 s{S_WV}, 1')
    A.I(f's_cbranch_scc1 {l1}')
    A.I(f's_cmp_lt_u32 s{S_G}, 3')
    A.I(f's_cbranch_scc1 {l1}')
    A.I(f's_sub_u32 s{S_T3}, s{S_J}, 96')
    T.ln1_load(A, S_T3, sx, S_LNO)
    A.label(l1)
    A.forget_loads()
    tok_init()
    l_nost = A.newlabel('L_nost')
    A.I(f's_cmp_ge_u32 s{S_G}, 4')
    A.br(f's_cbranch_scc1 {l_nost}')
    wg_poll_eq(A, dbg, None, D_TS, 32, 2, l_exit, sleep=32)
    lsg, lsd = A.newlabel('L_sg'), A.newlabel('L_sd')
    A.I(f's_cmp_lg_u32 s{S_WV}, 0')
    A.br(f's_cbranch_scc1 {lsd}')
    A.I(f's_cmp_eq_u32 s{S_G}, 3')
    A.I(f's_cselect_b32 s{S_T1}, {STAG}, {STAG0}')
    A.I(f's_lshl_b32 s{S_T2}, s{S_H}, 6')
    A.I(f's_add_u32 s{S_T2}, s{S_T2}, 0x{R.F_KMP:x}')
    A.label(lsg)
    A.I(f'buffer_load_dword v2, off, {ws}, s{S_T2} sc1')
    A.I(f's_sub_u32 s{S_SPIN}, s{S_SPIN}, 1')
    A.I(f's_cbranch_scc1 {l_exit}')
    A.I('s_waitcnt vmcnt(0)')
    A.I(f'v_readfirstlane_b32 s{S_T0}, v2')
    A.I(f's_cmp_ge_u32 s{S_T0}, s{S_T1}')
    A.I(f's_cbranch_scc1 {lsd}')
    A.I('s_sleep 16')
    A.br(f's_branch {lsg}')
    A.label(lsd)
    A.I('s_barrier')
    A.I(f's_mov_b32 s{S_K1}, 1')
    A.label(l_st)

    def hook():
        l = A.newlabel('L_hk')
        A.I(f's_cmp_eq_u32 s{S_K1}, 1')
        A.br(f's_cbranch_scc1 {l}')
        A.check = False
        tok_init(False)
        A.check = True
        A.label(l)
        A.forget_loads()

    T.qkv_stage(A, [P_Q, P_K, P_V], hook=hook)
    A.label(l_nost)
    ts_tok(A, 1)
    wg_poll_eq(A, dbg, None, D_GB, 256, 2, l_exit, sleep=8)
    ts_tok(A, 7)
    A.I(f's_lshl_b32 s{S_T0}, s{S_G}, 2')
    A.I(f'buffer_load_dword v2, off, {dbg}, s{S_T0} offset:4 sc1')
    A.I(f'buffer_load_dword v3, off, {dbg}, 0 offset:{D_WEIRD} sc1')
    A.I('s_waitcnt vmcnt(0)')
    A.I(f'v_readfirstlane_b32 s{S_T2}, v2')
    A.I(f'v_readfirstlane_b32 s{S_T3}, v3')
    A.I(f's_cmp_ge_u32 s{S_T2}, 32')
    A.I(f's_cselect_b32 s{S_FAST}, 1, 0')
    A.I(f's_cmp_eq_u32 s{S_T3}, 0')
    A.I(f's_cselect_b32 s{S_FAST}, s{S_FAST}, 0')
    if os.environ.get('FORCE_SLOW'):
        A.I(f's_mov_b32 s{S_FAST}, 0')
    l_nop1 = A.newlabel('L_nop1')
    A.I(f's_cmp_ge_u32 s{S_G}, 4')
    A.br(f's_cbranch_scc1 {l_nop1}')
    A.I(f's_lshr_b32 s{S_T0}, s{S_G}, 1')
    A.I(f's_lshl_b32 s{S_T0}, s{S_T0}, 5')
    A.I(f's_add_u32 s{S_END}, s{S_T0}, 32')
    A.I(f's_and_b32 s{S_NX}, s{S_G}, 1')
    A.I(f's_add_u32 s{S_NX}, s{S_NX}, s{S_T0}')
    A.I('v_mov_b32 v2, 0')

    def signal():
        lane0(A, lambda: A.I(f'buffer_store_dword v2, off, {ws}, s{S_CA} sc1'))

    def after():
        A.I('v_add_u32 v2, 1, v2')

    T.qkv_segments(A, 2, 'sc1', after_seg=after, mid_seg=signal, first=S_NX, end=f's{S_END}')
    A.I('s_waitcnt vmcnt(0)')
    signal()
    A.label(l_nop1)
    ts_tok(A, 2)
    T.att_stage(A, P_O)
    T.att_consts(A)
    A.I(f's_load_dwordx4 s[16:19], s[0:1], {KA_W1}')
    A.I('s_waitcnt lgkmcnt(0)')
    make_srd(A, S_W1, 16, 2048 * 3584)
    make_srd(A, S_B1, 18, 3584)
    g2_setup(A)
    A.I(f's_mov_b32 s{S_PRE}, 0')
    for i in range(16):
        A.I(f'v_mov_b32 v{G1ACC + i}, 0')
    A.I(f's_mov_b32 s{S_K1}, 0')
    g1_w1_dma(A, S_K1, first=True)
    masks = seg_masks()
    for g in range(7):
        A.I(f's_cmp_eq_u32 s{S_G}, {g}')
        A.I(f's_cselect_b32 s{S_MSK}, 0x{masks[g] & 0xffffffff:x}, s{S_MSK}')
        A.I(f's_cselect_b32 s{S_MSK + 1}, 0x{masks[g] >> 32:x}, s{S_MSK + 1}')
    A.I(f's_ff1_i32_b64 s{S_SEG}, s[{S_MSK}:{S_MSK + 1}]')
    A.I(f's_bitset0_b64 s[{S_MSK}:{S_MSK + 1}], s{S_SEG}')
    A.I(f's_mov_b32 s{S_AV}, 0')
    A.I(f's_lshl_b32 s{S_PB}, s{S_H}, 7')
    A.I(f's_add_u32 s{S_PB}, s{S_PB}, 0x{R.F_PROG:x}')
    R.kv_wait(A, l_exit, S_SEG, 192, s_av=S_AV, s_base=S_PB, sleep=4, vlane16=1)
    T.att_load_qkv(A, S_SEG)
    x_prefetch(A, S_SEG, sx)
    L = A.newlabel('L_p2')
    L_att = A.newlabel('L_att')
    L_fin = A.newlabel('L_p2fin')
    A.label(L)
    A.check = False
    A.I(f's_cmp_ge_u32 s{S_K1}, 16')
    A.I(f's_cbranch_scc1 {L_fin}')
    lq2 = A.newlabel('L_lp2')
    ldec = A.newlabel('L_dec')
    A.I(f's_cmp_lg_u32 s{S_WV}, 0')
    A.br(f's_cbranch_scc1 {ldec}')
    A.I(f's_lshl_b32 s{S_CA}, s{S_H}, 6')
    A.I(f's_add_u32 s{S_CA}, s{S_CA}, 0x{R.F_KMP:x}')
    A.I(f's_add_u32 s40, s{S_SEG}, 2')
    A.I(f's_lshl_b32 s{S_T1}, s{S_K1}, 4')
    A.I(f's_lshl_b32 s{S_T2}, s{S_G}, 9')
    A.I(f's_add_u32 s{S_T1}, s{S_T1}, s{S_T2}')
    A.I(f's_add_u32 s{S_T1}, s{S_T1}, 0x{F_GF + 512:x}')
    lq, lgo, lnk = A.newlabel('L_lp'), A.newlabel('L_go'), A.newlabel('L_nk')
    A.label(lq)
    A.I(f'buffer_load_dwordx4 v[192:195], off, {ws}, s{S_CA} {PLF}')
    A.I(f'buffer_load_dwordx4 v[196:199], off, {ws}, s{S_T1} {PLF}')
    A.I(f's_sub_u32 s{S_SPIN}, s{S_SPIN}, 1')
    A.I(f's_cbranch_scc1 {l_exit}')
    A.I('s_waitcnt vmcnt(0)')
    A.I('v_min_u32 v6, v192, v193')
    A.I('v_min3_u32 v6, v6, v194, v195')
    A.I(f'v_readfirstlane_b32 s{S_T0}, v6')
    A.I('v_min_u32 v7, v196, v197')
    A.I('v_min3_u32 v7, v7, v198, v199')
    A.I('v_cmp_eq_u32 vcc, 0, v7')
    A.I(f's_mov_b32 s{S_T3}, 1')
    A.I(f's_cmp_ge_u32 s{S_T0}, s40')
    A.I(f's_cbranch_scc1 {lgo}')
    A.label(lnk)
    lsl = A.newlabel('L_sl')
    A.I(f's_add_u32 s{S_T0}, s{S_T0}, 2')
    A.I(f's_cmp_ge_u32 s{S_T0}, s40')
    A.I(f's_cbranch_scc1 {lq}')
    A.I(f's_mov_b32 s{S_T3}, 2')
    A.I(f's_cbranch_vccz {lgo}')
    lns = A.newlabel('L_nsl')
    A.I(f's_mov_b32 s{S_T3}, 3')
    A.I(f's_cmp_lt_u32 s{S_SEG}, 64')
    A.I(f's_cbranch_scc1 {lns}')
    A.I(f's_cmp_lt_u32 s{S_K1}, 3')
    A.I(f's_cbranch_scc1 {lns}')
    A.I(f's_cmp_lt_u32 s{S_PRE}, 3')
    A.I(f's_cbranch_scc1 {lgo}')
    A.label(lns)
    A.I('s_sleep 4')
    A.br(f's_branch {lq}')
    A.label(lgo)
    A.I(f'v_mov_b32 v6, s{S_T3}')
    A.I(f'v_mov_b32 v7, {L_RED + 8192 - 16}')
    A.I('ds_write_b32 v7, v6')
    A.I('s_waitcnt lgkmcnt(0)')
    A.label(ldec)
    A.I('s_barrier')
    A.I(f'v_mov_b32 v7, {L_RED + 8192 - 16}')
    A.I('ds_read_b32 v6, v7')
    A.I('s_waitcnt lgkmcnt(0)')
    A.I(f'v_readfirstlane_b32 s{S_T0}, v6')
    A.I(f's_cmp_eq_u32 s{S_T0}, 1')
    A.br(f's_cbranch_scc1 {lq2}')
    lch = A.newlabel('L_ch')
    A.I(f's_cmp_eq_u32 s{S_T0}, 2')
    A.br(f's_cbranch_scc1 {lch}')
    for rnd in range(3):
        lpr = A.newlabel('L_pr')
        A.I(f's_cmp_lg_u32 s{S_PRE}, {rnd}')
        A.br(f's_cbranch_scc1 {lpr}')
        g2_pre(A, rnd)
        A.br(f's_branch {L}')
        A.label(lpr)
    A.label(lch)
    ts_tok(A, 16)
    g1_chunk(A, S_K1, l_exit)
    A.I(f's_add_u32 s{S_K1}, s{S_K1}, 1')
    if CODET:
        lct = A.newlabel('L_ct')
        A.I(f's_cmp_lg_u32 s{S_K1}, 12')
        A.br(f's_cbranch_scc1 {lct}')
        A.I(f's_lshl_b32 s{S_T0}, s{S_H}, 2')
        A.I(f's_add_u32 s{S_T0}, s{S_T0}, s{S_WV}')
        A.I(f's_cmp_lg_u32 s{S_T0}, 7')
        A.br(f's_cbranch_scc1 {L}')
        code_touch(A, L, l_exit, TAIL_BYTES, 5, 143)
        A.br(f's_branch {L}')
        A.label(lct)
    lw2 = A.newlabel('L_w2')
    A.I(f's_cmp_lg_u32 s{S_K1}, 3')
    A.br(f's_cbranch_scc1 {lw2}')
    for k in range(5):
        g2_dma(A, k)
    A.br(f's_branch {L}')
    A.label(lw2)
    A.I(f's_cmp_lg_u32 s{S_K1}, 6')
    A.br(f's_cbranch_scc1 {L}')
    A.I(f's_and_b32 s{S_T0}, s{S_J2}, 7')
    A.I(f's_cmp_lg_u32 s{S_T0}, 4')
    A.br(f's_cbranch_scc1 {L}')
    g2_touch(A, 5)
    A.br(f's_branch {L}')
    A.label(lq2)
    ts_tok(A, 10)
    T.att_load_mem(A, S_SEG, 'sc1')
    A.I('s_waitcnt vmcnt(0)')
    ts_tok(A, 11)
    A.check = True
    A.forget_loads()
    T.att_compute1(A)
    lc1, lc2 = A.newlabel('L_c2s'), A.newlabel('L_c2e')
    A.I(f's_cmp_eq_u32 s{S_FAST}, 0')
    A.br(f's_cbranch_scc1 {lc1}')
    T.att_compute2(A, S_G if OPRING else S_SEG, os.environ.get('OPF', ''))
    A.br(f's_branch {lc2}')
    A.label(lc1)
    T.att_compute2(A, S_G if OPRING else S_SEG, 'sc1')
    A.label(lc2)
    ts_tok(A, 12)
    A.I('s_waitcnt vmcnt(0)')
    A.I('s_barrier')
    ts_tok(A, 13)
    A.I(f's_lshl_b32 s{S_CA}, s{S_SEG}, 7')
    A.I(f's_add_u32 s{S_CA}, s{S_CA}, 0x{F_OPC:x}')
    l0 = A.newlabel('L_n0')
    A.I(f's_cmp_lg_u32 s{S_WV}, 0')
    A.br(f's_cbranch_scc1 {l0}')
    A.I(f's_lshl_b32 s{S_T1}, s{S_H}, 2')
    A.I(f's_add_u32 s{S_T1}, s{S_T1}, s{S_CA}')
    flag_store(A, S_T1, 6)
    poll_flags(A, S_CA, 32, 1, 6, 7, l_exit)
    A.label(l0)
    A.I('s_barrier')
    ts_tok(A, 14)
    red4(A, S_SEG, sx, l_exit)
    A.I(f's_ff1_i32_b64 s{S_SEG}, s[{S_MSK}:{S_MSK + 1}]')
    A.I(f's_bitset0_b64 s[{S_MSK}:{S_MSK + 1}], s{S_SEG}')
    lnn = A.newlabel('L_nn')
    A.I(f's_cmp_lt_u32 s{S_SEG}, 64')
    A.br(f's_cbranch_scc1 {lnn}')
    A.I(f's_mov_b32 s{S_SEG}, 999')
    ts_tok(A, 3)
    A.br(f's_branch {L}')
    A.label(lnn)
    lav = A.newlabel('L_av')
    A.I(f's_cmp_gt_u32 s{S_AV}, s{S_SEG}')
    A.br(f's_cbranch_scc1 {lav}')
    R.kv_wait(A, l_exit, S_SEG, 192, s_av=S_AV, s_base=S_PB, sleep=4, vlane16=1)
    A.label(lav)
    T.att_load_qkv(A, S_SEG)
    x_prefetch(A, S_SEG, sx)
    A.br(f's_branch {L}')
    A.label(L_fin)
    A.forget_loads()
    ts_tok(A, 4)
    g1_epilogue(A, l_exit)
    A.I(f's_add_u32 s{S_G}, s{S_G}, 1')
    tstamp(A, 17)
    A.label(l_g2)
    A.forget_loads()
    g2_main(A, l_exit)
    tstamp(A, 6, 8)
    if DIAG:
        A.I(f's_add_u32 s{S_T0}, s{S_G}, s{S_H}')
        A.I(f's_add_u32 s{S_T0}, s{S_T0}, s{S_WV}')
        A.I(f's_cmp_lg_u32 s{S_T0}, 0')
        A.br(f's_cbranch_scc1 {l_exit}')
        A.I('s_memrealtime s[80:81]')
        A.I('s_waitcnt lgkmcnt(0)')
        A.I('s_sub_u32 s80, s80, s58')
        A.I('v_mov_b32 v8, s60')
        A.I('v_mov_b32 v9, s61')
        A.I('v_mov_b32 v10, s80')
        A.I('v_mov_b32 v11, 0')
        A.I(f'buffer_store_dwordx4 v[8:11], off, {dbg}, 0 offset:48')
    A.label(l_exit)
    A.I('s_endpgm')


S_MSK = 56


def seg_masks():
    c1, c2 = int(os.environ.get('C1', 14)), int(os.environ.get('C2', 27))
    m = [0] * 7
    last = {g: -100 for g in range(7)}
    for s_ in range(64):
        cand = [4, 5, 6] if s_ < c1 else ([4, 5, 6, 0, 1] if s_ < c2 else list(range(7)))
        g = min(cand, key=lambda x: last[x])
        last[g] = s_
        m[g] |= 1 << s_
    return m


def j2_calc(A):
    A.I(f's_lshr_b32 s{S_T0}, s{S_G}, 1')
    A.I(f's_lshl_b32 s{S_T0}, s{S_T0}, 3')
    A.I(f's_lshr_b32 s{S_T1}, s{S_H}, 2')
    A.I(f's_add_u32 s{S_T0}, s{S_T0}, s{S_T1}')
    A.I(f's_lshl_b32 s{S_J2}, s{S_T0}, 3')
    A.I(f's_and_b32 s{S_T0}, s{S_G}, 1')
    A.I(f's_lshl_b32 s{S_T0}, s{S_T0}, 2')
    A.I(f's_and_b32 s{S_T1}, s{S_H}, 3')
    A.I(f's_add_u32 s{S_T0}, s{S_T0}, s{S_T1}')
    A.I(f's_add_u32 s{S_J2}, s{S_J2}, s{S_T0}')


def code_touch(A, l_from, l_end, nbytes, vd, va):
    lh = A.newlabel('L_pc')
    A.I('s_getpc_b64 s[80:81]')
    A.raw(f'{lh}:')
    A.raw(f'    s_sub_u32 s80, s80, {lh}-{l_from}')
    A.raw('    s_subb_u32 s81, s81, 0')
    A.I(f'v_lshlrev_b32 v{va}, 7, v0')
    for i in range(0, nbytes, 8192):
        A.raw(f'    v_min_u32 v{va}, {l_end}-{l_from}, v{va}')
        A.raw(f'    global_load_dword v{vd}, v{va}, s[80:81]')
        A.I(f'v_add_u32 v{va}, 8192, v{va}')


def x_prefetch(A, s_seg, sx):
    A.I('v_lshrrev_b32 v6, 2, v0')
    A.I('v_lshlrev_b32 v6, 6, v6')
    A.I('v_and_b32 v7, 3, v0')
    A.I('v_lshl_add_u32 v6, v7, 3, v6')
    A.I(f's_lshl_b32 s{S_T3}, s{s_seg}, 5')
    A.I(f's_add_u32 s{S_T3}, s{S_T3}, s{S_H}')
    A.I(f's_lshl_b32 s{S_T3}, s{S_T3}, 10')
    A.I(f'buffer_load_dwordx2 v[12:13], v6, {sx}, s{S_T3} offen')
    A.I(f'buffer_load_dwordx2 v[14:15], v6, {sx}, s{S_T3} offen offset:32')


def ts_tok(A, i):
    if TIMING:
        A.I(f's_add_u32 s{S_G}, s{S_G}, 1')
        tstamp(A, i, 14 if i in (1, 2, 7, 8) else 6)
        A.I(f's_sub_u32 s{S_G}, s{S_G}, 1')


G1ACC = 120
G1T = 144
L_G1 = 0
L_RED = 65536
L_W2 = 73728


def g1_lane(A):
    t = G1T
    A.I(f'v_lshrrev_b32 v{t}, 3, v0')
    A.I(f'v_and_b32 v{t + 1}, 7, v0')
    A.I(f'v_bfe_u32 v{t + 2}, v0, 4, 1')
    A.I(f's_and_b32 s{S_T0}, s{S_WV}, 1')
    A.I(f's_lshl_b32 s{S_T0}, s{S_T0}, 1')
    A.I(f'v_or_b32 v{t + 2}, s{S_T0}, v{t + 2}')
    A.I(f'v_lshlrev_b32 v{t + 2}, 1, v{t + 2}')
    A.I(f'v_xor_b32 v{t + 1}, v{t + 1}, v{t + 2}')
    A.I(f'v_lshlrev_b32 v{t + 1}, 4, v{t + 1}')
    A.I(f'v_mul_u32_u24 v136, 3584, v{t}')
    A.I(f'v_add_u32 v136, v136, v{t + 1}')
    A.I(f'v_lshl_add_u32 v137, v{t}, 10, v{t + 1}')
    A.I(f'v_and_b32 v{t}, 15, v0')
    A.I(f'v_lshrrev_b32 v{t + 1}, 4, v0')
    A.I(f'v_lshrrev_b32 v{t + 2}, 2, v{t}')
    A.I(f'v_and_b32 v{t + 3}, 3, v{t}')
    A.I(f'v_lshl_add_u32 v{t + 4}, v{t + 1}, 3, v{t + 2}')
    A.I(f'v_lshlrev_b32 v{t + 4}, 7, v{t + 4}')
    A.I(f'v_lshl_add_u32 v{t + 4}, v{t + 3}, 3, v{t + 4}')
    A.I(f'v_lshrrev_b32 v{t + 5}, 1, v{t + 2}')
    A.I(f'v_and_b32 v{t + 6}, 1, v{t + 1}')
    A.I(f'v_lshl_add_u32 v{t + 5}, v{t + 6}, 1, v{t + 5}')
    A.I(f'v_xor_b32 v{t + 6}, s{S_T0}, v{t + 5}')
    A.I(f'v_lshl_add_u32 v138, v{t + 6}, 5, v{t + 4}')
    A.I(f'v_xor_b32 v139, 32, v138')
    A.I(f's_and_b32 s{S_T0}, s{S_WV}, 2')
    A.I(f'v_xor_b32 v{t + 6}, s{S_T0}, v{t + 5}')
    A.I(f'v_lshl_add_u32 v140, v{t + 6}, 5, v{t + 4}')
    A.I(f'v_add_u32 v140, 16384, v140')
    A.I(f'v_xor_b32 v141, 32, v140')


def g1_w1_dma(A, s_k, first=False, plus=0):
    if first:
        g1_lane(A)
    w1 = f's[{S_W1}:{S_W1 + 3}]'
    A.I(f's_add_u32 s{S_T2}, s{s_k}, {plus}')
    A.I(f's_mul_i32 s{S_T0}, s{S_T2}, {128 * 3584}')
    A.I(f's_mul_i32 s{S_T1}, s{S_WV}, {8 * 3584}')
    A.I(f's_add_u32 s{S_T0}, s{S_T0}, s{S_T1}')
    A.I(f's_lshr_b32 s{S_T1}, s{S_J}, 3')
    A.I(f's_lshl_b32 s{S_T1}, s{S_T1}, 7')
    A.I(f's_add_u32 s{S_T0}, s{S_T0}, s{S_T1}')
    A.I(f's_and_b32 s{S_T1}, s{S_T2}, 1')
    A.I(f's_lshl_b32 s{S_T1}, s{S_T1}, 15')
    A.I(f's_lshl_b32 s{S_T2}, s{S_WV}, 10')
    A.I(f's_add_u32 s{S_T1}, s{S_T1}, s{S_T2}')
    for i in range(4):
        A.I(f's_add_u32 m0, s{S_T1}, {L_G1 + i * 4096}')
        A.I(f's_add_u32 s{S_T2}, s{S_T0}, {i * 32 * 3584}')
        A.I(f'buffer_load_dwordx4 v136, {w1}, s{S_T2} offen lds')


def g1_chunk(A, s_k, l_exit):
    ws = f's[{S_WS}:{S_WS + 3}]'
    A.I(f's_lshl_b32 s{S_T0}, s{s_k}, 17')
    A.I(f's_lshl_b32 s{S_T1}, s{S_WV}, 13')
    A.I(f's_add_u32 s{S_T0}, s{S_T0}, s{S_T1}')
    A.I(f's_and_b32 s{S_T1}, s{S_J}, 7')
    A.I(f's_lshl_b32 s{S_T1}, s{S_T1}, 7')
    A.I(f's_add_u32 s{S_T0}, s{S_T0}, s{S_T1}')
    A.I(f's_add_u32 s{S_T0}, s{S_T0}, 0x{WS_HP:x}')
    A.I(f's_and_b32 s{S_T3}, s{s_k}, 1')
    A.I(f's_lshl_b32 s{S_T3}, s{S_T3}, 15')
    A.I(f's_lshl_b32 s{S_T2}, s{S_WV}, 10')
    A.I(f's_add_u32 s{S_T1}, s{S_T3}, s{S_T2}')
    for i in range(4):
        A.I(f's_add_u32 m0, s{S_T1}, {L_G1 + 16384 + i * 4096}')
        A.I(f's_add_u32 s{S_T2}, s{S_T0}, {i * 32 * 1024}')
        A.I(f'buffer_load_dwordx4 v137, {ws}, s{S_T2} offen lds')
    AD = G1T
    for j in range(4):
        A.I(f'v_add_u32 v{AD + j}, s{S_T3}, v{138 + j}')
    g1_w1_dma(A, s_k, plus=1)
    A.I('s_waitcnt vmcnt(4)')
    A.I('s_barrier')
    FR = G1T + 8

    def rd(ks):
        for j in range(4):
            for x in range(2):
                A.I(f'ds_read_b64_tr_b16 {v(FR + 16 * ks + 4 * j + 2 * x, 2)}, v{AD + j} offset:{L_G1 + (32 * ks + 4 * x) * 128}')

    rd(0)
    for ks in range(4):
        if ks < 3:
            rd(ks + 1)
            A.I('s_waitcnt lgkmcnt(8)')
        else:
            A.I('s_waitcnt lgkmcnt(0)')
        f = FR + 16 * ks
        for mbp in range(2):
            for nbp in range(2):
                d = G1ACC + (mbp * 2 + nbp) * 4
                A.I(f'v_mfma_f32_16x16x32_bf16 {v(d, 4)}, {v(f + 4 * mbp, 4)}, {v(f + 8 + 4 * nbp, 4)}, {v(d, 4)}')


def g1_epilogue(A, l_exit):
    import math
    ws, b1 = f's[{S_WS}:{S_WS + 3}]', f's[{S_B1}:{S_B1 + 3}]'
    ACC, BI, Z, Pk, TT, O = G1ACC, 150, 160, 168, 172, 188
    A.I(f's_lshr_b32 s{S_T2}, s{S_J}, 3')
    A.I(f's_lshl_b32 s{S_T0}, s{S_T2}, 7')
    A.I(f's_and_b32 s{S_T1}, s{S_WV}, 1')
    A.I(f's_lshl_b32 s{S_T1}, s{S_T1}, 6')
    A.I(f's_add_u32 s{S_T0}, s{S_T0}, s{S_T1}')
    A.I('v_lshrrev_b32 v144, 4, v0')
    A.I('v_lshlrev_b32 v144, 3, v144')
    A.I(f'buffer_load_dwordx2 v[146:147], v144, {b1}, s{S_T0} offen')
    A.I(f'buffer_load_dwordx2 v[148:149], v144, {b1}, s{S_T0} offen offset:32')
    A.I(f's_and_b32 s{S_T0}, s{S_J}, 7')
    A.I(f's_lshl_b32 s{S_T0}, s{S_T0}, 2')
    A.I(f's_and_b32 s{S_T1}, s{S_WV}, 2')
    A.I(f's_add_u32 s{S_T0}, s{S_T0}, s{S_T1}')
    A.I(f's_mul_i32 s{S_T0}, s{S_T0}, 56')
    A.I(f's_lshl_b32 s{S_T1}, s{S_T2}, 1')
    A.I(f's_add_u32 s{S_T0}, s{S_T0}, s{S_T1}')
    A.I(f's_and_b32 s{S_T1}, s{S_WV}, 1')
    A.I(f's_add_u32 s{S_T0}, s{S_T0}, s{S_T1}')
    A.I(f's_lshl_b32 s{S_T0}, s{S_T0}, 10')
    A.I(f's_add_u32 s{S_T0}, s{S_T0}, 0x{WS_U:x}')
    k1 = -2 * math.sqrt(2 / math.pi) * math.log2(math.e)
    A.I(f's_mov_b32 s{S_T2}, {f32(k1)}')
    A.I(f's_mov_b32 s{S_T3}, {f32(k1 * 0.044715)}')
    A.I('v_lshlrev_b32 v145, 4, v0')
    A.I('s_waitcnt vmcnt(0)')
    for i in range(4):
        A.I(f'v_lshlrev_b32 v{BI + 2 * i}, 16, v{146 + i}')
        A.I(f'v_and_b32 v{BI + 2 * i + 1}, 0xffff0000, v{146 + i}')
    for nbp in range(2):
        for mbp in range(2):
            for r in range(4):
                A.I(f'v_mov_b32 v{Z + 4 * mbp + r}, v{ACC + (mbp * 2 + nbp) * 4 + r}')
        T.round_bf16(A, Z, Pk)
        for i in range(8):
            A.I(f'v_add_f32 v{Z + i}, v{Z + i}, v{BI + i}')
        T.round_bf16(A, Z, Pk)
        for i in range(8):
            t = TT + i
            A.I(f'v_mul_f32 v{t}, v{Z + i}, v{Z + i}')
            A.I(f'v_mov_b32 v{t + 8}, s{S_T2}')
            A.I(f'v_fmac_f32 v{t + 8}, s{S_T3}, v{t}')
            A.I(f'v_mul_f32 v{t}, v{t + 8}, v{Z + i}')
            A.I(f'v_exp_f32 v{t}, v{t}')
        for i in range(8):
            A.I(f'v_add_f32 v{TT + i}, 1.0, v{TT + i}')
            A.I(f'v_rcp_f32 v{TT + i}, v{TT + i}')
        for i in range(8):
            A.I(f'v_mul_f32 v{Z + i}, v{Z + i}, v{TT + i}')
        o = O + 4 * nbp
        for i in range(4):
            A.I(f'v_cvt_pk_bf16_f32 v{o + i}, v{Z + 2 * i}, v{Z + 2 * i + 1}')
        A.I(f'buffer_store_dwordx4 {v(o, 4)}, v145, {ws}, s{S_T0} offen sc1')
        A.I(f's_add_u32 s{S_T0}, s{S_T0}, {56 * 1024}')
    A.I('s_waitcnt vmcnt(0)')
    A.I('s_barrier')
    l = A.newlabel('L_ue')
    A.I(f's_cmp_lg_u32 s{S_WV}, 0')
    A.br(f's_cbranch_scc1 {l}')
    A.I(f's_lshl_b32 s{S_T2}, s{S_G}, 7')
    A.I(f's_add_u32 s{S_T2}, s{S_T2}, 0x{F_LU:x}')
    A.I(f's_lshl_b32 s{S_T3}, s{S_G}, 2')
    A.I(f's_add_u32 s{S_T3}, s{S_T3}, 0x{F_GF + 256:x}')
    garrive(A, S_T2, S_T3, 144, l_exit)
    A.label(l)


def g2_slot(k):
    return L_W2 + 16384 * (k % 5)


S_PRE = 62


def g2_pre(A, rnd):
    t = G1T
    A.I(f'v_and_b32 v{t}, 15, v0')
    A.I(f'v_lshrrev_b32 v{t + 1}, 4, v0')
    A.I(f'v_lshrrev_b32 v{t + 2}, 2, v{t}')
    A.I(f'v_and_b32 v{t + 3}, 3, v{t}')
    A.I(f'v_lshl_add_u32 v{t + 2}, v{t + 1}, 2, v{t + 2}')
    A.I(f'v_bfe_u32 v{t + 1}, v{t + 2}, 1, 2')
    A.I(f'v_lshlrev_b32 v{t + 2}, 7, v{t + 2}')
    A.I(f'v_lshl_add_u32 v{t + 2}, v{t + 3}, 3, v{t + 2}')
    A.I(f'v_lshl_add_u32 v{t + 2}, v{t + 1}, 5, v{t + 2}')
    A.I(f's_lshl_b32 s{S_T0}, s{S_WV}, 12')
    A.I(f's_add_u32 s{S_T0}, s{S_T0}, {L_W2}')
    for j in range(4):
        A.I(f'v_xor_b32 v{t + 4 + j}, {32 * j}, v{t + 2}')
        A.I(f'v_add_u32 v{t + 4 + j}, s{S_T0}, v{t + 4 + j}')
        A.I(f'v_add_u32 v{t + 8 + j}, 49152, v{t + 4 + j}')
    A.I('s_waitcnt vmcnt(0)')
    A.I('s_barrier')
    ks_ = list(range(5 * rnd, min(5 * rnd + 5, 14)))
    for k in ks_:
        so = 16384 * (k % 5)
        ab = t + 4
        if so >= 49152:
            so -= 49152
            ab = t + 8
        for j in range(4):
            for x in range(2):
                A.I(f'ds_read_b64_tr_b16 {a(16 * k + 4 * j + 2 * x, 2)}, v{ab + j} offset:{so + 16 * x * 128}')
        A.I('s_waitcnt lgkmcnt(4)')
    A.I('s_waitcnt lgkmcnt(0)')
    if rnd < 2:
        A.I('s_barrier')
        for k in range(5 * rnd + 5, min(5 * rnd + 10, 14)):
            g2_dma(A, k)
    A.I(f's_mov_b32 s{S_PRE}, {rnd + 1}')


def g2_setup(A):
    A.I(f's_load_dwordx2 s[16:17], s[0:1], {KA_W2}')
    A.I('s_waitcnt lgkmcnt(0)')
    make_srd(A, S_W2, 16, 1792 * 4096)
    t = G1T
    A.I(f'v_lshrrev_b32 v{t}, 3, v0')
    A.I(f'v_and_b32 v{t + 1}, 7, v0')
    A.I(f'v_lshrrev_b32 v{t + 2}, 4, v0')
    A.I(f'v_lshlrev_b32 v{t + 2}, 1, v{t + 2}')
    A.I(f'v_xor_b32 v{t + 1}, v{t + 1}, v{t + 2}')
    A.I(f'v_lshlrev_b32 v{t + 1}, 4, v{t + 1}')
    A.I(f'v_lshl_add_u32 v142, v{t}, 12, v{t + 1}')
    A.I(f's_lshl_b32 s{S_BO2}, s{S_WV}, 15')
    A.I(f's_lshr_b32 s{S_T0}, s{S_J2}, 3')
    A.I(f's_lshl_b32 s{S_T0}, s{S_T0}, 7')
    A.I(f's_add_u32 s{S_BO2}, s{S_BO2}, s{S_T0}')
    A.I(f's_lshl_b32 s{S_LB2}, s{S_WV}, 10')


def g2_dma(A, k, vr=142):
    w2 = f's[{S_W2}:{S_W2 + 3}]'
    for i in range(4):
        A.I(f's_add_u32 m0, s{S_LB2}, {g2_slot(k) + i * 4096}')
        A.I(f's_add_u32 s{S_T0}, s{S_BO2}, {(k * 128 + i * 32) * 4096}')
        A.I(f'buffer_load_dwordx4 v{vr}, {w2}, s{S_T0} offen lds')


def g2_touch(A, k0):
    w2 = f's[{S_W2}:{S_W2 + 3}]'
    A.I('v_lshlrev_b32 v143, 12, v0')
    A.I(f's_lshr_b32 s{S_T0}, s{S_J2}, 3')
    A.I(f's_lshl_b32 s{S_T0}, s{S_T0}, 7')
    A.I(f's_lshl_b32 s{S_T1}, s{S_WV}, 18')
    A.I(f's_add_u32 s{S_T0}, s{S_T0}, s{S_T1}')
    for r0 in range(k0 * 128, 1792, 256):
        A.I(f's_add_u32 s{S_T1}, s{S_T0}, {r0 * 4096}')
        A.I(f'buffer_load_dword v5, v143, {w2}, s{S_T1} offen')


def g2_main(A, l_exit):
    ws = f's[{S_WS}:{S_WS + 3}]'
    S_O, S_B2 = S_W1, S_B1
    A.I(f's_load_dwordx4 s[16:19], s[0:1], {KA_B2}')
    for rnd in range(3):
        l = A.newlabel('L_pre')
        A.I(f's_cmp_gt_u32 s{S_PRE}, {rnd}')
        A.br(f's_cbranch_scc1 {l}')
        g2_pre(A, rnd)
        A.label(l)
        A.forget_loads()
    A.I('s_waitcnt lgkmcnt(0)')
    make_srd(A, S_B2, 16, 4096)
    make_srd(A, S_O, 18, 2048 * 1024)
    b2, out = f's[{S_B2}:{S_B2 + 3}]', f's[{S_O}:{S_O + 3}]'
    S_AO, S_EO = 36, 37
    A.I(f's_and_b32 s{S_T0}, s{S_J2}, 7')
    A.I(f's_mul_i32 s{S_AO}, s{S_T0}, {4 * 56 * 1024}')
    A.I(f's_lshl_b32 s{S_T1}, s{S_WV}, 10')
    A.I(f's_add_u32 s{S_AO}, s{S_AO}, s{S_T1}')
    A.I(f's_add_u32 s{S_AO}, s{S_AO}, 0x{WS_U:x}')
    A.I(f's_lshl_b32 s{S_T0}, s{S_T0}, 2')
    A.I(f's_add_u32 s{S_T0}, s{S_T0}, s{S_WV}')
    A.I(f's_lshr_b32 s{S_T1}, s{S_J2}, 3')
    A.I(f's_lshl_b32 s{S_EO}, s{S_T1}, 16')
    A.I(f's_lshl_b32 s{S_T0}, s{S_T0}, 5')
    A.I(f's_add_u32 s{S_EO}, s{S_EO}, s{S_T0}')
    A.I('v_lshlrev_b32 v5, 4, v0')
    A.I('v_and_b32 v1, 15, v0')
    A.I('v_lshrrev_b32 v2, 4, v0')
    A.I('v_lshlrev_b32 v3, 10, v1')
    A.I('v_lshl_add_u32 v3, v2, 3, v3')
    A.I('v_lshlrev_b32 v4, 1, v1')
    A.I(f's_lshl_b32 s{S_T1}, s{S_T1}, 7')
    HB, BB, ACC, AR = 10, 18, 24, 88
    NA = 42
    for nb in range(4):
        A.I(f'buffer_load_ushort v{BB + nb}, v4, {b2}, s{S_T1} offen offset:{32 * nb}')
    l0 = A.newlabel('L_g20')
    A.I(f's_cmp_lg_u32 s{S_WV}, 0')
    A.br(f's_cbranch_scc1 {l0}')
    A.I(f's_lshl_b32 s{S_T1}, s{S_G}, 9')
    A.I(f's_add_u32 s{S_T1}, s{S_T1}, 0x{F_GF + 256:x}')
    poll_flags(A, S_T1, 7, 1, 6, 7, l_exit, sleep=1)
    A.label(l0)
    A.I('s_waitcnt vmcnt(0)')
    A.I('s_barrier')
    tstamp(A, 5, 8)
    vmq = []

    def aload(i):
        k, db = i >> 2, i & 3
        off = db * 56 * 1024 + k * 4096
        A.I(f's_add_u32 s{S_T1}, s{S_AO}, {off}')
        A.I(f'buffer_load_dwordx4 {v(AR + 4 * (i % NA), 4)}, v5, {ws}, s{S_T1} offen')
        vmq.append(('a', i))

    def need(names):
        idx = max([i for i, p in enumerate(vmq) if p in names] + [-1])
        if idx >= 0:
            A.I(f's_waitcnt vmcnt({len(vmq) - 1 - idx})')
            del vmq[:idx + 1]

    for i in range(NA):
        aload(i)
    for nb in range(4):
        A.I(f's_add_u32 s{S_T0}, s{S_EO}, 0x{WS_H + nb * 16384:x}')
        A.I(f'buffer_load_dwordx2 {v(HB + 2 * nb, 2)}, v3, {ws}, s{S_T0} offen')
        vmq.append(('h', 0))
    for i in range(56):
        k, db = i >> 2, i & 3
        need([('a', i)])
        if i == 0 and TIMING:
            A.check = False
            tstamp(A, 19, 8)
            vmq.append(('ts', 0))
            A.check = True
        for nb in range(4):
            d = ACC + 16 * db + 4 * nb
            c = '0' if k == 0 else v(d, 4)
            A.I(f'v_mfma_f32_16x16x32_bf16 {v(d, 4)}, {v(AR + 4 * (i % NA), 4)}, {a(16 * k + 4 * nb, 4)}, {c}')
        if i + NA < 56:
            aload(i + NA)
    A.I(f's_lshl_b32 s{S_T0}, s{S_WV}, 12')
    A.I(f'v_add_u32 v6, s{S_T0}, v5')
    for db in range(4):
        for nb in range(4):
            A.I(f'ds_write_b128 v6, {v(ACC + 16 * db + 4 * nb, 4)} offset:{db * 16384 + nb * 1024}')
        A.I('s_waitcnt lgkmcnt(8)')
    A.I(f's_lshl_b32 s{S_T0}, s{S_WV}, 14')
    A.I(f'v_add_u32 v6, s{S_T0}, v5')
    A.I('s_waitcnt lgkmcnt(0)')
    A.I('s_barrier')
    for j in range(16):
        A.I(f'ds_read_b128 {v(ACC + 4 * j, 4)}, v6 offset:{1024 * j}')
        if j == 11:
            A.I('s_waitcnt lgkmcnt(8)')
    A.I('s_waitcnt lgkmcnt(0) vmcnt(0)')
    tstamp(A, 18, 8)
    for r in range(0, 16, 2):
        A.I(f'v_pk_add_f32 {v(ACC + r, 2)}, {v(ACC + r, 2)}, {v(ACC + 16 + r, 2)}')
        A.I(f'v_pk_add_f32 {v(ACC + 32 + r, 2)}, {v(ACC + 32 + r, 2)}, {v(ACC + 48 + r, 2)}')
    for r in range(0, 16, 2):
        A.I(f'v_pk_add_f32 {v(ACC + r, 2)}, {v(ACC + r, 2)}, {v(ACC + 32 + r, 2)}')
    for nb in range(4):
        d = ACC + 4 * nb
        t = 88
        A.I(f'v_cvt_pk_bf16_f32 v{t}, v{d}, v{d + 1}')
        A.I(f'v_cvt_pk_bf16_f32 v{t + 1}, v{d + 2}, v{d + 3}')
        A.I(f'v_lshlrev_b32 v{t + 2}, 16, v{BB + nb}')
        for i in range(2):
            A.I(f'v_lshlrev_b32 v{d + 2 * i}, 16, v{t + i}')
            A.I(f'v_and_b32 v{d + 2 * i + 1}, 0xffff0000, v{t + i}')
        for r in range(4):
            A.I(f'v_add_f32 v{d + r}, v{d + r}, v{t + 2}')
        A.I(f'v_cvt_pk_bf16_f32 v{t}, v{d}, v{d + 1}')
        A.I(f'v_cvt_pk_bf16_f32 v{t + 1}, v{d + 2}, v{d + 3}')
        for i in range(2):
            A.I(f'v_lshlrev_b32 v{d + 2 * i}, 16, v{t + i}')
            A.I(f'v_and_b32 v{d + 2 * i + 1}, 0xffff0000, v{t + i}')
            A.I(f'v_lshlrev_b32 v{t + 2}, 16, v{HB + 2 * nb + i}')
            A.I(f'v_and_b32 v{t + 3}, 0xffff0000, v{HB + 2 * nb + i}')
            A.I(f'v_add_f32 v{d + 2 * i}, v{d + 2 * i}, v{t + 2}')
            A.I(f'v_add_f32 v{d + 2 * i + 1}, v{d + 2 * i + 1}, v{t + 3}')
        o = 92 + 2 * nb
        A.I(f'v_cvt_pk_bf16_f32 v{o}, v{d}, v{d + 1}')
        A.I(f'v_cvt_pk_bf16_f32 v{o + 1}, v{d + 2}, v{d + 3}')
        A.I(f's_add_u32 s{S_T0}, s{S_EO}, {nb * 16384}')
        A.I(f'buffer_store_dwordx2 {v(o, 2)}, v3, {out}, s{S_T0} offen')


def red4(A, s_seg, srd_x, l_exit):
    ws = f's[{S_WS}:{S_WS + 3}]'
    B, Z, Pk, XR, t0, t1, va = 192, 144, 152, 12, 160, 161, 162
    A.I(f's_lshl_b32 s{S_T2}, s{s_seg}, 5')
    A.I(f's_add_u32 s{S_T2}, s{S_T2}, s{S_H}')
    if OPRING:
        A.I(f's_lshl_b32 s{S_T0}, s{S_J}, 15')
    else:
        A.I(f's_lshl_b32 s{S_T0}, s{S_T2}, 15')
    A.I(f's_lshl_b32 s{S_T1}, s{S_WV}, 13')
    A.I(f's_add_u32 s{S_T0}, s{S_T0}, s{S_T1}')
    A.I(f's_add_u32 s{S_T0}, s{S_T0}, 0x{WS_OP:x}')
    A.I(f's_add_u32 s{S_T1}, s{S_T0}, 4096')
    for hh in range(8):
        so = S_T0 if hh < 4 else S_T1
        A.I(f'buffer_load_dwordx4 {v(B + 4 * hh, 4)}, v1, {ws}, s{so} offen offset:{1024 * (hh & 3)} {"sc1" if OPRING else ""}')
    A.I(f's_lshl_b32 s{S_T3}, s{S_T2}, 10')
    A.I(f'v_lshrrev_b32 v{va}, 2, v0')
    A.I(f'v_lshlrev_b32 v{va}, 6, v{va}')
    A.I(f'v_and_b32 v{t0}, 3, v0')
    A.I(f'v_lshl_add_u32 v{va}, v{t0}, 3, v{va}')
    for hh in range(8):
        A.I(f's_waitcnt vmcnt({7 - hh})')
        for i in range(4):
            r = B + 4 * hh + i
            if hh == 0:
                A.I(f'v_lshlrev_b32 v{Z + 2 * i}, 16, v{r}')
                A.I(f'v_and_b32 v{Z + 2 * i + 1}, 0xffff0000, v{r}')
            else:
                A.I(f'v_lshlrev_b32 v{t0}, 16, v{r}')
                A.I(f'v_and_b32 v{t1}, 0xffff0000, v{r}')
                A.I(f'v_add_f32 v{Z + 2 * i}, v{Z + 2 * i}, v{t0}')
                A.I(f'v_add_f32 v{Z + 2 * i + 1}, v{Z + 2 * i + 1}, v{t1}')
    A.I(f's_lshl_b32 s{S_T0}, s{S_WV}, 11')
    A.I(f'v_add_u32 v{t0}, s{S_T0}, v1')
    A.I(f'v_add_u32 v{t0}, {L_RED}, v{t0}')
    A.I(f'ds_write_b128 v{t0}, {v(Z, 4)}')
    A.I(f'ds_write_b128 v{t0}, {v(Z + 4, 4)} offset:1024')
    A.I('s_waitcnt lgkmcnt(0) vmcnt(0)')
    A.I('s_barrier')
    ts_tok(A, 15)
    l = A.newlabel('L_r4')
    A.I(f's_cmp_lg_u32 s{S_WV}, 0')
    A.br(f's_cbranch_scc1 {l}')
    for w_ in range(1, 4):
        for j in range(2):
            A.I(f'ds_read_b128 {v(B + 8 * w_ + 4 * j, 4)}, v{t0} offset:{2048 * w_ + 1024 * j}')
    A.I('s_waitcnt lgkmcnt(0)')
    for w_ in range(1, 4):
        for i in range(8):
            A.I(f'v_add_f32 v{Z + i}, v{Z + i}, v{B + 8 * w_ + i}')
    T.round_bf16(A, Z, Pk)
    for i in range(4):
        A.I(f'v_lshlrev_b32 v{t0}, 16, v{XR + i}')
        A.I(f'v_and_b32 v{t1}, 0xffff0000, v{XR + i}')
        A.I(f'v_add_f32 v{Z + 2 * i}, v{Z + 2 * i}, v{t0}')
        A.I(f'v_add_f32 v{Z + 2 * i + 1}, v{Z + 2 * i + 1}, v{t1}')
    T.round_bf16(A, Z, Pk)
    A.I(f's_add_u32 s{S_T0}, s{S_T3}, 0x{WS_H:x}')
    A.I(f'buffer_store_dwordx2 {v(Pk, 2)}, v{va}, {ws}, s{S_T0} offen sc1')
    A.I(f'buffer_store_dwordx2 {v(Pk + 2, 2)}, v{va}, {ws}, s{S_T0} offen offset:32 sc1')
    T.ln_regs(A, Z, t0, t1)
    T.round_bf16(A, Z, XR)
    T.ln_regs(A, Z, t0, t1)
    for i in range(4):
        A.I(f'v_cvt_pk_bf16_f32 v{XR + i}, v{Z + 2 * i}, v{Z + 2 * i + 1}')
    A.I(f's_add_u32 s{S_T0}, s{S_T3}, 0x{WS_HP:x}')
    A.I(f'buffer_store_dwordx2 {v(XR, 2)}, v{va}, {ws}, s{S_T0} offen sc1')
    A.I(f'buffer_store_dwordx2 {v(XR + 2, 2)}, v{va}, {ws}, s{S_T0} offen offset:32 sc1')
    A.I(f's_lshl_b32 s{S_T2}, s{s_seg}, 7')
    A.I(f's_add_u32 s{S_T2}, s{S_T2}, 0x{F_LH:x}')
    A.I(f's_lshl_b32 s{S_T3}, s{s_seg}, 2')
    A.I(f's_add_u32 s{S_T3}, s{S_T3}, 0x{F_GF:x}')
    A.I('s_waitcnt vmcnt(0)')
    garrive(A, S_T2, S_T3, t0, l_exit)
    A.label(l)


if __name__ == '__main__':
    A = Asm()
    nm = NAME + '_kernel'
    mega_kernel(A, nm)
    hd = header([(nm, 256, 256, R.L_TOTAL)])
    if os.environ.get('FINAL'):
        hd = hd.replace(f'@launch kernel={nm} ', '@launch ')
    txt = hd + A.text() + '.section .rodata,"a"\n' + kernel_desc(nm, 512, 256)
    out = os.environ.get('OUT', 'm3.s')
    open(out, 'w').write(txt)
    print(len(txt))
```

```python
import os
os.environ.setdefault('PB_DELAY', '7'); os.environ.setdefault('AF_DELAY', '2'); os.environ.setdefault('AF_GAP', '2')
from common import *
import tok as T
import rec9 as R
from tok import f32, S_WS, S_W, S_X, S_H, S_WV, S_G, S_T0, S_T1, S_T2, S_T3

S_DBG = 84
S_SPIN = R.S_SPIN
S_XCC = 83
S_LNO = 82
F_OPC = WS_FLAG + 0x4000
F_LH = WS_FLAG + 0x6000
F_LU = WS_FLAG + 0x8000
F_GF = WS_FLAG + 0x8400
S_FAST = S_XCC
D_GB, D_OVF, D_WEIRD, D_TS = 128, 36, 40, 192
S_J, S_BO2, S_LB2 = 100, 101, 3
S_J2 = 63
S_W1, S_B1, S_W2 = 88, 92, 96
NEARLY = int(os.environ.get('NEARLY', 2))
STAG = int(os.environ.get('STAG', 4))
STAG0 = int(os.environ.get('STAG0', 1))
TIMING = bool(os.environ.get('TIMING'))
OPRING = int(os.environ.get('OPRING', 0))
WARM = int(os.environ.get('WARM', 1))
DIAG = bool(os.environ.get('DIAG'))
TAIL_BYTES = int(os.environ.get('TAIL_BYTES', 24576))
CODET = int(os.environ.get('CODET', 0))
CODE_BYTES = int(os.environ.get('CODE_BYTES', 57344))
PLF = os.environ.get('PLF', 'sc1').replace('_', ' ')


def lane0(A, body):
    A.I('s_mov_b64 exec, 1')
    body()
    A.I('s_mov_b64 exec, -1')


def poll_eq(A, srd, s_off, imm, expect, vt, l_exit, sleep=0):
    l = A.newlabel('L_poll')
    A.label(l)
    so = f's{s_off}' if s_off is not None else '0'
    A.I(f'buffer_load_dword v{vt}, off, {srd}, {so} offset:{imm} sc1')
    A.I(f's_sub_u32 s{S_SPIN}, s{S_SPIN}, 1')
    A.I(f's_cbranch_scc1 {l_exit}')
    A.I('s_waitcnt vmcnt(0)')
    A.I(f'v_readfirstlane_b32 s{S_T0}, v{vt}')
    ld = A.newlabel('L_pd')
    A.I(f's_cmp_eq_u32 s{S_T0}, {expect}')
    A.I(f's_cbranch_scc1 {ld}')
    if sleep:
        A.I(f's_sleep {sleep}')
    A.br(f's_branch {l}')
    A.label(ld)


def poll_flags(A, s_off, nlanes, width, vt, va, l_exit, sleep=0):
    ws = f's[{S_WS}:{S_WS + 3}]'
    l, ld = A.newlabel('L_pf'), A.newlabel('L_pfd')
    A.I(f'v_lshlrev_b32 v{va}, {2 if width == 1 else 3}, v0')
    assert nlanes <= 32
    A.I(f's_mov_b32 exec_lo, 0x{(1 << nlanes) - 1:x}')
    A.I('s_mov_b32 exec_hi, 0')
    A.label(l)
    if width == 1:
        A.I(f'buffer_load_dword v{vt}, v{va}, {ws}, s{s_off} offen {PLF}')
    else:
        A.I(f'buffer_load_dwordx2 {v(vt, 2)}, v{va}, {ws}, s{s_off} offen {PLF}')
    A.I(f's_sub_u32 s{S_SPIN}, s{S_SPIN}, 1')
    A.I(f's_cbranch_scc1 {l_exit}')
    A.I('s_waitcnt vmcnt(0)')
    if width == 2:
        A.I(f'v_min_u32 v{vt}, v{vt}, v{vt + 1}')
    A.I(f'v_cmp_eq_u32 vcc, 0, v{vt}')
    A.I(f's_cbranch_vccz {ld}')
    if sleep:
        A.I(f's_sleep {sleep}')
    A.br(f's_branch {l}')
    A.label(ld)
    A.I('s_mov_b64 exec, -1')


def flag_store(A, s_addr, vt):
    ws = f's[{S_WS}:{S_WS + 3}]'
    l1, l2 = A.newlabel('L_fs'), A.newlabel('L_fs')
    A.I(f'v_mov_b32 v{vt}, 1')
    A.I('s_mov_b64 exec, 1')
    A.I(f's_cmp_eq_u32 s{S_FAST}, 0')
    A.br(f's_cbranch_scc1 {l1}')
    A.I(f'buffer_store_dword v{vt}, off, {ws}, s{s_addr}')
    A.br(f's_branch {l2}')
    A.label(l1)
    A.I(f'buffer_store_dword v{vt}, off, {ws}, s{s_addr} sc1')
    A.label(l2)
    A.I('s_mov_b64 exec, -1')


def garrive(A, s_line, s_goff, vt, l_exit):
    ws = f's[{S_WS}:{S_WS + 3}]'
    A.I(f's_lshl_b32 s{S_T1}, s{S_H}, 2')
    A.I(f's_add_u32 s{S_T1}, s{S_T1}, s{s_line}')
    flag_store(A, S_T1, vt)
    l = A.newlabel('L_ga')
    A.I(f's_cmp_lg_u32 s{S_H}, 0')
    A.br(f's_cbranch_scc1 {l}')
    poll_flags(A, s_line, 32, 1, vt, vt + 1, l_exit)
    A.I(f'v_lshlrev_b32 v{vt + 1}, 9, v0')
    A.I(f'v_mov_b32 v{vt}, 1')
    A.I('s_mov_b64 exec, 0xff')
    A.I(f'buffer_store_dword v{vt}, v{vt + 1}, {ws}, s{s_goff} offen sc1')
    A.I('s_mov_b64 exec, -1')
    A.label(l)


def wg_poll_eq(A, srd, s_off, imm, expect, vt, l_exit, sleep=0):
    l0 = A.newlabel('L_wgp')
    A.I(f's_cmp_lg_u32 s{S_WV}, 0')
    A.br(f's_cbranch_scc1 {l0}')
    poll_eq(A, srd, s_off, imm, expect, vt, l_exit, sleep)
    A.label(l0)
    A.I('s_barrier')


def tstamp(A, idx, r=14):
    if not TIMING:
        return
    l = A.newlabel('L_ts')
    A.I(f's_cmp_lg_u32 s{S_WV}, 0')
    A.br(f's_cbranch_scc1 {l}')
    A.I('s_memrealtime s[80:81]')
    A.I('s_waitcnt lgkmcnt(0)')
    A.I(f'v_mov_b32 v{r}, s80')
    A.I(f'v_mov_b32 v{r + 1}, s81')
    A.I(f's_lshl_b32 s80, s{S_G}, 5')
    A.I(f's_add_u32 s80, s80, s{S_H}')
    A.I('s_lshl_b32 s80, s80, 8')
    A.I(f's_add_u32 s80, s80, 0x{WS_DBG:x}')
    A.I(f'buffer_store_dwordx2 {v(r, 2)}, off, s[{S_WS}:{S_WS + 3}], s80 offset:{8 * idx}')
    A.label(l)


def mega_kernel(A, name):
    kernel_begin(A, name)
    l_exit = A.newlabel('L_exit')
    P_WS, P_DBG, P_Q, P_K, P_V, P_O, P_M0, P_X = 16, 18, 20, 22, 24, 26, 28, 30
    ws, dbg, sx = f's[{S_WS}:{S_WS + 3}]', f's[{S_DBG}:{S_DBG + 3}]', f's[{S_X}:{S_X + 3}]'
    A.I('s_cmp_ge_u32 s2, 256')
    A.I(f's_cbranch_scc1 {l_exit}')
    if DIAG:
        A.I('s_memrealtime s[58:59]')
    A.I(f's_load_dwordx2 s[{P_WS}:{P_WS + 1}], s[0:1], {KA_WS}')
    A.I(f's_load_dwordx2 s[{P_DBG}:{P_DBG + 1}], s[0:1], {KA_DBG}')
    A.I(f's_load_dwordx4 s[{P_Q}:{P_Q + 3}], s[0:1], {KA_WQ}')
    A.I(f's_load_dwordx4 s[{P_V}:{P_V + 3}], s[0:1], {KA_WV}')
    A.I(f's_load_dwordx2 s[{P_M0}:{P_M0 + 1}], s[0:1], {KA_MEM0}')
    A.I(f's_load_dwordx2 s[{P_X}:{P_X + 1}], s[0:1], {KA_X}')
    A.I('v_lshrrev_b32 v1, 6, v0')
    A.I('v_and_b32 v0, 63, v0')
    A.I(f'v_readfirstlane_b32 s{S_WV}, v1')
    A.I(f's_getreg_b32 s{S_XCC}, hwreg(HW_REG_XCC_ID)')
    A.I(f's_mov_b32 s{S_SPIN}, 0x80000')
    A.I('s_waitcnt lgkmcnt(0)')
    make_srd(A, S_WS, P_WS, WS_SIZE)
    make_srd(A, S_DBG, P_DBG, 256)
    make_srd(A, S_X, P_X, 2048 * 1024)
    A.I(f's_mov_b32 s{S_LNO}, -1')
    if CODET:
        lct = A.newlabel('L_ct')
        A.I(f's_cmp_lg_u32 s{S_WV}, 3')
        A.br(f's_cbranch_scc1 {lct}')
        A.I('s_cmp_ge_u32 s2, 16')
        A.br(f's_cbranch_scc1 {lct}')
        code_touch(A, name, l_exit, CODE_BYTES, 255, 3)
        A.label(lct)
    lr = A.newlabel('L_role_done')
    A.I(f's_cmp_lg_u32 s{S_WV}, 0')
    A.br(f's_cbranch_scc1 {lr}')
    A.I('s_mov_b64 exec, 1')
    A.I('v_mov_b32 v2, 1')
    lw = A.newlabel('L_nw')
    A.I(f's_cmp_lt_u32 s{S_XCC}, 8')
    A.br(f's_cbranch_scc1 {lw}')
    A.I(f'buffer_atomic_or v2, off, {dbg}, 0 offset:{D_WEIRD}')
    A.I('s_waitcnt vmcnt(0)')
    A.label(lw)
    A.I(f's_and_b32 s{S_G}, s{S_XCC}, 7')
    A.I(f's_lshl_b32 s{S_T0}, s{S_G}, 2')
    A.I(f'buffer_atomic_add v2, off, {dbg}, s{S_T0} sc0')
    A.I('s_waitcnt vmcnt(0)')
    A.I(f'v_readfirstlane_b32 s{S_H}, v2')
    lok = A.newlabel('L_rok')
    A.I(f's_cmp_lt_u32 s{S_H}, 32')
    A.br(f's_cbranch_scc1 {lok}')
    A.I('v_mov_b32 v2, 1')
    A.I(f'buffer_atomic_add v2, off, {dbg}, 0 offset:{D_OVF} sc0')
    A.I('s_waitcnt vmcnt(0)')
    A.I(f'v_readfirstlane_b32 s{S_T3}, v2')
    lo = A.newlabel('L_ovf')
    A.label(lo)
    A.I(f'buffer_load_dwordx4 v[4:7], off, {dbg}, 0 sc1')
    A.I(f'buffer_load_dwordx4 v[8:11], off, {dbg}, 0 offset:16 sc1')
    A.I(f's_sub_u32 s{S_SPIN}, s{S_SPIN}, 1')
    A.I(f's_cbranch_scc1 {l_exit}')
    A.I('s_waitcnt vmcnt(0)')
    A.I(f's_mov_b32 s{S_T0}, 0')
    for i in range(8):
        A.I(f'v_readfirstlane_b32 s{64 + i}, v{4 + i}')
    for i in range(8):
        A.I(f's_add_u32 s{S_T0}, s{S_T0}, s{64 + i}')
    A.I(f's_cmp_lt_u32 s{S_T0}, 256')
    A.br(f's_cbranch_scc1 {lo}')
    for g in range(8):
        A.I(f's_min_u32 s{S_T0}, s{64 + g}, 32')
        A.I(f's_sub_u32 s{S_T1}, 32, s{S_T0}')
        A.I(f's_mov_b32 s{S_G}, {g}')
        A.I(f's_add_u32 s{S_H}, s{S_T0}, s{S_T3}')
        A.I(f's_cmp_lt_u32 s{S_T3}, s{S_T1}')
        A.br(f's_cbranch_scc1 {lok}')
        A.I(f's_sub_u32 s{S_T3}, s{S_T3}, s{S_T1}')
    A.label(lok)
    A.I(f's_lshl_b32 s{S_T0}, s{S_G}, 8')
    A.I(f's_or_b32 s{S_T0}, s{S_T0}, s{S_H}')
    A.I(f'v_mov_b32 v2, s{S_T0}')
    A.I('v_mov_b32 v3, 0')
    A.I('ds_write_b32 v3, v2')
    A.I('s_waitcnt lgkmcnt(0)')
    A.I('s_mov_b64 exec, -1')
    A.label(lr)
    A.I('s_barrier')
    A.I('v_mov_b32 v3, 0')
    A.I('ds_read_b32 v2, v3')
    A.I('s_waitcnt lgkmcnt(0)')
    A.I(f'v_readfirstlane_b32 s{S_T0}, v2')
    A.I(f's_and_b32 s{S_H}, s{S_T0}, 31')
    A.I(f's_bfe_u32 s{S_G}, s{S_T0}, 0x30008')
    A.I('s_barrier')
    tstamp(A, 0)

    def ln_and_arrive(ln=True):
        if ln:
            l = A.newlabel('L_nl2')
            A.I(f's_cmp_eq_u32 s{S_LNO}, -1')
            A.br(f's_cbranch_scc1 {l}')
            A.check = False
            T.ln1_compute(A, ws, S_LNO, 'sc1', 0)
            A.check = True
            A.label(l)
        A.I('s_waitcnt vmcnt(0)')
        A.I('s_barrier')
        l = A.newlabel('L_na')
        A.I(f's_cmp_lg_u32 s{S_WV}, 0')
        A.br(f's_cbranch_scc1 {l}')
        A.I('v_mov_b32 v23, 1')
        lane0(A, lambda: A.I(f'buffer_atomic_add v23, off, {dbg}, 0 offset:{D_GB}'))
        A.I('s_waitcnt vmcnt(0)')
        A.label(l)

    l_tok = A.newlabel('L_tok')
    l_g2 = A.newlabel('L_g2')
    A.I(f's_cmp_lg_u32 s{S_G}, 0')
    A.br(f's_cbranch_scc1 {l_tok}')

    A.I(f'v_mov_b32 v{R.LANE}, v0')
    R.setup_consts(A)

    def thook():
        A.check = False
        A.I(f's_lshl_b32 s{S_T0}, s{S_H}, 6')
        A.I(f's_lshl_b32 s{S_T1}, s{S_WV}, 2')
        A.I(f's_add_u32 s{S_T0}, s{S_T0}, s{S_T1}')
        A.I(f's_add_u32 s{S_LNO}, s{S_T0}, 0x{R.F_KMP:x}')
        A.I('v_mov_b32 v24, 0')
        lane0(A, lambda: A.I(f'buffer_store_dword v24, off, {ws}, s{S_LNO} sc1'))
        R.init_exchange(A, P_M0, 'sc1', rb=24)
        ln_and_arrive(ln=False)
        tstamp(A, 8, 24)
        A.check = True
        A.forget_loads()

    S_OK = 25

    def batch():
        A.I(f'buffer_load_dword v25, off, {dbg}, 0 sc1')
        A.I(f'buffer_load_dword v26, off, {dbg}, 0 offset:{D_WEIRD} sc1')
        R.kv_load(A, 28, R.V_L16, R.S_RA)

    def h_issue(sc):
        if sc == 3:
            A.I(f'buffer_load_dword v24, off, {dbg}, 0 offset:{D_GB} sc1')
            return
        A.I(f's_lshl_b32 s{R.S_RA}, s{S_H}, 7')
        A.I(f's_add_u32 s{R.S_RA}, s{R.S_RA}, 0x{R.F_PROG:x}')
        A.I(f's_lshl_b32 s{R.S_KVN}, s{S_H}, 13')
        A.I(f's_add_u32 s{R.S_KVN}, s{R.S_KVN}, s{R.S_W11}')
        A.I(f's_add_u32 s{R.S_KVN}, s{R.S_KVN}, 0x{WS_KF:x}')
        A.I(f's_add_u32 s{R.S_KVM0}, s{R.S_W11}, {R.L_KV}')
        batch()

    def evaluate(l_fail):
        R.kv_eval(A, 28, R.V_L16, R.S_AV)
        A.I(f'v_readfirstlane_b32 s{S_T0}, v24')
        A.I(f'v_readfirstlane_b32 s{S_T2}, v25')
        A.I(f'v_readfirstlane_b32 s{S_T3}, v26')
        A.I(f's_cmp_lg_u32 s{S_T0}, 256')
        A.I(f's_cbranch_scc1 {l_fail}')
        A.I(f's_cmp_eq_u32 s{R.S_AV}, 0')
        A.I(f's_cbranch_scc1 {l_fail}')
        A.I(f's_cmp_ge_u32 s{S_T2}, 32')
        A.I(f's_cselect_b32 s{S_XCC}, 1, 0')
        A.I(f's_cmp_eq_u32 s{S_T3}, 0')
        A.I(f's_cselect_b32 s{S_XCC}, s{S_XCC}, 0')
        R.kv_dma(A)

    def h_check():
        lf = A.newlabel('L_hf')
        A.I(f's_mov_b32 s{S_OK}, 0')
        evaluate(lf)
        A.I(f's_mov_b32 s{S_OK}, 1')
        A.label(lf)

    R.stage_weights(A, [P_Q, P_K, P_V, P_O], hook=thook, hook_issue=h_issue, hook_check=h_check)
    l = A.newlabel('L_ns')
    A.I(f's_cmp_lg_u32 s{S_WV}, 0')
    A.br(f's_cbranch_scc1 {l}')
    A.I('v_mov_b32 v2, 1')
    lane0(A, lambda: A.I(f'buffer_atomic_add v2, off, {dbg}, 0 offset:{D_TS}'))
    A.label(l)
    tstamp(A, 1)
    A.I(f's_mov_b32 s{R.S_KP}, s{S_LNO}')
    lgo_, lre = A.newlabel('L_tgo'), A.newlabel('L_tre')
    A.I(f's_cmp_eq_u32 s{S_OK}, 1')
    A.br(f's_cbranch_scc1 {lgo_}')
    A.label(lre)
    A.I('s_sleep 4')
    A.I(f'buffer_load_dword v24, off, {dbg}, 0 offset:{D_GB} sc1')
    A.I('s_waitcnt vmcnt(0)')
    batch()
    A.I(f's_sub_u32 s{S_SPIN}, s{S_SPIN}, 1')
    A.I(f's_cbranch_scc1 {l_exit}')
    A.I('s_waitcnt vmcnt(0)')
    evaluate(lre)
    A.label(lgo_)
    A.I('s_waitcnt vmcnt(0)')
    A.I('s_barrier')
    tstamp(A, 2)
    if DIAG:
        A.I('s_memrealtime s[80:81]')
        A.I('s_waitcnt lgkmcnt(0)')
        A.I('s_sub_u32 s60, s80, s58')
    l_slow = A.newlabel('L_slowmode')
    l_tdone = A.newlabel('L_tdone')
    A.I(f's_cmp_eq_u32 s{S_XCC}, 0')
    if os.environ.get('FORCE_SLOW'):
        A.br(f's_branch {l_slow}')
    else:
        A.br(f's_cbranch_scc1 {l_slow}')
    R.main_loop(A, '', l_tdone, kvcheck=True)
    A.label(l_slow)
    R.main_loop(A, 'sc1', l_tdone, kvcheck=True)
    A.label(l_tdone)
    A.forget_loads()
    A.I(f's_mov_b32 s{S_G}, 0')
    tstamp(A, 3)
    if DIAG:
        A.I('s_memrealtime s[80:81]')
        A.I('s_waitcnt lgkmcnt(0)')
        A.I('s_sub_u32 s61, s80, s58')
    A.I(f'v_lshrrev_b32 v0, 4, v{R.V_L16}')
    j2_calc(A)
    A.I('s_waitcnt vmcnt(0) lgkmcnt(0)')
    A.I('s_barrier')
    g2_setup(A)
    for k in range(5):
        g2_dma(A, k)
    A.I(f's_mov_b32 s{S_PRE}, 0')
    A.br(f's_branch {l_g2}')

    A.label(l_tok)
    A.forget_loads()
    S_SEG, S_NX, S_CA, S_END, S_K1, S_AV, S_PB = 36, 41, 42, 43, 44, 45, 46
    j2_calc(A)
    A.I(f's_sub_u32 s{S_G}, s{S_G}, 1')
    A.I(f's_lshl_b32 s{S_J}, s{S_G}, 5')
    A.I(f's_add_u32 s{S_J}, s{S_J}, s{S_H}')

    def tok_init(ln=True):
        A.I(f's_lshl_b32 s{S_CA}, s{S_H}, 7')
        A.I(f's_lshl_b32 s{S_T0}, s{S_G}, 4')
        A.I(f's_add_u32 s{S_CA}, s{S_CA}, s{S_T0}')
        A.I(f's_lshl_b32 s{S_T0}, s{S_WV}, 2')
        A.I(f's_add_u32 s{S_CA}, s{S_CA}, s{S_T0}')
        A.I(f's_add_u32 s{S_CA}, s{S_CA}, 0x{R.F_PROG:x}')
        A.I('v_mov_b32 v22, 0')
        lane0(A, lambda: A.I(f'buffer_store_dword v22, off, {ws}, s{S_CA} sc1'))
        lz = A.newlabel('L_nz')
        A.I(f's_cmp_lg_u32 s{S_J}, 64')
        A.br(f's_cbranch_scc1 {lz}')
        A.I('v_lshlrev_b32 v23, 4, v0')
        for r in range(16, 20):
            A.I(f'v_mov_b32 v{r}, 0')
        A.I(f's_mul_i32 s{S_T0}, s{S_WV}, 6144')
        A.I(f's_add_u32 s{S_T0}, s{S_T0}, 0x{F_OPC:x}')
        A.I(f's_add_u32 s{S_T1}, s{S_T0}, 4096')
        for i in range(4):
            A.I(f'buffer_store_dwordx4 v[16:19], v23, {ws}, s{S_T0} offen offset:{1024 * i} sc1')
        A.I(f'buffer_store_dwordx4 v[16:19], v23, {ws}, s{S_T1} offen sc1')
        A.I(f'buffer_store_dwordx4 v[16:19], v23, {ws}, s{S_T1} offen offset:1024 sc1')
        A.label(lz)
        A.forget_loads()
        ln_and_arrive(ln)
        ts_tok(A, 8)

    l_late = A.newlabel('L_late')
    l_st = A.newlabel('L_st')
    A.I(f's_mov_b32 s{S_K1}, 0')
    A.I(f's_cmp_lt_u32 s{S_G}, {NEARLY}')
    A.br(f's_cbranch_scc1 {l_st}')
    if WARM:
        lwm = A.newlabel('L_wm')
        A.I(f's_cmp_ge_u32 s{S_G}, 4')
        A.br(f's_cbranch_scc1 {lwm}')
        A.I(f's_sub_u32 s{S_T0}, s{S_J}, 64')
        A.I(f's_lshl_b32 s{S_T0}, s{S_T0}, 2')
        A.I(f's_add_u32 s{S_T0}, s{S_T0}, s{S_WV}')
        A.I(f's_lshl_b32 s{S_T0}, s{S_T0}, 14')
        A.I('v_lshlrev_b32 v22, 7, v0')
        A.check = False
        for p in (P_Q, P_O, P_K, P_V):
            make_srd(A, S_W, p, 4 << 20)
            A.I(f'buffer_load_dword v255, v22, s[{S_W}:{S_W + 3}], s{S_T0} offen')
            A.I(f's_add_u32 s{S_T1}, s{S_T0}, 8192')
            A.I(f'buffer_load_dword v255, v22, s[{S_W}:{S_W + 3}], s{S_T1} offen')
        A.check = True
        A.label(lwm)
        A.forget_loads()
    l1 = A.newlabel('L_nl')
    A.I(f's_cmp_lg_u32 s{S_WV}, 1')
    A.I(f's_cbranch_scc1 {l1}')
    A.I(f's_cmp_lt_u32 s{S_G}, 3')
    A.I(f's_cbranch_scc1 {l1}')
    A.I(f's_sub_u32 s{S_T3}, s{S_J}, 96')
    T.ln1_load(A, S_T3, sx, S_LNO)
    A.label(l1)
    A.forget_loads()
    tok_init()
    l_nost = A.newlabel('L_nost')
    A.I(f's_cmp_ge_u32 s{S_G}, 4')
    A.br(f's_cbranch_scc1 {l_nost}')
    wg_poll_eq(A, dbg, None, D_TS, 32, 2, l_exit, sleep=32)
    lsg, lsd = A.newlabel('L_sg'), A.newlabel('L_sd')
    A.I(f's_cmp_lg_u32 s{S_WV}, 0')
    A.br(f's_cbranch_scc1 {lsd}')
    A.I(f's_cmp_eq_u32 s{S_G}, 3')
    A.I(f's_cselect_b32 s{S_T1}, {STAG}, {STAG0}')
    A.I(f's_lshl_b32 s{S_T2}, s{S_H}, 6')
    A.I(f's_add_u32 s{S_T2}, s{S_T2}, 0x{R.F_KMP:x}')
    A.label(lsg)
    A.I(f'buffer_load_dword v2, off, {ws}, s{S_T2} sc1')
    A.I(f's_sub_u32 s{S_SPIN}, s{S_SPIN}, 1')
    A.I(f's_cbranch_scc1 {l_exit}')
    A.I('s_waitcnt vmcnt(0)')
    A.I(f'v_readfirstlane_b32 s{S_T0}, v2')
    A.I(f's_cmp_ge_u32 s{S_T0}, s{S_T1}')
    A.I(f's_cbranch_scc1 {lsd}')
    A.I('s_sleep 16')
    A.br(f's_branch {lsg}')
    A.label(lsd)
    A.I('s_barrier')
    A.I(f's_mov_b32 s{S_K1}, 1')
    A.label(l_st)

    def hook():
        l = A.newlabel('L_hk')
        A.I(f's_cmp_eq_u32 s{S_K1}, 1')
        A.br(f's_cbranch_scc1 {l}')
        A.check = False
        tok_init(False)
        A.check = True
        A.label(l)
        A.forget_loads()

    T.qkv_stage(A, [P_Q, P_K, P_V], hook=hook)
    A.label(l_nost)
    ts_tok(A, 1)
    wg_poll_eq(A, dbg, None, D_GB, 256, 2, l_exit, sleep=8)
    ts_tok(A, 7)
    A.I(f's_lshl_b32 s{S_T0}, s{S_G}, 2')
    A.I(f'buffer_load_dword v2, off, {dbg}, s{S_T0} offset:4 sc1')
    A.I(f'buffer_load_dword v3, off, {dbg}, 0 offset:{D_WEIRD} sc1')
    A.I('s_waitcnt vmcnt(0)')
    A.I(f'v_readfirstlane_b32 s{S_T2}, v2')
    A.I(f'v_readfirstlane_b32 s{S_T3}, v3')
    A.I(f's_cmp_ge_u32 s{S_T2}, 32')
    A.I(f's_cselect_b32 s{S_FAST}, 1, 0')
    A.I(f's_cmp_eq_u32 s{S_T3}, 0')
    A.I(f's_cselect_b32 s{S_FAST}, s{S_FAST}, 0')
    if os.environ.get('FORCE_SLOW'):
        A.I(f's_mov_b32 s{S_FAST}, 0')
    l_nop1 = A.newlabel('L_nop1')
    A.I(f's_cmp_ge_u32 s{S_G}, 4')
    A.br(f's_cbranch_scc1 {l_nop1}')
    A.I(f's_lshr_b32 s{S_T0}, s{S_G}, 1')
    A.I(f's_lshl_b32 s{S_T0}, s{S_T0}, 5')
    A.I(f's_add_u32 s{S_END}, s{S_T0}, 32')
    A.I(f's_and_b32 s{S_NX}, s{S_G}, 1')
    A.I(f's_add_u32 s{S_NX}, s{S_NX}, s{S_T0}')
    A.I('v_mov_b32 v2, 0')

    def signal():
        lane0(A, lambda: A.I(f'buffer_store_dword v2, off, {ws}, s{S_CA} sc1'))

    def after():
        A.I('v_add_u32 v2, 1, v2')

    T.qkv_segments(A, 2, 'sc1', after_seg=after, mid_seg=signal, first=S_NX, end=f's{S_END}')
    A.I('s_waitcnt vmcnt(0)')
    signal()
    A.label(l_nop1)
    ts_tok(A, 2)
    T.att_stage(A, P_O)
    T.att_consts(A)
    A.I(f's_load_dwordx4 s[16:19], s[0:1], {KA_W1}')
    A.I('s_waitcnt lgkmcnt(0)')
    make_srd(A, S_W1, 16, 2048 * 3584)
    make_srd(A, S_B1, 18, 3584)
    g2_setup(A)
    A.I(f's_mov_b32 s{S_PRE}, 0')
    for i in range(16):
        A.I(f'v_mov_b32 v{G1ACC + i}, 0')
    A.I(f's_mov_b32 s{S_K1}, 0')
    g1_w1_dma(A, S_K1, first=True)
    A.I(f's_lshl_b32 s{S_OPS}, s{S_G}, 1')
    masks = seg_masks()
    for g in range(7):
        A.I(f's_cmp_eq_u32 s{S_G}, {g}')
        A.I(f's_cselect_b32 s{S_MSK}, 0x{masks[g] & 0xffffffff:x}, s{S_MSK}')
        A.I(f's_cselect_b32 s{S_MSK + 1}, 0x{masks[g] >> 32:x}, s{S_MSK + 1}')
    A.I(f's_ff1_i32_b64 s{S_SEG}, s[{S_MSK}:{S_MSK + 1}]')
    A.I(f's_bitset0_b64 s[{S_MSK}:{S_MSK + 1}], s{S_SEG}')
    A.I(f's_mov_b32 s{S_AV}, 0')
    A.I(f's_lshl_b32 s{S_PB}, s{S_H}, 7')
    A.I(f's_add_u32 s{S_PB}, s{S_PB}, 0x{R.F_PROG:x}')
    R.kv_wait(A, l_exit, S_SEG, 192, s_av=S_AV, s_base=S_PB, sleep=4, vlane16=1)
    T.att_load_qkv(A, S_SEG)
    x_prefetch(A, S_SEG, sx)
    L = A.newlabel('L_p2')
    L_att = A.newlabel('L_att')
    L_fin = A.newlabel('L_p2fin')
    A.label(L)
    A.check = False
    A.I(f's_cmp_ge_u32 s{S_K1}, 16')
    A.I(f's_cbranch_scc1 {L_fin}')
    lq2 = A.newlabel('L_lp2')
    ldec = A.newlabel('L_dec')
    A.I(f's_cmp_lg_u32 s{S_WV}, 0')
    A.br(f's_cbranch_scc1 {ldec}')
    A.I(f's_lshl_b32 s{S_CA}, s{S_H}, 6')
    A.I(f's_add_u32 s{S_CA}, s{S_CA}, 0x{R.F_KMP:x}')
    A.I(f's_add_u32 s40, s{S_SEG}, 2')
    A.I(f's_lshl_b32 s{S_T1}, s{S_K1}, 4')
    A.I(f's_lshl_b32 s{S_T2}, s{S_G}, 9')
    A.I(f's_add_u32 s{S_T1}, s{S_T1}, s{S_T2}')
    A.I(f's_add_u32 s{S_T1}, s{S_T1}, 0x{F_GF + 512:x}')
    lq, lgo, lnk = A.newlabel('L_lp'), A.newlabel('L_go'), A.newlabel('L_nk')
    A.label(lq)
    A.I(f'buffer_load_dwordx4 v[192:195], off, {ws}, s{S_CA} {PLF}')
    A.I(f'buffer_load_dwordx4 v[196:199], off, {ws}, s{S_T1} {PLF}')
    A.I(f's_sub_u32 s{S_SPIN}, s{S_SPIN}, 1')
    A.I(f's_cbranch_scc1 {l_exit}')
    A.I('s_waitcnt vmcnt(0)')
    A.I('v_min_u32 v6, v192, v193')
    A.I('v_min3_u32 v6, v6, v194, v195')
    A.I(f'v_readfirstlane_b32 s{S_T0}, v6')
    A.I('v_min_u32 v7, v196, v197')
    A.I('v_min3_u32 v7, v7, v198, v199')
    A.I('v_cmp_eq_u32 vcc, 0, v7')
    A.I(f's_mov_b32 s{S_T3}, 1')
    A.I(f's_cmp_ge_u32 s{S_T0}, s40')
    A.I(f's_cbranch_scc1 {lgo}')
    A.label(lnk)
    lsl = A.newlabel('L_sl')
    A.I(f's_add_u32 s{S_T0}, s{S_T0}, 2')
    A.I(f's_cmp_ge_u32 s{S_T0}, s40')
    A.I(f's_cbranch_scc1 {lq}')
    A.I(f's_mov_b32 s{S_T3}, 2')
    A.I(f's_cbranch_vccz {lgo}')
    lns = A.newlabel('L_nsl')
    A.I(f's_mov_b32 s{S_T3}, 3')
    A.I(f's_cmp_lt_u32 s{S_SEG}, 64')
    A.I(f's_cbranch_scc1 {lns}')
    A.I(f's_cmp_lt_u32 s{S_K1}, 3')
    A.I(f's_cbranch_scc1 {lns}')
    A.I(f's_cmp_lt_u32 s{S_PRE}, 3')
    A.I(f's_cbranch_scc1 {lgo}')
    A.label(lns)
    A.I('s_sleep 4')
    A.br(f's_branch {lq}')
    A.label(lgo)
    A.I(f'v_mov_b32 v6, s{S_T3}')
    A.I(f'v_mov_b32 v7, {L_RED + 8192 - 16}')
    A.I('ds_write_b32 v7, v6')
    A.I('s_waitcnt lgkmcnt(0)')
    A.label(ldec)
    A.I('s_barrier')
    A.I(f'v_mov_b32 v7, {L_RED + 8192 - 16}')
    A.I('ds_read_b32 v6, v7')
    A.I('s_waitcnt lgkmcnt(0)')
    A.I(f'v_readfirstlane_b32 s{S_T0}, v6')
    A.I(f's_cmp_eq_u32 s{S_T0}, 1')
    A.br(f's_cbranch_scc1 {lq2}')
    lch = A.newlabel('L_ch')
    A.I(f's_cmp_eq_u32 s{S_T0}, 2')
    A.br(f's_cbranch_scc1 {lch}')
    for rnd in range(3):
        lpr = A.newlabel('L_pr')
        A.I(f's_cmp_lg_u32 s{S_PRE}, {rnd}')
        A.br(f's_cbranch_scc1 {lpr}')
        g2_pre(A, rnd)
        A.br(f's_branch {L}')
        A.label(lpr)
    A.label(lch)
    ts_tok(A, 16)
    g1_chunk(A, S_K1, l_exit)
    A.I(f's_add_u32 s{S_K1}, s{S_K1}, 1')
    if CODET:
        lct = A.newlabel('L_ct')
        A.I(f's_cmp_lg_u32 s{S_K1}, 12')
        A.br(f's_cbranch_scc1 {lct}')
        A.I(f's_lshl_b32 s{S_T0}, s{S_H}, 2')
        A.I(f's_add_u32 s{S_T0}, s{S_T0}, s{S_WV}')
        A.I(f's_cmp_lg_u32 s{S_T0}, 7')
        A.br(f's_cbranch_scc1 {L}')
        code_touch(A, L, l_exit, TAIL_BYTES, 5, 143)
        A.br(f's_branch {L}')
        A.label(lct)
    lw2 = A.newlabel('L_w2')
    A.I(f's_cmp_lg_u32 s{S_K1}, 3')
    A.br(f's_cbranch_scc1 {lw2}')
    for k in range(5):
        g2_dma(A, k)
    A.br(f's_branch {L}')
    A.label(lw2)
    A.I(f's_cmp_lg_u32 s{S_K1}, 6')
    A.br(f's_cbranch_scc1 {L}')
    A.I(f's_and_b32 s{S_T0}, s{S_J2}, 7')
    A.I(f's_cmp_lg_u32 s{S_T0}, 4')
    A.br(f's_cbranch_scc1 {L}')
    g2_touch(A, 5)
    A.br(f's_branch {L}')
    A.label(lq2)
    ts_tok(A, 10)
    T.att_load_mem(A, S_SEG, 'sc1')
    A.I('s_waitcnt vmcnt(0)')
    ts_tok(A, 11)
    A.check = True
    A.forget_loads()
    T.att_compute1(A)
    lc1, lc2 = A.newlabel('L_c2s'), A.newlabel('L_c2e')
    A.I(f's_cmp_eq_u32 s{S_FAST}, 0')
    A.br(f's_cbranch_scc1 {lc1}')
    T.att_compute2(A, S_OPS, '')
    A.br(f's_branch {lc2}')
    A.label(lc1)
    T.att_compute2(A, S_OPS, 'sc1')
    A.label(lc2)
    ts_tok(A, 12)
    A.I('s_waitcnt vmcnt(0)')
    A.I('s_barrier')
    ts_tok(A, 13)
    A.I(f's_lshl_b32 s{S_CA}, s{S_SEG}, 7')
    A.I(f's_add_u32 s{S_CA}, s{S_CA}, 0x{F_OPC:x}')
    l0 = A.newlabel('L_n0')
    A.I(f's_cmp_lg_u32 s{S_WV}, 0')
    A.br(f's_cbranch_scc1 {l0}')
    A.I(f's_lshl_b32 s{S_T1}, s{S_H}, 2')
    A.I(f's_add_u32 s{S_T1}, s{S_T1}, s{S_CA}')
    flag_store(A, S_T1, 6)
    poll_flags(A, S_CA, 32, 1, 6, 7, l_exit)
    A.label(l0)
    A.I('s_barrier')
    ts_tok(A, 14)
    red4(A, S_SEG, sx, l_exit)
    A.I(f's_ff1_i32_b64 s{S_SEG}, s[{S_MSK}:{S_MSK + 1}]')
    A.I(f's_bitset0_b64 s[{S_MSK}:{S_MSK + 1}], s{S_SEG}')
    lnn = A.newlabel('L_nn')
    A.I(f's_cmp_lt_u32 s{S_SEG}, 64')
    A.br(f's_cbranch_scc1 {lnn}')
    A.I(f's_mov_b32 s{S_SEG}, 999')
    ts_tok(A, 3)
    A.br(f's_branch {L}')
    A.label(lnn)
    lav = A.newlabel('L_av')
    A.I(f's_cmp_gt_u32 s{S_AV}, s{S_SEG}')
    A.br(f's_cbranch_scc1 {lav}')
    R.kv_wait(A, l_exit, S_SEG, 192, s_av=S_AV, s_base=S_PB, sleep=4, vlane16=1)
    A.label(lav)
    T.att_load_qkv(A, S_SEG)
    x_prefetch(A, S_SEG, sx)
    A.br(f's_branch {L}')
    A.label(L_fin)
    A.forget_loads()
    ts_tok(A, 4)
    g1_epilogue(A, l_exit)
    A.I(f's_add_u32 s{S_G}, s{S_G}, 1')
    tstamp(A, 17)
    A.label(l_g2)
    A.forget_loads()
    g2_main(A, l_exit)
    tstamp(A, 6, 8)
    if DIAG:
        A.I(f's_add_u32 s{S_T0}, s{S_G}, s{S_H}')
        A.I(f's_add_u32 s{S_T0}, s{S_T0}, s{S_WV}')
        A.I(f's_cmp_lg_u32 s{S_T0}, 0')
        A.br(f's_cbranch_scc1 {l_exit}')
        A.I('s_memrealtime s[80:81]')
        A.I('s_waitcnt lgkmcnt(0)')
        A.I('s_sub_u32 s80, s80, s58')
        A.I('v_mov_b32 v8, s60')
        A.I('v_mov_b32 v9, s61')
        A.I('v_mov_b32 v10, s80')
        A.I('v_mov_b32 v11, 0')
        A.I(f'buffer_store_dwordx4 v[8:11], off, {dbg}, 0 offset:48')
    A.label(l_exit)
    A.I('s_endpgm')


S_MSK = 56
S_OPS = 47


def seg_masks():
    c1, c2 = int(os.environ.get('C1', 14)), int(os.environ.get('C2', 27))
    m = [0] * 7
    last = {g: -100 for g in range(7)}
    for s_ in range(64):
        cand = [4, 5, 6] if s_ < c1 else ([4, 5, 6, 0, 1] if s_ < c2 else list(range(7)))
        g = min(cand, key=lambda x: last[x])
        last[g] = s_
        m[g] |= 1 << s_
    return m


def j2_calc(A):
    A.I(f's_lshr_b32 s{S_T0}, s{S_G}, 1')
    A.I(f's_lshl_b32 s{S_T0}, s{S_T0}, 3')
    A.I(f's_lshr_b32 s{S_T1}, s{S_H}, 2')
    A.I(f's_add_u32 s{S_T0}, s{S_T0}, s{S_T1}')
    A.I(f's_lshl_b32 s{S_J2}, s{S_T0}, 3')
    A.I(f's_and_b32 s{S_T0}, s{S_G}, 1')
    A.I(f's_lshl_b32 s{S_T0}, s{S_T0}, 2')
    A.I(f's_and_b32 s{S_T1}, s{S_H}, 3')
    A.I(f's_add_u32 s{S_T0}, s{S_T0}, s{S_T1}')
    A.I(f's_add_u32 s{S_J2}, s{S_J2}, s{S_T0}')


def code_touch(A, l_from, l_end, nbytes, vd, va):
    lh = A.newlabel('L_pc')
    A.I('s_getpc_b64 s[80:81]')
    A.raw(f'{lh}:')
    A.raw(f'    s_sub_u32 s80, s80, {lh}-{l_from}')
    A.raw('    s_subb_u32 s81, s81, 0')
    A.I(f'v_lshlrev_b32 v{va}, 7, v0')
    for i in range(0, nbytes, 8192):
        A.raw(f'    v_min_u32 v{va}, {l_end}-{l_from}, v{va}')
        A.raw(f'    global_load_dword v{vd}, v{va}, s[80:81]')
        A.I(f'v_add_u32 v{va}, 8192, v{va}')


def x_prefetch(A, s_seg, sx):
    A.I('v_lshrrev_b32 v6, 2, v0')
    A.I('v_lshlrev_b32 v6, 6, v6')
    A.I('v_and_b32 v7, 3, v0')
    A.I('v_lshl_add_u32 v6, v7, 3, v6')
    A.I(f's_lshl_b32 s{S_T3}, s{s_seg}, 5')
    A.I(f's_add_u32 s{S_T3}, s{S_T3}, s{S_H}')
    A.I(f's_lshl_b32 s{S_T3}, s{S_T3}, 10')
    A.I(f'buffer_load_dwordx2 v[12:13], v6, {sx}, s{S_T3} offen')
    A.I(f'buffer_load_dwordx2 v[14:15], v6, {sx}, s{S_T3} offen offset:32')


def ts_tok(A, i):
    if TIMING:
        A.I(f's_add_u32 s{S_G}, s{S_G}, 1')
        tstamp(A, i, 14 if i in (1, 2, 7, 8) else 6)
        A.I(f's_sub_u32 s{S_G}, s{S_G}, 1')


G1ACC = 120
G1T = 144
L_G1 = 0
L_RED = 65536
L_W2 = 73728


def g1_lane(A):
    t = G1T
    A.I(f'v_lshrrev_b32 v{t}, 3, v0')
    A.I(f'v_and_b32 v{t + 1}, 7, v0')
    A.I(f'v_bfe_u32 v{t + 2}, v0, 4, 1')
    A.I(f's_and_b32 s{S_T0}, s{S_WV}, 1')
    A.I(f's_lshl_b32 s{S_T0}, s{S_T0}, 1')
    A.I(f'v_or_b32 v{t + 2}, s{S_T0}, v{t + 2}')
    A.I(f'v_lshlrev_b32 v{t + 2}, 1, v{t + 2}')
    A.I(f'v_xor_b32 v{t + 1}, v{t + 1}, v{t + 2}')
    A.I(f'v_lshlrev_b32 v{t + 1}, 4, v{t + 1}')
    A.I(f'v_mul_u32_u24 v136, 3584, v{t}')
    A.I(f'v_add_u32 v136, v136, v{t + 1}')
    A.I(f'v_lshl_add_u32 v137, v{t}, 10, v{t + 1}')
    A.I(f'v_and_b32 v{t}, 15, v0')
    A.I(f'v_lshrrev_b32 v{t + 1}, 4, v0')
    A.I(f'v_lshrrev_b32 v{t + 2}, 2, v{t}')
    A.I(f'v_and_b32 v{t + 3}, 3, v{t}')
    A.I(f'v_lshl_add_u32 v{t + 4}, v{t + 1}, 3, v{t + 2}')
    A.I(f'v_lshlrev_b32 v{t + 4}, 7, v{t + 4}')
    A.I(f'v_lshl_add_u32 v{t + 4}, v{t + 3}, 3, v{t + 4}')
    A.I(f'v_lshrrev_b32 v{t + 5}, 1, v{t + 2}')
    A.I(f'v_and_b32 v{t + 6}, 1, v{t + 1}')
    A.I(f'v_lshl_add_u32 v{t + 5}, v{t + 6}, 1, v{t + 5}')
    A.I(f'v_xor_b32 v{t + 6}, s{S_T0}, v{t + 5}')
    A.I(f'v_lshl_add_u32 v138, v{t + 6}, 5, v{t + 4}')
    A.I(f'v_xor_b32 v139, 32, v138')
    A.I(f's_and_b32 s{S_T0}, s{S_WV}, 2')
    A.I(f'v_xor_b32 v{t + 6}, s{S_T0}, v{t + 5}')
    A.I(f'v_lshl_add_u32 v140, v{t + 6}, 5, v{t + 4}')
    A.I(f'v_add_u32 v140, 16384, v140')
    A.I(f'v_xor_b32 v141, 32, v140')


def g1_w1_dma(A, s_k, first=False, plus=0):
    if first:
        g1_lane(A)
    w1 = f's[{S_W1}:{S_W1 + 3}]'
    A.I(f's_add_u32 s{S_T2}, s{s_k}, {plus}')
    A.I(f's_mul_i32 s{S_T0}, s{S_T2}, {128 * 3584}')
    A.I(f's_mul_i32 s{S_T1}, s{S_WV}, {8 * 3584}')
    A.I(f's_add_u32 s{S_T0}, s{S_T0}, s{S_T1}')
    A.I(f's_lshr_b32 s{S_T1}, s{S_J}, 3')
    A.I(f's_lshl_b32 s{S_T1}, s{S_T1}, 7')
    A.I(f's_add_u32 s{S_T0}, s{S_T0}, s{S_T1}')
    A.I(f's_and_b32 s{S_T1}, s{S_T2}, 1')
    A.I(f's_lshl_b32 s{S_T1}, s{S_T1}, 15')
    A.I(f's_lshl_b32 s{S_T2}, s{S_WV}, 10')
    A.I(f's_add_u32 s{S_T1}, s{S_T1}, s{S_T2}')
    for i in range(4):
        A.I(f's_add_u32 m0, s{S_T1}, {L_G1 + i * 4096}')
        A.I(f's_add_u32 s{S_T2}, s{S_T0}, {i * 32 * 3584}')
        A.I(f'buffer_load_dwordx4 v136, {w1}, s{S_T2} offen lds')


def g1_chunk(A, s_k, l_exit):
    ws = f's[{S_WS}:{S_WS + 3}]'
    A.I(f's_lshl_b32 s{S_T0}, s{s_k}, 17')
    A.I(f's_lshl_b32 s{S_T1}, s{S_WV}, 13')
    A.I(f's_add_u32 s{S_T0}, s{S_T0}, s{S_T1}')
    A.I(f's_and_b32 s{S_T1}, s{S_J}, 7')
    A.I(f's_lshl_b32 s{S_T1}, s{S_T1}, 7')
    A.I(f's_add_u32 s{S_T0}, s{S_T0}, s{S_T1}')
    A.I(f's_add_u32 s{S_T0}, s{S_T0}, 0x{WS_HP:x}')
    A.I(f's_and_b32 s{S_T3}, s{s_k}, 1')
    A.I(f's_lshl_b32 s{S_T3}, s{S_T3}, 15')
    A.I(f's_lshl_b32 s{S_T2}, s{S_WV}, 10')
    A.I(f's_add_u32 s{S_T1}, s{S_T3}, s{S_T2}')
    for i in range(4):
        A.I(f's_add_u32 m0, s{S_T1}, {L_G1 + 16384 + i * 4096}')
        A.I(f's_add_u32 s{S_T2}, s{S_T0}, {i * 32 * 1024}')
        A.I(f'buffer_load_dwordx4 v137, {ws}, s{S_T2} offen lds')
    AD = G1T
    for j in range(4):
        A.I(f'v_add_u32 v{AD + j}, s{S_T3}, v{138 + j}')
    g1_w1_dma(A, s_k, plus=1)
    A.I('s_waitcnt vmcnt(4)')
    A.I('s_barrier')
    FR = G1T + 8

    def rd(ks):
        for j in range(4):
            for x in range(2):
                A.I(f'ds_read_b64_tr_b16 {v(FR + 16 * ks + 4 * j + 2 * x, 2)}, v{AD + j} offset:{L_G1 + (32 * ks + 4 * x) * 128}')

    rd(0)
    for ks in range(4):
        if ks < 3:
            rd(ks + 1)
            A.I('s_waitcnt lgkmcnt(8)')
        else:
            A.I('s_waitcnt lgkmcnt(0)')
        f = FR + 16 * ks
        for mbp in range(2):
            for nbp in range(2):
                d = G1ACC + (mbp * 2 + nbp) * 4
                A.I(f'v_mfma_f32_16x16x32_bf16 {v(d, 4)}, {v(f + 4 * mbp, 4)}, {v(f + 8 + 4 * nbp, 4)}, {v(d, 4)}')


def g1_epilogue(A, l_exit):
    import math
    ws, b1 = f's[{S_WS}:{S_WS + 3}]', f's[{S_B1}:{S_B1 + 3}]'
    ACC, BI, Z, Pk, TT, O = G1ACC, 150, 160, 168, 172, 188
    A.I(f's_lshr_b32 s{S_T2}, s{S_J}, 3')
    A.I(f's_lshl_b32 s{S_T0}, s{S_T2}, 7')
    A.I(f's_and_b32 s{S_T1}, s{S_WV}, 1')
    A.I(f's_lshl_b32 s{S_T1}, s{S_T1}, 6')
    A.I(f's_add_u32 s{S_T0}, s{S_T0}, s{S_T1}')
    A.I('v_lshrrev_b32 v144, 4, v0')
    A.I('v_lshlrev_b32 v144, 3, v144')
    A.I(f'buffer_load_dwordx2 v[146:147], v144, {b1}, s{S_T0} offen')
    A.I(f'buffer_load_dwordx2 v[148:149], v144, {b1}, s{S_T0} offen offset:32')
    A.I(f's_and_b32 s{S_T0}, s{S_J}, 7')
    A.I(f's_lshl_b32 s{S_T0}, s{S_T0}, 2')
    A.I(f's_and_b32 s{S_T1}, s{S_WV}, 2')
    A.I(f's_add_u32 s{S_T0}, s{S_T0}, s{S_T1}')
    A.I(f's_mul_i32 s{S_T0}, s{S_T0}, 56')
    A.I(f's_lshl_b32 s{S_T1}, s{S_T2}, 1')
    A.I(f's_add_u32 s{S_T0}, s{S_T0}, s{S_T1}')
    A.I(f's_and_b32 s{S_T1}, s{S_WV}, 1')
    A.I(f's_add_u32 s{S_T0}, s{S_T0}, s{S_T1}')
    A.I(f's_lshl_b32 s{S_T0}, s{S_T0}, 10')
    A.I(f's_add_u32 s{S_T0}, s{S_T0}, 0x{WS_U:x}')
    k1 = -2 * math.sqrt(2 / math.pi) * math.log2(math.e)
    A.I(f's_mov_b32 s{S_T2}, {f32(k1)}')
    A.I(f's_mov_b32 s{S_T3}, {f32(k1 * 0.044715)}')
    A.I('v_lshlrev_b32 v145, 4, v0')
    A.I('s_waitcnt vmcnt(0)')
    for i in range(4):
        A.I(f'v_lshlrev_b32 v{BI + 2 * i}, 16, v{146 + i}')
        A.I(f'v_and_b32 v{BI + 2 * i + 1}, 0xffff0000, v{146 + i}')
    for nbp in range(2):
        for mbp in range(2):
            for r in range(4):
                A.I(f'v_mov_b32 v{Z + 4 * mbp + r}, v{ACC + (mbp * 2 + nbp) * 4 + r}')
        T.round_bf16(A, Z, Pk)
        for i in range(8):
            A.I(f'v_add_f32 v{Z + i}, v{Z + i}, v{BI + i}')
        T.round_bf16(A, Z, Pk)
        for i in range(8):
            t = TT + i
            A.I(f'v_mul_f32 v{t}, v{Z + i}, v{Z + i}')
            A.I(f'v_mov_b32 v{t + 8}, s{S_T2}')
            A.I(f'v_fmac_f32 v{t + 8}, s{S_T3}, v{t}')
            A.I(f'v_mul_f32 v{t}, v{t + 8}, v{Z + i}')
            A.I(f'v_exp_f32 v{t}, v{t}')
        for i in range(8):
            A.I(f'v_add_f32 v{TT + i}, 1.0, v{TT + i}')
            A.I(f'v_rcp_f32 v{TT + i}, v{TT + i}')
        for i in range(8):
            A.I(f'v_mul_f32 v{Z + i}, v{Z + i}, v{TT + i}')
        o = O + 4 * nbp
        for i in range(4):
            A.I(f'v_cvt_pk_bf16_f32 v{o + i}, v{Z + 2 * i}, v{Z + 2 * i + 1}')
        A.I(f'buffer_store_dwordx4 {v(o, 4)}, v145, {ws}, s{S_T0} offen sc1')
        A.I(f's_add_u32 s{S_T0}, s{S_T0}, {56 * 1024}')
    A.I('s_waitcnt vmcnt(0)')
    A.I('s_barrier')
    l = A.newlabel('L_ue')
    A.I(f's_cmp_lg_u32 s{S_WV}, 0')
    A.br(f's_cbranch_scc1 {l}')
    A.I(f's_lshl_b32 s{S_T2}, s{S_G}, 7')
    A.I(f's_add_u32 s{S_T2}, s{S_T2}, 0x{F_LU:x}')
    A.I(f's_lshl_b32 s{S_T3}, s{S_G}, 2')
    A.I(f's_add_u32 s{S_T3}, s{S_T3}, 0x{F_GF + 256:x}')
    garrive(A, S_T2, S_T3, 144, l_exit)
    A.label(l)


def g2_slot(k):
    return L_W2 + 16384 * (k % 5)


S_PRE = 62


def g2_pre(A, rnd):
    t = G1T
    A.I(f'v_and_b32 v{t}, 15, v0')
    A.I(f'v_lshrrev_b32 v{t + 1}, 4, v0')
    A.I(f'v_lshrrev_b32 v{t + 2}, 2, v{t}')
    A.I(f'v_and_b32 v{t + 3}, 3, v{t}')
    A.I(f'v_lshl_add_u32 v{t + 2}, v{t + 1}, 2, v{t + 2}')
    A.I(f'v_bfe_u32 v{t + 1}, v{t + 2}, 1, 2')
    A.I(f'v_lshlrev_b32 v{t + 2}, 7, v{t + 2}')
    A.I(f'v_lshl_add_u32 v{t + 2}, v{t + 3}, 3, v{t + 2}')
    A.I(f'v_lshl_add_u32 v{t + 2}, v{t + 1}, 5, v{t + 2}')
    A.I(f's_lshl_b32 s{S_T0}, s{S_WV}, 12')
    A.I(f's_add_u32 s{S_T0}, s{S_T0}, {L_W2}')
    for j in range(4):
        A.I(f'v_xor_b32 v{t + 4 + j}, {32 * j}, v{t + 2}')
        A.I(f'v_add_u32 v{t + 4 + j}, s{S_T0}, v{t + 4 + j}')
        A.I(f'v_add_u32 v{t + 8 + j}, 49152, v{t + 4 + j}')
    A.I('s_waitcnt vmcnt(0)')
    A.I('s_barrier')
    ks_ = list(range(5 * rnd, min(5 * rnd + 5, 14)))
    for k in ks_:
        so = 16384 * (k % 5)
        ab = t + 4
        if so >= 49152:
            so -= 49152
            ab = t + 8
        for j in range(4):
            for x in range(2):
                A.I(f'ds_read_b64_tr_b16 {a(16 * k + 4 * j + 2 * x, 2)}, v{ab + j} offset:{so + 16 * x * 128}')
        A.I('s_waitcnt lgkmcnt(4)')
    A.I('s_waitcnt lgkmcnt(0)')
    if rnd < 2:
        A.I('s_barrier')
        for k in range(5 * rnd + 5, min(5 * rnd + 10, 14)):
            g2_dma(A, k)
    A.I(f's_mov_b32 s{S_PRE}, {rnd + 1}')


def g2_setup(A):
    A.I(f's_load_dwordx2 s[16:17], s[0:1], {KA_W2}')
    A.I('s_waitcnt lgkmcnt(0)')
    make_srd(A, S_W2, 16, 1792 * 4096)
    t = G1T
    A.I(f'v_lshrrev_b32 v{t}, 3, v0')
    A.I(f'v_and_b32 v{t + 1}, 7, v0')
    A.I(f'v_lshrrev_b32 v{t + 2}, 4, v0')
    A.I(f'v_lshlrev_b32 v{t + 2}, 1, v{t + 2}')
    A.I(f'v_xor_b32 v{t + 1}, v{t + 1}, v{t + 2}')
    A.I(f'v_lshlrev_b32 v{t + 1}, 4, v{t + 1}')
    A.I(f'v_lshl_add_u32 v142, v{t}, 12, v{t + 1}')
    A.I(f's_lshl_b32 s{S_BO2}, s{S_WV}, 15')
    A.I(f's_lshr_b32 s{S_T0}, s{S_J2}, 3')
    A.I(f's_lshl_b32 s{S_T0}, s{S_T0}, 7')
    A.I(f's_add_u32 s{S_BO2}, s{S_BO2}, s{S_T0}')
    A.I(f's_lshl_b32 s{S_LB2}, s{S_WV}, 10')


def g2_dma(A, k, vr=142):
    w2 = f's[{S_W2}:{S_W2 + 3}]'
    for i in range(4):
        A.I(f's_add_u32 m0, s{S_LB2}, {g2_slot(k) + i * 4096}')
        A.I(f's_add_u32 s{S_T0}, s{S_BO2}, {(k * 128 + i * 32) * 4096}')
        A.I(f'buffer_load_dwordx4 v{vr}, {w2}, s{S_T0} offen lds')


def g2_touch(A, k0):
    w2 = f's[{S_W2}:{S_W2 + 3}]'
    A.I('v_lshlrev_b32 v143, 12, v0')
    A.I(f's_lshr_b32 s{S_T0}, s{S_J2}, 3')
    A.I(f's_lshl_b32 s{S_T0}, s{S_T0}, 7')
    A.I(f's_lshl_b32 s{S_T1}, s{S_WV}, 18')
    A.I(f's_add_u32 s{S_T0}, s{S_T0}, s{S_T1}')
    for r0 in range(k0 * 128, 1792, 256):
        A.I(f's_add_u32 s{S_T1}, s{S_T0}, {r0 * 4096}')
        A.I(f'buffer_load_dword v5, v143, {w2}, s{S_T1} offen')


def g2_main(A, l_exit):
    ws = f's[{S_WS}:{S_WS + 3}]'
    S_O, S_B2 = S_W1, S_B1
    A.I(f's_load_dwordx4 s[16:19], s[0:1], {KA_B2}')
    for rnd in range(3):
        l = A.newlabel('L_pre')
        A.I(f's_cmp_gt_u32 s{S_PRE}, {rnd}')
        A.br(f's_cbranch_scc1 {l}')
        g2_pre(A, rnd)
        A.label(l)
        A.forget_loads()
    A.I('s_waitcnt lgkmcnt(0)')
    make_srd(A, S_B2, 16, 4096)
    make_srd(A, S_O, 18, 2048 * 1024)
    b2, out = f's[{S_B2}:{S_B2 + 3}]', f's[{S_O}:{S_O + 3}]'
    S_AO, S_EO = 36, 37
    A.I(f's_and_b32 s{S_T0}, s{S_J2}, 7')
    A.I(f's_mul_i32 s{S_AO}, s{S_T0}, {4 * 56 * 1024}')
    A.I(f's_lshl_b32 s{S_T1}, s{S_WV}, 10')
    A.I(f's_add_u32 s{S_AO}, s{S_AO}, s{S_T1}')
    A.I(f's_add_u32 s{S_AO}, s{S_AO}, 0x{WS_U:x}')
    A.I(f's_lshl_b32 s{S_T0}, s{S_T0}, 2')
    A.I(f's_add_u32 s{S_T0}, s{S_T0}, s{S_WV}')
    A.I(f's_lshr_b32 s{S_T1}, s{S_J2}, 3')
    A.I(f's_lshl_b32 s{S_EO}, s{S_T1}, 16')
    A.I(f's_lshl_b32 s{S_T0}, s{S_T0}, 5')
    A.I(f's_add_u32 s{S_EO}, s{S_EO}, s{S_T0}')
    A.I('v_lshlrev_b32 v5, 4, v0')
    A.I('v_and_b32 v1, 15, v0')
    A.I('v_lshrrev_b32 v2, 4, v0')
    A.I('v_lshlrev_b32 v3, 10, v1')
    A.I('v_lshl_add_u32 v3, v2, 3, v3')
    A.I('v_lshlrev_b32 v4, 1, v1')
    A.I(f's_lshl_b32 s{S_T1}, s{S_T1}, 7')
    HB, BB, ACC, AR = 10, 18, 24, 88
    NA = 42
    for nb in range(4):
        A.I(f'buffer_load_ushort v{BB + nb}, v4, {b2}, s{S_T1} offen offset:{32 * nb}')
    l0 = A.newlabel('L_g20')
    A.I(f's_cmp_lg_u32 s{S_WV}, 0')
    A.br(f's_cbranch_scc1 {l0}')
    A.I(f's_lshl_b32 s{S_T1}, s{S_G}, 9')
    A.I(f's_add_u32 s{S_T1}, s{S_T1}, 0x{F_GF + 256:x}')
    poll_flags(A, S_T1, 7, 1, 6, 7, l_exit, sleep=1)
    A.label(l0)
    A.I('s_waitcnt vmcnt(0)')
    A.I('s_barrier')
    tstamp(A, 5, 8)
    vmq = []

    def aload(i):
        k, db = i >> 2, i & 3
        off = db * 56 * 1024 + k * 4096
        A.I(f's_add_u32 s{S_T1}, s{S_AO}, {off}')
        A.I(f'buffer_load_dwordx4 {v(AR + 4 * (i % NA), 4)}, v5, {ws}, s{S_T1} offen')
        vmq.append(('a', i))

    def need(names):
        idx = max([i for i, p in enumerate(vmq) if p in names] + [-1])
        if idx >= 0:
            A.I(f's_waitcnt vmcnt({len(vmq) - 1 - idx})')
            del vmq[:idx + 1]

    for i in range(NA):
        aload(i)
    for nb in range(4):
        A.I(f's_add_u32 s{S_T0}, s{S_EO}, 0x{WS_H + nb * 16384:x}')
        A.I(f'buffer_load_dwordx2 {v(HB + 2 * nb, 2)}, v3, {ws}, s{S_T0} offen')
        vmq.append(('h', 0))
    for i in range(56):
        k, db = i >> 2, i & 3
        need([('a', i)])
        if i == 0 and TIMING:
            A.check = False
            tstamp(A, 19, 8)
            vmq.append(('ts', 0))
            A.check = True
        for nb in range(4):
            d = ACC + 16 * db + 4 * nb
            c = '0' if k == 0 else v(d, 4)
            A.I(f'v_mfma_f32_16x16x32_bf16 {v(d, 4)}, {v(AR + 4 * (i % NA), 4)}, {a(16 * k + 4 * nb, 4)}, {c}')
        if i + NA < 56:
            aload(i + NA)
    A.I(f's_lshl_b32 s{S_T0}, s{S_WV}, 12')
    A.I(f'v_add_u32 v6, s{S_T0}, v5')
    for db in range(4):
        for nb in range(4):
            A.I(f'ds_write_b128 v6, {v(ACC + 16 * db + 4 * nb, 4)} offset:{db * 16384 + nb * 1024}')
        A.I('s_waitcnt lgkmcnt(8)')
    A.I(f's_lshl_b32 s{S_T0}, s{S_WV}, 14')
    A.I(f'v_add_u32 v6, s{S_T0}, v5')
    A.I('s_waitcnt lgkmcnt(0)')
    A.I('s_barrier')
    for j in range(16):
        A.I(f'ds_read_b128 {v(ACC + 4 * j, 4)}, v6 offset:{1024 * j}')
        if j == 11:
            A.I('s_waitcnt lgkmcnt(8)')
    A.I('s_waitcnt lgkmcnt(0) vmcnt(0)')
    tstamp(A, 18, 8)
    for r in range(0, 16, 2):
        A.I(f'v_pk_add_f32 {v(ACC + r, 2)}, {v(ACC + r, 2)}, {v(ACC + 16 + r, 2)}')
        A.I(f'v_pk_add_f32 {v(ACC + 32 + r, 2)}, {v(ACC + 32 + r, 2)}, {v(ACC + 48 + r, 2)}')
    for r in range(0, 16, 2):
        A.I(f'v_pk_add_f32 {v(ACC + r, 2)}, {v(ACC + r, 2)}, {v(ACC + 32 + r, 2)}')
    for nb in range(4):
        d = ACC + 4 * nb
        t = 88
        A.I(f'v_cvt_pk_bf16_f32 v{t}, v{d}, v{d + 1}')
        A.I(f'v_cvt_pk_bf16_f32 v{t + 1}, v{d + 2}, v{d + 3}')
        A.I(f'v_lshlrev_b32 v{t + 2}, 16, v{BB + nb}')
        for i in range(2):
            A.I(f'v_lshlrev_b32 v{d + 2 * i}, 16, v{t + i}')
            A.I(f'v_and_b32 v{d + 2 * i + 1}, 0xffff0000, v{t + i}')
        for r in range(4):
            A.I(f'v_add_f32 v{d + r}, v{d + r}, v{t + 2}')
        A.I(f'v_cvt_pk_bf16_f32 v{t}, v{d}, v{d + 1}')
        A.I(f'v_cvt_pk_bf16_f32 v{t + 1}, v{d + 2}, v{d + 3}')
        for i in range(2):
            A.I(f'v_lshlrev_b32 v{d + 2 * i}, 16, v{t + i}')
            A.I(f'v_and_b32 v{d + 2 * i + 1}, 0xffff0000, v{t + i}')
            A.I(f'v_lshlrev_b32 v{t + 2}, 16, v{HB + 2 * nb + i}')
            A.I(f'v_and_b32 v{t + 3}, 0xffff0000, v{HB + 2 * nb + i}')
            A.I(f'v_add_f32 v{d + 2 * i}, v{d + 2 * i}, v{t + 2}')
            A.I(f'v_add_f32 v{d + 2 * i + 1}, v{d + 2 * i + 1}, v{t + 3}')
        o = 92 + 2 * nb
        A.I(f'v_cvt_pk_bf16_f32 v{o}, v{d}, v{d + 1}')
        A.I(f'v_cvt_pk_bf16_f32 v{o + 1}, v{d + 2}, v{d + 3}')
        A.I(f's_add_u32 s{S_T0}, s{S_EO}, {nb * 16384}')
        A.I(f'buffer_store_dwordx2 {v(o, 2)}, v3, {out}, s{S_T0} offen')


def red4(A, s_seg, srd_x, l_exit):
    ws = f's[{S_WS}:{S_WS + 3}]'
    B, Z, Pk, XR, t0, t1, va = 192, 144, 152, 12, 160, 161, 162
    A.I(f's_lshl_b32 s{S_T2}, s{s_seg}, 5')
    A.I(f's_add_u32 s{S_T2}, s{S_T2}, s{S_H}')
    A.I(f's_lshl_b32 s{S_T0}, s{S_OPS}, 5')
    A.I(f's_add_u32 s{S_T0}, s{S_T0}, s{S_H}')
    A.I(f's_lshl_b32 s{S_T0}, s{S_T0}, 15')
    A.I(f's_xor_b32 s{S_OPS}, s{S_OPS}, 1')
    A.I(f's_lshl_b32 s{S_T1}, s{S_WV}, 13')
    A.I(f's_add_u32 s{S_T0}, s{S_T0}, s{S_T1}')
    A.I(f's_add_u32 s{S_T0}, s{S_T0}, 0x{WS_OP:x}')
    A.I(f's_add_u32 s{S_T1}, s{S_T0}, 4096')
    for hh in range(8):
        so = S_T0 if hh < 4 else S_T1
        A.I(f'buffer_load_dwordx4 {v(B + 4 * hh, 4)}, v1, {ws}, s{so} offen offset:{1024 * (hh & 3)} sc1')
    A.I(f's_lshl_b32 s{S_T3}, s{S_T2}, 10')
    A.I(f'v_lshrrev_b32 v{va}, 2, v0')
    A.I(f'v_lshlrev_b32 v{va}, 6, v{va}')
    A.I(f'v_and_b32 v{t0}, 3, v0')
    A.I(f'v_lshl_add_u32 v{va}, v{t0}, 3, v{va}')
    for hh in range(8):
        A.I(f's_waitcnt vmcnt({7 - hh})')
        for i in range(4):
            r = B + 4 * hh + i
            if hh == 0:
                A.I(f'v_lshlrev_b32 v{Z + 2 * i}, 16, v{r}')
                A.I(f'v_and_b32 v{Z + 2 * i + 1}, 0xffff0000, v{r}')
            else:
                A.I(f'v_lshlrev_b32 v{t0}, 16, v{r}')
                A.I(f'v_and_b32 v{t1}, 0xffff0000, v{r}')
                A.I(f'v_add_f32 v{Z + 2 * i}, v{Z + 2 * i}, v{t0}')
                A.I(f'v_add_f32 v{Z + 2 * i + 1}, v{Z + 2 * i + 1}, v{t1}')
    A.I(f's_lshl_b32 s{S_T0}, s{S_WV}, 11')
    A.I(f'v_add_u32 v{t0}, s{S_T0}, v1')
    A.I(f'v_add_u32 v{t0}, {L_RED}, v{t0}')
    A.I(f'ds_write_b128 v{t0}, {v(Z, 4)}')
    A.I(f'ds_write_b128 v{t0}, {v(Z + 4, 4)} offset:1024')
    A.I('s_waitcnt lgkmcnt(0) vmcnt(0)')
    A.I('s_barrier')
    ts_tok(A, 15)
    l = A.newlabel('L_r4')
    A.I(f's_cmp_lg_u32 s{S_WV}, 0')
    A.br(f's_cbranch_scc1 {l}')
    for w_ in range(1, 4):
        for j in range(2):
            A.I(f'ds_read_b128 {v(B + 8 * w_ + 4 * j, 4)}, v{t0} offset:{2048 * w_ + 1024 * j}')
    A.I('s_waitcnt lgkmcnt(0)')
    for w_ in range(1, 4):
        for i in range(8):
            A.I(f'v_add_f32 v{Z + i}, v{Z + i}, v{B + 8 * w_ + i}')
    T.round_bf16(A, Z, Pk)
    for i in range(4):
        A.I(f'v_lshlrev_b32 v{t0}, 16, v{XR + i}')
        A.I(f'v_and_b32 v{t1}, 0xffff0000, v{XR + i}')
        A.I(f'v_add_f32 v{Z + 2 * i}, v{Z + 2 * i}, v{t0}')
        A.I(f'v_add_f32 v{Z + 2 * i + 1}, v{Z + 2 * i + 1}, v{t1}')
    T.round_bf16(A, Z, Pk)
    A.I(f's_add_u32 s{S_T0}, s{S_T3}, 0x{WS_H:x}')
    A.I(f'buffer_store_dwordx2 {v(Pk, 2)}, v{va}, {ws}, s{S_T0} offen sc1')
    A.I(f'buffer_store_dwordx2 {v(Pk + 2, 2)}, v{va}, {ws}, s{S_T0} offen offset:32 sc1')
    T.ln_regs(A, Z, t0, t1)
    T.round_bf16(A, Z, XR)
    T.ln_regs(A, Z, t0, t1)
    for i in range(4):
        A.I(f'v_cvt_pk_bf16_f32 v{XR + i}, v{Z + 2 * i}, v{Z + 2 * i + 1}')
    A.I(f's_add_u32 s{S_T0}, s{S_T3}, 0x{WS_HP:x}')
    A.I(f'buffer_store_dwordx2 {v(XR, 2)}, v{va}, {ws}, s{S_T0} offen sc1')
    A.I(f'buffer_store_dwordx2 {v(XR + 2, 2)}, v{va}, {ws}, s{S_T0} offen offset:32 sc1')
    A.I(f's_lshl_b32 s{S_T2}, s{s_seg}, 7')
    A.I(f's_add_u32 s{S_T2}, s{S_T2}, 0x{F_LH:x}')
    A.I(f's_lshl_b32 s{S_T3}, s{s_seg}, 2')
    A.I(f's_add_u32 s{S_T3}, s{S_T3}, 0x{F_GF:x}')
    A.I('s_waitcnt vmcnt(0)')
    garrive(A, S_T2, S_T3, t0, l_exit)
    A.label(l)


if __name__ == '__main__':
    A = Asm()
    nm = NAME + '_kernel'
    mega_kernel(A, nm)
    hd = header([(nm, 256, 256, R.L_TOTAL)])
    if os.environ.get('FINAL'):
        hd = hd.replace(f'@launch kernel={nm} ', '@launch ')
    txt = hd + A.text() + '.section .rodata,"a"\n' + kernel_desc(nm, 512, 256)
    out = os.environ.get('OUT', 'm3.s')
    open(out, 'w').write(txt)
    print(len(txt))
```

```python
from common import *
import os, math, struct
STAMPS = bool(os.environ.get('STAMPS'))
NSTEPS = 63
LDF = os.environ.get('LDF', 'sc1').replace('_', ' ')
STF = os.environ.get('STF', '').replace('_', ' ')
EXF = os.environ.get('EXF', 'sc1')
E = lambda k, d: int(os.environ.get(k, d))
TOUCH_AHEAD = E('TOUCH_AHEAD', 1)
PB_DELAY, PB_GAP, AF_DELAY, AF_GAP = E('PB_DELAY', 0), E('PB_GAP', 0), E('AF_DELAY', 0), E('AF_GAP', 3)
OUT = os.environ.get('OUT', 'rec_test.s')

L_QX = 0
L_KX_ = 2560
L_VM = 5120
L_AF = 7168
L_OX = L_AF
L_KV = 15360
L_WO = 31744
L_HALF = 65792
L_TOTAL = L_WO + 2 * L_HALF

PB_GRP = 8448
PB_SLOT = 0x48000

S_WS, S_W, S_DBG = 4, 8, 12
S_H, S_WV, S_STEP = 32, 33, 34
S_SPIN = 35
S_MBR, S_MBW = 36, 37
S_TAG = 47
S_PB0, S_PB1 = 38, 39
S_PB0H = 40
S_AFO = 41
S_TCH = 42
S_KVN = 44
S_KMO, S_VMO = 45, 46
S_T0, S_T1, S_T2, S_T3 = 48, 49, 50, 51
S_C = 52
S_ONE = 54
S_TS = 56
S_M0, S_M1 = 16, 18
S_W640 = 20
S_KVM0 = 62
S_W11 = 63

AF = 0
ACC = 32
KX = 56
VX = 88
T = 96
V_IDX, V_L16, V_QKW, V_QR, V_KR, V_OW, V_WO0, V_WO1, V_PBW, V_RDR, V_MBW, V_SEL, V_VX, V_SP, V_MX, V_TM = range(112, 128)
S_PZ = 43
LANE = 100

LDS_SLOT = {}
_l0 = [('q', 0, 0), ('q', 1, 0), ('q', 0, 1), ('q', 1, 1), ('k', 0, 0), ('k', 1, 0), ('o', 6, 0), ('o', 7, 0)]
_l1 = [('k', 0, 1), ('k', 1, 1), ('k', 0, 2), ('k', 1, 2), ('k', 0, 3), ('k', 1, 3), ('o', 6, 1), ('o', 7, 1)]
for i, f in enumerate(_l0):
    LDS_SLOT[f] = (0, i)
for i, f in enumerate(_l1):
    LDS_SLOT[f] = (1, i)
HOME = {}
_h = 0
for mat in 'qkv':
    for nb in range(2):
        for t in range(8):
            HOME[(mat, nb, t)] = (256 + _h * 8) if _h < 32 else (128 + (_h - 32) * 8)
            _h += 1
for t2 in range(2):
    vac = [f for f, (hf, sl) in LDS_SLOT.items() if hf == t2 and f[0] != 'o']
    assert len(vac) == 6
    for nbo in range(6):
        HOME[('o', nbo, t2)] = HOME[vac[nbo]]


def lds_frag_read(A, f, b):
    hf, sl = LDS_SLOT[f]
    va = V_WO1 if hf else V_WO0
    A.I(f'ds_read_b128 {v(b, 4)}, v{va} offset:{sl * 2048}')
    A.I(f'ds_read_b128 {v(b + 4, 4)}, v{va} offset:{sl * 2048 + 1024}')


def lane_fields(A, vt, vg, vn):
    A.I(f'v_and_b32 v{vn}, 15, v{vt}')
    A.I(f'v_bfe_u32 v{vg}, v{vt}, 4, 2')


def stage_weights(A, ptr_sgprs, hook=None, hook_issue=None, hook_check=None):
    g, n = 2, 3
    lane_fields(A, LANE, g, n)
    VD0, VD1 = 4, 5
    A.I(f'v_lshrrev_b32 v6, 5, v{LANE}')
    A.I(f's_and_b32 s{S_T0}, s{S_WV}, 1')
    A.I(f's_lshl_b32 s{S_T0}, s{S_T0}, 1')
    A.I(f'v_or_b32 v6, s{S_T0}, v6')
    A.I(f'v_lshlrev_b32 v6, 1, v6')
    A.I(f'v_xor_b32 v6, v6, v{n}')
    A.I(f'v_lshlrev_b32 v6, 4, v6')
    A.I(f'v_lshlrev_b32 v7, 13, v{g}')
    A.I(f'v_or_b32 v{VD0}, v6, v7')
    A.I(f'v_xor_b32 v{VD1}, 0x80, v{VD0}')
    A.I(f'v_lshrrev_b32 v6, 2, v{n}')
    A.I(f'v_and_b32 v7, 3, v{n}')
    A.I(f'v_and_b32 v8, 1, v6')
    A.I(f'v_lshrrev_b32 v9, 1, v6')
    A.I(f'v_and_b32 v10, 1, v{g}')
    A.I(f'v_lshrrev_b32 v11, 1, v{g}')
    A.I(f'v_lshlrev_b32 v12, 7, v11')
    A.I(f'v_lshl_add_u32 v12, v10, 1, v12')
    A.I(f'v_lshl_add_u32 v12, v8, 4, v12')
    A.I(f'v_lshl_add_u32 v12, v9, 2, v12')
    A.I(f'v_lshl_add_u32 v13, v9, 1, v10')
    A.I(f'v_lshl_add_u32 v13, v8, 2, v13')
    A.I(f's_lshl_b32 s{S_T0}, s{S_WV}, 1')
    A.I(f'v_xor_b32 v13, s{S_T0}, v13')
    A.I(f'v_lshlrev_b32 v14, 8, v12')
    A.I(f'v_lshl_add_u32 v14, v13, 5, v14')
    A.I(f'v_lshl_add_u32 v14, v7, 3, v14')
    VT = {}
    A.I(f'v_xor_b32 v15, 32, v14')
    r = 64
    for cu in range(4):
        A.I(f's_xor_b32 s{S_T0}, s{S_WV}, {cu}')
        A.I(f's_lshl_b32 s{S_T0}, s{S_T0}, 13')
        for bf in range(2):
            A.I(f's_add_u32 s{S_T1}, s{S_T0}, {L_WO + bf * L_HALF}')
            for nb in range(2):
                VT[(nb, bf, cu)] = r
                A.I(f'v_add_u32 v{r}, s{S_T1}, v{14 + nb}')
                r += 1
    A.I(f'v_lshl_add_u32 v13, v9, 1, v8')
    A.I(f'v_lshl_add_u32 v13, v10, 2, v13')
    A.I(f'v_lshlrev_b32 v14, 13, v13')
    A.I(f'v_lshl_add_u32 v14, v11, 11, v14')
    A.I(f'v_lshl_add_u32 v14, v13, 5, v14')
    A.I(f'v_lshl_add_u32 v14, v7, 3, v14')
    A.I(f's_lshl_b32 s{S_T0}, s{S_WV}, 8')
    A.I(f'v_add_u32 v14, s{S_T0}, v14')
    VTO = {0: 20, 1: 21}
    A.I(f'v_add_u32 v20, {L_WO}, v14')
    A.I(f'v_add_u32 v21, {L_WO + L_HALF}, v14')
    WOT = 32

    def dma(sc):
        buf = L_WO + (sc & 1) * L_HALF
        if sc < 6:
            mat, hh = sc >> 1, sc & 1
            make_srd(A, S_W, ptr_sgprs[mat], 512 * 8192)
            A.I(f's_lshl_b32 s{S_T0}, s{S_WV}, 15')
            A.I(f's_lshl_b32 s{S_T1}, s{S_H}, 8')
            A.I(f's_add_u32 s{S_T0}, s{S_T0}, s{S_T1}')
            A.I(f's_add_u32 s{S_T0}, s{S_T0}, {hh << 21}')
            A.I(f's_lshl_b32 s{S_T1}, s{S_WV}, 10')
            A.I(f's_add_u32 s{S_T1}, s{S_T1}, {buf}')
            for i in range(16):
                A.I(f's_mov_b32 m0, s{S_T1}')
                A.I(f'buffer_load_dwordx4 v{VD1 if i & 1 else VD0}, s[{S_W}:{S_W + 3}], s{S_T0} offen lds')
                if i < 15:
                    A.I(f's_add_u32 s{S_T0}, s{S_T0}, {4 * 32768}')
                    A.I(f's_add_u32 s{S_T1}, s{S_T1}, 4096')
        else:
            t2 = sc & 1
            make_srd(A, S_W, ptr_sgprs[3], 4096 * 1024)
            A.I(f's_and_b32 s{S_T0}, s{S_WV}, 1')
            A.I(f's_lshl_b32 s{S_T0}, s{S_T0}, 13')
            A.I(f's_lshr_b32 s{S_T1}, s{S_WV}, 1')
            A.I(f's_lshl_b32 s{S_T1}, s{S_T1}, 15')
            A.I(f's_add_u32 s{S_T0}, s{S_T0}, s{S_T1}')
            A.I(f's_lshl_b32 s{S_T1}, s{S_H}, 17')
            A.I(f's_add_u32 s{S_T0}, s{S_T0}, s{S_T1}')
            A.I(f's_add_u32 s{S_T0}, s{S_T0}, {t2 << 16}')
            A.I(f's_lshl_b32 s{S_T1}, s{S_WV}, 11')
            A.I(f's_add_u32 s{S_T1}, s{S_T1}, {buf}')
            for f in range(8):
                for x in range(2):
                    row = (f & 1) + 2 * x + 4 * ((f >> 1) & 1) + 16 * (f >> 2)
                    A.I(f's_add_u32 s{S_T2}, s{S_T1}, {(8 * f + x) * 1024 + 32 * f}')
                    A.I(f's_add_u32 s{S_T3}, s{S_T0}, {row * 1024}')
                    A.I(f's_mov_b32 m0, s{S_T2}')
                    A.I(f'buffer_load_dwordx4 v{V_L16}, s[{S_W}:{S_W + 3}], s{S_T3} offen lds')

    dma(0)
    dma(1)
    if hook:
        hook()
    for sc in range(8):
        A.I(f's_waitcnt vmcnt({16 if sc < 7 else 0})')
        A.I('s_barrier')
        if sc == 7 and hook_check:
            hook_check()
        cnt = 0
        if sc < 6:
            mat, hh = 'qkv'[sc >> 1], sc & 1
            for nb in range(2):
                for t in range(8):
                    for x in range(2):
                        c, nhi = t >> 1, t & 1
                        imm = (8 * nhi + x) * 256
                        if cnt >= 12:
                            A.I('s_waitcnt lgkmcnt(8)')
                            cnt = 8
                        A.I(f'ds_read_b64_tr_b16 {u(HOME[(mat, nb, t)] + 4 * hh + 2 * x, 2)}, v{VT[(nb, sc & 1, c)]} offset:{imm}')
                        cnt += 1
        else:
            for nbo in range(8):
                for hh in range(2):
                    for x in range(2):
                        imm = (x + 4 * hh) * 1024 + 32 * nbo
                        if cnt >= 12:
                            A.I('s_waitcnt lgkmcnt(8)')
                            cnt = 8
                        A.I(f'ds_read_b64_tr_b16 {v(WOT + nbo * 8 + 4 * hh + 2 * x, 2)}, v{VTO[sc & 1]} offset:{imm}')
                        cnt += 1
        A.I('s_waitcnt lgkmcnt(0)')
        A.I('s_barrier')
        if sc + 2 < 8:
            dma(sc + 2)
        if sc in (3, 5) and hook_issue:
            hook_issue(sc)
        if sc >= 6:
            t2 = sc & 1
            va = V_WO1 if t2 else V_WO0
            k = 0
            for f, (hf, sl) in LDS_SLOT.items():
                if hf != t2:
                    continue
                src = (WOT + f[1] * 8) if f[0] == 'o' else HOME[f]
                for hh in range(2):
                    A.I(f'ds_write_b128 v{va}, {u(src + 4 * hh, 4)} offset:{sl * 2048 + hh * 1024}')
                k += 1
                if k & 1 == 0:
                    A.I('s_waitcnt lgkmcnt(4)')
            A.I('s_waitcnt lgkmcnt(0)')
            for nbo in range(6):
                hm = HOME[('o', nbo, t2)]
                for r in range(8):
                    if hm >= 256:
                        A.I(f'v_accvgpr_write_b32 a{hm - 256 + r}, v{WOT + nbo * 8 + r}')
                    else:
                        A.I(f'v_mov_b32 v{hm + r}, v{WOT + nbo * 8 + r}')


def setup_consts(A):
    g, n = 2, 3
    lane_fields(A, LANE, g, n)
    A.I(f's_lshl_b32 s{S_W11}, s{S_WV}, 11')
    A.I(f'v_bfe_u32 v4, v{n}, 1, 1')
    A.I(f'v_mul_u32_u24 v4, 0xaaaa, v4')
    A.I(f'v_add_u32 v{V_IDX}, 0x4444, v4')
    A.I(f'v_lshlrev_b32 v{V_L16}, 4, v{LANE}')
    A.I(f's_mul_i32 s{S_T0}, s{S_WV}, 640')
    A.I(f'v_lshrrev_b32 v4, 2, v{n}')
    A.I(f'v_mul_u32_u24 v4, 160, v4')
    A.I(f'v_lshl_add_u32 v4, v{g}, 4, v4')
    A.I(f'v_and_b32 v5, 3, v{n}')
    A.I(f'v_lshl_add_u32 v4, v5, 2, v4')
    A.I(f'v_add_u32 v{V_QKW}, s{S_T0}, v4')
    A.I(f'v_mul_u32_u24 v6, 160, v{g}')
    A.I(f'v_and_b32 v4, 1, v{n}')
    A.I(f'v_bfe_u32 v5, v{n}, 1, 2')
    A.I(f'v_lshl_add_u32 v4, v4, 2, v5')
    A.I(f'v_lshl_add_u32 v{V_QR}, v4, 4, v6')
    A.I(f'v_and_b32 v4, 1, v{n}')
    A.I(f'v_lshrrev_b32 v5, 2, v{n}')
    A.I(f'v_and_b32 v7, 2, v{n}')
    A.I(f'v_xor_b32 v5, v5, v7')
    A.I(f'v_lshl_add_u32 v4, v4, 2, v5')
    A.I(f'v_lshl_add_u32 v{V_KR}, v4, 4, v6')
    A.I(f'v_add_u32 v{V_KR}, {L_KX_}, v{V_KR}')
    A.I(f's_lshl_b32 s{S_T0}, s{S_WV}, 9')
    A.I(f's_add_u32 s{S_T0}, s{S_T0}, {L_OX}')
    A.I(f'v_lshrrev_b32 v4, 1, v{g}')
    A.I(f'v_lshlrev_b32 v4, 8, v4')
    A.I(f'v_lshrrev_b32 v5, 1, v{n}')
    A.I(f'v_lshl_add_u32 v4, v5, 6, v4')
    A.I(f'v_and_b32 v5, 1, v{g}')
    A.I(f'v_lshl_add_u32 v4, v5, 5, v4')
    A.I(f'v_and_b32 v5, 1, v{n}')
    A.I(f'v_lshl_add_u32 v4, v5, 4, v4')
    A.I(f'v_add_u32 v4, s{S_T0}, v4')
    A.I(f'v_add_u32 v5, {L_QX}, v{V_L16}')
    A.I(f'v_cmp_gt_u32 vcc, 8, v{n}')
    A.I(f'v_cndmask_b32 v{V_OW}, v5, v4, vcc')
    A.I(f's_lshl_b32 s{S_T0}, s{S_WV}, 14')
    A.I(f's_add_u32 s{S_T0}, s{S_T0}, {L_WO}')
    A.I(f'v_add_u32 v{V_WO0}, s{S_T0}, v{V_L16}')
    A.I(f'v_add_u32 v{V_WO1}, {L_HALF}, v{V_WO0}')
    A.I(f'v_add_u32 v{V_VX}, s{S_W11}, v{V_L16}')
    A.I(f'v_lshrrev_b32 v4, 3, v{n}')
    A.I(f'v_lshl_add_u32 v4, v{g}, 1, v4')
    A.I(f'v_mul_u32_u24 v4, {PB_GRP}, v4')
    A.I(f'v_and_b32 v5, 7, v{n}')
    A.I(f'v_lshl_add_u32 v4, v5, 4, v4')
    A.I(f's_mul_i32 s{S_T0}, s{S_WV}, {8 * PB_GRP}')
    A.I(f's_lshl_b32 s{S_T1}, s{S_H}, 8')
    A.I(f's_add_u32 s{S_T0}, s{S_T0}, s{S_T1}')
    A.I(f'v_add_u32 v{V_PBW}, s{S_T0}, v4')
    A.I(f's_mul_i32 s{S_T0}, s{S_H}, {PB_GRP}')
    A.I(f's_add_u32 s{S_PZ}, s{S_T0}, s{S_W11}')
    A.I(f's_lshl_b32 s{S_T1}, s{S_WV}, 7')
    A.I(f's_add_u32 s{S_T0}, s{S_T0}, s{S_T1}')
    A.I(f'v_lshlrev_b32 v4, 8, v{g}')
    A.I(f'v_lshl_add_u32 v4, v{n}, 3, v4')
    A.I(f'v_add_u32 v{V_RDR}, s{S_T0}, v4')
    A.I(f's_and_b32 s{S_T1}, s{S_H}, 1')
    A.I(f's_lshl_b32 s{S_T1}, s{S_T1}, 10')
    A.I(f's_lshl_b32 s{S_T0}, s{S_WV}, 12')
    A.I(f's_add_u32 s{S_T0}, s{S_T0}, s{S_T1}')
    A.I(f's_lshr_b32 s{S_T1}, s{S_H}, 1')
    A.I(f's_lshl_b32 s{S_T1}, s{S_T1}, 6')
    A.I(f's_add_u32 s{S_T0}, s{S_T0}, s{S_T1}')
    A.I(f'v_lshrrev_b32 v4, 3, v{n}')
    A.I(f'v_lshlrev_b32 v4, 5, v4')
    A.I(f'v_and_b32 v5, 1, v{n}')
    A.I(f'v_lshl_add_u32 v4, v5, 11, v4')
    A.I(f'v_bfe_u32 v5, v{n}, 1, 2')
    A.I(f'v_lshl_add_u32 v4, v5, 2, v4')
    A.I(f'v_add_u32 v4, s{S_T0}, v4')
    A.I(f'v_mov_b32 v5, 0x7f000000')
    A.I(f'v_cmp_gt_u32 vcc, 16, v{LANE}')
    A.I(f'v_cndmask_b32 v{V_MBW}, v5, v4, vcc')
    A.I(f'v_mov_b32 v4, 0x3f80')
    A.I(f'v_mov_b32 v5, 0x3f800000')
    A.I(f'v_and_b32 v6, 1, v{n}')
    A.I(f'v_cmp_eq_u32 vcc, 1, v6')
    A.I(f'v_cndmask_b32 v{V_SEL}, v4, v5, vcc')
    A.I(f'v_lshrrev_b32 v6, 1, v{n}')
    A.I(f'v_cmp_eq_u32 s[{S_M0}:{S_M0 + 1}], 0, v6')
    A.I(f'v_cmp_eq_u32 s[{S_M1}:{S_M1 + 1}], 1, v6')
    c = (128 ** -0.5) * math.log2(math.e)
    cb = struct.unpack("<I", struct.pack("<f", c))[0]
    A.I(f's_mov_b32 s{S_C}, 0x{cb:08x}')
    A.I(f's_mov_b32 s{S_C + 1}, 0x{cb:08x}')
    A.I(f's_mov_b32 s{S_ONE}, 0x3f803f80')
    A.I(f's_mov_b32 s{S_ONE + 1}, 0x3f803f80')


def init_exchange(A, s_mem0, st, rb=0):
    ws = f's[{S_WS}:{S_WS + 3}]'
    import re as _re
    _I = A.I

    def I(t):
        t = _re.sub(r'\bv(\d+)\b', lambda m: f'v{int(m.group(1)) + rb}' if int(m.group(1)) < 16 else m.group(0), t)
        t = t.replace('v[4:7]', f'v[{4 + rb}:{7 + rb}]')
        _I(t)
    for r in range(4, 8):
        I(f'v_mov_b32 v{r}, -1')
    for r in range(3):
        I(f's_add_u32 s{S_T0}, s{S_PZ}, 0x{WS_PB + r * PB_SLOT:x}')
        for c in range(2):
            I(f'buffer_store_dwordx4 v[4:7], v{V_L16}, {ws}, s{S_T0} offen offset:{1024 * c} {st}')
    le = A.newlabel('L_ie')
    I(f's_cmp_ge_u32 s{S_WV}, 2')
    A.br(f's_cbranch_scc1 {le}')
    I(f's_mov_b32 s{S_T0}, 0x{WS_MB + 8192:x}')
    I(f'buffer_store_dword v4, v{V_MBW}, {ws}, s{S_T0} offen {st}')
    I(f'buffer_store_dword v4, v{V_MBW}, {ws}, s{S_T0} offen offset:16 {st}')
    make_srd(A, S_W, s_mem0, 8192)
    n = 3
    I(f'v_and_b32 v{n}, 15, v{LANE}')
    I(f's_bfe_u32 s{S_T0}, s{S_H}, 0x20001')
    I(f's_lshl_b32 s{S_T0}, s{S_T0}, 11')
    I(f's_lshr_b32 s{S_T1}, s{S_H}, 3')
    I(f's_lshl_b32 s{S_T1}, s{S_T1}, 8')
    I(f's_add_u32 s{S_T0}, s{S_T0}, s{S_T1}')
    I(f's_lshl_b32 s{S_T1}, s{S_WV}, 7')
    I(f's_add_u32 s{S_T0}, s{S_T0}, s{S_T1}')
    I(f's_and_b32 s{S_T1}, s{S_H}, 1')
    I(f's_lshl_b32 s{S_T1}, s{S_T1}, 4')
    I(f's_add_u32 s{S_T0}, s{S_T0}, s{S_T1}')
    I(f'v_and_b32 v12, 1, v{n}')
    I(f'v_lshlrev_b32 v12, 6, v12')
    I(f'v_lshrrev_b32 v13, 1, v{n}')
    I(f'v_lshl_add_u32 v12, v13, 1, v12')
    w = f's[{S_W}:{S_W + 3}]'
    I(f'buffer_load_ushort v8, v12, {w}, s{S_T0} offen')
    I(f'buffer_load_ushort v9, v12, {w}, s{S_T0} offen offset:32')
    I(f'buffer_load_ushort v10, v12, {w}, s{S_T0} offen offset:1024')
    I(f'buffer_load_ushort v11, v12, {w}, s{S_T0} offen offset:1056')
    I('s_waitcnt vmcnt(0)')
    I('v_lshl_or_b32 v8, v9, 16, v8')
    I('v_lshl_or_b32 v10, v11, 16, v10')
    I('v_min_u32 v8, -2, v8')
    I('v_min_u32 v10, -2, v10')
    I(f's_mov_b32 s{S_T0}, 0x{WS_MB:x}')
    I(f'buffer_store_dword v8, v{V_MBW}, {ws}, s{S_T0} offen {st}')
    I(f'buffer_store_dword v10, v{V_MBW}, {ws}, s{S_T0} offen offset:16 {st}')
    A.label(le)
    I('s_waitcnt vmcnt(0)')


HS = [('q', 0, 0), ('q', 1, 0), ('q', 0, 1), ('q', 1, 1), ('k', 0, 0), ('k', 1, 0), ('k', 0, 1), ('k', 1, 1)]
QBUF = dict(zip(HS, [KX, KX + 8, KX + 16, KX + 24, VX, T, T + 8, ACC + 16]))


def zero(A, r0, n):
    for i in range(0, n, 2):
        A.I(f'v_mov_b64 {v(r0 + i, 2)}, 0')


def q_prefetch(A, part=None):
    for i, f in enumerate(HS):
        if part is not None and (i >> 2) != part:
            continue
        lds_frag_read(A, f, QBUF[f])
        if i == 5:
            A.I('s_waitcnt lgkmcnt(8)')


def kv_dma(A):
    ws = f's[{S_WS}:{S_WS + 3}]'
    A.I(f's_mov_b32 m0, s{S_KVM0}')
    A.I(f's_add_u32 s{S_T0}, s{S_KVN}, 0x{WS_VF - WS_KF:x}')
    A.I(f'buffer_load_dwordx4 v{V_L16}, {ws}, s{S_KVN} offen lds')
    A.I(f'buffer_load_dwordx4 v{V_L16}, {ws}, s{S_KVN} offen offset:1024 lds')
    A.I(f's_add_u32 m0, s{S_KVM0}, 8192')
    A.I(f's_add_u32 s{S_KVN}, s{S_KVN}, 0x40000')
    A.I(f'buffer_load_dwordx4 v{V_L16}, {ws}, s{S_T0} offen lds')
    A.I(f'buffer_load_dwordx4 v{V_L16}, {ws}, s{S_T0} offen offset:1024 lds')


S_AV, S_RA, S_KP = 21, 22, 24
F_KMP = WS_FLAG + 0x3000
F_PROG = WS_FLAG


def kv_eval(A, vt, vlane16, s_av):
    p, t, u_ = vt, vt + 1, vt + 2
    A.I(f'v_bfe_u32 v{t}, v{vlane16}, 6, 1')
    A.I(f'v_lshl_add_u32 v{t}, v{p}, 1, v{t}')
    A.I(f'v_bfe_u32 v{u_}, v{vlane16}, 7, 1')
    A.I(f'v_lshl_add_u32 v{t}, v{u_}, 5, v{t}')
    A.I(f'v_cmp_le_u32 vcc, 16, v{p}')
    A.I(f'v_mov_b32 v{u_}, 64')
    A.I(f'v_cndmask_b32 v{t}, v{t}, v{u_}, vcc')
    for k in (8, 4, 2, 1):
        A.I(f'v_min_u32_dpp v{t}, v{t}, v{t} row_ror:{k} row_mask:0xf bank_mask:0xf')
    A.I(f'v_readfirstlane_b32 s{s_av}, v{t}')


def kv_load(A, vt, vlane16, s_base):
    ws = f's[{S_WS}:{S_WS + 3}]'
    A.I(f'v_lshrrev_b32 v{vt + 1}, 2, v{vlane16}')
    A.I(f'v_and_b32 v{vt + 1}, 0x7c, v{vt + 1}')
    A.I(f'buffer_load_dword v{vt}, v{vt + 1}, {ws}, s{s_base} offen sc1')


def kv_wait(A, l_exit, s_need, vt, s_av=S_AV, s_base=S_RA, sleep=0, vlane16=V_L16):
    l = A.newlabel('L_kvw')
    A.label(l)
    kv_load(A, vt, vlane16, s_base)
    A.I(f's_sub_u32 s{S_SPIN}, s{S_SPIN}, 1')
    A.I(f's_cbranch_scc1 {l_exit}')
    A.I('s_waitcnt vmcnt(0)')
    kv_eval(A, vt, vlane16, s_av)
    if sleep:
        ld = A.newlabel('L_kvd')
        A.I(f's_cmp_gt_u32 s{s_av}, s{s_need}')
        A.I(f's_cbranch_scc1 {ld}')
        A.I(f's_sleep {sleep}')
        A.br(f's_branch {l}')
        A.label(ld)
    else:
        A.I(f's_cmp_le_u32 s{s_av}, s{s_need}')
        A.br(f's_cbranch_scc1 {l}')


def main_loop(A, st, l_exit, kvcheck=False):
    ws = f's[{S_WS}:{S_WS + 3}]'
    A.I(f's_mov_b32 s{S_STEP}, 0')
    A.I(f's_mov_b32 s{S_MBR}, 0x{WS_MB:x}')
    A.I(f's_mov_b32 s{S_MBW}, 0x{WS_MB + 8192:x}')
    A.I(f's_mov_b32 s{S_PB0}, 0x{WS_PB:x}')
    A.I(f's_mov_b32 s{S_PB1}, 0x{WS_PB + PB_SLOT:x}')
    A.I(f's_lshl_b32 s{S_KMO}, s{S_H}, 12')
    A.I(f's_lshl_b32 s{S_T0}, s{S_WV}, 10')
    A.I(f's_add_u32 s{S_KMO}, s{S_KMO}, s{S_T0}')
    A.I(f's_add_u32 s{S_KMO}, s{S_KMO}, 0x{WS_KM - 0x20000:x}')
    A.I(f's_mul_i32 s{S_W640}, s{S_WV}, 640')
    A.I(f's_lshl_b32 s{S_VMO}, s{S_H}, 11')
    A.I(f's_lshl_b32 s{S_T0}, s{S_WV}, 9')
    A.I(f's_add_u32 s{S_VMO}, s{S_VMO}, s{S_T0}')
    A.I(f's_add_u32 s{S_VMO}, s{S_VMO}, 0x{WS_VM - 0x10000:x}')
    A.I(f's_lshr_b32 s{S_T0}, s{S_WV}, 1')
    A.I(f's_mul_i32 s{S_TCH}, s{S_T0}, 0x{WS_VF - WS_KF:x}')
    A.I(f's_and_b32 s{S_T0}, s{S_WV}, 1')
    A.I(f's_lshl_b32 s{S_T0}, s{S_T0}, 12')
    A.I(f's_add_u32 s{S_TCH}, s{S_TCH}, s{S_T0}')
    A.I(f's_lshl_b32 s{S_T0}, s{S_H}, 13')
    A.I(f's_add_u32 s{S_TCH}, s{S_TCH}, s{S_T0}')
    A.I(f's_add_u32 s{S_TCH}, s{S_TCH}, 0x{WS_KF + TOUCH_AHEAD * 0x40000:x}')

    NST = 12
    order = []

    def stamp(i):
        if not STAMPS:
            return
        order.append(i)
        A.raw(f'    s_memtime s[{64 + 2 * i}:{65 + 2 * i}]')
        A.pos += 1

    def stamp_acc():
        if not STAMPS:
            return
        A.I('s_waitcnt lgkmcnt(0)')
        if E('RAW', 0):
            lk = A.newlabel('L_raw')
            A.I(f's_cmp_lg_u32 s{S_STEP}, {E("RAW", 0)}')
            A.I(f's_cbranch_scc1 {lk}')
            for i in range(NST):
                if i != 6:
                    A.I(f's_mov_b32 s{88 + i}, s{64 + 2 * i}')
            A.label(lk)
            lk = A.newlabel('L_raw')
            A.I(f's_cmp_lg_u32 s{S_STEP}, {E("RAW", 0) - 1}')
            A.I(f's_cbranch_scc1 {lk}')
            A.I(f's_mov_b32 s{88 + 6}, s{64 + 12}')
            A.label(lk)
            return
        prev = 100
        for i in order:
            A.I(f's_sub_u32 s101, s{64 + 2 * i}, s{prev}')
            A.I(f's_add_u32 s{88 + i}, s{88 + i}, s101')
            prev = 64 + 2 * i
        A.I(f's_mov_b32 s100, s{prev}')
    if STAMPS:
        for i in range(NST):
            A.I(f's_mov_b32 s{88 + i}, 0')
        A.I(f's_memtime s[64:65]')
        A.I('s_waitcnt lgkmcnt(0)')
        for i in range(NST):
            A.I(f's_mov_b32 s{64 + 2 * i}, s64')
        A.I(f's_mov_b32 s100, s64')

    L_top = A.newlabel('L_rec')
    L_af = A.newlabel('L_afpoll')
    L_red = A.newlabel('L_red')
    L_bh = A.newlabel('L_bh')
    L_w23 = A.newlabel('L_w23')
    L_fin = A.newlabel('L_fin')
    HS_ = E('HSTAMP', 0)
    _stamp = stamp
    if HS_:
        order.extend([2, 3, 7, 9, 10])

    def hstamp(i):
        if STAMPS and HS_:
            A.raw(f'    s_memtime s[{64 + 2 * i}:{65 + 2 * i}]')
            A.pos += 1

    def stamp(i):
        if HS_ and i in (2, 3, 9, 10):
            return
        if HS_ and i == 7:
            return hstamp(7)
        _stamp(i)

    L_pslow = A.newlabel('L_pslow')
    L_aslow = A.newlabel('L_aslow')
    L_afok = A.newlabel('L_afok')
    L_afchk = A.newlabel('L_afchk')
    RA, RB, SEL, RD = 0, 16, ACC + 8, ACC + 12
    mx, tm = V_MX, V_TM
    TWO_PB, TWO_AF = E('TWO_PB', 1), E('TWO_AF', 1)

    def addr3():
        A.I(f'v_xor_b32 v{V_MX}, 2048, v{V_VX}')
        A.I(f'v_xor_b32 v{V_TM}, 4096, v{V_VX}')
        A.I(f'v_xor_b32 v{V_SP}, 6144, v{V_VX}')

    A.I(f's_mov_b32 s{S_TAG}, 0')
    zero(A, ACC, 8)
    q_prefetch(A)
    A.br(f's_branch {L_af}')

    def pb_loads(b):
        for i in range(8):
            so = S_PB0 if i < 4 else S_PB0H
            A.I(f'buffer_load_dwordx2 {v(b + 2 * i, 2)}, v{V_RDR}, {ws}, s{so} offen offset:{(i & 3) * 1024} {LDF}')

    def red(b, base):
        for i in range(4):
            A.I(f's_waitcnt vmcnt({base + 6 - 2 * i})')
            c = '0' if i == 0 else v(RD, 4)
            A.I(f'v_mfma_f32_16x16x32_bf16 {v(RD, 4)}, {v(SEL, 4)}, {v(b + 4 * i, 4)}, {c}')
            r = b + 4 * i
            tt = 0
            for idx in range(8):
                a_, b_, s_ = (idx >> 2) & 1, (idx >> 1) & 1, idx & 1
                if (a_ ^ s_) | (b_ ^ s_):
                    tt |= 1 << idx
            d = mx if i == 0 else tm
            A.I(f'v_bitop3_b32 v{d}, v{r}, v{r + 2}, s{S_TAG} bitop3:0x{tt:x}')
            if i:
                A.I(f'v_or_b32 v{mx}, v{mx}, v{tm}')
        A.I(f'v_and_b32 v{mx}, 1, v{mx}')
        A.I(f'v_cmp_eq_u32 vcc, 1, v{mx}')

    def af_loads(b):
        for i in range(2):
            A.I(f'buffer_load_dwordx4 {v(b + 4 * i, 4)}, v{V_L16}, {ws}, s{S_AFO} offen offset:{i * 1024} {LDF}')

    def af_chk(b, tmp):
        A.I(f'ds_write_b128 v{V_VX}, {v(b, 4)} offset:{L_AF}')
        A.I(f'v_max3_u32 v{tmp}, v{b}, v{b + 1}, v{b + 2}')
        A.I(f'v_max3_u32 v{tmp}, v{tmp}, v{b + 3}, v{b + 4}')
        A.I(f'ds_write_b128 v{V_VX}, {v(b + 4, 4)} offset:{L_AF + 1024}')
        A.I(f'v_max3_u32 v{tmp}, v{tmp}, v{b + 5}, v{b + 6}')
        A.I(f'v_max_u32 v{tmp}, v{tmp}, v{b + 7}')
        A.I(f'v_cmp_eq_u32 vcc, -1, v{tmp}')

    A.raw('.p2align 6')
    A.label(L_top)
    A.forget_loads()
    A.check = False
    red(RA, 8 if TWO_PB else 0)
    hstamp(3)
    A.I(f's_cbranch_vccnz {L_pslow}')
    A.label(L_red, flush=False)
    A.I(f'v_mov_b32 v{tm}, -1')
    A.I('s_nop 2')
    A.I(f'v_cvt_pk_bf16_f32 v{RD}, v{RD}, v{RD + 1}')
    A.I(f'v_cvt_pk_bf16_f32 v{RD + 2}, v{RD + 2}, v{RD + 3}')
    A.I(f'buffer_store_dword v{RD}, v{V_MBW}, {ws}, s{S_MBW} offen {st}')
    A.I(f'buffer_store_dword v{RD + 2}, v{V_MBW}, {ws}, s{S_MBW} offen offset:16 {st}')
    A.I(f'buffer_store_dword v{tm}, v{V_MBW}, {ws}, s{S_MBR} offen {st}')
    A.I(f'buffer_store_dword v{tm}, v{V_MBW}, {ws}, s{S_MBR} offen offset:16 {st}')
    A.label(L_bh, flush=False)
    stamp(7)
    A.I('s_barrier')
    A.I(f's_mov_b32 s{S_T0}, s{S_MBR}')
    A.I(f's_mov_b32 s{S_MBR}, s{S_MBW}')
    A.I(f's_mov_b32 s{S_MBW}, s{S_T0}')
    A.I(f's_mov_b32 s{S_T0}, s{S_PB0}')
    A.I(f's_mov_b32 s{S_PB0}, s{S_PB1}')
    A.I(f's_mov_b32 s{S_PB1}, s{S_T0}')
    A.I(f's_add_u32 s{S_STEP}, s{S_STEP}, 1')
    A.I(f's_bfe_u32 s{S_TAG}, s{S_STEP}, 0x10001')
    A.label(L_af, flush=False)
    A.I(f's_add_u32 s{S_AFO}, s{S_MBR}, s{S_W11}')
    zero(A, ACC + 8, 8)
    addr3()
    for i in range(AF_DELAY):
        A.I('s_nop 7')
    ASETS = [0, 24, 16]
    af_loads(0)
    hstamp(9)
    for b in ASETS[1:]:
        for i in range(AF_GAP):
            A.I('s_nop 7')
        af_loads(b)

    def mf(mat, nb, t, src=None):
        acc = ACC + ('qkv'.index(mat) * 2 + nb) * 4
        if src is None:
            src = QBUF.get((mat, nb, t))
        b = v(src, 8) if src is not None else u(HOME[(mat, nb, t)], 8)
        A.I(f'v_smfmac_f32_16x16x64_bf16 {v(acc, 4)}, {v(AF + 4 * t, 4)}, {b}, v{V_IDX}')

    A.label(L_afchk, flush=False)
    A.I(f's_waitcnt vmcnt(4) lgkmcnt(0)')
    A.label(L_afok, flush=False)
    hstamp(10)
    tmp = 8
    A.I(f'ds_write_b128 v{V_VX}, {v(0, 4)} offset:{L_AF}')
    A.I(f'ds_write_b128 v{V_VX}, {v(4, 4)} offset:{L_AF + 1024}')
    mf('q', 0, 0)
    A.I(f'v_max3_u32 v{tmp}, v0, v1, v2')
    A.I(f'v_max3_u32 v{tmp}, v{tmp}, v3, v4')
    mf('q', 1, 0)
    A.I(f'v_max3_u32 v{tmp}, v{tmp}, v5, v6')
    A.I(f'v_max_u32 v{tmp}, v{tmp}, v7')
    A.I(f'v_cmp_eq_u32 vcc, -1, v{tmp}')
    A.I(f's_cbranch_vccnz {L_aslow}')
    stamp(8)
    A.check = True
    A.forget_loads()
    A.I('s_waitcnt lgkmcnt(0)')
    A.I('s_barrier')
    stamp(0)
    pend = []
    ar = {1: V_MX, 2: V_TM, 3: V_SP}
    hs = [('q', 0, 1), ('q', 1, 1), ('k', 0, 0), ('k', 1, 0), ('k', 0, 1), ('k', 1, 1)]

    def afr(uu):
        A.I(f'ds_read_b128 {v(AF + 4 * uu, 4)}, v{ar[uu >> 1]} offset:{L_AF + 1024 * (uu & 1)}')
        pend.append(('af', uu))
    afr(2); afr(3)
    mf(*hs[0])
    A.I(f'v_lshlrev_b32 v{V_MX}, 2, v{V_L16}')
    mf(*hs[1])
    mf(*hs[2])
    mf(*hs[3])
    KBUF = {}

    def kload(nb, t, b):
        KBUF[(nb, t)] = b
        lds_frag_read(A, ('k', nb, t), b)
        pend.extend([('k', t), ('k', t)])

    kload(0, 2, QBUF[('q', 0, 0)])
    mf(*hs[4])
    kload(1, 2, QBUF[('q', 1, 0)])
    mf(*hs[5])
    A.I('s_waitcnt vmcnt(0)')
    for uu in range(4, 8):
        afr(uu)
    A.I(f'v_lshrrev_b32 v{V_TM}, 2, v{V_L16}')
    if kvcheck:
        L_kvc, L_kvr = A.newlabel('L_kvc'), A.newlabel('L_kvr')
        A.I(f's_add_u32 s23, s{S_STEP}, 1')
        A.I(f's_cmp_ge_u32 s23, s{S_AV}')
        A.I(f's_cbranch_scc1 {L_kvc}')
        A.label(L_kvr, flush=False)
    if not E('NODMA', 0):
        A.I(f'buffer_load_dword v{V_SP}, v{V_MX}, {ws}, s{S_TCH} offen')
    if kvcheck:
        A.check = False
        A.I(f'buffer_load_dword v{V_SP}, v{V_TM}, {ws}, s{S_RA} offen sc1')
        A.check = True

    def wait_for(name):
        if name not in pend:
            return
        idx = max(i for i, p in enumerate(pend) if p == name)
        n = len(pend) - 1 - idx
        A.I(f's_waitcnt lgkmcnt({n})')
        del pend[:idx + 1]

    EXP, EXV = ACC + 16, ACC + 20
    for t in range(2, 8):
        wait_for(('af', t))
        mf('q', 0, t)
        if t == 2:
            kload(0, 3, QBUF[('q', 0, 1)])
        if t == 3:
            kload(1, 3, QBUF[('q', 1, 1)])
        if t == 4:
            A.I(f'v_add_u32 v{EXP}, s{S_W640}, v{V_KR}')
        if t == 5:
            A.I(f'v_lshrrev_b32 v{EXV}, 2, v{V_VX}')
        if t == 6:
            A.I(f'ds_read_b64 {v(EXV, 2)}, v{EXV} offset:{L_VM}')
            pend.append(('ex', 1))
        mf('q', 1, t)
        if t == 4:
            A.I(f'ds_read_b128 {v(EXP, 4)}, v{EXP}')
            pend.append(('ex', 0))
        if t == 5:
            A.I(f'v_lshl_add_u32 v{EXV}, v{V_MX}, 0, v{EXV}' if False else f'v_add_u32 v{EXV}, v{EXV}, v{V_TM}')
        if t >= 6:
            A.I(f'ds_read_b128 {v(VX + 4 * (t - 6), 4)}, v{V_VX} offset:{L_KV + 8192 + 1024 * (t - 6)}')
            pend.append(('vx', t))
    stamp(1)
    q0, q1, k0, k1 = ACC, ACC + 4, ACC + 8, ACC + 12
    QF = T

    def kmf(t, nb):
        mf('k', nb, t, KBUF.get((nb, t)))

    def pack(b0, b1):
        return [f'v_add_f32 v{b0}, v{b0}, v{b0 + 2}',
                f'v_add_f32 v{b0 + 1}, v{b0 + 1}, v{b0 + 3}',
                f'v_add_f32 v{b1}, v{b1}, v{b1 + 2}',
                f'v_add_f32 v{b1 + 1}, v{b1 + 1}, v{b1 + 3}',
                f'v_cvt_pk_bf16_f32 v{b0}, v{b0}, v{b1}',
                f'v_cvt_pk_bf16_f32 v{b0 + 1}, v{b0 + 1}, v{b1 + 1}']

    wait_for(('k', 2))
    kmf(2, 0)
    A.I(f's_add_u32 s{S_TCH}, s{S_TCH}, 0x40000')
    A.I(f'v_lshrrev_b32 v{V_TM}, 1, v{V_L16}')
    kmf(2, 1)
    wait_for(('ex', 1))
    if not E('NOEXP', 0):
        A.I(f'buffer_store_dwordx4 {v(EXP, 4)}, v{V_L16}, {ws}, s{S_KMO} offen {EXF}')
    kmf(3, 0)
    if not E('NOEXP', 0):
        A.I(f'buffer_store_dwordx2 {v(EXV, 2)}, v{V_TM}, {ws}, s{S_VMO} offen {EXF}')
    A.I(f's_add_u32 s{S_KMO}, s{S_KMO}, 0x20000')
    A.I(f's_add_u32 s{S_VMO}, s{S_VMO}, 0x10000')
    kmf(3, 1)
    if kvcheck:
        A.I(f'v_mov_b32 v{V_TM}, s{S_STEP}')
        A.I('s_mov_b64 exec, 1')
        A.I(f'buffer_store_dword v{V_TM}, off, {ws}, s{S_KP} sc1')
        A.I('s_mov_b64 exec, -1')
    kxr = [f'ds_read_b128 {v(KX + 4 * f, 4)}, v{V_L16} offset:{L_KV + 1024 * f}' for f in range(8)]
    pq = pack(q0, q1) + [f'ds_write2_b32 v{V_QKW}, v{q0}, v{q0 + 1} offset0:0 offset1:16']
    fl = []
    for i in range(8):
        fl.append([kxr[i]] + ([pq[i]] if i < 7 else []) + ([f'v_mov_b64 {v(ACC + 16 + (i - 4) * 2, 2)}, 0'] if i >= 4 else []))
    for i, (t, nb) in enumerate([(t, nb) for t in range(4, 8) for nb in range(2)]):
        for x in fl[i]:
            A.I(x)
        kmf(t, nb)
    stamp(2)
    pk = pack(k0, k1)
    mf('v', 0, 0)
    mf('v', 1, 0)
    A.I('s_nop 4')
    A.I(pk[0]); A.I(pk[1]); A.I(pk[2])
    mf('v', 0, 1)
    A.I(pk[3]); A.I(pk[4]); A.I(pk[5])
    A.I(f'ds_write_b32 v{V_QKW}, v{k0} offset:{L_KX_}')
    A.I(f'ds_write_b32 v{V_QKW}, v{k0 + 1} offset:{L_KX_ + 64}')
    mf('v', 1, 1)
    mf('v', 0, 2)
    mf('v', 1, 2)
    mf('v', 0, 3)
    A.I('s_waitcnt lgkmcnt(0)')
    A.I('s_barrier')
    stamp(3)
    KMF, ONES = 0, 20
    for ks in range(4):
        A.I(f'ds_read_b128 {v(QF + 4 * ks, 4)}, v{V_QR} offset:{640 * ks}')
        if ks == 1:
            mf('v', 1, 3)
    mf('v', 0, 4)
    for ks in range(4):
        A.I(f'ds_read_b128 {v(KMF + 4 * ks, 4)}, v{V_KR} offset:{640 * ks}')
        if ks == 1:
            mf('v', 1, 4)
    dm = []
    if not E('NODMA', 0):
        dm = [f's_mov_b32 m0, s{S_KVM0}\ns_add_u32 s{S_T0}, s{S_KVN}, 0x{WS_VF - WS_KF:x}\nbuffer_load_dwordx4 v{V_L16}, {ws}, s{S_KVN} offen lds',
              f'buffer_load_dwordx4 v{V_L16}, {ws}, s{S_KVN} offen offset:1024 lds\ns_add_u32 m0, s{S_KVM0}, 8192\ns_add_u32 s{S_KVN}, s{S_KVN}, 0x40000',
              f'buffer_load_dwordx4 v{V_L16}, {ws}, s{S_T0} offen lds',
              f'buffer_load_dwordx4 v{V_L16}, {ws}, s{S_T0} offen offset:1024 lds']
    else:
        dm = ['s_nop 0'] * 4
    mf('v', 0, 5)
    mf('v', 1, 5)
    mf('v', 0, 6)
    mf('v', 1, 6)
    X0, X1, M, P = q0, q1, k0, k1
    O0, O1, Lr, PMA, PMB = KX + 16, KX + 20, KX + 24, KX + 28, KX + 30

    def sx(i):
        ks, kb = i >> 1, i & 1
        X = X1 if kb else X0
        c = '0' if ks == 0 else v(X, 4)
        A.I(f'v_mfma_f32_16x16x32_bf16 {v(X, 4)}, {v(KX + 16 * kb + 4 * ks, 4)}, {v(QF + 4 * ks, 4)}, {c}')

    for ks in range(4):
        A.I(f's_waitcnt lgkmcnt({7 - ks})')
        sx(2 * ks)
        if ks == 2:
            A.I(f'v_mov_b64 {v(ONES, 2)}, s[{S_ONE}:{S_ONE + 1}]')
        if ks == 3:
            A.I(f'v_mov_b64 {v(ONES + 2, 2)}, s[{S_ONE}:{S_ONE + 1}]')
        sx(2 * ks + 1)
    stamp(9)
    A.I('s_waitcnt lgkmcnt(0)')
    for ks in range(4):
        cm = '0' if ks == 0 else v(M, 4)
        A.I(f'v_mfma_f32_16x16x32_bf16 {v(M, 4)}, {v(KMF + 4 * ks, 4)}, {v(QF + 4 * ks, 4)}, {cm}')
        if ks == 0:
            A.I(f'v_mov_b32 v{PMA + 1}, 0')
            A.I(f'v_mov_b32 v{PMB}, 0')
        if ks == 1:
            A.I('s_nop 1')
            A.I(f'v_max3_f32 v{mx}, v{X0}, v{X0 + 1}, v{X0 + 2}')
            A.I(f'v_max3_f32 v{tm}, v{X1}, v{X1 + 1}, v{X1 + 2}')
        if ks == 2:
            A.I(f'v_max3_f32 v{mx}, v{mx}, v{X0 + 3}, v{X1 + 3}')
            A.I(f'v_max_f32 v{mx}, v{mx}, v{tm}')
        if ks == 3:
            A.I(f'v_mov_b32 v{tm}, v{mx}')
    mf('v', 0, 7)
    A.I('s_nop 0')
    A.I(f'v_permlane32_swap_b32 v{mx}, v{tm}')
    mf('v', 1, 7)
    A.I(f'v_max_f32 v{mx}, v{mx}, v{tm}')
    A.I('s_nop 1')
    A.I(f'v_max3_f32 v{tm}, v{M}, v{M + 1}, v{M + 2}')
    A.I(f'v_max3_f32 v{mx}, v{tm}, v{M + 3}, v{mx}')
    A.I(f'v_mov_b32 v{tm}, v{mx}')
    sets = [X1, KX, O0, T]
    A.I(f'v_mov_b64 {v(sets[1], 2)}, 0')
    A.I(f'v_mov_b64 {v(sets[1] + 2, 2)}, 0')
    A.I(f'v_permlane16_swap_b32 v{mx}, v{tm}')
    A.I(f'v_max_f32 v{mx}, v{mx}, v{tm}')
    A.I(f'v_mul_f32_e64 v{mx}, -s{S_C}, v{mx}')

    def pkfma(r):
        A.I(f'v_pk_fma_f32 {v(r, 2)}, {v(r, 2)}, s[{S_C}:{S_C + 1}], {v(mx, 2)} op_sel:[0,0,0] op_sel_hi:[1,1,0]')

    va, vb = ACC + 16, ACC + 20
    VMP = va + 2
    for r in (M, X0, X0 + 2, X1, X1 + 2):
        pkfma(r)
    A.I(f'v_exp_f32 v{M}, v{M}')
    A.I(f'v_exp_f32 v{M + 1}, v{M + 1}')
    A.I(f'v_pk_add_f32 {v(va, 2)}, {v(va, 2)}, {v(va + 2, 2)}')
    A.I(f'v_pk_add_f32 {v(vb, 2)}, {v(vb, 2)}, {v(vb + 2, 2)}')
    A.I(f'v_cvt_pk_bf16_f32 v{PMA}, v{M}, v{M + 1}')
    A.I(f'v_cvt_pk_bf16_f32 v{PMB + 1}, v{M}, v{M + 1}')
    A.I(f'v_cvt_pk_bf16_f32 v{VMP}, v{va}, v{va + 1}')
    A.I(f'v_cvt_pk_bf16_f32 v{VMP + 1}, v{vb}, v{vb + 1}')
    A.I(f'v_exp_f32 v{X0}, v{X0}')
    stamp(10)
    A.I(f'v_mfma_f32_16x16x16_bf16 {v(Lr, 4)}, {v(ONES, 2)}, {v(PMA, 2)}, 0')
    A.I(f'v_exp_f32 v{X0 + 1}, v{X0 + 1}')
    A.I(f'v_mfma_f32_16x16x16_bf16 {v(O0, 4)}, {v(VMP, 2)}, {v(PMA, 2)}, 0')
    A.I(f'v_exp_f32 v{X0 + 2}, v{X0 + 2}')
    A.I(f'v_mfma_f32_16x16x16_bf16 {v(O1, 4)}, {v(VMP, 2)}, {v(PMB, 2)}, 0')
    A.I(f'v_exp_f32 v{X0 + 3}, v{X0 + 3}')
    A.I(f'v_cvt_pk_bf16_f32 v{P}, v{X0}, v{X0 + 1}')
    A.I(f'v_exp_f32 v{X1}, v{X1}')
    A.I(f'v_exp_f32 v{X1 + 1}, v{X1 + 1}')
    A.I(f'v_cvt_pk_bf16_f32 v{P + 1}, v{X0 + 2}, v{X0 + 3}')
    A.I(f'v_exp_f32 v{X1 + 2}, v{X1 + 2}')
    A.I(f'v_exp_f32 v{X1 + 3}, v{X1 + 3}')
    A.I(f'v_cvt_pk_bf16_f32 v{P + 2}, v{X1}, v{X1 + 1}')
    A.I(f'v_cvt_pk_bf16_f32 v{P + 3}, v{X1 + 2}, v{X1 + 3}')
    A.I(f'v_lshrrev_b32 v{tm}, 2, v{V_VX}')
    A.I(f'v_mov_b64 {v(sets[0], 2)}, 0')
    A.I(f'v_mfma_f32_16x16x32_bf16 {v(Lr, 4)}, {v(ONES, 4)}, {v(P, 4)}, {v(Lr, 4)}')
    A.I(f'v_mov_b64 {v(sets[0] + 2, 2)}, 0')
    A.I(f'v_mov_b64 {v(sets[0] + 4, 2)}, 0')
    A.I(f'v_mfma_f32_16x16x32_bf16 {v(O0, 4)}, {v(VX, 4)}, {v(P, 4)}, {v(O0, 4)}')
    A.I(f'v_mov_b64 {v(sets[0] + 6, 2)}, 0')
    A.I(f'v_mov_b64 {v(sets[1] + 4, 2)}, 0')
    A.I(f'v_mfma_f32_16x16x32_bf16 {v(O1, 4)}, {v(VX + 4, 4)}, {v(P, 4)}, {v(O1, 4)}')
    A.I(f'v_mov_b64 {v(sets[1] + 6, 2)}, 0')
    A.I(f'v_mov_b64 {v(sets[3], 2)}, 0')
    A.I(f'v_rcp_f32 v{mx}, v{Lr}')
    A.I(f'v_mov_b64 {v(sets[3] + 2, 2)}, 0')
    A.I(f'v_mov_b64 {v(sets[3] + 4, 2)}, 0')
    OW = X0

    def pkmul(r):
        A.I(f'v_pk_mul_f32 {v(r, 2)}, {v(r, 2)}, {v(mx, 2)} op_sel:[0,0] op_sel_hi:[1,0]')

    pkmul(O0)
    pkmul(O0 + 2)
    A.I(f'v_cvt_pk_bf16_f32 v{OW}, v{O0}, v{O0 + 1}')
    A.I(f'v_cvt_pk_bf16_f32 v{OW + 1}, v{O0 + 2}, v{O0 + 3}')
    pkmul(O1)
    pkmul(O1 + 2)
    A.I(f'v_cvt_pk_bf16_f32 v{OW + 2}, v{O1}, v{O1 + 1}')
    A.I(f'v_cvt_pk_bf16_f32 v{OW + 3}, v{O1 + 2}, v{O1 + 3}')
    A.I(f'ds_write_b128 v{V_OW}, {v(OW, 4)}')
    stamp(4)
    A.I(f'v_lshrrev_b32 v{mx}, 2, v{V_L16}')
    A.I(f'v_add_u32 v{tm}, v{tm}, v{mx}')
    A.I(f'ds_write_b64 v{tm}, {v(VMP, 2)} offset:{L_VM}')
    zero(A, sets[2], 8)
    A.I(f'v_mov_b64 {v(sets[3] + 6, 2)}, 0')
    A.I('s_waitcnt lgkmcnt(1)')
    A.I('s_barrier')
    OF = VX
    A.I(f'ds_read_b128 {v(OF, 4)}, v{V_L16} offset:{L_OX}')
    A.I(f'ds_read_b128 {v(OF + 4, 4)}, v{V_L16} offset:{L_OX + 1024}')
    A.I(f's_cmp_eq_u32 s{S_STEP}, {NSTEPS}')
    A.I(f's_cbranch_scc1 {L_fin}')
    OBUF = {(6, 0): 0, (7, 0): 8, (6, 1): 24, (7, 1): KX + 8}
    A.I(f's_add_u32 s{S_PB0H}, s{S_PB0}, 4096')
    A.I('s_waitcnt lgkmcnt(1)')
    stamp(5)

    def post(c):
        a0, b0 = sets[c], sets[c] + 4
        o = (OW if c < 2 else P) + 2 * (c & 1)
        if c == 3:
            l = [f'v_pk_add_f32 {v(a0, 2)}, {v(a0, 2)}, {v(a0 + 2, 2)}',
                 f'v_pk_add_f32 {v(b0, 2)}, {v(b0, 2)}, {v(b0 + 2, 2)}']
        else:
            l = [f'v_add_f32 v{a0}, v{a0}, v{a0 + 2}', f'v_add_f32 v{a0 + 1}, v{a0 + 1}, v{a0 + 3}',
                 f'v_add_f32 v{b0}, v{b0}, v{b0 + 2}', f'v_add_f32 v{b0 + 1}, v{b0 + 1}, v{b0 + 3}']
        l += [f'v_cvt_pk_bf16_f32 v{o}, v{a0}, v{b0}',
              f'v_cvt_pk_bf16_f32 v{o + 1}, v{a0 + 1}, v{b0 + 1}',
              f'v_bfi_b32 v{o}, 1, s{S_TAG}, v{o}']
        if c & 1:
            l.append(f'buffer_store_dwordx4 {v(o - 2, 4)}, v{V_PBW}, {ws}, s{S_PB0} offen offset:{128 * (c >> 1)} {st}')
        return l

    def womf(c, t2, bb):
        nbo = 2 * c + bb
        b = v(OBUF[(nbo, t2)], 8) if (nbo, t2) in OBUF else u(HOME[('o', nbo, t2)], 8)
        A.I(f'v_smfmac_f32_16x16x64_bf16 {v(sets[c] + 4 * bb, 4)}, {v(OF + 4 * t2, 4)}, {b}, v{V_IDX}')

    obr = []
    for f, b in OBUF.items():
        hf, sl = LDS_SLOT[('o',) + f]
        va_ = V_WO1 if hf else V_WO0
        obr.append(f'ds_read_b128 {v(b, 4)}, v{va_} offset:{sl * 2048}')
        obr.append(f'ds_read_b128 {v(b + 4, 4)}, v{va_} offset:{sl * 2048 + 1024}')
    seq = [(c, t2, bb) for c in range(4) for t2 in range(2) for bb in range(2)]
    fill = {i: [] for i in range(16)}
    for i in range(8):
        fill[2 + i // 2 if i < 6 else 5].append(obr[i])
    DM0 = E('DM0', 0)
    for i in range(4):
        fill[DM0 + i].append(dm[i])
    p0, p1, p2 = post(0), post(1), post(2)
    for k, x in enumerate(p0):
        fill[6 + k // 2].append(x)
    for k, x in enumerate(p1):
        fill[10 + k // 2].append(x)
    for k, x in enumerate(p2):
        fill[14 + min(k // 2, 1)].append(x)
    for i, (c, t2, bb) in enumerate(seq):
        if i == 2:
            A.I('s_waitcnt lgkmcnt(0)')
        if i == 12:
            A.I('s_waitcnt lgkmcnt(0)')
        womf(c, t2, bb)
        for x in fill[i]:
            A.I(x)
    A.I(f's_cmp_ge_u32 s{S_WV}, 2')
    for x in post(3):
        A.I(x)
    stamp(6)
    stamp_acc()
    if STAMPS:
        A.I(f's_cmp_ge_u32 s{S_WV}, 2')
    if kvcheck:
        lke = A.newlabel('L_ke')
        A.I(f's_cmp_ge_u32 s{S_AV}, 64')
        A.I(f's_cbranch_scc1 {lke}')
        A.I('s_waitcnt vmcnt(9)')
        A.I(f'v_mov_b32 v{T + 8}, v{V_SP}')
        kv_eval(A, T + 8, V_L16, S_AV)
        A.I(f's_cmp_lt_u32 s{S_AV}, 64')
        A.I(f's_cselect_b32 s{S_RA}, s{S_RA}, 0x7f000000')
        lk2 = A.newlabel('L_ke2')
        A.br(f's_branch {lk2}')
        A.label(lke)
        for i in range(3):
            A.I('s_nop 7')
        A.label(lk2)
        A.I(f's_cmp_ge_u32 s{S_WV}, 2')
    zero(A, ACC, 8)
    A.I(f's_cbranch_scc1 {L_w23}')
    A.I(f'v_cndmask_b32 v{SEL}, 0, v{V_SEL}, s[{S_M0}:{S_M0 + 1}]')
    A.I(f'v_cndmask_b32 v{SEL + 1}, 0, v{V_SEL}, s[{S_M1}:{S_M1 + 1}]')
    A.I(f'v_mov_b64 {v(SEL + 2, 2)}, {v(SEL, 2)}')
    for i in range(PB_DELAY - (4 if kvcheck else 0)):
        A.I('s_nop 7')
    pb_loads(RA)
    hstamp(2)
    q_prefetch(A, 0)
    for i in range(PB_GAP):
        A.I('s_nop 7')
    if TWO_PB:
        pb_loads(RB)
    q_prefetch(A, 1)
    A.br(f's_branch {L_top}')
    A.label(L_w23)
    A.forget_loads()
    q_prefetch(A)
    if os.environ.get('DIAG2'):
        ld_ = A.newlabel('L_d2')
        A.I(f's_add_u32 s80, s{S_H}, s{S_WV}')
        A.I('s_cmp_lg_u32 s80, 2')
        A.I(f's_cbranch_scc1 {ld_}')
        A.I('s_mov_b32 s64, 0')
        for i, st_ in enumerate((1, 8, 20, 36, 52)):
            A.I(f's_cmp_eq_u32 s{S_STEP}, {st_}')
            A.I(f's_cselect_b32 s64, {44 + 4 * i}, s64')
        A.I('s_cmp_eq_u32 s64, 0')
        A.I(f's_cbranch_scc1 {ld_}')
        A.I('s_memrealtime s[80:81]')
        A.I('s_waitcnt lgkmcnt(0)')
        A.I('s_sub_u32 s80, s80, s58')
        A.I('v_mov_b32 v0, s80')
        A.I('buffer_store_dword v0, off, s[84:87], s64')
        A.label(ld_)
    if os.environ.get('STEPT'):
        A.I('s_memrealtime s[80:81]')
        A.I('s_waitcnt lgkmcnt(0)')
        A.I('v_mov_b32 v0, s80')
        A.I(f's_lshl_b32 s80, s{S_STEP}, 2')
        A.I(f's_lshl_b32 s81, s{S_H}, 8')
        A.I('s_add_u32 s80, s80, s81')
        A.I(f's_add_u32 s80, s80, 0x{WS_DBG + 0x20000:x}')
        A.I(f'buffer_store_dword v0, off, {ws}, s80')
    hstamp(2); hstamp(3)
    A.br(f's_branch {L_bh}')

    A.check = False
    A.label(L_pslow)
    if TWO_PB:
        red(RB, 0)
        A.I(f's_cbranch_vccz {L_red}')
    pb_loads(RA)
    A.I(f's_sub_u32 s{S_SPIN}, s{S_SPIN}, 1')
    A.I(f's_cbranch_scc1 {l_exit}')
    if TWO_PB:
        for i in range(3):
            A.I('s_nop 7')
        pb_loads(RB)
    A.br(f's_branch {L_top}')
    A.label(L_aslow)
    af_loads(0)
    zero(A, ACC, 8)
    for b in ASETS[1:]:
        A.I('s_waitcnt vmcnt(4)')
        A.I(f'v_max3_u32 v8, v{b}, v{b + 1}, v{b + 2}')
        A.I(f'v_max3_u32 v9, v{b + 3}, v{b + 4}, v{b + 5}')
        A.I(f'v_mov_b64 {v(10, 2)}, {v(b, 2)}')
        A.I(f'v_max3_u32 v8, v8, v{b + 6}, v{b + 7}')
        A.I(f'v_max_u32 v8, v8, v9')
        A.I(f'v_cmp_eq_u32 vcc, -1, v8')
        lf = A.newlabel('L_af_f')
        A.I(f's_cbranch_vccnz {lf}')
        for i in range(0, 8, 2):
            A.I(f'v_mov_b64 {v(i, 2)}, {v(b + i, 2)}')
        A.br(f's_branch {L_afok}')
        A.label(lf)
        af_loads(b)
    A.I(f's_sub_u32 s{S_SPIN}, s{S_SPIN}, 1')
    A.I(f's_cbranch_scc1 {l_exit}')
    A.br(f's_branch {L_afchk}')
    if kvcheck:
        A.label(L_kvc)
        A.I(f's_cmp_eq_u32 s23, 64')
        A.I(f's_cbranch_scc1 {L_kvr}')
        kv_wait(A, l_exit, 23, ACC + 16)
        A.br(f's_branch {L_kvr}')
    A.label(L_fin)
    A.I(f'v_add_u32 v12, s{S_W640}, v{V_KR}')
    A.I(f'v_lshrrev_b32 v13, 2, v{V_VX}')
    A.I(f'v_lshrrev_b32 v14, 2, v{V_L16}')
    A.I(f'v_add_u32 v13, v13, v14')
    A.I(f'ds_read_b128 v[0:3], v12')
    A.I(f'ds_read_b64 v[4:5], v13 offset:{L_VM}')
    A.I(f'v_lshrrev_b32 v14, 1, v{V_L16}')
    A.I('s_waitcnt lgkmcnt(0)')
    A.I(f'buffer_store_dwordx4 v[0:3], v{V_L16}, {ws}, s{S_KMO} offen sc1')
    A.I(f'buffer_store_dwordx2 v[4:5], v14, {ws}, s{S_VMO} offen sc1')
    if kvcheck:
        A.I('v_mov_b32 v6, 65')
        A.I('s_waitcnt vmcnt(0)')
        A.I('s_mov_b64 exec, 1')
        A.I(f'buffer_store_dword v6, off, {ws}, s{S_KP} sc1')
        A.I('s_mov_b64 exec, -1')
    A.br(f's_branch {l_exit}')
    A.check = True
    A.forget_loads()


def rec_kernel(A, name):
    kernel_begin(A, name)
    l_exit = A.newlabel('L_exit')
    P_WS, P_DBG, P_Q, P_K, P_V, P_O, P_M0 = 16, 18, 20, 22, 24, 26, 28
    A.I(f's_cmp_ge_u32 s2, 256')
    A.I(f's_cbranch_scc1 {l_exit}')
    A.I(f's_load_dwordx2 s[{P_WS}:{P_WS + 1}], s[0:1], {KA_WS}')
    A.I(f's_load_dwordx2 s[{P_DBG}:{P_DBG + 1}], s[0:1], {KA_DBG}')
    A.I(f's_load_dwordx4 s[{P_Q}:{P_Q + 3}], s[0:1], {KA_WQ}')
    A.I(f's_load_dwordx4 s[{P_V}:{P_V + 3}], s[0:1], {KA_WV}')
    A.I(f's_load_dwordx2 s[{P_M0}:{P_M0 + 1}], s[0:1], {KA_MEM0}')
    A.I('v_lshrrev_b32 v1, 6, v0')
    A.I(f'v_and_b32 v{LANE}, 63, v0')
    A.I(f'v_readfirstlane_b32 s{S_WV}, v1')
    A.I(f's_getreg_b32 s{S_T0}, hwreg(HW_REG_XCC_ID)')
    A.I(f's_and_b32 s{S_T0}, s{S_T0}, 15')
    A.I('s_waitcnt lgkmcnt(0)')
    make_srd(A, S_WS, P_WS, WS_SIZE)
    make_srd(A, S_DBG, P_DBG, 256)
    A.I(f's_cmp_lg_u32 s{S_T0}, 0')
    A.I(f's_cbranch_scc1 {l_exit}')
    A.I(f's_mov_b32 s{S_SPIN}, 2000000')
    dbg = f's[{S_DBG}:{S_DBG + 3}]'
    A.I('v_mov_b32 v2, 1')
    A.I('v_mov_b32 v3, 0')
    A.I('v_cmp_eq_u32 vcc, 0, v0')
    A.I('s_and_saveexec_b64 s[30:31], vcc')
    lsk = A.newlabel('L_sk')
    A.I(f's_cbranch_execz {lsk}')
    A.I(f'buffer_atomic_add v2, v3, {dbg}, 0 offen sc0')
    A.I('s_waitcnt vmcnt(0)')
    A.I('ds_write_b32 v3, v2')
    A.I('s_waitcnt lgkmcnt(0)')
    A.label(lsk)
    A.I('s_mov_b64 exec, s[30:31]')
    A.I('s_barrier')
    A.I('ds_read_b32 v2, v3')
    A.I('s_waitcnt lgkmcnt(0)')
    A.I(f'v_readfirstlane_b32 s{S_H}, v2')
    A.I('s_barrier')
    A.I(f's_cmp_ge_u32 s{S_H}, 32')
    A.I(f's_cbranch_scc1 {l_exit}')
    A.I(f's_memrealtime s[{S_TS}:{S_TS + 1}]')
    setup_consts(A)
    st = STF
    init_exchange(A, P_M0, st)
    A.I('s_barrier')
    A.I('v_mov_b32 v2, 1')
    A.I('v_mov_b32 v3, 64')
    A.I('v_cmp_eq_u32 vcc, 0, v0')
    A.I('s_and_saveexec_b64 s[30:31], vcc')
    lsk = A.newlabel('L_sk')
    A.I(f's_cbranch_execz {lsk}')
    A.I(f'buffer_atomic_add v2, v3, {dbg}, 0 offen')
    A.label(lsk)
    A.I('s_mov_b64 exec, s[30:31]')
    A.I('s_waitcnt vmcnt(0)')
    stage_weights(A, [P_Q, P_K, P_V, P_O])
    A.I(f's_lshl_b32 s{S_KVN}, s{S_H}, 13')
    A.I(f's_add_u32 s{S_KVN}, s{S_KVN}, s{S_W11}')
    A.I(f's_add_u32 s{S_KVN}, s{S_KVN}, 0x{WS_KF:x}')
    A.I(f's_add_u32 s{S_KVM0}, s{S_W11}, {L_KV}')
    kv_dma(A)
    lw = A.newlabel('L_tw')
    A.I('v_mov_b32 v3, 64')
    A.label(lw)
    A.I(f'buffer_load_dword v2, v3, {dbg}, 0 offen sc1')
    A.I(f's_sub_u32 s{S_SPIN}, s{S_SPIN}, 1')
    A.I(f's_cbranch_scc1 {l_exit}')
    A.I('s_waitcnt vmcnt(0)')
    A.I(f'v_readfirstlane_b32 s{S_T0}, v2')
    A.I(f's_cmp_lt_u32 s{S_T0}, 32')
    A.I(f's_cbranch_scc1 {lw}')
    A.I('s_barrier')
    A.I(f's_memrealtime s[{S_TS + 2}:{S_TS + 3}]')
    A.I('s_waitcnt lgkmcnt(0)')
    l_done = A.newlabel('L_done')
    main_loop(A, st, l_done)
    A.label(l_done)
    A.forget_loads()
    A.I(f's_memrealtime s[{S_TS + 4}:{S_TS + 5}]')
    A.I('s_waitcnt lgkmcnt(0) vmcnt(0)')
    A.I(f's_lshl_b32 s{S_T0}, s{S_H}, 2')
    A.I(f's_add_u32 s{S_T0}, s{S_T0}, s{S_WV}')
    A.I(f's_lshl_b32 s{S_T0}, s{S_T0}, 5')
    A.I(f's_add_u32 s{S_T0}, s{S_T0}, 0x{WS_DBG:x}')
    for i in range(6):
        A.I(f'v_mov_b32 v{i}, s{S_TS + i}')
    A.I(f'v_mov_b32 v6, s{S_STEP}')
    A.I(f'v_mov_b32 v7, s{S_SPIN}')
    A.I('v_mov_b32 v8, 0')
    A.I(f'buffer_store_dwordx4 v[0:3], v8, s[{S_WS}:{S_WS + 3}], s{S_T0} offen')
    A.I(f'buffer_store_dwordx4 v[4:7], v8, s[{S_WS}:{S_WS + 3}], s{S_T0} offen offset:16')
    if STAMPS:
        A.I(f's_add_u32 s{S_T0}, s{S_T0}, s{S_T0}')
        A.I(f's_sub_u32 s{S_T0}, s{S_T0}, 0x{WS_DBG - 0x10000:x}')
        for i in range(12):
            A.I(f'v_mov_b32 v{12 + i}, s{88 + i}')
        for i in range(3):
            A.I(f'buffer_store_dwordx4 {v(12 + 4 * i, 4)}, v8, s[{S_WS}:{S_WS + 3}], s{S_T0} offen offset:{16 * i}')
    A.label(l_exit)
    A.I('s_endpgm')


if __name__ == '__main__':
    A = Asm()
    rec_kernel(A, 'rec_kernel')
    txt = header([('rec_kernel', 256, 256, L_TOTAL)]) + A.text() + '.section .rodata,"a"\n' + kernel_desc('rec_kernel', 512, 256)
    open('work/' + OUT, 'w').write(txt)
    print('ok', len(txt))
```

```python
import os
os.environ.setdefault('PB_DELAY', '7'); os.environ.setdefault('AF_DELAY', '2'); os.environ.setdefault('AF_GAP', '2')
from common import *
import tok as T
import rec9 as R
from tok import f32, S_WS, S_W, S_X, S_H, S_WV, S_G, S_T0, S_T1, S_T2, S_T3

S_DBG = 84
S_SPIN = R.S_SPIN
S_XCC = 83
S_LNO = 82
F_OPC = WS_FLAG + 0x4000
F_LH = WS_FLAG + 0x6000
F_LU = WS_FLAG + 0x8000
F_GF = WS_FLAG + 0x8400
S_FAST = S_XCC
D_GB, D_OVF, D_WEIRD, D_TS = 128, 36, 40, 192
S_J, S_BO2, S_LB2 = 100, 101, 3
S_J2 = 63
S_W1, S_B1, S_W2 = 88, 92, 96
NEARLY = int(os.environ.get('NEARLY', 2))
STAG = int(os.environ.get('STAG', 4))
STAG0 = int(os.environ.get('STAG0', 1))
TIMING = bool(os.environ.get('TIMING'))
OPRING = int(os.environ.get('OPRING', 0))
WARM = int(os.environ.get('WARM', 1))
DIAG = bool(os.environ.get('DIAG'))
TAIL_BYTES = int(os.environ.get('TAIL_BYTES', 24576))
CODET = int(os.environ.get('CODET', 0))
CODE_BYTES = int(os.environ.get('CODE_BYTES', 57344))
PLF = os.environ.get('PLF', 'sc1').replace('_', ' ')


def lane0(A, body):
    A.I('s_mov_b64 exec, 1')
    body()
    A.I('s_mov_b64 exec, -1')


def poll_eq(A, srd, s_off, imm, expect, vt, l_exit, sleep=0):
    l = A.newlabel('L_poll')
    A.label(l)
    so = f's{s_off}' if s_off is not None else '0'
    A.I(f'buffer_load_dword v{vt}, off, {srd}, {so} offset:{imm} sc1')
    A.I(f's_sub_u32 s{S_SPIN}, s{S_SPIN}, 1')
    A.I(f's_cbranch_scc1 {l_exit}')
    A.I('s_waitcnt vmcnt(0)')
    A.I(f'v_readfirstlane_b32 s{S_T0}, v{vt}')
    ld = A.newlabel('L_pd')
    A.I(f's_cmp_eq_u32 s{S_T0}, {expect}')
    A.I(f's_cbranch_scc1 {ld}')
    if sleep:
        A.I(f's_sleep {sleep}')
    A.br(f's_branch {l}')
    A.label(ld)


def poll_flags(A, s_off, nlanes, width, vt, va, l_exit, sleep=0):
    ws = f's[{S_WS}:{S_WS + 3}]'
    l, ld = A.newlabel('L_pf'), A.newlabel('L_pfd')
    A.I(f'v_lshlrev_b32 v{va}, {2 if width == 1 else 3}, v0')
    assert nlanes <= 32
    A.I(f's_mov_b32 exec_lo, 0x{(1 << nlanes) - 1:x}')
    A.I('s_mov_b32 exec_hi, 0')
    A.label(l)
    if width == 1:
        A.I(f'buffer_load_dword v{vt}, v{va}, {ws}, s{s_off} offen {PLF}')
    else:
        A.I(f'buffer_load_dwordx2 {v(vt, 2)}, v{va}, {ws}, s{s_off} offen {PLF}')
    A.I(f's_sub_u32 s{S_SPIN}, s{S_SPIN}, 1')
    A.I(f's_cbranch_scc1 {l_exit}')
    A.I('s_waitcnt vmcnt(0)')
    if width == 2:
        A.I(f'v_min_u32 v{vt}, v{vt}, v{vt + 1}')
    A.I(f'v_cmp_eq_u32 vcc, 0, v{vt}')
    A.I(f's_cbranch_vccz {ld}')
    if sleep:
        A.I(f's_sleep {sleep}')
    A.br(f's_branch {l}')
    A.label(ld)
    A.I('s_mov_b64 exec, -1')


def flag_store(A, s_addr, vt):
    ws = f's[{S_WS}:{S_WS + 3}]'
    l1, l2 = A.newlabel('L_fs'), A.newlabel('L_fs')
    A.I(f'v_mov_b32 v{vt}, 1')
    A.I('s_mov_b64 exec, 1')
    A.I(f's_cmp_eq_u32 s{S_FAST}, 0')
    A.br(f's_cbranch_scc1 {l1}')
    A.I(f'buffer_store_dword v{vt}, off, {ws}, s{s_addr}')
    A.br(f's_branch {l2}')
    A.label(l1)
    A.I(f'buffer_store_dword v{vt}, off, {ws}, s{s_addr} sc1')
    A.label(l2)
    A.I('s_mov_b64 exec, -1')


def garrive(A, s_line, s_goff, vt, l_exit):
    ws = f's[{S_WS}:{S_WS + 3}]'
    A.I(f's_lshl_b32 s{S_T1}, s{S_H}, 2')
    A.I(f's_add_u32 s{S_T1}, s{S_T1}, s{s_line}')
    flag_store(A, S_T1, vt)
    l = A.newlabel('L_ga')
    A.I(f's_cmp_lg_u32 s{S_H}, 0')
    A.br(f's_cbranch_scc1 {l}')
    poll_flags(A, s_line, 32, 1, vt, vt + 1, l_exit)
    A.I(f'v_lshlrev_b32 v{vt + 1}, 9, v0')
    A.I(f'v_mov_b32 v{vt}, 1')
    A.I('s_mov_b64 exec, 0xff')
    A.I(f'buffer_store_dword v{vt}, v{vt + 1}, {ws}, s{s_goff} offen sc1')
    A.I('s_mov_b64 exec, -1')
    A.label(l)


def wg_poll_eq(A, srd, s_off, imm, expect, vt, l_exit, sleep=0):
    l0 = A.newlabel('L_wgp')
    A.I(f's_cmp_lg_u32 s{S_WV}, 0')
    A.br(f's_cbranch_scc1 {l0}')
    poll_eq(A, srd, s_off, imm, expect, vt, l_exit, sleep)
    A.label(l0)
    A.I('s_barrier')


def tstamp(A, idx, r=14):
    if not TIMING:
        return
    l = A.newlabel('L_ts')
    A.I(f's_cmp_lg_u32 s{S_WV}, 0')
    A.br(f's_cbranch_scc1 {l}')
    A.I('s_memrealtime s[80:81]')
    A.I('s_waitcnt lgkmcnt(0)')
    A.I(f'v_mov_b32 v{r}, s80')
    A.I(f'v_mov_b32 v{r + 1}, s81')
    A.I(f's_lshl_b32 s80, s{S_G}, 5')
    A.I(f's_add_u32 s80, s80, s{S_H}')
    A.I('s_lshl_b32 s80, s80, 8')
    A.I(f's_add_u32 s80, s80, 0x{WS_DBG:x}')
    A.I(f'buffer_store_dwordx2 {v(r, 2)}, off, s[{S_WS}:{S_WS + 3}], s80 offset:{8 * idx}')
    A.label(l)


def mega_kernel(A, name):
    kernel_begin(A, name)
    l_exit = A.newlabel('L_exit')
    P_WS, P_DBG, P_Q, P_K, P_V, P_O, P_M0, P_X = 16, 18, 20, 22, 24, 26, 28, 30
    ws, dbg, sx = f's[{S_WS}:{S_WS + 3}]', f's[{S_DBG}:{S_DBG + 3}]', f's[{S_X}:{S_X + 3}]'
    A.I('s_cmp_ge_u32 s2, 256')
    A.I(f's_cbranch_scc1 {l_exit}')
    if DIAG:
        A.I('s_memrealtime s[58:59]')
    A.I(f's_load_dwordx2 s[{P_WS}:{P_WS + 1}], s[0:1], {KA_WS}')
    A.I(f's_load_dwordx2 s[{P_DBG}:{P_DBG + 1}], s[0:1], {KA_DBG}')
    A.I(f's_load_dwordx4 s[{P_Q}:{P_Q + 3}], s[0:1], {KA_WQ}')
    A.I(f's_load_dwordx4 s[{P_V}:{P_V + 3}], s[0:1], {KA_WV}')
    A.I(f's_load_dwordx2 s[{P_M0}:{P_M0 + 1}], s[0:1], {KA_MEM0}')
    A.I(f's_load_dwordx2 s[{P_X}:{P_X + 1}], s[0:1], {KA_X}')
    A.I('v_lshrrev_b32 v1, 6, v0')
    A.I('v_and_b32 v0, 63, v0')
    A.I(f'v_readfirstlane_b32 s{S_WV}, v1')
    A.I(f's_getreg_b32 s{S_XCC}, hwreg(HW_REG_XCC_ID)')
    A.I(f's_mov_b32 s{S_SPIN}, 0x80000')
    A.I('s_waitcnt lgkmcnt(0)')
    make_srd(A, S_WS, P_WS, WS_SIZE)
    make_srd(A, S_DBG, P_DBG, 256)
    make_srd(A, S_X, P_X, 2048 * 1024)
    A.I(f's_mov_b32 s{S_LNO}, -1')
    if CODET:
        lct = A.newlabel('L_ct')
        A.I(f's_cmp_lg_u32 s{S_WV}, 3')
        A.br(f's_cbranch_scc1 {lct}')
        A.I('s_cmp_ge_u32 s2, 16')
        A.br(f's_cbranch_scc1 {lct}')
        code_touch(A, name, l_exit, CODE_BYTES, 255, 3)
        A.label(lct)
    lr = A.newlabel('L_role_done')
    A.I(f's_cmp_lg_u32 s{S_WV}, 0')
    A.br(f's_cbranch_scc1 {lr}')
    A.I('s_mov_b64 exec, 1')
    A.I('v_mov_b32 v2, 1')
    lw = A.newlabel('L_nw')
    A.I(f's_cmp_lt_u32 s{S_XCC}, 8')
    A.br(f's_cbranch_scc1 {lw}')
    A.I(f'buffer_atomic_or v2, off, {dbg}, 0 offset:{D_WEIRD}')
    A.I('s_waitcnt vmcnt(0)')
    A.label(lw)
    A.I(f's_and_b32 s{S_G}, s{S_XCC}, 7')
    A.I(f's_lshl_b32 s{S_T0}, s{S_G}, 2')
    A.I(f'buffer_atomic_add v2, off, {dbg}, s{S_T0} sc0')
    A.I('s_waitcnt vmcnt(0)')
    A.I(f'v_readfirstlane_b32 s{S_H}, v2')
    lok = A.newlabel('L_rok')
    A.I(f's_cmp_lt_u32 s{S_H}, 32')
    A.br(f's_cbranch_scc1 {lok}')
    A.I('v_mov_b32 v2, 1')
    A.I(f'buffer_atomic_add v2, off, {dbg}, 0 offset:{D_OVF} sc0')
    A.I('s_waitcnt vmcnt(0)')
    A.I(f'v_readfirstlane_b32 s{S_T3}, v2')
    lo = A.newlabel('L_ovf')
    A.label(lo)
    A.I(f'buffer_load_dwordx4 v[4:7], off, {dbg}, 0 sc1')
    A.I(f'buffer_load_dwordx4 v[8:11], off, {dbg}, 0 offset:16 sc1')
    A.I(f's_sub_u32 s{S_SPIN}, s{S_SPIN}, 1')
    A.I(f's_cbranch_scc1 {l_exit}')
    A.I('s_waitcnt vmcnt(0)')
    A.I(f's_mov_b32 s{S_T0}, 0')
    for i in range(8):
        A.I(f'v_readfirstlane_b32 s{64 + i}, v{4 + i}')
    for i in range(8):
        A.I(f's_add_u32 s{S_T0}, s{S_T0}, s{64 + i}')
    A.I(f's_cmp_lt_u32 s{S_T0}, 256')
    A.br(f's_cbranch_scc1 {lo}')
    for g in range(8):
        A.I(f's_min_u32 s{S_T0}, s{64 + g}, 32')
        A.I(f's_sub_u32 s{S_T1}, 32, s{S_T0}')
        A.I(f's_mov_b32 s{S_G}, {g}')
        A.I(f's_add_u32 s{S_H}, s{S_T0}, s{S_T3}')
        A.I(f's_cmp_lt_u32 s{S_T3}, s{S_T1}')
        A.br(f's_cbranch_scc1 {lok}')
        A.I(f's_sub_u32 s{S_T3}, s{S_T3}, s{S_T1}')
    A.label(lok)
    A.I(f's_lshl_b32 s{S_T0}, s{S_G}, 8')
    A.I(f's_or_b32 s{S_T0}, s{S_T0}, s{S_H}')
    A.I(f'v_mov_b32 v2, s{S_T0}')
    A.I('v_mov_b32 v3, 0')
    A.I('ds_write_b32 v3, v2')
    A.I('s_waitcnt lgkmcnt(0)')
    A.I('s_mov_b64 exec, -1')
    A.label(lr)
    A.I('s_barrier')
    A.I('v_mov_b32 v3, 0')
    A.I('ds_read_b32 v2, v3')
    A.I('s_waitcnt lgkmcnt(0)')
    A.I(f'v_readfirstlane_b32 s{S_T0}, v2')
    A.I(f's_and_b32 s{S_H}, s{S_T0}, 31')
    A.I(f's_bfe_u32 s{S_G}, s{S_T0}, 0x30008')
    A.I('s_barrier')
    tstamp(A, 0)

    def ln_and_arrive(ln=True):
        if ln:
            l = A.newlabel('L_nl2')
            A.I(f's_cmp_eq_u32 s{S_LNO}, -1')
            A.br(f's_cbranch_scc1 {l}')
            A.check = False
            T.ln1_compute(A, ws, S_LNO, 'sc1', 0)
            A.check = True
            A.label(l)
        A.I('s_waitcnt vmcnt(0)')
        A.I('s_barrier')
        l = A.newlabel('L_na')
        A.I(f's_cmp_lg_u32 s{S_WV}, 0')
        A.br(f's_cbranch_scc1 {l}')
        A.I('v_mov_b32 v23, 1')
        lane0(A, lambda: A.I(f'buffer_atomic_add v23, off, {dbg}, 0 offset:{D_GB}'))
        A.I('s_waitcnt vmcnt(0)')
        A.label(l)

    l_tok = A.newlabel('L_tok')
    l_g2 = A.newlabel('L_g2')
    A.I(f's_cmp_lg_u32 s{S_G}, 0')
    A.br(f's_cbranch_scc1 {l_tok}')

    A.I(f'v_mov_b32 v{R.LANE}, v0')
    R.setup_consts(A)

    def thook():
        A.check = False
        A.I(f's_lshl_b32 s{S_T0}, s{S_H}, 6')
        A.I(f's_lshl_b32 s{S_T1}, s{S_WV}, 2')
        A.I(f's_add_u32 s{S_T0}, s{S_T0}, s{S_T1}')
        A.I(f's_add_u32 s{S_LNO}, s{S_T0}, 0x{R.F_KMP:x}')
        A.I('v_mov_b32 v24, 0')
        lane0(A, lambda: A.I(f'buffer_store_dword v24, off, {ws}, s{S_LNO} sc1'))
        R.init_exchange(A, P_M0, 'sc1', rb=24)
        ln_and_arrive(ln=False)
        tstamp(A, 8, 24)
        A.check = True
        A.forget_loads()

    S_OK = 25

    def batch():
        A.I(f'buffer_load_dword v25, off, {dbg}, 0 sc1')
        A.I(f'buffer_load_dword v26, off, {dbg}, 0 offset:{D_WEIRD} sc1')
        R.kv_load(A, 28, R.V_L16, R.S_RA)

    def h_issue(sc):
        if sc == 3:
            A.I(f'buffer_load_dword v24, off, {dbg}, 0 offset:{D_GB} sc1')
            return
        A.I(f's_lshl_b32 s{R.S_RA}, s{S_H}, 7')
        A.I(f's_add_u32 s{R.S_RA}, s{R.S_RA}, 0x{R.F_PROG:x}')
        A.I(f's_lshl_b32 s{R.S_KVN}, s{S_H}, 13')
        A.I(f's_add_u32 s{R.S_KVN}, s{R.S_KVN}, s{R.S_W11}')
        A.I(f's_add_u32 s{R.S_KVN}, s{R.S_KVN}, 0x{WS_KF:x}')
        A.I(f's_add_u32 s{R.S_KVM0}, s{R.S_W11}, {R.L_KV}')
        batch()

    def evaluate(l_fail):
        R.kv_eval(A, 28, R.V_L16, R.S_AV)
        A.I(f'v_readfirstlane_b32 s{S_T0}, v24')
        A.I(f'v_readfirstlane_b32 s{S_T2}, v25')
        A.I(f'v_readfirstlane_b32 s{S_T3}, v26')
        A.I(f's_cmp_lg_u32 s{S_T0}, 256')
        A.I(f's_cbranch_scc1 {l_fail}')
        A.I(f's_cmp_eq_u32 s{R.S_AV}, 0')
        A.I(f's_cbranch_scc1 {l_fail}')
        A.I(f's_cmp_ge_u32 s{S_T2}, 32')
        A.I(f's_cselect_b32 s{S_XCC}, 1, 0')
        A.I(f's_cmp_eq_u32 s{S_T3}, 0')
        A.I(f's_cselect_b32 s{S_XCC}, s{S_XCC}, 0')
        R.kv_dma(A)

    def h_check():
        lf = A.newlabel('L_hf')
        A.I(f's_mov_b32 s{S_OK}, 0')
        evaluate(lf)
        A.I(f's_mov_b32 s{S_OK}, 1')
        A.label(lf)

    R.stage_weights(A, [P_Q, P_K, P_V, P_O], hook=thook, hook_issue=h_issue, hook_check=h_check)
    l = A.newlabel('L_ns')
    A.I(f's_cmp_lg_u32 s{S_WV}, 0')
    A.br(f's_cbranch_scc1 {l}')
    A.I('v_mov_b32 v2, 1')
    lane0(A, lambda: A.I(f'buffer_atomic_add v2, off, {dbg}, 0 offset:{D_TS}'))
    A.label(l)
    tstamp(A, 1)
    A.I(f's_mov_b32 s{R.S_KP}, s{S_LNO}')
    lgo_, lre = A.newlabel('L_tgo'), A.newlabel('L_tre')
    A.I(f's_cmp_eq_u32 s{S_OK}, 1')
    A.br(f's_cbranch_scc1 {lgo_}')
    A.label(lre)
    A.I('s_sleep 4')
    A.I(f'buffer_load_dword v24, off, {dbg}, 0 offset:{D_GB} sc1')
    A.I('s_waitcnt vmcnt(0)')
    batch()
    A.I(f's_sub_u32 s{S_SPIN}, s{S_SPIN}, 1')
    A.I(f's_cbranch_scc1 {l_exit}')
    A.I('s_waitcnt vmcnt(0)')
    evaluate(lre)
    A.label(lgo_)
    A.I('s_waitcnt vmcnt(0)')
    A.I('s_barrier')
    tstamp(A, 2)
    if DIAG:
        A.I('s_memrealtime s[80:81]')
        A.I('s_waitcnt lgkmcnt(0)')
        A.I('s_sub_u32 s60, s80, s58')
    l_slow = A.newlabel('L_slowmode')
    l_tdone = A.newlabel('L_tdone')
    A.I(f's_cmp_eq_u32 s{S_XCC}, 0')
    if os.environ.get('FORCE_SLOW'):
        A.br(f's_branch {l_slow}')
    else:
        A.br(f's_cbranch_scc1 {l_slow}')
    R.main_loop(A, '', l_tdone, kvcheck=True)
    A.label(l_slow)
    R.main_loop(A, 'sc1', l_tdone, kvcheck=True)
    A.label(l_tdone)
    A.forget_loads()
    A.I(f's_mov_b32 s{S_G}, 0')
    tstamp(A, 3)
    if DIAG:
        A.I('s_memrealtime s[80:81]')
        A.I('s_waitcnt lgkmcnt(0)')
        A.I('s_sub_u32 s61, s80, s58')
    A.I(f'v_lshrrev_b32 v0, 4, v{R.V_L16}')
    j2_calc(A)
    A.I('s_waitcnt vmcnt(0) lgkmcnt(0)')
    A.I('s_barrier')
    g2_setup(A)
    for k in range(5):
        g2_dma(A, k)
    A.I(f's_mov_b32 s{S_PRE}, 0')
    A.br(f's_branch {l_g2}')

    A.label(l_tok)
    A.forget_loads()
    S_SEG, S_NX, S_CA, S_END, S_K1, S_AV, S_PB = 36, 41, 42, 43, 44, 45, 46
    j2_calc(A)
    A.I(f's_sub_u32 s{S_G}, s{S_G}, 1')
    A.I(f's_lshl_b32 s{S_J}, s{S_G}, 5')
    A.I(f's_add_u32 s{S_J}, s{S_J}, s{S_H}')

    def tok_init(ln=True):
        A.I(f's_lshl_b32 s{S_CA}, s{S_H}, 7')
        A.I(f's_lshl_b32 s{S_T0}, s{S_G}, 4')
        A.I(f's_add_u32 s{S_CA}, s{S_CA}, s{S_T0}')
        A.I(f's_lshl_b32 s{S_T0}, s{S_WV}, 2')
        A.I(f's_add_u32 s{S_CA}, s{S_CA}, s{S_T0}')
        A.I(f's_add_u32 s{S_CA}, s{S_CA}, 0x{R.F_PROG:x}')
        A.I('v_mov_b32 v22, 0')
        lane0(A, lambda: A.I(f'buffer_store_dword v22, off, {ws}, s{S_CA} sc1'))
        lz = A.newlabel('L_nz')
        A.I(f's_cmp_lg_u32 s{S_J}, 64')
        A.br(f's_cbranch_scc1 {lz}')
        A.I('v_lshlrev_b32 v23, 4, v0')
        for r in range(16, 20):
            A.I(f'v_mov_b32 v{r}, 0')
        A.I(f's_mul_i32 s{S_T0}, s{S_WV}, 6144')
        A.I(f's_add_u32 s{S_T0}, s{S_T0}, 0x{F_OPC:x}')
        A.I(f's_add_u32 s{S_T1}, s{S_T0}, 4096')
        for i in range(4):
            A.I(f'buffer_store_dwordx4 v[16:19], v23, {ws}, s{S_T0} offen offset:{1024 * i} sc1')
        A.I(f'buffer_store_dwordx4 v[16:19], v23, {ws}, s{S_T1} offen sc1')
        A.I(f'buffer_store_dwordx4 v[16:19], v23, {ws}, s{S_T1} offen offset:1024 sc1')
        A.label(lz)
        A.forget_loads()
        ln_and_arrive(ln)
        ts_tok(A, 8)

    l_late = A.newlabel('L_late')
    l_st = A.newlabel('L_st')
    A.I(f's_mov_b32 s{S_K1}, 0')
    A.I(f's_cmp_lt_u32 s{S_G}, {NEARLY}')
    A.br(f's_cbranch_scc1 {l_st}')
    if WARM:
        lwm = A.newlabel('L_wm')
        A.I(f's_cmp_ge_u32 s{S_G}, 4')
        A.br(f's_cbranch_scc1 {lwm}')
        A.I(f's_sub_u32 s{S_T0}, s{S_J}, 64')
        A.I(f's_lshl_b32 s{S_T0}, s{S_T0}, 2')
        A.I(f's_add_u32 s{S_T0}, s{S_T0}, s{S_WV}')
        A.I(f's_lshl_b32 s{S_T0}, s{S_T0}, 14')
        A.I('v_lshlrev_b32 v22, 7, v0')
        A.check = False
        for p in (P_Q, P_O, P_K, P_V):
            make_srd(A, S_W, p, 4 << 20)
            A.I(f'buffer_load_dword v255, v22, s[{S_W}:{S_W + 3}], s{S_T0} offen')
            A.I(f's_add_u32 s{S_T1}, s{S_T0}, 8192')
            A.I(f'buffer_load_dword v255, v22, s[{S_W}:{S_W + 3}], s{S_T1} offen')
        A.check = True
        A.label(lwm)
        A.forget_loads()
    l1 = A.newlabel('L_nl')
    A.I(f's_cmp_lg_u32 s{S_WV}, 1')
    A.I(f's_cbranch_scc1 {l1}')
    A.I(f's_cmp_lt_u32 s{S_G}, 3')
    A.I(f's_cbranch_scc1 {l1}')
    A.I(f's_sub_u32 s{S_T3}, s{S_J}, 96')
    T.ln1_load(A, S_T3, sx, S_LNO)
    A.label(l1)
    A.forget_loads()
    tok_init()
    l_nost = A.newlabel('L_nost')
    A.I(f's_cmp_ge_u32 s{S_G}, 4')
    A.br(f's_cbranch_scc1 {l_nost}')
    wg_poll_eq(A, dbg, None, D_TS, 32, 2, l_exit, sleep=32)
    lsg, lsd = A.newlabel('L_sg'), A.newlabel('L_sd')
    A.I(f's_cmp_lg_u32 s{S_WV}, 0')
    A.br(f's_cbranch_scc1 {lsd}')
    A.I(f's_cmp_eq_u32 s{S_G}, 3')
    A.I(f's_cselect_b32 s{S_T1}, {STAG}, {STAG0}')
    A.I(f's_lshl_b32 s{S_T2}, s{S_H}, 6')
    A.I(f's_add_u32 s{S_T2}, s{S_T2}, 0x{R.F_KMP:x}')
    A.label(lsg)
    A.I(f'buffer_load_dword v2, off, {ws}, s{S_T2} sc1')
    A.I(f's_sub_u32 s{S_SPIN}, s{S_SPIN}, 1')
    A.I(f's_cbranch_scc1 {l_exit}')
    A.I('s_waitcnt vmcnt(0)')
    A.I(f'v_readfirstlane_b32 s{S_T0}, v2')
    A.I(f's_cmp_ge_u32 s{S_T0}, s{S_T1}')
    A.I(f's_cbranch_scc1 {lsd}')
    A.I('s_sleep 16')
    A.br(f's_branch {lsg}')
    A.label(lsd)
    A.I('s_barrier')
    A.I(f's_mov_b32 s{S_K1}, 1')
    A.label(l_st)

    def hook():
        l = A.newlabel('L_hk')
        A.I(f's_cmp_eq_u32 s{S_K1}, 1')
        A.br(f's_cbranch_scc1 {l}')
        A.check = False
        tok_init(False)
        A.check = True
        A.label(l)
        A.forget_loads()

    T.qkv_stage(A, [P_Q, P_K, P_V], hook=hook)
    A.label(l_nost)
    ts_tok(A, 1)
    wg_poll_eq(A, dbg, None, D_GB, 256, 2, l_exit, sleep=8)
    ts_tok(A, 7)
    A.I(f's_lshl_b32 s{S_T0}, s{S_G}, 2')
    A.I(f'buffer_load_dword v2, off, {dbg}, s{S_T0} offset:4 sc1')
    A.I(f'buffer_load_dword v3, off, {dbg}, 0 offset:{D_WEIRD} sc1')
    A.I('s_waitcnt vmcnt(0)')
    A.I(f'v_readfirstlane_b32 s{S_T2}, v2')
    A.I(f'v_readfirstlane_b32 s{S_T3}, v3')
    A.I(f's_cmp_ge_u32 s{S_T2}, 32')
    A.I(f's_cselect_b32 s{S_FAST}, 1, 0')
    A.I(f's_cmp_eq_u32 s{S_T3}, 0')
    A.I(f's_cselect_b32 s{S_FAST}, s{S_FAST}, 0')
    if os.environ.get('FORCE_SLOW'):
        A.I(f's_mov_b32 s{S_FAST}, 0')
    l_nop1 = A.newlabel('L_nop1')
    A.I(f's_cmp_ge_u32 s{S_G}, 4')
    A.br(f's_cbranch_scc1 {l_nop1}')
    A.I(f's_lshr_b32 s{S_T0}, s{S_G}, 1')
    A.I(f's_lshl_b32 s{S_T0}, s{S_T0}, 5')
    A.I(f's_add_u32 s{S_END}, s{S_T0}, 32')
    A.I(f's_and_b32 s{S_NX}, s{S_G}, 1')
    A.I(f's_add_u32 s{S_NX}, s{S_NX}, s{S_T0}')
    A.I('v_mov_b32 v2, 0')

    def signal():
        lane0(A, lambda: A.I(f'buffer_store_dword v2, off, {ws}, s{S_CA} sc1'))

    def after():
        A.I('v_add_u32 v2, 1, v2')

    T.qkv_segments(A, 2, 'sc1', after_seg=after, mid_seg=signal, first=S_NX, end=f's{S_END}')
    A.I('s_waitcnt vmcnt(0)')
    signal()
    A.label(l_nop1)
    ts_tok(A, 2)
    T.att_stage(A, P_O)
    T.att_consts(A)
    A.I(f's_load_dwordx4 s[16:19], s[0:1], {KA_W1}')
    A.I('s_waitcnt lgkmcnt(0)')
    make_srd(A, S_W1, 16, 2048 * 3584)
    make_srd(A, S_B1, 18, 3584)
    g2_setup(A)
    A.I(f's_mov_b32 s{S_PRE}, 0')
    for i in range(16):
        A.I(f'v_mov_b32 v{G1ACC + i}, 0')
    A.I(f's_mov_b32 s{S_K1}, 0')
    g1_w1_dma(A, S_K1, first=True)
    A.I(f's_lshl_b32 s{S_OPS}, s{S_G}, 1')
    masks = seg_masks()
    for g in range(7):
        A.I(f's_cmp_eq_u32 s{S_G}, {g}')
        A.I(f's_cselect_b32 s{S_MSK}, 0x{masks[g] & 0xffffffff:x}, s{S_MSK}')
        A.I(f's_cselect_b32 s{S_MSK + 1}, 0x{masks[g] >> 32:x}, s{S_MSK + 1}')
    A.I(f's_ff1_i32_b64 s{S_SEG}, s[{S_MSK}:{S_MSK + 1}]')
    A.I(f's_bitset0_b64 s[{S_MSK}:{S_MSK + 1}], s{S_SEG}')
    A.I(f's_mov_b32 s{S_AV}, 0')
    A.I(f's_lshl_b32 s{S_PB}, s{S_H}, 7')
    A.I(f's_add_u32 s{S_PB}, s{S_PB}, 0x{R.F_PROG:x}')
    R.kv_wait(A, l_exit, S_SEG, 192, s_av=S_AV, s_base=S_PB, sleep=4, vlane16=1)
    T.att_load_qkv(A, S_SEG)
    x_prefetch(A, S_SEG, sx)
    L = A.newlabel('L_p2')
    L_att = A.newlabel('L_att')
    L_fin = A.newlabel('L_p2fin')
    A.label(L)
    A.check = False
    A.I(f's_cmp_ge_u32 s{S_K1}, 16')
    A.I(f's_cbranch_scc1 {L_fin}')
    lq2 = A.newlabel('L_lp2')
    ldec = A.newlabel('L_dec')
    A.I(f's_cmp_lg_u32 s{S_WV}, 0')
    A.br(f's_cbranch_scc1 {ldec}')
    A.I(f's_lshl_b32 s{S_CA}, s{S_H}, 6')
    A.I(f's_add_u32 s{S_CA}, s{S_CA}, 0x{R.F_KMP:x}')
    A.I(f's_add_u32 s40, s{S_SEG}, 2')
    A.I(f's_lshl_b32 s{S_T1}, s{S_K1}, 4')
    A.I(f's_lshl_b32 s{S_T2}, s{S_G}, 9')
    A.I(f's_add_u32 s{S_T1}, s{S_T1}, s{S_T2}')
    A.I(f's_add_u32 s{S_T1}, s{S_T1}, 0x{F_GF + 512:x}')
    lq, lgo, lnk = A.newlabel('L_lp'), A.newlabel('L_go'), A.newlabel('L_nk')
    A.label(lq)
    A.I(f'buffer_load_dwordx4 v[192:195], off, {ws}, s{S_CA} {PLF}')
    A.I(f'buffer_load_dwordx4 v[196:199], off, {ws}, s{S_T1} {PLF}')
    A.I(f's_sub_u32 s{S_SPIN}, s{S_SPIN}, 1')
    A.I(f's_cbranch_scc1 {l_exit}')
    A.I('s_waitcnt vmcnt(0)')
    A.I('v_min_u32 v6, v192, v193')
    A.I('v_min3_u32 v6, v6, v194, v195')
    A.I(f'v_readfirstlane_b32 s{S_T0}, v6')
    A.I('v_min_u32 v7, v196, v197')
    A.I('v_min3_u32 v7, v7, v198, v199')
    A.I('v_cmp_eq_u32 vcc, 0, v7')
    A.I(f's_mov_b32 s{S_T3}, 1')
    A.I(f's_cmp_ge_u32 s{S_T0}, s40')
    A.I(f's_cbranch_scc1 {lgo}')
    A.label(lnk)
    lsl = A.newlabel('L_sl')
    A.I(f's_add_u32 s{S_T0}, s{S_T0}, 2')
    A.I(f's_cmp_ge_u32 s{S_T0}, s40')
    A.I(f's_cbranch_scc1 {lq}')
    A.I(f's_mov_b32 s{S_T3}, 2')
    A.I(f's_cbranch_vccz {lgo}')
    lns = A.newlabel('L_nsl')
    A.I(f's_mov_b32 s{S_T3}, 3')
    A.I(f's_cmp_lt_u32 s{S_SEG}, 64')
    A.I(f's_cbranch_scc1 {lns}')
    A.I(f's_cmp_lt_u32 s{S_K1}, 3')
    A.I(f's_cbranch_scc1 {lns}')
    A.I(f's_cmp_lt_u32 s{S_PRE}, 3')
    A.I(f's_cbranch_scc1 {lgo}')
    A.label(lns)
    A.I('s_sleep 4')
    A.br(f's_branch {lq}')
    A.label(lgo)
    A.I(f'v_mov_b32 v6, s{S_T3}')
    A.I(f'v_mov_b32 v7, {L_RED + 8192 - 16}')
    A.I('ds_write_b32 v7, v6')
    A.I('s_waitcnt lgkmcnt(0)')
    A.label(ldec)
    A.I('s_barrier')
    A.I(f'v_mov_b32 v7, {L_RED + 8192 - 16}')
    A.I('ds_read_b32 v6, v7')
    A.I('s_waitcnt lgkmcnt(0)')
    A.I(f'v_readfirstlane_b32 s{S_T0}, v6')
    A.I(f's_cmp_eq_u32 s{S_T0}, 1')
    A.br(f's_cbranch_scc1 {lq2}')
    lch = A.newlabel('L_ch')
    A.I(f's_cmp_eq_u32 s{S_T0}, 2')
    A.br(f's_cbranch_scc1 {lch}')
    for rnd in range(3):
        lpr = A.newlabel('L_pr')
        A.I(f's_cmp_lg_u32 s{S_PRE}, {rnd}')
        A.br(f's_cbranch_scc1 {lpr}')
        g2_pre(A, rnd)
        A.br(f's_branch {L}')
        A.label(lpr)
    A.label(lch)
    ts_tok(A, 16)
    g1_chunk(A, S_K1, l_exit)
    A.I(f's_add_u32 s{S_K1}, s{S_K1}, 1')
    if CODET:
        lct = A.newlabel('L_ct')
        A.I(f's_cmp_lg_u32 s{S_K1}, 12')
        A.br(f's_cbranch_scc1 {lct}')
        A.I(f's_lshl_b32 s{S_T0}, s{S_H}, 2')
        A.I(f's_add_u32 s{S_T0}, s{S_T0}, s{S_WV}')
        A.I(f's_cmp_lg_u32 s{S_T0}, 7')
        A.br(f's_cbranch_scc1 {L}')
        code_touch(A, L, l_exit, TAIL_BYTES, 5, 143)
        A.br(f's_branch {L}')
        A.label(lct)
    lw2 = A.newlabel('L_w2')
    A.I(f's_cmp_lg_u32 s{S_K1}, 3')
    A.br(f's_cbranch_scc1 {lw2}')
    for k in range(5):
        g2_dma(A, k)
    A.br(f's_branch {L}')
    A.label(lw2)
    A.I(f's_cmp_lg_u32 s{S_K1}, 6')
    A.br(f's_cbranch_scc1 {L}')
    A.I(f's_and_b32 s{S_T0}, s{S_J2}, 7')
    A.I(f's_cmp_lg_u32 s{S_T0}, 4')
    A.br(f's_cbranch_scc1 {L}')
    g2_touch(A, 5)
    A.br(f's_branch {L}')
    A.label(lq2)
    ts_tok(A, 10)
    T.att_load_mem(A, S_SEG, 'sc1')
    A.I('s_waitcnt vmcnt(0)')
    ts_tok(A, 11)
    A.check = True
    A.forget_loads()
    T.att_compute1(A)
    lc1, lc2 = A.newlabel('L_c2s'), A.newlabel('L_c2e')
    A.I(f's_cmp_eq_u32 s{S_FAST}, 0')
    A.br(f's_cbranch_scc1 {lc1}')
    T.att_compute2(A, S_OPS, '')
    A.br(f's_branch {lc2}')
    A.label(lc1)
    T.att_compute2(A, S_OPS, 'sc1')
    A.label(lc2)
    ts_tok(A, 12)
    A.I('s_waitcnt vmcnt(0)')
    A.I('s_barrier')
    ts_tok(A, 13)
    A.I(f's_lshl_b32 s{S_CA}, s{S_SEG}, 7')
    A.I(f's_add_u32 s{S_CA}, s{S_CA}, 0x{F_OPC:x}')
    l0 = A.newlabel('L_n0')
    A.I(f's_cmp_lg_u32 s{S_WV}, 0')
    A.br(f's_cbranch_scc1 {l0}')
    A.I(f's_lshl_b32 s{S_T1}, s{S_H}, 2')
    A.I(f's_add_u32 s{S_T1}, s{S_T1}, s{S_CA}')
    flag_store(A, S_T1, 6)
    poll_flags(A, S_CA, 32, 1, 6, 7, l_exit)
    A.label(l0)
    A.I('s_barrier')
    ts_tok(A, 14)
    red4(A, S_SEG, sx, l_exit)
    A.I(f's_ff1_i32_b64 s{S_SEG}, s[{S_MSK}:{S_MSK + 1}]')
    A.I(f's_bitset0_b64 s[{S_MSK}:{S_MSK + 1}], s{S_SEG}')
    lnn = A.newlabel('L_nn')
    A.I(f's_cmp_lt_u32 s{S_SEG}, 64')
    A.br(f's_cbranch_scc1 {lnn}')
    A.I(f's_mov_b32 s{S_SEG}, 999')
    ts_tok(A, 3)
    A.br(f's_branch {L}')
    A.label(lnn)
    lav = A.newlabel('L_av')
    A.I(f's_cmp_gt_u32 s{S_AV}, s{S_SEG}')
    A.br(f's_cbranch_scc1 {lav}')
    R.kv_wait(A, l_exit, S_SEG, 192, s_av=S_AV, s_base=S_PB, sleep=4, vlane16=1)
    A.label(lav)
    T.att_load_qkv(A, S_SEG)
    x_prefetch(A, S_SEG, sx)
    A.br(f's_branch {L}')
    A.label(L_fin)
    A.forget_loads()
    ts_tok(A, 4)
    g1_epilogue(A, l_exit)
    A.I(f's_add_u32 s{S_G}, s{S_G}, 1')
    tstamp(A, 17)
    A.label(l_g2)
    A.forget_loads()
    g2_main(A, l_exit)
    tstamp(A, 6, 8)
    if DIAG:
        A.I(f's_add_u32 s{S_T0}, s{S_G}, s{S_H}')
        A.I(f's_add_u32 s{S_T0}, s{S_T0}, s{S_WV}')
        A.I(f's_cmp_lg_u32 s{S_T0}, 0')
        A.br(f's_cbranch_scc1 {l_exit}')
        A.I('s_memrealtime s[80:81]')
        A.I('s_waitcnt lgkmcnt(0)')
        A.I('s_sub_u32 s80, s80, s58')
        A.I('v_mov_b32 v8, s60')
        A.I('v_mov_b32 v9, s61')
        A.I('v_mov_b32 v10, s80')
        A.I('v_mov_b32 v11, 0')
        if os.environ.get('DIAG2'):
            A.I(f'buffer_store_dword v9, off, {dbg}, 0 offset:32')
        else:
            A.I(f'buffer_store_dwordx4 v[8:11], off, {dbg}, 0 offset:48')
    A.label(l_exit)
    A.I('s_endpgm')


S_MSK = 56
S_OPS = 47


def seg_masks():
    c1, c2 = int(os.environ.get('C1', 14)), int(os.environ.get('C2', 27))
    m = [0] * 7
    last = {g: -100 for g in range(7)}
    for s_ in range(64):
        cand = [4, 5, 6] if s_ < c1 else ([4, 5, 6, 0, 1] if s_ < c2 else list(range(7)))
        g = min(cand, key=lambda x: last[x])
        last[g] = s_
        m[g] |= 1 << s_
    return m


def j2_calc(A):
    A.I(f's_lshr_b32 s{S_T0}, s{S_G}, 1')
    A.I(f's_lshl_b32 s{S_T0}, s{S_T0}, 3')
    A.I(f's_lshr_b32 s{S_T1}, s{S_H}, 2')
    A.I(f's_add_u32 s{S_T0}, s{S_T0}, s{S_T1}')
    A.I(f's_lshl_b32 s{S_J2}, s{S_T0}, 3')
    A.I(f's_and_b32 s{S_T0}, s{S_G}, 1')
    A.I(f's_lshl_b32 s{S_T0}, s{S_T0}, 2')
    A.I(f's_and_b32 s{S_T1}, s{S_H}, 3')
    A.I(f's_add_u32 s{S_T0}, s{S_T0}, s{S_T1}')
    A.I(f's_add_u32 s{S_J2}, s{S_J2}, s{S_T0}')


def code_touch(A, l_from, l_end, nbytes, vd, va):
    lh = A.newlabel('L_pc')
    A.I('s_getpc_b64 s[80:81]')
    A.raw(f'{lh}:')
    A.raw(f'    s_sub_u32 s80, s80, {lh}-{l_from}')
    A.raw('    s_subb_u32 s81, s81, 0')
    A.I(f'v_lshlrev_b32 v{va}, 7, v0')
    for i in range(0, nbytes, 8192):
        A.raw(f'    v_min_u32 v{va}, {l_end}-{l_from}, v{va}')
        A.raw(f'    global_load_dword v{vd}, v{va}, s[80:81]')
        A.I(f'v_add_u32 v{va}, 8192, v{va}')


def x_prefetch(A, s_seg, sx):
    A.I('v_lshrrev_b32 v6, 2, v0')
    A.I('v_lshlrev_b32 v6, 6, v6')
    A.I('v_and_b32 v7, 3, v0')
    A.I('v_lshl_add_u32 v6, v7, 3, v6')
    A.I(f's_lshl_b32 s{S_T3}, s{s_seg}, 5')
    A.I(f's_add_u32 s{S_T3}, s{S_T3}, s{S_H}')
    A.I(f's_lshl_b32 s{S_T3}, s{S_T3}, 10')
    A.I(f'buffer_load_dwordx2 v[12:13], v6, {sx}, s{S_T3} offen')
    A.I(f'buffer_load_dwordx2 v[14:15], v6, {sx}, s{S_T3} offen offset:32')


def ts_tok(A, i):
    if TIMING:
        A.I(f's_add_u32 s{S_G}, s{S_G}, 1')
        tstamp(A, i, 14 if i in (1, 2, 7, 8) else 6)
        A.I(f's_sub_u32 s{S_G}, s{S_G}, 1')


G1ACC = 120
G1T = 144
L_G1 = 0
L_RED = 65536
L_W2 = 73728


def g1_lane(A):
    t = G1T
    A.I(f'v_lshrrev_b32 v{t}, 3, v0')
    A.I(f'v_and_b32 v{t + 1}, 7, v0')
    A.I(f'v_bfe_u32 v{t + 2}, v0, 4, 1')
    A.I(f's_and_b32 s{S_T0}, s{S_WV}, 1')
    A.I(f's_lshl_b32 s{S_T0}, s{S_T0}, 1')
    A.I(f'v_or_b32 v{t + 2}, s{S_T0}, v{t + 2}')
    A.I(f'v_lshlrev_b32 v{t + 2}, 1, v{t + 2}')
    A.I(f'v_xor_b32 v{t + 1}, v{t + 1}, v{t + 2}')
    A.I(f'v_lshlrev_b32 v{t + 1}, 4, v{t + 1}')
    A.I(f'v_mul_u32_u24 v136, 3584, v{t}')
    A.I(f'v_add_u32 v136, v136, v{t + 1}')
    A.I(f'v_lshl_add_u32 v137, v{t}, 10, v{t + 1}')
    A.I(f'v_and_b32 v{t}, 15, v0')
    A.I(f'v_lshrrev_b32 v{t + 1}, 4, v0')
    A.I(f'v_lshrrev_b32 v{t + 2}, 2, v{t}')
    A.I(f'v_and_b32 v{t + 3}, 3, v{t}')
    A.I(f'v_lshl_add_u32 v{t + 4}, v{t + 1}, 3, v{t + 2}')
    A.I(f'v_lshlrev_b32 v{t + 4}, 7, v{t + 4}')
    A.I(f'v_lshl_add_u32 v{t + 4}, v{t + 3}, 3, v{t + 4}')
    A.I(f'v_lshrrev_b32 v{t + 5}, 1, v{t + 2}')
    A.I(f'v_and_b32 v{t + 6}, 1, v{t + 1}')
    A.I(f'v_lshl_add_u32 v{t + 5}, v{t + 6}, 1, v{t + 5}')
    A.I(f'v_xor_b32 v{t + 6}, s{S_T0}, v{t + 5}')
    A.I(f'v_lshl_add_u32 v138, v{t + 6}, 5, v{t + 4}')
    A.I(f'v_xor_b32 v139, 32, v138')
    A.I(f's_and_b32 s{S_T0}, s{S_WV}, 2')
    A.I(f'v_xor_b32 v{t + 6}, s{S_T0}, v{t + 5}')
    A.I(f'v_lshl_add_u32 v140, v{t + 6}, 5, v{t + 4}')
    A.I(f'v_add_u32 v140, 16384, v140')
    A.I(f'v_xor_b32 v141, 32, v140')


def g1_w1_dma(A, s_k, first=False, plus=0):
    if first:
        g1_lane(A)
    w1 = f's[{S_W1}:{S_W1 + 3}]'
    A.I(f's_add_u32 s{S_T2}, s{s_k}, {plus}')
    A.I(f's_mul_i32 s{S_T0}, s{S_T2}, {128 * 3584}')
    A.I(f's_mul_i32 s{S_T1}, s{S_WV}, {8 * 3584}')
    A.I(f's_add_u32 s{S_T0}, s{S_T0}, s{S_T1}')
    A.I(f's_lshr_b32 s{S_T1}, s{S_J}, 3')
    A.I(f's_lshl_b32 s{S_T1}, s{S_T1}, 7')
    A.I(f's_add_u32 s{S_T0}, s{S_T0}, s{S_T1}')
    A.I(f's_and_b32 s{S_T1}, s{S_T2}, 1')
    A.I(f's_lshl_b32 s{S_T1}, s{S_T1}, 15')
    A.I(f's_lshl_b32 s{S_T2}, s{S_WV}, 10')
    A.I(f's_add_u32 s{S_T1}, s{S_T1}, s{S_T2}')
    for i in range(4):
        A.I(f's_add_u32 m0, s{S_T1}, {L_G1 + i * 4096}')
        A.I(f's_add_u32 s{S_T2}, s{S_T0}, {i * 32 * 3584}')
        A.I(f'buffer_load_dwordx4 v136, {w1}, s{S_T2} offen lds')


def g1_chunk(A, s_k, l_exit):
    ws = f's[{S_WS}:{S_WS + 3}]'
    A.I(f's_lshl_b32 s{S_T0}, s{s_k}, 17')
    A.I(f's_lshl_b32 s{S_T1}, s{S_WV}, 13')
    A.I(f's_add_u32 s{S_T0}, s{S_T0}, s{S_T1}')
    A.I(f's_and_b32 s{S_T1}, s{S_J}, 7')
    A.I(f's_lshl_b32 s{S_T1}, s{S_T1}, 7')
    A.I(f's_add_u32 s{S_T0}, s{S_T0}, s{S_T1}')
    A.I(f's_add_u32 s{S_T0}, s{S_T0}, 0x{WS_HP:x}')
    A.I(f's_and_b32 s{S_T3}, s{s_k}, 1')
    A.I(f's_lshl_b32 s{S_T3}, s{S_T3}, 15')
    A.I(f's_lshl_b32 s{S_T2}, s{S_WV}, 10')
    A.I(f's_add_u32 s{S_T1}, s{S_T3}, s{S_T2}')
    for i in range(4):
        A.I(f's_add_u32 m0, s{S_T1}, {L_G1 + 16384 + i * 4096}')
        A.I(f's_add_u32 s{S_T2}, s{S_T0}, {i * 32 * 1024}')
        A.I(f'buffer_load_dwordx4 v137, {ws}, s{S_T2} offen lds')
    AD = G1T
    for j in range(4):
        A.I(f'v_add_u32 v{AD + j}, s{S_T3}, v{138 + j}')
    g1_w1_dma(A, s_k, plus=1)
    A.I('s_waitcnt vmcnt(4)')
    A.I('s_barrier')
    FR = G1T + 8

    def rd(ks):
        for j in range(4):
            for x in range(2):
                A.I(f'ds_read_b64_tr_b16 {v(FR + 16 * ks + 4 * j + 2 * x, 2)}, v{AD + j} offset:{L_G1 + (32 * ks + 4 * x) * 128}')

    rd(0)
    for ks in range(4):
        if ks < 3:
            rd(ks + 1)
            A.I('s_waitcnt lgkmcnt(8)')
        else:
            A.I('s_waitcnt lgkmcnt(0)')
        f = FR + 16 * ks
        for mbp in range(2):
            for nbp in range(2):
                d = G1ACC + (mbp * 2 + nbp) * 4
                A.I(f'v_mfma_f32_16x16x32_bf16 {v(d, 4)}, {v(f + 4 * mbp, 4)}, {v(f + 8 + 4 * nbp, 4)}, {v(d, 4)}')


def g1_epilogue(A, l_exit):
    import math
    ws, b1 = f's[{S_WS}:{S_WS + 3}]', f's[{S_B1}:{S_B1 + 3}]'
    ACC, BI, Z, Pk, TT, O = G1ACC, 150, 160, 168, 172, 188
    A.I(f's_lshr_b32 s{S_T2}, s{S_J}, 3')
    A.I(f's_lshl_b32 s{S_T0}, s{S_T2}, 7')
    A.I(f's_and_b32 s{S_T1}, s{S_WV}, 1')
    A.I(f's_lshl_b32 s{S_T1}, s{S_T1}, 6')
    A.I(f's_add_u32 s{S_T0}, s{S_T0}, s{S_T1}')
    A.I('v_lshrrev_b32 v144, 4, v0')
    A.I('v_lshlrev_b32 v144, 3, v144')
    A.I(f'buffer_load_dwordx2 v[146:147], v144, {b1}, s{S_T0} offen')
    A.I(f'buffer_load_dwordx2 v[148:149], v144, {b1}, s{S_T0} offen offset:32')
    A.I(f's_and_b32 s{S_T0}, s{S_J}, 7')
    A.I(f's_lshl_b32 s{S_T0}, s{S_T0}, 2')
    A.I(f's_and_b32 s{S_T1}, s{S_WV}, 2')
    A.I(f's_add_u32 s{S_T0}, s{S_T0}, s{S_T1}')
    A.I(f's_mul_i32 s{S_T0}, s{S_T0}, 56')
    A.I(f's_lshl_b32 s{S_T1}, s{S_T2}, 1')
    A.I(f's_add_u32 s{S_T0}, s{S_T0}, s{S_T1}')
    A.I(f's_and_b32 s{S_T1}, s{S_WV}, 1')
    A.I(f's_add_u32 s{S_T0}, s{S_T0}, s{S_T1}')
    A.I(f's_lshl_b32 s{S_T0}, s{S_T0}, 10')
    A.I(f's_add_u32 s{S_T0}, s{S_T0}, 0x{WS_U:x}')
    k1 = -2 * math.sqrt(2 / math.pi) * math.log2(math.e)
    A.I(f's_mov_b32 s{S_T2}, {f32(k1)}')
    A.I(f's_mov_b32 s{S_T3}, {f32(k1 * 0.044715)}')
    A.I('v_lshlrev_b32 v145, 4, v0')
    A.I('s_waitcnt vmcnt(0)')
    for i in range(4):
        A.I(f'v_lshlrev_b32 v{BI + 2 * i}, 16, v{146 + i}')
        A.I(f'v_and_b32 v{BI + 2 * i + 1}, 0xffff0000, v{146 + i}')
    for nbp in range(2):
        for mbp in range(2):
            for r in range(4):
                A.I(f'v_mov_b32 v{Z + 4 * mbp + r}, v{ACC + (mbp * 2 + nbp) * 4 + r}')
        T.round_bf16(A, Z, Pk)
        for i in range(8):
            A.I(f'v_add_f32 v{Z + i}, v{Z + i}, v{BI + i}')
        T.round_bf16(A, Z, Pk)
        for i in range(8):
            t = TT + i
            A.I(f'v_mul_f32 v{t}, v{Z + i}, v{Z + i}')
            A.I(f'v_mov_b32 v{t + 8}, s{S_T2}')
            A.I(f'v_fmac_f32 v{t + 8}, s{S_T3}, v{t}')
            A.I(f'v_mul_f32 v{t}, v{t + 8}, v{Z + i}')
            A.I(f'v_exp_f32 v{t}, v{t}')
        for i in range(8):
            A.I(f'v_add_f32 v{TT + i}, 1.0, v{TT + i}')
            A.I(f'v_rcp_f32 v{TT + i}, v{TT + i}')
        for i in range(8):
            A.I(f'v_mul_f32 v{Z + i}, v{Z + i}, v{TT + i}')
        o = O + 4 * nbp
        for i in range(4):
            A.I(f'v_cvt_pk_bf16_f32 v{o + i}, v{Z + 2 * i}, v{Z + 2 * i + 1}')
        A.I(f'buffer_store_dwordx4 {v(o, 4)}, v145, {ws}, s{S_T0} offen sc1')
        A.I(f's_add_u32 s{S_T0}, s{S_T0}, {56 * 1024}')
    A.I('s_waitcnt vmcnt(0)')
    A.I('s_barrier')
    l = A.newlabel('L_ue')
    A.I(f's_cmp_lg_u32 s{S_WV}, 0')
    A.br(f's_cbranch_scc1 {l}')
    A.I(f's_lshl_b32 s{S_T2}, s{S_G}, 7')
    A.I(f's_add_u32 s{S_T2}, s{S_T2}, 0x{F_LU:x}')
    A.I(f's_lshl_b32 s{S_T3}, s{S_G}, 2')
    A.I(f's_add_u32 s{S_T3}, s{S_T3}, 0x{F_GF + 256:x}')
    garrive(A, S_T2, S_T3, 144, l_exit)
    A.label(l)


def g2_slot(k):
    return L_W2 + 16384 * (k % 5)


S_PRE = 62


def g2_pre(A, rnd):
    t = G1T
    A.I(f'v_and_b32 v{t}, 15, v0')
    A.I(f'v_lshrrev_b32 v{t + 1}, 4, v0')
    A.I(f'v_lshrrev_b32 v{t + 2}, 2, v{t}')
    A.I(f'v_and_b32 v{t + 3}, 3, v{t}')
    A.I(f'v_lshl_add_u32 v{t + 2}, v{t + 1}, 2, v{t + 2}')
    A.I(f'v_bfe_u32 v{t + 1}, v{t + 2}, 1, 2')
    A.I(f'v_lshlrev_b32 v{t + 2}, 7, v{t + 2}')
    A.I(f'v_lshl_add_u32 v{t + 2}, v{t + 3}, 3, v{t + 2}')
    A.I(f'v_lshl_add_u32 v{t + 2}, v{t + 1}, 5, v{t + 2}')
    A.I(f's_lshl_b32 s{S_T0}, s{S_WV}, 12')
    A.I(f's_add_u32 s{S_T0}, s{S_T0}, {L_W2}')
    for j in range(4):
        A.I(f'v_xor_b32 v{t + 4 + j}, {32 * j}, v{t + 2}')
        A.I(f'v_add_u32 v{t + 4 + j}, s{S_T0}, v{t + 4 + j}')
        A.I(f'v_add_u32 v{t + 8 + j}, 49152, v{t + 4 + j}')
    A.I('s_waitcnt vmcnt(0)')
    A.I('s_barrier')
    ks_ = list(range(5 * rnd, min(5 * rnd + 5, 14)))
    for k in ks_:
        so = 16384 * (k % 5)
        ab = t + 4
        if so >= 49152:
            so -= 49152
            ab = t + 8
        for j in range(4):
            for x in range(2):
                A.I(f'ds_read_b64_tr_b16 {a(16 * k + 4 * j + 2 * x, 2)}, v{ab + j} offset:{so + 16 * x * 128}')
        A.I('s_waitcnt lgkmcnt(4)')
    A.I('s_waitcnt lgkmcnt(0)')
    if rnd < 2:
        A.I('s_barrier')
        for k in range(5 * rnd + 5, min(5 * rnd + 10, 14)):
            g2_dma(A, k)
    A.I(f's_mov_b32 s{S_PRE}, {rnd + 1}')


def g2_setup(A):
    A.I(f's_load_dwordx2 s[16:17], s[0:1], {KA_W2}')
    A.I('s_waitcnt lgkmcnt(0)')
    make_srd(A, S_W2, 16, 1792 * 4096)
    t = G1T
    A.I(f'v_lshrrev_b32 v{t}, 3, v0')
    A.I(f'v_and_b32 v{t + 1}, 7, v0')
    A.I(f'v_lshrrev_b32 v{t + 2}, 4, v0')
    A.I(f'v_lshlrev_b32 v{t + 2}, 1, v{t + 2}')
    A.I(f'v_xor_b32 v{t + 1}, v{t + 1}, v{t + 2}')
    A.I(f'v_lshlrev_b32 v{t + 1}, 4, v{t + 1}')
    A.I(f'v_lshl_add_u32 v142, v{t}, 12, v{t + 1}')
    A.I(f's_lshl_b32 s{S_BO2}, s{S_WV}, 15')
    A.I(f's_lshr_b32 s{S_T0}, s{S_J2}, 3')
    A.I(f's_lshl_b32 s{S_T0}, s{S_T0}, 7')
    A.I(f's_add_u32 s{S_BO2}, s{S_BO2}, s{S_T0}')
    A.I(f's_lshl_b32 s{S_LB2}, s{S_WV}, 10')


def g2_dma(A, k, vr=142):
    w2 = f's[{S_W2}:{S_W2 + 3}]'
    for i in range(4):
        A.I(f's_add_u32 m0, s{S_LB2}, {g2_slot(k) + i * 4096}')
        A.I(f's_add_u32 s{S_T0}, s{S_BO2}, {(k * 128 + i * 32) * 4096}')
        A.I(f'buffer_load_dwordx4 v{vr}, {w2}, s{S_T0} offen lds')


def g2_touch(A, k0):
    w2 = f's[{S_W2}:{S_W2 + 3}]'
    A.I('v_lshlrev_b32 v143, 12, v0')
    A.I(f's_lshr_b32 s{S_T0}, s{S_J2}, 3')
    A.I(f's_lshl_b32 s{S_T0}, s{S_T0}, 7')
    A.I(f's_lshl_b32 s{S_T1}, s{S_WV}, 18')
    A.I(f's_add_u32 s{S_T0}, s{S_T0}, s{S_T1}')
    for r0 in range(k0 * 128, 1792, 256):
        A.I(f's_add_u32 s{S_T1}, s{S_T0}, {r0 * 4096}')
        A.I(f'buffer_load_dword v5, v143, {w2}, s{S_T1} offen')


def g2_main(A, l_exit):
    ws = f's[{S_WS}:{S_WS + 3}]'
    S_O, S_B2 = S_W1, S_B1
    A.I(f's_load_dwordx4 s[16:19], s[0:1], {KA_B2}')
    for rnd in range(3):
        l = A.newlabel('L_pre')
        A.I(f's_cmp_gt_u32 s{S_PRE}, {rnd}')
        A.br(f's_cbranch_scc1 {l}')
        g2_pre(A, rnd)
        A.label(l)
        A.forget_loads()
    A.I('s_waitcnt lgkmcnt(0)')
    make_srd(A, S_B2, 16, 4096)
    make_srd(A, S_O, 18, 2048 * 1024)
    b2, out = f's[{S_B2}:{S_B2 + 3}]', f's[{S_O}:{S_O + 3}]'
    S_AO, S_EO = 36, 37
    A.I(f's_and_b32 s{S_T0}, s{S_J2}, 7')
    A.I(f's_mul_i32 s{S_AO}, s{S_T0}, {4 * 56 * 1024}')
    A.I(f's_lshl_b32 s{S_T1}, s{S_WV}, 10')
    A.I(f's_add_u32 s{S_AO}, s{S_AO}, s{S_T1}')
    A.I(f's_add_u32 s{S_AO}, s{S_AO}, 0x{WS_U:x}')
    A.I(f's_lshl_b32 s{S_T0}, s{S_T0}, 2')
    A.I(f's_add_u32 s{S_T0}, s{S_T0}, s{S_WV}')
    A.I(f's_lshr_b32 s{S_T1}, s{S_J2}, 3')
    A.I(f's_lshl_b32 s{S_EO}, s{S_T1}, 16')
    A.I(f's_lshl_b32 s{S_T0}, s{S_T0}, 5')
    A.I(f's_add_u32 s{S_EO}, s{S_EO}, s{S_T0}')
    A.I('v_lshlrev_b32 v5, 4, v0')
    A.I('v_and_b32 v1, 15, v0')
    A.I('v_lshrrev_b32 v2, 4, v0')
    A.I('v_lshlrev_b32 v3, 10, v1')
    A.I('v_lshl_add_u32 v3, v2, 3, v3')
    A.I('v_lshlrev_b32 v4, 1, v1')
    A.I(f's_lshl_b32 s{S_T1}, s{S_T1}, 7')
    HB, BB, ACC, AR = 10, 18, 24, 88
    NA = 42
    for nb in range(4):
        A.I(f'buffer_load_ushort v{BB + nb}, v4, {b2}, s{S_T1} offen offset:{32 * nb}')
    l0 = A.newlabel('L_g20')
    A.I(f's_cmp_lg_u32 s{S_WV}, 0')
    A.br(f's_cbranch_scc1 {l0}')
    A.I(f's_lshl_b32 s{S_T1}, s{S_G}, 9')
    A.I(f's_add_u32 s{S_T1}, s{S_T1}, 0x{F_GF + 256:x}')
    poll_flags(A, S_T1, 7, 1, 6, 7, l_exit, sleep=1)
    A.label(l0)
    A.I('s_waitcnt vmcnt(0)')
    A.I('s_barrier')
    tstamp(A, 5, 8)
    vmq = []

    def aload(i):
        k, db = i >> 2, i & 3
        off = db * 56 * 1024 + k * 4096
        A.I(f's_add_u32 s{S_T1}, s{S_AO}, {off}')
        A.I(f'buffer_load_dwordx4 {v(AR + 4 * (i % NA), 4)}, v5, {ws}, s{S_T1} offen')
        vmq.append(('a', i))

    def need(names):
        idx = max([i for i, p in enumerate(vmq) if p in names] + [-1])
        if idx >= 0:
            A.I(f's_waitcnt vmcnt({len(vmq) - 1 - idx})')
            del vmq[:idx + 1]

    for i in range(NA):
        aload(i)
    for nb in range(4):
        A.I(f's_add_u32 s{S_T0}, s{S_EO}, 0x{WS_H + nb * 16384:x}')
        A.I(f'buffer_load_dwordx2 {v(HB + 2 * nb, 2)}, v3, {ws}, s{S_T0} offen')
        vmq.append(('h', 0))
    for i in range(56):
        k, db = i >> 2, i & 3
        need([('a', i)])
        if i == 0 and TIMING:
            A.check = False
            tstamp(A, 19, 8)
            vmq.append(('ts', 0))
            A.check = True
        for nb in range(4):
            d = ACC + 16 * db + 4 * nb
            c = '0' if k == 0 else v(d, 4)
            A.I(f'v_mfma_f32_16x16x32_bf16 {v(d, 4)}, {v(AR + 4 * (i % NA), 4)}, {a(16 * k + 4 * nb, 4)}, {c}')
        if i + NA < 56:
            aload(i + NA)
    A.I(f's_lshl_b32 s{S_T0}, s{S_WV}, 12')
    A.I(f'v_add_u32 v6, s{S_T0}, v5')
    for db in range(4):
        for nb in range(4):
            A.I(f'ds_write_b128 v6, {v(ACC + 16 * db + 4 * nb, 4)} offset:{db * 16384 + nb * 1024}')
        A.I('s_waitcnt lgkmcnt(8)')
    A.I(f's_lshl_b32 s{S_T0}, s{S_WV}, 14')
    A.I(f'v_add_u32 v6, s{S_T0}, v5')
    A.I('s_waitcnt lgkmcnt(0)')
    A.I('s_barrier')
    for j in range(16):
        A.I(f'ds_read_b128 {v(ACC + 4 * j, 4)}, v6 offset:{1024 * j}')
        if j == 11:
            A.I('s_waitcnt lgkmcnt(8)')
    A.I('s_waitcnt lgkmcnt(0) vmcnt(0)')
    tstamp(A, 18, 8)
    for r in range(0, 16, 2):
        A.I(f'v_pk_add_f32 {v(ACC + r, 2)}, {v(ACC + r, 2)}, {v(ACC + 16 + r, 2)}')
        A.I(f'v_pk_add_f32 {v(ACC + 32 + r, 2)}, {v(ACC + 32 + r, 2)}, {v(ACC + 48 + r, 2)}')
    for r in range(0, 16, 2):
        A.I(f'v_pk_add_f32 {v(ACC + r, 2)}, {v(ACC + r, 2)}, {v(ACC + 32 + r, 2)}')
    for nb in range(4):
        d = ACC + 4 * nb
        t = 88
        A.I(f'v_cvt_pk_bf16_f32 v{t}, v{d}, v{d + 1}')
        A.I(f'v_cvt_pk_bf16_f32 v{t + 1}, v{d + 2}, v{d + 3}')
        A.I(f'v_lshlrev_b32 v{t + 2}, 16, v{BB + nb}')
        for i in range(2):
            A.I(f'v_lshlrev_b32 v{d + 2 * i}, 16, v{t + i}')
            A.I(f'v_and_b32 v{d + 2 * i + 1}, 0xffff0000, v{t + i}')
        for r in range(4):
            A.I(f'v_add_f32 v{d + r}, v{d + r}, v{t + 2}')
        A.I(f'v_cvt_pk_bf16_f32 v{t}, v{d}, v{d + 1}')
        A.I(f'v_cvt_pk_bf16_f32 v{t + 1}, v{d + 2}, v{d + 3}')
        for i in range(2):
            A.I(f'v_lshlrev_b32 v{d + 2 * i}, 16, v{t + i}')
            A.I(f'v_and_b32 v{d + 2 * i + 1}, 0xffff0000, v{t + i}')
            A.I(f'v_lshlrev_b32 v{t + 2}, 16, v{HB + 2 * nb + i}')
            A.I(f'v_and_b32 v{t + 3}, 0xffff0000, v{HB + 2 * nb + i}')
            A.I(f'v_add_f32 v{d + 2 * i}, v{d + 2 * i}, v{t + 2}')
            A.I(f'v_add_f32 v{d + 2 * i + 1}, v{d + 2 * i + 1}, v{t + 3}')
        o = 92 + 2 * nb
        A.I(f'v_cvt_pk_bf16_f32 v{o}, v{d}, v{d + 1}')
        A.I(f'v_cvt_pk_bf16_f32 v{o + 1}, v{d + 2}, v{d + 3}')
        A.I(f's_add_u32 s{S_T0}, s{S_EO}, {nb * 16384}')
        A.I(f'buffer_store_dwordx2 {v(o, 2)}, v3, {out}, s{S_T0} offen')


def red4(A, s_seg, srd_x, l_exit):
    ws = f's[{S_WS}:{S_WS + 3}]'
    B, Z, Pk, XR, t0, t1, va = 192, 144, 152, 12, 160, 161, 162
    A.I(f's_lshl_b32 s{S_T2}, s{s_seg}, 5')
    A.I(f's_add_u32 s{S_T2}, s{S_T2}, s{S_H}')
    A.I(f's_lshl_b32 s{S_T0}, s{S_OPS}, 5')
    A.I(f's_add_u32 s{S_T0}, s{S_T0}, s{S_H}')
    A.I(f's_lshl_b32 s{S_T0}, s{S_T0}, 15')
    A.I(f's_xor_b32 s{S_OPS}, s{S_OPS}, 1')
    A.I(f's_lshl_b32 s{S_T1}, s{S_WV}, 13')
    A.I(f's_add_u32 s{S_T0}, s{S_T0}, s{S_T1}')
    A.I(f's_add_u32 s{S_T0}, s{S_T0}, 0x{WS_OP:x}')
    A.I(f's_add_u32 s{S_T1}, s{S_T0}, 4096')
    for hh in range(8):
        so = S_T0 if hh < 4 else S_T1
        A.I(f'buffer_load_dwordx4 {v(B + 4 * hh, 4)}, v1, {ws}, s{so} offen offset:{1024 * (hh & 3)} sc1')
    A.I(f's_lshl_b32 s{S_T3}, s{S_T2}, 10')
    A.I(f'v_lshrrev_b32 v{va}, 2, v0')
    A.I(f'v_lshlrev_b32 v{va}, 6, v{va}')
    A.I(f'v_and_b32 v{t0}, 3, v0')
    A.I(f'v_lshl_add_u32 v{va}, v{t0}, 3, v{va}')
    for hh in range(8):
        A.I(f's_waitcnt vmcnt({7 - hh})')
        for i in range(4):
            r = B + 4 * hh + i
            if hh == 0:
                A.I(f'v_lshlrev_b32 v{Z + 2 * i}, 16, v{r}')
                A.I(f'v_and_b32 v{Z + 2 * i + 1}, 0xffff0000, v{r}')
            else:
                A.I(f'v_lshlrev_b32 v{t0}, 16, v{r}')
                A.I(f'v_and_b32 v{t1}, 0xffff0000, v{r}')
                A.I(f'v_add_f32 v{Z + 2 * i}, v{Z + 2 * i}, v{t0}')
                A.I(f'v_add_f32 v{Z + 2 * i + 1}, v{Z + 2 * i + 1}, v{t1}')
    A.I(f's_lshl_b32 s{S_T0}, s{S_WV}, 11')
    A.I(f'v_add_u32 v{t0}, s{S_T0}, v1')
    A.I(f'v_add_u32 v{t0}, {L_RED}, v{t0}')
    A.I(f'ds_write_b128 v{t0}, {v(Z, 4)}')
    A.I(f'ds_write_b128 v{t0}, {v(Z + 4, 4)} offset:1024')
    A.I('s_waitcnt lgkmcnt(0) vmcnt(0)')
    A.I('s_barrier')
    ts_tok(A, 15)
    l = A.newlabel('L_r4')
    A.I(f's_cmp_lg_u32 s{S_WV}, 0')
    A.br(f's_cbranch_scc1 {l}')
    for w_ in range(1, 4):
        for j in range(2):
            A.I(f'ds_read_b128 {v(B + 8 * w_ + 4 * j, 4)}, v{t0} offset:{2048 * w_ + 1024 * j}')
    A.I('s_waitcnt lgkmcnt(0)')
    for w_ in range(1, 4):
        for i in range(8):
            A.I(f'v_add_f32 v{Z + i}, v{Z + i}, v{B + 8 * w_ + i}')
    T.round_bf16(A, Z, Pk)
    for i in range(4):
        A.I(f'v_lshlrev_b32 v{t0}, 16, v{XR + i}')
        A.I(f'v_and_b32 v{t1}, 0xffff0000, v{XR + i}')
        A.I(f'v_add_f32 v{Z + 2 * i}, v{Z + 2 * i}, v{t0}')
        A.I(f'v_add_f32 v{Z + 2 * i + 1}, v{Z + 2 * i + 1}, v{t1}')
    T.round_bf16(A, Z, Pk)
    A.I(f's_add_u32 s{S_T0}, s{S_T3}, 0x{WS_H:x}')
    A.I(f'buffer_store_dwordx2 {v(Pk, 2)}, v{va}, {ws}, s{S_T0} offen sc1')
    A.I(f'buffer_store_dwordx2 {v(Pk + 2, 2)}, v{va}, {ws}, s{S_T0} offen offset:32 sc1')
    T.ln_regs(A, Z, t0, t1)
    T.round_bf16(A, Z, XR)
    T.ln_regs(A, Z, t0, t1)
    for i in range(4):
        A.I(f'v_cvt_pk_bf16_f32 v{XR + i}, v{Z + 2 * i}, v{Z + 2 * i + 1}')
    A.I(f's_add_u32 s{S_T0}, s{S_T3}, 0x{WS_HP:x}')
    A.I(f'buffer_store_dwordx2 {v(XR, 2)}, v{va}, {ws}, s{S_T0} offen sc1')
    A.I(f'buffer_store_dwordx2 {v(XR + 2, 2)}, v{va}, {ws}, s{S_T0} offen offset:32 sc1')
    A.I(f's_lshl_b32 s{S_T2}, s{s_seg}, 7')
    A.I(f's_add_u32 s{S_T2}, s{S_T2}, 0x{F_LH:x}')
    A.I(f's_lshl_b32 s{S_T3}, s{s_seg}, 2')
    A.I(f's_add_u32 s{S_T3}, s{S_T3}, 0x{F_GF:x}')
    A.I('s_waitcnt vmcnt(0)')
    garrive(A, S_T2, S_T3, t0, l_exit)
    A.label(l)


if __name__ == '__main__':
    A = Asm()
    nm = NAME + '_kernel'
    mega_kernel(A, nm)
    hd = header([(nm, 256, 256, R.L_TOTAL)])
    if os.environ.get('FINAL'):
        hd = hd.replace(f'@launch kernel={nm} ', '@launch ')
    txt = hd + A.text() + '.section .rodata,"a"\n' + kernel_desc(nm, 512, 256)
    out = os.environ.get('OUT', 'm3.s')
    open(out, 'w').write(txt)
    print(len(txt))
```

```python
from common import *
import os, math, struct
STAMPS = bool(os.environ.get('STAMPS'))
NSTEPS = 63
LDF = os.environ.get('LDF', 'sc1').replace('_', ' ')
STF = os.environ.get('STF', '').replace('_', ' ')
EXF = os.environ.get('EXF', 'sc1')
E = lambda k, d: int(os.environ.get(k, d))
TOUCH_AHEAD = E('TOUCH_AHEAD', 1)
PB_DELAY, PB_GAP, AF_DELAY, AF_GAP = E('PB_DELAY', 0), E('PB_GAP', 0), E('AF_DELAY', 0), E('AF_GAP', 3)
OUT = os.environ.get('OUT', 'rec_test.s')

L_QX = 0
L_KX_ = 2560
L_VM = 5120
L_AF = 7168
L_OX = L_AF
L_KV = 15360
L_WO = 31744
L_HALF = 65792
L_TOTAL = L_WO + 2 * L_HALF

PB_GRP = 8448
PB_SLOT = 0x48000

S_WS, S_W, S_DBG = 4, 8, 12
S_H, S_WV, S_STEP = 32, 33, 34
S_SPIN = 35
S_MBR, S_MBW = 36, 37
S_TAG = 47
S_PB0, S_PB1 = 38, 39
S_PB0H = 40
S_AFO = 41
S_TCH = 42
S_KVN = 44
S_KMO, S_VMO = 45, 46
S_T0, S_T1, S_T2, S_T3 = 48, 49, 50, 51
S_C = 52
S_ONE = 54
S_TS = 56
S_M0, S_M1 = 16, 18
S_W640 = 20
S_KVM0 = 62
S_W11 = 63

AF = 0
ACC = 32
KX = 56
VX = 88
T = 96
V_IDX, V_L16, V_QKW, V_QR, V_KR, V_OW, V_WO0, V_WO1, V_PBW, V_RDR, V_MBW, V_SEL, V_VX, V_SP, V_MX, V_TM = range(112, 128)
S_PZ = 43
LANE = 100

LDS_SLOT = {}
_l0 = [('q', 0, 0), ('q', 1, 0), ('q', 0, 1), ('q', 1, 1), ('k', 0, 0), ('k', 1, 0), ('o', 6, 0), ('o', 7, 0)]
_l1 = [('k', 0, 1), ('k', 1, 1), ('k', 0, 2), ('k', 1, 2), ('k', 0, 3), ('k', 1, 3), ('o', 6, 1), ('o', 7, 1)]
for i, f in enumerate(_l0):
    LDS_SLOT[f] = (0, i)
for i, f in enumerate(_l1):
    LDS_SLOT[f] = (1, i)
HOME = {}
_h = 0
for mat in 'qkv':
    for nb in range(2):
        for t in range(8):
            HOME[(mat, nb, t)] = (256 + _h * 8) if _h < 32 else (128 + (_h - 32) * 8)
            _h += 1
for t2 in range(2):
    vac = [f for f, (hf, sl) in LDS_SLOT.items() if hf == t2 and f[0] != 'o']
    assert len(vac) == 6
    for nbo in range(6):
        HOME[('o', nbo, t2)] = HOME[vac[nbo]]


def lds_frag_read(A, f, b):
    hf, sl = LDS_SLOT[f]
    va = V_WO1 if hf else V_WO0
    A.I(f'ds_read_b128 {v(b, 4)}, v{va} offset:{sl * 2048}')
    A.I(f'ds_read_b128 {v(b + 4, 4)}, v{va} offset:{sl * 2048 + 1024}')


def lane_fields(A, vt, vg, vn):
    A.I(f'v_and_b32 v{vn}, 15, v{vt}')
    A.I(f'v_bfe_u32 v{vg}, v{vt}, 4, 2')


def stage_weights(A, ptr_sgprs, hook=None, hook_issue=None, hook_check=None, hook_sc=None):
    g, n = 2, 3
    lane_fields(A, LANE, g, n)
    VD0, VD1 = 4, 5
    A.I(f'v_lshrrev_b32 v6, 5, v{LANE}')
    A.I(f's_and_b32 s{S_T0}, s{S_WV}, 1')
    A.I(f's_lshl_b32 s{S_T0}, s{S_T0}, 1')
    A.I(f'v_or_b32 v6, s{S_T0}, v6')
    A.I(f'v_lshlrev_b32 v6, 1, v6')
    A.I(f'v_xor_b32 v6, v6, v{n}')
    A.I(f'v_lshlrev_b32 v6, 4, v6')
    A.I(f'v_lshlrev_b32 v7, 13, v{g}')
    A.I(f'v_or_b32 v{VD0}, v6, v7')
    A.I(f'v_xor_b32 v{VD1}, 0x80, v{VD0}')
    A.I(f'v_lshrrev_b32 v6, 2, v{n}')
    A.I(f'v_and_b32 v7, 3, v{n}')
    A.I(f'v_and_b32 v8, 1, v6')
    A.I(f'v_lshrrev_b32 v9, 1, v6')
    A.I(f'v_and_b32 v10, 1, v{g}')
    A.I(f'v_lshrrev_b32 v11, 1, v{g}')
    A.I(f'v_lshlrev_b32 v12, 7, v11')
    A.I(f'v_lshl_add_u32 v12, v10, 1, v12')
    A.I(f'v_lshl_add_u32 v12, v8, 4, v12')
    A.I(f'v_lshl_add_u32 v12, v9, 2, v12')
    A.I(f'v_lshl_add_u32 v13, v9, 1, v10')
    A.I(f'v_lshl_add_u32 v13, v8, 2, v13')
    A.I(f's_lshl_b32 s{S_T0}, s{S_WV}, 1')
    A.I(f'v_xor_b32 v13, s{S_T0}, v13')
    A.I(f'v_lshlrev_b32 v14, 8, v12')
    A.I(f'v_lshl_add_u32 v14, v13, 5, v14')
    A.I(f'v_lshl_add_u32 v14, v7, 3, v14')
    VT = {}
    A.I(f'v_xor_b32 v15, 32, v14')
    r = 64
    for cu in range(4):
        A.I(f's_xor_b32 s{S_T0}, s{S_WV}, {cu}')
        A.I(f's_lshl_b32 s{S_T0}, s{S_T0}, 13')
        for bf in range(2):
            A.I(f's_add_u32 s{S_T1}, s{S_T0}, {L_WO + bf * L_HALF}')
            for nb in range(2):
                VT[(nb, bf, cu)] = r
                A.I(f'v_add_u32 v{r}, s{S_T1}, v{14 + nb}')
                r += 1
    A.I(f'v_lshl_add_u32 v13, v9, 1, v8')
    A.I(f'v_lshl_add_u32 v13, v10, 2, v13')
    A.I(f'v_lshlrev_b32 v14, 13, v13')
    A.I(f'v_lshl_add_u32 v14, v11, 11, v14')
    A.I(f'v_lshl_add_u32 v14, v13, 5, v14')
    A.I(f'v_lshl_add_u32 v14, v7, 3, v14')
    A.I(f's_lshl_b32 s{S_T0}, s{S_WV}, 8')
    A.I(f'v_add_u32 v14, s{S_T0}, v14')
    VTO = {0: 20, 1: 21}
    A.I(f'v_add_u32 v20, {L_WO}, v14')
    A.I(f'v_add_u32 v21, {L_WO + L_HALF}, v14')
    WOT = 32

    def dma(sc):
        buf = L_WO + (sc & 1) * L_HALF
        if sc < 6:
            mat, hh = sc >> 1, sc & 1
            make_srd(A, S_W, ptr_sgprs[mat], 512 * 8192)
            A.I(f's_lshl_b32 s{S_T0}, s{S_WV}, 15')
            A.I(f's_lshl_b32 s{S_T1}, s{S_H}, 8')
            A.I(f's_add_u32 s{S_T0}, s{S_T0}, s{S_T1}')
            A.I(f's_add_u32 s{S_T0}, s{S_T0}, {hh << 21}')
            A.I(f's_lshl_b32 s{S_T1}, s{S_WV}, 10')
            A.I(f's_add_u32 s{S_T1}, s{S_T1}, {buf}')
            for i in range(16):
                A.I(f's_mov_b32 m0, s{S_T1}')
                A.I(f'buffer_load_dwordx4 v{VD1 if i & 1 else VD0}, s[{S_W}:{S_W + 3}], s{S_T0} offen lds')
                if i < 15:
                    A.I(f's_add_u32 s{S_T0}, s{S_T0}, {4 * 32768}')
                    A.I(f's_add_u32 s{S_T1}, s{S_T1}, 4096')
        else:
            t2 = sc & 1
            make_srd(A, S_W, ptr_sgprs[3], 4096 * 1024)
            A.I(f's_and_b32 s{S_T0}, s{S_WV}, 1')
            A.I(f's_lshl_b32 s{S_T0}, s{S_T0}, 13')
            A.I(f's_lshr_b32 s{S_T1}, s{S_WV}, 1')
            A.I(f's_lshl_b32 s{S_T1}, s{S_T1}, 15')
            A.I(f's_add_u32 s{S_T0}, s{S_T0}, s{S_T1}')
            A.I(f's_lshl_b32 s{S_T1}, s{S_H}, 17')
            A.I(f's_add_u32 s{S_T0}, s{S_T0}, s{S_T1}')
            A.I(f's_add_u32 s{S_T0}, s{S_T0}, {t2 << 16}')
            A.I(f's_lshl_b32 s{S_T1}, s{S_WV}, 11')
            A.I(f's_add_u32 s{S_T1}, s{S_T1}, {buf}')
            for f in range(8):
                for x in range(2):
                    row = (f & 1) + 2 * x + 4 * ((f >> 1) & 1) + 16 * (f >> 2)
                    A.I(f's_add_u32 s{S_T2}, s{S_T1}, {(8 * f + x) * 1024 + 32 * f}')
                    A.I(f's_add_u32 s{S_T3}, s{S_T0}, {row * 1024}')
                    A.I(f's_mov_b32 m0, s{S_T2}')
                    A.I(f'buffer_load_dwordx4 v{V_L16}, s[{S_W}:{S_W + 3}], s{S_T3} offen lds')

    dma(0)
    dma(1)
    if hook:
        hook()
    for sc in range(8):
        A.I(f's_waitcnt vmcnt({(22 if (sc == 0 and hook_sc) else 16) if sc < 7 else 0})')
        A.I('s_barrier')
        if hook_sc:
            hook_sc(sc)
        if sc == 7 and hook_check:
            hook_check()
        cnt = 0
        if sc < 6:
            mat, hh = 'qkv'[sc >> 1], sc & 1
            for nb in range(2):
                for t in range(8):
                    for x in range(2):
                        c, nhi = t >> 1, t & 1
                        imm = (8 * nhi + x) * 256
                        if cnt >= 12:
                            A.I('s_waitcnt lgkmcnt(8)')
                            cnt = 8
                        A.I(f'ds_read_b64_tr_b16 {u(HOME[(mat, nb, t)] + 4 * hh + 2 * x, 2)}, v{VT[(nb, sc & 1, c)]} offset:{imm}')
                        cnt += 1
        else:
            for nbo in range(8):
                for hh in range(2):
                    for x in range(2):
                        imm = (x + 4 * hh) * 1024 + 32 * nbo
                        if cnt >= 12:
                            A.I('s_waitcnt lgkmcnt(8)')
                            cnt = 8
                        A.I(f'ds_read_b64_tr_b16 {v(WOT + nbo * 8 + 4 * hh + 2 * x, 2)}, v{VTO[sc & 1]} offset:{imm}')
                        cnt += 1
        A.I('s_waitcnt lgkmcnt(0)')
        A.I('s_barrier')
        if sc + 2 < 8:
            dma(sc + 2)
        if sc in (3, 5) and hook_issue:
            hook_issue(sc)
        if sc >= 6:
            t2 = sc & 1
            va = V_WO1 if t2 else V_WO0
            k = 0
            for f, (hf, sl) in LDS_SLOT.items():
                if hf != t2:
                    continue
                src = (WOT + f[1] * 8) if f[0] == 'o' else HOME[f]
                for hh in range(2):
                    A.I(f'ds_write_b128 v{va}, {u(src + 4 * hh, 4)} offset:{sl * 2048 + hh * 1024}')
                k += 1
                if k & 1 == 0:
                    A.I('s_waitcnt lgkmcnt(4)')
            A.I('s_waitcnt lgkmcnt(0)')
            for nbo in range(6):
                hm = HOME[('o', nbo, t2)]
                for r in range(8):
                    if hm >= 256:
                        A.I(f'v_accvgpr_write_b32 a{hm - 256 + r}, v{WOT + nbo * 8 + r}')
                    else:
                        A.I(f'v_mov_b32 v{hm + r}, v{WOT + nbo * 8 + r}')


def setup_consts(A):
    g, n = 2, 3
    lane_fields(A, LANE, g, n)
    A.I(f's_lshl_b32 s{S_W11}, s{S_WV}, 11')
    A.I(f'v_bfe_u32 v4, v{n}, 1, 1')
    A.I(f'v_mul_u32_u24 v4, 0xaaaa, v4')
    A.I(f'v_add_u32 v{V_IDX}, 0x4444, v4')
    A.I(f'v_lshlrev_b32 v{V_L16}, 4, v{LANE}')
    A.I(f's_mul_i32 s{S_T0}, s{S_WV}, 640')
    A.I(f'v_lshrrev_b32 v4, 2, v{n}')
    A.I(f'v_mul_u32_u24 v4, 160, v4')
    A.I(f'v_lshl_add_u32 v4, v{g}, 4, v4')
    A.I(f'v_and_b32 v5, 3, v{n}')
    A.I(f'v_lshl_add_u32 v4, v5, 2, v4')
    A.I(f'v_add_u32 v{V_QKW}, s{S_T0}, v4')
    A.I(f'v_mul_u32_u24 v6, 160, v{g}')
    A.I(f'v_and_b32 v4, 1, v{n}')
    A.I(f'v_bfe_u32 v5, v{n}, 1, 2')
    A.I(f'v_lshl_add_u32 v4, v4, 2, v5')
    A.I(f'v_lshl_add_u32 v{V_QR}, v4, 4, v6')
    A.I(f'v_and_b32 v4, 1, v{n}')
    A.I(f'v_lshrrev_b32 v5, 2, v{n}')
    A.I(f'v_and_b32 v7, 2, v{n}')
    A.I(f'v_xor_b32 v5, v5, v7')
    A.I(f'v_lshl_add_u32 v4, v4, 2, v5')
    A.I(f'v_lshl_add_u32 v{V_KR}, v4, 4, v6')
    A.I(f'v_add_u32 v{V_KR}, {L_KX_}, v{V_KR}')
    A.I(f's_lshl_b32 s{S_T0}, s{S_WV}, 9')
    A.I(f's_add_u32 s{S_T0}, s{S_T0}, {L_OX}')
    A.I(f'v_lshrrev_b32 v4, 1, v{g}')
    A.I(f'v_lshlrev_b32 v4, 8, v4')
    A.I(f'v_lshrrev_b32 v5, 1, v{n}')
    A.I(f'v_lshl_add_u32 v4, v5, 6, v4')
    A.I(f'v_and_b32 v5, 1, v{g}')
    A.I(f'v_lshl_add_u32 v4, v5, 5, v4')
    A.I(f'v_and_b32 v5, 1, v{n}')
    A.I(f'v_lshl_add_u32 v4, v5, 4, v4')
    A.I(f'v_add_u32 v4, s{S_T0}, v4')
    A.I(f'v_add_u32 v5, {L_QX}, v{V_L16}')
    A.I(f'v_cmp_gt_u32 vcc, 8, v{n}')
    A.I(f'v_cndmask_b32 v{V_OW}, v5, v4, vcc')
    A.I(f's_lshl_b32 s{S_T0}, s{S_WV}, 14')
    A.I(f's_add_u32 s{S_T0}, s{S_T0}, {L_WO}')
    A.I(f'v_add_u32 v{V_WO0}, s{S_T0}, v{V_L16}')
    A.I(f'v_add_u32 v{V_WO1}, {L_HALF}, v{V_WO0}')
    A.I(f'v_add_u32 v{V_VX}, s{S_W11}, v{V_L16}')
    A.I(f'v_lshrrev_b32 v4, 3, v{n}')
    A.I(f'v_lshl_add_u32 v4, v{g}, 1, v4')
    A.I(f'v_mul_u32_u24 v4, {PB_GRP}, v4')
    A.I(f'v_and_b32 v5, 7, v{n}')
    A.I(f'v_lshl_add_u32 v4, v5, 4, v4')
    A.I(f's_mul_i32 s{S_T0}, s{S_WV}, {8 * PB_GRP}')
    A.I(f's_lshl_b32 s{S_T1}, s{S_H}, 8')
    A.I(f's_add_u32 s{S_T0}, s{S_T0}, s{S_T1}')
    A.I(f'v_add_u32 v{V_PBW}, s{S_T0}, v4')
    A.I(f's_mul_i32 s{S_T0}, s{S_H}, {PB_GRP}')
    A.I(f's_add_u32 s{S_PZ}, s{S_T0}, s{S_W11}')
    A.I(f's_lshl_b32 s{S_T1}, s{S_WV}, 7')
    A.I(f's_add_u32 s{S_T0}, s{S_T0}, s{S_T1}')
    A.I(f'v_lshlrev_b32 v4, 8, v{g}')
    A.I(f'v_lshl_add_u32 v4, v{n}, 3, v4')
    A.I(f'v_add_u32 v{V_RDR}, s{S_T0}, v4')
    A.I(f's_and_b32 s{S_T1}, s{S_H}, 1')
    A.I(f's_lshl_b32 s{S_T1}, s{S_T1}, 10')
    A.I(f's_lshl_b32 s{S_T0}, s{S_WV}, 12')
    A.I(f's_add_u32 s{S_T0}, s{S_T0}, s{S_T1}')
    A.I(f's_lshr_b32 s{S_T1}, s{S_H}, 1')
    A.I(f's_lshl_b32 s{S_T1}, s{S_T1}, 6')
    A.I(f's_add_u32 s{S_T0}, s{S_T0}, s{S_T1}')
    A.I(f'v_lshrrev_b32 v4, 3, v{n}')
    A.I(f'v_lshlrev_b32 v4, 5, v4')
    A.I(f'v_and_b32 v5, 1, v{n}')
    A.I(f'v_lshl_add_u32 v4, v5, 11, v4')
    A.I(f'v_bfe_u32 v5, v{n}, 1, 2')
    A.I(f'v_lshl_add_u32 v4, v5, 2, v4')
    A.I(f'v_add_u32 v4, s{S_T0}, v4')
    A.I(f'v_mov_b32 v5, 0x7f000000')
    A.I(f'v_cmp_gt_u32 vcc, 16, v{LANE}')
    A.I(f'v_cndmask_b32 v{V_MBW}, v5, v4, vcc')
    A.I(f'v_mov_b32 v4, 0x3f80')
    A.I(f'v_mov_b32 v5, 0x3f800000')
    A.I(f'v_and_b32 v6, 1, v{n}')
    A.I(f'v_cmp_eq_u32 vcc, 1, v6')
    A.I(f'v_cndmask_b32 v{V_SEL}, v4, v5, vcc')
    A.I(f'v_lshrrev_b32 v6, 1, v{n}')
    A.I(f'v_cmp_eq_u32 s[{S_M0}:{S_M0 + 1}], 0, v6')
    A.I(f'v_cmp_eq_u32 s[{S_M1}:{S_M1 + 1}], 1, v6')
    c = (128 ** -0.5) * math.log2(math.e)
    cb = struct.unpack("<I", struct.pack("<f", c))[0]
    A.I(f's_mov_b32 s{S_C}, 0x{cb:08x}')
    A.I(f's_mov_b32 s{S_C + 1}, 0x{cb:08x}')
    A.I(f's_mov_b32 s{S_ONE}, 0x3f803f80')
    A.I(f's_mov_b32 s{S_ONE + 1}, 0x3f803f80')


def init_exchange(A, s_mem0, st, rb=0, part=None):
    ws = f's[{S_WS}:{S_WS + 3}]'
    R_ = lambda i: i + rb
    if part in (0, None):
        make_srd(A, S_W, s_mem0, 8192)
        n = R_(3)
        A.I(f'v_and_b32 v{n}, 15, v{LANE}')
        A.I(f's_bfe_u32 s{S_T0}, s{S_H}, 0x20001')
        A.I(f's_lshl_b32 s{S_T0}, s{S_T0}, 11')
        A.I(f's_lshr_b32 s{S_T1}, s{S_H}, 3')
        A.I(f's_lshl_b32 s{S_T1}, s{S_T1}, 8')
        A.I(f's_add_u32 s{S_T0}, s{S_T0}, s{S_T1}')
        A.I(f's_and_b32 s{S_T1}, s{S_WV}, 1')
        A.I(f's_lshl_b32 s{S_T1}, s{S_T1}, 7')
        A.I(f's_add_u32 s{S_T0}, s{S_T0}, s{S_T1}')
        A.I(f's_and_b32 s{S_T1}, s{S_H}, 1')
        A.I(f's_lshl_b32 s{S_T1}, s{S_T1}, 4')
        A.I(f's_add_u32 s{S_T0}, s{S_T0}, s{S_T1}')
        A.I(f'v_and_b32 v{R_(12)}, 1, v{n}')
        A.I(f'v_lshlrev_b32 v{R_(12)}, 6, v{R_(12)}')
        A.I(f'v_lshrrev_b32 v{R_(13)}, 1, v{n}')
        A.I(f'v_lshl_add_u32 v{R_(12)}, v{R_(13)}, 1, v{R_(12)}')
        w = f's[{S_W}:{S_W + 3}]'
        for i, off in enumerate((0, 32, 1024, 1056)):
            A.I(f'buffer_load_ushort v{R_(8 + i)}, v{R_(12)}, {w}, s{S_T0} offen offset:{off}')
    if part in (1, None):
        for r in range(4, 8):
            A.I(f'v_mov_b32 v{R_(r)}, -1')
        for r in range(3):
            A.I(f's_add_u32 s{S_T0}, s{S_PZ}, 0x{WS_PB + r * PB_SLOT:x}')
            for c in range(2):
                A.I(f'buffer_store_dwordx4 {v(R_(4), 4)}, v{V_L16}, {ws}, s{S_T0} offen offset:{1024 * c} {st}')
        le = A.newlabel('L_ie')
        A.I(f's_cmp_ge_u32 s{S_WV}, 2')
        A.br(f's_cbranch_scc1 {le}')
        A.I(f's_mov_b32 s{S_T0}, 0x{WS_MB + 8192:x}')
        A.I(f'buffer_store_dword v{R_(4)}, v{V_MBW}, {ws}, s{S_T0} offen {st}')
        A.I(f'buffer_store_dword v{R_(4)}, v{V_MBW}, {ws}, s{S_T0} offen offset:16 {st}')
        A.I(f's_waitcnt vmcnt({40 if part == 1 else 0})')
        A.I(f'v_lshl_or_b32 v{R_(8)}, v{R_(9)}, 16, v{R_(8)}')
        A.I(f'v_lshl_or_b32 v{R_(10)}, v{R_(11)}, 16, v{R_(10)}')
        A.I(f'v_min_u32 v{R_(8)}, -2, v{R_(8)}')
        A.I(f'v_min_u32 v{R_(10)}, -2, v{R_(10)}')
        A.I(f's_mov_b32 s{S_T0}, 0x{WS_MB:x}')
        A.I(f'buffer_store_dword v{R_(8)}, v{V_MBW}, {ws}, s{S_T0} offen {st}')
        A.I(f'buffer_store_dword v{R_(10)}, v{V_MBW}, {ws}, s{S_T0} offen offset:16 {st}')
        A.label(le)
    if part is None:
        A.I('s_waitcnt vmcnt(0)')


HS = [('q', 0, 0), ('q', 1, 0), ('q', 0, 1), ('q', 1, 1), ('k', 0, 0), ('k', 1, 0), ('k', 0, 1), ('k', 1, 1)]
QBUF = dict(zip(HS, [KX, KX + 8, KX + 16, KX + 24, VX, T, T + 8, ACC + 16]))


def zero(A, r0, n):
    for i in range(0, n, 2):
        A.I(f'v_mov_b64 {v(r0 + i, 2)}, 0')


def q_prefetch(A, part=None):
    for i, f in enumerate(HS):
        if part is not None and (i >> 2) != part:
            continue
        lds_frag_read(A, f, QBUF[f])
        if i == 5:
            A.I('s_waitcnt lgkmcnt(8)')


def kv_dma(A):
    ws = f's[{S_WS}:{S_WS + 3}]'
    A.I(f's_mov_b32 m0, s{S_KVM0}')
    A.I(f's_add_u32 s{S_T0}, s{S_KVN}, 0x{WS_VF - WS_KF:x}')
    A.I(f'buffer_load_dwordx4 v{V_L16}, {ws}, s{S_KVN} offen lds')
    A.I(f'buffer_load_dwordx4 v{V_L16}, {ws}, s{S_KVN} offen offset:1024 lds')
    A.I(f's_add_u32 m0, s{S_KVM0}, 8192')
    A.I(f's_add_u32 s{S_KVN}, s{S_KVN}, 0x40000')
    A.I(f'buffer_load_dwordx4 v{V_L16}, {ws}, s{S_T0} offen lds')
    A.I(f'buffer_load_dwordx4 v{V_L16}, {ws}, s{S_T0} offen offset:1024 lds')


S_AV, S_RA, S_KP = 21, 22, 24
F_KMP = WS_FLAG + 0x3000
F_PROG = WS_FLAG


def kv_eval(A, vt, vlane16, s_av):
    p, t, u_ = vt, vt + 1, vt + 2
    A.I(f'v_bfe_u32 v{t}, v{vlane16}, 6, 1')
    A.I(f'v_lshl_add_u32 v{t}, v{p}, 1, v{t}')
    A.I(f'v_bfe_u32 v{u_}, v{vlane16}, 7, 1')
    A.I(f'v_lshl_add_u32 v{t}, v{u_}, 5, v{t}')
    A.I(f'v_cmp_le_u32 vcc, 16, v{p}')
    A.I(f'v_mov_b32 v{u_}, 64')
    A.I(f'v_cndmask_b32 v{t}, v{t}, v{u_}, vcc')
    for k in (8, 4, 2, 1):
        A.I(f'v_min_u32_dpp v{t}, v{t}, v{t} row_ror:{k} row_mask:0xf bank_mask:0xf')
    A.I(f'v_readfirstlane_b32 s{s_av}, v{t}')


def kv_load(A, vt, vlane16, s_base):
    ws = f's[{S_WS}:{S_WS + 3}]'
    A.I(f'v_lshrrev_b32 v{vt + 1}, 2, v{vlane16}')
    A.I(f'v_and_b32 v{vt + 1}, 0x7c, v{vt + 1}')
    A.I(f'buffer_load_dword v{vt}, v{vt + 1}, {ws}, s{s_base} offen sc1')


def kv_wait(A, l_exit, s_need, vt, s_av=S_AV, s_base=S_RA, sleep=0, vlane16=V_L16):
    l = A.newlabel('L_kvw')
    A.label(l)
    kv_load(A, vt, vlane16, s_base)
    A.I(f's_sub_u32 s{S_SPIN}, s{S_SPIN}, 1')
    A.I(f's_cbranch_scc1 {l_exit}')
    A.I('s_waitcnt vmcnt(0)')
    kv_eval(A, vt, vlane16, s_av)
    if sleep:
        ld = A.newlabel('L_kvd')
        A.I(f's_cmp_gt_u32 s{s_av}, s{s_need}')
        A.I(f's_cbranch_scc1 {ld}')
        A.I(f's_sleep {sleep}')
        A.br(f's_branch {l}')
        A.label(ld)
    else:
        A.I(f's_cmp_le_u32 s{s_av}, s{s_need}')
        A.br(f's_cbranch_scc1 {l}')


def main_loop(A, st, l_exit, kvcheck=False):
    ws = f's[{S_WS}:{S_WS + 3}]'
    A.I(f's_mov_b32 s{S_STEP}, 0')
    A.I(f's_mov_b32 s{S_MBR}, 0x{WS_MB:x}')
    A.I(f's_mov_b32 s{S_MBW}, 0x{WS_MB + 8192:x}')
    A.I(f's_mov_b32 s{S_PB0}, 0x{WS_PB:x}')
    A.I(f's_mov_b32 s{S_PB1}, 0x{WS_PB + PB_SLOT:x}')
    A.I(f's_lshl_b32 s{S_KMO}, s{S_H}, 12')
    A.I(f's_lshl_b32 s{S_T0}, s{S_WV}, 10')
    A.I(f's_add_u32 s{S_KMO}, s{S_KMO}, s{S_T0}')
    A.I(f's_add_u32 s{S_KMO}, s{S_KMO}, 0x{WS_KM - 0x20000:x}')
    A.I(f's_mul_i32 s{S_W640}, s{S_WV}, 640')
    A.I(f's_lshl_b32 s{S_VMO}, s{S_H}, 11')
    A.I(f's_lshl_b32 s{S_T0}, s{S_WV}, 9')
    A.I(f's_add_u32 s{S_VMO}, s{S_VMO}, s{S_T0}')
    A.I(f's_add_u32 s{S_VMO}, s{S_VMO}, 0x{WS_VM - 0x10000:x}')
    A.I(f's_lshr_b32 s{S_T0}, s{S_WV}, 1')
    A.I(f's_mul_i32 s{S_TCH}, s{S_T0}, 0x{WS_VF - WS_KF:x}')
    A.I(f's_and_b32 s{S_T0}, s{S_WV}, 1')
    A.I(f's_lshl_b32 s{S_T0}, s{S_T0}, 12')
    A.I(f's_add_u32 s{S_TCH}, s{S_TCH}, s{S_T0}')
    A.I(f's_lshl_b32 s{S_T0}, s{S_H}, 13')
    A.I(f's_add_u32 s{S_TCH}, s{S_TCH}, s{S_T0}')
    A.I(f's_add_u32 s{S_TCH}, s{S_TCH}, 0x{WS_KF + TOUCH_AHEAD * 0x40000:x}')

    NST = 12
    order = []

    def stamp(i):
        if not STAMPS:
            return
        order.append(i)
        A.raw(f'    s_memtime s[{64 + 2 * i}:{65 + 2 * i}]')
        A.pos += 1

    def stamp_acc():
        if not STAMPS:
            return
        A.I('s_waitcnt lgkmcnt(0)')
        if E('RAW', 0):
            lk = A.newlabel('L_raw')
            A.I(f's_cmp_lg_u32 s{S_STEP}, {E("RAW", 0)}')
            A.I(f's_cbranch_scc1 {lk}')
            for i in range(NST):
                if i != 6:
                    A.I(f's_mov_b32 s{88 + i}, s{64 + 2 * i}')
            A.label(lk)
            lk = A.newlabel('L_raw')
            A.I(f's_cmp_lg_u32 s{S_STEP}, {E("RAW", 0) - 1}')
            A.I(f's_cbranch_scc1 {lk}')
            A.I(f's_mov_b32 s{88 + 6}, s{64 + 12}')
            A.label(lk)
            return
        prev = 100
        for i in order:
            A.I(f's_sub_u32 s101, s{64 + 2 * i}, s{prev}')
            A.I(f's_add_u32 s{88 + i}, s{88 + i}, s101')
            prev = 64 + 2 * i
        A.I(f's_mov_b32 s100, s{prev}')
    if STAMPS:
        for i in range(NST):
            A.I(f's_mov_b32 s{88 + i}, 0')
        A.I(f's_memtime s[64:65]')
        A.I('s_waitcnt lgkmcnt(0)')
        for i in range(NST):
            A.I(f's_mov_b32 s{64 + 2 * i}, s64')
        A.I(f's_mov_b32 s100, s64')

    L_top = A.newlabel('L_rec')
    L_af = A.newlabel('L_afpoll')
    L_red = A.newlabel('L_red')
    L_bh = A.newlabel('L_bh')
    L_w23 = A.newlabel('L_w23')
    L_fin = A.newlabel('L_fin')
    HS_ = E('HSTAMP', 0)
    _stamp = stamp
    if HS_:
        order.extend([2, 3, 7, 9, 10])

    def hstamp(i):
        if STAMPS and HS_:
            A.raw(f'    s_memtime s[{64 + 2 * i}:{65 + 2 * i}]')
            A.pos += 1

    def stamp(i):
        if HS_ and i in (2, 3, 9, 10):
            return
        if HS_ and i == 7:
            return hstamp(7)
        _stamp(i)

    L_pslow = A.newlabel('L_pslow')
    L_aslow = A.newlabel('L_aslow')
    L_afok = A.newlabel('L_afok')
    L_afchk = A.newlabel('L_afchk')
    RA, RB, SEL, RD = 0, 16, ACC + 8, ACC + 12
    mx, tm = V_MX, V_TM
    TWO_PB, TWO_AF = E('TWO_PB', 1), E('TWO_AF', 1)

    def addr3():
        A.I(f'v_xor_b32 v{V_MX}, 2048, v{V_VX}')
        A.I(f'v_xor_b32 v{V_TM}, 4096, v{V_VX}')
        A.I(f'v_xor_b32 v{V_SP}, 6144, v{V_VX}')

    A.I(f's_mov_b32 s{S_TAG}, 0')
    zero(A, ACC, 8)
    q_prefetch(A)
    A.br(f's_branch {L_af}')

    def pb_loads(b):
        for i in range(8):
            so = S_PB0 if i < 4 else S_PB0H
            A.I(f'buffer_load_dwordx2 {v(b + 2 * i, 2)}, v{V_RDR}, {ws}, s{so} offen offset:{(i & 3) * 1024} {LDF}')

    def red(b, base):
        for i in range(4):
            A.I(f's_waitcnt vmcnt({base + 6 - 2 * i})')
            c = '0' if i == 0 else v(RD, 4)
            A.I(f'v_mfma_f32_16x16x32_bf16 {v(RD, 4)}, {v(SEL, 4)}, {v(b + 4 * i, 4)}, {c}')
            r = b + 4 * i
            tt = 0
            for idx in range(8):
                a_, b_, s_ = (idx >> 2) & 1, (idx >> 1) & 1, idx & 1
                if (a_ ^ s_) | (b_ ^ s_):
                    tt |= 1 << idx
            d = mx if i == 0 else tm
            A.I(f'v_bitop3_b32 v{d}, v{r}, v{r + 2}, s{S_TAG} bitop3:0x{tt:x}')
            if i:
                A.I(f'v_or_b32 v{mx}, v{mx}, v{tm}')
        A.I(f'v_and_b32 v{mx}, 1, v{mx}')
        A.I(f'v_cmp_eq_u32 vcc, 1, v{mx}')

    def af_loads(b):
        for i in range(2):
            A.I(f'buffer_load_dwordx4 {v(b + 4 * i, 4)}, v{V_L16}, {ws}, s{S_AFO} offen offset:{i * 1024} {LDF}')

    def af_chk(b, tmp):
        A.I(f'ds_write_b128 v{V_VX}, {v(b, 4)} offset:{L_AF}')
        A.I(f'v_max3_u32 v{tmp}, v{b}, v{b + 1}, v{b + 2}')
        A.I(f'v_max3_u32 v{tmp}, v{tmp}, v{b + 3}, v{b + 4}')
        A.I(f'ds_write_b128 v{V_VX}, {v(b + 4, 4)} offset:{L_AF + 1024}')
        A.I(f'v_max3_u32 v{tmp}, v{tmp}, v{b + 5}, v{b + 6}')
        A.I(f'v_max_u32 v{tmp}, v{tmp}, v{b + 7}')
        A.I(f'v_cmp_eq_u32 vcc, -1, v{tmp}')

    A.raw('.p2align 6')
    A.label(L_top)
    A.forget_loads()
    A.check = False
    red(RA, 8 if TWO_PB else 0)
    hstamp(3)
    A.I(f's_cbranch_vccnz {L_pslow}')
    A.label(L_red, flush=False)
    A.I(f'v_mov_b32 v{tm}, -1')
    A.I('s_nop 2')
    A.I(f'v_cvt_pk_bf16_f32 v{RD}, v{RD}, v{RD + 1}')
    A.I(f'v_cvt_pk_bf16_f32 v{RD + 2}, v{RD + 2}, v{RD + 3}')
    A.I(f'buffer_store_dword v{RD}, v{V_MBW}, {ws}, s{S_MBW} offen {st}')
    A.I(f'buffer_store_dword v{RD + 2}, v{V_MBW}, {ws}, s{S_MBW} offen offset:16 {st}')
    A.I(f'buffer_store_dword v{tm}, v{V_MBW}, {ws}, s{S_MBR} offen {st}')
    A.I(f'buffer_store_dword v{tm}, v{V_MBW}, {ws}, s{S_MBR} offen offset:16 {st}')
    A.label(L_bh, flush=False)
    stamp(7)
    A.I('s_barrier')
    A.I(f's_mov_b32 s{S_T0}, s{S_MBR}')
    A.I(f's_mov_b32 s{S_MBR}, s{S_MBW}')
    A.I(f's_mov_b32 s{S_MBW}, s{S_T0}')
    A.I(f's_mov_b32 s{S_T0}, s{S_PB0}')
    A.I(f's_mov_b32 s{S_PB0}, s{S_PB1}')
    A.I(f's_mov_b32 s{S_PB1}, s{S_T0}')
    A.I(f's_add_u32 s{S_STEP}, s{S_STEP}, 1')
    A.I(f's_bfe_u32 s{S_TAG}, s{S_STEP}, 0x10001')
    A.label(L_af, flush=False)
    A.I(f's_add_u32 s{S_AFO}, s{S_MBR}, s{S_W11}')
    zero(A, ACC + 8, 8)
    addr3()
    for i in range(AF_DELAY):
        A.I('s_nop 7')
    ASETS = [0, 24, 16]
    af_loads(0)
    hstamp(9)
    for b in ASETS[1:]:
        for i in range(AF_GAP):
            A.I('s_nop 7')
        af_loads(b)

    def mf(mat, nb, t, src=None):
        acc = ACC + ('qkv'.index(mat) * 2 + nb) * 4
        if src is None:
            src = QBUF.get((mat, nb, t))
        b = v(src, 8) if src is not None else u(HOME[(mat, nb, t)], 8)
        A.I(f'v_smfmac_f32_16x16x64_bf16 {v(acc, 4)}, {v(AF + 4 * t, 4)}, {b}, v{V_IDX}')

    A.label(L_afchk, flush=False)
    A.I(f's_waitcnt vmcnt(4) lgkmcnt(0)')
    A.label(L_afok, flush=False)
    hstamp(10)
    tmp = 8
    A.I(f'ds_write_b128 v{V_VX}, {v(0, 4)} offset:{L_AF}')
    A.I(f'ds_write_b128 v{V_VX}, {v(4, 4)} offset:{L_AF + 1024}')
    mf('q', 0, 0)
    A.I(f'v_max3_u32 v{tmp}, v0, v1, v2')
    A.I(f'v_max3_u32 v{tmp}, v{tmp}, v3, v4')
    mf('q', 1, 0)
    A.I(f'v_max3_u32 v{tmp}, v{tmp}, v5, v6')
    A.I(f'v_max_u32 v{tmp}, v{tmp}, v7')
    A.I(f'v_cmp_eq_u32 vcc, -1, v{tmp}')
    A.I(f's_cbranch_vccnz {L_aslow}')
    stamp(8)
    A.check = True
    A.forget_loads()
    A.I('s_waitcnt lgkmcnt(0)')
    A.I('s_barrier')
    stamp(0)
    pend = []
    ar = {1: V_MX, 2: V_TM, 3: V_SP}
    hs = [('q', 0, 1), ('q', 1, 1), ('k', 0, 0), ('k', 1, 0), ('k', 0, 1), ('k', 1, 1)]

    def afr(uu):
        A.I(f'ds_read_b128 {v(AF + 4 * uu, 4)}, v{ar[uu >> 1]} offset:{L_AF + 1024 * (uu & 1)}')
        pend.append(('af', uu))
    afr(2); afr(3)
    mf(*hs[0])
    A.I(f'v_lshlrev_b32 v{V_MX}, 2, v{V_L16}')
    mf(*hs[1])
    mf(*hs[2])
    mf(*hs[3])
    KBUF = {}

    def kload(nb, t, b):
        KBUF[(nb, t)] = b
        lds_frag_read(A, ('k', nb, t), b)
        pend.extend([('k', t), ('k', t)])

    kload(0, 2, QBUF[('q', 0, 0)])
    mf(*hs[4])
    kload(1, 2, QBUF[('q', 1, 0)])
    mf(*hs[5])
    A.I('s_waitcnt vmcnt(0)')
    for uu in range(4, 8):
        afr(uu)
    A.I(f'v_lshrrev_b32 v{V_TM}, 2, v{V_L16}')
    if kvcheck:
        L_kvc, L_kvr = A.newlabel('L_kvc'), A.newlabel('L_kvr')
        A.I(f's_add_u32 s23, s{S_STEP}, 1')
        A.I(f's_cmp_ge_u32 s23, s{S_AV}')
        A.I(f's_cbranch_scc1 {L_kvc}')
        A.label(L_kvr, flush=False)
    if not E('NODMA', 0):
        A.I(f'buffer_load_dword v{V_SP}, v{V_MX}, {ws}, s{S_TCH} offen')
    if kvcheck:
        A.check = False
        A.I(f'buffer_load_dword v{V_SP}, v{V_TM}, {ws}, s{S_RA} offen sc1')
        A.check = True

    def wait_for(name):
        if name not in pend:
            return
        idx = max(i for i, p in enumerate(pend) if p == name)
        n = len(pend) - 1 - idx
        A.I(f's_waitcnt lgkmcnt({n})')
        del pend[:idx + 1]

    EXP, EXV = ACC + 16, ACC + 20
    for t in range(2, 8):
        wait_for(('af', t))
        mf('q', 0, t)
        if t == 2:
            kload(0, 3, QBUF[('q', 0, 1)])
        if t == 3:
            kload(1, 3, QBUF[('q', 1, 1)])
        if t == 4:
            A.I(f'v_add_u32 v{EXP}, s{S_W640}, v{V_KR}')
        if t == 5:
            A.I(f'v_lshrrev_b32 v{EXV}, 2, v{V_VX}')
        if t == 6:
            A.I(f'ds_read_b64 {v(EXV, 2)}, v{EXV} offset:{L_VM}')
            pend.append(('ex', 1))
        mf('q', 1, t)
        if t == 4:
            A.I(f'ds_read_b128 {v(EXP, 4)}, v{EXP}')
            pend.append(('ex', 0))
        if t == 5:
            A.I(f'v_lshl_add_u32 v{EXV}, v{V_MX}, 0, v{EXV}' if False else f'v_add_u32 v{EXV}, v{EXV}, v{V_TM}')
        if t >= 6:
            A.I(f'ds_read_b128 {v(VX + 4 * (t - 6), 4)}, v{V_VX} offset:{L_KV + 8192 + 1024 * (t - 6)}')
            pend.append(('vx', t))
    stamp(1)
    q0, q1, k0, k1 = ACC, ACC + 4, ACC + 8, ACC + 12
    QF = T

    def kmf(t, nb):
        mf('k', nb, t, KBUF.get((nb, t)))

    def pack(b0, b1):
        return [f'v_add_f32 v{b0}, v{b0}, v{b0 + 2}',
                f'v_add_f32 v{b0 + 1}, v{b0 + 1}, v{b0 + 3}',
                f'v_add_f32 v{b1}, v{b1}, v{b1 + 2}',
                f'v_add_f32 v{b1 + 1}, v{b1 + 1}, v{b1 + 3}',
                f'v_cvt_pk_bf16_f32 v{b0}, v{b0}, v{b1}',
                f'v_cvt_pk_bf16_f32 v{b0 + 1}, v{b0 + 1}, v{b1 + 1}']

    wait_for(('k', 2))
    kmf(2, 0)
    A.I(f's_add_u32 s{S_TCH}, s{S_TCH}, 0x40000')
    A.I(f'v_lshrrev_b32 v{V_TM}, 1, v{V_L16}')
    kmf(2, 1)
    wait_for(('ex', 1))
    if not E('NOEXP', 0):
        A.I(f'buffer_store_dwordx4 {v(EXP, 4)}, v{V_L16}, {ws}, s{S_KMO} offen {EXF}')
    kmf(3, 0)
    if not E('NOEXP', 0):
        A.I(f'buffer_store_dwordx2 {v(EXV, 2)}, v{V_TM}, {ws}, s{S_VMO} offen {EXF}')
    A.I(f's_add_u32 s{S_KMO}, s{S_KMO}, 0x20000')
    A.I(f's_add_u32 s{S_VMO}, s{S_VMO}, 0x10000')
    kmf(3, 1)
    if kvcheck:
        A.I(f'v_mov_b32 v{V_TM}, s{S_STEP}')
        A.I('s_mov_b64 exec, 1')
        A.I(f'buffer_store_dword v{V_TM}, off, {ws}, s{S_KP} sc1')
        A.I('s_mov_b64 exec, -1')
    kxr = [f'ds_read_b128 {v(KX + 4 * f, 4)}, v{V_L16} offset:{L_KV + 1024 * f}' for f in range(8)]
    pq = pack(q0, q1) + [f'ds_write2_b32 v{V_QKW}, v{q0}, v{q0 + 1} offset0:0 offset1:16']
    fl = []
    for i in range(8):
        fl.append([kxr[i]] + ([pq[i]] if i < 7 else []) + ([f'v_mov_b64 {v(ACC + 16 + (i - 4) * 2, 2)}, 0'] if i >= 4 else []))
    for i, (t, nb) in enumerate([(t, nb) for t in range(4, 8) for nb in range(2)]):
        for x in fl[i]:
            A.I(x)
        kmf(t, nb)
    stamp(2)
    pk = pack(k0, k1)
    mf('v', 0, 0)
    mf('v', 1, 0)
    A.I('s_nop 4')
    A.I(pk[0]); A.I(pk[1]); A.I(pk[2])
    mf('v', 0, 1)
    A.I(pk[3]); A.I(pk[4]); A.I(pk[5])
    A.I(f'ds_write_b32 v{V_QKW}, v{k0} offset:{L_KX_}')
    A.I(f'ds_write_b32 v{V_QKW}, v{k0 + 1} offset:{L_KX_ + 64}')
    mf('v', 1, 1)
    mf('v', 0, 2)
    mf('v', 1, 2)
    mf('v', 0, 3)
    A.I('s_waitcnt lgkmcnt(0)')
    A.I('s_barrier')
    stamp(3)
    KMF, ONES = 0, 20
    for ks in range(4):
        A.I(f'ds_read_b128 {v(QF + 4 * ks, 4)}, v{V_QR} offset:{640 * ks}')
        if ks == 1:
            mf('v', 1, 3)
    mf('v', 0, 4)
    for ks in range(4):
        A.I(f'ds_read_b128 {v(KMF + 4 * ks, 4)}, v{V_KR} offset:{640 * ks}')
        if ks == 1:
            mf('v', 1, 4)
    dm = []
    if not E('NODMA', 0):
        dm = [f's_mov_b32 m0, s{S_KVM0}\ns_add_u32 s{S_T0}, s{S_KVN}, 0x{WS_VF - WS_KF:x}\nbuffer_load_dwordx4 v{V_L16}, {ws}, s{S_KVN} offen lds',
              f'buffer_load_dwordx4 v{V_L16}, {ws}, s{S_KVN} offen offset:1024 lds\ns_add_u32 m0, s{S_KVM0}, 8192\ns_add_u32 s{S_KVN}, s{S_KVN}, 0x40000',
              f'buffer_load_dwordx4 v{V_L16}, {ws}, s{S_T0} offen lds',
              f'buffer_load_dwordx4 v{V_L16}, {ws}, s{S_T0} offen offset:1024 lds']
    else:
        dm = ['s_nop 0'] * 4
    mf('v', 0, 5)
    mf('v', 1, 5)
    mf('v', 0, 6)
    mf('v', 1, 6)
    X0, X1, M, P = q0, q1, k0, k1
    O0, O1, Lr, PMA, PMB = KX + 16, KX + 20, KX + 24, KX + 28, KX + 30

    def sx(i):
        ks, kb = i >> 1, i & 1
        X = X1 if kb else X0
        c = '0' if ks == 0 else v(X, 4)
        A.I(f'v_mfma_f32_16x16x32_bf16 {v(X, 4)}, {v(KX + 16 * kb + 4 * ks, 4)}, {v(QF + 4 * ks, 4)}, {c}')

    for ks in range(4):
        A.I(f's_waitcnt lgkmcnt({7 - ks})')
        sx(2 * ks)
        if ks == 2:
            A.I(f'v_mov_b64 {v(ONES, 2)}, s[{S_ONE}:{S_ONE + 1}]')
        if ks == 3:
            A.I(f'v_mov_b64 {v(ONES + 2, 2)}, s[{S_ONE}:{S_ONE + 1}]')
        sx(2 * ks + 1)
    stamp(9)
    A.I('s_waitcnt lgkmcnt(0)')
    for ks in range(4):
        cm = '0' if ks == 0 else v(M, 4)
        A.I(f'v_mfma_f32_16x16x32_bf16 {v(M, 4)}, {v(KMF + 4 * ks, 4)}, {v(QF + 4 * ks, 4)}, {cm}')
        if ks == 0:
            A.I(f'v_mov_b32 v{PMA + 1}, 0')
            A.I(f'v_mov_b32 v{PMB}, 0')
        if ks == 1:
            A.I('s_nop 1')
            A.I(f'v_max3_f32 v{mx}, v{X0}, v{X0 + 1}, v{X0 + 2}')
            A.I(f'v_max3_f32 v{tm}, v{X1}, v{X1 + 1}, v{X1 + 2}')
        if ks == 2:
            A.I(f'v_max3_f32 v{mx}, v{mx}, v{X0 + 3}, v{X1 + 3}')
            A.I(f'v_max_f32 v{mx}, v{mx}, v{tm}')
        if ks == 3:
            A.I(f'v_mov_b32 v{tm}, v{mx}')
    mf('v', 0, 7)
    A.I('s_nop 0')
    A.I(f'v_permlane32_swap_b32 v{mx}, v{tm}')
    mf('v', 1, 7)
    A.I(f'v_max_f32 v{mx}, v{mx}, v{tm}')
    A.I('s_nop 1')
    A.I(f'v_max3_f32 v{tm}, v{M}, v{M + 1}, v{M + 2}')
    A.I(f'v_max3_f32 v{mx}, v{tm}, v{M + 3}, v{mx}')
    A.I(f'v_mov_b32 v{tm}, v{mx}')
    sets = [X1, KX, O0, T]
    A.I(f'v_mov_b64 {v(sets[1], 2)}, 0')
    A.I(f'v_mov_b64 {v(sets[1] + 2, 2)}, 0')
    A.I(f'v_permlane16_swap_b32 v{mx}, v{tm}')
    A.I(f'v_max_f32 v{mx}, v{mx}, v{tm}')
    A.I(f'v_mul_f32_e64 v{mx}, -s{S_C}, v{mx}')

    def pkfma(r):
        A.I(f'v_pk_fma_f32 {v(r, 2)}, {v(r, 2)}, s[{S_C}:{S_C + 1}], {v(mx, 2)} op_sel:[0,0,0] op_sel_hi:[1,1,0]')

    va, vb = ACC + 16, ACC + 20
    VMP = va + 2
    for r in (M, X0, X0 + 2, X1, X1 + 2):
        pkfma(r)
    A.I(f'v_exp_f32 v{M}, v{M}')
    A.I(f'v_exp_f32 v{M + 1}, v{M + 1}')
    A.I(f'v_pk_add_f32 {v(va, 2)}, {v(va, 2)}, {v(va + 2, 2)}')
    A.I(f'v_pk_add_f32 {v(vb, 2)}, {v(vb, 2)}, {v(vb + 2, 2)}')
    A.I(f'v_cvt_pk_bf16_f32 v{PMA}, v{M}, v{M + 1}')
    A.I(f'v_cvt_pk_bf16_f32 v{PMB + 1}, v{M}, v{M + 1}')
    A.I(f'v_cvt_pk_bf16_f32 v{VMP}, v{va}, v{va + 1}')
    A.I(f'v_cvt_pk_bf16_f32 v{VMP + 1}, v{vb}, v{vb + 1}')
    A.I(f'v_exp_f32 v{X0}, v{X0}')
    stamp(10)
    A.I(f'v_mfma_f32_16x16x16_bf16 {v(Lr, 4)}, {v(ONES, 2)}, {v(PMA, 2)}, 0')
    A.I(f'v_exp_f32 v{X0 + 1}, v{X0 + 1}')
    A.I(f'v_mfma_f32_16x16x16_bf16 {v(O0, 4)}, {v(VMP, 2)}, {v(PMA, 2)}, 0')
    A.I(f'v_exp_f32 v{X0 + 2}, v{X0 + 2}')
    A.I(f'v_mfma_f32_16x16x16_bf16 {v(O1, 4)}, {v(VMP, 2)}, {v(PMB, 2)}, 0')
    A.I(f'v_exp_f32 v{X0 + 3}, v{X0 + 3}')
    A.I(f'v_cvt_pk_bf16_f32 v{P}, v{X0}, v{X0 + 1}')
    A.I(f'v_exp_f32 v{X1}, v{X1}')
    A.I(f'v_exp_f32 v{X1 + 1}, v{X1 + 1}')
    A.I(f'v_cvt_pk_bf16_f32 v{P + 1}, v{X0 + 2}, v{X0 + 3}')
    A.I(f'v_exp_f32 v{X1 + 2}, v{X1 + 2}')
    A.I(f'v_exp_f32 v{X1 + 3}, v{X1 + 3}')
    A.I(f'v_cvt_pk_bf16_f32 v{P + 2}, v{X1}, v{X1 + 1}')
    A.I(f'v_cvt_pk_bf16_f32 v{P + 3}, v{X1 + 2}, v{X1 + 3}')
    A.I(f'v_lshrrev_b32 v{tm}, 2, v{V_VX}')
    A.I(f'v_mov_b64 {v(sets[0], 2)}, 0')
    A.I(f'v_mfma_f32_16x16x32_bf16 {v(Lr, 4)}, {v(ONES, 4)}, {v(P, 4)}, {v(Lr, 4)}')
    A.I(f'v_mov_b64 {v(sets[0] + 2, 2)}, 0')
    A.I(f'v_mov_b64 {v(sets[0] + 4, 2)}, 0')
    A.I(f'v_mfma_f32_16x16x32_bf16 {v(O0, 4)}, {v(VX, 4)}, {v(P, 4)}, {v(O0, 4)}')
    A.I(f'v_mov_b64 {v(sets[0] + 6, 2)}, 0')
    A.I(f'v_mov_b64 {v(sets[1] + 4, 2)}, 0')
    A.I(f'v_mfma_f32_16x16x32_bf16 {v(O1, 4)}, {v(VX + 4, 4)}, {v(P, 4)}, {v(O1, 4)}')
    A.I(f'v_mov_b64 {v(sets[1] + 6, 2)}, 0')
    A.I(f'v_mov_b64 {v(sets[3], 2)}, 0')
    A.I(f'v_rcp_f32 v{mx}, v{Lr}')
    A.I(f'v_mov_b64 {v(sets[3] + 2, 2)}, 0')
    A.I(f'v_mov_b64 {v(sets[3] + 4, 2)}, 0')
    OW = X0

    def pkmul(r):
        A.I(f'v_pk_mul_f32 {v(r, 2)}, {v(r, 2)}, {v(mx, 2)} op_sel:[0,0] op_sel_hi:[1,0]')

    pkmul(O0)
    pkmul(O0 + 2)
    A.I(f'v_cvt_pk_bf16_f32 v{OW}, v{O0}, v{O0 + 1}')
    A.I(f'v_cvt_pk_bf16_f32 v{OW + 1}, v{O0 + 2}, v{O0 + 3}')
    pkmul(O1)
    pkmul(O1 + 2)
    A.I(f'v_cvt_pk_bf16_f32 v{OW + 2}, v{O1}, v{O1 + 1}')
    A.I(f'v_cvt_pk_bf16_f32 v{OW + 3}, v{O1 + 2}, v{O1 + 3}')
    A.I(f'ds_write_b128 v{V_OW}, {v(OW, 4)}')
    stamp(4)
    A.I(f'v_lshrrev_b32 v{mx}, 2, v{V_L16}')
    A.I(f'v_add_u32 v{tm}, v{tm}, v{mx}')
    A.I(f'ds_write_b64 v{tm}, {v(VMP, 2)} offset:{L_VM}')
    zero(A, sets[2], 8)
    A.I(f'v_mov_b64 {v(sets[3] + 6, 2)}, 0')
    A.I('s_waitcnt lgkmcnt(1)')
    A.I('s_barrier')
    OF = VX
    A.I(f'ds_read_b128 {v(OF, 4)}, v{V_L16} offset:{L_OX}')
    A.I(f'ds_read_b128 {v(OF + 4, 4)}, v{V_L16} offset:{L_OX + 1024}')
    A.I(f's_cmp_eq_u32 s{S_STEP}, {NSTEPS}')
    A.I(f's_cbranch_scc1 {L_fin}')
    OBUF = {(6, 0): 0, (7, 0): 8, (6, 1): 24, (7, 1): KX + 8}
    A.I(f's_add_u32 s{S_PB0H}, s{S_PB0}, 4096')
    A.I('s_waitcnt lgkmcnt(1)')
    stamp(5)

    def post(c):
        a0, b0 = sets[c], sets[c] + 4
        o = (OW if c < 2 else P) + 2 * (c & 1)
        if c == 3:
            l = [f'v_pk_add_f32 {v(a0, 2)}, {v(a0, 2)}, {v(a0 + 2, 2)}',
                 f'v_pk_add_f32 {v(b0, 2)}, {v(b0, 2)}, {v(b0 + 2, 2)}']
        else:
            l = [f'v_add_f32 v{a0}, v{a0}, v{a0 + 2}', f'v_add_f32 v{a0 + 1}, v{a0 + 1}, v{a0 + 3}',
                 f'v_add_f32 v{b0}, v{b0}, v{b0 + 2}', f'v_add_f32 v{b0 + 1}, v{b0 + 1}, v{b0 + 3}']
        l += [f'v_cvt_pk_bf16_f32 v{o}, v{a0}, v{b0}',
              f'v_cvt_pk_bf16_f32 v{o + 1}, v{a0 + 1}, v{b0 + 1}',
              f'v_bfi_b32 v{o}, 1, s{S_TAG}, v{o}']
        if c & 1:
            l.append(f'buffer_store_dwordx4 {v(o - 2, 4)}, v{V_PBW}, {ws}, s{S_PB0} offen offset:{128 * (c >> 1)} {st}')
        return l

    def womf(c, t2, bb):
        nbo = 2 * c + bb
        b = v(OBUF[(nbo, t2)], 8) if (nbo, t2) in OBUF else u(HOME[('o', nbo, t2)], 8)
        A.I(f'v_smfmac_f32_16x16x64_bf16 {v(sets[c] + 4 * bb, 4)}, {v(OF + 4 * t2, 4)}, {b}, v{V_IDX}')

    obr = []
    for f, b in OBUF.items():
        hf, sl = LDS_SLOT[('o',) + f]
        va_ = V_WO1 if hf else V_WO0
        obr.append(f'ds_read_b128 {v(b, 4)}, v{va_} offset:{sl * 2048}')
        obr.append(f'ds_read_b128 {v(b + 4, 4)}, v{va_} offset:{sl * 2048 + 1024}')
    seq = [(c, t2, bb) for c in range(4) for t2 in range(2) for bb in range(2)]
    fill = {i: [] for i in range(16)}
    for i in range(8):
        fill[2 + i // 2 if i < 6 else 5].append(obr[i])
    DM0 = E('DM0', 0)
    for i in range(4):
        fill[DM0 + i].append(dm[i])
    p0, p1, p2 = post(0), post(1), post(2)
    for k, x in enumerate(p0):
        fill[6 + k // 2].append(x)
    for k, x in enumerate(p1):
        fill[10 + k // 2].append(x)
    for k, x in enumerate(p2):
        fill[14 + min(k // 2, 1)].append(x)
    for i, (c, t2, bb) in enumerate(seq):
        if i == 2:
            A.I('s_waitcnt lgkmcnt(0)')
        if i == 12:
            A.I('s_waitcnt lgkmcnt(0)')
        womf(c, t2, bb)
        for x in fill[i]:
            A.I(x)
    A.I(f's_cmp_ge_u32 s{S_WV}, 2')
    for x in post(3):
        A.I(x)
    stamp(6)
    stamp_acc()
    if STAMPS:
        A.I(f's_cmp_ge_u32 s{S_WV}, 2')
    if kvcheck:
        lke = A.newlabel('L_ke')
        A.I(f's_cmp_ge_u32 s{S_AV}, 64')
        A.I(f's_cbranch_scc1 {lke}')
        A.I('s_waitcnt vmcnt(9)')
        A.I(f'v_mov_b32 v{T + 8}, v{V_SP}')
        kv_eval(A, T + 8, V_L16, S_AV)
        A.I(f's_cmp_lt_u32 s{S_AV}, 64')
        A.I(f's_cselect_b32 s{S_RA}, s{S_RA}, 0x7f000000')
        lk2 = A.newlabel('L_ke2')
        A.br(f's_branch {lk2}')
        A.label(lke)
        for i in range(3):
            A.I('s_nop 7')
        A.label(lk2)
        A.I(f's_cmp_ge_u32 s{S_WV}, 2')
    zero(A, ACC, 8)
    A.I(f's_cbranch_scc1 {L_w23}')
    A.I(f'v_cndmask_b32 v{SEL}, 0, v{V_SEL}, s[{S_M0}:{S_M0 + 1}]')
    A.I(f'v_cndmask_b32 v{SEL + 1}, 0, v{V_SEL}, s[{S_M1}:{S_M1 + 1}]')
    A.I(f'v_mov_b64 {v(SEL + 2, 2)}, {v(SEL, 2)}')
    for i in range(PB_DELAY - (4 if kvcheck else 0)):
        A.I('s_nop 7')
    pb_loads(RA)
    hstamp(2)
    q_prefetch(A, 0)
    for i in range(PB_GAP):
        A.I('s_nop 7')
    if TWO_PB:
        pb_loads(RB)
    q_prefetch(A, 1)
    A.br(f's_branch {L_top}')
    A.label(L_w23)
    A.forget_loads()
    q_prefetch(A)
    if os.environ.get('DIAG2'):
        ld_ = A.newlabel('L_d2')
        A.I(f's_add_u32 s80, s{S_H}, s{S_WV}')
        A.I('s_cmp_lg_u32 s80, 2')
        A.I(f's_cbranch_scc1 {ld_}')
        A.I('s_mov_b32 s64, 0')
        for i, st_ in enumerate((1, 8, 20, 36, 52)):
            A.I(f's_cmp_eq_u32 s{S_STEP}, {st_}')
            A.I(f's_cselect_b32 s64, {44 + 4 * i}, s64')
        A.I('s_cmp_eq_u32 s64, 0')
        A.I(f's_cbranch_scc1 {ld_}')
        A.I('s_memrealtime s[80:81]')
        A.I('s_waitcnt lgkmcnt(0)')
        A.I('s_sub_u32 s80, s80, s58')
        A.I('v_mov_b32 v0, s80')
        A.I('buffer_store_dword v0, off, s[84:87], s64')
        A.label(ld_)
    if os.environ.get('STEPT'):
        A.I('s_memrealtime s[80:81]')
        A.I('s_waitcnt lgkmcnt(0)')
        A.I('v_mov_b32 v0, s80')
        A.I(f's_lshl_b32 s80, s{S_STEP}, 2')
        A.I(f's_lshl_b32 s81, s{S_H}, 8')
        A.I('s_add_u32 s80, s80, s81')
        A.I(f's_add_u32 s80, s80, 0x{WS_DBG + 0x20000:x}')
        A.I(f'buffer_store_dword v0, off, {ws}, s80')
    hstamp(2); hstamp(3)
    A.br(f's_branch {L_bh}')

    A.check = False
    A.label(L_pslow)
    if TWO_PB:
        red(RB, 0)
        A.I(f's_cbranch_vccz {L_red}')
    pb_loads(RA)
    A.I(f's_sub_u32 s{S_SPIN}, s{S_SPIN}, 1')
    A.I(f's_cbranch_scc1 {l_exit}')
    if TWO_PB:
        for i in range(3):
            A.I('s_nop 7')
        pb_loads(RB)
    A.br(f's_branch {L_top}')
    A.label(L_aslow)
    af_loads(0)
    zero(A, ACC, 8)
    for b in ASETS[1:]:
        A.I('s_waitcnt vmcnt(4)')
        A.I(f'v_max3_u32 v8, v{b}, v{b + 1}, v{b + 2}')
        A.I(f'v_max3_u32 v9, v{b + 3}, v{b + 4}, v{b + 5}')
        A.I(f'v_mov_b64 {v(10, 2)}, {v(b, 2)}')
        A.I(f'v_max3_u32 v8, v8, v{b + 6}, v{b + 7}')
        A.I(f'v_max_u32 v8, v8, v9')
        A.I(f'v_cmp_eq_u32 vcc, -1, v8')
        lf = A.newlabel('L_af_f')
        A.I(f's_cbranch_vccnz {lf}')
        for i in range(0, 8, 2):
            A.I(f'v_mov_b64 {v(i, 2)}, {v(b + i, 2)}')
        A.br(f's_branch {L_afok}')
        A.label(lf)
        af_loads(b)
    A.I(f's_sub_u32 s{S_SPIN}, s{S_SPIN}, 1')
    A.I(f's_cbranch_scc1 {l_exit}')
    A.br(f's_branch {L_afchk}')
    if kvcheck:
        A.label(L_kvc)
        A.I(f's_cmp_eq_u32 s23, 64')
        A.I(f's_cbranch_scc1 {L_kvr}')
        kv_wait(A, l_exit, 23, ACC + 16)
        A.br(f's_branch {L_kvr}')
    A.label(L_fin)
    A.I(f'v_add_u32 v12, s{S_W640}, v{V_KR}')
    A.I(f'v_lshrrev_b32 v13, 2, v{V_VX}')
    A.I(f'v_lshrrev_b32 v14, 2, v{V_L16}')
    A.I(f'v_add_u32 v13, v13, v14')
    A.I(f'ds_read_b128 v[0:3], v12')
    A.I(f'ds_read_b64 v[4:5], v13 offset:{L_VM}')
    A.I(f'v_lshrrev_b32 v14, 1, v{V_L16}')
    A.I('s_waitcnt lgkmcnt(0)')
    A.I(f'buffer_store_dwordx4 v[0:3], v{V_L16}, {ws}, s{S_KMO} offen sc1')
    A.I(f'buffer_store_dwordx2 v[4:5], v14, {ws}, s{S_VMO} offen sc1')
    if kvcheck:
        A.I('v_mov_b32 v6, 65')
        A.I('s_waitcnt vmcnt(0)')
        A.I('s_mov_b64 exec, 1')
        A.I(f'buffer_store_dword v6, off, {ws}, s{S_KP} sc1')
        A.I('s_mov_b64 exec, -1')
    A.br(f's_branch {l_exit}')
    A.check = True
    A.forget_loads()


def rec_kernel(A, name):
    kernel_begin(A, name)
    l_exit = A.newlabel('L_exit')
    P_WS, P_DBG, P_Q, P_K, P_V, P_O, P_M0 = 16, 18, 20, 22, 24, 26, 28
    A.I(f's_cmp_ge_u32 s2, 256')
    A.I(f's_cbranch_scc1 {l_exit}')
    A.I(f's_load_dwordx2 s[{P_WS}:{P_WS + 1}], s[0:1], {KA_WS}')
    A.I(f's_load_dwordx2 s[{P_DBG}:{P_DBG + 1}], s[0:1], {KA_DBG}')
    A.I(f's_load_dwordx4 s[{P_Q}:{P_Q + 3}], s[0:1], {KA_WQ}')
    A.I(f's_load_dwordx4 s[{P_V}:{P_V + 3}], s[0:1], {KA_WV}')
    A.I(f's_load_dwordx2 s[{P_M0}:{P_M0 + 1}], s[0:1], {KA_MEM0}')
    A.I('v_lshrrev_b32 v1, 6, v0')
    A.I(f'v_and_b32 v{LANE}, 63, v0')
    A.I(f'v_readfirstlane_b32 s{S_WV}, v1')
    A.I(f's_getreg_b32 s{S_T0}, hwreg(HW_REG_XCC_ID)')
    A.I(f's_and_b32 s{S_T0}, s{S_T0}, 15')
    A.I('s_waitcnt lgkmcnt(0)')
    make_srd(A, S_WS, P_WS, WS_SIZE)
    make_srd(A, S_DBG, P_DBG, 256)
    A.I(f's_cmp_lg_u32 s{S_T0}, 0')
    A.I(f's_cbranch_scc1 {l_exit}')
    A.I(f's_mov_b32 s{S_SPIN}, 2000000')
    dbg = f's[{S_DBG}:{S_DBG + 3}]'
    A.I('v_mov_b32 v2, 1')
    A.I('v_mov_b32 v3, 0')
    A.I('v_cmp_eq_u32 vcc, 0, v0')
    A.I('s_and_saveexec_b64 s[30:31], vcc')
    lsk = A.newlabel('L_sk')
    A.I(f's_cbranch_execz {lsk}')
    A.I(f'buffer_atomic_add v2, v3, {dbg}, 0 offen sc0')
    A.I('s_waitcnt vmcnt(0)')
    A.I('ds_write_b32 v3, v2')
    A.I('s_waitcnt lgkmcnt(0)')
    A.label(lsk)
    A.I('s_mov_b64 exec, s[30:31]')
    A.I('s_barrier')
    A.I('ds_read_b32 v2, v3')
    A.I('s_waitcnt lgkmcnt(0)')
    A.I(f'v_readfirstlane_b32 s{S_H}, v2')
    A.I('s_barrier')
    A.I(f's_cmp_ge_u32 s{S_H}, 32')
    A.I(f's_cbranch_scc1 {l_exit}')
    A.I(f's_memrealtime s[{S_TS}:{S_TS + 1}]')
    setup_consts(A)
    st = STF
    init_exchange(A, P_M0, st)
    A.I('s_barrier')
    A.I('v_mov_b32 v2, 1')
    A.I('v_mov_b32 v3, 64')
    A.I('v_cmp_eq_u32 vcc, 0, v0')
    A.I('s_and_saveexec_b64 s[30:31], vcc')
    lsk = A.newlabel('L_sk')
    A.I(f's_cbranch_execz {lsk}')
    A.I(f'buffer_atomic_add v2, v3, {dbg}, 0 offen')
    A.label(lsk)
    A.I('s_mov_b64 exec, s[30:31]')
    A.I('s_waitcnt vmcnt(0)')
    stage_weights(A, [P_Q, P_K, P_V, P_O])
    A.I(f's_lshl_b32 s{S_KVN}, s{S_H}, 13')
    A.I(f's_add_u32 s{S_KVN}, s{S_KVN}, s{S_W11}')
    A.I(f's_add_u32 s{S_KVN}, s{S_KVN}, 0x{WS_KF:x}')
    A.I(f's_add_u32 s{S_KVM0}, s{S_W11}, {L_KV}')
    kv_dma(A)
    lw = A.newlabel('L_tw')
    A.I('v_mov_b32 v3, 64')
    A.label(lw)
    A.I(f'buffer_load_dword v2, v3, {dbg}, 0 offen sc1')
    A.I(f's_sub_u32 s{S_SPIN}, s{S_SPIN}, 1')
    A.I(f's_cbranch_scc1 {l_exit}')
    A.I('s_waitcnt vmcnt(0)')
    A.I(f'v_readfirstlane_b32 s{S_T0}, v2')
    A.I(f's_cmp_lt_u32 s{S_T0}, 32')
    A.I(f's_cbranch_scc1 {lw}')
    A.I('s_barrier')
    A.I(f's_memrealtime s[{S_TS + 2}:{S_TS + 3}]')
    A.I('s_waitcnt lgkmcnt(0)')
    l_done = A.newlabel('L_done')
    main_loop(A, st, l_done)
    A.label(l_done)
    A.forget_loads()
    A.I(f's_memrealtime s[{S_TS + 4}:{S_TS + 5}]')
    A.I('s_waitcnt lgkmcnt(0) vmcnt(0)')
    A.I(f's_lshl_b32 s{S_T0}, s{S_H}, 2')
    A.I(f's_add_u32 s{S_T0}, s{S_T0}, s{S_WV}')
    A.I(f's_lshl_b32 s{S_T0}, s{S_T0}, 5')
    A.I(f's_add_u32 s{S_T0}, s{S_T0}, 0x{WS_DBG:x}')
    for i in range(6):
        A.I(f'v_mov_b32 v{i}, s{S_TS + i}')
    A.I(f'v_mov_b32 v6, s{S_STEP}')
    A.I(f'v_mov_b32 v7, s{S_SPIN}')
    A.I('v_mov_b32 v8, 0')
    A.I(f'buffer_store_dwordx4 v[0:3], v8, s[{S_WS}:{S_WS + 3}], s{S_T0} offen')
    A.I(f'buffer_store_dwordx4 v[4:7], v8, s[{S_WS}:{S_WS + 3}], s{S_T0} offen offset:16')
    if STAMPS:
        A.I(f's_add_u32 s{S_T0}, s{S_T0}, s{S_T0}')
        A.I(f's_sub_u32 s{S_T0}, s{S_T0}, 0x{WS_DBG - 0x10000:x}')
        for i in range(12):
            A.I(f'v_mov_b32 v{12 + i}, s{88 + i}')
        for i in range(3):
            A.I(f'buffer_store_dwordx4 {v(12 + 4 * i, 4)}, v8, s[{S_WS}:{S_WS + 3}], s{S_T0} offen offset:{16 * i}')
    A.label(l_exit)
    A.I('s_endpgm')


if __name__ == '__main__':
    A = Asm()
    rec_kernel(A, 'rec_kernel')
    txt = header([('rec_kernel', 256, 256, L_TOTAL)]) + A.text() + '.section .rodata,"a"\n' + kernel_desc('rec_kernel', 512, 256)
    open('work/' + OUT, 'w').write(txt)
    print('ok', len(txt))
```

```python
import os
os.environ.setdefault('PB_DELAY', '7'); os.environ.setdefault('AF_DELAY', '2'); os.environ.setdefault('AF_GAP', '2')
from common import *
import tok as T
import rec9 as R
from tok import f32, S_WS, S_W, S_X, S_H, S_WV, S_G, S_T0, S_T1, S_T2, S_T3

S_DBG = 84
S_SPIN = R.S_SPIN
S_XCC = 83
S_LNO = 82
F_OPC = WS_FLAG + 0x4000
F_LH = WS_FLAG + 0x6000
F_LU = WS_FLAG + 0x8000
F_GF = WS_FLAG + 0x8400
S_FAST = S_XCC
D_GB, D_OVF, D_WEIRD, D_TS, D_TI = 128, 36, 40, 192, 196
S_J, S_BO2, S_LB2 = 100, 101, 3
S_J2 = 63
S_W1, S_B1, S_W2 = 88, 92, 96
NEARLY = int(os.environ.get('NEARLY', 2))
STAG = int(os.environ.get('STAG', 4))
STAG0 = int(os.environ.get('STAG0', 1))
TIMING = bool(os.environ.get('TIMING'))
OPRING = int(os.environ.get('OPRING', 0))
WARM = int(os.environ.get('WARM', 0))
DIAG = bool(os.environ.get('DIAG'))
TAIL_BYTES = int(os.environ.get('TAIL_BYTES', 24576))
CODET = int(os.environ.get('CODET', 0))
CODE_BYTES = int(os.environ.get('CODE_BYTES', 57344))
PLF = os.environ.get('PLF', 'sc1').replace('_', ' ')


def lane0(A, body):
    A.I('s_mov_b64 exec, 1')
    body()
    A.I('s_mov_b64 exec, -1')


def poll_eq(A, srd, s_off, imm, expect, vt, l_exit, sleep=0):
    l = A.newlabel('L_poll')
    A.label(l)
    so = f's{s_off}' if s_off is not None else '0'
    A.I(f'buffer_load_dword v{vt}, off, {srd}, {so} offset:{imm} sc1')
    A.I(f's_sub_u32 s{S_SPIN}, s{S_SPIN}, 1')
    A.I(f's_cbranch_scc1 {l_exit}')
    A.I('s_waitcnt vmcnt(0)')
    A.I(f'v_readfirstlane_b32 s{S_T0}, v{vt}')
    ld = A.newlabel('L_pd')
    A.I(f's_cmp_eq_u32 s{S_T0}, {expect}')
    A.I(f's_cbranch_scc1 {ld}')
    if sleep:
        A.I(f's_sleep {sleep}')
    A.br(f's_branch {l}')
    A.label(ld)


def poll_flags(A, s_off, nlanes, width, vt, va, l_exit, sleep=0):
    ws = f's[{S_WS}:{S_WS + 3}]'
    l, ld = A.newlabel('L_pf'), A.newlabel('L_pfd')
    A.I(f'v_lshlrev_b32 v{va}, {2 if width == 1 else 3}, v0')
    assert nlanes <= 32
    A.I(f's_mov_b32 exec_lo, 0x{(1 << nlanes) - 1:x}')
    A.I('s_mov_b32 exec_hi, 0')
    A.label(l)
    if width == 1:
        A.I(f'buffer_load_dword v{vt}, v{va}, {ws}, s{s_off} offen {PLF}')
    else:
        A.I(f'buffer_load_dwordx2 {v(vt, 2)}, v{va}, {ws}, s{s_off} offen {PLF}')
    A.I(f's_sub_u32 s{S_SPIN}, s{S_SPIN}, 1')
    A.I(f's_cbranch_scc1 {l_exit}')
    A.I('s_waitcnt vmcnt(0)')
    if width == 2:
        A.I(f'v_min_u32 v{vt}, v{vt}, v{vt + 1}')
    A.I(f'v_cmp_eq_u32 vcc, 0, v{vt}')
    A.I(f's_cbranch_vccz {ld}')
    if sleep:
        A.I(f's_sleep {sleep}')
    A.br(f's_branch {l}')
    A.label(ld)
    A.I('s_mov_b64 exec, -1')


def flag_store(A, s_addr, vt):
    ws = f's[{S_WS}:{S_WS + 3}]'
    l1, l2 = A.newlabel('L_fs'), A.newlabel('L_fs')
    A.I(f'v_mov_b32 v{vt}, 1')
    A.I('s_mov_b64 exec, 1')
    A.I(f's_cmp_eq_u32 s{S_FAST}, 0')
    A.br(f's_cbranch_scc1 {l1}')
    A.I(f'buffer_store_dword v{vt}, off, {ws}, s{s_addr}')
    A.br(f's_branch {l2}')
    A.label(l1)
    A.I(f'buffer_store_dword v{vt}, off, {ws}, s{s_addr} sc1')
    A.label(l2)
    A.I('s_mov_b64 exec, -1')


def garrive(A, s_line, s_goff, vt, l_exit):
    ws = f's[{S_WS}:{S_WS + 3}]'
    A.I(f's_lshl_b32 s{S_T1}, s{S_H}, 2')
    A.I(f's_add_u32 s{S_T1}, s{S_T1}, s{s_line}')
    flag_store(A, S_T1, vt)
    l = A.newlabel('L_ga')
    A.I(f's_cmp_lg_u32 s{S_H}, 0')
    A.br(f's_cbranch_scc1 {l}')
    poll_flags(A, s_line, 32, 1, vt, vt + 1, l_exit)
    A.I(f'v_lshlrev_b32 v{vt + 1}, 9, v0')
    A.I(f'v_mov_b32 v{vt}, 1')
    A.I('s_mov_b64 exec, 0xff')
    A.I(f'buffer_store_dword v{vt}, v{vt + 1}, {ws}, s{s_goff} offen sc1')
    A.I('s_mov_b64 exec, -1')
    A.label(l)


def wg_poll_eq(A, srd, s_off, imm, expect, vt, l_exit, sleep=0):
    l0 = A.newlabel('L_wgp')
    A.I(f's_cmp_lg_u32 s{S_WV}, 0')
    A.br(f's_cbranch_scc1 {l0}')
    poll_eq(A, srd, s_off, imm, expect, vt, l_exit, sleep)
    A.label(l0)
    A.I('s_barrier')


def tstamp(A, idx, r=14):
    if not TIMING:
        return
    l = A.newlabel('L_ts')
    A.I(f's_cmp_lg_u32 s{S_WV}, 0')
    A.br(f's_cbranch_scc1 {l}')
    A.I('s_memrealtime s[80:81]')
    A.I('s_waitcnt lgkmcnt(0)')
    A.I(f'v_mov_b32 v{r}, s80')
    A.I(f'v_mov_b32 v{r + 1}, s81')
    A.I(f's_lshl_b32 s80, s{S_G}, 5')
    A.I(f's_add_u32 s80, s80, s{S_H}')
    A.I('s_lshl_b32 s80, s80, 8')
    A.I(f's_add_u32 s80, s80, 0x{WS_DBG:x}')
    A.I(f'buffer_store_dwordx2 {v(r, 2)}, off, s[{S_WS}:{S_WS + 3}], s80 offset:{8 * idx}')
    A.label(l)


def mega_kernel(A, name):
    kernel_begin(A, name)
    l_exit = A.newlabel('L_exit')
    P_WS, P_DBG, P_Q, P_K, P_V, P_O, P_M0, P_X = 16, 18, 20, 22, 24, 26, 28, 30
    ws, dbg, sx = f's[{S_WS}:{S_WS + 3}]', f's[{S_DBG}:{S_DBG + 3}]', f's[{S_X}:{S_X + 3}]'
    A.I('s_cmp_ge_u32 s2, 256')
    A.I(f's_cbranch_scc1 {l_exit}')
    if DIAG:
        A.I('s_memrealtime s[58:59]')
    A.I(f's_load_dwordx2 s[{P_WS}:{P_WS + 1}], s[0:1], {KA_WS}')
    A.I(f's_load_dwordx2 s[{P_DBG}:{P_DBG + 1}], s[0:1], {KA_DBG}')
    A.I(f's_load_dwordx4 s[{P_Q}:{P_Q + 3}], s[0:1], {KA_WQ}')
    A.I(f's_load_dwordx4 s[{P_V}:{P_V + 3}], s[0:1], {KA_WV}')
    A.I(f's_load_dwordx2 s[{P_M0}:{P_M0 + 1}], s[0:1], {KA_MEM0}')
    A.I(f's_load_dwordx2 s[{P_X}:{P_X + 1}], s[0:1], {KA_X}')
    A.I('v_lshrrev_b32 v1, 6, v0')
    A.I('v_and_b32 v0, 63, v0')
    A.I(f'v_readfirstlane_b32 s{S_WV}, v1')
    A.I(f's_getreg_b32 s{S_XCC}, hwreg(HW_REG_XCC_ID)')
    A.I(f's_mov_b32 s{S_SPIN}, 0x80000')
    A.I('s_waitcnt lgkmcnt(0)')
    make_srd(A, S_WS, P_WS, WS_SIZE)
    make_srd(A, S_DBG, P_DBG, 256)
    make_srd(A, S_X, P_X, 2048 * 1024)
    LX, LF = 32, 48
    lnl = A.newlabel('L_l0')
    A.I('v_and_b32 v24, 15, v0')
    A.I('v_lshrrev_b32 v25, 4, v0')
    A.I('s_cmp_ge_u32 s2, 128')
    A.br(f's_cbranch_scc1 {lnl}')
    A.I('v_lshlrev_b32 v26, 10, v24')
    A.I('v_lshl_add_u32 v26, v25, 4, v26')
    A.I(f's_lshl_b32 s{S_LNO}, s2, 14')
    A.I(f's_lshl_b32 s{S_T0}, s{S_WV}, 8')
    A.I(f's_add_u32 s{S_T0}, s{S_T0}, s{S_LNO}')
    for i in range(4):
        A.I(f'buffer_load_dwordx4 {v(LX + 4 * i, 4)}, v26, {sx}, s{S_T0} offen offset:{64 * i}')
    A.label(lnl)
    A.forget_loads()
    if CODET:
        lct = A.newlabel('L_ct')
        A.I(f's_cmp_lg_u32 s{S_WV}, 3')
        A.br(f's_cbranch_scc1 {lct}')
        A.I('s_cmp_ge_u32 s2, 16')
        A.br(f's_cbranch_scc1 {lct}')
        code_touch(A, name, l_exit, CODE_BYTES, 255, 3)
        A.label(lct)
    lr = A.newlabel('L_role_done')
    A.I(f's_cmp_lg_u32 s{S_WV}, 0')
    A.br(f's_cbranch_scc1 {lr}')
    A.I('s_mov_b64 exec, 1')
    A.I('v_mov_b32 v2, 1')
    lw = A.newlabel('L_nw')
    A.I(f's_cmp_lt_u32 s{S_XCC}, 8')
    A.br(f's_cbranch_scc1 {lw}')
    A.I(f'buffer_atomic_or v2, off, {dbg}, 0 offset:{D_WEIRD}')
    A.I('s_waitcnt vmcnt(0)')
    A.label(lw)
    A.I(f's_and_b32 s{S_G}, s{S_XCC}, 7')
    A.I(f's_lshl_b32 s{S_T0}, s{S_G}, 2')
    A.I(f'buffer_atomic_add v2, off, {dbg}, s{S_T0} sc0')
    A.I('s_waitcnt vmcnt(0)')
    A.I(f'v_readfirstlane_b32 s{S_H}, v2')
    lok = A.newlabel('L_rok')
    A.I(f's_cmp_lt_u32 s{S_H}, 32')
    A.br(f's_cbranch_scc1 {lok}')
    A.I('v_mov_b32 v2, 1')
    A.I(f'buffer_atomic_add v2, off, {dbg}, 0 offset:{D_OVF} sc0')
    A.I('s_waitcnt vmcnt(0)')
    A.I(f'v_readfirstlane_b32 s{S_T3}, v2')
    lo = A.newlabel('L_ovf')
    A.label(lo)
    A.I(f'buffer_load_dwordx4 v[4:7], off, {dbg}, 0 sc1')
    A.I(f'buffer_load_dwordx4 v[8:11], off, {dbg}, 0 offset:16 sc1')
    A.I(f's_sub_u32 s{S_SPIN}, s{S_SPIN}, 1')
    A.I(f's_cbranch_scc1 {l_exit}')
    A.I('s_waitcnt vmcnt(0)')
    A.I(f's_mov_b32 s{S_T0}, 0')
    for i in range(8):
        A.I(f'v_readfirstlane_b32 s{64 + i}, v{4 + i}')
    for i in range(8):
        A.I(f's_add_u32 s{S_T0}, s{S_T0}, s{64 + i}')
    A.I(f's_cmp_lt_u32 s{S_T0}, 256')
    A.br(f's_cbranch_scc1 {lo}')
    for g in range(8):
        A.I(f's_min_u32 s{S_T0}, s{64 + g}, 32')
        A.I(f's_sub_u32 s{S_T1}, 32, s{S_T0}')
        A.I(f's_mov_b32 s{S_G}, {g}')
        A.I(f's_add_u32 s{S_H}, s{S_T0}, s{S_T3}')
        A.I(f's_cmp_lt_u32 s{S_T3}, s{S_T1}')
        A.br(f's_cbranch_scc1 {lok}')
        A.I(f's_sub_u32 s{S_T3}, s{S_T3}, s{S_T1}')
    A.label(lok)
    A.I(f's_lshl_b32 s{S_T0}, s{S_G}, 8')
    A.I(f's_or_b32 s{S_T0}, s{S_T0}, s{S_H}')
    A.I(f'v_mov_b32 v2, s{S_T0}')
    A.I('v_mov_b32 v3, 0')
    A.I('ds_write_b32 v3, v2')
    A.I('s_waitcnt lgkmcnt(0)')
    A.I('s_mov_b64 exec, -1')
    A.label(lr)
    lno, lnd = A.newlabel('L_lno'), A.newlabel('L_lnd')
    A.I('s_cmp_ge_u32 s2, 128')
    A.br(f's_cbranch_scc1 {lno}')
    A.I(f's_lshl_b32 s{S_T0}, s{S_WV}, 2')
    A.I('v_lshlrev_b32 v27, 4, v24')
    A.I(f'v_add_u32 v26, s{S_T0}, v27')
    A.I('s_waitcnt vmcnt(0)')
    for i in range(16):
        A.I(f'v_lshlrev_b32 v{LF + 2 * i}, 16, v{LX + i}')
        A.I(f'v_and_b32 v{LF + 2 * i + 1}, 0xffff0000, v{LX + i}')
    A.I(f'v_add_f32 v28, v{LF}, v{LF + 1}')
    A.I(f'v_add_f32 v29, v{LF + 2}, v{LF + 3}')
    for i in range(4, 32, 2):
        A.I(f'v_add_f32 v28, v28, v{LF + i}')
        A.I(f'v_add_f32 v29, v29, v{LF + i + 1}')
    A.I('v_add_f32 v28, v28, v29')
    T.xreduce(A, 'v_add_f32', 28, 29)
    A.I('ds_write_b32 v26, v28 offset:64')
    A.I('s_waitcnt lgkmcnt(0)')
    A.I('s_barrier')
    A.I('v_mov_b32 v3, 0')
    A.I('ds_read_b32 v2, v3')
    A.I('ds_read_b128 v[28:31], v27 offset:64')
    A.I('s_waitcnt lgkmcnt(0)')
    A.I('v_add_f32 v28, v28, v29')
    A.I('v_add_f32 v30, v30, v31')
    A.I('v_add_f32 v28, v28, v30')
    A.I(f'v_mul_f32 v28, {f32(1 / 512)}, v28')
    A.I('v_mov_b32 v29, 0')
    A.I('v_mov_b32 v30, 0')
    for i in range(0, 32, 2):
        A.I(f'v_sub_f32 v{LF + i}, v{LF + i}, v28')
        A.I(f'v_sub_f32 v{LF + i + 1}, v{LF + i + 1}, v28')
        A.I(f'v_fmac_f32 v29, v{LF + i}, v{LF + i}')
        A.I(f'v_fmac_f32 v30, v{LF + i + 1}, v{LF + i + 1}')
    A.I('v_add_f32 v29, v29, v30')
    T.xreduce(A, 'v_add_f32', 29, 30)
    A.I('ds_write_b32 v26, v29 offset:320')
    A.I('s_waitcnt lgkmcnt(0)')
    A.I('s_barrier')
    A.I('ds_read_b128 v[28:31], v27 offset:320')
    A.I('s_waitcnt lgkmcnt(0)')
    A.I('v_add_f32 v28, v28, v29')
    A.I('v_add_f32 v30, v30, v31')
    A.I('v_add_f32 v28, v28, v30')
    A.I(f'v_mov_b32 v29, {f32(1e-5)}')
    A.I(f'v_fmac_f32 v29, {f32(1 / 512)}, v28')
    A.I('v_rsq_f32 v29, v29')
    A.I('v_lshlrev_b32 v26, 4, v0')
    A.I(f's_lshl_b32 s{S_T0}, s{S_WV}, 12')
    A.I(f's_add_u32 s{S_T0}, s{S_T0}, s{S_LNO}')
    A.I(f's_add_u32 s{S_T0}, s{S_T0}, 0x{WS_XN:x}')
    for i in range(4):
        for j in range(4):
            f = LF + 8 * i + 2 * j
            A.I(f'v_mul_f32 v{f}, v{f}, v29')
            A.I(f'v_mul_f32 v{f + 1}, v{f + 1}, v29')
            A.I(f'v_cvt_pk_bf16_f32 v{LX + 4 * i + j}, v{f}, v{f + 1}')
        A.I(f'buffer_store_dwordx4 {v(LX + 4 * i, 4)}, v26, {ws}, s{S_T0} offen offset:{1024 * i} sc1')
    A.br(f's_branch {lnd}')
    A.label(lno)
    A.I('s_barrier')
    A.I('v_mov_b32 v3, 0')
    A.I('ds_read_b32 v2, v3')
    A.I('s_waitcnt lgkmcnt(0)')
    A.label(lnd)
    A.forget_loads()
    A.I(f'v_readfirstlane_b32 s{S_T0}, v2')
    A.I(f's_and_b32 s{S_H}, s{S_T0}, 31')
    A.I(f's_bfe_u32 s{S_G}, s{S_T0}, 0x30008')
    A.I('s_barrier')
    tstamp(A, 0)

    def arrive(off=D_GB):
        l = A.newlabel('L_na')
        A.I(f's_cmp_lg_u32 s{S_WV}, 0')
        A.br(f's_cbranch_scc1 {l}')
        A.I('v_mov_b32 v23, 1')
        lane0(A, lambda: A.I(f'buffer_atomic_add v23, off, {dbg}, 0 offset:{off}'))
        A.label(l)

    def ln_and_arrive(ln=True):
        A.I('s_waitcnt vmcnt(0)')
        A.I('s_barrier')
        arrive()

    l_tok = A.newlabel('L_tok')
    l_g2 = A.newlabel('L_g2')
    A.I(f's_cmp_lg_u32 s{S_G}, 0')
    A.br(f's_cbranch_scc1 {l_tok}')

    A.I(f'v_mov_b32 v{R.LANE}, v0')
    R.setup_consts(A)

    A.I(f's_lshl_b32 s{S_T0}, s{S_H}, 6')
    A.I(f's_lshl_b32 s{S_T1}, s{S_WV}, 2')
    A.I(f's_add_u32 s{S_T0}, s{S_T0}, s{S_T1}')
    A.I(f's_add_u32 s{S_LNO}, s{S_T0}, 0x{R.F_KMP:x}')
    A.I('v_mov_b32 v24, 0')
    lane0(A, lambda: A.I(f'buffer_store_dword v24, off, {ws}, s{S_LNO} sc1'))
    R.init_exchange(A, P_M0, 'sc1', rb=24, part=0)

    def thook():
        A.check = False
        R.init_exchange(A, P_M0, 'sc1', rb=24, part=1)
        A.check = True
        A.forget_loads()

    def h_sc(sc):
        if sc == 0:
            arrive()
            tstamp(A, 8, 24)
        if sc == 1:
            arrive(D_TI)

    S_OK = 25

    def batch():
        A.I(f'buffer_load_dword v25, off, {dbg}, 0 sc1')
        A.I(f'buffer_load_dword v26, off, {dbg}, 0 offset:{D_WEIRD} sc1')
        A.I(f'buffer_load_dword v27, off, {dbg}, 0 offset:{D_TI} sc1')
        R.kv_load(A, 28, R.V_L16, R.S_RA)

    def h_issue(sc):
        if sc == 3:
            A.I(f'buffer_load_dword v24, off, {dbg}, 0 offset:{D_GB} sc1')
            return
        A.I(f's_lshl_b32 s{R.S_RA}, s{S_H}, 7')
        A.I(f's_add_u32 s{R.S_RA}, s{R.S_RA}, 0x{R.F_PROG:x}')
        A.I(f's_lshl_b32 s{R.S_KVN}, s{S_H}, 13')
        A.I(f's_add_u32 s{R.S_KVN}, s{R.S_KVN}, s{R.S_W11}')
        A.I(f's_add_u32 s{R.S_KVN}, s{R.S_KVN}, 0x{WS_KF:x}')
        A.I(f's_add_u32 s{R.S_KVM0}, s{R.S_W11}, {R.L_KV}')
        batch()

    def evaluate(l_fail):
        R.kv_eval(A, 28, R.V_L16, R.S_AV)
        A.I(f'v_readfirstlane_b32 s{S_T0}, v24')
        A.I(f'v_readfirstlane_b32 s{S_T2}, v25')
        A.I(f'v_readfirstlane_b32 s{S_T3}, v26')
        A.I(f's_cmp_lg_u32 s{S_T0}, 256')
        A.I(f's_cbranch_scc1 {l_fail}')
        A.I(f'v_readfirstlane_b32 s{S_T0}, v27')
        A.I(f's_cmp_lg_u32 s{S_T0}, 32')
        A.I(f's_cbranch_scc1 {l_fail}')
        A.I(f's_cmp_eq_u32 s{R.S_AV}, 0')
        A.I(f's_cbranch_scc1 {l_fail}')
        A.I(f's_cmp_ge_u32 s{S_T2}, 32')
        A.I(f's_cselect_b32 s{S_XCC}, 1, 0')
        A.I(f's_cmp_eq_u32 s{S_T3}, 0')
        A.I(f's_cselect_b32 s{S_XCC}, s{S_XCC}, 0')
        R.kv_dma(A)

    def h_check():
        lf = A.newlabel('L_hf')
        A.I(f's_mov_b32 s{S_OK}, 0')
        evaluate(lf)
        A.I(f's_mov_b32 s{S_OK}, 1')
        A.label(lf)

    R.stage_weights(A, [P_Q, P_K, P_V, P_O], hook=thook, hook_issue=h_issue, hook_check=h_check, hook_sc=h_sc)
    l = A.newlabel('L_ns')
    A.I(f's_cmp_lg_u32 s{S_WV}, 0')
    A.br(f's_cbranch_scc1 {l}')
    A.I('v_mov_b32 v2, 1')
    lane0(A, lambda: A.I(f'buffer_atomic_add v2, off, {dbg}, 0 offset:{D_TS}'))
    A.label(l)
    tstamp(A, 1)
    A.I(f's_mov_b32 s{R.S_KP}, s{S_LNO}')
    lgo_, lre = A.newlabel('L_tgo'), A.newlabel('L_tre')
    A.I(f's_cmp_eq_u32 s{S_OK}, 1')
    A.br(f's_cbranch_scc1 {lgo_}')
    A.label(lre)
    A.I('s_sleep 4')
    A.I(f'buffer_load_dword v24, off, {dbg}, 0 offset:{D_GB} sc1')
    A.I('s_waitcnt vmcnt(0)')
    batch()
    A.I(f's_sub_u32 s{S_SPIN}, s{S_SPIN}, 1')
    A.I(f's_cbranch_scc1 {l_exit}')
    A.I('s_waitcnt vmcnt(0)')
    evaluate(lre)
    A.label(lgo_)
    A.I('s_waitcnt vmcnt(0)')
    A.I('s_barrier')
    tstamp(A, 2)
    if DIAG:
        A.I('s_memrealtime s[80:81]')
        A.I('s_waitcnt lgkmcnt(0)')
        A.I('s_sub_u32 s60, s80, s58')
    l_slow = A.newlabel('L_slowmode')
    l_tdone = A.newlabel('L_tdone')
    A.I(f's_cmp_eq_u32 s{S_XCC}, 0')
    if os.environ.get('FORCE_SLOW'):
        A.br(f's_branch {l_slow}')
    else:
        A.br(f's_cbranch_scc1 {l_slow}')
    R.main_loop(A, '', l_tdone, kvcheck=True)
    A.label(l_slow)
    R.main_loop(A, 'sc1', l_tdone, kvcheck=True)
    A.label(l_tdone)
    A.forget_loads()
    A.I(f's_mov_b32 s{S_G}, 0')
    tstamp(A, 3)
    if DIAG:
        A.I('s_memrealtime s[80:81]')
        A.I('s_waitcnt lgkmcnt(0)')
        A.I('s_sub_u32 s61, s80, s58')
    A.I(f'v_lshrrev_b32 v0, 4, v{R.V_L16}')
    j2_calc(A)
    A.I('s_waitcnt vmcnt(0) lgkmcnt(0)')
    A.I('s_barrier')
    g2_setup(A)
    for k in range(5):
        g2_dma(A, k)
    A.I(f's_mov_b32 s{S_PRE}, 0')
    A.br(f's_branch {l_g2}')

    A.label(l_tok)
    A.forget_loads()
    S_SEG, S_NX, S_CA, S_END, S_K1, S_AV, S_PB = 36, 41, 42, 43, 44, 45, 46
    j2_calc(A)
    A.I(f's_sub_u32 s{S_G}, s{S_G}, 1')
    A.I(f's_lshl_b32 s{S_J}, s{S_G}, 5')
    A.I(f's_add_u32 s{S_J}, s{S_J}, s{S_H}')

    def tok_init(ln=True):
        A.I(f's_lshl_b32 s{S_CA}, s{S_H}, 7')
        A.I(f's_lshl_b32 s{S_T0}, s{S_G}, 4')
        A.I(f's_add_u32 s{S_CA}, s{S_CA}, s{S_T0}')
        A.I(f's_lshl_b32 s{S_T0}, s{S_WV}, 2')
        A.I(f's_add_u32 s{S_CA}, s{S_CA}, s{S_T0}')
        A.I(f's_add_u32 s{S_CA}, s{S_CA}, 0x{R.F_PROG:x}')
        A.I('v_mov_b32 v22, 0')
        lane0(A, lambda: A.I(f'buffer_store_dword v22, off, {ws}, s{S_CA} sc1'))
        lz = A.newlabel('L_nz')
        A.I(f's_cmp_lg_u32 s{S_J}, 64')
        A.br(f's_cbranch_scc1 {lz}')
        A.I('v_lshlrev_b32 v23, 4, v0')
        for r in range(16, 20):
            A.I(f'v_mov_b32 v{r}, 0')
        A.I(f's_mul_i32 s{S_T0}, s{S_WV}, 6144')
        A.I(f's_add_u32 s{S_T0}, s{S_T0}, 0x{F_OPC:x}')
        A.I(f's_add_u32 s{S_T1}, s{S_T0}, 4096')
        for i in range(4):
            A.I(f'buffer_store_dwordx4 v[16:19], v23, {ws}, s{S_T0} offen offset:{1024 * i} sc1')
        A.I(f'buffer_store_dwordx4 v[16:19], v23, {ws}, s{S_T1} offen sc1')
        A.I(f'buffer_store_dwordx4 v[16:19], v23, {ws}, s{S_T1} offen offset:1024 sc1')
        A.label(lz)
        A.forget_loads()
        if ln:
            ln_and_arrive()
            ts_tok(A, 8)

    l_late = A.newlabel('L_late')
    l_st = A.newlabel('L_st')
    A.I(f's_mov_b32 s{S_K1}, 0')
    l_lt = A.newlabel('L_lt')
    A.I(f's_cmp_ge_u32 s{S_G}, {NEARLY}')
    A.br(f's_cbranch_scc1 {l_lt}')
    tok_init(False)
    A.br(f's_branch {l_st}')
    A.label(l_lt)
    if WARM:
        lwm = A.newlabel('L_wm')
        A.I(f's_cmp_eq_u32 s{S_G}, 3')
        A.br(f's_cbranch_scc1 {lwm}')
        A.I(f's_sub_u32 s{S_T0}, s{S_J}, 96')
        A.I(f's_cmp_eq_u32 s{S_G}, 2')
        A.I(f's_cselect_b32 s{S_T0}, s{S_H}, s{S_T0}')
        A.I(f's_lshl_b32 s{S_T0}, s{S_T0}, 2')
        A.I(f's_add_u32 s{S_T0}, s{S_T0}, s{S_WV}')
        A.I(f's_lshl_b32 s{S_T0}, s{S_T0}, 13')
        A.I('v_lshlrev_b32 v22, 7, v0')
        A.check = False
        for p in (P_Q, P_K, P_V, P_O):
            make_srd(A, S_W, p, 4 << 20)
            A.I(f'buffer_load_dword v255, v22, s[{S_W}:{S_W + 3}], s{S_T0} offen')
        A.check = True
        A.label(lwm)
        A.forget_loads()
    tok_init()
    l_nost = A.newlabel('L_nost')
    if os.environ.get('ALLWAIT'):
        wg_poll_eq(A, dbg, None, D_TS, 32, 2, l_exit, sleep=32)
    A.I(f's_cmp_ge_u32 s{S_G}, 4')
    A.br(f's_cbranch_scc1 {l_nost}')
    wg_poll_eq(A, dbg, None, D_TS, 32, 2, l_exit, sleep=32)
    lsg, lsd = A.newlabel('L_sg'), A.newlabel('L_sd')
    A.I(f's_cmp_lg_u32 s{S_WV}, 0')
    A.br(f's_cbranch_scc1 {lsd}')
    A.I(f's_cmp_eq_u32 s{S_G}, 3')
    A.I(f's_cselect_b32 s{S_T1}, {STAG}, {STAG0}')
    A.I(f's_lshl_b32 s{S_T2}, s{S_H}, 6')
    A.I(f's_add_u32 s{S_T2}, s{S_T2}, 0x{R.F_KMP:x}')
    A.label(lsg)
    A.I(f'buffer_load_dword v2, off, {ws}, s{S_T2} sc1')
    A.I(f's_sub_u32 s{S_SPIN}, s{S_SPIN}, 1')
    A.I(f's_cbranch_scc1 {l_exit}')
    A.I('s_waitcnt vmcnt(0)')
    A.I(f'v_readfirstlane_b32 s{S_T0}, v2')
    A.I(f's_cmp_ge_u32 s{S_T0}, s{S_T1}')
    A.I(f's_cbranch_scc1 {lsd}')
    A.I('s_sleep 16')
    A.br(f's_branch {lsg}')
    A.label(lsd)
    A.I('s_barrier')
    A.I(f's_mov_b32 s{S_K1}, 1')
    A.label(l_st)

    def hook(sc):
        if sc != 0:
            return
        l = A.newlabel('L_hk')
        A.I(f's_cmp_eq_u32 s{S_K1}, 1')
        A.br(f's_cbranch_scc1 {l}')
        arrive()
        ts_tok(A, 8)
        A.label(l)

    T.qkv_stage(A, [P_Q, P_K, P_V], hook_sc=hook)
    A.label(l_nost)
    ts_tok(A, 1)
    wg_poll_eq(A, dbg, None, D_GB, 256, 2, l_exit, sleep=8)
    ts_tok(A, 7)
    A.I(f's_lshl_b32 s{S_T0}, s{S_G}, 2')
    A.I(f'buffer_load_dword v2, off, {dbg}, s{S_T0} offset:4 sc1')
    A.I(f'buffer_load_dword v3, off, {dbg}, 0 offset:{D_WEIRD} sc1')
    A.I('s_waitcnt vmcnt(0)')
    A.I(f'v_readfirstlane_b32 s{S_T2}, v2')
    A.I(f'v_readfirstlane_b32 s{S_T3}, v3')
    A.I(f's_cmp_ge_u32 s{S_T2}, 32')
    A.I(f's_cselect_b32 s{S_FAST}, 1, 0')
    A.I(f's_cmp_eq_u32 s{S_T3}, 0')
    A.I(f's_cselect_b32 s{S_FAST}, s{S_FAST}, 0')
    if os.environ.get('FORCE_SLOW'):
        A.I(f's_mov_b32 s{S_FAST}, 0')
    l_nop1 = A.newlabel('L_nop1')
    A.I(f's_cmp_ge_u32 s{S_G}, 4')
    A.br(f's_cbranch_scc1 {l_nop1}')
    A.I(f's_lshr_b32 s{S_T0}, s{S_G}, 1')
    A.I(f's_lshl_b32 s{S_T0}, s{S_T0}, 5')
    A.I(f's_add_u32 s{S_END}, s{S_T0}, 32')
    A.I(f's_and_b32 s{S_NX}, s{S_G}, 1')
    A.I(f's_add_u32 s{S_NX}, s{S_NX}, s{S_T0}')
    A.I('v_mov_b32 v2, 0')

    def signal():
        lane0(A, lambda: A.I(f'buffer_store_dword v2, off, {ws}, s{S_CA} sc1'))

    def after():
        A.I('v_add_u32 v2, 1, v2')

    T.qkv_segments(A, 2, 'sc1', after_seg=after, mid_seg=signal, first=S_NX, end=f's{S_END}')
    A.I('s_waitcnt vmcnt(0)')
    signal()
    A.label(l_nop1)
    ts_tok(A, 2)
    T.att_stage(A, P_O)
    T.att_consts(A)
    A.I(f's_load_dwordx4 s[16:19], s[0:1], {KA_W1}')
    A.I('s_waitcnt lgkmcnt(0)')
    make_srd(A, S_W1, 16, 2048 * 3584)
    make_srd(A, S_B1, 18, 3584)
    g2_setup(A)
    A.I(f's_mov_b32 s{S_PRE}, 0')
    for i in range(16):
        A.I(f'v_mov_b32 v{G1ACC + i}, 0')
    A.I(f's_mov_b32 s{S_K1}, 0')
    g1_w1_dma(A, S_K1, first=True)
    A.I(f's_lshl_b32 s{S_OPS}, s{S_G}, 1')
    masks = seg_masks()
    for g in range(7):
        A.I(f's_cmp_eq_u32 s{S_G}, {g}')
        A.I(f's_cselect_b32 s{S_MSK}, 0x{masks[g] & 0xffffffff:x}, s{S_MSK}')
        A.I(f's_cselect_b32 s{S_MSK + 1}, 0x{masks[g] >> 32:x}, s{S_MSK + 1}')
    A.I(f's_ff1_i32_b64 s{S_SEG}, s[{S_MSK}:{S_MSK + 1}]')
    A.I(f's_bitset0_b64 s[{S_MSK}:{S_MSK + 1}], s{S_SEG}')
    A.I(f's_mov_b32 s{S_AV}, 0')
    A.I(f's_lshl_b32 s{S_PB}, s{S_H}, 7')
    A.I(f's_add_u32 s{S_PB}, s{S_PB}, 0x{R.F_PROG:x}')
    R.kv_wait(A, l_exit, S_SEG, 192, s_av=S_AV, s_base=S_PB, sleep=4, vlane16=1)
    T.att_load_qkv(A, S_SEG)
    x_prefetch(A, S_SEG, sx)
    L = A.newlabel('L_p2')
    L_att = A.newlabel('L_att')
    L_fin = A.newlabel('L_p2fin')
    A.label(L)
    A.check = False
    A.I(f's_cmp_ge_u32 s{S_K1}, 16')
    A.I(f's_cbranch_scc1 {L_fin}')
    lq2 = A.newlabel('L_lp2')
    ldec = A.newlabel('L_dec')
    A.I(f's_cmp_lg_u32 s{S_WV}, 0')
    A.br(f's_cbranch_scc1 {ldec}')
    A.I(f's_lshl_b32 s{S_CA}, s{S_H}, 6')
    A.I(f's_add_u32 s{S_CA}, s{S_CA}, 0x{R.F_KMP:x}')
    A.I(f's_add_u32 s40, s{S_SEG}, 2')
    A.I(f's_lshl_b32 s{S_T1}, s{S_K1}, 4')
    A.I(f's_lshl_b32 s{S_T2}, s{S_G}, 9')
    A.I(f's_add_u32 s{S_T1}, s{S_T1}, s{S_T2}')
    A.I(f's_add_u32 s{S_T1}, s{S_T1}, 0x{F_GF + 512:x}')
    lq, lgo, lnk = A.newlabel('L_lp'), A.newlabel('L_go'), A.newlabel('L_nk')
    A.label(lq)
    A.I(f'buffer_load_dwordx4 v[192:195], off, {ws}, s{S_CA} {PLF}')
    A.I(f'buffer_load_dwordx4 v[196:199], off, {ws}, s{S_T1} {PLF}')
    A.I(f's_sub_u32 s{S_SPIN}, s{S_SPIN}, 1')
    A.I(f's_cbranch_scc1 {l_exit}')
    A.I('s_waitcnt vmcnt(0)')
    A.I('v_min_u32 v6, v192, v193')
    A.I('v_min3_u32 v6, v6, v194, v195')
    A.I(f'v_readfirstlane_b32 s{S_T0}, v6')
    A.I('v_min_u32 v7, v196, v197')
    A.I('v_min3_u32 v7, v7, v198, v199')
    A.I('v_cmp_eq_u32 vcc, 0, v7')
    A.I(f's_mov_b32 s{S_T3}, 1')
    A.I(f's_cmp_ge_u32 s{S_T0}, s40')
    A.I(f's_cbranch_scc1 {lgo}')
    A.label(lnk)
    lsl = A.newlabel('L_sl')
    A.I(f's_add_u32 s{S_T0}, s{S_T0}, 2')
    A.I(f's_cmp_ge_u32 s{S_T0}, s40')
    A.I(f's_cbranch_scc1 {lq}')
    A.I(f's_mov_b32 s{S_T3}, 2')
    A.I(f's_cbranch_vccz {lgo}')
    lns = A.newlabel('L_nsl')
    A.I(f's_mov_b32 s{S_T3}, 3')
    A.I(f's_cmp_lt_u32 s{S_SEG}, 64')
    A.I(f's_cbranch_scc1 {lns}')
    A.I(f's_cmp_lt_u32 s{S_K1}, 3')
    A.I(f's_cbranch_scc1 {lns}')
    A.I(f's_cmp_lt_u32 s{S_PRE}, 3')
    A.I(f's_cbranch_scc1 {lgo}')
    A.label(lns)
    A.I('s_sleep 4')
    A.br(f's_branch {lq}')
    A.label(lgo)
    A.I(f'v_mov_b32 v6, s{S_T3}')
    A.I(f'v_mov_b32 v7, {L_RED + 8192 - 16}')
    A.I('ds_write_b32 v7, v6')
    A.I('s_waitcnt lgkmcnt(0)')
    A.label(ldec)
    A.I('s_barrier')
    A.I(f'v_mov_b32 v7, {L_RED + 8192 - 16}')
    A.I('ds_read_b32 v6, v7')
    A.I('s_waitcnt lgkmcnt(0)')
    A.I(f'v_readfirstlane_b32 s{S_T0}, v6')
    A.I(f's_cmp_eq_u32 s{S_T0}, 1')
    A.br(f's_cbranch_scc1 {lq2}')
    lch = A.newlabel('L_ch')
    A.I(f's_cmp_eq_u32 s{S_T0}, 2')
    A.br(f's_cbranch_scc1 {lch}')
    for rnd in range(3):
        lpr = A.newlabel('L_pr')
        A.I(f's_cmp_lg_u32 s{S_PRE}, {rnd}')
        A.br(f's_cbranch_scc1 {lpr}')
        g2_pre(A, rnd)
        A.br(f's_branch {L}')
        A.label(lpr)
    A.label(lch)
    ts_tok(A, 16)
    g1_chunk(A, S_K1, l_exit)
    A.I(f's_add_u32 s{S_K1}, s{S_K1}, 1')
    if CODET:
        lct = A.newlabel('L_ct')
        A.I(f's_cmp_lg_u32 s{S_K1}, 12')
        A.br(f's_cbranch_scc1 {lct}')
        A.I(f's_lshl_b32 s{S_T0}, s{S_H}, 2')
        A.I(f's_add_u32 s{S_T0}, s{S_T0}, s{S_WV}')
        A.I(f's_cmp_lg_u32 s{S_T0}, 7')
        A.br(f's_cbranch_scc1 {L}')
        code_touch(A, L, l_exit, TAIL_BYTES, 5, 143)
        A.br(f's_branch {L}')
        A.label(lct)
    lw2 = A.newlabel('L_w2')
    A.I(f's_cmp_lg_u32 s{S_K1}, 3')
    A.br(f's_cbranch_scc1 {lw2}')
    for k in range(5):
        g2_dma(A, k)
    A.br(f's_branch {L}')
    A.label(lw2)
    A.I(f's_cmp_lg_u32 s{S_K1}, 6')
    A.br(f's_cbranch_scc1 {L}')
    A.I(f's_and_b32 s{S_T0}, s{S_J2}, 7')
    A.I(f's_cmp_lg_u32 s{S_T0}, 4')
    A.br(f's_cbranch_scc1 {L}')
    g2_touch(A, 5)
    A.br(f's_branch {L}')
    A.label(lq2)
    ts_tok(A, 10)
    T.att_load_mem(A, S_SEG, 'sc1')
    A.I('s_waitcnt vmcnt(0)')
    ts_tok(A, 11)
    A.check = True
    A.forget_loads()
    T.att_compute1(A)
    lc1, lc2 = A.newlabel('L_c2s'), A.newlabel('L_c2e')
    A.I(f's_cmp_eq_u32 s{S_FAST}, 0')
    A.br(f's_cbranch_scc1 {lc1}')
    T.att_compute2(A, S_OPS, '')
    A.br(f's_branch {lc2}')
    A.label(lc1)
    T.att_compute2(A, S_OPS, 'sc1')
    A.label(lc2)
    ts_tok(A, 12)
    A.I('s_waitcnt vmcnt(0)')
    A.I('s_barrier')
    ts_tok(A, 13)
    A.I(f's_lshl_b32 s{S_CA}, s{S_SEG}, 7')
    A.I(f's_add_u32 s{S_CA}, s{S_CA}, 0x{F_OPC:x}')
    l0 = A.newlabel('L_n0')
    A.I(f's_cmp_lg_u32 s{S_WV}, 0')
    A.br(f's_cbranch_scc1 {l0}')
    A.I(f's_lshl_b32 s{S_T1}, s{S_H}, 2')
    A.I(f's_add_u32 s{S_T1}, s{S_T1}, s{S_CA}')
    flag_store(A, S_T1, 6)
    poll_flags(A, S_CA, 32, 1, 6, 7, l_exit)
    A.label(l0)
    A.I('s_barrier')
    ts_tok(A, 14)
    red4(A, S_SEG, sx, l_exit)
    A.I(f's_ff1_i32_b64 s{S_SEG}, s[{S_MSK}:{S_MSK + 1}]')
    A.I(f's_bitset0_b64 s[{S_MSK}:{S_MSK + 1}], s{S_SEG}')
    lnn = A.newlabel('L_nn')
    A.I(f's_cmp_lt_u32 s{S_SEG}, 64')
    A.br(f's_cbranch_scc1 {lnn}')
    A.I(f's_mov_b32 s{S_SEG}, 999')
    ts_tok(A, 3)
    A.br(f's_branch {L}')
    A.label(lnn)
    lav = A.newlabel('L_av')
    A.I(f's_cmp_gt_u32 s{S_AV}, s{S_SEG}')
    A.br(f's_cbranch_scc1 {lav}')
    R.kv_wait(A, l_exit, S_SEG, 192, s_av=S_AV, s_base=S_PB, sleep=4, vlane16=1)
    A.label(lav)
    T.att_load_qkv(A, S_SEG)
    x_prefetch(A, S_SEG, sx)
    A.br(f's_branch {L}')
    A.label(L_fin)
    A.forget_loads()
    ts_tok(A, 4)
    g1_epilogue(A, l_exit)
    A.I(f's_add_u32 s{S_G}, s{S_G}, 1')
    tstamp(A, 17)
    A.label(l_g2)
    A.forget_loads()
    g2_main(A, l_exit)
    tstamp(A, 6, 8)
    if DIAG:
        A.I(f's_add_u32 s{S_T0}, s{S_G}, s{S_H}')
        A.I(f's_add_u32 s{S_T0}, s{S_T0}, s{S_WV}')
        A.I(f's_cmp_lg_u32 s{S_T0}, 0')
        A.br(f's_cbranch_scc1 {l_exit}')
        A.I('s_memrealtime s[80:81]')
        A.I('s_waitcnt lgkmcnt(0)')
        A.I('s_sub_u32 s80, s80, s58')
        A.I('v_mov_b32 v8, s60')
        A.I('v_mov_b32 v9, s61')
        A.I('v_mov_b32 v10, s80')
        A.I('v_mov_b32 v11, 0')
        if os.environ.get('DIAG2'):
            A.I(f'buffer_store_dword v9, off, {dbg}, 0 offset:32')
        else:
            A.I(f'buffer_store_dwordx4 v[8:11], off, {dbg}, 0 offset:48')
    A.label(l_exit)
    A.I('s_endpgm')


S_MSK = 56
S_OPS = 47


def seg_masks():
    c1, c2 = int(os.environ.get('C1', 14)), int(os.environ.get('C2', 27))
    m = [0] * 7
    last = {g: -100 for g in range(7)}
    for s_ in range(64):
        cand = [4, 5, 6] if s_ < c1 else ([4, 5, 6, 0, 1] if s_ < c2 else list(range(7)))
        g = min(cand, key=lambda x: last[x])
        last[g] = s_
        m[g] |= 1 << s_
    return m


def j2_calc(A):
    A.I(f's_lshr_b32 s{S_T0}, s{S_G}, 1')
    A.I(f's_lshl_b32 s{S_T0}, s{S_T0}, 3')
    A.I(f's_lshr_b32 s{S_T1}, s{S_H}, 2')
    A.I(f's_add_u32 s{S_T0}, s{S_T0}, s{S_T1}')
    A.I(f's_lshl_b32 s{S_J2}, s{S_T0}, 3')
    A.I(f's_and_b32 s{S_T0}, s{S_G}, 1')
    A.I(f's_lshl_b32 s{S_T0}, s{S_T0}, 2')
    A.I(f's_and_b32 s{S_T1}, s{S_H}, 3')
    A.I(f's_add_u32 s{S_T0}, s{S_T0}, s{S_T1}')
    A.I(f's_add_u32 s{S_J2}, s{S_J2}, s{S_T0}')


def code_touch(A, l_from, l_end, nbytes, vd, va):
    lh = A.newlabel('L_pc')
    A.I('s_getpc_b64 s[80:81]')
    A.raw(f'{lh}:')
    A.raw(f'    s_sub_u32 s80, s80, {lh}-{l_from}')
    A.raw('    s_subb_u32 s81, s81, 0')
    A.I(f'v_lshlrev_b32 v{va}, 7, v0')
    for i in range(0, nbytes, 8192):
        A.raw(f'    v_min_u32 v{va}, {l_end}-{l_from}, v{va}')
        A.raw(f'    global_load_dword v{vd}, v{va}, s[80:81]')
        A.I(f'v_add_u32 v{va}, 8192, v{va}')


def x_prefetch(A, s_seg, sx):
    A.I('v_lshrrev_b32 v6, 2, v0')
    A.I('v_lshlrev_b32 v6, 6, v6')
    A.I('v_and_b32 v7, 3, v0')
    A.I('v_lshl_add_u32 v6, v7, 3, v6')
    A.I(f's_lshl_b32 s{S_T3}, s{s_seg}, 5')
    A.I(f's_add_u32 s{S_T3}, s{S_T3}, s{S_H}')
    A.I(f's_lshl_b32 s{S_T3}, s{S_T3}, 10')
    A.I(f'buffer_load_dwordx2 v[12:13], v6, {sx}, s{S_T3} offen')
    A.I(f'buffer_load_dwordx2 v[14:15], v6, {sx}, s{S_T3} offen offset:32')


def ts_tok(A, i):
    if TIMING:
        A.I(f's_add_u32 s{S_G}, s{S_G}, 1')
        tstamp(A, i, 14 if i in (1, 2, 7, 8) else 6)
        A.I(f's_sub_u32 s{S_G}, s{S_G}, 1')


G1ACC = 120
G1T = 144
L_G1 = 0
L_RED = 65536
L_W2 = 73728


def g1_lane(A):
    t = G1T
    A.I(f'v_lshrrev_b32 v{t}, 3, v0')
    A.I(f'v_and_b32 v{t + 1}, 7, v0')
    A.I(f'v_bfe_u32 v{t + 2}, v0, 4, 1')
    A.I(f's_and_b32 s{S_T0}, s{S_WV}, 1')
    A.I(f's_lshl_b32 s{S_T0}, s{S_T0}, 1')
    A.I(f'v_or_b32 v{t + 2}, s{S_T0}, v{t + 2}')
    A.I(f'v_lshlrev_b32 v{t + 2}, 1, v{t + 2}')
    A.I(f'v_xor_b32 v{t + 1}, v{t + 1}, v{t + 2}')
    A.I(f'v_lshlrev_b32 v{t + 1}, 4, v{t + 1}')
    A.I(f'v_mul_u32_u24 v136, 3584, v{t}')
    A.I(f'v_add_u32 v136, v136, v{t + 1}')
    A.I(f'v_lshl_add_u32 v137, v{t}, 10, v{t + 1}')
    A.I(f'v_and_b32 v{t}, 15, v0')
    A.I(f'v_lshrrev_b32 v{t + 1}, 4, v0')
    A.I(f'v_lshrrev_b32 v{t + 2}, 2, v{t}')
    A.I(f'v_and_b32 v{t + 3}, 3, v{t}')
    A.I(f'v_lshl_add_u32 v{t + 4}, v{t + 1}, 3, v{t + 2}')
    A.I(f'v_lshlrev_b32 v{t + 4}, 7, v{t + 4}')
    A.I(f'v_lshl_add_u32 v{t + 4}, v{t + 3}, 3, v{t + 4}')
    A.I(f'v_lshrrev_b32 v{t + 5}, 1, v{t + 2}')
    A.I(f'v_and_b32 v{t + 6}, 1, v{t + 1}')
    A.I(f'v_lshl_add_u32 v{t + 5}, v{t + 6}, 1, v{t + 5}')
    A.I(f'v_xor_b32 v{t + 6}, s{S_T0}, v{t + 5}')
    A.I(f'v_lshl_add_u32 v138, v{t + 6}, 5, v{t + 4}')
    A.I(f'v_xor_b32 v139, 32, v138')
    A.I(f's_and_b32 s{S_T0}, s{S_WV}, 2')
    A.I(f'v_xor_b32 v{t + 6}, s{S_T0}, v{t + 5}')
    A.I(f'v_lshl_add_u32 v140, v{t + 6}, 5, v{t + 4}')
    A.I(f'v_add_u32 v140, 16384, v140')
    A.I(f'v_xor_b32 v141, 32, v140')


def g1_w1_dma(A, s_k, first=False, plus=0):
    if first:
        g1_lane(A)
    w1 = f's[{S_W1}:{S_W1 + 3}]'
    A.I(f's_add_u32 s{S_T2}, s{s_k}, {plus}')
    A.I(f's_mul_i32 s{S_T0}, s{S_T2}, {128 * 3584}')
    A.I(f's_mul_i32 s{S_T1}, s{S_WV}, {8 * 3584}')
    A.I(f's_add_u32 s{S_T0}, s{S_T0}, s{S_T1}')
    A.I(f's_lshr_b32 s{S_T1}, s{S_J}, 3')
    A.I(f's_lshl_b32 s{S_T1}, s{S_T1}, 7')
    A.I(f's_add_u32 s{S_T0}, s{S_T0}, s{S_T1}')
    A.I(f's_and_b32 s{S_T1}, s{S_T2}, 1')
    A.I(f's_lshl_b32 s{S_T1}, s{S_T1}, 15')
    A.I(f's_lshl_b32 s{S_T2}, s{S_WV}, 10')
    A.I(f's_add_u32 s{S_T1}, s{S_T1}, s{S_T2}')
    for i in range(4):
        A.I(f's_add_u32 m0, s{S_T1}, {L_G1 + i * 4096}')
        A.I(f's_add_u32 s{S_T2}, s{S_T0}, {i * 32 * 3584}')
        A.I(f'buffer_load_dwordx4 v136, {w1}, s{S_T2} offen lds')


def g1_chunk(A, s_k, l_exit):
    ws = f's[{S_WS}:{S_WS + 3}]'
    A.I(f's_lshl_b32 s{S_T0}, s{s_k}, 17')
    A.I(f's_lshl_b32 s{S_T1}, s{S_WV}, 13')
    A.I(f's_add_u32 s{S_T0}, s{S_T0}, s{S_T1}')
    A.I(f's_and_b32 s{S_T1}, s{S_J}, 7')
    A.I(f's_lshl_b32 s{S_T1}, s{S_T1}, 7')
    A.I(f's_add_u32 s{S_T0}, s{S_T0}, s{S_T1}')
    A.I(f's_add_u32 s{S_T0}, s{S_T0}, 0x{WS_HP:x}')
    A.I(f's_and_b32 s{S_T3}, s{s_k}, 1')
    A.I(f's_lshl_b32 s{S_T3}, s{S_T3}, 15')
    A.I(f's_lshl_b32 s{S_T2}, s{S_WV}, 10')
    A.I(f's_add_u32 s{S_T1}, s{S_T3}, s{S_T2}')
    for i in range(4):
        A.I(f's_add_u32 m0, s{S_T1}, {L_G1 + 16384 + i * 4096}')
        A.I(f's_add_u32 s{S_T2}, s{S_T0}, {i * 32 * 1024}')
        A.I(f'buffer_load_dwordx4 v137, {ws}, s{S_T2} offen lds')
    AD = G1T
    for j in range(4):
        A.I(f'v_add_u32 v{AD + j}, s{S_T3}, v{138 + j}')
    g1_w1_dma(A, s_k, plus=1)
    A.I('s_waitcnt vmcnt(4)')
    A.I('s_barrier')
    FR = G1T + 8

    def rd(ks):
        for j in range(4):
            for x in range(2):
                A.I(f'ds_read_b64_tr_b16 {v(FR + 16 * ks + 4 * j + 2 * x, 2)}, v{AD + j} offset:{L_G1 + (32 * ks + 4 * x) * 128}')

    rd(0)
    for ks in range(4):
        if ks < 3:
            rd(ks + 1)
            A.I('s_waitcnt lgkmcnt(8)')
        else:
            A.I('s_waitcnt lgkmcnt(0)')
        f = FR + 16 * ks
        for mbp in range(2):
            for nbp in range(2):
                d = G1ACC + (mbp * 2 + nbp) * 4
                A.I(f'v_mfma_f32_16x16x32_bf16 {v(d, 4)}, {v(f + 4 * mbp, 4)}, {v(f + 8 + 4 * nbp, 4)}, {v(d, 4)}')


def g1_epilogue(A, l_exit):
    import math
    ws, b1 = f's[{S_WS}:{S_WS + 3}]', f's[{S_B1}:{S_B1 + 3}]'
    ACC, BI, Z, Pk, TT, O = G1ACC, 150, 160, 168, 172, 188
    A.I(f's_lshr_b32 s{S_T2}, s{S_J}, 3')
    A.I(f's_lshl_b32 s{S_T0}, s{S_T2}, 7')
    A.I(f's_and_b32 s{S_T1}, s{S_WV}, 1')
    A.I(f's_lshl_b32 s{S_T1}, s{S_T1}, 6')
    A.I(f's_add_u32 s{S_T0}, s{S_T0}, s{S_T1}')
    A.I('v_lshrrev_b32 v144, 4, v0')
    A.I('v_lshlrev_b32 v144, 3, v144')
    A.I(f'buffer_load_dwordx2 v[146:147], v144, {b1}, s{S_T0} offen')
    A.I(f'buffer_load_dwordx2 v[148:149], v144, {b1}, s{S_T0} offen offset:32')
    A.I(f's_and_b32 s{S_T0}, s{S_J}, 7')
    A.I(f's_lshl_b32 s{S_T0}, s{S_T0}, 2')
    A.I(f's_and_b32 s{S_T1}, s{S_WV}, 2')
    A.I(f's_add_u32 s{S_T0}, s{S_T0}, s{S_T1}')
    A.I(f's_mul_i32 s{S_T0}, s{S_T0}, 56')
    A.I(f's_lshl_b32 s{S_T1}, s{S_T2}, 1')
    A.I(f's_add_u32 s{S_T0}, s{S_T0}, s{S_T1}')
    A.I(f's_and_b32 s{S_T1}, s{S_WV}, 1')
    A.I(f's_add_u32 s{S_T0}, s{S_T0}, s{S_T1}')
    A.I(f's_lshl_b32 s{S_T0}, s{S_T0}, 10')
    A.I(f's_add_u32 s{S_T0}, s{S_T0}, 0x{WS_U:x}')
    k1 = -2 * math.sqrt(2 / math.pi) * math.log2(math.e)
    A.I(f's_mov_b32 s{S_T2}, {f32(k1)}')
    A.I(f's_mov_b32 s{S_T3}, {f32(k1 * 0.044715)}')
    A.I('v_lshlrev_b32 v145, 4, v0')
    A.I('s_waitcnt vmcnt(0)')
    for i in range(4):
        A.I(f'v_lshlrev_b32 v{BI + 2 * i}, 16, v{146 + i}')
        A.I(f'v_and_b32 v{BI + 2 * i + 1}, 0xffff0000, v{146 + i}')
    for nbp in range(2):
        for mbp in range(2):
            for r in range(4):
                A.I(f'v_mov_b32 v{Z + 4 * mbp + r}, v{ACC + (mbp * 2 + nbp) * 4 + r}')
        T.round_bf16(A, Z, Pk)
        for i in range(8):
            A.I(f'v_add_f32 v{Z + i}, v{Z + i}, v{BI + i}')
        T.round_bf16(A, Z, Pk)
        for i in range(8):
            t = TT + i
            A.I(f'v_mul_f32 v{t}, v{Z + i}, v{Z + i}')
            A.I(f'v_mov_b32 v{t + 8}, s{S_T2}')
            A.I(f'v_fmac_f32 v{t + 8}, s{S_T3}, v{t}')
            A.I(f'v_mul_f32 v{t}, v{t + 8}, v{Z + i}')
            A.I(f'v_exp_f32 v{t}, v{t}')
        for i in range(8):
            A.I(f'v_add_f32 v{TT + i}, 1.0, v{TT + i}')
            A.I(f'v_rcp_f32 v{TT + i}, v{TT + i}')
        for i in range(8):
            A.I(f'v_mul_f32 v{Z + i}, v{Z + i}, v{TT + i}')
        o = O + 4 * nbp
        for i in range(4):
            A.I(f'v_cvt_pk_bf16_f32 v{o + i}, v{Z + 2 * i}, v{Z + 2 * i + 1}')
        A.I(f'buffer_store_dwordx4 {v(o, 4)}, v145, {ws}, s{S_T0} offen sc1')
        A.I(f's_add_u32 s{S_T0}, s{S_T0}, {56 * 1024}')
    A.I('s_waitcnt vmcnt(0)')
    A.I('s_barrier')
    l = A.newlabel('L_ue')
    A.I(f's_cmp_lg_u32 s{S_WV}, 0')
    A.br(f's_cbranch_scc1 {l}')
    A.I(f's_lshl_b32 s{S_T2}, s{S_G}, 7')
    A.I(f's_add_u32 s{S_T2}, s{S_T2}, 0x{F_LU:x}')
    A.I(f's_lshl_b32 s{S_T3}, s{S_G}, 2')
    A.I(f's_add_u32 s{S_T3}, s{S_T3}, 0x{F_GF + 256:x}')
    garrive(A, S_T2, S_T3, 144, l_exit)
    A.label(l)


def g2_slot(k):
    return L_W2 + 16384 * (k % 5)


S_PRE = 62


def g2_pre(A, rnd):
    t = G1T
    A.I(f'v_and_b32 v{t}, 15, v0')
    A.I(f'v_lshrrev_b32 v{t + 1}, 4, v0')
    A.I(f'v_lshrrev_b32 v{t + 2}, 2, v{t}')
    A.I(f'v_and_b32 v{t + 3}, 3, v{t}')
    A.I(f'v_lshl_add_u32 v{t + 2}, v{t + 1}, 2, v{t + 2}')
    A.I(f'v_bfe_u32 v{t + 1}, v{t + 2}, 1, 2')
    A.I(f'v_lshlrev_b32 v{t + 2}, 7, v{t + 2}')
    A.I(f'v_lshl_add_u32 v{t + 2}, v{t + 3}, 3, v{t + 2}')
    A.I(f'v_lshl_add_u32 v{t + 2}, v{t + 1}, 5, v{t + 2}')
    A.I(f's_lshl_b32 s{S_T0}, s{S_WV}, 12')
    A.I(f's_add_u32 s{S_T0}, s{S_T0}, {L_W2}')
    for j in range(4):
        A.I(f'v_xor_b32 v{t + 4 + j}, {32 * j}, v{t + 2}')
        A.I(f'v_add_u32 v{t + 4 + j}, s{S_T0}, v{t + 4 + j}')
        A.I(f'v_add_u32 v{t + 8 + j}, 49152, v{t + 4 + j}')
    A.I('s_waitcnt vmcnt(0)')
    A.I('s_barrier')
    ks_ = list(range(5 * rnd, min(5 * rnd + 5, 14)))
    for k in ks_:
        so = 16384 * (k % 5)
        ab = t + 4
        if so >= 49152:
            so -= 49152
            ab = t + 8
        for j in range(4):
            for x in range(2):
                A.I(f'ds_read_b64_tr_b16 {a(16 * k + 4 * j + 2 * x, 2)}, v{ab + j} offset:{so + 16 * x * 128}')
        A.I('s_waitcnt lgkmcnt(4)')
    A.I('s_waitcnt lgkmcnt(0)')
    if rnd < 2:
        A.I('s_barrier')
        for k in range(5 * rnd + 5, min(5 * rnd + 10, 14)):
            g2_dma(A, k)
    A.I(f's_mov_b32 s{S_PRE}, {rnd + 1}')


def g2_setup(A):
    A.I(f's_load_dwordx2 s[16:17], s[0:1], {KA_W2}')
    A.I('s_waitcnt lgkmcnt(0)')
    make_srd(A, S_W2, 16, 1792 * 4096)
    t = G1T
    A.I(f'v_lshrrev_b32 v{t}, 3, v0')
    A.I(f'v_and_b32 v{t + 1}, 7, v0')
    A.I(f'v_lshrrev_b32 v{t + 2}, 4, v0')
    A.I(f'v_lshlrev_b32 v{t + 2}, 1, v{t + 2}')
    A.I(f'v_xor_b32 v{t + 1}, v{t + 1}, v{t + 2}')
    A.I(f'v_lshlrev_b32 v{t + 1}, 4, v{t + 1}')
    A.I(f'v_lshl_add_u32 v142, v{t}, 12, v{t + 1}')
    A.I(f's_lshl_b32 s{S_BO2}, s{S_WV}, 15')
    A.I(f's_lshr_b32 s{S_T0}, s{S_J2}, 3')
    A.I(f's_lshl_b32 s{S_T0}, s{S_T0}, 7')
    A.I(f's_add_u32 s{S_BO2}, s{S_BO2}, s{S_T0}')
    A.I(f's_lshl_b32 s{S_LB2}, s{S_WV}, 10')


def g2_dma(A, k, vr=142):
    w2 = f's[{S_W2}:{S_W2 + 3}]'
    for i in range(4):
        A.I(f's_add_u32 m0, s{S_LB2}, {g2_slot(k) + i * 4096}')
        A.I(f's_add_u32 s{S_T0}, s{S_BO2}, {(k * 128 + i * 32) * 4096}')
        A.I(f'buffer_load_dwordx4 v{vr}, {w2}, s{S_T0} offen lds')


def g2_touch(A, k0):
    w2 = f's[{S_W2}:{S_W2 + 3}]'
    A.I('v_lshlrev_b32 v143, 12, v0')
    A.I(f's_lshr_b32 s{S_T0}, s{S_J2}, 3')
    A.I(f's_lshl_b32 s{S_T0}, s{S_T0}, 7')
    A.I(f's_lshl_b32 s{S_T1}, s{S_WV}, 18')
    A.I(f's_add_u32 s{S_T0}, s{S_T0}, s{S_T1}')
    for r0 in range(k0 * 128, 1792, 256):
        A.I(f's_add_u32 s{S_T1}, s{S_T0}, {r0 * 4096}')
        A.I(f'buffer_load_dword v5, v143, {w2}, s{S_T1} offen')


def g2_main(A, l_exit):
    ws = f's[{S_WS}:{S_WS + 3}]'
    S_O, S_B2 = S_W1, S_B1
    A.I(f's_load_dwordx4 s[16:19], s[0:1], {KA_B2}')
    for rnd in range(3):
        l = A.newlabel('L_pre')
        A.I(f's_cmp_gt_u32 s{S_PRE}, {rnd}')
        A.br(f's_cbranch_scc1 {l}')
        g2_pre(A, rnd)
        A.label(l)
        A.forget_loads()
    A.I('s_waitcnt lgkmcnt(0)')
    make_srd(A, S_B2, 16, 4096)
    make_srd(A, S_O, 18, 2048 * 1024)
    b2, out = f's[{S_B2}:{S_B2 + 3}]', f's[{S_O}:{S_O + 3}]'
    S_AO, S_EO = 36, 37
    A.I(f's_and_b32 s{S_T0}, s{S_J2}, 7')
    A.I(f's_mul_i32 s{S_AO}, s{S_T0}, {4 * 56 * 1024}')
    A.I(f's_lshl_b32 s{S_T1}, s{S_WV}, 10')
    A.I(f's_add_u32 s{S_AO}, s{S_AO}, s{S_T1}')
    A.I(f's_add_u32 s{S_AO}, s{S_AO}, 0x{WS_U:x}')
    A.I(f's_lshl_b32 s{S_T0}, s{S_T0}, 2')
    A.I(f's_add_u32 s{S_T0}, s{S_T0}, s{S_WV}')
    A.I(f's_lshr_b32 s{S_T1}, s{S_J2}, 3')
    A.I(f's_lshl_b32 s{S_EO}, s{S_T1}, 16')
    A.I(f's_lshl_b32 s{S_T0}, s{S_T0}, 5')
    A.I(f's_add_u32 s{S_EO}, s{S_EO}, s{S_T0}')
    A.I('v_lshlrev_b32 v5, 4, v0')
    A.I('v_and_b32 v1, 15, v0')
    A.I('v_lshrrev_b32 v2, 4, v0')
    A.I('v_lshlrev_b32 v3, 10, v1')
    A.I('v_lshl_add_u32 v3, v2, 3, v3')
    A.I('v_lshlrev_b32 v4, 1, v1')
    A.I(f's_lshl_b32 s{S_T1}, s{S_T1}, 7')
    HB, BB, ACC, AR = 10, 18, 24, 88
    NA = 42
    for nb in range(4):
        A.I(f'buffer_load_ushort v{BB + nb}, v4, {b2}, s{S_T1} offen offset:{32 * nb}')
    l0 = A.newlabel('L_g20')
    A.I(f's_cmp_lg_u32 s{S_WV}, 0')
    A.br(f's_cbranch_scc1 {l0}')
    A.I(f's_lshl_b32 s{S_T1}, s{S_G}, 9')
    A.I(f's_add_u32 s{S_T1}, s{S_T1}, 0x{F_GF + 256:x}')
    poll_flags(A, S_T1, 7, 1, 6, 7, l_exit, sleep=1)
    A.label(l0)
    A.I('s_waitcnt vmcnt(0)')
    A.I('s_barrier')
    tstamp(A, 5, 8)
    vmq = []

    def aload(i):
        k, db = i >> 2, i & 3
        off = db * 56 * 1024 + k * 4096
        A.I(f's_add_u32 s{S_T1}, s{S_AO}, {off}')
        A.I(f'buffer_load_dwordx4 {v(AR + 4 * (i % NA), 4)}, v5, {ws}, s{S_T1} offen')
        vmq.append(('a', i))

    def need(names):
        idx = max([i for i, p in enumerate(vmq) if p in names] + [-1])
        if idx >= 0:
            A.I(f's_waitcnt vmcnt({len(vmq) - 1 - idx})')
            del vmq[:idx + 1]

    for i in range(NA):
        aload(i)
    for nb in range(4):
        A.I(f's_add_u32 s{S_T0}, s{S_EO}, 0x{WS_H + nb * 16384:x}')
        A.I(f'buffer_load_dwordx2 {v(HB + 2 * nb, 2)}, v3, {ws}, s{S_T0} offen')
        vmq.append(('h', 0))
    for i in range(56):
        k, db = i >> 2, i & 3
        need([('a', i)])
        if i == 0 and TIMING:
            A.check = False
            tstamp(A, 19, 8)
            vmq.append(('ts', 0))
            A.check = True
        for nb in range(4):
            d = ACC + 16 * db + 4 * nb
            c = '0' if k == 0 else v(d, 4)
            A.I(f'v_mfma_f32_16x16x32_bf16 {v(d, 4)}, {v(AR + 4 * (i % NA), 4)}, {a(16 * k + 4 * nb, 4)}, {c}')
        if i + NA < 56:
            aload(i + NA)
    A.I(f's_lshl_b32 s{S_T0}, s{S_WV}, 12')
    A.I(f'v_add_u32 v6, s{S_T0}, v5')
    for db in range(4):
        for nb in range(4):
            A.I(f'ds_write_b128 v6, {v(ACC + 16 * db + 4 * nb, 4)} offset:{db * 16384 + nb * 1024}')
        A.I('s_waitcnt lgkmcnt(8)')
    A.I(f's_lshl_b32 s{S_T0}, s{S_WV}, 14')
    A.I(f'v_add_u32 v6, s{S_T0}, v5')
    A.I('s_waitcnt lgkmcnt(0)')
    A.I('s_barrier')
    for j in range(16):
        A.I(f'ds_read_b128 {v(ACC + 4 * j, 4)}, v6 offset:{1024 * j}')
        if j == 11:
            A.I('s_waitcnt lgkmcnt(8)')
    A.I('s_waitcnt lgkmcnt(0) vmcnt(0)')
    tstamp(A, 18, 8)
    for r in range(0, 16, 2):
        A.I(f'v_pk_add_f32 {v(ACC + r, 2)}, {v(ACC + r, 2)}, {v(ACC + 16 + r, 2)}')
        A.I(f'v_pk_add_f32 {v(ACC + 32 + r, 2)}, {v(ACC + 32 + r, 2)}, {v(ACC + 48 + r, 2)}')
    for r in range(0, 16, 2):
        A.I(f'v_pk_add_f32 {v(ACC + r, 2)}, {v(ACC + r, 2)}, {v(ACC + 32 + r, 2)}')
    for nb in range(4):
        d = ACC + 4 * nb
        t = 88
        A.I(f'v_cvt_pk_bf16_f32 v{t}, v{d}, v{d + 1}')
        A.I(f'v_cvt_pk_bf16_f32 v{t + 1}, v{d + 2}, v{d + 3}')
        A.I(f'v_lshlrev_b32 v{t + 2}, 16, v{BB + nb}')
        for i in range(2):
            A.I(f'v_lshlrev_b32 v{d + 2 * i}, 16, v{t + i}')
            A.I(f'v_and_b32 v{d + 2 * i + 1}, 0xffff0000, v{t + i}')
        for r in range(4):
            A.I(f'v_add_f32 v{d + r}, v{d + r}, v{t + 2}')
        A.I(f'v_cvt_pk_bf16_f32 v{t}, v{d}, v{d + 1}')
        A.I(f'v_cvt_pk_bf16_f32 v{t + 1}, v{d + 2}, v{d + 3}')
        for i in range(2):
            A.I(f'v_lshlrev_b32 v{d + 2 * i}, 16, v{t + i}')
            A.I(f'v_and_b32 v{d + 2 * i + 1}, 0xffff0000, v{t + i}')
            A.I(f'v_lshlrev_b32 v{t + 2}, 16, v{HB + 2 * nb + i}')
            A.I(f'v_and_b32 v{t + 3}, 0xffff0000, v{HB + 2 * nb + i}')
            A.I(f'v_add_f32 v{d + 2 * i}, v{d + 2 * i}, v{t + 2}')
            A.I(f'v_add_f32 v{d + 2 * i + 1}, v{d + 2 * i + 1}, v{t + 3}')
        o = 92 + 2 * nb
        A.I(f'v_cvt_pk_bf16_f32 v{o}, v{d}, v{d + 1}')
        A.I(f'v_cvt_pk_bf16_f32 v{o + 1}, v{d + 2}, v{d + 3}')
        A.I(f's_add_u32 s{S_T0}, s{S_EO}, {nb * 16384}')
        A.I(f'buffer_store_dwordx2 {v(o, 2)}, v3, {out}, s{S_T0} offen')


def red4(A, s_seg, srd_x, l_exit):
    ws = f's[{S_WS}:{S_WS + 3}]'
    B, Z, Pk, XR, t0, t1, va = 192, 144, 152, 12, 160, 161, 162
    A.I(f's_lshl_b32 s{S_T2}, s{s_seg}, 5')
    A.I(f's_add_u32 s{S_T2}, s{S_T2}, s{S_H}')
    A.I(f's_lshl_b32 s{S_T0}, s{S_OPS}, 5')
    A.I(f's_add_u32 s{S_T0}, s{S_T0}, s{S_H}')
    A.I(f's_lshl_b32 s{S_T0}, s{S_T0}, 15')
    A.I(f's_xor_b32 s{S_OPS}, s{S_OPS}, 1')
    A.I(f's_lshl_b32 s{S_T1}, s{S_WV}, 13')
    A.I(f's_add_u32 s{S_T0}, s{S_T0}, s{S_T1}')
    A.I(f's_add_u32 s{S_T0}, s{S_T0}, 0x{WS_OP:x}')
    A.I(f's_add_u32 s{S_T1}, s{S_T0}, 4096')
    for hh in range(8):
        so = S_T0 if hh < 4 else S_T1
        A.I(f'buffer_load_dwordx4 {v(B + 4 * hh, 4)}, v1, {ws}, s{so} offen offset:{1024 * (hh & 3)} sc1')
    A.I(f's_lshl_b32 s{S_T3}, s{S_T2}, 10')
    A.I(f'v_lshrrev_b32 v{va}, 2, v0')
    A.I(f'v_lshlrev_b32 v{va}, 6, v{va}')
    A.I(f'v_and_b32 v{t0}, 3, v0')
    A.I(f'v_lshl_add_u32 v{va}, v{t0}, 3, v{va}')
    for hh in range(8):
        A.I(f's_waitcnt vmcnt({7 - hh})')
        for i in range(4):
            r = B + 4 * hh + i
            if hh == 0:
                A.I(f'v_lshlrev_b32 v{Z + 2 * i}, 16, v{r}')
                A.I(f'v_and_b32 v{Z + 2 * i + 1}, 0xffff0000, v{r}')
            else:
                A.I(f'v_lshlrev_b32 v{t0}, 16, v{r}')
                A.I(f'v_and_b32 v{t1}, 0xffff0000, v{r}')
                A.I(f'v_add_f32 v{Z + 2 * i}, v{Z + 2 * i}, v{t0}')
                A.I(f'v_add_f32 v{Z + 2 * i + 1}, v{Z + 2 * i + 1}, v{t1}')
    A.I(f's_lshl_b32 s{S_T0}, s{S_WV}, 11')
    A.I(f'v_add_u32 v{t0}, s{S_T0}, v1')
    A.I(f'v_add_u32 v{t0}, {L_RED}, v{t0}')
    A.I(f'ds_write_b128 v{t0}, {v(Z, 4)}')
    A.I(f'ds_write_b128 v{t0}, {v(Z + 4, 4)} offset:1024')
    A.I('s_waitcnt lgkmcnt(0) vmcnt(0)')
    A.I('s_barrier')
    ts_tok(A, 15)
    l = A.newlabel('L_r4')
    A.I(f's_cmp_lg_u32 s{S_WV}, 0')
    A.br(f's_cbranch_scc1 {l}')
    for w_ in range(1, 4):
        for j in range(2):
            A.I(f'ds_read_b128 {v(B + 8 * w_ + 4 * j, 4)}, v{t0} offset:{2048 * w_ + 1024 * j}')
    A.I('s_waitcnt lgkmcnt(0)')
    for w_ in range(1, 4):
        for i in range(8):
            A.I(f'v_add_f32 v{Z + i}, v{Z + i}, v{B + 8 * w_ + i}')
    T.round_bf16(A, Z, Pk)
    for i in range(4):
        A.I(f'v_lshlrev_b32 v{t0}, 16, v{XR + i}')
        A.I(f'v_and_b32 v{t1}, 0xffff0000, v{XR + i}')
        A.I(f'v_add_f32 v{Z + 2 * i}, v{Z + 2 * i}, v{t0}')
        A.I(f'v_add_f32 v{Z + 2 * i + 1}, v{Z + 2 * i + 1}, v{t1}')
    T.round_bf16(A, Z, Pk)
    A.I(f's_add_u32 s{S_T0}, s{S_T3}, 0x{WS_H:x}')
    A.I(f'buffer_store_dwordx2 {v(Pk, 2)}, v{va}, {ws}, s{S_T0} offen sc1')
    A.I(f'buffer_store_dwordx2 {v(Pk + 2, 2)}, v{va}, {ws}, s{S_T0} offen offset:32 sc1')
    T.ln_regs(A, Z, t0, t1)
    T.round_bf16(A, Z, XR)
    T.ln_regs(A, Z, t0, t1)
    for i in range(4):
        A.I(f'v_cvt_pk_bf16_f32 v{XR + i}, v{Z + 2 * i}, v{Z + 2 * i + 1}')
    A.I(f's_add_u32 s{S_T0}, s{S_T3}, 0x{WS_HP:x}')
    A.I(f'buffer_store_dwordx2 {v(XR, 2)}, v{va}, {ws}, s{S_T0} offen sc1')
    A.I(f'buffer_store_dwordx2 {v(XR + 2, 2)}, v{va}, {ws}, s{S_T0} offen offset:32 sc1')
    A.I(f's_lshl_b32 s{S_T2}, s{s_seg}, 7')
    A.I(f's_add_u32 s{S_T2}, s{S_T2}, 0x{F_LH:x}')
    A.I(f's_lshl_b32 s{S_T3}, s{s_seg}, 2')
    A.I(f's_add_u32 s{S_T3}, s{S_T3}, 0x{F_GF:x}')
    A.I('s_waitcnt vmcnt(0)')
    garrive(A, S_T2, S_T3, t0, l_exit)
    A.label(l)


if __name__ == '__main__':
    A = Asm()
    nm = NAME + '_kernel'
    mega_kernel(A, nm)
    hd = header([(nm, 256, 256, R.L_TOTAL)])
    if os.environ.get('FINAL'):
        hd = hd.replace(f'@launch kernel={nm} ', '@launch ')
    txt = hd + A.text() + '.section .rodata,"a"\n' + kernel_desc(nm, 512, 256)
    out = os.environ.get('OUT', 'm3.s')
    open(out, 'w').write(txt)
    print(len(txt))
```

```python
import os
os.environ.setdefault('PB_DELAY', '7'); os.environ.setdefault('AF_DELAY', '2'); os.environ.setdefault('AF_GAP', '2')
from common import *
import tok as T
import rec9 as R
from tok import f32, S_WS, S_W, S_X, S_H, S_WV, S_G, S_T0, S_T1, S_T2, S_T3

S_DBG = 84
S_SPIN = R.S_SPIN
S_XCC = 83
S_LNO = 82
F_OPC = WS_FLAG + 0x4000
F_LH = WS_FLAG + 0x6000
F_LU = WS_FLAG + 0x8000
F_GF = WS_FLAG + 0x8400
S_FAST = S_XCC
D_GB, D_OVF, D_WEIRD, D_TS, D_TI = 128, 36, 40, 192, 196
S_J, S_BO2, S_LB2 = 100, 101, 3
S_J2 = 63
S_W1, S_B1, S_W2 = 88, 92, 96
NEARLY = int(os.environ.get('NEARLY', 2))
STAG = int(os.environ.get('STAG', 4))
STAG0 = int(os.environ.get('STAG0', 1))
TIMING = bool(os.environ.get('TIMING'))
OPRING = int(os.environ.get('OPRING', 0))
WARM = int(os.environ.get('WARM', 0))
DIAG = bool(os.environ.get('DIAG'))
TAIL_BYTES = int(os.environ.get('TAIL_BYTES', 24576))
CODET = int(os.environ.get('CODET', 0))
CODE_BYTES = int(os.environ.get('CODE_BYTES', 57344))
PLF = os.environ.get('PLF', 'sc1').replace('_', ' ')


def lane0(A, body):
    A.I('s_mov_b64 exec, 1')
    body()
    A.I('s_mov_b64 exec, -1')


def poll_eq(A, srd, s_off, imm, expect, vt, l_exit, sleep=0):
    l = A.newlabel('L_poll')
    A.label(l)
    so = f's{s_off}' if s_off is not None else '0'
    A.I(f'buffer_load_dword v{vt}, off, {srd}, {so} offset:{imm} sc1')
    A.I(f's_sub_u32 s{S_SPIN}, s{S_SPIN}, 1')
    A.I(f's_cbranch_scc1 {l_exit}')
    A.I('s_waitcnt vmcnt(0)')
    A.I(f'v_readfirstlane_b32 s{S_T0}, v{vt}')
    ld = A.newlabel('L_pd')
    A.I(f's_cmp_eq_u32 s{S_T0}, {expect}')
    A.I(f's_cbranch_scc1 {ld}')
    if sleep:
        A.I(f's_sleep {sleep}')
    A.br(f's_branch {l}')
    A.label(ld)


def poll_flags(A, s_off, nlanes, width, vt, va, l_exit, sleep=0):
    ws = f's[{S_WS}:{S_WS + 3}]'
    l, ld = A.newlabel('L_pf'), A.newlabel('L_pfd')
    A.I(f'v_lshlrev_b32 v{va}, {2 if width == 1 else 3}, v0')
    assert nlanes <= 32
    A.I(f's_mov_b32 exec_lo, 0x{(1 << nlanes) - 1:x}')
    A.I('s_mov_b32 exec_hi, 0')
    A.label(l)
    if width == 1:
        A.I(f'buffer_load_dword v{vt}, v{va}, {ws}, s{s_off} offen {PLF}')
    else:
        A.I(f'buffer_load_dwordx2 {v(vt, 2)}, v{va}, {ws}, s{s_off} offen {PLF}')
    A.I(f's_sub_u32 s{S_SPIN}, s{S_SPIN}, 1')
    A.I(f's_cbranch_scc1 {l_exit}')
    A.I('s_waitcnt vmcnt(0)')
    if width == 2:
        A.I(f'v_min_u32 v{vt}, v{vt}, v{vt + 1}')
    A.I(f'v_cmp_eq_u32 vcc, 0, v{vt}')
    A.I(f's_cbranch_vccz {ld}')
    if sleep:
        A.I(f's_sleep {sleep}')
    A.br(f's_branch {l}')
    A.label(ld)
    A.I('s_mov_b64 exec, -1')


def flag_store(A, s_addr, vt):
    ws = f's[{S_WS}:{S_WS + 3}]'
    l1, l2 = A.newlabel('L_fs'), A.newlabel('L_fs')
    A.I(f'v_mov_b32 v{vt}, 1')
    A.I('s_mov_b64 exec, 1')
    A.I(f's_cmp_eq_u32 s{S_FAST}, 0')
    A.br(f's_cbranch_scc1 {l1}')
    A.I(f'buffer_store_dword v{vt}, off, {ws}, s{s_addr}')
    A.br(f's_branch {l2}')
    A.label(l1)
    A.I(f'buffer_store_dword v{vt}, off, {ws}, s{s_addr} sc1')
    A.label(l2)
    A.I('s_mov_b64 exec, -1')


def garrive(A, s_line, s_goff, vt, l_exit):
    ws = f's[{S_WS}:{S_WS + 3}]'
    A.I(f's_lshl_b32 s{S_T1}, s{S_H}, 2')
    A.I(f's_add_u32 s{S_T1}, s{S_T1}, s{s_line}')
    flag_store(A, S_T1, vt)
    l = A.newlabel('L_ga')
    A.I(f's_cmp_lg_u32 s{S_H}, 0')
    A.br(f's_cbranch_scc1 {l}')
    poll_flags(A, s_line, 32, 1, vt, vt + 1, l_exit)
    A.I(f'v_lshlrev_b32 v{vt + 1}, 9, v0')
    A.I(f'v_mov_b32 v{vt}, 1')
    A.I('s_mov_b64 exec, 0xff')
    A.I(f'buffer_store_dword v{vt}, v{vt + 1}, {ws}, s{s_goff} offen sc1')
    A.I('s_mov_b64 exec, -1')
    A.label(l)


def wg_poll_eq(A, srd, s_off, imm, expect, vt, l_exit, sleep=0):
    l0 = A.newlabel('L_wgp')
    A.I(f's_cmp_lg_u32 s{S_WV}, 0')
    A.br(f's_cbranch_scc1 {l0}')
    poll_eq(A, srd, s_off, imm, expect, vt, l_exit, sleep)
    A.label(l0)
    A.I('s_barrier')


def tstamp(A, idx, r=14):
    if not TIMING:
        return
    l = A.newlabel('L_ts')
    A.I(f's_cmp_lg_u32 s{S_WV}, 0')
    A.br(f's_cbranch_scc1 {l}')
    A.I('s_memrealtime s[80:81]')
    A.I('s_waitcnt lgkmcnt(0)')
    A.I(f'v_mov_b32 v{r}, s80')
    A.I(f'v_mov_b32 v{r + 1}, s81')
    A.I(f's_lshl_b32 s80, s{S_G}, 5')
    A.I(f's_add_u32 s80, s80, s{S_H}')
    A.I('s_lshl_b32 s80, s80, 8')
    A.I(f's_add_u32 s80, s80, 0x{WS_DBG:x}')
    A.I(f'buffer_store_dwordx2 {v(r, 2)}, off, s[{S_WS}:{S_WS + 3}], s80 offset:{8 * idx}')
    A.label(l)


def mega_kernel(A, name):
    kernel_begin(A, name)
    l_exit = A.newlabel('L_exit')
    P_WS, P_DBG, P_Q, P_K, P_V, P_O, P_M0, P_X = 16, 18, 20, 22, 24, 26, 28, 30
    ws, dbg, sx = f's[{S_WS}:{S_WS + 3}]', f's[{S_DBG}:{S_DBG + 3}]', f's[{S_X}:{S_X + 3}]'
    A.I('s_cmp_ge_u32 s2, 256')
    A.I(f's_cbranch_scc1 {l_exit}')
    if DIAG:
        A.I('s_memrealtime s[58:59]')
    A.I(f's_load_dwordx2 s[{P_WS}:{P_WS + 1}], s[0:1], {KA_WS}')
    A.I(f's_load_dwordx2 s[{P_DBG}:{P_DBG + 1}], s[0:1], {KA_DBG}')
    A.I(f's_load_dwordx4 s[{P_Q}:{P_Q + 3}], s[0:1], {KA_WQ}')
    A.I(f's_load_dwordx4 s[{P_V}:{P_V + 3}], s[0:1], {KA_WV}')
    A.I(f's_load_dwordx2 s[{P_M0}:{P_M0 + 1}], s[0:1], {KA_MEM0}')
    A.I(f's_load_dwordx2 s[{P_X}:{P_X + 1}], s[0:1], {KA_X}')
    A.I('v_lshrrev_b32 v1, 6, v0')
    A.I('v_and_b32 v0, 63, v0')
    A.I(f'v_readfirstlane_b32 s{S_WV}, v1')
    A.I(f's_getreg_b32 s{S_XCC}, hwreg(HW_REG_XCC_ID)')
    A.I(f's_mov_b32 s{S_SPIN}, 0x80000')
    A.I('s_waitcnt lgkmcnt(0)')
    make_srd(A, S_WS, P_WS, WS_SIZE)
    make_srd(A, S_DBG, P_DBG, 256)
    make_srd(A, S_X, P_X, 2048 * 1024)
    LX, LF = 32, 48
    lnl = A.newlabel('L_l0')
    A.I('v_and_b32 v24, 15, v0')
    A.I('v_lshrrev_b32 v25, 4, v0')
    A.I('s_cmp_ge_u32 s2, 128')
    A.br(f's_cbranch_scc1 {lnl}')
    A.I('v_lshlrev_b32 v26, 10, v24')
    A.I('v_lshl_add_u32 v26, v25, 4, v26')
    A.I(f's_lshl_b32 s{S_LNO}, s2, 14')
    A.I(f's_lshl_b32 s{S_T0}, s{S_WV}, 8')
    A.I(f's_add_u32 s{S_T0}, s{S_T0}, s{S_LNO}')
    for i in range(4):
        A.I(f'buffer_load_dwordx4 {v(LX + 4 * i, 4)}, v26, {sx}, s{S_T0} offen offset:{64 * i}')
    A.label(lnl)
    A.forget_loads()
    if CODET:
        lct = A.newlabel('L_ct')
        A.I(f's_cmp_lg_u32 s{S_WV}, 3')
        A.br(f's_cbranch_scc1 {lct}')
        A.I('s_cmp_ge_u32 s2, 16')
        A.br(f's_cbranch_scc1 {lct}')
        code_touch(A, name, l_exit, CODE_BYTES, 255, 3)
        A.label(lct)
    lr = A.newlabel('L_role_done')
    A.I(f's_cmp_lg_u32 s{S_WV}, 0')
    A.br(f's_cbranch_scc1 {lr}')
    A.I('s_mov_b64 exec, 1')
    A.I('v_mov_b32 v2, 1')
    lw = A.newlabel('L_nw')
    A.I(f's_cmp_lt_u32 s{S_XCC}, 8')
    A.br(f's_cbranch_scc1 {lw}')
    A.I(f'buffer_atomic_or v2, off, {dbg}, 0 offset:{D_WEIRD}')
    A.I('s_waitcnt vmcnt(0)')
    A.label(lw)
    A.I(f's_and_b32 s{S_G}, s{S_XCC}, 7')
    A.I(f's_lshl_b32 s{S_T0}, s{S_G}, 2')
    A.I(f'buffer_atomic_add v2, off, {dbg}, s{S_T0} sc0')
    A.I('s_waitcnt vmcnt(0)')
    A.I(f'v_readfirstlane_b32 s{S_H}, v2')
    lok = A.newlabel('L_rok')
    A.I(f's_cmp_lt_u32 s{S_H}, 32')
    A.br(f's_cbranch_scc1 {lok}')
    A.I('v_mov_b32 v2, 1')
    A.I(f'buffer_atomic_add v2, off, {dbg}, 0 offset:{D_OVF} sc0')
    A.I('s_waitcnt vmcnt(0)')
    A.I(f'v_readfirstlane_b32 s{S_T3}, v2')
    lo = A.newlabel('L_ovf')
    A.label(lo)
    A.I(f'buffer_load_dwordx4 v[4:7], off, {dbg}, 0 sc1')
    A.I(f'buffer_load_dwordx4 v[8:11], off, {dbg}, 0 offset:16 sc1')
    A.I(f's_sub_u32 s{S_SPIN}, s{S_SPIN}, 1')
    A.I(f's_cbranch_scc1 {l_exit}')
    A.I('s_waitcnt vmcnt(0)')
    A.I(f's_mov_b32 s{S_T0}, 0')
    for i in range(8):
        A.I(f'v_readfirstlane_b32 s{64 + i}, v{4 + i}')
    for i in range(8):
        A.I(f's_add_u32 s{S_T0}, s{S_T0}, s{64 + i}')
    A.I(f's_cmp_lt_u32 s{S_T0}, 256')
    A.br(f's_cbranch_scc1 {lo}')
    for g in range(8):
        A.I(f's_min_u32 s{S_T0}, s{64 + g}, 32')
        A.I(f's_sub_u32 s{S_T1}, 32, s{S_T0}')
        A.I(f's_mov_b32 s{S_G}, {g}')
        A.I(f's_add_u32 s{S_H}, s{S_T0}, s{S_T3}')
        A.I(f's_cmp_lt_u32 s{S_T3}, s{S_T1}')
        A.br(f's_cbranch_scc1 {lok}')
        A.I(f's_sub_u32 s{S_T3}, s{S_T3}, s{S_T1}')
    A.label(lok)
    A.I(f's_lshl_b32 s{S_T0}, s{S_G}, 8')
    A.I(f's_or_b32 s{S_T0}, s{S_T0}, s{S_H}')
    A.I(f'v_mov_b32 v2, s{S_T0}')
    A.I('v_mov_b32 v3, 0')
    A.I('ds_write_b32 v3, v2')
    A.I('s_waitcnt lgkmcnt(0)')
    A.I('s_mov_b64 exec, -1')
    A.label(lr)
    lno, lnd = A.newlabel('L_lno'), A.newlabel('L_lnd')
    A.I('s_cmp_ge_u32 s2, 128')
    A.br(f's_cbranch_scc1 {lno}')
    A.I(f's_lshl_b32 s{S_T0}, s{S_WV}, 2')
    A.I('v_lshlrev_b32 v27, 4, v24')
    A.I(f'v_add_u32 v26, s{S_T0}, v27')
    A.I('s_waitcnt vmcnt(0)')
    for i in range(16):
        A.I(f'v_lshlrev_b32 v{LF + 2 * i}, 16, v{LX + i}')
        A.I(f'v_and_b32 v{LF + 2 * i + 1}, 0xffff0000, v{LX + i}')
    A.I(f'v_add_f32 v28, v{LF}, v{LF + 1}')
    A.I(f'v_add_f32 v29, v{LF + 2}, v{LF + 3}')
    for i in range(4, 32, 2):
        A.I(f'v_add_f32 v28, v28, v{LF + i}')
        A.I(f'v_add_f32 v29, v29, v{LF + i + 1}')
    A.I('v_add_f32 v28, v28, v29')
    T.xreduce(A, 'v_add_f32', 28, 29)
    A.I('ds_write_b32 v26, v28 offset:64')
    A.I('s_waitcnt lgkmcnt(0)')
    A.I('s_barrier')
    A.I('v_mov_b32 v3, 0')
    A.I('ds_read_b32 v2, v3')
    A.I('ds_read_b128 v[28:31], v27 offset:64')
    A.I('s_waitcnt lgkmcnt(0)')
    A.I('v_add_f32 v28, v28, v29')
    A.I('v_add_f32 v30, v30, v31')
    A.I('v_add_f32 v28, v28, v30')
    A.I(f'v_mul_f32 v28, {f32(1 / 512)}, v28')
    A.I('v_mov_b32 v29, 0')
    A.I('v_mov_b32 v30, 0')
    for i in range(0, 32, 2):
        A.I(f'v_sub_f32 v{LF + i}, v{LF + i}, v28')
        A.I(f'v_sub_f32 v{LF + i + 1}, v{LF + i + 1}, v28')
        A.I(f'v_fmac_f32 v29, v{LF + i}, v{LF + i}')
        A.I(f'v_fmac_f32 v30, v{LF + i + 1}, v{LF + i + 1}')
    A.I('v_add_f32 v29, v29, v30')
    T.xreduce(A, 'v_add_f32', 29, 30)
    A.I('ds_write_b32 v26, v29 offset:320')
    A.I('s_waitcnt lgkmcnt(0)')
    A.I('s_barrier')
    A.I('ds_read_b128 v[28:31], v27 offset:320')
    A.I('s_waitcnt lgkmcnt(0)')
    A.I('v_add_f32 v28, v28, v29')
    A.I('v_add_f32 v30, v30, v31')
    A.I('v_add_f32 v28, v28, v30')
    A.I(f'v_mov_b32 v29, {f32(1e-5)}')
    A.I(f'v_fmac_f32 v29, {f32(1 / 512)}, v28')
    A.I('v_rsq_f32 v29, v29')
    A.I('v_lshlrev_b32 v26, 4, v0')
    A.I(f's_lshl_b32 s{S_T0}, s{S_WV}, 12')
    A.I(f's_add_u32 s{S_T0}, s{S_T0}, s{S_LNO}')
    A.I(f's_add_u32 s{S_T0}, s{S_T0}, 0x{WS_XN:x}')
    for i in range(4):
        for j in range(4):
            f = LF + 8 * i + 2 * j
            A.I(f'v_mul_f32 v{f}, v{f}, v29')
            A.I(f'v_mul_f32 v{f + 1}, v{f + 1}, v29')
            A.I(f'v_cvt_pk_bf16_f32 v{LX + 4 * i + j}, v{f}, v{f + 1}')
        A.I(f'buffer_store_dwordx4 {v(LX + 4 * i, 4)}, v26, {ws}, s{S_T0} offen offset:{1024 * i} sc1')
    A.br(f's_branch {lnd}')
    A.label(lno)
    A.I('s_barrier')
    A.I('v_mov_b32 v3, 0')
    A.I('ds_read_b32 v2, v3')
    A.I('s_waitcnt lgkmcnt(0)')
    A.label(lnd)
    A.forget_loads()
    A.I(f'v_readfirstlane_b32 s{S_T0}, v2')
    A.I(f's_and_b32 s{S_H}, s{S_T0}, 31')
    A.I(f's_bfe_u32 s{S_G}, s{S_T0}, 0x30008')
    A.I('s_barrier')
    tstamp(A, 0)

    def arrive(off=D_GB):
        l = A.newlabel('L_na')
        A.I(f's_cmp_lg_u32 s{S_WV}, 0')
        A.br(f's_cbranch_scc1 {l}')
        A.I('v_mov_b32 v23, 1')
        lane0(A, lambda: A.I(f'buffer_atomic_add v23, off, {dbg}, 0 offset:{off}'))
        A.label(l)

    def ln_and_arrive(ln=True):
        A.I('s_waitcnt vmcnt(0)')
        A.I('s_barrier')
        arrive()

    l_tok = A.newlabel('L_tok')
    l_g2 = A.newlabel('L_g2')
    A.I(f's_cmp_lg_u32 s{S_G}, 0')
    A.br(f's_cbranch_scc1 {l_tok}')

    A.I(f'v_mov_b32 v{R.LANE}, v0')
    R.setup_consts(A)

    A.I(f's_lshl_b32 s{S_T0}, s{S_H}, 6')
    A.I(f's_lshl_b32 s{S_T1}, s{S_WV}, 2')
    A.I(f's_add_u32 s{S_T0}, s{S_T0}, s{S_T1}')
    A.I(f's_add_u32 s{S_LNO}, s{S_T0}, 0x{R.F_KMP:x}')
    A.I('v_mov_b32 v24, 0')
    lane0(A, lambda: A.I(f'buffer_store_dword v24, off, {ws}, s{S_LNO} sc1'))
    R.init_exchange(A, P_M0, 'sc1', rb=24, part=0)

    def thook():
        A.check = False
        R.init_exchange(A, P_M0, 'sc1', rb=24, part=1)
        A.check = True
        A.forget_loads()

    def h_sc(sc):
        if sc == 0:
            arrive()
            tstamp(A, 8, 24)
        if sc == 1:
            arrive(D_TI)

    S_OK = 25

    def batch():
        A.I(f'buffer_load_dword v25, off, {dbg}, 0 sc1')
        A.I(f'buffer_load_dword v26, off, {dbg}, 0 offset:{D_WEIRD} sc1')
        A.I(f'buffer_load_dword v27, off, {dbg}, 0 offset:{D_TI} sc1')
        R.kv_load(A, 28, R.V_L16, R.S_RA)

    def h_issue(sc):
        if sc == 3:
            A.I(f'buffer_load_dword v24, off, {dbg}, 0 offset:{D_GB} sc1')
            return
        A.I(f's_lshl_b32 s{R.S_RA}, s{S_H}, 7')
        A.I(f's_add_u32 s{R.S_RA}, s{R.S_RA}, 0x{R.F_PROG:x}')
        A.I(f's_lshl_b32 s{R.S_KVN}, s{S_H}, 13')
        A.I(f's_add_u32 s{R.S_KVN}, s{R.S_KVN}, s{R.S_W11}')
        A.I(f's_add_u32 s{R.S_KVN}, s{R.S_KVN}, 0x{WS_KF:x}')
        A.I(f's_add_u32 s{R.S_KVM0}, s{R.S_W11}, {R.L_KV}')
        batch()

    def evaluate(l_fail):
        R.kv_eval(A, 28, R.V_L16, R.S_AV)
        A.I(f'v_readfirstlane_b32 s{S_T0}, v24')
        A.I(f'v_readfirstlane_b32 s{S_T2}, v25')
        A.I(f'v_readfirstlane_b32 s{S_T3}, v26')
        A.I(f's_cmp_lg_u32 s{S_T0}, 256')
        A.I(f's_cbranch_scc1 {l_fail}')
        A.I(f'v_readfirstlane_b32 s{S_T0}, v27')
        A.I(f's_cmp_lg_u32 s{S_T0}, 32')
        A.I(f's_cbranch_scc1 {l_fail}')
        A.I(f's_cmp_eq_u32 s{R.S_AV}, 0')
        A.I(f's_cbranch_scc1 {l_fail}')
        A.I(f's_cmp_ge_u32 s{S_T2}, 32')
        A.I(f's_cselect_b32 s{S_XCC}, 1, 0')
        A.I(f's_cmp_eq_u32 s{S_T3}, 0')
        A.I(f's_cselect_b32 s{S_XCC}, s{S_XCC}, 0')
        R.kv_dma(A)

    def h_check():
        lf = A.newlabel('L_hf')
        A.I(f's_mov_b32 s{S_OK}, 0')
        evaluate(lf)
        A.I(f's_mov_b32 s{S_OK}, 1')
        A.label(lf)

    R.stage_weights(A, [P_Q, P_K, P_V, P_O], hook=thook, hook_issue=h_issue, hook_check=h_check, hook_sc=h_sc)
    tstamp(A, 1)
    A.I(f's_mov_b32 s{R.S_KP}, s{S_LNO}')
    lgo_, lre = A.newlabel('L_tgo'), A.newlabel('L_tre')
    A.I(f's_cmp_eq_u32 s{S_OK}, 1')
    A.br(f's_cbranch_scc1 {lgo_}')
    A.label(lre)
    A.I('s_sleep 4')
    A.I(f'buffer_load_dword v24, off, {dbg}, 0 offset:{D_GB} sc1')
    A.I('s_waitcnt vmcnt(0)')
    batch()
    A.I(f's_sub_u32 s{S_SPIN}, s{S_SPIN}, 1')
    A.I(f's_cbranch_scc1 {l_exit}')
    A.I('s_waitcnt vmcnt(0)')
    evaluate(lre)
    A.label(lgo_)
    A.I('s_waitcnt vmcnt(0)')
    A.I('s_barrier')
    tstamp(A, 2)
    if DIAG:
        A.I('s_memrealtime s[80:81]')
        A.I('s_waitcnt lgkmcnt(0)')
        A.I('s_sub_u32 s60, s80, s58')
    l_slow = A.newlabel('L_slowmode')
    l_tdone = A.newlabel('L_tdone')
    A.I(f's_cmp_eq_u32 s{S_XCC}, 0')
    if os.environ.get('FORCE_SLOW'):
        A.br(f's_branch {l_slow}')
    else:
        A.br(f's_cbranch_scc1 {l_slow}')
    R.main_loop(A, '', l_tdone, kvcheck=True)
    A.label(l_slow)
    R.main_loop(A, 'sc1', l_tdone, kvcheck=True)
    A.label(l_tdone)
    A.forget_loads()
    A.I(f's_mov_b32 s{S_G}, 0')
    tstamp(A, 3)
    if DIAG:
        A.I('s_memrealtime s[80:81]')
        A.I('s_waitcnt lgkmcnt(0)')
        A.I('s_sub_u32 s61, s80, s58')
    A.I(f'v_lshrrev_b32 v0, 4, v{R.V_L16}')
    j2_calc(A)
    A.I('s_waitcnt vmcnt(0) lgkmcnt(0)')
    A.I('s_barrier')
    g2_setup(A)
    for k in range(5):
        g2_dma(A, k)
    A.I(f's_mov_b32 s{S_PRE}, 0')
    A.br(f's_branch {l_g2}')

    A.label(l_tok)
    A.forget_loads()
    S_SEG, S_NX, S_CA, S_END, S_K1, S_AV, S_PB = 36, 41, 42, 43, 44, 45, 46
    j2_calc(A)
    A.I(f's_sub_u32 s{S_G}, s{S_G}, 1')
    A.I(f's_lshl_b32 s{S_J}, s{S_G}, 5')
    A.I(f's_add_u32 s{S_J}, s{S_J}, s{S_H}')

    def tok_init(ln=True):
        A.I(f's_lshl_b32 s{S_CA}, s{S_H}, 7')
        A.I(f's_lshl_b32 s{S_T0}, s{S_G}, 4')
        A.I(f's_add_u32 s{S_CA}, s{S_CA}, s{S_T0}')
        A.I(f's_lshl_b32 s{S_T0}, s{S_WV}, 2')
        A.I(f's_add_u32 s{S_CA}, s{S_CA}, s{S_T0}')
        A.I(f's_add_u32 s{S_CA}, s{S_CA}, 0x{R.F_PROG:x}')
        A.I('v_mov_b32 v22, 0')
        lane0(A, lambda: A.I(f'buffer_store_dword v22, off, {ws}, s{S_CA} sc1'))
        lz = A.newlabel('L_nz')
        A.I(f's_cmp_lg_u32 s{S_J}, 64')
        A.br(f's_cbranch_scc1 {lz}')
        A.I('v_lshlrev_b32 v23, 4, v0')
        for r in range(16, 20):
            A.I(f'v_mov_b32 v{r}, 0')
        A.I(f's_mul_i32 s{S_T0}, s{S_WV}, 6144')
        A.I(f's_add_u32 s{S_T0}, s{S_T0}, 0x{F_OPC:x}')
        A.I(f's_add_u32 s{S_T1}, s{S_T0}, 4096')
        for i in range(4):
            A.I(f'buffer_store_dwordx4 v[16:19], v23, {ws}, s{S_T0} offen offset:{1024 * i} sc1')
        A.I(f'buffer_store_dwordx4 v[16:19], v23, {ws}, s{S_T1} offen sc1')
        A.I(f'buffer_store_dwordx4 v[16:19], v23, {ws}, s{S_T1} offen offset:1024 sc1')
        A.label(lz)
        A.forget_loads()
        if ln:
            ln_and_arrive()
            ts_tok(A, 8)

    l_late = A.newlabel('L_late')
    l_st = A.newlabel('L_st')
    A.I(f's_mov_b32 s{S_K1}, 0')
    l_lt = A.newlabel('L_lt')
    A.I(f's_cmp_ge_u32 s{S_G}, {NEARLY}')
    A.br(f's_cbranch_scc1 {l_lt}')
    tok_init(False)
    A.br(f's_branch {l_st}')
    A.label(l_lt)
    if WARM:
        lwm = A.newlabel('L_wm')
        A.I(f's_cmp_eq_u32 s{S_G}, 3')
        A.br(f's_cbranch_scc1 {lwm}')
        A.I(f's_sub_u32 s{S_T0}, s{S_J}, 96')
        A.I(f's_cmp_eq_u32 s{S_G}, 2')
        A.I(f's_cselect_b32 s{S_T0}, s{S_H}, s{S_T0}')
        A.I(f's_lshl_b32 s{S_T0}, s{S_T0}, 2')
        A.I(f's_add_u32 s{S_T0}, s{S_T0}, s{S_WV}')
        A.I(f's_lshl_b32 s{S_T0}, s{S_T0}, 13')
        A.I('v_lshlrev_b32 v22, 7, v0')
        A.check = False
        for p in (P_Q, P_K, P_V, P_O):
            make_srd(A, S_W, p, 4 << 20)
            A.I(f'buffer_load_dword v255, v22, s[{S_W}:{S_W + 3}], s{S_T0} offen')
        A.check = True
        A.label(lwm)
        A.forget_loads()
    tok_init()
    l_nost = A.newlabel('L_nost')
    wg_poll_eq(A, dbg, None, D_GB, 256, 2, l_exit, sleep=100)
    A.I(f's_cmp_ge_u32 s{S_G}, 4')
    A.br(f's_cbranch_scc1 {l_nost}')
    lsg, lsd = A.newlabel('L_sg'), A.newlabel('L_sd')
    A.I(f's_cmp_lg_u32 s{S_WV}, 0')
    A.br(f's_cbranch_scc1 {lsd}')
    A.I(f's_cmp_eq_u32 s{S_G}, 3')
    A.I(f's_cselect_b32 s{S_T1}, {STAG}, {STAG0}')
    A.I(f's_lshl_b32 s{S_T2}, s{S_H}, 6')
    A.I(f's_add_u32 s{S_T2}, s{S_T2}, 0x{R.F_KMP:x}')
    A.label(lsg)
    A.I(f'buffer_load_dword v2, off, {ws}, s{S_T2} sc1')
    A.I(f's_sub_u32 s{S_SPIN}, s{S_SPIN}, 1')
    A.I(f's_cbranch_scc1 {l_exit}')
    A.I('s_waitcnt vmcnt(0)')
    A.I(f'v_readfirstlane_b32 s{S_T0}, v2')
    A.I(f's_cmp_ge_u32 s{S_T0}, s{S_T1}')
    A.I(f's_cbranch_scc1 {lsd}')
    A.I('s_sleep 40')
    A.br(f's_branch {lsg}')
    A.label(lsd)
    A.I('s_barrier')
    A.I(f's_mov_b32 s{S_K1}, 1')
    A.label(l_st)

    def hook(sc):
        if sc != 0:
            return
        l = A.newlabel('L_hk')
        A.I(f's_cmp_eq_u32 s{S_K1}, 1')
        A.br(f's_cbranch_scc1 {l}')
        arrive()
        ts_tok(A, 8)
        A.label(l)

    T.qkv_stage(A, [P_Q, P_K, P_V], hook_sc=hook)
    A.label(l_nost)
    ts_tok(A, 1)
    wg_poll_eq(A, dbg, None, D_GB, 256, 2, l_exit, sleep=8)
    ts_tok(A, 7)
    A.I(f's_lshl_b32 s{S_T0}, s{S_G}, 2')
    A.I(f'buffer_load_dword v2, off, {dbg}, s{S_T0} offset:4 sc1')
    A.I(f'buffer_load_dword v3, off, {dbg}, 0 offset:{D_WEIRD} sc1')
    A.I('s_waitcnt vmcnt(0)')
    A.I(f'v_readfirstlane_b32 s{S_T2}, v2')
    A.I(f'v_readfirstlane_b32 s{S_T3}, v3')
    A.I(f's_cmp_ge_u32 s{S_T2}, 32')
    A.I(f's_cselect_b32 s{S_FAST}, 1, 0')
    A.I(f's_cmp_eq_u32 s{S_T3}, 0')
    A.I(f's_cselect_b32 s{S_FAST}, s{S_FAST}, 0')
    if os.environ.get('FORCE_SLOW'):
        A.I(f's_mov_b32 s{S_FAST}, 0')
    l_nop1 = A.newlabel('L_nop1')
    A.I(f's_cmp_ge_u32 s{S_G}, 4')
    A.br(f's_cbranch_scc1 {l_nop1}')
    A.I(f's_lshr_b32 s{S_T0}, s{S_G}, 1')
    A.I(f's_lshl_b32 s{S_T0}, s{S_T0}, 5')
    A.I(f's_add_u32 s{S_END}, s{S_T0}, 32')
    A.I(f's_and_b32 s{S_NX}, s{S_G}, 1')
    A.I(f's_add_u32 s{S_NX}, s{S_NX}, s{S_T0}')
    A.I('v_mov_b32 v2, 0')

    def signal():
        lane0(A, lambda: A.I(f'buffer_store_dword v2, off, {ws}, s{S_CA} sc1'))

    def after():
        A.I('v_add_u32 v2, 1, v2')

    T.qkv_segments(A, 2, 'sc1', after_seg=after, mid_seg=signal, first=S_NX, end=f's{S_END}')
    A.I('s_waitcnt vmcnt(0)')
    signal()
    A.label(l_nop1)
    ts_tok(A, 2)
    T.att_stage(A, P_O)
    T.att_consts(A)
    A.I(f's_load_dwordx4 s[16:19], s[0:1], {KA_W1}')
    A.I('s_waitcnt lgkmcnt(0)')
    make_srd(A, S_W1, 16, 2048 * 3584)
    make_srd(A, S_B1, 18, 3584)
    g2_setup(A)
    A.I(f's_mov_b32 s{S_PRE}, 0')
    for i in range(16):
        A.I(f'v_mov_b32 v{G1ACC + i}, 0')
    A.I(f's_mov_b32 s{S_K1}, 0')
    g1_w1_dma(A, S_K1, first=True)
    A.I(f's_lshl_b32 s{S_OPS}, s{S_G}, 1')
    masks = seg_masks()
    for g in range(7):
        A.I(f's_cmp_eq_u32 s{S_G}, {g}')
        A.I(f's_cselect_b32 s{S_MSK}, 0x{masks[g] & 0xffffffff:x}, s{S_MSK}')
        A.I(f's_cselect_b32 s{S_MSK + 1}, 0x{masks[g] >> 32:x}, s{S_MSK + 1}')
    A.I(f's_ff1_i32_b64 s{S_SEG}, s[{S_MSK}:{S_MSK + 1}]')
    A.I(f's_bitset0_b64 s[{S_MSK}:{S_MSK + 1}], s{S_SEG}')
    A.I(f's_mov_b32 s{S_AV}, 0')
    A.I(f's_lshl_b32 s{S_PB}, s{S_H}, 7')
    A.I(f's_add_u32 s{S_PB}, s{S_PB}, 0x{R.F_PROG:x}')
    R.kv_wait(A, l_exit, S_SEG, 192, s_av=S_AV, s_base=S_PB, sleep=4, vlane16=1)
    T.att_load_qkv(A, S_SEG)
    x_prefetch(A, S_SEG, sx)
    L = A.newlabel('L_p2')
    L_att = A.newlabel('L_att')
    L_fin = A.newlabel('L_p2fin')
    A.label(L)
    A.check = False
    A.I(f's_cmp_ge_u32 s{S_K1}, 16')
    A.I(f's_cbranch_scc1 {L_fin}')
    lq2 = A.newlabel('L_lp2')
    ldec = A.newlabel('L_dec')
    A.I(f's_cmp_lg_u32 s{S_WV}, 0')
    A.br(f's_cbranch_scc1 {ldec}')
    A.I(f's_lshl_b32 s{S_CA}, s{S_H}, 6')
    A.I(f's_add_u32 s{S_CA}, s{S_CA}, 0x{R.F_KMP:x}')
    A.I(f's_add_u32 s40, s{S_SEG}, 2')
    A.I(f's_lshl_b32 s{S_T1}, s{S_K1}, 4')
    A.I(f's_lshl_b32 s{S_T2}, s{S_G}, 9')
    A.I(f's_add_u32 s{S_T1}, s{S_T1}, s{S_T2}')
    A.I(f's_add_u32 s{S_T1}, s{S_T1}, 0x{F_GF + 512:x}')
    lq, lgo, lnk = A.newlabel('L_lp'), A.newlabel('L_go'), A.newlabel('L_nk')
    A.label(lq)
    A.I(f'buffer_load_dwordx4 v[192:195], off, {ws}, s{S_CA} {PLF}')
    A.I(f'buffer_load_dwordx4 v[196:199], off, {ws}, s{S_T1} {PLF}')
    A.I(f's_sub_u32 s{S_SPIN}, s{S_SPIN}, 1')
    A.I(f's_cbranch_scc1 {l_exit}')
    A.I('s_waitcnt vmcnt(0)')
    A.I('v_min_u32 v6, v192, v193')
    A.I('v_min3_u32 v6, v6, v194, v195')
    A.I(f'v_readfirstlane_b32 s{S_T0}, v6')
    A.I('v_min_u32 v7, v196, v197')
    A.I('v_min3_u32 v7, v7, v198, v199')
    A.I('v_cmp_eq_u32 vcc, 0, v7')
    A.I(f's_mov_b32 s{S_T3}, 1')
    A.I(f's_cmp_ge_u32 s{S_T0}, s40')
    A.I(f's_cbranch_scc1 {lgo}')
    A.label(lnk)
    lsl = A.newlabel('L_sl')
    A.I(f's_add_u32 s{S_T0}, s{S_T0}, 2')
    A.I(f's_cmp_ge_u32 s{S_T0}, s40')
    A.I(f's_cbranch_scc1 {lq}')
    A.I(f's_mov_b32 s{S_T3}, 2')
    A.I(f's_cbranch_vccz {lgo}')
    lns = A.newlabel('L_nsl')
    A.I(f's_mov_b32 s{S_T3}, 3')
    A.I(f's_cmp_lt_u32 s{S_SEG}, 64')
    A.I(f's_cbranch_scc1 {lns}')
    A.I(f's_cmp_lt_u32 s{S_K1}, 3')
    A.I(f's_cbranch_scc1 {lns}')
    A.I(f's_cmp_lt_u32 s{S_PRE}, 3')
    A.I(f's_cbranch_scc1 {lgo}')
    A.label(lns)
    A.I('s_sleep 4')
    A.br(f's_branch {lq}')
    A.label(lgo)
    A.I(f'v_mov_b32 v6, s{S_T3}')
    A.I(f'v_mov_b32 v7, {L_RED + 8192 - 16}')
    A.I('ds_write_b32 v7, v6')
    A.I('s_waitcnt lgkmcnt(0)')
    A.label(ldec)
    A.I('s_barrier')
    A.I(f'v_mov_b32 v7, {L_RED + 8192 - 16}')
    A.I('ds_read_b32 v6, v7')
    A.I('s_waitcnt lgkmcnt(0)')
    A.I(f'v_readfirstlane_b32 s{S_T0}, v6')
    A.I(f's_cmp_eq_u32 s{S_T0}, 1')
    A.br(f's_cbranch_scc1 {lq2}')
    lch = A.newlabel('L_ch')
    A.I(f's_cmp_eq_u32 s{S_T0}, 2')
    A.br(f's_cbranch_scc1 {lch}')
    for rnd in range(3):
        lpr = A.newlabel('L_pr')
        A.I(f's_cmp_lg_u32 s{S_PRE}, {rnd}')
        A.br(f's_cbranch_scc1 {lpr}')
        g2_pre(A, rnd)
        A.br(f's_branch {L}')
        A.label(lpr)
    A.label(lch)
    ts_tok(A, 16)
    g1_chunk(A, S_K1, l_exit)
    A.I(f's_add_u32 s{S_K1}, s{S_K1}, 1')
    if CODET:
        lct = A.newlabel('L_ct')
        A.I(f's_cmp_lg_u32 s{S_K1}, 12')
        A.br(f's_cbranch_scc1 {lct}')
        A.I(f's_lshl_b32 s{S_T0}, s{S_H}, 2')
        A.I(f's_add_u32 s{S_T0}, s{S_T0}, s{S_WV}')
        A.I(f's_cmp_lg_u32 s{S_T0}, 7')
        A.br(f's_cbranch_scc1 {L}')
        code_touch(A, L, l_exit, TAIL_BYTES, 5, 143)
        A.br(f's_branch {L}')
        A.label(lct)
    lw2 = A.newlabel('L_w2')
    A.I(f's_cmp_lg_u32 s{S_K1}, 3')
    A.br(f's_cbranch_scc1 {lw2}')
    for k in range(5):
        g2_dma(A, k)
    A.br(f's_branch {L}')
    A.label(lw2)
    A.I(f's_cmp_lg_u32 s{S_K1}, 6')
    A.br(f's_cbranch_scc1 {L}')
    A.I(f's_and_b32 s{S_T0}, s{S_J2}, 7')
    A.I(f's_cmp_lg_u32 s{S_T0}, 4')
    A.br(f's_cbranch_scc1 {L}')
    g2_touch(A, 5)
    A.br(f's_branch {L}')
    A.label(lq2)
    ts_tok(A, 10)
    T.att_load_mem(A, S_SEG, 'sc1')
    A.I('s_waitcnt vmcnt(0)')
    ts_tok(A, 11)
    A.check = True
    A.forget_loads()
    T.att_compute1(A)
    lc1, lc2 = A.newlabel('L_c2s'), A.newlabel('L_c2e')
    A.I(f's_cmp_eq_u32 s{S_FAST}, 0')
    A.br(f's_cbranch_scc1 {lc1}')
    T.att_compute2(A, S_OPS, '')
    A.br(f's_branch {lc2}')
    A.label(lc1)
    T.att_compute2(A, S_OPS, 'sc1')
    A.label(lc2)
    ts_tok(A, 12)
    A.I('s_waitcnt vmcnt(0)')
    A.I('s_barrier')
    ts_tok(A, 13)
    A.I(f's_lshl_b32 s{S_CA}, s{S_SEG}, 7')
    A.I(f's_add_u32 s{S_CA}, s{S_CA}, 0x{F_OPC:x}')
    l0 = A.newlabel('L_n0')
    A.I(f's_cmp_lg_u32 s{S_WV}, 0')
    A.br(f's_cbranch_scc1 {l0}')
    A.I(f's_lshl_b32 s{S_T1}, s{S_H}, 2')
    A.I(f's_add_u32 s{S_T1}, s{S_T1}, s{S_CA}')
    flag_store(A, S_T1, 6)
    poll_flags(A, S_CA, 32, 1, 6, 7, l_exit)
    A.label(l0)
    A.I('s_barrier')
    ts_tok(A, 14)
    red4(A, S_SEG, sx, l_exit)
    A.I(f's_ff1_i32_b64 s{S_SEG}, s[{S_MSK}:{S_MSK + 1}]')
    A.I(f's_bitset0_b64 s[{S_MSK}:{S_MSK + 1}], s{S_SEG}')
    lnn = A.newlabel('L_nn')
    A.I(f's_cmp_lt_u32 s{S_SEG}, 64')
    A.br(f's_cbranch_scc1 {lnn}')
    A.I(f's_mov_b32 s{S_SEG}, 999')
    ts_tok(A, 3)
    A.br(f's_branch {L}')
    A.label(lnn)
    lav = A.newlabel('L_av')
    A.I(f's_cmp_gt_u32 s{S_AV}, s{S_SEG}')
    A.br(f's_cbranch_scc1 {lav}')
    R.kv_wait(A, l_exit, S_SEG, 192, s_av=S_AV, s_base=S_PB, sleep=4, vlane16=1)
    A.label(lav)
    T.att_load_qkv(A, S_SEG)
    x_prefetch(A, S_SEG, sx)
    A.br(f's_branch {L}')
    A.label(L_fin)
    A.forget_loads()
    ts_tok(A, 4)
    g1_epilogue(A, l_exit)
    A.I(f's_add_u32 s{S_G}, s{S_G}, 1')
    tstamp(A, 17)
    A.label(l_g2)
    A.forget_loads()
    g2_main(A, l_exit)
    tstamp(A, 6, 8)
    if DIAG:
        A.I(f's_add_u32 s{S_T0}, s{S_G}, s{S_H}')
        A.I(f's_add_u32 s{S_T0}, s{S_T0}, s{S_WV}')
        A.I(f's_cmp_lg_u32 s{S_T0}, 0')
        A.br(f's_cbranch_scc1 {l_exit}')
        A.I('s_memrealtime s[80:81]')
        A.I('s_waitcnt lgkmcnt(0)')
        A.I('s_sub_u32 s80, s80, s58')
        A.I('v_mov_b32 v8, s60')
        A.I('v_mov_b32 v9, s61')
        A.I('v_mov_b32 v10, s80')
        A.I('v_mov_b32 v11, 0')
        if os.environ.get('DIAG2'):
            A.I(f'buffer_store_dword v9, off, {dbg}, 0 offset:32')
        else:
            A.I(f'buffer_store_dwordx4 v[8:11], off, {dbg}, 0 offset:48')
    A.label(l_exit)
    A.I('s_endpgm')


S_MSK = 56
S_OPS = 47


def seg_masks():
    c1, c2 = int(os.environ.get('C1', 14)), int(os.environ.get('C2', 27))
    m = [0] * 7
    last = {g: -100 for g in range(7)}
    for s_ in range(64):
        cand = [4, 5, 6] if s_ < c1 else ([4, 5, 6, 0, 1] if s_ < c2 else list(range(7)))
        g = min(cand, key=lambda x: last[x])
        last[g] = s_
        m[g] |= 1 << s_
    return m


def j2_calc(A):
    A.I(f's_lshr_b32 s{S_T0}, s{S_G}, 1')
    A.I(f's_lshl_b32 s{S_T0}, s{S_T0}, 3')
    A.I(f's_lshr_b32 s{S_T1}, s{S_H}, 2')
    A.I(f's_add_u32 s{S_T0}, s{S_T0}, s{S_T1}')
    A.I(f's_lshl_b32 s{S_J2}, s{S_T0}, 3')
    A.I(f's_and_b32 s{S_T0}, s{S_G}, 1')
    A.I(f's_lshl_b32 s{S_T0}, s{S_T0}, 2')
    A.I(f's_and_b32 s{S_T1}, s{S_H}, 3')
    A.I(f's_add_u32 s{S_T0}, s{S_T0}, s{S_T1}')
    A.I(f's_add_u32 s{S_J2}, s{S_J2}, s{S_T0}')


def code_touch(A, l_from, l_end, nbytes, vd, va):
    lh = A.newlabel('L_pc')
    A.I('s_getpc_b64 s[80:81]')
    A.raw(f'{lh}:')
    A.raw(f'    s_sub_u32 s80, s80, {lh}-{l_from}')
    A.raw('    s_subb_u32 s81, s81, 0')
    A.I(f'v_lshlrev_b32 v{va}, 7, v0')
    for i in range(0, nbytes, 8192):
        A.raw(f'    v_min_u32 v{va}, {l_end}-{l_from}, v{va}')
        A.raw(f'    global_load_dword v{vd}, v{va}, s[80:81]')
        A.I(f'v_add_u32 v{va}, 8192, v{va}')


def x_prefetch(A, s_seg, sx):
    A.I('v_lshrrev_b32 v6, 2, v0')
    A.I('v_lshlrev_b32 v6, 6, v6')
    A.I('v_and_b32 v7, 3, v0')
    A.I('v_lshl_add_u32 v6, v7, 3, v6')
    A.I(f's_lshl_b32 s{S_T3}, s{s_seg}, 5')
    A.I(f's_add_u32 s{S_T3}, s{S_T3}, s{S_H}')
    A.I(f's_lshl_b32 s{S_T3}, s{S_T3}, 10')
    A.I(f'buffer_load_dwordx2 v[12:13], v6, {sx}, s{S_T3} offen')
    A.I(f'buffer_load_dwordx2 v[14:15], v6, {sx}, s{S_T3} offen offset:32')


def ts_tok(A, i):
    if TIMING:
        A.I(f's_add_u32 s{S_G}, s{S_G}, 1')
        tstamp(A, i, 14 if i in (1, 2, 7, 8) else 6)
        A.I(f's_sub_u32 s{S_G}, s{S_G}, 1')


G1ACC = 120
G1T = 144
L_G1 = 0
L_RED = 65536
L_W2 = 73728


def g1_lane(A):
    t = G1T
    A.I(f'v_lshrrev_b32 v{t}, 3, v0')
    A.I(f'v_and_b32 v{t + 1}, 7, v0')
    A.I(f'v_bfe_u32 v{t + 2}, v0, 4, 1')
    A.I(f's_and_b32 s{S_T0}, s{S_WV}, 1')
    A.I(f's_lshl_b32 s{S_T0}, s{S_T0}, 1')
    A.I(f'v_or_b32 v{t + 2}, s{S_T0}, v{t + 2}')
    A.I(f'v_lshlrev_b32 v{t + 2}, 1, v{t + 2}')
    A.I(f'v_xor_b32 v{t + 1}, v{t + 1}, v{t + 2}')
    A.I(f'v_lshlrev_b32 v{t + 1}, 4, v{t + 1}')
    A.I(f'v_mul_u32_u24 v136, 3584, v{t}')
    A.I(f'v_add_u32 v136, v136, v{t + 1}')
    A.I(f'v_lshl_add_u32 v137, v{t}, 10, v{t + 1}')
    A.I(f'v_and_b32 v{t}, 15, v0')
    A.I(f'v_lshrrev_b32 v{t + 1}, 4, v0')
    A.I(f'v_lshrrev_b32 v{t + 2}, 2, v{t}')
    A.I(f'v_and_b32 v{t + 3}, 3, v{t}')
    A.I(f'v_lshl_add_u32 v{t + 4}, v{t + 1}, 3, v{t + 2}')
    A.I(f'v_lshlrev_b32 v{t + 4}, 7, v{t + 4}')
    A.I(f'v_lshl_add_u32 v{t + 4}, v{t + 3}, 3, v{t + 4}')
    A.I(f'v_lshrrev_b32 v{t + 5}, 1, v{t + 2}')
    A.I(f'v_and_b32 v{t + 6}, 1, v{t + 1}')
    A.I(f'v_lshl_add_u32 v{t + 5}, v{t + 6}, 1, v{t + 5}')
    A.I(f'v_xor_b32 v{t + 6}, s{S_T0}, v{t + 5}')
    A.I(f'v_lshl_add_u32 v138, v{t + 6}, 5, v{t + 4}')
    A.I(f'v_xor_b32 v139, 32, v138')
    A.I(f's_and_b32 s{S_T0}, s{S_WV}, 2')
    A.I(f'v_xor_b32 v{t + 6}, s{S_T0}, v{t + 5}')
    A.I(f'v_lshl_add_u32 v140, v{t + 6}, 5, v{t + 4}')
    A.I(f'v_add_u32 v140, 16384, v140')
    A.I(f'v_xor_b32 v141, 32, v140')


def g1_w1_dma(A, s_k, first=False, plus=0):
    if first:
        g1_lane(A)
    w1 = f's[{S_W1}:{S_W1 + 3}]'
    A.I(f's_add_u32 s{S_T2}, s{s_k}, {plus}')
    A.I(f's_mul_i32 s{S_T0}, s{S_T2}, {128 * 3584}')
    A.I(f's_mul_i32 s{S_T1}, s{S_WV}, {8 * 3584}')
    A.I(f's_add_u32 s{S_T0}, s{S_T0}, s{S_T1}')
    A.I(f's_lshr_b32 s{S_T1}, s{S_J}, 3')
    A.I(f's_lshl_b32 s{S_T1}, s{S_T1}, 7')
    A.I(f's_add_u32 s{S_T0}, s{S_T0}, s{S_T1}')
    A.I(f's_and_b32 s{S_T1}, s{S_T2}, 1')
    A.I(f's_lshl_b32 s{S_T1}, s{S_T1}, 15')
    A.I(f's_lshl_b32 s{S_T2}, s{S_WV}, 10')
    A.I(f's_add_u32 s{S_T1}, s{S_T1}, s{S_T2}')
    for i in range(4):
        A.I(f's_add_u32 m0, s{S_T1}, {L_G1 + i * 4096}')
        A.I(f's_add_u32 s{S_T2}, s{S_T0}, {i * 32 * 3584}')
        A.I(f'buffer_load_dwordx4 v136, {w1}, s{S_T2} offen lds')


def g1_chunk(A, s_k, l_exit):
    ws = f's[{S_WS}:{S_WS + 3}]'
    A.I(f's_lshl_b32 s{S_T0}, s{s_k}, 17')
    A.I(f's_lshl_b32 s{S_T1}, s{S_WV}, 13')
    A.I(f's_add_u32 s{S_T0}, s{S_T0}, s{S_T1}')
    A.I(f's_and_b32 s{S_T1}, s{S_J}, 7')
    A.I(f's_lshl_b32 s{S_T1}, s{S_T1}, 7')
    A.I(f's_add_u32 s{S_T0}, s{S_T0}, s{S_T1}')
    A.I(f's_add_u32 s{S_T0}, s{S_T0}, 0x{WS_HP:x}')
    A.I(f's_and_b32 s{S_T3}, s{s_k}, 1')
    A.I(f's_lshl_b32 s{S_T3}, s{S_T3}, 15')
    A.I(f's_lshl_b32 s{S_T2}, s{S_WV}, 10')
    A.I(f's_add_u32 s{S_T1}, s{S_T3}, s{S_T2}')
    for i in range(4):
        A.I(f's_add_u32 m0, s{S_T1}, {L_G1 + 16384 + i * 4096}')
        A.I(f's_add_u32 s{S_T2}, s{S_T0}, {i * 32 * 1024}')
        A.I(f'buffer_load_dwordx4 v137, {ws}, s{S_T2} offen lds')
    AD = G1T
    for j in range(4):
        A.I(f'v_add_u32 v{AD + j}, s{S_T3}, v{138 + j}')
    g1_w1_dma(A, s_k, plus=1)
    A.I('s_waitcnt vmcnt(4)')
    A.I('s_barrier')
    FR = G1T + 8

    def rd(ks):
        for j in range(4):
            for x in range(2):
                A.I(f'ds_read_b64_tr_b16 {v(FR + 16 * ks + 4 * j + 2 * x, 2)}, v{AD + j} offset:{L_G1 + (32 * ks + 4 * x) * 128}')

    rd(0)
    for ks in range(4):
        if ks < 3:
            rd(ks + 1)
            A.I('s_waitcnt lgkmcnt(8)')
        else:
            A.I('s_waitcnt lgkmcnt(0)')
        f = FR + 16 * ks
        for mbp in range(2):
            for nbp in range(2):
                d = G1ACC + (mbp * 2 + nbp) * 4
                A.I(f'v_mfma_f32_16x16x32_bf16 {v(d, 4)}, {v(f + 4 * mbp, 4)}, {v(f + 8 + 4 * nbp, 4)}, {v(d, 4)}')


def g1_epilogue(A, l_exit):
    import math
    ws, b1 = f's[{S_WS}:{S_WS + 3}]', f's[{S_B1}:{S_B1 + 3}]'
    ACC, BI, Z, Pk, TT, O = G1ACC, 150, 160, 168, 172, 188
    A.I(f's_lshr_b32 s{S_T2}, s{S_J}, 3')
    A.I(f's_lshl_b32 s{S_T0}, s{S_T2}, 7')
    A.I(f's_and_b32 s{S_T1}, s{S_WV}, 1')
    A.I(f's_lshl_b32 s{S_T1}, s{S_T1}, 6')
    A.I(f's_add_u32 s{S_T0}, s{S_T0}, s{S_T1}')
    A.I('v_lshrrev_b32 v144, 4, v0')
    A.I('v_lshlrev_b32 v144, 3, v144')
    A.I(f'buffer_load_dwordx2 v[146:147], v144, {b1}, s{S_T0} offen')
    A.I(f'buffer_load_dwordx2 v[148:149], v144, {b1}, s{S_T0} offen offset:32')
    A.I(f's_and_b32 s{S_T0}, s{S_J}, 7')
    A.I(f's_lshl_b32 s{S_T0}, s{S_T0}, 2')
    A.I(f's_and_b32 s{S_T1}, s{S_WV}, 2')
    A.I(f's_add_u32 s{S_T0}, s{S_T0}, s{S_T1}')
    A.I(f's_mul_i32 s{S_T0}, s{S_T0}, 56')
    A.I(f's_lshl_b32 s{S_T1}, s{S_T2}, 1')
    A.I(f's_add_u32 s{S_T0}, s{S_T0}, s{S_T1}')
    A.I(f's_and_b32 s{S_T1}, s{S_WV}, 1')
    A.I(f's_add_u32 s{S_T0}, s{S_T0}, s{S_T1}')
    A.I(f's_lshl_b32 s{S_T0}, s{S_T0}, 10')
    A.I(f's_add_u32 s{S_T0}, s{S_T0}, 0x{WS_U:x}')
    k1 = -2 * math.sqrt(2 / math.pi) * math.log2(math.e)
    A.I(f's_mov_b32 s{S_T2}, {f32(k1)}')
    A.I(f's_mov_b32 s{S_T3}, {f32(k1 * 0.044715)}')
    A.I('v_lshlrev_b32 v145, 4, v0')
    A.I('s_waitcnt vmcnt(0)')
    for i in range(4):
        A.I(f'v_lshlrev_b32 v{BI + 2 * i}, 16, v{146 + i}')
        A.I(f'v_and_b32 v{BI + 2 * i + 1}, 0xffff0000, v{146 + i}')
    for nbp in range(2):
        for mbp in range(2):
            for r in range(4):
                A.I(f'v_mov_b32 v{Z + 4 * mbp + r}, v{ACC + (mbp * 2 + nbp) * 4 + r}')
        T.round_bf16(A, Z, Pk)
        for i in range(8):
            A.I(f'v_add_f32 v{Z + i}, v{Z + i}, v{BI + i}')
        T.round_bf16(A, Z, Pk)
        for i in range(8):
            t = TT + i
            A.I(f'v_mul_f32 v{t}, v{Z + i}, v{Z + i}')
            A.I(f'v_mov_b32 v{t + 8}, s{S_T2}')
            A.I(f'v_fmac_f32 v{t + 8}, s{S_T3}, v{t}')
            A.I(f'v_mul_f32 v{t}, v{t + 8}, v{Z + i}')
            A.I(f'v_exp_f32 v{t}, v{t}')
        for i in range(8):
            A.I(f'v_add_f32 v{TT + i}, 1.0, v{TT + i}')
            A.I(f'v_rcp_f32 v{TT + i}, v{TT + i}')
        for i in range(8):
            A.I(f'v_mul_f32 v{Z + i}, v{Z + i}, v{TT + i}')
        o = O + 4 * nbp
        for i in range(4):
            A.I(f'v_cvt_pk_bf16_f32 v{o + i}, v{Z + 2 * i}, v{Z + 2 * i + 1}')
        A.I(f'buffer_store_dwordx4 {v(o, 4)}, v145, {ws}, s{S_T0} offen sc1')
        A.I(f's_add_u32 s{S_T0}, s{S_T0}, {56 * 1024}')
    A.I('s_waitcnt vmcnt(0)')
    A.I('s_barrier')
    l = A.newlabel('L_ue')
    A.I(f's_cmp_lg_u32 s{S_WV}, 0')
    A.br(f's_cbranch_scc1 {l}')
    A.I(f's_lshl_b32 s{S_T2}, s{S_G}, 7')
    A.I(f's_add_u32 s{S_T2}, s{S_T2}, 0x{F_LU:x}')
    A.I(f's_lshl_b32 s{S_T3}, s{S_G}, 2')
    A.I(f's_add_u32 s{S_T3}, s{S_T3}, 0x{F_GF + 256:x}')
    garrive(A, S_T2, S_T3, 144, l_exit)
    A.label(l)


def g2_slot(k):
    return L_W2 + 16384 * (k % 5)


S_PRE = 62


def g2_pre(A, rnd):
    t = G1T
    A.I(f'v_and_b32 v{t}, 15, v0')
    A.I(f'v_lshrrev_b32 v{t + 1}, 4, v0')
    A.I(f'v_lshrrev_b32 v{t + 2}, 2, v{t}')
    A.I(f'v_and_b32 v{t + 3}, 3, v{t}')
    A.I(f'v_lshl_add_u32 v{t + 2}, v{t + 1}, 2, v{t + 2}')
    A.I(f'v_bfe_u32 v{t + 1}, v{t + 2}, 1, 2')
    A.I(f'v_lshlrev_b32 v{t + 2}, 7, v{t + 2}')
    A.I(f'v_lshl_add_u32 v{t + 2}, v{t + 3}, 3, v{t + 2}')
    A.I(f'v_lshl_add_u32 v{t + 2}, v{t + 1}, 5, v{t + 2}')
    A.I(f's_lshl_b32 s{S_T0}, s{S_WV}, 12')
    A.I(f's_add_u32 s{S_T0}, s{S_T0}, {L_W2}')
    for j in range(4):
        A.I(f'v_xor_b32 v{t + 4 + j}, {32 * j}, v{t + 2}')
        A.I(f'v_add_u32 v{t + 4 + j}, s{S_T0}, v{t + 4 + j}')
        A.I(f'v_add_u32 v{t + 8 + j}, 49152, v{t + 4 + j}')
    A.I('s_waitcnt vmcnt(0)')
    A.I('s_barrier')
    ks_ = list(range(5 * rnd, min(5 * rnd + 5, 14)))
    for k in ks_:
        so = 16384 * (k % 5)
        ab = t + 4
        if so >= 49152:
            so -= 49152
            ab = t + 8
        for j in range(4):
            for x in range(2):
                A.I(f'ds_read_b64_tr_b16 {a(16 * k + 4 * j + 2 * x, 2)}, v{ab + j} offset:{so + 16 * x * 128}')
        A.I('s_waitcnt lgkmcnt(4)')
    A.I('s_waitcnt lgkmcnt(0)')
    if rnd < 2:
        A.I('s_barrier')
        for k in range(5 * rnd + 5, min(5 * rnd + 10, 14)):
            g2_dma(A, k)
    A.I(f's_mov_b32 s{S_PRE}, {rnd + 1}')


def g2_setup(A):
    A.I(f's_load_dwordx2 s[16:17], s[0:1], {KA_W2}')
    A.I('s_waitcnt lgkmcnt(0)')
    make_srd(A, S_W2, 16, 1792 * 4096)
    t = G1T
    A.I(f'v_lshrrev_b32 v{t}, 3, v0')
    A.I(f'v_and_b32 v{t + 1}, 7, v0')
    A.I(f'v_lshrrev_b32 v{t + 2}, 4, v0')
    A.I(f'v_lshlrev_b32 v{t + 2}, 1, v{t + 2}')
    A.I(f'v_xor_b32 v{t + 1}, v{t + 1}, v{t + 2}')
    A.I(f'v_lshlrev_b32 v{t + 1}, 4, v{t + 1}')
    A.I(f'v_lshl_add_u32 v142, v{t}, 12, v{t + 1}')
    A.I(f's_lshl_b32 s{S_BO2}, s{S_WV}, 15')
    A.I(f's_lshr_b32 s{S_T0}, s{S_J2}, 3')
    A.I(f's_lshl_b32 s{S_T0}, s{S_T0}, 7')
    A.I(f's_add_u32 s{S_BO2}, s{S_BO2}, s{S_T0}')
    A.I(f's_lshl_b32 s{S_LB2}, s{S_WV}, 10')


def g2_dma(A, k, vr=142):
    w2 = f's[{S_W2}:{S_W2 + 3}]'
    for i in range(4):
        A.I(f's_add_u32 m0, s{S_LB2}, {g2_slot(k) + i * 4096}')
        A.I(f's_add_u32 s{S_T0}, s{S_BO2}, {(k * 128 + i * 32) * 4096}')
        A.I(f'buffer_load_dwordx4 v{vr}, {w2}, s{S_T0} offen lds')


def g2_touch(A, k0):
    w2 = f's[{S_W2}:{S_W2 + 3}]'
    A.I('v_lshlrev_b32 v143, 12, v0')
    A.I(f's_lshr_b32 s{S_T0}, s{S_J2}, 3')
    A.I(f's_lshl_b32 s{S_T0}, s{S_T0}, 7')
    A.I(f's_lshl_b32 s{S_T1}, s{S_WV}, 18')
    A.I(f's_add_u32 s{S_T0}, s{S_T0}, s{S_T1}')
    for r0 in range(k0 * 128, 1792, 256):
        A.I(f's_add_u32 s{S_T1}, s{S_T0}, {r0 * 4096}')
        A.I(f'buffer_load_dword v5, v143, {w2}, s{S_T1} offen')


def g2_main(A, l_exit):
    ws = f's[{S_WS}:{S_WS + 3}]'
    S_O, S_B2 = S_W1, S_B1
    A.I(f's_load_dwordx4 s[16:19], s[0:1], {KA_B2}')
    for rnd in range(3):
        l = A.newlabel('L_pre')
        A.I(f's_cmp_gt_u32 s{S_PRE}, {rnd}')
        A.br(f's_cbranch_scc1 {l}')
        g2_pre(A, rnd)
        A.label(l)
        A.forget_loads()
    A.I('s_waitcnt lgkmcnt(0)')
    make_srd(A, S_B2, 16, 4096)
    make_srd(A, S_O, 18, 2048 * 1024)
    b2, out = f's[{S_B2}:{S_B2 + 3}]', f's[{S_O}:{S_O + 3}]'
    S_AO, S_EO = 36, 37
    A.I(f's_and_b32 s{S_T0}, s{S_J2}, 7')
    A.I(f's_mul_i32 s{S_AO}, s{S_T0}, {4 * 56 * 1024}')
    A.I(f's_lshl_b32 s{S_T1}, s{S_WV}, 10')
    A.I(f's_add_u32 s{S_AO}, s{S_AO}, s{S_T1}')
    A.I(f's_add_u32 s{S_AO}, s{S_AO}, 0x{WS_U:x}')
    A.I(f's_lshl_b32 s{S_T0}, s{S_T0}, 2')
    A.I(f's_add_u32 s{S_T0}, s{S_T0}, s{S_WV}')
    A.I(f's_lshr_b32 s{S_T1}, s{S_J2}, 3')
    A.I(f's_lshl_b32 s{S_EO}, s{S_T1}, 16')
    A.I(f's_lshl_b32 s{S_T0}, s{S_T0}, 5')
    A.I(f's_add_u32 s{S_EO}, s{S_EO}, s{S_T0}')
    A.I('v_lshlrev_b32 v5, 4, v0')
    A.I('v_and_b32 v1, 15, v0')
    A.I('v_lshrrev_b32 v2, 4, v0')
    A.I('v_lshlrev_b32 v3, 10, v1')
    A.I('v_lshl_add_u32 v3, v2, 3, v3')
    A.I('v_lshlrev_b32 v4, 1, v1')
    A.I(f's_lshl_b32 s{S_T1}, s{S_T1}, 7')
    HB, BB, ACC, AR = 10, 18, 24, 88
    NA = 42
    for nb in range(4):
        A.I(f'buffer_load_ushort v{BB + nb}, v4, {b2}, s{S_T1} offen offset:{32 * nb}')
    l0 = A.newlabel('L_g20')
    A.I(f's_cmp_lg_u32 s{S_WV}, 0')
    A.br(f's_cbranch_scc1 {l0}')
    A.I(f's_lshl_b32 s{S_T1}, s{S_G}, 9')
    A.I(f's_add_u32 s{S_T1}, s{S_T1}, 0x{F_GF + 256:x}')
    poll_flags(A, S_T1, 7, 1, 6, 7, l_exit, sleep=1)
    A.label(l0)
    A.I('s_waitcnt vmcnt(0)')
    A.I('s_barrier')
    tstamp(A, 5, 8)
    vmq = []

    def aload(i):
        k, db = i >> 2, i & 3
        off = db * 56 * 1024 + k * 4096
        A.I(f's_add_u32 s{S_T1}, s{S_AO}, {off}')
        A.I(f'buffer_load_dwordx4 {v(AR + 4 * (i % NA), 4)}, v5, {ws}, s{S_T1} offen')
        vmq.append(('a', i))

    def need(names):
        idx = max([i for i, p in enumerate(vmq) if p in names] + [-1])
        if idx >= 0:
            A.I(f's_waitcnt vmcnt({len(vmq) - 1 - idx})')
            del vmq[:idx + 1]

    for i in range(NA):
        aload(i)
    for nb in range(4):
        A.I(f's_add_u32 s{S_T0}, s{S_EO}, 0x{WS_H + nb * 16384:x}')
        A.I(f'buffer_load_dwordx2 {v(HB + 2 * nb, 2)}, v3, {ws}, s{S_T0} offen')
        vmq.append(('h', 0))
    for i in range(56):
        k, db = i >> 2, i & 3
        need([('a', i)])
        if i == 0 and TIMING:
            A.check = False
            tstamp(A, 19, 8)
            vmq.append(('ts', 0))
            A.check = True
        for nb in range(4):
            d = ACC + 16 * db + 4 * nb
            c = '0' if k == 0 else v(d, 4)
            A.I(f'v_mfma_f32_16x16x32_bf16 {v(d, 4)}, {v(AR + 4 * (i % NA), 4)}, {a(16 * k + 4 * nb, 4)}, {c}')
        if i + NA < 56:
            aload(i + NA)
    A.I(f's_lshl_b32 s{S_T0}, s{S_WV}, 12')
    A.I(f'v_add_u32 v6, s{S_T0}, v5')
    for db in range(4):
        for nb in range(4):
            A.I(f'ds_write_b128 v6, {v(ACC + 16 * db + 4 * nb, 4)} offset:{db * 16384 + nb * 1024}')
        A.I('s_waitcnt lgkmcnt(8)')
    A.I(f's_lshl_b32 s{S_T0}, s{S_WV}, 14')
    A.I(f'v_add_u32 v6, s{S_T0}, v5')
    A.I('s_waitcnt lgkmcnt(0)')
    A.I('s_barrier')
    for j in range(16):
        A.I(f'ds_read_b128 {v(ACC + 4 * j, 4)}, v6 offset:{1024 * j}')
        if j == 11:
            A.I('s_waitcnt lgkmcnt(8)')
    A.I('s_waitcnt lgkmcnt(0) vmcnt(0)')
    tstamp(A, 18, 8)
    for r in range(0, 16, 2):
        A.I(f'v_pk_add_f32 {v(ACC + r, 2)}, {v(ACC + r, 2)}, {v(ACC + 16 + r, 2)}')
        A.I(f'v_pk_add_f32 {v(ACC + 32 + r, 2)}, {v(ACC + 32 + r, 2)}, {v(ACC + 48 + r, 2)}')
    for r in range(0, 16, 2):
        A.I(f'v_pk_add_f32 {v(ACC + r, 2)}, {v(ACC + r, 2)}, {v(ACC + 32 + r, 2)}')
    for nb in range(4):
        d = ACC + 4 * nb
        t = 88
        A.I(f'v_cvt_pk_bf16_f32 v{t}, v{d}, v{d + 1}')
        A.I(f'v_cvt_pk_bf16_f32 v{t + 1}, v{d + 2}, v{d + 3}')
        A.I(f'v_lshlrev_b32 v{t + 2}, 16, v{BB + nb}')
        for i in range(2):
            A.I(f'v_lshlrev_b32 v{d + 2 * i}, 16, v{t + i}')
            A.I(f'v_and_b32 v{d + 2 * i + 1}, 0xffff0000, v{t + i}')
        for r in range(4):
            A.I(f'v_add_f32 v{d + r}, v{d + r}, v{t + 2}')
        A.I(f'v_cvt_pk_bf16_f32 v{t}, v{d}, v{d + 1}')
        A.I(f'v_cvt_pk_bf16_f32 v{t + 1}, v{d + 2}, v{d + 3}')
        for i in range(2):
            A.I(f'v_lshlrev_b32 v{d + 2 * i}, 16, v{t + i}')
            A.I(f'v_and_b32 v{d + 2 * i + 1}, 0xffff0000, v{t + i}')
            A.I(f'v_lshlrev_b32 v{t + 2}, 16, v{HB + 2 * nb + i}')
            A.I(f'v_and_b32 v{t + 3}, 0xffff0000, v{HB + 2 * nb + i}')
            A.I(f'v_add_f32 v{d + 2 * i}, v{d + 2 * i}, v{t + 2}')
            A.I(f'v_add_f32 v{d + 2 * i + 1}, v{d + 2 * i + 1}, v{t + 3}')
        o = 92 + 2 * nb
        A.I(f'v_cvt_pk_bf16_f32 v{o}, v{d}, v{d + 1}')
        A.I(f'v_cvt_pk_bf16_f32 v{o + 1}, v{d + 2}, v{d + 3}')
        A.I(f's_add_u32 s{S_T0}, s{S_EO}, {nb * 16384}')
        A.I(f'buffer_store_dwordx2 {v(o, 2)}, v3, {out}, s{S_T0} offen')


def red4(A, s_seg, srd_x, l_exit):
    ws = f's[{S_WS}:{S_WS + 3}]'
    B, Z, Pk, XR, t0, t1, va = 192, 144, 152, 12, 160, 161, 162
    A.I(f's_lshl_b32 s{S_T2}, s{s_seg}, 5')
    A.I(f's_add_u32 s{S_T2}, s{S_T2}, s{S_H}')
    A.I(f's_lshl_b32 s{S_T0}, s{S_OPS}, 5')
    A.I(f's_add_u32 s{S_T0}, s{S_T0}, s{S_H}')
    A.I(f's_lshl_b32 s{S_T0}, s{S_T0}, 15')
    A.I(f's_xor_b32 s{S_OPS}, s{S_OPS}, 1')
    A.I(f's_lshl_b32 s{S_T1}, s{S_WV}, 13')
    A.I(f's_add_u32 s{S_T0}, s{S_T0}, s{S_T1}')
    A.I(f's_add_u32 s{S_T0}, s{S_T0}, 0x{WS_OP:x}')
    A.I(f's_add_u32 s{S_T1}, s{S_T0}, 4096')
    for hh in range(8):
        so = S_T0 if hh < 4 else S_T1
        A.I(f'buffer_load_dwordx4 {v(B + 4 * hh, 4)}, v1, {ws}, s{so} offen offset:{1024 * (hh & 3)} sc1')
    A.I(f's_lshl_b32 s{S_T3}, s{S_T2}, 10')
    A.I(f'v_lshrrev_b32 v{va}, 2, v0')
    A.I(f'v_lshlrev_b32 v{va}, 6, v{va}')
    A.I(f'v_and_b32 v{t0}, 3, v0')
    A.I(f'v_lshl_add_u32 v{va}, v{t0}, 3, v{va}')
    for hh in range(8):
        A.I(f's_waitcnt vmcnt({7 - hh})')
        for i in range(4):
            r = B + 4 * hh + i
            if hh == 0:
                A.I(f'v_lshlrev_b32 v{Z + 2 * i}, 16, v{r}')
                A.I(f'v_and_b32 v{Z + 2 * i + 1}, 0xffff0000, v{r}')
            else:
                A.I(f'v_lshlrev_b32 v{t0}, 16, v{r}')
                A.I(f'v_and_b32 v{t1}, 0xffff0000, v{r}')
                A.I(f'v_add_f32 v{Z + 2 * i}, v{Z + 2 * i}, v{t0}')
                A.I(f'v_add_f32 v{Z + 2 * i + 1}, v{Z + 2 * i + 1}, v{t1}')
    A.I(f's_lshl_b32 s{S_T0}, s{S_WV}, 11')
    A.I(f'v_add_u32 v{t0}, s{S_T0}, v1')
    A.I(f'v_add_u32 v{t0}, {L_RED}, v{t0}')
    A.I(f'ds_write_b128 v{t0}, {v(Z, 4)}')
    A.I(f'ds_write_b128 v{t0}, {v(Z + 4, 4)} offset:1024')
    A.I('s_waitcnt lgkmcnt(0) vmcnt(0)')
    A.I('s_barrier')
    ts_tok(A, 15)
    l = A.newlabel('L_r4')
    A.I(f's_cmp_lg_u32 s{S_WV}, 0')
    A.br(f's_cbranch_scc1 {l}')
    for w_ in range(1, 4):
        for j in range(2):
            A.I(f'ds_read_b128 {v(B + 8 * w_ + 4 * j, 4)}, v{t0} offset:{2048 * w_ + 1024 * j}')
    A.I('s_waitcnt lgkmcnt(0)')
    for w_ in range(1, 4):
        for i in range(8):
            A.I(f'v_add_f32 v{Z + i}, v{Z + i}, v{B + 8 * w_ + i}')
    T.round_bf16(A, Z, Pk)
    for i in range(4):
        A.I(f'v_lshlrev_b32 v{t0}, 16, v{XR + i}')
        A.I(f'v_and_b32 v{t1}, 0xffff0000, v{XR + i}')
        A.I(f'v_add_f32 v{Z + 2 * i}, v{Z + 2 * i}, v{t0}')
        A.I(f'v_add_f32 v{Z + 2 * i + 1}, v{Z + 2 * i + 1}, v{t1}')
    T.round_bf16(A, Z, Pk)
    A.I(f's_add_u32 s{S_T0}, s{S_T3}, 0x{WS_H:x}')
    A.I(f'buffer_store_dwordx2 {v(Pk, 2)}, v{va}, {ws}, s{S_T0} offen sc1')
    A.I(f'buffer_store_dwordx2 {v(Pk + 2, 2)}, v{va}, {ws}, s{S_T0} offen offset:32 sc1')
    T.ln_regs(A, Z, t0, t1)
    T.round_bf16(A, Z, XR)
    T.ln_regs(A, Z, t0, t1)
    for i in range(4):
        A.I(f'v_cvt_pk_bf16_f32 v{XR + i}, v{Z + 2 * i}, v{Z + 2 * i + 1}')
    A.I(f's_add_u32 s{S_T0}, s{S_T3}, 0x{WS_HP:x}')
    A.I(f'buffer_store_dwordx2 {v(XR, 2)}, v{va}, {ws}, s{S_T0} offen sc1')
    A.I(f'buffer_store_dwordx2 {v(XR + 2, 2)}, v{va}, {ws}, s{S_T0} offen offset:32 sc1')
    A.I(f's_lshl_b32 s{S_T2}, s{s_seg}, 7')
    A.I(f's_add_u32 s{S_T2}, s{S_T2}, 0x{F_LH:x}')
    A.I(f's_lshl_b32 s{S_T3}, s{s_seg}, 2')
    A.I(f's_add_u32 s{S_T3}, s{S_T3}, 0x{F_GF:x}')
    A.I('s_waitcnt vmcnt(0)')
    garrive(A, S_T2, S_T3, t0, l_exit)
    A.label(l)


if __name__ == '__main__':
    A = Asm()
    nm = NAME + '_kernel'
    mega_kernel(A, nm)
    hd = header([(nm, 256, 256, R.L_TOTAL)])
    if os.environ.get('FINAL'):
        hd = hd.replace(f'@launch kernel={nm} ', '@launch ')
    txt = hd + A.text() + '.section .rodata,"a"\n' + kernel_desc(nm, 512, 256)
    out = os.environ.get('OUT', 'm3.s')
    open(out, 'w').write(txt)
    print(len(txt))
```

```python
from common import *
import os, math, struct
STAMPS = bool(os.environ.get('STAMPS'))
NSTEPS = 63
LDF = os.environ.get('LDF', 'sc1').replace('_', ' ')
STF = os.environ.get('STF', '').replace('_', ' ')
EXF = os.environ.get('EXF', 'sc1')
E = lambda k, d: int(os.environ.get(k, d))
TOUCH_AHEAD = E('TOUCH_AHEAD', 1)
PB_DELAY, PB_GAP, AF_DELAY, AF_GAP = E('PB_DELAY', 0), E('PB_GAP', 0), E('AF_DELAY', 0), E('AF_GAP', 3)
OUT = os.environ.get('OUT', 'rec_test.s')

L_QX = 0
L_KX_ = 2560
L_VM = 5120
L_AF = 7168
L_OX = L_AF
L_KV = 15360
L_WO = 31744
L_HALF = 65792
L_TOTAL = L_WO + 2 * L_HALF

PB_GRP = 8448
PB_SLOT = 0x48000

S_WS, S_W, S_DBG = 4, 8, 12
S_H, S_WV, S_STEP = 32, 33, 34
S_SPIN = 35
S_MBR, S_MBW = 36, 37
S_TAG = 47
S_PB0, S_PB1 = 38, 39
S_PB0H = 40
S_AFO = 41
S_TCH = 42
S_KVN = 44
S_KMO, S_VMO = 45, 46
S_T0, S_T1, S_T2, S_T3 = 48, 49, 50, 51
S_C = 52
S_ONE = 54
S_TS = 56
S_M0, S_M1 = 16, 18
S_W640 = 20
S_KVM0 = 62
S_W11 = 63

AF = 0
ACC = 32
KX = 56
VX = 88
T = 96
V_IDX, V_L16, V_QKW, V_QR, V_KR, V_OW, V_WO0, V_WO1, V_PBW, V_RDR, V_MBW, V_SEL, V_VX, V_SP, V_MX, V_TM = range(112, 128)
S_PZ = 43
LANE = 100

LDS_SLOT = {}
_l0 = [('q', 0, 0), ('q', 1, 0), ('q', 0, 1), ('q', 1, 1), ('k', 0, 0), ('k', 1, 0), ('o', 6, 0), ('o', 7, 0)]
_l1 = [('k', 0, 1), ('k', 1, 1), ('k', 0, 2), ('k', 1, 2), ('k', 0, 3), ('k', 1, 3), ('o', 6, 1), ('o', 7, 1)]
for i, f in enumerate(_l0):
    LDS_SLOT[f] = (0, i)
for i, f in enumerate(_l1):
    LDS_SLOT[f] = (1, i)
HOME = {}
_h = 0
for mat in 'qkv':
    for nb in range(2):
        for t in range(8):
            HOME[(mat, nb, t)] = (256 + _h * 8) if _h < 32 else (128 + (_h - 32) * 8)
            _h += 1
for t2 in range(2):
    vac = [f for f, (hf, sl) in LDS_SLOT.items() if hf == t2 and f[0] != 'o']
    assert len(vac) == 6
    for nbo in range(6):
        HOME[('o', nbo, t2)] = HOME[vac[nbo]]


def lds_frag_read(A, f, b):
    hf, sl = LDS_SLOT[f]
    va = V_WO1 if hf else V_WO0
    A.I(f'ds_read_b128 {v(b, 4)}, v{va} offset:{sl * 2048}')
    A.I(f'ds_read_b128 {v(b + 4, 4)}, v{va} offset:{sl * 2048 + 1024}')


def lane_fields(A, vt, vg, vn):
    A.I(f'v_and_b32 v{vn}, 15, v{vt}')
    A.I(f'v_bfe_u32 v{vg}, v{vt}, 4, 2')


def stage_weights(A, ptr_sgprs, hook=None, hook_issue=None, hook_check=None, hook_sc=None):
    g, n = 2, 3
    lane_fields(A, LANE, g, n)
    VD0, VD1 = 4, 5
    A.I(f'v_lshrrev_b32 v6, 5, v{LANE}')
    A.I(f's_and_b32 s{S_T0}, s{S_WV}, 1')
    A.I(f's_lshl_b32 s{S_T0}, s{S_T0}, 1')
    A.I(f'v_or_b32 v6, s{S_T0}, v6')
    A.I(f'v_lshlrev_b32 v6, 1, v6')
    A.I(f'v_xor_b32 v6, v6, v{n}')
    A.I(f'v_lshlrev_b32 v6, 4, v6')
    A.I(f'v_lshlrev_b32 v7, 13, v{g}')
    A.I(f'v_or_b32 v{VD0}, v6, v7')
    A.I(f'v_xor_b32 v{VD1}, 0x80, v{VD0}')
    A.I(f'v_lshrrev_b32 v6, 2, v{n}')
    A.I(f'v_and_b32 v7, 3, v{n}')
    A.I(f'v_and_b32 v8, 1, v6')
    A.I(f'v_lshrrev_b32 v9, 1, v6')
    A.I(f'v_and_b32 v10, 1, v{g}')
    A.I(f'v_lshrrev_b32 v11, 1, v{g}')
    A.I(f'v_lshlrev_b32 v12, 7, v11')
    A.I(f'v_lshl_add_u32 v12, v10, 1, v12')
    A.I(f'v_lshl_add_u32 v12, v8, 4, v12')
    A.I(f'v_lshl_add_u32 v12, v9, 2, v12')
    A.I(f'v_lshl_add_u32 v13, v9, 1, v10')
    A.I(f'v_lshl_add_u32 v13, v8, 2, v13')
    A.I(f's_lshl_b32 s{S_T0}, s{S_WV}, 1')
    A.I(f'v_xor_b32 v13, s{S_T0}, v13')
    A.I(f'v_lshlrev_b32 v14, 8, v12')
    A.I(f'v_lshl_add_u32 v14, v13, 5, v14')
    A.I(f'v_lshl_add_u32 v14, v7, 3, v14')
    VT = {}
    A.I(f'v_xor_b32 v15, 32, v14')
    r = 64
    for cu in range(4):
        A.I(f's_xor_b32 s{S_T0}, s{S_WV}, {cu}')
        A.I(f's_lshl_b32 s{S_T0}, s{S_T0}, 13')
        for bf in range(2):
            A.I(f's_add_u32 s{S_T1}, s{S_T0}, {L_WO + bf * L_HALF}')
            for nb in range(2):
                VT[(nb, bf, cu)] = r
                A.I(f'v_add_u32 v{r}, s{S_T1}, v{14 + nb}')
                r += 1
    A.I(f'v_lshl_add_u32 v13, v9, 1, v8')
    A.I(f'v_lshl_add_u32 v13, v10, 2, v13')
    A.I(f'v_lshlrev_b32 v14, 13, v13')
    A.I(f'v_lshl_add_u32 v14, v11, 11, v14')
    A.I(f'v_lshl_add_u32 v14, v13, 5, v14')
    A.I(f'v_lshl_add_u32 v14, v7, 3, v14')
    A.I(f's_lshl_b32 s{S_T0}, s{S_WV}, 8')
    A.I(f'v_add_u32 v14, s{S_T0}, v14')
    VTO = {0: 20, 1: 21}
    A.I(f'v_add_u32 v20, {L_WO}, v14')
    A.I(f'v_add_u32 v21, {L_WO + L_HALF}, v14')
    WOT = 32

    def dma(sc):
        buf = L_WO + (sc & 1) * L_HALF
        if sc < 6:
            mat, hh = sc >> 1, sc & 1
            make_srd(A, S_W, ptr_sgprs[mat], 512 * 8192)
            A.I(f's_lshl_b32 s{S_T0}, s{S_WV}, 15')
            A.I(f's_lshl_b32 s{S_T1}, s{S_H}, 8')
            A.I(f's_add_u32 s{S_T0}, s{S_T0}, s{S_T1}')
            A.I(f's_add_u32 s{S_T0}, s{S_T0}, {hh << 21}')
            A.I(f's_lshl_b32 s{S_T1}, s{S_WV}, 10')
            A.I(f's_add_u32 s{S_T1}, s{S_T1}, {buf}')
            for i in range(16):
                A.I(f's_mov_b32 m0, s{S_T1}')
                A.I(f'buffer_load_dwordx4 v{VD1 if i & 1 else VD0}, s[{S_W}:{S_W + 3}], s{S_T0} offen lds')
                if i < 15:
                    A.I(f's_add_u32 s{S_T0}, s{S_T0}, {4 * 32768}')
                    A.I(f's_add_u32 s{S_T1}, s{S_T1}, 4096')
        else:
            t2 = sc & 1
            make_srd(A, S_W, ptr_sgprs[3], 4096 * 1024)
            A.I(f's_and_b32 s{S_T0}, s{S_WV}, 1')
            A.I(f's_lshl_b32 s{S_T0}, s{S_T0}, 13')
            A.I(f's_lshr_b32 s{S_T1}, s{S_WV}, 1')
            A.I(f's_lshl_b32 s{S_T1}, s{S_T1}, 15')
            A.I(f's_add_u32 s{S_T0}, s{S_T0}, s{S_T1}')
            A.I(f's_lshl_b32 s{S_T1}, s{S_H}, 17')
            A.I(f's_add_u32 s{S_T0}, s{S_T0}, s{S_T1}')
            A.I(f's_add_u32 s{S_T0}, s{S_T0}, {t2 << 16}')
            A.I(f's_lshl_b32 s{S_T1}, s{S_WV}, 11')
            A.I(f's_add_u32 s{S_T1}, s{S_T1}, {buf}')
            for f in range(8):
                for x in range(2):
                    row = (f & 1) + 2 * x + 4 * ((f >> 1) & 1) + 16 * (f >> 2)
                    A.I(f's_add_u32 s{S_T2}, s{S_T1}, {(8 * f + x) * 1024 + 32 * f}')
                    A.I(f's_add_u32 s{S_T3}, s{S_T0}, {row * 1024}')
                    A.I(f's_mov_b32 m0, s{S_T2}')
                    A.I(f'buffer_load_dwordx4 v{V_L16}, s[{S_W}:{S_W + 3}], s{S_T3} offen lds')

    dma(0)
    dma(1)
    if hook:
        hook()
    for sc in range(8):
        A.I(f's_waitcnt vmcnt({(22 if (sc == 0 and hook_sc) else 16) if sc < 7 else 0})')
        A.I('s_barrier')
        if hook_sc:
            hook_sc(sc)
        if sc == 7 and hook_check:
            hook_check()
        cnt = 0
        if sc < 6:
            mat, hh = 'qkv'[sc >> 1], sc & 1
            for nb in range(2):
                for t in range(8):
                    for x in range(2):
                        c, nhi = t >> 1, t & 1
                        imm = (8 * nhi + x) * 256
                        if cnt >= 12:
                            A.I('s_waitcnt lgkmcnt(8)')
                            cnt = 8
                        A.I(f'ds_read_b64_tr_b16 {u(HOME[(mat, nb, t)] + 4 * hh + 2 * x, 2)}, v{VT[(nb, sc & 1, c)]} offset:{imm}')
                        cnt += 1
        else:
            for nbo in range(8):
                for hh in range(2):
                    for x in range(2):
                        imm = (x + 4 * hh) * 1024 + 32 * nbo
                        if cnt >= 12:
                            A.I('s_waitcnt lgkmcnt(8)')
                            cnt = 8
                        A.I(f'ds_read_b64_tr_b16 {v(WOT + nbo * 8 + 4 * hh + 2 * x, 2)}, v{VTO[sc & 1]} offset:{imm}')
                        cnt += 1
        A.I('s_waitcnt lgkmcnt(0)')
        A.I('s_barrier')
        if sc + 2 < 8:
            dma(sc + 2)
        if sc in (3, 5) and hook_issue:
            hook_issue(sc)
        if sc >= 6:
            t2 = sc & 1
            va = V_WO1 if t2 else V_WO0
            k = 0
            for f, (hf, sl) in LDS_SLOT.items():
                if hf != t2:
                    continue
                src = (WOT + f[1] * 8) if f[0] == 'o' else HOME[f]
                for hh in range(2):
                    A.I(f'ds_write_b128 v{va}, {u(src + 4 * hh, 4)} offset:{sl * 2048 + hh * 1024}')
                k += 1
                if k & 1 == 0:
                    A.I('s_waitcnt lgkmcnt(4)')
            A.I('s_waitcnt lgkmcnt(0)')
            for nbo in range(6):
                hm = HOME[('o', nbo, t2)]
                for r in range(8):
                    if hm >= 256:
                        A.I(f'v_accvgpr_write_b32 a{hm - 256 + r}, v{WOT + nbo * 8 + r}')
                    else:
                        A.I(f'v_mov_b32 v{hm + r}, v{WOT + nbo * 8 + r}')


def setup_consts(A):
    g, n = 2, 3
    lane_fields(A, LANE, g, n)
    A.I(f's_lshl_b32 s{S_W11}, s{S_WV}, 11')
    A.I(f'v_bfe_u32 v4, v{n}, 1, 1')
    A.I(f'v_mul_u32_u24 v4, 0xaaaa, v4')
    A.I(f'v_add_u32 v{V_IDX}, 0x4444, v4')
    A.I(f'v_lshlrev_b32 v{V_L16}, 4, v{LANE}')
    A.I(f's_mul_i32 s{S_T0}, s{S_WV}, 640')
    A.I(f'v_lshrrev_b32 v4, 2, v{n}')
    A.I(f'v_mul_u32_u24 v4, 160, v4')
    A.I(f'v_lshl_add_u32 v4, v{g}, 4, v4')
    A.I(f'v_and_b32 v5, 3, v{n}')
    A.I(f'v_lshl_add_u32 v4, v5, 2, v4')
    A.I(f'v_add_u32 v{V_QKW}, s{S_T0}, v4')
    A.I(f'v_mul_u32_u24 v6, 160, v{g}')
    A.I(f'v_and_b32 v4, 1, v{n}')
    A.I(f'v_bfe_u32 v5, v{n}, 1, 2')
    A.I(f'v_lshl_add_u32 v4, v4, 2, v5')
    A.I(f'v_lshl_add_u32 v{V_QR}, v4, 4, v6')
    A.I(f'v_and_b32 v4, 1, v{n}')
    A.I(f'v_lshrrev_b32 v5, 2, v{n}')
    A.I(f'v_and_b32 v7, 2, v{n}')
    A.I(f'v_xor_b32 v5, v5, v7')
    A.I(f'v_lshl_add_u32 v4, v4, 2, v5')
    A.I(f'v_lshl_add_u32 v{V_KR}, v4, 4, v6')
    A.I(f'v_add_u32 v{V_KR}, {L_KX_}, v{V_KR}')
    A.I(f's_lshl_b32 s{S_T0}, s{S_WV}, 9')
    A.I(f's_add_u32 s{S_T0}, s{S_T0}, {L_OX}')
    A.I(f'v_lshrrev_b32 v4, 1, v{g}')
    A.I(f'v_lshlrev_b32 v4, 8, v4')
    A.I(f'v_lshrrev_b32 v5, 1, v{n}')
    A.I(f'v_lshl_add_u32 v4, v5, 6, v4')
    A.I(f'v_and_b32 v5, 1, v{g}')
    A.I(f'v_lshl_add_u32 v4, v5, 5, v4')
    A.I(f'v_and_b32 v5, 1, v{n}')
    A.I(f'v_lshl_add_u32 v4, v5, 4, v4')
    A.I(f'v_add_u32 v4, s{S_T0}, v4')
    A.I(f'v_add_u32 v5, {L_QX}, v{V_L16}')
    A.I(f'v_cmp_gt_u32 vcc, 8, v{n}')
    A.I(f'v_cndmask_b32 v{V_OW}, v5, v4, vcc')
    A.I(f's_lshl_b32 s{S_T0}, s{S_WV}, 14')
    A.I(f's_add_u32 s{S_T0}, s{S_T0}, {L_WO}')
    A.I(f'v_add_u32 v{V_WO0}, s{S_T0}, v{V_L16}')
    A.I(f'v_add_u32 v{V_WO1}, {L_HALF}, v{V_WO0}')
    A.I(f'v_add_u32 v{V_VX}, s{S_W11}, v{V_L16}')
    A.I(f'v_lshrrev_b32 v4, 3, v{n}')
    A.I(f'v_lshl_add_u32 v4, v{g}, 1, v4')
    A.I(f'v_mul_u32_u24 v4, {PB_GRP}, v4')
    A.I(f'v_and_b32 v5, 7, v{n}')
    A.I(f'v_lshl_add_u32 v4, v5, 4, v4')
    A.I(f's_mul_i32 s{S_T0}, s{S_WV}, {8 * PB_GRP}')
    A.I(f's_lshl_b32 s{S_T1}, s{S_H}, 8')
    A.I(f's_add_u32 s{S_T0}, s{S_T0}, s{S_T1}')
    A.I(f'v_add_u32 v{V_PBW}, s{S_T0}, v4')
    A.I(f's_mul_i32 s{S_T0}, s{S_H}, {PB_GRP}')
    A.I(f's_add_u32 s{S_PZ}, s{S_T0}, s{S_W11}')
    A.I(f's_lshl_b32 s{S_T1}, s{S_WV}, 7')
    A.I(f's_add_u32 s{S_T0}, s{S_T0}, s{S_T1}')
    A.I(f'v_lshlrev_b32 v4, 8, v{g}')
    A.I(f'v_lshl_add_u32 v4, v{n}, 3, v4')
    A.I(f'v_add_u32 v{V_RDR}, s{S_T0}, v4')
    A.I(f's_and_b32 s{S_T1}, s{S_H}, 1')
    A.I(f's_lshl_b32 s{S_T1}, s{S_T1}, 10')
    A.I(f's_lshl_b32 s{S_T0}, s{S_WV}, 12')
    A.I(f's_add_u32 s{S_T0}, s{S_T0}, s{S_T1}')
    A.I(f's_lshr_b32 s{S_T1}, s{S_H}, 1')
    A.I(f's_lshl_b32 s{S_T1}, s{S_T1}, 6')
    A.I(f's_add_u32 s{S_T0}, s{S_T0}, s{S_T1}')
    A.I(f'v_lshrrev_b32 v4, 3, v{n}')
    A.I(f'v_lshlrev_b32 v4, 5, v4')
    A.I(f'v_and_b32 v5, 1, v{n}')
    A.I(f'v_lshl_add_u32 v4, v5, 11, v4')
    A.I(f'v_bfe_u32 v5, v{n}, 1, 2')
    A.I(f'v_lshl_add_u32 v4, v5, 2, v4')
    A.I(f'v_add_u32 v4, s{S_T0}, v4')
    A.I(f'v_mov_b32 v5, 0x7f000000')
    A.I(f'v_cmp_gt_u32 vcc, 16, v{LANE}')
    A.I(f'v_cndmask_b32 v{V_MBW}, v5, v4, vcc')
    A.I(f'v_mov_b32 v4, 0x3f80')
    A.I(f'v_mov_b32 v5, 0x3f800000')
    A.I(f'v_and_b32 v6, 1, v{n}')
    A.I(f'v_cmp_eq_u32 vcc, 1, v6')
    A.I(f'v_cndmask_b32 v{V_SEL}, v4, v5, vcc')
    A.I(f'v_lshrrev_b32 v6, 1, v{n}')
    A.I(f'v_cmp_eq_u32 s[{S_M0}:{S_M0 + 1}], 0, v6')
    A.I(f'v_cmp_eq_u32 s[{S_M1}:{S_M1 + 1}], 1, v6')
    c = (128 ** -0.5) * math.log2(math.e)
    cb = struct.unpack("<I", struct.pack("<f", c))[0]
    A.I(f's_mov_b32 s{S_C}, 0x{cb:08x}')
    A.I(f's_mov_b32 s{S_C + 1}, 0x{cb:08x}')
    A.I(f's_mov_b32 s{S_ONE}, 0x3f803f80')
    A.I(f's_mov_b32 s{S_ONE + 1}, 0x3f803f80')


def init_exchange(A, s_mem0, st, rb=0, part=None):
    ws = f's[{S_WS}:{S_WS + 3}]'
    R_ = lambda i: i + rb
    if part in (0, None):
        make_srd(A, S_W, s_mem0, 8192)
        n = R_(3)
        A.I(f'v_and_b32 v{n}, 15, v{LANE}')
        A.I(f's_bfe_u32 s{S_T0}, s{S_H}, 0x20001')
        A.I(f's_lshl_b32 s{S_T0}, s{S_T0}, 11')
        A.I(f's_lshr_b32 s{S_T1}, s{S_H}, 3')
        A.I(f's_lshl_b32 s{S_T1}, s{S_T1}, 8')
        A.I(f's_add_u32 s{S_T0}, s{S_T0}, s{S_T1}')
        A.I(f's_and_b32 s{S_T1}, s{S_WV}, 1')
        A.I(f's_lshl_b32 s{S_T1}, s{S_T1}, 7')
        A.I(f's_add_u32 s{S_T0}, s{S_T0}, s{S_T1}')
        A.I(f's_and_b32 s{S_T1}, s{S_H}, 1')
        A.I(f's_lshl_b32 s{S_T1}, s{S_T1}, 4')
        A.I(f's_add_u32 s{S_T0}, s{S_T0}, s{S_T1}')
        A.I(f'v_and_b32 v{R_(12)}, 1, v{n}')
        A.I(f'v_lshlrev_b32 v{R_(12)}, 6, v{R_(12)}')
        A.I(f'v_lshrrev_b32 v{R_(13)}, 1, v{n}')
        A.I(f'v_lshl_add_u32 v{R_(12)}, v{R_(13)}, 1, v{R_(12)}')
        w = f's[{S_W}:{S_W + 3}]'
        for i, off in enumerate((0, 32, 1024, 1056)):
            A.I(f'buffer_load_ushort v{R_(8 + i)}, v{R_(12)}, {w}, s{S_T0} offen offset:{off}')
    if part in (1, None):
        for r in range(4, 8):
            A.I(f'v_mov_b32 v{R_(r)}, -1')
        for r in range(3):
            A.I(f's_add_u32 s{S_T0}, s{S_PZ}, 0x{WS_PB + r * PB_SLOT:x}')
            for c in range(2):
                A.I(f'buffer_store_dwordx4 {v(R_(4), 4)}, v{V_L16}, {ws}, s{S_T0} offen offset:{1024 * c} {st}')
        le = A.newlabel('L_ie')
        A.I(f's_cmp_ge_u32 s{S_WV}, 2')
        A.br(f's_cbranch_scc1 {le}')
        A.I(f's_mov_b32 s{S_T0}, 0x{WS_MB + 8192:x}')
        A.I(f'buffer_store_dword v{R_(4)}, v{V_MBW}, {ws}, s{S_T0} offen {st}')
        A.I(f'buffer_store_dword v{R_(4)}, v{V_MBW}, {ws}, s{S_T0} offen offset:16 {st}')
        A.I(f's_waitcnt vmcnt({40 if part == 1 else 0})')
        A.I(f'v_lshl_or_b32 v{R_(8)}, v{R_(9)}, 16, v{R_(8)}')
        A.I(f'v_lshl_or_b32 v{R_(10)}, v{R_(11)}, 16, v{R_(10)}')
        A.I(f'v_min_u32 v{R_(8)}, -2, v{R_(8)}')
        A.I(f'v_min_u32 v{R_(10)}, -2, v{R_(10)}')
        A.I(f's_mov_b32 s{S_T0}, 0x{WS_MB:x}')
        A.I(f'buffer_store_dword v{R_(8)}, v{V_MBW}, {ws}, s{S_T0} offen {st}')
        A.I(f'buffer_store_dword v{R_(10)}, v{V_MBW}, {ws}, s{S_T0} offen offset:16 {st}')
        A.label(le)
    if part is None:
        A.I('s_waitcnt vmcnt(0)')


HS = [('q', 0, 0), ('q', 1, 0), ('q', 0, 1), ('q', 1, 1), ('k', 0, 0), ('k', 1, 0), ('k', 0, 1), ('k', 1, 1)]
QBUF = dict(zip(HS, [KX, KX + 8, KX + 16, KX + 24, VX, T, T + 8, ACC + 16]))


def zero(A, r0, n):
    for i in range(0, n, 2):
        A.I(f'v_mov_b64 {v(r0 + i, 2)}, 0')


def q_prefetch(A, part=None):
    for i, f in enumerate(HS):
        if part is not None and (i >> 2) != part:
            continue
        lds_frag_read(A, f, QBUF[f])
        if i == 5:
            A.I('s_waitcnt lgkmcnt(8)')


def kv_dma(A):
    ws = f's[{S_WS}:{S_WS + 3}]'
    A.I(f's_mov_b32 m0, s{S_KVM0}')
    A.I(f's_add_u32 s{S_T0}, s{S_KVN}, 0x{WS_VF - WS_KF:x}')
    A.I(f'buffer_load_dwordx4 v{V_L16}, {ws}, s{S_KVN} offen lds')
    A.I(f'buffer_load_dwordx4 v{V_L16}, {ws}, s{S_KVN} offen offset:1024 lds')
    A.I(f's_add_u32 m0, s{S_KVM0}, 8192')
    A.I(f's_add_u32 s{S_KVN}, s{S_KVN}, 0x40000')
    A.I(f'buffer_load_dwordx4 v{V_L16}, {ws}, s{S_T0} offen lds')
    A.I(f'buffer_load_dwordx4 v{V_L16}, {ws}, s{S_T0} offen offset:1024 lds')


S_AV, S_RA, S_KP = 21, 22, 24
F_KMP = WS_FLAG + 0x3000
F_PROG = WS_FLAG


def kv_eval(A, vt, vlane16, s_av):
    p, t, u_ = vt, vt + 1, vt + 2
    A.I(f'v_bfe_u32 v{t}, v{vlane16}, 6, 1')
    A.I(f'v_lshl_add_u32 v{t}, v{p}, 1, v{t}')
    A.I(f'v_bfe_u32 v{u_}, v{vlane16}, 7, 1')
    A.I(f'v_lshl_add_u32 v{t}, v{u_}, 5, v{t}')
    A.I(f'v_cmp_le_u32 vcc, 16, v{p}')
    A.I(f'v_mov_b32 v{u_}, 64')
    A.I(f'v_cndmask_b32 v{t}, v{t}, v{u_}, vcc')
    for k in (8, 4, 2, 1):
        A.I(f'v_min_u32_dpp v{t}, v{t}, v{t} row_ror:{k} row_mask:0xf bank_mask:0xf')
    A.I(f'v_readfirstlane_b32 s{s_av}, v{t}')


def kv_load(A, vt, vlane16, s_base):
    ws = f's[{S_WS}:{S_WS + 3}]'
    A.I(f'v_lshrrev_b32 v{vt + 1}, 2, v{vlane16}')
    A.I(f'v_and_b32 v{vt + 1}, 0x7c, v{vt + 1}')
    A.I(f'buffer_load_dword v{vt}, v{vt + 1}, {ws}, s{s_base} offen sc1')


def kv_wait(A, l_exit, s_need, vt, s_av=S_AV, s_base=S_RA, sleep=0, vlane16=V_L16):
    l = A.newlabel('L_kvw')
    A.label(l)
    kv_load(A, vt, vlane16, s_base)
    A.I(f's_sub_u32 s{S_SPIN}, s{S_SPIN}, 1')
    A.I(f's_cbranch_scc1 {l_exit}')
    A.I('s_waitcnt vmcnt(0)')
    kv_eval(A, vt, vlane16, s_av)
    if sleep:
        ld = A.newlabel('L_kvd')
        A.I(f's_cmp_gt_u32 s{s_av}, s{s_need}')
        A.I(f's_cbranch_scc1 {ld}')
        A.I(f's_sleep {sleep}')
        A.br(f's_branch {l}')
        A.label(ld)
    else:
        A.I(f's_cmp_le_u32 s{s_av}, s{s_need}')
        A.br(f's_cbranch_scc1 {l}')


def main_loop(A, st, l_exit, kvcheck=False):
    ws = f's[{S_WS}:{S_WS + 3}]'
    A.I(f's_mov_b32 s{S_STEP}, 0')
    A.I(f's_mov_b32 s{S_MBR}, 0x{WS_MB:x}')
    A.I(f's_mov_b32 s{S_MBW}, 0x{WS_MB + 8192:x}')
    A.I(f's_mov_b32 s{S_PB0}, 0x{WS_PB:x}')
    A.I(f's_mov_b32 s{S_PB1}, 0x{WS_PB + PB_SLOT:x}')
    A.I(f's_lshl_b32 s{S_KMO}, s{S_H}, 12')
    A.I(f's_lshl_b32 s{S_T0}, s{S_WV}, 10')
    A.I(f's_add_u32 s{S_KMO}, s{S_KMO}, s{S_T0}')
    A.I(f's_add_u32 s{S_KMO}, s{S_KMO}, 0x{WS_KM - 0x20000:x}')
    A.I(f's_mul_i32 s{S_W640}, s{S_WV}, 640')
    A.I(f's_lshl_b32 s{S_VMO}, s{S_H}, 11')
    A.I(f's_lshl_b32 s{S_T0}, s{S_WV}, 9')
    A.I(f's_add_u32 s{S_VMO}, s{S_VMO}, s{S_T0}')
    A.I(f's_add_u32 s{S_VMO}, s{S_VMO}, 0x{WS_VM - 0x10000:x}')
    A.I(f's_lshr_b32 s{S_T0}, s{S_WV}, 1')
    A.I(f's_mul_i32 s{S_TCH}, s{S_T0}, 0x{WS_VF - WS_KF:x}')
    A.I(f's_and_b32 s{S_T0}, s{S_WV}, 1')
    A.I(f's_lshl_b32 s{S_T0}, s{S_T0}, 12')
    A.I(f's_add_u32 s{S_TCH}, s{S_TCH}, s{S_T0}')
    A.I(f's_lshl_b32 s{S_T0}, s{S_H}, 13')
    A.I(f's_add_u32 s{S_TCH}, s{S_TCH}, s{S_T0}')
    A.I(f's_add_u32 s{S_TCH}, s{S_TCH}, 0x{WS_KF + TOUCH_AHEAD * 0x40000:x}')

    NST = 12
    order = []

    def stamp(i):
        if not STAMPS:
            return
        order.append(i)
        A.raw(f'    s_memtime s[{64 + 2 * i}:{65 + 2 * i}]')
        A.pos += 1

    def stamp_acc():
        if not STAMPS:
            return
        A.I('s_waitcnt lgkmcnt(0)')
        if E('RAW', 0):
            lk = A.newlabel('L_raw')
            A.I(f's_cmp_lg_u32 s{S_STEP}, {E("RAW", 0)}')
            A.I(f's_cbranch_scc1 {lk}')
            for i in range(NST):
                if i != 6:
                    A.I(f's_mov_b32 s{88 + i}, s{64 + 2 * i}')
            A.label(lk)
            lk = A.newlabel('L_raw')
            A.I(f's_cmp_lg_u32 s{S_STEP}, {E("RAW", 0) - 1}')
            A.I(f's_cbranch_scc1 {lk}')
            A.I(f's_mov_b32 s{88 + 6}, s{64 + 12}')
            A.label(lk)
            return
        prev = 100
        for i in order:
            A.I(f's_sub_u32 s101, s{64 + 2 * i}, s{prev}')
            A.I(f's_add_u32 s{88 + i}, s{88 + i}, s101')
            prev = 64 + 2 * i
        A.I(f's_mov_b32 s100, s{prev}')
    if STAMPS:
        for i in range(NST):
            A.I(f's_mov_b32 s{88 + i}, 0')
        A.I(f's_memtime s[64:65]')
        A.I('s_waitcnt lgkmcnt(0)')
        for i in range(NST):
            A.I(f's_mov_b32 s{64 + 2 * i}, s64')
        A.I(f's_mov_b32 s100, s64')

    L_top = A.newlabel('L_rec')
    L_af = A.newlabel('L_afpoll')
    L_red = A.newlabel('L_red')
    L_bh = A.newlabel('L_bh')
    L_w23 = A.newlabel('L_w23')
    L_fin = A.newlabel('L_fin')
    HS_ = E('HSTAMP', 0)
    _stamp = stamp
    if HS_:
        order.extend([2, 3, 7, 9, 10])

    def hstamp(i):
        if STAMPS and HS_:
            A.raw(f'    s_memtime s[{64 + 2 * i}:{65 + 2 * i}]')
            A.pos += 1

    def stamp(i):
        if HS_ and i in (2, 3, 9, 10):
            return
        if HS_ and i == 7:
            return hstamp(7)
        _stamp(i)

    L_pslow = A.newlabel('L_pslow')
    L_aslow = A.newlabel('L_aslow')
    L_afok = A.newlabel('L_afok')
    L_afchk = A.newlabel('L_afchk')
    RA, RB, SEL, RD = 0, 16, ACC + 8, ACC + 12
    mx, tm = V_MX, V_TM
    TWO_PB, TWO_AF = E('TWO_PB', 1), E('TWO_AF', 1)

    def addr3():
        A.I(f'v_xor_b32 v{V_MX}, 2048, v{V_VX}')
        A.I(f'v_xor_b32 v{V_TM}, 4096, v{V_VX}')
        A.I(f'v_xor_b32 v{V_SP}, 6144, v{V_VX}')

    A.I(f's_mov_b32 s{S_TAG}, 0')
    zero(A, ACC, 8)
    q_prefetch(A)
    A.br(f's_branch {L_af}')

    def pb_loads(b):
        for i in range(8):
            so = S_PB0 if i < 4 else S_PB0H
            A.I(f'buffer_load_dwordx2 {v(b + 2 * i, 2)}, v{V_RDR}, {ws}, s{so} offen offset:{(i & 3) * 1024} {LDF}')

    def red(b, base):
        for i in range(4):
            A.I(f's_waitcnt vmcnt({base + 6 - 2 * i})')
            c = '0' if i == 0 else v(RD, 4)
            A.I(f'v_mfma_f32_16x16x32_bf16 {v(RD, 4)}, {v(SEL, 4)}, {v(b + 4 * i, 4)}, {c}')
            r = b + 4 * i
            tt = 0
            for idx in range(8):
                a_, b_, s_ = (idx >> 2) & 1, (idx >> 1) & 1, idx & 1
                if (a_ ^ s_) | (b_ ^ s_):
                    tt |= 1 << idx
            d = mx if i == 0 else tm
            A.I(f'v_bitop3_b32 v{d}, v{r}, v{r + 2}, s{S_TAG} bitop3:0x{tt:x}')
            if i:
                A.I(f'v_or_b32 v{mx}, v{mx}, v{tm}')
        A.I(f'v_and_b32 v{mx}, 1, v{mx}')
        A.I(f'v_cmp_eq_u32 vcc, 1, v{mx}')

    def af_loads(b):
        for i in range(2):
            A.I(f'buffer_load_dwordx4 {v(b + 4 * i, 4)}, v{V_L16}, {ws}, s{S_AFO} offen offset:{i * 1024} {LDF}')

    def af_chk(b, tmp):
        A.I(f'ds_write_b128 v{V_VX}, {v(b, 4)} offset:{L_AF}')
        A.I(f'v_max3_u32 v{tmp}, v{b}, v{b + 1}, v{b + 2}')
        A.I(f'v_max3_u32 v{tmp}, v{tmp}, v{b + 3}, v{b + 4}')
        A.I(f'ds_write_b128 v{V_VX}, {v(b + 4, 4)} offset:{L_AF + 1024}')
        A.I(f'v_max3_u32 v{tmp}, v{tmp}, v{b + 5}, v{b + 6}')
        A.I(f'v_max_u32 v{tmp}, v{tmp}, v{b + 7}')
        A.I(f'v_cmp_eq_u32 vcc, -1, v{tmp}')

    A.raw('.p2align 6')
    A.label(L_top)
    A.forget_loads()
    A.check = False
    red(RA, 8 if TWO_PB else 0)
    hstamp(3)
    A.I(f's_cbranch_vccnz {L_pslow}')
    A.label(L_red, flush=False)
    A.I(f'v_mov_b32 v{tm}, -1')
    A.I('s_nop 2')
    A.I(f'v_cvt_pk_bf16_f32 v{RD}, v{RD}, v{RD + 1}')
    A.I(f'v_cvt_pk_bf16_f32 v{RD + 2}, v{RD + 2}, v{RD + 3}')
    A.I(f'buffer_store_dword v{RD}, v{V_MBW}, {ws}, s{S_MBW} offen {st}')
    A.I(f'buffer_store_dword v{RD + 2}, v{V_MBW}, {ws}, s{S_MBW} offen offset:16 {st}')
    A.I(f'buffer_store_dword v{tm}, v{V_MBW}, {ws}, s{S_MBR} offen {st}')
    A.I(f'buffer_store_dword v{tm}, v{V_MBW}, {ws}, s{S_MBR} offen offset:16 {st}')
    if E('AFW', 0):
        A.I('s_waitcnt vmcnt(2)')
    A.label(L_bh, flush=False)
    stamp(7)
    A.I('s_barrier')
    A.I(f's_mov_b32 s{S_T0}, s{S_MBR}')
    A.I(f's_mov_b32 s{S_MBR}, s{S_MBW}')
    A.I(f's_mov_b32 s{S_MBW}, s{S_T0}')
    A.I(f's_mov_b32 s{S_T0}, s{S_PB0}')
    A.I(f's_mov_b32 s{S_PB0}, s{S_PB1}')
    A.I(f's_mov_b32 s{S_PB1}, s{S_T0}')
    A.I(f's_add_u32 s{S_STEP}, s{S_STEP}, 1')
    A.I(f's_bfe_u32 s{S_TAG}, s{S_STEP}, 0x10001')
    A.label(L_af, flush=False)
    A.I(f's_add_u32 s{S_AFO}, s{S_MBR}, s{S_W11}')
    zero(A, ACC + 8, 8)
    addr3()
    for i in range(AF_DELAY):
        A.I('s_nop 7')
    ASETS = [0, 24, 16]
    af_loads(0)
    hstamp(9)
    for b in ASETS[1:]:
        for i in range(AF_GAP):
            A.I('s_nop 7')
        af_loads(b)

    def mf(mat, nb, t, src=None):
        acc = ACC + ('qkv'.index(mat) * 2 + nb) * 4
        if src is None:
            src = QBUF.get((mat, nb, t))
        b = v(src, 8) if src is not None else u(HOME[(mat, nb, t)], 8)
        A.I(f'v_smfmac_f32_16x16x64_bf16 {v(acc, 4)}, {v(AF + 4 * t, 4)}, {b}, v{V_IDX}')

    A.label(L_afchk, flush=False)
    A.I(f's_waitcnt vmcnt(4) lgkmcnt(0)')
    A.label(L_afok, flush=False)
    hstamp(10)
    tmp = 8
    A.I(f'ds_write_b128 v{V_VX}, {v(0, 4)} offset:{L_AF}')
    A.I(f'ds_write_b128 v{V_VX}, {v(4, 4)} offset:{L_AF + 1024}')
    mf('q', 0, 0)
    A.I(f'v_max3_u32 v{tmp}, v0, v1, v2')
    A.I(f'v_max3_u32 v{tmp}, v{tmp}, v3, v4')
    mf('q', 1, 0)
    A.I(f'v_max3_u32 v{tmp}, v{tmp}, v5, v6')
    A.I(f'v_max_u32 v{tmp}, v{tmp}, v7')
    A.I(f'v_cmp_eq_u32 vcc, -1, v{tmp}')
    A.I(f's_cbranch_vccnz {L_aslow}')
    stamp(8)
    A.check = True
    A.forget_loads()
    A.I('s_waitcnt lgkmcnt(0)')
    A.I('s_barrier')
    stamp(0)
    pend = []
    ar = {1: V_MX, 2: V_TM, 3: V_SP}
    hs = [('q', 0, 1), ('q', 1, 1), ('k', 0, 0), ('k', 1, 0), ('k', 0, 1), ('k', 1, 1)]

    def afr(uu):
        A.I(f'ds_read_b128 {v(AF + 4 * uu, 4)}, v{ar[uu >> 1]} offset:{L_AF + 1024 * (uu & 1)}')
        pend.append(('af', uu))
    afr(2); afr(3)
    mf(*hs[0])
    A.I(f'v_lshlrev_b32 v{V_MX}, 2, v{V_L16}')
    mf(*hs[1])
    mf(*hs[2])
    mf(*hs[3])
    KBUF = {}

    def kload(nb, t, b):
        KBUF[(nb, t)] = b
        lds_frag_read(A, ('k', nb, t), b)
        pend.extend([('k', t), ('k', t)])

    kload(0, 2, QBUF[('q', 0, 0)])
    mf(*hs[4])
    kload(1, 2, QBUF[('q', 1, 0)])
    mf(*hs[5])
    A.I('s_waitcnt vmcnt(0)')
    for uu in range(4, 8):
        afr(uu)
    A.I(f'v_lshrrev_b32 v{V_TM}, 2, v{V_L16}')
    if kvcheck:
        L_kvc, L_kvr = A.newlabel('L_kvc'), A.newlabel('L_kvr')
        A.I(f's_add_u32 s23, s{S_STEP}, 1')
        A.I(f's_cmp_ge_u32 s23, s{S_AV}')
        A.I(f's_cbranch_scc1 {L_kvc}')
        A.label(L_kvr, flush=False)
    if not E('NODMA', 0):
        A.I(f'buffer_load_dword v{V_SP}, v{V_MX}, {ws}, s{S_TCH} offen')
    if kvcheck:
        A.check = False
        A.I(f'buffer_load_dword v{V_SP}, v{V_TM}, {ws}, s{S_RA} offen sc1')
        A.check = True

    def wait_for(name):
        if name not in pend:
            return
        idx = max(i for i, p in enumerate(pend) if p == name)
        n = len(pend) - 1 - idx
        A.I(f's_waitcnt lgkmcnt({n})')
        del pend[:idx + 1]

    EXP, EXV = ACC + 16, ACC + 20
    for t in range(2, 8):
        wait_for(('af', t))
        mf('q', 0, t)
        if t == 2:
            kload(0, 3, QBUF[('q', 0, 1)])
        if t == 3:
            kload(1, 3, QBUF[('q', 1, 1)])
        if t == 4:
            A.I(f'v_add_u32 v{EXP}, s{S_W640}, v{V_KR}')
        if t == 5:
            A.I(f'v_lshrrev_b32 v{EXV}, 2, v{V_VX}')
        if t == 6:
            A.I(f'ds_read_b64 {v(EXV, 2)}, v{EXV} offset:{L_VM}')
            pend.append(('ex', 1))
        mf('q', 1, t)
        if t == 4:
            A.I(f'ds_read_b128 {v(EXP, 4)}, v{EXP}')
            pend.append(('ex', 0))
        if t == 5:
            A.I(f'v_lshl_add_u32 v{EXV}, v{V_MX}, 0, v{EXV}' if False else f'v_add_u32 v{EXV}, v{EXV}, v{V_TM}')
        if t >= 6:
            A.I(f'ds_read_b128 {v(VX + 4 * (t - 6), 4)}, v{V_VX} offset:{L_KV + 8192 + 1024 * (t - 6)}')
            pend.append(('vx', t))
    stamp(1)
    q0, q1, k0, k1 = ACC, ACC + 4, ACC + 8, ACC + 12
    QF = T

    def kmf(t, nb):
        mf('k', nb, t, KBUF.get((nb, t)))

    def pack(b0, b1):
        return [f'v_add_f32 v{b0}, v{b0}, v{b0 + 2}',
                f'v_add_f32 v{b0 + 1}, v{b0 + 1}, v{b0 + 3}',
                f'v_add_f32 v{b1}, v{b1}, v{b1 + 2}',
                f'v_add_f32 v{b1 + 1}, v{b1 + 1}, v{b1 + 3}',
                f'v_cvt_pk_bf16_f32 v{b0}, v{b0}, v{b1}',
                f'v_cvt_pk_bf16_f32 v{b0 + 1}, v{b0 + 1}, v{b1 + 1}']

    wait_for(('k', 2))
    kmf(2, 0)
    A.I(f's_add_u32 s{S_TCH}, s{S_TCH}, 0x40000')
    A.I(f'v_lshrrev_b32 v{V_TM}, 1, v{V_L16}')
    kmf(2, 1)
    wait_for(('ex', 1))
    if not E('NOEXP', 0):
        A.I(f'buffer_store_dwordx4 {v(EXP, 4)}, v{V_L16}, {ws}, s{S_KMO} offen {EXF}')
    kmf(3, 0)
    if not E('NOEXP', 0):
        A.I(f'buffer_store_dwordx2 {v(EXV, 2)}, v{V_TM}, {ws}, s{S_VMO} offen {EXF}')
    A.I(f's_add_u32 s{S_KMO}, s{S_KMO}, 0x20000')
    A.I(f's_add_u32 s{S_VMO}, s{S_VMO}, 0x10000')
    kmf(3, 1)
    if kvcheck:
        A.I(f'v_mov_b32 v{V_TM}, s{S_STEP}')
        A.I('s_mov_b64 exec, 1')
        A.I(f'buffer_store_dword v{V_TM}, off, {ws}, s{S_KP} sc1')
        A.I('s_mov_b64 exec, -1')
    kxr = [f'ds_read_b128 {v(KX + 4 * f, 4)}, v{V_L16} offset:{L_KV + 1024 * f}' for f in range(8)]
    pq = pack(q0, q1) + [f'ds_write2_b32 v{V_QKW}, v{q0}, v{q0 + 1} offset0:0 offset1:16']
    fl = []
    for i in range(8):
        fl.append([kxr[i]] + ([pq[i]] if i < 7 else []) + ([f'v_mov_b64 {v(ACC + 16 + (i - 4) * 2, 2)}, 0'] if i >= 4 else []))
    for i, (t, nb) in enumerate([(t, nb) for t in range(4, 8) for nb in range(2)]):
        for x in fl[i]:
            A.I(x)
        kmf(t, nb)
    stamp(2)
    pk = pack(k0, k1)
    mf('v', 0, 0)
    mf('v', 1, 0)
    A.I('s_nop 4')
    A.I(pk[0]); A.I(pk[1]); A.I(pk[2])
    mf('v', 0, 1)
    A.I(pk[3]); A.I(pk[4]); A.I(pk[5])
    A.I(f'ds_write_b32 v{V_QKW}, v{k0} offset:{L_KX_}')
    A.I(f'ds_write_b32 v{V_QKW}, v{k0 + 1} offset:{L_KX_ + 64}')
    mf('v', 1, 1)
    mf('v', 0, 2)
    mf('v', 1, 2)
    mf('v', 0, 3)
    A.I('s_waitcnt lgkmcnt(0)')
    A.I('s_barrier')
    stamp(3)
    KMF, ONES = 0, 20
    for ks in range(4):
        A.I(f'ds_read_b128 {v(QF + 4 * ks, 4)}, v{V_QR} offset:{640 * ks}')
        if ks == 1:
            mf('v', 1, 3)
    mf('v', 0, 4)
    for ks in range(4):
        A.I(f'ds_read_b128 {v(KMF + 4 * ks, 4)}, v{V_KR} offset:{640 * ks}')
        if ks == 1:
            mf('v', 1, 4)
    dm = []
    if not E('NODMA', 0):
        dm = [f's_mov_b32 m0, s{S_KVM0}\ns_add_u32 s{S_T0}, s{S_KVN}, 0x{WS_VF - WS_KF:x}\nbuffer_load_dwordx4 v{V_L16}, {ws}, s{S_KVN} offen lds',
              f'buffer_load_dwordx4 v{V_L16}, {ws}, s{S_KVN} offen offset:1024 lds\ns_add_u32 m0, s{S_KVM0}, 8192\ns_add_u32 s{S_KVN}, s{S_KVN}, 0x40000',
              f'buffer_load_dwordx4 v{V_L16}, {ws}, s{S_T0} offen lds',
              f'buffer_load_dwordx4 v{V_L16}, {ws}, s{S_T0} offen offset:1024 lds']
    else:
        dm = ['s_nop 0'] * 4
    mf('v', 0, 5)
    mf('v', 1, 5)
    mf('v', 0, 6)
    mf('v', 1, 6)
    X0, X1, M, P = q0, q1, k0, k1
    O0, O1, Lr, PMA, PMB = KX + 16, KX + 20, KX + 24, KX + 28, KX + 30

    def sx(i):
        ks, kb = i >> 1, i & 1
        X = X1 if kb else X0
        c = '0' if ks == 0 else v(X, 4)
        A.I(f'v_mfma_f32_16x16x32_bf16 {v(X, 4)}, {v(KX + 16 * kb + 4 * ks, 4)}, {v(QF + 4 * ks, 4)}, {c}')

    for ks in range(4):
        A.I(f's_waitcnt lgkmcnt({7 - ks})')
        sx(2 * ks)
        if ks == 2:
            A.I(f'v_mov_b64 {v(ONES, 2)}, s[{S_ONE}:{S_ONE + 1}]')
        if ks == 3:
            A.I(f'v_mov_b64 {v(ONES + 2, 2)}, s[{S_ONE}:{S_ONE + 1}]')
        sx(2 * ks + 1)
    stamp(9)
    A.I('s_waitcnt lgkmcnt(0)')
    for ks in range(4):
        cm = '0' if ks == 0 else v(M, 4)
        A.I(f'v_mfma_f32_16x16x32_bf16 {v(M, 4)}, {v(KMF + 4 * ks, 4)}, {v(QF + 4 * ks, 4)}, {cm}')
        if ks == 0:
            A.I(f'v_mov_b32 v{PMA + 1}, 0')
            A.I(f'v_mov_b32 v{PMB}, 0')
        if ks == 1:
            A.I('s_nop 1')
            A.I(f'v_max3_f32 v{mx}, v{X0}, v{X0 + 1}, v{X0 + 2}')
            A.I(f'v_max3_f32 v{tm}, v{X1}, v{X1 + 1}, v{X1 + 2}')
        if ks == 2:
            A.I(f'v_max3_f32 v{mx}, v{mx}, v{X0 + 3}, v{X1 + 3}')
            A.I(f'v_max_f32 v{mx}, v{mx}, v{tm}')
        if ks == 3:
            A.I(f'v_mov_b32 v{tm}, v{mx}')
    mf('v', 0, 7)
    A.I('s_nop 0')
    A.I(f'v_permlane32_swap_b32 v{mx}, v{tm}')
    mf('v', 1, 7)
    A.I(f'v_max_f32 v{mx}, v{mx}, v{tm}')
    A.I('s_nop 1')
    A.I(f'v_max3_f32 v{tm}, v{M}, v{M + 1}, v{M + 2}')
    A.I(f'v_max3_f32 v{mx}, v{tm}, v{M + 3}, v{mx}')
    A.I(f'v_mov_b32 v{tm}, v{mx}')
    sets = [X1, KX, O0, T]
    A.I(f'v_mov_b64 {v(sets[1], 2)}, 0')
    A.I(f'v_mov_b64 {v(sets[1] + 2, 2)}, 0')
    A.I(f'v_permlane16_swap_b32 v{mx}, v{tm}')
    A.I(f'v_max_f32 v{mx}, v{mx}, v{tm}')
    A.I(f'v_mul_f32_e64 v{mx}, -s{S_C}, v{mx}')

    def pkfma(r):
        A.I(f'v_pk_fma_f32 {v(r, 2)}, {v(r, 2)}, s[{S_C}:{S_C + 1}], {v(mx, 2)} op_sel:[0,0,0] op_sel_hi:[1,1,0]')

    va, vb = ACC + 16, ACC + 20
    VMP = va + 2
    for r in (M, X0, X0 + 2, X1, X1 + 2):
        pkfma(r)
    A.I(f'v_exp_f32 v{M}, v{M}')
    A.I(f'v_exp_f32 v{M + 1}, v{M + 1}')
    A.I(f'v_pk_add_f32 {v(va, 2)}, {v(va, 2)}, {v(va + 2, 2)}')
    A.I(f'v_pk_add_f32 {v(vb, 2)}, {v(vb, 2)}, {v(vb + 2, 2)}')
    A.I(f'v_cvt_pk_bf16_f32 v{PMA}, v{M}, v{M + 1}')
    A.I(f'v_cvt_pk_bf16_f32 v{PMB + 1}, v{M}, v{M + 1}')
    A.I(f'v_cvt_pk_bf16_f32 v{VMP}, v{va}, v{va + 1}')
    A.I(f'v_cvt_pk_bf16_f32 v{VMP + 1}, v{vb}, v{vb + 1}')
    A.I(f'v_exp_f32 v{X0}, v{X0}')
    stamp(10)
    A.I(f'v_mfma_f32_16x16x16_bf16 {v(Lr, 4)}, {v(ONES, 2)}, {v(PMA, 2)}, 0')
    A.I(f'v_exp_f32 v{X0 + 1}, v{X0 + 1}')
    A.I(f'v_mfma_f32_16x16x16_bf16 {v(O0, 4)}, {v(VMP, 2)}, {v(PMA, 2)}, 0')
    A.I(f'v_exp_f32 v{X0 + 2}, v{X0 + 2}')
    A.I(f'v_mfma_f32_16x16x16_bf16 {v(O1, 4)}, {v(VMP, 2)}, {v(PMB, 2)}, 0')
    A.I(f'v_exp_f32 v{X0 + 3}, v{X0 + 3}')
    A.I(f'v_cvt_pk_bf16_f32 v{P}, v{X0}, v{X0 + 1}')
    A.I(f'v_exp_f32 v{X1}, v{X1}')
    A.I(f'v_exp_f32 v{X1 + 1}, v{X1 + 1}')
    A.I(f'v_cvt_pk_bf16_f32 v{P + 1}, v{X0 + 2}, v{X0 + 3}')
    A.I(f'v_exp_f32 v{X1 + 2}, v{X1 + 2}')
    A.I(f'v_exp_f32 v{X1 + 3}, v{X1 + 3}')
    A.I(f'v_cvt_pk_bf16_f32 v{P + 2}, v{X1}, v{X1 + 1}')
    A.I(f'v_cvt_pk_bf16_f32 v{P + 3}, v{X1 + 2}, v{X1 + 3}')
    A.I(f'v_lshrrev_b32 v{tm}, 2, v{V_VX}')
    A.I(f'v_mov_b64 {v(sets[0], 2)}, 0')
    A.I(f'v_mfma_f32_16x16x32_bf16 {v(Lr, 4)}, {v(ONES, 4)}, {v(P, 4)}, {v(Lr, 4)}')
    A.I(f'v_mov_b64 {v(sets[0] + 2, 2)}, 0')
    A.I(f'v_mov_b64 {v(sets[0] + 4, 2)}, 0')
    A.I(f'v_mfma_f32_16x16x32_bf16 {v(O0, 4)}, {v(VX, 4)}, {v(P, 4)}, {v(O0, 4)}')
    A.I(f'v_mov_b64 {v(sets[0] + 6, 2)}, 0')
    A.I(f'v_mov_b64 {v(sets[1] + 4, 2)}, 0')
    A.I(f'v_mfma_f32_16x16x32_bf16 {v(O1, 4)}, {v(VX + 4, 4)}, {v(P, 4)}, {v(O1, 4)}')
    A.I(f'v_mov_b64 {v(sets[1] + 6, 2)}, 0')
    A.I(f'v_mov_b64 {v(sets[3], 2)}, 0')
    A.I(f'v_rcp_f32 v{mx}, v{Lr}')
    A.I(f'v_mov_b64 {v(sets[3] + 2, 2)}, 0')
    A.I(f'v_mov_b64 {v(sets[3] + 4, 2)}, 0')
    OW = X0

    def pkmul(r):
        A.I(f'v_pk_mul_f32 {v(r, 2)}, {v(r, 2)}, {v(mx, 2)} op_sel:[0,0] op_sel_hi:[1,0]')

    pkmul(O0)
    pkmul(O0 + 2)
    A.I(f'v_cvt_pk_bf16_f32 v{OW}, v{O0}, v{O0 + 1}')
    A.I(f'v_cvt_pk_bf16_f32 v{OW + 1}, v{O0 + 2}, v{O0 + 3}')
    pkmul(O1)
    pkmul(O1 + 2)
    A.I(f'v_cvt_pk_bf16_f32 v{OW + 2}, v{O1}, v{O1 + 1}')
    A.I(f'v_cvt_pk_bf16_f32 v{OW + 3}, v{O1 + 2}, v{O1 + 3}')
    A.I(f'ds_write_b128 v{V_OW}, {v(OW, 4)}')
    stamp(4)
    A.I(f'v_lshrrev_b32 v{mx}, 2, v{V_L16}')
    A.I(f'v_add_u32 v{tm}, v{tm}, v{mx}')
    A.I(f'ds_write_b64 v{tm}, {v(VMP, 2)} offset:{L_VM}')
    zero(A, sets[2], 8)
    A.I(f'v_mov_b64 {v(sets[3] + 6, 2)}, 0')
    A.I('s_waitcnt lgkmcnt(1)')
    A.I('s_barrier')
    OF = VX
    A.I(f'ds_read_b128 {v(OF, 4)}, v{V_L16} offset:{L_OX}')
    A.I(f'ds_read_b128 {v(OF + 4, 4)}, v{V_L16} offset:{L_OX + 1024}')
    A.I(f's_cmp_eq_u32 s{S_STEP}, {NSTEPS}')
    A.I(f's_cbranch_scc1 {L_fin}')
    OBUF = {(6, 0): 0, (7, 0): 8, (6, 1): 24, (7, 1): KX + 8}
    A.I(f's_add_u32 s{S_PB0H}, s{S_PB0}, 4096')
    A.I('s_waitcnt lgkmcnt(1)')
    stamp(5)

    def post(c):
        a0, b0 = sets[c], sets[c] + 4
        o = (OW if c < 2 else P) + 2 * (c & 1)
        if c == 3:
            l = [f'v_pk_add_f32 {v(a0, 2)}, {v(a0, 2)}, {v(a0 + 2, 2)}',
                 f'v_pk_add_f32 {v(b0, 2)}, {v(b0, 2)}, {v(b0 + 2, 2)}']
        else:
            l = [f'v_add_f32 v{a0}, v{a0}, v{a0 + 2}', f'v_add_f32 v{a0 + 1}, v{a0 + 1}, v{a0 + 3}',
                 f'v_add_f32 v{b0}, v{b0}, v{b0 + 2}', f'v_add_f32 v{b0 + 1}, v{b0 + 1}, v{b0 + 3}']
        l += [f'v_cvt_pk_bf16_f32 v{o}, v{a0}, v{b0}',
              f'v_cvt_pk_bf16_f32 v{o + 1}, v{a0 + 1}, v{b0 + 1}',
              f'v_bfi_b32 v{o}, 1, s{S_TAG}, v{o}']
        if c & 1:
            l.append(f'buffer_store_dwordx4 {v(o - 2, 4)}, v{V_PBW}, {ws}, s{S_PB0} offen offset:{128 * (c >> 1)} {st}')
        return l

    def womf(c, t2, bb):
        nbo = 2 * c + bb
        b = v(OBUF[(nbo, t2)], 8) if (nbo, t2) in OBUF else u(HOME[('o', nbo, t2)], 8)
        A.I(f'v_smfmac_f32_16x16x64_bf16 {v(sets[c] + 4 * bb, 4)}, {v(OF + 4 * t2, 4)}, {b}, v{V_IDX}')

    obr = []
    for f, b in OBUF.items():
        hf, sl = LDS_SLOT[('o',) + f]
        va_ = V_WO1 if hf else V_WO0
        obr.append(f'ds_read_b128 {v(b, 4)}, v{va_} offset:{sl * 2048}')
        obr.append(f'ds_read_b128 {v(b + 4, 4)}, v{va_} offset:{sl * 2048 + 1024}')
    seq = [(c, t2, bb) for c in range(4) for t2 in range(2) for bb in range(2)]
    fill = {i: [] for i in range(16)}
    for i in range(8):
        fill[2 + i // 2 if i < 6 else 5].append(obr[i])
    DM0 = E('DM0', 0)
    for i in range(4):
        fill[DM0 + i].append(dm[i])
    p0, p1, p2 = post(0), post(1), post(2)
    for k, x in enumerate(p0):
        fill[6 + k // 2].append(x)
    for k, x in enumerate(p1):
        fill[10 + k // 2].append(x)
    for k, x in enumerate(p2):
        fill[14 + min(k // 2, 1)].append(x)
    for i, (c, t2, bb) in enumerate(seq):
        if i == 2:
            A.I('s_waitcnt lgkmcnt(0)')
        if i == 12:
            A.I('s_waitcnt lgkmcnt(0)')
        womf(c, t2, bb)
        for x in fill[i]:
            A.I(x)
    A.I(f's_cmp_ge_u32 s{S_WV}, 2')
    for x in post(3):
        A.I(x)
    stamp(6)
    stamp_acc()
    if STAMPS:
        A.I(f's_cmp_ge_u32 s{S_WV}, 2')
    if kvcheck:
        lke = A.newlabel('L_ke')
        A.I(f's_cmp_ge_u32 s{S_AV}, 64')
        A.I(f's_cbranch_scc1 {lke}')
        A.I('s_waitcnt vmcnt(9)')
        A.I(f'v_mov_b32 v{T + 8}, v{V_SP}')
        kv_eval(A, T + 8, V_L16, S_AV)
        A.I(f's_cmp_lt_u32 s{S_AV}, 64')
        A.I(f's_cselect_b32 s{S_RA}, s{S_RA}, 0x7f000000')
        lk2 = A.newlabel('L_ke2')
        A.br(f's_branch {lk2}')
        A.label(lke)
        for i in range(3):
            A.I('s_nop 7')
        A.label(lk2)
        A.I(f's_cmp_ge_u32 s{S_WV}, 2')
    zero(A, ACC, 8)
    A.I(f's_cbranch_scc1 {L_w23}')
    A.I(f'v_cndmask_b32 v{SEL}, 0, v{V_SEL}, s[{S_M0}:{S_M0 + 1}]')
    A.I(f'v_cndmask_b32 v{SEL + 1}, 0, v{V_SEL}, s[{S_M1}:{S_M1 + 1}]')
    A.I(f'v_mov_b64 {v(SEL + 2, 2)}, {v(SEL, 2)}')
    if E('PBW', 0):
        A.I('s_waitcnt vmcnt(0)')
    for i in range(PB_DELAY - (4 if kvcheck else 0)):
        A.I('s_nop 7')
    pb_loads(RA)
    hstamp(2)
    q_prefetch(A, 0)
    for i in range(PB_GAP):
        A.I('s_nop 7')
    if TWO_PB:
        pb_loads(RB)
    q_prefetch(A, 1)
    A.br(f's_branch {L_top}')
    A.label(L_w23)
    A.forget_loads()
    q_prefetch(A)
    if os.environ.get('DIAG2'):
        ld_ = A.newlabel('L_d2')
        A.I(f's_add_u32 s80, s{S_H}, s{S_WV}')
        A.I('s_cmp_lg_u32 s80, 2')
        A.I(f's_cbranch_scc1 {ld_}')
        A.I('s_mov_b32 s64, 0')
        for i, st_ in enumerate((1, 8, 20, 36, 52)):
            A.I(f's_cmp_eq_u32 s{S_STEP}, {st_}')
            A.I(f's_cselect_b32 s64, {44 + 4 * i}, s64')
        A.I('s_cmp_eq_u32 s64, 0')
        A.I(f's_cbranch_scc1 {ld_}')
        A.I('s_memrealtime s[80:81]')
        A.I('s_waitcnt lgkmcnt(0)')
        A.I('s_sub_u32 s80, s80, s58')
        A.I('v_mov_b32 v0, s80')
        A.I('buffer_store_dword v0, off, s[84:87], s64')
        A.label(ld_)
    if os.environ.get('STEPT'):
        A.I('s_memrealtime s[80:81]')
        A.I('s_waitcnt lgkmcnt(0)')
        A.I('v_mov_b32 v0, s80')
        A.I(f's_lshl_b32 s80, s{S_STEP}, 2')
        A.I(f's_lshl_b32 s81, s{S_H}, 8')
        A.I('s_add_u32 s80, s80, s81')
        A.I(f's_add_u32 s80, s80, 0x{WS_DBG + 0x20000:x}')
        A.I(f'buffer_store_dword v0, off, {ws}, s80')
        A.I('s_memtime s[64:65]')
        A.I('s_waitcnt lgkmcnt(0)')
        A.I('v_mov_b32 v1, s64')
        A.I(f's_add_u32 s80, s80, 0x4000')
        A.I(f'buffer_store_dword v1, off, {ws}, s80')
    hstamp(2); hstamp(3)
    A.br(f's_branch {L_bh}')

    A.check = False
    A.label(L_pslow)
    if TWO_PB:
        red(RB, 0)
        A.I(f's_cbranch_vccz {L_red}')
    pb_loads(RA)
    A.I(f's_sub_u32 s{S_SPIN}, s{S_SPIN}, 1')
    A.I(f's_cbranch_scc1 {l_exit}')
    if TWO_PB:
        for i in range(3):
            A.I('s_nop 7')
        pb_loads(RB)
    A.br(f's_branch {L_top}')
    A.label(L_aslow)
    af_loads(0)
    zero(A, ACC, 8)
    for b in ASETS[1:]:
        A.I('s_waitcnt vmcnt(4)')
        A.I(f'v_max3_u32 v8, v{b}, v{b + 1}, v{b + 2}')
        A.I(f'v_max3_u32 v9, v{b + 3}, v{b + 4}, v{b + 5}')
        A.I(f'v_mov_b64 {v(10, 2)}, {v(b, 2)}')
        A.I(f'v_max3_u32 v8, v8, v{b + 6}, v{b + 7}')
        A.I(f'v_max_u32 v8, v8, v9')
        A.I(f'v_cmp_eq_u32 vcc, -1, v8')
        lf = A.newlabel('L_af_f')
        A.I(f's_cbranch_vccnz {lf}')
        for i in range(0, 8, 2):
            A.I(f'v_mov_b64 {v(i, 2)}, {v(b + i, 2)}')
        A.br(f's_branch {L_afok}')
        A.label(lf)
        af_loads(b)
    A.I(f's_sub_u32 s{S_SPIN}, s{S_SPIN}, 1')
    A.I(f's_cbranch_scc1 {l_exit}')
    A.br(f's_branch {L_afchk}')
    if kvcheck:
        A.label(L_kvc)
        A.I(f's_cmp_eq_u32 s23, 64')
        A.I(f's_cbranch_scc1 {L_kvr}')
        kv_wait(A, l_exit, 23, ACC + 16)
        A.br(f's_branch {L_kvr}')
    A.label(L_fin)
    A.I(f'v_add_u32 v12, s{S_W640}, v{V_KR}')
    A.I(f'v_lshrrev_b32 v13, 2, v{V_VX}')
    A.I(f'v_lshrrev_b32 v14, 2, v{V_L16}')
    A.I(f'v_add_u32 v13, v13, v14')
    A.I(f'ds_read_b128 v[0:3], v12')
    A.I(f'ds_read_b64 v[4:5], v13 offset:{L_VM}')
    A.I(f'v_lshrrev_b32 v14, 1, v{V_L16}')
    A.I('s_waitcnt lgkmcnt(0)')
    A.I(f'buffer_store_dwordx4 v[0:3], v{V_L16}, {ws}, s{S_KMO} offen sc1')
    A.I(f'buffer_store_dwordx2 v[4:5], v14, {ws}, s{S_VMO} offen sc1')
    if kvcheck:
        A.I('v_mov_b32 v6, 65')
        A.I('s_waitcnt vmcnt(0)')
        A.I('s_mov_b64 exec, 1')
        A.I(f'buffer_store_dword v6, off, {ws}, s{S_KP} sc1')
        A.I('s_mov_b64 exec, -1')
    A.br(f's_branch {l_exit}')
    A.check = True
    A.forget_loads()


def rec_kernel(A, name):
    kernel_begin(A, name)
    l_exit = A.newlabel('L_exit')
    P_WS, P_DBG, P_Q, P_K, P_V, P_O, P_M0 = 16, 18, 20, 22, 24, 26, 28
    A.I(f's_cmp_ge_u32 s2, 256')
    A.I(f's_cbranch_scc1 {l_exit}')
    A.I(f's_load_dwordx2 s[{P_WS}:{P_WS + 1}], s[0:1], {KA_WS}')
    A.I(f's_load_dwordx2 s[{P_DBG}:{P_DBG + 1}], s[0:1], {KA_DBG}')
    A.I(f's_load_dwordx4 s[{P_Q}:{P_Q + 3}], s[0:1], {KA_WQ}')
    A.I(f's_load_dwordx4 s[{P_V}:{P_V + 3}], s[0:1], {KA_WV}')
    A.I(f's_load_dwordx2 s[{P_M0}:{P_M0 + 1}], s[0:1], {KA_MEM0}')
    A.I('v_lshrrev_b32 v1, 6, v0')
    A.I(f'v_and_b32 v{LANE}, 63, v0')
    A.I(f'v_readfirstlane_b32 s{S_WV}, v1')
    A.I(f's_getreg_b32 s{S_T0}, hwreg(HW_REG_XCC_ID)')
    A.I(f's_and_b32 s{S_T0}, s{S_T0}, 15')
    A.I('s_waitcnt lgkmcnt(0)')
    make_srd(A, S_WS, P_WS, WS_SIZE)
    make_srd(A, S_DBG, P_DBG, 256)
    A.I(f's_cmp_lg_u32 s{S_T0}, 0')
    A.I(f's_cbranch_scc1 {l_exit}')
    A.I(f's_mov_b32 s{S_SPIN}, 2000000')
    dbg = f's[{S_DBG}:{S_DBG + 3}]'
    A.I('v_mov_b32 v2, 1')
    A.I('v_mov_b32 v3, 0')
    A.I('v_cmp_eq_u32 vcc, 0, v0')
    A.I('s_and_saveexec_b64 s[30:31], vcc')
    lsk = A.newlabel('L_sk')
    A.I(f's_cbranch_execz {lsk}')
    A.I(f'buffer_atomic_add v2, v3, {dbg}, 0 offen sc0')
    A.I('s_waitcnt vmcnt(0)')
    A.I('ds_write_b32 v3, v2')
    A.I('s_waitcnt lgkmcnt(0)')
    A.label(lsk)
    A.I('s_mov_b64 exec, s[30:31]')
    A.I('s_barrier')
    A.I('ds_read_b32 v2, v3')
    A.I('s_waitcnt lgkmcnt(0)')
    A.I(f'v_readfirstlane_b32 s{S_H}, v2')
    A.I('s_barrier')
    A.I(f's_cmp_ge_u32 s{S_H}, 32')
    A.I(f's_cbranch_scc1 {l_exit}')
    A.I(f's_memrealtime s[{S_TS}:{S_TS + 1}]')
    setup_consts(A)
    st = STF
    init_exchange(A, P_M0, st)
    A.I('s_barrier')
    A.I('v_mov_b32 v2, 1')
    A.I('v_mov_b32 v3, 64')
    A.I('v_cmp_eq_u32 vcc, 0, v0')
    A.I('s_and_saveexec_b64 s[30:31], vcc')
    lsk = A.newlabel('L_sk')
    A.I(f's_cbranch_execz {lsk}')
    A.I(f'buffer_atomic_add v2, v3, {dbg}, 0 offen')
    A.label(lsk)
    A.I('s_mov_b64 exec, s[30:31]')
    A.I('s_waitcnt vmcnt(0)')
    stage_weights(A, [P_Q, P_K, P_V, P_O])
    A.I(f's_lshl_b32 s{S_KVN}, s{S_H}, 13')
    A.I(f's_add_u32 s{S_KVN}, s{S_KVN}, s{S_W11}')
    A.I(f's_add_u32 s{S_KVN}, s{S_KVN}, 0x{WS_KF:x}')
    A.I(f's_add_u32 s{S_KVM0}, s{S_W11}, {L_KV}')
    kv_dma(A)
    lw = A.newlabel('L_tw')
    A.I('v_mov_b32 v3, 64')
    A.label(lw)
    A.I(f'buffer_load_dword v2, v3, {dbg}, 0 offen sc1')
    A.I(f's_sub_u32 s{S_SPIN}, s{S_SPIN}, 1')
    A.I(f's_cbranch_scc1 {l_exit}')
    A.I('s_waitcnt vmcnt(0)')
    A.I(f'v_readfirstlane_b32 s{S_T0}, v2')
    A.I(f's_cmp_lt_u32 s{S_T0}, 32')
    A.I(f's_cbranch_scc1 {lw}')
    A.I('s_barrier')
    A.I(f's_memrealtime s[{S_TS + 2}:{S_TS + 3}]')
    A.I('s_waitcnt lgkmcnt(0)')
    l_done = A.newlabel('L_done')
    main_loop(A, st, l_done)
    A.label(l_done)
    A.forget_loads()
    A.I(f's_memrealtime s[{S_TS + 4}:{S_TS + 5}]')
    A.I('s_waitcnt lgkmcnt(0) vmcnt(0)')
    A.I(f's_lshl_b32 s{S_T0}, s{S_H}, 2')
    A.I(f's_add_u32 s{S_T0}, s{S_T0}, s{S_WV}')
    A.I(f's_lshl_b32 s{S_T0}, s{S_T0}, 5')
    A.I(f's_add_u32 s{S_T0}, s{S_T0}, 0x{WS_DBG:x}')
    for i in range(6):
        A.I(f'v_mov_b32 v{i}, s{S_TS + i}')
    A.I(f'v_mov_b32 v6, s{S_STEP}')
    A.I(f'v_mov_b32 v7, s{S_SPIN}')
    A.I('v_mov_b32 v8, 0')
    A.I(f'buffer_store_dwordx4 v[0:3], v8, s[{S_WS}:{S_WS + 3}], s{S_T0} offen')
    A.I(f'buffer_store_dwordx4 v[4:7], v8, s[{S_WS}:{S_WS + 3}], s{S_T0} offen offset:16')
    if STAMPS:
        A.I(f's_add_u32 s{S_T0}, s{S_T0}, s{S_T0}')
        A.I(f's_sub_u32 s{S_T0}, s{S_T0}, 0x{WS_DBG - 0x10000:x}')
        for i in range(12):
            A.I(f'v_mov_b32 v{12 + i}, s{88 + i}')
        for i in range(3):
            A.I(f'buffer_store_dwordx4 {v(12 + 4 * i, 4)}, v8, s[{S_WS}:{S_WS + 3}], s{S_T0} offen offset:{16 * i}')
    A.label(l_exit)
    A.I('s_endpgm')


if __name__ == '__main__':
    A = Asm()
    rec_kernel(A, 'rec_kernel')
    txt = header([('rec_kernel', 256, 256, L_TOTAL)]) + A.text() + '.section .rodata,"a"\n' + kernel_desc('rec_kernel', 512, 256)
    open('work/' + OUT, 'w').write(txt)
    print('ok', len(txt))
```

```python
import os
os.environ.setdefault('PB_DELAY', '7'); os.environ.setdefault('AF_DELAY', '2'); os.environ.setdefault('AF_GAP', '2')
from common import *
import tok as T
import rec9 as R
from tok import f32, S_WS, S_W, S_X, S_H, S_WV, S_G, S_T0, S_T1, S_T2, S_T3

S_DBG = 84
S_SPIN = R.S_SPIN
S_XCC = 83
S_LNO = 82
F_OPC = WS_FLAG + 0x4000
F_LH = WS_FLAG + 0x6000
F_LU = WS_FLAG + 0x8000
F_GF = WS_FLAG + 0x8400
S_FAST = S_XCC
D_GB, D_OVF, D_WEIRD, D_TS, D_TI = 128, 36, 40, 192, 196
S_J, S_BO2, S_LB2 = 100, 101, 3
S_J2 = 63
S_W1, S_B1, S_W2 = 88, 92, 96
NEARLY = int(os.environ.get('NEARLY', 2))
STAG = int(os.environ.get('STAG', 4))
STAG0 = int(os.environ.get('STAG0', 1))
TIMING = bool(os.environ.get('TIMING'))
OPRING = int(os.environ.get('OPRING', 0))
WARM = int(os.environ.get('WARM', 0))
DIAG = bool(os.environ.get('DIAG'))
TAIL_BYTES = int(os.environ.get('TAIL_BYTES', 24576))
CODET = int(os.environ.get('CODET', 0))
CODE_BYTES = int(os.environ.get('CODE_BYTES', 57344))
PLF = os.environ.get('PLF', 'sc1').replace('_', ' ')


def lane0(A, body):
    A.I('s_mov_b64 exec, 1')
    body()
    A.I('s_mov_b64 exec, -1')


def poll_eq(A, srd, s_off, imm, expect, vt, l_exit, sleep=0):
    l = A.newlabel('L_poll')
    A.label(l)
    so = f's{s_off}' if s_off is not None else '0'
    A.I(f'buffer_load_dword v{vt}, off, {srd}, {so} offset:{imm} sc1')
    A.I(f's_sub_u32 s{S_SPIN}, s{S_SPIN}, 1')
    A.I(f's_cbranch_scc1 {l_exit}')
    A.I('s_waitcnt vmcnt(0)')
    A.I(f'v_readfirstlane_b32 s{S_T0}, v{vt}')
    ld = A.newlabel('L_pd')
    A.I(f's_cmp_eq_u32 s{S_T0}, {expect}')
    A.I(f's_cbranch_scc1 {ld}')
    if sleep:
        A.I(f's_sleep {sleep}')
    A.br(f's_branch {l}')
    A.label(ld)


def poll_flags(A, s_off, nlanes, width, vt, va, l_exit, sleep=0):
    ws = f's[{S_WS}:{S_WS + 3}]'
    l, ld = A.newlabel('L_pf'), A.newlabel('L_pfd')
    A.I(f'v_lshlrev_b32 v{va}, {2 if width == 1 else 3}, v0')
    assert nlanes <= 32
    A.I(f's_mov_b32 exec_lo, 0x{(1 << nlanes) - 1:x}')
    A.I('s_mov_b32 exec_hi, 0')
    A.label(l)
    if width == 1:
        A.I(f'buffer_load_dword v{vt}, v{va}, {ws}, s{s_off} offen {PLF}')
    else:
        A.I(f'buffer_load_dwordx2 {v(vt, 2)}, v{va}, {ws}, s{s_off} offen {PLF}')
    A.I(f's_sub_u32 s{S_SPIN}, s{S_SPIN}, 1')
    A.I(f's_cbranch_scc1 {l_exit}')
    A.I('s_waitcnt vmcnt(0)')
    if width == 2:
        A.I(f'v_min_u32 v{vt}, v{vt}, v{vt + 1}')
    A.I(f'v_cmp_eq_u32 vcc, 0, v{vt}')
    A.I(f's_cbranch_vccz {ld}')
    if sleep:
        A.I(f's_sleep {sleep}')
    A.br(f's_branch {l}')
    A.label(ld)
    A.I('s_mov_b64 exec, -1')


def flag_store(A, s_addr, vt):
    ws = f's[{S_WS}:{S_WS + 3}]'
    l1, l2 = A.newlabel('L_fs'), A.newlabel('L_fs')
    A.I(f'v_mov_b32 v{vt}, 1')
    A.I('s_mov_b64 exec, 1')
    A.I(f's_cmp_eq_u32 s{S_FAST}, 0')
    A.br(f's_cbranch_scc1 {l1}')
    A.I(f'buffer_store_dword v{vt}, off, {ws}, s{s_addr}')
    A.br(f's_branch {l2}')
    A.label(l1)
    A.I(f'buffer_store_dword v{vt}, off, {ws}, s{s_addr} sc1')
    A.label(l2)
    A.I('s_mov_b64 exec, -1')


def garrive(A, s_line, s_goff, vt, l_exit):
    ws = f's[{S_WS}:{S_WS + 3}]'
    A.I(f's_lshl_b32 s{S_T1}, s{S_H}, 2')
    A.I(f's_add_u32 s{S_T1}, s{S_T1}, s{s_line}')
    flag_store(A, S_T1, vt)
    l = A.newlabel('L_ga')
    A.I(f's_cmp_lg_u32 s{S_H}, 0')
    A.br(f's_cbranch_scc1 {l}')
    poll_flags(A, s_line, 32, 1, vt, vt + 1, l_exit)
    A.I(f'v_lshlrev_b32 v{vt + 1}, 9, v0')
    A.I(f'v_mov_b32 v{vt}, 1')
    A.I('s_mov_b64 exec, 0xff')
    A.I(f'buffer_store_dword v{vt}, v{vt + 1}, {ws}, s{s_goff} offen sc1')
    A.I('s_mov_b64 exec, -1')
    A.label(l)


def wg_poll_eq(A, srd, s_off, imm, expect, vt, l_exit, sleep=0):
    l0 = A.newlabel('L_wgp')
    A.I(f's_cmp_lg_u32 s{S_WV}, 0')
    A.br(f's_cbranch_scc1 {l0}')
    poll_eq(A, srd, s_off, imm, expect, vt, l_exit, sleep)
    A.label(l0)
    A.I('s_barrier')


def tstamp(A, idx, r=14):
    if not TIMING:
        return
    l = A.newlabel('L_ts')
    A.I(f's_cmp_lg_u32 s{S_WV}, 0')
    A.br(f's_cbranch_scc1 {l}')
    A.I('s_memrealtime s[80:81]')
    A.I('s_waitcnt lgkmcnt(0)')
    A.I(f'v_mov_b32 v{r}, s80')
    A.I(f'v_mov_b32 v{r + 1}, s81')
    A.I(f's_lshl_b32 s80, s{S_G}, 5')
    A.I(f's_add_u32 s80, s80, s{S_H}')
    A.I('s_lshl_b32 s80, s80, 8')
    A.I(f's_add_u32 s80, s80, 0x{WS_DBG:x}')
    A.I(f'buffer_store_dwordx2 {v(r, 2)}, off, s[{S_WS}:{S_WS + 3}], s80 offset:{8 * idx}')
    A.label(l)


def mega_kernel(A, name):
    kernel_begin(A, name)
    l_exit = A.newlabel('L_exit')
    P_WS, P_DBG, P_Q, P_K, P_V, P_O, P_M0, P_X = 16, 18, 20, 22, 24, 26, 28, 30
    ws, dbg, sx = f's[{S_WS}:{S_WS + 3}]', f's[{S_DBG}:{S_DBG + 3}]', f's[{S_X}:{S_X + 3}]'
    A.I('s_cmp_ge_u32 s2, 256')
    A.I(f's_cbranch_scc1 {l_exit}')
    if DIAG:
        A.I('s_memrealtime s[58:59]')
    A.I(f's_load_dwordx2 s[{P_WS}:{P_WS + 1}], s[0:1], {KA_WS}')
    A.I(f's_load_dwordx2 s[{P_DBG}:{P_DBG + 1}], s[0:1], {KA_DBG}')
    A.I(f's_load_dwordx4 s[{P_Q}:{P_Q + 3}], s[0:1], {KA_WQ}')
    A.I(f's_load_dwordx4 s[{P_V}:{P_V + 3}], s[0:1], {KA_WV}')
    A.I(f's_load_dwordx2 s[{P_M0}:{P_M0 + 1}], s[0:1], {KA_MEM0}')
    A.I(f's_load_dwordx2 s[{P_X}:{P_X + 1}], s[0:1], {KA_X}')
    A.I('v_lshrrev_b32 v1, 6, v0')
    A.I('v_and_b32 v0, 63, v0')
    A.I(f'v_readfirstlane_b32 s{S_WV}, v1')
    A.I(f's_getreg_b32 s{S_XCC}, hwreg(HW_REG_XCC_ID)')
    A.I(f's_mov_b32 s{S_SPIN}, 0x80000')
    A.I('s_waitcnt lgkmcnt(0)')
    make_srd(A, S_WS, P_WS, WS_SIZE)
    make_srd(A, S_DBG, P_DBG, 256)
    make_srd(A, S_X, P_X, 2048 * 1024)
    LX, LF = 32, 48
    lnl = A.newlabel('L_l0')
    A.I('v_and_b32 v24, 15, v0')
    A.I('v_lshrrev_b32 v25, 4, v0')
    A.I('s_cmp_ge_u32 s2, 128')
    A.br(f's_cbranch_scc1 {lnl}')
    A.I('v_lshlrev_b32 v26, 10, v24')
    A.I('v_lshl_add_u32 v26, v25, 4, v26')
    A.I(f's_lshl_b32 s{S_LNO}, s2, 14')
    A.I(f's_lshl_b32 s{S_T0}, s{S_WV}, 8')
    A.I(f's_add_u32 s{S_T0}, s{S_T0}, s{S_LNO}')
    for i in range(4):
        A.I(f'buffer_load_dwordx4 {v(LX + 4 * i, 4)}, v26, {sx}, s{S_T0} offen offset:{64 * i}')
    A.label(lnl)
    A.forget_loads()
    if CODET:
        lct = A.newlabel('L_ct')
        A.I(f's_cmp_lg_u32 s{S_WV}, 3')
        A.br(f's_cbranch_scc1 {lct}')
        A.I('s_cmp_ge_u32 s2, 16')
        A.br(f's_cbranch_scc1 {lct}')
        code_touch(A, name, l_exit, CODE_BYTES, 255, 3)
        A.label(lct)
    lr = A.newlabel('L_role_done')
    A.I(f's_cmp_lg_u32 s{S_WV}, 0')
    A.br(f's_cbranch_scc1 {lr}')
    A.I('s_mov_b64 exec, 1')
    A.I('v_mov_b32 v2, 1')
    lw = A.newlabel('L_nw')
    A.I(f's_cmp_lt_u32 s{S_XCC}, 8')
    A.br(f's_cbranch_scc1 {lw}')
    A.I(f'buffer_atomic_or v2, off, {dbg}, 0 offset:{D_WEIRD}')
    A.I('s_waitcnt vmcnt(0)')
    A.label(lw)
    A.I(f's_and_b32 s{S_G}, s{S_XCC}, 7')
    A.I(f's_lshl_b32 s{S_T0}, s{S_G}, 2')
    A.I(f'buffer_atomic_add v2, off, {dbg}, s{S_T0} sc0')
    A.I('s_waitcnt vmcnt(0)')
    A.I(f'v_readfirstlane_b32 s{S_H}, v2')
    lok = A.newlabel('L_rok')
    A.I(f's_cmp_lt_u32 s{S_H}, 32')
    A.br(f's_cbranch_scc1 {lok}')
    A.I('v_mov_b32 v2, 1')
    A.I(f'buffer_atomic_add v2, off, {dbg}, 0 offset:{D_OVF} sc0')
    A.I('s_waitcnt vmcnt(0)')
    A.I(f'v_readfirstlane_b32 s{S_T3}, v2')
    lo = A.newlabel('L_ovf')
    A.label(lo)
    A.I(f'buffer_load_dwordx4 v[4:7], off, {dbg}, 0 sc1')
    A.I(f'buffer_load_dwordx4 v[8:11], off, {dbg}, 0 offset:16 sc1')
    A.I(f's_sub_u32 s{S_SPIN}, s{S_SPIN}, 1')
    A.I(f's_cbranch_scc1 {l_exit}')
    A.I('s_waitcnt vmcnt(0)')
    A.I(f's_mov_b32 s{S_T0}, 0')
    for i in range(8):
        A.I(f'v_readfirstlane_b32 s{64 + i}, v{4 + i}')
    for i in range(8):
        A.I(f's_add_u32 s{S_T0}, s{S_T0}, s{64 + i}')
    A.I(f's_cmp_lt_u32 s{S_T0}, 256')
    A.br(f's_cbranch_scc1 {lo}')
    for g in range(8):
        A.I(f's_min_u32 s{S_T0}, s{64 + g}, 32')
        A.I(f's_sub_u32 s{S_T1}, 32, s{S_T0}')
        A.I(f's_mov_b32 s{S_G}, {g}')
        A.I(f's_add_u32 s{S_H}, s{S_T0}, s{S_T3}')
        A.I(f's_cmp_lt_u32 s{S_T3}, s{S_T1}')
        A.br(f's_cbranch_scc1 {lok}')
        A.I(f's_sub_u32 s{S_T3}, s{S_T3}, s{S_T1}')
    A.I(f's_mov_b32 s{S_G}, 0x100')
    A.I(f's_mov_b32 s{S_H}, 0')
    A.label(lok)
    A.I(f's_lshl_b32 s{S_T0}, s{S_G}, 8')
    A.I(f's_or_b32 s{S_T0}, s{S_T0}, s{S_H}')
    A.I(f'v_mov_b32 v2, s{S_T0}')
    A.I('v_mov_b32 v3, 0')
    A.I('ds_write_b32 v3, v2')
    A.I('s_waitcnt lgkmcnt(0)')
    A.I('s_mov_b64 exec, -1')
    A.label(lr)
    lno, lnd = A.newlabel('L_lno'), A.newlabel('L_lnd')
    A.I('s_cmp_ge_u32 s2, 128')
    A.br(f's_cbranch_scc1 {lno}')
    A.I(f's_lshl_b32 s{S_T0}, s{S_WV}, 2')
    A.I('v_lshlrev_b32 v27, 4, v24')
    A.I(f'v_add_u32 v26, s{S_T0}, v27')
    A.I('s_waitcnt vmcnt(0)')
    for i in range(16):
        A.I(f'v_lshlrev_b32 v{LF + 2 * i}, 16, v{LX + i}')
        A.I(f'v_and_b32 v{LF + 2 * i + 1}, 0xffff0000, v{LX + i}')
    A.I(f'v_add_f32 v28, v{LF}, v{LF + 1}')
    A.I(f'v_add_f32 v29, v{LF + 2}, v{LF + 3}')
    for i in range(4, 32, 2):
        A.I(f'v_add_f32 v28, v28, v{LF + i}')
        A.I(f'v_add_f32 v29, v29, v{LF + i + 1}')
    A.I('v_add_f32 v28, v28, v29')
    T.xreduce(A, 'v_add_f32', 28, 29)
    A.I('ds_write_b32 v26, v28 offset:64')
    A.I('s_waitcnt lgkmcnt(0)')
    A.I('s_barrier')
    A.I('v_mov_b32 v3, 0')
    A.I('ds_read_b32 v2, v3')
    A.I('ds_read_b128 v[28:31], v27 offset:64')
    A.I('s_waitcnt lgkmcnt(0)')
    A.I('v_add_f32 v28, v28, v29')
    A.I('v_add_f32 v30, v30, v31')
    A.I('v_add_f32 v28, v28, v30')
    A.I(f'v_mul_f32 v28, {f32(1 / 512)}, v28')
    A.I('v_mov_b32 v29, 0')
    A.I('v_mov_b32 v30, 0')
    for i in range(0, 32, 2):
        A.I(f'v_sub_f32 v{LF + i}, v{LF + i}, v28')
        A.I(f'v_sub_f32 v{LF + i + 1}, v{LF + i + 1}, v28')
        A.I(f'v_fmac_f32 v29, v{LF + i}, v{LF + i}')
        A.I(f'v_fmac_f32 v30, v{LF + i + 1}, v{LF + i + 1}')
    A.I('v_add_f32 v29, v29, v30')
    T.xreduce(A, 'v_add_f32', 29, 30)
    A.I('ds_write_b32 v26, v29 offset:320')
    A.I('s_waitcnt lgkmcnt(0)')
    A.I('s_barrier')
    A.I('ds_read_b128 v[28:31], v27 offset:320')
    A.I('s_waitcnt lgkmcnt(0)')
    A.I('v_add_f32 v28, v28, v29')
    A.I('v_add_f32 v30, v30, v31')
    A.I('v_add_f32 v28, v28, v30')
    A.I(f'v_mov_b32 v29, {f32(1e-5)}')
    A.I(f'v_fmac_f32 v29, {f32(1 / 512)}, v28')
    A.I('v_rsq_f32 v29, v29')
    A.I('v_lshlrev_b32 v26, 4, v0')
    A.I(f's_lshl_b32 s{S_T0}, s{S_WV}, 12')
    A.I(f's_add_u32 s{S_T0}, s{S_T0}, s{S_LNO}')
    A.I(f's_add_u32 s{S_T0}, s{S_T0}, 0x{WS_XN:x}')
    for i in range(4):
        for j in range(4):
            f = LF + 8 * i + 2 * j
            A.I(f'v_mul_f32 v{f}, v{f}, v29')
            A.I(f'v_mul_f32 v{f + 1}, v{f + 1}, v29')
            A.I(f'v_cvt_pk_bf16_f32 v{LX + 4 * i + j}, v{f}, v{f + 1}')
        A.I(f'buffer_store_dwordx4 {v(LX + 4 * i, 4)}, v26, {ws}, s{S_T0} offen offset:{1024 * i} sc1')
    A.br(f's_branch {lnd}')
    A.label(lno)
    A.I('s_barrier')
    A.I('v_mov_b32 v3, 0')
    A.I('ds_read_b32 v2, v3')
    A.I('s_waitcnt lgkmcnt(0)')
    A.label(lnd)
    A.forget_loads()
    A.I(f'v_readfirstlane_b32 s{S_T0}, v2')
    A.I(f's_and_b32 s{S_H}, s{S_T0}, 31')
    A.I(f's_bfe_u32 s{S_G}, s{S_T0}, 0x30008')
    A.I(f's_cmp_ge_u32 s{S_T0}, 0x10000')
    A.I(f's_cbranch_scc1 {l_exit}')
    A.I('s_barrier')
    tstamp(A, 0)

    def arrive(off=D_GB):
        l = A.newlabel('L_na')
        A.I(f's_cmp_lg_u32 s{S_WV}, 0')
        A.br(f's_cbranch_scc1 {l}')
        A.I('v_mov_b32 v23, 1')
        lane0(A, lambda: A.I(f'buffer_atomic_add v23, off, {dbg}, 0 offset:{off}'))
        A.label(l)

    def ln_and_arrive(ln=True):
        A.I('s_waitcnt vmcnt(0)')
        A.I('s_barrier')
        arrive()

    l_tok = A.newlabel('L_tok')
    l_g2 = A.newlabel('L_g2')
    A.I(f's_cmp_lg_u32 s{S_G}, 0')
    A.br(f's_cbranch_scc1 {l_tok}')

    A.I(f'v_mov_b32 v{R.LANE}, v0')
    R.setup_consts(A)

    A.I(f's_lshl_b32 s{S_T0}, s{S_H}, 6')
    A.I(f's_lshl_b32 s{S_T1}, s{S_WV}, 2')
    A.I(f's_add_u32 s{S_T0}, s{S_T0}, s{S_T1}')
    A.I(f's_add_u32 s{S_LNO}, s{S_T0}, 0x{R.F_KMP:x}')
    A.I('v_mov_b32 v24, 0')
    lane0(A, lambda: A.I(f'buffer_store_dword v24, off, {ws}, s{S_LNO} sc1'))
    R.init_exchange(A, P_M0, 'sc1', rb=24, part=0)

    def thook():
        A.check = False
        R.init_exchange(A, P_M0, 'sc1', rb=24, part=1)
        A.check = True
        A.forget_loads()

    def h_sc(sc):
        if sc == 0:
            arrive()
            tstamp(A, 8, 24)
        if sc == 1:
            arrive(D_TI)

    S_OK = 25

    def batch():
        A.I(f'buffer_load_dword v25, off, {dbg}, 0 sc1')
        A.I(f'buffer_load_dword v26, off, {dbg}, 0 offset:{D_WEIRD} sc1')
        A.I(f'buffer_load_dword v27, off, {dbg}, 0 offset:{D_TI} sc1')
        R.kv_load(A, 28, R.V_L16, R.S_RA)

    def h_issue(sc):
        if sc == 3:
            A.I(f'buffer_load_dword v24, off, {dbg}, 0 offset:{D_GB} sc1')
            return
        A.I(f's_lshl_b32 s{R.S_RA}, s{S_H}, 7')
        A.I(f's_add_u32 s{R.S_RA}, s{R.S_RA}, 0x{R.F_PROG:x}')
        A.I(f's_lshl_b32 s{R.S_KVN}, s{S_H}, 13')
        A.I(f's_add_u32 s{R.S_KVN}, s{R.S_KVN}, s{R.S_W11}')
        A.I(f's_add_u32 s{R.S_KVN}, s{R.S_KVN}, 0x{WS_KF:x}')
        A.I(f's_add_u32 s{R.S_KVM0}, s{R.S_W11}, {R.L_KV}')
        batch()

    def evaluate(l_fail):
        R.kv_eval(A, 28, R.V_L16, R.S_AV)
        A.I(f'v_readfirstlane_b32 s{S_T0}, v24')
        A.I(f'v_readfirstlane_b32 s{S_T2}, v25')
        A.I(f'v_readfirstlane_b32 s{S_T3}, v26')
        A.I(f's_cmp_lg_u32 s{S_T0}, 256')
        A.I(f's_cbranch_scc1 {l_fail}')
        A.I(f'v_readfirstlane_b32 s{S_T0}, v27')
        A.I(f's_cmp_lg_u32 s{S_T0}, 32')
        A.I(f's_cbranch_scc1 {l_fail}')
        A.I(f's_cmp_eq_u32 s{R.S_AV}, 0')
        A.I(f's_cbranch_scc1 {l_fail}')
        A.I(f's_cmp_ge_u32 s{S_T2}, 32')
        A.I(f's_cselect_b32 s{S_XCC}, 1, 0')
        A.I(f's_cmp_eq_u32 s{S_T3}, 0')
        A.I(f's_cselect_b32 s{S_XCC}, s{S_XCC}, 0')
        R.kv_dma(A)

    def h_check():
        lf = A.newlabel('L_hf')
        A.I(f's_mov_b32 s{S_OK}, 0')
        evaluate(lf)
        A.I(f's_mov_b32 s{S_OK}, 1')
        A.label(lf)

    R.stage_weights(A, [P_Q, P_K, P_V, P_O], hook=thook, hook_issue=h_issue, hook_check=h_check, hook_sc=h_sc)
    tstamp(A, 1)
    A.I(f's_mov_b32 s{R.S_KP}, s{S_LNO}')
    lgo_, lre = A.newlabel('L_tgo'), A.newlabel('L_tre')
    A.I(f's_cmp_eq_u32 s{S_OK}, 1')
    A.br(f's_cbranch_scc1 {lgo_}')
    A.label(lre)
    A.I('s_sleep 4')
    A.I(f'buffer_load_dword v24, off, {dbg}, 0 offset:{D_GB} sc1')
    A.I('s_waitcnt vmcnt(0)')
    batch()
    A.I(f's_sub_u32 s{S_SPIN}, s{S_SPIN}, 1')
    A.I(f's_cbranch_scc1 {l_exit}')
    A.I('s_waitcnt vmcnt(0)')
    evaluate(lre)
    A.label(lgo_)
    A.I('s_waitcnt vmcnt(0)')
    A.I('s_barrier')
    tstamp(A, 2)
    if DIAG:
        A.I('s_memrealtime s[80:81]')
        A.I('s_waitcnt lgkmcnt(0)')
        A.I('s_sub_u32 s60, s80, s58')
    l_slow = A.newlabel('L_slowmode')
    l_tdone = A.newlabel('L_tdone')
    A.I(f's_cmp_eq_u32 s{S_XCC}, 0')
    if os.environ.get('FORCE_SLOW'):
        A.br(f's_branch {l_slow}')
    else:
        A.br(f's_cbranch_scc1 {l_slow}')
    R.main_loop(A, '', l_tdone, kvcheck=True)
    A.label(l_slow)
    R.main_loop(A, 'sc1', l_tdone, kvcheck=True)
    A.label(l_tdone)
    A.forget_loads()
    A.I(f's_mov_b32 s{S_G}, 0')
    tstamp(A, 3)
    if DIAG:
        A.I('s_memrealtime s[80:81]')
        A.I('s_waitcnt lgkmcnt(0)')
        A.I('s_sub_u32 s61, s80, s58')
    A.I(f'v_lshrrev_b32 v0, 4, v{R.V_L16}')
    j2_calc(A)
    A.I('s_waitcnt vmcnt(0) lgkmcnt(0)')
    A.I('s_barrier')
    g2_setup(A)
    for k in range(5):
        g2_dma(A, k)
    A.I(f's_mov_b32 s{S_PRE}, 0')
    A.br(f's_branch {l_g2}')

    A.label(l_tok)
    A.forget_loads()
    S_SEG, S_NX, S_CA, S_END, S_K1, S_AV, S_PB = 36, 41, 42, 43, 44, 45, 46
    j2_calc(A)
    A.I(f's_sub_u32 s{S_G}, s{S_G}, 1')
    A.I(f's_lshl_b32 s{S_J}, s{S_G}, 5')
    A.I(f's_add_u32 s{S_J}, s{S_J}, s{S_H}')

    def tok_init(ln=True):
        A.I(f's_lshl_b32 s{S_CA}, s{S_H}, 7')
        A.I(f's_lshl_b32 s{S_T0}, s{S_G}, 4')
        A.I(f's_add_u32 s{S_CA}, s{S_CA}, s{S_T0}')
        A.I(f's_lshl_b32 s{S_T0}, s{S_WV}, 2')
        A.I(f's_add_u32 s{S_CA}, s{S_CA}, s{S_T0}')
        A.I(f's_add_u32 s{S_CA}, s{S_CA}, 0x{R.F_PROG:x}')
        A.I('v_mov_b32 v22, 0')
        lane0(A, lambda: A.I(f'buffer_store_dword v22, off, {ws}, s{S_CA} sc1'))
        lz = A.newlabel('L_nz')
        A.I(f's_cmp_lg_u32 s{S_J}, 64')
        A.br(f's_cbranch_scc1 {lz}')
        A.I('v_lshlrev_b32 v23, 4, v0')
        for r in range(16, 20):
            A.I(f'v_mov_b32 v{r}, 0')
        A.I(f's_mul_i32 s{S_T0}, s{S_WV}, 6144')
        A.I(f's_add_u32 s{S_T0}, s{S_T0}, 0x{F_OPC:x}')
        A.I(f's_add_u32 s{S_T1}, s{S_T0}, 4096')
        for i in range(4):
            A.I(f'buffer_store_dwordx4 v[16:19], v23, {ws}, s{S_T0} offen offset:{1024 * i} sc1')
        A.I(f'buffer_store_dwordx4 v[16:19], v23, {ws}, s{S_T1} offen sc1')
        A.I(f'buffer_store_dwordx4 v[16:19], v23, {ws}, s{S_T1} offen offset:1024 sc1')
        A.label(lz)
        A.forget_loads()
        if ln:
            ln_and_arrive()
            ts_tok(A, 8)

    l_late = A.newlabel('L_late')
    l_st = A.newlabel('L_st')
    A.I(f's_mov_b32 s{S_K1}, 0')
    l_lt = A.newlabel('L_lt')
    A.I(f's_cmp_ge_u32 s{S_G}, {NEARLY}')
    A.br(f's_cbranch_scc1 {l_lt}')
    tok_init(False)
    A.br(f's_branch {l_st}')
    A.label(l_lt)
    if WARM:
        lwm = A.newlabel('L_wm')
        A.I(f's_cmp_eq_u32 s{S_G}, 3')
        A.br(f's_cbranch_scc1 {lwm}')
        A.I(f's_sub_u32 s{S_T0}, s{S_J}, 96')
        A.I(f's_cmp_eq_u32 s{S_G}, 2')
        A.I(f's_cselect_b32 s{S_T0}, s{S_H}, s{S_T0}')
        A.I(f's_lshl_b32 s{S_T0}, s{S_T0}, 2')
        A.I(f's_add_u32 s{S_T0}, s{S_T0}, s{S_WV}')
        A.I(f's_lshl_b32 s{S_T0}, s{S_T0}, 13')
        A.I('v_lshlrev_b32 v22, 7, v0')
        A.check = False
        for p in (P_Q, P_K, P_V, P_O):
            make_srd(A, S_W, p, 4 << 20)
            A.I(f'buffer_load_dword v255, v22, s[{S_W}:{S_W + 3}], s{S_T0} offen')
        A.check = True
        A.label(lwm)
        A.forget_loads()
    tok_init()
    l_nost = A.newlabel('L_nost')
    wg_poll_eq(A, dbg, None, D_GB, 256, 2, l_exit, sleep=100)
    A.I(f's_cmp_ge_u32 s{S_G}, 4')
    A.br(f's_cbranch_scc1 {l_nost}')
    lsg, lsd = A.newlabel('L_sg'), A.newlabel('L_sd')
    A.I(f's_cmp_lg_u32 s{S_WV}, 0')
    A.br(f's_cbranch_scc1 {lsd}')
    A.I(f's_cmp_eq_u32 s{S_G}, 3')
    A.I(f's_cselect_b32 s{S_T1}, {STAG}, {STAG0}')
    A.I(f's_lshl_b32 s{S_T2}, s{S_H}, 6')
    A.I(f's_add_u32 s{S_T2}, s{S_T2}, 0x{R.F_KMP:x}')
    A.label(lsg)
    A.I(f'buffer_load_dword v2, off, {ws}, s{S_T2} sc1')
    A.I(f's_sub_u32 s{S_SPIN}, s{S_SPIN}, 1')
    A.I(f's_cbranch_scc1 {l_exit}')
    A.I('s_waitcnt vmcnt(0)')
    A.I(f'v_readfirstlane_b32 s{S_T0}, v2')
    A.I(f's_cmp_ge_u32 s{S_T0}, s{S_T1}')
    A.I(f's_cbranch_scc1 {lsd}')
    A.I('s_sleep 40')
    A.br(f's_branch {lsg}')
    A.label(lsd)
    A.I('s_barrier')
    A.I(f's_mov_b32 s{S_K1}, 1')
    A.label(l_st)

    def hook(sc):
        if sc != 0:
            return
        l = A.newlabel('L_hk')
        A.I(f's_cmp_eq_u32 s{S_K1}, 1')
        A.br(f's_cbranch_scc1 {l}')
        arrive()
        ts_tok(A, 8)
        A.label(l)

    T.qkv_stage(A, [P_Q, P_K, P_V], hook_sc=hook)
    A.label(l_nost)
    ts_tok(A, 1)
    wg_poll_eq(A, dbg, None, D_GB, 256, 2, l_exit, sleep=8)
    ts_tok(A, 7)
    A.I(f's_lshl_b32 s{S_T0}, s{S_G}, 2')
    A.I(f'buffer_load_dword v2, off, {dbg}, s{S_T0} offset:4 sc1')
    A.I(f'buffer_load_dword v3, off, {dbg}, 0 offset:{D_WEIRD} sc1')
    A.I('s_waitcnt vmcnt(0)')
    A.I(f'v_readfirstlane_b32 s{S_T2}, v2')
    A.I(f'v_readfirstlane_b32 s{S_T3}, v3')
    A.I(f's_cmp_ge_u32 s{S_T2}, 32')
    A.I(f's_cselect_b32 s{S_FAST}, 1, 0')
    A.I(f's_cmp_eq_u32 s{S_T3}, 0')
    A.I(f's_cselect_b32 s{S_FAST}, s{S_FAST}, 0')
    if os.environ.get('FORCE_SLOW'):
        A.I(f's_mov_b32 s{S_FAST}, 0')
    l_nop1 = A.newlabel('L_nop1')
    A.I(f's_cmp_ge_u32 s{S_G}, 4')
    A.br(f's_cbranch_scc1 {l_nop1}')
    A.I(f's_lshr_b32 s{S_T0}, s{S_G}, 1')
    A.I(f's_lshl_b32 s{S_T0}, s{S_T0}, 5')
    A.I(f's_add_u32 s{S_END}, s{S_T0}, 32')
    A.I(f's_and_b32 s{S_NX}, s{S_G}, 1')
    A.I(f's_add_u32 s{S_NX}, s{S_NX}, s{S_T0}')
    A.I('v_mov_b32 v2, 0')

    def signal():
        lane0(A, lambda: A.I(f'buffer_store_dword v2, off, {ws}, s{S_CA} sc1'))

    def after():
        A.I('v_add_u32 v2, 1, v2')

    T.qkv_segments(A, 2, 'sc1', after_seg=after, mid_seg=signal, first=S_NX, end=f's{S_END}')
    A.I('s_waitcnt vmcnt(0)')
    signal()
    A.label(l_nop1)
    ts_tok(A, 2)
    T.att_stage(A, P_O)
    T.att_consts(A)
    A.I(f's_load_dwordx4 s[16:19], s[0:1], {KA_W1}')
    A.I('s_waitcnt lgkmcnt(0)')
    make_srd(A, S_W1, 16, 2048 * 3584)
    make_srd(A, S_B1, 18, 3584)
    g2_setup(A)
    A.I(f's_mov_b32 s{S_PRE}, 0')
    for i in range(16):
        A.I(f'v_mov_b32 v{G1ACC + i}, 0')
    A.I(f's_mov_b32 s{S_K1}, 0')
    g1_w1_dma(A, S_K1, first=True)
    A.I(f's_lshl_b32 s{S_OPS}, s{S_G}, 1')
    masks = seg_masks()
    for g in range(7):
        A.I(f's_cmp_eq_u32 s{S_G}, {g}')
        A.I(f's_cselect_b32 s{S_MSK}, 0x{masks[g] & 0xffffffff:x}, s{S_MSK}')
        A.I(f's_cselect_b32 s{S_MSK + 1}, 0x{masks[g] >> 32:x}, s{S_MSK + 1}')
    A.I(f's_ff1_i32_b64 s{S_SEG}, s[{S_MSK}:{S_MSK + 1}]')
    A.I(f's_bitset0_b64 s[{S_MSK}:{S_MSK + 1}], s{S_SEG}')
    A.I(f's_mov_b32 s{S_AV}, 0')
    A.I(f's_lshl_b32 s{S_PB}, s{S_H}, 7')
    A.I(f's_add_u32 s{S_PB}, s{S_PB}, 0x{R.F_PROG:x}')
    R.kv_wait(A, l_exit, S_SEG, 192, s_av=S_AV, s_base=S_PB, sleep=4, vlane16=1)
    T.att_load_qkv(A, S_SEG)
    x_prefetch(A, S_SEG, sx)
    L = A.newlabel('L_p2')
    L_att = A.newlabel('L_att')
    L_fin = A.newlabel('L_p2fin')
    A.label(L)
    A.check = False
    A.I(f's_cmp_ge_u32 s{S_K1}, 16')
    A.I(f's_cbranch_scc1 {L_fin}')
    lq2 = A.newlabel('L_lp2')
    ldec = A.newlabel('L_dec')
    A.I(f's_cmp_lg_u32 s{S_WV}, 0')
    A.br(f's_cbranch_scc1 {ldec}')
    A.I(f's_lshl_b32 s{S_CA}, s{S_H}, 6')
    A.I(f's_add_u32 s{S_CA}, s{S_CA}, 0x{R.F_KMP:x}')
    A.I(f's_add_u32 s40, s{S_SEG}, 2')
    A.I(f's_lshl_b32 s{S_T1}, s{S_K1}, 4')
    A.I(f's_lshl_b32 s{S_T2}, s{S_G}, 9')
    A.I(f's_add_u32 s{S_T1}, s{S_T1}, s{S_T2}')
    A.I(f's_add_u32 s{S_T1}, s{S_T1}, 0x{F_GF + 512:x}')
    lq, lgo, lnk = A.newlabel('L_lp'), A.newlabel('L_go'), A.newlabel('L_nk')
    A.label(lq)
    A.I(f'buffer_load_dwordx4 v[192:195], off, {ws}, s{S_CA} {PLF}')
    A.I(f'buffer_load_dwordx4 v[196:199], off, {ws}, s{S_T1} {PLF}')
    A.I(f's_sub_u32 s{S_SPIN}, s{S_SPIN}, 1')
    A.I(f's_cbranch_scc1 {l_exit}')
    A.I('s_waitcnt vmcnt(0)')
    A.I('v_min_u32 v6, v192, v193')
    A.I('v_min3_u32 v6, v6, v194, v195')
    A.I(f'v_readfirstlane_b32 s{S_T0}, v6')
    A.I('v_min_u32 v7, v196, v197')
    A.I('v_min3_u32 v7, v7, v198, v199')
    A.I('v_cmp_eq_u32 vcc, 0, v7')
    A.I(f's_mov_b32 s{S_T3}, 1')
    A.I(f's_cmp_ge_u32 s{S_T0}, s40')
    A.I(f's_cbranch_scc1 {lgo}')
    A.label(lnk)
    lsl = A.newlabel('L_sl')
    A.I(f's_add_u32 s{S_T0}, s{S_T0}, 2')
    A.I(f's_cmp_ge_u32 s{S_T0}, s40')
    A.I(f's_cbranch_scc1 {lq}')
    A.I(f's_mov_b32 s{S_T3}, 2')
    A.I(f's_cbranch_vccz {lgo}')
    lns = A.newlabel('L_nsl')
    A.I(f's_mov_b32 s{S_T3}, 3')
    A.I(f's_cmp_lt_u32 s{S_SEG}, 64')
    A.I(f's_cbranch_scc1 {lns}')
    A.I(f's_cmp_lt_u32 s{S_K1}, 3')
    A.I(f's_cbranch_scc1 {lns}')
    A.I(f's_cmp_lt_u32 s{S_PRE}, 3')
    A.I(f's_cbranch_scc1 {lgo}')
    A.label(lns)
    A.I('s_sleep 4')
    A.br(f's_branch {lq}')
    A.label(lgo)
    A.I(f'v_mov_b32 v6, s{S_T3}')
    A.I(f'v_mov_b32 v7, {L_RED + 8192 - 16}')
    A.I('ds_write_b32 v7, v6')
    A.I('s_waitcnt lgkmcnt(0)')
    A.label(ldec)
    A.I('s_barrier')
    A.I(f'v_mov_b32 v7, {L_RED + 8192 - 16}')
    A.I('ds_read_b32 v6, v7')
    A.I('s_waitcnt lgkmcnt(0)')
    A.I(f'v_readfirstlane_b32 s{S_T0}, v6')
    A.I(f's_cmp_eq_u32 s{S_T0}, 1')
    A.br(f's_cbranch_scc1 {lq2}')
    lch = A.newlabel('L_ch')
    A.I(f's_cmp_eq_u32 s{S_T0}, 2')
    A.br(f's_cbranch_scc1 {lch}')
    for rnd in range(3):
        lpr = A.newlabel('L_pr')
        A.I(f's_cmp_lg_u32 s{S_PRE}, {rnd}')
        A.br(f's_cbranch_scc1 {lpr}')
        g2_pre(A, rnd)
        A.br(f's_branch {L}')
        A.label(lpr)
    A.label(lch)
    ts_tok(A, 16)
    g1_chunk(A, S_K1, l_exit)
    A.I(f's_add_u32 s{S_K1}, s{S_K1}, 1')
    if CODET:
        lct = A.newlabel('L_ct')
        A.I(f's_cmp_lg_u32 s{S_K1}, 12')
        A.br(f's_cbranch_scc1 {lct}')
        A.I(f's_lshl_b32 s{S_T0}, s{S_H}, 2')
        A.I(f's_add_u32 s{S_T0}, s{S_T0}, s{S_WV}')
        A.I(f's_cmp_lg_u32 s{S_T0}, 7')
        A.br(f's_cbranch_scc1 {L}')
        code_touch(A, L, l_exit, TAIL_BYTES, 5, 143)
        A.br(f's_branch {L}')
        A.label(lct)
    lw2 = A.newlabel('L_w2')
    A.I(f's_cmp_lg_u32 s{S_K1}, 3')
    A.br(f's_cbranch_scc1 {lw2}')
    for k in range(5):
        g2_dma(A, k)
    A.br(f's_branch {L}')
    A.label(lw2)
    A.I(f's_cmp_lg_u32 s{S_K1}, 6')
    A.br(f's_cbranch_scc1 {L}')
    A.I(f's_and_b32 s{S_T0}, s{S_J2}, 7')
    A.I(f's_cmp_lg_u32 s{S_T0}, 4')
    A.br(f's_cbranch_scc1 {L}')
    g2_touch(A, 5)
    A.br(f's_branch {L}')
    A.label(lq2)
    ts_tok(A, 10)
    T.att_load_mem(A, S_SEG, 'sc1')
    A.I('s_waitcnt vmcnt(0)')
    ts_tok(A, 11)
    A.check = True
    A.forget_loads()
    T.att_compute1(A)
    lc1, lc2 = A.newlabel('L_c2s'), A.newlabel('L_c2e')
    A.I(f's_cmp_eq_u32 s{S_FAST}, 0')
    A.br(f's_cbranch_scc1 {lc1}')
    T.att_compute2(A, S_OPS, '')
    A.br(f's_branch {lc2}')
    A.label(lc1)
    T.att_compute2(A, S_OPS, 'sc1')
    A.label(lc2)
    ts_tok(A, 12)
    A.I('s_waitcnt vmcnt(0)')
    A.I('s_barrier')
    ts_tok(A, 13)
    A.I(f's_lshl_b32 s{S_CA}, s{S_SEG}, 7')
    A.I(f's_add_u32 s{S_CA}, s{S_CA}, 0x{F_OPC:x}')
    l0 = A.newlabel('L_n0')
    A.I(f's_cmp_lg_u32 s{S_WV}, 0')
    A.br(f's_cbranch_scc1 {l0}')
    A.I(f's_lshl_b32 s{S_T1}, s{S_H}, 2')
    A.I(f's_add_u32 s{S_T1}, s{S_T1}, s{S_CA}')
    flag_store(A, S_T1, 6)
    poll_flags(A, S_CA, 32, 1, 6, 7, l_exit)
    A.label(l0)
    A.I('s_barrier')
    ts_tok(A, 14)
    red4(A, S_SEG, sx, l_exit)
    A.I(f's_ff1_i32_b64 s{S_SEG}, s[{S_MSK}:{S_MSK + 1}]')
    A.I(f's_bitset0_b64 s[{S_MSK}:{S_MSK + 1}], s{S_SEG}')
    lnn = A.newlabel('L_nn')
    A.I(f's_cmp_lt_u32 s{S_SEG}, 64')
    A.br(f's_cbranch_scc1 {lnn}')
    A.I(f's_mov_b32 s{S_SEG}, 999')
    ts_tok(A, 3)
    A.br(f's_branch {L}')
    A.label(lnn)
    lav = A.newlabel('L_av')
    A.I(f's_cmp_gt_u32 s{S_AV}, s{S_SEG}')
    A.br(f's_cbranch_scc1 {lav}')
    R.kv_wait(A, l_exit, S_SEG, 192, s_av=S_AV, s_base=S_PB, sleep=4, vlane16=1)
    A.label(lav)
    T.att_load_qkv(A, S_SEG)
    x_prefetch(A, S_SEG, sx)
    A.br(f's_branch {L}')
    A.label(L_fin)
    A.forget_loads()
    ts_tok(A, 4)
    g1_epilogue(A, l_exit)
    A.I(f's_add_u32 s{S_G}, s{S_G}, 1')
    tstamp(A, 17)
    A.label(l_g2)
    A.forget_loads()
    g2_main(A, l_exit)
    tstamp(A, 6, 8)
    if DIAG:
        A.I(f's_add_u32 s{S_T0}, s{S_G}, s{S_H}')
        A.I(f's_add_u32 s{S_T0}, s{S_T0}, s{S_WV}')
        A.I(f's_cmp_lg_u32 s{S_T0}, 0')
        A.br(f's_cbranch_scc1 {l_exit}')
        A.I('s_memrealtime s[80:81]')
        A.I('s_waitcnt lgkmcnt(0)')
        A.I('s_sub_u32 s80, s80, s58')
        A.I('v_mov_b32 v8, s60')
        A.I('v_mov_b32 v9, s61')
        A.I('v_mov_b32 v10, s80')
        A.I('v_mov_b32 v11, 0')
        if os.environ.get('DIAG2'):
            A.I(f'buffer_store_dword v9, off, {dbg}, 0 offset:32')
        else:
            A.I(f'buffer_store_dwordx4 v[8:11], off, {dbg}, 0 offset:48')
    A.label(l_exit)
    A.I('s_endpgm')


S_MSK = 56
S_OPS = 47


def seg_masks():
    c1, c2 = int(os.environ.get('C1', 14)), int(os.environ.get('C2', 27))
    m = [0] * 7
    last = {g: -100 for g in range(7)}
    for s_ in range(64):
        cand = [4, 5, 6] if s_ < c1 else ([4, 5, 6, 0, 1] if s_ < c2 else list(range(7)))
        g = min(cand, key=lambda x: last[x])
        last[g] = s_
        m[g] |= 1 << s_
    return m


def j2_calc(A):
    A.I(f's_lshr_b32 s{S_T0}, s{S_G}, 1')
    A.I(f's_lshl_b32 s{S_T0}, s{S_T0}, 3')
    A.I(f's_lshr_b32 s{S_T1}, s{S_H}, 2')
    A.I(f's_add_u32 s{S_T0}, s{S_T0}, s{S_T1}')
    A.I(f's_lshl_b32 s{S_J2}, s{S_T0}, 3')
    A.I(f's_and_b32 s{S_T0}, s{S_G}, 1')
    A.I(f's_lshl_b32 s{S_T0}, s{S_T0}, 2')
    A.I(f's_and_b32 s{S_T1}, s{S_H}, 3')
    A.I(f's_add_u32 s{S_T0}, s{S_T0}, s{S_T1}')
    A.I(f's_add_u32 s{S_J2}, s{S_J2}, s{S_T0}')


def code_touch(A, l_from, l_end, nbytes, vd, va):
    lh = A.newlabel('L_pc')
    A.I('s_getpc_b64 s[80:81]')
    A.raw(f'{lh}:')
    A.raw(f'    s_sub_u32 s80, s80, {lh}-{l_from}')
    A.raw('    s_subb_u32 s81, s81, 0')
    A.I(f'v_lshlrev_b32 v{va}, 7, v0')
    for i in range(0, nbytes, 8192):
        A.raw(f'    v_min_u32 v{va}, {l_end}-{l_from}, v{va}')
        A.raw(f'    global_load_dword v{vd}, v{va}, s[80:81]')
        A.I(f'v_add_u32 v{va}, 8192, v{va}')


def x_prefetch(A, s_seg, sx):
    A.I('v_lshrrev_b32 v6, 2, v0')
    A.I('v_lshlrev_b32 v6, 6, v6')
    A.I('v_and_b32 v7, 3, v0')
    A.I('v_lshl_add_u32 v6, v7, 3, v6')
    A.I(f's_lshl_b32 s{S_T3}, s{s_seg}, 5')
    A.I(f's_add_u32 s{S_T3}, s{S_T3}, s{S_H}')
    A.I(f's_lshl_b32 s{S_T3}, s{S_T3}, 10')
    A.I(f'buffer_load_dwordx2 v[12:13], v6, {sx}, s{S_T3} offen')
    A.I(f'buffer_load_dwordx2 v[14:15], v6, {sx}, s{S_T3} offen offset:32')


def ts_tok(A, i):
    if TIMING:
        A.I(f's_add_u32 s{S_G}, s{S_G}, 1')
        tstamp(A, i, 14 if i in (1, 2, 7, 8) else 6)
        A.I(f's_sub_u32 s{S_G}, s{S_G}, 1')


G1ACC = 120
G1T = 144
L_G1 = 0
L_RED = 65536
L_W2 = 73728


def g1_lane(A):
    t = G1T
    A.I(f'v_lshrrev_b32 v{t}, 3, v0')
    A.I(f'v_and_b32 v{t + 1}, 7, v0')
    A.I(f'v_bfe_u32 v{t + 2}, v0, 4, 1')
    A.I(f's_and_b32 s{S_T0}, s{S_WV}, 1')
    A.I(f's_lshl_b32 s{S_T0}, s{S_T0}, 1')
    A.I(f'v_or_b32 v{t + 2}, s{S_T0}, v{t + 2}')
    A.I(f'v_lshlrev_b32 v{t + 2}, 1, v{t + 2}')
    A.I(f'v_xor_b32 v{t + 1}, v{t + 1}, v{t + 2}')
    A.I(f'v_lshlrev_b32 v{t + 1}, 4, v{t + 1}')
    A.I(f'v_mul_u32_u24 v136, 3584, v{t}')
    A.I(f'v_add_u32 v136, v136, v{t + 1}')
    A.I(f'v_lshl_add_u32 v137, v{t}, 10, v{t + 1}')
    A.I(f'v_and_b32 v{t}, 15, v0')
    A.I(f'v_lshrrev_b32 v{t + 1}, 4, v0')
    A.I(f'v_lshrrev_b32 v{t + 2}, 2, v{t}')
    A.I(f'v_and_b32 v{t + 3}, 3, v{t}')
    A.I(f'v_lshl_add_u32 v{t + 4}, v{t + 1}, 3, v{t + 2}')
    A.I(f'v_lshlrev_b32 v{t + 4}, 7, v{t + 4}')
    A.I(f'v_lshl_add_u32 v{t + 4}, v{t + 3}, 3, v{t + 4}')
    A.I(f'v_lshrrev_b32 v{t + 5}, 1, v{t + 2}')
    A.I(f'v_and_b32 v{t + 6}, 1, v{t + 1}')
    A.I(f'v_lshl_add_u32 v{t + 5}, v{t + 6}, 1, v{t + 5}')
    A.I(f'v_xor_b32 v{t + 6}, s{S_T0}, v{t + 5}')
    A.I(f'v_lshl_add_u32 v138, v{t + 6}, 5, v{t + 4}')
    A.I(f'v_xor_b32 v139, 32, v138')
    A.I(f's_and_b32 s{S_T0}, s{S_WV}, 2')
    A.I(f'v_xor_b32 v{t + 6}, s{S_T0}, v{t + 5}')
    A.I(f'v_lshl_add_u32 v140, v{t + 6}, 5, v{t + 4}')
    A.I(f'v_add_u32 v140, 16384, v140')
    A.I(f'v_xor_b32 v141, 32, v140')


def g1_w1_dma(A, s_k, first=False, plus=0):
    if first:
        g1_lane(A)
    w1 = f's[{S_W1}:{S_W1 + 3}]'
    A.I(f's_add_u32 s{S_T2}, s{s_k}, {plus}')
    A.I(f's_mul_i32 s{S_T0}, s{S_T2}, {128 * 3584}')
    A.I(f's_mul_i32 s{S_T1}, s{S_WV}, {8 * 3584}')
    A.I(f's_add_u32 s{S_T0}, s{S_T0}, s{S_T1}')
    A.I(f's_lshr_b32 s{S_T1}, s{S_J}, 3')
    A.I(f's_lshl_b32 s{S_T1}, s{S_T1}, 7')
    A.I(f's_add_u32 s{S_T0}, s{S_T0}, s{S_T1}')
    A.I(f's_and_b32 s{S_T1}, s{S_T2}, 1')
    A.I(f's_lshl_b32 s{S_T1}, s{S_T1}, 15')
    A.I(f's_lshl_b32 s{S_T2}, s{S_WV}, 10')
    A.I(f's_add_u32 s{S_T1}, s{S_T1}, s{S_T2}')
    for i in range(4):
        A.I(f's_add_u32 m0, s{S_T1}, {L_G1 + i * 4096}')
        A.I(f's_add_u32 s{S_T2}, s{S_T0}, {i * 32 * 3584}')
        A.I(f'buffer_load_dwordx4 v136, {w1}, s{S_T2} offen lds')


def g1_chunk(A, s_k, l_exit):
    ws = f's[{S_WS}:{S_WS + 3}]'
    A.I(f's_lshl_b32 s{S_T0}, s{s_k}, 17')
    A.I(f's_lshl_b32 s{S_T1}, s{S_WV}, 13')
    A.I(f's_add_u32 s{S_T0}, s{S_T0}, s{S_T1}')
    A.I(f's_and_b32 s{S_T1}, s{S_J}, 7')
    A.I(f's_lshl_b32 s{S_T1}, s{S_T1}, 7')
    A.I(f's_add_u32 s{S_T0}, s{S_T0}, s{S_T1}')
    A.I(f's_add_u32 s{S_T0}, s{S_T0}, 0x{WS_HP:x}')
    A.I(f's_and_b32 s{S_T3}, s{s_k}, 1')
    A.I(f's_lshl_b32 s{S_T3}, s{S_T3}, 15')
    A.I(f's_lshl_b32 s{S_T2}, s{S_WV}, 10')
    A.I(f's_add_u32 s{S_T1}, s{S_T3}, s{S_T2}')
    for i in range(4):
        A.I(f's_add_u32 m0, s{S_T1}, {L_G1 + 16384 + i * 4096}')
        A.I(f's_add_u32 s{S_T2}, s{S_T0}, {i * 32 * 1024}')
        A.I(f'buffer_load_dwordx4 v137, {ws}, s{S_T2} offen lds')
    AD = G1T
    for j in range(4):
        A.I(f'v_add_u32 v{AD + j}, s{S_T3}, v{138 + j}')
    g1_w1_dma(A, s_k, plus=1)
    A.I('s_waitcnt vmcnt(4)')
    A.I('s_barrier')
    FR = G1T + 8

    def rd(ks):
        for j in range(4):
            for x in range(2):
                A.I(f'ds_read_b64_tr_b16 {v(FR + 16 * ks + 4 * j + 2 * x, 2)}, v{AD + j} offset:{L_G1 + (32 * ks + 4 * x) * 128}')

    rd(0)
    for ks in range(4):
        if ks < 3:
            rd(ks + 1)
            A.I('s_waitcnt lgkmcnt(8)')
        else:
            A.I('s_waitcnt lgkmcnt(0)')
        f = FR + 16 * ks
        for mbp in range(2):
            for nbp in range(2):
                d = G1ACC + (mbp * 2 + nbp) * 4
                A.I(f'v_mfma_f32_16x16x32_bf16 {v(d, 4)}, {v(f + 4 * mbp, 4)}, {v(f + 8 + 4 * nbp, 4)}, {v(d, 4)}')


def g1_epilogue(A, l_exit):
    import math
    ws, b1 = f's[{S_WS}:{S_WS + 3}]', f's[{S_B1}:{S_B1 + 3}]'
    ACC, BI, Z, Pk, TT, O = G1ACC, 150, 160, 168, 172, 188
    A.I(f's_lshr_b32 s{S_T2}, s{S_J}, 3')
    A.I(f's_lshl_b32 s{S_T0}, s{S_T2}, 7')
    A.I(f's_and_b32 s{S_T1}, s{S_WV}, 1')
    A.I(f's_lshl_b32 s{S_T1}, s{S_T1}, 6')
    A.I(f's_add_u32 s{S_T0}, s{S_T0}, s{S_T1}')
    A.I('v_lshrrev_b32 v144, 4, v0')
    A.I('v_lshlrev_b32 v144, 3, v144')
    A.I(f'buffer_load_dwordx2 v[146:147], v144, {b1}, s{S_T0} offen')
    A.I(f'buffer_load_dwordx2 v[148:149], v144, {b1}, s{S_T0} offen offset:32')
    A.I(f's_and_b32 s{S_T0}, s{S_J}, 7')
    A.I(f's_lshl_b32 s{S_T0}, s{S_T0}, 2')
    A.I(f's_and_b32 s{S_T1}, s{S_WV}, 2')
    A.I(f's_add_u32 s{S_T0}, s{S_T0}, s{S_T1}')
    A.I(f's_mul_i32 s{S_T0}, s{S_T0}, 56')
    A.I(f's_lshl_b32 s{S_T1}, s{S_T2}, 1')
    A.I(f's_add_u32 s{S_T0}, s{S_T0}, s{S_T1}')
    A.I(f's_and_b32 s{S_T1}, s{S_WV}, 1')
    A.I(f's_add_u32 s{S_T0}, s{S_T0}, s{S_T1}')
    A.I(f's_lshl_b32 s{S_T0}, s{S_T0}, 10')
    A.I(f's_add_u32 s{S_T0}, s{S_T0}, 0x{WS_U:x}')
    k1 = -2 * math.sqrt(2 / math.pi) * math.log2(math.e)
    A.I(f's_mov_b32 s{S_T2}, {f32(k1)}')
    A.I(f's_mov_b32 s{S_T3}, {f32(k1 * 0.044715)}')
    A.I('v_lshlrev_b32 v145, 4, v0')
    A.I('s_waitcnt vmcnt(0)')
    for i in range(4):
        A.I(f'v_lshlrev_b32 v{BI + 2 * i}, 16, v{146 + i}')
        A.I(f'v_and_b32 v{BI + 2 * i + 1}, 0xffff0000, v{146 + i}')
    for nbp in range(2):
        for mbp in range(2):
            for r in range(4):
                A.I(f'v_mov_b32 v{Z + 4 * mbp + r}, v{ACC + (mbp * 2 + nbp) * 4 + r}')
        T.round_bf16(A, Z, Pk)
        for i in range(8):
            A.I(f'v_add_f32 v{Z + i}, v{Z + i}, v{BI + i}')
        T.round_bf16(A, Z, Pk)
        for i in range(8):
            t = TT + i
            A.I(f'v_mul_f32 v{t}, v{Z + i}, v{Z + i}')
            A.I(f'v_mov_b32 v{t + 8}, s{S_T2}')
            A.I(f'v_fmac_f32 v{t + 8}, s{S_T3}, v{t}')
            A.I(f'v_mul_f32 v{t}, v{t + 8}, v{Z + i}')
            A.I(f'v_exp_f32 v{t}, v{t}')
        for i in range(8):
            A.I(f'v_add_f32 v{TT + i}, 1.0, v{TT + i}')
            A.I(f'v_rcp_f32 v{TT + i}, v{TT + i}')
        for i in range(8):
            A.I(f'v_mul_f32 v{Z + i}, v{Z + i}, v{TT + i}')
        o = O + 4 * nbp
        for i in range(4):
            A.I(f'v_cvt_pk_bf16_f32 v{o + i}, v{Z + 2 * i}, v{Z + 2 * i + 1}')
        A.I(f'buffer_store_dwordx4 {v(o, 4)}, v145, {ws}, s{S_T0} offen sc1')
        A.I(f's_add_u32 s{S_T0}, s{S_T0}, {56 * 1024}')
    A.I('s_waitcnt vmcnt(0)')
    A.I('s_barrier')
    l = A.newlabel('L_ue')
    A.I(f's_cmp_lg_u32 s{S_WV}, 0')
    A.br(f's_cbranch_scc1 {l}')
    A.I(f's_lshl_b32 s{S_T2}, s{S_G}, 7')
    A.I(f's_add_u32 s{S_T2}, s{S_T2}, 0x{F_LU:x}')
    A.I(f's_lshl_b32 s{S_T3}, s{S_G}, 2')
    A.I(f's_add_u32 s{S_T3}, s{S_T3}, 0x{F_GF + 256:x}')
    garrive(A, S_T2, S_T3, 144, l_exit)
    A.label(l)


def g2_slot(k):
    return L_W2 + 16384 * (k % 5)


S_PRE = 62


def g2_pre(A, rnd):
    t = G1T
    A.I(f'v_and_b32 v{t}, 15, v0')
    A.I(f'v_lshrrev_b32 v{t + 1}, 4, v0')
    A.I(f'v_lshrrev_b32 v{t + 2}, 2, v{t}')
    A.I(f'v_and_b32 v{t + 3}, 3, v{t}')
    A.I(f'v_lshl_add_u32 v{t + 2}, v{t + 1}, 2, v{t + 2}')
    A.I(f'v_bfe_u32 v{t + 1}, v{t + 2}, 1, 2')
    A.I(f'v_lshlrev_b32 v{t + 2}, 7, v{t + 2}')
    A.I(f'v_lshl_add_u32 v{t + 2}, v{t + 3}, 3, v{t + 2}')
    A.I(f'v_lshl_add_u32 v{t + 2}, v{t + 1}, 5, v{t + 2}')
    A.I(f's_lshl_b32 s{S_T0}, s{S_WV}, 12')
    A.I(f's_add_u32 s{S_T0}, s{S_T0}, {L_W2}')
    for j in range(4):
        A.I(f'v_xor_b32 v{t + 4 + j}, {32 * j}, v{t + 2}')
        A.I(f'v_add_u32 v{t + 4 + j}, s{S_T0}, v{t + 4 + j}')
        A.I(f'v_add_u32 v{t + 8 + j}, 49152, v{t + 4 + j}')
    A.I('s_waitcnt vmcnt(0)')
    A.I('s_barrier')
    ks_ = list(range(5 * rnd, min(5 * rnd + 5, 14)))
    for k in ks_:
        so = 16384 * (k % 5)
        ab = t + 4
        if so >= 49152:
            so -= 49152
            ab = t + 8
        for j in range(4):
            for x in range(2):
                A.I(f'ds_read_b64_tr_b16 {a(16 * k + 4 * j + 2 * x, 2)}, v{ab + j} offset:{so + 16 * x * 128}')
        A.I('s_waitcnt lgkmcnt(4)')
    A.I('s_waitcnt lgkmcnt(0)')
    if rnd < 2:
        A.I('s_barrier')
        for k in range(5 * rnd + 5, min(5 * rnd + 10, 14)):
            g2_dma(A, k)
    A.I(f's_mov_b32 s{S_PRE}, {rnd + 1}')


def g2_setup(A):
    A.I(f's_load_dwordx2 s[16:17], s[0:1], {KA_W2}')
    A.I('s_waitcnt lgkmcnt(0)')
    make_srd(A, S_W2, 16, 1792 * 4096)
    t = G1T
    A.I(f'v_lshrrev_b32 v{t}, 3, v0')
    A.I(f'v_and_b32 v{t + 1}, 7, v0')
    A.I(f'v_lshrrev_b32 v{t + 2}, 4, v0')
    A.I(f'v_lshlrev_b32 v{t + 2}, 1, v{t + 2}')
    A.I(f'v_xor_b32 v{t + 1}, v{t + 1}, v{t + 2}')
    A.I(f'v_lshlrev_b32 v{t + 1}, 4, v{t + 1}')
    A.I(f'v_lshl_add_u32 v142, v{t}, 12, v{t + 1}')
    A.I(f's_lshl_b32 s{S_BO2}, s{S_WV}, 15')
    A.I(f's_lshr_b32 s{S_T0}, s{S_J2}, 3')
    A.I(f's_lshl_b32 s{S_T0}, s{S_T0}, 7')
    A.I(f's_add_u32 s{S_BO2}, s{S_BO2}, s{S_T0}')
    A.I(f's_lshl_b32 s{S_LB2}, s{S_WV}, 10')


def g2_dma(A, k, vr=142):
    w2 = f's[{S_W2}:{S_W2 + 3}]'
    for i in range(4):
        A.I(f's_add_u32 m0, s{S_LB2}, {g2_slot(k) + i * 4096}')
        A.I(f's_add_u32 s{S_T0}, s{S_BO2}, {(k * 128 + i * 32) * 4096}')
        A.I(f'buffer_load_dwordx4 v{vr}, {w2}, s{S_T0} offen lds')


def g2_touch(A, k0):
    w2 = f's[{S_W2}:{S_W2 + 3}]'
    A.I('v_lshlrev_b32 v143, 12, v0')
    A.I(f's_lshr_b32 s{S_T0}, s{S_J2}, 3')
    A.I(f's_lshl_b32 s{S_T0}, s{S_T0}, 7')
    A.I(f's_lshl_b32 s{S_T1}, s{S_WV}, 18')
    A.I(f's_add_u32 s{S_T0}, s{S_T0}, s{S_T1}')
    for r0 in range(k0 * 128, 1792, 256):
        A.I(f's_add_u32 s{S_T1}, s{S_T0}, {r0 * 4096}')
        A.I(f'buffer_load_dword v5, v143, {w2}, s{S_T1} offen')


def g2_main(A, l_exit):
    ws = f's[{S_WS}:{S_WS + 3}]'
    S_O, S_B2 = S_W1, S_B1
    A.I(f's_load_dwordx4 s[16:19], s[0:1], {KA_B2}')
    for rnd in range(3):
        l = A.newlabel('L_pre')
        A.I(f's_cmp_gt_u32 s{S_PRE}, {rnd}')
        A.br(f's_cbranch_scc1 {l}')
        g2_pre(A, rnd)
        A.label(l)
        A.forget_loads()
    A.I('s_waitcnt lgkmcnt(0)')
    make_srd(A, S_B2, 16, 4096)
    make_srd(A, S_O, 18, 2048 * 1024)
    b2, out = f's[{S_B2}:{S_B2 + 3}]', f's[{S_O}:{S_O + 3}]'
    S_AO, S_EO = 36, 37
    A.I(f's_and_b32 s{S_T0}, s{S_J2}, 7')
    A.I(f's_mul_i32 s{S_AO}, s{S_T0}, {4 * 56 * 1024}')
    A.I(f's_lshl_b32 s{S_T1}, s{S_WV}, 10')
    A.I(f's_add_u32 s{S_AO}, s{S_AO}, s{S_T1}')
    A.I(f's_add_u32 s{S_AO}, s{S_AO}, 0x{WS_U:x}')
    A.I(f's_lshl_b32 s{S_T0}, s{S_T0}, 2')
    A.I(f's_add_u32 s{S_T0}, s{S_T0}, s{S_WV}')
    A.I(f's_lshr_b32 s{S_T1}, s{S_J2}, 3')
    A.I(f's_lshl_b32 s{S_EO}, s{S_T1}, 16')
    A.I(f's_lshl_b32 s{S_T0}, s{S_T0}, 5')
    A.I(f's_add_u32 s{S_EO}, s{S_EO}, s{S_T0}')
    A.I('v_lshlrev_b32 v5, 4, v0')
    A.I('v_and_b32 v1, 15, v0')
    A.I('v_lshrrev_b32 v2, 4, v0')
    A.I('v_lshlrev_b32 v3, 10, v1')
    A.I('v_lshl_add_u32 v3, v2, 3, v3')
    A.I('v_lshlrev_b32 v4, 1, v1')
    A.I(f's_lshl_b32 s{S_T1}, s{S_T1}, 7')
    HB, BB, ACC, AR = 10, 18, 24, 88
    NA = 42
    for nb in range(4):
        A.I(f'buffer_load_ushort v{BB + nb}, v4, {b2}, s{S_T1} offen offset:{32 * nb}')
    l0 = A.newlabel('L_g20')
    A.I(f's_cmp_lg_u32 s{S_WV}, 0')
    A.br(f's_cbranch_scc1 {l0}')
    A.I(f's_lshl_b32 s{S_T1}, s{S_G}, 9')
    A.I(f's_add_u32 s{S_T1}, s{S_T1}, 0x{F_GF + 256:x}')
    poll_flags(A, S_T1, 7, 1, 6, 7, l_exit, sleep=1)
    A.label(l0)
    A.I('s_waitcnt vmcnt(0)')
    A.I('s_barrier')
    tstamp(A, 5, 8)
    vmq = []

    def aload(i):
        k, db = i >> 2, i & 3
        off = db * 56 * 1024 + k * 4096
        A.I(f's_add_u32 s{S_T1}, s{S_AO}, {off}')
        A.I(f'buffer_load_dwordx4 {v(AR + 4 * (i % NA), 4)}, v5, {ws}, s{S_T1} offen')
        vmq.append(('a', i))

    def need(names):
        idx = max([i for i, p in enumerate(vmq) if p in names] + [-1])
        if idx >= 0:
            A.I(f's_waitcnt vmcnt({len(vmq) - 1 - idx})')
            del vmq[:idx + 1]

    for i in range(NA):
        aload(i)
    for nb in range(4):
        A.I(f's_add_u32 s{S_T0}, s{S_EO}, 0x{WS_H + nb * 16384:x}')
        A.I(f'buffer_load_dwordx2 {v(HB + 2 * nb, 2)}, v3, {ws}, s{S_T0} offen')
        vmq.append(('h', 0))
    for i in range(56):
        k, db = i >> 2, i & 3
        need([('a', i)])
        if i == 0 and TIMING:
            A.check = False
            tstamp(A, 19, 8)
            vmq.append(('ts', 0))
            A.check = True
        for nb in range(4):
            d = ACC + 16 * db + 4 * nb
            c = '0' if k == 0 else v(d, 4)
            A.I(f'v_mfma_f32_16x16x32_bf16 {v(d, 4)}, {v(AR + 4 * (i % NA), 4)}, {a(16 * k + 4 * nb, 4)}, {c}')
        if i + NA < 56:
            aload(i + NA)
    A.I(f's_lshl_b32 s{S_T0}, s{S_WV}, 12')
    A.I(f'v_add_u32 v6, s{S_T0}, v5')
    for db in range(4):
        for nb in range(4):
            A.I(f'ds_write_b128 v6, {v(ACC + 16 * db + 4 * nb, 4)} offset:{db * 16384 + nb * 1024}')
        A.I('s_waitcnt lgkmcnt(8)')
    A.I(f's_lshl_b32 s{S_T0}, s{S_WV}, 14')
    A.I(f'v_add_u32 v6, s{S_T0}, v5')
    A.I('s_waitcnt lgkmcnt(0)')
    A.I('s_barrier')
    for j in range(16):
        A.I(f'ds_read_b128 {v(ACC + 4 * j, 4)}, v6 offset:{1024 * j}')
        if j == 11:
            A.I('s_waitcnt lgkmcnt(8)')
    A.I('s_waitcnt lgkmcnt(0) vmcnt(0)')
    tstamp(A, 18, 8)
    for r in range(0, 16, 2):
        A.I(f'v_pk_add_f32 {v(ACC + r, 2)}, {v(ACC + r, 2)}, {v(ACC + 16 + r, 2)}')
        A.I(f'v_pk_add_f32 {v(ACC + 32 + r, 2)}, {v(ACC + 32 + r, 2)}, {v(ACC + 48 + r, 2)}')
    for r in range(0, 16, 2):
        A.I(f'v_pk_add_f32 {v(ACC + r, 2)}, {v(ACC + r, 2)}, {v(ACC + 32 + r, 2)}')
    for nb in range(4):
        d = ACC + 4 * nb
        t = 88
        A.I(f'v_cvt_pk_bf16_f32 v{t}, v{d}, v{d + 1}')
        A.I(f'v_cvt_pk_bf16_f32 v{t + 1}, v{d + 2}, v{d + 3}')
        A.I(f'v_lshlrev_b32 v{t + 2}, 16, v{BB + nb}')
        for i in range(2):
            A.I(f'v_lshlrev_b32 v{d + 2 * i}, 16, v{t + i}')
            A.I(f'v_and_b32 v{d + 2 * i + 1}, 0xffff0000, v{t + i}')
        for r in range(4):
            A.I(f'v_add_f32 v{d + r}, v{d + r}, v{t + 2}')
        A.I(f'v_cvt_pk_bf16_f32 v{t}, v{d}, v{d + 1}')
        A.I(f'v_cvt_pk_bf16_f32 v{t + 1}, v{d + 2}, v{d + 3}')
        for i in range(2):
            A.I(f'v_lshlrev_b32 v{d + 2 * i}, 16, v{t + i}')
            A.I(f'v_and_b32 v{d + 2 * i + 1}, 0xffff0000, v{t + i}')
            A.I(f'v_lshlrev_b32 v{t + 2}, 16, v{HB + 2 * nb + i}')
            A.I(f'v_and_b32 v{t + 3}, 0xffff0000, v{HB + 2 * nb + i}')
            A.I(f'v_add_f32 v{d + 2 * i}, v{d + 2 * i}, v{t + 2}')
            A.I(f'v_add_f32 v{d + 2 * i + 1}, v{d + 2 * i + 1}, v{t + 3}')
        o = 92 + 2 * nb
        A.I(f'v_cvt_pk_bf16_f32 v{o}, v{d}, v{d + 1}')
        A.I(f'v_cvt_pk_bf16_f32 v{o + 1}, v{d + 2}, v{d + 3}')
        A.I(f's_add_u32 s{S_T0}, s{S_EO}, {nb * 16384}')
        A.I(f'buffer_store_dwordx2 {v(o, 2)}, v3, {out}, s{S_T0} offen')


def red4(A, s_seg, srd_x, l_exit):
    ws = f's[{S_WS}:{S_WS + 3}]'
    B, Z, Pk, XR, t0, t1, va = 192, 144, 152, 12, 160, 161, 162
    A.I(f's_lshl_b32 s{S_T2}, s{s_seg}, 5')
    A.I(f's_add_u32 s{S_T2}, s{S_T2}, s{S_H}')
    A.I(f's_lshl_b32 s{S_T0}, s{S_OPS}, 5')
    A.I(f's_add_u32 s{S_T0}, s{S_T0}, s{S_H}')
    A.I(f's_lshl_b32 s{S_T0}, s{S_T0}, 15')
    A.I(f's_xor_b32 s{S_OPS}, s{S_OPS}, 1')
    A.I(f's_lshl_b32 s{S_T1}, s{S_WV}, 13')
    A.I(f's_add_u32 s{S_T0}, s{S_T0}, s{S_T1}')
    A.I(f's_add_u32 s{S_T0}, s{S_T0}, 0x{WS_OP:x}')
    A.I(f's_add_u32 s{S_T1}, s{S_T0}, 4096')
    for hh in range(8):
        so = S_T0 if hh < 4 else S_T1
        A.I(f'buffer_load_dwordx4 {v(B + 4 * hh, 4)}, v1, {ws}, s{so} offen offset:{1024 * (hh & 3)} sc1')
    A.I(f's_lshl_b32 s{S_T3}, s{S_T2}, 10')
    A.I(f'v_lshrrev_b32 v{va}, 2, v0')
    A.I(f'v_lshlrev_b32 v{va}, 6, v{va}')
    A.I(f'v_and_b32 v{t0}, 3, v0')
    A.I(f'v_lshl_add_u32 v{va}, v{t0}, 3, v{va}')
    for hh in range(8):
        A.I(f's_waitcnt vmcnt({7 - hh})')
        for i in range(4):
            r = B + 4 * hh + i
            if hh == 0:
                A.I(f'v_lshlrev_b32 v{Z + 2 * i}, 16, v{r}')
                A.I(f'v_and_b32 v{Z + 2 * i + 1}, 0xffff0000, v{r}')
            else:
                A.I(f'v_lshlrev_b32 v{t0}, 16, v{r}')
                A.I(f'v_and_b32 v{t1}, 0xffff0000, v{r}')
                A.I(f'v_add_f32 v{Z + 2 * i}, v{Z + 2 * i}, v{t0}')
                A.I(f'v_add_f32 v{Z + 2 * i + 1}, v{Z + 2 * i + 1}, v{t1}')
    A.I(f's_lshl_b32 s{S_T0}, s{S_WV}, 11')
    A.I(f'v_add_u32 v{t0}, s{S_T0}, v1')
    A.I(f'v_add_u32 v{t0}, {L_RED}, v{t0}')
    A.I(f'ds_write_b128 v{t0}, {v(Z, 4)}')
    A.I(f'ds_write_b128 v{t0}, {v(Z + 4, 4)} offset:1024')
    A.I('s_waitcnt lgkmcnt(0) vmcnt(0)')
    A.I('s_barrier')
    ts_tok(A, 15)
    l = A.newlabel('L_r4')
    A.I(f's_cmp_lg_u32 s{S_WV}, 0')
    A.br(f's_cbranch_scc1 {l}')
    for w_ in range(1, 4):
        for j in range(2):
            A.I(f'ds_read_b128 {v(B + 8 * w_ + 4 * j, 4)}, v{t0} offset:{2048 * w_ + 1024 * j}')
    A.I('s_waitcnt lgkmcnt(0)')
    for w_ in range(1, 4):
        for i in range(8):
            A.I(f'v_add_f32 v{Z + i}, v{Z + i}, v{B + 8 * w_ + i}')
    T.round_bf16(A, Z, Pk)
    for i in range(4):
        A.I(f'v_lshlrev_b32 v{t0}, 16, v{XR + i}')
        A.I(f'v_and_b32 v{t1}, 0xffff0000, v{XR + i}')
        A.I(f'v_add_f32 v{Z + 2 * i}, v{Z + 2 * i}, v{t0}')
        A.I(f'v_add_f32 v{Z + 2 * i + 1}, v{Z + 2 * i + 1}, v{t1}')
    T.round_bf16(A, Z, Pk)
    A.I(f's_add_u32 s{S_T0}, s{S_T3}, 0x{WS_H:x}')
    A.I(f'buffer_store_dwordx2 {v(Pk, 2)}, v{va}, {ws}, s{S_T0} offen sc1')
    A.I(f'buffer_store_dwordx2 {v(Pk + 2, 2)}, v{va}, {ws}, s{S_T0} offen offset:32 sc1')
    T.ln_regs(A, Z, t0, t1)
    T.round_bf16(A, Z, XR)
    T.ln_regs(A, Z, t0, t1)
    for i in range(4):
        A.I(f'v_cvt_pk_bf16_f32 v{XR + i}, v{Z + 2 * i}, v{Z + 2 * i + 1}')
    A.I(f's_add_u32 s{S_T0}, s{S_T3}, 0x{WS_HP:x}')
    A.I(f'buffer_store_dwordx2 {v(XR, 2)}, v{va}, {ws}, s{S_T0} offen sc1')
    A.I(f'buffer_store_dwordx2 {v(XR + 2, 2)}, v{va}, {ws}, s{S_T0} offen offset:32 sc1')
    A.I(f's_lshl_b32 s{S_T2}, s{s_seg}, 7')
    A.I(f's_add_u32 s{S_T2}, s{S_T2}, 0x{F_LH:x}')
    A.I(f's_lshl_b32 s{S_T3}, s{s_seg}, 2')
    A.I(f's_add_u32 s{S_T3}, s{S_T3}, 0x{F_GF:x}')
    A.I('s_waitcnt vmcnt(0)')
    garrive(A, S_T2, S_T3, t0, l_exit)
    A.label(l)


if __name__ == '__main__':
    A = Asm()
    nm = NAME + '_kernel'
    mega_kernel(A, nm)
    hd = header([(nm, 256, 256, R.L_TOTAL)])
    if os.environ.get('FINAL'):
        hd = hd.replace(f'@launch kernel={nm} ', '@launch ')
    txt = hd + A.text() + '.section .rodata,"a"\n' + kernel_desc(nm, 512, 256)
    out = os.environ.get('OUT', 'm3.s')
    open(out, 'w').write(txt)
    print(len(txt))
```

```python
from common import *
import os, math, struct
STAMPS = bool(os.environ.get('STAMPS'))
NSTEPS = 63
LDF = os.environ.get('LDF', 'sc1').replace('_', ' ')
STF = os.environ.get('STF', '').replace('_', ' ')
EXF = os.environ.get('EXF', 'sc1')
E = lambda k, d: int(os.environ.get(k, d))
TOUCH_AHEAD = E('TOUCH_AHEAD', 1)
PB_DELAY, PB_GAP, AF_DELAY, AF_GAP = E('PB_DELAY', 0), E('PB_GAP', 0), E('AF_DELAY', 0), E('AF_GAP', 3)
OUT = os.environ.get('OUT', 'rec_test.s')

L_QX = 0
L_KX_ = 2560
L_VM = 5120
L_AF = 7168
L_OX = L_AF
L_KV = 15360
L_WO = 31744
L_HALF = 65792
L_TOTAL = L_WO + 2 * L_HALF

PB_GRP = 8448
PB_SLOT = 0x48000

S_WS, S_W, S_DBG = 4, 8, 12
S_H, S_WV, S_STEP = 32, 33, 34
S_SPIN = 35
S_MBR, S_MBW = 36, 37
S_TAG = 47
S_PB0, S_PB1 = 38, 39
S_PB0H = 40
S_AFO = 41
S_TCH = 42
S_KVN = 44
S_KMO, S_VMO = 45, 46
S_T0, S_T1, S_T2, S_T3 = 48, 49, 50, 51
S_C = 52
S_ONE = 54
S_TS = 56
S_M0, S_M1 = 16, 18
S_W640 = 20
S_KVM0 = 62
S_W11 = 63

AF = 0
ACC = 32
KX = 56
VX = 88
T = 96
V_IDX, V_L16, V_QKW, V_QR, V_KR, V_OW, V_WO0, V_WO1, V_PBW, V_RDR, V_MBW, V_SEL, V_VX, V_SP, V_MX, V_TM = range(112, 128)
S_PZ = 43
LANE = 100

LDS_SLOT = {}
_l0 = [('q', 0, 0), ('q', 1, 0), ('q', 0, 1), ('q', 1, 1), ('k', 0, 0), ('k', 1, 0), ('o', 6, 0), ('o', 7, 0)]
_l1 = [('k', 0, 1), ('k', 1, 1), ('k', 0, 2), ('k', 1, 2), ('k', 0, 3), ('k', 1, 3), ('o', 6, 1), ('o', 7, 1)]
for i, f in enumerate(_l0):
    LDS_SLOT[f] = (0, i)
for i, f in enumerate(_l1):
    LDS_SLOT[f] = (1, i)
HOME = {}
_h = 0
for mat in 'qkv':
    for nb in range(2):
        for t in range(8):
            HOME[(mat, nb, t)] = (256 + _h * 8) if _h < 32 else (128 + (_h - 32) * 8)
            _h += 1
for t2 in range(2):
    vac = [f for f, (hf, sl) in LDS_SLOT.items() if hf == t2 and f[0] != 'o']
    assert len(vac) == 6
    for nbo in range(6):
        HOME[('o', nbo, t2)] = HOME[vac[nbo]]


def lds_frag_read(A, f, b):
    hf, sl = LDS_SLOT[f]
    va = V_WO1 if hf else V_WO0
    A.I(f'ds_read_b128 {v(b, 4)}, v{va} offset:{sl * 2048}')
    A.I(f'ds_read_b128 {v(b + 4, 4)}, v{va} offset:{sl * 2048 + 1024}')


def lane_fields(A, vt, vg, vn):
    A.I(f'v_and_b32 v{vn}, 15, v{vt}')
    A.I(f'v_bfe_u32 v{vg}, v{vt}, 4, 2')


def stage_weights(A, ptr_sgprs, hook=None, hook_issue=None, hook_check=None, hook_sc=None):
    g, n = 2, 3
    lane_fields(A, LANE, g, n)
    VD0, VD1 = 4, 5
    A.I(f'v_lshrrev_b32 v6, 5, v{LANE}')
    A.I(f's_and_b32 s{S_T0}, s{S_WV}, 1')
    A.I(f's_lshl_b32 s{S_T0}, s{S_T0}, 1')
    A.I(f'v_or_b32 v6, s{S_T0}, v6')
    A.I(f'v_lshlrev_b32 v6, 1, v6')
    A.I(f'v_xor_b32 v6, v6, v{n}')
    A.I(f'v_lshlrev_b32 v6, 4, v6')
    A.I(f'v_lshlrev_b32 v7, 13, v{g}')
    A.I(f'v_or_b32 v{VD0}, v6, v7')
    A.I(f'v_xor_b32 v{VD1}, 0x80, v{VD0}')
    A.I(f'v_lshrrev_b32 v6, 2, v{n}')
    A.I(f'v_and_b32 v7, 3, v{n}')
    A.I(f'v_and_b32 v8, 1, v6')
    A.I(f'v_lshrrev_b32 v9, 1, v6')
    A.I(f'v_and_b32 v10, 1, v{g}')
    A.I(f'v_lshrrev_b32 v11, 1, v{g}')
    A.I(f'v_lshlrev_b32 v12, 7, v11')
    A.I(f'v_lshl_add_u32 v12, v10, 1, v12')
    A.I(f'v_lshl_add_u32 v12, v8, 4, v12')
    A.I(f'v_lshl_add_u32 v12, v9, 2, v12')
    A.I(f'v_lshl_add_u32 v13, v9, 1, v10')
    A.I(f'v_lshl_add_u32 v13, v8, 2, v13')
    A.I(f's_lshl_b32 s{S_T0}, s{S_WV}, 1')
    A.I(f'v_xor_b32 v13, s{S_T0}, v13')
    A.I(f'v_lshlrev_b32 v14, 8, v12')
    A.I(f'v_lshl_add_u32 v14, v13, 5, v14')
    A.I(f'v_lshl_add_u32 v14, v7, 3, v14')
    VT = {}
    A.I(f'v_xor_b32 v15, 32, v14')
    r = 64
    for cu in range(4):
        A.I(f's_xor_b32 s{S_T0}, s{S_WV}, {cu}')
        A.I(f's_lshl_b32 s{S_T0}, s{S_T0}, 13')
        for bf in range(2):
            A.I(f's_add_u32 s{S_T1}, s{S_T0}, {L_WO + bf * L_HALF}')
            for nb in range(2):
                VT[(nb, bf, cu)] = r
                A.I(f'v_add_u32 v{r}, s{S_T1}, v{14 + nb}')
                r += 1
    A.I(f'v_lshl_add_u32 v13, v9, 1, v8')
    A.I(f'v_lshl_add_u32 v13, v10, 2, v13')
    A.I(f'v_lshlrev_b32 v14, 13, v13')
    A.I(f'v_lshl_add_u32 v14, v11, 11, v14')
    A.I(f'v_lshl_add_u32 v14, v13, 5, v14')
    A.I(f'v_lshl_add_u32 v14, v7, 3, v14')
    A.I(f's_lshl_b32 s{S_T0}, s{S_WV}, 8')
    A.I(f'v_add_u32 v14, s{S_T0}, v14')
    VTO = {0: 20, 1: 21}
    A.I(f'v_add_u32 v20, {L_WO}, v14')
    A.I(f'v_add_u32 v21, {L_WO + L_HALF}, v14')
    WOT = 32

    def dma(sc):
        buf = L_WO + (sc & 1) * L_HALF
        if sc < 6:
            mat, hh = sc >> 1, sc & 1
            make_srd(A, S_W, ptr_sgprs[mat], 512 * 8192)
            A.I(f's_lshl_b32 s{S_T0}, s{S_WV}, 15')
            A.I(f's_lshl_b32 s{S_T1}, s{S_H}, 8')
            A.I(f's_add_u32 s{S_T0}, s{S_T0}, s{S_T1}')
            A.I(f's_add_u32 s{S_T0}, s{S_T0}, {hh << 21}')
            A.I(f's_lshl_b32 s{S_T1}, s{S_WV}, 10')
            A.I(f's_add_u32 s{S_T1}, s{S_T1}, {buf}')
            for i in range(16):
                A.I(f's_mov_b32 m0, s{S_T1}')
                A.I(f'buffer_load_dwordx4 v{VD1 if i & 1 else VD0}, s[{S_W}:{S_W + 3}], s{S_T0} offen lds')
                if i < 15:
                    A.I(f's_add_u32 s{S_T0}, s{S_T0}, {4 * 32768}')
                    A.I(f's_add_u32 s{S_T1}, s{S_T1}, 4096')
        else:
            t2 = sc & 1
            make_srd(A, S_W, ptr_sgprs[3], 4096 * 1024)
            A.I(f's_and_b32 s{S_T0}, s{S_WV}, 1')
            A.I(f's_lshl_b32 s{S_T0}, s{S_T0}, 13')
            A.I(f's_lshr_b32 s{S_T1}, s{S_WV}, 1')
            A.I(f's_lshl_b32 s{S_T1}, s{S_T1}, 15')
            A.I(f's_add_u32 s{S_T0}, s{S_T0}, s{S_T1}')
            A.I(f's_lshl_b32 s{S_T1}, s{S_H}, 17')
            A.I(f's_add_u32 s{S_T0}, s{S_T0}, s{S_T1}')
            A.I(f's_add_u32 s{S_T0}, s{S_T0}, {t2 << 16}')
            A.I(f's_lshl_b32 s{S_T1}, s{S_WV}, 11')
            A.I(f's_add_u32 s{S_T1}, s{S_T1}, {buf}')
            for f in range(8):
                for x in range(2):
                    row = (f & 1) + 2 * x + 4 * ((f >> 1) & 1) + 16 * (f >> 2)
                    A.I(f's_add_u32 s{S_T2}, s{S_T1}, {(8 * f + x) * 1024 + 32 * f}')
                    A.I(f's_add_u32 s{S_T3}, s{S_T0}, {row * 1024}')
                    A.I(f's_mov_b32 m0, s{S_T2}')
                    A.I(f'buffer_load_dwordx4 v{V_L16}, s[{S_W}:{S_W + 3}], s{S_T3} offen lds')

    dma(0)
    dma(1)
    if hook:
        hook()
    for sc in range(8):
        A.I(f's_waitcnt vmcnt({(22 if (sc == 0 and hook_sc) else 16) if sc < 7 else 0})')
        A.I('s_barrier')
        if hook_sc:
            hook_sc(sc)
        if sc == 7 and hook_check:
            hook_check()
        cnt = 0
        if sc < 6:
            mat, hh = 'qkv'[sc >> 1], sc & 1
            for nb in range(2):
                for t in range(8):
                    for x in range(2):
                        c, nhi = t >> 1, t & 1
                        imm = (8 * nhi + x) * 256
                        if cnt >= 12:
                            A.I('s_waitcnt lgkmcnt(8)')
                            cnt = 8
                        A.I(f'ds_read_b64_tr_b16 {u(HOME[(mat, nb, t)] + 4 * hh + 2 * x, 2)}, v{VT[(nb, sc & 1, c)]} offset:{imm}')
                        cnt += 1
        else:
            for nbo in range(8):
                for hh in range(2):
                    for x in range(2):
                        imm = (x + 4 * hh) * 1024 + 32 * nbo
                        if cnt >= 12:
                            A.I('s_waitcnt lgkmcnt(8)')
                            cnt = 8
                        A.I(f'ds_read_b64_tr_b16 {v(WOT + nbo * 8 + 4 * hh + 2 * x, 2)}, v{VTO[sc & 1]} offset:{imm}')
                        cnt += 1
        A.I('s_waitcnt lgkmcnt(0)')
        A.I('s_barrier')
        if sc + 2 < 8:
            dma(sc + 2)
        if sc in (3, 5) and hook_issue:
            hook_issue(sc)
        if sc >= 6:
            t2 = sc & 1
            va = V_WO1 if t2 else V_WO0
            k = 0
            for f, (hf, sl) in LDS_SLOT.items():
                if hf != t2:
                    continue
                src = (WOT + f[1] * 8) if f[0] == 'o' else HOME[f]
                for hh in range(2):
                    A.I(f'ds_write_b128 v{va}, {u(src + 4 * hh, 4)} offset:{sl * 2048 + hh * 1024}')
                k += 1
                if k & 1 == 0:
                    A.I('s_waitcnt lgkmcnt(4)')
            A.I('s_waitcnt lgkmcnt(0)')
            for nbo in range(6):
                hm = HOME[('o', nbo, t2)]
                for r in range(8):
                    if hm >= 256:
                        A.I(f'v_accvgpr_write_b32 a{hm - 256 + r}, v{WOT + nbo * 8 + r}')
                    else:
                        A.I(f'v_mov_b32 v{hm + r}, v{WOT + nbo * 8 + r}')


def setup_consts(A):
    g, n = 2, 3
    lane_fields(A, LANE, g, n)
    A.I(f's_lshl_b32 s{S_W11}, s{S_WV}, 11')
    A.I(f'v_bfe_u32 v4, v{n}, 1, 1')
    A.I(f'v_mul_u32_u24 v4, 0xaaaa, v4')
    A.I(f'v_add_u32 v{V_IDX}, 0x4444, v4')
    A.I(f'v_lshlrev_b32 v{V_L16}, 4, v{LANE}')
    A.I(f's_mul_i32 s{S_T0}, s{S_WV}, 640')
    A.I(f'v_lshrrev_b32 v4, 2, v{n}')
    A.I(f'v_mul_u32_u24 v4, 160, v4')
    A.I(f'v_lshl_add_u32 v4, v{g}, 4, v4')
    A.I(f'v_and_b32 v5, 3, v{n}')
    A.I(f'v_lshl_add_u32 v4, v5, 2, v4')
    A.I(f'v_add_u32 v{V_QKW}, s{S_T0}, v4')
    A.I(f'v_mul_u32_u24 v6, 160, v{g}')
    A.I(f'v_and_b32 v4, 1, v{n}')
    A.I(f'v_bfe_u32 v5, v{n}, 1, 2')
    A.I(f'v_lshl_add_u32 v4, v4, 2, v5')
    A.I(f'v_lshl_add_u32 v{V_QR}, v4, 4, v6')
    A.I(f'v_and_b32 v4, 1, v{n}')
    A.I(f'v_lshrrev_b32 v5, 2, v{n}')
    A.I(f'v_and_b32 v7, 2, v{n}')
    A.I(f'v_xor_b32 v5, v5, v7')
    A.I(f'v_lshl_add_u32 v4, v4, 2, v5')
    A.I(f'v_lshl_add_u32 v{V_KR}, v4, 4, v6')
    A.I(f'v_add_u32 v{V_KR}, {L_KX_}, v{V_KR}')
    A.I(f's_lshl_b32 s{S_T0}, s{S_WV}, 9')
    A.I(f's_add_u32 s{S_T0}, s{S_T0}, {L_OX}')
    A.I(f'v_lshrrev_b32 v4, 1, v{g}')
    A.I(f'v_lshlrev_b32 v4, 8, v4')
    A.I(f'v_lshrrev_b32 v5, 1, v{n}')
    A.I(f'v_lshl_add_u32 v4, v5, 6, v4')
    A.I(f'v_and_b32 v5, 1, v{g}')
    A.I(f'v_lshl_add_u32 v4, v5, 5, v4')
    A.I(f'v_and_b32 v5, 1, v{n}')
    A.I(f'v_lshl_add_u32 v4, v5, 4, v4')
    A.I(f'v_add_u32 v4, s{S_T0}, v4')
    A.I(f'v_add_u32 v5, {L_QX}, v{V_L16}')
    A.I(f'v_cmp_gt_u32 vcc, 8, v{n}')
    A.I(f'v_cndmask_b32 v{V_OW}, v5, v4, vcc')
    A.I(f's_lshl_b32 s{S_T0}, s{S_WV}, 14')
    A.I(f's_add_u32 s{S_T0}, s{S_T0}, {L_WO}')
    A.I(f'v_add_u32 v{V_WO0}, s{S_T0}, v{V_L16}')
    A.I(f'v_add_u32 v{V_WO1}, {L_HALF}, v{V_WO0}')
    A.I(f'v_add_u32 v{V_VX}, s{S_W11}, v{V_L16}')
    A.I(f'v_lshrrev_b32 v4, 3, v{n}')
    A.I(f'v_lshl_add_u32 v4, v{g}, 1, v4')
    A.I(f'v_mul_u32_u24 v4, {PB_GRP}, v4')
    A.I(f'v_and_b32 v5, 7, v{n}')
    A.I(f'v_lshl_add_u32 v4, v5, 4, v4')
    A.I(f's_mul_i32 s{S_T0}, s{S_WV}, {8 * PB_GRP}')
    A.I(f's_lshl_b32 s{S_T1}, s{S_H}, 8')
    A.I(f's_add_u32 s{S_T0}, s{S_T0}, s{S_T1}')
    A.I(f'v_add_u32 v{V_PBW}, s{S_T0}, v4')
    A.I(f's_mul_i32 s{S_T0}, s{S_H}, {PB_GRP}')
    A.I(f's_add_u32 s{S_PZ}, s{S_T0}, s{S_W11}')
    A.I(f's_lshl_b32 s{S_T1}, s{S_WV}, 7')
    A.I(f's_add_u32 s{S_T0}, s{S_T0}, s{S_T1}')
    A.I(f'v_lshlrev_b32 v4, 8, v{g}')
    A.I(f'v_lshl_add_u32 v4, v{n}, 3, v4')
    A.I(f'v_add_u32 v{V_RDR}, s{S_T0}, v4')
    A.I(f's_and_b32 s{S_T1}, s{S_H}, 1')
    A.I(f's_lshl_b32 s{S_T1}, s{S_T1}, 10')
    A.I(f's_lshl_b32 s{S_T0}, s{S_WV}, 12')
    A.I(f's_add_u32 s{S_T0}, s{S_T0}, s{S_T1}')
    A.I(f's_lshr_b32 s{S_T1}, s{S_H}, 1')
    A.I(f's_lshl_b32 s{S_T1}, s{S_T1}, 6')
    A.I(f's_add_u32 s{S_T0}, s{S_T0}, s{S_T1}')
    A.I(f'v_lshrrev_b32 v4, 3, v{n}')
    A.I(f'v_lshlrev_b32 v4, 5, v4')
    A.I(f'v_and_b32 v5, 1, v{n}')
    A.I(f'v_lshl_add_u32 v4, v5, 11, v4')
    A.I(f'v_bfe_u32 v5, v{n}, 1, 2')
    A.I(f'v_lshl_add_u32 v4, v5, 2, v4')
    A.I(f'v_add_u32 v4, s{S_T0}, v4')
    A.I(f'v_mov_b32 v5, 0x7f000000')
    A.I(f'v_cmp_gt_u32 vcc, 16, v{LANE}')
    A.I(f'v_cndmask_b32 v{V_MBW}, v5, v4, vcc')
    A.I(f'v_mov_b32 v4, 0x3f80')
    A.I(f'v_mov_b32 v5, 0x3f800000')
    A.I(f'v_and_b32 v6, 1, v{n}')
    A.I(f'v_cmp_eq_u32 vcc, 1, v6')
    A.I(f'v_cndmask_b32 v{V_SEL}, v4, v5, vcc')
    A.I(f'v_lshrrev_b32 v6, 1, v{n}')
    A.I(f'v_cmp_eq_u32 s[{S_M0}:{S_M0 + 1}], 0, v6')
    A.I(f'v_cmp_eq_u32 s[{S_M1}:{S_M1 + 1}], 1, v6')
    c = (128 ** -0.5) * math.log2(math.e)
    cb = struct.unpack("<I", struct.pack("<f", c))[0]
    A.I(f's_mov_b32 s{S_C}, 0x{cb:08x}')
    A.I(f's_mov_b32 s{S_C + 1}, 0x{cb:08x}')
    A.I(f's_mov_b32 s{S_ONE}, 0x3f803f80')
    A.I(f's_mov_b32 s{S_ONE + 1}, 0x3f803f80')


def init_exchange(A, s_mem0, st, rb=0, part=None):
    ws = f's[{S_WS}:{S_WS + 3}]'
    R_ = lambda i: i + rb
    if part in (0, None):
        make_srd(A, S_W, s_mem0, 8192)
        n = R_(3)
        A.I(f'v_and_b32 v{n}, 15, v{LANE}')
        A.I(f's_bfe_u32 s{S_T0}, s{S_H}, 0x20001')
        A.I(f's_lshl_b32 s{S_T0}, s{S_T0}, 11')
        A.I(f's_lshr_b32 s{S_T1}, s{S_H}, 3')
        A.I(f's_lshl_b32 s{S_T1}, s{S_T1}, 8')
        A.I(f's_add_u32 s{S_T0}, s{S_T0}, s{S_T1}')
        A.I(f's_and_b32 s{S_T1}, s{S_WV}, 1')
        A.I(f's_lshl_b32 s{S_T1}, s{S_T1}, 7')
        A.I(f's_add_u32 s{S_T0}, s{S_T0}, s{S_T1}')
        A.I(f's_and_b32 s{S_T1}, s{S_H}, 1')
        A.I(f's_lshl_b32 s{S_T1}, s{S_T1}, 4')
        A.I(f's_add_u32 s{S_T0}, s{S_T0}, s{S_T1}')
        A.I(f'v_and_b32 v{R_(12)}, 1, v{n}')
        A.I(f'v_lshlrev_b32 v{R_(12)}, 6, v{R_(12)}')
        A.I(f'v_lshrrev_b32 v{R_(13)}, 1, v{n}')
        A.I(f'v_lshl_add_u32 v{R_(12)}, v{R_(13)}, 1, v{R_(12)}')
        w = f's[{S_W}:{S_W + 3}]'
        for i, off in enumerate((0, 32, 1024, 1056)):
            A.I(f'buffer_load_ushort v{R_(8 + i)}, v{R_(12)}, {w}, s{S_T0} offen offset:{off}')
    if part in (1, None):
        for r in range(4, 8):
            A.I(f'v_mov_b32 v{R_(r)}, -1')
        for r in range(3):
            A.I(f's_add_u32 s{S_T0}, s{S_PZ}, 0x{WS_PB + r * PB_SLOT:x}')
            for c in range(2):
                A.I(f'buffer_store_dwordx4 {v(R_(4), 4)}, v{V_L16}, {ws}, s{S_T0} offen offset:{1024 * c} {st}')
        le = A.newlabel('L_ie')
        A.I(f's_cmp_ge_u32 s{S_WV}, 2')
        A.br(f's_cbranch_scc1 {le}')
        A.I(f's_mov_b32 s{S_T0}, 0x{WS_MB + 8192:x}')
        A.I(f'buffer_store_dword v{R_(4)}, v{V_MBW}, {ws}, s{S_T0} offen {st}')
        A.I(f'buffer_store_dword v{R_(4)}, v{V_MBW}, {ws}, s{S_T0} offen offset:16 {st}')
        A.I(f's_waitcnt vmcnt({40 if part == 1 else 0})')
        A.I(f'v_lshl_or_b32 v{R_(8)}, v{R_(9)}, 16, v{R_(8)}')
        A.I(f'v_lshl_or_b32 v{R_(10)}, v{R_(11)}, 16, v{R_(10)}')
        A.I(f'v_min_u32 v{R_(8)}, -2, v{R_(8)}')
        A.I(f'v_min_u32 v{R_(10)}, -2, v{R_(10)}')
        A.I(f's_mov_b32 s{S_T0}, 0x{WS_MB:x}')
        A.I(f'buffer_store_dword v{R_(8)}, v{V_MBW}, {ws}, s{S_T0} offen {st}')
        A.I(f'buffer_store_dword v{R_(10)}, v{V_MBW}, {ws}, s{S_T0} offen offset:16 {st}')
        A.label(le)
    if part is None:
        A.I('s_waitcnt vmcnt(0)')


HS = [('q', 0, 0), ('q', 1, 0), ('q', 0, 1), ('q', 1, 1), ('k', 0, 0), ('k', 1, 0), ('k', 0, 1), ('k', 1, 1)]
QBUF = dict(zip(HS, [KX, KX + 8, KX + 16, KX + 24, VX, T, T + 8, ACC + 16]))


def zero(A, r0, n):
    for i in range(0, n, 2):
        A.I(f'v_mov_b64 {v(r0 + i, 2)}, 0')


def q_prefetch(A, part=None):
    for i, f in enumerate(HS):
        if part is not None and (i >> 2) != part:
            continue
        lds_frag_read(A, f, QBUF[f])
        if i == 5:
            A.I('s_waitcnt lgkmcnt(8)')


def kv_dma(A):
    ws = f's[{S_WS}:{S_WS + 3}]'
    A.I(f's_mov_b32 m0, s{S_KVM0}')
    A.I(f's_add_u32 s{S_T0}, s{S_KVN}, 0x{WS_VF - WS_KF:x}')
    A.I(f'buffer_load_dwordx4 v{V_L16}, {ws}, s{S_KVN} offen lds')
    A.I(f'buffer_load_dwordx4 v{V_L16}, {ws}, s{S_KVN} offen offset:1024 lds')
    A.I(f's_add_u32 m0, s{S_KVM0}, 8192')
    A.I(f's_add_u32 s{S_KVN}, s{S_KVN}, 0x40000')
    A.I(f'buffer_load_dwordx4 v{V_L16}, {ws}, s{S_T0} offen lds')
    A.I(f'buffer_load_dwordx4 v{V_L16}, {ws}, s{S_T0} offen offset:1024 lds')


S_AV, S_RA, S_KP = 21, 22, 24
F_KMP = WS_FLAG + 0x3000
F_PROG = WS_FLAG


def kv_eval(A, vt, vlane16, s_av):
    p, t, u_ = vt, vt + 1, vt + 2
    A.I(f'v_bfe_u32 v{t}, v{vlane16}, 6, 1')
    A.I(f'v_lshl_add_u32 v{t}, v{p}, 1, v{t}')
    A.I(f'v_bfe_u32 v{u_}, v{vlane16}, 7, 1')
    A.I(f'v_lshl_add_u32 v{t}, v{u_}, 5, v{t}')
    A.I(f'v_cmp_le_u32 vcc, 16, v{p}')
    A.I(f'v_mov_b32 v{u_}, 64')
    A.I(f'v_cndmask_b32 v{t}, v{t}, v{u_}, vcc')
    for k in (8, 4, 2, 1):
        A.I(f'v_min_u32_dpp v{t}, v{t}, v{t} row_ror:{k} row_mask:0xf bank_mask:0xf')
    A.I(f'v_readfirstlane_b32 s{s_av}, v{t}')


def kv_load(A, vt, vlane16, s_base):
    ws = f's[{S_WS}:{S_WS + 3}]'
    A.I(f'v_lshrrev_b32 v{vt + 1}, 2, v{vlane16}')
    A.I(f'v_and_b32 v{vt + 1}, 0x7c, v{vt + 1}')
    A.I(f'buffer_load_dword v{vt}, v{vt + 1}, {ws}, s{s_base} offen sc1')


def kv_wait(A, l_exit, s_need, vt, s_av=S_AV, s_base=S_RA, sleep=0, vlane16=V_L16):
    l = A.newlabel('L_kvw')
    A.label(l)
    kv_load(A, vt, vlane16, s_base)
    A.I(f's_sub_u32 s{S_SPIN}, s{S_SPIN}, 1')
    A.I(f's_cbranch_scc1 {l_exit}')
    A.I('s_waitcnt vmcnt(0)')
    kv_eval(A, vt, vlane16, s_av)
    if sleep:
        ld = A.newlabel('L_kvd')
        A.I(f's_cmp_gt_u32 s{s_av}, s{s_need}')
        A.I(f's_cbranch_scc1 {ld}')
        A.I(f's_sleep {sleep}')
        A.br(f's_branch {l}')
        A.label(ld)
    else:
        A.I(f's_cmp_le_u32 s{s_av}, s{s_need}')
        A.br(f's_cbranch_scc1 {l}')


def main_loop(A, st, l_exit, kvcheck=False):
    ws = f's[{S_WS}:{S_WS + 3}]'
    A.I(f's_mov_b32 s{S_STEP}, 0')
    A.I(f's_mov_b32 s{S_MBR}, 0x{WS_MB:x}')
    A.I(f's_mov_b32 s{S_MBW}, 0x{WS_MB + 8192:x}')
    A.I(f's_mov_b32 s{S_PB0}, 0x{WS_PB:x}')
    A.I(f's_mov_b32 s{S_PB1}, 0x{WS_PB + PB_SLOT:x}')
    A.I(f's_lshl_b32 s{S_KMO}, s{S_H}, 12')
    A.I(f's_lshl_b32 s{S_T0}, s{S_WV}, 10')
    A.I(f's_add_u32 s{S_KMO}, s{S_KMO}, s{S_T0}')
    A.I(f's_add_u32 s{S_KMO}, s{S_KMO}, 0x{WS_KM - 0x20000:x}')
    A.I(f's_mul_i32 s{S_W640}, s{S_WV}, 640')
    A.I(f's_lshl_b32 s{S_VMO}, s{S_H}, 11')
    A.I(f's_lshl_b32 s{S_T0}, s{S_WV}, 9')
    A.I(f's_add_u32 s{S_VMO}, s{S_VMO}, s{S_T0}')
    A.I(f's_add_u32 s{S_VMO}, s{S_VMO}, 0x{WS_VM - 0x10000:x}')
    A.I(f's_lshr_b32 s{S_T0}, s{S_WV}, 1')
    A.I(f's_mul_i32 s{S_TCH}, s{S_T0}, 0x{WS_VF - WS_KF:x}')
    A.I(f's_and_b32 s{S_T0}, s{S_WV}, 1')
    A.I(f's_lshl_b32 s{S_T0}, s{S_T0}, 12')
    A.I(f's_add_u32 s{S_TCH}, s{S_TCH}, s{S_T0}')
    A.I(f's_lshl_b32 s{S_T0}, s{S_H}, 13')
    A.I(f's_add_u32 s{S_TCH}, s{S_TCH}, s{S_T0}')
    A.I(f's_add_u32 s{S_TCH}, s{S_TCH}, 0x{WS_KF + TOUCH_AHEAD * 0x40000:x}')

    NST = 12
    order = []

    def stamp(i):
        if not STAMPS:
            return
        order.append(i)
        A.raw(f'    s_memtime s[{64 + 2 * i}:{65 + 2 * i}]')
        A.pos += 1

    def stamp_acc():
        if not STAMPS:
            return
        A.I('s_waitcnt lgkmcnt(0)')
        if E('RAW', 0):
            lk = A.newlabel('L_raw')
            A.I(f's_cmp_lg_u32 s{S_STEP}, {E("RAW", 0)}')
            A.I(f's_cbranch_scc1 {lk}')
            for i in range(NST):
                if i != 6:
                    A.I(f's_mov_b32 s{88 + i}, s{64 + 2 * i}')
            A.label(lk)
            lk = A.newlabel('L_raw')
            A.I(f's_cmp_lg_u32 s{S_STEP}, {E("RAW", 0) - 1}')
            A.I(f's_cbranch_scc1 {lk}')
            A.I(f's_mov_b32 s{88 + 6}, s{64 + 12}')
            A.label(lk)
            return
        prev = 100
        for i in order:
            A.I(f's_sub_u32 s101, s{64 + 2 * i}, s{prev}')
            A.I(f's_add_u32 s{88 + i}, s{88 + i}, s101')
            prev = 64 + 2 * i
        A.I(f's_mov_b32 s100, s{prev}')
    if STAMPS:
        for i in range(NST):
            A.I(f's_mov_b32 s{88 + i}, 0')
        A.I(f's_memtime s[64:65]')
        A.I('s_waitcnt lgkmcnt(0)')
        for i in range(NST):
            A.I(f's_mov_b32 s{64 + 2 * i}, s64')
        A.I(f's_mov_b32 s100, s64')

    L_top = A.newlabel('L_rec')
    L_af = A.newlabel('L_afpoll')
    L_red = A.newlabel('L_red')
    L_bh = A.newlabel('L_bh')
    L_w23 = A.newlabel('L_w23')
    L_fin = A.newlabel('L_fin')
    HS_ = E('HSTAMP', 0)
    _stamp = stamp
    if HS_:
        order.extend([2, 3, 7, 9, 10])

    def hstamp(i):
        if STAMPS and HS_:
            A.raw(f'    s_memtime s[{64 + 2 * i}:{65 + 2 * i}]')
            A.pos += 1

    def stamp(i):
        if HS_ and i in (2, 3, 9, 10):
            return
        if HS_ and i == 7:
            return hstamp(7)
        _stamp(i)

    L_pslow = A.newlabel('L_pslow')
    L_aslow = A.newlabel('L_aslow')
    L_afok = A.newlabel('L_afok')
    L_afchk = A.newlabel('L_afchk')
    RA, RB, SEL, RD = 0, 16, ACC + 8, ACC + 12
    mx, tm = V_MX, V_TM
    TWO_PB, TWO_AF = E('TWO_PB', 1), E('TWO_AF', 1)

    def addr3():
        A.I(f'v_xor_b32 v{V_MX}, 2048, v{V_VX}')
        A.I(f'v_xor_b32 v{V_TM}, 4096, v{V_VX}')
        A.I(f'v_xor_b32 v{V_SP}, 6144, v{V_VX}')

    A.I(f's_mov_b32 s{S_TAG}, 0')
    zero(A, ACC, 8)
    q_prefetch(A)
    A.br(f's_branch {L_af}')

    def pb_loads(b):
        for i in range(8):
            so = S_PB0 if i < 4 else S_PB0H
            A.I(f'buffer_load_dwordx2 {v(b + 2 * i, 2)}, v{V_RDR}, {ws}, s{so} offen offset:{(i & 3) * 1024} {LDF}')

    def red(b, base):
        for i in range(4):
            A.I(f's_waitcnt vmcnt({base + 6 - 2 * i})')
            c = '0' if i == 0 else v(RD, 4)
            A.I(f'v_mfma_f32_16x16x32_bf16 {v(RD, 4)}, {v(SEL, 4)}, {v(b + 4 * i, 4)}, {c}')
            r = b + 4 * i
            tt = 0
            for idx in range(8):
                a_, b_, s_ = (idx >> 2) & 1, (idx >> 1) & 1, idx & 1
                if (a_ ^ s_) | (b_ ^ s_):
                    tt |= 1 << idx
            d = mx if i == 0 else tm
            A.I(f'v_bitop3_b32 v{d}, v{r}, v{r + 2}, s{S_TAG} bitop3:0x{tt:x}')
            if i:
                A.I(f'v_or_b32 v{mx}, v{mx}, v{tm}')
        A.I(f'v_and_b32 v{mx}, 1, v{mx}')
        A.I(f'v_cmp_eq_u32 vcc, 1, v{mx}')

    def af_loads(b):
        for i in range(2):
            A.I(f'buffer_load_dwordx4 {v(b + 4 * i, 4)}, v{V_L16}, {ws}, s{S_AFO} offen offset:{i * 1024} {LDF}')

    def af_chk(b, tmp):
        A.I(f'ds_write_b128 v{V_VX}, {v(b, 4)} offset:{L_AF}')
        A.I(f'v_max3_u32 v{tmp}, v{b}, v{b + 1}, v{b + 2}')
        A.I(f'v_max3_u32 v{tmp}, v{tmp}, v{b + 3}, v{b + 4}')
        A.I(f'ds_write_b128 v{V_VX}, {v(b + 4, 4)} offset:{L_AF + 1024}')
        A.I(f'v_max3_u32 v{tmp}, v{tmp}, v{b + 5}, v{b + 6}')
        A.I(f'v_max_u32 v{tmp}, v{tmp}, v{b + 7}')
        A.I(f'v_cmp_eq_u32 vcc, -1, v{tmp}')

    A.raw('.p2align 6')
    A.label(L_top)
    A.forget_loads()
    A.check = False
    red(RA, 8 if TWO_PB else 0)
    hstamp(3)
    A.I(f's_cbranch_vccnz {L_pslow}')
    A.label(L_red, flush=False)
    A.I(f'v_mov_b32 v{tm}, -1')
    A.I('s_nop 2')
    A.I(f'v_cvt_pk_bf16_f32 v{RD}, v{RD}, v{RD + 1}')
    A.I(f'v_cvt_pk_bf16_f32 v{RD + 2}, v{RD + 2}, v{RD + 3}')
    A.I(f'buffer_store_dword v{RD}, v{V_MBW}, {ws}, s{S_MBW} offen {st}')
    A.I(f'buffer_store_dword v{RD + 2}, v{V_MBW}, {ws}, s{S_MBW} offen offset:16 {st}')
    A.I(f'buffer_store_dword v{tm}, v{V_MBW}, {ws}, s{S_MBR} offen {st}')
    A.I(f'buffer_store_dword v{tm}, v{V_MBW}, {ws}, s{S_MBR} offen offset:16 {st}')
    if E('AFW', 0):
        A.I('s_waitcnt vmcnt(2)')
    A.label(L_bh, flush=False)
    stamp(7)
    A.I('s_barrier')
    A.I(f's_mov_b32 s{S_T0}, s{S_MBR}')
    A.I(f's_mov_b32 s{S_MBR}, s{S_MBW}')
    A.I(f's_mov_b32 s{S_MBW}, s{S_T0}')
    A.I(f's_mov_b32 s{S_T0}, s{S_PB0}')
    A.I(f's_mov_b32 s{S_PB0}, s{S_PB1}')
    A.I(f's_mov_b32 s{S_PB1}, s{S_T0}')
    A.I(f's_add_u32 s{S_STEP}, s{S_STEP}, 1')
    A.I(f's_bfe_u32 s{S_TAG}, s{S_STEP}, 0x10001')
    A.label(L_af, flush=False)
    A.I(f's_add_u32 s{S_AFO}, s{S_MBR}, s{S_W11}')
    zero(A, ACC + 8, 8)
    addr3()
    for i in range(AF_DELAY):
        A.I('s_nop 7')
    ASETS = [0, 24, 16]
    af_loads(0)
    hstamp(9)
    for b in ASETS[1:]:
        for i in range(AF_GAP):
            A.I('s_nop 7')
        af_loads(b)

    def mf(mat, nb, t, src=None):
        acc = ACC + ('qkv'.index(mat) * 2 + nb) * 4
        if src is None:
            src = QBUF.get((mat, nb, t))
        b = v(src, 8) if src is not None else u(HOME[(mat, nb, t)], 8)
        A.I(f'v_smfmac_f32_16x16x64_bf16 {v(acc, 4)}, {v(AF + 4 * t, 4)}, {b}, v{V_IDX}')

    A.label(L_afchk, flush=False)
    A.I(f's_waitcnt vmcnt(4) lgkmcnt(0)')
    A.label(L_afok, flush=False)
    hstamp(10)
    tmp = 8
    A.I(f'ds_write_b128 v{V_VX}, {v(0, 4)} offset:{L_AF}')
    A.I(f'ds_write_b128 v{V_VX}, {v(4, 4)} offset:{L_AF + 1024}')
    mf('q', 0, 0)
    A.I(f'v_max3_u32 v{tmp}, v0, v1, v2')
    A.I(f'v_max3_u32 v{tmp}, v{tmp}, v3, v4')
    mf('q', 1, 0)
    A.I(f'v_max3_u32 v{tmp}, v{tmp}, v5, v6')
    A.I(f'v_max_u32 v{tmp}, v{tmp}, v7')
    A.I(f'v_cmp_eq_u32 vcc, -1, v{tmp}')
    A.I(f's_cbranch_vccnz {L_aslow}')
    stamp(8)
    A.check = True
    A.forget_loads()
    A.I('s_waitcnt lgkmcnt(0)')
    A.I('s_barrier')
    stamp(0)
    pend = []
    ar = {1: V_MX, 2: V_TM, 3: V_SP}
    hs = [('q', 0, 1), ('q', 1, 1), ('k', 0, 0), ('k', 1, 0), ('k', 0, 1), ('k', 1, 1)]

    def afr(uu):
        A.I(f'ds_read_b128 {v(AF + 4 * uu, 4)}, v{ar[uu >> 1]} offset:{L_AF + 1024 * (uu & 1)}')
        pend.append(('af', uu))
    afr(2); afr(3)
    mf(*hs[0])
    A.I(f'v_lshlrev_b32 v{V_MX}, 2, v{V_L16}')
    mf(*hs[1])
    mf(*hs[2])
    mf(*hs[3])
    KBUF = {}

    def kload(nb, t, b):
        KBUF[(nb, t)] = b
        lds_frag_read(A, ('k', nb, t), b)
        pend.extend([('k', t), ('k', t)])

    kload(0, 2, QBUF[('q', 0, 0)])
    mf(*hs[4])
    kload(1, 2, QBUF[('q', 1, 0)])
    mf(*hs[5])
    A.I('s_waitcnt vmcnt(0)')
    for uu in range(4, 8):
        afr(uu)
    A.I(f'v_lshrrev_b32 v{V_TM}, 2, v{V_L16}')
    if kvcheck:
        L_kvc, L_kvr = A.newlabel('L_kvc'), A.newlabel('L_kvr')
        A.I(f's_add_u32 s23, s{S_STEP}, 1')
        A.I(f's_cmp_ge_u32 s23, s{S_AV}')
        A.I(f's_cbranch_scc1 {L_kvc}')
        A.label(L_kvr, flush=False)
    if not E('NODMA', 0):
        A.I(f'buffer_load_dword v{V_SP}, v{V_MX}, {ws}, s{S_TCH} offen')
    if kvcheck:
        A.check = False
        A.I(f'buffer_load_dword v{V_SP}, v{V_TM}, {ws}, s{S_RA} offen sc1')
        A.check = True

    def wait_for(name):
        if name not in pend:
            return
        idx = max(i for i, p in enumerate(pend) if p == name)
        n = len(pend) - 1 - idx
        A.I(f's_waitcnt lgkmcnt({n})')
        del pend[:idx + 1]

    EXP, EXV = ACC + 16, ACC + 20
    for t in range(2, 8):
        wait_for(('af', t))
        mf('q', 0, t)
        if t == 2:
            kload(0, 3, QBUF[('q', 0, 1)])
        if t == 3:
            kload(1, 3, QBUF[('q', 1, 1)])
        if t == 4:
            A.I(f'v_add_u32 v{EXP}, s{S_W640}, v{V_KR}')
        if t == 5:
            A.I(f'v_lshrrev_b32 v{EXV}, 2, v{V_VX}')
        if t == 6:
            A.I(f'ds_read_b64 {v(EXV, 2)}, v{EXV} offset:{L_VM}')
            pend.append(('ex', 1))
        mf('q', 1, t)
        if t == 4:
            A.I(f'ds_read_b128 {v(EXP, 4)}, v{EXP}')
            pend.append(('ex', 0))
        if t == 5:
            A.I(f'v_lshl_add_u32 v{EXV}, v{V_MX}, 0, v{EXV}' if False else f'v_add_u32 v{EXV}, v{EXV}, v{V_TM}')
        if t >= 6:
            A.I(f'ds_read_b128 {v(VX + 4 * (t - 6), 4)}, v{V_VX} offset:{L_KV + 8192 + 1024 * (t - 6)}')
            pend.append(('vx', t))
    stamp(1)
    q0, q1, k0, k1 = ACC, ACC + 4, ACC + 8, ACC + 12
    QF = T

    def kmf(t, nb):
        mf('k', nb, t, KBUF.get((nb, t)))

    def pack(b0, b1):
        return [f'v_add_f32 v{b0}, v{b0}, v{b0 + 2}',
                f'v_add_f32 v{b0 + 1}, v{b0 + 1}, v{b0 + 3}',
                f'v_add_f32 v{b1}, v{b1}, v{b1 + 2}',
                f'v_add_f32 v{b1 + 1}, v{b1 + 1}, v{b1 + 3}',
                f'v_cvt_pk_bf16_f32 v{b0}, v{b0}, v{b1}',
                f'v_cvt_pk_bf16_f32 v{b0 + 1}, v{b0 + 1}, v{b1 + 1}']

    wait_for(('k', 2))
    kmf(2, 0)
    A.I(f's_add_u32 s{S_TCH}, s{S_TCH}, 0x40000')
    A.I(f'v_lshrrev_b32 v{V_TM}, 1, v{V_L16}')
    kmf(2, 1)
    wait_for(('ex', 1))
    if not E('NOEXP', 0):
        A.I(f'buffer_store_dwordx4 {v(EXP, 4)}, v{V_L16}, {ws}, s{S_KMO} offen {EXF}')
    kmf(3, 0)
    if not E('NOEXP', 0):
        A.I(f'buffer_store_dwordx2 {v(EXV, 2)}, v{V_TM}, {ws}, s{S_VMO} offen {EXF}')
    A.I(f's_add_u32 s{S_KMO}, s{S_KMO}, 0x20000')
    A.I(f's_add_u32 s{S_VMO}, s{S_VMO}, 0x10000')
    kmf(3, 1)
    if kvcheck:
        A.I(f'v_mov_b32 v{V_TM}, s{S_STEP}')
        A.I('s_mov_b64 exec, 1')
        A.I(f'buffer_store_dword v{V_TM}, off, {ws}, s{S_KP} sc1')
        A.I('s_mov_b64 exec, -1')
    kxr = [f'ds_read_b128 {v(KX + 4 * f, 4)}, v{V_L16} offset:{L_KV + 1024 * f}' for f in range(8)]
    pq = pack(q0, q1) + [f'ds_write2_b32 v{V_QKW}, v{q0}, v{q0 + 1} offset0:0 offset1:16']
    fl = []
    for i in range(8):
        fl.append([kxr[i]] + ([pq[i]] if i < 7 else []) + ([f'v_mov_b64 {v(ACC + 16 + (i - 4) * 2, 2)}, 0'] if i >= 4 else []))
    for i, (t, nb) in enumerate([(t, nb) for t in range(4, 8) for nb in range(2)]):
        for x in fl[i]:
            A.I(x)
        kmf(t, nb)
    stamp(2)
    pk = pack(k0, k1)
    mf('v', 0, 0)
    mf('v', 1, 0)
    A.I('s_nop 4')
    A.I(pk[0]); A.I(pk[1]); A.I(pk[2])
    mf('v', 0, 1)
    A.I(pk[3]); A.I(pk[4]); A.I(pk[5])
    A.I(f'ds_write_b32 v{V_QKW}, v{k0} offset:{L_KX_}')
    A.I(f'ds_write_b32 v{V_QKW}, v{k0 + 1} offset:{L_KX_ + 64}')
    mf('v', 1, 1)
    mf('v', 0, 2)
    mf('v', 1, 2)
    mf('v', 0, 3)
    A.I(f's_cmp_eq_u32 s{S_STEP}, {NSTEPS}')
    A.I('s_waitcnt lgkmcnt(0)')
    A.I(f's_cbranch_scc1 {L_fin}')
    A.I('s_barrier')
    stamp(3)
    KMF, ONES = 0, 20
    for ks in range(4):
        A.I(f'ds_read_b128 {v(QF + 4 * ks, 4)}, v{V_QR} offset:{640 * ks}')
        if ks == 1:
            mf('v', 1, 3)
    mf('v', 0, 4)
    for ks in range(4):
        A.I(f'ds_read_b128 {v(KMF + 4 * ks, 4)}, v{V_KR} offset:{640 * ks}')
        if ks == 1:
            mf('v', 1, 4)
    dm = []
    if not E('NODMA', 0):
        dm = [f's_mov_b32 m0, s{S_KVM0}\ns_add_u32 s{S_T0}, s{S_KVN}, 0x{WS_VF - WS_KF:x}\nbuffer_load_dwordx4 v{V_L16}, {ws}, s{S_KVN} offen lds',
              f'buffer_load_dwordx4 v{V_L16}, {ws}, s{S_KVN} offen offset:1024 lds\ns_add_u32 m0, s{S_KVM0}, 8192\ns_add_u32 s{S_KVN}, s{S_KVN}, 0x40000',
              f'buffer_load_dwordx4 v{V_L16}, {ws}, s{S_T0} offen lds',
              f'buffer_load_dwordx4 v{V_L16}, {ws}, s{S_T0} offen offset:1024 lds']
    else:
        dm = ['s_nop 0'] * 4
    mf('v', 0, 5)
    mf('v', 1, 5)
    mf('v', 0, 6)
    mf('v', 1, 6)
    X0, X1, M, P = q0, q1, k0, k1
    O0, O1, Lr, PMA, PMB = KX + 16, KX + 20, KX + 24, KX + 28, KX + 30

    def sx(i):
        ks, kb = i >> 1, i & 1
        X = X1 if kb else X0
        c = '0' if ks == 0 else v(X, 4)
        A.I(f'v_mfma_f32_16x16x32_bf16 {v(X, 4)}, {v(KX + 16 * kb + 4 * ks, 4)}, {v(QF + 4 * ks, 4)}, {c}')

    for ks in range(4):
        A.I(f's_waitcnt lgkmcnt({7 - ks})')
        sx(2 * ks)
        if ks == 2:
            A.I(f'v_mov_b64 {v(ONES, 2)}, s[{S_ONE}:{S_ONE + 1}]')
        if ks == 3:
            A.I(f'v_mov_b64 {v(ONES + 2, 2)}, s[{S_ONE}:{S_ONE + 1}]')
        sx(2 * ks + 1)
    stamp(9)
    A.I('s_waitcnt lgkmcnt(0)')
    for ks in range(4):
        cm = '0' if ks == 0 else v(M, 4)
        A.I(f'v_mfma_f32_16x16x32_bf16 {v(M, 4)}, {v(KMF + 4 * ks, 4)}, {v(QF + 4 * ks, 4)}, {cm}')
        if ks == 0:
            A.I(f'v_mov_b32 v{PMA + 1}, 0')
            A.I(f'v_mov_b32 v{PMB}, 0')
        if ks == 1:
            A.I('s_nop 1')
            A.I(f'v_max3_f32 v{mx}, v{X0}, v{X0 + 1}, v{X0 + 2}')
            A.I(f'v_max3_f32 v{tm}, v{X1}, v{X1 + 1}, v{X1 + 2}')
        if ks == 2:
            A.I(f'v_max3_f32 v{mx}, v{mx}, v{X0 + 3}, v{X1 + 3}')
            A.I(f'v_max_f32 v{mx}, v{mx}, v{tm}')
        if ks == 3:
            A.I(f'v_mov_b32 v{tm}, v{mx}')
    mf('v', 0, 7)
    A.I('s_nop 0')
    A.I(f'v_permlane32_swap_b32 v{mx}, v{tm}')
    mf('v', 1, 7)
    A.I(f'v_max_f32 v{mx}, v{mx}, v{tm}')
    A.I('s_nop 1')
    A.I(f'v_max3_f32 v{tm}, v{M}, v{M + 1}, v{M + 2}')
    A.I(f'v_max3_f32 v{mx}, v{tm}, v{M + 3}, v{mx}')
    A.I(f'v_mov_b32 v{tm}, v{mx}')
    sets = [X1, KX, O0, T]
    A.I(f'v_mov_b64 {v(sets[1], 2)}, 0')
    A.I(f'v_mov_b64 {v(sets[1] + 2, 2)}, 0')
    A.I(f'v_permlane16_swap_b32 v{mx}, v{tm}')
    A.I(f'v_max_f32 v{mx}, v{mx}, v{tm}')
    A.I(f'v_mul_f32_e64 v{mx}, -s{S_C}, v{mx}')

    def pkfma(r):
        A.I(f'v_pk_fma_f32 {v(r, 2)}, {v(r, 2)}, s[{S_C}:{S_C + 1}], {v(mx, 2)} op_sel:[0,0,0] op_sel_hi:[1,1,0]')

    va, vb = ACC + 16, ACC + 20
    VMP = va + 2
    for r in (M, X0, X0 + 2, X1, X1 + 2):
        pkfma(r)
    A.I(f'v_exp_f32 v{M}, v{M}')
    A.I(f'v_exp_f32 v{M + 1}, v{M + 1}')
    A.I(f'v_pk_add_f32 {v(va, 2)}, {v(va, 2)}, {v(va + 2, 2)}')
    A.I(f'v_pk_add_f32 {v(vb, 2)}, {v(vb, 2)}, {v(vb + 2, 2)}')
    A.I(f'v_cvt_pk_bf16_f32 v{PMA}, v{M}, v{M + 1}')
    A.I(f'v_cvt_pk_bf16_f32 v{PMB + 1}, v{M}, v{M + 1}')
    A.I(f'v_cvt_pk_bf16_f32 v{VMP}, v{va}, v{va + 1}')
    A.I(f'v_cvt_pk_bf16_f32 v{VMP + 1}, v{vb}, v{vb + 1}')
    A.I(f'v_exp_f32 v{X0}, v{X0}')
    stamp(10)
    A.I(f'v_mfma_f32_16x16x16_bf16 {v(Lr, 4)}, {v(ONES, 2)}, {v(PMA, 2)}, 0')
    A.I(f'v_exp_f32 v{X0 + 1}, v{X0 + 1}')
    A.I(f'v_mfma_f32_16x16x16_bf16 {v(O0, 4)}, {v(VMP, 2)}, {v(PMA, 2)}, 0')
    A.I(f'v_exp_f32 v{X0 + 2}, v{X0 + 2}')
    A.I(f'v_mfma_f32_16x16x16_bf16 {v(O1, 4)}, {v(VMP, 2)}, {v(PMB, 2)}, 0')
    A.I(f'v_exp_f32 v{X0 + 3}, v{X0 + 3}')
    A.I(f'v_cvt_pk_bf16_f32 v{P}, v{X0}, v{X0 + 1}')
    A.I(f'v_exp_f32 v{X1}, v{X1}')
    A.I(f'v_exp_f32 v{X1 + 1}, v{X1 + 1}')
    A.I(f'v_cvt_pk_bf16_f32 v{P + 1}, v{X0 + 2}, v{X0 + 3}')
    A.I(f'v_exp_f32 v{X1 + 2}, v{X1 + 2}')
    A.I(f'v_exp_f32 v{X1 + 3}, v{X1 + 3}')
    A.I(f'v_cvt_pk_bf16_f32 v{P + 2}, v{X1}, v{X1 + 1}')
    A.I(f'v_cvt_pk_bf16_f32 v{P + 3}, v{X1 + 2}, v{X1 + 3}')
    A.I(f'v_lshrrev_b32 v{tm}, 2, v{V_VX}')
    A.I(f'v_mov_b64 {v(sets[0], 2)}, 0')
    A.I(f'v_mfma_f32_16x16x32_bf16 {v(Lr, 4)}, {v(ONES, 4)}, {v(P, 4)}, {v(Lr, 4)}')
    A.I(f'v_mov_b64 {v(sets[0] + 2, 2)}, 0')
    A.I(f'v_mov_b64 {v(sets[0] + 4, 2)}, 0')
    A.I(f'v_mfma_f32_16x16x32_bf16 {v(O0, 4)}, {v(VX, 4)}, {v(P, 4)}, {v(O0, 4)}')
    A.I(f'v_mov_b64 {v(sets[0] + 6, 2)}, 0')
    A.I(f'v_mov_b64 {v(sets[1] + 4, 2)}, 0')
    A.I(f'v_mfma_f32_16x16x32_bf16 {v(O1, 4)}, {v(VX + 4, 4)}, {v(P, 4)}, {v(O1, 4)}')
    A.I(f'v_mov_b64 {v(sets[1] + 6, 2)}, 0')
    A.I(f'v_mov_b64 {v(sets[3], 2)}, 0')
    A.I(f'v_rcp_f32 v{mx}, v{Lr}')
    A.I(f'v_mov_b64 {v(sets[3] + 2, 2)}, 0')
    A.I(f'v_mov_b64 {v(sets[3] + 4, 2)}, 0')
    OW = X0

    def pkmul(r):
        A.I(f'v_pk_mul_f32 {v(r, 2)}, {v(r, 2)}, {v(mx, 2)} op_sel:[0,0] op_sel_hi:[1,0]')

    pkmul(O0)
    pkmul(O0 + 2)
    A.I(f'v_cvt_pk_bf16_f32 v{OW}, v{O0}, v{O0 + 1}')
    A.I(f'v_cvt_pk_bf16_f32 v{OW + 1}, v{O0 + 2}, v{O0 + 3}')
    pkmul(O1)
    pkmul(O1 + 2)
    A.I(f'v_cvt_pk_bf16_f32 v{OW + 2}, v{O1}, v{O1 + 1}')
    A.I(f'v_cvt_pk_bf16_f32 v{OW + 3}, v{O1 + 2}, v{O1 + 3}')
    A.I(f'ds_write_b128 v{V_OW}, {v(OW, 4)}')
    stamp(4)
    A.I(f'v_lshrrev_b32 v{mx}, 2, v{V_L16}')
    A.I(f'v_add_u32 v{tm}, v{tm}, v{mx}')
    A.I(f'ds_write_b64 v{tm}, {v(VMP, 2)} offset:{L_VM}')
    zero(A, sets[2], 8)
    A.I(f'v_mov_b64 {v(sets[3] + 6, 2)}, 0')
    A.I('s_waitcnt lgkmcnt(1)')
    A.I('s_barrier')
    OF = VX
    A.I(f'ds_read_b128 {v(OF, 4)}, v{V_L16} offset:{L_OX}')
    A.I(f'ds_read_b128 {v(OF + 4, 4)}, v{V_L16} offset:{L_OX + 1024}')
    OBUF = {(6, 0): 0, (7, 0): 8, (6, 1): 24, (7, 1): KX + 8}
    A.I(f's_add_u32 s{S_PB0H}, s{S_PB0}, 4096')
    A.I('s_waitcnt lgkmcnt(1)')
    stamp(5)

    def post(c):
        a0, b0 = sets[c], sets[c] + 4
        o = (OW if c < 2 else P) + 2 * (c & 1)
        if c == 3:
            l = [f'v_pk_add_f32 {v(a0, 2)}, {v(a0, 2)}, {v(a0 + 2, 2)}',
                 f'v_pk_add_f32 {v(b0, 2)}, {v(b0, 2)}, {v(b0 + 2, 2)}']
        else:
            l = [f'v_add_f32 v{a0}, v{a0}, v{a0 + 2}', f'v_add_f32 v{a0 + 1}, v{a0 + 1}, v{a0 + 3}',
                 f'v_add_f32 v{b0}, v{b0}, v{b0 + 2}', f'v_add_f32 v{b0 + 1}, v{b0 + 1}, v{b0 + 3}']
        l += [f'v_cvt_pk_bf16_f32 v{o}, v{a0}, v{b0}',
              f'v_cvt_pk_bf16_f32 v{o + 1}, v{a0 + 1}, v{b0 + 1}',
              f'v_bfi_b32 v{o}, 1, s{S_TAG}, v{o}']
        if c & 1:
            l.append(f'buffer_store_dwordx4 {v(o - 2, 4)}, v{V_PBW}, {ws}, s{S_PB0} offen offset:{128 * (c >> 1)} {st}')
        return l

    def womf(c, t2, bb):
        nbo = 2 * c + bb
        b = v(OBUF[(nbo, t2)], 8) if (nbo, t2) in OBUF else u(HOME[('o', nbo, t2)], 8)
        A.I(f'v_smfmac_f32_16x16x64_bf16 {v(sets[c] + 4 * bb, 4)}, {v(OF + 4 * t2, 4)}, {b}, v{V_IDX}')

    obr = []
    for f, b in OBUF.items():
        hf, sl = LDS_SLOT[('o',) + f]
        va_ = V_WO1 if hf else V_WO0
        obr.append(f'ds_read_b128 {v(b, 4)}, v{va_} offset:{sl * 2048}')
        obr.append(f'ds_read_b128 {v(b + 4, 4)}, v{va_} offset:{sl * 2048 + 1024}')
    seq = [(c, t2, bb) for c in range(4) for t2 in range(2) for bb in range(2)]
    fill = {i: [] for i in range(16)}
    for i in range(8):
        fill[2 + i // 2 if i < 6 else 5].append(obr[i])
    DM0 = E('DM0', 0)
    for i in range(4):
        fill[DM0 + i].append(dm[i])
    p0, p1, p2 = post(0), post(1), post(2)
    for k, x in enumerate(p0):
        fill[6 + k // 2].append(x)
    for k, x in enumerate(p1):
        fill[10 + k // 2].append(x)
    for k, x in enumerate(p2):
        fill[14 + min(k // 2, 1)].append(x)
    for i, (c, t2, bb) in enumerate(seq):
        if i == 2:
            A.I('s_waitcnt lgkmcnt(0)')
        if i == 12:
            A.I('s_waitcnt lgkmcnt(0)')
        womf(c, t2, bb)
        for x in fill[i]:
            A.I(x)
    A.I(f's_cmp_ge_u32 s{S_WV}, 2')
    for x in post(3):
        A.I(x)
    stamp(6)
    stamp_acc()
    if STAMPS:
        A.I(f's_cmp_ge_u32 s{S_WV}, 2')
    if kvcheck:
        lke = A.newlabel('L_ke')
        A.I(f's_cmp_ge_u32 s{S_AV}, 64')
        A.I(f's_cbranch_scc1 {lke}')
        A.I('s_waitcnt vmcnt(9)')
        A.I(f'v_mov_b32 v{T + 8}, v{V_SP}')
        kv_eval(A, T + 8, V_L16, S_AV)
        A.I(f's_cmp_lt_u32 s{S_AV}, 64')
        A.I(f's_cselect_b32 s{S_RA}, s{S_RA}, 0x7f000000')
        lk2 = A.newlabel('L_ke2')
        A.br(f's_branch {lk2}')
        A.label(lke)
        for i in range(3):
            A.I('s_nop 7')
        A.label(lk2)
        A.I(f's_cmp_ge_u32 s{S_WV}, 2')
    zero(A, ACC, 8)
    A.I(f's_cbranch_scc1 {L_w23}')
    A.I(f'v_cndmask_b32 v{SEL}, 0, v{V_SEL}, s[{S_M0}:{S_M0 + 1}]')
    A.I(f'v_cndmask_b32 v{SEL + 1}, 0, v{V_SEL}, s[{S_M1}:{S_M1 + 1}]')
    A.I(f'v_mov_b64 {v(SEL + 2, 2)}, {v(SEL, 2)}')
    if E('PBW', 0):
        A.I('s_waitcnt vmcnt(0)')
    for i in range(PB_DELAY - (4 if kvcheck else 0)):
        A.I('s_nop 7')
    pb_loads(RA)
    hstamp(2)
    q_prefetch(A, 0)
    for i in range(PB_GAP):
        A.I('s_nop 7')
    if TWO_PB:
        pb_loads(RB)
    q_prefetch(A, 1)
    A.br(f's_branch {L_top}')
    A.label(L_w23)
    A.forget_loads()
    q_prefetch(A)
    if os.environ.get('DIAG2'):
        ld_ = A.newlabel('L_d2')
        A.I(f's_add_u32 s80, s{S_H}, s{S_WV}')
        A.I('s_cmp_lg_u32 s80, 2')
        A.I(f's_cbranch_scc1 {ld_}')
        A.I('s_mov_b32 s64, 0')
        for i, st_ in enumerate((1, 8, 20, 36, 52)):
            A.I(f's_cmp_eq_u32 s{S_STEP}, {st_}')
            A.I(f's_cselect_b32 s64, {44 + 4 * i}, s64')
        A.I('s_cmp_eq_u32 s64, 0')
        A.I(f's_cbranch_scc1 {ld_}')
        A.I('s_memrealtime s[80:81]')
        A.I('s_waitcnt lgkmcnt(0)')
        A.I('s_sub_u32 s80, s80, s58')
        A.I('v_mov_b32 v0, s80')
        A.I('buffer_store_dword v0, off, s[84:87], s64')
        A.label(ld_)
    if os.environ.get('STEPT'):
        A.I('s_memrealtime s[80:81]')
        A.I('s_waitcnt lgkmcnt(0)')
        A.I('v_mov_b32 v0, s80')
        A.I(f's_lshl_b32 s80, s{S_STEP}, 2')
        A.I(f's_lshl_b32 s81, s{S_H}, 8')
        A.I('s_add_u32 s80, s80, s81')
        A.I(f's_add_u32 s80, s80, 0x{WS_DBG + 0x20000:x}')
        A.I(f'buffer_store_dword v0, off, {ws}, s80')
        A.I('s_memtime s[64:65]')
        A.I('s_waitcnt lgkmcnt(0)')
        A.I('v_mov_b32 v1, s64')
        A.I(f's_add_u32 s80, s80, 0x4000')
        A.I(f'buffer_store_dword v1, off, {ws}, s80')
    hstamp(2); hstamp(3)
    A.br(f's_branch {L_bh}')

    A.check = False
    A.label(L_pslow)
    if TWO_PB:
        red(RB, 0)
        A.I(f's_cbranch_vccz {L_red}')
    pb_loads(RA)
    A.I(f's_sub_u32 s{S_SPIN}, s{S_SPIN}, 1')
    A.I(f's_cbranch_scc1 {l_exit}')
    if TWO_PB:
        for i in range(3):
            A.I('s_nop 7')
        pb_loads(RB)
    A.br(f's_branch {L_top}')
    A.label(L_aslow)
    af_loads(0)
    zero(A, ACC, 8)
    for b in ASETS[1:]:
        A.I('s_waitcnt vmcnt(4)')
        A.I(f'v_max3_u32 v8, v{b}, v{b + 1}, v{b + 2}')
        A.I(f'v_max3_u32 v9, v{b + 3}, v{b + 4}, v{b + 5}')
        A.I(f'v_mov_b64 {v(10, 2)}, {v(b, 2)}')
        A.I(f'v_max3_u32 v8, v8, v{b + 6}, v{b + 7}')
        A.I(f'v_max_u32 v8, v8, v9')
        A.I(f'v_cmp_eq_u32 vcc, -1, v8')
        lf = A.newlabel('L_af_f')
        A.I(f's_cbranch_vccnz {lf}')
        for i in range(0, 8, 2):
            A.I(f'v_mov_b64 {v(i, 2)}, {v(b + i, 2)}')
        A.br(f's_branch {L_afok}')
        A.label(lf)
        af_loads(b)
    A.I(f's_sub_u32 s{S_SPIN}, s{S_SPIN}, 1')
    A.I(f's_cbranch_scc1 {l_exit}')
    A.br(f's_branch {L_afchk}')
    if kvcheck:
        A.label(L_kvc)
        A.I(f's_cmp_eq_u32 s23, 64')
        A.I(f's_cbranch_scc1 {L_kvr}')
        kv_wait(A, l_exit, 23, ACC + 16)
        A.br(f's_branch {L_kvr}')
    A.label(L_fin)
    A.I(f'v_add_u32 v{V_MX}, s{S_W640}, v{V_KR}')
    A.I(f'ds_read_b128 {v(T, 4)}, v{V_MX}')
    mf('v', 1, 3)
    for t in range(4, 8):
        mf('v', 0, t)
        mf('v', 1, t)
    A.I(f'v_lshrrev_b32 v{V_TM}, 1, v{V_L16}')
    A.I('s_waitcnt lgkmcnt(0)')
    A.I(f'buffer_store_dwordx4 {v(T, 4)}, v{V_L16}, {ws}, s{S_KMO} offen sc1')
    A.I(f'v_pk_add_f32 {v(va, 2)}, {v(va, 2)}, {v(va + 2, 2)}')
    A.I(f'v_pk_add_f32 {v(vb, 2)}, {v(vb, 2)}, {v(vb + 2, 2)}')
    A.I(f'v_cvt_pk_bf16_f32 v{VMP}, v{va}, v{va + 1}')
    A.I(f'v_cvt_pk_bf16_f32 v{VMP + 1}, v{vb}, v{vb + 1}')
    A.I(f'buffer_store_dwordx2 {v(VMP, 2)}, v{V_TM}, {ws}, s{S_VMO} offen sc1')
    if kvcheck:
        A.I('v_mov_b32 v6, 65')
        A.I('s_waitcnt vmcnt(0)')
        A.I('s_mov_b64 exec, 1')
        A.I(f'buffer_store_dword v6, off, {ws}, s{S_KP} sc1')
        A.I('s_mov_b64 exec, -1')
    A.br(f's_branch {l_exit}')
    A.check = True
    A.forget_loads()


def rec_kernel(A, name):
    kernel_begin(A, name)
    l_exit = A.newlabel('L_exit')
    P_WS, P_DBG, P_Q, P_K, P_V, P_O, P_M0 = 16, 18, 20, 22, 24, 26, 28
    A.I(f's_cmp_ge_u32 s2, 256')
    A.I(f's_cbranch_scc1 {l_exit}')
    A.I(f's_load_dwordx2 s[{P_WS}:{P_WS + 1}], s[0:1], {KA_WS}')
    A.I(f's_load_dwordx2 s[{P_DBG}:{P_DBG + 1}], s[0:1], {KA_DBG}')
    A.I(f's_load_dwordx4 s[{P_Q}:{P_Q + 3}], s[0:1], {KA_WQ}')
    A.I(f's_load_dwordx4 s[{P_V}:{P_V + 3}], s[0:1], {KA_WV}')
    A.I(f's_load_dwordx2 s[{P_M0}:{P_M0 + 1}], s[0:1], {KA_MEM0}')
    A.I('v_lshrrev_b32 v1, 6, v0')
    A.I(f'v_and_b32 v{LANE}, 63, v0')
    A.I(f'v_readfirstlane_b32 s{S_WV}, v1')
    A.I(f's_getreg_b32 s{S_T0}, hwreg(HW_REG_XCC_ID)')
    A.I(f's_and_b32 s{S_T0}, s{S_T0}, 15')
    A.I('s_waitcnt lgkmcnt(0)')
    make_srd(A, S_WS, P_WS, WS_SIZE)
    make_srd(A, S_DBG, P_DBG, 256)
    A.I(f's_cmp_lg_u32 s{S_T0}, 0')
    A.I(f's_cbranch_scc1 {l_exit}')
    A.I(f's_mov_b32 s{S_SPIN}, 2000000')
    dbg = f's[{S_DBG}:{S_DBG + 3}]'
    A.I('v_mov_b32 v2, 1')
    A.I('v_mov_b32 v3, 0')
    A.I('v_cmp_eq_u32 vcc, 0, v0')
    A.I('s_and_saveexec_b64 s[30:31], vcc')
    lsk = A.newlabel('L_sk')
    A.I(f's_cbranch_execz {lsk}')
    A.I(f'buffer_atomic_add v2, v3, {dbg}, 0 offen sc0')
    A.I('s_waitcnt vmcnt(0)')
    A.I('ds_write_b32 v3, v2')
    A.I('s_waitcnt lgkmcnt(0)')
    A.label(lsk)
    A.I('s_mov_b64 exec, s[30:31]')
    A.I('s_barrier')
    A.I('ds_read_b32 v2, v3')
    A.I('s_waitcnt lgkmcnt(0)')
    A.I(f'v_readfirstlane_b32 s{S_H}, v2')
    A.I('s_barrier')
    A.I(f's_cmp_ge_u32 s{S_H}, 32')
    A.I(f's_cbranch_scc1 {l_exit}')
    A.I(f's_memrealtime s[{S_TS}:{S_TS + 1}]')
    setup_consts(A)
    st = STF
    init_exchange(A, P_M0, st)
    A.I('s_barrier')
    A.I('v_mov_b32 v2, 1')
    A.I('v_mov_b32 v3, 64')
    A.I('v_cmp_eq_u32 vcc, 0, v0')
    A.I('s_and_saveexec_b64 s[30:31], vcc')
    lsk = A.newlabel('L_sk')
    A.I(f's_cbranch_execz {lsk}')
    A.I(f'buffer_atomic_add v2, v3, {dbg}, 0 offen')
    A.label(lsk)
    A.I('s_mov_b64 exec, s[30:31]')
    A.I('s_waitcnt vmcnt(0)')
    stage_weights(A, [P_Q, P_K, P_V, P_O])
    A.I(f's_lshl_b32 s{S_KVN}, s{S_H}, 13')
    A.I(f's_add_u32 s{S_KVN}, s{S_KVN}, s{S_W11}')
    A.I(f's_add_u32 s{S_KVN}, s{S_KVN}, 0x{WS_KF:x}')
    A.I(f's_add_u32 s{S_KVM0}, s{S_W11}, {L_KV}')
    kv_dma(A)
    lw = A.newlabel('L_tw')
    A.I('v_mov_b32 v3, 64')
    A.label(lw)
    A.I(f'buffer_load_dword v2, v3, {dbg}, 0 offen sc1')
    A.I(f's_sub_u32 s{S_SPIN}, s{S_SPIN}, 1')
    A.I(f's_cbranch_scc1 {l_exit}')
    A.I('s_waitcnt vmcnt(0)')
    A.I(f'v_readfirstlane_b32 s{S_T0}, v2')
    A.I(f's_cmp_lt_u32 s{S_T0}, 32')
    A.I(f's_cbranch_scc1 {lw}')
    A.I('s_barrier')
    A.I(f's_memrealtime s[{S_TS + 2}:{S_TS + 3}]')
    A.I('s_waitcnt lgkmcnt(0)')
    l_done = A.newlabel('L_done')
    main_loop(A, st, l_done)
    A.label(l_done)
    A.forget_loads()
    A.I(f's_memrealtime s[{S_TS + 4}:{S_TS + 5}]')
    A.I('s_waitcnt lgkmcnt(0) vmcnt(0)')
    A.I(f's_lshl_b32 s{S_T0}, s{S_H}, 2')
    A.I(f's_add_u32 s{S_T0}, s{S_T0}, s{S_WV}')
    A.I(f's_lshl_b32 s{S_T0}, s{S_T0}, 5')
    A.I(f's_add_u32 s{S_T0}, s{S_T0}, 0x{WS_DBG:x}')
    for i in range(6):
        A.I(f'v_mov_b32 v{i}, s{S_TS + i}')
    A.I(f'v_mov_b32 v6, s{S_STEP}')
    A.I(f'v_mov_b32 v7, s{S_SPIN}')
    A.I('v_mov_b32 v8, 0')
    A.I(f'buffer_store_dwordx4 v[0:3], v8, s[{S_WS}:{S_WS + 3}], s{S_T0} offen')
    A.I(f'buffer_store_dwordx4 v[4:7], v8, s[{S_WS}:{S_WS + 3}], s{S_T0} offen offset:16')
    if STAMPS:
        A.I(f's_add_u32 s{S_T0}, s{S_T0}, s{S_T0}')
        A.I(f's_sub_u32 s{S_T0}, s{S_T0}, 0x{WS_DBG - 0x10000:x}')
        for i in range(12):
            A.I(f'v_mov_b32 v{12 + i}, s{88 + i}')
        for i in range(3):
            A.I(f'buffer_store_dwordx4 {v(12 + 4 * i, 4)}, v8, s[{S_WS}:{S_WS + 3}], s{S_T0} offen offset:{16 * i}')
    A.label(l_exit)
    A.I('s_endpgm')


if __name__ == '__main__':
    A = Asm()
    rec_kernel(A, 'rec_kernel')
    txt = header([('rec_kernel', 256, 256, L_TOTAL)]) + A.text() + '.section .rodata,"a"\n' + kernel_desc('rec_kernel', 512, 256)
    open('work/' + OUT, 'w').write(txt)
    print('ok', len(txt))
```

```python
import os
os.environ.setdefault('PB_DELAY', '7'); os.environ.setdefault('AF_DELAY', '2'); os.environ.setdefault('AF_GAP', '2')
from common import *
import tok as T
import rec9 as R
from tok import f32, S_WS, S_W, S_X, S_H, S_WV, S_G, S_T0, S_T1, S_T2, S_T3

S_DBG = 84
S_SPIN = R.S_SPIN
S_XCC = 83
S_LNO = 82
F_OPC = WS_FLAG + 0x4000
F_LH = WS_FLAG + 0x6000
F_LU = WS_FLAG + 0x8000
F_GF = WS_FLAG + 0x8400
S_FAST = S_XCC
D_GB, D_OVF, D_WEIRD, D_TS, D_TI = 128, 36, 40, 192, 196
S_J, S_BO2, S_LB2 = 100, 101, 3
S_J2 = 63
S_W1, S_B1, S_W2 = 88, 92, 96
NEARLY = int(os.environ.get('NEARLY', 2))
STAG = int(os.environ.get('STAG', 4))
STAG0 = int(os.environ.get('STAG0', 1))
TIMING = bool(os.environ.get('TIMING'))
OPRING = int(os.environ.get('OPRING', 0))
WARM = int(os.environ.get('WARM', 0))
DIAG = bool(os.environ.get('DIAG'))
TAIL_BYTES = int(os.environ.get('TAIL_BYTES', 24576))
CODET = int(os.environ.get('CODET', 0))
CODE_BYTES = int(os.environ.get('CODE_BYTES', 57344))
PLF = os.environ.get('PLF', 'sc1').replace('_', ' ')


def lane0(A, body):
    A.I('s_mov_b64 exec, 1')
    body()
    A.I('s_mov_b64 exec, -1')


def poll_eq(A, srd, s_off, imm, expect, vt, l_exit, sleep=0):
    l = A.newlabel('L_poll')
    A.label(l)
    so = f's{s_off}' if s_off is not None else '0'
    A.I(f'buffer_load_dword v{vt}, off, {srd}, {so} offset:{imm} sc1')
    A.I(f's_sub_u32 s{S_SPIN}, s{S_SPIN}, 1')
    A.I(f's_cbranch_scc1 {l_exit}')
    A.I('s_waitcnt vmcnt(0)')
    A.I(f'v_readfirstlane_b32 s{S_T0}, v{vt}')
    ld = A.newlabel('L_pd')
    A.I(f's_cmp_eq_u32 s{S_T0}, {expect}')
    A.I(f's_cbranch_scc1 {ld}')
    if sleep:
        A.I(f's_sleep {sleep}')
    A.br(f's_branch {l}')
    A.label(ld)


def poll_flags(A, s_off, nlanes, width, vt, va, l_exit, sleep=0, mask=None):
    ws = f's[{S_WS}:{S_WS + 3}]'
    l, ld = A.newlabel('L_pf'), A.newlabel('L_pfd')
    A.I(f'v_lshlrev_b32 v{va}, {2 if width == 1 else 3}, v0')
    assert nlanes <= 32
    A.I(f's_mov_b32 exec_lo, 0x{((1 << nlanes) - 1) if mask is None else mask:x}')
    A.I('s_mov_b32 exec_hi, 0')
    A.label(l)
    if width == 1:
        A.I(f'buffer_load_dword v{vt}, v{va}, {ws}, s{s_off} offen {PLF}')
    else:
        A.I(f'buffer_load_dwordx2 {v(vt, 2)}, v{va}, {ws}, s{s_off} offen {PLF}')
    A.I(f's_sub_u32 s{S_SPIN}, s{S_SPIN}, 1')
    A.I(f's_cbranch_scc1 {l_exit}')
    A.I('s_waitcnt vmcnt(0)')
    if width == 2:
        A.I(f'v_min_u32 v{vt}, v{vt}, v{vt + 1}')
    A.I(f'v_cmp_eq_u32 vcc, 0, v{vt}')
    A.I(f's_cbranch_vccz {ld}')
    if sleep:
        A.I(f's_sleep {sleep}')
    A.br(f's_branch {l}')
    A.label(ld)
    A.I('s_mov_b64 exec, -1')


def flag_store(A, s_addr, vt):
    ws = f's[{S_WS}:{S_WS + 3}]'
    l1, l2 = A.newlabel('L_fs'), A.newlabel('L_fs')
    A.I(f'v_mov_b32 v{vt}, 1')
    A.I('s_mov_b64 exec, 1')
    A.I(f's_cmp_eq_u32 s{S_FAST}, 0')
    A.br(f's_cbranch_scc1 {l1}')
    A.I(f'buffer_store_dword v{vt}, off, {ws}, s{s_addr}')
    A.br(f's_branch {l2}')
    A.label(l1)
    A.I(f'buffer_store_dword v{vt}, off, {ws}, s{s_addr} sc1')
    A.label(l2)
    A.I('s_mov_b64 exec, -1')


def garrive(A, s_line, s_goff, vt, l_exit):
    ws = f's[{S_WS}:{S_WS + 3}]'
    A.I(f's_lshl_b32 s{S_T1}, s{S_H}, 2')
    A.I(f's_add_u32 s{S_T1}, s{S_T1}, s{s_line}')
    flag_store(A, S_T1, vt)
    l = A.newlabel('L_ga')
    A.I(f's_cmp_lg_u32 s{S_H}, 0')
    A.br(f's_cbranch_scc1 {l}')
    poll_flags(A, s_line, 32, 1, vt, vt + 1, l_exit)
    A.I(f'v_lshlrev_b32 v{vt + 1}, 9, v0')
    A.I(f'v_mov_b32 v{vt}, 1')
    A.I('s_mov_b64 exec, 0xff')
    A.I(f'buffer_store_dword v{vt}, v{vt + 1}, {ws}, s{s_goff} offen sc1')
    A.I('s_mov_b64 exec, -1')
    A.label(l)


def wg_poll_eq(A, srd, s_off, imm, expect, vt, l_exit, sleep=0):
    l0 = A.newlabel('L_wgp')
    A.I(f's_cmp_lg_u32 s{S_WV}, 0')
    A.br(f's_cbranch_scc1 {l0}')
    poll_eq(A, srd, s_off, imm, expect, vt, l_exit, sleep)
    A.label(l0)
    A.I('s_barrier')


def tstamp(A, idx, r=14):
    if not TIMING:
        return
    l = A.newlabel('L_ts')
    A.I(f's_cmp_lg_u32 s{S_WV}, 0')
    A.br(f's_cbranch_scc1 {l}')
    A.I('s_memrealtime s[80:81]')
    A.I('s_waitcnt lgkmcnt(0)')
    A.I(f'v_mov_b32 v{r}, s80')
    A.I(f'v_mov_b32 v{r + 1}, s81')
    A.I(f's_lshl_b32 s80, s{S_G}, 5')
    A.I(f's_add_u32 s80, s80, s{S_H}')
    A.I('s_lshl_b32 s80, s80, 8')
    A.I(f's_add_u32 s80, s80, 0x{WS_DBG:x}')
    A.I(f'buffer_store_dwordx2 {v(r, 2)}, off, s[{S_WS}:{S_WS + 3}], s80 offset:{8 * idx}')
    A.label(l)


def mega_kernel(A, name):
    kernel_begin(A, name)
    l_exit = A.newlabel('L_exit')
    P_WS, P_DBG, P_Q, P_K, P_V, P_O, P_M0, P_X = 16, 18, 20, 22, 24, 26, 28, 30
    ws, dbg, sx = f's[{S_WS}:{S_WS + 3}]', f's[{S_DBG}:{S_DBG + 3}]', f's[{S_X}:{S_X + 3}]'
    A.I('s_cmp_ge_u32 s2, 256')
    A.I(f's_cbranch_scc1 {l_exit}')
    if DIAG:
        A.I('s_memrealtime s[58:59]')
    A.I(f's_load_dwordx2 s[{P_WS}:{P_WS + 1}], s[0:1], {KA_WS}')
    A.I(f's_load_dwordx2 s[{P_DBG}:{P_DBG + 1}], s[0:1], {KA_DBG}')
    A.I(f's_load_dwordx4 s[{P_Q}:{P_Q + 3}], s[0:1], {KA_WQ}')
    A.I(f's_load_dwordx4 s[{P_V}:{P_V + 3}], s[0:1], {KA_WV}')
    A.I(f's_load_dwordx2 s[{P_M0}:{P_M0 + 1}], s[0:1], {KA_MEM0}')
    A.I(f's_load_dwordx2 s[{P_X}:{P_X + 1}], s[0:1], {KA_X}')
    A.I('v_lshrrev_b32 v1, 6, v0')
    A.I('v_and_b32 v0, 63, v0')
    A.I(f'v_readfirstlane_b32 s{S_WV}, v1')
    A.I(f's_getreg_b32 s{S_XCC}, hwreg(HW_REG_XCC_ID)')
    A.I(f's_mov_b32 s{S_SPIN}, 0x80000')
    A.I('s_waitcnt lgkmcnt(0)')
    make_srd(A, S_WS, P_WS, WS_SIZE)
    make_srd(A, S_DBG, P_DBG, 256)
    make_srd(A, S_X, P_X, 2048 * 1024)
    LX, LF = 32, 48
    lnl = A.newlabel('L_l0')
    A.I('v_and_b32 v24, 15, v0')
    A.I('v_lshrrev_b32 v25, 4, v0')
    A.I('s_cmp_ge_u32 s2, 128')
    A.br(f's_cbranch_scc1 {lnl}')
    A.I('v_lshlrev_b32 v26, 10, v24')
    A.I('v_lshl_add_u32 v26, v25, 4, v26')
    A.I(f's_lshl_b32 s{S_LNO}, s2, 14')
    A.I(f's_lshl_b32 s{S_T0}, s{S_WV}, 8')
    A.I(f's_add_u32 s{S_T0}, s{S_T0}, s{S_LNO}')
    for i in range(4):
        A.I(f'buffer_load_dwordx4 {v(LX + 4 * i, 4)}, v26, {sx}, s{S_T0} offen offset:{64 * i}')
    A.label(lnl)
    A.forget_loads()
    if CODET:
        lct = A.newlabel('L_ct')
        A.I(f's_cmp_lg_u32 s{S_WV}, 3')
        A.br(f's_cbranch_scc1 {lct}')
        A.I('s_cmp_ge_u32 s2, 16')
        A.br(f's_cbranch_scc1 {lct}')
        code_touch(A, name, l_exit, CODE_BYTES, 255, 3)
        A.label(lct)
    lr = A.newlabel('L_role_done')
    A.I(f's_cmp_lg_u32 s{S_WV}, 0')
    A.br(f's_cbranch_scc1 {lr}')
    A.I('s_mov_b64 exec, 1')
    A.I('v_mov_b32 v2, 1')
    lw = A.newlabel('L_nw')
    A.I(f's_cmp_lt_u32 s{S_XCC}, 8')
    A.br(f's_cbranch_scc1 {lw}')
    A.I(f'buffer_atomic_or v2, off, {dbg}, 0 offset:{D_WEIRD}')
    A.I('s_waitcnt vmcnt(0)')
    A.label(lw)
    A.I(f's_and_b32 s{S_G}, s{S_XCC}, 7')
    A.I(f's_lshl_b32 s{S_T0}, s{S_G}, 2')
    A.I(f'buffer_atomic_add v2, off, {dbg}, s{S_T0} sc0')
    A.I('s_waitcnt vmcnt(0)')
    A.I(f'v_readfirstlane_b32 s{S_H}, v2')
    lok = A.newlabel('L_rok')
    A.I(f's_cmp_lt_u32 s{S_H}, 32')
    A.br(f's_cbranch_scc1 {lok}')
    A.I('v_mov_b32 v2, 1')
    A.I(f'buffer_atomic_add v2, off, {dbg}, 0 offset:{D_OVF} sc0')
    A.I('s_waitcnt vmcnt(0)')
    A.I(f'v_readfirstlane_b32 s{S_T3}, v2')
    lo = A.newlabel('L_ovf')
    A.label(lo)
    A.I(f'buffer_load_dwordx4 v[4:7], off, {dbg}, 0 sc1')
    A.I(f'buffer_load_dwordx4 v[8:11], off, {dbg}, 0 offset:16 sc1')
    A.I(f's_sub_u32 s{S_SPIN}, s{S_SPIN}, 1')
    A.I(f's_cbranch_scc1 {l_exit}')
    A.I('s_waitcnt vmcnt(0)')
    A.I(f's_mov_b32 s{S_T0}, 0')
    for i in range(8):
        A.I(f'v_readfirstlane_b32 s{64 + i}, v{4 + i}')
    for i in range(8):
        A.I(f's_add_u32 s{S_T0}, s{S_T0}, s{64 + i}')
    A.I(f's_cmp_lt_u32 s{S_T0}, 256')
    A.br(f's_cbranch_scc1 {lo}')
    for g in range(8):
        A.I(f's_min_u32 s{S_T0}, s{64 + g}, 32')
        A.I(f's_sub_u32 s{S_T1}, 32, s{S_T0}')
        A.I(f's_mov_b32 s{S_G}, {g}')
        A.I(f's_add_u32 s{S_H}, s{S_T0}, s{S_T3}')
        A.I(f's_cmp_lt_u32 s{S_T3}, s{S_T1}')
        A.br(f's_cbranch_scc1 {lok}')
        A.I(f's_sub_u32 s{S_T3}, s{S_T3}, s{S_T1}')
    A.I(f's_mov_b32 s{S_G}, 0x100')
    A.I(f's_mov_b32 s{S_H}, 0')
    A.label(lok)
    A.I(f's_lshl_b32 s{S_T0}, s{S_G}, 8')
    A.I(f's_or_b32 s{S_T0}, s{S_T0}, s{S_H}')
    A.I(f'v_mov_b32 v2, s{S_T0}')
    A.I('v_mov_b32 v3, 0')
    A.I('ds_write_b32 v3, v2')
    A.I('s_waitcnt lgkmcnt(0)')
    A.I('s_mov_b64 exec, -1')
    A.label(lr)
    lno, lnd = A.newlabel('L_lno'), A.newlabel('L_lnd')
    A.I('s_cmp_ge_u32 s2, 128')
    A.br(f's_cbranch_scc1 {lno}')
    A.I(f's_lshl_b32 s{S_T0}, s{S_WV}, 2')
    A.I('v_lshlrev_b32 v27, 4, v24')
    A.I(f'v_add_u32 v26, s{S_T0}, v27')
    A.I('s_waitcnt vmcnt(0)')
    for i in range(16):
        A.I(f'v_lshlrev_b32 v{LF + 2 * i}, 16, v{LX + i}')
        A.I(f'v_and_b32 v{LF + 2 * i + 1}, 0xffff0000, v{LX + i}')
    A.I(f'v_add_f32 v28, v{LF}, v{LF + 1}')
    A.I(f'v_add_f32 v29, v{LF + 2}, v{LF + 3}')
    for i in range(4, 32, 2):
        A.I(f'v_add_f32 v28, v28, v{LF + i}')
        A.I(f'v_add_f32 v29, v29, v{LF + i + 1}')
    A.I('v_add_f32 v28, v28, v29')
    T.xreduce(A, 'v_add_f32', 28, 29)
    A.I('ds_write_b32 v26, v28 offset:64')
    A.I('s_waitcnt lgkmcnt(0)')
    A.I('s_barrier')
    A.I('v_mov_b32 v3, 0')
    A.I('ds_read_b32 v2, v3')
    A.I('ds_read_b128 v[28:31], v27 offset:64')
    A.I('s_waitcnt lgkmcnt(0)')
    A.I('v_add_f32 v28, v28, v29')
    A.I('v_add_f32 v30, v30, v31')
    A.I('v_add_f32 v28, v28, v30')
    A.I(f'v_mul_f32 v28, {f32(1 / 512)}, v28')
    A.I('v_mov_b32 v29, 0')
    A.I('v_mov_b32 v30, 0')
    for i in range(0, 32, 2):
        A.I(f'v_sub_f32 v{LF + i}, v{LF + i}, v28')
        A.I(f'v_sub_f32 v{LF + i + 1}, v{LF + i + 1}, v28')
        A.I(f'v_fmac_f32 v29, v{LF + i}, v{LF + i}')
        A.I(f'v_fmac_f32 v30, v{LF + i + 1}, v{LF + i + 1}')
    A.I('v_add_f32 v29, v29, v30')
    T.xreduce(A, 'v_add_f32', 29, 30)
    A.I('ds_write_b32 v26, v29 offset:320')
    A.I('s_waitcnt lgkmcnt(0)')
    A.I('s_barrier')
    A.I('ds_read_b128 v[28:31], v27 offset:320')
    A.I('s_waitcnt lgkmcnt(0)')
    A.I('v_add_f32 v28, v28, v29')
    A.I('v_add_f32 v30, v30, v31')
    A.I('v_add_f32 v28, v28, v30')
    A.I(f'v_mov_b32 v29, {f32(1e-5)}')
    A.I(f'v_fmac_f32 v29, {f32(1 / 512)}, v28')
    A.I('v_rsq_f32 v29, v29')
    A.I('v_lshlrev_b32 v26, 4, v0')
    A.I(f's_lshl_b32 s{S_T0}, s{S_WV}, 12')
    A.I(f's_add_u32 s{S_T0}, s{S_T0}, s{S_LNO}')
    A.I(f's_add_u32 s{S_T0}, s{S_T0}, 0x{WS_XN:x}')
    for i in range(4):
        for j in range(4):
            f = LF + 8 * i + 2 * j
            A.I(f'v_mul_f32 v{f}, v{f}, v29')
            A.I(f'v_mul_f32 v{f + 1}, v{f + 1}, v29')
            A.I(f'v_cvt_pk_bf16_f32 v{LX + 4 * i + j}, v{f}, v{f + 1}')
        A.I(f'buffer_store_dwordx4 {v(LX + 4 * i, 4)}, v26, {ws}, s{S_T0} offen offset:{1024 * i} sc1')
    A.br(f's_branch {lnd}')
    A.label(lno)
    A.I('s_barrier')
    A.I('v_mov_b32 v3, 0')
    A.I('ds_read_b32 v2, v3')
    A.I('s_waitcnt lgkmcnt(0)')
    A.label(lnd)
    A.forget_loads()
    A.I(f'v_readfirstlane_b32 s{S_T0}, v2')
    A.I(f's_and_b32 s{S_H}, s{S_T0}, 31')
    A.I(f's_bfe_u32 s{S_G}, s{S_T0}, 0x30008')
    A.I(f's_cmp_ge_u32 s{S_T0}, 0x10000')
    A.I(f's_cbranch_scc1 {l_exit}')
    A.I('s_barrier')
    tstamp(A, 0)

    def arrive(off=D_GB):
        l = A.newlabel('L_na')
        A.I(f's_cmp_lg_u32 s{S_WV}, 0')
        A.br(f's_cbranch_scc1 {l}')
        A.I('v_mov_b32 v23, 1')
        lane0(A, lambda: A.I(f'buffer_atomic_add v23, off, {dbg}, 0 offset:{off}'))
        A.label(l)

    def ln_and_arrive(ln=True):
        A.I('s_waitcnt vmcnt(0)')
        A.I('s_barrier')
        arrive()

    l_tok = A.newlabel('L_tok')
    l_g2 = A.newlabel('L_g2')
    A.I(f's_cmp_lg_u32 s{S_G}, 0')
    A.br(f's_cbranch_scc1 {l_tok}')

    A.I(f'v_mov_b32 v{R.LANE}, v0')
    R.setup_consts(A)

    A.I(f's_lshl_b32 s{S_T0}, s{S_H}, 6')
    A.I(f's_lshl_b32 s{S_T1}, s{S_WV}, 2')
    A.I(f's_add_u32 s{S_T0}, s{S_T0}, s{S_T1}')
    A.I(f's_add_u32 s{S_LNO}, s{S_T0}, 0x{R.F_KMP:x}')
    A.I('v_mov_b32 v24, 0')
    lane0(A, lambda: A.I(f'buffer_store_dword v24, off, {ws}, s{S_LNO} sc1'))
    R.init_exchange(A, P_M0, 'sc1', rb=24, part=0)

    def thook():
        A.check = False
        R.init_exchange(A, P_M0, 'sc1', rb=24, part=1)
        A.check = True
        A.forget_loads()

    def h_sc(sc):
        if sc == 0:
            arrive()
            tstamp(A, 8, 24)
        if sc == 1:
            arrive(D_TI)

    S_OK = 25

    def batch():
        A.I(f'buffer_load_dword v25, off, {dbg}, 0 sc1')
        A.I(f'buffer_load_dword v26, off, {dbg}, 0 offset:{D_WEIRD} sc1')
        A.I(f'buffer_load_dword v27, off, {dbg}, 0 offset:{D_TI} sc1')
        R.kv_load(A, 28, R.V_L16, R.S_RA)

    def h_issue(sc):
        if sc == 3:
            A.I(f'buffer_load_dword v24, off, {dbg}, 0 offset:{D_GB} sc1')
            return
        A.I(f's_lshl_b32 s{R.S_RA}, s{S_H}, 7')
        A.I(f's_add_u32 s{R.S_RA}, s{R.S_RA}, 0x{R.F_PROG:x}')
        A.I(f's_lshl_b32 s{R.S_KVN}, s{S_H}, 13')
        A.I(f's_add_u32 s{R.S_KVN}, s{R.S_KVN}, s{R.S_W11}')
        A.I(f's_add_u32 s{R.S_KVN}, s{R.S_KVN}, 0x{WS_KF:x}')
        A.I(f's_add_u32 s{R.S_KVM0}, s{R.S_W11}, {R.L_KV}')
        batch()

    def evaluate(l_fail):
        R.kv_eval(A, 28, R.V_L16, R.S_AV)
        A.I(f'v_readfirstlane_b32 s{S_T0}, v24')
        A.I(f'v_readfirstlane_b32 s{S_T2}, v25')
        A.I(f'v_readfirstlane_b32 s{S_T3}, v26')
        A.I(f's_cmp_lg_u32 s{S_T0}, 256')
        A.I(f's_cbranch_scc1 {l_fail}')
        A.I(f'v_readfirstlane_b32 s{S_T0}, v27')
        A.I(f's_cmp_lg_u32 s{S_T0}, 32')
        A.I(f's_cbranch_scc1 {l_fail}')
        A.I(f's_cmp_eq_u32 s{R.S_AV}, 0')
        A.I(f's_cbranch_scc1 {l_fail}')
        A.I(f's_cmp_ge_u32 s{S_T2}, 32')
        A.I(f's_cselect_b32 s{S_XCC}, 1, 0')
        A.I(f's_cmp_eq_u32 s{S_T3}, 0')
        A.I(f's_cselect_b32 s{S_XCC}, s{S_XCC}, 0')
        R.kv_dma(A)

    def h_check():
        lf = A.newlabel('L_hf')
        A.I(f's_mov_b32 s{S_OK}, 0')
        evaluate(lf)
        A.I(f's_mov_b32 s{S_OK}, 1')
        A.label(lf)

    R.stage_weights(A, [P_Q, P_K, P_V, P_O], hook=thook, hook_issue=h_issue, hook_check=h_check, hook_sc=h_sc)
    tstamp(A, 1)
    A.I(f's_mov_b32 s{R.S_KP}, s{S_LNO}')
    lgo_, lre = A.newlabel('L_tgo'), A.newlabel('L_tre')
    A.I(f's_cmp_eq_u32 s{S_OK}, 1')
    A.br(f's_cbranch_scc1 {lgo_}')
    A.label(lre)
    A.I('s_sleep 4')
    A.I(f'buffer_load_dword v24, off, {dbg}, 0 offset:{D_GB} sc1')
    A.I('s_waitcnt vmcnt(0)')
    batch()
    A.I(f's_sub_u32 s{S_SPIN}, s{S_SPIN}, 1')
    A.I(f's_cbranch_scc1 {l_exit}')
    A.I('s_waitcnt vmcnt(0)')
    evaluate(lre)
    A.label(lgo_)
    A.I('s_waitcnt vmcnt(0)')
    A.I('s_barrier')
    tstamp(A, 2)
    if DIAG:
        A.I('s_memrealtime s[80:81]')
        A.I('s_waitcnt lgkmcnt(0)')
        A.I('s_sub_u32 s60, s80, s58')
    l_slow = A.newlabel('L_slowmode')
    l_tdone = A.newlabel('L_tdone')
    A.I(f's_cmp_eq_u32 s{S_XCC}, 0')
    if os.environ.get('FORCE_SLOW'):
        A.br(f's_branch {l_slow}')
    else:
        A.br(f's_cbranch_scc1 {l_slow}')
    R.main_loop(A, '', l_tdone, kvcheck=True)
    A.label(l_slow)
    R.main_loop(A, 'sc1', l_tdone, kvcheck=True)
    A.label(l_tdone)
    A.forget_loads()
    A.I(f's_mov_b32 s{S_G}, 0')
    tstamp(A, 3)
    if DIAG:
        A.I('s_memrealtime s[80:81]')
        A.I('s_waitcnt lgkmcnt(0)')
        A.I('s_sub_u32 s61, s80, s58')
    A.I(f'v_lshrrev_b32 v0, 4, v{R.V_L16}')
    j2_calc(A)
    A.I('s_waitcnt vmcnt(0) lgkmcnt(0)')
    A.I('s_barrier')
    g2_setup(A)
    for k in range(5):
        g2_dma(A, k)
    A.I(f's_mov_b32 s{S_PRE}, 0')
    A.br(f's_branch {l_g2}')

    A.label(l_tok)
    A.forget_loads()
    S_SEG, S_NX, S_CA, S_END, S_K1, S_AV, S_PB = 36, 41, 42, 43, 44, 45, 46
    j2_calc(A)
    A.I(f's_sub_u32 s{S_G}, s{S_G}, 1')
    A.I(f's_lshl_b32 s{S_J}, s{S_G}, 5')
    A.I(f's_add_u32 s{S_J}, s{S_J}, s{S_H}')

    def tok_init(ln=True):
        A.I(f's_lshl_b32 s{S_CA}, s{S_H}, 7')
        A.I(f's_lshl_b32 s{S_T0}, s{S_G}, 4')
        A.I(f's_add_u32 s{S_CA}, s{S_CA}, s{S_T0}')
        A.I(f's_lshl_b32 s{S_T0}, s{S_WV}, 2')
        A.I(f's_add_u32 s{S_CA}, s{S_CA}, s{S_T0}')
        A.I(f's_add_u32 s{S_CA}, s{S_CA}, 0x{R.F_PROG:x}')
        A.I('v_mov_b32 v22, 0')
        lane0(A, lambda: A.I(f'buffer_store_dword v22, off, {ws}, s{S_CA} sc1'))
        lz = A.newlabel('L_nz')
        A.I(f's_cmp_lg_u32 s{S_J}, 64')
        A.br(f's_cbranch_scc1 {lz}')
        A.I('v_lshlrev_b32 v23, 4, v0')
        for r in range(16, 20):
            A.I(f'v_mov_b32 v{r}, 0')
        A.I(f's_mul_i32 s{S_T0}, s{S_WV}, 6144')
        A.I(f's_add_u32 s{S_T0}, s{S_T0}, 0x{F_OPC:x}')
        A.I(f's_add_u32 s{S_T1}, s{S_T0}, 4096')
        for i in range(4):
            A.I(f'buffer_store_dwordx4 v[16:19], v23, {ws}, s{S_T0} offen offset:{1024 * i} sc1')
        A.I(f'buffer_store_dwordx4 v[16:19], v23, {ws}, s{S_T1} offen sc1')
        A.I(f'buffer_store_dwordx4 v[16:19], v23, {ws}, s{S_T1} offen offset:1024 sc1')
        A.label(lz)
        A.forget_loads()
        if ln:
            ln_and_arrive()
            ts_tok(A, 8)

    l_late = A.newlabel('L_late')
    l_st = A.newlabel('L_st')
    A.I(f's_mov_b32 s{S_K1}, 0')
    l_lt = A.newlabel('L_lt')
    A.I(f's_cmp_ge_u32 s{S_G}, {NEARLY}')
    A.br(f's_cbranch_scc1 {l_lt}')
    tok_init(False)
    A.br(f's_branch {l_st}')
    A.label(l_lt)
    if WARM:
        lwm = A.newlabel('L_wm')
        A.I(f's_cmp_eq_u32 s{S_G}, 3')
        A.br(f's_cbranch_scc1 {lwm}')
        A.I(f's_sub_u32 s{S_T0}, s{S_J}, 96')
        A.I(f's_cmp_eq_u32 s{S_G}, 2')
        A.I(f's_cselect_b32 s{S_T0}, s{S_H}, s{S_T0}')
        A.I(f's_lshl_b32 s{S_T0}, s{S_T0}, 2')
        A.I(f's_add_u32 s{S_T0}, s{S_T0}, s{S_WV}')
        A.I(f's_lshl_b32 s{S_T0}, s{S_T0}, 13')
        A.I('v_lshlrev_b32 v22, 7, v0')
        A.check = False
        for p in (P_Q, P_K, P_V, P_O):
            make_srd(A, S_W, p, 4 << 20)
            A.I(f'buffer_load_dword v255, v22, s[{S_W}:{S_W + 3}], s{S_T0} offen')
        A.check = True
        A.label(lwm)
        A.forget_loads()
    tok_init()
    l_nost = A.newlabel('L_nost')
    wg_poll_eq(A, dbg, None, D_GB, 256, 2, l_exit, sleep=100)
    A.I(f's_cmp_ge_u32 s{S_G}, 4')
    A.br(f's_cbranch_scc1 {l_nost}')
    lsg, lsd = A.newlabel('L_sg'), A.newlabel('L_sd')
    A.I(f's_cmp_lg_u32 s{S_WV}, 0')
    A.br(f's_cbranch_scc1 {lsd}')
    A.I(f's_cmp_eq_u32 s{S_G}, 3')
    A.I(f's_cselect_b32 s{S_T1}, {STAG}, {STAG0}')
    A.I(f's_lshl_b32 s{S_T2}, s{S_H}, 6')
    A.I(f's_add_u32 s{S_T2}, s{S_T2}, 0x{R.F_KMP:x}')
    A.label(lsg)
    A.I(f'buffer_load_dword v2, off, {ws}, s{S_T2} sc1')
    A.I(f's_sub_u32 s{S_SPIN}, s{S_SPIN}, 1')
    A.I(f's_cbranch_scc1 {l_exit}')
    A.I('s_waitcnt vmcnt(0)')
    A.I(f'v_readfirstlane_b32 s{S_T0}, v2')
    A.I(f's_cmp_ge_u32 s{S_T0}, s{S_T1}')
    A.I(f's_cbranch_scc1 {lsd}')
    A.I('s_sleep 40')
    A.br(f's_branch {lsg}')
    A.label(lsd)
    A.I('s_barrier')
    A.I(f's_mov_b32 s{S_K1}, 1')
    A.label(l_st)

    def hook(sc):
        if sc != 0:
            return
        l = A.newlabel('L_hk')
        A.I(f's_cmp_eq_u32 s{S_K1}, 1')
        A.br(f's_cbranch_scc1 {l}')
        arrive()
        ts_tok(A, 8)
        A.label(l)

    T.qkv_stage(A, [P_Q, P_K, P_V], hook_sc=hook)
    A.label(l_nost)
    ts_tok(A, 1)
    wg_poll_eq(A, dbg, None, D_GB, 256, 2, l_exit, sleep=8)
    ts_tok(A, 7)
    A.I(f's_lshl_b32 s{S_T0}, s{S_G}, 2')
    A.I(f'buffer_load_dword v2, off, {dbg}, s{S_T0} offset:4 sc1')
    A.I(f'buffer_load_dword v3, off, {dbg}, 0 offset:{D_WEIRD} sc1')
    A.I('s_waitcnt vmcnt(0)')
    A.I(f'v_readfirstlane_b32 s{S_T2}, v2')
    A.I(f'v_readfirstlane_b32 s{S_T3}, v3')
    A.I(f's_cmp_ge_u32 s{S_T2}, 32')
    A.I(f's_cselect_b32 s{S_FAST}, 1, 0')
    A.I(f's_cmp_eq_u32 s{S_T3}, 0')
    A.I(f's_cselect_b32 s{S_FAST}, s{S_FAST}, 0')
    if os.environ.get('FORCE_SLOW'):
        A.I(f's_mov_b32 s{S_FAST}, 0')
    l_nop1 = A.newlabel('L_nop1')
    A.I(f's_cmp_ge_u32 s{S_G}, 4')
    A.br(f's_cbranch_scc1 {l_nop1}')
    A.I(f's_lshr_b32 s{S_T0}, s{S_G}, 1')
    A.I(f's_lshl_b32 s{S_T0}, s{S_T0}, 5')
    A.I(f's_add_u32 s{S_END}, s{S_T0}, 32')
    A.I(f's_and_b32 s{S_NX}, s{S_G}, 1')
    A.I(f's_add_u32 s{S_NX}, s{S_NX}, s{S_T0}')
    A.I('v_mov_b32 v2, 0')

    def signal():
        lane0(A, lambda: A.I(f'buffer_store_dword v2, off, {ws}, s{S_CA} sc1'))

    def after():
        A.I('v_add_u32 v2, 1, v2')

    T.qkv_segments(A, 2, 'sc1', after_seg=after, mid_seg=signal, first=S_NX, end=f's{S_END}')
    A.I('s_waitcnt vmcnt(0)')
    signal()
    A.label(l_nop1)
    ts_tok(A, 2)
    T.att_stage(A, P_O)
    T.att_consts(A)
    A.I(f's_load_dwordx4 s[16:19], s[0:1], {KA_W1}')
    A.I('s_waitcnt lgkmcnt(0)')
    make_srd(A, S_W1, 16, 2048 * 3584)
    make_srd(A, S_B1, 18, 3584)
    g2_setup(A)
    A.I(f's_mov_b32 s{S_PRE}, 0')
    for i in range(16):
        A.I(f'v_mov_b32 v{G1ACC + i}, 0')
    A.I(f's_mov_b32 s{S_K1}, 0')
    g1_w1_dma(A, S_K1, first=True)
    A.I(f's_lshl_b32 s{S_OPS}, s{S_G}, 1')
    masks = seg_masks()
    for g in range(7):
        A.I(f's_cmp_eq_u32 s{S_G}, {g}')
        A.I(f's_cselect_b32 s{S_MSK}, 0x{masks[g] & 0xffffffff:x}, s{S_MSK}')
        A.I(f's_cselect_b32 s{S_MSK + 1}, 0x{masks[g] >> 32:x}, s{S_MSK + 1}')
    A.I(f's_ff1_i32_b64 s{S_SEG}, s[{S_MSK}:{S_MSK + 1}]')
    A.I(f's_bitset0_b64 s[{S_MSK}:{S_MSK + 1}], s{S_SEG}')
    A.I(f's_mov_b32 s{S_AV}, 0')
    A.I(f's_lshl_b32 s{S_PB}, s{S_H}, 7')
    A.I(f's_add_u32 s{S_PB}, s{S_PB}, 0x{R.F_PROG:x}')
    R.kv_wait(A, l_exit, S_SEG, 192, s_av=S_AV, s_base=S_PB, sleep=4, vlane16=1)
    T.att_load_qkv(A, S_SEG)
    x_prefetch(A, S_SEG, sx)
    L = A.newlabel('L_p2')
    L_att = A.newlabel('L_att')
    L_fin = A.newlabel('L_p2fin')
    A.label(L)
    A.check = False
    A.I(f's_cmp_ge_u32 s{S_K1}, 16')
    A.I(f's_cbranch_scc1 {L_fin}')
    lq2 = A.newlabel('L_lp2')
    ldec = A.newlabel('L_dec')
    A.I(f's_cmp_lg_u32 s{S_WV}, 0')
    A.br(f's_cbranch_scc1 {ldec}')
    A.I(f's_lshl_b32 s{S_CA}, s{S_H}, 6')
    A.I(f's_add_u32 s{S_CA}, s{S_CA}, 0x{R.F_KMP:x}')
    A.I(f's_add_u32 s40, s{S_SEG}, 2')
    A.I(f's_lshl_b32 s{S_T1}, s{S_K1}, 4')
    A.I(f's_lshl_b32 s{S_T2}, s{S_G}, 9')
    A.I(f's_add_u32 s{S_T1}, s{S_T1}, s{S_T2}')
    A.I(f's_add_u32 s{S_T1}, s{S_T1}, 0x{F_GF + 512:x}')
    lq, lgo, lnk = A.newlabel('L_lp'), A.newlabel('L_go'), A.newlabel('L_nk')
    A.label(lq)
    A.I(f'buffer_load_dwordx4 v[192:195], off, {ws}, s{S_CA} {PLF}')
    A.I(f'buffer_load_dwordx4 v[196:199], off, {ws}, s{S_T1} {PLF}')
    A.I(f's_sub_u32 s{S_SPIN}, s{S_SPIN}, 1')
    A.I(f's_cbranch_scc1 {l_exit}')
    A.I('s_waitcnt vmcnt(0)')
    A.I('v_min_u32 v6, v192, v193')
    A.I('v_min3_u32 v6, v6, v194, v195')
    A.I(f'v_readfirstlane_b32 s{S_T0}, v6')
    A.I('v_min_u32 v7, v196, v197')
    A.I('v_min3_u32 v7, v7, v198, v199')
    A.I('v_cmp_eq_u32 vcc, 0, v7')
    A.I(f's_mov_b32 s{S_T3}, 1')
    A.I(f's_cmp_ge_u32 s{S_T0}, s40')
    A.I(f's_cbranch_scc1 {lgo}')
    A.label(lnk)
    lsl = A.newlabel('L_sl')
    A.I(f's_add_u32 s{S_T0}, s{S_T0}, 2')
    A.I(f's_cmp_ge_u32 s{S_T0}, s40')
    A.I(f's_cbranch_scc1 {lq}')
    A.I(f's_mov_b32 s{S_T3}, 2')
    A.I(f's_cbranch_vccz {lgo}')
    lns = A.newlabel('L_nsl')
    A.I(f's_mov_b32 s{S_T3}, 3')
    A.I(f's_cmp_lt_u32 s{S_SEG}, 64')
    A.I(f's_cbranch_scc1 {lns}')
    A.I(f's_cmp_lt_u32 s{S_K1}, 3')
    A.I(f's_cbranch_scc1 {lns}')
    A.I(f's_cmp_lt_u32 s{S_PRE}, 3')
    A.I(f's_cbranch_scc1 {lgo}')
    A.label(lns)
    A.I('s_sleep 4')
    A.br(f's_branch {lq}')
    A.label(lgo)
    A.I(f'v_mov_b32 v6, s{S_T3}')
    A.I(f'v_mov_b32 v7, {L_RED + 8192 - 16}')
    A.I('ds_write_b32 v7, v6')
    A.I('s_waitcnt lgkmcnt(0)')
    A.label(ldec)
    A.I('s_barrier')
    A.I(f'v_mov_b32 v7, {L_RED + 8192 - 16}')
    A.I('ds_read_b32 v6, v7')
    A.I('s_waitcnt lgkmcnt(0)')
    A.I(f'v_readfirstlane_b32 s{S_T0}, v6')
    A.I(f's_cmp_eq_u32 s{S_T0}, 1')
    A.br(f's_cbranch_scc1 {lq2}')
    lch = A.newlabel('L_ch')
    A.I(f's_cmp_eq_u32 s{S_T0}, 2')
    A.br(f's_cbranch_scc1 {lch}')
    for rnd in range(3):
        lpr = A.newlabel('L_pr')
        A.I(f's_cmp_lg_u32 s{S_PRE}, {rnd}')
        A.br(f's_cbranch_scc1 {lpr}')
        g2_pre(A, rnd)
        A.br(f's_branch {L}')
        A.label(lpr)
    A.label(lch)
    ts_tok(A, 16)
    g1_chunk(A, S_K1, l_exit)
    A.I(f's_add_u32 s{S_K1}, s{S_K1}, 1')
    if CODET:
        lct = A.newlabel('L_ct')
        A.I(f's_cmp_lg_u32 s{S_K1}, 12')
        A.br(f's_cbranch_scc1 {lct}')
        A.I(f's_lshl_b32 s{S_T0}, s{S_H}, 2')
        A.I(f's_add_u32 s{S_T0}, s{S_T0}, s{S_WV}')
        A.I(f's_cmp_lg_u32 s{S_T0}, 7')
        A.br(f's_cbranch_scc1 {L}')
        code_touch(A, L, l_exit, TAIL_BYTES, 5, 143)
        A.br(f's_branch {L}')
        A.label(lct)
    lw2 = A.newlabel('L_w2')
    A.I(f's_cmp_lg_u32 s{S_K1}, 3')
    A.br(f's_cbranch_scc1 {lw2}')
    for k in range(5):
        g2_dma(A, k)
    A.br(f's_branch {L}')
    A.label(lw2)
    A.I(f's_cmp_lg_u32 s{S_K1}, 6')
    A.br(f's_cbranch_scc1 {L}')
    A.I(f's_and_b32 s{S_T0}, s{S_J2}, 7')
    A.I(f's_cmp_lg_u32 s{S_T0}, 4')
    A.br(f's_cbranch_scc1 {L}')
    g2_touch(A, 5)
    A.br(f's_branch {L}')
    A.label(lq2)
    ts_tok(A, 10)
    T.att_load_mem(A, S_SEG, 'sc1')
    A.I('s_waitcnt vmcnt(0)')
    ts_tok(A, 11)
    A.check = True
    A.forget_loads()
    T.att_compute1(A)
    lc1, lc2 = A.newlabel('L_c2s'), A.newlabel('L_c2e')
    A.I(f's_cmp_eq_u32 s{S_FAST}, 0')
    A.br(f's_cbranch_scc1 {lc1}')
    T.att_compute2(A, S_OPS, '')
    A.br(f's_branch {lc2}')
    A.label(lc1)
    T.att_compute2(A, S_OPS, 'sc1')
    A.label(lc2)
    ts_tok(A, 12)
    A.I('s_waitcnt vmcnt(0)')
    A.I('s_barrier')
    ts_tok(A, 13)
    A.I(f's_lshl_b32 s{S_CA}, s{S_SEG}, 7')
    A.I(f's_add_u32 s{S_CA}, s{S_CA}, 0x{F_OPC:x}')
    l0 = A.newlabel('L_n0')
    A.I(f's_cmp_lg_u32 s{S_WV}, 0')
    A.br(f's_cbranch_scc1 {l0}')
    A.I(f's_lshl_b32 s{S_T1}, s{S_H}, 2')
    A.I(f's_add_u32 s{S_T1}, s{S_T1}, s{S_CA}')
    flag_store(A, S_T1, 6)
    poll_flags(A, S_CA, 32, 1, 6, 7, l_exit)
    A.label(l0)
    A.I('s_barrier')
    ts_tok(A, 14)
    red4(A, S_SEG, sx, l_exit)
    A.I(f's_ff1_i32_b64 s{S_SEG}, s[{S_MSK}:{S_MSK + 1}]')
    A.I(f's_bitset0_b64 s[{S_MSK}:{S_MSK + 1}], s{S_SEG}')
    lnn = A.newlabel('L_nn')
    A.I(f's_cmp_lt_u32 s{S_SEG}, 64')
    A.br(f's_cbranch_scc1 {lnn}')
    A.I(f's_mov_b32 s{S_SEG}, 999')
    ts_tok(A, 3)
    A.br(f's_branch {L}')
    A.label(lnn)
    lav = A.newlabel('L_av')
    A.I(f's_cmp_gt_u32 s{S_AV}, s{S_SEG}')
    A.br(f's_cbranch_scc1 {lav}')
    R.kv_wait(A, l_exit, S_SEG, 192, s_av=S_AV, s_base=S_PB, sleep=4, vlane16=1)
    A.label(lav)
    T.att_load_qkv(A, S_SEG)
    x_prefetch(A, S_SEG, sx)
    A.br(f's_branch {L}')
    A.label(L_fin)
    A.forget_loads()
    ts_tok(A, 4)
    g1_epilogue(A, l_exit)
    A.I(f's_add_u32 s{S_G}, s{S_G}, 1')
    tstamp(A, 17)
    A.label(l_g2)
    A.forget_loads()
    g2_main(A, l_exit)
    tstamp(A, 6, 8)
    if DIAG:
        A.I(f's_add_u32 s{S_T0}, s{S_G}, s{S_H}')
        A.I(f's_add_u32 s{S_T0}, s{S_T0}, s{S_WV}')
        A.I(f's_cmp_lg_u32 s{S_T0}, 0')
        A.br(f's_cbranch_scc1 {l_exit}')
        A.I('s_memrealtime s[80:81]')
        A.I('s_waitcnt lgkmcnt(0)')
        A.I('s_sub_u32 s80, s80, s58')
        A.I('v_mov_b32 v8, s60')
        A.I('v_mov_b32 v9, s61')
        A.I('v_mov_b32 v10, s80')
        A.I('v_mov_b32 v11, 0')
        if os.environ.get('DIAG2'):
            A.I(f'buffer_store_dword v9, off, {dbg}, 0 offset:32')
        else:
            A.I(f'buffer_store_dwordx4 v[8:11], off, {dbg}, 0 offset:48')
    A.label(l_exit)
    A.I('s_endpgm')


S_MSK = 56
S_OPS = 47


def seg_masks():
    c1, c2 = int(os.environ.get('C1', 14)), int(os.environ.get('C2', 27))
    m = [0] * 7
    last = {g: -100 for g in range(7)}
    for s_ in range(64):
        cand = [4, 5, 6] if s_ < c1 else ([4, 5, 6, 0, 1] if s_ < c2 else list(range(7)))
        g = min(cand, key=lambda x: last[x])
        last[g] = s_
        m[g] |= 1 << s_
    return m


def j2_calc(A):
    A.I(f's_lshr_b32 s{S_T0}, s{S_G}, 1')
    A.I(f's_lshl_b32 s{S_T0}, s{S_T0}, 3')
    A.I(f's_lshr_b32 s{S_T1}, s{S_H}, 2')
    A.I(f's_add_u32 s{S_T0}, s{S_T0}, s{S_T1}')
    A.I(f's_lshl_b32 s{S_J2}, s{S_T0}, 3')
    A.I(f's_and_b32 s{S_T0}, s{S_G}, 1')
    A.I(f's_lshl_b32 s{S_T0}, s{S_T0}, 2')
    A.I(f's_and_b32 s{S_T1}, s{S_H}, 3')
    A.I(f's_add_u32 s{S_T0}, s{S_T0}, s{S_T1}')
    A.I(f's_add_u32 s{S_J2}, s{S_J2}, s{S_T0}')


def code_touch(A, l_from, l_end, nbytes, vd, va):
    lh = A.newlabel('L_pc')
    A.I('s_getpc_b64 s[80:81]')
    A.raw(f'{lh}:')
    A.raw(f'    s_sub_u32 s80, s80, {lh}-{l_from}')
    A.raw('    s_subb_u32 s81, s81, 0')
    A.I(f'v_lshlrev_b32 v{va}, 7, v0')
    for i in range(0, nbytes, 8192):
        A.raw(f'    v_min_u32 v{va}, {l_end}-{l_from}, v{va}')
        A.raw(f'    global_load_dword v{vd}, v{va}, s[80:81]')
        A.I(f'v_add_u32 v{va}, 8192, v{va}')


def x_prefetch(A, s_seg, sx):
    A.I('v_lshrrev_b32 v6, 2, v0')
    A.I('v_lshlrev_b32 v6, 6, v6')
    A.I('v_and_b32 v7, 3, v0')
    A.I('v_lshl_add_u32 v6, v7, 3, v6')
    A.I(f's_lshl_b32 s{S_T3}, s{s_seg}, 5')
    A.I(f's_add_u32 s{S_T3}, s{S_T3}, s{S_H}')
    A.I(f's_lshl_b32 s{S_T3}, s{S_T3}, 10')
    A.I(f'buffer_load_dwordx2 v[12:13], v6, {sx}, s{S_T3} offen')
    A.I(f'buffer_load_dwordx2 v[14:15], v6, {sx}, s{S_T3} offen offset:32')


def ts_tok(A, i):
    if TIMING:
        A.I(f's_add_u32 s{S_G}, s{S_G}, 1')
        tstamp(A, i, 14 if i in (1, 2, 7, 8) else 6)
        A.I(f's_sub_u32 s{S_G}, s{S_G}, 1')


G1ACC = 120
G1T = 144
L_G1 = 0
L_RED = 65536
L_W2 = 73728


def g1_lane(A):
    t = G1T
    A.I(f'v_lshrrev_b32 v{t}, 3, v0')
    A.I(f'v_and_b32 v{t + 1}, 7, v0')
    A.I(f'v_bfe_u32 v{t + 2}, v0, 4, 1')
    A.I(f's_and_b32 s{S_T0}, s{S_WV}, 1')
    A.I(f's_lshl_b32 s{S_T0}, s{S_T0}, 1')
    A.I(f'v_or_b32 v{t + 2}, s{S_T0}, v{t + 2}')
    A.I(f'v_lshlrev_b32 v{t + 2}, 1, v{t + 2}')
    A.I(f'v_xor_b32 v{t + 1}, v{t + 1}, v{t + 2}')
    A.I(f'v_lshlrev_b32 v{t + 1}, 4, v{t + 1}')
    A.I(f'v_mul_u32_u24 v136, 3584, v{t}')
    A.I(f'v_add_u32 v136, v136, v{t + 1}')
    A.I(f'v_lshl_add_u32 v137, v{t}, 10, v{t + 1}')
    A.I(f'v_and_b32 v{t}, 15, v0')
    A.I(f'v_lshrrev_b32 v{t + 1}, 4, v0')
    A.I(f'v_lshrrev_b32 v{t + 2}, 2, v{t}')
    A.I(f'v_and_b32 v{t + 3}, 3, v{t}')
    A.I(f'v_lshl_add_u32 v{t + 4}, v{t + 1}, 3, v{t + 2}')
    A.I(f'v_lshlrev_b32 v{t + 4}, 7, v{t + 4}')
    A.I(f'v_lshl_add_u32 v{t + 4}, v{t + 3}, 3, v{t + 4}')
    A.I(f'v_lshrrev_b32 v{t + 5}, 1, v{t + 2}')
    A.I(f'v_and_b32 v{t + 6}, 1, v{t + 1}')
    A.I(f'v_lshl_add_u32 v{t + 5}, v{t + 6}, 1, v{t + 5}')
    A.I(f'v_xor_b32 v{t + 6}, s{S_T0}, v{t + 5}')
    A.I(f'v_lshl_add_u32 v138, v{t + 6}, 5, v{t + 4}')
    A.I(f'v_xor_b32 v139, 32, v138')
    A.I(f's_and_b32 s{S_T0}, s{S_WV}, 2')
    A.I(f'v_xor_b32 v{t + 6}, s{S_T0}, v{t + 5}')
    A.I(f'v_lshl_add_u32 v140, v{t + 6}, 5, v{t + 4}')
    A.I(f'v_add_u32 v140, 16384, v140')
    A.I(f'v_xor_b32 v141, 32, v140')


def g1_w1_dma(A, s_k, first=False, plus=0):
    if first:
        g1_lane(A)
    w1 = f's[{S_W1}:{S_W1 + 3}]'
    A.I(f's_add_u32 s{S_T2}, s{s_k}, {plus}')
    A.I(f's_mul_i32 s{S_T0}, s{S_T2}, {128 * 3584}')
    A.I(f's_mul_i32 s{S_T1}, s{S_WV}, {8 * 3584}')
    A.I(f's_add_u32 s{S_T0}, s{S_T0}, s{S_T1}')
    A.I(f's_lshr_b32 s{S_T1}, s{S_J}, 3')
    A.I(f's_lshl_b32 s{S_T1}, s{S_T1}, 7')
    A.I(f's_add_u32 s{S_T0}, s{S_T0}, s{S_T1}')
    A.I(f's_and_b32 s{S_T1}, s{S_T2}, 1')
    A.I(f's_lshl_b32 s{S_T1}, s{S_T1}, 15')
    A.I(f's_lshl_b32 s{S_T2}, s{S_WV}, 10')
    A.I(f's_add_u32 s{S_T1}, s{S_T1}, s{S_T2}')
    for i in range(4):
        A.I(f's_add_u32 m0, s{S_T1}, {L_G1 + i * 4096}')
        A.I(f's_add_u32 s{S_T2}, s{S_T0}, {i * 32 * 3584}')
        A.I(f'buffer_load_dwordx4 v136, {w1}, s{S_T2} offen lds')


def g1_chunk(A, s_k, l_exit):
    ws = f's[{S_WS}:{S_WS + 3}]'
    A.I(f's_lshl_b32 s{S_T0}, s{s_k}, 17')
    A.I(f's_lshl_b32 s{S_T1}, s{S_WV}, 13')
    A.I(f's_add_u32 s{S_T0}, s{S_T0}, s{S_T1}')
    A.I(f's_and_b32 s{S_T1}, s{S_J}, 7')
    A.I(f's_lshl_b32 s{S_T1}, s{S_T1}, 7')
    A.I(f's_add_u32 s{S_T0}, s{S_T0}, s{S_T1}')
    A.I(f's_add_u32 s{S_T0}, s{S_T0}, 0x{WS_HP:x}')
    A.I(f's_and_b32 s{S_T3}, s{s_k}, 1')
    A.I(f's_lshl_b32 s{S_T3}, s{S_T3}, 15')
    A.I(f's_lshl_b32 s{S_T2}, s{S_WV}, 10')
    A.I(f's_add_u32 s{S_T1}, s{S_T3}, s{S_T2}')
    for i in range(4):
        A.I(f's_add_u32 m0, s{S_T1}, {L_G1 + 16384 + i * 4096}')
        A.I(f's_add_u32 s{S_T2}, s{S_T0}, {i * 32 * 1024}')
        A.I(f'buffer_load_dwordx4 v137, {ws}, s{S_T2} offen lds')
    AD = G1T
    for j in range(4):
        A.I(f'v_add_u32 v{AD + j}, s{S_T3}, v{138 + j}')
    g1_w1_dma(A, s_k, plus=1)
    A.I('s_waitcnt vmcnt(4)')
    A.I('s_barrier')
    FR = G1T + 8

    def rd(ks):
        for j in range(4):
            for x in range(2):
                A.I(f'ds_read_b64_tr_b16 {v(FR + 16 * ks + 4 * j + 2 * x, 2)}, v{AD + j} offset:{L_G1 + (32 * ks + 4 * x) * 128}')

    rd(0)
    for ks in range(4):
        if ks < 3:
            rd(ks + 1)
            A.I('s_waitcnt lgkmcnt(8)')
        else:
            A.I('s_waitcnt lgkmcnt(0)')
        f = FR + 16 * ks
        for mbp in range(2):
            for nbp in range(2):
                d = G1ACC + (mbp * 2 + nbp) * 4
                A.I(f'v_mfma_f32_16x16x32_bf16 {v(d, 4)}, {v(f + 4 * mbp, 4)}, {v(f + 8 + 4 * nbp, 4)}, {v(d, 4)}')


def g1_epilogue(A, l_exit):
    import math
    ws, b1 = f's[{S_WS}:{S_WS + 3}]', f's[{S_B1}:{S_B1 + 3}]'
    ACC, BI, Z, Pk, TT, O = G1ACC, 150, 160, 168, 172, 188
    A.I(f's_lshr_b32 s{S_T2}, s{S_J}, 3')
    A.I(f's_lshl_b32 s{S_T0}, s{S_T2}, 7')
    A.I(f's_and_b32 s{S_T1}, s{S_WV}, 1')
    A.I(f's_lshl_b32 s{S_T1}, s{S_T1}, 6')
    A.I(f's_add_u32 s{S_T0}, s{S_T0}, s{S_T1}')
    A.I('v_lshrrev_b32 v144, 4, v0')
    A.I('v_lshlrev_b32 v144, 3, v144')
    A.I(f'buffer_load_dwordx2 v[146:147], v144, {b1}, s{S_T0} offen')
    A.I(f'buffer_load_dwordx2 v[148:149], v144, {b1}, s{S_T0} offen offset:32')
    A.I(f's_and_b32 s{S_T0}, s{S_J}, 7')
    A.I(f's_lshl_b32 s{S_T0}, s{S_T0}, 2')
    A.I(f's_and_b32 s{S_T1}, s{S_WV}, 2')
    A.I(f's_add_u32 s{S_T0}, s{S_T0}, s{S_T1}')
    A.I(f's_mul_i32 s{S_T0}, s{S_T0}, 56')
    A.I(f's_lshl_b32 s{S_T1}, s{S_T2}, 1')
    A.I(f's_add_u32 s{S_T0}, s{S_T0}, s{S_T1}')
    A.I(f's_and_b32 s{S_T1}, s{S_WV}, 1')
    A.I(f's_add_u32 s{S_T0}, s{S_T0}, s{S_T1}')
    A.I(f's_lshl_b32 s{S_T0}, s{S_T0}, 10')
    A.I(f's_add_u32 s{S_T0}, s{S_T0}, 0x{WS_U:x}')
    k1 = -2 * math.sqrt(2 / math.pi) * math.log2(math.e)
    A.I(f's_mov_b32 s{S_T2}, {f32(k1)}')
    A.I(f's_mov_b32 s{S_T3}, {f32(k1 * 0.044715)}')
    A.I('v_lshlrev_b32 v145, 4, v0')
    A.I('s_waitcnt vmcnt(0)')
    for i in range(4):
        A.I(f'v_lshlrev_b32 v{BI + 2 * i}, 16, v{146 + i}')
        A.I(f'v_and_b32 v{BI + 2 * i + 1}, 0xffff0000, v{146 + i}')
    for nbp in range(2):
        for mbp in range(2):
            for r in range(4):
                A.I(f'v_mov_b32 v{Z + 4 * mbp + r}, v{ACC + (mbp * 2 + nbp) * 4 + r}')
        T.round_bf16(A, Z, Pk)
        for i in range(8):
            A.I(f'v_add_f32 v{Z + i}, v{Z + i}, v{BI + i}')
        T.round_bf16(A, Z, Pk)
        for i in range(8):
            t = TT + i
            A.I(f'v_mul_f32 v{t}, v{Z + i}, v{Z + i}')
            A.I(f'v_mov_b32 v{t + 8}, s{S_T2}')
            A.I(f'v_fmac_f32 v{t + 8}, s{S_T3}, v{t}')
            A.I(f'v_mul_f32 v{t}, v{t + 8}, v{Z + i}')
            A.I(f'v_exp_f32 v{t}, v{t}')
        for i in range(8):
            A.I(f'v_add_f32 v{TT + i}, 1.0, v{TT + i}')
            A.I(f'v_rcp_f32 v{TT + i}, v{TT + i}')
        for i in range(8):
            A.I(f'v_mul_f32 v{Z + i}, v{Z + i}, v{TT + i}')
        o = O + 4 * nbp
        for i in range(4):
            A.I(f'v_cvt_pk_bf16_f32 v{o + i}, v{Z + 2 * i}, v{Z + 2 * i + 1}')
        A.I(f'buffer_store_dwordx4 {v(o, 4)}, v145, {ws}, s{S_T0} offen sc1')
        A.I(f's_add_u32 s{S_T0}, s{S_T0}, {56 * 1024}')
    A.I('s_waitcnt vmcnt(0)')
    A.I('s_barrier')
    l = A.newlabel('L_ue')
    A.I(f's_cmp_lg_u32 s{S_WV}, 0')
    A.br(f's_cbranch_scc1 {l}')
    A.I(f's_lshl_b32 s{S_T2}, s{S_G}, 7')
    A.I(f's_add_u32 s{S_T2}, s{S_T2}, 0x{F_LU:x}')
    A.I(f's_lshl_b32 s{S_T3}, s{S_G}, 2')
    A.I(f's_add_u32 s{S_T3}, s{S_T3}, 0x{F_GF + 256:x}')
    garrive(A, S_T2, S_T3, 144, l_exit)
    A.label(l)


def g2_slot(k):
    return L_W2 + 16384 * (k % 5)


S_PRE = 62


def g2_pre(A, rnd):
    t = G1T
    A.I(f'v_and_b32 v{t}, 15, v0')
    A.I(f'v_lshrrev_b32 v{t + 1}, 4, v0')
    A.I(f'v_lshrrev_b32 v{t + 2}, 2, v{t}')
    A.I(f'v_and_b32 v{t + 3}, 3, v{t}')
    A.I(f'v_lshl_add_u32 v{t + 2}, v{t + 1}, 2, v{t + 2}')
    A.I(f'v_bfe_u32 v{t + 1}, v{t + 2}, 1, 2')
    A.I(f'v_lshlrev_b32 v{t + 2}, 7, v{t + 2}')
    A.I(f'v_lshl_add_u32 v{t + 2}, v{t + 3}, 3, v{t + 2}')
    A.I(f'v_lshl_add_u32 v{t + 2}, v{t + 1}, 5, v{t + 2}')
    A.I(f's_lshl_b32 s{S_T0}, s{S_WV}, 12')
    A.I(f's_add_u32 s{S_T0}, s{S_T0}, {L_W2}')
    for j in range(4):
        A.I(f'v_xor_b32 v{t + 4 + j}, {32 * j}, v{t + 2}')
        A.I(f'v_add_u32 v{t + 4 + j}, s{S_T0}, v{t + 4 + j}')
        A.I(f'v_add_u32 v{t + 8 + j}, 49152, v{t + 4 + j}')
    A.I('s_waitcnt vmcnt(0)')
    A.I('s_barrier')
    ks_ = list(range(5 * rnd, min(5 * rnd + 5, 14)))
    for k in ks_:
        so = 16384 * (k % 5)
        ab = t + 4
        if so >= 49152:
            so -= 49152
            ab = t + 8
        for j in range(4):
            for x in range(2):
                A.I(f'ds_read_b64_tr_b16 {a(16 * k + 4 * j + 2 * x, 2)}, v{ab + j} offset:{so + 16 * x * 128}')
        A.I('s_waitcnt lgkmcnt(4)')
    A.I('s_waitcnt lgkmcnt(0)')
    if rnd < 2:
        A.I('s_barrier')
        for k in range(5 * rnd + 5, min(5 * rnd + 10, 14)):
            g2_dma(A, k)
    A.I(f's_mov_b32 s{S_PRE}, {rnd + 1}')


def g2_setup(A):
    A.I(f's_load_dwordx2 s[16:17], s[0:1], {KA_W2}')
    A.I('s_waitcnt lgkmcnt(0)')
    make_srd(A, S_W2, 16, 1792 * 4096)
    t = G1T
    A.I(f'v_lshrrev_b32 v{t}, 3, v0')
    A.I(f'v_and_b32 v{t + 1}, 7, v0')
    A.I(f'v_lshrrev_b32 v{t + 2}, 4, v0')
    A.I(f'v_lshlrev_b32 v{t + 2}, 1, v{t + 2}')
    A.I(f'v_xor_b32 v{t + 1}, v{t + 1}, v{t + 2}')
    A.I(f'v_lshlrev_b32 v{t + 1}, 4, v{t + 1}')
    A.I(f'v_lshl_add_u32 v142, v{t}, 12, v{t + 1}')
    A.I(f's_lshl_b32 s{S_BO2}, s{S_WV}, 15')
    A.I(f's_lshr_b32 s{S_T0}, s{S_J2}, 3')
    A.I(f's_lshl_b32 s{S_T0}, s{S_T0}, 7')
    A.I(f's_add_u32 s{S_BO2}, s{S_BO2}, s{S_T0}')
    A.I(f's_lshl_b32 s{S_LB2}, s{S_WV}, 10')


def g2_dma(A, k, vr=142):
    w2 = f's[{S_W2}:{S_W2 + 3}]'
    for i in range(4):
        A.I(f's_add_u32 m0, s{S_LB2}, {g2_slot(k) + i * 4096}')
        A.I(f's_add_u32 s{S_T0}, s{S_BO2}, {(k * 128 + i * 32) * 4096}')
        A.I(f'buffer_load_dwordx4 v{vr}, {w2}, s{S_T0} offen lds')


def g2_touch(A, k0):
    w2 = f's[{S_W2}:{S_W2 + 3}]'
    A.I('v_lshlrev_b32 v143, 12, v0')
    A.I(f's_lshr_b32 s{S_T0}, s{S_J2}, 3')
    A.I(f's_lshl_b32 s{S_T0}, s{S_T0}, 7')
    A.I(f's_lshl_b32 s{S_T1}, s{S_WV}, 18')
    A.I(f's_add_u32 s{S_T0}, s{S_T0}, s{S_T1}')
    for r0 in range(k0 * 128, 1792, 256):
        A.I(f's_add_u32 s{S_T1}, s{S_T0}, {r0 * 4096}')
        A.I(f'buffer_load_dword v5, v143, {w2}, s{S_T1} offen')


def g2_main(A, l_exit):
    ws = f's[{S_WS}:{S_WS + 3}]'
    S_O, S_B2 = S_W1, S_B1
    A.I(f's_load_dwordx4 s[16:19], s[0:1], {KA_B2}')
    for rnd in range(3):
        l = A.newlabel('L_pre')
        A.I(f's_cmp_gt_u32 s{S_PRE}, {rnd}')
        A.br(f's_cbranch_scc1 {l}')
        g2_pre(A, rnd)
        A.label(l)
        A.forget_loads()
    A.I('s_waitcnt lgkmcnt(0)')
    make_srd(A, S_B2, 16, 4096)
    make_srd(A, S_O, 18, 2048 * 1024)
    b2, out = f's[{S_B2}:{S_B2 + 3}]', f's[{S_O}:{S_O + 3}]'
    S_AO, S_EO = 36, 37
    A.I(f's_and_b32 s{S_T0}, s{S_J2}, 7')
    A.I(f's_mul_i32 s{S_AO}, s{S_T0}, {4 * 56 * 1024}')
    A.I(f's_lshl_b32 s{S_T1}, s{S_WV}, 10')
    A.I(f's_add_u32 s{S_AO}, s{S_AO}, s{S_T1}')
    A.I(f's_add_u32 s{S_AO}, s{S_AO}, 0x{WS_U:x}')
    A.I(f's_lshl_b32 s{S_T0}, s{S_T0}, 2')
    A.I(f's_add_u32 s{S_T0}, s{S_T0}, s{S_WV}')
    A.I(f's_lshr_b32 s{S_T1}, s{S_J2}, 3')
    A.I(f's_lshl_b32 s{S_EO}, s{S_T1}, 16')
    A.I(f's_lshl_b32 s{S_T0}, s{S_T0}, 5')
    A.I(f's_add_u32 s{S_EO}, s{S_EO}, s{S_T0}')
    A.I('v_lshlrev_b32 v5, 4, v0')
    A.I('v_and_b32 v1, 15, v0')
    A.I('v_lshrrev_b32 v2, 4, v0')
    A.I('v_lshlrev_b32 v3, 10, v1')
    A.I('v_lshl_add_u32 v3, v2, 3, v3')
    A.I('v_lshlrev_b32 v4, 1, v1')
    A.I(f's_lshl_b32 s{S_T1}, s{S_T1}, 7')
    HB, BB, ACC, AR = 10, 18, 24, 88
    NA = 42
    for nb in range(4):
        A.I(f'buffer_load_ushort v{BB + nb}, v4, {b2}, s{S_T1} offen offset:{32 * nb}')
    masks = seg_masks()
    late = [g for g in range(7) if masks[g] >> 61]
    earlyg = [g for g in range(7) if g not in late]
    korder = [k for g in earlyg + late for k in (2 * g, 2 * g + 1)]
    nearly = 8 * len(earlyg)
    S_FL = 38
    A.I(f's_lshl_b32 s{S_FL}, s{S_G}, 9')
    A.I(f's_add_u32 s{S_FL}, s{S_FL}, 0x{F_GF + 256:x}')

    def wait_groups(gs):
        l0 = A.newlabel('L_g20')
        A.I(f's_cmp_lg_u32 s{S_WV}, 0')
        A.br(f's_cbranch_scc1 {l0}')
        A.check = False
        poll_flags(A, S_FL, 7, 1, 6, 7, l_exit, sleep=1, mask=sum(1 << g for g in gs))
        A.check = True
        A.label(l0)
        A.I('s_barrier')

    A.I('s_waitcnt vmcnt(0)')
    wait_groups(earlyg)
    tstamp(A, 5, 8)
    vmq = []

    def aload(i):
        k, db = korder[i >> 2], i & 3
        off = db * 56 * 1024 + k * 4096
        A.I(f's_add_u32 s{S_T1}, s{S_AO}, {off}')
        A.I(f'buffer_load_dwordx4 {v(AR + 4 * (i % NA), 4)}, v5, {ws}, s{S_T1} offen')
        vmq.append(('a', i))

    def need(names):
        idx = max([i for i, p in enumerate(vmq) if p in names] + [-1])
        if idx >= 0:
            A.I(f's_waitcnt vmcnt({len(vmq) - 1 - idx})')
            del vmq[:idx + 1]

    for i in range(nearly):
        aload(i)
    for nb in range(4):
        A.I(f's_add_u32 s{S_T0}, s{S_EO}, 0x{WS_H + nb * 16384:x}')
        A.I(f'buffer_load_dwordx2 {v(HB + 2 * nb, 2)}, v3, {ws}, s{S_T0} offen')
        vmq.append(('h', 0))
    saved = (list(A.vm), list(A.lg))
    wait_groups(late)
    A.vm, A.lg = saved
    for i in range(nearly, NA):
        aload(i)
    for i in range(56):
        k, db = korder[i >> 2], i & 3
        need([('a', i)])
        for nb in range(4):
            d = ACC + 16 * db + 4 * nb
            c = '0' if i < 4 else v(d, 4)
            A.I(f'v_mfma_f32_16x16x32_bf16 {v(d, 4)}, {v(AR + 4 * (i % NA), 4)}, {a(16 * k + 4 * nb, 4)}, {c}')
        if i + NA < 56:
            aload(i + NA)
    A.I(f's_lshl_b32 s{S_T0}, s{S_WV}, 12')
    A.I(f'v_add_u32 v6, s{S_T0}, v5')
    for db in range(4):
        for nb in range(4):
            A.I(f'ds_write_b128 v6, {v(ACC + 16 * db + 4 * nb, 4)} offset:{db * 16384 + nb * 1024}')
        A.I('s_waitcnt lgkmcnt(8)')
    A.I(f's_lshl_b32 s{S_T0}, s{S_WV}, 14')
    A.I(f'v_add_u32 v6, s{S_T0}, v5')
    A.I('s_waitcnt lgkmcnt(0)')
    A.I('s_barrier')
    for j in range(16):
        A.I(f'ds_read_b128 {v(ACC + 4 * j, 4)}, v6 offset:{1024 * j}')
        if j == 11:
            A.I('s_waitcnt lgkmcnt(8)')
    A.I('s_waitcnt lgkmcnt(0) vmcnt(0)')
    tstamp(A, 18, 8)
    for r in range(0, 16, 2):
        A.I(f'v_pk_add_f32 {v(ACC + r, 2)}, {v(ACC + r, 2)}, {v(ACC + 16 + r, 2)}')
        A.I(f'v_pk_add_f32 {v(ACC + 32 + r, 2)}, {v(ACC + 32 + r, 2)}, {v(ACC + 48 + r, 2)}')
    for r in range(0, 16, 2):
        A.I(f'v_pk_add_f32 {v(ACC + r, 2)}, {v(ACC + r, 2)}, {v(ACC + 32 + r, 2)}')
    for nb in range(4):
        d = ACC + 4 * nb
        t = 88
        A.I(f'v_cvt_pk_bf16_f32 v{t}, v{d}, v{d + 1}')
        A.I(f'v_cvt_pk_bf16_f32 v{t + 1}, v{d + 2}, v{d + 3}')
        A.I(f'v_lshlrev_b32 v{t + 2}, 16, v{BB + nb}')
        for i in range(2):
            A.I(f'v_lshlrev_b32 v{d + 2 * i}, 16, v{t + i}')
            A.I(f'v_and_b32 v{d + 2 * i + 1}, 0xffff0000, v{t + i}')
        for r in range(4):
            A.I(f'v_add_f32 v{d + r}, v{d + r}, v{t + 2}')
        A.I(f'v_cvt_pk_bf16_f32 v{t}, v{d}, v{d + 1}')
        A.I(f'v_cvt_pk_bf16_f32 v{t + 1}, v{d + 2}, v{d + 3}')
        for i in range(2):
            A.I(f'v_lshlrev_b32 v{d + 2 * i}, 16, v{t + i}')
            A.I(f'v_and_b32 v{d + 2 * i + 1}, 0xffff0000, v{t + i}')
            A.I(f'v_lshlrev_b32 v{t + 2}, 16, v{HB + 2 * nb + i}')
            A.I(f'v_and_b32 v{t + 3}, 0xffff0000, v{HB + 2 * nb + i}')
            A.I(f'v_add_f32 v{d + 2 * i}, v{d + 2 * i}, v{t + 2}')
            A.I(f'v_add_f32 v{d + 2 * i + 1}, v{d + 2 * i + 1}, v{t + 3}')
        o = 92 + 2 * nb
        A.I(f'v_cvt_pk_bf16_f32 v{o}, v{d}, v{d + 1}')
        A.I(f'v_cvt_pk_bf16_f32 v{o + 1}, v{d + 2}, v{d + 3}')
        A.I(f's_add_u32 s{S_T0}, s{S_EO}, {nb * 16384}')
        A.I(f'buffer_store_dwordx2 {v(o, 2)}, v3, {out}, s{S_T0} offen')


def red4(A, s_seg, srd_x, l_exit):
    ws = f's[{S_WS}:{S_WS + 3}]'
    B, Z, Pk, XR, t0, t1, va = 192, 144, 152, 12, 160, 161, 162
    A.I(f's_lshl_b32 s{S_T2}, s{s_seg}, 5')
    A.I(f's_add_u32 s{S_T2}, s{S_T2}, s{S_H}')
    A.I(f's_lshl_b32 s{S_T0}, s{S_OPS}, 5')
    A.I(f's_add_u32 s{S_T0}, s{S_T0}, s{S_H}')
    A.I(f's_lshl_b32 s{S_T0}, s{S_T0}, 15')
    A.I(f's_xor_b32 s{S_OPS}, s{S_OPS}, 1')
    A.I(f's_lshl_b32 s{S_T1}, s{S_WV}, 13')
    A.I(f's_add_u32 s{S_T0}, s{S_T0}, s{S_T1}')
    A.I(f's_add_u32 s{S_T0}, s{S_T0}, 0x{WS_OP:x}')
    A.I(f's_add_u32 s{S_T1}, s{S_T0}, 4096')
    for hh in range(8):
        so = S_T0 if hh < 4 else S_T1
        A.I(f'buffer_load_dwordx4 {v(B + 4 * hh, 4)}, v1, {ws}, s{so} offen offset:{1024 * (hh & 3)} sc1')
    A.I(f's_lshl_b32 s{S_T3}, s{S_T2}, 10')
    A.I(f'v_lshrrev_b32 v{va}, 2, v0')
    A.I(f'v_lshlrev_b32 v{va}, 6, v{va}')
    A.I(f'v_and_b32 v{t0}, 3, v0')
    A.I(f'v_lshl_add_u32 v{va}, v{t0}, 3, v{va}')
    for hh in range(8):
        A.I(f's_waitcnt vmcnt({7 - hh})')
        for i in range(4):
            r = B + 4 * hh + i
            if hh == 0:
                A.I(f'v_lshlrev_b32 v{Z + 2 * i}, 16, v{r}')
                A.I(f'v_and_b32 v{Z + 2 * i + 1}, 0xffff0000, v{r}')
            else:
                A.I(f'v_lshlrev_b32 v{t0}, 16, v{r}')
                A.I(f'v_and_b32 v{t1}, 0xffff0000, v{r}')
                A.I(f'v_add_f32 v{Z + 2 * i}, v{Z + 2 * i}, v{t0}')
                A.I(f'v_add_f32 v{Z + 2 * i + 1}, v{Z + 2 * i + 1}, v{t1}')
    A.I(f's_lshl_b32 s{S_T0}, s{S_WV}, 11')
    A.I(f'v_add_u32 v{t0}, s{S_T0}, v1')
    A.I(f'v_add_u32 v{t0}, {L_RED}, v{t0}')
    A.I(f'ds_write_b128 v{t0}, {v(Z, 4)}')
    A.I(f'ds_write_b128 v{t0}, {v(Z + 4, 4)} offset:1024')
    A.I('s_waitcnt lgkmcnt(0) vmcnt(0)')
    A.I('s_barrier')
    ts_tok(A, 15)
    l = A.newlabel('L_r4')
    A.I(f's_cmp_lg_u32 s{S_WV}, 0')
    A.br(f's_cbranch_scc1 {l}')
    for w_ in range(1, 4):
        for j in range(2):
            A.I(f'ds_read_b128 {v(B + 8 * w_ + 4 * j, 4)}, v{t0} offset:{2048 * w_ + 1024 * j}')
    A.I('s_waitcnt lgkmcnt(0)')
    for w_ in range(1, 4):
        for i in range(8):
            A.I(f'v_add_f32 v{Z + i}, v{Z + i}, v{B + 8 * w_ + i}')
    T.round_bf16(A, Z, Pk)
    for i in range(4):
        A.I(f'v_lshlrev_b32 v{t0}, 16, v{XR + i}')
        A.I(f'v_and_b32 v{t1}, 0xffff0000, v{XR + i}')
        A.I(f'v_add_f32 v{Z + 2 * i}, v{Z + 2 * i}, v{t0}')
        A.I(f'v_add_f32 v{Z + 2 * i + 1}, v{Z + 2 * i + 1}, v{t1}')
    T.round_bf16(A, Z, Pk)
    A.I(f's_add_u32 s{S_T0}, s{S_T3}, 0x{WS_H:x}')
    A.I(f'buffer_store_dwordx2 {v(Pk, 2)}, v{va}, {ws}, s{S_T0} offen sc1')
    A.I(f'buffer_store_dwordx2 {v(Pk + 2, 2)}, v{va}, {ws}, s{S_T0} offen offset:32 sc1')
    T.ln_regs(A, Z, t0, t1)
    T.round_bf16(A, Z, XR)
    T.ln_regs(A, Z, t0, t1)
    for i in range(4):
        A.I(f'v_cvt_pk_bf16_f32 v{XR + i}, v{Z + 2 * i}, v{Z + 2 * i + 1}')
    A.I(f's_add_u32 s{S_T0}, s{S_T3}, 0x{WS_HP:x}')
    A.I(f'buffer_store_dwordx2 {v(XR, 2)}, v{va}, {ws}, s{S_T0} offen sc1')
    A.I(f'buffer_store_dwordx2 {v(XR + 2, 2)}, v{va}, {ws}, s{S_T0} offen offset:32 sc1')
    A.I(f's_lshl_b32 s{S_T2}, s{s_seg}, 7')
    A.I(f's_add_u32 s{S_T2}, s{S_T2}, 0x{F_LH:x}')
    A.I(f's_lshl_b32 s{S_T3}, s{s_seg}, 2')
    A.I(f's_add_u32 s{S_T3}, s{S_T3}, 0x{F_GF:x}')
    A.I('s_waitcnt vmcnt(0)')
    garrive(A, S_T2, S_T3, t0, l_exit)
    A.label(l)


if __name__ == '__main__':
    A = Asm()
    nm = NAME + '_kernel'
    mega_kernel(A, nm)
    hd = header([(nm, 256, 256, R.L_TOTAL)])
    if os.environ.get('FINAL'):
        hd = hd.replace(f'@launch kernel={nm} ', '@launch ')
    txt = hd + A.text() + '.section .rodata,"a"\n' + kernel_desc(nm, 512, 256)
    out = os.environ.get('OUT', 'm3.s')
    open(out, 'w').write(txt)
    print(len(txt))
```

```python
from common import *
import math, struct, os

def f32(x):
    return '0x%08x' % struct.unpack('<I', struct.pack('<f', x))[0]

S_WS, S_W, S_X = 4, 8, 12
S_H, S_WV, S_G = 32, 33, 34
S_T0, S_T1, S_T2, S_T3 = 48, 49, 50, 51


def prologue(A, ptrs, nwg, l_exit):
    A.I(f's_cmp_ge_u32 s2, {nwg}')
    A.I(f's_cbranch_scc1 {l_exit}')
    for sg, off in ptrs.items():
        A.I(f's_load_dwordx2 s[{sg}:{sg + 1}], s[0:1], {off}')
    A.I('v_lshrrev_b32 v1, 6, v0')
    A.I('v_and_b32 v0, 63, v0')
    A.I(f'v_readfirstlane_b32 s{S_WV}, v1')
    A.I('s_waitcnt lgkmcnt(0)')


def xreduce(A, op, r, t, rows16=True):
    for sw in ('v_permlane32_swap_b32', 'v_permlane16_swap_b32'):
        A.I(f'v_mov_b32 v{t}, v{r}')
        A.I(f'{sw} v{r}, v{t}')
        A.I(f'{op} v{r}, v{r}, v{t}')


LN_X, LN_F, LN_T = 32, 96, 24


def ln1_load(A, s_task, srd_x, s_off):
    X, T_ = LN_X, LN_T
    A.I(f'v_and_b32 v{T_}, 15, v0')
    A.I(f'v_lshrrev_b32 v{T_ + 1}, 4, v0')
    A.I(f'v_lshlrev_b32 v{T_}, 10, v{T_}')
    A.I(f'v_lshl_add_u32 v{T_}, v{T_ + 1}, 4, v{T_}')
    A.I(f's_lshl_b32 s{s_off}, s{s_task}, 14')
    for ks in range(16):
        A.I(f'buffer_load_dwordx4 {v(X + 4 * ks, 4)}, v{T_}, {srd_x}, s{s_off} offen offset:{64 * ks}')


def ln1_compute(A, srd_ws, s_off, st='', younger=0):
    X, F = LN_X, LN_F
    a0, a1, a2, ad = LN_T + 1, LN_T + 2, LN_T + 3, LN_T
    A.I(f'v_mov_b32 v{a0}, 0')
    A.I(f'v_mov_b32 v{a1}, 0')
    A.I(f's_waitcnt vmcnt({younger})')
    for ks in range(16):
        for i in range(4):
            r = X + 4 * ks + i
            f = F + 8 * ks + 2 * i
            A.I(f'v_lshlrev_b32 v{f}, 16, v{r}')
            A.I(f'v_and_b32 v{f + 1}, 0xffff0000, v{r}')
            A.I(f'v_add_f32 v{a0}, v{a0}, v{f}')
            A.I(f'v_add_f32 v{a1}, v{a1}, v{f + 1}')
    A.I(f'v_add_f32 v{a0}, v{a0}, v{a1}')
    xreduce(A, 'v_add_f32', a0, a1)
    A.I(f'v_mul_f32 v{a0}, {f32(1 / 512)}, v{a0}')
    A.I(f'v_mov_b32 v{a1}, 0')
    A.I(f'v_mov_b32 v{a2}, 0')
    for i in range(0, 128, 2):
        A.I(f'v_sub_f32 v{F + i}, v{F + i}, v{a0}')
        A.I(f'v_sub_f32 v{F + i + 1}, v{F + i + 1}, v{a0}')
        A.I(f'v_fmac_f32 v{a1}, v{F + i}, v{F + i}')
        A.I(f'v_fmac_f32 v{a2}, v{F + i + 1}, v{F + i + 1}')
    A.I(f'v_add_f32 v{a1}, v{a1}, v{a2}')
    xreduce(A, 'v_add_f32', a1, a2)
    A.I(f'v_mov_b32 v{a2}, {f32(1e-5)}')
    A.I(f'v_fmac_f32 v{a2}, {f32(1 / 512)}, v{a1}')
    A.I(f'v_rsq_f32 v{a2}, v{a2}')
    A.I(f'v_lshlrev_b32 v{ad}, 4, v0')
    A.I(f's_add_u32 s{s_off}, s{s_off}, 0x{WS_XN:x}')
    for ks in range(16):
        for i in range(4):
            f = F + 8 * ks + 2 * i
            A.I(f'v_mul_f32 v{f}, v{f}, v{a2}')
            A.I(f'v_mul_f32 v{f + 1}, v{f + 1}, v{a2}')
            A.I(f'v_cvt_pk_bf16_f32 v{X + 4 * ks + i}, v{f}, v{f + 1}')
        if ks and ks % 4 == 0:
            A.I(f's_add_u32 s{s_off}, s{s_off}, 4096')
        A.I(f'buffer_store_dwordx4 {v(X + 4 * ks, 4)}, v{ad}, {srd_ws}, s{s_off} offen offset:{1024 * (ks & 3)} {st}')


def ln1_body(A, s_task, srd_x, srd_ws, st=''):
    ln1_load(A, s_task, srd_x, 47)
    ln1_compute(A, srd_ws, 47, st)


def ln1_kernel(A, name):
    kernel_begin(A, name)
    le = A.newlabel('L_exit')
    prologue(A, {16: KA_WS, 18: KA_X}, 32, le)
    make_srd(A, S_WS, 16, WS_SIZE)
    make_srd(A, S_X, 18, 2048 * 1024)
    A.I(f's_lshl_b32 s{S_G}, s2, 2')
    A.I(f's_add_u32 s{S_G}, s{S_G}, s{S_WV}')
    ln1_body(A, S_G, f's[{S_X}:{S_X + 3}]', f's[{S_WS}:{S_WS + 3}]')
    A.label(le)
    A.I('s_endpgm')


def wt(mat, nb, ks):
    f = (mat * 2 + nb) * 16 + ks
    return (256 + 4 * f) if f < 64 else (128 + 4 * (f - 64))


Q_BUF0, Q_BUF1 = 0, 65536


def qkv_stage(A, ptrs, order=(1, 2, 0), hook=None, hook_sc=None):
    A.I('v_and_b32 v3, 15, v0')
    A.I('v_lshrrev_b32 v2, 4, v0')
    A.I(f's_lshr_b32 s{S_T0}, s{S_WV}, 1')
    A.I(f's_lshl_b32 s{S_T0}, s{S_T0}, 2')
    A.I(f'v_or_b32 v6, s{S_T0}, v2')
    A.I('v_lshlrev_b32 v6, 1, v6')
    A.I('v_xor_b32 v6, v6, v3')
    A.I('v_lshlrev_b32 v6, 4, v6')
    A.I('v_lshl_add_u32 v4, v2, 13, v6')
    A.I('v_lshrrev_b32 v6, 2, v3')
    A.I('v_and_b32 v7, 3, v3')
    A.I('v_lshl_add_u32 v8, v2, 3, v6')
    A.I('v_and_b32 v9, 1, v2')
    A.I('v_lshl_add_u32 v9, v9, 2, v6')
    A.I(f's_lshl_b32 s{S_T0}, s{S_WV}, 1')
    A.I(f'v_xor_b32 v9, s{S_T0}, v9')
    A.I('v_lshlrev_b32 v10, 8, v8')
    A.I('v_lshl_add_u32 v10, v9, 5, v10')
    A.I('v_lshl_add_u32 v10, v7, 3, v10')
    A.I('v_xor_b32 v11, 32, v10')
    A.I(f'v_add_u32 v12, {Q_BUF1}, v10')
    A.I(f'v_add_u32 v13, {Q_BUF1}, v11')
    VT = {(0, 0): 10, (1, 0): 11, (0, 1): 12, (1, 1): 13}
    chunks = [(m, hh) for m in order for hh in range(2)]

    def dma(sc):
        mat, hh = chunks[sc]
        buf = Q_BUF1 if sc & 1 else Q_BUF0
        make_srd(A, S_W, ptrs[mat], 512 * 8192)
        A.I(f's_lshl_b32 s{S_T0}, s{S_WV}, 15')
        A.I(f's_lshl_b32 s{S_T1}, s{S_H}, 8')
        A.I(f's_add_u32 s{S_T0}, s{S_T0}, s{S_T1}')
        A.I(f's_add_u32 s{S_T0}, s{S_T0}, {hh << 21}')
        A.I(f's_lshl_b32 s{S_T1}, s{S_WV}, 10')
        A.I(f's_add_u32 s{S_T1}, s{S_T1}, {buf}')
        for i in range(16):
            A.I(f's_mov_b32 m0, s{S_T1}')
            A.I(f'buffer_load_dwordx4 v4, s[{S_W}:{S_W + 3}], s{S_T0} offen lds')
            if i < 15:
                A.I(f's_add_u32 s{S_T0}, s{S_T0}, {4 * 32768}')
                A.I(f's_add_u32 s{S_T1}, s{S_T1}, 4096')

    dma(0)
    dma(1)
    if hook:
        hook()
    n = len(chunks)
    for sc in range(n):
        mat, hh = chunks[sc]
        A.I(f's_waitcnt vmcnt({16 if sc < n - 1 else 0})')
        A.I('s_barrier')
        if hook_sc:
            hook_sc(sc)
        cnt = 0
        for nb in range(2):
            for k8 in range(8):
                for x in range(2):
                    if cnt >= 12:
                        A.I('s_waitcnt lgkmcnt(8)')
                        cnt = 8
                    A.I(f'ds_read_b64_tr_b16 {u(wt(mat, nb, 8 * hh + k8) + 2 * x, 2)}, v{VT[(nb, sc & 1)]} offset:{(32 * k8 + 4 * x) * 256}')
                    cnt += 1
        A.I('s_waitcnt lgkmcnt(0)')
        A.I('s_barrier')
        if sc + 2 < n:
            dma(sc + 2)


def qkv_segments(A, stride, st='', after_seg=None, mid_seg=None, first=None, end='64'):
    ws = f's[{S_WS}:{S_WS + 3}]'
    ACC, XB = 8, 56
    NB = 8
    S_SEG, S_XO, S_XN, S_OO = 36, 37, 38, 39
    A.I('v_lshlrev_b32 v1, 4, v0')
    A.I(f's_mov_b32 s{S_SEG}, s{S_G if first is None else first}')
    A.I(f's_lshl_b32 s{S_XO}, s{S_SEG}, 15')
    A.I(f's_add_u32 s{S_XO}, s{S_XO}, 0x{WS_XN:x}')

    def acc(mat, nb, tb):
        return ACC + ((mat * 2 + nb) * 2 + tb) * 4

    def xload(ks, base):
        b = XB + 8 * (ks % NB)
        l = []
        for tb in range(2):
            off = tb * 16384 + ks * 1024
            l.append(f's_add_u32 s{S_T0 + tb}, s{base}, {off & ~4095}\n'
                     f'buffer_load_dwordx4 {v(b + 4 * tb, 4)}, v1, {ws}, s{S_T0 + tb} offen offset:{off & 4095}')
        return l

    for ks in range(NB - 1):
        for x in xload(ks, S_XO):
            A.I(x)
    L = A.newlabel('L_seg')
    A.label(L)
    A.check = False
    A.I(f's_add_u32 s{S_T2}, s{S_SEG}, {stride}')
    A.I(f's_cmp_lt_u32 s{S_T2}, {end}')
    A.I(f's_cselect_b32 s{S_T2}, s{S_T2}, s{S_SEG}')
    A.I(f's_lshl_b32 s{S_XN}, s{S_T2}, 15')
    A.I(f's_add_u32 s{S_XN}, s{S_XN}, 0x{WS_XN:x}')
    for ks in range(16):
        nk = ks + NB - 1
        ld = xload(nk, S_XO) if nk < 16 else xload(nk - 16, S_XN)
        A.I(f's_waitcnt vmcnt({2 * (NB - 2)})')
        if ks == 8 and mid_seg:
            mid_seg()
        b = XB + 8 * (ks % NB)
        i = 0
        for mat in (1, 2, 0):
            for nb in range(2):
                for tb in range(2):
                    d = acc(mat, nb, tb)
                    c = '0' if ks == 0 else v(d, 4)
                    w_ = u(wt(mat, nb, ks), 4)
                    x_ = v(b + 4 * tb, 4)
                    if mat == 2:
                        A.I(f'v_mfma_f32_16x16x32_bf16 {v(d, 4)}, {x_}, {w_}, {c}')
                    else:
                        A.I(f'v_mfma_f32_16x16x32_bf16 {v(d, 4)}, {w_}, {x_}, {c}')
                    if i in (1, 3):
                        A.I(ld[i >> 1])
                    i += 1
    A.I(f's_lshl_b32 s{S_OO}, s{S_SEG}, 5')
    A.I(f's_add_u32 s{S_OO}, s{S_OO}, s{S_H}')
    A.I(f's_lshl_b32 s{S_OO}, s{S_OO}, 13')
    A.I(f's_lshl_b32 s{S_T2}, s{S_WV}, 10')
    A.I(f's_add_u32 s{S_T3}, s{S_OO}, s{S_T2}')
    for mat, base in ((1, WS_KF), (2, WS_VF), (0, WS_QF)):
        if mat == 2:
            A.I(f's_add_u32 s{S_T0}, s{S_T3}, s{S_T2}')
            A.I(f's_add_u32 s{S_T0}, s{S_T0}, 0x{base:x}')
            for nb in range(2):
                a_, b_ = acc(2, nb, 0), acc(2, nb, 1)
                A.I(f'v_cvt_pk_bf16_f32 v{a_}, v{a_}, v{a_ + 1}')
                A.I(f'v_cvt_pk_bf16_f32 v{a_ + 1}, v{a_ + 2}, v{a_ + 3}')
                A.I(f'v_cvt_pk_bf16_f32 v{a_ + 2}, v{b_}, v{b_ + 1}')
                A.I(f'v_cvt_pk_bf16_f32 v{a_ + 3}, v{b_ + 2}, v{b_ + 3}')
                A.I(f'buffer_store_dwordx4 {v(a_, 4)}, v1, {ws}, s{S_T0} offen offset:{1024 * nb} {st}')
        else:
            for tb in range(2):
                A.I(f's_add_u32 s{S_T0}, s{S_T3}, 0x{base + 4096 * tb:x}')
                a_, b_ = acc(mat, 0, tb), acc(mat, 1, tb)
                for r in range(4):
                    A.I(f'v_cvt_pk_bf16_f32 v{a_ + r}, v{a_ + r}, v{b_ + r}')
                A.I(f'buffer_store_dwordx4 {v(a_, 4)}, v1, {ws}, s{S_T0} offen {st}')
    if after_seg:
        after_seg()
    A.I(f's_add_u32 s{S_SEG}, s{S_SEG}, {stride}')
    A.I(f's_mov_b32 s{S_XO}, s{S_XN}')
    A.I(f's_cmp_lt_u32 s{S_SEG}, {end}')
    A.br(f's_cbranch_scc1 {L}')
    A.check = True
    A.forget_loads()


def qkv_kernel(A, name):
    kernel_begin(A, name)
    le = A.newlabel('L_exit')
    prologue(A, {16: KA_WS, 20: KA_WQ, 22: KA_WK, 24: KA_WV}, 256, le)
    make_srd(A, S_WS, 16, WS_SIZE)
    A.I(f's_lshr_b32 s{S_H}, s2, 3')
    A.I(f's_and_b32 s{S_G}, s2, 7')
    qkv_stage(A, [20, 22, 24])
    qkv_segments(A, 8)
    A.label(le)
    A.I('s_endpgm')


def att_stage(A, p_wo):
    A.I('v_and_b32 v3, 15, v0')
    A.I('v_lshrrev_b32 v2, 4, v0')
    A.I('v_lshlrev_b32 v1, 4, v0')
    make_srd(A, S_W, p_wo, 4096 * 1024)
    A.I(f's_lshl_b32 s{S_T0}, s{S_H}, 17')
    A.I(f's_lshl_b32 s{S_T1}, s{S_WV}, 13')
    A.I(f's_add_u32 s{S_T0}, s{S_T0}, s{S_T1}')
    A.I(f's_lshl_b32 s{S_T1}, s{S_WV}, 10')
    for f in range(8):
        for a_ in range(4):
            A.I(f's_add_u32 m0, s{S_T1}, {(16 * f + 4 * a_) * 1024 + 32 * f}')
            A.I(f's_add_u32 s{S_T3}, s{S_T0}, {(f + 32 * a_) * 1024}')
            A.I(f'buffer_load_dwordx4 v1, s[{S_W}:{S_W + 3}], s{S_T3} offen lds')
    A.I('v_lshrrev_b32 v6, 2, v3')
    A.I('v_and_b32 v7, 3, v3')
    A.I('v_and_b32 v8, 1, v2')
    A.I('v_lshl_add_u32 v8, v8, 2, v6')
    A.I('v_lshrrev_b32 v9, 1, v2')
    A.I('v_lshlrev_b32 v10, 14, v8')
    A.I('v_lshl_add_u32 v10, v9, 10, v10')
    A.I('v_lshl_add_u32 v10, v8, 5, v10')
    A.I('v_lshl_add_u32 v10, v7, 3, v10')
    A.I(f's_lshl_b32 s{S_T0}, s{S_WV}, 8')
    A.I(f'v_add_u32 v10, s{S_T0}, v10')
    A.I('s_waitcnt vmcnt(0)')
    A.I('s_barrier')
    cnt = 0
    for mb in range(8):
        for ks in range(4):
            for x in range(2):
                if cnt >= 12:
                    A.I('s_waitcnt lgkmcnt(8)')
                    cnt = 8
                A.I(f'ds_read_b64_tr_b16 {a((mb * 4 + ks) * 4 + 2 * x, 2)}, v10 offset:{(4 * ks + 2 * x) * 1024 + 32 * mb}')
                cnt += 1
    A.I('s_waitcnt lgkmcnt(0)')
    A.I('s_barrier')


S_MASK = 64
S_CC, S_ONE = 52, 54


def att_consts(A):
    A.I('v_and_b32 v3, 15, v0')
    A.I('v_lshrrev_b32 v2, 4, v0')
    A.I('v_lshlrev_b32 v1, 4, v0')
    A.I(f's_and_b32 s{S_T0}, s{S_WV}, 1')
    A.I(f's_lshl_b32 s{S_T0}, s{S_T0}, 4')
    A.I(f'v_add_u32 v4, s{S_T0}, v3')
    A.I('v_lshlrev_b32 v5, 2, v2')
    A.I('v_sub_u32 v4, v4, v5')
    for kb in range(2):
        for r in range(4):
            m = S_MASK + 2 * (4 * kb + r)
            A.I(f'v_cmp_le_i32 s[{m}:{m + 1}], {16 * kb + r}, v4')
    c = (128 ** -0.5) * math.log2(math.e)
    A.I(f's_mov_b32 s{S_CC}, {f32(c)}')
    A.I(f's_mov_b32 s{S_CC + 1}, {f32(c)}')
    A.I('v_lshlrev_b32 v5, 15, v3')
    A.I('v_lshl_add_u32 v3, v2, 4, v5')
    A.I('v_lshlrev_b32 v2, 3, v0')
    A.I(f'v_mov_b32 v4, {f32(-1e9 * 128 ** 0.5)}')
    for i in range(4):
        A.I(f'v_mov_b32 v{8 + i}, 0x3f803f80')


AT_Q, AT_K, AT_V, AT_KM, AT_VM = 16, 32, 64, 96, 112
AT_S, AT_P, AT_PM, AT_L = 192, 204, 208, 212
AT_O, AT_OB, AT_ACC = 144, 176, 192


def att_load_qkv(A, s_seg, ld=''):
    ws = f's[{S_WS}:{S_WS + 3}]'
    A.I(f's_lshl_b32 s{S_T0}, s{s_seg}, 5')
    A.I(f's_add_u32 s{S_T0}, s{S_T0}, s{S_H}')
    A.I(f's_lshl_b32 s{S_T0}, s{S_T0}, 13')
    A.I(f's_and_b32 s{S_T1}, s{S_WV}, 1')
    A.I(f's_lshl_b32 s{S_T1}, s{S_T1}, 12')
    A.I(f's_add_u32 s{S_T1}, s{S_T1}, s{S_T0}')
    A.I(f's_add_u32 s{S_T1}, s{S_T1}, 0x{WS_QF:x}')
    for ks in range(4):
        A.I(f'buffer_load_dwordx4 {v(AT_Q + 4 * ks, 4)}, v1, {ws}, s{S_T1} offen offset:{1024 * ks} {ld}')
    for base, reg in ((WS_KF, AT_K), (WS_VF, AT_V)):
        for hf in range(2):
            A.I(f's_add_u32 s{S_T1}, s{S_T0}, 0x{base + 4096 * hf:x}')
            for i in range(4):
                A.I(f'buffer_load_dwordx4 {v(reg + 16 * hf + 4 * i, 4)}, v1, {ws}, s{S_T1} offen offset:{1024 * i} {ld}')


def att_load_mem(A, s_seg, ld=''):
    ws = f's[{S_WS}:{S_WS + 3}]'
    A.I(f's_lshl_b32 s{S_T0}, s{s_seg}, 5')
    A.I(f's_add_u32 s{S_T0}, s{S_T0}, s{S_H}')
    A.I(f's_lshl_b32 s{S_T1}, s{S_T0}, 12')
    A.I(f's_add_u32 s{S_T1}, s{S_T1}, 0x{WS_KM:x}')
    for ks in range(4):
        A.I(f'buffer_load_dwordx4 {v(AT_KM + 4 * ks, 4)}, v1, {ws}, s{S_T1} offen offset:{1024 * ks} {ld}')
    A.I(f's_lshl_b32 s{S_T1}, s{S_T0}, 11')
    A.I(f's_add_u32 s{S_T1}, s{S_T1}, 0x{WS_VM:x}')
    for w_ in range(4):
        A.I(f'buffer_load_dwordx2 {v(AT_VM + 2 * w_, 2)}, v2, {ws}, s{S_T1} offen offset:{512 * w_} {ld}')


def att_compute1(A):
    X0, X1, M = AT_S, AT_S + 4, AT_S + 8
    ONES = 8
    mx, tm = 6, 7
    for ks in range(4):
        for (d, k_) in ((X0, AT_K + 4 * ks), (X1, AT_K + 16 + 4 * ks), (M, AT_KM + 4 * ks)):
            c = '0' if ks == 0 else v(d, 4)
            A.I(f'v_mfma_f32_16x16x32_bf16 {v(d, 4)}, {v(k_, 4)}, {v(AT_Q + 4 * ks, 4)}, {c}')
    A.I(f'v_mov_b32 v{AT_PM + 1}, 0')
    A.I(f'v_mov_b32 v{AT_PM + 2}, 0')
    for i in range(8):
        m = S_MASK + 2 * i
        A.I(f'v_cndmask_b32 v{X0 + i}, v4, v{X0 + i}, s[{m}:{m + 1}]')
    A.I(f'v_max3_f32 v{mx}, v{X0}, v{X0 + 1}, v{X0 + 2}')
    A.I(f'v_max3_f32 v{tm}, v{X0 + 3}, v{X1}, v{X1 + 1}')
    A.I(f'v_max3_f32 v{mx}, v{mx}, v{X1 + 2}, v{X1 + 3}')
    A.I(f'v_max3_f32 v{tm}, v{tm}, v{M}, v{M + 1}')
    A.I(f'v_max_f32 v{mx}, v{mx}, v{tm}')
    xreduce(A, 'v_max_f32', mx, tm)
    A.I(f'v_mul_f32_e64 v{mx}, -s{S_CC}, v{mx}')
    for r in (M, X0, X0 + 2, X1, X1 + 2):
        A.I(f'v_pk_fma_f32 {v(r, 2)}, {v(r, 2)}, s[{S_CC}:{S_CC + 1}], {v(mx, 2)} op_sel:[0,0,0] op_sel_hi:[1,1,0]')
    A.I(f'v_exp_f32 v{M}, v{M}')
    A.I(f'v_exp_f32 v{M + 1}, v{M + 1}')
    for i in range(8):
        A.I(f'v_exp_f32 v{X0 + i}, v{X0 + i}')
    A.I(f'v_cvt_pk_bf16_f32 v{AT_PM}, v{M}, v{M + 1}')
    A.I(f'v_cvt_pk_bf16_f32 v{AT_PM + 3}, v{M}, v{M + 1}')
    for i in range(4):
        A.I(f'v_cvt_pk_bf16_f32 v{AT_P + i}, v{X0 + 2 * i}, v{X0 + 2 * i + 1}')
    A.I(f'v_mfma_f32_16x16x16_bf16 {v(AT_L, 4)}, {v(ONES, 2)}, {v(AT_PM, 2)}, 0')
    for mb in range(8):
        A.I(f'v_mfma_f32_16x16x16_bf16 {v(AT_O + 4 * mb, 4)}, {v(AT_VM + 2 * (mb >> 1), 2)}, {v(AT_PM + 2 * (mb & 1), 2)}, 0')
    A.I(f'v_mfma_f32_16x16x32_bf16 {v(AT_L, 4)}, {v(ONES, 4)}, {v(AT_P, 4)}, {v(AT_L, 4)}')
    for mb in range(8):
        A.I(f'v_mfma_f32_16x16x32_bf16 {v(AT_O + 4 * mb, 4)}, {v(AT_V + 4 * mb, 4)}, {v(AT_P, 4)}, {v(AT_O + 4 * mb, 4)}')
    A.I(f'v_rcp_f32 v{mx}, v{AT_L}')
    for mb in range(8):
        o = AT_O + 4 * mb
        for r in range(4):
            A.I(f'v_mul_f32 v{o + r}, v{o + r}, v{mx}')
        A.I(f'v_cvt_pk_bf16_f32 v{AT_OB + 2 * mb}, v{o}, v{o + 1}')
        A.I(f'v_cvt_pk_bf16_f32 v{AT_OB + 2 * mb + 1}, v{o + 2}, v{o + 3}')


AT_OB2 = 144


def att_xchg(A, lds_base):
    A.I(f's_and_b32 s{S_T2}, s{S_WV}, 1')
    A.I(f's_lshl_b32 s{S_T2}, s{S_T2}, 12')
    A.I(f's_add_u32 s{S_T2}, s{S_T2}, {lds_base}')
    A.I(f'v_add_u32 v6, s{S_T2}, v1')
    l = A.newlabel('L_xc')
    A.I(f's_cmp_ge_u32 s{S_WV}, 2')
    A.br(f's_cbranch_scc1 {l}')
    for ks in range(4):
        A.I(f'ds_write_b128 v6, {v(AT_OB + 4 * ks, 4)} offset:{1024 * ks}')
    A.I('s_waitcnt lgkmcnt(0)')
    A.label(l)
    A.I('v_xor_b32 v6, 4096, v6')
    A.I('s_barrier')
    for ks in range(4):
        A.I(f'ds_read_b128 {v(AT_OB2 + 4 * ks, 4)}, v6 offset:{1024 * ks}')


def att_compute2(A, s_seg, st=''):
    ws = f's[{S_WS}:{S_WS + 3}]'
    S_OO, S_O2 = 39, 38
    A.I(f's_lshl_b32 s{S_OO}, s{s_seg}, 1')
    A.I(f's_and_b32 s{S_T2}, s{S_WV}, 1')
    A.I(f's_add_u32 s{S_OO}, s{S_OO}, s{S_T2}')
    A.I(f's_lshl_b32 s{S_OO}, s{S_OO}, 19')
    A.I(f's_lshl_b32 s{S_T2}, s{S_H}, 10')
    A.I(f's_add_u32 s{S_OO}, s{S_OO}, s{S_T2}')
    A.I(f's_lshl_b32 s{S_T2}, s{S_WV}, 8')
    A.I(f's_add_u32 s{S_OO}, s{S_OO}, s{S_T2}')
    A.I(f's_xor_b32 s{S_O2}, s{S_OO}, 0x80000')
    A.I(f's_add_u32 s{S_OO}, s{S_OO}, 0x{WS_OP:x}')
    A.I(f's_add_u32 s{S_O2}, s{S_O2}, 0x{WS_OP:x}')

    def post(c):
        a_, b_ = AT_ACC + 8 * c, AT_ACC + 8 * c + 4
        so = S_OO if c < 4 else S_O2
        return [f'v_cvt_pk_bf16_f32 v{a_}, v{a_}, v{a_ + 1}',
                f'v_cvt_pk_bf16_f32 v{a_ + 1}, v{a_ + 2}, v{a_ + 3}',
                f'v_cvt_pk_bf16_f32 v{a_ + 2}, v{b_}, v{b_ + 1}',
                f'v_cvt_pk_bf16_f32 v{a_ + 3}, v{b_ + 2}, v{b_ + 3}',
                f'buffer_store_dwordx4 {v(a_, 4)}, v3, {ws}, s{so} offen offset:{64 * (c & 3)} {st}']

    pend = []
    for c in range(8):
        i = 0
        ob = AT_OB if c < 4 else AT_OB2
        if c == 4:
            A.I('s_waitcnt lgkmcnt(0)')
        for ks in range(4):
            for bb in range(2):
                mb = 2 * (c & 3) + bb
                d = AT_ACC + 8 * c + 4 * bb
                cc = '0' if ks == 0 else v(d, 4)
                A.I(f'v_mfma_f32_16x16x32_bf16 {v(d, 4)}, {a((mb * 4 + ks) * 4, 4)}, {v(ob + 4 * ks, 4)}, {cc}')
                if i >= 3 and pend:
                    A.I(pend.pop(0))
                i += 1
        pend = post(c)
    for x in pend:
        A.I(x)


def att_kernel(A, name):
    kernel_begin(A, name)
    le = A.newlabel('L_exit')
    prologue(A, {16: KA_WS, 26: KA_WO}, 256, le)
    make_srd(A, S_WS, 16, WS_SIZE)
    A.I(f's_lshr_b32 s{S_H}, s2, 3')
    A.I(f's_and_b32 s{S_G}, s2, 7')
    att_stage(A, 26)
    att_consts(A)
    S_SEG, S_NX = 36, 37
    A.I(f's_mov_b32 s{S_SEG}, s{S_G}')
    att_load_qkv(A, S_SEG)
    att_load_mem(A, S_SEG)
    L = A.newlabel('L_att')
    A.label(L)
    A.I('s_waitcnt vmcnt(0)')
    att_compute1(A)
    A.I(f's_add_u32 s{S_NX}, s{S_SEG}, 8')
    A.I(f's_cmp_lt_u32 s{S_NX}, 64')
    A.I(f's_cselect_b32 s{S_T3}, s{S_NX}, s{S_SEG}')
    A.I(f's_mov_b32 s40, s{S_T3}')
    att_load_qkv(A, 40)
    att_load_mem(A, 40)
    att_compute2(A, S_SEG)
    A.I(f's_mov_b32 s{S_SEG}, s{S_NX}')
    A.I(f's_cmp_lt_u32 s{S_SEG}, 64')
    A.br(f's_cbranch_scc1 {L}')
    A.forget_loads()
    A.label(le)
    A.I('s_endpgm')


def wave_sum(A, r, t):
    for k in (8, 4, 2, 1):
        A.I(f'v_add_f32_dpp v{r}, v{r}, v{r} row_ror:{k} row_mask:0xf bank_mask:0xf')
    xreduce(A, 'v_add_f32', r, t)


def ln_regs(A, Z, t0, t1):
    A.I(f'v_add_f32 v{t0}, v{Z}, v{Z + 1}')
    for i in range(2, 8):
        A.I(f'v_add_f32 v{t0}, v{t0}, v{Z + i}')
    wave_sum(A, t0, t1)
    A.I(f'v_mul_f32 v{t0}, {f32(1 / 512)}, v{t0}')
    for i in range(8):
        A.I(f'v_sub_f32 v{Z + i}, v{Z + i}, v{t0}')
    A.I(f'v_mul_f32 v{t0}, v{Z}, v{Z}')
    for i in range(1, 8):
        A.I(f'v_fmac_f32 v{t0}, v{Z + i}, v{Z + i}')
    wave_sum(A, t0, t1)
    A.I(f'v_mov_b32 v{t1}, {f32(1e-5)}')
    A.I(f'v_fmac_f32 v{t1}, {f32(1 / 512)}, v{t0}')
    A.I(f'v_rsq_f32 v{t1}, v{t1}')
    for i in range(8):
        A.I(f'v_mul_f32 v{Z + i}, v{Z + i}, v{t1}')


def round_bf16(A, Z, Pk):
    for i in range(4):
        A.I(f'v_cvt_pk_bf16_f32 v{Pk + i}, v{Z + 2 * i}, v{Z + 2 * i + 1}')
    for i in range(4):
        A.I(f'v_lshlrev_b32 v{Z + 2 * i}, 16, v{Pk + i}')
        A.I(f'v_and_b32 v{Z + 2 * i + 1}, 0xffff0000, v{Pk + i}')


def red_row(A, s_row, srd_x, ld='', st='', B=32):
    ws = f's[{S_WS}:{S_WS + 3}]'
    Z, Pk, XR = 8, 16, 20
    A.I('v_lshlrev_b32 v1, 4, v0')
    A.I(f's_lshl_b32 s{S_T0}, s{s_row}, 15')
    A.I(f's_add_u32 s{S_T0}, s{S_T0}, 0x{WS_OP:x}')
    for hh in range(32):
        if hh and hh % 4 == 0:
            A.I(f's_add_u32 s{S_T0}, s{S_T0}, 4096')
        A.I(f'buffer_load_dwordx4 {v(B + 4 * hh, 4)}, v1, {ws}, s{S_T0} offen offset:{1024 * (hh & 3)} {ld}')
    A.I('v_lshrrev_b32 v2, 2, v0')
    A.I('v_lshlrev_b32 v2, 6, v2')
    A.I('v_and_b32 v3, 3, v0')
    A.I('v_lshl_add_u32 v2, v3, 3, v2')
    A.I(f's_lshl_b32 s{S_T1}, s{s_row}, 10')
    A.I(f'buffer_load_dwordx2 {v(XR, 2)}, v2, {srd_x}, s{S_T1} offen')
    A.I(f'buffer_load_dwordx2 {v(XR + 2, 2)}, v2, {srd_x}, s{S_T1} offen offset:32')
    for i in range(8):
        A.I(f'v_mov_b32 v{Z + i}, 0')
    for hh in range(32):
        A.I(f's_waitcnt vmcnt({33 - hh})')
        for i in range(4):
            r = B + 4 * hh + i
            A.I(f'v_lshlrev_b32 v4, 16, v{r}')
            A.I(f'v_and_b32 v5, 0xffff0000, v{r}')
            A.I(f'v_add_f32 v{Z + 2 * i}, v{Z + 2 * i}, v4')
            A.I(f'v_add_f32 v{Z + 2 * i + 1}, v{Z + 2 * i + 1}, v5')
    round_bf16(A, Z, Pk)
    A.I('s_waitcnt vmcnt(0)')
    for i in range(4):
        A.I(f'v_lshlrev_b32 v4, 16, v{XR + i}')
        A.I(f'v_and_b32 v5, 0xffff0000, v{XR + i}')
        A.I(f'v_add_f32 v{Z + 2 * i}, v{Z + 2 * i}, v4')
        A.I(f'v_add_f32 v{Z + 2 * i + 1}, v{Z + 2 * i + 1}, v5')
    round_bf16(A, Z, Pk)
    A.I(f's_add_u32 s{S_T0}, s{S_T1}, 0x{WS_H:x}')
    A.I(f'buffer_store_dwordx2 {v(Pk, 2)}, v2, {ws}, s{S_T0} offen {st}')
    A.I(f'buffer_store_dwordx2 {v(Pk + 2, 2)}, v2, {ws}, s{S_T0} offen offset:32 {st}')
    ln_regs(A, Z, 4, 5)
    round_bf16(A, Z, XR)
    ln_regs(A, Z, 4, 5)
    for i in range(4):
        A.I(f'v_cvt_pk_bf16_f32 v{XR + i}, v{Z + 2 * i}, v{Z + 2 * i + 1}')
    A.I(f's_add_u32 s{S_T0}, s{S_T1}, 0x{WS_HP:x}')
    A.I(f'buffer_store_dwordx2 {v(XR, 2)}, v2, {ws}, s{S_T0} offen {st}')
    A.I(f'buffer_store_dwordx2 {v(XR + 2, 2)}, v2, {ws}, s{S_T0} offen offset:32 {st}')


def red_kernel(A, name):
    kernel_begin(A, name)
    le = A.newlabel('L_exit')
    prologue(A, {16: KA_WS, 18: KA_X}, 512, le)
    make_srd(A, S_WS, 16, WS_SIZE)
    make_srd(A, S_X, 18, 2048 * 1024)
    A.I(f's_lshl_b32 s{S_G}, s2, 2')
    A.I(f's_add_u32 s{S_G}, s{S_G}, s{S_WV}')
    red_row(A, S_G, f's[{S_X}:{S_X + 3}]')
    A.label(le)
    A.I('s_endpgm')


def g1_kernel(A, name):
    kernel_begin(A, name)
    le = A.newlabel('L_exit')
    prologue(A, {16: KA_WS, 18: KA_W1, 20: KA_B1}, 224, le)
    make_srd(A, S_WS, 16, WS_SIZE)
    make_srd(A, S_W, 18, 2048 * 3584)
    make_srd(A, S_X, 20, 3584)
    ws, w1, b1 = f's[{S_WS}:{S_WS + 3}]', f's[{S_W}:{S_W + 3}]', f's[{S_X}:{S_X + 3}]'
    S_FT, S_DT, S_AO, S_BO, S_LB = 36, 37, 38, 39, 40
    A.I(f's_and_b32 s{S_DT}, s2, 7')
    A.I(f's_lshr_b32 s{S_FT}, s2, 3')
    A.I('v_lshrrev_b32 v1, 3, v0')
    A.I('v_and_b32 v2, 7, v0')
    A.I('v_bfe_u32 v3, v0, 4, 1')
    A.I(f's_and_b32 s{S_T0}, s{S_WV}, 1')
    A.I(f's_lshl_b32 s{S_T0}, s{S_T0}, 1')
    A.I(f'v_or_b32 v3, s{S_T0}, v3')
    A.I('v_lshlrev_b32 v3, 1, v3')
    A.I('v_xor_b32 v2, v2, v3')
    A.I('v_lshlrev_b32 v2, 4, v2')
    A.I('v_mul_u32_u24 v4, 3584, v1')
    A.I('v_add_u32 v4, v4, v2')
    A.I('v_lshl_add_u32 v5, v1, 10, v2')
    A.I(f's_mul_i32 s{S_AO}, s{S_WV}, {8 * 3584}')
    A.I(f's_lshl_b32 s{S_T0}, s{S_FT}, 7')
    A.I(f's_add_u32 s{S_AO}, s{S_AO}, s{S_T0}')
    A.I(f's_lshl_b32 s{S_BO}, s{S_WV}, 13')
    A.I(f's_lshl_b32 s{S_T0}, s{S_DT}, 7')
    A.I(f's_add_u32 s{S_BO}, s{S_BO}, s{S_T0}')
    A.I(f's_add_u32 s{S_BO}, s{S_BO}, 0x{WS_HP:x}')
    A.I(f's_lshl_b32 s{S_LB}, s{S_WV}, 10')
    A.I('v_and_b32 v1, 15, v0')
    A.I('v_lshrrev_b32 v2, 4, v0')
    A.I('v_lshrrev_b32 v3, 2, v1')
    A.I('v_and_b32 v6, 3, v1')
    A.I('v_lshl_add_u32 v7, v2, 3, v3')
    A.I('v_lshlrev_b32 v7, 7, v7')
    A.I('v_lshl_add_u32 v7, v6, 3, v7')
    A.I('v_lshrrev_b32 v8, 1, v3')
    A.I('v_and_b32 v9, 1, v2')
    A.I('v_lshl_add_u32 v8, v9, 1, v8')
    A.I(f's_and_b32 s{S_T0}, s{S_WV}, 1')
    A.I(f's_lshl_b32 s{S_T0}, s{S_T0}, 1')
    A.I(f'v_xor_b32 v9, s{S_T0}, v8')
    A.I('v_lshl_add_u32 v10, v9, 5, v7')
    A.I('v_xor_b32 v11, 32, v10')
    A.I(f's_and_b32 s{S_T0}, s{S_WV}, 2')
    A.I(f'v_xor_b32 v9, s{S_T0}, v8')
    A.I('v_lshl_add_u32 v12, v9, 5, v7')
    A.I('v_add_u32 v12, 16384, v12')
    A.I('v_xor_b32 v13, 32, v12')
    for i in range(4):
        A.I(f'v_add_u32 v{14 + i}, 0x10000, v{10 + i}')
    A.I(f's_lshl_b32 s{S_T0}, s{S_FT}, 7')
    A.I(f's_and_b32 s{S_T1}, s{S_WV}, 1')
    A.I(f's_lshl_b32 s{S_T1}, s{S_T1}, 6')
    A.I(f's_add_u32 s{S_T0}, s{S_T0}, s{S_T1}')
    A.I('v_lshlrev_b32 v1, 3, v2')
    A.I(f'buffer_load_dwordx2 v[20:21], v1, {b1}, s{S_T0} offen')
    A.I(f'buffer_load_dwordx2 v[22:23], v1, {b1}, s{S_T0} offen offset:32')
    ACC, FR = 24, 40
    NS = 4

    def dma(k):
        st = (k % NS) * 32768
        for i in range(4):
            A.I(f's_add_u32 m0, s{S_LB}, {st + i * 4096}')
            A.I(f's_add_u32 s{S_T0}, s{S_AO}, {(k * 128 + i * 32) * 3584}')
            A.I(f'buffer_load_dwordx4 v4, {w1}, s{S_T0} offen lds')
            A.I(f's_add_u32 m0, s{S_LB}, {st + 16384 + i * 4096}')
            A.I(f's_add_u32 s{S_T1}, s{S_BO}, {(k * 128 + i * 32) * 1024}')
            A.I(f'buffer_load_dwordx4 v5, {ws}, s{S_T1} offen lds')

    NK = 16
    for k in range(NS - 1):
        dma(k)
    for k in range(NK):
        rem = min(NS - 2, NK - 1 - k)
        A.I(f's_waitcnt vmcnt({8 * rem})')
        A.I('s_barrier')
        if k + NS - 1 < NK:
            dma(k + NS - 1)
        sl = k % NS
        ab = 10 if sl < 2 else 14
        so = (sl & 1) * 32768

        def rd(ks):
            for j in range(4):
                for x in range(2):
                    A.I(f'ds_read_b64_tr_b16 {v(FR + 16 * ks + 4 * j + 2 * x, 2)}, v{ab + j} offset:{so + (32 * ks + 4 * x) * 128}')

        rd(0)
        for ks in range(4):
            if ks < 3:
                if ks:
                    pass
                A.I('s_waitcnt lgkmcnt(0)') if False else None
                rd(ks + 1)
                A.I('s_waitcnt lgkmcnt(8)')
            else:
                A.I('s_waitcnt lgkmcnt(0)')
            f = FR + 16 * ks
            for mbp in range(2):
                for nbp in range(2):
                    d = ACC + (mbp * 2 + nbp) * 4
                    c = '0' if (k == 0 and ks == 0) else v(d, 4)
                    A.I(f'v_mfma_f32_16x16x32_bf16 {v(d, 4)}, {v(f + 4 * mbp, 4)}, {v(f + 8 + 4 * nbp, 4)}, {c}')
    BI = 40
    for i in range(4):
        A.I(f'v_lshlrev_b32 v{BI + 2 * i}, 16, v{20 + i}')
        A.I(f'v_and_b32 v{BI + 2 * i + 1}, 0xffff0000, v{20 + i}')
    k1 = -2 * math.sqrt(2 / math.pi) * math.log2(math.e)
    A.I(f's_mov_b32 s{S_T2}, {f32(k1)}')
    A.I(f's_mov_b32 s{S_T3}, {f32(k1 * 0.044715)}')
    A.I(f's_lshl_b32 s{S_T0}, s{S_DT}, 2')
    A.I(f's_and_b32 s{S_T1}, s{S_WV}, 2')
    A.I(f's_add_u32 s{S_T0}, s{S_T0}, s{S_T1}')
    A.I(f's_mul_i32 s{S_T0}, s{S_T0}, 56')
    A.I(f's_lshl_b32 s{S_T1}, s{S_FT}, 1')
    A.I(f's_add_u32 s{S_T0}, s{S_T0}, s{S_T1}')
    A.I(f's_and_b32 s{S_T1}, s{S_WV}, 1')
    A.I(f's_add_u32 s{S_T0}, s{S_T0}, s{S_T1}')
    A.I(f's_lshl_b32 s{S_T0}, s{S_T0}, 10')
    A.I(f's_add_u32 s{S_T0}, s{S_T0}, 0x{WS_U:x}')
    A.I('v_lshlrev_b32 v1, 4, v0')
    for nbp in range(2):
        Z, Pk = 48, 56
        for mbp in range(2):
            for r in range(4):
                A.I(f'v_mov_b32 v{Z + 4 * mbp + r}, v{ACC + (mbp * 2 + nbp) * 4 + r}')
        round_bf16(A, Z, Pk)
        for i in range(8):
            A.I(f'v_add_f32 v{Z + i}, v{Z + i}, v{BI + i}')
        round_bf16(A, Z, Pk)
        for i in range(8):
            t = 60 + i
            A.I(f'v_mul_f32 v{t}, v{Z + i}, v{Z + i}')
            A.I(f'v_mov_b32 v{t + 8}, s{S_T2}')
            A.I(f'v_fmac_f32 v{t + 8}, s{S_T3}, v{t}')
            A.I(f'v_mul_f32 v{t}, v{t + 8}, v{Z + i}')
            A.I(f'v_exp_f32 v{t}, v{t}')
        for i in range(8):
            t = 60 + i
            A.I(f'v_add_f32 v{t}, 1.0, v{t}')
            A.I(f'v_rcp_f32 v{t}, v{t}')
        for i in range(8):
            A.I(f'v_mul_f32 v{Z + i}, v{Z + i}, v{60 + i}')
        o = 76 + 4 * nbp
        for i in range(4):
            A.I(f'v_cvt_pk_bf16_f32 v{o + i}, v{Z + 2 * i}, v{Z + 2 * i + 1}')
        A.I(f'buffer_store_dwordx4 {v(o, 4)}, v1, {ws}, s{S_T0} offen')
        A.I(f's_add_u32 s{S_T0}, s{S_T0}, {56 * 1024}')
    A.label(le)
    A.I('s_endpgm')


def g2_kernel(A, name):
    kernel_begin(A, name)
    le = A.newlabel('L_exit')
    prologue(A, {16: KA_WS, 18: KA_W2, 20: KA_B2, 22: KA_OUT}, 256, le)
    S_O = 24
    make_srd(A, S_WS, 16, WS_SIZE)
    make_srd(A, S_W, 18, 1792 * 4096)
    make_srd(A, S_X, 20, 4096)
    make_srd(A, S_O, 22, 2048 * 1024)
    ws, w2, b2, out = (f's[{x}:{x + 3}]' for x in (S_WS, S_W, S_X, S_O))
    S_ST, S_DT, S_AO, S_BO, S_LB = 36, 37, 38, 39, 40
    A.I(f's_and_b32 s{S_DT}, s2, 7')
    A.I(f's_lshr_b32 s{S_ST}, s2, 3')
    A.I('v_lshrrev_b32 v1, 3, v0')
    A.I('v_and_b32 v2, 7, v0')
    A.I('v_lshrrev_b32 v3, 4, v0')
    A.I('v_lshlrev_b32 v3, 1, v3')
    A.I('v_xor_b32 v2, v2, v3')
    A.I('v_lshlrev_b32 v2, 4, v2')
    A.I('v_lshl_add_u32 v4, v1, 12, v2')
    A.I('v_lshlrev_b32 v5, 4, v0')
    A.I(f's_lshl_b32 s{S_BO}, s{S_WV}, 15')
    A.I(f's_lshl_b32 s{S_T0}, s{S_ST}, 7')
    A.I(f's_add_u32 s{S_BO}, s{S_BO}, s{S_T0}')
    A.I(f's_lshl_b32 s{S_T0}, s{S_DT}, 2')
    A.I(f's_add_u32 s{S_T0}, s{S_T0}, s{S_WV}')
    A.I(f's_mul_i32 s{S_AO}, s{S_T0}, {56 * 1024}')
    A.I(f's_add_u32 s{S_AO}, s{S_AO}, 0x{WS_U:x}')
    A.I(f's_lshl_b32 s{S_LB}, s{S_WV}, 10')
    A.I('v_and_b32 v1, 15, v0')
    A.I('v_lshrrev_b32 v2, 4, v0')
    A.I('v_lshrrev_b32 v3, 2, v1')
    A.I('v_and_b32 v6, 3, v1')
    A.I('v_lshl_add_u32 v7, v2, 2, v3')
    A.I('v_bfe_u32 v8, v7, 1, 2')
    A.I('v_lshlrev_b32 v7, 7, v7')
    A.I('v_lshl_add_u32 v7, v6, 3, v7')
    A.I('v_lshl_add_u32 v10, v8, 5, v7')
    for j in range(1, 4):
        A.I(f'v_xor_b32 v{10 + j}, {32 * j}, v10')
    A.I('v_lshlrev_b32 v14, 10, v1')
    A.I('v_lshl_add_u32 v14, v2, 3, v14')
    A.I(f's_lshl_b32 s41, s{S_ST}, 16')
    A.I(f's_lshl_b32 s{S_T0}, s{S_T0}, 5')
    A.I(f's_add_u32 s41, s41, s{S_T0}')
    A.I('v_lshlrev_b32 v15, 1, v1')
    A.I(f's_lshl_b32 s{S_T1}, s{S_ST}, 7')
    HB, BB = 16, 24
    for nb in range(4):
        A.I(f's_add_u32 s{S_T0}, s41, 0x{WS_H + nb * 16384:x}')
        A.I(f'buffer_load_dwordx2 {v(HB + 2 * nb, 2)}, v14, {ws}, s{S_T0} offen')
        A.I(f'buffer_load_ushort v{BB + nb}, v15, {b2}, s{S_T1} offen offset:{32 * nb}')
    ACC, FR, AR = 28, 44, 108
    NS, NK = 4, 14

    def dma(k):
        st = (k % NS) * 16384
        for i in range(4):
            A.I(f's_add_u32 m0, s{S_LB}, {st + i * 4096}')
            A.I(f's_add_u32 s{S_T0}, s{S_BO}, {(k * 128 + i * 32) * 4096}')
            A.I(f'buffer_load_dwordx4 v4, {w2}, s{S_T0} offen lds')
        A.I(f's_add_u32 s{S_T1}, s{S_AO}, {k * 4096}')
        for ks in range(4):
            A.I(f'buffer_load_dwordx4 {v(AR + 16 * (k % NS) + 4 * ks, 4)}, v5, {ws}, s{S_T1} offen offset:{1024 * ks}')

    for k in range(NS - 1):
        dma(k)
    for k in range(NK):
        rem = min(NS - 2, NK - 1 - k)
        A.I(f's_waitcnt vmcnt({8 * rem})')
        A.I('s_barrier')
        if k + NS - 1 < NK:
            dma(k + NS - 1)
        so = (k % NS) * 16384

        def rd(ks):
            for j in range(4):
                for x in range(2):
                    A.I(f'ds_read_b64_tr_b16 {v(FR + 16 * ks + 4 * j + 2 * x, 2)}, v{10 + j} offset:{so + (32 * ks + 16 * x) * 128}')

        rd(0)
        for ks in range(4):
            if ks < 3:
                rd(ks + 1)
                A.I('s_waitcnt lgkmcnt(8)')
            else:
                A.I('s_waitcnt lgkmcnt(0)')
            for nb in range(4):
                d = ACC + 4 * nb
                c = '0' if (k == 0 and ks == 0) else v(d, 4)
                A.I(f'v_mfma_f32_16x16x32_bf16 {v(d, 4)}, {v(AR + 16 * (k % NS) + 4 * ks, 4)}, {v(FR + 16 * ks + 4 * nb, 4)}, {c}')
    for nb in range(4):
        d = ACC + 4 * nb
        t = 44
        A.I(f'v_cvt_pk_bf16_f32 v{t}, v{d}, v{d + 1}')
        A.I(f'v_cvt_pk_bf16_f32 v{t + 1}, v{d + 2}, v{d + 3}')
        A.I(f'v_lshlrev_b32 v{t + 2}, 16, v{BB + nb}')
        for i in range(2):
            A.I(f'v_lshlrev_b32 v{d + 2 * i}, 16, v{t + i}')
            A.I(f'v_and_b32 v{d + 2 * i + 1}, 0xffff0000, v{t + i}')
        for r in range(4):
            A.I(f'v_add_f32 v{d + r}, v{d + r}, v{t + 2}')
        A.I(f'v_cvt_pk_bf16_f32 v{t}, v{d}, v{d + 1}')
        A.I(f'v_cvt_pk_bf16_f32 v{t + 1}, v{d + 2}, v{d + 3}')
        for i in range(2):
            A.I(f'v_lshlrev_b32 v{d + 2 * i}, 16, v{t + i}')
            A.I(f'v_and_b32 v{d + 2 * i + 1}, 0xffff0000, v{t + i}')
            A.I(f'v_lshlrev_b32 v{t + 2}, 16, v{HB + 2 * nb + i}')
            A.I(f'v_and_b32 v{t + 3}, 0xffff0000, v{HB + 2 * nb + i}')
            A.I(f'v_add_f32 v{d + 2 * i}, v{d + 2 * i}, v{t + 2}')
            A.I(f'v_add_f32 v{d + 2 * i + 1}, v{d + 2 * i + 1}, v{t + 3}')
        o = 48 + 2 * nb
        A.I(f'v_cvt_pk_bf16_f32 v{o}, v{d}, v{d + 1}')
        A.I(f'v_cvt_pk_bf16_f32 v{o + 1}, v{d + 2}, v{d + 3}')
        A.I(f's_add_u32 s{S_T0}, s41, {nb * 16384}')
        A.I(f'buffer_store_dwordx2 {v(o, 2)}, v14, {out}, s{S_T0} offen')
    A.label(le)
    A.I('s_endpgm')
```

```python
import os
os.environ.setdefault('PB_DELAY', '7'); os.environ.setdefault('AF_DELAY', '2'); os.environ.setdefault('AF_GAP', '2')
from common import *
import tok2 as T
import rec9 as R
from tok2 import f32, S_WS, S_W, S_X, S_H, S_WV, S_G, S_T0, S_T1, S_T2, S_T3

S_DBG = 84
S_SPIN = R.S_SPIN
S_XCC = 83
S_LNO = 82
F_OPC = WS_FLAG + 0x4000
F_LH = WS_FLAG + 0x6000
F_LU = WS_FLAG + 0x8000
F_GF = WS_FLAG + 0x8400
S_FAST = S_XCC
D_GB, D_OVF, D_WEIRD, D_TS, D_TI = 128, 36, 40, 192, 196
S_J, S_BO2, S_LB2 = 100, 101, 3
S_J2 = 63
S_W1, S_B1, S_W2 = 88, 92, 96
NEARLY = int(os.environ.get('NEARLY', 2))
STAG = int(os.environ.get('STAG', 4))
STAG0 = int(os.environ.get('STAG0', 1))
TIMING = bool(os.environ.get('TIMING'))
OPRING = int(os.environ.get('OPRING', 0))
WARM = int(os.environ.get('WARM', 0))
DIAG = bool(os.environ.get('DIAG'))
TAIL_BYTES = int(os.environ.get('TAIL_BYTES', 24576))
CODET = int(os.environ.get('CODET', 0))
CODE_BYTES = int(os.environ.get('CODE_BYTES', 57344))
PLF = os.environ.get('PLF', 'sc1').replace('_', ' ')


def lane0(A, body):
    A.I('s_mov_b64 exec, 1')
    body()
    A.I('s_mov_b64 exec, -1')


def poll_eq(A, srd, s_off, imm, expect, vt, l_exit, sleep=0):
    l = A.newlabel('L_poll')
    A.label(l)
    so = f's{s_off}' if s_off is not None else '0'
    A.I(f'buffer_load_dword v{vt}, off, {srd}, {so} offset:{imm} sc1')
    A.I(f's_sub_u32 s{S_SPIN}, s{S_SPIN}, 1')
    A.I(f's_cbranch_scc1 {l_exit}')
    A.I('s_waitcnt vmcnt(0)')
    A.I(f'v_readfirstlane_b32 s{S_T0}, v{vt}')
    ld = A.newlabel('L_pd')
    A.I(f's_cmp_eq_u32 s{S_T0}, {expect}')
    A.I(f's_cbranch_scc1 {ld}')
    if sleep:
        A.I(f's_sleep {sleep}')
    A.br(f's_branch {l}')
    A.label(ld)


def poll_flags(A, s_off, nlanes, width, vt, va, l_exit, sleep=0, mask=None):
    ws = f's[{S_WS}:{S_WS + 3}]'
    l, ld = A.newlabel('L_pf'), A.newlabel('L_pfd')
    A.I(f'v_lshlrev_b32 v{va}, {2 if width == 1 else 3}, v0')
    assert nlanes <= 32
    A.I(f's_mov_b32 exec_lo, 0x{((1 << nlanes) - 1) if mask is None else mask:x}')
    A.I('s_mov_b32 exec_hi, 0')
    A.label(l)
    if width == 1:
        A.I(f'buffer_load_dword v{vt}, v{va}, {ws}, s{s_off} offen {PLF}')
    else:
        A.I(f'buffer_load_dwordx2 {v(vt, 2)}, v{va}, {ws}, s{s_off} offen {PLF}')
    A.I(f's_sub_u32 s{S_SPIN}, s{S_SPIN}, 1')
    A.I(f's_cbranch_scc1 {l_exit}')
    A.I('s_waitcnt vmcnt(0)')
    if width == 2:
        A.I(f'v_min_u32 v{vt}, v{vt}, v{vt + 1}')
    A.I(f'v_cmp_eq_u32 vcc, 0, v{vt}')
    A.I(f's_cbranch_vccz {ld}')
    if sleep:
        A.I(f's_sleep {sleep}')
    A.br(f's_branch {l}')
    A.label(ld)
    A.I('s_mov_b64 exec, -1')


def flag_store(A, s_addr, vt):
    ws = f's[{S_WS}:{S_WS + 3}]'
    l1, l2 = A.newlabel('L_fs'), A.newlabel('L_fs')
    A.I(f'v_mov_b32 v{vt}, 1')
    A.I('s_mov_b64 exec, 1')
    A.I(f's_cmp_eq_u32 s{S_FAST}, 0')
    A.br(f's_cbranch_scc1 {l1}')
    A.I(f'buffer_store_dword v{vt}, off, {ws}, s{s_addr}')
    A.br(f's_branch {l2}')
    A.label(l1)
    A.I(f'buffer_store_dword v{vt}, off, {ws}, s{s_addr} sc1')
    A.label(l2)
    A.I('s_mov_b64 exec, -1')


def garrive(A, s_line, s_goff, vt, l_exit):
    ws = f's[{S_WS}:{S_WS + 3}]'
    A.I(f's_lshl_b32 s{S_T1}, s{S_H}, 2')
    A.I(f's_add_u32 s{S_T1}, s{S_T1}, s{s_line}')
    flag_store(A, S_T1, vt)
    l = A.newlabel('L_ga')
    A.I(f's_cmp_lg_u32 s{S_H}, 0')
    A.br(f's_cbranch_scc1 {l}')
    poll_flags(A, s_line, 32, 1, vt, vt + 1, l_exit)
    A.I(f'v_lshlrev_b32 v{vt + 1}, 9, v0')
    A.I(f'v_mov_b32 v{vt}, 1')
    A.I('s_mov_b64 exec, 0xff')
    A.I(f'buffer_store_dword v{vt}, v{vt + 1}, {ws}, s{s_goff} offen sc1')
    A.I('s_mov_b64 exec, -1')
    A.label(l)


def wg_poll_eq(A, srd, s_off, imm, expect, vt, l_exit, sleep=0):
    l0 = A.newlabel('L_wgp')
    A.I(f's_cmp_lg_u32 s{S_WV}, 0')
    A.br(f's_cbranch_scc1 {l0}')
    poll_eq(A, srd, s_off, imm, expect, vt, l_exit, sleep)
    A.label(l0)
    A.I('s_barrier')


L_TS = 160000


def tstamp(A, idx, r=14):
    if not TIMING:
        return
    l = A.newlabel('L_ts')
    A.I(f's_cmp_lg_u32 s{S_WV}, 0')
    A.br(f's_cbranch_scc1 {l}')
    chk = A.check
    A.check = False
    A.I('s_memrealtime s[80:81]')
    A.I('s_waitcnt lgkmcnt(0)')
    if idx in (0, 1, 2, 7, 8):
        A.I(f'v_mov_b32 v{r}, s80')
        A.I(f'v_mov_b32 v{r + 1}, s81')
        A.I(f's_lshl_b32 s80, s{S_G}, 5')
        A.I(f's_add_u32 s80, s80, s{S_H}')
        A.I('s_lshl_b32 s80, s80, 8')
        A.I(f's_add_u32 s80, s80, 0x{WS_DBG:x}')
        A.I(f'buffer_store_dwordx2 {v(r, 2)}, off, s[{S_WS}:{S_WS + 3}], s80 offset:{8 * idx}')
    else:
        A.I(f'v_mov_b32 v{r}, s80')
        A.I(f'v_mov_b32 v{r + 1}, {L_TS + 8 * idx}')
        A.I(f'ds_write_b32 v{r + 1}, v{r}')
        A.I(f'v_mov_b32 v{r}, s81')
        A.I(f'ds_write_b32 v{r + 1}, v{r} offset:4')
        if idx == 6:
            A.I(f'v_lshlrev_b32 v{r}, 2, v0')
            A.I(f'v_add_u32 v{r + 1}, {L_TS}, v{r}')
            A.I('s_waitcnt lgkmcnt(0)')
            A.I(f'ds_read_b32 v{r + 1}, v{r + 1}')
            A.I(f's_lshl_b32 s80, s{S_G}, 5')
            A.I(f's_add_u32 s80, s80, s{S_H}')
            A.I('s_lshl_b32 s80, s80, 8')
            A.I(f's_add_u32 s80, s80, 0x{WS_DBG + 0x40000:x}')
            A.I('s_waitcnt lgkmcnt(0)')
            A.I(f'buffer_store_dword v{r + 1}, v{r}, s[{S_WS}:{S_WS + 3}], s80 offen')
    A.check = chk
    A.label(l)


def mega_kernel(A, name):
    kernel_begin(A, name)
    l_exit = A.newlabel('L_exit')
    P_WS, P_DBG, P_Q, P_K, P_V, P_O, P_M0, P_X = 16, 18, 20, 22, 24, 26, 28, 30
    ws, dbg, sx = f's[{S_WS}:{S_WS + 3}]', f's[{S_DBG}:{S_DBG + 3}]', f's[{S_X}:{S_X + 3}]'
    A.I('s_cmp_ge_u32 s2, 256')
    A.I(f's_cbranch_scc1 {l_exit}')
    if DIAG:
        A.I('s_memrealtime s[58:59]')
    A.I(f's_load_dwordx2 s[{P_WS}:{P_WS + 1}], s[0:1], {KA_WS}')
    A.I(f's_load_dwordx2 s[{P_DBG}:{P_DBG + 1}], s[0:1], {KA_DBG}')
    A.I(f's_load_dwordx4 s[{P_Q}:{P_Q + 3}], s[0:1], {KA_WQ}')
    A.I(f's_load_dwordx4 s[{P_V}:{P_V + 3}], s[0:1], {KA_WV}')
    A.I(f's_load_dwordx2 s[{P_M0}:{P_M0 + 1}], s[0:1], {KA_MEM0}')
    A.I(f's_load_dwordx2 s[{P_X}:{P_X + 1}], s[0:1], {KA_X}')
    A.I('v_lshrrev_b32 v1, 6, v0')
    A.I('v_and_b32 v0, 63, v0')
    A.I(f'v_readfirstlane_b32 s{S_WV}, v1')
    A.I(f's_getreg_b32 s{S_XCC}, hwreg(HW_REG_XCC_ID)')
    A.I(f's_mov_b32 s{S_SPIN}, 0x80000')
    A.I('s_waitcnt lgkmcnt(0)')
    make_srd(A, S_WS, P_WS, WS_SIZE)
    make_srd(A, S_DBG, P_DBG, 256)
    make_srd(A, S_X, P_X, 2048 * 1024)
    LX, LF = 32, 48
    lnl = A.newlabel('L_l0')
    A.I('v_and_b32 v24, 15, v0')
    A.I('v_lshrrev_b32 v25, 4, v0')
    A.I('s_cmp_ge_u32 s2, 128')
    A.br(f's_cbranch_scc1 {lnl}')
    A.I('v_lshlrev_b32 v26, 10, v24')
    A.I('v_lshl_add_u32 v26, v25, 4, v26')
    A.I(f's_lshl_b32 s{S_LNO}, s2, 14')
    A.I(f's_lshl_b32 s{S_T0}, s{S_WV}, 8')
    A.I(f's_add_u32 s{S_T0}, s{S_T0}, s{S_LNO}')
    for i in range(4):
        A.I(f'buffer_load_dwordx4 {v(LX + 4 * i, 4)}, v26, {sx}, s{S_T0} offen offset:{64 * i}')
    A.label(lnl)
    A.forget_loads()
    if CODET:
        lct = A.newlabel('L_ct')
        A.I(f's_cmp_lg_u32 s{S_WV}, 3')
        A.br(f's_cbranch_scc1 {lct}')
        A.I('s_cmp_ge_u32 s2, 16')
        A.br(f's_cbranch_scc1 {lct}')
        code_touch(A, name, l_exit, CODE_BYTES, 255, 3)
        A.label(lct)
    lr = A.newlabel('L_role_done')
    A.I(f's_cmp_lg_u32 s{S_WV}, 0')
    A.br(f's_cbranch_scc1 {lr}')
    A.I('s_mov_b64 exec, 1')
    A.I('v_mov_b32 v2, 1')
    lw = A.newlabel('L_nw')
    A.I(f's_cmp_lt_u32 s{S_XCC}, 8')
    A.br(f's_cbranch_scc1 {lw}')
    A.I(f'buffer_atomic_or v2, off, {dbg}, 0 offset:{D_WEIRD}')
    A.I('s_waitcnt vmcnt(0)')
    A.label(lw)
    A.I(f's_and_b32 s{S_G}, s{S_XCC}, 7')
    A.I(f's_lshl_b32 s{S_T0}, s{S_G}, 2')
    A.I(f'buffer_atomic_add v2, off, {dbg}, s{S_T0} sc0')
    A.I('s_waitcnt vmcnt(0)')
    A.I(f'v_readfirstlane_b32 s{S_H}, v2')
    lok = A.newlabel('L_rok')
    A.I(f's_cmp_lt_u32 s{S_H}, 32')
    A.br(f's_cbranch_scc1 {lok}')
    A.I('v_mov_b32 v2, 1')
    A.I(f'buffer_atomic_add v2, off, {dbg}, 0 offset:{D_OVF} sc0')
    A.I('s_waitcnt vmcnt(0)')
    A.I(f'v_readfirstlane_b32 s{S_T3}, v2')
    lo = A.newlabel('L_ovf')
    A.label(lo)
    A.I(f'buffer_load_dwordx4 v[4:7], off, {dbg}, 0 sc1')
    A.I(f'buffer_load_dwordx4 v[8:11], off, {dbg}, 0 offset:16 sc1')
    A.I(f's_sub_u32 s{S_SPIN}, s{S_SPIN}, 1')
    A.I(f's_cbranch_scc1 {l_exit}')
    A.I('s_waitcnt vmcnt(0)')
    A.I(f's_mov_b32 s{S_T0}, 0')
    for i in range(8):
        A.I(f'v_readfirstlane_b32 s{64 + i}, v{4 + i}')
    for i in range(8):
        A.I(f's_add_u32 s{S_T0}, s{S_T0}, s{64 + i}')
    A.I(f's_cmp_lt_u32 s{S_T0}, 256')
    A.br(f's_cbranch_scc1 {lo}')
    for g in range(8):
        A.I(f's_min_u32 s{S_T0}, s{64 + g}, 32')
        A.I(f's_sub_u32 s{S_T1}, 32, s{S_T0}')
        A.I(f's_mov_b32 s{S_G}, {g}')
        A.I(f's_add_u32 s{S_H}, s{S_T0}, s{S_T3}')
        A.I(f's_cmp_lt_u32 s{S_T3}, s{S_T1}')
        A.br(f's_cbranch_scc1 {lok}')
        A.I(f's_sub_u32 s{S_T3}, s{S_T3}, s{S_T1}')
    A.I(f's_mov_b32 s{S_G}, 0x100')
    A.I(f's_mov_b32 s{S_H}, 0')
    A.label(lok)
    A.I(f's_lshl_b32 s{S_T0}, s{S_G}, 8')
    A.I(f's_or_b32 s{S_T0}, s{S_T0}, s{S_H}')
    A.I(f'v_mov_b32 v2, s{S_T0}')
    A.I('v_mov_b32 v3, 0')
    A.I('ds_write_b32 v3, v2')
    A.I('s_waitcnt lgkmcnt(0)')
    A.I('s_mov_b64 exec, -1')
    A.label(lr)
    lno, lnd = A.newlabel('L_lno'), A.newlabel('L_lnd')
    A.I('s_cmp_ge_u32 s2, 128')
    A.br(f's_cbranch_scc1 {lno}')
    A.I(f's_lshl_b32 s{S_T0}, s{S_WV}, 2')
    A.I('v_lshlrev_b32 v27, 4, v24')
    A.I(f'v_add_u32 v26, s{S_T0}, v27')
    A.I('s_waitcnt vmcnt(0)')
    for i in range(16):
        A.I(f'v_lshlrev_b32 v{LF + 2 * i}, 16, v{LX + i}')
        A.I(f'v_and_b32 v{LF + 2 * i + 1}, 0xffff0000, v{LX + i}')
    A.I(f'v_add_f32 v28, v{LF}, v{LF + 1}')
    A.I(f'v_add_f32 v29, v{LF + 2}, v{LF + 3}')
    for i in range(4, 32, 2):
        A.I(f'v_add_f32 v28, v28, v{LF + i}')
        A.I(f'v_add_f32 v29, v29, v{LF + i + 1}')
    A.I('v_add_f32 v28, v28, v29')
    T.xreduce(A, 'v_add_f32', 28, 29)
    A.I('ds_write_b32 v26, v28 offset:64')
    A.I('s_waitcnt lgkmcnt(0)')
    A.I('s_barrier')
    A.I('v_mov_b32 v3, 0')
    A.I('ds_read_b32 v2, v3')
    A.I('ds_read_b128 v[28:31], v27 offset:64')
    A.I('s_waitcnt lgkmcnt(0)')
    A.I('v_add_f32 v28, v28, v29')
    A.I('v_add_f32 v30, v30, v31')
    A.I('v_add_f32 v28, v28, v30')
    A.I(f'v_mul_f32 v28, {f32(1 / 512)}, v28')
    A.I('v_mov_b32 v29, 0')
    A.I('v_mov_b32 v30, 0')
    for i in range(0, 32, 2):
        A.I(f'v_sub_f32 v{LF + i}, v{LF + i}, v28')
        A.I(f'v_sub_f32 v{LF + i + 1}, v{LF + i + 1}, v28')
        A.I(f'v_fmac_f32 v29, v{LF + i}, v{LF + i}')
        A.I(f'v_fmac_f32 v30, v{LF + i + 1}, v{LF + i + 1}')
    A.I('v_add_f32 v29, v29, v30')
    T.xreduce(A, 'v_add_f32', 29, 30)
    A.I('ds_write_b32 v26, v29 offset:320')
    A.I('s_waitcnt lgkmcnt(0)')
    A.I('s_barrier')
    A.I('ds_read_b128 v[28:31], v27 offset:320')
    A.I('s_waitcnt lgkmcnt(0)')
    A.I('v_add_f32 v28, v28, v29')
    A.I('v_add_f32 v30, v30, v31')
    A.I('v_add_f32 v28, v28, v30')
    A.I(f'v_mov_b32 v29, {f32(1e-5)}')
    A.I(f'v_fmac_f32 v29, {f32(1 / 512)}, v28')
    A.I('v_rsq_f32 v29, v29')
    A.I('v_lshlrev_b32 v26, 4, v0')
    A.I(f's_lshl_b32 s{S_T0}, s{S_WV}, 12')
    A.I(f's_add_u32 s{S_T0}, s{S_T0}, s{S_LNO}')
    A.I(f's_add_u32 s{S_T0}, s{S_T0}, 0x{WS_XN:x}')
    for i in range(4):
        for j in range(4):
            f = LF + 8 * i + 2 * j
            A.I(f'v_mul_f32 v{f}, v{f}, v29')
            A.I(f'v_mul_f32 v{f + 1}, v{f + 1}, v29')
            A.I(f'v_cvt_pk_bf16_f32 v{LX + 4 * i + j}, v{f}, v{f + 1}')
        A.I(f'buffer_store_dwordx4 {v(LX + 4 * i, 4)}, v26, {ws}, s{S_T0} offen offset:{1024 * i} sc1')
    A.br(f's_branch {lnd}')
    A.label(lno)
    A.I('s_barrier')
    A.I('v_mov_b32 v3, 0')
    A.I('ds_read_b32 v2, v3')
    A.I('s_waitcnt lgkmcnt(0)')
    A.label(lnd)
    A.forget_loads()
    A.I(f'v_readfirstlane_b32 s{S_T0}, v2')
    A.I(f's_and_b32 s{S_H}, s{S_T0}, 31')
    A.I(f's_bfe_u32 s{S_G}, s{S_T0}, 0x30008')
    A.I(f's_cmp_ge_u32 s{S_T0}, 0x10000')
    A.I(f's_cbranch_scc1 {l_exit}')
    A.I('s_barrier')
    tstamp(A, 0)

    def arrive(off=D_GB):
        l = A.newlabel('L_na')
        A.I(f's_cmp_lg_u32 s{S_WV}, 0')
        A.br(f's_cbranch_scc1 {l}')
        A.I('v_mov_b32 v23, 1')
        lane0(A, lambda: A.I(f'buffer_atomic_add v23, off, {dbg}, 0 offset:{off}'))
        A.label(l)

    def ln_and_arrive(ln=True):
        A.I('s_waitcnt vmcnt(0)')
        A.I('s_barrier')
        arrive()

    l_tok = A.newlabel('L_tok')
    l_g2 = A.newlabel('L_g2')
    A.I(f's_cmp_lg_u32 s{S_G}, 0')
    A.br(f's_cbranch_scc1 {l_tok}')

    A.I(f'v_mov_b32 v{R.LANE}, v0')
    R.setup_consts(A)

    A.I(f's_lshl_b32 s{S_T0}, s{S_H}, 6')
    A.I(f's_lshl_b32 s{S_T1}, s{S_WV}, 2')
    A.I(f's_add_u32 s{S_T0}, s{S_T0}, s{S_T1}')
    A.I(f's_add_u32 s{S_LNO}, s{S_T0}, 0x{R.F_KMP:x}')
    A.I('v_mov_b32 v24, 0')
    lane0(A, lambda: A.I(f'buffer_store_dword v24, off, {ws}, s{S_LNO} sc1'))
    R.init_exchange(A, P_M0, 'sc1', rb=24, part=0)

    def thook():
        A.check = False
        R.init_exchange(A, P_M0, 'sc1', rb=24, part=1)
        A.check = True
        A.forget_loads()

    def h_sc(sc):
        if sc == 0:
            arrive()
            tstamp(A, 8, 24)
        if sc == 1:
            arrive(D_TI)

    S_OK = 25

    def batch():
        A.I(f'buffer_load_dword v25, off, {dbg}, 0 sc1')
        A.I(f'buffer_load_dword v26, off, {dbg}, 0 offset:{D_WEIRD} sc1')
        A.I(f'buffer_load_dword v27, off, {dbg}, 0 offset:{D_TI} sc1')
        R.kv_load(A, 28, R.V_L16, R.S_RA)

    def h_issue(sc):
        if sc == 3:
            A.I(f'buffer_load_dword v24, off, {dbg}, 0 offset:{D_GB} sc1')
            return
        A.I(f's_lshl_b32 s{R.S_RA}, s{S_H}, 7')
        A.I(f's_add_u32 s{R.S_RA}, s{R.S_RA}, 0x{R.F_PROG:x}')
        A.I(f's_lshl_b32 s{R.S_KVN}, s{S_H}, 13')
        A.I(f's_add_u32 s{R.S_KVN}, s{R.S_KVN}, s{R.S_W11}')
        A.I(f's_add_u32 s{R.S_KVN}, s{R.S_KVN}, 0x{WS_KF:x}')
        A.I(f's_add_u32 s{R.S_KVM0}, s{R.S_W11}, {R.L_KV}')
        batch()

    def evaluate(l_fail):
        R.kv_eval(A, 28, R.V_L16, R.S_AV)
        A.I(f'v_readfirstlane_b32 s{S_T0}, v24')
        A.I(f'v_readfirstlane_b32 s{S_T2}, v25')
        A.I(f'v_readfirstlane_b32 s{S_T3}, v26')
        A.I(f's_cmp_lg_u32 s{S_T0}, 256')
        A.I(f's_cbranch_scc1 {l_fail}')
        A.I(f'v_readfirstlane_b32 s{S_T0}, v27')
        A.I(f's_cmp_lg_u32 s{S_T0}, 32')
        A.I(f's_cbranch_scc1 {l_fail}')
        A.I(f's_cmp_eq_u32 s{R.S_AV}, 0')
        A.I(f's_cbranch_scc1 {l_fail}')
        A.I(f's_cmp_ge_u32 s{S_T2}, 32')
        A.I(f's_cselect_b32 s{S_XCC}, 1, 0')
        A.I(f's_cmp_eq_u32 s{S_T3}, 0')
        A.I(f's_cselect_b32 s{S_XCC}, s{S_XCC}, 0')
        R.kv_dma(A)

    def h_check():
        lf = A.newlabel('L_hf')
        A.I(f's_mov_b32 s{S_OK}, 0')
        evaluate(lf)
        A.I(f's_mov_b32 s{S_OK}, 1')
        A.label(lf)

    R.stage_weights(A, [P_Q, P_K, P_V, P_O], hook=thook, hook_issue=h_issue, hook_check=h_check, hook_sc=h_sc)
    tstamp(A, 1)
    A.I(f's_mov_b32 s{R.S_KP}, s{S_LNO}')
    lgo_, lre = A.newlabel('L_tgo'), A.newlabel('L_tre')
    A.I(f's_cmp_eq_u32 s{S_OK}, 1')
    A.br(f's_cbranch_scc1 {lgo_}')
    A.label(lre)
    A.I('s_sleep 4')
    A.I(f'buffer_load_dword v24, off, {dbg}, 0 offset:{D_GB} sc1')
    A.I('s_waitcnt vmcnt(0)')
    batch()
    A.I(f's_sub_u32 s{S_SPIN}, s{S_SPIN}, 1')
    A.I(f's_cbranch_scc1 {l_exit}')
    A.I('s_waitcnt vmcnt(0)')
    evaluate(lre)
    A.label(lgo_)
    A.I('s_waitcnt vmcnt(0)')
    A.I('s_barrier')
    tstamp(A, 2)
    if DIAG:
        A.I('s_memrealtime s[80:81]')
        A.I('s_waitcnt lgkmcnt(0)')
        A.I('s_sub_u32 s60, s80, s58')
    l_slow = A.newlabel('L_slowmode')
    l_tdone = A.newlabel('L_tdone')
    A.I(f's_cmp_eq_u32 s{S_XCC}, 0')
    if os.environ.get('FORCE_SLOW'):
        A.br(f's_branch {l_slow}')
    else:
        A.br(f's_cbranch_scc1 {l_slow}')
    R.main_loop(A, '', l_tdone, kvcheck=True)
    A.label(l_slow)
    R.main_loop(A, 'sc1', l_tdone, kvcheck=True)
    A.label(l_tdone)
    A.forget_loads()
    A.I(f's_mov_b32 s{S_G}, 0')
    tstamp(A, 3)
    if DIAG:
        A.I('s_memrealtime s[80:81]')
        A.I('s_waitcnt lgkmcnt(0)')
        A.I('s_sub_u32 s61, s80, s58')
    A.I(f'v_lshrrev_b32 v0, 4, v{R.V_L16}')
    j2_calc(A)
    A.I('s_waitcnt vmcnt(0) lgkmcnt(0)')
    A.I('s_barrier')
    g2_setup(A)
    for k in (0, 1, 2, 3, 4, 13):
        g2_dma(A, k)
    A.I(f's_mov_b32 s{S_PRE}, 0')
    A.br(f's_branch {l_g2}')

    A.label(l_tok)
    A.forget_loads()
    S_SEG, S_NX, S_CA, S_END, S_K1, S_AV, S_PB = 36, 41, 42, 43, 44, 45, 46
    j2_calc(A)
    A.I(f's_sub_u32 s{S_G}, s{S_G}, 1')
    A.I(f's_lshl_b32 s{S_J}, s{S_G}, 5')
    A.I(f's_add_u32 s{S_J}, s{S_J}, s{S_H}')

    def tok_init(ln=True):
        A.I(f's_lshl_b32 s{S_CA}, s{S_H}, 7')
        A.I(f's_lshl_b32 s{S_T0}, s{S_G}, 4')
        A.I(f's_add_u32 s{S_CA}, s{S_CA}, s{S_T0}')
        A.I(f's_lshl_b32 s{S_T0}, s{S_WV}, 2')
        A.I(f's_add_u32 s{S_CA}, s{S_CA}, s{S_T0}')
        A.I(f's_add_u32 s{S_CA}, s{S_CA}, 0x{R.F_PROG:x}')
        A.I('v_mov_b32 v22, 0')
        lane0(A, lambda: A.I(f'buffer_store_dword v22, off, {ws}, s{S_CA} sc1'))
        lz = A.newlabel('L_nz')
        A.I(f's_cmp_lg_u32 s{S_J}, 64')
        A.br(f's_cbranch_scc1 {lz}')
        A.I('v_lshlrev_b32 v23, 4, v0')
        for r in range(16, 20):
            A.I(f'v_mov_b32 v{r}, 0')
        A.I(f's_mul_i32 s{S_T0}, s{S_WV}, 6144')
        A.I(f's_add_u32 s{S_T0}, s{S_T0}, 0x{F_OPC:x}')
        A.I(f's_add_u32 s{S_T1}, s{S_T0}, 4096')
        for i in range(4):
            A.I(f'buffer_store_dwordx4 v[16:19], v23, {ws}, s{S_T0} offen offset:{1024 * i} sc1')
        A.I(f'buffer_store_dwordx4 v[16:19], v23, {ws}, s{S_T1} offen sc1')
        A.I(f'buffer_store_dwordx4 v[16:19], v23, {ws}, s{S_T1} offen offset:1024 sc1')
        A.label(lz)
        A.forget_loads()
        if ln:
            ln_and_arrive()
            ts_tok(A, 8)

    l_late = A.newlabel('L_late')
    l_st = A.newlabel('L_st')
    A.I(f's_mov_b32 s{S_K1}, 0')
    l_lt = A.newlabel('L_lt')
    A.I(f's_cmp_ge_u32 s{S_G}, {NEARLY}')
    A.br(f's_cbranch_scc1 {l_lt}')
    tok_init(False)
    A.br(f's_branch {l_st}')
    A.label(l_lt)
    if WARM:
        lwm = A.newlabel('L_wm')
        A.I(f's_cmp_eq_u32 s{S_G}, 3')
        A.br(f's_cbranch_scc1 {lwm}')
        A.I(f's_sub_u32 s{S_T0}, s{S_J}, 96')
        A.I(f's_cmp_eq_u32 s{S_G}, 2')
        A.I(f's_cselect_b32 s{S_T0}, s{S_H}, s{S_T0}')
        A.I(f's_lshl_b32 s{S_T0}, s{S_T0}, 2')
        A.I(f's_add_u32 s{S_T0}, s{S_T0}, s{S_WV}')
        A.I(f's_lshl_b32 s{S_T0}, s{S_T0}, 13')
        A.I('v_lshlrev_b32 v22, 7, v0')
        A.check = False
        for p in (P_Q, P_K, P_V, P_O):
            make_srd(A, S_W, p, 4 << 20)
            A.I(f'buffer_load_dword v255, v22, s[{S_W}:{S_W + 3}], s{S_T0} offen')
        A.check = True
        A.label(lwm)
        A.forget_loads()
    tok_init()
    l_nost = A.newlabel('L_nost')
    wg_poll_eq(A, dbg, None, D_GB, 256, 2, l_exit, sleep=100)
    A.I(f's_cmp_ge_u32 s{S_G}, 4')
    A.br(f's_cbranch_scc1 {l_nost}')
    lsg, lsd = A.newlabel('L_sg'), A.newlabel('L_sd')
    A.I(f's_cmp_lg_u32 s{S_WV}, 0')
    A.br(f's_cbranch_scc1 {lsd}')
    A.I(f's_cmp_eq_u32 s{S_G}, 3')
    A.I(f's_cselect_b32 s{S_T1}, {STAG}, {STAG0}')
    A.I(f's_lshl_b32 s{S_T2}, s{S_H}, 6')
    A.I(f's_add_u32 s{S_T2}, s{S_T2}, 0x{R.F_KMP:x}')
    A.label(lsg)
    A.I(f'buffer_load_dword v2, off, {ws}, s{S_T2} sc1')
    A.I(f's_sub_u32 s{S_SPIN}, s{S_SPIN}, 1')
    A.I(f's_cbranch_scc1 {l_exit}')
    A.I('s_waitcnt vmcnt(0)')
    A.I(f'v_readfirstlane_b32 s{S_T0}, v2')
    A.I(f's_cmp_ge_u32 s{S_T0}, s{S_T1}')
    A.I(f's_cbranch_scc1 {lsd}')
    A.I('s_sleep 40')
    A.br(f's_branch {lsg}')
    A.label(lsd)
    A.I('s_barrier')
    A.I(f's_mov_b32 s{S_K1}, 1')
    A.label(l_st)

    def hook(sc):
        if sc != 0:
            return
        l = A.newlabel('L_hk')
        A.I(f's_cmp_eq_u32 s{S_K1}, 1')
        A.br(f's_cbranch_scc1 {l}')
        arrive()
        ts_tok(A, 8)
        A.label(l)

    T.qkv_stage(A, [P_Q, P_K, P_V], hook_sc=hook)
    A.label(l_nost)
    ts_tok(A, 1)
    wg_poll_eq(A, dbg, None, D_GB, 256, 2, l_exit, sleep=8)
    ts_tok(A, 7)
    A.I(f's_lshl_b32 s{S_T0}, s{S_G}, 2')
    A.I(f'buffer_load_dword v2, off, {dbg}, s{S_T0} offset:4 sc1')
    A.I(f'buffer_load_dword v3, off, {dbg}, 0 offset:{D_WEIRD} sc1')
    A.I('s_waitcnt vmcnt(0)')
    A.I(f'v_readfirstlane_b32 s{S_T2}, v2')
    A.I(f'v_readfirstlane_b32 s{S_T3}, v3')
    A.I(f's_cmp_ge_u32 s{S_T2}, 32')
    A.I(f's_cselect_b32 s{S_FAST}, 1, 0')
    A.I(f's_cmp_eq_u32 s{S_T3}, 0')
    A.I(f's_cselect_b32 s{S_FAST}, s{S_FAST}, 0')
    if os.environ.get('FORCE_SLOW'):
        A.I(f's_mov_b32 s{S_FAST}, 0')
    l_nop1 = A.newlabel('L_nop1')
    A.I(f's_cmp_ge_u32 s{S_G}, 4')
    A.br(f's_cbranch_scc1 {l_nop1}')
    A.I(f's_lshr_b32 s{S_T0}, s{S_G}, 1')
    A.I(f's_lshl_b32 s{S_T0}, s{S_T0}, 5')
    A.I(f's_add_u32 s{S_END}, s{S_T0}, 32')
    A.I(f's_and_b32 s{S_NX}, s{S_G}, 1')
    A.I(f's_add_u32 s{S_NX}, s{S_NX}, s{S_T0}')
    A.I('v_mov_b32 v2, 0')

    def signal():
        lane0(A, lambda: A.I(f'buffer_store_dword v2, off, {ws}, s{S_CA} sc1'))

    def after():
        A.I('v_add_u32 v2, 1, v2')

    T.qkv_segments(A, 2, 'sc1', after_seg=after, mid_seg=signal, first=S_NX, end=f's{S_END}')
    A.I('s_waitcnt vmcnt(0)')
    signal()
    A.label(l_nop1)
    ts_tok(A, 2)
    T.att_stage(A, P_O)
    T.att_consts(A)
    A.I(f's_load_dwordx4 s[16:19], s[0:1], {KA_W1}')
    A.I('s_waitcnt lgkmcnt(0)')
    make_srd(A, S_W1, 16, 2048 * 3584)
    make_srd(A, S_B1, 18, 3584)
    g2_setup(A)
    A.I(f's_mov_b32 s{S_PRE}, 0')
    for i in range(16):
        A.I(f'v_mov_b32 v{G1ACC + i}, 0')
    A.I(f's_mov_b32 s{S_K1}, 0')
    g1_w1_dma(A, S_K1, first=True)
    A.I(f's_lshl_b32 s{S_OPS}, s{S_G}, 1')
    masks = seg_masks()
    for g in range(7):
        A.I(f's_cmp_eq_u32 s{S_G}, {g}')
        A.I(f's_cselect_b32 s{S_MSK}, 0x{masks[g] & 0xffffffff:x}, s{S_MSK}')
        A.I(f's_cselect_b32 s{S_MSK + 1}, 0x{masks[g] >> 32:x}, s{S_MSK + 1}')
    A.I(f's_ff1_i32_b64 s{S_SEG}, s[{S_MSK}:{S_MSK + 1}]')
    A.I(f's_bitset0_b64 s[{S_MSK}:{S_MSK + 1}], s{S_SEG}')
    A.I(f's_mov_b32 s{S_AV}, 0')
    A.I(f's_lshl_b32 s{S_PB}, s{S_H}, 7')
    A.I(f's_add_u32 s{S_PB}, s{S_PB}, 0x{R.F_PROG:x}')
    R.kv_wait(A, l_exit, S_SEG, 192, s_av=S_AV, s_base=S_PB, sleep=4, vlane16=1)
    T.att_load_qkv(A, S_SEG)
    x_prefetch(A, S_SEG, sx)
    L = A.newlabel('L_p2')
    L_att = A.newlabel('L_att')
    L_fin = A.newlabel('L_p2fin')
    A.label(L)
    A.check = False
    A.I(f's_cmp_ge_u32 s{S_K1}, 16')
    A.I(f's_cbranch_scc1 {L_fin}')
    lq2 = A.newlabel('L_lp2')
    ldec = A.newlabel('L_dec')
    A.I(f's_cmp_lg_u32 s{S_WV}, 0')
    A.br(f's_cbranch_scc1 {ldec}')
    A.I(f's_lshl_b32 s{S_CA}, s{S_H}, 6')
    A.I(f's_add_u32 s{S_CA}, s{S_CA}, 0x{R.F_KMP:x}')
    A.I(f's_add_u32 s40, s{S_SEG}, 2')
    A.I(f's_lshl_b32 s{S_T1}, s{S_K1}, 4')
    A.I(f's_lshl_b32 s{S_T2}, s{S_G}, 9')
    A.I(f's_add_u32 s{S_T1}, s{S_T1}, s{S_T2}')
    A.I(f's_add_u32 s{S_T1}, s{S_T1}, 0x{F_GF + 512:x}')
    lq, lgo, lnk = A.newlabel('L_lp'), A.newlabel('L_go'), A.newlabel('L_nk')
    A.label(lq)
    A.I(f'buffer_load_dwordx4 v[192:195], off, {ws}, s{S_CA} {PLF}')
    A.I(f'buffer_load_dwordx4 v[196:199], off, {ws}, s{S_T1} {PLF}')
    A.I(f's_sub_u32 s{S_SPIN}, s{S_SPIN}, 1')
    A.I(f's_cbranch_scc1 {l_exit}')
    A.I('s_waitcnt vmcnt(0)')
    A.I('v_min_u32 v6, v192, v193')
    A.I('v_min3_u32 v6, v6, v194, v195')
    A.I(f'v_readfirstlane_b32 s{S_T0}, v6')
    A.I('v_min_u32 v7, v196, v197')
    A.I('v_min3_u32 v7, v7, v198, v199')
    A.I('v_cmp_eq_u32 vcc, 0, v7')
    A.I(f's_mov_b32 s{S_T3}, 1')
    A.I(f's_cmp_ge_u32 s{S_T0}, s40')
    A.I(f's_cbranch_scc1 {lgo}')
    A.label(lnk)
    lsl = A.newlabel('L_sl')
    A.I(f's_add_u32 s{S_T0}, s{S_T0}, 2')
    A.I(f's_cmp_ge_u32 s{S_T0}, s40')
    A.I(f's_cbranch_scc1 {lq}')
    A.I(f's_mul_i32 s{S_T2}, s{S_PRE}, 3')
    A.I(f's_add_u32 s{S_T2}, s{S_T2}, 5')
    A.I(f's_cmp_lt_u32 s{S_PRE}, 2')
    A.I(f's_cselect_b32 s{S_T2}, s{S_T2}, 99')
    A.I(f's_mov_b32 s{S_T3}, 3')
    A.I(f's_cmp_ge_u32 s{S_K1}, s{S_T2}')
    A.I(f's_cbranch_scc1 {lgo}')
    A.I(f's_mov_b32 s{S_T3}, 2')
    A.I(f's_cbranch_vccz {lgo}')
    lns = A.newlabel('L_nsl')
    A.I(f's_mov_b32 s{S_T3}, 3')
    A.I(f's_cmp_lt_u32 s{S_K1}, 3')
    A.I(f's_cbranch_scc1 {lns}')
    A.I(f's_cmp_lt_u32 s{S_SEG}, 64')
    A.I(f's_cselect_b32 s{S_T2}, 2, 3')
    A.I(f's_cmp_lt_u32 s{S_PRE}, s{S_T2}')
    A.I(f's_cbranch_scc1 {lgo}')
    A.label(lns)
    A.I('s_sleep 4')
    A.br(f's_branch {lq}')
    A.label(lgo)
    A.I(f'v_mov_b32 v6, s{S_T3}')
    A.I(f'v_mov_b32 v7, 156000')
    A.I('ds_write_b32 v7, v6')
    A.I('s_waitcnt lgkmcnt(0)')
    A.label(ldec)
    A.I('s_barrier')
    A.I(f'v_mov_b32 v7, 156000')
    A.I('ds_read_b32 v6, v7')
    A.I('s_waitcnt lgkmcnt(0)')
    A.I(f'v_readfirstlane_b32 s{S_T0}, v6')
    A.I(f's_cmp_eq_u32 s{S_T0}, 1')
    A.br(f's_cbranch_scc1 {lq2}')
    lch = A.newlabel('L_ch')
    A.I(f's_cmp_eq_u32 s{S_T0}, 2')
    A.br(f's_cbranch_scc1 {lch}')
    for rnd in range(4):
        lpr = A.newlabel('L_pr')
        A.I(f's_cmp_lg_u32 s{S_PRE}, {rnd}')
        A.br(f's_cbranch_scc1 {lpr}')
        g2_pre(A, rnd)
        A.br(f's_branch {L}')
        A.label(lpr)
    A.label(lch)
    ts_tok(A, 16)
    g1_chunk(A, S_K1, l_exit)
    A.I(f's_add_u32 s{S_K1}, s{S_K1}, 1')
    if CODET:
        lct = A.newlabel('L_ct')
        A.I(f's_cmp_lg_u32 s{S_K1}, 12')
        A.br(f's_cbranch_scc1 {lct}')
        A.I(f's_lshl_b32 s{S_T0}, s{S_H}, 2')
        A.I(f's_add_u32 s{S_T0}, s{S_T0}, s{S_WV}')
        A.I(f's_cmp_lg_u32 s{S_T0}, 7')
        A.br(f's_cbranch_scc1 {L}')
        code_touch(A, L, l_exit, TAIL_BYTES, 5, 143)
        A.br(f's_branch {L}')
        A.label(lct)
    lw2 = A.newlabel('L_w2')
    A.I(f's_cmp_lg_u32 s{S_K1}, 3')
    A.br(f's_cbranch_scc1 {lw2}')
    for k in range(5):
        g2_dma(A, k)
    A.br(f's_branch {L}')
    A.label(lw2)
    A.br(f's_branch {L}')
    A.label(lq2)
    ts_tok(A, 10)
    T.att_load_mem(A, S_SEG, 'sc1')
    A.I('s_waitcnt vmcnt(0)')
    ts_tok(A, 11)
    A.check = True
    A.forget_loads()
    T.att_compute1(A)
    T.att_xchg(A, L_RED)
    saved_ = (list(A.vm), list(A.lg))
    lc1, lc2 = A.newlabel('L_c2s'), A.newlabel('L_c2e')
    A.I(f's_cmp_eq_u32 s{S_FAST}, 0')
    A.br(f's_cbranch_scc1 {lc1}')
    T.att_compute2(A, S_OPS, '')
    A.br(f's_branch {lc2}')
    A.label(lc1)
    A.vm, A.lg = saved_
    T.att_compute2(A, S_OPS, 'sc1')
    A.label(lc2)
    ts_tok(A, 12)
    A.I('s_waitcnt vmcnt(0)')
    A.I('s_barrier')
    ts_tok(A, 13)
    A.I(f's_lshl_b32 s{S_CA}, s{S_SEG}, 7')
    A.I(f's_add_u32 s{S_CA}, s{S_CA}, 0x{F_OPC:x}')
    l0 = A.newlabel('L_n0')
    A.I(f's_cmp_lg_u32 s{S_WV}, 0')
    A.br(f's_cbranch_scc1 {l0}')
    A.I(f's_lshl_b32 s{S_T1}, s{S_H}, 2')
    A.I(f's_add_u32 s{S_T1}, s{S_T1}, s{S_CA}')
    flag_store(A, S_T1, 6)
    poll_flags(A, S_CA, 32, 1, 6, 7, l_exit)
    A.label(l0)
    A.I('s_barrier')
    ts_tok(A, 14)
    red4(A, S_SEG, sx, l_exit)
    A.I(f's_ff1_i32_b64 s{S_SEG}, s[{S_MSK}:{S_MSK + 1}]')
    A.I(f's_bitset0_b64 s[{S_MSK}:{S_MSK + 1}], s{S_SEG}')
    lnn = A.newlabel('L_nn')
    A.I(f's_cmp_lt_u32 s{S_SEG}, 64')
    A.br(f's_cbranch_scc1 {lnn}')
    A.I(f's_mov_b32 s{S_SEG}, 999')
    ts_tok(A, 3)
    A.br(f's_branch {L}')
    A.label(lnn)
    lav = A.newlabel('L_av')
    A.I(f's_cmp_gt_u32 s{S_AV}, s{S_SEG}')
    A.br(f's_cbranch_scc1 {lav}')
    R.kv_wait(A, l_exit, S_SEG, 192, s_av=S_AV, s_base=S_PB, sleep=4, vlane16=1)
    A.label(lav)
    T.att_load_qkv(A, S_SEG)
    x_prefetch(A, S_SEG, sx)
    A.br(f's_branch {L}')
    A.label(L_fin)
    A.forget_loads()
    ts_tok(A, 4)
    g1_epilogue(A, l_exit)
    A.I(f's_add_u32 s{S_G}, s{S_G}, 1')
    tstamp(A, 17)
    A.label(l_g2)
    A.forget_loads()
    g2_main(A, l_exit)
    tstamp(A, 6, 8)
    if DIAG:
        A.I(f's_add_u32 s{S_T0}, s{S_G}, s{S_H}')
        A.I(f's_add_u32 s{S_T0}, s{S_T0}, s{S_WV}')
        A.I(f's_cmp_lg_u32 s{S_T0}, 0')
        A.br(f's_cbranch_scc1 {l_exit}')
        A.I('s_memrealtime s[80:81]')
        A.I('s_waitcnt lgkmcnt(0)')
        A.I('s_sub_u32 s80, s80, s58')
        A.I('v_mov_b32 v8, s60')
        A.I('v_mov_b32 v9, s61')
        A.I('v_mov_b32 v10, s80')
        A.I('v_mov_b32 v11, 0')
        if os.environ.get('DIAG2'):
            A.I(f'buffer_store_dword v9, off, {dbg}, 0 offset:32')
        else:
            A.I(f'buffer_store_dwordx4 v[8:11], off, {dbg}, 0 offset:48')
    A.label(l_exit)
    A.I('s_endpgm')


S_MSK = 56
S_OPS = 47


def seg_masks():
    c1, c2 = int(os.environ.get('C1', 14)), int(os.environ.get('C2', 27))
    m = [0] * 7
    last = {g: -100 for g in range(7)}
    for s_ in range(64):
        cand = [4, 5, 6] if s_ < c1 else ([4, 5, 6, 0, 1] if s_ < c2 else list(range(7)))
        g = min(cand, key=lambda x: last[x])
        last[g] = s_
        m[g] |= 1 << s_
    return m


def j2_calc(A):
    A.I(f's_lshr_b32 s{S_T0}, s{S_G}, 1')
    A.I(f's_lshl_b32 s{S_T0}, s{S_T0}, 3')
    A.I(f's_lshr_b32 s{S_T1}, s{S_H}, 2')
    A.I(f's_add_u32 s{S_T0}, s{S_T0}, s{S_T1}')
    A.I(f's_lshl_b32 s{S_J2}, s{S_T0}, 3')
    A.I(f's_and_b32 s{S_T0}, s{S_G}, 1')
    A.I(f's_lshl_b32 s{S_T0}, s{S_T0}, 2')
    A.I(f's_and_b32 s{S_T1}, s{S_H}, 3')
    A.I(f's_add_u32 s{S_T0}, s{S_T0}, s{S_T1}')
    A.I(f's_add_u32 s{S_J2}, s{S_J2}, s{S_T0}')


def code_touch(A, l_from, l_end, nbytes, vd, va):
    lh = A.newlabel('L_pc')
    A.I('s_getpc_b64 s[80:81]')
    A.raw(f'{lh}:')
    A.raw(f'    s_sub_u32 s80, s80, {lh}-{l_from}')
    A.raw('    s_subb_u32 s81, s81, 0')
    A.I(f'v_lshlrev_b32 v{va}, 7, v0')
    for i in range(0, nbytes, 8192):
        A.raw(f'    v_min_u32 v{va}, {l_end}-{l_from}, v{va}')
        A.raw(f'    global_load_dword v{vd}, v{va}, s[80:81]')
        A.I(f'v_add_u32 v{va}, 8192, v{va}')


def x_prefetch(A, s_seg, sx):
    A.I('v_lshrrev_b32 v6, 2, v0')
    A.I('v_lshlrev_b32 v6, 6, v6')
    A.I('v_and_b32 v7, 3, v0')
    A.I('v_lshl_add_u32 v6, v7, 3, v6')
    A.I(f's_lshl_b32 s{S_T3}, s{s_seg}, 5')
    A.I(f's_add_u32 s{S_T3}, s{S_T3}, s{S_H}')
    A.I(f's_lshl_b32 s{S_T3}, s{S_T3}, 10')
    A.I(f'buffer_load_dwordx2 v[12:13], v6, {sx}, s{S_T3} offen')
    A.I(f'buffer_load_dwordx2 v[14:15], v6, {sx}, s{S_T3} offen offset:32')


def ts_tok(A, i):
    if TIMING:
        A.I(f's_add_u32 s{S_G}, s{S_G}, 1')
        tstamp(A, i, 14 if i in (1, 2, 7, 8) else 6)
        A.I(f's_sub_u32 s{S_G}, s{S_G}, 1')


G1ACC = 120
G1T = 144
L_G1 = 0
L_RED = 65536
L_W2 = 73728


def g1_lane(A):
    t = G1T
    A.I(f'v_lshrrev_b32 v{t}, 3, v0')
    A.I(f'v_and_b32 v{t + 1}, 7, v0')
    A.I(f'v_bfe_u32 v{t + 2}, v0, 4, 1')
    A.I(f's_and_b32 s{S_T0}, s{S_WV}, 1')
    A.I(f's_lshl_b32 s{S_T0}, s{S_T0}, 1')
    A.I(f'v_or_b32 v{t + 2}, s{S_T0}, v{t + 2}')
    A.I(f'v_lshlrev_b32 v{t + 2}, 1, v{t + 2}')
    A.I(f'v_xor_b32 v{t + 1}, v{t + 1}, v{t + 2}')
    A.I(f'v_lshlrev_b32 v{t + 1}, 4, v{t + 1}')
    A.I(f'v_mul_u32_u24 v136, 3584, v{t}')
    A.I(f'v_add_u32 v136, v136, v{t + 1}')
    A.I(f'v_lshl_add_u32 v137, v{t}, 10, v{t + 1}')
    A.I(f'v_and_b32 v{t}, 15, v0')
    A.I(f'v_lshrrev_b32 v{t + 1}, 4, v0')
    A.I(f'v_lshrrev_b32 v{t + 2}, 2, v{t}')
    A.I(f'v_and_b32 v{t + 3}, 3, v{t}')
    A.I(f'v_lshl_add_u32 v{t + 4}, v{t + 1}, 3, v{t + 2}')
    A.I(f'v_lshlrev_b32 v{t + 4}, 7, v{t + 4}')
    A.I(f'v_lshl_add_u32 v{t + 4}, v{t + 3}, 3, v{t + 4}')
    A.I(f'v_lshrrev_b32 v{t + 5}, 1, v{t + 2}')
    A.I(f'v_and_b32 v{t + 6}, 1, v{t + 1}')
    A.I(f'v_lshl_add_u32 v{t + 5}, v{t + 6}, 1, v{t + 5}')
    A.I(f'v_xor_b32 v{t + 6}, s{S_T0}, v{t + 5}')
    A.I(f'v_lshl_add_u32 v138, v{t + 6}, 5, v{t + 4}')
    A.I(f'v_xor_b32 v139, 32, v138')
    A.I(f's_and_b32 s{S_T0}, s{S_WV}, 2')
    A.I(f'v_xor_b32 v{t + 6}, s{S_T0}, v{t + 5}')
    A.I(f'v_lshl_add_u32 v140, v{t + 6}, 5, v{t + 4}')
    A.I(f'v_add_u32 v140, 16384, v140')
    A.I(f'v_xor_b32 v141, 32, v140')


def g1_w1_dma(A, s_k, first=False, plus=0):
    if first:
        g1_lane(A)
    w1 = f's[{S_W1}:{S_W1 + 3}]'
    A.I(f's_add_u32 s{S_T2}, s{s_k}, {plus}')
    A.I(f's_mul_i32 s{S_T0}, s{S_T2}, {128 * 3584}')
    A.I(f's_mul_i32 s{S_T1}, s{S_WV}, {8 * 3584}')
    A.I(f's_add_u32 s{S_T0}, s{S_T0}, s{S_T1}')
    A.I(f's_lshr_b32 s{S_T1}, s{S_J}, 3')
    A.I(f's_lshl_b32 s{S_T1}, s{S_T1}, 7')
    A.I(f's_add_u32 s{S_T0}, s{S_T0}, s{S_T1}')
    A.I(f's_and_b32 s{S_T1}, s{S_T2}, 1')
    A.I(f's_lshl_b32 s{S_T1}, s{S_T1}, 15')
    A.I(f's_lshl_b32 s{S_T2}, s{S_WV}, 10')
    A.I(f's_add_u32 s{S_T1}, s{S_T1}, s{S_T2}')
    for i in range(4):
        A.I(f's_add_u32 m0, s{S_T1}, {L_G1 + i * 4096}')
        A.I(f's_add_u32 s{S_T2}, s{S_T0}, {i * 32 * 3584}')
        A.I(f'buffer_load_dwordx4 v136, {w1}, s{S_T2} offen lds')


def g1_chunk(A, s_k, l_exit):
    ws = f's[{S_WS}:{S_WS + 3}]'
    A.I(f's_lshl_b32 s{S_T0}, s{s_k}, 17')
    A.I(f's_lshl_b32 s{S_T1}, s{S_WV}, 13')
    A.I(f's_add_u32 s{S_T0}, s{S_T0}, s{S_T1}')
    A.I(f's_and_b32 s{S_T1}, s{S_J}, 7')
    A.I(f's_lshl_b32 s{S_T1}, s{S_T1}, 7')
    A.I(f's_add_u32 s{S_T0}, s{S_T0}, s{S_T1}')
    A.I(f's_add_u32 s{S_T0}, s{S_T0}, 0x{WS_HP:x}')
    A.I(f's_and_b32 s{S_T3}, s{s_k}, 1')
    A.I(f's_lshl_b32 s{S_T3}, s{S_T3}, 15')
    A.I(f's_lshl_b32 s{S_T2}, s{S_WV}, 10')
    A.I(f's_add_u32 s{S_T1}, s{S_T3}, s{S_T2}')
    for i in range(4):
        A.I(f's_add_u32 m0, s{S_T1}, {L_G1 + 16384 + i * 4096}')
        A.I(f's_add_u32 s{S_T2}, s{S_T0}, {i * 32 * 1024}')
        A.I(f'buffer_load_dwordx4 v137, {ws}, s{S_T2} offen lds')
    AD = G1T
    for j in range(4):
        A.I(f'v_add_u32 v{AD + j}, s{S_T3}, v{138 + j}')
    l13, l14 = A.newlabel('L_13'), A.newlabel('L_14')
    A.I(f's_cmp_eq_u32 s{s_k}, 15')
    A.br(f's_cbranch_scc1 {l13}')
    g1_w1_dma(A, s_k, plus=1)
    A.br(f's_branch {l14}')
    A.label(l13)
    g2_dma(A, 13)
    A.label(l14)
    A.I('s_waitcnt vmcnt(4)')
    A.I('s_barrier')
    FR = G1T + 8

    def rd(ks):
        for j in range(4):
            for x in range(2):
                A.I(f'ds_read_b64_tr_b16 {v(FR + 16 * ks + 4 * j + 2 * x, 2)}, v{AD + j} offset:{L_G1 + (32 * ks + 4 * x) * 128}')

    rd(0)
    for ks in range(4):
        if ks < 3:
            rd(ks + 1)
            A.I('s_waitcnt lgkmcnt(8)')
        else:
            A.I('s_waitcnt lgkmcnt(0)')
        f = FR + 16 * ks
        for mbp in range(2):
            for nbp in range(2):
                d = G1ACC + (mbp * 2 + nbp) * 4
                A.I(f'v_mfma_f32_16x16x32_bf16 {v(d, 4)}, {v(f + 4 * mbp, 4)}, {v(f + 8 + 4 * nbp, 4)}, {v(d, 4)}')


def g1_epilogue(A, l_exit):
    import math
    ws, b1 = f's[{S_WS}:{S_WS + 3}]', f's[{S_B1}:{S_B1 + 3}]'
    ACC, BI, Z, Pk, TT, O = G1ACC, 150, 160, 168, 172, 188
    A.I(f's_lshr_b32 s{S_T2}, s{S_J}, 3')
    A.I(f's_lshl_b32 s{S_T0}, s{S_T2}, 7')
    A.I(f's_and_b32 s{S_T1}, s{S_WV}, 1')
    A.I(f's_lshl_b32 s{S_T1}, s{S_T1}, 6')
    A.I(f's_add_u32 s{S_T0}, s{S_T0}, s{S_T1}')
    A.I('v_lshrrev_b32 v144, 4, v0')
    A.I('v_lshlrev_b32 v144, 3, v144')
    A.I(f'buffer_load_dwordx2 v[146:147], v144, {b1}, s{S_T0} offen')
    A.I(f'buffer_load_dwordx2 v[148:149], v144, {b1}, s{S_T0} offen offset:32')
    A.I(f's_and_b32 s{S_T0}, s{S_J}, 7')
    A.I(f's_lshl_b32 s{S_T0}, s{S_T0}, 2')
    A.I(f's_and_b32 s{S_T1}, s{S_WV}, 2')
    A.I(f's_add_u32 s{S_T0}, s{S_T0}, s{S_T1}')
    A.I(f's_mul_i32 s{S_T0}, s{S_T0}, 56')
    A.I(f's_lshl_b32 s{S_T1}, s{S_T2}, 1')
    A.I(f's_add_u32 s{S_T0}, s{S_T0}, s{S_T1}')
    A.I(f's_and_b32 s{S_T1}, s{S_WV}, 1')
    A.I(f's_add_u32 s{S_T0}, s{S_T0}, s{S_T1}')
    A.I(f's_lshl_b32 s{S_T0}, s{S_T0}, 10')
    A.I(f's_add_u32 s{S_T0}, s{S_T0}, 0x{WS_U:x}')
    k1 = -2 * math.sqrt(2 / math.pi) * math.log2(math.e)
    A.I(f's_mov_b32 s{S_T2}, {f32(k1)}')
    A.I(f's_mov_b32 s{S_T3}, {f32(k1 * 0.044715)}')
    A.I('v_lshlrev_b32 v145, 4, v0')
    A.I('s_waitcnt vmcnt(0)')
    for i in range(4):
        A.I(f'v_lshlrev_b32 v{BI + 2 * i}, 16, v{146 + i}')
        A.I(f'v_and_b32 v{BI + 2 * i + 1}, 0xffff0000, v{146 + i}')
    for nbp in range(2):
        for mbp in range(2):
            for r in range(4):
                A.I(f'v_mov_b32 v{Z + 4 * mbp + r}, v{ACC + (mbp * 2 + nbp) * 4 + r}')
        T.round_bf16(A, Z, Pk)
        for i in range(8):
            A.I(f'v_add_f32 v{Z + i}, v{Z + i}, v{BI + i}')
        T.round_bf16(A, Z, Pk)
        for i in range(8):
            t = TT + i
            A.I(f'v_mul_f32 v{t}, v{Z + i}, v{Z + i}')
            A.I(f'v_mov_b32 v{t + 8}, s{S_T2}')
            A.I(f'v_fmac_f32 v{t + 8}, s{S_T3}, v{t}')
            A.I(f'v_mul_f32 v{t}, v{t + 8}, v{Z + i}')
            A.I(f'v_exp_f32 v{t}, v{t}')
        for i in range(8):
            A.I(f'v_add_f32 v{TT + i}, 1.0, v{TT + i}')
            A.I(f'v_rcp_f32 v{TT + i}, v{TT + i}')
        for i in range(8):
            A.I(f'v_mul_f32 v{Z + i}, v{Z + i}, v{TT + i}')
        o = O + 4 * nbp
        for i in range(4):
            A.I(f'v_cvt_pk_bf16_f32 v{o + i}, v{Z + 2 * i}, v{Z + 2 * i + 1}')
        A.I(f'buffer_store_dwordx4 {v(o, 4)}, v145, {ws}, s{S_T0} offen sc1')
        A.I(f's_add_u32 s{S_T0}, s{S_T0}, {56 * 1024}')
    A.I('s_waitcnt vmcnt(0)')
    A.I('s_barrier')
    l = A.newlabel('L_ue')
    A.I(f's_cmp_lg_u32 s{S_WV}, 0')
    A.br(f's_cbranch_scc1 {l}')
    A.I(f's_lshl_b32 s{S_T2}, s{S_G}, 7')
    A.I(f's_add_u32 s{S_T2}, s{S_T2}, 0x{F_LU:x}')
    A.I(f's_lshl_b32 s{S_T3}, s{S_G}, 2')
    A.I(f's_add_u32 s{S_T3}, s{S_T3}, 0x{F_GF + 256:x}')
    garrive(A, S_T2, S_T3, 144, l_exit)
    A.label(l)


G2_SLOT = {0: 0, 1: 1, 2: 2, 3: 3, 4: 4, 5: 0, 6: 1, 7: 2, 8: 3, 9: 4, 10: 0, 11: 1, 12: 2, 13: 0}
G2_READ = [[0, 1, 2, 3, 4], [5, 6, 7], [8, 9, 10, 11, 12], [13]]
G2_NEXT = [[5, 6, 7, 8, 9], [10, 11, 12], [], []]


def g2_slot(k):
    return 0 if k == 13 else L_W2 + 16384 * G2_SLOT[k]


def g2_areg(k):
    return (128 + 16 * k) if k < 8 else 16 * (k - 8)


S_PRE = 62


def g2_pre(A, rnd):
    t = G1T
    A.I(f'v_and_b32 v{t}, 15, v0')
    A.I(f'v_lshrrev_b32 v{t + 1}, 4, v0')
    A.I(f'v_lshrrev_b32 v{t + 2}, 2, v{t}')
    A.I(f'v_and_b32 v{t + 3}, 3, v{t}')
    A.I(f'v_lshl_add_u32 v{t + 2}, v{t + 1}, 2, v{t + 2}')
    A.I(f'v_bfe_u32 v{t + 1}, v{t + 2}, 1, 2')
    A.I(f'v_lshlrev_b32 v{t + 2}, 7, v{t + 2}')
    A.I(f'v_lshl_add_u32 v{t + 2}, v{t + 3}, 3, v{t + 2}')
    A.I(f'v_lshl_add_u32 v{t + 2}, v{t + 1}, 5, v{t + 2}')
    A.I(f's_lshl_b32 s{S_T0}, s{S_WV}, 12')
    A.I(f's_add_u32 s{S_T0}, s{S_T0}, {L_W2}')
    for j in range(4):
        A.I(f'v_xor_b32 v{t + 4 + j}, {32 * j}, v{t + 2}')
        A.I(f'v_add_u32 v{t + 4 + j}, s{S_T0}, v{t + 4 + j}')
        A.I(f'v_add_u32 v{t + 8 + j}, 49152, v{t + 4 + j}')
    A.I('s_waitcnt vmcnt(0)')
    A.I('s_barrier')
    for k in G2_READ[rnd]:
        so = 16384 * G2_SLOT[k]
        ab = t + 4
        if so >= 49152:
            so -= 49152
            ab = t + 8
        if k == 13:
            so = 0
            for j in range(4):
                A.I(f'v_subrev_u32 v{ab + j}, {L_W2}, v{ab + j}')
        for j in range(4):
            for x in range(2):
                A.I(f'ds_read_b64_tr_b16 {a(g2_areg(k) + 4 * j + 2 * x, 2)}, v{ab + j} offset:{so + 16 * x * 128}')
        A.I('s_waitcnt lgkmcnt(4)')
    A.I('s_waitcnt lgkmcnt(0)')
    if G2_NEXT[rnd]:
        A.I('s_barrier')
        for k in G2_NEXT[rnd]:
            g2_dma(A, k)
    A.I(f's_mov_b32 s{S_PRE}, {rnd + 1}')


def g2_setup(A):
    A.I(f's_load_dwordx2 s[16:17], s[0:1], {KA_W2}')
    A.I('s_waitcnt lgkmcnt(0)')
    make_srd(A, S_W2, 16, 1792 * 4096)
    A.I(f's_load_dwordx4 s[16:19], s[0:1], {KA_B2}')
    A.I('s_waitcnt lgkmcnt(0)')
    t = G1T
    A.I(f'v_lshrrev_b32 v{t}, 3, v0')
    A.I(f'v_and_b32 v{t + 1}, 7, v0')
    A.I(f'v_lshrrev_b32 v{t + 2}, 4, v0')
    A.I(f'v_lshlrev_b32 v{t + 2}, 1, v{t + 2}')
    A.I(f'v_xor_b32 v{t + 1}, v{t + 1}, v{t + 2}')
    A.I(f'v_lshlrev_b32 v{t + 1}, 4, v{t + 1}')
    A.I(f'v_lshl_add_u32 v142, v{t}, 12, v{t + 1}')
    A.I(f's_lshl_b32 s{S_BO2}, s{S_WV}, 15')
    A.I(f's_lshr_b32 s{S_T0}, s{S_J2}, 3')
    A.I(f's_lshl_b32 s{S_T0}, s{S_T0}, 7')
    A.I(f's_add_u32 s{S_BO2}, s{S_BO2}, s{S_T0}')
    A.I(f's_lshl_b32 s{S_LB2}, s{S_WV}, 10')


def g2_dma(A, k, vr=142):
    w2 = f's[{S_W2}:{S_W2 + 3}]'
    for i in range(4):
        A.I(f's_add_u32 m0, s{S_LB2}, {g2_slot(k) + i * 4096}')
        A.I(f's_add_u32 s{S_T0}, s{S_BO2}, {(k * 128 + i * 32) * 4096}')
        A.I(f'buffer_load_dwordx4 v{vr}, {w2}, s{S_T0} offen lds')


def g2_touch(A, k0):
    w2 = f's[{S_W2}:{S_W2 + 3}]'
    A.I('v_lshlrev_b32 v143, 12, v0')
    A.I(f's_lshr_b32 s{S_T0}, s{S_J2}, 3')
    A.I(f's_lshl_b32 s{S_T0}, s{S_T0}, 7')
    A.I(f's_lshl_b32 s{S_T1}, s{S_WV}, 18')
    A.I(f's_add_u32 s{S_T0}, s{S_T0}, s{S_T1}')
    for r0 in range(k0 * 128, 1792, 256):
        A.I(f's_add_u32 s{S_T1}, s{S_T0}, {r0 * 4096}')
        A.I(f'buffer_load_dword v5, v143, {w2}, s{S_T1} offen')


def g2_main(A, l_exit):
    ws = f's[{S_WS}:{S_WS + 3}]'
    S_O, S_B2 = S_W1, S_B1
    tstamp(A, 20, 8)
    for rnd in range(4):
        l = A.newlabel('L_pre')
        A.I(f's_cmp_gt_u32 s{S_PRE}, {rnd}')
        A.br(f's_cbranch_scc1 {l}')
        g2_pre(A, rnd)
        A.label(l)
        A.forget_loads()
    A.I('s_waitcnt lgkmcnt(0)')
    make_srd(A, S_B2, 16, 4096)
    make_srd(A, S_O, 18, 2048 * 1024)
    b2, out = f's[{S_B2}:{S_B2 + 3}]', f's[{S_O}:{S_O + 3}]'
    S_AO, S_EO = 36, 37
    A.I(f's_and_b32 s{S_T0}, s{S_J2}, 7')
    A.I(f's_mul_i32 s{S_AO}, s{S_T0}, {4 * 56 * 1024}')
    A.I(f's_lshl_b32 s{S_T1}, s{S_WV}, 10')
    A.I(f's_add_u32 s{S_AO}, s{S_AO}, s{S_T1}')
    A.I(f's_add_u32 s{S_AO}, s{S_AO}, 0x{WS_U:x}')
    A.I(f's_lshl_b32 s{S_T0}, s{S_T0}, 2')
    A.I(f's_add_u32 s{S_T0}, s{S_T0}, s{S_WV}')
    A.I(f's_lshr_b32 s{S_T1}, s{S_J2}, 3')
    A.I(f's_lshl_b32 s{S_EO}, s{S_T1}, 16')
    A.I(f's_lshl_b32 s{S_T0}, s{S_T0}, 5')
    A.I(f's_add_u32 s{S_EO}, s{S_EO}, s{S_T0}')
    A.I('v_lshlrev_b32 v5, 4, v0')
    A.I('v_and_b32 v1, 15, v0')
    A.I('v_lshrrev_b32 v2, 4, v0')
    A.I('v_lshlrev_b32 v3, 10, v1')
    A.I('v_lshl_add_u32 v3, v2, 3, v3')
    A.I('v_lshlrev_b32 v4, 1, v1')
    A.I(f's_lshl_b32 s{S_T1}, s{S_T1}, 7')
    HB, BB, ACC, AR = 10, 18, 24, 88
    NA = 42
    A.I(f's_mov_b32 s39, s{S_T1}')
    masks = seg_masks()
    late = [g for g in range(7) if masks[g] >> 61]
    earlyg = [g for g in range(7) if g not in late]
    korder = [k for g in earlyg + late for k in (2 * g, 2 * g + 1)]
    nearly = 8 * len(earlyg)
    S_FL = 38
    A.I(f's_lshl_b32 s{S_FL}, s{S_G}, 9')
    A.I(f's_add_u32 s{S_FL}, s{S_FL}, 0x{F_GF + 256:x}')

    def wait_groups(gs):
        l0 = A.newlabel('L_g20')
        A.I(f's_cmp_lg_u32 s{S_WV}, 0')
        A.br(f's_cbranch_scc1 {l0}')
        A.check = False
        poll_flags(A, S_FL, 7, 1, 6, 7, l_exit, sleep=1, mask=sum(1 << g for g in gs))
        A.check = True
        A.label(l0)
        A.I('s_barrier')

    tstamp(A, 21, 8)
    wait_groups(earlyg)
    tstamp(A, 5, 8)
    vmq = []

    def aload(i):
        k, db = korder[i >> 2], i & 3
        off = db * 56 * 1024 + k * 4096
        A.I(f's_add_u32 s{S_T1}, s{S_AO}, {off}')
        A.I(f'buffer_load_dwordx4 {v(AR + 4 * (i % NA), 4)}, v5, {ws}, s{S_T1} offen')
        vmq.append(('a', i))

    def need(names):
        idx = max([i for i, p in enumerate(vmq) if p in names] + [-1])
        if idx >= 0:
            A.I(f's_waitcnt vmcnt({len(vmq) - 1 - idx})')
            del vmq[:idx + 1]

    for i in range(nearly):
        aload(i)
    for nb in range(4):
        A.I(f's_add_u32 s{S_T0}, s{S_EO}, 0x{WS_H + nb * 16384:x}')
        A.I(f'buffer_load_dwordx2 {v(HB + 2 * nb, 2)}, v3, {ws}, s{S_T0} offen')
        vmq.append(('h', 0))
        A.I(f'buffer_load_ushort v{BB + nb}, v4, {b2}, s39 offen offset:{32 * nb}')
        vmq.append(('h', 0))
    saved = (list(A.vm), list(A.lg))
    wait_groups(late)
    tstamp(A, 19, 8)
    A.vm, A.lg = saved
    for i in range(nearly, NA):
        aload(i)
    for i in range(56):
        k, db = korder[i >> 2], i & 3
        need([('a', i)])
        for nb in range(4):
            d = ACC + 16 * db + 4 * nb
            c = '0' if i < 4 else v(d, 4)
            A.I(f'v_mfma_f32_16x16x32_bf16 {v(d, 4)}, {v(AR + 4 * (i % NA), 4)}, {a(g2_areg(k) + 4 * nb, 4)}, {c}')
        if i + NA < 56:
            aload(i + NA)
    A.I(f's_lshl_b32 s{S_T0}, s{S_WV}, 12')
    A.I(f'v_add_u32 v6, s{S_T0}, v5')
    for db in range(4):
        for nb in range(4):
            A.I(f'ds_write_b128 v6, {v(ACC + 16 * db + 4 * nb, 4)} offset:{db * 16384 + nb * 1024}')
        A.I('s_waitcnt lgkmcnt(8)')
    A.I(f's_lshl_b32 s{S_T0}, s{S_WV}, 14')
    A.I(f'v_add_u32 v6, s{S_T0}, v5')
    A.I('s_waitcnt lgkmcnt(0)')
    A.I('s_barrier')
    for j in range(16):
        A.I(f'ds_read_b128 {v(ACC + 4 * j, 4)}, v6 offset:{1024 * j}')
        if j == 11:
            A.I('s_waitcnt lgkmcnt(8)')
    A.I('s_waitcnt lgkmcnt(0) vmcnt(0)')
    tstamp(A, 18, 8)
    for r in range(0, 16, 2):
        A.I(f'v_pk_add_f32 {v(ACC + r, 2)}, {v(ACC + r, 2)}, {v(ACC + 16 + r, 2)}')
        A.I(f'v_pk_add_f32 {v(ACC + 32 + r, 2)}, {v(ACC + 32 + r, 2)}, {v(ACC + 48 + r, 2)}')
    for r in range(0, 16, 2):
        A.I(f'v_pk_add_f32 {v(ACC + r, 2)}, {v(ACC + r, 2)}, {v(ACC + 32 + r, 2)}')
    for nb in range(4):
        d = ACC + 4 * nb
        t = 88
        A.I(f'v_cvt_pk_bf16_f32 v{t}, v{d}, v{d + 1}')
        A.I(f'v_cvt_pk_bf16_f32 v{t + 1}, v{d + 2}, v{d + 3}')
        A.I(f'v_lshlrev_b32 v{t + 2}, 16, v{BB + nb}')
        for i in range(2):
            A.I(f'v_lshlrev_b32 v{d + 2 * i}, 16, v{t + i}')
            A.I(f'v_and_b32 v{d + 2 * i + 1}, 0xffff0000, v{t + i}')
        for r in range(4):
            A.I(f'v_add_f32 v{d + r}, v{d + r}, v{t + 2}')
        A.I(f'v_cvt_pk_bf16_f32 v{t}, v{d}, v{d + 1}')
        A.I(f'v_cvt_pk_bf16_f32 v{t + 1}, v{d + 2}, v{d + 3}')
        for i in range(2):
            A.I(f'v_lshlrev_b32 v{d + 2 * i}, 16, v{t + i}')
            A.I(f'v_and_b32 v{d + 2 * i + 1}, 0xffff0000, v{t + i}')
            A.I(f'v_lshlrev_b32 v{t + 2}, 16, v{HB + 2 * nb + i}')
            A.I(f'v_and_b32 v{t + 3}, 0xffff0000, v{HB + 2 * nb + i}')
            A.I(f'v_add_f32 v{d + 2 * i}, v{d + 2 * i}, v{t + 2}')
            A.I(f'v_add_f32 v{d + 2 * i + 1}, v{d + 2 * i + 1}, v{t + 3}')
        o = 92 + 2 * nb
        A.I(f'v_cvt_pk_bf16_f32 v{o}, v{d}, v{d + 1}')
        A.I(f'v_cvt_pk_bf16_f32 v{o + 1}, v{d + 2}, v{d + 3}')
        A.I(f's_add_u32 s{S_T0}, s{S_EO}, {nb * 16384}')
        A.I(f'buffer_store_dwordx2 {v(o, 2)}, v3, {out}, s{S_T0} offen')


def red4(A, s_seg, srd_x, l_exit):
    ws = f's[{S_WS}:{S_WS + 3}]'
    B, Z, Pk, XR, t0, t1, va = 192, 144, 152, 12, 160, 161, 162
    A.I(f's_lshl_b32 s{S_T2}, s{s_seg}, 5')
    A.I(f's_add_u32 s{S_T2}, s{S_T2}, s{S_H}')
    A.I(f's_lshl_b32 s{S_T0}, s{S_OPS}, 5')
    A.I(f's_add_u32 s{S_T0}, s{S_T0}, s{S_H}')
    A.I(f's_lshl_b32 s{S_T0}, s{S_T0}, 15')
    A.I(f's_xor_b32 s{S_OPS}, s{S_OPS}, 1')
    A.I(f's_lshl_b32 s{S_T1}, s{S_WV}, 13')
    A.I(f's_add_u32 s{S_T0}, s{S_T0}, s{S_T1}')
    A.I(f's_add_u32 s{S_T0}, s{S_T0}, 0x{WS_OP:x}')
    A.I(f's_add_u32 s{S_T1}, s{S_T0}, 4096')
    for hh in range(8):
        so = S_T0 if hh < 4 else S_T1
        A.I(f'buffer_load_dwordx4 {v(B + 4 * hh, 4)}, v1, {ws}, s{so} offen offset:{1024 * (hh & 3)} sc1')
    A.I(f's_lshl_b32 s{S_T3}, s{S_T2}, 10')
    A.I(f'v_lshrrev_b32 v{va}, 2, v0')
    A.I(f'v_lshlrev_b32 v{va}, 6, v{va}')
    A.I(f'v_and_b32 v{t0}, 3, v0')
    A.I(f'v_lshl_add_u32 v{va}, v{t0}, 3, v{va}')
    for hh in range(8):
        A.I(f's_waitcnt vmcnt({7 - hh})')
        for i in range(4):
            r = B + 4 * hh + i
            if hh == 0:
                A.I(f'v_lshlrev_b32 v{Z + 2 * i}, 16, v{r}')
                A.I(f'v_and_b32 v{Z + 2 * i + 1}, 0xffff0000, v{r}')
            else:
                A.I(f'v_lshlrev_b32 v{t0}, 16, v{r}')
                A.I(f'v_and_b32 v{t1}, 0xffff0000, v{r}')
                A.I(f'v_add_f32 v{Z + 2 * i}, v{Z + 2 * i}, v{t0}')
                A.I(f'v_add_f32 v{Z + 2 * i + 1}, v{Z + 2 * i + 1}, v{t1}')
    A.I(f's_lshl_b32 s{S_T0}, s{S_WV}, 11')
    A.I(f'v_add_u32 v{t0}, s{S_T0}, v1')
    A.I(f'v_add_u32 v{t0}, {L_RED}, v{t0}')
    A.I(f'ds_write_b128 v{t0}, {v(Z, 4)}')
    A.I(f'ds_write_b128 v{t0}, {v(Z + 4, 4)} offset:1024')
    A.I('s_waitcnt lgkmcnt(0) vmcnt(0)')
    A.I('s_barrier')
    ts_tok(A, 15)
    l = A.newlabel('L_r4')
    A.I(f's_cmp_lg_u32 s{S_WV}, 0')
    A.br(f's_cbranch_scc1 {l}')
    for w_ in range(1, 4):
        for j in range(2):
            A.I(f'ds_read_b128 {v(B + 8 * w_ + 4 * j, 4)}, v{t0} offset:{2048 * w_ + 1024 * j}')
    A.I('s_waitcnt lgkmcnt(0)')
    for w_ in range(1, 4):
        for i in range(8):
            A.I(f'v_add_f32 v{Z + i}, v{Z + i}, v{B + 8 * w_ + i}')
    T.round_bf16(A, Z, Pk)
    for i in range(4):
        A.I(f'v_lshlrev_b32 v{t0}, 16, v{XR + i}')
        A.I(f'v_and_b32 v{t1}, 0xffff0000, v{XR + i}')
        A.I(f'v_add_f32 v{Z + 2 * i}, v{Z + 2 * i}, v{t0}')
        A.I(f'v_add_f32 v{Z + 2 * i + 1}, v{Z + 2 * i + 1}, v{t1}')
    T.round_bf16(A, Z, Pk)
    A.I(f's_add_u32 s{S_T0}, s{S_T3}, 0x{WS_H:x}')
    A.I(f'buffer_store_dwordx2 {v(Pk, 2)}, v{va}, {ws}, s{S_T0} offen sc1')
    A.I(f'buffer_store_dwordx2 {v(Pk + 2, 2)}, v{va}, {ws}, s{S_T0} offen offset:32 sc1')
    T.ln_regs(A, Z, t0, t1)
    T.round_bf16(A, Z, XR)
    T.ln_regs(A, Z, t0, t1)
    for i in range(4):
        A.I(f'v_cvt_pk_bf16_f32 v{XR + i}, v{Z + 2 * i}, v{Z + 2 * i + 1}')
    A.I(f's_add_u32 s{S_T0}, s{S_T3}, 0x{WS_HP:x}')
    A.I(f'buffer_store_dwordx2 {v(XR, 2)}, v{va}, {ws}, s{S_T0} offen sc1')
    A.I(f'buffer_store_dwordx2 {v(XR + 2, 2)}, v{va}, {ws}, s{S_T0} offen offset:32 sc1')
    A.I(f's_lshl_b32 s{S_T2}, s{s_seg}, 7')
    A.I(f's_add_u32 s{S_T2}, s{S_T2}, 0x{F_LH:x}')
    A.I(f's_lshl_b32 s{S_T3}, s{s_seg}, 2')
    A.I(f's_add_u32 s{S_T3}, s{S_T3}, 0x{F_GF:x}')
    A.I('s_waitcnt vmcnt(0)')
    garrive(A, S_T2, S_T3, t0, l_exit)
    A.label(l)


if __name__ == '__main__':
    A = Asm()
    nm = NAME + '_kernel'
    mega_kernel(A, nm)
    hd = header([(nm, 256, 256, R.L_TOTAL)])
    if os.environ.get('FINAL'):
        hd = hd.replace(f'@launch kernel={nm} ', '@launch ')
    txt = hd + A.text() + '.section .rodata,"a"\n' + kernel_desc(nm, 512, 256)
    out = os.environ.get('OUT', 'm3.s')
    open(out, 'w').write(txt)
    print(len(txt))
```

```python
import os
os.environ.setdefault('PB_DELAY', '7'); os.environ.setdefault('AF_DELAY', '2'); os.environ.setdefault('AF_GAP', '2')
from common import *
import tok2 as T
import rec9 as R
from tok2 import f32, S_WS, S_W, S_X, S_H, S_WV, S_G, S_T0, S_T1, S_T2, S_T3

S_DBG = 84
S_SPIN = R.S_SPIN
S_XCC = 83
S_LNO = 82
F_OPC = WS_FLAG + 0x4000
F_LH = WS_FLAG + 0x6000
F_LU = WS_FLAG + 0x8000
F_GF = WS_FLAG + 0x8400
S_FAST = S_XCC
D_GB, D_OVF, D_WEIRD, D_TS, D_TI = 128, 36, 40, 192, 196
S_J, S_BO2, S_LB2 = 100, 101, 3
S_J2 = 63
S_W1, S_B1, S_W2 = 88, 92, 96
NEARLY = int(os.environ.get('NEARLY', 2))
STAG = int(os.environ.get('STAG', 4))
STAG0 = int(os.environ.get('STAG0', 1))
TIMING = bool(os.environ.get('TIMING'))
OPRING = int(os.environ.get('OPRING', 0))
WARM = int(os.environ.get('WARM', 0))
DIAG = bool(os.environ.get('DIAG'))
TAIL_BYTES = int(os.environ.get('TAIL_BYTES', 24576))
CODET = int(os.environ.get('CODET', 0))
CODE_BYTES = int(os.environ.get('CODE_BYTES', 57344))
PLF = os.environ.get('PLF', 'sc1').replace('_', ' ')


def lane0(A, body):
    A.I('s_mov_b64 exec, 1')
    body()
    A.I('s_mov_b64 exec, -1')


def poll_eq(A, srd, s_off, imm, expect, vt, l_exit, sleep=0):
    l = A.newlabel('L_poll')
    A.label(l)
    so = f's{s_off}' if s_off is not None else '0'
    A.I(f'buffer_load_dword v{vt}, off, {srd}, {so} offset:{imm} sc1')
    A.I(f's_sub_u32 s{S_SPIN}, s{S_SPIN}, 1')
    A.I(f's_cbranch_scc1 {l_exit}')
    A.I('s_waitcnt vmcnt(0)')
    A.I(f'v_readfirstlane_b32 s{S_T0}, v{vt}')
    ld = A.newlabel('L_pd')
    A.I(f's_cmp_eq_u32 s{S_T0}, {expect}')
    A.I(f's_cbranch_scc1 {ld}')
    if sleep:
        A.I(f's_sleep {sleep}')
    A.br(f's_branch {l}')
    A.label(ld)


def poll_flags(A, s_off, nlanes, width, vt, va, l_exit, sleep=0, mask=None):
    ws = f's[{S_WS}:{S_WS + 3}]'
    l, ld = A.newlabel('L_pf'), A.newlabel('L_pfd')
    A.I(f'v_lshlrev_b32 v{va}, {2 if width == 1 else 3}, v0')
    assert nlanes <= 32
    A.I(f's_mov_b32 exec_lo, 0x{((1 << nlanes) - 1) if mask is None else mask:x}')
    A.I('s_mov_b32 exec_hi, 0')
    A.label(l)
    if width == 1:
        A.I(f'buffer_load_dword v{vt}, v{va}, {ws}, s{s_off} offen {PLF}')
    else:
        A.I(f'buffer_load_dwordx2 {v(vt, 2)}, v{va}, {ws}, s{s_off} offen {PLF}')
    A.I(f's_sub_u32 s{S_SPIN}, s{S_SPIN}, 1')
    A.I(f's_cbranch_scc1 {l_exit}')
    A.I('s_waitcnt vmcnt(0)')
    if width == 2:
        A.I(f'v_min_u32 v{vt}, v{vt}, v{vt + 1}')
    A.I(f'v_cmp_eq_u32 vcc, 0, v{vt}')
    A.I(f's_cbranch_vccz {ld}')
    if sleep:
        A.I(f's_sleep {sleep}')
    A.br(f's_branch {l}')
    A.label(ld)
    A.I('s_mov_b64 exec, -1')


def flag_store(A, s_addr, vt):
    ws = f's[{S_WS}:{S_WS + 3}]'
    l1, l2 = A.newlabel('L_fs'), A.newlabel('L_fs')
    A.I(f'v_mov_b32 v{vt}, 1')
    A.I('s_mov_b64 exec, 1')
    A.I(f's_cmp_eq_u32 s{S_FAST}, 0')
    A.br(f's_cbranch_scc1 {l1}')
    A.I(f'buffer_store_dword v{vt}, off, {ws}, s{s_addr}')
    A.br(f's_branch {l2}')
    A.label(l1)
    A.I(f'buffer_store_dword v{vt}, off, {ws}, s{s_addr} sc1')
    A.label(l2)
    A.I('s_mov_b64 exec, -1')


def garrive(A, s_line, s_goff, vt, l_exit):
    ws = f's[{S_WS}:{S_WS + 3}]'
    A.I(f's_lshl_b32 s{S_T1}, s{S_H}, 2')
    A.I(f's_add_u32 s{S_T1}, s{S_T1}, s{s_line}')
    flag_store(A, S_T1, vt)
    l = A.newlabel('L_ga')
    A.I(f's_cmp_lg_u32 s{S_H}, 0')
    A.br(f's_cbranch_scc1 {l}')
    poll_flags(A, s_line, 32, 1, vt, vt + 1, l_exit)
    A.I(f'v_lshlrev_b32 v{vt + 1}, 9, v0')
    A.I(f'v_mov_b32 v{vt}, 1')
    A.I('s_mov_b64 exec, 0xff')
    A.I(f'buffer_store_dword v{vt}, v{vt + 1}, {ws}, s{s_goff} offen sc1')
    A.I('s_mov_b64 exec, -1')
    A.label(l)


def wg_poll_eq(A, srd, s_off, imm, expect, vt, l_exit, sleep=0):
    l0 = A.newlabel('L_wgp')
    A.I(f's_cmp_lg_u32 s{S_WV}, 0')
    A.br(f's_cbranch_scc1 {l0}')
    poll_eq(A, srd, s_off, imm, expect, vt, l_exit, sleep)
    A.label(l0)
    A.I('s_barrier')


L_TS = 160000


def tstamp(A, idx, r=14):
    if not TIMING:
        return
    l = A.newlabel('L_ts')
    A.I(f's_cmp_lg_u32 s{S_WV}, 0')
    A.br(f's_cbranch_scc1 {l}')
    chk = A.check
    A.check = False
    A.I('s_memrealtime s[80:81]')
    A.I('s_waitcnt lgkmcnt(0)')
    if idx in (0, 1, 2, 7, 8):
        A.I(f'v_mov_b32 v{r}, s80')
        A.I(f'v_mov_b32 v{r + 1}, s81')
        A.I(f's_lshl_b32 s80, s{S_G}, 5')
        A.I(f's_add_u32 s80, s80, s{S_H}')
        A.I('s_lshl_b32 s80, s80, 8')
        A.I(f's_add_u32 s80, s80, 0x{WS_DBG:x}')
        A.I(f'buffer_store_dwordx2 {v(r, 2)}, off, s[{S_WS}:{S_WS + 3}], s80 offset:{8 * idx}')
    else:
        A.I(f'v_mov_b32 v{r}, s80')
        A.I(f'v_mov_b32 v{r + 1}, {L_TS + 8 * idx}')
        A.I(f'ds_write_b32 v{r + 1}, v{r}')
        A.I(f'v_mov_b32 v{r}, s81')
        A.I(f'ds_write_b32 v{r + 1}, v{r} offset:4')
        if idx == 6:
            A.I(f'v_lshlrev_b32 v{r}, 2, v0')
            A.I(f'v_add_u32 v{r + 1}, {L_TS}, v{r}')
            A.I('s_waitcnt lgkmcnt(0)')
            A.I(f'ds_read_b32 v{r + 1}, v{r + 1}')
            A.I(f's_lshl_b32 s80, s{S_G}, 5')
            A.I(f's_add_u32 s80, s80, s{S_H}')
            A.I('s_lshl_b32 s80, s80, 8')
            A.I(f's_add_u32 s80, s80, 0x{WS_DBG + 0x40000:x}')
            A.I('s_waitcnt lgkmcnt(0)')
            A.I(f'buffer_store_dword v{r + 1}, v{r}, s[{S_WS}:{S_WS + 3}], s80 offen')
    A.check = chk
    A.label(l)


def mega_kernel(A, name):
    kernel_begin(A, name)
    l_exit = A.newlabel('L_exit')
    P_WS, P_DBG, P_Q, P_K, P_V, P_O, P_M0, P_X = 16, 18, 20, 22, 24, 26, 28, 30
    ws, dbg, sx = f's[{S_WS}:{S_WS + 3}]', f's[{S_DBG}:{S_DBG + 3}]', f's[{S_X}:{S_X + 3}]'
    A.I('s_cmp_ge_u32 s2, 256')
    A.I(f's_cbranch_scc1 {l_exit}')
    if DIAG:
        A.I('s_memrealtime s[58:59]')
    A.I(f's_load_dwordx2 s[{P_WS}:{P_WS + 1}], s[0:1], {KA_WS}')
    A.I(f's_load_dwordx2 s[{P_DBG}:{P_DBG + 1}], s[0:1], {KA_DBG}')
    A.I(f's_load_dwordx4 s[{P_Q}:{P_Q + 3}], s[0:1], {KA_WQ}')
    A.I(f's_load_dwordx4 s[{P_V}:{P_V + 3}], s[0:1], {KA_WV}')
    A.I(f's_load_dwordx2 s[{P_M0}:{P_M0 + 1}], s[0:1], {KA_MEM0}')
    A.I(f's_load_dwordx2 s[{P_X}:{P_X + 1}], s[0:1], {KA_X}')
    A.I('v_lshrrev_b32 v1, 6, v0')
    A.I('v_and_b32 v0, 63, v0')
    A.I(f'v_readfirstlane_b32 s{S_WV}, v1')
    A.I(f's_getreg_b32 s{S_XCC}, hwreg(HW_REG_XCC_ID)')
    A.I(f's_mov_b32 s{S_SPIN}, 0x80000')
    A.I('s_waitcnt lgkmcnt(0)')
    make_srd(A, S_WS, P_WS, WS_SIZE)
    make_srd(A, S_DBG, P_DBG, 256)
    make_srd(A, S_X, P_X, 2048 * 1024)
    LX, LF = 32, 48
    lnl = A.newlabel('L_l0')
    A.I('v_and_b32 v24, 15, v0')
    A.I('v_lshrrev_b32 v25, 4, v0')
    A.I('s_cmp_ge_u32 s2, 128')
    A.br(f's_cbranch_scc1 {lnl}')
    A.I('v_lshlrev_b32 v26, 10, v24')
    A.I('v_lshl_add_u32 v26, v25, 4, v26')
    A.I(f's_lshl_b32 s{S_LNO}, s2, 14')
    A.I(f's_lshl_b32 s{S_T0}, s{S_WV}, 8')
    A.I(f's_add_u32 s{S_T0}, s{S_T0}, s{S_LNO}')
    for i in range(4):
        A.I(f'buffer_load_dwordx4 {v(LX + 4 * i, 4)}, v26, {sx}, s{S_T0} offen offset:{64 * i}')
    A.label(lnl)
    A.forget_loads()
    if CODET:
        lct = A.newlabel('L_ct')
        A.I(f's_cmp_lg_u32 s{S_WV}, 3')
        A.br(f's_cbranch_scc1 {lct}')
        A.I('s_cmp_ge_u32 s2, 16')
        A.br(f's_cbranch_scc1 {lct}')
        code_touch(A, name, l_exit, CODE_BYTES, 255, 3)
        A.label(lct)
    lr = A.newlabel('L_role_done')
    A.I(f's_cmp_lg_u32 s{S_WV}, 0')
    A.br(f's_cbranch_scc1 {lr}')
    A.I('s_mov_b64 exec, 1')
    A.I('v_mov_b32 v2, 1')
    lw = A.newlabel('L_nw')
    A.I(f's_cmp_lt_u32 s{S_XCC}, 8')
    A.br(f's_cbranch_scc1 {lw}')
    A.I(f'buffer_atomic_or v2, off, {dbg}, 0 offset:{D_WEIRD}')
    A.I('s_waitcnt vmcnt(0)')
    A.label(lw)
    A.I(f's_and_b32 s{S_G}, s{S_XCC}, 7')
    A.I(f's_lshl_b32 s{S_T0}, s{S_G}, 2')
    A.I(f'buffer_atomic_add v2, off, {dbg}, s{S_T0} sc0')
    A.I('s_waitcnt vmcnt(0)')
    A.I(f'v_readfirstlane_b32 s{S_H}, v2')
    lok = A.newlabel('L_rok')
    A.I(f's_cmp_lt_u32 s{S_H}, 32')
    A.br(f's_cbranch_scc1 {lok}')
    A.I('v_mov_b32 v2, 1')
    A.I(f'buffer_atomic_add v2, off, {dbg}, 0 offset:{D_OVF} sc0')
    A.I('s_waitcnt vmcnt(0)')
    A.I(f'v_readfirstlane_b32 s{S_T3}, v2')
    lo = A.newlabel('L_ovf')
    A.label(lo)
    A.I(f'buffer_load_dwordx4 v[4:7], off, {dbg}, 0 sc1')
    A.I(f'buffer_load_dwordx4 v[8:11], off, {dbg}, 0 offset:16 sc1')
    A.I(f's_sub_u32 s{S_SPIN}, s{S_SPIN}, 1')
    A.I(f's_cbranch_scc1 {l_exit}')
    A.I('s_waitcnt vmcnt(0)')
    A.I(f's_mov_b32 s{S_T0}, 0')
    for i in range(8):
        A.I(f'v_readfirstlane_b32 s{64 + i}, v{4 + i}')
    for i in range(8):
        A.I(f's_add_u32 s{S_T0}, s{S_T0}, s{64 + i}')
    A.I(f's_cmp_lt_u32 s{S_T0}, 256')
    A.br(f's_cbranch_scc1 {lo}')
    for g in range(8):
        A.I(f's_min_u32 s{S_T0}, s{64 + g}, 32')
        A.I(f's_sub_u32 s{S_T1}, 32, s{S_T0}')
        A.I(f's_mov_b32 s{S_G}, {g}')
        A.I(f's_add_u32 s{S_H}, s{S_T0}, s{S_T3}')
        A.I(f's_cmp_lt_u32 s{S_T3}, s{S_T1}')
        A.br(f's_cbranch_scc1 {lok}')
        A.I(f's_sub_u32 s{S_T3}, s{S_T3}, s{S_T1}')
    A.I(f's_mov_b32 s{S_G}, 0x100')
    A.I(f's_mov_b32 s{S_H}, 0')
    A.label(lok)
    A.I(f's_lshl_b32 s{S_T0}, s{S_G}, 8')
    A.I(f's_or_b32 s{S_T0}, s{S_T0}, s{S_H}')
    A.I(f'v_mov_b32 v2, s{S_T0}')
    A.I('v_mov_b32 v3, 0')
    A.I('ds_write_b32 v3, v2')
    A.I('s_waitcnt lgkmcnt(0)')
    A.I('s_mov_b64 exec, -1')
    A.label(lr)
    lno, lnd = A.newlabel('L_lno'), A.newlabel('L_lnd')
    A.I('s_cmp_ge_u32 s2, 128')
    A.br(f's_cbranch_scc1 {lno}')
    A.I(f's_lshl_b32 s{S_T0}, s{S_WV}, 2')
    A.I('v_lshlrev_b32 v27, 4, v24')
    A.I(f'v_add_u32 v26, s{S_T0}, v27')
    A.I('s_waitcnt vmcnt(0)')
    for i in range(16):
        A.I(f'v_lshlrev_b32 v{LF + 2 * i}, 16, v{LX + i}')
        A.I(f'v_and_b32 v{LF + 2 * i + 1}, 0xffff0000, v{LX + i}')
    A.I(f'v_add_f32 v28, v{LF}, v{LF + 1}')
    A.I(f'v_add_f32 v29, v{LF + 2}, v{LF + 3}')
    for i in range(4, 32, 2):
        A.I(f'v_add_f32 v28, v28, v{LF + i}')
        A.I(f'v_add_f32 v29, v29, v{LF + i + 1}')
    A.I('v_add_f32 v28, v28, v29')
    T.xreduce(A, 'v_add_f32', 28, 29)
    A.I('ds_write_b32 v26, v28 offset:64')
    A.I('s_waitcnt lgkmcnt(0)')
    A.I('s_barrier')
    A.I('v_mov_b32 v3, 0')
    A.I('ds_read_b32 v2, v3')
    A.I('ds_read_b128 v[28:31], v27 offset:64')
    A.I('s_waitcnt lgkmcnt(0)')
    A.I('v_add_f32 v28, v28, v29')
    A.I('v_add_f32 v30, v30, v31')
    A.I('v_add_f32 v28, v28, v30')
    A.I(f'v_mul_f32 v28, {f32(1 / 512)}, v28')
    A.I('v_mov_b32 v29, 0')
    A.I('v_mov_b32 v30, 0')
    for i in range(0, 32, 2):
        A.I(f'v_sub_f32 v{LF + i}, v{LF + i}, v28')
        A.I(f'v_sub_f32 v{LF + i + 1}, v{LF + i + 1}, v28')
        A.I(f'v_fmac_f32 v29, v{LF + i}, v{LF + i}')
        A.I(f'v_fmac_f32 v30, v{LF + i + 1}, v{LF + i + 1}')
    A.I('v_add_f32 v29, v29, v30')
    T.xreduce(A, 'v_add_f32', 29, 30)
    A.I('ds_write_b32 v26, v29 offset:320')
    A.I('s_waitcnt lgkmcnt(0)')
    A.I('s_barrier')
    A.I('ds_read_b128 v[28:31], v27 offset:320')
    A.I('s_waitcnt lgkmcnt(0)')
    A.I('v_add_f32 v28, v28, v29')
    A.I('v_add_f32 v30, v30, v31')
    A.I('v_add_f32 v28, v28, v30')
    A.I(f'v_mov_b32 v29, {f32(1e-5)}')
    A.I(f'v_fmac_f32 v29, {f32(1 / 512)}, v28')
    A.I('v_rsq_f32 v29, v29')
    A.I('v_lshlrev_b32 v26, 4, v0')
    A.I(f's_lshl_b32 s{S_T0}, s{S_WV}, 12')
    A.I(f's_add_u32 s{S_T0}, s{S_T0}, s{S_LNO}')
    A.I(f's_add_u32 s{S_T0}, s{S_T0}, 0x{WS_XN:x}')
    for i in range(4):
        for j in range(4):
            f = LF + 8 * i + 2 * j
            A.I(f'v_mul_f32 v{f}, v{f}, v29')
            A.I(f'v_mul_f32 v{f + 1}, v{f + 1}, v29')
            A.I(f'v_cvt_pk_bf16_f32 v{LX + 4 * i + j}, v{f}, v{f + 1}')
        A.I(f'buffer_store_dwordx4 {v(LX + 4 * i, 4)}, v26, {ws}, s{S_T0} offen offset:{1024 * i} sc1')
    A.br(f's_branch {lnd}')
    A.label(lno)
    A.I('s_barrier')
    A.I('v_mov_b32 v3, 0')
    A.I('ds_read_b32 v2, v3')
    A.I('s_waitcnt lgkmcnt(0)')
    A.label(lnd)
    A.forget_loads()
    A.I(f'v_readfirstlane_b32 s{S_T0}, v2')
    A.I(f's_and_b32 s{S_H}, s{S_T0}, 31')
    A.I(f's_bfe_u32 s{S_G}, s{S_T0}, 0x30008')
    A.I(f's_cmp_ge_u32 s{S_T0}, 0x10000')
    A.I(f's_cbranch_scc1 {l_exit}')
    A.I('s_barrier')
    tstamp(A, 0)

    def arrive(off=D_GB):
        l = A.newlabel('L_na')
        A.I(f's_cmp_lg_u32 s{S_WV}, 0')
        A.br(f's_cbranch_scc1 {l}')
        A.I('v_mov_b32 v23, 1')
        lane0(A, lambda: A.I(f'buffer_atomic_add v23, off, {dbg}, 0 offset:{off}'))
        A.label(l)

    def ln_and_arrive(ln=True):
        A.I('s_waitcnt vmcnt(0)')
        A.I('s_barrier')
        arrive()

    l_tok = A.newlabel('L_tok')
    l_g2 = A.newlabel('L_g2')
    A.I(f's_cmp_lg_u32 s{S_G}, 0')
    A.br(f's_cbranch_scc1 {l_tok}')

    A.I(f'v_mov_b32 v{R.LANE}, v0')
    R.setup_consts(A)

    A.I(f's_lshl_b32 s{S_T0}, s{S_H}, 6')
    A.I(f's_lshl_b32 s{S_T1}, s{S_WV}, 2')
    A.I(f's_add_u32 s{S_T0}, s{S_T0}, s{S_T1}')
    A.I(f's_add_u32 s{S_LNO}, s{S_T0}, 0x{R.F_KMP:x}')
    A.I('v_mov_b32 v24, 0')
    lane0(A, lambda: A.I(f'buffer_store_dword v24, off, {ws}, s{S_LNO} sc1'))
    R.init_exchange(A, P_M0, 'sc1', rb=24, part=0)

    def thook():
        A.check = False
        R.init_exchange(A, P_M0, 'sc1', rb=24, part=1)
        A.check = True
        A.forget_loads()

    def h_sc(sc):
        if sc == 0:
            arrive()
            tstamp(A, 8, 24)
        if sc == 1:
            arrive(D_TI)

    S_OK = 25

    def batch():
        A.I(f'buffer_load_dword v25, off, {dbg}, 0 sc1')
        A.I(f'buffer_load_dword v26, off, {dbg}, 0 offset:{D_WEIRD} sc1')
        A.I(f'buffer_load_dword v27, off, {dbg}, 0 offset:{D_TI} sc1')
        R.kv_load(A, 28, R.V_L16, R.S_RA)

    def h_issue(sc):
        if sc == 3:
            A.I(f'buffer_load_dword v24, off, {dbg}, 0 offset:{D_GB} sc1')
            return
        A.I(f's_lshl_b32 s{R.S_RA}, s{S_H}, 7')
        A.I(f's_add_u32 s{R.S_RA}, s{R.S_RA}, 0x{R.F_PROG:x}')
        A.I(f's_lshl_b32 s{R.S_KVN}, s{S_H}, 13')
        A.I(f's_add_u32 s{R.S_KVN}, s{R.S_KVN}, s{R.S_W11}')
        A.I(f's_add_u32 s{R.S_KVN}, s{R.S_KVN}, 0x{WS_KF:x}')
        A.I(f's_add_u32 s{R.S_KVM0}, s{R.S_W11}, {R.L_KV}')
        batch()

    def evaluate(l_fail):
        R.kv_eval(A, 28, R.V_L16, R.S_AV)
        A.I(f'v_readfirstlane_b32 s{S_T0}, v24')
        A.I(f'v_readfirstlane_b32 s{S_T2}, v25')
        A.I(f'v_readfirstlane_b32 s{S_T3}, v26')
        A.I(f's_cmp_lg_u32 s{S_T0}, 256')
        A.I(f's_cbranch_scc1 {l_fail}')
        A.I(f'v_readfirstlane_b32 s{S_T0}, v27')
        A.I(f's_cmp_lg_u32 s{S_T0}, 32')
        A.I(f's_cbranch_scc1 {l_fail}')
        A.I(f's_cmp_eq_u32 s{R.S_AV}, 0')
        A.I(f's_cbranch_scc1 {l_fail}')
        A.I(f's_cmp_ge_u32 s{S_T2}, 32')
        A.I(f's_cselect_b32 s{S_XCC}, 1, 0')
        A.I(f's_cmp_eq_u32 s{S_T3}, 0')
        A.I(f's_cselect_b32 s{S_XCC}, s{S_XCC}, 0')
        R.kv_dma(A)

    def h_check():
        lf = A.newlabel('L_hf')
        A.I(f's_mov_b32 s{S_OK}, 0')
        evaluate(lf)
        A.I(f's_mov_b32 s{S_OK}, 1')
        A.label(lf)

    R.stage_weights(A, [P_Q, P_K, P_V, P_O], hook=thook, hook_issue=h_issue, hook_check=h_check, hook_sc=h_sc)
    tstamp(A, 1)
    A.I(f's_mov_b32 s{R.S_KP}, s{S_LNO}')
    lgo_, lre = A.newlabel('L_tgo'), A.newlabel('L_tre')
    A.I(f's_cmp_eq_u32 s{S_OK}, 1')
    A.br(f's_cbranch_scc1 {lgo_}')
    A.label(lre)
    A.I('s_sleep 4')
    A.I(f'buffer_load_dword v24, off, {dbg}, 0 offset:{D_GB} sc1')
    A.I('s_waitcnt vmcnt(0)')
    batch()
    A.I(f's_sub_u32 s{S_SPIN}, s{S_SPIN}, 1')
    A.I(f's_cbranch_scc1 {l_exit}')
    A.I('s_waitcnt vmcnt(0)')
    evaluate(lre)
    A.label(lgo_)
    A.I('s_waitcnt vmcnt(0)')
    A.I('s_barrier')
    tstamp(A, 2)
    if DIAG:
        A.I('s_memrealtime s[80:81]')
        A.I('s_waitcnt lgkmcnt(0)')
        A.I('s_sub_u32 s60, s80, s58')
    l_slow = A.newlabel('L_slowmode')
    l_tdone = A.newlabel('L_tdone')
    A.I(f's_cmp_eq_u32 s{S_XCC}, 0')
    if os.environ.get('FORCE_SLOW'):
        A.br(f's_branch {l_slow}')
    else:
        A.br(f's_cbranch_scc1 {l_slow}')
    R.main_loop(A, '', l_tdone, kvcheck=True)
    A.label(l_slow)
    R.main_loop(A, 'sc1', l_tdone, kvcheck=True)
    A.label(l_tdone)
    A.forget_loads()
    A.I(f's_mov_b32 s{S_G}, 0')
    tstamp(A, 3)
    if DIAG:
        A.I('s_memrealtime s[80:81]')
        A.I('s_waitcnt lgkmcnt(0)')
        A.I('s_sub_u32 s61, s80, s58')
    A.I(f'v_lshrrev_b32 v0, 4, v{R.V_L16}')
    j2_calc(A)
    A.I('s_waitcnt vmcnt(0) lgkmcnt(0)')
    A.I('s_barrier')
    g2_setup(A)
    for k in (0, 1, 2, 3, 4, 13):
        g2_dma(A, k)
    A.I(f's_mov_b32 s{S_PRE}, 0')
    A.br(f's_branch {l_g2}')

    A.label(l_tok)
    A.forget_loads()
    S_SEG, S_NX, S_CA, S_END, S_K1, S_AV, S_PB = 36, 41, 42, 43, 44, 45, 46
    j2_calc(A)
    A.I(f's_sub_u32 s{S_G}, s{S_G}, 1')
    A.I(f's_lshl_b32 s{S_J}, s{S_G}, 5')
    A.I(f's_add_u32 s{S_J}, s{S_J}, s{S_H}')

    def tok_init(ln=True):
        A.I(f's_lshl_b32 s{S_CA}, s{S_H}, 7')
        A.I(f's_lshl_b32 s{S_T0}, s{S_G}, 4')
        A.I(f's_add_u32 s{S_CA}, s{S_CA}, s{S_T0}')
        A.I(f's_lshl_b32 s{S_T0}, s{S_WV}, 2')
        A.I(f's_add_u32 s{S_CA}, s{S_CA}, s{S_T0}')
        A.I(f's_add_u32 s{S_CA}, s{S_CA}, 0x{R.F_PROG:x}')
        A.I('v_mov_b32 v22, 0')
        lane0(A, lambda: A.I(f'buffer_store_dword v22, off, {ws}, s{S_CA} sc1'))
        lz = A.newlabel('L_nz')
        A.I(f's_cmp_lg_u32 s{S_J}, 64')
        A.br(f's_cbranch_scc1 {lz}')
        A.I('v_lshlrev_b32 v23, 4, v0')
        for r in range(16, 20):
            A.I(f'v_mov_b32 v{r}, 0')
        A.I(f's_mul_i32 s{S_T0}, s{S_WV}, 6144')
        A.I(f's_add_u32 s{S_T0}, s{S_T0}, 0x{F_OPC:x}')
        A.I(f's_add_u32 s{S_T1}, s{S_T0}, 4096')
        for i in range(4):
            A.I(f'buffer_store_dwordx4 v[16:19], v23, {ws}, s{S_T0} offen offset:{1024 * i} sc1')
        A.I(f'buffer_store_dwordx4 v[16:19], v23, {ws}, s{S_T1} offen sc1')
        A.I(f'buffer_store_dwordx4 v[16:19], v23, {ws}, s{S_T1} offen offset:1024 sc1')
        A.label(lz)
        A.forget_loads()
        if ln:
            ln_and_arrive()
            ts_tok(A, 8)

    l_late = A.newlabel('L_late')
    l_st = A.newlabel('L_st')
    A.I(f's_mov_b32 s{S_K1}, 0')
    l_lt = A.newlabel('L_lt')
    A.I(f's_cmp_ge_u32 s{S_G}, {NEARLY}')
    A.br(f's_cbranch_scc1 {l_lt}')
    tok_init(False)
    A.br(f's_branch {l_st}')
    A.label(l_lt)
    if WARM:
        lwm = A.newlabel('L_wm')
        A.I(f's_cmp_eq_u32 s{S_G}, 3')
        A.br(f's_cbranch_scc1 {lwm}')
        A.I(f's_sub_u32 s{S_T0}, s{S_J}, 96')
        A.I(f's_cmp_eq_u32 s{S_G}, 2')
        A.I(f's_cselect_b32 s{S_T0}, s{S_H}, s{S_T0}')
        A.I(f's_lshl_b32 s{S_T0}, s{S_T0}, 2')
        A.I(f's_add_u32 s{S_T0}, s{S_T0}, s{S_WV}')
        A.I(f's_lshl_b32 s{S_T0}, s{S_T0}, 13')
        A.I('v_lshlrev_b32 v22, 7, v0')
        A.check = False
        for p in (P_Q, P_K, P_V, P_O):
            make_srd(A, S_W, p, 4 << 20)
            A.I(f'buffer_load_dword v255, v22, s[{S_W}:{S_W + 3}], s{S_T0} offen')
        A.check = True
        A.label(lwm)
        A.forget_loads()
    tok_init()
    l_nost = A.newlabel('L_nost')
    wg_poll_eq(A, dbg, None, D_GB, 256, 2, l_exit, sleep=100)
    A.I(f's_cmp_ge_u32 s{S_G}, 4')
    A.br(f's_cbranch_scc1 {l_nost}')
    lsg, lsd = A.newlabel('L_sg'), A.newlabel('L_sd')
    A.I(f's_cmp_lg_u32 s{S_WV}, 0')
    A.br(f's_cbranch_scc1 {lsd}')
    A.I(f's_cmp_eq_u32 s{S_G}, 3')
    A.I(f's_cselect_b32 s{S_T1}, {STAG}, {STAG0}')
    A.I(f's_lshl_b32 s{S_T2}, s{S_H}, 6')
    A.I(f's_add_u32 s{S_T2}, s{S_T2}, 0x{R.F_KMP:x}')
    A.label(lsg)
    A.I(f'buffer_load_dword v2, off, {ws}, s{S_T2} sc1')
    A.I(f's_sub_u32 s{S_SPIN}, s{S_SPIN}, 1')
    A.I(f's_cbranch_scc1 {l_exit}')
    A.I('s_waitcnt vmcnt(0)')
    A.I(f'v_readfirstlane_b32 s{S_T0}, v2')
    A.I(f's_cmp_ge_u32 s{S_T0}, s{S_T1}')
    A.I(f's_cbranch_scc1 {lsd}')
    A.I('s_sleep 40')
    A.br(f's_branch {lsg}')
    A.label(lsd)
    A.I('s_barrier')
    A.I(f's_mov_b32 s{S_K1}, 1')
    A.label(l_st)

    def hook(sc):
        if sc != 0:
            return
        l = A.newlabel('L_hk')
        A.I(f's_cmp_eq_u32 s{S_K1}, 1')
        A.br(f's_cbranch_scc1 {l}')
        arrive()
        ts_tok(A, 8)
        A.label(l)

    T.qkv_stage(A, [P_Q, P_K, P_V], hook_sc=hook)
    A.label(l_nost)
    ts_tok(A, 1)
    wg_poll_eq(A, dbg, None, D_GB, 256, 2, l_exit, sleep=8)
    ts_tok(A, 7)
    A.I(f's_lshl_b32 s{S_T0}, s{S_G}, 2')
    A.I(f'buffer_load_dword v2, off, {dbg}, s{S_T0} offset:4 sc1')
    A.I(f'buffer_load_dword v3, off, {dbg}, 0 offset:{D_WEIRD} sc1')
    A.I('s_waitcnt vmcnt(0)')
    A.I(f'v_readfirstlane_b32 s{S_T2}, v2')
    A.I(f'v_readfirstlane_b32 s{S_T3}, v3')
    A.I(f's_cmp_ge_u32 s{S_T2}, 32')
    A.I(f's_cselect_b32 s{S_FAST}, 1, 0')
    A.I(f's_cmp_eq_u32 s{S_T3}, 0')
    A.I(f's_cselect_b32 s{S_FAST}, s{S_FAST}, 0')
    if os.environ.get('FORCE_SLOW'):
        A.I(f's_mov_b32 s{S_FAST}, 0')
    l_nop1 = A.newlabel('L_nop1')
    A.I(f's_cmp_ge_u32 s{S_G}, 4')
    A.br(f's_cbranch_scc1 {l_nop1}')
    A.I(f's_lshr_b32 s{S_T0}, s{S_G}, 1')
    A.I(f's_lshl_b32 s{S_T0}, s{S_T0}, 5')
    A.I(f's_add_u32 s{S_END}, s{S_T0}, 32')
    A.I(f's_and_b32 s{S_NX}, s{S_G}, 1')
    A.I(f's_add_u32 s{S_NX}, s{S_NX}, s{S_T0}')
    A.I('v_mov_b32 v2, 0')

    def signal():
        lane0(A, lambda: A.I(f'buffer_store_dword v2, off, {ws}, s{S_CA} sc1'))

    def after():
        A.I('v_add_u32 v2, 1, v2')

    T.qkv_segments(A, 2, 'sc1', after_seg=after, mid_seg=signal, first=S_NX, end=f's{S_END}')
    A.I('s_waitcnt vmcnt(0)')
    signal()
    A.label(l_nop1)
    ts_tok(A, 2)
    T.att_stage(A, P_O)
    T.att_consts(A)
    A.I(f's_load_dwordx4 s[16:19], s[0:1], {KA_W1}')
    A.I('s_waitcnt lgkmcnt(0)')
    make_srd(A, S_W1, 16, 2048 * 3584)
    make_srd(A, S_B1, 18, 3584)
    g2_setup(A)
    A.I(f's_mov_b32 s{S_PRE}, 0')
    for i in range(16):
        A.I(f'v_mov_b32 v{G1ACC + i}, 0')
    A.I(f's_mov_b32 s{S_K1}, 0')
    g1_w1_dma(A, S_K1, first=True)
    A.I(f's_lshl_b32 s{S_OPS}, s{S_G}, 1')
    masks = seg_masks()
    for g in range(7):
        A.I(f's_cmp_eq_u32 s{S_G}, {g}')
        A.I(f's_cselect_b32 s{S_MSK}, 0x{masks[g] & 0xffffffff:x}, s{S_MSK}')
        A.I(f's_cselect_b32 s{S_MSK + 1}, 0x{masks[g] >> 32:x}, s{S_MSK + 1}')
    A.I(f's_ff1_i32_b64 s{S_SEG}, s[{S_MSK}:{S_MSK + 1}]')
    A.I(f's_bitset0_b64 s[{S_MSK}:{S_MSK + 1}], s{S_SEG}')
    A.I(f's_mov_b32 s{S_AV}, 0')
    A.I(f's_lshl_b32 s{S_PB}, s{S_H}, 7')
    A.I(f's_add_u32 s{S_PB}, s{S_PB}, 0x{R.F_PROG:x}')
    R.kv_wait(A, l_exit, S_SEG, 192, s_av=S_AV, s_base=S_PB, sleep=4, vlane16=1)
    T.att_load_qkv(A, S_SEG)
    x_prefetch(A, S_SEG, sx)
    L = A.newlabel('L_p2')
    L_att = A.newlabel('L_att')
    L_fin = A.newlabel('L_p2fin')
    A.label(L)
    A.check = False
    A.I(f's_cmp_ge_u32 s{S_K1}, 16')
    A.I(f's_cbranch_scc1 {L_fin}')
    lq2 = A.newlabel('L_lp2')
    ldec = A.newlabel('L_dec')
    A.I(f's_cmp_lg_u32 s{S_WV}, 0')
    A.br(f's_cbranch_scc1 {ldec}')
    A.I(f's_lshl_b32 s{S_CA}, s{S_H}, 6')
    A.I(f's_add_u32 s{S_CA}, s{S_CA}, 0x{R.F_KMP:x}')
    A.I(f's_add_u32 s40, s{S_SEG}, 2')
    A.I(f's_lshl_b32 s{S_T1}, s{S_K1}, 4')
    A.I(f's_lshl_b32 s{S_T2}, s{S_G}, 9')
    A.I(f's_add_u32 s{S_T1}, s{S_T1}, s{S_T2}')
    A.I(f's_add_u32 s{S_T1}, s{S_T1}, 0x{F_GF + 512:x}')
    lq, lgo, lnk = A.newlabel('L_lp'), A.newlabel('L_go'), A.newlabel('L_nk')
    A.label(lq)
    A.I(f'buffer_load_dwordx4 v[192:195], off, {ws}, s{S_CA} {PLF}')
    A.I(f'buffer_load_dwordx4 v[196:199], off, {ws}, s{S_T1} {PLF}')
    A.I(f'buffer_load_dwordx4 v[200:203], off, {ws}, s{S_T1} offset:16 {PLF}')
    A.I(f's_sub_u32 s{S_SPIN}, s{S_SPIN}, 1')
    A.I(f's_cbranch_scc1 {l_exit}')
    A.I('s_waitcnt vmcnt(0)')
    A.I('v_min_u32 v6, v192, v193')
    A.I('v_min3_u32 v6, v6, v194, v195')
    A.I(f'v_readfirstlane_b32 s{S_T0}, v6')
    A.I('v_min_u32 v7, v196, v197')
    A.I('v_min3_u32 v7, v7, v198, v199')
    A.I('v_cmp_eq_u32 vcc, 0, v7')
    A.I(f's_mov_b32 s{S_T3}, 1')
    A.I(f's_cmp_ge_u32 s{S_T0}, s40')
    A.I(f's_cbranch_scc1 {lgo}')
    A.label(lnk)
    lsl = A.newlabel('L_sl')
    A.I(f's_add_u32 s{S_T0}, s{S_T0}, 2')
    A.I(f's_cmp_ge_u32 s{S_T0}, s40')
    A.I(f's_cbranch_scc1 {lq}')
    A.I(f's_mul_i32 s{S_T2}, s{S_PRE}, 3')
    A.I(f's_add_u32 s{S_T2}, s{S_T2}, 5')
    A.I(f's_cmp_lt_u32 s{S_PRE}, 2')
    A.I(f's_cselect_b32 s{S_T2}, s{S_T2}, 99')
    A.I(f's_mov_b32 s{S_T3}, 3')
    A.I(f's_cmp_ge_u32 s{S_K1}, s{S_T2}')
    A.I(f's_cbranch_scc1 {lgo}')
    A.I('v_min_u32 v6, v200, v201')
    A.I('v_min3_u32 v6, v6, v202, v203')
    A.I(f'v_readfirstlane_b32 s{S_T2}, v6')
    A.I(f's_cmp_eq_u32 s{S_K1}, 15')
    A.I(f's_cselect_b32 s{S_T2}, 0, s{S_T2}')
    A.I(f's_cmp_eq_u32 s{S_T2}, 0')
    A.I(f's_cselect_b32 s{S_T3}, 2, 4')
    A.I(f's_cbranch_vccz {lgo}')
    lns = A.newlabel('L_nsl')
    A.I(f's_mov_b32 s{S_T3}, 3')
    A.I(f's_cmp_lt_u32 s{S_K1}, 3')
    A.I(f's_cbranch_scc1 {lns}')
    A.I(f's_cmp_lt_u32 s{S_SEG}, 64')
    A.I(f's_cselect_b32 s{S_T2}, 2, 3')
    A.I(f's_cmp_lt_u32 s{S_PRE}, s{S_T2}')
    A.I(f's_cbranch_scc1 {lgo}')
    A.label(lns)
    A.I('s_sleep 4')
    A.br(f's_branch {lq}')
    A.label(lgo)
    A.I(f'v_mov_b32 v6, s{S_T3}')
    A.I(f'v_mov_b32 v7, 156000')
    A.I('ds_write_b32 v7, v6')
    A.I('s_waitcnt lgkmcnt(0)')
    A.label(ldec)
    A.I('s_barrier')
    A.I(f'v_mov_b32 v7, 156000')
    A.I('ds_read_b32 v6, v7')
    A.I('s_waitcnt lgkmcnt(0)')
    A.I(f'v_readfirstlane_b32 s{S_T0}, v6')
    A.I(f's_cmp_eq_u32 s{S_T0}, 1')
    A.br(f's_cbranch_scc1 {lq2}')
    lch = A.newlabel('L_ch')
    A.I(f's_mov_b32 s{S_NX}, s{S_T0}')
    A.I(f's_cmp_lg_u32 s{S_T0}, 3')
    A.br(f's_cbranch_scc1 {lch}')
    for rnd in range(4):
        lpr = A.newlabel('L_pr')
        A.I(f's_cmp_lg_u32 s{S_PRE}, {rnd}')
        A.br(f's_cbranch_scc1 {lpr}')
        g2_pre(A, rnd)
        A.br(f's_branch {L}')
        A.label(lpr)
    A.label(lch)
    ts_tok(A, 16)
    g1_chunk(A, S_K1, l_exit)
    A.I(f's_add_u32 s{S_K1}, s{S_K1}, 1')
    if CODET:
        lct = A.newlabel('L_ct')
        A.I(f's_cmp_lg_u32 s{S_K1}, 12')
        A.br(f's_cbranch_scc1 {lct}')
        A.I(f's_lshl_b32 s{S_T0}, s{S_H}, 2')
        A.I(f's_add_u32 s{S_T0}, s{S_T0}, s{S_WV}')
        A.I(f's_cmp_lg_u32 s{S_T0}, 7')
        A.br(f's_cbranch_scc1 {L}')
        code_touch(A, L, l_exit, TAIL_BYTES, 5, 143)
        A.br(f's_branch {L}')
        A.label(lct)
    lw2 = A.newlabel('L_w2')
    A.I(f's_cmp_lg_u32 s{S_K1}, 3')
    A.br(f's_cbranch_scc1 {lw2}')
    for k in range(5):
        g2_dma(A, k)
    A.label(lw2)
    A.I(f's_cmp_lg_u32 s{S_NX}, 4')
    A.br(f's_cbranch_scc1 {L}')
    A.I(f's_mov_b32 s{S_NX}, 2')
    A.I('s_barrier')
    A.br(f's_branch {lch}')
    A.label(lq2)
    ts_tok(A, 10)
    T.att_load_mem(A, S_SEG, 'sc1')
    A.I('s_waitcnt vmcnt(0)')
    ts_tok(A, 11)
    A.check = True
    A.forget_loads()
    T.att_compute1(A)
    T.att_xchg(A, L_RED)
    saved_ = (list(A.vm), list(A.lg))
    lc1, lc2 = A.newlabel('L_c2s'), A.newlabel('L_c2e')
    A.I(f's_cmp_eq_u32 s{S_FAST}, 0')
    A.br(f's_cbranch_scc1 {lc1}')
    T.att_compute2(A, S_OPS, '')
    A.br(f's_branch {lc2}')
    A.label(lc1)
    A.vm, A.lg = saved_
    T.att_compute2(A, S_OPS, 'sc1')
    A.label(lc2)
    ts_tok(A, 12)
    A.I('s_waitcnt vmcnt(0)')
    A.I('s_barrier')
    ts_tok(A, 13)
    A.I(f's_lshl_b32 s{S_CA}, s{S_SEG}, 7')
    A.I(f's_add_u32 s{S_CA}, s{S_CA}, 0x{F_OPC:x}')
    l0 = A.newlabel('L_n0')
    A.I(f's_cmp_lg_u32 s{S_WV}, 0')
    A.br(f's_cbranch_scc1 {l0}')
    A.I(f's_lshl_b32 s{S_T1}, s{S_H}, 2')
    A.I(f's_add_u32 s{S_T1}, s{S_T1}, s{S_CA}')
    flag_store(A, S_T1, 6)
    poll_flags(A, S_CA, 32, 1, 6, 7, l_exit)
    A.label(l0)
    A.I('s_barrier')
    ts_tok(A, 14)
    red4(A, S_SEG, sx, l_exit)
    A.I(f's_ff1_i32_b64 s{S_SEG}, s[{S_MSK}:{S_MSK + 1}]')
    A.I(f's_bitset0_b64 s[{S_MSK}:{S_MSK + 1}], s{S_SEG}')
    lnn = A.newlabel('L_nn')
    A.I(f's_cmp_lt_u32 s{S_SEG}, 64')
    A.br(f's_cbranch_scc1 {lnn}')
    A.I(f's_mov_b32 s{S_SEG}, 999')
    ts_tok(A, 3)
    A.br(f's_branch {L}')
    A.label(lnn)
    lav = A.newlabel('L_av')
    A.I(f's_cmp_gt_u32 s{S_AV}, s{S_SEG}')
    A.br(f's_cbranch_scc1 {lav}')
    R.kv_wait(A, l_exit, S_SEG, 192, s_av=S_AV, s_base=S_PB, sleep=4, vlane16=1)
    A.label(lav)
    T.att_load_qkv(A, S_SEG)
    x_prefetch(A, S_SEG, sx)
    A.br(f's_branch {L}')
    A.label(L_fin)
    A.forget_loads()
    ts_tok(A, 4)
    g1_epilogue(A, l_exit)
    A.I(f's_add_u32 s{S_G}, s{S_G}, 1')
    tstamp(A, 17)
    A.label(l_g2)
    A.forget_loads()
    g2_main(A, l_exit)
    tstamp(A, 6, 8)
    if DIAG:
        A.I(f's_add_u32 s{S_T0}, s{S_G}, s{S_H}')
        A.I(f's_add_u32 s{S_T0}, s{S_T0}, s{S_WV}')
        A.I(f's_cmp_lg_u32 s{S_T0}, 0')
        A.br(f's_cbranch_scc1 {l_exit}')
        A.I('s_memrealtime s[80:81]')
        A.I('s_waitcnt lgkmcnt(0)')
        A.I('s_sub_u32 s80, s80, s58')
        A.I('v_mov_b32 v8, s60')
        A.I('v_mov_b32 v9, s61')
        A.I('v_mov_b32 v10, s80')
        A.I('v_mov_b32 v11, 0')
        if os.environ.get('DIAG2'):
            A.I(f'buffer_store_dword v9, off, {dbg}, 0 offset:32')
        else:
            A.I(f'buffer_store_dwordx4 v[8:11], off, {dbg}, 0 offset:48')
    A.label(l_exit)
    A.I('s_endpgm')


S_MSK = 56
S_OPS = 47


def seg_masks():
    c1, c2 = int(os.environ.get('C1', 14)), int(os.environ.get('C2', 27))
    m = [0] * 7
    last = {g: -100 for g in range(7)}
    for s_ in range(64):
        cand = [4, 5, 6] if s_ < c1 else ([4, 5, 6, 0, 1] if s_ < c2 else list(range(7)))
        g = min(cand, key=lambda x: last[x])
        last[g] = s_
        m[g] |= 1 << s_
    return m


def j2_calc(A):
    A.I(f's_lshr_b32 s{S_T0}, s{S_G}, 1')
    A.I(f's_lshl_b32 s{S_T0}, s{S_T0}, 3')
    A.I(f's_lshr_b32 s{S_T1}, s{S_H}, 2')
    A.I(f's_add_u32 s{S_T0}, s{S_T0}, s{S_T1}')
    A.I(f's_lshl_b32 s{S_J2}, s{S_T0}, 3')
    A.I(f's_and_b32 s{S_T0}, s{S_G}, 1')
    A.I(f's_lshl_b32 s{S_T0}, s{S_T0}, 2')
    A.I(f's_and_b32 s{S_T1}, s{S_H}, 3')
    A.I(f's_add_u32 s{S_T0}, s{S_T0}, s{S_T1}')
    A.I(f's_add_u32 s{S_J2}, s{S_J2}, s{S_T0}')


def code_touch(A, l_from, l_end, nbytes, vd, va):
    lh = A.newlabel('L_pc')
    A.I('s_getpc_b64 s[80:81]')
    A.raw(f'{lh}:')
    A.raw(f'    s_sub_u32 s80, s80, {lh}-{l_from}')
    A.raw('    s_subb_u32 s81, s81, 0')
    A.I(f'v_lshlrev_b32 v{va}, 7, v0')
    for i in range(0, nbytes, 8192):
        A.raw(f'    v_min_u32 v{va}, {l_end}-{l_from}, v{va}')
        A.raw(f'    global_load_dword v{vd}, v{va}, s[80:81]')
        A.I(f'v_add_u32 v{va}, 8192, v{va}')


def x_prefetch(A, s_seg, sx):
    A.I('v_lshrrev_b32 v6, 2, v0')
    A.I('v_lshlrev_b32 v6, 6, v6')
    A.I('v_and_b32 v7, 3, v0')
    A.I('v_lshl_add_u32 v6, v7, 3, v6')
    A.I(f's_lshl_b32 s{S_T3}, s{s_seg}, 5')
    A.I(f's_add_u32 s{S_T3}, s{S_T3}, s{S_H}')
    A.I(f's_lshl_b32 s{S_T3}, s{S_T3}, 10')
    A.I(f'buffer_load_dwordx2 v[12:13], v6, {sx}, s{S_T3} offen')
    A.I(f'buffer_load_dwordx2 v[14:15], v6, {sx}, s{S_T3} offen offset:32')


def ts_tok(A, i):
    if TIMING:
        A.I(f's_add_u32 s{S_G}, s{S_G}, 1')
        tstamp(A, i, 14 if i in (1, 2, 7, 8) else 6)
        A.I(f's_sub_u32 s{S_G}, s{S_G}, 1')


G1ACC = 120
G1T = 144
L_G1 = 0
L_RED = 65536
L_W2 = 73728


def g1_lane(A):
    t = G1T
    A.I(f'v_lshrrev_b32 v{t}, 3, v0')
    A.I(f'v_and_b32 v{t + 1}, 7, v0')
    A.I(f'v_bfe_u32 v{t + 2}, v0, 4, 1')
    A.I(f's_and_b32 s{S_T0}, s{S_WV}, 1')
    A.I(f's_lshl_b32 s{S_T0}, s{S_T0}, 1')
    A.I(f'v_or_b32 v{t + 2}, s{S_T0}, v{t + 2}')
    A.I(f'v_lshlrev_b32 v{t + 2}, 1, v{t + 2}')
    A.I(f'v_xor_b32 v{t + 1}, v{t + 1}, v{t + 2}')
    A.I(f'v_lshlrev_b32 v{t + 1}, 4, v{t + 1}')
    A.I(f'v_mul_u32_u24 v136, 3584, v{t}')
    A.I(f'v_add_u32 v136, v136, v{t + 1}')
    A.I(f'v_lshl_add_u32 v137, v{t}, 10, v{t + 1}')
    A.I(f'v_and_b32 v{t}, 15, v0')
    A.I(f'v_lshrrev_b32 v{t + 1}, 4, v0')
    A.I(f'v_lshrrev_b32 v{t + 2}, 2, v{t}')
    A.I(f'v_and_b32 v{t + 3}, 3, v{t}')
    A.I(f'v_lshl_add_u32 v{t + 4}, v{t + 1}, 3, v{t + 2}')
    A.I(f'v_lshlrev_b32 v{t + 4}, 7, v{t + 4}')
    A.I(f'v_lshl_add_u32 v{t + 4}, v{t + 3}, 3, v{t + 4}')
    A.I(f'v_lshrrev_b32 v{t + 5}, 1, v{t + 2}')
    A.I(f'v_and_b32 v{t + 6}, 1, v{t + 1}')
    A.I(f'v_lshl_add_u32 v{t + 5}, v{t + 6}, 1, v{t + 5}')
    A.I(f'v_xor_b32 v{t + 6}, s{S_T0}, v{t + 5}')
    A.I(f'v_lshl_add_u32 v138, v{t + 6}, 5, v{t + 4}')
    A.I(f'v_xor_b32 v139, 32, v138')
    A.I(f's_and_b32 s{S_T0}, s{S_WV}, 2')
    A.I(f'v_xor_b32 v{t + 6}, s{S_T0}, v{t + 5}')
    A.I(f'v_lshl_add_u32 v140, v{t + 6}, 5, v{t + 4}')
    A.I(f'v_add_u32 v140, 16384, v140')
    A.I(f'v_xor_b32 v141, 32, v140')


def g1_w1_dma(A, s_k, first=False, plus=0):
    if first:
        g1_lane(A)
    w1 = f's[{S_W1}:{S_W1 + 3}]'
    A.I(f's_add_u32 s{S_T2}, s{s_k}, {plus}')
    A.I(f's_mul_i32 s{S_T0}, s{S_T2}, {128 * 3584}')
    A.I(f's_mul_i32 s{S_T1}, s{S_WV}, {8 * 3584}')
    A.I(f's_add_u32 s{S_T0}, s{S_T0}, s{S_T1}')
    A.I(f's_lshr_b32 s{S_T1}, s{S_J}, 3')
    A.I(f's_lshl_b32 s{S_T1}, s{S_T1}, 7')
    A.I(f's_add_u32 s{S_T0}, s{S_T0}, s{S_T1}')
    A.I(f's_and_b32 s{S_T1}, s{S_T2}, 1')
    A.I(f's_lshl_b32 s{S_T1}, s{S_T1}, 15')
    A.I(f's_lshl_b32 s{S_T2}, s{S_WV}, 10')
    A.I(f's_add_u32 s{S_T1}, s{S_T1}, s{S_T2}')
    for i in range(4):
        A.I(f's_add_u32 m0, s{S_T1}, {L_G1 + i * 4096}')
        A.I(f's_add_u32 s{S_T2}, s{S_T0}, {i * 32 * 3584}')
        A.I(f'buffer_load_dwordx4 v136, {w1}, s{S_T2} offen lds')


def g1_chunk(A, s_k, l_exit):
    ws = f's[{S_WS}:{S_WS + 3}]'
    A.I(f's_lshl_b32 s{S_T0}, s{s_k}, 17')
    A.I(f's_lshl_b32 s{S_T1}, s{S_WV}, 13')
    A.I(f's_add_u32 s{S_T0}, s{S_T0}, s{S_T1}')
    A.I(f's_and_b32 s{S_T1}, s{S_J}, 7')
    A.I(f's_lshl_b32 s{S_T1}, s{S_T1}, 7')
    A.I(f's_add_u32 s{S_T0}, s{S_T0}, s{S_T1}')
    A.I(f's_add_u32 s{S_T0}, s{S_T0}, 0x{WS_HP:x}')
    A.I(f's_and_b32 s{S_T3}, s{s_k}, 1')
    A.I(f's_lshl_b32 s{S_T3}, s{S_T3}, 15')
    A.I(f's_lshl_b32 s{S_T2}, s{S_WV}, 10')
    A.I(f's_add_u32 s{S_T1}, s{S_T3}, s{S_T2}')
    for i in range(4):
        A.I(f's_add_u32 m0, s{S_T1}, {L_G1 + 16384 + i * 4096}')
        A.I(f's_add_u32 s{S_T2}, s{S_T0}, {i * 32 * 1024}')
        A.I(f'buffer_load_dwordx4 v137, {ws}, s{S_T2} offen lds')
    AD = G1T
    for j in range(4):
        A.I(f'v_add_u32 v{AD + j}, s{S_T3}, v{138 + j}')
    l13, l14 = A.newlabel('L_13'), A.newlabel('L_14')
    A.I(f's_cmp_eq_u32 s{s_k}, 15')
    A.br(f's_cbranch_scc1 {l13}')
    g1_w1_dma(A, s_k, plus=1)
    A.br(f's_branch {l14}')
    A.label(l13)
    g2_dma(A, 13)
    A.label(l14)
    A.I('s_waitcnt vmcnt(4)')
    A.I('s_barrier')
    FR = G1T + 8

    def rd(ks):
        for j in range(4):
            for x in range(2):
                A.I(f'ds_read_b64_tr_b16 {v(FR + 16 * ks + 4 * j + 2 * x, 2)}, v{AD + j} offset:{L_G1 + (32 * ks + 4 * x) * 128}')

    rd(0)
    for ks in range(4):
        if ks < 3:
            rd(ks + 1)
            A.I('s_waitcnt lgkmcnt(8)')
        else:
            A.I('s_waitcnt lgkmcnt(0)')
        f = FR + 16 * ks
        for mbp in range(2):
            for nbp in range(2):
                d = G1ACC + (mbp * 2 + nbp) * 4
                A.I(f'v_mfma_f32_16x16x32_bf16 {v(d, 4)}, {v(f + 4 * mbp, 4)}, {v(f + 8 + 4 * nbp, 4)}, {v(d, 4)}')


def g1_epilogue(A, l_exit):
    import math
    ws, b1 = f's[{S_WS}:{S_WS + 3}]', f's[{S_B1}:{S_B1 + 3}]'
    ACC, BI, Z, Pk, TT, O = G1ACC, 150, 160, 168, 172, 188
    A.I(f's_lshr_b32 s{S_T2}, s{S_J}, 3')
    A.I(f's_lshl_b32 s{S_T0}, s{S_T2}, 7')
    A.I(f's_and_b32 s{S_T1}, s{S_WV}, 1')
    A.I(f's_lshl_b32 s{S_T1}, s{S_T1}, 6')
    A.I(f's_add_u32 s{S_T0}, s{S_T0}, s{S_T1}')
    A.I('v_lshrrev_b32 v144, 4, v0')
    A.I('v_lshlrev_b32 v144, 3, v144')
    A.I(f'buffer_load_dwordx2 v[146:147], v144, {b1}, s{S_T0} offen')
    A.I(f'buffer_load_dwordx2 v[148:149], v144, {b1}, s{S_T0} offen offset:32')
    A.I(f's_and_b32 s{S_T0}, s{S_J}, 7')
    A.I(f's_lshl_b32 s{S_T0}, s{S_T0}, 2')
    A.I(f's_and_b32 s{S_T1}, s{S_WV}, 2')
    A.I(f's_add_u32 s{S_T0}, s{S_T0}, s{S_T1}')
    A.I(f's_mul_i32 s{S_T0}, s{S_T0}, 56')
    A.I(f's_lshl_b32 s{S_T1}, s{S_T2}, 1')
    A.I(f's_add_u32 s{S_T0}, s{S_T0}, s{S_T1}')
    A.I(f's_and_b32 s{S_T1}, s{S_WV}, 1')
    A.I(f's_add_u32 s{S_T0}, s{S_T0}, s{S_T1}')
    A.I(f's_lshl_b32 s{S_T0}, s{S_T0}, 10')
    A.I(f's_add_u32 s{S_T0}, s{S_T0}, 0x{WS_U:x}')
    k1 = -2 * math.sqrt(2 / math.pi) * math.log2(math.e)
    A.I(f's_mov_b32 s{S_T2}, {f32(k1)}')
    A.I(f's_mov_b32 s{S_T3}, {f32(k1 * 0.044715)}')
    A.I('v_lshlrev_b32 v145, 4, v0')
    A.I('s_waitcnt vmcnt(0)')
    for i in range(4):
        A.I(f'v_lshlrev_b32 v{BI + 2 * i}, 16, v{146 + i}')
        A.I(f'v_and_b32 v{BI + 2 * i + 1}, 0xffff0000, v{146 + i}')
    for nbp in range(2):
        for mbp in range(2):
            for r in range(4):
                A.I(f'v_mov_b32 v{Z + 4 * mbp + r}, v{ACC + (mbp * 2 + nbp) * 4 + r}')
        T.round_bf16(A, Z, Pk)
        for i in range(8):
            A.I(f'v_add_f32 v{Z + i}, v{Z + i}, v{BI + i}')
        T.round_bf16(A, Z, Pk)
        for i in range(8):
            t = TT + i
            A.I(f'v_mul_f32 v{t}, v{Z + i}, v{Z + i}')
            A.I(f'v_mov_b32 v{t + 8}, s{S_T2}')
            A.I(f'v_fmac_f32 v{t + 8}, s{S_T3}, v{t}')
            A.I(f'v_mul_f32 v{t}, v{t + 8}, v{Z + i}')
            A.I(f'v_exp_f32 v{t}, v{t}')
        for i in range(8):
            A.I(f'v_add_f32 v{TT + i}, 1.0, v{TT + i}')
            A.I(f'v_rcp_f32 v{TT + i}, v{TT + i}')
        for i in range(8):
            A.I(f'v_mul_f32 v{Z + i}, v{Z + i}, v{TT + i}')
        o = O + 4 * nbp
        for i in range(4):
            A.I(f'v_cvt_pk_bf16_f32 v{o + i}, v{Z + 2 * i}, v{Z + 2 * i + 1}')
        A.I(f'buffer_store_dwordx4 {v(o, 4)}, v145, {ws}, s{S_T0} offen sc1')
        A.I(f's_add_u32 s{S_T0}, s{S_T0}, {56 * 1024}')
    A.I('s_waitcnt vmcnt(0)')
    A.I('s_barrier')
    l = A.newlabel('L_ue')
    A.I(f's_cmp_lg_u32 s{S_WV}, 0')
    A.br(f's_cbranch_scc1 {l}')
    A.I(f's_lshl_b32 s{S_T2}, s{S_G}, 7')
    A.I(f's_add_u32 s{S_T2}, s{S_T2}, 0x{F_LU:x}')
    A.I(f's_lshl_b32 s{S_T3}, s{S_G}, 2')
    A.I(f's_add_u32 s{S_T3}, s{S_T3}, 0x{F_GF + 256:x}')
    garrive(A, S_T2, S_T3, 144, l_exit)
    A.label(l)


G2_SLOT = {0: 0, 1: 1, 2: 2, 3: 3, 4: 4, 5: 0, 6: 1, 7: 2, 8: 3, 9: 4, 10: 0, 11: 1, 12: 2, 13: 0}
G2_READ = [[0, 1, 2, 3, 4], [5, 6, 7], [8, 9, 10, 11, 12], [13]]
G2_NEXT = [[5, 6, 7, 8, 9], [10, 11, 12], [], []]


def g2_slot(k):
    return 0 if k == 13 else L_W2 + 16384 * G2_SLOT[k]


def g2_areg(k):
    return (128 + 16 * k) if k < 8 else 16 * (k - 8)


S_PRE = 62


def g2_pre(A, rnd):
    t = G1T
    A.I(f'v_and_b32 v{t}, 15, v0')
    A.I(f'v_lshrrev_b32 v{t + 1}, 4, v0')
    A.I(f'v_lshrrev_b32 v{t + 2}, 2, v{t}')
    A.I(f'v_and_b32 v{t + 3}, 3, v{t}')
    A.I(f'v_lshl_add_u32 v{t + 2}, v{t + 1}, 2, v{t + 2}')
    A.I(f'v_bfe_u32 v{t + 1}, v{t + 2}, 1, 2')
    A.I(f'v_lshlrev_b32 v{t + 2}, 7, v{t + 2}')
    A.I(f'v_lshl_add_u32 v{t + 2}, v{t + 3}, 3, v{t + 2}')
    A.I(f'v_lshl_add_u32 v{t + 2}, v{t + 1}, 5, v{t + 2}')
    A.I(f's_lshl_b32 s{S_T0}, s{S_WV}, 12')
    A.I(f's_add_u32 s{S_T0}, s{S_T0}, {L_W2}')
    for j in range(4):
        A.I(f'v_xor_b32 v{t + 4 + j}, {32 * j}, v{t + 2}')
        A.I(f'v_add_u32 v{t + 4 + j}, s{S_T0}, v{t + 4 + j}')
        A.I(f'v_add_u32 v{t + 8 + j}, 49152, v{t + 4 + j}')
    A.I('s_waitcnt vmcnt(0)')
    A.I('s_barrier')
    for k in G2_READ[rnd]:
        so = 16384 * G2_SLOT[k]
        ab = t + 4
        if so >= 49152:
            so -= 49152
            ab = t + 8
        if k == 13:
            so = 0
            for j in range(4):
                A.I(f'v_subrev_u32 v{ab + j}, {L_W2}, v{ab + j}')
        for j in range(4):
            for x in range(2):
                A.I(f'ds_read_b64_tr_b16 {a(g2_areg(k) + 4 * j + 2 * x, 2)}, v{ab + j} offset:{so + 16 * x * 128}')
        A.I('s_waitcnt lgkmcnt(4)')
    A.I('s_waitcnt lgkmcnt(0)')
    if G2_NEXT[rnd]:
        A.I('s_barrier')
        for k in G2_NEXT[rnd]:
            g2_dma(A, k)
    A.I(f's_mov_b32 s{S_PRE}, {rnd + 1}')


def g2_setup(A):
    A.I(f's_load_dwordx2 s[16:17], s[0:1], {KA_W2}')
    A.I('s_waitcnt lgkmcnt(0)')
    make_srd(A, S_W2, 16, 1792 * 4096)
    A.I(f's_load_dwordx4 s[16:19], s[0:1], {KA_B2}')
    A.I('s_waitcnt lgkmcnt(0)')
    t = G1T
    A.I(f'v_lshrrev_b32 v{t}, 3, v0')
    A.I(f'v_and_b32 v{t + 1}, 7, v0')
    A.I(f'v_lshrrev_b32 v{t + 2}, 4, v0')
    A.I(f'v_lshlrev_b32 v{t + 2}, 1, v{t + 2}')
    A.I(f'v_xor_b32 v{t + 1}, v{t + 1}, v{t + 2}')
    A.I(f'v_lshlrev_b32 v{t + 1}, 4, v{t + 1}')
    A.I(f'v_lshl_add_u32 v142, v{t}, 12, v{t + 1}')
    A.I(f's_lshl_b32 s{S_BO2}, s{S_WV}, 15')
    A.I(f's_lshr_b32 s{S_T0}, s{S_J2}, 3')
    A.I(f's_lshl_b32 s{S_T0}, s{S_T0}, 7')
    A.I(f's_add_u32 s{S_BO2}, s{S_BO2}, s{S_T0}')
    A.I(f's_lshl_b32 s{S_LB2}, s{S_WV}, 10')


def g2_dma(A, k, vr=142):
    w2 = f's[{S_W2}:{S_W2 + 3}]'
    for i in range(4):
        A.I(f's_add_u32 m0, s{S_LB2}, {g2_slot(k) + i * 4096}')
        A.I(f's_add_u32 s{S_T0}, s{S_BO2}, {(k * 128 + i * 32) * 4096}')
        A.I(f'buffer_load_dwordx4 v{vr}, {w2}, s{S_T0} offen lds')


def g2_touch(A, k0):
    w2 = f's[{S_W2}:{S_W2 + 3}]'
    A.I('v_lshlrev_b32 v143, 12, v0')
    A.I(f's_lshr_b32 s{S_T0}, s{S_J2}, 3')
    A.I(f's_lshl_b32 s{S_T0}, s{S_T0}, 7')
    A.I(f's_lshl_b32 s{S_T1}, s{S_WV}, 18')
    A.I(f's_add_u32 s{S_T0}, s{S_T0}, s{S_T1}')
    for r0 in range(k0 * 128, 1792, 256):
        A.I(f's_add_u32 s{S_T1}, s{S_T0}, {r0 * 4096}')
        A.I(f'buffer_load_dword v5, v143, {w2}, s{S_T1} offen')


def g2_main(A, l_exit):
    ws = f's[{S_WS}:{S_WS + 3}]'
    S_O, S_B2 = S_W1, S_B1
    tstamp(A, 20, 8)
    for rnd in range(4):
        l = A.newlabel('L_pre')
        A.I(f's_cmp_gt_u32 s{S_PRE}, {rnd}')
        A.br(f's_cbranch_scc1 {l}')
        g2_pre(A, rnd)
        A.label(l)
        A.forget_loads()
    A.I('s_waitcnt lgkmcnt(0)')
    make_srd(A, S_B2, 16, 4096)
    make_srd(A, S_O, 18, 2048 * 1024)
    b2, out = f's[{S_B2}:{S_B2 + 3}]', f's[{S_O}:{S_O + 3}]'
    S_AO, S_EO = 36, 37
    A.I(f's_and_b32 s{S_T0}, s{S_J2}, 7')
    A.I(f's_mul_i32 s{S_AO}, s{S_T0}, {4 * 56 * 1024}')
    A.I(f's_lshl_b32 s{S_T1}, s{S_WV}, 10')
    A.I(f's_add_u32 s{S_AO}, s{S_AO}, s{S_T1}')
    A.I(f's_add_u32 s{S_AO}, s{S_AO}, 0x{WS_U:x}')
    A.I(f's_lshl_b32 s{S_T0}, s{S_T0}, 2')
    A.I(f's_add_u32 s{S_T0}, s{S_T0}, s{S_WV}')
    A.I(f's_lshr_b32 s{S_T1}, s{S_J2}, 3')
    A.I(f's_lshl_b32 s{S_EO}, s{S_T1}, 16')
    A.I(f's_lshl_b32 s{S_T0}, s{S_T0}, 5')
    A.I(f's_add_u32 s{S_EO}, s{S_EO}, s{S_T0}')
    A.I('v_lshlrev_b32 v5, 4, v0')
    A.I('v_and_b32 v1, 15, v0')
    A.I('v_lshrrev_b32 v2, 4, v0')
    A.I('v_lshlrev_b32 v3, 10, v1')
    A.I('v_lshl_add_u32 v3, v2, 3, v3')
    A.I('v_lshlrev_b32 v4, 1, v1')
    A.I(f's_lshl_b32 s{S_T1}, s{S_T1}, 7')
    HB, BB, ACC, AR = 10, 18, 24, 88
    NA = 42
    A.I(f's_mov_b32 s39, s{S_T1}')
    masks = seg_masks()
    late = [g for g in range(7) if masks[g] >> 61] if os.environ.get('TWOPH') else []
    earlyg = [g for g in range(7) if g not in late]
    korder = [k for g in earlyg + late for k in (2 * g, 2 * g + 1)]
    nearly = min(8 * len(earlyg), NA)
    S_FL = 38
    A.I(f's_lshl_b32 s{S_FL}, s{S_G}, 9')
    A.I(f's_add_u32 s{S_FL}, s{S_FL}, 0x{F_GF + 256:x}')

    def wait_groups(gs):
        l0 = A.newlabel('L_g20')
        A.I(f's_cmp_lg_u32 s{S_WV}, 0')
        A.br(f's_cbranch_scc1 {l0}')
        A.check = False
        poll_flags(A, S_FL, 7, 1, 6, 7, l_exit, sleep=1, mask=sum(1 << g for g in gs))
        A.check = True
        A.label(l0)
        A.I('s_barrier')

    tstamp(A, 21, 8)
    wait_groups(earlyg)
    tstamp(A, 5, 8)
    vmq = []

    def aload(i):
        k, db = korder[i >> 2], i & 3
        off = db * 56 * 1024 + k * 4096
        A.I(f's_add_u32 s{S_T1}, s{S_AO}, {off}')
        A.I(f'buffer_load_dwordx4 {v(AR + 4 * (i % NA), 4)}, v5, {ws}, s{S_T1} offen')
        vmq.append(('a', i))

    def need(names):
        idx = max([i for i, p in enumerate(vmq) if p in names] + [-1])
        if idx >= 0:
            A.I(f's_waitcnt vmcnt({len(vmq) - 1 - idx})')
            del vmq[:idx + 1]

    for i in range(nearly):
        aload(i)
    for nb in range(4):
        A.I(f's_add_u32 s{S_T0}, s{S_EO}, 0x{WS_H + nb * 16384:x}')
        A.I(f'buffer_load_dwordx2 {v(HB + 2 * nb, 2)}, v3, {ws}, s{S_T0} offen')
        vmq.append(('h', 0))
        A.I(f'buffer_load_ushort v{BB + nb}, v4, {b2}, s39 offen offset:{32 * nb}')
        vmq.append(('h', 0))
    saved = (list(A.vm), list(A.lg))
    if late:
        wait_groups(late)
    tstamp(A, 19, 8)
    A.vm, A.lg = saved
    for i in range(nearly, NA):
        aload(i)
    for i in range(56):
        k, db = korder[i >> 2], i & 3
        need([('a', i)])
        for nb in range(4):
            d = ACC + 16 * db + 4 * nb
            c = '0' if i < 4 else v(d, 4)
            A.I(f'v_mfma_f32_16x16x32_bf16 {v(d, 4)}, {v(AR + 4 * (i % NA), 4)}, {a(g2_areg(k) + 4 * nb, 4)}, {c}')
        if i + NA < 56:
            aload(i + NA)
    A.I(f's_lshl_b32 s{S_T0}, s{S_WV}, 12')
    A.I(f'v_add_u32 v6, s{S_T0}, v5')
    for db in range(4):
        for nb in range(4):
            A.I(f'ds_write_b128 v6, {v(ACC + 16 * db + 4 * nb, 4)} offset:{db * 16384 + nb * 1024}')
        A.I('s_waitcnt lgkmcnt(8)')
    A.I(f's_lshl_b32 s{S_T0}, s{S_WV}, 14')
    A.I(f'v_add_u32 v6, s{S_T0}, v5')
    A.I('s_waitcnt lgkmcnt(0)')
    A.I('s_barrier')
    for j in range(16):
        A.I(f'ds_read_b128 {v(ACC + 4 * j, 4)}, v6 offset:{1024 * j}')
        if j == 11:
            A.I('s_waitcnt lgkmcnt(8)')
    A.I('s_waitcnt lgkmcnt(0) vmcnt(0)')
    tstamp(A, 18, 8)
    for r in range(0, 16, 2):
        A.I(f'v_pk_add_f32 {v(ACC + r, 2)}, {v(ACC + r, 2)}, {v(ACC + 16 + r, 2)}')
        A.I(f'v_pk_add_f32 {v(ACC + 32 + r, 2)}, {v(ACC + 32 + r, 2)}, {v(ACC + 48 + r, 2)}')
    for r in range(0, 16, 2):
        A.I(f'v_pk_add_f32 {v(ACC + r, 2)}, {v(ACC + r, 2)}, {v(ACC + 32 + r, 2)}')
    for nb in range(4):
        d = ACC + 4 * nb
        t = 88
        A.I(f'v_cvt_pk_bf16_f32 v{t}, v{d}, v{d + 1}')
        A.I(f'v_cvt_pk_bf16_f32 v{t + 1}, v{d + 2}, v{d + 3}')
        A.I(f'v_lshlrev_b32 v{t + 2}, 16, v{BB + nb}')
        for i in range(2):
            A.I(f'v_lshlrev_b32 v{d + 2 * i}, 16, v{t + i}')
            A.I(f'v_and_b32 v{d + 2 * i + 1}, 0xffff0000, v{t + i}')
        for r in range(4):
            A.I(f'v_add_f32 v{d + r}, v{d + r}, v{t + 2}')
        A.I(f'v_cvt_pk_bf16_f32 v{t}, v{d}, v{d + 1}')
        A.I(f'v_cvt_pk_bf16_f32 v{t + 1}, v{d + 2}, v{d + 3}')
        for i in range(2):
            A.I(f'v_lshlrev_b32 v{d + 2 * i}, 16, v{t + i}')
            A.I(f'v_and_b32 v{d + 2 * i + 1}, 0xffff0000, v{t + i}')
            A.I(f'v_lshlrev_b32 v{t + 2}, 16, v{HB + 2 * nb + i}')
            A.I(f'v_and_b32 v{t + 3}, 0xffff0000, v{HB + 2 * nb + i}')
            A.I(f'v_add_f32 v{d + 2 * i}, v{d + 2 * i}, v{t + 2}')
            A.I(f'v_add_f32 v{d + 2 * i + 1}, v{d + 2 * i + 1}, v{t + 3}')
        o = 92 + 2 * nb
        A.I(f'v_cvt_pk_bf16_f32 v{o}, v{d}, v{d + 1}')
        A.I(f'v_cvt_pk_bf16_f32 v{o + 1}, v{d + 2}, v{d + 3}')
        A.I(f's_add_u32 s{S_T0}, s{S_EO}, {nb * 16384}')
        A.I(f'buffer_store_dwordx2 {v(o, 2)}, v3, {out}, s{S_T0} offen')


def red4(A, s_seg, srd_x, l_exit):
    ws = f's[{S_WS}:{S_WS + 3}]'
    B, Z, Pk, XR, t0, t1, va = 192, 144, 152, 12, 160, 161, 162
    A.I(f's_lshl_b32 s{S_T2}, s{s_seg}, 5')
    A.I(f's_add_u32 s{S_T2}, s{S_T2}, s{S_H}')
    A.I(f's_lshl_b32 s{S_T0}, s{S_OPS}, 5')
    A.I(f's_add_u32 s{S_T0}, s{S_T0}, s{S_H}')
    A.I(f's_lshl_b32 s{S_T0}, s{S_T0}, 15')
    A.I(f's_xor_b32 s{S_OPS}, s{S_OPS}, 1')
    A.I(f's_lshl_b32 s{S_T1}, s{S_WV}, 13')
    A.I(f's_add_u32 s{S_T0}, s{S_T0}, s{S_T1}')
    A.I(f's_add_u32 s{S_T0}, s{S_T0}, 0x{WS_OP:x}')
    A.I(f's_add_u32 s{S_T1}, s{S_T0}, 4096')
    for hh in range(8):
        so = S_T0 if hh < 4 else S_T1
        A.I(f'buffer_load_dwordx4 {v(B + 4 * hh, 4)}, v1, {ws}, s{so} offen offset:{1024 * (hh & 3)} sc1')
    A.I(f's_lshl_b32 s{S_T3}, s{S_T2}, 10')
    A.I(f'v_lshrrev_b32 v{va}, 2, v0')
    A.I(f'v_lshlrev_b32 v{va}, 6, v{va}')
    A.I(f'v_and_b32 v{t0}, 3, v0')
    A.I(f'v_lshl_add_u32 v{va}, v{t0}, 3, v{va}')
    for hh in range(8):
        A.I(f's_waitcnt vmcnt({7 - hh})')
        for i in range(4):
            r = B + 4 * hh + i
            if hh == 0:
                A.I(f'v_lshlrev_b32 v{Z + 2 * i}, 16, v{r}')
                A.I(f'v_and_b32 v{Z + 2 * i + 1}, 0xffff0000, v{r}')
            else:
                A.I(f'v_lshlrev_b32 v{t0}, 16, v{r}')
                A.I(f'v_and_b32 v{t1}, 0xffff0000, v{r}')
                A.I(f'v_add_f32 v{Z + 2 * i}, v{Z + 2 * i}, v{t0}')
                A.I(f'v_add_f32 v{Z + 2 * i + 1}, v{Z + 2 * i + 1}, v{t1}')
    A.I(f's_lshl_b32 s{S_T0}, s{S_WV}, 11')
    A.I(f'v_add_u32 v{t0}, s{S_T0}, v1')
    A.I(f'v_add_u32 v{t0}, {L_RED}, v{t0}')
    A.I(f'ds_write_b128 v{t0}, {v(Z, 4)}')
    A.I(f'ds_write_b128 v{t0}, {v(Z + 4, 4)} offset:1024')
    A.I('s_waitcnt lgkmcnt(0) vmcnt(0)')
    A.I('s_barrier')
    ts_tok(A, 15)
    l = A.newlabel('L_r4')
    A.I(f's_cmp_lg_u32 s{S_WV}, 0')
    A.br(f's_cbranch_scc1 {l}')
    for w_ in range(1, 4):
        for j in range(2):
            A.I(f'ds_read_b128 {v(B + 8 * w_ + 4 * j, 4)}, v{t0} offset:{2048 * w_ + 1024 * j}')
    A.I('s_waitcnt lgkmcnt(0)')
    for w_ in range(1, 4):
        for i in range(8):
            A.I(f'v_add_f32 v{Z + i}, v{Z + i}, v{B + 8 * w_ + i}')
    T.round_bf16(A, Z, Pk)
    for i in range(4):
        A.I(f'v_lshlrev_b32 v{t0}, 16, v{XR + i}')
        A.I(f'v_and_b32 v{t1}, 0xffff0000, v{XR + i}')
        A.I(f'v_add_f32 v{Z + 2 * i}, v{Z + 2 * i}, v{t0}')
        A.I(f'v_add_f32 v{Z + 2 * i + 1}, v{Z + 2 * i + 1}, v{t1}')
    T.round_bf16(A, Z, Pk)
    A.I(f's_add_u32 s{S_T0}, s{S_T3}, 0x{WS_H:x}')
    A.I(f'buffer_store_dwordx2 {v(Pk, 2)}, v{va}, {ws}, s{S_T0} offen sc1')
    A.I(f'buffer_store_dwordx2 {v(Pk + 2, 2)}, v{va}, {ws}, s{S_T0} offen offset:32 sc1')
    T.ln_regs(A, Z, t0, t1)
    T.round_bf16(A, Z, XR)
    T.ln_regs(A, Z, t0, t1)
    for i in range(4):
        A.I(f'v_cvt_pk_bf16_f32 v{XR + i}, v{Z + 2 * i}, v{Z + 2 * i + 1}')
    A.I(f's_add_u32 s{S_T0}, s{S_T3}, 0x{WS_HP:x}')
    A.I(f'buffer_store_dwordx2 {v(XR, 2)}, v{va}, {ws}, s{S_T0} offen sc1')
    A.I(f'buffer_store_dwordx2 {v(XR + 2, 2)}, v{va}, {ws}, s{S_T0} offen offset:32 sc1')
    A.I(f's_lshl_b32 s{S_T2}, s{s_seg}, 7')
    A.I(f's_add_u32 s{S_T2}, s{S_T2}, 0x{F_LH:x}')
    A.I(f's_lshl_b32 s{S_T3}, s{s_seg}, 2')
    A.I(f's_add_u32 s{S_T3}, s{S_T3}, 0x{F_GF:x}')
    A.I('s_waitcnt vmcnt(0)')
    garrive(A, S_T2, S_T3, t0, l_exit)
    A.label(l)


if __name__ == '__main__':
    A = Asm()
    nm = NAME + '_kernel'
    mega_kernel(A, nm)
    hd = header([(nm, 256, 256, R.L_TOTAL)])
    if os.environ.get('FINAL'):
        hd = hd.replace(f'@launch kernel={nm} ', '@launch ')
    txt = hd + A.text() + '.section .rodata,"a"\n' + kernel_desc(nm, 512, 256)
    out = os.environ.get('OUT', 'm3.s')
    open(out, 'w').write(txt)
    print(len(txt))
```

```python
from common import *
import os, math, struct
STAMPS = bool(os.environ.get('STAMPS'))
NSTEPS = 63
LDF = os.environ.get('LDF', 'sc1').replace('_', ' ')
STF = os.environ.get('STF', '').replace('_', ' ')
EXF = os.environ.get('EXF', 'sc1')
E = lambda k, d: int(os.environ.get(k, d))
TOUCH_AHEAD = E('TOUCH_AHEAD', 1)
PB_DELAY, PB_GAP, AF_DELAY, AF_GAP = E('PB_DELAY', 0), E('PB_GAP', 0), E('AF_DELAY', 0), E('AF_GAP', 3)
OUT = os.environ.get('OUT', 'rec_test.s')

L_QX = 0
L_KX_ = 2560
L_VM = 5120
L_AF = 7168
L_OX = L_AF
L_KV = 15360
L_WO = 31744
L_HALF = 65792
L_TOTAL = L_WO + 2 * L_HALF

PB_GRP = 8448
PB_SLOT = 0x48000

S_WS, S_W, S_DBG = 4, 8, 12
S_H, S_WV, S_STEP = 32, 33, 34
S_SPIN = 35
S_MBR, S_MBW = 36, 37
S_TAG = 47
S_PB0, S_PB1 = 38, 39
S_PB0H = 40
S_AFO = 41
S_TCH = 42
S_KVN = 44
S_KMO, S_VMO = 45, 46
S_T0, S_T1, S_T2, S_T3 = 48, 49, 50, 51
S_C = 52
S_ONE = 54
S_TS = 56
S_M0, S_M1 = 16, 18
S_W640 = 20
S_KVM0 = 62
S_W11 = 63

AF = 0
ACC = 32
KX = 56
VX = 88
T = 96
V_IDX, V_L16, V_QKW, V_QR, V_KR, V_OW, V_WO0, V_WO1, V_PBW, V_RDR, V_MBW, V_SEL, V_VX, V_SP, V_MX, V_TM = range(112, 128)
S_PZ = 43
LANE = 100

LDS_SLOT = {}
_l0 = [('q', 0, 0), ('q', 1, 0), ('q', 0, 1), ('q', 1, 1), ('k', 0, 0), ('k', 1, 0), ('o', 6, 0), ('o', 7, 0)]
_l1 = [('k', 0, 1), ('k', 1, 1), ('k', 0, 2), ('k', 1, 2), ('k', 0, 3), ('k', 1, 3), ('o', 6, 1), ('o', 7, 1)]
for i, f in enumerate(_l0):
    LDS_SLOT[f] = (0, i)
for i, f in enumerate(_l1):
    LDS_SLOT[f] = (1, i)
HOME = {}
_h = 0
for mat in 'qkv':
    for nb in range(2):
        for t in range(8):
            HOME[(mat, nb, t)] = (256 + _h * 8) if _h < 32 else (128 + (_h - 32) * 8)
            _h += 1
for t2 in range(2):
    vac = [f for f, (hf, sl) in LDS_SLOT.items() if hf == t2 and f[0] != 'o']
    assert len(vac) == 6
    for nbo in range(6):
        HOME[('o', nbo, t2)] = HOME[vac[nbo]]


def lds_frag_read(A, f, b):
    hf, sl = LDS_SLOT[f]
    va = V_WO1 if hf else V_WO0
    A.I(f'ds_read_b128 {v(b, 4)}, v{va} offset:{sl * 2048}')
    A.I(f'ds_read_b128 {v(b + 4, 4)}, v{va} offset:{sl * 2048 + 1024}')


def lane_fields(A, vt, vg, vn):
    A.I(f'v_and_b32 v{vn}, 15, v{vt}')
    A.I(f'v_bfe_u32 v{vg}, v{vt}, 4, 2')


def stage_weights(A, ptr_sgprs, hook=None, hook_issue=None, hook_check=None, hook_sc=None):
    g, n = 2, 3
    lane_fields(A, LANE, g, n)
    VD0, VD1 = 4, 5
    A.I(f'v_lshrrev_b32 v6, 5, v{LANE}')
    A.I(f's_and_b32 s{S_T0}, s{S_WV}, 1')
    A.I(f's_lshl_b32 s{S_T0}, s{S_T0}, 1')
    A.I(f'v_or_b32 v6, s{S_T0}, v6')
    A.I(f'v_lshlrev_b32 v6, 1, v6')
    A.I(f'v_xor_b32 v6, v6, v{n}')
    A.I(f'v_lshlrev_b32 v6, 4, v6')
    A.I(f'v_lshlrev_b32 v7, 13, v{g}')
    A.I(f'v_or_b32 v{VD0}, v6, v7')
    A.I(f'v_xor_b32 v{VD1}, 0x80, v{VD0}')
    A.I(f'v_lshrrev_b32 v6, 2, v{n}')
    A.I(f'v_and_b32 v7, 3, v{n}')
    A.I(f'v_and_b32 v8, 1, v6')
    A.I(f'v_lshrrev_b32 v9, 1, v6')
    A.I(f'v_and_b32 v10, 1, v{g}')
    A.I(f'v_lshrrev_b32 v11, 1, v{g}')
    A.I(f'v_lshlrev_b32 v12, 7, v11')
    A.I(f'v_lshl_add_u32 v12, v10, 1, v12')
    A.I(f'v_lshl_add_u32 v12, v8, 4, v12')
    A.I(f'v_lshl_add_u32 v12, v9, 2, v12')
    A.I(f'v_lshl_add_u32 v13, v9, 1, v10')
    A.I(f'v_lshl_add_u32 v13, v8, 2, v13')
    A.I(f's_lshl_b32 s{S_T0}, s{S_WV}, 1')
    A.I(f'v_xor_b32 v13, s{S_T0}, v13')
    A.I(f'v_lshlrev_b32 v14, 8, v12')
    A.I(f'v_lshl_add_u32 v14, v13, 5, v14')
    A.I(f'v_lshl_add_u32 v14, v7, 3, v14')
    VT = {}
    A.I(f'v_xor_b32 v15, 32, v14')
    r = 64
    for cu in range(4):
        A.I(f's_xor_b32 s{S_T0}, s{S_WV}, {cu}')
        A.I(f's_lshl_b32 s{S_T0}, s{S_T0}, 13')
        for bf in range(2):
            A.I(f's_add_u32 s{S_T1}, s{S_T0}, {L_WO + bf * L_HALF}')
            for nb in range(2):
                VT[(nb, bf, cu)] = r
                A.I(f'v_add_u32 v{r}, s{S_T1}, v{14 + nb}')
                r += 1
    A.I(f'v_lshl_add_u32 v13, v9, 1, v8')
    A.I(f'v_lshl_add_u32 v13, v10, 2, v13')
    A.I(f'v_lshlrev_b32 v14, 13, v13')
    A.I(f'v_lshl_add_u32 v14, v11, 11, v14')
    A.I(f'v_lshl_add_u32 v14, v13, 5, v14')
    A.I(f'v_lshl_add_u32 v14, v7, 3, v14')
    A.I(f's_lshl_b32 s{S_T0}, s{S_WV}, 8')
    A.I(f'v_add_u32 v14, s{S_T0}, v14')
    VTO = {0: 20, 1: 21}
    A.I(f'v_add_u32 v20, {L_WO}, v14')
    A.I(f'v_add_u32 v21, {L_WO + L_HALF}, v14')
    WOT = 32

    def dma(sc):
        buf = L_WO + (sc & 1) * L_HALF
        if sc < 6:
            mat, hh = sc >> 1, sc & 1
            make_srd(A, S_W, ptr_sgprs[mat], 512 * 8192)
            A.I(f's_lshl_b32 s{S_T0}, s{S_WV}, 15')
            A.I(f's_lshl_b32 s{S_T1}, s{S_H}, 8')
            A.I(f's_add_u32 s{S_T0}, s{S_T0}, s{S_T1}')
            A.I(f's_add_u32 s{S_T0}, s{S_T0}, {hh << 21}')
            A.I(f's_lshl_b32 s{S_T1}, s{S_WV}, 10')
            A.I(f's_add_u32 s{S_T1}, s{S_T1}, {buf}')
            for i in range(16):
                A.I(f's_mov_b32 m0, s{S_T1}')
                A.I(f'buffer_load_dwordx4 v{VD1 if i & 1 else VD0}, s[{S_W}:{S_W + 3}], s{S_T0} offen lds')
                if i < 15:
                    A.I(f's_add_u32 s{S_T0}, s{S_T0}, {4 * 32768}')
                    A.I(f's_add_u32 s{S_T1}, s{S_T1}, 4096')
        else:
            t2 = sc & 1
            make_srd(A, S_W, ptr_sgprs[3], 4096 * 1024)
            A.I(f's_and_b32 s{S_T0}, s{S_WV}, 1')
            A.I(f's_lshl_b32 s{S_T0}, s{S_T0}, 13')
            A.I(f's_lshr_b32 s{S_T1}, s{S_WV}, 1')
            A.I(f's_lshl_b32 s{S_T1}, s{S_T1}, 15')
            A.I(f's_add_u32 s{S_T0}, s{S_T0}, s{S_T1}')
            A.I(f's_lshl_b32 s{S_T1}, s{S_H}, 17')
            A.I(f's_add_u32 s{S_T0}, s{S_T0}, s{S_T1}')
            A.I(f's_add_u32 s{S_T0}, s{S_T0}, {t2 << 16}')
            A.I(f's_lshl_b32 s{S_T1}, s{S_WV}, 11')
            A.I(f's_add_u32 s{S_T1}, s{S_T1}, {buf}')
            for f in range(8):
                for x in range(2):
                    row = (f & 1) + 2 * x + 4 * ((f >> 1) & 1) + 16 * (f >> 2)
                    A.I(f's_add_u32 s{S_T2}, s{S_T1}, {(8 * f + x) * 1024 + 32 * f}')
                    A.I(f's_add_u32 s{S_T3}, s{S_T0}, {row * 1024}')
                    A.I(f's_mov_b32 m0, s{S_T2}')
                    A.I(f'buffer_load_dwordx4 v{V_L16}, s[{S_W}:{S_W + 3}], s{S_T3} offen lds')

    TCH = E('STOUCH', 0)
    if TCH:
        A.I(f'v_lshrrev_b32 v16, 1, v{LANE}')
        A.I('v_lshlrev_b32 v16, 13, v16')
        A.I(f'v_and_b32 v17, 1, v{LANE}')
        A.I('v_lshl_add_u32 v16, v17, 7, v16')
        A.I(f'v_lshlrev_b32 v17, 7, v{LANE}')

    def touch(sc):
        if not TCH or sc > 7:
            return
        chk = A.check
        A.check = False
        if sc < 6:
            make_srd(A, S_W, ptr_sgprs[sc >> 1], 512 * 8192)
            A.I(f's_lshl_b32 s{S_T0}, s{S_WV}, 19')
            A.I(f's_lshl_b32 s{S_T1}, s{S_H}, 8')
            A.I(f's_add_u32 s{S_T0}, s{S_T0}, s{S_T1}')
            A.I(f's_add_u32 s{S_T0}, s{S_T0}, {(sc & 1) << 21}')
            A.I(f's_add_u32 s{S_T1}, s{S_T0}, {32 * 8192}')
            va_ = 16
        else:
            make_srd(A, S_W, ptr_sgprs[3], 4096 * 1024)
            A.I(f's_lshl_b32 s{S_T0}, s{S_WV}, 14')
            A.I(f's_lshl_b32 s{S_T1}, s{S_H}, 17')
            A.I(f's_add_u32 s{S_T0}, s{S_T0}, s{S_T1}')
            A.I(f's_add_u32 s{S_T0}, s{S_T0}, {(sc & 1) << 16}')
            A.I(f's_add_u32 s{S_T1}, s{S_T0}, 8192')
            va_ = 17
        A.I(f'buffer_load_dword v22, v{va_}, s[{S_W}:{S_W + 3}], s{S_T0} offen')
        A.I(f'buffer_load_dword v22, v{va_}, s[{S_W}:{S_W + 3}], s{S_T1} offen')
        A.check = chk

    q_ = []

    def younger(names):
        idx = max(i for i, (nm, c) in enumerate(q_) if nm in names)
        return sum(c for nm, c in q_[idx + 1:])

    dma(0); q_.append(('d0', 16))
    dma(1); q_.append(('d1', 16))
    if hook:
        hook(); q_.append(('init', 6 if hook_sc else 0))
    for k in range(2, 2 + TCH):
        touch(k); q_.append(('t', 2))
    for sc in range(8):
        need_ = [f'd{sc}']
        if sc == 1 and hook:
            need_.append('init')
        if sc == 5 and hook_issue:
            need_.append('gb')
        A.I(f's_waitcnt vmcnt({0 if sc == 7 else younger(need_)})')
        A.I('s_barrier')
        if hook_sc:
            hook_sc(sc)
        if sc == 7 and hook_check:
            hook_check()
        cnt = 0
        if sc < 6:
            mat, hh = 'qkv'[sc >> 1], sc & 1
            for nb in range(2):
                for t in range(8):
                    for x in range(2):
                        c, nhi = t >> 1, t & 1
                        imm = (8 * nhi + x) * 256
                        if cnt >= 12:
                            A.I('s_waitcnt lgkmcnt(8)')
                            cnt = 8
                        A.I(f'ds_read_b64_tr_b16 {u(HOME[(mat, nb, t)] + 4 * hh + 2 * x, 2)}, v{VT[(nb, sc & 1, c)]} offset:{imm}')
                        cnt += 1
        else:
            for nbo in range(8):
                for hh in range(2):
                    for x in range(2):
                        imm = (x + 4 * hh) * 1024 + 32 * nbo
                        if cnt >= 12:
                            A.I('s_waitcnt lgkmcnt(8)')
                            cnt = 8
                        A.I(f'ds_read_b64_tr_b16 {v(WOT + nbo * 8 + 4 * hh + 2 * x, 2)}, v{VTO[sc & 1]} offset:{imm}')
                        cnt += 1
        A.I('s_waitcnt lgkmcnt(0)')
        A.I('s_barrier')
        if sc + 2 < 8:
            dma(sc + 2); q_.append((f'd{sc + 2}', 16))
            if TCH and sc + 2 + TCH <= 7:
                touch(sc + 2 + TCH); q_.append(('t', 2))
        if sc in (3, 5) and hook_issue:
            hook_issue(sc); q_.append(('gb', 1) if sc == 3 else ('batch', 4))
        if sc >= 6:
            t2 = sc & 1
            va = V_WO1 if t2 else V_WO0
            k = 0
            for f, (hf, sl) in LDS_SLOT.items():
                if hf != t2:
                    continue
                src = (WOT + f[1] * 8) if f[0] == 'o' else HOME[f]
                for hh in range(2):
                    A.I(f'ds_write_b128 v{va}, {u(src + 4 * hh, 4)} offset:{sl * 2048 + hh * 1024}')
                k += 1
                if k & 1 == 0:
                    A.I('s_waitcnt lgkmcnt(4)')
            A.I('s_waitcnt lgkmcnt(0)')
            for nbo in range(6):
                hm = HOME[('o', nbo, t2)]
                for r in range(8):
                    if hm >= 256:
                        A.I(f'v_accvgpr_write_b32 a{hm - 256 + r}, v{WOT + nbo * 8 + r}')
                    else:
                        A.I(f'v_mov_b32 v{hm + r}, v{WOT + nbo * 8 + r}')


def setup_consts(A):
    g, n = 2, 3
    lane_fields(A, LANE, g, n)
    A.I(f's_lshl_b32 s{S_W11}, s{S_WV}, 11')
    A.I(f'v_bfe_u32 v4, v{n}, 1, 1')
    A.I(f'v_mul_u32_u24 v4, 0xaaaa, v4')
    A.I(f'v_add_u32 v{V_IDX}, 0x4444, v4')
    A.I(f'v_lshlrev_b32 v{V_L16}, 4, v{LANE}')
    A.I(f's_mul_i32 s{S_T0}, s{S_WV}, 640')
    A.I(f'v_lshrrev_b32 v4, 2, v{n}')
    A.I(f'v_mul_u32_u24 v4, 160, v4')
    A.I(f'v_lshl_add_u32 v4, v{g}, 4, v4')
    A.I(f'v_and_b32 v5, 3, v{n}')
    A.I(f'v_lshl_add_u32 v4, v5, 2, v4')
    A.I(f'v_add_u32 v{V_QKW}, s{S_T0}, v4')
    A.I(f'v_mul_u32_u24 v6, 160, v{g}')
    A.I(f'v_and_b32 v4, 1, v{n}')
    A.I(f'v_bfe_u32 v5, v{n}, 1, 2')
    A.I(f'v_lshl_add_u32 v4, v4, 2, v5')
    A.I(f'v_lshl_add_u32 v{V_QR}, v4, 4, v6')
    A.I(f'v_and_b32 v4, 1, v{n}')
    A.I(f'v_lshrrev_b32 v5, 2, v{n}')
    A.I(f'v_and_b32 v7, 2, v{n}')
    A.I(f'v_xor_b32 v5, v5, v7')
    A.I(f'v_lshl_add_u32 v4, v4, 2, v5')
    A.I(f'v_lshl_add_u32 v{V_KR}, v4, 4, v6')
    A.I(f'v_add_u32 v{V_KR}, {L_KX_}, v{V_KR}')
    A.I(f's_lshl_b32 s{S_T0}, s{S_WV}, 9')
    A.I(f's_add_u32 s{S_T0}, s{S_T0}, {L_OX}')
    A.I(f'v_lshrrev_b32 v4, 1, v{g}')
    A.I(f'v_lshlrev_b32 v4, 8, v4')
    A.I(f'v_lshrrev_b32 v5, 1, v{n}')
    A.I(f'v_lshl_add_u32 v4, v5, 6, v4')
    A.I(f'v_and_b32 v5, 1, v{g}')
    A.I(f'v_lshl_add_u32 v4, v5, 5, v4')
    A.I(f'v_and_b32 v5, 1, v{n}')
    A.I(f'v_lshl_add_u32 v4, v5, 4, v4')
    A.I(f'v_add_u32 v4, s{S_T0}, v4')
    A.I(f'v_add_u32 v5, {L_QX}, v{V_L16}')
    A.I(f'v_cmp_gt_u32 vcc, 8, v{n}')
    A.I(f'v_cndmask_b32 v{V_OW}, v5, v4, vcc')
    A.I(f's_lshl_b32 s{S_T0}, s{S_WV}, 14')
    A.I(f's_add_u32 s{S_T0}, s{S_T0}, {L_WO}')
    A.I(f'v_add_u32 v{V_WO0}, s{S_T0}, v{V_L16}')
    A.I(f'v_add_u32 v{V_WO1}, {L_HALF}, v{V_WO0}')
    A.I(f'v_add_u32 v{V_VX}, s{S_W11}, v{V_L16}')
    A.I(f'v_lshrrev_b32 v4, 3, v{n}')
    A.I(f'v_lshl_add_u32 v4, v{g}, 1, v4')
    A.I(f'v_mul_u32_u24 v4, {PB_GRP}, v4')
    A.I(f'v_and_b32 v5, 7, v{n}')
    A.I(f'v_lshl_add_u32 v4, v5, 4, v4')
    A.I(f's_mul_i32 s{S_T0}, s{S_WV}, {8 * PB_GRP}')
    A.I(f's_lshl_b32 s{S_T1}, s{S_H}, 8')
    A.I(f's_add_u32 s{S_T0}, s{S_T0}, s{S_T1}')
    A.I(f'v_add_u32 v{V_PBW}, s{S_T0}, v4')
    A.I(f's_mul_i32 s{S_T0}, s{S_H}, {PB_GRP}')
    A.I(f's_add_u32 s{S_PZ}, s{S_T0}, s{S_W11}')
    A.I(f's_lshl_b32 s{S_T1}, s{S_WV}, 7')
    A.I(f's_add_u32 s{S_T0}, s{S_T0}, s{S_T1}')
    A.I(f'v_lshlrev_b32 v4, 8, v{g}')
    A.I(f'v_lshl_add_u32 v4, v{n}, 3, v4')
    A.I(f'v_add_u32 v{V_RDR}, s{S_T0}, v4')
    A.I(f's_and_b32 s{S_T1}, s{S_H}, 1')
    A.I(f's_lshl_b32 s{S_T1}, s{S_T1}, 10')
    A.I(f's_lshl_b32 s{S_T0}, s{S_WV}, 12')
    A.I(f's_add_u32 s{S_T0}, s{S_T0}, s{S_T1}')
    A.I(f's_lshr_b32 s{S_T1}, s{S_H}, 1')
    A.I(f's_lshl_b32 s{S_T1}, s{S_T1}, 6')
    A.I(f's_add_u32 s{S_T0}, s{S_T0}, s{S_T1}')
    A.I(f'v_lshrrev_b32 v4, 3, v{n}')
    A.I(f'v_lshlrev_b32 v4, 5, v4')
    A.I(f'v_and_b32 v5, 1, v{n}')
    A.I(f'v_lshl_add_u32 v4, v5, 11, v4')
    A.I(f'v_bfe_u32 v5, v{n}, 1, 2')
    A.I(f'v_lshl_add_u32 v4, v5, 2, v4')
    A.I(f'v_add_u32 v4, s{S_T0}, v4')
    A.I(f'v_mov_b32 v5, 0x7f000000')
    A.I(f'v_cmp_gt_u32 vcc, 16, v{LANE}')
    A.I(f'v_cndmask_b32 v{V_MBW}, v5, v4, vcc')
    A.I(f'v_mov_b32 v4, 0x3f80')
    A.I(f'v_mov_b32 v5, 0x3f800000')
    A.I(f'v_and_b32 v6, 1, v{n}')
    A.I(f'v_cmp_eq_u32 vcc, 1, v6')
    A.I(f'v_cndmask_b32 v{V_SEL}, v4, v5, vcc')
    A.I(f'v_lshrrev_b32 v6, 1, v{n}')
    A.I(f'v_cmp_eq_u32 s[{S_M0}:{S_M0 + 1}], 0, v6')
    A.I(f'v_cmp_eq_u32 s[{S_M1}:{S_M1 + 1}], 1, v6')
    c = (128 ** -0.5) * math.log2(math.e)
    cb = struct.unpack("<I", struct.pack("<f", c))[0]
    A.I(f's_mov_b32 s{S_C}, 0x{cb:08x}')
    A.I(f's_mov_b32 s{S_C + 1}, 0x{cb:08x}')
    A.I(f's_mov_b32 s{S_ONE}, 0x3f803f80')
    A.I(f's_mov_b32 s{S_ONE + 1}, 0x3f803f80')


def init_exchange(A, s_mem0, st, rb=0, part=None):
    ws = f's[{S_WS}:{S_WS + 3}]'
    R_ = lambda i: i + rb
    if part in (0, None):
        make_srd(A, S_W, s_mem0, 8192)
        n = R_(3)
        A.I(f'v_and_b32 v{n}, 15, v{LANE}')
        A.I(f's_bfe_u32 s{S_T0}, s{S_H}, 0x20001')
        A.I(f's_lshl_b32 s{S_T0}, s{S_T0}, 11')
        A.I(f's_lshr_b32 s{S_T1}, s{S_H}, 3')
        A.I(f's_lshl_b32 s{S_T1}, s{S_T1}, 8')
        A.I(f's_add_u32 s{S_T0}, s{S_T0}, s{S_T1}')
        A.I(f's_and_b32 s{S_T1}, s{S_WV}, 1')
        A.I(f's_lshl_b32 s{S_T1}, s{S_T1}, 7')
        A.I(f's_add_u32 s{S_T0}, s{S_T0}, s{S_T1}')
        A.I(f's_and_b32 s{S_T1}, s{S_H}, 1')
        A.I(f's_lshl_b32 s{S_T1}, s{S_T1}, 4')
        A.I(f's_add_u32 s{S_T0}, s{S_T0}, s{S_T1}')
        A.I(f'v_and_b32 v{R_(12)}, 1, v{n}')
        A.I(f'v_lshlrev_b32 v{R_(12)}, 6, v{R_(12)}')
        A.I(f'v_lshrrev_b32 v{R_(13)}, 1, v{n}')
        A.I(f'v_lshl_add_u32 v{R_(12)}, v{R_(13)}, 1, v{R_(12)}')
        w = f's[{S_W}:{S_W + 3}]'
        for i, off in enumerate((0, 32, 1024, 1056)):
            A.I(f'buffer_load_ushort v{R_(8 + i)}, v{R_(12)}, {w}, s{S_T0} offen offset:{off}')
    if part in (1, None):
        for r in range(4, 8):
            A.I(f'v_mov_b32 v{R_(r)}, -1')
        for r in range(3):
            A.I(f's_add_u32 s{S_T0}, s{S_PZ}, 0x{WS_PB + r * PB_SLOT:x}')
            for c in range(2):
                A.I(f'buffer_store_dwordx4 {v(R_(4), 4)}, v{V_L16}, {ws}, s{S_T0} offen offset:{1024 * c} {st}')
        le = A.newlabel('L_ie')
        A.I(f's_cmp_ge_u32 s{S_WV}, 2')
        A.br(f's_cbranch_scc1 {le}')
        A.I(f's_mov_b32 s{S_T0}, 0x{WS_MB + 8192:x}')
        A.I(f'buffer_store_dword v{R_(4)}, v{V_MBW}, {ws}, s{S_T0} offen {st}')
        A.I(f'buffer_store_dword v{R_(4)}, v{V_MBW}, {ws}, s{S_T0} offen offset:16 {st}')
        A.I(f's_waitcnt vmcnt({40 if part == 1 else 0})')
        A.I(f'v_lshl_or_b32 v{R_(8)}, v{R_(9)}, 16, v{R_(8)}')
        A.I(f'v_lshl_or_b32 v{R_(10)}, v{R_(11)}, 16, v{R_(10)}')
        A.I(f'v_min_u32 v{R_(8)}, -2, v{R_(8)}')
        A.I(f'v_min_u32 v{R_(10)}, -2, v{R_(10)}')
        A.I(f's_mov_b32 s{S_T0}, 0x{WS_MB:x}')
        A.I(f'buffer_store_dword v{R_(8)}, v{V_MBW}, {ws}, s{S_T0} offen {st}')
        A.I(f'buffer_store_dword v{R_(10)}, v{V_MBW}, {ws}, s{S_T0} offen offset:16 {st}')
        A.label(le)
    if part is None:
        A.I('s_waitcnt vmcnt(0)')


HS = [('q', 0, 0), ('q', 1, 0), ('q', 0, 1), ('q', 1, 1), ('k', 0, 0), ('k', 1, 0), ('k', 0, 1), ('k', 1, 1)]
QBUF = dict(zip(HS, [KX, KX + 8, KX + 16, KX + 24, VX, T, T + 8, ACC + 16]))


def zero(A, r0, n):
    for i in range(0, n, 2):
        A.I(f'v_mov_b64 {v(r0 + i, 2)}, 0')


def q_prefetch(A, part=None):
    for i, f in enumerate(HS):
        if part is not None and (i >> 2) != part:
            continue
        lds_frag_read(A, f, QBUF[f])
        if i == 5:
            A.I('s_waitcnt lgkmcnt(8)')


def kv_dma(A):
    ws = f's[{S_WS}:{S_WS + 3}]'
    A.I(f's_mov_b32 m0, s{S_KVM0}')
    A.I(f's_add_u32 s{S_T0}, s{S_KVN}, 0x{WS_VF - WS_KF:x}')
    A.I(f'buffer_load_dwordx4 v{V_L16}, {ws}, s{S_KVN} offen lds')
    A.I(f'buffer_load_dwordx4 v{V_L16}, {ws}, s{S_KVN} offen offset:1024 lds')
    A.I(f's_add_u32 m0, s{S_KVM0}, 8192')
    A.I(f's_add_u32 s{S_KVN}, s{S_KVN}, 0x40000')
    A.I(f'buffer_load_dwordx4 v{V_L16}, {ws}, s{S_T0} offen lds')
    A.I(f'buffer_load_dwordx4 v{V_L16}, {ws}, s{S_T0} offen offset:1024 lds')


S_AV, S_RA, S_KP = 21, 22, 24
F_KMP = WS_FLAG + 0x3000
F_PROG = WS_FLAG


def kv_eval(A, vt, vlane16, s_av):
    p, t, u_ = vt, vt + 1, vt + 2
    A.I(f'v_bfe_u32 v{t}, v{vlane16}, 6, 1')
    A.I(f'v_lshl_add_u32 v{t}, v{p}, 1, v{t}')
    A.I(f'v_bfe_u32 v{u_}, v{vlane16}, 7, 1')
    A.I(f'v_lshl_add_u32 v{t}, v{u_}, 5, v{t}')
    A.I(f'v_cmp_le_u32 vcc, 16, v{p}')
    A.I(f'v_mov_b32 v{u_}, 64')
    A.I(f'v_cndmask_b32 v{t}, v{t}, v{u_}, vcc')
    for k in (8, 4, 2, 1):
        A.I(f'v_min_u32_dpp v{t}, v{t}, v{t} row_ror:{k} row_mask:0xf bank_mask:0xf')
    A.I(f'v_readfirstlane_b32 s{s_av}, v{t}')


def kv_load(A, vt, vlane16, s_base):
    ws = f's[{S_WS}:{S_WS + 3}]'
    A.I(f'v_lshrrev_b32 v{vt + 1}, 2, v{vlane16}')
    A.I(f'v_and_b32 v{vt + 1}, 0x7c, v{vt + 1}')
    A.I(f'buffer_load_dword v{vt}, v{vt + 1}, {ws}, s{s_base} offen sc1')


def kv_wait(A, l_exit, s_need, vt, s_av=S_AV, s_base=S_RA, sleep=0, vlane16=V_L16):
    l = A.newlabel('L_kvw')
    A.label(l)
    kv_load(A, vt, vlane16, s_base)
    A.I(f's_sub_u32 s{S_SPIN}, s{S_SPIN}, 1')
    A.I(f's_cbranch_scc1 {l_exit}')
    A.I('s_waitcnt vmcnt(0)')
    kv_eval(A, vt, vlane16, s_av)
    if sleep:
        ld = A.newlabel('L_kvd')
        A.I(f's_cmp_gt_u32 s{s_av}, s{s_need}')
        A.I(f's_cbranch_scc1 {ld}')
        A.I(f's_sleep {sleep}')
        A.br(f's_branch {l}')
        A.label(ld)
    else:
        A.I(f's_cmp_le_u32 s{s_av}, s{s_need}')
        A.br(f's_cbranch_scc1 {l}')


def main_loop(A, st, l_exit, kvcheck=False):
    ws = f's[{S_WS}:{S_WS + 3}]'
    A.I(f's_mov_b32 s{S_STEP}, 0')
    A.I(f's_mov_b32 s{S_MBR}, 0x{WS_MB:x}')
    A.I(f's_mov_b32 s{S_MBW}, 0x{WS_MB + 8192:x}')
    A.I(f's_mov_b32 s{S_PB0}, 0x{WS_PB:x}')
    A.I(f's_mov_b32 s{S_PB1}, 0x{WS_PB + PB_SLOT:x}')
    A.I(f's_lshl_b32 s{S_KMO}, s{S_H}, 12')
    A.I(f's_lshl_b32 s{S_T0}, s{S_WV}, 10')
    A.I(f's_add_u32 s{S_KMO}, s{S_KMO}, s{S_T0}')
    A.I(f's_add_u32 s{S_KMO}, s{S_KMO}, 0x{WS_KM - 0x20000:x}')
    A.I(f's_mul_i32 s{S_W640}, s{S_WV}, 640')
    A.I(f's_lshl_b32 s{S_VMO}, s{S_H}, 11')
    A.I(f's_lshl_b32 s{S_T0}, s{S_WV}, 9')
    A.I(f's_add_u32 s{S_VMO}, s{S_VMO}, s{S_T0}')
    A.I(f's_add_u32 s{S_VMO}, s{S_VMO}, 0x{WS_VM - 0x10000:x}')
    A.I(f's_lshr_b32 s{S_T0}, s{S_WV}, 1')
    A.I(f's_mul_i32 s{S_TCH}, s{S_T0}, 0x{WS_VF - WS_KF:x}')
    A.I(f's_and_b32 s{S_T0}, s{S_WV}, 1')
    A.I(f's_lshl_b32 s{S_T0}, s{S_T0}, 12')
    A.I(f's_add_u32 s{S_TCH}, s{S_TCH}, s{S_T0}')
    A.I(f's_lshl_b32 s{S_T0}, s{S_H}, 13')
    A.I(f's_add_u32 s{S_TCH}, s{S_TCH}, s{S_T0}')
    A.I(f's_add_u32 s{S_TCH}, s{S_TCH}, 0x{WS_KF + TOUCH_AHEAD * 0x40000:x}')

    NST = 12
    order = []

    def stamp(i):
        if not STAMPS:
            return
        order.append(i)
        A.raw(f'    s_memtime s[{64 + 2 * i}:{65 + 2 * i}]')
        A.pos += 1

    def stamp_acc():
        if not STAMPS:
            return
        A.I('s_waitcnt lgkmcnt(0)')
        if E('RAW', 0):
            lk = A.newlabel('L_raw')
            A.I(f's_cmp_lg_u32 s{S_STEP}, {E("RAW", 0)}')
            A.I(f's_cbranch_scc1 {lk}')
            for i in range(NST):
                if i != 6:
                    A.I(f's_mov_b32 s{88 + i}, s{64 + 2 * i}')
            A.label(lk)
            lk = A.newlabel('L_raw')
            A.I(f's_cmp_lg_u32 s{S_STEP}, {E("RAW", 0) - 1}')
            A.I(f's_cbranch_scc1 {lk}')
            A.I(f's_mov_b32 s{88 + 6}, s{64 + 12}')
            A.label(lk)
            return
        prev = 100
        for i in order:
            A.I(f's_sub_u32 s101, s{64 + 2 * i}, s{prev}')
            A.I(f's_add_u32 s{88 + i}, s{88 + i}, s101')
            prev = 64 + 2 * i
        A.I(f's_mov_b32 s100, s{prev}')
    if STAMPS:
        for i in range(NST):
            A.I(f's_mov_b32 s{88 + i}, 0')
        A.I(f's_memtime s[64:65]')
        A.I('s_waitcnt lgkmcnt(0)')
        for i in range(NST):
            A.I(f's_mov_b32 s{64 + 2 * i}, s64')
        A.I(f's_mov_b32 s100, s64')

    L_top = A.newlabel('L_rec')
    L_af = A.newlabel('L_afpoll')
    L_red = A.newlabel('L_red')
    L_bh = A.newlabel('L_bh')
    L_w23 = A.newlabel('L_w23')
    L_fin = A.newlabel('L_fin')
    HS_ = E('HSTAMP', 0)
    _stamp = stamp
    if HS_:
        order.extend([2, 3, 7, 9, 10])

    def hstamp(i):
        if STAMPS and HS_:
            A.raw(f'    s_memtime s[{64 + 2 * i}:{65 + 2 * i}]')
            A.pos += 1

    def stamp(i):
        if HS_ and i in (2, 3, 9, 10):
            return
        if HS_ and i == 7:
            return hstamp(7)
        _stamp(i)

    L_pslow = A.newlabel('L_pslow')
    L_aslow = A.newlabel('L_aslow')
    L_afok = A.newlabel('L_afok')
    L_afchk = A.newlabel('L_afchk')
    RA, RB, SEL, RD = 0, 16, ACC + 8, ACC + 12
    mx, tm = V_MX, V_TM
    TWO_PB, TWO_AF = E('TWO_PB', 1), E('TWO_AF', 1)

    def addr3():
        A.I(f'v_xor_b32 v{V_MX}, 2048, v{V_VX}')
        A.I(f'v_xor_b32 v{V_TM}, 4096, v{V_VX}')
        A.I(f'v_xor_b32 v{V_SP}, 6144, v{V_VX}')

    A.I(f's_mov_b32 s{S_TAG}, 0')
    zero(A, ACC, 8)
    q_prefetch(A)
    A.br(f's_branch {L_af}')

    def pb_loads(b):
        for i in range(8):
            so = S_PB0 if i < 4 else S_PB0H
            A.I(f'buffer_load_dwordx2 {v(b + 2 * i, 2)}, v{V_RDR}, {ws}, s{so} offen offset:{(i & 3) * 1024} {LDF}')

    def red(b, base):
        for i in range(4):
            A.I(f's_waitcnt vmcnt({base + 6 - 2 * i})')
            c = '0' if i == 0 else v(RD, 4)
            A.I(f'v_mfma_f32_16x16x32_bf16 {v(RD, 4)}, {v(SEL, 4)}, {v(b + 4 * i, 4)}, {c}')
            r = b + 4 * i
            tt = 0
            for idx in range(8):
                a_, b_, s_ = (idx >> 2) & 1, (idx >> 1) & 1, idx & 1
                if (a_ ^ s_) | (b_ ^ s_):
                    tt |= 1 << idx
            d = mx if i == 0 else tm
            A.I(f'v_bitop3_b32 v{d}, v{r}, v{r + 2}, s{S_TAG} bitop3:0x{tt:x}')
            if i:
                A.I(f'v_or_b32 v{mx}, v{mx}, v{tm}')
        A.I(f'v_and_b32 v{mx}, 1, v{mx}')
        A.I(f'v_cmp_eq_u32 vcc, 1, v{mx}')

    def af_loads(b):
        for i in range(2):
            A.I(f'buffer_load_dwordx4 {v(b + 4 * i, 4)}, v{V_L16}, {ws}, s{S_AFO} offen offset:{i * 1024} {LDF}')

    def af_chk(b, tmp):
        A.I(f'ds_write_b128 v{V_VX}, {v(b, 4)} offset:{L_AF}')
        A.I(f'v_max3_u32 v{tmp}, v{b}, v{b + 1}, v{b + 2}')
        A.I(f'v_max3_u32 v{tmp}, v{tmp}, v{b + 3}, v{b + 4}')
        A.I(f'ds_write_b128 v{V_VX}, {v(b + 4, 4)} offset:{L_AF + 1024}')
        A.I(f'v_max3_u32 v{tmp}, v{tmp}, v{b + 5}, v{b + 6}')
        A.I(f'v_max_u32 v{tmp}, v{tmp}, v{b + 7}')
        A.I(f'v_cmp_eq_u32 vcc, -1, v{tmp}')

    A.raw('.p2align 6')
    A.label(L_top)
    A.forget_loads()
    A.check = False
    red(RA, 8 if TWO_PB else 0)
    hstamp(3)
    A.I(f's_cbranch_vccnz {L_pslow}')
    A.label(L_red, flush=False)
    A.I(f'v_mov_b32 v{tm}, -1')
    A.I('s_nop 2')
    A.I(f'v_cvt_pk_bf16_f32 v{RD}, v{RD}, v{RD + 1}')
    A.I(f'v_cvt_pk_bf16_f32 v{RD + 2}, v{RD + 2}, v{RD + 3}')
    A.I(f'buffer_store_dword v{RD}, v{V_MBW}, {ws}, s{S_MBW} offen {st}')
    A.I(f'buffer_store_dword v{RD + 2}, v{V_MBW}, {ws}, s{S_MBW} offen offset:16 {st}')
    A.I(f'buffer_store_dword v{tm}, v{V_MBW}, {ws}, s{S_MBR} offen {st}')
    A.I(f'buffer_store_dword v{tm}, v{V_MBW}, {ws}, s{S_MBR} offen offset:16 {st}')
    if E('AFW', 0):
        A.I('s_waitcnt vmcnt(2)')
    A.label(L_bh, flush=False)
    stamp(7)
    A.I('s_barrier')
    A.I(f's_mov_b32 s{S_T0}, s{S_MBR}')
    A.I(f's_mov_b32 s{S_MBR}, s{S_MBW}')
    A.I(f's_mov_b32 s{S_MBW}, s{S_T0}')
    A.I(f's_mov_b32 s{S_T0}, s{S_PB0}')
    A.I(f's_mov_b32 s{S_PB0}, s{S_PB1}')
    A.I(f's_mov_b32 s{S_PB1}, s{S_T0}')
    A.I(f's_add_u32 s{S_STEP}, s{S_STEP}, 1')
    A.I(f's_bfe_u32 s{S_TAG}, s{S_STEP}, 0x10001')
    A.label(L_af, flush=False)
    A.I(f's_add_u32 s{S_AFO}, s{S_MBR}, s{S_W11}')
    zero(A, ACC + 8, 8)
    addr3()
    for i in range(AF_DELAY):
        A.I('s_nop 7')
    ASETS = [0, 24, 16]
    af_loads(0)
    hstamp(9)
    for b in ASETS[1:]:
        for i in range(AF_GAP):
            A.I('s_nop 7')
        af_loads(b)

    def mf(mat, nb, t, src=None):
        acc = ACC + ('qkv'.index(mat) * 2 + nb) * 4
        if src is None:
            src = QBUF.get((mat, nb, t))
        b = v(src, 8) if src is not None else u(HOME[(mat, nb, t)], 8)
        A.I(f'v_smfmac_f32_16x16x64_bf16 {v(acc, 4)}, {v(AF + 4 * t, 4)}, {b}, v{V_IDX}')

    A.label(L_afchk, flush=False)
    A.I(f's_waitcnt vmcnt(4) lgkmcnt(0)')
    A.label(L_afok, flush=False)
    hstamp(10)
    tmp = 8
    A.I(f'ds_write_b128 v{V_VX}, {v(0, 4)} offset:{L_AF}')
    A.I(f'ds_write_b128 v{V_VX}, {v(4, 4)} offset:{L_AF + 1024}')
    mf('q', 0, 0)
    A.I(f'v_max3_u32 v{tmp}, v0, v1, v2')
    A.I(f'v_max3_u32 v{tmp}, v{tmp}, v3, v4')
    mf('q', 1, 0)
    A.I(f'v_max3_u32 v{tmp}, v{tmp}, v5, v6')
    A.I(f'v_max_u32 v{tmp}, v{tmp}, v7')
    A.I(f'v_cmp_eq_u32 vcc, -1, v{tmp}')
    A.I(f's_cbranch_vccnz {L_aslow}')
    stamp(8)
    A.check = True
    A.forget_loads()
    A.I('s_waitcnt lgkmcnt(0)')
    A.I('s_barrier')
    stamp(0)
    pend = []
    ar = {1: V_MX, 2: V_TM, 3: V_SP}
    hs = [('q', 0, 1), ('q', 1, 1), ('k', 0, 0), ('k', 1, 0), ('k', 0, 1), ('k', 1, 1)]

    def afr(uu):
        A.I(f'ds_read_b128 {v(AF + 4 * uu, 4)}, v{ar[uu >> 1]} offset:{L_AF + 1024 * (uu & 1)}')
        pend.append(('af', uu))
    afr(2); afr(3)
    mf(*hs[0])
    A.I(f'v_lshlrev_b32 v{V_MX}, 2, v{V_L16}')
    mf(*hs[1])
    mf(*hs[2])
    mf(*hs[3])
    KBUF = {}

    def kload(nb, t, b):
        KBUF[(nb, t)] = b
        lds_frag_read(A, ('k', nb, t), b)
        pend.extend([('k', t), ('k', t)])

    kload(0, 2, QBUF[('q', 0, 0)])
    mf(*hs[4])
    kload(1, 2, QBUF[('q', 1, 0)])
    mf(*hs[5])
    A.I('s_waitcnt vmcnt(0)')
    for uu in range(4, 8):
        afr(uu)
    A.I(f'v_lshrrev_b32 v{V_TM}, 2, v{V_L16}')
    if kvcheck:
        L_kvc, L_kvr = A.newlabel('L_kvc'), A.newlabel('L_kvr')
        A.I(f's_add_u32 s23, s{S_STEP}, 1')
        A.I(f's_cmp_ge_u32 s23, s{S_AV}')
        A.I(f's_cbranch_scc1 {L_kvc}')
        A.label(L_kvr, flush=False)
    if not E('NODMA', 0):
        A.I(f'buffer_load_dword v{V_SP}, v{V_MX}, {ws}, s{S_TCH} offen')
    if kvcheck:
        A.check = False
        A.I(f'buffer_load_dword v{V_SP}, v{V_TM}, {ws}, s{S_RA} offen sc1')
        A.check = True

    def wait_for(name):
        if name not in pend:
            return
        idx = max(i for i, p in enumerate(pend) if p == name)
        n = len(pend) - 1 - idx
        A.I(f's_waitcnt lgkmcnt({n})')
        del pend[:idx + 1]

    EXP, EXV = ACC + 16, ACC + 20
    for t in range(2, 8):
        wait_for(('af', t))
        mf('q', 0, t)
        if t == 2:
            kload(0, 3, QBUF[('q', 0, 1)])
        if t == 3:
            kload(1, 3, QBUF[('q', 1, 1)])
        if t == 4:
            A.I(f'v_add_u32 v{EXP}, s{S_W640}, v{V_KR}')
        if t == 5:
            A.I(f'v_lshrrev_b32 v{EXV}, 2, v{V_VX}')
        if t == 6:
            A.I(f'ds_read_b64 {v(EXV, 2)}, v{EXV} offset:{L_VM}')
            pend.append(('ex', 1))
        mf('q', 1, t)
        if t == 4:
            A.I(f'ds_read_b128 {v(EXP, 4)}, v{EXP}')
            pend.append(('ex', 0))
        if t == 5:
            A.I(f'v_lshl_add_u32 v{EXV}, v{V_MX}, 0, v{EXV}' if False else f'v_add_u32 v{EXV}, v{EXV}, v{V_TM}')
        if t >= 6:
            A.I(f'ds_read_b128 {v(VX + 4 * (t - 6), 4)}, v{V_VX} offset:{L_KV + 8192 + 1024 * (t - 6)}')
            pend.append(('vx', t))
    stamp(1)
    q0, q1, k0, k1 = ACC, ACC + 4, ACC + 8, ACC + 12
    QF = T

    def kmf(t, nb):
        mf('k', nb, t, KBUF.get((nb, t)))

    def pack(b0, b1):
        return [f'v_add_f32 v{b0}, v{b0}, v{b0 + 2}',
                f'v_add_f32 v{b0 + 1}, v{b0 + 1}, v{b0 + 3}',
                f'v_add_f32 v{b1}, v{b1}, v{b1 + 2}',
                f'v_add_f32 v{b1 + 1}, v{b1 + 1}, v{b1 + 3}',
                f'v_cvt_pk_bf16_f32 v{b0}, v{b0}, v{b1}',
                f'v_cvt_pk_bf16_f32 v{b0 + 1}, v{b0 + 1}, v{b1 + 1}']

    wait_for(('k', 2))
    kmf(2, 0)
    A.I(f's_add_u32 s{S_TCH}, s{S_TCH}, 0x40000')
    A.I(f'v_lshrrev_b32 v{V_TM}, 1, v{V_L16}')
    kmf(2, 1)
    wait_for(('ex', 1))
    if not E('NOEXP', 0):
        A.I(f'buffer_store_dwordx4 {v(EXP, 4)}, v{V_L16}, {ws}, s{S_KMO} offen {EXF}')
    kmf(3, 0)
    if not E('NOEXP', 0):
        A.I(f'buffer_store_dwordx2 {v(EXV, 2)}, v{V_TM}, {ws}, s{S_VMO} offen {EXF}')
    A.I(f's_add_u32 s{S_KMO}, s{S_KMO}, 0x20000')
    A.I(f's_add_u32 s{S_VMO}, s{S_VMO}, 0x10000')
    kmf(3, 1)
    if kvcheck:
        A.I(f'v_mov_b32 v{V_TM}, s{S_STEP}')
        A.I('s_mov_b64 exec, 1')
        A.I(f'buffer_store_dword v{V_TM}, off, {ws}, s{S_KP} sc1')
        A.I('s_mov_b64 exec, -1')
    kxr = [f'ds_read_b128 {v(KX + 4 * f, 4)}, v{V_L16} offset:{L_KV + 1024 * f}' for f in range(8)]
    pq = pack(q0, q1) + [f'ds_write2_b32 v{V_QKW}, v{q0}, v{q0 + 1} offset0:0 offset1:16']
    fl = []
    for i in range(8):
        fl.append([kxr[i]] + ([pq[i]] if i < 7 else []) + ([f'v_mov_b64 {v(ACC + 16 + (i - 4) * 2, 2)}, 0'] if i >= 4 else []))
    for i, (t, nb) in enumerate([(t, nb) for t in range(4, 8) for nb in range(2)]):
        for x in fl[i]:
            A.I(x)
        kmf(t, nb)
    stamp(2)
    pk = pack(k0, k1)
    mf('v', 0, 0)
    mf('v', 1, 0)
    A.I('s_nop 4')
    A.I(pk[0]); A.I(pk[1]); A.I(pk[2])
    mf('v', 0, 1)
    A.I(pk[3]); A.I(pk[4]); A.I(pk[5])
    A.I(f'ds_write_b32 v{V_QKW}, v{k0} offset:{L_KX_}')
    A.I(f'ds_write_b32 v{V_QKW}, v{k0 + 1} offset:{L_KX_ + 64}')
    mf('v', 1, 1)
    mf('v', 0, 2)
    mf('v', 1, 2)
    mf('v', 0, 3)
    A.I(f's_cmp_eq_u32 s{S_STEP}, {NSTEPS}')
    A.I('s_waitcnt lgkmcnt(0)')
    A.I(f's_cbranch_scc1 {L_fin}')
    A.I('s_barrier')
    stamp(3)
    KMF, ONES = 0, 20
    for ks in range(4):
        A.I(f'ds_read_b128 {v(QF + 4 * ks, 4)}, v{V_QR} offset:{640 * ks}')
        if ks == 1:
            mf('v', 1, 3)
    mf('v', 0, 4)
    for ks in range(4):
        A.I(f'ds_read_b128 {v(KMF + 4 * ks, 4)}, v{V_KR} offset:{640 * ks}')
        if ks == 1:
            mf('v', 1, 4)
    dm = []
    if not E('NODMA', 0):
        dm = [f's_mov_b32 m0, s{S_KVM0}\ns_add_u32 s{S_T0}, s{S_KVN}, 0x{WS_VF - WS_KF:x}\nbuffer_load_dwordx4 v{V_L16}, {ws}, s{S_KVN} offen lds',
              f'buffer_load_dwordx4 v{V_L16}, {ws}, s{S_KVN} offen offset:1024 lds\ns_add_u32 m0, s{S_KVM0}, 8192\ns_add_u32 s{S_KVN}, s{S_KVN}, 0x40000',
              f'buffer_load_dwordx4 v{V_L16}, {ws}, s{S_T0} offen lds',
              f'buffer_load_dwordx4 v{V_L16}, {ws}, s{S_T0} offen offset:1024 lds']
    else:
        dm = ['s_nop 0'] * 4
    mf('v', 0, 5)
    mf('v', 1, 5)
    mf('v', 0, 6)
    mf('v', 1, 6)
    X0, X1, M, P = q0, q1, k0, k1
    O0, O1, Lr, PMA, PMB = KX + 16, KX + 20, KX + 24, KX + 28, KX + 30

    def sx(i):
        ks, kb = i >> 1, i & 1
        X = X1 if kb else X0
        c = '0' if ks == 0 else v(X, 4)
        A.I(f'v_mfma_f32_16x16x32_bf16 {v(X, 4)}, {v(KX + 16 * kb + 4 * ks, 4)}, {v(QF + 4 * ks, 4)}, {c}')

    for ks in range(4):
        A.I(f's_waitcnt lgkmcnt({7 - ks})')
        sx(2 * ks)
        if ks == 2:
            A.I(f'v_mov_b64 {v(ONES, 2)}, s[{S_ONE}:{S_ONE + 1}]')
        if ks == 3:
            A.I(f'v_mov_b64 {v(ONES + 2, 2)}, s[{S_ONE}:{S_ONE + 1}]')
        sx(2 * ks + 1)
    stamp(9)
    A.I('s_waitcnt lgkmcnt(0)')
    for ks in range(4):
        cm = '0' if ks == 0 else v(M, 4)
        A.I(f'v_mfma_f32_16x16x32_bf16 {v(M, 4)}, {v(KMF + 4 * ks, 4)}, {v(QF + 4 * ks, 4)}, {cm}')
        if ks == 0:
            A.I(f'v_mov_b32 v{PMA + 1}, 0')
            A.I(f'v_mov_b32 v{PMB}, 0')
        if ks == 1:
            A.I('s_nop 1')
            A.I(f'v_max3_f32 v{mx}, v{X0}, v{X0 + 1}, v{X0 + 2}')
            A.I(f'v_max3_f32 v{tm}, v{X1}, v{X1 + 1}, v{X1 + 2}')
        if ks == 2:
            A.I(f'v_max3_f32 v{mx}, v{mx}, v{X0 + 3}, v{X1 + 3}')
            A.I(f'v_max_f32 v{mx}, v{mx}, v{tm}')
        if ks == 3:
            A.I(f'v_mov_b32 v{tm}, v{mx}')
    mf('v', 0, 7)
    A.I('s_nop 0')
    A.I(f'v_permlane32_swap_b32 v{mx}, v{tm}')
    mf('v', 1, 7)
    A.I(f'v_max_f32 v{mx}, v{mx}, v{tm}')
    A.I('s_nop 1')
    A.I(f'v_max3_f32 v{tm}, v{M}, v{M + 1}, v{M + 2}')
    A.I(f'v_max3_f32 v{mx}, v{tm}, v{M + 3}, v{mx}')
    A.I(f'v_mov_b32 v{tm}, v{mx}')
    sets = [X1, KX, O0, T]
    A.I(f'v_mov_b64 {v(sets[1], 2)}, 0')
    A.I(f'v_mov_b64 {v(sets[1] + 2, 2)}, 0')
    A.I(f'v_permlane16_swap_b32 v{mx}, v{tm}')
    A.I(f'v_max_f32 v{mx}, v{mx}, v{tm}')
    A.I(f'v_mul_f32_e64 v{mx}, -s{S_C}, v{mx}')

    def pkfma(r):
        A.I(f'v_pk_fma_f32 {v(r, 2)}, {v(r, 2)}, s[{S_C}:{S_C + 1}], {v(mx, 2)} op_sel:[0,0,0] op_sel_hi:[1,1,0]')

    va, vb = ACC + 16, ACC + 20
    VMP = va + 2
    for r in (M, X0, X0 + 2, X1, X1 + 2):
        pkfma(r)
    A.I(f'v_exp_f32 v{M}, v{M}')
    A.I(f'v_exp_f32 v{M + 1}, v{M + 1}')
    A.I(f'v_pk_add_f32 {v(va, 2)}, {v(va, 2)}, {v(va + 2, 2)}')
    A.I(f'v_pk_add_f32 {v(vb, 2)}, {v(vb, 2)}, {v(vb + 2, 2)}')
    A.I(f'v_cvt_pk_bf16_f32 v{PMA}, v{M}, v{M + 1}')
    A.I(f'v_cvt_pk_bf16_f32 v{PMB + 1}, v{M}, v{M + 1}')
    A.I(f'v_cvt_pk_bf16_f32 v{VMP}, v{va}, v{va + 1}')
    A.I(f'v_cvt_pk_bf16_f32 v{VMP + 1}, v{vb}, v{vb + 1}')
    A.I(f'v_exp_f32 v{X0}, v{X0}')
    stamp(10)
    A.I(f'v_mfma_f32_16x16x16_bf16 {v(Lr, 4)}, {v(ONES, 2)}, {v(PMA, 2)}, 0')
    A.I(f'v_exp_f32 v{X0 + 1}, v{X0 + 1}')
    A.I(f'v_mfma_f32_16x16x16_bf16 {v(O0, 4)}, {v(VMP, 2)}, {v(PMA, 2)}, 0')
    A.I(f'v_exp_f32 v{X0 + 2}, v{X0 + 2}')
    A.I(f'v_mfma_f32_16x16x16_bf16 {v(O1, 4)}, {v(VMP, 2)}, {v(PMB, 2)}, 0')
    A.I(f'v_exp_f32 v{X0 + 3}, v{X0 + 3}')
    A.I(f'v_cvt_pk_bf16_f32 v{P}, v{X0}, v{X0 + 1}')
    A.I(f'v_exp_f32 v{X1}, v{X1}')
    A.I(f'v_exp_f32 v{X1 + 1}, v{X1 + 1}')
    A.I(f'v_cvt_pk_bf16_f32 v{P + 1}, v{X0 + 2}, v{X0 + 3}')
    A.I(f'v_exp_f32 v{X1 + 2}, v{X1 + 2}')
    A.I(f'v_exp_f32 v{X1 + 3}, v{X1 + 3}')
    A.I(f'v_cvt_pk_bf16_f32 v{P + 2}, v{X1}, v{X1 + 1}')
    A.I(f'v_cvt_pk_bf16_f32 v{P + 3}, v{X1 + 2}, v{X1 + 3}')
    A.I(f'v_lshrrev_b32 v{tm}, 2, v{V_VX}')
    A.I(f'v_mov_b64 {v(sets[0], 2)}, 0')
    A.I(f'v_mfma_f32_16x16x32_bf16 {v(Lr, 4)}, {v(ONES, 4)}, {v(P, 4)}, {v(Lr, 4)}')
    A.I(f'v_mov_b64 {v(sets[0] + 2, 2)}, 0')
    A.I(f'v_mov_b64 {v(sets[0] + 4, 2)}, 0')
    A.I(f'v_mfma_f32_16x16x32_bf16 {v(O0, 4)}, {v(VX, 4)}, {v(P, 4)}, {v(O0, 4)}')
    A.I(f'v_mov_b64 {v(sets[0] + 6, 2)}, 0')
    A.I(f'v_mov_b64 {v(sets[1] + 4, 2)}, 0')
    A.I(f'v_mfma_f32_16x16x32_bf16 {v(O1, 4)}, {v(VX + 4, 4)}, {v(P, 4)}, {v(O1, 4)}')
    A.I(f'v_mov_b64 {v(sets[1] + 6, 2)}, 0')
    A.I(f'v_mov_b64 {v(sets[3], 2)}, 0')
    A.I(f'v_rcp_f32 v{mx}, v{Lr}')
    A.I(f'v_mov_b64 {v(sets[3] + 2, 2)}, 0')
    A.I(f'v_mov_b64 {v(sets[3] + 4, 2)}, 0')
    OW = X0

    def pkmul(r):
        A.I(f'v_pk_mul_f32 {v(r, 2)}, {v(r, 2)}, {v(mx, 2)} op_sel:[0,0] op_sel_hi:[1,0]')

    pkmul(O0)
    pkmul(O0 + 2)
    A.I(f'v_cvt_pk_bf16_f32 v{OW}, v{O0}, v{O0 + 1}')
    A.I(f'v_cvt_pk_bf16_f32 v{OW + 1}, v{O0 + 2}, v{O0 + 3}')
    pkmul(O1)
    pkmul(O1 + 2)
    A.I(f'v_cvt_pk_bf16_f32 v{OW + 2}, v{O1}, v{O1 + 1}')
    A.I(f'v_cvt_pk_bf16_f32 v{OW + 3}, v{O1 + 2}, v{O1 + 3}')
    A.I(f'ds_write_b128 v{V_OW}, {v(OW, 4)}')
    stamp(4)
    A.I(f'v_lshrrev_b32 v{mx}, 2, v{V_L16}')
    A.I(f'v_add_u32 v{tm}, v{tm}, v{mx}')
    A.I(f'ds_write_b64 v{tm}, {v(VMP, 2)} offset:{L_VM}')
    zero(A, sets[2], 8)
    A.I(f'v_mov_b64 {v(sets[3] + 6, 2)}, 0')
    A.I('s_waitcnt lgkmcnt(1)')
    A.I('s_barrier')
    OF = VX
    A.I(f'ds_read_b128 {v(OF, 4)}, v{V_L16} offset:{L_OX}')
    A.I(f'ds_read_b128 {v(OF + 4, 4)}, v{V_L16} offset:{L_OX + 1024}')
    OBUF = {(6, 0): 0, (7, 0): 8, (6, 1): 24, (7, 1): KX + 8}
    A.I(f's_add_u32 s{S_PB0H}, s{S_PB0}, 4096')
    A.I('s_waitcnt lgkmcnt(1)')
    stamp(5)

    def post(c):
        a0, b0 = sets[c], sets[c] + 4
        o = (OW if c < 2 else P) + 2 * (c & 1)
        if c == 3:
            l = [f'v_pk_add_f32 {v(a0, 2)}, {v(a0, 2)}, {v(a0 + 2, 2)}',
                 f'v_pk_add_f32 {v(b0, 2)}, {v(b0, 2)}, {v(b0 + 2, 2)}']
        else:
            l = [f'v_add_f32 v{a0}, v{a0}, v{a0 + 2}', f'v_add_f32 v{a0 + 1}, v{a0 + 1}, v{a0 + 3}',
                 f'v_add_f32 v{b0}, v{b0}, v{b0 + 2}', f'v_add_f32 v{b0 + 1}, v{b0 + 1}, v{b0 + 3}']
        l += [f'v_cvt_pk_bf16_f32 v{o}, v{a0}, v{b0}',
              f'v_cvt_pk_bf16_f32 v{o + 1}, v{a0 + 1}, v{b0 + 1}',
              f'v_bfi_b32 v{o}, 1, s{S_TAG}, v{o}']
        if c & 1:
            l.append(f'buffer_store_dwordx4 {v(o - 2, 4)}, v{V_PBW}, {ws}, s{S_PB0} offen offset:{128 * (c >> 1)} {st}')
        return l

    def womf(c, t2, bb):
        nbo = 2 * c + bb
        b = v(OBUF[(nbo, t2)], 8) if (nbo, t2) in OBUF else u(HOME[('o', nbo, t2)], 8)
        A.I(f'v_smfmac_f32_16x16x64_bf16 {v(sets[c] + 4 * bb, 4)}, {v(OF + 4 * t2, 4)}, {b}, v{V_IDX}')

    obr = []
    for f, b in OBUF.items():
        hf, sl = LDS_SLOT[('o',) + f]
        va_ = V_WO1 if hf else V_WO0
        obr.append(f'ds_read_b128 {v(b, 4)}, v{va_} offset:{sl * 2048}')
        obr.append(f'ds_read_b128 {v(b + 4, 4)}, v{va_} offset:{sl * 2048 + 1024}')
    seq = [(c, t2, bb) for c in range(4) for t2 in range(2) for bb in range(2)]
    fill = {i: [] for i in range(16)}
    for i in range(8):
        fill[2 + i // 2 if i < 6 else 5].append(obr[i])
    DM0 = E('DM0', 0)
    for i in range(4):
        fill[DM0 + i].append(dm[i])
    p0, p1, p2 = post(0), post(1), post(2)
    for k, x in enumerate(p0):
        fill[6 + k // 2].append(x)
    for k, x in enumerate(p1):
        fill[10 + k // 2].append(x)
    for k, x in enumerate(p2):
        fill[14 + min(k // 2, 1)].append(x)
    for i, (c, t2, bb) in enumerate(seq):
        if i == 2:
            A.I('s_waitcnt lgkmcnt(0)')
        if i == 12:
            A.I('s_waitcnt lgkmcnt(0)')
        womf(c, t2, bb)
        for x in fill[i]:
            A.I(x)
    A.I(f's_cmp_ge_u32 s{S_WV}, 2')
    for x in post(3):
        A.I(x)
    stamp(6)
    stamp_acc()
    if STAMPS:
        A.I(f's_cmp_ge_u32 s{S_WV}, 2')
    if kvcheck:
        lke = A.newlabel('L_ke')
        A.I(f's_cmp_ge_u32 s{S_AV}, 64')
        A.I(f's_cbranch_scc1 {lke}')
        A.I('s_waitcnt vmcnt(9)')
        A.I(f'v_mov_b32 v{T + 8}, v{V_SP}')
        kv_eval(A, T + 8, V_L16, S_AV)
        A.I(f's_cmp_lt_u32 s{S_AV}, 64')
        A.I(f's_cselect_b32 s{S_RA}, s{S_RA}, 0x7f000000')
        lk2 = A.newlabel('L_ke2')
        A.br(f's_branch {lk2}')
        A.label(lke)
        for i in range(3):
            A.I('s_nop 7')
        A.label(lk2)
        A.I(f's_cmp_ge_u32 s{S_WV}, 2')
    zero(A, ACC, 8)
    A.I(f's_cbranch_scc1 {L_w23}')
    A.I(f'v_cndmask_b32 v{SEL}, 0, v{V_SEL}, s[{S_M0}:{S_M0 + 1}]')
    A.I(f'v_cndmask_b32 v{SEL + 1}, 0, v{V_SEL}, s[{S_M1}:{S_M1 + 1}]')
    A.I(f'v_mov_b64 {v(SEL + 2, 2)}, {v(SEL, 2)}')
    if E('PBW', 0):
        A.I('s_waitcnt vmcnt(0)')
    for i in range(PB_DELAY - (4 if kvcheck else 0)):
        A.I('s_nop 7')
    pb_loads(RA)
    hstamp(2)
    q_prefetch(A, 0)
    for i in range(PB_GAP):
        A.I('s_nop 7')
    if TWO_PB:
        pb_loads(RB)
    q_prefetch(A, 1)
    A.br(f's_branch {L_top}')
    A.label(L_w23)
    A.forget_loads()
    q_prefetch(A)
    if os.environ.get('DIAG2'):
        ld_ = A.newlabel('L_d2')
        A.I(f's_add_u32 s80, s{S_H}, s{S_WV}')
        A.I('s_cmp_lg_u32 s80, 2')
        A.I(f's_cbranch_scc1 {ld_}')
        A.I('s_mov_b32 s64, 0')
        for i, st_ in enumerate((1, 8, 20, 36, 52)):
            A.I(f's_cmp_eq_u32 s{S_STEP}, {st_}')
            A.I(f's_cselect_b32 s64, {44 + 4 * i}, s64')
        A.I('s_cmp_eq_u32 s64, 0')
        A.I(f's_cbranch_scc1 {ld_}')
        A.I('s_memrealtime s[80:81]')
        A.I('s_waitcnt lgkmcnt(0)')
        A.I('s_sub_u32 s80, s80, s58')
        A.I('v_mov_b32 v0, s80')
        A.I('buffer_store_dword v0, off, s[84:87], s64')
        A.label(ld_)
    if os.environ.get('STEPT'):
        A.I('s_memrealtime s[80:81]')
        A.I('s_waitcnt lgkmcnt(0)')
        A.I('v_mov_b32 v0, s80')
        A.I(f's_lshl_b32 s80, s{S_STEP}, 2')
        A.I(f's_lshl_b32 s81, s{S_H}, 8')
        A.I('s_add_u32 s80, s80, s81')
        A.I(f's_add_u32 s80, s80, 0x{WS_DBG + 0x20000:x}')
        A.I(f'buffer_store_dword v0, off, {ws}, s80')
        A.I('s_memtime s[64:65]')
        A.I('s_waitcnt lgkmcnt(0)')
        A.I('v_mov_b32 v1, s64')
        A.I(f's_add_u32 s80, s80, 0x4000')
        A.I(f'buffer_store_dword v1, off, {ws}, s80')
    hstamp(2); hstamp(3)
    A.br(f's_branch {L_bh}')

    A.check = False
    A.label(L_pslow)
    if TWO_PB:
        red(RB, 0)
        A.I(f's_cbranch_vccz {L_red}')
    pb_loads(RA)
    A.I(f's_sub_u32 s{S_SPIN}, s{S_SPIN}, 1')
    A.I(f's_cbranch_scc1 {l_exit}')
    if TWO_PB:
        for i in range(3):
            A.I('s_nop 7')
        pb_loads(RB)
    A.br(f's_branch {L_top}')
    A.label(L_aslow)
    af_loads(0)
    zero(A, ACC, 8)
    for b in ASETS[1:]:
        A.I('s_waitcnt vmcnt(4)')
        A.I(f'v_max3_u32 v8, v{b}, v{b + 1}, v{b + 2}')
        A.I(f'v_max3_u32 v9, v{b + 3}, v{b + 4}, v{b + 5}')
        A.I(f'v_mov_b64 {v(10, 2)}, {v(b, 2)}')
        A.I(f'v_max3_u32 v8, v8, v{b + 6}, v{b + 7}')
        A.I(f'v_max_u32 v8, v8, v9')
        A.I(f'v_cmp_eq_u32 vcc, -1, v8')
        lf = A.newlabel('L_af_f')
        A.I(f's_cbranch_vccnz {lf}')
        for i in range(0, 8, 2):
            A.I(f'v_mov_b64 {v(i, 2)}, {v(b + i, 2)}')
        A.br(f's_branch {L_afok}')
        A.label(lf)
        af_loads(b)
    A.I(f's_sub_u32 s{S_SPIN}, s{S_SPIN}, 1')
    A.I(f's_cbranch_scc1 {l_exit}')
    A.br(f's_branch {L_afchk}')
    if kvcheck:
        A.label(L_kvc)
        A.I(f's_cmp_eq_u32 s23, 64')
        A.I(f's_cbranch_scc1 {L_kvr}')
        kv_wait(A, l_exit, 23, ACC + 16)
        A.br(f's_branch {L_kvr}')
    A.label(L_fin)
    A.I(f'v_add_u32 v{V_MX}, s{S_W640}, v{V_KR}')
    A.I(f'ds_read_b128 {v(T, 4)}, v{V_MX}')
    mf('v', 1, 3)
    for t in range(4, 8):
        mf('v', 0, t)
        mf('v', 1, t)
    A.I(f'v_lshrrev_b32 v{V_TM}, 1, v{V_L16}')
    A.I('s_waitcnt lgkmcnt(0)')
    A.I(f'buffer_store_dwordx4 {v(T, 4)}, v{V_L16}, {ws}, s{S_KMO} offen sc1')
    A.I(f'v_pk_add_f32 {v(va, 2)}, {v(va, 2)}, {v(va + 2, 2)}')
    A.I(f'v_pk_add_f32 {v(vb, 2)}, {v(vb, 2)}, {v(vb + 2, 2)}')
    A.I(f'v_cvt_pk_bf16_f32 v{VMP}, v{va}, v{va + 1}')
    A.I(f'v_cvt_pk_bf16_f32 v{VMP + 1}, v{vb}, v{vb + 1}')
    A.I(f'buffer_store_dwordx2 {v(VMP, 2)}, v{V_TM}, {ws}, s{S_VMO} offen sc1')
    if kvcheck:
        A.I('v_mov_b32 v6, 65')
        A.I('s_waitcnt vmcnt(0)')
        A.I('s_mov_b64 exec, 1')
        A.I(f'buffer_store_dword v6, off, {ws}, s{S_KP} sc1')
        A.I('s_mov_b64 exec, -1')
    A.br(f's_branch {l_exit}')
    A.check = True
    A.forget_loads()


def rec_kernel(A, name):
    kernel_begin(A, name)
    l_exit = A.newlabel('L_exit')
    P_WS, P_DBG, P_Q, P_K, P_V, P_O, P_M0 = 16, 18, 20, 22, 24, 26, 28
    A.I(f's_cmp_ge_u32 s2, 256')
    A.I(f's_cbranch_scc1 {l_exit}')
    A.I(f's_load_dwordx2 s[{P_WS}:{P_WS + 1}], s[0:1], {KA_WS}')
    A.I(f's_load_dwordx2 s[{P_DBG}:{P_DBG + 1}], s[0:1], {KA_DBG}')
    A.I(f's_load_dwordx4 s[{P_Q}:{P_Q + 3}], s[0:1], {KA_WQ}')
    A.I(f's_load_dwordx4 s[{P_V}:{P_V + 3}], s[0:1], {KA_WV}')
    A.I(f's_load_dwordx2 s[{P_M0}:{P_M0 + 1}], s[0:1], {KA_MEM0}')
    A.I('v_lshrrev_b32 v1, 6, v0')
    A.I(f'v_and_b32 v{LANE}, 63, v0')
    A.I(f'v_readfirstlane_b32 s{S_WV}, v1')
    A.I(f's_getreg_b32 s{S_T0}, hwreg(HW_REG_XCC_ID)')
    A.I(f's_and_b32 s{S_T0}, s{S_T0}, 15')
    A.I('s_waitcnt lgkmcnt(0)')
    make_srd(A, S_WS, P_WS, WS_SIZE)
    make_srd(A, S_DBG, P_DBG, 256)
    A.I(f's_cmp_lg_u32 s{S_T0}, 0')
    A.I(f's_cbranch_scc1 {l_exit}')
    A.I(f's_mov_b32 s{S_SPIN}, 2000000')
    dbg = f's[{S_DBG}:{S_DBG + 3}]'
    A.I('v_mov_b32 v2, 1')
    A.I('v_mov_b32 v3, 0')
    A.I('v_cmp_eq_u32 vcc, 0, v0')
    A.I('s_and_saveexec_b64 s[30:31], vcc')
    lsk = A.newlabel('L_sk')
    A.I(f's_cbranch_execz {lsk}')
    A.I(f'buffer_atomic_add v2, v3, {dbg}, 0 offen sc0')
    A.I('s_waitcnt vmcnt(0)')
    A.I('ds_write_b32 v3, v2')
    A.I('s_waitcnt lgkmcnt(0)')
    A.label(lsk)
    A.I('s_mov_b64 exec, s[30:31]')
    A.I('s_barrier')
    A.I('ds_read_b32 v2, v3')
    A.I('s_waitcnt lgkmcnt(0)')
    A.I(f'v_readfirstlane_b32 s{S_H}, v2')
    A.I('s_barrier')
    A.I(f's_cmp_ge_u32 s{S_H}, 32')
    A.I(f's_cbranch_scc1 {l_exit}')
    A.I(f's_memrealtime s[{S_TS}:{S_TS + 1}]')
    setup_consts(A)
    st = STF
    init_exchange(A, P_M0, st)
    A.I('s_barrier')
    A.I('v_mov_b32 v2, 1')
    A.I('v_mov_b32 v3, 64')
    A.I('v_cmp_eq_u32 vcc, 0, v0')
    A.I('s_and_saveexec_b64 s[30:31], vcc')
    lsk = A.newlabel('L_sk')
    A.I(f's_cbranch_execz {lsk}')
    A.I(f'buffer_atomic_add v2, v3, {dbg}, 0 offen')
    A.label(lsk)
    A.I('s_mov_b64 exec, s[30:31]')
    A.I('s_waitcnt vmcnt(0)')
    stage_weights(A, [P_Q, P_K, P_V, P_O])
    A.I(f's_lshl_b32 s{S_KVN}, s{S_H}, 13')
    A.I(f's_add_u32 s{S_KVN}, s{S_KVN}, s{S_W11}')
    A.I(f's_add_u32 s{S_KVN}, s{S_KVN}, 0x{WS_KF:x}')
    A.I(f's_add_u32 s{S_KVM0}, s{S_W11}, {L_KV}')
    kv_dma(A)
    lw = A.newlabel('L_tw')
    A.I('v_mov_b32 v3, 64')
    A.label(lw)
    A.I(f'buffer_load_dword v2, v3, {dbg}, 0 offen sc1')
    A.I(f's_sub_u32 s{S_SPIN}, s{S_SPIN}, 1')
    A.I(f's_cbranch_scc1 {l_exit}')
    A.I('s_waitcnt vmcnt(0)')
    A.I(f'v_readfirstlane_b32 s{S_T0}, v2')
    A.I(f's_cmp_lt_u32 s{S_T0}, 32')
    A.I(f's_cbranch_scc1 {lw}')
    A.I('s_barrier')
    A.I(f's_memrealtime s[{S_TS + 2}:{S_TS + 3}]')
    A.I('s_waitcnt lgkmcnt(0)')
    l_done = A.newlabel('L_done')
    main_loop(A, st, l_done)
    A.label(l_done)
    A.forget_loads()
    A.I(f's_memrealtime s[{S_TS + 4}:{S_TS + 5}]')
    A.I('s_waitcnt lgkmcnt(0) vmcnt(0)')
    A.I(f's_lshl_b32 s{S_T0}, s{S_H}, 2')
    A.I(f's_add_u32 s{S_T0}, s{S_T0}, s{S_WV}')
    A.I(f's_lshl_b32 s{S_T0}, s{S_T0}, 5')
    A.I(f's_add_u32 s{S_T0}, s{S_T0}, 0x{WS_DBG:x}')
    for i in range(6):
        A.I(f'v_mov_b32 v{i}, s{S_TS + i}')
    A.I(f'v_mov_b32 v6, s{S_STEP}')
    A.I(f'v_mov_b32 v7, s{S_SPIN}')
    A.I('v_mov_b32 v8, 0')
    A.I(f'buffer_store_dwordx4 v[0:3], v8, s[{S_WS}:{S_WS + 3}], s{S_T0} offen')
    A.I(f'buffer_store_dwordx4 v[4:7], v8, s[{S_WS}:{S_WS + 3}], s{S_T0} offen offset:16')
    if STAMPS:
        A.I(f's_add_u32 s{S_T0}, s{S_T0}, s{S_T0}')
        A.I(f's_sub_u32 s{S_T0}, s{S_T0}, 0x{WS_DBG - 0x10000:x}')
        for i in range(12):
            A.I(f'v_mov_b32 v{12 + i}, s{88 + i}')
        for i in range(3):
            A.I(f'buffer_store_dwordx4 {v(12 + 4 * i, 4)}, v8, s[{S_WS}:{S_WS + 3}], s{S_T0} offen offset:{16 * i}')
    A.label(l_exit)
    A.I('s_endpgm')


if __name__ == '__main__':
    A = Asm()
    rec_kernel(A, 'rec_kernel')
    txt = header([('rec_kernel', 256, 256, L_TOTAL)]) + A.text() + '.section .rodata,"a"\n' + kernel_desc('rec_kernel', 512, 256)
    open('work/' + OUT, 'w').write(txt)
    print('ok', len(txt))
```

```python
import os
os.environ.setdefault('PB_DELAY', '7'); os.environ.setdefault('AF_DELAY', '2'); os.environ.setdefault('AF_GAP', '2')
from common import *
import tok2 as T
import rec9 as R
from tok2 import f32, S_WS, S_W, S_X, S_H, S_WV, S_G, S_T0, S_T1, S_T2, S_T3

S_DBG = 84
S_SPIN = R.S_SPIN
S_XCC = 83
S_LNO = 82
F_OPC = WS_FLAG + 0x4000
F_LH = WS_FLAG + 0x6000
F_LU = WS_FLAG + 0x8000
F_GF = WS_FLAG + 0x8400
S_FAST = S_XCC
D_GB, D_OVF, D_WEIRD, D_TS, D_TI = 128, 36, 40, 192, 196
S_J, S_BO2, S_LB2 = 100, 101, 3
S_J2 = 63
S_W1, S_B1, S_W2 = 88, 92, 96
NEARLY = int(os.environ.get('NEARLY', 2))
STAG = int(os.environ.get('STAG', 4))
STAG0 = int(os.environ.get('STAG0', 1))
TIMING = bool(os.environ.get('TIMING'))
OPRING = int(os.environ.get('OPRING', 0))
WARM = int(os.environ.get('WARM', 0))
DIAG = bool(os.environ.get('DIAG'))
TAIL_BYTES = int(os.environ.get('TAIL_BYTES', 24576))
CODET = int(os.environ.get('CODET', 0))
CODE_BYTES = int(os.environ.get('CODE_BYTES', 57344))
PLF = os.environ.get('PLF', 'sc1').replace('_', ' ')


def lane0(A, body):
    A.I('s_mov_b64 exec, 1')
    body()
    A.I('s_mov_b64 exec, -1')


def poll_eq(A, srd, s_off, imm, expect, vt, l_exit, sleep=0):
    l = A.newlabel('L_poll')
    A.label(l)
    so = f's{s_off}' if s_off is not None else '0'
    A.I(f'buffer_load_dword v{vt}, off, {srd}, {so} offset:{imm} sc1')
    A.I(f's_sub_u32 s{S_SPIN}, s{S_SPIN}, 1')
    A.I(f's_cbranch_scc1 {l_exit}')
    A.I('s_waitcnt vmcnt(0)')
    A.I(f'v_readfirstlane_b32 s{S_T0}, v{vt}')
    ld = A.newlabel('L_pd')
    A.I(f's_cmp_eq_u32 s{S_T0}, {expect}')
    A.I(f's_cbranch_scc1 {ld}')
    if sleep:
        A.I(f's_sleep {sleep}')
    A.br(f's_branch {l}')
    A.label(ld)


def poll_flags(A, s_off, nlanes, width, vt, va, l_exit, sleep=0, mask=None):
    ws = f's[{S_WS}:{S_WS + 3}]'
    l, ld = A.newlabel('L_pf'), A.newlabel('L_pfd')
    A.I(f'v_lshlrev_b32 v{va}, {2 if width == 1 else 3}, v0')
    assert nlanes <= 32
    A.I(f's_mov_b32 exec_lo, 0x{((1 << nlanes) - 1) if mask is None else mask:x}')
    A.I('s_mov_b32 exec_hi, 0')
    A.label(l)
    if width == 1:
        A.I(f'buffer_load_dword v{vt}, v{va}, {ws}, s{s_off} offen {PLF}')
    else:
        A.I(f'buffer_load_dwordx2 {v(vt, 2)}, v{va}, {ws}, s{s_off} offen {PLF}')
    A.I(f's_sub_u32 s{S_SPIN}, s{S_SPIN}, 1')
    A.I(f's_cbranch_scc1 {l_exit}')
    A.I('s_waitcnt vmcnt(0)')
    if width == 2:
        A.I(f'v_min_u32 v{vt}, v{vt}, v{vt + 1}')
    A.I(f'v_cmp_eq_u32 vcc, 0, v{vt}')
    A.I(f's_cbranch_vccz {ld}')
    if sleep:
        A.I(f's_sleep {sleep}')
    A.br(f's_branch {l}')
    A.label(ld)
    A.I('s_mov_b64 exec, -1')


def flag_store(A, s_addr, vt):
    ws = f's[{S_WS}:{S_WS + 3}]'
    l1, l2 = A.newlabel('L_fs'), A.newlabel('L_fs')
    A.I(f'v_mov_b32 v{vt}, 1')
    A.I('s_mov_b64 exec, 1')
    A.I(f's_cmp_eq_u32 s{S_FAST}, 0')
    A.br(f's_cbranch_scc1 {l1}')
    A.I(f'buffer_store_dword v{vt}, off, {ws}, s{s_addr}')
    A.br(f's_branch {l2}')
    A.label(l1)
    A.I(f'buffer_store_dword v{vt}, off, {ws}, s{s_addr} sc1')
    A.label(l2)
    A.I('s_mov_b64 exec, -1')


def garrive(A, s_line, s_goff, vt, l_exit):
    ws = f's[{S_WS}:{S_WS + 3}]'
    A.I(f's_lshl_b32 s{S_T1}, s{S_H}, 2')
    A.I(f's_add_u32 s{S_T1}, s{S_T1}, s{s_line}')
    flag_store(A, S_T1, vt)
    l = A.newlabel('L_ga')
    A.I(f's_cmp_lg_u32 s{S_H}, 0')
    A.br(f's_cbranch_scc1 {l}')
    poll_flags(A, s_line, 32, 1, vt, vt + 1, l_exit)
    A.I(f'v_lshlrev_b32 v{vt + 1}, 9, v0')
    A.I(f'v_mov_b32 v{vt}, 1')
    A.I('s_mov_b64 exec, 0xff')
    A.I(f'buffer_store_dword v{vt}, v{vt + 1}, {ws}, s{s_goff} offen sc1')
    A.I('s_mov_b64 exec, -1')
    A.label(l)


def wg_poll_eq(A, srd, s_off, imm, expect, vt, l_exit, sleep=0):
    l0 = A.newlabel('L_wgp')
    A.I(f's_cmp_lg_u32 s{S_WV}, 0')
    A.br(f's_cbranch_scc1 {l0}')
    poll_eq(A, srd, s_off, imm, expect, vt, l_exit, sleep)
    A.label(l0)
    A.I('s_barrier')


L_TS = 160000


def tstamp(A, idx, r=14):
    if not TIMING:
        return
    l = A.newlabel('L_ts')
    A.I(f's_cmp_lg_u32 s{S_WV}, 0')
    A.br(f's_cbranch_scc1 {l}')
    chk = A.check
    A.check = False
    A.I('s_memrealtime s[80:81]')
    A.I('s_waitcnt lgkmcnt(0)')
    if idx in (0, 1, 2, 7, 8):
        A.I(f'v_mov_b32 v{r}, s80')
        A.I(f'v_mov_b32 v{r + 1}, s81')
        A.I(f's_lshl_b32 s80, s{S_G}, 5')
        A.I(f's_add_u32 s80, s80, s{S_H}')
        A.I('s_lshl_b32 s80, s80, 8')
        A.I(f's_add_u32 s80, s80, 0x{WS_DBG:x}')
        A.I(f'buffer_store_dwordx2 {v(r, 2)}, off, s[{S_WS}:{S_WS + 3}], s80 offset:{8 * idx}')
    else:
        A.I(f'v_mov_b32 v{r}, s80')
        A.I(f'v_mov_b32 v{r + 1}, {L_TS + 8 * idx}')
        A.I(f'ds_write_b32 v{r + 1}, v{r}')
        A.I(f'v_mov_b32 v{r}, s81')
        A.I(f'ds_write_b32 v{r + 1}, v{r} offset:4')
        if idx == 6:
            A.I(f'v_lshlrev_b32 v{r}, 2, v0')
            A.I(f'v_add_u32 v{r + 1}, {L_TS}, v{r}')
            A.I('s_waitcnt lgkmcnt(0)')
            A.I(f'ds_read_b32 v{r + 1}, v{r + 1}')
            A.I(f's_lshl_b32 s80, s{S_G}, 5')
            A.I(f's_add_u32 s80, s80, s{S_H}')
            A.I('s_lshl_b32 s80, s80, 8')
            A.I(f's_add_u32 s80, s80, 0x{WS_DBG + 0x40000:x}')
            A.I('s_waitcnt lgkmcnt(0)')
            A.I(f'buffer_store_dword v{r + 1}, v{r}, s[{S_WS}:{S_WS + 3}], s80 offen')
    A.check = chk
    A.label(l)


def mega_kernel(A, name):
    kernel_begin(A, name)
    l_exit = A.newlabel('L_exit')
    P_WS, P_DBG, P_Q, P_K, P_V, P_O, P_M0, P_X = 16, 18, 20, 22, 24, 26, 28, 30
    ws, dbg, sx = f's[{S_WS}:{S_WS + 3}]', f's[{S_DBG}:{S_DBG + 3}]', f's[{S_X}:{S_X + 3}]'
    A.I('s_cmp_ge_u32 s2, 256')
    A.I(f's_cbranch_scc1 {l_exit}')
    if DIAG:
        A.I('s_memrealtime s[58:59]')
    A.I(f's_load_dwordx2 s[{P_WS}:{P_WS + 1}], s[0:1], {KA_WS}')
    A.I(f's_load_dwordx2 s[{P_DBG}:{P_DBG + 1}], s[0:1], {KA_DBG}')
    A.I(f's_load_dwordx4 s[{P_Q}:{P_Q + 3}], s[0:1], {KA_WQ}')
    A.I(f's_load_dwordx4 s[{P_V}:{P_V + 3}], s[0:1], {KA_WV}')
    A.I(f's_load_dwordx2 s[{P_M0}:{P_M0 + 1}], s[0:1], {KA_MEM0}')
    A.I(f's_load_dwordx2 s[{P_X}:{P_X + 1}], s[0:1], {KA_X}')
    A.I('v_lshrrev_b32 v1, 6, v0')
    A.I('v_and_b32 v0, 63, v0')
    A.I(f'v_readfirstlane_b32 s{S_WV}, v1')
    A.I(f's_getreg_b32 s{S_XCC}, hwreg(HW_REG_XCC_ID)')
    A.I(f's_mov_b32 s{S_SPIN}, 0x80000')
    A.I('s_waitcnt lgkmcnt(0)')
    make_srd(A, S_WS, P_WS, WS_SIZE)
    make_srd(A, S_DBG, P_DBG, 256)
    make_srd(A, S_X, P_X, 2048 * 1024)
    LX, LF = 32, 48
    lnl = A.newlabel('L_l0')
    A.I('v_and_b32 v24, 15, v0')
    A.I('v_lshrrev_b32 v25, 4, v0')
    A.I('s_cmp_ge_u32 s2, 128')
    A.br(f's_cbranch_scc1 {lnl}')
    A.I('v_lshlrev_b32 v26, 10, v24')
    A.I('v_lshl_add_u32 v26, v25, 4, v26')
    A.I(f's_lshl_b32 s{S_LNO}, s2, 14')
    A.I(f's_lshl_b32 s{S_T0}, s{S_WV}, 8')
    A.I(f's_add_u32 s{S_T0}, s{S_T0}, s{S_LNO}')
    for i in range(4):
        A.I(f'buffer_load_dwordx4 {v(LX + 4 * i, 4)}, v26, {sx}, s{S_T0} offen offset:{64 * i}')
    A.label(lnl)
    A.forget_loads()
    if CODET:
        lct = A.newlabel('L_ct')
        A.I(f's_cmp_lg_u32 s{S_WV}, 3')
        A.br(f's_cbranch_scc1 {lct}')
        A.I('s_cmp_ge_u32 s2, 16')
        A.br(f's_cbranch_scc1 {lct}')
        code_touch(A, name, l_exit, CODE_BYTES, 255, 3)
        A.label(lct)
    lr = A.newlabel('L_role_done')
    A.I(f's_cmp_lg_u32 s{S_WV}, 0')
    A.br(f's_cbranch_scc1 {lr}')
    A.I('s_mov_b64 exec, 1')
    A.I('v_mov_b32 v2, 1')
    lw = A.newlabel('L_nw')
    A.I(f's_cmp_lt_u32 s{S_XCC}, 8')
    A.br(f's_cbranch_scc1 {lw}')
    A.I(f'buffer_atomic_or v2, off, {dbg}, 0 offset:{D_WEIRD}')
    A.I('s_waitcnt vmcnt(0)')
    A.label(lw)
    A.I(f's_and_b32 s{S_G}, s{S_XCC}, 7')
    A.I(f's_lshl_b32 s{S_T0}, s{S_G}, 2')
    A.I(f'buffer_atomic_add v2, off, {dbg}, s{S_T0} sc0')
    A.I('s_waitcnt vmcnt(0)')
    A.I(f'v_readfirstlane_b32 s{S_H}, v2')
    lok = A.newlabel('L_rok')
    A.I(f's_cmp_lt_u32 s{S_H}, 32')
    A.br(f's_cbranch_scc1 {lok}')
    A.I('v_mov_b32 v2, 1')
    A.I(f'buffer_atomic_add v2, off, {dbg}, 0 offset:{D_OVF} sc0')
    A.I('s_waitcnt vmcnt(0)')
    A.I(f'v_readfirstlane_b32 s{S_T3}, v2')
    lo = A.newlabel('L_ovf')
    A.label(lo)
    A.I(f'buffer_load_dwordx4 v[4:7], off, {dbg}, 0 sc1')
    A.I(f'buffer_load_dwordx4 v[8:11], off, {dbg}, 0 offset:16 sc1')
    A.I(f's_sub_u32 s{S_SPIN}, s{S_SPIN}, 1')
    A.I(f's_cbranch_scc1 {l_exit}')
    A.I('s_waitcnt vmcnt(0)')
    A.I(f's_mov_b32 s{S_T0}, 0')
    for i in range(8):
        A.I(f'v_readfirstlane_b32 s{64 + i}, v{4 + i}')
    for i in range(8):
        A.I(f's_add_u32 s{S_T0}, s{S_T0}, s{64 + i}')
    A.I(f's_cmp_lt_u32 s{S_T0}, 256')
    A.br(f's_cbranch_scc1 {lo}')
    for g in range(8):
        A.I(f's_min_u32 s{S_T0}, s{64 + g}, 32')
        A.I(f's_sub_u32 s{S_T1}, 32, s{S_T0}')
        A.I(f's_mov_b32 s{S_G}, {g}')
        A.I(f's_add_u32 s{S_H}, s{S_T0}, s{S_T3}')
        A.I(f's_cmp_lt_u32 s{S_T3}, s{S_T1}')
        A.br(f's_cbranch_scc1 {lok}')
        A.I(f's_sub_u32 s{S_T3}, s{S_T3}, s{S_T1}')
    A.I(f's_mov_b32 s{S_G}, 0x100')
    A.I(f's_mov_b32 s{S_H}, 0')
    A.label(lok)
    A.I(f's_lshl_b32 s{S_T0}, s{S_G}, 8')
    A.I(f's_or_b32 s{S_T0}, s{S_T0}, s{S_H}')
    A.I(f'v_mov_b32 v2, s{S_T0}')
    A.I('v_mov_b32 v3, 0')
    A.I('ds_write_b32 v3, v2')
    A.I('s_waitcnt lgkmcnt(0)')
    A.I('s_mov_b64 exec, -1')
    A.label(lr)
    lno, lnd = A.newlabel('L_lno'), A.newlabel('L_lnd')
    A.I('s_cmp_ge_u32 s2, 128')
    A.br(f's_cbranch_scc1 {lno}')
    A.I(f's_lshl_b32 s{S_T0}, s{S_WV}, 2')
    A.I('v_lshlrev_b32 v27, 4, v24')
    A.I(f'v_add_u32 v26, s{S_T0}, v27')
    A.I('s_waitcnt vmcnt(0)')
    for i in range(16):
        A.I(f'v_lshlrev_b32 v{LF + 2 * i}, 16, v{LX + i}')
        A.I(f'v_and_b32 v{LF + 2 * i + 1}, 0xffff0000, v{LX + i}')
    A.I(f'v_add_f32 v28, v{LF}, v{LF + 1}')
    A.I(f'v_add_f32 v29, v{LF + 2}, v{LF + 3}')
    for i in range(4, 32, 2):
        A.I(f'v_add_f32 v28, v28, v{LF + i}')
        A.I(f'v_add_f32 v29, v29, v{LF + i + 1}')
    A.I('v_add_f32 v28, v28, v29')
    T.xreduce(A, 'v_add_f32', 28, 29)
    A.I('ds_write_b32 v26, v28 offset:64')
    A.I('s_waitcnt lgkmcnt(0)')
    A.I('s_barrier')
    A.I('v_mov_b32 v3, 0')
    A.I('ds_read_b32 v2, v3')
    A.I('ds_read_b128 v[28:31], v27 offset:64')
    A.I('s_waitcnt lgkmcnt(0)')
    A.I('v_add_f32 v28, v28, v29')
    A.I('v_add_f32 v30, v30, v31')
    A.I('v_add_f32 v28, v28, v30')
    A.I(f'v_mul_f32 v28, {f32(1 / 512)}, v28')
    A.I('v_mov_b32 v29, 0')
    A.I('v_mov_b32 v30, 0')
    for i in range(0, 32, 2):
        A.I(f'v_sub_f32 v{LF + i}, v{LF + i}, v28')
        A.I(f'v_sub_f32 v{LF + i + 1}, v{LF + i + 1}, v28')
        A.I(f'v_fmac_f32 v29, v{LF + i}, v{LF + i}')
        A.I(f'v_fmac_f32 v30, v{LF + i + 1}, v{LF + i + 1}')
    A.I('v_add_f32 v29, v29, v30')
    T.xreduce(A, 'v_add_f32', 29, 30)
    A.I('ds_write_b32 v26, v29 offset:320')
    A.I('s_waitcnt lgkmcnt(0)')
    A.I('s_barrier')
    A.I('ds_read_b128 v[28:31], v27 offset:320')
    A.I('s_waitcnt lgkmcnt(0)')
    A.I('v_add_f32 v28, v28, v29')
    A.I('v_add_f32 v30, v30, v31')
    A.I('v_add_f32 v28, v28, v30')
    A.I(f'v_mov_b32 v29, {f32(1e-5)}')
    A.I(f'v_fmac_f32 v29, {f32(1 / 512)}, v28')
    A.I('v_rsq_f32 v29, v29')
    A.I('v_lshlrev_b32 v26, 4, v0')
    A.I(f's_lshl_b32 s{S_T0}, s{S_WV}, 12')
    A.I(f's_add_u32 s{S_T0}, s{S_T0}, s{S_LNO}')
    A.I(f's_add_u32 s{S_T0}, s{S_T0}, 0x{WS_XN:x}')
    for i in range(4):
        for j in range(4):
            f = LF + 8 * i + 2 * j
            A.I(f'v_mul_f32 v{f}, v{f}, v29')
            A.I(f'v_mul_f32 v{f + 1}, v{f + 1}, v29')
            A.I(f'v_cvt_pk_bf16_f32 v{LX + 4 * i + j}, v{f}, v{f + 1}')
        A.I(f'buffer_store_dwordx4 {v(LX + 4 * i, 4)}, v26, {ws}, s{S_T0} offen offset:{1024 * i} sc1')
    A.br(f's_branch {lnd}')
    A.label(lno)
    A.I('s_barrier')
    A.I('v_mov_b32 v3, 0')
    A.I('ds_read_b32 v2, v3')
    A.I('s_waitcnt lgkmcnt(0)')
    A.label(lnd)
    A.forget_loads()
    A.I(f'v_readfirstlane_b32 s{S_T0}, v2')
    A.I(f's_and_b32 s{S_H}, s{S_T0}, 31')
    A.I(f's_bfe_u32 s{S_G}, s{S_T0}, 0x30008')
    A.I(f's_cmp_ge_u32 s{S_T0}, 0x10000')
    A.I(f's_cbranch_scc1 {l_exit}')
    A.I('s_barrier')
    tstamp(A, 0)

    def arrive(off=D_GB):
        l = A.newlabel('L_na')
        A.I(f's_cmp_lg_u32 s{S_WV}, 0')
        A.br(f's_cbranch_scc1 {l}')
        A.I('v_mov_b32 v23, 1')
        lane0(A, lambda: A.I(f'buffer_atomic_add v23, off, {dbg}, 0 offset:{off}'))
        A.label(l)

    def ln_and_arrive(ln=True):
        A.I('s_waitcnt vmcnt(0)')
        A.I('s_barrier')
        arrive()

    l_tok = A.newlabel('L_tok')
    l_g2 = A.newlabel('L_g2')
    A.I(f's_cmp_lg_u32 s{S_G}, 0')
    A.br(f's_cbranch_scc1 {l_tok}')

    A.I(f'v_mov_b32 v{R.LANE}, v0')
    R.setup_consts(A)

    A.I(f's_lshl_b32 s{S_T0}, s{S_H}, 6')
    A.I(f's_lshl_b32 s{S_T1}, s{S_WV}, 2')
    A.I(f's_add_u32 s{S_T0}, s{S_T0}, s{S_T1}')
    A.I(f's_add_u32 s{S_LNO}, s{S_T0}, 0x{R.F_KMP:x}')
    A.I('v_mov_b32 v24, 0')
    lane0(A, lambda: A.I(f'buffer_store_dword v24, off, {ws}, s{S_LNO} sc1'))
    R.init_exchange(A, P_M0, 'sc1', rb=24, part=0)

    def thook():
        A.check = False
        R.init_exchange(A, P_M0, 'sc1', rb=24, part=1)
        A.check = True
        A.forget_loads()

    def h_sc(sc):
        if sc == 0:
            arrive()
            tstamp(A, 8, 24)
        if sc == 1:
            arrive(D_TI)

    S_OK = 25

    def batch():
        A.I(f'buffer_load_dword v25, off, {dbg}, 0 sc1')
        A.I(f'buffer_load_dword v26, off, {dbg}, 0 offset:{D_WEIRD} sc1')
        A.I(f'buffer_load_dword v27, off, {dbg}, 0 offset:{D_TI} sc1')
        R.kv_load(A, 28, R.V_L16, R.S_RA)

    def h_issue(sc):
        if sc == 3:
            A.I(f'buffer_load_dword v24, off, {dbg}, 0 offset:{D_GB} sc1')
            return
        A.I(f's_lshl_b32 s{R.S_RA}, s{S_H}, 7')
        A.I(f's_add_u32 s{R.S_RA}, s{R.S_RA}, 0x{R.F_PROG:x}')
        A.I(f's_lshl_b32 s{R.S_KVN}, s{S_H}, 13')
        A.I(f's_add_u32 s{R.S_KVN}, s{R.S_KVN}, s{R.S_W11}')
        A.I(f's_add_u32 s{R.S_KVN}, s{R.S_KVN}, 0x{WS_KF:x}')
        A.I(f's_add_u32 s{R.S_KVM0}, s{R.S_W11}, {R.L_KV}')
        batch()

    def evaluate(l_fail):
        R.kv_eval(A, 28, R.V_L16, R.S_AV)
        A.I(f'v_readfirstlane_b32 s{S_T0}, v24')
        A.I(f'v_readfirstlane_b32 s{S_T2}, v25')
        A.I(f'v_readfirstlane_b32 s{S_T3}, v26')
        A.I(f's_cmp_lg_u32 s{S_T0}, 256')
        A.I(f's_cbranch_scc1 {l_fail}')
        A.I(f'v_readfirstlane_b32 s{S_T0}, v27')
        A.I(f's_cmp_lg_u32 s{S_T0}, 32')
        A.I(f's_cbranch_scc1 {l_fail}')
        A.I(f's_cmp_eq_u32 s{R.S_AV}, 0')
        A.I(f's_cbranch_scc1 {l_fail}')
        A.I(f's_cmp_ge_u32 s{S_T2}, 32')
        A.I(f's_cselect_b32 s{S_XCC}, 1, 0')
        A.I(f's_cmp_eq_u32 s{S_T3}, 0')
        A.I(f's_cselect_b32 s{S_XCC}, s{S_XCC}, 0')
        R.kv_dma(A)

    def h_check():
        lf = A.newlabel('L_hf')
        A.I(f's_mov_b32 s{S_OK}, 0')
        evaluate(lf)
        A.I(f's_mov_b32 s{S_OK}, 1')
        A.label(lf)

    R.stage_weights(A, [P_Q, P_K, P_V, P_O], hook=thook, hook_issue=h_issue, hook_check=h_check, hook_sc=h_sc)
    tstamp(A, 1)
    A.I(f's_mov_b32 s{R.S_KP}, s{S_LNO}')
    lgo_, lre = A.newlabel('L_tgo'), A.newlabel('L_tre')
    A.I(f's_cmp_eq_u32 s{S_OK}, 1')
    A.br(f's_cbranch_scc1 {lgo_}')
    A.label(lre)
    A.I('s_sleep 4')
    A.I(f'buffer_load_dword v24, off, {dbg}, 0 offset:{D_GB} sc1')
    A.I('s_waitcnt vmcnt(0)')
    batch()
    A.I(f's_sub_u32 s{S_SPIN}, s{S_SPIN}, 1')
    A.I(f's_cbranch_scc1 {l_exit}')
    A.I('s_waitcnt vmcnt(0)')
    evaluate(lre)
    A.label(lgo_)
    A.I('s_waitcnt vmcnt(0)')
    A.I('s_barrier')
    tstamp(A, 2)
    if DIAG:
        A.I('s_memrealtime s[80:81]')
        A.I('s_waitcnt lgkmcnt(0)')
        A.I('s_sub_u32 s60, s80, s58')
    l_slow = A.newlabel('L_slowmode')
    l_tdone = A.newlabel('L_tdone')
    A.I(f's_cmp_eq_u32 s{S_XCC}, 0')
    if os.environ.get('FORCE_SLOW'):
        A.br(f's_branch {l_slow}')
    else:
        A.br(f's_cbranch_scc1 {l_slow}')
    R.main_loop(A, '', l_tdone, kvcheck=True)
    A.label(l_slow)
    R.main_loop(A, 'sc1', l_tdone, kvcheck=True)
    A.label(l_tdone)
    A.forget_loads()
    A.I(f's_mov_b32 s{S_G}, 0')
    tstamp(A, 3)
    if DIAG:
        A.I('s_memrealtime s[80:81]')
        A.I('s_waitcnt lgkmcnt(0)')
        A.I('s_sub_u32 s61, s80, s58')
    A.I(f'v_lshrrev_b32 v0, 4, v{R.V_L16}')
    j2_calc(A)
    A.I('s_waitcnt vmcnt(0) lgkmcnt(0)')
    A.I('s_barrier')
    g2_setup(A)
    for k in (0, 1, 2, 3, 4, 13):
        g2_dma(A, k)
    A.I(f's_mov_b32 s{S_PRE}, 0')
    A.br(f's_branch {l_g2}')

    A.label(l_tok)
    A.forget_loads()
    S_SEG, S_NX, S_CA, S_END, S_K1, S_AV, S_PB = 36, 41, 42, 43, 44, 45, 46
    j2_calc(A)
    A.I(f's_sub_u32 s{S_G}, s{S_G}, 1')
    A.I(f's_lshl_b32 s{S_J}, s{S_G}, 5')
    A.I(f's_add_u32 s{S_J}, s{S_J}, s{S_H}')

    def tok_init(ln=True):
        A.I(f's_lshl_b32 s{S_CA}, s{S_H}, 7')
        A.I(f's_lshl_b32 s{S_T0}, s{S_G}, 4')
        A.I(f's_add_u32 s{S_CA}, s{S_CA}, s{S_T0}')
        A.I(f's_lshl_b32 s{S_T0}, s{S_WV}, 2')
        A.I(f's_add_u32 s{S_CA}, s{S_CA}, s{S_T0}')
        A.I(f's_add_u32 s{S_CA}, s{S_CA}, 0x{R.F_PROG:x}')
        A.I('v_mov_b32 v22, 0')
        lane0(A, lambda: A.I(f'buffer_store_dword v22, off, {ws}, s{S_CA} sc1'))
        lz = A.newlabel('L_nz')
        A.I(f's_cmp_lg_u32 s{S_J}, 64')
        A.br(f's_cbranch_scc1 {lz}')
        A.I('v_lshlrev_b32 v23, 4, v0')
        for r in range(16, 20):
            A.I(f'v_mov_b32 v{r}, 0')
        A.I(f's_mul_i32 s{S_T0}, s{S_WV}, 6144')
        A.I(f's_add_u32 s{S_T0}, s{S_T0}, 0x{F_OPC:x}')
        A.I(f's_add_u32 s{S_T1}, s{S_T0}, 4096')
        for i in range(4):
            A.I(f'buffer_store_dwordx4 v[16:19], v23, {ws}, s{S_T0} offen offset:{1024 * i} sc1')
        A.I(f'buffer_store_dwordx4 v[16:19], v23, {ws}, s{S_T1} offen sc1')
        A.I(f'buffer_store_dwordx4 v[16:19], v23, {ws}, s{S_T1} offen offset:1024 sc1')
        A.label(lz)
        A.forget_loads()
        if ln:
            ln_and_arrive()
            ts_tok(A, 8)

    l_late = A.newlabel('L_late')
    l_st = A.newlabel('L_st')
    A.I(f's_mov_b32 s{S_K1}, 0')
    l_lt = A.newlabel('L_lt')
    A.I(f's_cmp_ge_u32 s{S_G}, {NEARLY}')
    A.br(f's_cbranch_scc1 {l_lt}')
    tok_init(False)
    A.br(f's_branch {l_st}')
    A.label(l_lt)
    if WARM:
        lwm = A.newlabel('L_wm')
        A.I(f's_cmp_eq_u32 s{S_G}, 3')
        A.br(f's_cbranch_scc1 {lwm}')
        A.I(f's_sub_u32 s{S_T0}, s{S_J}, 96')
        A.I(f's_cmp_eq_u32 s{S_G}, 2')
        A.I(f's_cselect_b32 s{S_T0}, s{S_H}, s{S_T0}')
        A.I(f's_lshl_b32 s{S_T0}, s{S_T0}, 2')
        A.I(f's_add_u32 s{S_T0}, s{S_T0}, s{S_WV}')
        A.I(f's_lshl_b32 s{S_T0}, s{S_T0}, 13')
        A.I('v_lshlrev_b32 v22, 7, v0')
        A.check = False
        for p in (P_Q, P_K, P_V, P_O):
            make_srd(A, S_W, p, 4 << 20)
            A.I(f'buffer_load_dword v255, v22, s[{S_W}:{S_W + 3}], s{S_T0} offen')
        A.check = True
        A.label(lwm)
        A.forget_loads()
    tok_init()
    l_nost = A.newlabel('L_nost')
    wg_poll_eq(A, dbg, None, D_GB, 256, 2, l_exit, sleep=100)
    A.I(f's_cmp_ge_u32 s{S_G}, 4')
    A.br(f's_cbranch_scc1 {l_nost}')
    lsg, lsd = A.newlabel('L_sg'), A.newlabel('L_sd')
    A.I(f's_cmp_lg_u32 s{S_WV}, 0')
    A.br(f's_cbranch_scc1 {lsd}')
    A.I(f's_cmp_eq_u32 s{S_G}, 3')
    A.I(f's_cselect_b32 s{S_T1}, {STAG}, {STAG0}')
    A.I(f's_lshl_b32 s{S_T2}, s{S_H}, 6')
    A.I(f's_add_u32 s{S_T2}, s{S_T2}, 0x{R.F_KMP:x}')
    A.label(lsg)
    A.I(f'buffer_load_dword v2, off, {ws}, s{S_T2} sc1')
    A.I(f's_sub_u32 s{S_SPIN}, s{S_SPIN}, 1')
    A.I(f's_cbranch_scc1 {l_exit}')
    A.I('s_waitcnt vmcnt(0)')
    A.I(f'v_readfirstlane_b32 s{S_T0}, v2')
    A.I(f's_cmp_ge_u32 s{S_T0}, s{S_T1}')
    A.I(f's_cbranch_scc1 {lsd}')
    A.I('s_sleep 40')
    A.br(f's_branch {lsg}')
    A.label(lsd)
    A.I('s_barrier')
    A.I(f's_mov_b32 s{S_K1}, 1')
    A.label(l_st)

    def hook(sc):
        if sc != 0:
            return
        l = A.newlabel('L_hk')
        A.I(f's_cmp_eq_u32 s{S_K1}, 1')
        A.br(f's_cbranch_scc1 {l}')
        arrive()
        ts_tok(A, 8)
        A.label(l)

    T.qkv_stage(A, [P_Q, P_K, P_V], hook_sc=hook)
    A.label(l_nost)
    ts_tok(A, 1)
    wg_poll_eq(A, dbg, None, D_GB, 256, 2, l_exit, sleep=8)
    ts_tok(A, 7)
    A.I(f's_lshl_b32 s{S_T0}, s{S_G}, 2')
    A.I(f'buffer_load_dword v2, off, {dbg}, s{S_T0} offset:4 sc1')
    A.I(f'buffer_load_dword v3, off, {dbg}, 0 offset:{D_WEIRD} sc1')
    A.I('s_waitcnt vmcnt(0)')
    A.I(f'v_readfirstlane_b32 s{S_T2}, v2')
    A.I(f'v_readfirstlane_b32 s{S_T3}, v3')
    A.I(f's_cmp_ge_u32 s{S_T2}, 32')
    A.I(f's_cselect_b32 s{S_FAST}, 1, 0')
    A.I(f's_cmp_eq_u32 s{S_T3}, 0')
    A.I(f's_cselect_b32 s{S_FAST}, s{S_FAST}, 0')
    if os.environ.get('FORCE_SLOW'):
        A.I(f's_mov_b32 s{S_FAST}, 0')
    l_nop1 = A.newlabel('L_nop1')
    A.I(f's_cmp_ge_u32 s{S_G}, 4')
    A.br(f's_cbranch_scc1 {l_nop1}')
    A.I(f's_lshr_b32 s{S_T0}, s{S_G}, 1')
    A.I(f's_lshl_b32 s{S_T0}, s{S_T0}, 5')
    A.I(f's_add_u32 s{S_END}, s{S_T0}, 32')
    A.I(f's_and_b32 s{S_NX}, s{S_G}, 1')
    A.I(f's_add_u32 s{S_NX}, s{S_NX}, s{S_T0}')
    A.I('v_mov_b32 v2, 0')

    def signal():
        lane0(A, lambda: A.I(f'buffer_store_dword v2, off, {ws}, s{S_CA} sc1'))

    def after():
        A.I('v_add_u32 v2, 1, v2')

    T.qkv_segments(A, 2, 'sc1', after_seg=after, mid_seg=signal, first=S_NX, end=f's{S_END}')
    A.I('s_waitcnt vmcnt(0)')
    signal()
    A.label(l_nop1)
    ts_tok(A, 2)
    T.att_stage(A, P_O)
    T.att_consts(A)
    A.I(f's_load_dwordx4 s[16:19], s[0:1], {KA_W1}')
    A.I('s_waitcnt lgkmcnt(0)')
    make_srd(A, S_W1, 16, 2048 * 3584)
    make_srd(A, S_B1, 18, 3584)
    g2_setup(A)
    A.I(f's_mov_b32 s{S_PRE}, 0')
    for i in range(16):
        A.I(f'v_mov_b32 v{G1ACC + i}, 0')
    A.I(f's_mov_b32 s{S_K1}, 0')
    g1_w1_dma(A, S_K1, first=True)
    A.I(f's_lshl_b32 s{S_OPS}, s{S_G}, 1')
    masks = seg_masks()
    for g in range(7):
        A.I(f's_cmp_eq_u32 s{S_G}, {g}')
        A.I(f's_cselect_b32 s{S_MSK}, 0x{masks[g] & 0xffffffff:x}, s{S_MSK}')
        A.I(f's_cselect_b32 s{S_MSK + 1}, 0x{masks[g] >> 32:x}, s{S_MSK + 1}')
    A.I(f's_ff1_i32_b64 s{S_SEG}, s[{S_MSK}:{S_MSK + 1}]')
    A.I(f's_bitset0_b64 s[{S_MSK}:{S_MSK + 1}], s{S_SEG}')
    A.I(f's_mov_b32 s{S_AV}, 0')
    A.I(f's_lshl_b32 s{S_PB}, s{S_H}, 7')
    A.I(f's_add_u32 s{S_PB}, s{S_PB}, 0x{R.F_PROG:x}')
    R.kv_wait(A, l_exit, S_SEG, 192, s_av=S_AV, s_base=S_PB, sleep=4, vlane16=1)
    T.att_load_qkv(A, S_SEG)
    x_prefetch(A, S_SEG, sx)
    L = A.newlabel('L_p2')
    L_att = A.newlabel('L_att')
    L_fin = A.newlabel('L_p2fin')
    A.label(L)
    A.check = False
    A.I(f's_cmp_ge_u32 s{S_K1}, 16')
    A.I(f's_cbranch_scc1 {L_fin}')
    lq2 = A.newlabel('L_lp2')
    ldec = A.newlabel('L_dec')
    A.I(f's_cmp_lg_u32 s{S_WV}, 0')
    A.br(f's_cbranch_scc1 {ldec}')
    A.I(f's_lshl_b32 s{S_CA}, s{S_H}, 6')
    A.I(f's_add_u32 s{S_CA}, s{S_CA}, 0x{R.F_KMP:x}')
    A.I(f's_add_u32 s40, s{S_SEG}, 2')
    A.I(f's_lshl_b32 s{S_T1}, s{S_K1}, 4')
    A.I(f's_lshl_b32 s{S_T2}, s{S_G}, 9')
    A.I(f's_add_u32 s{S_T1}, s{S_T1}, s{S_T2}')
    A.I(f's_add_u32 s{S_T1}, s{S_T1}, 0x{F_GF + 512:x}')
    lq, lgo, lnk = A.newlabel('L_lp'), A.newlabel('L_go'), A.newlabel('L_nk')
    A.label(lq)
    A.I(f'buffer_load_dwordx4 v[192:195], off, {ws}, s{S_CA} {PLF}')
    A.I(f'buffer_load_dwordx4 v[196:199], off, {ws}, s{S_T1} {PLF}')
    A.I(f'buffer_load_dwordx4 v[200:203], off, {ws}, s{S_T1} offset:16 {PLF}')
    A.I(f's_sub_u32 s{S_SPIN}, s{S_SPIN}, 1')
    A.I(f's_cbranch_scc1 {l_exit}')
    A.I('s_waitcnt vmcnt(0)')
    A.I('v_min_u32 v6, v192, v193')
    A.I('v_min3_u32 v6, v6, v194, v195')
    A.I(f'v_readfirstlane_b32 s{S_T0}, v6')
    A.I('v_min_u32 v7, v196, v197')
    A.I('v_min3_u32 v7, v7, v198, v199')
    A.I('v_cmp_eq_u32 vcc, 0, v7')
    A.I(f's_mov_b32 s{S_T3}, 1')
    A.I(f's_cmp_ge_u32 s{S_T0}, s40')
    A.I(f's_cbranch_scc1 {lgo}')
    A.label(lnk)
    lsl = A.newlabel('L_sl')
    A.I(f's_add_u32 s{S_T0}, s{S_T0}, 2')
    A.I(f's_cmp_ge_u32 s{S_T0}, s40')
    A.I(f's_cbranch_scc1 {lq}')
    A.I(f's_mul_i32 s{S_T2}, s{S_PRE}, 3')
    A.I(f's_add_u32 s{S_T2}, s{S_T2}, 5')
    A.I(f's_cmp_lt_u32 s{S_PRE}, 2')
    A.I(f's_cselect_b32 s{S_T2}, s{S_T2}, 99')
    A.I(f's_mov_b32 s{S_T3}, 3')
    A.I(f's_cmp_ge_u32 s{S_K1}, s{S_T2}')
    A.I(f's_cbranch_scc1 {lgo}')
    A.I('v_min_u32 v6, v200, v201')
    A.I('v_min3_u32 v6, v6, v202, v203')
    A.I(f'v_readfirstlane_b32 s{S_T2}, v6')
    A.I(f's_cmp_eq_u32 s{S_K1}, 15')
    A.I(f's_cselect_b32 s{S_T2}, 0, s{S_T2}')
    A.I(f's_cmp_eq_u32 s{S_T2}, 0')
    A.I(f's_cselect_b32 s{S_T3}, 2, 4')
    A.I(f's_cbranch_vccz {lgo}')
    lns = A.newlabel('L_nsl')
    A.I(f's_mov_b32 s{S_T3}, 3')
    A.I(f's_cmp_lt_u32 s{S_K1}, 3')
    A.I(f's_cbranch_scc1 {lns}')
    A.I(f's_cmp_lt_u32 s{S_SEG}, 64')
    A.I(f's_cselect_b32 s{S_T2}, 2, 3')
    A.I(f's_cmp_lt_u32 s{S_PRE}, s{S_T2}')
    A.I(f's_cbranch_scc1 {lgo}')
    A.label(lns)
    A.I('s_sleep 4')
    A.br(f's_branch {lq}')
    A.label(lgo)
    A.I(f'v_mov_b32 v6, s{S_T3}')
    A.I(f'v_mov_b32 v7, 156000')
    A.I('ds_write_b32 v7, v6')
    A.I('s_waitcnt lgkmcnt(0)')
    A.label(ldec)
    A.I('s_barrier')
    A.I(f'v_mov_b32 v7, 156000')
    A.I('ds_read_b32 v6, v7')
    A.I('s_waitcnt lgkmcnt(0)')
    A.I(f'v_readfirstlane_b32 s{S_T0}, v6')
    A.I(f's_cmp_eq_u32 s{S_T0}, 1')
    A.br(f's_cbranch_scc1 {lq2}')
    lch = A.newlabel('L_ch')
    A.I(f's_mov_b32 s{S_NX}, s{S_T0}')
    A.I(f's_cmp_lg_u32 s{S_T0}, 3')
    A.br(f's_cbranch_scc1 {lch}')
    for rnd in range(4):
        lpr = A.newlabel('L_pr')
        A.I(f's_cmp_lg_u32 s{S_PRE}, {rnd}')
        A.br(f's_cbranch_scc1 {lpr}')
        g2_pre(A, rnd)
        A.br(f's_branch {L}')
        A.label(lpr)
    A.label(lch)
    ts_tok(A, 16)
    g1_chunk(A, S_K1, l_exit)
    A.I(f's_add_u32 s{S_K1}, s{S_K1}, 1')
    if CODET:
        lct = A.newlabel('L_ct')
        A.I(f's_cmp_lg_u32 s{S_K1}, 12')
        A.br(f's_cbranch_scc1 {lct}')
        A.I(f's_lshl_b32 s{S_T0}, s{S_H}, 2')
        A.I(f's_add_u32 s{S_T0}, s{S_T0}, s{S_WV}')
        A.I(f's_cmp_lg_u32 s{S_T0}, 7')
        A.br(f's_cbranch_scc1 {L}')
        code_touch(A, L, l_exit, TAIL_BYTES, 5, 143)
        A.br(f's_branch {L}')
        A.label(lct)
    lw2 = A.newlabel('L_w2')
    A.I(f's_cmp_lg_u32 s{S_K1}, 3')
    A.br(f's_cbranch_scc1 {lw2}')
    for k in range(5):
        g2_dma(A, k)
    A.label(lw2)
    A.I(f's_cmp_lg_u32 s{S_NX}, 4')
    A.br(f's_cbranch_scc1 {L}')
    A.I(f's_mov_b32 s{S_NX}, 2')
    A.I('s_barrier')
    A.br(f's_branch {lch}')
    A.label(lq2)
    ts_tok(A, 10)
    T.att_load_mem(A, S_SEG, 'sc1')
    A.I('s_waitcnt vmcnt(0)')
    ts_tok(A, 11)
    A.check = True
    A.forget_loads()
    T.att_compute1(A)
    T.att_xchg(A, L_RED)
    saved_ = (list(A.vm), list(A.lg))
    lc1, lc2 = A.newlabel('L_c2s'), A.newlabel('L_c2e')
    A.I(f's_cmp_eq_u32 s{S_FAST}, 0')
    A.br(f's_cbranch_scc1 {lc1}')
    T.att_compute2(A, S_OPS, '')
    A.br(f's_branch {lc2}')
    A.label(lc1)
    A.vm, A.lg = saved_
    T.att_compute2(A, S_OPS, 'sc1')
    A.label(lc2)
    ts_tok(A, 12)
    A.I('s_waitcnt vmcnt(0)')
    A.I('s_barrier')
    ts_tok(A, 13)
    A.I(f's_lshl_b32 s{S_CA}, s{S_SEG}, 7')
    A.I(f's_add_u32 s{S_CA}, s{S_CA}, 0x{F_OPC:x}')
    l0 = A.newlabel('L_n0')
    A.I(f's_cmp_lg_u32 s{S_WV}, 0')
    A.br(f's_cbranch_scc1 {l0}')
    A.I(f's_lshl_b32 s{S_T1}, s{S_H}, 2')
    A.I(f's_add_u32 s{S_T1}, s{S_T1}, s{S_CA}')
    flag_store(A, S_T1, 6)
    poll_flags(A, S_CA, 32, 1, 6, 7, l_exit)
    A.label(l0)
    A.I('s_barrier')
    ts_tok(A, 14)
    red4(A, S_SEG, sx, l_exit)
    A.I(f's_ff1_i32_b64 s{S_SEG}, s[{S_MSK}:{S_MSK + 1}]')
    A.I(f's_bitset0_b64 s[{S_MSK}:{S_MSK + 1}], s{S_SEG}')
    lnn = A.newlabel('L_nn')
    A.I(f's_cmp_lt_u32 s{S_SEG}, 64')
    A.br(f's_cbranch_scc1 {lnn}')
    A.I(f's_mov_b32 s{S_SEG}, 999')
    ts_tok(A, 3)
    A.br(f's_branch {L}')
    A.label(lnn)
    lav = A.newlabel('L_av')
    A.I(f's_cmp_gt_u32 s{S_AV}, s{S_SEG}')
    A.br(f's_cbranch_scc1 {lav}')
    R.kv_wait(A, l_exit, S_SEG, 192, s_av=S_AV, s_base=S_PB, sleep=4, vlane16=1)
    A.label(lav)
    T.att_load_qkv(A, S_SEG)
    x_prefetch(A, S_SEG, sx)
    A.br(f's_branch {L}')
    A.label(L_fin)
    A.forget_loads()
    ts_tok(A, 4)
    g1_epilogue(A, l_exit)
    A.I(f's_add_u32 s{S_G}, s{S_G}, 1')
    tstamp(A, 17)
    A.label(l_g2)
    A.forget_loads()
    g2_main(A, l_exit)
    tstamp(A, 6, 8)
    if DIAG:
        A.I(f's_add_u32 s{S_T0}, s{S_G}, s{S_H}')
        A.I(f's_add_u32 s{S_T0}, s{S_T0}, s{S_WV}')
        A.I(f's_cmp_lg_u32 s{S_T0}, 0')
        A.br(f's_cbranch_scc1 {l_exit}')
        A.I('s_memrealtime s[80:81]')
        A.I('s_waitcnt lgkmcnt(0)')
        A.I('s_sub_u32 s80, s80, s58')
        A.I('v_mov_b32 v8, s60')
        A.I('v_mov_b32 v9, s61')
        A.I('v_mov_b32 v10, s80')
        A.I('v_mov_b32 v11, 0')
        if os.environ.get('DIAG2'):
            A.I(f'buffer_store_dword v9, off, {dbg}, 0 offset:32')
        else:
            A.I(f'buffer_store_dwordx4 v[8:11], off, {dbg}, 0 offset:48')
    A.label(l_exit)
    A.I('s_endpgm')


S_MSK = 56
S_OPS = 47


def seg_masks():
    c1, c2 = int(os.environ.get('C1', 14)), int(os.environ.get('C2', 27))
    m = [0] * 7
    last = {g: -100 for g in range(7)}
    for s_ in range(64):
        cand = [4, 5, 6] if s_ < c1 else ([4, 5, 6, 0, 1] if s_ < c2 else list(range(7)))
        g = min(cand, key=lambda x: last[x])
        last[g] = s_
        m[g] |= 1 << s_
    return m


def j2_calc(A):
    A.I(f's_lshr_b32 s{S_T0}, s{S_G}, 1')
    A.I(f's_lshl_b32 s{S_T0}, s{S_T0}, 3')
    A.I(f's_lshr_b32 s{S_T1}, s{S_H}, 2')
    A.I(f's_add_u32 s{S_T0}, s{S_T0}, s{S_T1}')
    A.I(f's_lshl_b32 s{S_J2}, s{S_T0}, 3')
    A.I(f's_and_b32 s{S_T0}, s{S_G}, 1')
    A.I(f's_lshl_b32 s{S_T0}, s{S_T0}, 2')
    A.I(f's_and_b32 s{S_T1}, s{S_H}, 3')
    A.I(f's_add_u32 s{S_T0}, s{S_T0}, s{S_T1}')
    A.I(f's_add_u32 s{S_J2}, s{S_J2}, s{S_T0}')


def code_touch(A, l_from, l_end, nbytes, vd, va):
    lh = A.newlabel('L_pc')
    A.I('s_getpc_b64 s[80:81]')
    A.raw(f'{lh}:')
    A.raw(f'    s_sub_u32 s80, s80, {lh}-{l_from}')
    A.raw('    s_subb_u32 s81, s81, 0')
    A.I(f'v_lshlrev_b32 v{va}, 7, v0')
    for i in range(0, nbytes, 8192):
        A.raw(f'    v_min_u32 v{va}, {l_end}-{l_from}, v{va}')
        A.raw(f'    global_load_dword v{vd}, v{va}, s[80:81]')
        A.I(f'v_add_u32 v{va}, 8192, v{va}')


def x_prefetch(A, s_seg, sx):
    A.I('v_lshrrev_b32 v6, 2, v0')
    A.I('v_lshlrev_b32 v6, 6, v6')
    A.I('v_and_b32 v7, 3, v0')
    A.I('v_lshl_add_u32 v6, v7, 3, v6')
    A.I(f's_lshl_b32 s{S_T3}, s{s_seg}, 5')
    A.I(f's_add_u32 s{S_T3}, s{S_T3}, s{S_H}')
    A.I(f's_lshl_b32 s{S_T3}, s{S_T3}, 10')
    A.I(f'buffer_load_dwordx2 v[12:13], v6, {sx}, s{S_T3} offen')
    A.I(f'buffer_load_dwordx2 v[14:15], v6, {sx}, s{S_T3} offen offset:32')


def ts_tok(A, i):
    if TIMING:
        A.I(f's_add_u32 s{S_G}, s{S_G}, 1')
        tstamp(A, i, 14 if i in (1, 2, 7, 8) else 6)
        A.I(f's_sub_u32 s{S_G}, s{S_G}, 1')


G1ACC = 120
G1T = 144
L_G1 = 0
L_RED = 65536
L_W2 = 73728


def g1_lane(A):
    t = G1T
    A.I(f'v_lshrrev_b32 v{t}, 3, v0')
    A.I(f'v_and_b32 v{t + 1}, 7, v0')
    A.I(f'v_bfe_u32 v{t + 2}, v0, 4, 1')
    A.I(f's_and_b32 s{S_T0}, s{S_WV}, 1')
    A.I(f's_lshl_b32 s{S_T0}, s{S_T0}, 1')
    A.I(f'v_or_b32 v{t + 2}, s{S_T0}, v{t + 2}')
    A.I(f'v_lshlrev_b32 v{t + 2}, 1, v{t + 2}')
    A.I(f'v_xor_b32 v{t + 1}, v{t + 1}, v{t + 2}')
    A.I(f'v_lshlrev_b32 v{t + 1}, 4, v{t + 1}')
    A.I(f'v_mul_u32_u24 v136, 3584, v{t}')
    A.I(f'v_add_u32 v136, v136, v{t + 1}')
    A.I(f'v_lshl_add_u32 v137, v{t}, 10, v{t + 1}')
    A.I(f'v_and_b32 v{t}, 15, v0')
    A.I(f'v_lshrrev_b32 v{t + 1}, 4, v0')
    A.I(f'v_lshrrev_b32 v{t + 2}, 2, v{t}')
    A.I(f'v_and_b32 v{t + 3}, 3, v{t}')
    A.I(f'v_lshl_add_u32 v{t + 4}, v{t + 1}, 3, v{t + 2}')
    A.I(f'v_lshlrev_b32 v{t + 4}, 7, v{t + 4}')
    A.I(f'v_lshl_add_u32 v{t + 4}, v{t + 3}, 3, v{t + 4}')
    A.I(f'v_lshrrev_b32 v{t + 5}, 1, v{t + 2}')
    A.I(f'v_and_b32 v{t + 6}, 1, v{t + 1}')
    A.I(f'v_lshl_add_u32 v{t + 5}, v{t + 6}, 1, v{t + 5}')
    A.I(f'v_xor_b32 v{t + 6}, s{S_T0}, v{t + 5}')
    A.I(f'v_lshl_add_u32 v138, v{t + 6}, 5, v{t + 4}')
    A.I(f'v_xor_b32 v139, 32, v138')
    A.I(f's_and_b32 s{S_T0}, s{S_WV}, 2')
    A.I(f'v_xor_b32 v{t + 6}, s{S_T0}, v{t + 5}')
    A.I(f'v_lshl_add_u32 v140, v{t + 6}, 5, v{t + 4}')
    A.I(f'v_add_u32 v140, 16384, v140')
    A.I(f'v_xor_b32 v141, 32, v140')


def g1_w1_dma(A, s_k, first=False, plus=0):
    if first:
        g1_lane(A)
    w1 = f's[{S_W1}:{S_W1 + 3}]'
    A.I(f's_add_u32 s{S_T2}, s{s_k}, {plus}')
    A.I(f's_mul_i32 s{S_T0}, s{S_T2}, {128 * 3584}')
    A.I(f's_mul_i32 s{S_T1}, s{S_WV}, {8 * 3584}')
    A.I(f's_add_u32 s{S_T0}, s{S_T0}, s{S_T1}')
    A.I(f's_lshr_b32 s{S_T1}, s{S_J}, 3')
    A.I(f's_lshl_b32 s{S_T1}, s{S_T1}, 7')
    A.I(f's_add_u32 s{S_T0}, s{S_T0}, s{S_T1}')
    A.I(f's_and_b32 s{S_T1}, s{S_T2}, 1')
    A.I(f's_lshl_b32 s{S_T1}, s{S_T1}, 15')
    A.I(f's_lshl_b32 s{S_T2}, s{S_WV}, 10')
    A.I(f's_add_u32 s{S_T1}, s{S_T1}, s{S_T2}')
    for i in range(4):
        A.I(f's_add_u32 m0, s{S_T1}, {L_G1 + i * 4096}')
        A.I(f's_add_u32 s{S_T2}, s{S_T0}, {i * 32 * 3584}')
        A.I(f'buffer_load_dwordx4 v136, {w1}, s{S_T2} offen lds')


def g1_chunk(A, s_k, l_exit):
    ws = f's[{S_WS}:{S_WS + 3}]'
    A.I(f's_lshl_b32 s{S_T0}, s{s_k}, 17')
    A.I(f's_lshl_b32 s{S_T1}, s{S_WV}, 13')
    A.I(f's_add_u32 s{S_T0}, s{S_T0}, s{S_T1}')
    A.I(f's_and_b32 s{S_T1}, s{S_J}, 7')
    A.I(f's_lshl_b32 s{S_T1}, s{S_T1}, 7')
    A.I(f's_add_u32 s{S_T0}, s{S_T0}, s{S_T1}')
    A.I(f's_add_u32 s{S_T0}, s{S_T0}, 0x{WS_HP:x}')
    A.I(f's_and_b32 s{S_T3}, s{s_k}, 1')
    A.I(f's_lshl_b32 s{S_T3}, s{S_T3}, 15')
    A.I(f's_lshl_b32 s{S_T2}, s{S_WV}, 10')
    A.I(f's_add_u32 s{S_T1}, s{S_T3}, s{S_T2}')
    for i in range(4):
        A.I(f's_add_u32 m0, s{S_T1}, {L_G1 + 16384 + i * 4096}')
        A.I(f's_add_u32 s{S_T2}, s{S_T0}, {i * 32 * 1024}')
        A.I(f'buffer_load_dwordx4 v137, {ws}, s{S_T2} offen lds')
    AD = G1T
    for j in range(4):
        A.I(f'v_add_u32 v{AD + j}, s{S_T3}, v{138 + j}')
    l13, l14 = A.newlabel('L_13'), A.newlabel('L_14')
    A.I(f's_cmp_eq_u32 s{s_k}, 15')
    A.br(f's_cbranch_scc1 {l13}')
    g1_w1_dma(A, s_k, plus=1)
    A.br(f's_branch {l14}')
    A.label(l13)
    A.I(f's_lshr_b32 s{S_T2}, s{S_J}, 3')
    A.I(f's_lshl_b32 s{S_T0}, s{S_T2}, 7')
    A.I(f's_and_b32 s{S_T1}, s{S_WV}, 1')
    A.I(f's_lshl_b32 s{S_T1}, s{S_T1}, 6')
    A.I(f's_add_u32 s{S_T0}, s{S_T0}, s{S_T1}')
    A.I('v_lshrrev_b32 v20, 4, v0')
    A.I('v_lshlrev_b32 v20, 3, v20')
    A.I(f'buffer_load_dwordx2 v[16:17], v20, s[{S_B1}:{S_B1 + 3}], s{S_T0} offen')
    A.I(f'buffer_load_dwordx2 v[18:19], v20, s[{S_B1}:{S_B1 + 3}], s{S_T0} offen offset:32')
    g2_dma(A, 13)
    A.label(l14)
    A.I('s_waitcnt vmcnt(4)')
    A.I('s_barrier')
    FR = G1T + 8

    def rd(ks):
        for j in range(4):
            for x in range(2):
                A.I(f'ds_read_b64_tr_b16 {v(FR + 16 * ks + 4 * j + 2 * x, 2)}, v{AD + j} offset:{L_G1 + (32 * ks + 4 * x) * 128}')

    rd(0)
    for ks in range(4):
        if ks < 3:
            rd(ks + 1)
            A.I('s_waitcnt lgkmcnt(8)')
        else:
            A.I('s_waitcnt lgkmcnt(0)')
        f = FR + 16 * ks
        for mbp in range(2):
            for nbp in range(2):
                d = G1ACC + (mbp * 2 + nbp) * 4
                A.I(f'v_mfma_f32_16x16x32_bf16 {v(d, 4)}, {v(f + 4 * mbp, 4)}, {v(f + 8 + 4 * nbp, 4)}, {v(d, 4)}')


def g1_epilogue(A, l_exit):
    import math
    ws, b1 = f's[{S_WS}:{S_WS + 3}]', f's[{S_B1}:{S_B1 + 3}]'
    ACC, BI, Z, Pk, TT, O = G1ACC, 150, 160, 168, 172, 188
    A.I(f's_lshr_b32 s{S_T2}, s{S_J}, 3')
    A.I(f's_and_b32 s{S_T0}, s{S_J}, 7')
    A.I(f's_lshl_b32 s{S_T0}, s{S_T0}, 2')
    A.I(f's_and_b32 s{S_T1}, s{S_WV}, 2')
    A.I(f's_add_u32 s{S_T0}, s{S_T0}, s{S_T1}')
    A.I(f's_mul_i32 s{S_T0}, s{S_T0}, 56')
    A.I(f's_lshl_b32 s{S_T1}, s{S_T2}, 1')
    A.I(f's_add_u32 s{S_T0}, s{S_T0}, s{S_T1}')
    A.I(f's_and_b32 s{S_T1}, s{S_WV}, 1')
    A.I(f's_add_u32 s{S_T0}, s{S_T0}, s{S_T1}')
    A.I(f's_lshl_b32 s{S_T0}, s{S_T0}, 10')
    A.I(f's_add_u32 s{S_T0}, s{S_T0}, 0x{WS_U:x}')
    k1 = -2 * math.sqrt(2 / math.pi) * math.log2(math.e)
    A.I(f's_mov_b32 s{S_T2}, {f32(k1)}')
    A.I(f's_mov_b32 s{S_T3}, {f32(k1 * 0.044715)}')
    A.I('v_lshlrev_b32 v145, 4, v0')
    for i in range(4):
        A.I(f'v_lshlrev_b32 v{BI + 2 * i}, 16, v{16 + i}')
        A.I(f'v_and_b32 v{BI + 2 * i + 1}, 0xffff0000, v{16 + i}')
    for nbp in range(2):
        for mbp in range(2):
            for r in range(4):
                A.I(f'v_mov_b32 v{Z + 4 * mbp + r}, v{ACC + (mbp * 2 + nbp) * 4 + r}')
        T.round_bf16(A, Z, Pk)
        for i in range(8):
            A.I(f'v_add_f32 v{Z + i}, v{Z + i}, v{BI + i}')
        T.round_bf16(A, Z, Pk)
        for i in range(8):
            t = TT + i
            A.I(f'v_mul_f32 v{t}, v{Z + i}, v{Z + i}')
            A.I(f'v_mov_b32 v{t + 8}, s{S_T2}')
            A.I(f'v_fmac_f32 v{t + 8}, s{S_T3}, v{t}')
            A.I(f'v_mul_f32 v{t}, v{t + 8}, v{Z + i}')
            A.I(f'v_exp_f32 v{t}, v{t}')
        for i in range(8):
            A.I(f'v_add_f32 v{TT + i}, 1.0, v{TT + i}')
            A.I(f'v_rcp_f32 v{TT + i}, v{TT + i}')
        for i in range(8):
            A.I(f'v_mul_f32 v{Z + i}, v{Z + i}, v{TT + i}')
        o = O + 4 * nbp
        for i in range(4):
            A.I(f'v_cvt_pk_bf16_f32 v{o + i}, v{Z + 2 * i}, v{Z + 2 * i + 1}')
        A.I(f'buffer_store_dwordx4 {v(o, 4)}, v145, {ws}, s{S_T0} offen sc1')
        A.I(f's_add_u32 s{S_T0}, s{S_T0}, {56 * 1024}')
    A.I('s_waitcnt vmcnt(0)')
    A.I('s_barrier')
    l = A.newlabel('L_ue')
    A.I(f's_cmp_lg_u32 s{S_WV}, 0')
    A.br(f's_cbranch_scc1 {l}')
    A.I(f's_lshl_b32 s{S_T2}, s{S_G}, 7')
    A.I(f's_add_u32 s{S_T2}, s{S_T2}, 0x{F_LU:x}')
    A.I(f's_lshl_b32 s{S_T3}, s{S_G}, 2')
    A.I(f's_add_u32 s{S_T3}, s{S_T3}, 0x{F_GF + 256:x}')
    garrive(A, S_T2, S_T3, 144, l_exit)
    A.label(l)


G2_SLOT = {0: 0, 1: 1, 2: 2, 3: 3, 4: 4, 5: 0, 6: 1, 7: 2, 8: 3, 9: 4, 10: 0, 11: 1, 12: 2, 13: 0}
G2_READ = [[0, 1, 2, 3, 4], [5, 6, 7], [8, 9, 10, 11, 12], [13]]
G2_NEXT = [[5, 6, 7, 8, 9], [10, 11, 12], [], []]


def g2_slot(k):
    return 0 if k == 13 else L_W2 + 16384 * G2_SLOT[k]


def g2_areg(k):
    return (128 + 16 * k) if k < 8 else 16 * (k - 8)


S_PRE = 62


def g2_pre(A, rnd):
    t = G1T
    A.I(f'v_and_b32 v{t}, 15, v0')
    A.I(f'v_lshrrev_b32 v{t + 1}, 4, v0')
    A.I(f'v_lshrrev_b32 v{t + 2}, 2, v{t}')
    A.I(f'v_and_b32 v{t + 3}, 3, v{t}')
    A.I(f'v_lshl_add_u32 v{t + 2}, v{t + 1}, 2, v{t + 2}')
    A.I(f'v_bfe_u32 v{t + 1}, v{t + 2}, 1, 2')
    A.I(f'v_lshlrev_b32 v{t + 2}, 7, v{t + 2}')
    A.I(f'v_lshl_add_u32 v{t + 2}, v{t + 3}, 3, v{t + 2}')
    A.I(f'v_lshl_add_u32 v{t + 2}, v{t + 1}, 5, v{t + 2}')
    A.I(f's_lshl_b32 s{S_T0}, s{S_WV}, 12')
    A.I(f's_add_u32 s{S_T0}, s{S_T0}, {L_W2}')
    for j in range(4):
        A.I(f'v_xor_b32 v{t + 4 + j}, {32 * j}, v{t + 2}')
        A.I(f'v_add_u32 v{t + 4 + j}, s{S_T0}, v{t + 4 + j}')
        A.I(f'v_add_u32 v{t + 8 + j}, 49152, v{t + 4 + j}')
    A.I('s_waitcnt vmcnt(0)')
    A.I('s_barrier')
    for k in G2_READ[rnd]:
        so = 16384 * G2_SLOT[k]
        ab = t + 4
        if so >= 49152:
            so -= 49152
            ab = t + 8
        if k == 13:
            so = 0
            for j in range(4):
                A.I(f'v_subrev_u32 v{ab + j}, {L_W2}, v{ab + j}')
        for j in range(4):
            for x in range(2):
                A.I(f'ds_read_b64_tr_b16 {a(g2_areg(k) + 4 * j + 2 * x, 2)}, v{ab + j} offset:{so + 16 * x * 128}')
        A.I('s_waitcnt lgkmcnt(4)')
    A.I('s_waitcnt lgkmcnt(0)')
    if G2_NEXT[rnd]:
        A.I('s_barrier')
        for k in G2_NEXT[rnd]:
            g2_dma(A, k)
    A.I(f's_mov_b32 s{S_PRE}, {rnd + 1}')


def g2_setup(A):
    A.I(f's_load_dwordx2 s[16:17], s[0:1], {KA_W2}')
    A.I('s_waitcnt lgkmcnt(0)')
    make_srd(A, S_W2, 16, 1792 * 4096)
    A.I(f's_load_dwordx4 s[16:19], s[0:1], {KA_B2}')
    A.I('s_waitcnt lgkmcnt(0)')
    t = G1T
    A.I(f'v_lshrrev_b32 v{t}, 3, v0')
    A.I(f'v_and_b32 v{t + 1}, 7, v0')
    A.I(f'v_lshrrev_b32 v{t + 2}, 4, v0')
    A.I(f'v_lshlrev_b32 v{t + 2}, 1, v{t + 2}')
    A.I(f'v_xor_b32 v{t + 1}, v{t + 1}, v{t + 2}')
    A.I(f'v_lshlrev_b32 v{t + 1}, 4, v{t + 1}')
    A.I(f'v_lshl_add_u32 v142, v{t}, 12, v{t + 1}')
    A.I(f's_lshl_b32 s{S_BO2}, s{S_WV}, 15')
    A.I(f's_lshr_b32 s{S_T0}, s{S_J2}, 3')
    A.I(f's_lshl_b32 s{S_T0}, s{S_T0}, 7')
    A.I(f's_add_u32 s{S_BO2}, s{S_BO2}, s{S_T0}')
    A.I(f's_lshl_b32 s{S_LB2}, s{S_WV}, 10')


def g2_dma(A, k, vr=142):
    w2 = f's[{S_W2}:{S_W2 + 3}]'
    for i in range(4):
        A.I(f's_add_u32 m0, s{S_LB2}, {g2_slot(k) + i * 4096}')
        A.I(f's_add_u32 s{S_T0}, s{S_BO2}, {(k * 128 + i * 32) * 4096}')
        A.I(f'buffer_load_dwordx4 v{vr}, {w2}, s{S_T0} offen lds')


def g2_touch(A, k0):
    w2 = f's[{S_W2}:{S_W2 + 3}]'
    A.I('v_lshlrev_b32 v143, 12, v0')
    A.I(f's_lshr_b32 s{S_T0}, s{S_J2}, 3')
    A.I(f's_lshl_b32 s{S_T0}, s{S_T0}, 7')
    A.I(f's_lshl_b32 s{S_T1}, s{S_WV}, 18')
    A.I(f's_add_u32 s{S_T0}, s{S_T0}, s{S_T1}')
    for r0 in range(k0 * 128, 1792, 256):
        A.I(f's_add_u32 s{S_T1}, s{S_T0}, {r0 * 4096}')
        A.I(f'buffer_load_dword v5, v143, {w2}, s{S_T1} offen')


def g2_main(A, l_exit):
    ws = f's[{S_WS}:{S_WS + 3}]'
    S_O, S_B2 = S_W1, S_B1
    tstamp(A, 20, 8)
    for rnd in range(4):
        l = A.newlabel('L_pre')
        A.I(f's_cmp_gt_u32 s{S_PRE}, {rnd}')
        A.br(f's_cbranch_scc1 {l}')
        g2_pre(A, rnd)
        A.label(l)
        A.forget_loads()
    A.I('s_waitcnt lgkmcnt(0)')
    make_srd(A, S_B2, 16, 4096)
    make_srd(A, S_O, 18, 2048 * 1024)
    b2, out = f's[{S_B2}:{S_B2 + 3}]', f's[{S_O}:{S_O + 3}]'
    S_AO, S_EO = 36, 37
    A.I(f's_and_b32 s{S_T0}, s{S_J2}, 7')
    A.I(f's_mul_i32 s{S_AO}, s{S_T0}, {4 * 56 * 1024}')
    A.I(f's_lshl_b32 s{S_T1}, s{S_WV}, 10')
    A.I(f's_add_u32 s{S_AO}, s{S_AO}, s{S_T1}')
    A.I(f's_add_u32 s{S_AO}, s{S_AO}, 0x{WS_U:x}')
    A.I(f's_lshl_b32 s{S_T0}, s{S_T0}, 2')
    A.I(f's_add_u32 s{S_T0}, s{S_T0}, s{S_WV}')
    A.I(f's_lshr_b32 s{S_T1}, s{S_J2}, 3')
    A.I(f's_lshl_b32 s{S_EO}, s{S_T1}, 16')
    A.I(f's_lshl_b32 s{S_T0}, s{S_T0}, 5')
    A.I(f's_add_u32 s{S_EO}, s{S_EO}, s{S_T0}')
    A.I('v_lshlrev_b32 v5, 4, v0')
    A.I('v_and_b32 v1, 15, v0')
    A.I('v_lshrrev_b32 v2, 4, v0')
    A.I('v_lshlrev_b32 v3, 10, v1')
    A.I('v_lshl_add_u32 v3, v2, 3, v3')
    A.I('v_lshlrev_b32 v4, 1, v1')
    A.I(f's_lshl_b32 s{S_T1}, s{S_T1}, 7')
    HB, BB, ACC, AR = 10, 18, 24, 88
    NA = 42
    A.I(f's_mov_b32 s39, s{S_T1}')
    masks = seg_masks()
    late = [g for g in range(7) if masks[g] >> 61] if os.environ.get('TWOPH') else []
    earlyg = [g for g in range(7) if g not in late]
    korder = [k for g in earlyg + late for k in (2 * g, 2 * g + 1)]
    nearly = min(8 * len(earlyg), NA)
    S_FL = 38
    A.I(f's_lshl_b32 s{S_FL}, s{S_G}, 9')
    A.I(f's_add_u32 s{S_FL}, s{S_FL}, 0x{F_GF + 256:x}')

    def wait_groups(gs):
        l0 = A.newlabel('L_g20')
        A.I(f's_cmp_lg_u32 s{S_WV}, 0')
        A.br(f's_cbranch_scc1 {l0}')
        A.check = False
        poll_flags(A, S_FL, 7, 1, 6, 7, l_exit, sleep=1, mask=sum(1 << g for g in gs))
        A.check = True
        A.label(l0)
        A.I('s_barrier')

    tstamp(A, 21, 8)
    wait_groups(earlyg)
    tstamp(A, 5, 8)
    vmq = []

    def aload(i):
        k, db = korder[i >> 2], i & 3
        off = db * 56 * 1024 + k * 4096
        A.I(f's_add_u32 s{S_T1}, s{S_AO}, {off}')
        A.I(f'buffer_load_dwordx4 {v(AR + 4 * (i % NA), 4)}, v5, {ws}, s{S_T1} offen')
        vmq.append(('a', i))

    def need(names):
        idx = max([i for i, p in enumerate(vmq) if p in names] + [-1])
        if idx >= 0:
            A.I(f's_waitcnt vmcnt({len(vmq) - 1 - idx})')
            del vmq[:idx + 1]

    PD = int(os.environ.get('PD', 20))
    for i in range(PD):
        aload(i)
    tstamp(A, 19, 8)
    nxt = PD
    for i in range(56):
        k, db = korder[i >> 2], i & 3
        need([('a', i)])
        for nb in range(4):
            d = ACC + 16 * db + 4 * nb
            c = '0' if i < 4 else v(d, 4)
            A.I(f'v_mfma_f32_16x16x32_bf16 {v(d, 4)}, {v(AR + 4 * (i % NA), 4)}, {a(g2_areg(k) + 4 * nb, 4)}, {c}')
            if nb in (0, 2) and nxt < 56 and nxt - i < NA - 1 and (nb == 0 or nxt - i < int(os.environ.get('PD2', 32))):
                aload(nxt)
                nxt += 1
                if nxt == 56:
                    for q in range(4):
                        A.I(f's_add_u32 s{S_T0}, s{S_EO}, 0x{WS_H + q * 16384:x}')
                        A.I(f'buffer_load_dwordx2 {v(HB + 2 * q, 2)}, v3, {ws}, s{S_T0} offen')
                        vmq.append(('h', 0))
                        A.I(f'buffer_load_ushort v{BB + q}, v4, {b2}, s39 offen offset:{32 * q}')
                        vmq.append(('h', 0))
    A.I(f's_lshl_b32 s{S_T0}, s{S_WV}, 12')
    A.I(f'v_add_u32 v6, s{S_T0}, v5')
    for db in range(4):
        for nb in range(4):
            A.I(f'ds_write_b128 v6, {v(ACC + 16 * db + 4 * nb, 4)} offset:{db * 16384 + nb * 1024}')
        A.I('s_waitcnt lgkmcnt(8)')
    A.I(f's_lshl_b32 s{S_T0}, s{S_WV}, 14')
    A.I(f'v_add_u32 v6, s{S_T0}, v5')
    A.I('s_waitcnt lgkmcnt(0)')
    A.I('s_barrier')
    for j in range(16):
        A.I(f'ds_read_b128 {v(ACC + 4 * j, 4)}, v6 offset:{1024 * j}')
        if j == 11:
            A.I('s_waitcnt lgkmcnt(8)')
    A.I('s_waitcnt lgkmcnt(0) vmcnt(0)')
    tstamp(A, 18, 8)
    for r in range(0, 16, 2):
        A.I(f'v_pk_add_f32 {v(ACC + r, 2)}, {v(ACC + r, 2)}, {v(ACC + 16 + r, 2)}')
        A.I(f'v_pk_add_f32 {v(ACC + 32 + r, 2)}, {v(ACC + 32 + r, 2)}, {v(ACC + 48 + r, 2)}')
    for r in range(0, 16, 2):
        A.I(f'v_pk_add_f32 {v(ACC + r, 2)}, {v(ACC + r, 2)}, {v(ACC + 32 + r, 2)}')
    for nb in range(4):
        d = ACC + 4 * nb
        t = 88
        A.I(f'v_cvt_pk_bf16_f32 v{t}, v{d}, v{d + 1}')
        A.I(f'v_cvt_pk_bf16_f32 v{t + 1}, v{d + 2}, v{d + 3}')
        A.I(f'v_lshlrev_b32 v{t + 2}, 16, v{BB + nb}')
        for i in range(2):
            A.I(f'v_lshlrev_b32 v{d + 2 * i}, 16, v{t + i}')
            A.I(f'v_and_b32 v{d + 2 * i + 1}, 0xffff0000, v{t + i}')
        for r in range(4):
            A.I(f'v_add_f32 v{d + r}, v{d + r}, v{t + 2}')
        A.I(f'v_cvt_pk_bf16_f32 v{t}, v{d}, v{d + 1}')
        A.I(f'v_cvt_pk_bf16_f32 v{t + 1}, v{d + 2}, v{d + 3}')
        for i in range(2):
            A.I(f'v_lshlrev_b32 v{d + 2 * i}, 16, v{t + i}')
            A.I(f'v_and_b32 v{d + 2 * i + 1}, 0xffff0000, v{t + i}')
            A.I(f'v_lshlrev_b32 v{t + 2}, 16, v{HB + 2 * nb + i}')
            A.I(f'v_and_b32 v{t + 3}, 0xffff0000, v{HB + 2 * nb + i}')
            A.I(f'v_add_f32 v{d + 2 * i}, v{d + 2 * i}, v{t + 2}')
            A.I(f'v_add_f32 v{d + 2 * i + 1}, v{d + 2 * i + 1}, v{t + 3}')
        o = 92 + 2 * nb
        A.I(f'v_cvt_pk_bf16_f32 v{o}, v{d}, v{d + 1}')
        A.I(f'v_cvt_pk_bf16_f32 v{o + 1}, v{d + 2}, v{d + 3}')
        A.I(f's_add_u32 s{S_T0}, s{S_EO}, {nb * 16384}')
        A.I(f'buffer_store_dwordx2 {v(o, 2)}, v3, {out}, s{S_T0} offen')


def red4(A, s_seg, srd_x, l_exit):
    ws = f's[{S_WS}:{S_WS + 3}]'
    B, Z, Pk, XR, t0, t1, va = 192, 144, 152, 12, 160, 161, 162
    A.I(f's_lshl_b32 s{S_T2}, s{s_seg}, 5')
    A.I(f's_add_u32 s{S_T2}, s{S_T2}, s{S_H}')
    A.I(f's_lshl_b32 s{S_T0}, s{S_OPS}, 5')
    A.I(f's_add_u32 s{S_T0}, s{S_T0}, s{S_H}')
    A.I(f's_lshl_b32 s{S_T0}, s{S_T0}, 15')
    A.I(f's_xor_b32 s{S_OPS}, s{S_OPS}, 1')
    A.I(f's_lshl_b32 s{S_T1}, s{S_WV}, 13')
    A.I(f's_add_u32 s{S_T0}, s{S_T0}, s{S_T1}')
    A.I(f's_add_u32 s{S_T0}, s{S_T0}, 0x{WS_OP:x}')
    A.I(f's_add_u32 s{S_T1}, s{S_T0}, 4096')
    for hh in range(8):
        so = S_T0 if hh < 4 else S_T1
        A.I(f'buffer_load_dwordx4 {v(B + 4 * hh, 4)}, v1, {ws}, s{so} offen offset:{1024 * (hh & 3)} sc1')
    A.I(f's_lshl_b32 s{S_T3}, s{S_T2}, 10')
    A.I(f'v_lshrrev_b32 v{va}, 2, v0')
    A.I(f'v_lshlrev_b32 v{va}, 6, v{va}')
    A.I(f'v_and_b32 v{t0}, 3, v0')
    A.I(f'v_lshl_add_u32 v{va}, v{t0}, 3, v{va}')
    for hh in range(8):
        A.I(f's_waitcnt vmcnt({7 - hh})')
        for i in range(4):
            r = B + 4 * hh + i
            if hh == 0:
                A.I(f'v_lshlrev_b32 v{Z + 2 * i}, 16, v{r}')
                A.I(f'v_and_b32 v{Z + 2 * i + 1}, 0xffff0000, v{r}')
            else:
                A.I(f'v_lshlrev_b32 v{t0}, 16, v{r}')
                A.I(f'v_and_b32 v{t1}, 0xffff0000, v{r}')
                A.I(f'v_add_f32 v{Z + 2 * i}, v{Z + 2 * i}, v{t0}')
                A.I(f'v_add_f32 v{Z + 2 * i + 1}, v{Z + 2 * i + 1}, v{t1}')
    A.I(f's_lshl_b32 s{S_T0}, s{S_WV}, 11')
    A.I(f'v_add_u32 v{t0}, s{S_T0}, v1')
    A.I(f'v_add_u32 v{t0}, {L_RED}, v{t0}')
    A.I(f'ds_write_b128 v{t0}, {v(Z, 4)}')
    A.I(f'ds_write_b128 v{t0}, {v(Z + 4, 4)} offset:1024')
    A.I('s_waitcnt lgkmcnt(0) vmcnt(0)')
    A.I('s_barrier')
    ts_tok(A, 15)
    l = A.newlabel('L_r4')
    A.I(f's_cmp_lg_u32 s{S_WV}, 0')
    A.br(f's_cbranch_scc1 {l}')
    for w_ in range(1, 4):
        for j in range(2):
            A.I(f'ds_read_b128 {v(B + 8 * w_ + 4 * j, 4)}, v{t0} offset:{2048 * w_ + 1024 * j}')
    A.I('s_waitcnt lgkmcnt(0)')
    for w_ in range(1, 4):
        for i in range(8):
            A.I(f'v_add_f32 v{Z + i}, v{Z + i}, v{B + 8 * w_ + i}')
    T.round_bf16(A, Z, Pk)
    for i in range(4):
        A.I(f'v_lshlrev_b32 v{t0}, 16, v{XR + i}')
        A.I(f'v_and_b32 v{t1}, 0xffff0000, v{XR + i}')
        A.I(f'v_add_f32 v{Z + 2 * i}, v{Z + 2 * i}, v{t0}')
        A.I(f'v_add_f32 v{Z + 2 * i + 1}, v{Z + 2 * i + 1}, v{t1}')
    T.round_bf16(A, Z, Pk)
    A.I(f's_add_u32 s{S_T0}, s{S_T3}, 0x{WS_H:x}')
    A.I(f'buffer_store_dwordx2 {v(Pk, 2)}, v{va}, {ws}, s{S_T0} offen sc1')
    A.I(f'buffer_store_dwordx2 {v(Pk + 2, 2)}, v{va}, {ws}, s{S_T0} offen offset:32 sc1')
    T.ln_regs(A, Z, t0, t1)
    T.round_bf16(A, Z, XR)
    T.ln_regs(A, Z, t0, t1)
    for i in range(4):
        A.I(f'v_cvt_pk_bf16_f32 v{XR + i}, v{Z + 2 * i}, v{Z + 2 * i + 1}')
    A.I(f's_add_u32 s{S_T0}, s{S_T3}, 0x{WS_HP:x}')
    A.I(f'buffer_store_dwordx2 {v(XR, 2)}, v{va}, {ws}, s{S_T0} offen sc1')
    A.I(f'buffer_store_dwordx2 {v(XR + 2, 2)}, v{va}, {ws}, s{S_T0} offen offset:32 sc1')
    A.I(f's_lshl_b32 s{S_T2}, s{s_seg}, 7')
    A.I(f's_add_u32 s{S_T2}, s{S_T2}, 0x{F_LH:x}')
    A.I(f's_lshl_b32 s{S_T3}, s{s_seg}, 2')
    A.I(f's_add_u32 s{S_T3}, s{S_T3}, 0x{F_GF:x}')
    A.I('s_waitcnt vmcnt(0)')
    garrive(A, S_T2, S_T3, t0, l_exit)
    A.label(l)


if __name__ == '__main__':
    A = Asm()
    nm = NAME + '_kernel'
    mega_kernel(A, nm)
    hd = header([(nm, 256, 256, R.L_TOTAL)])
    if os.environ.get('FINAL'):
        hd = hd.replace(f'@launch kernel={nm} ', '@launch ')
    txt = hd + A.text() + '.section .rodata,"a"\n' + kernel_desc(nm, 512, 256)
    out = os.environ.get('OUT', 'm3.s')
    open(out, 'w').write(txt)
    print(len(txt))
```

```python
import os
os.environ.setdefault('PB_DELAY', '7'); os.environ.setdefault('AF_DELAY', '2'); os.environ.setdefault('AF_GAP', '2')
from common import *
import tok2 as T
import rec9 as R
from tok2 import f32, S_WS, S_W, S_X, S_H, S_WV, S_G, S_T0, S_T1, S_T2, S_T3

S_DBG = 84
S_SPIN = R.S_SPIN
S_XCC = 83
S_LNO = 82
F_OPC = WS_FLAG + 0x4000
F_LH = WS_FLAG + 0x6000
F_LU = WS_FLAG + 0x8000
F_GF = WS_FLAG + 0x8400
S_FAST = S_XCC
D_GB, D_OVF, D_WEIRD, D_TS, D_TI = 128, 36, 40, 192, 196
S_J, S_BO2, S_LB2 = 100, 101, 3
S_J2 = 63
S_W1, S_B1, S_W2 = 88, 92, 96
NEARLY = int(os.environ.get('NEARLY', 2))
STAG = int(os.environ.get('STAG', 4))
STAG0 = int(os.environ.get('STAG0', 1))
TIMING = bool(os.environ.get('TIMING'))
OPRING = int(os.environ.get('OPRING', 0))
WARM = int(os.environ.get('WARM', 0))
E_IMM = int(os.environ.get('IMM', 62))
DIAG = bool(os.environ.get('DIAG'))
TAIL_BYTES = int(os.environ.get('TAIL_BYTES', 24576))
CODET = int(os.environ.get('CODET', 0))
CODE_BYTES = int(os.environ.get('CODE_BYTES', 57344))
PLF = os.environ.get('PLF', 'sc1').replace('_', ' ')


def lane0(A, body):
    A.I('s_mov_b64 exec, 1')
    body()
    A.I('s_mov_b64 exec, -1')


def poll_eq(A, srd, s_off, imm, expect, vt, l_exit, sleep=0):
    l = A.newlabel('L_poll')
    A.label(l)
    so = f's{s_off}' if s_off is not None else '0'
    A.I(f'buffer_load_dword v{vt}, off, {srd}, {so} offset:{imm} sc1')
    A.I(f's_sub_u32 s{S_SPIN}, s{S_SPIN}, 1')
    A.I(f's_cbranch_scc1 {l_exit}')
    A.I('s_waitcnt vmcnt(0)')
    A.I(f'v_readfirstlane_b32 s{S_T0}, v{vt}')
    ld = A.newlabel('L_pd')
    A.I(f's_cmp_eq_u32 s{S_T0}, {expect}')
    A.I(f's_cbranch_scc1 {ld}')
    if sleep:
        A.I(f's_sleep {sleep}')
    A.br(f's_branch {l}')
    A.label(ld)


def poll_flags(A, s_off, nlanes, width, vt, va, l_exit, sleep=0, mask=None):
    ws = f's[{S_WS}:{S_WS + 3}]'
    l, ld = A.newlabel('L_pf'), A.newlabel('L_pfd')
    A.I(f'v_lshlrev_b32 v{va}, {2 if width == 1 else 3}, v0')
    assert nlanes <= 32
    A.I(f's_mov_b32 exec_lo, 0x{((1 << nlanes) - 1) if mask is None else mask:x}')
    A.I('s_mov_b32 exec_hi, 0')
    A.label(l)
    if width == 1:
        A.I(f'buffer_load_dword v{vt}, v{va}, {ws}, s{s_off} offen {PLF}')
    else:
        A.I(f'buffer_load_dwordx2 {v(vt, 2)}, v{va}, {ws}, s{s_off} offen {PLF}')
    A.I(f's_sub_u32 s{S_SPIN}, s{S_SPIN}, 1')
    A.I(f's_cbranch_scc1 {l_exit}')
    A.I('s_waitcnt vmcnt(0)')
    if width == 2:
        A.I(f'v_min_u32 v{vt}, v{vt}, v{vt + 1}')
    A.I(f'v_cmp_eq_u32 vcc, 0, v{vt}')
    A.I(f's_cbranch_vccz {ld}')
    if sleep:
        A.I(f's_sleep {sleep}')
    A.br(f's_branch {l}')
    A.label(ld)
    A.I('s_mov_b64 exec, -1')


def flag_store(A, s_addr, vt):
    ws = f's[{S_WS}:{S_WS + 3}]'
    l1, l2 = A.newlabel('L_fs'), A.newlabel('L_fs')
    A.I(f'v_mov_b32 v{vt}, 1')
    A.I('s_mov_b64 exec, 1')
    A.I(f's_cmp_eq_u32 s{S_FAST}, 0')
    A.br(f's_cbranch_scc1 {l1}')
    A.I(f'buffer_store_dword v{vt}, off, {ws}, s{s_addr}')
    A.br(f's_branch {l2}')
    A.label(l1)
    A.I(f'buffer_store_dword v{vt}, off, {ws}, s{s_addr} sc1')
    A.label(l2)
    A.I('s_mov_b64 exec, -1')


def garrive(A, s_line, s_goff, vt, l_exit):
    ws = f's[{S_WS}:{S_WS + 3}]'
    A.I(f's_lshl_b32 s{S_T1}, s{S_H}, 2')
    A.I(f's_add_u32 s{S_T1}, s{S_T1}, s{s_line}')
    flag_store(A, S_T1, vt)
    l = A.newlabel('L_ga')
    A.I(f's_cmp_lg_u32 s{S_H}, 0')
    A.br(f's_cbranch_scc1 {l}')
    poll_flags(A, s_line, 32, 1, vt, vt + 1, l_exit)
    A.I(f'v_lshlrev_b32 v{vt + 1}, 9, v0')
    A.I(f'v_mov_b32 v{vt}, 1')
    A.I('s_mov_b64 exec, 0xff')
    A.I(f'buffer_store_dword v{vt}, v{vt + 1}, {ws}, s{s_goff} offen sc1')
    A.I('s_mov_b64 exec, -1')
    A.label(l)


def wg_poll_eq(A, srd, s_off, imm, expect, vt, l_exit, sleep=0):
    l0 = A.newlabel('L_wgp')
    A.I(f's_cmp_lg_u32 s{S_WV}, 0')
    A.br(f's_cbranch_scc1 {l0}')
    poll_eq(A, srd, s_off, imm, expect, vt, l_exit, sleep)
    A.label(l0)
    A.I('s_barrier')


L_TS = 160000


def tstamp(A, idx, r=14):
    if not TIMING:
        return
    l = A.newlabel('L_ts')
    A.I(f's_cmp_lg_u32 s{S_WV}, 0')
    A.br(f's_cbranch_scc1 {l}')
    chk = A.check
    A.check = False
    A.I('s_memrealtime s[80:81]')
    A.I('s_waitcnt lgkmcnt(0)')
    if idx in (0, 1, 2, 7, 8):
        A.I(f'v_mov_b32 v{r}, s80')
        A.I(f'v_mov_b32 v{r + 1}, s81')
        A.I(f's_lshl_b32 s80, s{S_G}, 5')
        A.I(f's_add_u32 s80, s80, s{S_H}')
        A.I('s_lshl_b32 s80, s80, 8')
        A.I(f's_add_u32 s80, s80, 0x{WS_DBG:x}')
        A.I(f'buffer_store_dwordx2 {v(r, 2)}, off, s[{S_WS}:{S_WS + 3}], s80 offset:{8 * idx}')
    else:
        A.I(f'v_mov_b32 v{r}, s80')
        A.I(f'v_mov_b32 v{r + 1}, {L_TS + 8 * idx}')
        A.I(f'ds_write_b32 v{r + 1}, v{r}')
        A.I(f'v_mov_b32 v{r}, s81')
        A.I(f'ds_write_b32 v{r + 1}, v{r} offset:4')
        if idx == 6:
            A.I(f'v_lshlrev_b32 v{r}, 2, v0')
            A.I(f'v_add_u32 v{r + 1}, {L_TS}, v{r}')
            A.I('s_waitcnt lgkmcnt(0)')
            A.I(f'ds_read_b32 v{r + 1}, v{r + 1}')
            A.I(f's_lshl_b32 s80, s{S_G}, 5')
            A.I(f's_add_u32 s80, s80, s{S_H}')
            A.I('s_lshl_b32 s80, s80, 8')
            A.I(f's_add_u32 s80, s80, 0x{WS_DBG + 0x40000:x}')
            A.I('s_waitcnt lgkmcnt(0)')
            A.I(f'buffer_store_dword v{r + 1}, v{r}, s[{S_WS}:{S_WS + 3}], s80 offen')
    A.check = chk
    A.label(l)


def mega_kernel(A, name):
    kernel_begin(A, name)
    l_exit = A.newlabel('L_exit')
    P_WS, P_DBG, P_Q, P_K, P_V, P_O, P_M0, P_X = 16, 18, 20, 22, 24, 26, 28, 30
    ws, dbg, sx = f's[{S_WS}:{S_WS + 3}]', f's[{S_DBG}:{S_DBG + 3}]', f's[{S_X}:{S_X + 3}]'
    A.I('s_cmp_ge_u32 s2, 256')
    A.I(f's_cbranch_scc1 {l_exit}')
    if DIAG:
        A.I('s_memrealtime s[58:59]')
    A.I(f's_load_dwordx2 s[{P_WS}:{P_WS + 1}], s[0:1], {KA_WS}')
    A.I(f's_load_dwordx2 s[{P_DBG}:{P_DBG + 1}], s[0:1], {KA_DBG}')
    A.I(f's_load_dwordx4 s[{P_Q}:{P_Q + 3}], s[0:1], {KA_WQ}')
    A.I(f's_load_dwordx4 s[{P_V}:{P_V + 3}], s[0:1], {KA_WV}')
    A.I(f's_load_dwordx2 s[{P_M0}:{P_M0 + 1}], s[0:1], {KA_MEM0}')
    A.I(f's_load_dwordx2 s[{P_X}:{P_X + 1}], s[0:1], {KA_X}')
    A.I('v_lshrrev_b32 v1, 6, v0')
    A.I('v_and_b32 v0, 63, v0')
    A.I(f'v_readfirstlane_b32 s{S_WV}, v1')
    A.I(f's_getreg_b32 s{S_XCC}, hwreg(HW_REG_XCC_ID)')
    if os.environ.get('FAKE') == '1':
        A.I(f's_lshr_b32 s{S_XCC}, s2, 5')
    if os.environ.get('FAKE') == '2':
        A.I(f's_lshr_b32 s{S_XCC}, s2, 5')
        A.I(f's_max_u32 s{S_XCC}, s{S_XCC}, 2')
    if os.environ.get('FAKE') == '3':
        A.I(f's_lshr_b32 s{S_XCC}, s2, 4')
    A.I(f's_mov_b32 s{S_SPIN}, 0x80000')
    A.I('s_waitcnt lgkmcnt(0)')
    make_srd(A, S_WS, P_WS, WS_SIZE)
    make_srd(A, S_DBG, P_DBG, 256)
    make_srd(A, S_X, P_X, 2048 * 1024)
    LX, LF = 32, 48
    lnl = A.newlabel('L_l0')
    A.I('v_and_b32 v24, 15, v0')
    A.I('v_lshrrev_b32 v25, 4, v0')
    A.I('s_cmp_ge_u32 s2, 128')
    A.br(f's_cbranch_scc1 {lnl}')
    A.I('v_lshlrev_b32 v26, 10, v24')
    A.I('v_lshl_add_u32 v26, v25, 4, v26')
    A.I(f's_lshl_b32 s{S_LNO}, s2, 14')
    A.I(f's_lshl_b32 s{S_T0}, s{S_WV}, 8')
    A.I(f's_add_u32 s{S_T0}, s{S_T0}, s{S_LNO}')
    for i in range(4):
        A.I(f'buffer_load_dwordx4 {v(LX + 4 * i, 4)}, v26, {sx}, s{S_T0} offen offset:{64 * i}')
    A.label(lnl)
    A.forget_loads()
    if CODET:
        lct = A.newlabel('L_ct')
        A.I(f's_cmp_lg_u32 s{S_WV}, 3')
        A.br(f's_cbranch_scc1 {lct}')
        A.I('s_cmp_ge_u32 s2, 16')
        A.br(f's_cbranch_scc1 {lct}')
        code_touch(A, name, l_exit, CODE_BYTES, 255, 3)
        A.label(lct)
    lr = A.newlabel('L_role_done')
    A.I(f's_cmp_lg_u32 s{S_WV}, 0')
    A.br(f's_cbranch_scc1 {lr}')
    A.I('s_mov_b64 exec, 1')
    A.I('v_mov_b32 v2, 1')
    lw = A.newlabel('L_nw')
    A.I(f's_cmp_lt_u32 s{S_XCC}, 8')
    A.br(f's_cbranch_scc1 {lw}')
    A.I(f'buffer_atomic_or v2, off, {dbg}, 0 offset:{D_WEIRD}')
    A.I('s_waitcnt vmcnt(0)')
    A.label(lw)
    A.I(f's_and_b32 s{S_G}, s{S_XCC}, 7')
    A.I(f's_lshl_b32 s{S_T0}, s{S_G}, 2')
    A.I(f'buffer_atomic_add v2, off, {dbg}, s{S_T0} sc0')
    A.I('s_waitcnt vmcnt(0)')
    A.I(f'v_readfirstlane_b32 s{S_H}, v2')
    lok = A.newlabel('L_rok')
    A.I(f's_cmp_lt_u32 s{S_H}, 32')
    A.br(f's_cbranch_scc1 {lok}')
    A.I('v_mov_b32 v2, 1')
    A.I(f'buffer_atomic_add v2, off, {dbg}, 0 offset:{D_OVF} sc0')
    A.I('s_waitcnt vmcnt(0)')
    A.I(f'v_readfirstlane_b32 s{S_T3}, v2')
    lo = A.newlabel('L_ovf')
    A.label(lo)
    A.I(f'buffer_load_dwordx4 v[4:7], off, {dbg}, 0 sc1')
    A.I(f'buffer_load_dwordx4 v[8:11], off, {dbg}, 0 offset:16 sc1')
    A.I(f's_sub_u32 s{S_SPIN}, s{S_SPIN}, 1')
    A.I(f's_cbranch_scc1 {l_exit}')
    A.I('s_waitcnt vmcnt(0)')
    A.I(f's_mov_b32 s{S_T0}, 0')
    for i in range(8):
        A.I(f'v_readfirstlane_b32 s{64 + i}, v{4 + i}')
    for i in range(8):
        A.I(f's_add_u32 s{S_T0}, s{S_T0}, s{64 + i}')
    A.I(f's_cmp_lt_u32 s{S_T0}, 256')
    A.br(f's_cbranch_scc1 {lo}')
    for g in range(8):
        A.I(f's_min_u32 s{S_T0}, s{64 + g}, 32')
        A.I(f's_sub_u32 s{S_T1}, 32, s{S_T0}')
        A.I(f's_mov_b32 s{S_G}, {g}')
        A.I(f's_add_u32 s{S_H}, s{S_T0}, s{S_T3}')
        A.I(f's_cmp_lt_u32 s{S_T3}, s{S_T1}')
        A.br(f's_cbranch_scc1 {lok}')
        A.I(f's_sub_u32 s{S_T3}, s{S_T3}, s{S_T1}')
    A.I(f's_mov_b32 s{S_G}, 0x100')
    A.I(f's_mov_b32 s{S_H}, 0')
    A.label(lok)
    A.I(f's_lshl_b32 s{S_T0}, s{S_G}, 8')
    A.I(f's_or_b32 s{S_T0}, s{S_T0}, s{S_H}')
    A.I(f'v_mov_b32 v2, s{S_T0}')
    A.I('v_mov_b32 v3, 0')
    A.I('ds_write_b32 v3, v2')
    A.I('s_waitcnt lgkmcnt(0)')
    A.I('s_mov_b64 exec, -1')
    A.label(lr)
    lno, lnd = A.newlabel('L_lno'), A.newlabel('L_lnd')
    A.I('s_cmp_ge_u32 s2, 128')
    A.br(f's_cbranch_scc1 {lno}')
    A.I(f's_lshl_b32 s{S_T0}, s{S_WV}, 2')
    A.I('v_lshlrev_b32 v27, 4, v24')
    A.I(f'v_add_u32 v26, s{S_T0}, v27')
    A.I('s_waitcnt vmcnt(0)')
    for i in range(16):
        A.I(f'v_lshlrev_b32 v{LF + 2 * i}, 16, v{LX + i}')
        A.I(f'v_and_b32 v{LF + 2 * i + 1}, 0xffff0000, v{LX + i}')
    A.I(f'v_add_f32 v28, v{LF}, v{LF + 1}')
    A.I(f'v_add_f32 v29, v{LF + 2}, v{LF + 3}')
    for i in range(4, 32, 2):
        A.I(f'v_add_f32 v28, v28, v{LF + i}')
        A.I(f'v_add_f32 v29, v29, v{LF + i + 1}')
    A.I('v_add_f32 v28, v28, v29')
    T.xreduce(A, 'v_add_f32', 28, 29)
    A.I('ds_write_b32 v26, v28 offset:64')
    A.I('s_waitcnt lgkmcnt(0)')
    A.I('s_barrier')
    A.I('v_mov_b32 v3, 0')
    A.I('ds_read_b32 v2, v3')
    A.I('ds_read_b128 v[28:31], v27 offset:64')
    A.I('s_waitcnt lgkmcnt(0)')
    A.I('v_add_f32 v28, v28, v29')
    A.I('v_add_f32 v30, v30, v31')
    A.I('v_add_f32 v28, v28, v30')
    A.I(f'v_mul_f32 v28, {f32(1 / 512)}, v28')
    A.I('v_mov_b32 v29, 0')
    A.I('v_mov_b32 v30, 0')
    for i in range(0, 32, 2):
        A.I(f'v_sub_f32 v{LF + i}, v{LF + i}, v28')
        A.I(f'v_sub_f32 v{LF + i + 1}, v{LF + i + 1}, v28')
        A.I(f'v_fmac_f32 v29, v{LF + i}, v{LF + i}')
        A.I(f'v_fmac_f32 v30, v{LF + i + 1}, v{LF + i + 1}')
    A.I('v_add_f32 v29, v29, v30')
    T.xreduce(A, 'v_add_f32', 29, 30)
    A.I('ds_write_b32 v26, v29 offset:320')
    A.I('s_waitcnt lgkmcnt(0)')
    A.I('s_barrier')
    A.I('ds_read_b128 v[28:31], v27 offset:320')
    A.I('s_waitcnt lgkmcnt(0)')
    A.I('v_add_f32 v28, v28, v29')
    A.I('v_add_f32 v30, v30, v31')
    A.I('v_add_f32 v28, v28, v30')
    A.I(f'v_mov_b32 v29, {f32(1e-5)}')
    A.I(f'v_fmac_f32 v29, {f32(1 / 512)}, v28')
    A.I('v_rsq_f32 v29, v29')
    A.I('v_lshlrev_b32 v26, 4, v0')
    A.I(f's_lshl_b32 s{S_T0}, s{S_WV}, 12')
    A.I(f's_add_u32 s{S_T0}, s{S_T0}, s{S_LNO}')
    A.I(f's_add_u32 s{S_T0}, s{S_T0}, 0x{WS_XN:x}')
    for i in range(4):
        for j in range(4):
            f = LF + 8 * i + 2 * j
            A.I(f'v_mul_f32 v{f}, v{f}, v29')
            A.I(f'v_mul_f32 v{f + 1}, v{f + 1}, v29')
            A.I(f'v_cvt_pk_bf16_f32 v{LX + 4 * i + j}, v{f}, v{f + 1}')
        A.I(f'buffer_store_dwordx4 {v(LX + 4 * i, 4)}, v26, {ws}, s{S_T0} offen offset:{1024 * i} sc1')
    A.br(f's_branch {lnd}')
    A.label(lno)
    A.I('s_barrier')
    A.I('v_mov_b32 v3, 0')
    A.I('ds_read_b32 v2, v3')
    A.I('s_waitcnt lgkmcnt(0)')
    A.label(lnd)
    A.forget_loads()
    A.I(f'v_readfirstlane_b32 s{S_T0}, v2')
    A.I(f's_and_b32 s{S_H}, s{S_T0}, 31')
    A.I(f's_bfe_u32 s{S_G}, s{S_T0}, 0x30008')
    A.I(f's_cmp_ge_u32 s{S_T0}, 0x10000')
    A.I(f's_cbranch_scc1 {l_exit}')
    A.I('s_barrier')
    tstamp(A, 0)

    def arrive(off=D_GB):
        l = A.newlabel('L_na')
        A.I(f's_cmp_lg_u32 s{S_WV}, 0')
        A.br(f's_cbranch_scc1 {l}')
        A.I('v_mov_b32 v23, 1')
        lane0(A, lambda: A.I(f'buffer_atomic_add v23, off, {dbg}, 0 offset:{off}'))
        A.label(l)

    def ln_and_arrive(ln=True):
        A.I('s_waitcnt vmcnt(0)')
        A.I('s_barrier')
        arrive()

    l_tok = A.newlabel('L_tok')
    l_g2 = A.newlabel('L_g2')
    A.I(f's_cmp_lg_u32 s{S_G}, 0')
    A.br(f's_cbranch_scc1 {l_tok}')

    A.I(f'v_mov_b32 v{R.LANE}, v0')
    R.setup_consts(A)

    A.I(f's_lshl_b32 s{S_T0}, s{S_H}, 6')
    A.I(f's_lshl_b32 s{S_T1}, s{S_WV}, 2')
    A.I(f's_add_u32 s{S_T0}, s{S_T0}, s{S_T1}')
    A.I(f's_add_u32 s{S_LNO}, s{S_T0}, 0x{R.F_KMP:x}')
    A.I('v_mov_b32 v24, 0')
    lane0(A, lambda: A.I(f'buffer_store_dword v24, off, {ws}, s{S_LNO} sc1'))
    R.init_exchange(A, P_M0, 'sc1', rb=24, part=0)

    def thook():
        A.check = False
        R.init_exchange(A, P_M0, 'sc1', rb=24, part=1)
        A.check = True
        A.forget_loads()

    def h_sc(sc):
        if sc == 0:
            arrive()
            tstamp(A, 8, 24)
        if sc == 1:
            arrive(D_TI)

    S_OK = 25

    def batch():
        A.I(f'buffer_load_dword v25, off, {dbg}, 0 sc1')
        A.I(f'buffer_load_dword v26, off, {dbg}, 0 offset:{D_WEIRD} sc1')
        A.I(f'buffer_load_dword v27, off, {dbg}, 0 offset:{D_TI} sc1')
        R.kv_load(A, 28, R.V_L16, R.S_RA)

    def h_issue(sc):
        if sc == 3:
            A.I(f'buffer_load_dword v24, off, {dbg}, 0 offset:{D_GB} sc1')
            return
        A.I(f's_lshl_b32 s{R.S_RA}, s{S_H}, 7')
        A.I(f's_add_u32 s{R.S_RA}, s{R.S_RA}, 0x{R.F_PROG:x}')
        A.I(f's_lshl_b32 s{R.S_KVN}, s{S_H}, 13')
        A.I(f's_add_u32 s{R.S_KVN}, s{R.S_KVN}, s{R.S_W11}')
        A.I(f's_add_u32 s{R.S_KVN}, s{R.S_KVN}, 0x{WS_KF:x}')
        A.I(f's_add_u32 s{R.S_KVM0}, s{R.S_W11}, {R.L_KV}')
        batch()

    def evaluate(l_fail):
        R.kv_eval(A, 28, R.V_L16, R.S_AV)
        A.I(f'v_readfirstlane_b32 s{S_T0}, v24')
        A.I(f'v_readfirstlane_b32 s{S_T2}, v25')
        A.I(f'v_readfirstlane_b32 s{S_T3}, v26')
        A.I(f's_cmp_lg_u32 s{S_T0}, 256')
        A.I(f's_cbranch_scc1 {l_fail}')
        A.I(f'v_readfirstlane_b32 s{S_T0}, v27')
        A.I(f's_cmp_lg_u32 s{S_T0}, 32')
        A.I(f's_cbranch_scc1 {l_fail}')
        A.I(f's_cmp_eq_u32 s{R.S_AV}, 0')
        A.I(f's_cbranch_scc1 {l_fail}')
        A.I(f's_cmp_ge_u32 s{S_T2}, 32')
        A.I(f's_cselect_b32 s{S_XCC}, 1, 0')
        A.I(f's_cmp_eq_u32 s{S_T3}, 0')
        A.I(f's_cselect_b32 s{S_XCC}, s{S_XCC}, 0')
        R.kv_dma(A)

    def h_check():
        lf = A.newlabel('L_hf')
        A.I(f's_mov_b32 s{S_OK}, 0')
        evaluate(lf)
        A.I(f's_mov_b32 s{S_OK}, 1')
        A.label(lf)

    R.stage_weights(A, [P_Q, P_K, P_V, P_O], hook=thook, hook_issue=h_issue, hook_check=h_check, hook_sc=h_sc)
    tstamp(A, 1)
    A.I(f's_mov_b32 s{R.S_KP}, s{S_LNO}')
    lgo_, lre = A.newlabel('L_tgo'), A.newlabel('L_tre')
    A.I(f's_cmp_eq_u32 s{S_OK}, 1')
    A.br(f's_cbranch_scc1 {lgo_}')
    A.label(lre)
    A.I('s_sleep 4')
    A.I(f'buffer_load_dword v24, off, {dbg}, 0 offset:{D_GB} sc1')
    A.I('s_waitcnt vmcnt(0)')
    batch()
    A.I(f's_sub_u32 s{S_SPIN}, s{S_SPIN}, 1')
    A.I(f's_cbranch_scc1 {l_exit}')
    A.I('s_waitcnt vmcnt(0)')
    evaluate(lre)
    A.label(lgo_)
    A.I('s_waitcnt vmcnt(0)')
    A.I('s_barrier')
    tstamp(A, 2)
    if DIAG:
        A.I('s_memrealtime s[80:81]')
        A.I('s_waitcnt lgkmcnt(0)')
        A.I('s_sub_u32 s60, s80, s58')
    l_slow = A.newlabel('L_slowmode')
    l_tdone = A.newlabel('L_tdone')
    A.I(f's_cmp_eq_u32 s{S_XCC}, 0')
    if os.environ.get('FORCE_SLOW'):
        A.br(f's_branch {l_slow}')
    else:
        A.br(f's_cbranch_scc1 {l_slow}')
    R.main_loop(A, '', l_tdone, kvcheck=True)
    A.label(l_slow)
    R.main_loop(A, 'sc1', l_tdone, kvcheck=True)
    A.label(l_tdone)
    A.forget_loads()
    A.I(f's_mov_b32 s{S_G}, 0')
    tstamp(A, 3)
    if DIAG:
        A.I('s_memrealtime s[80:81]')
        A.I('s_waitcnt lgkmcnt(0)')
        A.I('s_sub_u32 s61, s80, s58')
    A.I(f'v_lshrrev_b32 v0, 4, v{R.V_L16}')
    j2_calc(A)
    A.I('s_waitcnt vmcnt(0) lgkmcnt(0)')
    A.I('s_barrier')
    g2_setup(A)
    for k in (0, 1, 2, 3, 4, 13):
        g2_dma(A, k)
    A.I(f's_mov_b32 s{S_PRE}, 0')
    A.br(f's_branch {l_g2}')

    A.label(l_tok)
    A.forget_loads()
    S_SEG, S_NX, S_CA, S_END, S_K1, S_AV, S_PB = 36, 41, 42, 43, 44, 45, 46
    j2_calc(A)
    A.I(f's_sub_u32 s{S_G}, s{S_G}, 1')
    A.I(f's_lshl_b32 s{S_J}, s{S_G}, 5')
    A.I(f's_add_u32 s{S_J}, s{S_J}, s{S_H}')

    def tok_init(ln=True):
        A.I(f's_lshl_b32 s{S_CA}, s{S_H}, 7')
        A.I(f's_lshl_b32 s{S_T0}, s{S_G}, 4')
        A.I(f's_add_u32 s{S_CA}, s{S_CA}, s{S_T0}')
        A.I(f's_lshl_b32 s{S_T0}, s{S_WV}, 2')
        A.I(f's_add_u32 s{S_CA}, s{S_CA}, s{S_T0}')
        A.I(f's_add_u32 s{S_CA}, s{S_CA}, 0x{R.F_PROG:x}')
        A.I('v_mov_b32 v22, 0')
        lane0(A, lambda: A.I(f'buffer_store_dword v22, off, {ws}, s{S_CA} sc1'))
        lz = A.newlabel('L_nz')
        A.I(f's_cmp_lg_u32 s{S_J}, 64')
        A.br(f's_cbranch_scc1 {lz}')
        A.I('v_lshlrev_b32 v23, 4, v0')
        for r in range(16, 20):
            A.I(f'v_mov_b32 v{r}, 0')
        A.I(f's_mul_i32 s{S_T0}, s{S_WV}, 6144')
        A.I(f's_add_u32 s{S_T0}, s{S_T0}, 0x{F_OPC:x}')
        A.I(f's_add_u32 s{S_T1}, s{S_T0}, 4096')
        for i in range(4):
            A.I(f'buffer_store_dwordx4 v[16:19], v23, {ws}, s{S_T0} offen offset:{1024 * i} sc1')
        A.I(f'buffer_store_dwordx4 v[16:19], v23, {ws}, s{S_T1} offen sc1')
        A.I(f'buffer_store_dwordx4 v[16:19], v23, {ws}, s{S_T1} offen offset:1024 sc1')
        A.label(lz)
        A.forget_loads()
        if ln:
            ln_and_arrive()
            ts_tok(A, 8)

    l_late = A.newlabel('L_late')
    l_st = A.newlabel('L_st')
    A.I(f's_mov_b32 s{S_K1}, 0')
    l_lt = A.newlabel('L_lt')
    A.I(f's_cmp_ge_u32 s{S_G}, {NEARLY}')
    A.br(f's_cbranch_scc1 {l_lt}')
    tok_init(False)
    A.br(f's_branch {l_st}')
    A.label(l_lt)
    if WARM:
        lwm = A.newlabel('L_wm')
        A.I(f's_cmp_eq_u32 s{S_G}, 3')
        A.br(f's_cbranch_scc1 {lwm}')
        A.I(f's_sub_u32 s{S_T0}, s{S_J}, 96')
        A.I(f's_cmp_eq_u32 s{S_G}, 2')
        A.I(f's_cselect_b32 s{S_T0}, s{S_H}, s{S_T0}')
        A.I(f's_lshl_b32 s{S_T0}, s{S_T0}, 2')
        A.I(f's_add_u32 s{S_T0}, s{S_T0}, s{S_WV}')
        A.I(f's_lshl_b32 s{S_T0}, s{S_T0}, 13')
        A.I('v_lshlrev_b32 v22, 7, v0')
        A.check = False
        for p in (P_Q, P_K, P_V, P_O):
            make_srd(A, S_W, p, 4 << 20)
            A.I(f'buffer_load_dword v255, v22, s[{S_W}:{S_W + 3}], s{S_T0} offen')
        A.check = True
        A.label(lwm)
        A.forget_loads()
    tok_init()
    l_nost = A.newlabel('L_nost')
    wg_poll_eq(A, dbg, None, D_GB, 256, 2, l_exit, sleep=100)
    A.I(f's_cmp_ge_u32 s{S_G}, 4')
    A.br(f's_cbranch_scc1 {l_nost}')
    lsg, lsd = A.newlabel('L_sg'), A.newlabel('L_sd')
    A.I(f's_cmp_lg_u32 s{S_WV}, 0')
    A.br(f's_cbranch_scc1 {lsd}')
    A.I(f's_cmp_eq_u32 s{S_G}, 3')
    A.I(f's_cselect_b32 s{S_T1}, {STAG}, {STAG0}')
    A.I(f's_lshl_b32 s{S_T2}, s{S_H}, 6')
    A.I(f's_add_u32 s{S_T2}, s{S_T2}, 0x{R.F_KMP:x}')
    A.label(lsg)
    A.I(f'buffer_load_dword v2, off, {ws}, s{S_T2} sc1')
    A.I(f's_sub_u32 s{S_SPIN}, s{S_SPIN}, 1')
    A.I(f's_cbranch_scc1 {l_exit}')
    A.I('s_waitcnt vmcnt(0)')
    A.I(f'v_readfirstlane_b32 s{S_T0}, v2')
    A.I(f's_cmp_ge_u32 s{S_T0}, s{S_T1}')
    A.I(f's_cbranch_scc1 {lsd}')
    A.I('s_sleep 40')
    A.br(f's_branch {lsg}')
    A.label(lsd)
    A.I('s_barrier')
    A.I(f's_mov_b32 s{S_K1}, 1')
    A.label(l_st)

    def hook(sc):
        if sc != 0:
            return
        l = A.newlabel('L_hk')
        A.I(f's_cmp_eq_u32 s{S_K1}, 1')
        A.br(f's_cbranch_scc1 {l}')
        arrive()
        ts_tok(A, 8)
        A.label(l)

    T.qkv_stage(A, [P_Q, P_K, P_V], hook_sc=hook)
    A.label(l_nost)
    ts_tok(A, 1)
    wg_poll_eq(A, dbg, None, D_GB, 256, 2, l_exit, sleep=8)
    ts_tok(A, 7)
    A.I(f's_lshl_b32 s{S_T0}, s{S_G}, 2')
    A.I(f'buffer_load_dword v2, off, {dbg}, s{S_T0} offset:4 sc1')
    A.I(f'buffer_load_dword v3, off, {dbg}, 0 offset:{D_WEIRD} sc1')
    A.I('s_waitcnt vmcnt(0)')
    A.I(f'v_readfirstlane_b32 s{S_T2}, v2')
    A.I(f'v_readfirstlane_b32 s{S_T3}, v3')
    A.I(f's_cmp_ge_u32 s{S_T2}, 32')
    A.I(f's_cselect_b32 s{S_FAST}, 1, 0')
    A.I(f's_cmp_eq_u32 s{S_T3}, 0')
    A.I(f's_cselect_b32 s{S_FAST}, s{S_FAST}, 0')
    if os.environ.get('FORCE_SLOW'):
        A.I(f's_mov_b32 s{S_FAST}, 0')
    l_nop1 = A.newlabel('L_nop1')
    A.I(f's_cmp_ge_u32 s{S_G}, 4')
    A.br(f's_cbranch_scc1 {l_nop1}')
    A.I(f's_lshr_b32 s{S_T0}, s{S_G}, 1')
    A.I(f's_lshl_b32 s{S_T0}, s{S_T0}, 5')
    A.I(f's_add_u32 s{S_END}, s{S_T0}, 32')
    A.I(f's_and_b32 s{S_NX}, s{S_G}, 1')
    A.I(f's_add_u32 s{S_NX}, s{S_NX}, s{S_T0}')
    A.I('v_mov_b32 v2, 0')

    def signal():
        lane0(A, lambda: A.I(f'buffer_store_dword v2, off, {ws}, s{S_CA} sc1'))

    def after():
        A.I('v_add_u32 v2, 1, v2')

    T.qkv_segments(A, 2, 'sc1', after_seg=after, mid_seg=signal, first=S_NX, end=f's{S_END}')
    A.I('s_waitcnt vmcnt(0)')
    signal()
    A.label(l_nop1)
    ts_tok(A, 2)
    T.att_stage(A, P_O)
    T.att_consts(A)
    A.I(f's_load_dwordx4 s[16:19], s[0:1], {KA_W1}')
    A.I('s_waitcnt lgkmcnt(0)')
    make_srd(A, S_W1, 16, 2048 * 3584)
    make_srd(A, S_B1, 18, 3584)
    g2_setup(A)
    A.I(f's_mov_b32 s{S_PRE}, 0')
    for i in range(16):
        A.I(f'v_mov_b32 v{G1ACC + i}, 0')
    A.I(f's_mov_b32 s{S_K1}, 0')
    g1_w1_dma(A, S_K1, first=True)
    A.I(f's_lshl_b32 s{S_OPS}, s{S_G}, 1')
    masks = seg_masks()
    for g in range(7):
        A.I(f's_cmp_eq_u32 s{S_G}, {g}')
        A.I(f's_cselect_b32 s{S_MSK}, 0x{masks[g] & 0xffffffff:x}, s{S_MSK}')
        A.I(f's_cselect_b32 s{S_MSK + 1}, 0x{masks[g] >> 32:x}, s{S_MSK + 1}')
    A.I(f's_ff1_i32_b64 s{S_SEG}, s[{S_MSK}:{S_MSK + 1}]')
    A.I(f's_bitset0_b64 s[{S_MSK}:{S_MSK + 1}], s{S_SEG}')
    A.I(f's_mov_b32 s{S_AV}, 0')
    A.I(f's_lshl_b32 s{S_PB}, s{S_H}, 7')
    A.I(f's_add_u32 s{S_PB}, s{S_PB}, 0x{R.F_PROG:x}')
    R.kv_wait(A, l_exit, S_SEG, 192, s_av=S_AV, s_base=S_PB, sleep=4, vlane16=1)
    T.att_load_qkv(A, S_SEG)
    x_prefetch(A, S_SEG, sx)
    L = A.newlabel('L_p2')
    L_att = A.newlabel('L_att')
    L_fin = A.newlabel('L_p2fin')
    A.label(L)
    A.check = False
    A.I(f's_cmp_ge_u32 s{S_K1}, 16')
    A.I(f's_cbranch_scc1 {L_fin}')
    lq2 = A.newlabel('L_lp2')
    ldec = A.newlabel('L_dec')
    A.I(f's_cmp_lg_u32 s{S_WV}, 0')
    A.br(f's_cbranch_scc1 {ldec}')
    A.I(f's_lshl_b32 s{S_CA}, s{S_H}, 6')
    A.I(f's_add_u32 s{S_CA}, s{S_CA}, 0x{R.F_KMP:x}')
    A.I(f's_add_u32 s40, s{S_SEG}, 2')
    A.I(f's_lshl_b32 s{S_T1}, s{S_K1}, 4')
    A.I(f's_lshl_b32 s{S_T2}, s{S_G}, 9')
    A.I(f's_add_u32 s{S_T1}, s{S_T1}, s{S_T2}')
    A.I(f's_add_u32 s{S_T1}, s{S_T1}, 0x{F_GF + 512:x}')
    lq, lgo, lnk = A.newlabel('L_lp'), A.newlabel('L_go'), A.newlabel('L_nk')
    A.label(lq)
    A.I(f'buffer_load_dwordx4 v[192:195], off, {ws}, s{S_CA} {PLF}')
    A.I(f'buffer_load_dwordx4 v[196:199], off, {ws}, s{S_T1} {PLF}')
    A.I(f'buffer_load_dwordx4 v[200:203], off, {ws}, s{S_T1} offset:16 {PLF}')
    A.I(f's_sub_u32 s{S_SPIN}, s{S_SPIN}, 1')
    A.I(f's_cbranch_scc1 {l_exit}')
    A.I('s_waitcnt vmcnt(0)')
    A.I('v_min_u32 v6, v192, v193')
    A.I('v_min3_u32 v6, v6, v194, v195')
    A.I(f'v_readfirstlane_b32 s{S_T0}, v6')
    A.I('v_min_u32 v7, v196, v197')
    A.I('v_min3_u32 v7, v7, v198, v199')
    A.I('v_cmp_eq_u32 vcc, 0, v7')
    A.I(f's_mov_b32 s{S_T3}, 1')
    A.I(f's_cmp_ge_u32 s{S_T0}, s40')
    A.I(f's_cbranch_scc1 {lgo}')
    A.label(lnk)
    lsl = A.newlabel('L_sl')
    A.I(f's_add_u32 s{S_T0}, s{S_T0}, 2')
    A.I(f's_cmp_lt_u32 s40, {E_IMM}')
    A.I(f's_cselect_b32 s{S_T0}, 0, s{S_T0}')
    A.I(f's_cmp_ge_u32 s{S_T0}, s40')
    A.I(f's_cbranch_scc1 {lq}')
    A.I(f's_mul_i32 s{S_T2}, s{S_PRE}, 3')
    A.I(f's_add_u32 s{S_T2}, s{S_T2}, 5')
    A.I(f's_cmp_lt_u32 s{S_PRE}, 2')
    A.I(f's_cselect_b32 s{S_T2}, s{S_T2}, 99')
    A.I(f's_mov_b32 s{S_T3}, 3')
    A.I(f's_cmp_ge_u32 s{S_K1}, s{S_T2}')
    A.I(f's_cbranch_scc1 {lgo}')
    A.I('v_min_u32 v6, v200, v201')
    A.I('v_min3_u32 v6, v6, v202, v203')
    A.I(f'v_readfirstlane_b32 s{S_T2}, v6')
    A.I(f's_cmp_eq_u32 s{S_K1}, 15')
    A.I(f's_cselect_b32 s{S_T2}, 0, s{S_T2}')
    A.I(f's_cmp_eq_u32 s{S_T2}, 0')
    A.I(f's_cselect_b32 s{S_T3}, 2, 4')
    A.I(f's_cbranch_vccz {lgo}')
    lns = A.newlabel('L_nsl')
    A.I(f's_mov_b32 s{S_T3}, 3')
    A.I(f's_cmp_lt_u32 s{S_K1}, 3')
    A.I(f's_cbranch_scc1 {lns}')
    A.I(f's_cmp_lt_u32 s{S_SEG}, 64')
    A.I(f's_cselect_b32 s{S_T2}, 2, 3')
    A.I(f's_cmp_lt_u32 s{S_PRE}, s{S_T2}')
    A.I(f's_cbranch_scc1 {lgo}')
    A.label(lns)
    A.I('s_sleep 4')
    A.I(f's_cmp_ge_u32 s{S_K1}, 14')
    A.I(f's_cbranch_scc1 {lq}')
    A.I(f's_sleep {int(os.environ.get("SLP", 12))}')
    A.br(f's_branch {lq}')
    A.label(lgo)
    A.I(f'v_mov_b32 v6, s{S_T3}')
    A.I(f'v_mov_b32 v7, 156000')
    A.I('ds_write_b32 v7, v6')
    A.I('s_waitcnt lgkmcnt(0)')
    A.label(ldec)
    A.I('s_barrier')
    A.I(f'v_mov_b32 v7, 156000')
    A.I('ds_read_b32 v6, v7')
    A.I('s_waitcnt lgkmcnt(0)')
    A.I(f'v_readfirstlane_b32 s{S_T0}, v6')
    A.I(f's_cmp_eq_u32 s{S_T0}, 1')
    A.br(f's_cbranch_scc1 {lq2}')
    lch = A.newlabel('L_ch')
    A.I(f's_mov_b32 s{S_NX}, s{S_T0}')
    A.I(f's_cmp_lg_u32 s{S_T0}, 3')
    A.br(f's_cbranch_scc1 {lch}')
    for rnd in range(4):
        lpr = A.newlabel('L_pr')
        A.I(f's_cmp_lg_u32 s{S_PRE}, {rnd}')
        A.br(f's_cbranch_scc1 {lpr}')
        g2_pre(A, rnd)
        A.br(f's_branch {L}')
        A.label(lpr)
    A.label(lch)
    ts_tok(A, 16)
    g1_chunk(A, S_K1, l_exit)
    A.I(f's_add_u32 s{S_K1}, s{S_K1}, 1')
    if CODET:
        lct = A.newlabel('L_ct')
        A.I(f's_cmp_lg_u32 s{S_K1}, 12')
        A.br(f's_cbranch_scc1 {lct}')
        A.I(f's_lshl_b32 s{S_T0}, s{S_H}, 2')
        A.I(f's_add_u32 s{S_T0}, s{S_T0}, s{S_WV}')
        A.I(f's_cmp_lg_u32 s{S_T0}, 7')
        A.br(f's_cbranch_scc1 {L}')
        code_touch(A, L, l_exit, TAIL_BYTES, 5, 143)
        A.br(f's_branch {L}')
        A.label(lct)
    lw2 = A.newlabel('L_w2')
    A.I(f's_cmp_lg_u32 s{S_K1}, 3')
    A.br(f's_cbranch_scc1 {lw2}')
    for k in range(5):
        g2_dma(A, k)
    A.label(lw2)
    A.I(f's_cmp_lg_u32 s{S_NX}, 4')
    A.br(f's_cbranch_scc1 {L}')
    A.I(f's_mov_b32 s{S_NX}, 2')
    A.I('s_barrier')
    A.br(f's_branch {lch}')
    A.label(lq2)
    ts_tok(A, 10)
    T.att_load_mem(A, S_SEG, 'sc1')
    A.I('s_waitcnt vmcnt(0)')
    ts_tok(A, 11)
    A.check = True
    A.forget_loads()
    T.att_compute1(A)
    T.att_xchg(A, L_RED)
    saved_ = (list(A.vm), list(A.lg))
    lc1, lc2 = A.newlabel('L_c2s'), A.newlabel('L_c2e')
    A.I(f's_cmp_eq_u32 s{S_FAST}, 0')
    A.br(f's_cbranch_scc1 {lc1}')
    T.att_compute2(A, S_OPS, '')
    A.br(f's_branch {lc2}')
    A.label(lc1)
    A.vm, A.lg = saved_
    T.att_compute2(A, S_OPS, 'sc1')
    A.label(lc2)
    ts_tok(A, 12)
    A.I('s_waitcnt vmcnt(0)')
    A.I('s_barrier')
    ts_tok(A, 13)
    A.I(f's_lshl_b32 s{S_CA}, s{S_SEG}, 7')
    A.I(f's_add_u32 s{S_CA}, s{S_CA}, 0x{F_OPC:x}')
    l0 = A.newlabel('L_n0')
    A.I(f's_cmp_lg_u32 s{S_WV}, 0')
    A.br(f's_cbranch_scc1 {l0}')
    A.I(f's_lshl_b32 s{S_T1}, s{S_H}, 2')
    A.I(f's_add_u32 s{S_T1}, s{S_T1}, s{S_CA}')
    flag_store(A, S_T1, 6)
    poll_flags(A, S_CA, 32, 1, 6, 7, l_exit)
    A.label(l0)
    A.I('s_barrier')
    ts_tok(A, 14)
    red4(A, S_SEG, sx, l_exit)
    A.I(f's_ff1_i32_b64 s{S_SEG}, s[{S_MSK}:{S_MSK + 1}]')
    A.I(f's_bitset0_b64 s[{S_MSK}:{S_MSK + 1}], s{S_SEG}')
    lnn = A.newlabel('L_nn')
    A.I(f's_cmp_lt_u32 s{S_SEG}, 64')
    A.br(f's_cbranch_scc1 {lnn}')
    A.I(f's_mov_b32 s{S_SEG}, 999')
    ts_tok(A, 3)
    A.br(f's_branch {L}')
    A.label(lnn)
    lav = A.newlabel('L_av')
    A.I(f's_cmp_gt_u32 s{S_AV}, s{S_SEG}')
    A.br(f's_cbranch_scc1 {lav}')
    R.kv_wait(A, l_exit, S_SEG, 192, s_av=S_AV, s_base=S_PB, sleep=4, vlane16=1)
    A.label(lav)
    T.att_load_qkv(A, S_SEG)
    x_prefetch(A, S_SEG, sx)
    A.br(f's_branch {L}')
    A.label(L_fin)
    A.forget_loads()
    ts_tok(A, 4)
    g1_epilogue(A, l_exit)
    A.I(f's_add_u32 s{S_G}, s{S_G}, 1')
    tstamp(A, 17)
    A.label(l_g2)
    A.forget_loads()
    g2_main(A, l_exit)
    tstamp(A, 6, 8)
    if DIAG:
        A.I(f's_add_u32 s{S_T0}, s{S_G}, s{S_H}')
        A.I(f's_add_u32 s{S_T0}, s{S_T0}, s{S_WV}')
        A.I(f's_cmp_lg_u32 s{S_T0}, 0')
        A.br(f's_cbranch_scc1 {l_exit}')
        A.I('s_memrealtime s[80:81]')
        A.I('s_waitcnt lgkmcnt(0)')
        A.I('s_sub_u32 s80, s80, s58')
        A.I('v_mov_b32 v8, s60')
        A.I('v_mov_b32 v9, s61')
        A.I('v_mov_b32 v10, s80')
        A.I('v_mov_b32 v11, 0')
        if os.environ.get('DIAG2'):
            A.I(f'buffer_store_dword v9, off, {dbg}, 0 offset:32')
        else:
            A.I(f'buffer_store_dwordx4 v[8:11], off, {dbg}, 0 offset:48')
    A.label(l_exit)
    A.I('s_endpgm')


S_MSK = 56
S_OPS = 47


def seg_masks():
    c1, c2 = int(os.environ.get('C1', 14)), int(os.environ.get('C2', 27))
    m = [0] * 7
    last = {g: -100 for g in range(7)}
    for s_ in range(64):
        cand = [4, 5, 6] if s_ < c1 else ([4, 5, 6, 0, 1] if s_ < c2 else list(range(7)))
        g = min(cand, key=lambda x: last[x])
        last[g] = s_
        m[g] |= 1 << s_
    return m


def j2_calc(A):
    A.I(f's_lshr_b32 s{S_T0}, s{S_G}, 1')
    A.I(f's_lshl_b32 s{S_T0}, s{S_T0}, 3')
    A.I(f's_lshr_b32 s{S_T1}, s{S_H}, 2')
    A.I(f's_add_u32 s{S_T0}, s{S_T0}, s{S_T1}')
    A.I(f's_lshl_b32 s{S_J2}, s{S_T0}, 3')
    A.I(f's_and_b32 s{S_T0}, s{S_G}, 1')
    A.I(f's_lshl_b32 s{S_T0}, s{S_T0}, 2')
    A.I(f's_and_b32 s{S_T1}, s{S_H}, 3')
    A.I(f's_add_u32 s{S_T0}, s{S_T0}, s{S_T1}')
    A.I(f's_add_u32 s{S_J2}, s{S_J2}, s{S_T0}')


def code_touch(A, l_from, l_end, nbytes, vd, va):
    lh = A.newlabel('L_pc')
    A.I('s_getpc_b64 s[80:81]')
    A.raw(f'{lh}:')
    A.raw(f'    s_sub_u32 s80, s80, {lh}-{l_from}')
    A.raw('    s_subb_u32 s81, s81, 0')
    A.I(f'v_lshlrev_b32 v{va}, 7, v0')
    for i in range(0, nbytes, 8192):
        A.raw(f'    v_min_u32 v{va}, {l_end}-{l_from}, v{va}')
        A.raw(f'    global_load_dword v{vd}, v{va}, s[80:81]')
        A.I(f'v_add_u32 v{va}, 8192, v{va}')


def x_prefetch(A, s_seg, sx):
    A.I('v_lshrrev_b32 v6, 2, v0')
    A.I('v_lshlrev_b32 v6, 6, v6')
    A.I('v_and_b32 v7, 3, v0')
    A.I('v_lshl_add_u32 v6, v7, 3, v6')
    A.I(f's_lshl_b32 s{S_T3}, s{s_seg}, 5')
    A.I(f's_add_u32 s{S_T3}, s{S_T3}, s{S_H}')
    A.I(f's_lshl_b32 s{S_T3}, s{S_T3}, 10')
    A.I(f'buffer_load_dwordx2 v[12:13], v6, {sx}, s{S_T3} offen')
    A.I(f'buffer_load_dwordx2 v[14:15], v6, {sx}, s{S_T3} offen offset:32')


def ts_tok(A, i):
    if TIMING:
        A.I(f's_add_u32 s{S_G}, s{S_G}, 1')
        tstamp(A, i, 14 if i in (1, 2, 7, 8) else 6)
        A.I(f's_sub_u32 s{S_G}, s{S_G}, 1')


G1ACC = 120
G1T = 144
L_G1 = 0
L_RED = 65536
L_W2 = 73728


def g1_lane(A):
    t = G1T
    A.I(f'v_lshrrev_b32 v{t}, 3, v0')
    A.I(f'v_and_b32 v{t + 1}, 7, v0')
    A.I(f'v_bfe_u32 v{t + 2}, v0, 4, 1')
    A.I(f's_and_b32 s{S_T0}, s{S_WV}, 1')
    A.I(f's_lshl_b32 s{S_T0}, s{S_T0}, 1')
    A.I(f'v_or_b32 v{t + 2}, s{S_T0}, v{t + 2}')
    A.I(f'v_lshlrev_b32 v{t + 2}, 1, v{t + 2}')
    A.I(f'v_xor_b32 v{t + 1}, v{t + 1}, v{t + 2}')
    A.I(f'v_lshlrev_b32 v{t + 1}, 4, v{t + 1}')
    A.I(f'v_mul_u32_u24 v136, 3584, v{t}')
    A.I(f'v_add_u32 v136, v136, v{t + 1}')
    A.I(f'v_lshl_add_u32 v137, v{t}, 10, v{t + 1}')
    A.I(f'v_and_b32 v{t}, 15, v0')
    A.I(f'v_lshrrev_b32 v{t + 1}, 4, v0')
    A.I(f'v_lshrrev_b32 v{t + 2}, 2, v{t}')
    A.I(f'v_and_b32 v{t + 3}, 3, v{t}')
    A.I(f'v_lshl_add_u32 v{t + 4}, v{t + 1}, 3, v{t + 2}')
    A.I(f'v_lshlrev_b32 v{t + 4}, 7, v{t + 4}')
    A.I(f'v_lshl_add_u32 v{t + 4}, v{t + 3}, 3, v{t + 4}')
    A.I(f'v_lshrrev_b32 v{t + 5}, 1, v{t + 2}')
    A.I(f'v_and_b32 v{t + 6}, 1, v{t + 1}')
    A.I(f'v_lshl_add_u32 v{t + 5}, v{t + 6}, 1, v{t + 5}')
    A.I(f'v_xor_b32 v{t + 6}, s{S_T0}, v{t + 5}')
    A.I(f'v_lshl_add_u32 v138, v{t + 6}, 5, v{t + 4}')
    A.I(f'v_xor_b32 v139, 32, v138')
    A.I(f's_and_b32 s{S_T0}, s{S_WV}, 2')
    A.I(f'v_xor_b32 v{t + 6}, s{S_T0}, v{t + 5}')
    A.I(f'v_lshl_add_u32 v140, v{t + 6}, 5, v{t + 4}')
    A.I(f'v_add_u32 v140, 16384, v140')
    A.I(f'v_xor_b32 v141, 32, v140')


def g1_w1_dma(A, s_k, first=False, plus=0):
    if first:
        g1_lane(A)
    w1 = f's[{S_W1}:{S_W1 + 3}]'
    A.I(f's_add_u32 s{S_T2}, s{s_k}, {plus}')
    A.I(f's_mul_i32 s{S_T0}, s{S_T2}, {128 * 3584}')
    A.I(f's_mul_i32 s{S_T1}, s{S_WV}, {8 * 3584}')
    A.I(f's_add_u32 s{S_T0}, s{S_T0}, s{S_T1}')
    A.I(f's_lshr_b32 s{S_T1}, s{S_J}, 3')
    A.I(f's_lshl_b32 s{S_T1}, s{S_T1}, 7')
    A.I(f's_add_u32 s{S_T0}, s{S_T0}, s{S_T1}')
    A.I(f's_and_b32 s{S_T1}, s{S_T2}, 1')
    A.I(f's_lshl_b32 s{S_T1}, s{S_T1}, 15')
    A.I(f's_lshl_b32 s{S_T2}, s{S_WV}, 10')
    A.I(f's_add_u32 s{S_T1}, s{S_T1}, s{S_T2}')
    for i in range(4):
        A.I(f's_add_u32 m0, s{S_T1}, {L_G1 + i * 4096}')
        A.I(f's_add_u32 s{S_T2}, s{S_T0}, {i * 32 * 3584}')
        A.I(f'buffer_load_dwordx4 v136, {w1}, s{S_T2} offen lds')


def g1_chunk(A, s_k, l_exit):
    ws = f's[{S_WS}:{S_WS + 3}]'
    A.I(f's_lshl_b32 s{S_T0}, s{s_k}, 17')
    A.I(f's_lshl_b32 s{S_T1}, s{S_WV}, 13')
    A.I(f's_add_u32 s{S_T0}, s{S_T0}, s{S_T1}')
    A.I(f's_and_b32 s{S_T1}, s{S_J}, 7')
    A.I(f's_lshl_b32 s{S_T1}, s{S_T1}, 7')
    A.I(f's_add_u32 s{S_T0}, s{S_T0}, s{S_T1}')
    A.I(f's_add_u32 s{S_T0}, s{S_T0}, 0x{WS_HP:x}')
    A.I(f's_and_b32 s{S_T3}, s{s_k}, 1')
    A.I(f's_lshl_b32 s{S_T3}, s{S_T3}, 15')
    A.I(f's_lshl_b32 s{S_T2}, s{S_WV}, 10')
    A.I(f's_add_u32 s{S_T1}, s{S_T3}, s{S_T2}')
    for i in range(4):
        A.I(f's_add_u32 m0, s{S_T1}, {L_G1 + 16384 + i * 4096}')
        A.I(f's_add_u32 s{S_T2}, s{S_T0}, {i * 32 * 1024}')
        A.I(f'buffer_load_dwordx4 v137, {ws}, s{S_T2} offen lds')
    AD = G1T
    for j in range(4):
        A.I(f'v_add_u32 v{AD + j}, s{S_T3}, v{138 + j}')
    l13, l14 = A.newlabel('L_13'), A.newlabel('L_14')
    A.I(f's_cmp_eq_u32 s{s_k}, 15')
    A.br(f's_cbranch_scc1 {l13}')
    g1_w1_dma(A, s_k, plus=1)
    A.br(f's_branch {l14}')
    A.label(l13)
    A.I(f's_lshr_b32 s{S_T2}, s{S_J}, 3')
    A.I(f's_lshl_b32 s{S_T0}, s{S_T2}, 7')
    A.I(f's_and_b32 s{S_T1}, s{S_WV}, 1')
    A.I(f's_lshl_b32 s{S_T1}, s{S_T1}, 6')
    A.I(f's_add_u32 s{S_T0}, s{S_T0}, s{S_T1}')
    A.I('v_lshrrev_b32 v20, 4, v0')
    A.I('v_lshlrev_b32 v20, 3, v20')
    A.I(f'buffer_load_dwordx2 v[16:17], v20, s[{S_B1}:{S_B1 + 3}], s{S_T0} offen')
    A.I(f'buffer_load_dwordx2 v[18:19], v20, s[{S_B1}:{S_B1 + 3}], s{S_T0} offen offset:32')
    g2_dma(A, 13)
    A.label(l14)
    A.I('s_waitcnt vmcnt(4)')
    A.I('s_barrier')
    FR = G1T + 8

    def rd(ks):
        for j in range(4):
            for x in range(2):
                A.I(f'ds_read_b64_tr_b16 {v(FR + 16 * ks + 4 * j + 2 * x, 2)}, v{AD + j} offset:{L_G1 + (32 * ks + 4 * x) * 128}')

    rd(0)
    for ks in range(4):
        if ks < 3:
            rd(ks + 1)
            A.I('s_waitcnt lgkmcnt(8)')
        else:
            A.I('s_waitcnt lgkmcnt(0)')
        f = FR + 16 * ks
        for mbp in range(2):
            for nbp in range(2):
                d = G1ACC + (mbp * 2 + nbp) * 4
                A.I(f'v_mfma_f32_16x16x32_bf16 {v(d, 4)}, {v(f + 4 * mbp, 4)}, {v(f + 8 + 4 * nbp, 4)}, {v(d, 4)}')


def g1_epilogue(A, l_exit):
    import math
    ws, b1 = f's[{S_WS}:{S_WS + 3}]', f's[{S_B1}:{S_B1 + 3}]'
    ACC, BI, Z, Pk, TT, O = G1ACC, 150, 160, 168, 172, 188
    A.I(f's_lshr_b32 s{S_T2}, s{S_J}, 3')
    A.I(f's_and_b32 s{S_T0}, s{S_J}, 7')
    A.I(f's_lshl_b32 s{S_T0}, s{S_T0}, 2')
    A.I(f's_and_b32 s{S_T1}, s{S_WV}, 2')
    A.I(f's_add_u32 s{S_T0}, s{S_T0}, s{S_T1}')
    A.I(f's_mul_i32 s{S_T0}, s{S_T0}, 56')
    A.I(f's_lshl_b32 s{S_T1}, s{S_T2}, 1')
    A.I(f's_add_u32 s{S_T0}, s{S_T0}, s{S_T1}')
    A.I(f's_and_b32 s{S_T1}, s{S_WV}, 1')
    A.I(f's_add_u32 s{S_T0}, s{S_T0}, s{S_T1}')
    A.I(f's_lshl_b32 s{S_T0}, s{S_T0}, 10')
    A.I(f's_add_u32 s{S_T0}, s{S_T0}, 0x{WS_U:x}')
    k1 = -2 * math.sqrt(2 / math.pi) * math.log2(math.e)
    A.I(f's_mov_b32 s{S_T2}, {f32(k1)}')
    A.I(f's_mov_b32 s{S_T3}, {f32(k1 * 0.044715)}')
    A.I('v_lshlrev_b32 v145, 4, v0')
    for i in range(4):
        A.I(f'v_lshlrev_b32 v{BI + 2 * i}, 16, v{16 + i}')
        A.I(f'v_and_b32 v{BI + 2 * i + 1}, 0xffff0000, v{16 + i}')
    for nbp in range(2):
        for mbp in range(2):
            for r in range(4):
                A.I(f'v_mov_b32 v{Z + 4 * mbp + r}, v{ACC + (mbp * 2 + nbp) * 4 + r}')
        T.round_bf16(A, Z, Pk)
        for i in range(8):
            A.I(f'v_add_f32 v{Z + i}, v{Z + i}, v{BI + i}')
        T.round_bf16(A, Z, Pk)
        for i in range(8):
            t = TT + i
            A.I(f'v_mul_f32 v{t}, v{Z + i}, v{Z + i}')
            A.I(f'v_mov_b32 v{t + 8}, s{S_T2}')
            A.I(f'v_fmac_f32 v{t + 8}, s{S_T3}, v{t}')
            A.I(f'v_mul_f32 v{t}, v{t + 8}, v{Z + i}')
            A.I(f'v_exp_f32 v{t}, v{t}')
        for i in range(8):
            A.I(f'v_add_f32 v{TT + i}, 1.0, v{TT + i}')
            A.I(f'v_rcp_f32 v{TT + i}, v{TT + i}')
        for i in range(8):
            A.I(f'v_mul_f32 v{Z + i}, v{Z + i}, v{TT + i}')
        o = O + 4 * nbp
        for i in range(4):
            A.I(f'v_cvt_pk_bf16_f32 v{o + i}, v{Z + 2 * i}, v{Z + 2 * i + 1}')
        A.I(f'buffer_store_dwordx4 {v(o, 4)}, v145, {ws}, s{S_T0} offen sc1')
        A.I(f's_add_u32 s{S_T0}, s{S_T0}, {56 * 1024}')
    A.I('s_waitcnt vmcnt(0)')
    A.I('s_barrier')
    l = A.newlabel('L_ue')
    A.I(f's_cmp_lg_u32 s{S_WV}, 0')
    A.br(f's_cbranch_scc1 {l}')
    A.I(f's_lshl_b32 s{S_T2}, s{S_G}, 7')
    A.I(f's_add_u32 s{S_T2}, s{S_T2}, 0x{F_LU:x}')
    A.I(f's_lshl_b32 s{S_T3}, s{S_G}, 2')
    A.I(f's_add_u32 s{S_T3}, s{S_T3}, 0x{F_GF + 256:x}')
    garrive(A, S_T2, S_T3, 144, l_exit)
    A.label(l)


G2_SLOT = {0: 0, 1: 1, 2: 2, 3: 3, 4: 4, 5: 0, 6: 1, 7: 2, 8: 3, 9: 4, 10: 0, 11: 1, 12: 2, 13: 0}
G2_READ = [[0, 1, 2, 3, 4], [5, 6, 7], [8, 9, 10, 11, 12], [13]]
G2_NEXT = [[5, 6, 7, 8, 9], [10, 11, 12], [], []]


def g2_slot(k):
    return 0 if k == 13 else L_W2 + 16384 * G2_SLOT[k]


def g2_areg(k):
    return (128 + 16 * k) if k < 8 else 16 * (k - 8)


S_PRE = 62


def g2_pre(A, rnd):
    t = G1T
    A.I(f'v_and_b32 v{t}, 15, v0')
    A.I(f'v_lshrrev_b32 v{t + 1}, 4, v0')
    A.I(f'v_lshrrev_b32 v{t + 2}, 2, v{t}')
    A.I(f'v_and_b32 v{t + 3}, 3, v{t}')
    A.I(f'v_lshl_add_u32 v{t + 2}, v{t + 1}, 2, v{t + 2}')
    A.I(f'v_bfe_u32 v{t + 1}, v{t + 2}, 1, 2')
    A.I(f'v_lshlrev_b32 v{t + 2}, 7, v{t + 2}')
    A.I(f'v_lshl_add_u32 v{t + 2}, v{t + 3}, 3, v{t + 2}')
    A.I(f'v_lshl_add_u32 v{t + 2}, v{t + 1}, 5, v{t + 2}')
    A.I(f's_lshl_b32 s{S_T0}, s{S_WV}, 12')
    A.I(f's_add_u32 s{S_T0}, s{S_T0}, {L_W2}')
    for j in range(4):
        A.I(f'v_xor_b32 v{t + 4 + j}, {32 * j}, v{t + 2}')
        A.I(f'v_add_u32 v{t + 4 + j}, s{S_T0}, v{t + 4 + j}')
        A.I(f'v_add_u32 v{t + 8 + j}, 49152, v{t + 4 + j}')
    A.I('s_waitcnt vmcnt(0)')
    A.I('s_barrier')
    for k in G2_READ[rnd]:
        so = 16384 * G2_SLOT[k]
        ab = t + 4
        if so >= 49152:
            so -= 49152
            ab = t + 8
        if k == 13:
            so = 0
            for j in range(4):
                A.I(f'v_subrev_u32 v{ab + j}, {L_W2}, v{ab + j}')
        for j in range(4):
            for x in range(2):
                A.I(f'ds_read_b64_tr_b16 {a(g2_areg(k) + 4 * j + 2 * x, 2)}, v{ab + j} offset:{so + 16 * x * 128}')
        A.I('s_waitcnt lgkmcnt(4)')
    A.I('s_waitcnt lgkmcnt(0)')
    if G2_NEXT[rnd]:
        A.I('s_barrier')
        for k in G2_NEXT[rnd]:
            g2_dma(A, k)
    A.I(f's_mov_b32 s{S_PRE}, {rnd + 1}')


def g2_setup(A):
    A.I(f's_load_dwordx2 s[16:17], s[0:1], {KA_W2}')
    A.I('s_waitcnt lgkmcnt(0)')
    make_srd(A, S_W2, 16, 1792 * 4096)
    A.I(f's_load_dwordx4 s[16:19], s[0:1], {KA_B2}')
    A.I('s_waitcnt lgkmcnt(0)')
    t = G1T
    A.I(f'v_lshrrev_b32 v{t}, 3, v0')
    A.I(f'v_and_b32 v{t + 1}, 7, v0')
    A.I(f'v_lshrrev_b32 v{t + 2}, 4, v0')
    A.I(f'v_lshlrev_b32 v{t + 2}, 1, v{t + 2}')
    A.I(f'v_xor_b32 v{t + 1}, v{t + 1}, v{t + 2}')
    A.I(f'v_lshlrev_b32 v{t + 1}, 4, v{t + 1}')
    A.I(f'v_lshl_add_u32 v142, v{t}, 12, v{t + 1}')
    A.I(f's_lshl_b32 s{S_BO2}, s{S_WV}, 15')
    A.I(f's_lshr_b32 s{S_T0}, s{S_J2}, 3')
    A.I(f's_lshl_b32 s{S_T0}, s{S_T0}, 7')
    A.I(f's_add_u32 s{S_BO2}, s{S_BO2}, s{S_T0}')
    A.I(f's_lshl_b32 s{S_LB2}, s{S_WV}, 10')


def g2_dma(A, k, vr=142):
    w2 = f's[{S_W2}:{S_W2 + 3}]'
    for i in range(4):
        A.I(f's_add_u32 m0, s{S_LB2}, {g2_slot(k) + i * 4096}')
        A.I(f's_add_u32 s{S_T0}, s{S_BO2}, {(k * 128 + i * 32) * 4096}')
        A.I(f'buffer_load_dwordx4 v{vr}, {w2}, s{S_T0} offen lds')


def g2_touch(A, k0):
    w2 = f's[{S_W2}:{S_W2 + 3}]'
    A.I('v_lshlrev_b32 v143, 12, v0')
    A.I(f's_lshr_b32 s{S_T0}, s{S_J2}, 3')
    A.I(f's_lshl_b32 s{S_T0}, s{S_T0}, 7')
    A.I(f's_lshl_b32 s{S_T1}, s{S_WV}, 18')
    A.I(f's_add_u32 s{S_T0}, s{S_T0}, s{S_T1}')
    for r0 in range(k0 * 128, 1792, 256):
        A.I(f's_add_u32 s{S_T1}, s{S_T0}, {r0 * 4096}')
        A.I(f'buffer_load_dword v5, v143, {w2}, s{S_T1} offen')


def g2_main(A, l_exit):
    ws = f's[{S_WS}:{S_WS + 3}]'
    S_O, S_B2 = S_W1, S_B1
    tstamp(A, 20, 8)
    for rnd in range(4):
        l = A.newlabel('L_pre')
        A.I(f's_cmp_gt_u32 s{S_PRE}, {rnd}')
        A.br(f's_cbranch_scc1 {l}')
        g2_pre(A, rnd)
        A.label(l)
        A.forget_loads()
    A.I('s_waitcnt lgkmcnt(0)')
    make_srd(A, S_B2, 16, 4096)
    make_srd(A, S_O, 18, 2048 * 1024)
    b2, out = f's[{S_B2}:{S_B2 + 3}]', f's[{S_O}:{S_O + 3}]'
    S_AO, S_EO = 36, 37
    A.I(f's_and_b32 s{S_T0}, s{S_J2}, 7')
    A.I(f's_mul_i32 s{S_AO}, s{S_T0}, {4 * 56 * 1024}')
    A.I(f's_lshl_b32 s{S_T1}, s{S_WV}, 10')
    A.I(f's_add_u32 s{S_AO}, s{S_AO}, s{S_T1}')
    A.I(f's_add_u32 s{S_AO}, s{S_AO}, 0x{WS_U:x}')
    A.I(f's_lshl_b32 s{S_T0}, s{S_T0}, 2')
    A.I(f's_add_u32 s{S_T0}, s{S_T0}, s{S_WV}')
    A.I(f's_lshr_b32 s{S_T1}, s{S_J2}, 3')
    A.I(f's_lshl_b32 s{S_EO}, s{S_T1}, 16')
    A.I(f's_lshl_b32 s{S_T0}, s{S_T0}, 5')
    A.I(f's_add_u32 s{S_EO}, s{S_EO}, s{S_T0}')
    A.I('v_lshlrev_b32 v5, 4, v0')
    A.I('v_and_b32 v1, 15, v0')
    A.I('v_lshrrev_b32 v2, 4, v0')
    A.I('v_lshlrev_b32 v3, 10, v1')
    A.I('v_lshl_add_u32 v3, v2, 3, v3')
    A.I('v_lshlrev_b32 v4, 1, v1')
    A.I(f's_lshl_b32 s{S_T1}, s{S_T1}, 7')
    HB, BB, ACC, AR = 10, 18, 24, 88
    NA = 42
    A.I(f's_mov_b32 s39, s{S_T1}')
    masks = seg_masks()
    late = [g for g in range(7) if masks[g] >> 61] if os.environ.get('TWOPH') else []
    earlyg = [g for g in range(7) if g not in late]
    korder = [k for g in earlyg + late for k in (2 * g, 2 * g + 1)]
    nearly = min(8 * len(earlyg), NA)
    S_FL = 38
    A.I(f's_lshl_b32 s{S_FL}, s{S_G}, 9')
    A.I(f's_add_u32 s{S_FL}, s{S_FL}, 0x{F_GF + 256:x}')

    def wait_groups(gs):
        l0 = A.newlabel('L_g20')
        A.I(f's_cmp_lg_u32 s{S_WV}, 0')
        A.br(f's_cbranch_scc1 {l0}')
        A.check = False
        poll_flags(A, S_FL, 7, 1, 6, 7, l_exit, sleep=1, mask=sum(1 << g for g in gs))
        A.check = True
        A.label(l0)
        A.I('s_barrier')

    tstamp(A, 21, 8)
    wait_groups(earlyg)
    tstamp(A, 5, 8)
    vmq = []

    def aload(i):
        k, db = korder[i >> 2], i & 3
        off = db * 56 * 1024 + k * 4096
        A.I(f's_add_u32 s{S_T1}, s{S_AO}, {off}')
        A.I(f'buffer_load_dwordx4 {v(AR + 4 * (i % NA), 4)}, v5, {ws}, s{S_T1} offen')
        vmq.append(('a', i))

    def need(names):
        idx = max([i for i, p in enumerate(vmq) if p in names] + [-1])
        if idx >= 0:
            A.I(f's_waitcnt vmcnt({len(vmq) - 1 - idx})')
            del vmq[:idx + 1]

    PD = int(os.environ.get('PD', 20))
    for i in range(PD):
        aload(i)
    tstamp(A, 19, 8)
    nxt = PD
    for i in range(56):
        k, db = korder[i >> 2], i & 3
        need([('a', i)])
        for nb in range(4):
            d = ACC + 16 * db + 4 * nb
            c = '0' if i < 4 else v(d, 4)
            A.I(f'v_mfma_f32_16x16x32_bf16 {v(d, 4)}, {v(AR + 4 * (i % NA), 4)}, {a(g2_areg(k) + 4 * nb, 4)}, {c}')
            if nb in (0, 2) and nxt < 56 and nxt - i < NA - 1 and (nb == 0 or nxt - i < int(os.environ.get('PD2', 32))):
                aload(nxt)
                nxt += 1
                if nxt == 56:
                    for q in range(4):
                        A.I(f's_add_u32 s{S_T0}, s{S_EO}, 0x{WS_H + q * 16384:x}')
                        A.I(f'buffer_load_dwordx2 {v(HB + 2 * q, 2)}, v3, {ws}, s{S_T0} offen')
                        vmq.append(('h', 0))
                        A.I(f'buffer_load_ushort v{BB + q}, v4, {b2}, s39 offen offset:{32 * q}')
                        vmq.append(('h', 0))
    A.I(f's_lshl_b32 s{S_T0}, s{S_WV}, 12')
    A.I(f'v_add_u32 v6, s{S_T0}, v5')
    for db in range(4):
        for nb in range(4):
            A.I(f'ds_write_b128 v6, {v(ACC + 16 * db + 4 * nb, 4)} offset:{db * 16384 + nb * 1024}')
        A.I('s_waitcnt lgkmcnt(8)')
    A.I(f's_lshl_b32 s{S_T0}, s{S_WV}, 14')
    A.I(f'v_add_u32 v6, s{S_T0}, v5')
    A.I('s_waitcnt lgkmcnt(0)')
    A.I('s_barrier')
    for j in range(16):
        A.I(f'ds_read_b128 {v(ACC + 4 * j, 4)}, v6 offset:{1024 * j}')
        if j == 11:
            A.I('s_waitcnt lgkmcnt(8)')
    A.I('s_waitcnt lgkmcnt(0) vmcnt(0)')
    tstamp(A, 18, 8)
    for r in range(0, 16, 2):
        A.I(f'v_pk_add_f32 {v(ACC + r, 2)}, {v(ACC + r, 2)}, {v(ACC + 16 + r, 2)}')
        A.I(f'v_pk_add_f32 {v(ACC + 32 + r, 2)}, {v(ACC + 32 + r, 2)}, {v(ACC + 48 + r, 2)}')
    for r in range(0, 16, 2):
        A.I(f'v_pk_add_f32 {v(ACC + r, 2)}, {v(ACC + r, 2)}, {v(ACC + 32 + r, 2)}')
    for nb in range(4):
        d = ACC + 4 * nb
        t = 88
        A.I(f'v_cvt_pk_bf16_f32 v{t}, v{d}, v{d + 1}')
        A.I(f'v_cvt_pk_bf16_f32 v{t + 1}, v{d + 2}, v{d + 3}')
        A.I(f'v_lshlrev_b32 v{t + 2}, 16, v{BB + nb}')
        for i in range(2):
            A.I(f'v_lshlrev_b32 v{d + 2 * i}, 16, v{t + i}')
            A.I(f'v_and_b32 v{d + 2 * i + 1}, 0xffff0000, v{t + i}')
        for r in range(4):
            A.I(f'v_add_f32 v{d + r}, v{d + r}, v{t + 2}')
        A.I(f'v_cvt_pk_bf16_f32 v{t}, v{d}, v{d + 1}')
        A.I(f'v_cvt_pk_bf16_f32 v{t + 1}, v{d + 2}, v{d + 3}')
        for i in range(2):
            A.I(f'v_lshlrev_b32 v{d + 2 * i}, 16, v{t + i}')
            A.I(f'v_and_b32 v{d + 2 * i + 1}, 0xffff0000, v{t + i}')
            A.I(f'v_lshlrev_b32 v{t + 2}, 16, v{HB + 2 * nb + i}')
            A.I(f'v_and_b32 v{t + 3}, 0xffff0000, v{HB + 2 * nb + i}')
            A.I(f'v_add_f32 v{d + 2 * i}, v{d + 2 * i}, v{t + 2}')
            A.I(f'v_add_f32 v{d + 2 * i + 1}, v{d + 2 * i + 1}, v{t + 3}')
        o = 92 + 2 * nb
        A.I(f'v_cvt_pk_bf16_f32 v{o}, v{d}, v{d + 1}')
        A.I(f'v_cvt_pk_bf16_f32 v{o + 1}, v{d + 2}, v{d + 3}')
        A.I(f's_add_u32 s{S_T0}, s{S_EO}, {nb * 16384}')
        A.I(f'buffer_store_dwordx2 {v(o, 2)}, v3, {out}, s{S_T0} offen')


def red4(A, s_seg, srd_x, l_exit):
    ws = f's[{S_WS}:{S_WS + 3}]'
    B, Z, Pk, XR, t0, t1, va = 192, 144, 152, 12, 160, 161, 162
    A.I(f's_lshl_b32 s{S_T2}, s{s_seg}, 5')
    A.I(f's_add_u32 s{S_T2}, s{S_T2}, s{S_H}')
    A.I(f's_lshl_b32 s{S_T0}, s{S_OPS}, 5')
    A.I(f's_add_u32 s{S_T0}, s{S_T0}, s{S_H}')
    A.I(f's_lshl_b32 s{S_T0}, s{S_T0}, 15')
    A.I(f's_xor_b32 s{S_OPS}, s{S_OPS}, 1')
    A.I(f's_lshl_b32 s{S_T1}, s{S_WV}, 13')
    A.I(f's_add_u32 s{S_T0}, s{S_T0}, s{S_T1}')
    A.I(f's_add_u32 s{S_T0}, s{S_T0}, 0x{WS_OP:x}')
    A.I(f's_add_u32 s{S_T1}, s{S_T0}, 4096')
    for hh in range(8):
        so = S_T0 if hh < 4 else S_T1
        A.I(f'buffer_load_dwordx4 {v(B + 4 * hh, 4)}, v1, {ws}, s{so} offen offset:{1024 * (hh & 3)} sc1')
    A.I(f's_lshl_b32 s{S_T3}, s{S_T2}, 10')
    A.I(f'v_lshrrev_b32 v{va}, 2, v0')
    A.I(f'v_lshlrev_b32 v{va}, 6, v{va}')
    A.I(f'v_and_b32 v{t0}, 3, v0')
    A.I(f'v_lshl_add_u32 v{va}, v{t0}, 3, v{va}')
    for hh in range(8):
        A.I(f's_waitcnt vmcnt({7 - hh})')
        for i in range(4):
            r = B + 4 * hh + i
            if hh == 0:
                A.I(f'v_lshlrev_b32 v{Z + 2 * i}, 16, v{r}')
                A.I(f'v_and_b32 v{Z + 2 * i + 1}, 0xffff0000, v{r}')
            else:
                A.I(f'v_lshlrev_b32 v{t0}, 16, v{r}')
                A.I(f'v_and_b32 v{t1}, 0xffff0000, v{r}')
                A.I(f'v_add_f32 v{Z + 2 * i}, v{Z + 2 * i}, v{t0}')
                A.I(f'v_add_f32 v{Z + 2 * i + 1}, v{Z + 2 * i + 1}, v{t1}')
    A.I(f's_lshl_b32 s{S_T0}, s{S_WV}, 11')
    A.I(f'v_add_u32 v{t0}, s{S_T0}, v1')
    A.I(f'v_add_u32 v{t0}, {L_RED}, v{t0}')
    A.I(f'ds_write_b128 v{t0}, {v(Z, 4)}')
    A.I(f'ds_write_b128 v{t0}, {v(Z + 4, 4)} offset:1024')
    A.I('s_waitcnt lgkmcnt(0) vmcnt(0)')
    A.I('s_barrier')
    ts_tok(A, 15)
    l = A.newlabel('L_r4')
    A.I(f's_cmp_lg_u32 s{S_WV}, 0')
    A.br(f's_cbranch_scc1 {l}')
    for w_ in range(1, 4):
        for j in range(2):
            A.I(f'ds_read_b128 {v(B + 8 * w_ + 4 * j, 4)}, v{t0} offset:{2048 * w_ + 1024 * j}')
    A.I('s_waitcnt lgkmcnt(0)')
    for w_ in range(1, 4):
        for i in range(8):
            A.I(f'v_add_f32 v{Z + i}, v{Z + i}, v{B + 8 * w_ + i}')
    T.round_bf16(A, Z, Pk)
    for i in range(4):
        A.I(f'v_lshlrev_b32 v{t0}, 16, v{XR + i}')
        A.I(f'v_and_b32 v{t1}, 0xffff0000, v{XR + i}')
        A.I(f'v_add_f32 v{Z + 2 * i}, v{Z + 2 * i}, v{t0}')
        A.I(f'v_add_f32 v{Z + 2 * i + 1}, v{Z + 2 * i + 1}, v{t1}')
    T.round_bf16(A, Z, Pk)
    A.I(f's_add_u32 s{S_T0}, s{S_T3}, 0x{WS_H:x}')
    A.I(f'buffer_store_dwordx2 {v(Pk, 2)}, v{va}, {ws}, s{S_T0} offen sc1')
    A.I(f'buffer_store_dwordx2 {v(Pk + 2, 2)}, v{va}, {ws}, s{S_T0} offen offset:32 sc1')
    T.ln_regs(A, Z, t0, t1)
    T.round_bf16(A, Z, XR)
    T.ln_regs(A, Z, t0, t1)
    for i in range(4):
        A.I(f'v_cvt_pk_bf16_f32 v{XR + i}, v{Z + 2 * i}, v{Z + 2 * i + 1}')
    A.I(f's_add_u32 s{S_T0}, s{S_T3}, 0x{WS_HP:x}')
    A.I(f'buffer_store_dwordx2 {v(XR, 2)}, v{va}, {ws}, s{S_T0} offen sc1')
    A.I(f'buffer_store_dwordx2 {v(XR + 2, 2)}, v{va}, {ws}, s{S_T0} offen offset:32 sc1')
    A.I(f's_lshl_b32 s{S_T2}, s{s_seg}, 7')
    A.I(f's_add_u32 s{S_T2}, s{S_T2}, 0x{F_LH:x}')
    A.I(f's_lshl_b32 s{S_T3}, s{s_seg}, 2')
    A.I(f's_add_u32 s{S_T3}, s{S_T3}, 0x{F_GF:x}')
    A.I('s_waitcnt vmcnt(0)')
    garrive(A, S_T2, S_T3, t0, l_exit)
    A.label(l)


if __name__ == '__main__':
    A = Asm()
    nm = NAME + '_kernel'
    mega_kernel(A, nm)
    hd = header([(nm, 256, 256, R.L_TOTAL)])
    if os.environ.get('FINAL'):
        hd = hd.replace(f'@launch kernel={nm} ', '@launch ')
    txt = hd + A.text() + '.section .rodata,"a"\n' + kernel_desc(nm, 512, 256)
    out = os.environ.get('OUT', 'm3.s')
    open(out, 'w').write(txt)
    print(len(txt))
```

```python
import os
os.environ.setdefault('PB_DELAY', '7'); os.environ.setdefault('AF_DELAY', '2'); os.environ.setdefault('AF_GAP', '2')
from common import *
import tok2 as T
import rec9 as R
from tok2 import f32, S_WS, S_W, S_X, S_H, S_WV, S_G, S_T0, S_T1, S_T2, S_T3

S_DBG = 84
S_SPIN = R.S_SPIN
S_XCC = 83
S_LNO = 82
F_OPC = WS_FLAG + 0x4000
F_LH = WS_FLAG + 0x6000
F_LU = WS_FLAG + 0x8000
F_GF = WS_FLAG + 0x8400
S_FAST = S_XCC
D_GB, D_OVF, D_WEIRD, D_TS, D_TI = 128, 36, 40, 192, 196
S_J, S_BO2, S_LB2 = 100, 101, 3
S_J2 = 63
S_W1, S_B1, S_W2 = 88, 92, 96
NEARLY = int(os.environ.get('NEARLY', 2))
STAG = int(os.environ.get('STAG', 4))
STAG0 = int(os.environ.get('STAG0', 1))
TIMING = bool(os.environ.get('TIMING'))
OPRING = int(os.environ.get('OPRING', 0))
WARM = int(os.environ.get('WARM', 0))
E_IMM = int(os.environ.get('IMM', 62))
SPEC = int(os.environ.get('SPEC', 0))
DIAG = bool(os.environ.get('DIAG'))
TAIL_BYTES = int(os.environ.get('TAIL_BYTES', 24576))
CODET = int(os.environ.get('CODET', 0))
CODE_BYTES = int(os.environ.get('CODE_BYTES', 57344))
PLF = os.environ.get('PLF', 'sc1').replace('_', ' ')


def lane0(A, body):
    A.I('s_mov_b64 exec, 1')
    body()
    A.I('s_mov_b64 exec, -1')


def poll_eq(A, srd, s_off, imm, expect, vt, l_exit, sleep=0):
    l = A.newlabel('L_poll')
    A.label(l)
    so = f's{s_off}' if s_off is not None else '0'
    A.I(f'buffer_load_dword v{vt}, off, {srd}, {so} offset:{imm} sc1')
    A.I(f's_sub_u32 s{S_SPIN}, s{S_SPIN}, 1')
    A.I(f's_cbranch_scc1 {l_exit}')
    A.I('s_waitcnt vmcnt(0)')
    A.I(f'v_readfirstlane_b32 s{S_T0}, v{vt}')
    ld = A.newlabel('L_pd')
    A.I(f's_cmp_eq_u32 s{S_T0}, {expect}')
    A.I(f's_cbranch_scc1 {ld}')
    if sleep:
        A.I(f's_sleep {sleep}')
    A.br(f's_branch {l}')
    A.label(ld)


def poll_flags(A, s_off, nlanes, width, vt, va, l_exit, sleep=0, mask=None):
    ws = f's[{S_WS}:{S_WS + 3}]'
    l, ld = A.newlabel('L_pf'), A.newlabel('L_pfd')
    A.I(f'v_lshlrev_b32 v{va}, {2 if width == 1 else 3}, v0')
    assert nlanes <= 32
    A.I(f's_mov_b32 exec_lo, 0x{((1 << nlanes) - 1) if mask is None else mask:x}')
    A.I('s_mov_b32 exec_hi, 0')
    A.label(l)
    if width == 1:
        A.I(f'buffer_load_dword v{vt}, v{va}, {ws}, s{s_off} offen {PLF}')
    else:
        A.I(f'buffer_load_dwordx2 {v(vt, 2)}, v{va}, {ws}, s{s_off} offen {PLF}')
    A.I(f's_sub_u32 s{S_SPIN}, s{S_SPIN}, 1')
    A.I(f's_cbranch_scc1 {l_exit}')
    A.I('s_waitcnt vmcnt(0)')
    if width == 2:
        A.I(f'v_min_u32 v{vt}, v{vt}, v{vt + 1}')
    A.I(f'v_cmp_eq_u32 vcc, 0, v{vt}')
    A.I(f's_cbranch_vccz {ld}')
    if sleep:
        A.I(f's_sleep {sleep}')
    A.br(f's_branch {l}')
    A.label(ld)
    A.I('s_mov_b64 exec, -1')


def flag_store(A, s_addr, vt):
    ws = f's[{S_WS}:{S_WS + 3}]'
    l1, l2 = A.newlabel('L_fs'), A.newlabel('L_fs')
    A.I(f'v_mov_b32 v{vt}, 1')
    A.I('s_mov_b64 exec, 1')
    A.I(f's_cmp_eq_u32 s{S_FAST}, 0')
    A.br(f's_cbranch_scc1 {l1}')
    A.I(f'buffer_store_dword v{vt}, off, {ws}, s{s_addr}')
    A.br(f's_branch {l2}')
    A.label(l1)
    A.I(f'buffer_store_dword v{vt}, off, {ws}, s{s_addr} sc1')
    A.label(l2)
    A.I('s_mov_b64 exec, -1')


def garrive(A, s_line, s_goff, vt, l_exit):
    ws = f's[{S_WS}:{S_WS + 3}]'
    A.I(f's_lshl_b32 s{S_T1}, s{S_H}, 2')
    A.I(f's_add_u32 s{S_T1}, s{S_T1}, s{s_line}')
    flag_store(A, S_T1, vt)
    l = A.newlabel('L_ga')
    A.I(f's_cmp_lg_u32 s{S_H}, 0')
    A.br(f's_cbranch_scc1 {l}')
    poll_flags(A, s_line, 32, 1, vt, vt + 1, l_exit)
    A.I(f'v_lshlrev_b32 v{vt + 1}, 9, v0')
    A.I(f'v_mov_b32 v{vt}, 1')
    A.I('s_mov_b64 exec, 0xff')
    A.I(f'buffer_store_dword v{vt}, v{vt + 1}, {ws}, s{s_goff} offen sc1')
    A.I('s_mov_b64 exec, -1')
    A.label(l)


def wg_poll_eq(A, srd, s_off, imm, expect, vt, l_exit, sleep=0):
    l0 = A.newlabel('L_wgp')
    A.I(f's_cmp_lg_u32 s{S_WV}, 0')
    A.br(f's_cbranch_scc1 {l0}')
    poll_eq(A, srd, s_off, imm, expect, vt, l_exit, sleep)
    A.label(l0)
    A.I('s_barrier')


L_TS = 160000


def tstamp(A, idx, r=14):
    if not TIMING:
        return
    l = A.newlabel('L_ts')
    A.I(f's_cmp_lg_u32 s{S_WV}, 0')
    A.br(f's_cbranch_scc1 {l}')
    chk = A.check
    A.check = False
    A.I('s_memrealtime s[80:81]')
    A.I('s_waitcnt lgkmcnt(0)')
    if idx in (0, 1, 2, 7, 8):
        A.I(f'v_mov_b32 v{r}, s80')
        A.I(f'v_mov_b32 v{r + 1}, s81')
        A.I(f's_lshl_b32 s80, s{S_G}, 5')
        A.I(f's_add_u32 s80, s80, s{S_H}')
        A.I('s_lshl_b32 s80, s80, 8')
        A.I(f's_add_u32 s80, s80, 0x{WS_DBG:x}')
        A.I(f'buffer_store_dwordx2 {v(r, 2)}, off, s[{S_WS}:{S_WS + 3}], s80 offset:{8 * idx}')
    else:
        A.I(f'v_mov_b32 v{r}, s80')
        A.I(f'v_mov_b32 v{r + 1}, {L_TS + 8 * idx}')
        A.I(f'ds_write_b32 v{r + 1}, v{r}')
        A.I(f'v_mov_b32 v{r}, s81')
        A.I(f'ds_write_b32 v{r + 1}, v{r} offset:4')
        if idx == 6:
            A.I(f'v_lshlrev_b32 v{r}, 2, v0')
            A.I(f'v_add_u32 v{r + 1}, {L_TS}, v{r}')
            A.I('s_waitcnt lgkmcnt(0)')
            A.I(f'ds_read_b32 v{r + 1}, v{r + 1}')
            A.I(f's_lshl_b32 s80, s{S_G}, 5')
            A.I(f's_add_u32 s80, s80, s{S_H}')
            A.I('s_lshl_b32 s80, s80, 8')
            A.I(f's_add_u32 s80, s80, 0x{WS_DBG + 0x40000:x}')
            A.I('s_waitcnt lgkmcnt(0)')
            A.I(f'buffer_store_dword v{r + 1}, v{r}, s[{S_WS}:{S_WS + 3}], s80 offen')
    A.check = chk
    A.label(l)


def mega_kernel(A, name):
    kernel_begin(A, name)
    l_exit = A.newlabel('L_exit')
    P_WS, P_DBG, P_Q, P_K, P_V, P_O, P_M0, P_X = 16, 18, 20, 22, 24, 26, 28, 30
    ws, dbg, sx = f's[{S_WS}:{S_WS + 3}]', f's[{S_DBG}:{S_DBG + 3}]', f's[{S_X}:{S_X + 3}]'
    A.I('s_cmp_ge_u32 s2, 256')
    A.I(f's_cbranch_scc1 {l_exit}')
    if DIAG:
        A.I('s_memrealtime s[58:59]')
    A.I(f's_load_dwordx2 s[{P_WS}:{P_WS + 1}], s[0:1], {KA_WS}')
    A.I(f's_load_dwordx2 s[{P_DBG}:{P_DBG + 1}], s[0:1], {KA_DBG}')
    A.I(f's_load_dwordx4 s[{P_Q}:{P_Q + 3}], s[0:1], {KA_WQ}')
    A.I(f's_load_dwordx4 s[{P_V}:{P_V + 3}], s[0:1], {KA_WV}')
    A.I(f's_load_dwordx2 s[{P_M0}:{P_M0 + 1}], s[0:1], {KA_MEM0}')
    A.I(f's_load_dwordx2 s[{P_X}:{P_X + 1}], s[0:1], {KA_X}')
    A.I('v_lshrrev_b32 v1, 6, v0')
    A.I('v_and_b32 v0, 63, v0')
    A.I(f'v_readfirstlane_b32 s{S_WV}, v1')
    A.I(f's_getreg_b32 s{S_XCC}, hwreg(HW_REG_XCC_ID)')
    if os.environ.get('FAKE') == '1':
        A.I(f's_lshr_b32 s{S_XCC}, s2, 5')
    if os.environ.get('FAKE') == '2':
        A.I(f's_lshr_b32 s{S_XCC}, s2, 5')
        A.I(f's_max_u32 s{S_XCC}, s{S_XCC}, 2')
    if os.environ.get('FAKE') == '3':
        A.I(f's_lshr_b32 s{S_XCC}, s2, 4')
    A.I(f's_mov_b32 s{S_SPIN}, 0x80000')
    A.I('s_waitcnt lgkmcnt(0)')
    make_srd(A, S_WS, P_WS, WS_SIZE)
    make_srd(A, S_DBG, P_DBG, 256)
    make_srd(A, S_X, P_X, 2048 * 1024)
    LX, LF = 32, 48
    lnl = A.newlabel('L_l0')
    A.I('v_and_b32 v24, 15, v0')
    A.I('v_lshrrev_b32 v25, 4, v0')
    A.I('s_cmp_ge_u32 s2, 128')
    A.br(f's_cbranch_scc1 {lnl}')
    A.I('v_lshlrev_b32 v26, 10, v24')
    A.I('v_lshl_add_u32 v26, v25, 4, v26')
    A.I(f's_lshl_b32 s{S_LNO}, s2, 14')
    A.I(f's_lshl_b32 s{S_T0}, s{S_WV}, 8')
    A.I(f's_add_u32 s{S_T0}, s{S_T0}, s{S_LNO}')
    for i in range(4):
        A.I(f'buffer_load_dwordx4 {v(LX + 4 * i, 4)}, v26, {sx}, s{S_T0} offen offset:{64 * i}')
    A.label(lnl)
    A.forget_loads()
    if CODET:
        lct = A.newlabel('L_ct')
        A.I(f's_cmp_lg_u32 s{S_WV}, 3')
        A.br(f's_cbranch_scc1 {lct}')
        A.I('s_cmp_ge_u32 s2, 16')
        A.br(f's_cbranch_scc1 {lct}')
        code_touch(A, name, l_exit, CODE_BYTES, 255, 3)
        A.label(lct)
    lr = A.newlabel('L_role_done')
    lr0 = A.newlabel('L_role0')
    A.I('s_mov_b32 s60, 0')
    A.I(f's_cmp_eq_u32 s{S_WV}, 0')
    A.br(f's_cbranch_scc1 {lr0}')
    if SPEC:
        A.I(f's_cmp_ge_u32 s{S_XCC}, 3')
        A.br(f's_cbranch_scc1 {lr}')
        A.I(f's_cmp_eq_u32 s{S_WV}, 3')
        A.br(f's_cbranch_scc1 {lr}')
        A.I(f's_cmp_eq_u32 s{S_XCC}, 0')
        A.I(f's_cselect_b32 s{S_W}, s{P_Q}, s{P_K}')
        A.I(f's_cselect_b32 s{S_W + 1}, s{P_Q + 1}, s{P_K + 1}')
        A.I(f's_and_b32 s{S_W + 1}, s{S_W + 1}, 0xffff')
        A.I(f's_mov_b32 s{S_W + 2}, 0x400000')
        A.I(f's_mov_b32 s{S_W + 3}, 0x{SRD3:x}')
        A.I('v_lshrrev_b32 v2, 1, v0')
        A.I('v_lshlrev_b32 v2, 13, v2')
        A.I('v_and_b32 v3, 1, v0')
        A.I('v_lshl_add_u32 v2, v3, 7, v2')
        A.I(f's_lshr_b32 s{S_T0}, s2, 3')
        A.I(f's_lshl_b32 s{S_T0}, s{S_T0}, 8')
        A.I(f's_sub_u32 s{S_T1}, s{S_WV}, 1')
        A.I(f's_lshl_b32 s{S_T1}, s{S_T1}, 18')
        A.I(f's_add_u32 s{S_T0}, s{S_T0}, s{S_T1}')
        A.check = False
        for i in range(8):
            A.I(f'buffer_load_dword v255, v2, s[{S_W}:{S_W + 3}], s{S_T0} offen')
            A.I(f's_add_u32 s{S_T0}, s{S_T0}, {64 * 8192}')
        A.I('s_waitcnt vmcnt(8)')
        A.I('s_mov_b32 s60, 1')
        A.check = True
        A.forget_loads()
    A.br(f's_branch {lr}')
    A.label(lr0)
    A.I('s_mov_b64 exec, 1')
    A.I('v_mov_b32 v2, 1')
    lw = A.newlabel('L_nw')
    A.I(f's_cmp_lt_u32 s{S_XCC}, 8')
    A.br(f's_cbranch_scc1 {lw}')
    A.I(f'buffer_atomic_or v2, off, {dbg}, 0 offset:{D_WEIRD}')
    A.I('s_waitcnt vmcnt(0)')
    A.label(lw)
    A.I(f's_and_b32 s{S_G}, s{S_XCC}, 7')
    A.I(f's_lshl_b32 s{S_T0}, s{S_G}, 2')
    A.I(f'buffer_atomic_add v2, off, {dbg}, s{S_T0} sc0')
    A.I('s_waitcnt vmcnt(0)')
    A.I(f'v_readfirstlane_b32 s{S_H}, v2')
    lok = A.newlabel('L_rok')
    A.I(f's_cmp_lt_u32 s{S_H}, 32')
    A.br(f's_cbranch_scc1 {lok}')
    A.I('v_mov_b32 v2, 1')
    A.I(f'buffer_atomic_add v2, off, {dbg}, 0 offset:{D_OVF} sc0')
    A.I('s_waitcnt vmcnt(0)')
    A.I(f'v_readfirstlane_b32 s{S_T3}, v2')
    lo = A.newlabel('L_ovf')
    A.label(lo)
    A.I(f'buffer_load_dwordx4 v[4:7], off, {dbg}, 0 sc1')
    A.I(f'buffer_load_dwordx4 v[8:11], off, {dbg}, 0 offset:16 sc1')
    A.I(f's_sub_u32 s{S_SPIN}, s{S_SPIN}, 1')
    A.I(f's_cbranch_scc1 {l_exit}')
    A.I('s_waitcnt vmcnt(0)')
    A.I(f's_mov_b32 s{S_T0}, 0')
    for i in range(8):
        A.I(f'v_readfirstlane_b32 s{64 + i}, v{4 + i}')
    for i in range(8):
        A.I(f's_add_u32 s{S_T0}, s{S_T0}, s{64 + i}')
    A.I(f's_cmp_lt_u32 s{S_T0}, 256')
    A.br(f's_cbranch_scc1 {lo}')
    for g in range(8):
        A.I(f's_min_u32 s{S_T0}, s{64 + g}, 32')
        A.I(f's_sub_u32 s{S_T1}, 32, s{S_T0}')
        A.I(f's_mov_b32 s{S_G}, {g}')
        A.I(f's_add_u32 s{S_H}, s{S_T0}, s{S_T3}')
        A.I(f's_cmp_lt_u32 s{S_T3}, s{S_T1}')
        A.br(f's_cbranch_scc1 {lok}')
        A.I(f's_sub_u32 s{S_T3}, s{S_T3}, s{S_T1}')
    A.I(f's_mov_b32 s{S_G}, 0x100')
    A.I(f's_mov_b32 s{S_H}, 0')
    A.label(lok)
    A.I(f's_lshl_b32 s{S_T0}, s{S_G}, 8')
    A.I(f's_or_b32 s{S_T0}, s{S_T0}, s{S_H}')
    A.I(f'v_mov_b32 v2, s{S_T0}')
    A.I('v_mov_b32 v3, 0')
    A.I('ds_write_b32 v3, v2')
    A.I('s_waitcnt lgkmcnt(0)')
    A.I('s_mov_b64 exec, -1')
    A.label(lr)
    lno, lnd = A.newlabel('L_lno'), A.newlabel('L_lnd')
    A.I('s_cmp_ge_u32 s2, 128')
    A.br(f's_cbranch_scc1 {lno}')
    A.I(f's_lshl_b32 s{S_T0}, s{S_WV}, 2')
    A.I('v_lshlrev_b32 v27, 4, v24')
    A.I(f'v_add_u32 v26, s{S_T0}, v27')
    lsw = A.newlabel('L_sw')
    A.I('s_cmp_eq_u32 s60, 1')
    A.br(f's_cbranch_scc1 {lsw}')
    A.I('s_waitcnt vmcnt(0)')
    A.label(lsw)
    for i in range(16):
        A.I(f'v_lshlrev_b32 v{LF + 2 * i}, 16, v{LX + i}')
        A.I(f'v_and_b32 v{LF + 2 * i + 1}, 0xffff0000, v{LX + i}')
    A.I(f'v_add_f32 v28, v{LF}, v{LF + 1}')
    A.I(f'v_add_f32 v29, v{LF + 2}, v{LF + 3}')
    for i in range(4, 32, 2):
        A.I(f'v_add_f32 v28, v28, v{LF + i}')
        A.I(f'v_add_f32 v29, v29, v{LF + i + 1}')
    A.I('v_add_f32 v28, v28, v29')
    T.xreduce(A, 'v_add_f32', 28, 29)
    A.I('ds_write_b32 v26, v28 offset:64')
    A.I('s_waitcnt lgkmcnt(0)')
    A.I('s_barrier')
    A.I('v_mov_b32 v3, 0')
    A.I('ds_read_b32 v2, v3')
    A.I('ds_read_b128 v[28:31], v27 offset:64')
    A.I('s_waitcnt lgkmcnt(0)')
    A.I('v_add_f32 v28, v28, v29')
    A.I('v_add_f32 v30, v30, v31')
    A.I('v_add_f32 v28, v28, v30')
    A.I(f'v_mul_f32 v28, {f32(1 / 512)}, v28')
    A.I('v_mov_b32 v29, 0')
    A.I('v_mov_b32 v30, 0')
    for i in range(0, 32, 2):
        A.I(f'v_sub_f32 v{LF + i}, v{LF + i}, v28')
        A.I(f'v_sub_f32 v{LF + i + 1}, v{LF + i + 1}, v28')
        A.I(f'v_fmac_f32 v29, v{LF + i}, v{LF + i}')
        A.I(f'v_fmac_f32 v30, v{LF + i + 1}, v{LF + i + 1}')
    A.I('v_add_f32 v29, v29, v30')
    T.xreduce(A, 'v_add_f32', 29, 30)
    A.I('ds_write_b32 v26, v29 offset:320')
    A.I('s_waitcnt lgkmcnt(0)')
    A.I('s_barrier')
    A.I('ds_read_b128 v[28:31], v27 offset:320')
    A.I('s_waitcnt lgkmcnt(0)')
    A.I('v_add_f32 v28, v28, v29')
    A.I('v_add_f32 v30, v30, v31')
    A.I('v_add_f32 v28, v28, v30')
    A.I(f'v_mov_b32 v29, {f32(1e-5)}')
    A.I(f'v_fmac_f32 v29, {f32(1 / 512)}, v28')
    A.I('v_rsq_f32 v29, v29')
    A.I('v_lshlrev_b32 v26, 4, v0')
    A.I(f's_lshl_b32 s{S_T0}, s{S_WV}, 12')
    A.I(f's_add_u32 s{S_T0}, s{S_T0}, s{S_LNO}')
    A.I(f's_add_u32 s{S_T0}, s{S_T0}, 0x{WS_XN:x}')
    for i in range(4):
        for j in range(4):
            f = LF + 8 * i + 2 * j
            A.I(f'v_mul_f32 v{f}, v{f}, v29')
            A.I(f'v_mul_f32 v{f + 1}, v{f + 1}, v29')
            A.I(f'v_cvt_pk_bf16_f32 v{LX + 4 * i + j}, v{f}, v{f + 1}')
        A.I(f'buffer_store_dwordx4 {v(LX + 4 * i, 4)}, v26, {ws}, s{S_T0} offen offset:{1024 * i} sc1')
    A.br(f's_branch {lnd}')
    A.label(lno)
    A.I('s_barrier')
    A.I('v_mov_b32 v3, 0')
    A.I('ds_read_b32 v2, v3')
    A.I('s_waitcnt lgkmcnt(0)')
    A.label(lnd)
    A.forget_loads()
    A.I(f'v_readfirstlane_b32 s{S_T0}, v2')
    A.I(f's_and_b32 s{S_H}, s{S_T0}, 31')
    A.I(f's_bfe_u32 s{S_G}, s{S_T0}, 0x30008')
    A.I(f's_cmp_ge_u32 s{S_T0}, 0x10000')
    A.I(f's_cbranch_scc1 {l_exit}')
    A.I('s_barrier')
    tstamp(A, 0)

    def arrive(off=D_GB):
        l = A.newlabel('L_na')
        A.I(f's_cmp_lg_u32 s{S_WV}, 0')
        A.br(f's_cbranch_scc1 {l}')
        A.I('v_mov_b32 v23, 1')
        lane0(A, lambda: A.I(f'buffer_atomic_add v23, off, {dbg}, 0 offset:{off}'))
        A.label(l)

    def ln_and_arrive(ln=True):
        A.I('s_waitcnt vmcnt(0)')
        A.I('s_barrier')
        arrive()

    l_tok = A.newlabel('L_tok')
    l_g2 = A.newlabel('L_g2')
    A.I(f's_cmp_lg_u32 s{S_G}, 0')
    A.br(f's_cbranch_scc1 {l_tok}')

    A.I(f'v_mov_b32 v{R.LANE}, v0')
    R.setup_consts(A)

    A.I(f's_lshl_b32 s{S_T0}, s{S_H}, 6')
    A.I(f's_lshl_b32 s{S_T1}, s{S_WV}, 2')
    A.I(f's_add_u32 s{S_T0}, s{S_T0}, s{S_T1}')
    A.I(f's_add_u32 s{S_LNO}, s{S_T0}, 0x{R.F_KMP:x}')
    A.I('v_mov_b32 v24, 0')
    lane0(A, lambda: A.I(f'buffer_store_dword v24, off, {ws}, s{S_LNO} sc1'))
    R.init_exchange(A, P_M0, 'sc1', rb=24, part=0)

    def thook():
        A.check = False
        R.init_exchange(A, P_M0, 'sc1', rb=24, part=1)
        A.check = True
        A.forget_loads()

    def h_sc(sc):
        if sc == 0:
            arrive()
            tstamp(A, 8, 24)
        if sc == 1:
            arrive(D_TI)

    S_OK = 25

    def batch():
        A.I(f'buffer_load_dword v25, off, {dbg}, 0 sc1')
        A.I(f'buffer_load_dword v26, off, {dbg}, 0 offset:{D_WEIRD} sc1')
        A.I(f'buffer_load_dword v27, off, {dbg}, 0 offset:{D_TI} sc1')
        R.kv_load(A, 28, R.V_L16, R.S_RA)

    def h_issue(sc):
        if sc == 3:
            A.I(f'buffer_load_dword v24, off, {dbg}, 0 offset:{D_GB} sc1')
            return
        A.I(f's_lshl_b32 s{R.S_RA}, s{S_H}, 7')
        A.I(f's_add_u32 s{R.S_RA}, s{R.S_RA}, 0x{R.F_PROG:x}')
        A.I(f's_lshl_b32 s{R.S_KVN}, s{S_H}, 13')
        A.I(f's_add_u32 s{R.S_KVN}, s{R.S_KVN}, s{R.S_W11}')
        A.I(f's_add_u32 s{R.S_KVN}, s{R.S_KVN}, 0x{WS_KF:x}')
        A.I(f's_add_u32 s{R.S_KVM0}, s{R.S_W11}, {R.L_KV}')
        batch()

    def evaluate(l_fail):
        R.kv_eval(A, 28, R.V_L16, R.S_AV)
        A.I(f'v_readfirstlane_b32 s{S_T0}, v24')
        A.I(f'v_readfirstlane_b32 s{S_T2}, v25')
        A.I(f'v_readfirstlane_b32 s{S_T3}, v26')
        A.I(f's_cmp_lg_u32 s{S_T0}, 256')
        A.I(f's_cbranch_scc1 {l_fail}')
        A.I(f'v_readfirstlane_b32 s{S_T0}, v27')
        A.I(f's_cmp_lg_u32 s{S_T0}, 32')
        A.I(f's_cbranch_scc1 {l_fail}')
        A.I(f's_cmp_eq_u32 s{R.S_AV}, 0')
        A.I(f's_cbranch_scc1 {l_fail}')
        A.I(f's_cmp_ge_u32 s{S_T2}, 32')
        A.I(f's_cselect_b32 s{S_XCC}, 1, 0')
        A.I(f's_cmp_eq_u32 s{S_T3}, 0')
        A.I(f's_cselect_b32 s{S_XCC}, s{S_XCC}, 0')
        R.kv_dma(A)

    def h_check():
        lf = A.newlabel('L_hf')
        A.I(f's_mov_b32 s{S_OK}, 0')
        evaluate(lf)
        A.I(f's_mov_b32 s{S_OK}, 1')
        A.label(lf)

    R.stage_weights(A, [P_Q, P_K, P_V, P_O], hook=thook, hook_issue=h_issue, hook_check=h_check, hook_sc=h_sc)
    tstamp(A, 1)
    A.I(f's_mov_b32 s{R.S_KP}, s{S_LNO}')
    lgo_, lre = A.newlabel('L_tgo'), A.newlabel('L_tre')
    A.I(f's_cmp_eq_u32 s{S_OK}, 1')
    A.br(f's_cbranch_scc1 {lgo_}')
    A.label(lre)
    A.I('s_sleep 4')
    A.I(f'buffer_load_dword v24, off, {dbg}, 0 offset:{D_GB} sc1')
    A.I('s_waitcnt vmcnt(0)')
    batch()
    A.I(f's_sub_u32 s{S_SPIN}, s{S_SPIN}, 1')
    A.I(f's_cbranch_scc1 {l_exit}')
    A.I('s_waitcnt vmcnt(0)')
    evaluate(lre)
    A.label(lgo_)
    A.I('s_waitcnt vmcnt(0)')
    A.I('s_barrier')
    tstamp(A, 2)
    if DIAG:
        A.I('s_memrealtime s[80:81]')
        A.I('s_waitcnt lgkmcnt(0)')
        A.I('s_sub_u32 s60, s80, s58')
    l_slow = A.newlabel('L_slowmode')
    l_tdone = A.newlabel('L_tdone')
    A.I(f's_cmp_eq_u32 s{S_XCC}, 0')
    if os.environ.get('FORCE_SLOW'):
        A.br(f's_branch {l_slow}')
    else:
        A.br(f's_cbranch_scc1 {l_slow}')
    R.main_loop(A, '', l_tdone, kvcheck=True)
    A.label(l_slow)
    R.main_loop(A, 'sc1', l_tdone, kvcheck=True)
    A.label(l_tdone)
    A.forget_loads()
    A.I(f's_mov_b32 s{S_G}, 0')
    tstamp(A, 3)
    if DIAG:
        A.I('s_memrealtime s[80:81]')
        A.I('s_waitcnt lgkmcnt(0)')
        A.I('s_sub_u32 s61, s80, s58')
    A.I(f'v_lshrrev_b32 v0, 4, v{R.V_L16}')
    j2_calc(A)
    A.I('s_waitcnt vmcnt(0) lgkmcnt(0)')
    A.I('s_barrier')
    g2_setup(A)
    for k in (0, 1, 2, 3, 4, 13):
        g2_dma(A, k)
    A.I(f's_mov_b32 s{S_PRE}, 0')
    A.br(f's_branch {l_g2}')

    A.label(l_tok)
    A.forget_loads()
    S_SEG, S_NX, S_CA, S_END, S_K1, S_AV, S_PB = 36, 41, 42, 43, 44, 45, 46
    j2_calc(A)
    A.I(f's_sub_u32 s{S_G}, s{S_G}, 1')
    A.I(f's_lshl_b32 s{S_J}, s{S_G}, 5')
    A.I(f's_add_u32 s{S_J}, s{S_J}, s{S_H}')

    def tok_init(ln=True):
        A.I(f's_lshl_b32 s{S_CA}, s{S_H}, 7')
        A.I(f's_lshl_b32 s{S_T0}, s{S_G}, 4')
        A.I(f's_add_u32 s{S_CA}, s{S_CA}, s{S_T0}')
        A.I(f's_lshl_b32 s{S_T0}, s{S_WV}, 2')
        A.I(f's_add_u32 s{S_CA}, s{S_CA}, s{S_T0}')
        A.I(f's_add_u32 s{S_CA}, s{S_CA}, 0x{R.F_PROG:x}')
        A.I('v_mov_b32 v22, 0')
        lane0(A, lambda: A.I(f'buffer_store_dword v22, off, {ws}, s{S_CA} sc1'))
        lz = A.newlabel('L_nz')
        A.I(f's_cmp_lg_u32 s{S_J}, 64')
        A.br(f's_cbranch_scc1 {lz}')
        A.I('v_lshlrev_b32 v23, 4, v0')
        for r in range(16, 20):
            A.I(f'v_mov_b32 v{r}, 0')
        A.I(f's_mul_i32 s{S_T0}, s{S_WV}, 6144')
        A.I(f's_add_u32 s{S_T0}, s{S_T0}, 0x{F_OPC:x}')
        A.I(f's_add_u32 s{S_T1}, s{S_T0}, 4096')
        for i in range(4):
            A.I(f'buffer_store_dwordx4 v[16:19], v23, {ws}, s{S_T0} offen offset:{1024 * i} sc1')
        A.I(f'buffer_store_dwordx4 v[16:19], v23, {ws}, s{S_T1} offen sc1')
        A.I(f'buffer_store_dwordx4 v[16:19], v23, {ws}, s{S_T1} offen offset:1024 sc1')
        A.label(lz)
        A.forget_loads()
        if ln:
            ln_and_arrive()
            ts_tok(A, 8)

    l_late = A.newlabel('L_late')
    l_st = A.newlabel('L_st')
    A.I(f's_mov_b32 s{S_K1}, 0')
    l_lt = A.newlabel('L_lt')
    A.I(f's_cmp_ge_u32 s{S_G}, {NEARLY}')
    A.br(f's_cbranch_scc1 {l_lt}')
    tok_init(False)
    A.br(f's_branch {l_st}')
    A.label(l_lt)
    if WARM:
        lwm = A.newlabel('L_wm')
        A.I(f's_cmp_eq_u32 s{S_G}, 3')
        A.br(f's_cbranch_scc1 {lwm}')
        A.I(f's_sub_u32 s{S_T0}, s{S_J}, 96')
        A.I(f's_cmp_eq_u32 s{S_G}, 2')
        A.I(f's_cselect_b32 s{S_T0}, s{S_H}, s{S_T0}')
        A.I(f's_lshl_b32 s{S_T0}, s{S_T0}, 2')
        A.I(f's_add_u32 s{S_T0}, s{S_T0}, s{S_WV}')
        A.I(f's_lshl_b32 s{S_T0}, s{S_T0}, 13')
        A.I('v_lshlrev_b32 v22, 7, v0')
        A.check = False
        for p in (P_Q, P_K, P_V, P_O):
            make_srd(A, S_W, p, 4 << 20)
            A.I(f'buffer_load_dword v255, v22, s[{S_W}:{S_W + 3}], s{S_T0} offen')
        A.check = True
        A.label(lwm)
        A.forget_loads()
    tok_init()
    l_nost = A.newlabel('L_nost')
    wg_poll_eq(A, dbg, None, D_GB, 256, 2, l_exit, sleep=100)
    A.I(f's_cmp_ge_u32 s{S_G}, 4')
    A.br(f's_cbranch_scc1 {l_nost}')
    lsg, lsd = A.newlabel('L_sg'), A.newlabel('L_sd')
    A.I(f's_cmp_lg_u32 s{S_WV}, 0')
    A.br(f's_cbranch_scc1 {lsd}')
    A.I(f's_cmp_eq_u32 s{S_G}, 3')
    A.I(f's_cselect_b32 s{S_T1}, {STAG}, {STAG0}')
    A.I(f's_lshl_b32 s{S_T2}, s{S_H}, 6')
    A.I(f's_add_u32 s{S_T2}, s{S_T2}, 0x{R.F_KMP:x}')
    A.label(lsg)
    A.I(f'buffer_load_dword v2, off, {ws}, s{S_T2} sc1')
    A.I(f's_sub_u32 s{S_SPIN}, s{S_SPIN}, 1')
    A.I(f's_cbranch_scc1 {l_exit}')
    A.I('s_waitcnt vmcnt(0)')
    A.I(f'v_readfirstlane_b32 s{S_T0}, v2')
    A.I(f's_cmp_ge_u32 s{S_T0}, s{S_T1}')
    A.I(f's_cbranch_scc1 {lsd}')
    A.I('s_sleep 40')
    A.br(f's_branch {lsg}')
    A.label(lsd)
    A.I('s_barrier')
    A.I(f's_mov_b32 s{S_K1}, 1')
    A.label(l_st)

    def hook(sc):
        if sc != 0:
            return
        l = A.newlabel('L_hk')
        A.I(f's_cmp_eq_u32 s{S_K1}, 1')
        A.br(f's_cbranch_scc1 {l}')
        arrive()
        ts_tok(A, 8)
        A.label(l)

    T.qkv_stage(A, [P_Q, P_K, P_V], hook_sc=hook)
    A.label(l_nost)
    ts_tok(A, 1)
    wg_poll_eq(A, dbg, None, D_GB, 256, 2, l_exit, sleep=8)
    ts_tok(A, 7)
    A.I(f's_lshl_b32 s{S_T0}, s{S_G}, 2')
    A.I(f'buffer_load_dword v2, off, {dbg}, s{S_T0} offset:4 sc1')
    A.I(f'buffer_load_dword v3, off, {dbg}, 0 offset:{D_WEIRD} sc1')
    A.I('s_waitcnt vmcnt(0)')
    A.I(f'v_readfirstlane_b32 s{S_T2}, v2')
    A.I(f'v_readfirstlane_b32 s{S_T3}, v3')
    A.I(f's_cmp_ge_u32 s{S_T2}, 32')
    A.I(f's_cselect_b32 s{S_FAST}, 1, 0')
    A.I(f's_cmp_eq_u32 s{S_T3}, 0')
    A.I(f's_cselect_b32 s{S_FAST}, s{S_FAST}, 0')
    if os.environ.get('FORCE_SLOW'):
        A.I(f's_mov_b32 s{S_FAST}, 0')
    l_nop1 = A.newlabel('L_nop1')
    A.I(f's_cmp_ge_u32 s{S_G}, 4')
    A.br(f's_cbranch_scc1 {l_nop1}')
    A.I(f's_lshr_b32 s{S_T0}, s{S_G}, 1')
    A.I(f's_lshl_b32 s{S_T0}, s{S_T0}, 5')
    A.I(f's_add_u32 s{S_END}, s{S_T0}, 32')
    A.I(f's_and_b32 s{S_NX}, s{S_G}, 1')
    A.I(f's_add_u32 s{S_NX}, s{S_NX}, s{S_T0}')
    A.I('v_mov_b32 v2, 0')

    def signal():
        lane0(A, lambda: A.I(f'buffer_store_dword v2, off, {ws}, s{S_CA} sc1'))

    def after():
        A.I('v_add_u32 v2, 1, v2')

    T.qkv_segments(A, 2, 'sc1', after_seg=after, mid_seg=signal, first=S_NX, end=f's{S_END}')
    A.I('s_waitcnt vmcnt(0)')
    signal()
    A.label(l_nop1)
    ts_tok(A, 2)
    T.att_stage(A, P_O)
    T.att_consts(A)
    A.I(f's_load_dwordx4 s[16:19], s[0:1], {KA_W1}')
    A.I('s_waitcnt lgkmcnt(0)')
    make_srd(A, S_W1, 16, 2048 * 3584)
    make_srd(A, S_B1, 18, 3584)
    g2_setup(A)
    A.I(f's_mov_b32 s{S_PRE}, 0')
    for i in range(16):
        A.I(f'v_mov_b32 v{G1ACC + i}, 0')
    A.I(f's_mov_b32 s{S_K1}, 0')
    g1_w1_dma(A, S_K1, first=True)
    A.I(f's_lshl_b32 s{S_OPS}, s{S_G}, 1')
    masks = seg_masks()
    for g in range(7):
        A.I(f's_cmp_eq_u32 s{S_G}, {g}')
        A.I(f's_cselect_b32 s{S_MSK}, 0x{masks[g] & 0xffffffff:x}, s{S_MSK}')
        A.I(f's_cselect_b32 s{S_MSK + 1}, 0x{masks[g] >> 32:x}, s{S_MSK + 1}')
    A.I(f's_ff1_i32_b64 s{S_SEG}, s[{S_MSK}:{S_MSK + 1}]')
    A.I(f's_bitset0_b64 s[{S_MSK}:{S_MSK + 1}], s{S_SEG}')
    A.I(f's_mov_b32 s{S_AV}, 0')
    A.I(f's_lshl_b32 s{S_PB}, s{S_H}, 7')
    A.I(f's_add_u32 s{S_PB}, s{S_PB}, 0x{R.F_PROG:x}')
    R.kv_wait(A, l_exit, S_SEG, 192, s_av=S_AV, s_base=S_PB, sleep=4, vlane16=1)
    T.att_load_qkv(A, S_SEG)
    x_prefetch(A, S_SEG, sx)
    L = A.newlabel('L_p2')
    L_att = A.newlabel('L_att')
    L_fin = A.newlabel('L_p2fin')
    A.label(L)
    A.check = False
    A.I(f's_cmp_ge_u32 s{S_K1}, 16')
    A.I(f's_cbranch_scc1 {L_fin}')
    lq2 = A.newlabel('L_lp2')
    ldec = A.newlabel('L_dec')
    A.I(f's_cmp_lg_u32 s{S_WV}, 0')
    A.br(f's_cbranch_scc1 {ldec}')
    A.I(f's_lshl_b32 s{S_CA}, s{S_H}, 6')
    A.I(f's_add_u32 s{S_CA}, s{S_CA}, 0x{R.F_KMP:x}')
    A.I(f's_add_u32 s40, s{S_SEG}, 2')
    A.I(f's_lshl_b32 s{S_T1}, s{S_K1}, 4')
    A.I(f's_lshl_b32 s{S_T2}, s{S_G}, 9')
    A.I(f's_add_u32 s{S_T1}, s{S_T1}, s{S_T2}')
    A.I(f's_add_u32 s{S_T1}, s{S_T1}, 0x{F_GF + 512:x}')
    lq, lgo, lnk = A.newlabel('L_lp'), A.newlabel('L_go'), A.newlabel('L_nk')
    A.label(lq)
    A.I(f'buffer_load_dwordx4 v[192:195], off, {ws}, s{S_CA} {PLF}')
    A.I(f'buffer_load_dwordx4 v[196:199], off, {ws}, s{S_T1} {PLF}')
    A.I(f'buffer_load_dwordx4 v[200:203], off, {ws}, s{S_T1} offset:16 {PLF}')
    A.I(f's_sub_u32 s{S_SPIN}, s{S_SPIN}, 1')
    A.I(f's_cbranch_scc1 {l_exit}')
    A.I('s_waitcnt vmcnt(0)')
    A.I('v_min_u32 v6, v192, v193')
    A.I('v_min3_u32 v6, v6, v194, v195')
    A.I(f'v_readfirstlane_b32 s{S_T0}, v6')
    A.I('v_min_u32 v7, v196, v197')
    A.I('v_min3_u32 v7, v7, v198, v199')
    A.I('v_cmp_eq_u32 vcc, 0, v7')
    A.I(f's_mov_b32 s{S_T3}, 1')
    A.I(f's_cmp_ge_u32 s{S_T0}, s40')
    A.I(f's_cbranch_scc1 {lgo}')
    A.label(lnk)
    lsl = A.newlabel('L_sl')
    A.I(f's_add_u32 s{S_T0}, s{S_T0}, 2')
    A.I(f's_cmp_lt_u32 s40, {E_IMM}')
    A.I(f's_cselect_b32 s{S_T0}, 0, s{S_T0}')
    A.I(f's_cmp_ge_u32 s{S_T0}, s40')
    A.I(f's_cbranch_scc1 {lq}')
    A.I(f's_mul_i32 s{S_T2}, s{S_PRE}, 3')
    A.I(f's_add_u32 s{S_T2}, s{S_T2}, 5')
    A.I(f's_cmp_lt_u32 s{S_PRE}, 2')
    A.I(f's_cselect_b32 s{S_T2}, s{S_T2}, 99')
    A.I(f's_mov_b32 s{S_T3}, 3')
    A.I(f's_cmp_ge_u32 s{S_K1}, s{S_T2}')
    A.I(f's_cbranch_scc1 {lgo}')
    A.I('v_min_u32 v6, v200, v201')
    A.I('v_min3_u32 v6, v6, v202, v203')
    A.I(f'v_readfirstlane_b32 s{S_T2}, v6')
    A.I(f's_cmp_eq_u32 s{S_K1}, 15')
    A.I(f's_cselect_b32 s{S_T2}, 0, s{S_T2}')
    A.I(f's_cmp_eq_u32 s{S_T2}, 0')
    A.I(f's_cselect_b32 s{S_T3}, 2, 4')
    A.I(f's_cbranch_vccz {lgo}')
    lns = A.newlabel('L_nsl')
    A.I(f's_mov_b32 s{S_T3}, 3')
    A.I(f's_cmp_lt_u32 s{S_K1}, 3')
    A.I(f's_cbranch_scc1 {lns}')
    A.I(f's_cmp_lt_u32 s{S_SEG}, 64')
    A.I(f's_cselect_b32 s{S_T2}, 2, 3')
    A.I(f's_cmp_lt_u32 s{S_PRE}, s{S_T2}')
    A.I(f's_cbranch_scc1 {lgo}')
    A.label(lns)
    A.I('s_sleep 4')
    A.I(f's_cmp_ge_u32 s{S_K1}, 14')
    A.I(f's_cbranch_scc1 {lq}')
    A.I(f's_sleep {int(os.environ.get("SLP", 12))}')
    A.br(f's_branch {lq}')
    A.label(lgo)
    A.I(f'v_mov_b32 v6, s{S_T3}')
    A.I(f'v_mov_b32 v7, 156000')
    A.I('ds_write_b32 v7, v6')
    A.I('s_waitcnt lgkmcnt(0)')
    A.label(ldec)
    A.I('s_barrier')
    A.I(f'v_mov_b32 v7, 156000')
    A.I('ds_read_b32 v6, v7')
    A.I('s_waitcnt lgkmcnt(0)')
    A.I(f'v_readfirstlane_b32 s{S_T0}, v6')
    A.I(f's_cmp_eq_u32 s{S_T0}, 1')
    A.br(f's_cbranch_scc1 {lq2}')
    lch = A.newlabel('L_ch')
    A.I(f's_mov_b32 s{S_NX}, s{S_T0}')
    A.I(f's_cmp_lg_u32 s{S_T0}, 3')
    A.br(f's_cbranch_scc1 {lch}')
    for rnd in range(4):
        lpr = A.newlabel('L_pr')
        A.I(f's_cmp_lg_u32 s{S_PRE}, {rnd}')
        A.br(f's_cbranch_scc1 {lpr}')
        g2_pre(A, rnd)
        A.br(f's_branch {L}')
        A.label(lpr)
    A.label(lch)
    ts_tok(A, 16)
    g1_chunk(A, S_K1, l_exit)
    A.I(f's_add_u32 s{S_K1}, s{S_K1}, 1')
    if CODET:
        lct = A.newlabel('L_ct')
        A.I(f's_cmp_lg_u32 s{S_K1}, 12')
        A.br(f's_cbranch_scc1 {lct}')
        A.I(f's_lshl_b32 s{S_T0}, s{S_H}, 2')
        A.I(f's_add_u32 s{S_T0}, s{S_T0}, s{S_WV}')
        A.I(f's_cmp_lg_u32 s{S_T0}, 7')
        A.br(f's_cbranch_scc1 {L}')
        code_touch(A, L, l_exit, TAIL_BYTES, 5, 143)
        A.br(f's_branch {L}')
        A.label(lct)
    lw2 = A.newlabel('L_w2')
    A.I(f's_cmp_lg_u32 s{S_K1}, 3')
    A.br(f's_cbranch_scc1 {lw2}')
    for k in range(5):
        g2_dma(A, k)
    A.label(lw2)
    A.I(f's_cmp_lg_u32 s{S_NX}, 4')
    A.br(f's_cbranch_scc1 {L}')
    A.I(f's_mov_b32 s{S_NX}, 2')
    A.I('s_barrier')
    A.br(f's_branch {lch}')
    A.label(lq2)
    ts_tok(A, 10)
    T.att_load_mem(A, S_SEG, 'sc1')
    A.I('s_waitcnt vmcnt(0)')
    ts_tok(A, 11)
    A.check = True
    A.forget_loads()
    T.att_compute1(A)
    T.att_xchg(A, L_RED)
    saved_ = (list(A.vm), list(A.lg))
    lc1, lc2 = A.newlabel('L_c2s'), A.newlabel('L_c2e')
    A.I(f's_cmp_eq_u32 s{S_FAST}, 0')
    A.br(f's_cbranch_scc1 {lc1}')
    T.att_compute2(A, S_OPS, '')
    A.br(f's_branch {lc2}')
    A.label(lc1)
    A.vm, A.lg = saved_
    T.att_compute2(A, S_OPS, 'sc1')
    A.label(lc2)
    ts_tok(A, 12)
    A.I('s_waitcnt vmcnt(0)')
    A.I('s_barrier')
    ts_tok(A, 13)
    A.I(f's_lshl_b32 s{S_CA}, s{S_SEG}, 7')
    A.I(f's_add_u32 s{S_CA}, s{S_CA}, 0x{F_OPC:x}')
    l0 = A.newlabel('L_n0')
    A.I(f's_cmp_lg_u32 s{S_WV}, 0')
    A.br(f's_cbranch_scc1 {l0}')
    A.I(f's_lshl_b32 s{S_T1}, s{S_H}, 2')
    A.I(f's_add_u32 s{S_T1}, s{S_T1}, s{S_CA}')
    flag_store(A, S_T1, 6)
    poll_flags(A, S_CA, 32, 1, 6, 7, l_exit)
    A.label(l0)
    A.I('s_barrier')
    ts_tok(A, 14)
    red4(A, S_SEG, sx, l_exit)
    A.I(f's_ff1_i32_b64 s{S_SEG}, s[{S_MSK}:{S_MSK + 1}]')
    A.I(f's_bitset0_b64 s[{S_MSK}:{S_MSK + 1}], s{S_SEG}')
    lnn = A.newlabel('L_nn')
    A.I(f's_cmp_lt_u32 s{S_SEG}, 64')
    A.br(f's_cbranch_scc1 {lnn}')
    A.I(f's_mov_b32 s{S_SEG}, 999')
    ts_tok(A, 3)
    A.br(f's_branch {L}')
    A.label(lnn)
    lav = A.newlabel('L_av')
    A.I(f's_cmp_gt_u32 s{S_AV}, s{S_SEG}')
    A.br(f's_cbranch_scc1 {lav}')
    R.kv_wait(A, l_exit, S_SEG, 192, s_av=S_AV, s_base=S_PB, sleep=4, vlane16=1)
    A.label(lav)
    T.att_load_qkv(A, S_SEG)
    x_prefetch(A, S_SEG, sx)
    A.br(f's_branch {L}')
    A.label(L_fin)
    A.forget_loads()
    ts_tok(A, 4)
    g1_epilogue(A, l_exit)
    A.I(f's_add_u32 s{S_G}, s{S_G}, 1')
    tstamp(A, 17)
    A.label(l_g2)
    A.forget_loads()
    g2_main(A, l_exit)
    tstamp(A, 6, 8)
    if DIAG:
        A.I(f's_add_u32 s{S_T0}, s{S_G}, s{S_H}')
        A.I(f's_add_u32 s{S_T0}, s{S_T0}, s{S_WV}')
        A.I(f's_cmp_lg_u32 s{S_T0}, 0')
        A.br(f's_cbranch_scc1 {l_exit}')
        A.I('s_memrealtime s[80:81]')
        A.I('s_waitcnt lgkmcnt(0)')
        A.I('s_sub_u32 s80, s80, s58')
        A.I('v_mov_b32 v8, s60')
        A.I('v_mov_b32 v9, s61')
        A.I('v_mov_b32 v10, s80')
        A.I('v_mov_b32 v11, 0')
        if os.environ.get('DIAG2'):
            A.I(f'buffer_store_dword v9, off, {dbg}, 0 offset:32')
        else:
            A.I(f'buffer_store_dwordx4 v[8:11], off, {dbg}, 0 offset:48')
    A.label(l_exit)
    A.I('s_endpgm')


S_MSK = 56
S_OPS = 47


def seg_masks():
    c1, c2 = int(os.environ.get('C1', 14)), int(os.environ.get('C2', 27))
    m = [0] * 7
    last = {g: -100 for g in range(7)}
    for s_ in range(64):
        cand = [4, 5, 6] if s_ < c1 else ([4, 5, 6, 0, 1] if s_ < c2 else list(range(7)))
        g = min(cand, key=lambda x: last[x])
        last[g] = s_
        m[g] |= 1 << s_
    return m


def j2_calc(A):
    A.I(f's_lshr_b32 s{S_T0}, s{S_G}, 1')
    A.I(f's_lshl_b32 s{S_T0}, s{S_T0}, 3')
    A.I(f's_lshr_b32 s{S_T1}, s{S_H}, 2')
    A.I(f's_add_u32 s{S_T0}, s{S_T0}, s{S_T1}')
    A.I(f's_lshl_b32 s{S_J2}, s{S_T0}, 3')
    A.I(f's_and_b32 s{S_T0}, s{S_G}, 1')
    A.I(f's_lshl_b32 s{S_T0}, s{S_T0}, 2')
    A.I(f's_and_b32 s{S_T1}, s{S_H}, 3')
    A.I(f's_add_u32 s{S_T0}, s{S_T0}, s{S_T1}')
    A.I(f's_add_u32 s{S_J2}, s{S_J2}, s{S_T0}')


def code_touch(A, l_from, l_end, nbytes, vd, va):
    lh = A.newlabel('L_pc')
    A.I('s_getpc_b64 s[80:81]')
    A.raw(f'{lh}:')
    A.raw(f'    s_sub_u32 s80, s80, {lh}-{l_from}')
    A.raw('    s_subb_u32 s81, s81, 0')
    A.I(f'v_lshlrev_b32 v{va}, 7, v0')
    for i in range(0, nbytes, 8192):
        A.raw(f'    v_min_u32 v{va}, {l_end}-{l_from}, v{va}')
        A.raw(f'    global_load_dword v{vd}, v{va}, s[80:81]')
        A.I(f'v_add_u32 v{va}, 8192, v{va}')


def x_prefetch(A, s_seg, sx):
    A.I('v_lshrrev_b32 v6, 2, v0')
    A.I('v_lshlrev_b32 v6, 6, v6')
    A.I('v_and_b32 v7, 3, v0')
    A.I('v_lshl_add_u32 v6, v7, 3, v6')
    A.I(f's_lshl_b32 s{S_T3}, s{s_seg}, 5')
    A.I(f's_add_u32 s{S_T3}, s{S_T3}, s{S_H}')
    A.I(f's_lshl_b32 s{S_T3}, s{S_T3}, 10')
    A.I(f'buffer_load_dwordx2 v[12:13], v6, {sx}, s{S_T3} offen')
    A.I(f'buffer_load_dwordx2 v[14:15], v6, {sx}, s{S_T3} offen offset:32')


def ts_tok(A, i):
    if TIMING:
        A.I(f's_add_u32 s{S_G}, s{S_G}, 1')
        tstamp(A, i, 14 if i in (1, 2, 7, 8) else 6)
        A.I(f's_sub_u32 s{S_G}, s{S_G}, 1')


G1ACC = 120
G1T = 144
L_G1 = 0
L_RED = 65536
L_W2 = 73728


def g1_lane(A):
    t = G1T
    A.I(f'v_lshrrev_b32 v{t}, 3, v0')
    A.I(f'v_and_b32 v{t + 1}, 7, v0')
    A.I(f'v_bfe_u32 v{t + 2}, v0, 4, 1')
    A.I(f's_and_b32 s{S_T0}, s{S_WV}, 1')
    A.I(f's_lshl_b32 s{S_T0}, s{S_T0}, 1')
    A.I(f'v_or_b32 v{t + 2}, s{S_T0}, v{t + 2}')
    A.I(f'v_lshlrev_b32 v{t + 2}, 1, v{t + 2}')
    A.I(f'v_xor_b32 v{t + 1}, v{t + 1}, v{t + 2}')
    A.I(f'v_lshlrev_b32 v{t + 1}, 4, v{t + 1}')
    A.I(f'v_mul_u32_u24 v136, 3584, v{t}')
    A.I(f'v_add_u32 v136, v136, v{t + 1}')
    A.I(f'v_lshl_add_u32 v137, v{t}, 10, v{t + 1}')
    A.I(f'v_and_b32 v{t}, 15, v0')
    A.I(f'v_lshrrev_b32 v{t + 1}, 4, v0')
    A.I(f'v_lshrrev_b32 v{t + 2}, 2, v{t}')
    A.I(f'v_and_b32 v{t + 3}, 3, v{t}')
    A.I(f'v_lshl_add_u32 v{t + 4}, v{t + 1}, 3, v{t + 2}')
    A.I(f'v_lshlrev_b32 v{t + 4}, 7, v{t + 4}')
    A.I(f'v_lshl_add_u32 v{t + 4}, v{t + 3}, 3, v{t + 4}')
    A.I(f'v_lshrrev_b32 v{t + 5}, 1, v{t + 2}')
    A.I(f'v_and_b32 v{t + 6}, 1, v{t + 1}')
    A.I(f'v_lshl_add_u32 v{t + 5}, v{t + 6}, 1, v{t + 5}')
    A.I(f'v_xor_b32 v{t + 6}, s{S_T0}, v{t + 5}')
    A.I(f'v_lshl_add_u32 v138, v{t + 6}, 5, v{t + 4}')
    A.I(f'v_xor_b32 v139, 32, v138')
    A.I(f's_and_b32 s{S_T0}, s{S_WV}, 2')
    A.I(f'v_xor_b32 v{t + 6}, s{S_T0}, v{t + 5}')
    A.I(f'v_lshl_add_u32 v140, v{t + 6}, 5, v{t + 4}')
    A.I(f'v_add_u32 v140, 16384, v140')
    A.I(f'v_xor_b32 v141, 32, v140')


def g1_w1_dma(A, s_k, first=False, plus=0):
    if first:
        g1_lane(A)
    w1 = f's[{S_W1}:{S_W1 + 3}]'
    A.I(f's_add_u32 s{S_T2}, s{s_k}, {plus}')
    A.I(f's_mul_i32 s{S_T0}, s{S_T2}, {128 * 3584}')
    A.I(f's_mul_i32 s{S_T1}, s{S_WV}, {8 * 3584}')
    A.I(f's_add_u32 s{S_T0}, s{S_T0}, s{S_T1}')
    A.I(f's_lshr_b32 s{S_T1}, s{S_J}, 3')
    A.I(f's_lshl_b32 s{S_T1}, s{S_T1}, 7')
    A.I(f's_add_u32 s{S_T0}, s{S_T0}, s{S_T1}')
    A.I(f's_and_b32 s{S_T1}, s{S_T2}, 1')
    A.I(f's_lshl_b32 s{S_T1}, s{S_T1}, 15')
    A.I(f's_lshl_b32 s{S_T2}, s{S_WV}, 10')
    A.I(f's_add_u32 s{S_T1}, s{S_T1}, s{S_T2}')
    for i in range(4):
        A.I(f's_add_u32 m0, s{S_T1}, {L_G1 + i * 4096}')
        A.I(f's_add_u32 s{S_T2}, s{S_T0}, {i * 32 * 3584}')
        A.I(f'buffer_load_dwordx4 v136, {w1}, s{S_T2} offen lds')


def g1_chunk(A, s_k, l_exit):
    ws = f's[{S_WS}:{S_WS + 3}]'
    A.I(f's_lshl_b32 s{S_T0}, s{s_k}, 17')
    A.I(f's_lshl_b32 s{S_T1}, s{S_WV}, 13')
    A.I(f's_add_u32 s{S_T0}, s{S_T0}, s{S_T1}')
    A.I(f's_and_b32 s{S_T1}, s{S_J}, 7')
    A.I(f's_lshl_b32 s{S_T1}, s{S_T1}, 7')
    A.I(f's_add_u32 s{S_T0}, s{S_T0}, s{S_T1}')
    A.I(f's_add_u32 s{S_T0}, s{S_T0}, 0x{WS_HP:x}')
    A.I(f's_and_b32 s{S_T3}, s{s_k}, 1')
    A.I(f's_lshl_b32 s{S_T3}, s{S_T3}, 15')
    A.I(f's_lshl_b32 s{S_T2}, s{S_WV}, 10')
    A.I(f's_add_u32 s{S_T1}, s{S_T3}, s{S_T2}')
    for i in range(4):
        A.I(f's_add_u32 m0, s{S_T1}, {L_G1 + 16384 + i * 4096}')
        A.I(f's_add_u32 s{S_T2}, s{S_T0}, {i * 32 * 1024}')
        A.I(f'buffer_load_dwordx4 v137, {ws}, s{S_T2} offen lds')
    AD = G1T
    for j in range(4):
        A.I(f'v_add_u32 v{AD + j}, s{S_T3}, v{138 + j}')
    l13, l14 = A.newlabel('L_13'), A.newlabel('L_14')
    A.I(f's_cmp_eq_u32 s{s_k}, 15')
    A.br(f's_cbranch_scc1 {l13}')
    g1_w1_dma(A, s_k, plus=1)
    A.br(f's_branch {l14}')
    A.label(l13)
    A.I(f's_lshr_b32 s{S_T2}, s{S_J}, 3')
    A.I(f's_lshl_b32 s{S_T0}, s{S_T2}, 7')
    A.I(f's_and_b32 s{S_T1}, s{S_WV}, 1')
    A.I(f's_lshl_b32 s{S_T1}, s{S_T1}, 6')
    A.I(f's_add_u32 s{S_T0}, s{S_T0}, s{S_T1}')
    A.I('v_lshrrev_b32 v20, 4, v0')
    A.I('v_lshlrev_b32 v20, 3, v20')
    A.I(f'buffer_load_dwordx2 v[16:17], v20, s[{S_B1}:{S_B1 + 3}], s{S_T0} offen')
    A.I(f'buffer_load_dwordx2 v[18:19], v20, s[{S_B1}:{S_B1 + 3}], s{S_T0} offen offset:32')
    g2_dma(A, 13)
    A.label(l14)
    A.I('s_waitcnt vmcnt(4)')
    A.I('s_barrier')
    FR = G1T + 8

    def rd(ks):
        for j in range(4):
            for x in range(2):
                A.I(f'ds_read_b64_tr_b16 {v(FR + 16 * ks + 4 * j + 2 * x, 2)}, v{AD + j} offset:{L_G1 + (32 * ks + 4 * x) * 128}')

    rd(0)
    for ks in range(4):
        if ks < 3:
            rd(ks + 1)
            A.I('s_waitcnt lgkmcnt(8)')
        else:
            A.I('s_waitcnt lgkmcnt(0)')
        f = FR + 16 * ks
        for mbp in range(2):
            for nbp in range(2):
                d = G1ACC + (mbp * 2 + nbp) * 4
                A.I(f'v_mfma_f32_16x16x32_bf16 {v(d, 4)}, {v(f + 4 * mbp, 4)}, {v(f + 8 + 4 * nbp, 4)}, {v(d, 4)}')


def g1_epilogue(A, l_exit):
    import math
    ws, b1 = f's[{S_WS}:{S_WS + 3}]', f's[{S_B1}:{S_B1 + 3}]'
    ACC, BI, Z, Pk, TT, O = G1ACC, 150, 160, 168, 172, 188
    A.I(f's_lshr_b32 s{S_T2}, s{S_J}, 3')
    A.I(f's_and_b32 s{S_T0}, s{S_J}, 7')
    A.I(f's_lshl_b32 s{S_T0}, s{S_T0}, 2')
    A.I(f's_and_b32 s{S_T1}, s{S_WV}, 2')
    A.I(f's_add_u32 s{S_T0}, s{S_T0}, s{S_T1}')
    A.I(f's_mul_i32 s{S_T0}, s{S_T0}, 56')
    A.I(f's_lshl_b32 s{S_T1}, s{S_T2}, 1')
    A.I(f's_add_u32 s{S_T0}, s{S_T0}, s{S_T1}')
    A.I(f's_and_b32 s{S_T1}, s{S_WV}, 1')
    A.I(f's_add_u32 s{S_T0}, s{S_T0}, s{S_T1}')
    A.I(f's_lshl_b32 s{S_T0}, s{S_T0}, 10')
    A.I(f's_add_u32 s{S_T0}, s{S_T0}, 0x{WS_U:x}')
    k1 = -2 * math.sqrt(2 / math.pi) * math.log2(math.e)
    A.I(f's_mov_b32 s{S_T2}, {f32(k1)}')
    A.I(f's_mov_b32 s{S_T3}, {f32(k1 * 0.044715)}')
    A.I('v_lshlrev_b32 v145, 4, v0')
    for i in range(4):
        A.I(f'v_lshlrev_b32 v{BI + 2 * i}, 16, v{16 + i}')
        A.I(f'v_and_b32 v{BI + 2 * i + 1}, 0xffff0000, v{16 + i}')
    for nbp in range(2):
        for mbp in range(2):
            for r in range(4):
                A.I(f'v_mov_b32 v{Z + 4 * mbp + r}, v{ACC + (mbp * 2 + nbp) * 4 + r}')
        T.round_bf16(A, Z, Pk)
        for i in range(8):
            A.I(f'v_add_f32 v{Z + i}, v{Z + i}, v{BI + i}')
        T.round_bf16(A, Z, Pk)
        for i in range(8):
            t = TT + i
            A.I(f'v_mul_f32 v{t}, v{Z + i}, v{Z + i}')
            A.I(f'v_mov_b32 v{t + 8}, s{S_T2}')
            A.I(f'v_fmac_f32 v{t + 8}, s{S_T3}, v{t}')
            A.I(f'v_mul_f32 v{t}, v{t + 8}, v{Z + i}')
            A.I(f'v_exp_f32 v{t}, v{t}')
        for i in range(8):
            A.I(f'v_add_f32 v{TT + i}, 1.0, v{TT + i}')
            A.I(f'v_rcp_f32 v{TT + i}, v{TT + i}')
        for i in range(8):
            A.I(f'v_mul_f32 v{Z + i}, v{Z + i}, v{TT + i}')
        o = O + 4 * nbp
        for i in range(4):
            A.I(f'v_cvt_pk_bf16_f32 v{o + i}, v{Z + 2 * i}, v{Z + 2 * i + 1}')
        A.I(f'buffer_store_dwordx4 {v(o, 4)}, v145, {ws}, s{S_T0} offen sc1')
        A.I(f's_add_u32 s{S_T0}, s{S_T0}, {56 * 1024}')
    A.I('s_waitcnt vmcnt(0)')
    A.I('s_barrier')
    l = A.newlabel('L_ue')
    A.I(f's_cmp_lg_u32 s{S_WV}, 0')
    A.br(f's_cbranch_scc1 {l}')
    A.I(f's_lshl_b32 s{S_T2}, s{S_G}, 7')
    A.I(f's_add_u32 s{S_T2}, s{S_T2}, 0x{F_LU:x}')
    A.I(f's_lshl_b32 s{S_T3}, s{S_G}, 2')
    A.I(f's_add_u32 s{S_T3}, s{S_T3}, 0x{F_GF + 256:x}')
    garrive(A, S_T2, S_T3, 144, l_exit)
    A.label(l)


G2_SLOT = {0: 0, 1: 1, 2: 2, 3: 3, 4: 4, 5: 0, 6: 1, 7: 2, 8: 3, 9: 4, 10: 0, 11: 1, 12: 2, 13: 0}
G2_READ = [[0, 1, 2, 3, 4], [5, 6, 7], [8, 9, 10, 11, 12], [13]]
G2_NEXT = [[5, 6, 7, 8, 9], [10, 11, 12], [], []]


def g2_slot(k):
    return 0 if k == 13 else L_W2 + 16384 * G2_SLOT[k]


def g2_areg(k):
    return (128 + 16 * k) if k < 8 else 16 * (k - 8)


S_PRE = 62


def g2_pre(A, rnd):
    t = G1T
    A.I(f'v_and_b32 v{t}, 15, v0')
    A.I(f'v_lshrrev_b32 v{t + 1}, 4, v0')
    A.I(f'v_lshrrev_b32 v{t + 2}, 2, v{t}')
    A.I(f'v_and_b32 v{t + 3}, 3, v{t}')
    A.I(f'v_lshl_add_u32 v{t + 2}, v{t + 1}, 2, v{t + 2}')
    A.I(f'v_bfe_u32 v{t + 1}, v{t + 2}, 1, 2')
    A.I(f'v_lshlrev_b32 v{t + 2}, 7, v{t + 2}')
    A.I(f'v_lshl_add_u32 v{t + 2}, v{t + 3}, 3, v{t + 2}')
    A.I(f'v_lshl_add_u32 v{t + 2}, v{t + 1}, 5, v{t + 2}')
    A.I(f's_lshl_b32 s{S_T0}, s{S_WV}, 12')
    A.I(f's_add_u32 s{S_T0}, s{S_T0}, {L_W2}')
    for j in range(4):
        A.I(f'v_xor_b32 v{t + 4 + j}, {32 * j}, v{t + 2}')
        A.I(f'v_add_u32 v{t + 4 + j}, s{S_T0}, v{t + 4 + j}')
        A.I(f'v_add_u32 v{t + 8 + j}, 49152, v{t + 4 + j}')
    A.I('s_waitcnt vmcnt(0)')
    A.I('s_barrier')
    for k in G2_READ[rnd]:
        so = 16384 * G2_SLOT[k]
        ab = t + 4
        if so >= 49152:
            so -= 49152
            ab = t + 8
        if k == 13:
            so = 0
            for j in range(4):
                A.I(f'v_subrev_u32 v{ab + j}, {L_W2}, v{ab + j}')
        for j in range(4):
            for x in range(2):
                A.I(f'ds_read_b64_tr_b16 {a(g2_areg(k) + 4 * j + 2 * x, 2)}, v{ab + j} offset:{so + 16 * x * 128}')
        A.I('s_waitcnt lgkmcnt(4)')
    A.I('s_waitcnt lgkmcnt(0)')
    if G2_NEXT[rnd]:
        A.I('s_barrier')
        for k in G2_NEXT[rnd]:
            g2_dma(A, k)
    A.I(f's_mov_b32 s{S_PRE}, {rnd + 1}')


def g2_setup(A):
    A.I(f's_load_dwordx2 s[16:17], s[0:1], {KA_W2}')
    A.I('s_waitcnt lgkmcnt(0)')
    make_srd(A, S_W2, 16, 1792 * 4096)
    A.I(f's_load_dwordx4 s[16:19], s[0:1], {KA_B2}')
    A.I('s_waitcnt lgkmcnt(0)')
    t = G1T
    A.I(f'v_lshrrev_b32 v{t}, 3, v0')
    A.I(f'v_and_b32 v{t + 1}, 7, v0')
    A.I(f'v_lshrrev_b32 v{t + 2}, 4, v0')
    A.I(f'v_lshlrev_b32 v{t + 2}, 1, v{t + 2}')
    A.I(f'v_xor_b32 v{t + 1}, v{t + 1}, v{t + 2}')
    A.I(f'v_lshlrev_b32 v{t + 1}, 4, v{t + 1}')
    A.I(f'v_lshl_add_u32 v142, v{t}, 12, v{t + 1}')
    A.I(f's_lshl_b32 s{S_BO2}, s{S_WV}, 15')
    A.I(f's_lshr_b32 s{S_T0}, s{S_J2}, 3')
    A.I(f's_lshl_b32 s{S_T0}, s{S_T0}, 7')
    A.I(f's_add_u32 s{S_BO2}, s{S_BO2}, s{S_T0}')
    A.I(f's_lshl_b32 s{S_LB2}, s{S_WV}, 10')


def g2_dma(A, k, vr=142):
    w2 = f's[{S_W2}:{S_W2 + 3}]'
    for i in range(4):
        A.I(f's_add_u32 m0, s{S_LB2}, {g2_slot(k) + i * 4096}')
        A.I(f's_add_u32 s{S_T0}, s{S_BO2}, {(k * 128 + i * 32) * 4096}')
        A.I(f'buffer_load_dwordx4 v{vr}, {w2}, s{S_T0} offen lds')


def g2_touch(A, k0):
    w2 = f's[{S_W2}:{S_W2 + 3}]'
    A.I('v_lshlrev_b32 v143, 12, v0')
    A.I(f's_lshr_b32 s{S_T0}, s{S_J2}, 3')
    A.I(f's_lshl_b32 s{S_T0}, s{S_T0}, 7')
    A.I(f's_lshl_b32 s{S_T1}, s{S_WV}, 18')
    A.I(f's_add_u32 s{S_T0}, s{S_T0}, s{S_T1}')
    for r0 in range(k0 * 128, 1792, 256):
        A.I(f's_add_u32 s{S_T1}, s{S_T0}, {r0 * 4096}')
        A.I(f'buffer_load_dword v5, v143, {w2}, s{S_T1} offen')


def g2_main(A, l_exit):
    ws = f's[{S_WS}:{S_WS + 3}]'
    S_O, S_B2 = S_W1, S_B1
    tstamp(A, 20, 8)
    for rnd in range(4):
        l = A.newlabel('L_pre')
        A.I(f's_cmp_gt_u32 s{S_PRE}, {rnd}')
        A.br(f's_cbranch_scc1 {l}')
        g2_pre(A, rnd)
        A.label(l)
        A.forget_loads()
    A.I('s_waitcnt lgkmcnt(0)')
    make_srd(A, S_B2, 16, 4096)
    make_srd(A, S_O, 18, 2048 * 1024)
    b2, out = f's[{S_B2}:{S_B2 + 3}]', f's[{S_O}:{S_O + 3}]'
    S_AO, S_EO = 36, 37
    A.I(f's_and_b32 s{S_T0}, s{S_J2}, 7')
    A.I(f's_mul_i32 s{S_AO}, s{S_T0}, {4 * 56 * 1024}')
    A.I(f's_lshl_b32 s{S_T1}, s{S_WV}, 10')
    A.I(f's_add_u32 s{S_AO}, s{S_AO}, s{S_T1}')
    A.I(f's_add_u32 s{S_AO}, s{S_AO}, 0x{WS_U:x}')
    A.I(f's_lshl_b32 s{S_T0}, s{S_T0}, 2')
    A.I(f's_add_u32 s{S_T0}, s{S_T0}, s{S_WV}')
    A.I(f's_lshr_b32 s{S_T1}, s{S_J2}, 3')
    A.I(f's_lshl_b32 s{S_EO}, s{S_T1}, 16')
    A.I(f's_lshl_b32 s{S_T0}, s{S_T0}, 5')
    A.I(f's_add_u32 s{S_EO}, s{S_EO}, s{S_T0}')
    A.I('v_lshlrev_b32 v5, 4, v0')
    A.I('v_and_b32 v1, 15, v0')
    A.I('v_lshrrev_b32 v2, 4, v0')
    A.I('v_lshlrev_b32 v3, 10, v1')
    A.I('v_lshl_add_u32 v3, v2, 3, v3')
    A.I('v_lshlrev_b32 v4, 1, v1')
    A.I(f's_lshl_b32 s{S_T1}, s{S_T1}, 7')
    HB, BB, ACC, AR = 10, 18, 24, 88
    NA = 42
    A.I(f's_mov_b32 s39, s{S_T1}')
    masks = seg_masks()
    late = [g for g in range(7) if masks[g] >> 61] if os.environ.get('TWOPH') else []
    earlyg = [g for g in range(7) if g not in late]
    korder = [k for g in earlyg + late for k in (2 * g, 2 * g + 1)]
    nearly = min(8 * len(earlyg), NA)
    S_FL = 38
    A.I(f's_lshl_b32 s{S_FL}, s{S_G}, 9')
    A.I(f's_add_u32 s{S_FL}, s{S_FL}, 0x{F_GF + 256:x}')

    def wait_groups(gs):
        l0 = A.newlabel('L_g20')
        A.I(f's_cmp_lg_u32 s{S_WV}, 0')
        A.br(f's_cbranch_scc1 {l0}')
        A.check = False
        poll_flags(A, S_FL, 7, 1, 6, 7, l_exit, sleep=1, mask=sum(1 << g for g in gs))
        A.check = True
        A.label(l0)
        A.I('s_barrier')

    tstamp(A, 21, 8)
    wait_groups(earlyg)
    tstamp(A, 5, 8)
    vmq = []

    def aload(i):
        k, db = korder[i >> 2], i & 3
        off = db * 56 * 1024 + k * 4096
        A.I(f's_add_u32 s{S_T1}, s{S_AO}, {off}')
        A.I(f'buffer_load_dwordx4 {v(AR + 4 * (i % NA), 4)}, v5, {ws}, s{S_T1} offen')
        vmq.append(('a', i))

    def need(names):
        idx = max([i for i, p in enumerate(vmq) if p in names] + [-1])
        if idx >= 0:
            A.I(f's_waitcnt vmcnt({len(vmq) - 1 - idx})')
            del vmq[:idx + 1]

    PD = int(os.environ.get('PD', 20))
    for i in range(PD):
        aload(i)
    tstamp(A, 19, 8)
    nxt = PD
    for i in range(56):
        k, db = korder[i >> 2], i & 3
        need([('a', i)])
        for nb in range(4):
            d = ACC + 16 * db + 4 * nb
            c = '0' if i < 4 else v(d, 4)
            A.I(f'v_mfma_f32_16x16x32_bf16 {v(d, 4)}, {v(AR + 4 * (i % NA), 4)}, {a(g2_areg(k) + 4 * nb, 4)}, {c}')
            if nb in (0, 2) and nxt < 56 and nxt - i < NA - 1 and (nb == 0 or nxt - i < int(os.environ.get('PD2', 32))):
                aload(nxt)
                nxt += 1
                if nxt == 56:
                    for q in range(4):
                        A.I(f's_add_u32 s{S_T0}, s{S_EO}, 0x{WS_H + q * 16384:x}')
                        A.I(f'buffer_load_dwordx2 {v(HB + 2 * q, 2)}, v3, {ws}, s{S_T0} offen')
                        vmq.append(('h', 0))
                        A.I(f'buffer_load_ushort v{BB + q}, v4, {b2}, s39 offen offset:{32 * q}')
                        vmq.append(('h', 0))
    A.I(f's_lshl_b32 s{S_T0}, s{S_WV}, 12')
    A.I(f'v_add_u32 v6, s{S_T0}, v5')
    for db in range(4):
        for nb in range(4):
            A.I(f'ds_write_b128 v6, {v(ACC + 16 * db + 4 * nb, 4)} offset:{db * 16384 + nb * 1024}')
        A.I('s_waitcnt lgkmcnt(8)')
    A.I(f's_lshl_b32 s{S_T0}, s{S_WV}, 14')
    A.I(f'v_add_u32 v6, s{S_T0}, v5')
    A.I('s_waitcnt lgkmcnt(0)')
    A.I('s_barrier')
    for j in range(16):
        A.I(f'ds_read_b128 {v(ACC + 4 * j, 4)}, v6 offset:{1024 * j}')
        if j == 11:
            A.I('s_waitcnt lgkmcnt(8)')
    A.I('s_waitcnt lgkmcnt(0) vmcnt(0)')
    tstamp(A, 18, 8)
    for r in range(0, 16, 2):
        A.I(f'v_pk_add_f32 {v(ACC + r, 2)}, {v(ACC + r, 2)}, {v(ACC + 16 + r, 2)}')
        A.I(f'v_pk_add_f32 {v(ACC + 32 + r, 2)}, {v(ACC + 32 + r, 2)}, {v(ACC + 48 + r, 2)}')
    for r in range(0, 16, 2):
        A.I(f'v_pk_add_f32 {v(ACC + r, 2)}, {v(ACC + r, 2)}, {v(ACC + 32 + r, 2)}')
    for nb in range(4):
        d = ACC + 4 * nb
        t = 88
        A.I(f'v_cvt_pk_bf16_f32 v{t}, v{d}, v{d + 1}')
        A.I(f'v_cvt_pk_bf16_f32 v{t + 1}, v{d + 2}, v{d + 3}')
        A.I(f'v_lshlrev_b32 v{t + 2}, 16, v{BB + nb}')
        for i in range(2):
            A.I(f'v_lshlrev_b32 v{d + 2 * i}, 16, v{t + i}')
            A.I(f'v_and_b32 v{d + 2 * i + 1}, 0xffff0000, v{t + i}')
        for r in range(4):
            A.I(f'v_add_f32 v{d + r}, v{d + r}, v{t + 2}')
        A.I(f'v_cvt_pk_bf16_f32 v{t}, v{d}, v{d + 1}')
        A.I(f'v_cvt_pk_bf16_f32 v{t + 1}, v{d + 2}, v{d + 3}')
        for i in range(2):
            A.I(f'v_lshlrev_b32 v{d + 2 * i}, 16, v{t + i}')
            A.I(f'v_and_b32 v{d + 2 * i + 1}, 0xffff0000, v{t + i}')
            A.I(f'v_lshlrev_b32 v{t + 2}, 16, v{HB + 2 * nb + i}')
            A.I(f'v_and_b32 v{t + 3}, 0xffff0000, v{HB + 2 * nb + i}')
            A.I(f'v_add_f32 v{d + 2 * i}, v{d + 2 * i}, v{t + 2}')
            A.I(f'v_add_f32 v{d + 2 * i + 1}, v{d + 2 * i + 1}, v{t + 3}')
        o = 92 + 2 * nb
        A.I(f'v_cvt_pk_bf16_f32 v{o}, v{d}, v{d + 1}')
        A.I(f'v_cvt_pk_bf16_f32 v{o + 1}, v{d + 2}, v{d + 3}')
        A.I(f's_add_u32 s{S_T0}, s{S_EO}, {nb * 16384}')
        A.I(f'buffer_store_dwordx2 {v(o, 2)}, v3, {out}, s{S_T0} offen')


def red4(A, s_seg, srd_x, l_exit):
    ws = f's[{S_WS}:{S_WS + 3}]'
    B, Z, Pk, XR, t0, t1, va = 192, 144, 152, 12, 160, 161, 162
    A.I(f's_lshl_b32 s{S_T2}, s{s_seg}, 5')
    A.I(f's_add_u32 s{S_T2}, s{S_T2}, s{S_H}')
    A.I(f's_lshl_b32 s{S_T0}, s{S_OPS}, 5')
    A.I(f's_add_u32 s{S_T0}, s{S_T0}, s{S_H}')
    A.I(f's_lshl_b32 s{S_T0}, s{S_T0}, 15')
    A.I(f's_xor_b32 s{S_OPS}, s{S_OPS}, 1')
    A.I(f's_lshl_b32 s{S_T1}, s{S_WV}, 13')
    A.I(f's_add_u32 s{S_T0}, s{S_T0}, s{S_T1}')
    A.I(f's_add_u32 s{S_T0}, s{S_T0}, 0x{WS_OP:x}')
    A.I(f's_add_u32 s{S_T1}, s{S_T0}, 4096')
    for hh in range(8):
        so = S_T0 if hh < 4 else S_T1
        A.I(f'buffer_load_dwordx4 {v(B + 4 * hh, 4)}, v1, {ws}, s{so} offen offset:{1024 * (hh & 3)} sc1')
    A.I(f's_lshl_b32 s{S_T3}, s{S_T2}, 10')
    A.I(f'v_lshrrev_b32 v{va}, 2, v0')
    A.I(f'v_lshlrev_b32 v{va}, 6, v{va}')
    A.I(f'v_and_b32 v{t0}, 3, v0')
    A.I(f'v_lshl_add_u32 v{va}, v{t0}, 3, v{va}')
    for hh in range(8):
        A.I(f's_waitcnt vmcnt({7 - hh})')
        for i in range(4):
            r = B + 4 * hh + i
            if hh == 0:
                A.I(f'v_lshlrev_b32 v{Z + 2 * i}, 16, v{r}')
                A.I(f'v_and_b32 v{Z + 2 * i + 1}, 0xffff0000, v{r}')
            else:
                A.I(f'v_lshlrev_b32 v{t0}, 16, v{r}')
                A.I(f'v_and_b32 v{t1}, 0xffff0000, v{r}')
                A.I(f'v_add_f32 v{Z + 2 * i}, v{Z + 2 * i}, v{t0}')
                A.I(f'v_add_f32 v{Z + 2 * i + 1}, v{Z + 2 * i + 1}, v{t1}')
    A.I(f's_lshl_b32 s{S_T0}, s{S_WV}, 11')
    A.I(f'v_add_u32 v{t0}, s{S_T0}, v1')
    A.I(f'v_add_u32 v{t0}, {L_RED}, v{t0}')
    A.I(f'ds_write_b128 v{t0}, {v(Z, 4)}')
    A.I(f'ds_write_b128 v{t0}, {v(Z + 4, 4)} offset:1024')
    A.I('s_waitcnt lgkmcnt(0) vmcnt(0)')
    A.I('s_barrier')
    ts_tok(A, 15)
    l = A.newlabel('L_r4')
    A.I(f's_cmp_lg_u32 s{S_WV}, 0')
    A.br(f's_cbranch_scc1 {l}')
    for w_ in range(1, 4):
        for j in range(2):
            A.I(f'ds_read_b128 {v(B + 8 * w_ + 4 * j, 4)}, v{t0} offset:{2048 * w_ + 1024 * j}')
    A.I('s_waitcnt lgkmcnt(0)')
    for w_ in range(1, 4):
        for i in range(8):
            A.I(f'v_add_f32 v{Z + i}, v{Z + i}, v{B + 8 * w_ + i}')
    T.round_bf16(A, Z, Pk)
    for i in range(4):
        A.I(f'v_lshlrev_b32 v{t0}, 16, v{XR + i}')
        A.I(f'v_and_b32 v{t1}, 0xffff0000, v{XR + i}')
        A.I(f'v_add_f32 v{Z + 2 * i}, v{Z + 2 * i}, v{t0}')
        A.I(f'v_add_f32 v{Z + 2 * i + 1}, v{Z + 2 * i + 1}, v{t1}')
    T.round_bf16(A, Z, Pk)
    A.I(f's_add_u32 s{S_T0}, s{S_T3}, 0x{WS_H:x}')
    A.I(f'buffer_store_dwordx2 {v(Pk, 2)}, v{va}, {ws}, s{S_T0} offen sc1')
    A.I(f'buffer_store_dwordx2 {v(Pk + 2, 2)}, v{va}, {ws}, s{S_T0} offen offset:32 sc1')
    T.ln_regs(A, Z, t0, t1)
    T.round_bf16(A, Z, XR)
    T.ln_regs(A, Z, t0, t1)
    for i in range(4):
        A.I(f'v_cvt_pk_bf16_f32 v{XR + i}, v{Z + 2 * i}, v{Z + 2 * i + 1}')
    A.I(f's_add_u32 s{S_T0}, s{S_T3}, 0x{WS_HP:x}')
    A.I(f'buffer_store_dwordx2 {v(XR, 2)}, v{va}, {ws}, s{S_T0} offen sc1')
    A.I(f'buffer_store_dwordx2 {v(XR + 2, 2)}, v{va}, {ws}, s{S_T0} offen offset:32 sc1')
    A.I(f's_lshl_b32 s{S_T2}, s{s_seg}, 7')
    A.I(f's_add_u32 s{S_T2}, s{S_T2}, 0x{F_LH:x}')
    A.I(f's_lshl_b32 s{S_T3}, s{s_seg}, 2')
    A.I(f's_add_u32 s{S_T3}, s{S_T3}, 0x{F_GF:x}')
    A.I('s_waitcnt vmcnt(0)')
    garrive(A, S_T2, S_T3, t0, l_exit)
    A.label(l)


if __name__ == '__main__':
    A = Asm()
    nm = NAME + '_kernel'
    mega_kernel(A, nm)
    hd = header([(nm, 256, 256, R.L_TOTAL)])
    if os.environ.get('FINAL'):
        hd = hd.replace(f'@launch kernel={nm} ', '@launch ')
    txt = hd + A.text() + '.section .rodata,"a"\n' + kernel_desc(nm, 512, 256)
    out = os.environ.get('OUT', 'm3.s')
    open(out, 'w').write(txt)
    print(len(txt))
```

```python
from common import *
import os, math, struct
STAMPS = bool(os.environ.get('STAMPS'))
NSTEPS = 63
LDF = os.environ.get('LDF', 'sc1').replace('_', ' ')
STF = os.environ.get('STF', '').replace('_', ' ')
EXF = os.environ.get('EXF', 'sc1')
E = lambda k, d: int(os.environ.get(k, d))
TOUCH_AHEAD = E('TOUCH_AHEAD', 1)
PB_DELAY, PB_GAP, AF_DELAY, AF_GAP = E('PB_DELAY', 0), E('PB_GAP', 0), E('AF_DELAY', 0), E('AF_GAP', 3)
OUT = os.environ.get('OUT', 'rec_test.s')

L_QX = 0
L_KX_ = 2560
L_VM = 5120
L_AF = 7168
L_OX = L_AF
L_KV = 15360
L_WO = 31744
L_HALF = 65792
L_TOTAL = L_WO + 2 * L_HALF

PB_GRP = 8448
PB_SLOT = 0x48000

S_WS, S_W, S_DBG = 4, 8, 12
S_H, S_WV, S_STEP = 32, 33, 34
S_SPIN = 35
S_MBR, S_MBW = 36, 37
S_TAG = 47
S_PB0, S_PB1 = 38, 39
S_PB0H = 40
S_AFO = 41
S_TCH = 42
S_KVN = 44
S_KMO, S_VMO = 45, 46
S_T0, S_T1, S_T2, S_T3 = 48, 49, 50, 51
S_C = 52
S_ONE = 54
S_TS = 56
S_M0, S_M1 = 16, 18
S_W640 = 20
S_KVM0 = 62
S_W11 = 63

AF = 0
ACC = 32
KX = 56
VX = 88
T = 96
V_IDX, V_L16, V_QKW, V_QR, V_KR, V_OW, V_WO0, V_WO1, V_PBW, V_RDR, V_MBW, V_SEL, V_VX, V_SP, V_MX, V_TM = range(112, 128)
S_PZ = 43
LANE = 100

LDS_SLOT = {}
_l0 = [('q', 0, 0), ('q', 1, 0), ('q', 0, 1), ('q', 1, 1), ('k', 0, 0), ('k', 1, 0), ('o', 6, 0), ('o', 7, 0)]
_l1 = [('k', 0, 1), ('k', 1, 1), ('k', 0, 2), ('k', 1, 2), ('k', 0, 3), ('k', 1, 3), ('o', 6, 1), ('o', 7, 1)]
for i, f in enumerate(_l0):
    LDS_SLOT[f] = (0, i)
for i, f in enumerate(_l1):
    LDS_SLOT[f] = (1, i)
HOME = {}
_h = 0
for mat in 'qkv':
    for nb in range(2):
        for t in range(8):
            HOME[(mat, nb, t)] = (256 + _h * 8) if _h < 32 else (128 + (_h - 32) * 8)
            _h += 1
for t2 in range(2):
    vac = [f for f, (hf, sl) in LDS_SLOT.items() if hf == t2 and f[0] != 'o']
    assert len(vac) == 6
    for nbo in range(6):
        HOME[('o', nbo, t2)] = HOME[vac[nbo]]


def lds_frag_read(A, f, b):
    hf, sl = LDS_SLOT[f]
    va = V_WO1 if hf else V_WO0
    A.I(f'ds_read_b128 {v(b, 4)}, v{va} offset:{sl * 2048}')
    A.I(f'ds_read_b128 {v(b + 4, 4)}, v{va} offset:{sl * 2048 + 1024}')


def lane_fields(A, vt, vg, vn):
    A.I(f'v_and_b32 v{vn}, 15, v{vt}')
    A.I(f'v_bfe_u32 v{vg}, v{vt}, 4, 2')


def stage_weights(A, ptr_sgprs, hook=None, hook_issue=None, hook_check=None, hook_sc=None):
    g, n = 2, 3
    lane_fields(A, LANE, g, n)
    VD0, VD1 = 4, 5
    A.I(f'v_lshrrev_b32 v6, 5, v{LANE}')
    A.I(f's_and_b32 s{S_T0}, s{S_WV}, 1')
    A.I(f's_lshl_b32 s{S_T0}, s{S_T0}, 1')
    A.I(f'v_or_b32 v6, s{S_T0}, v6')
    A.I(f'v_lshlrev_b32 v6, 1, v6')
    A.I(f'v_xor_b32 v6, v6, v{n}')
    A.I(f'v_lshlrev_b32 v6, 4, v6')
    A.I(f'v_lshlrev_b32 v7, 13, v{g}')
    A.I(f'v_or_b32 v{VD0}, v6, v7')
    A.I(f'v_xor_b32 v{VD1}, 0x80, v{VD0}')
    A.I(f'v_lshrrev_b32 v6, 2, v{n}')
    A.I(f'v_and_b32 v7, 3, v{n}')
    A.I(f'v_and_b32 v8, 1, v6')
    A.I(f'v_lshrrev_b32 v9, 1, v6')
    A.I(f'v_and_b32 v10, 1, v{g}')
    A.I(f'v_lshrrev_b32 v11, 1, v{g}')
    A.I(f'v_lshlrev_b32 v12, 7, v11')
    A.I(f'v_lshl_add_u32 v12, v10, 1, v12')
    A.I(f'v_lshl_add_u32 v12, v8, 4, v12')
    A.I(f'v_lshl_add_u32 v12, v9, 2, v12')
    A.I(f'v_lshl_add_u32 v13, v9, 1, v10')
    A.I(f'v_lshl_add_u32 v13, v8, 2, v13')
    A.I(f's_lshl_b32 s{S_T0}, s{S_WV}, 1')
    A.I(f'v_xor_b32 v13, s{S_T0}, v13')
    A.I(f'v_lshlrev_b32 v14, 8, v12')
    A.I(f'v_lshl_add_u32 v14, v13, 5, v14')
    A.I(f'v_lshl_add_u32 v14, v7, 3, v14')
    VT = {}
    A.I(f'v_xor_b32 v15, 32, v14')
    r = 64
    for cu in range(4):
        A.I(f's_xor_b32 s{S_T0}, s{S_WV}, {cu}')
        A.I(f's_lshl_b32 s{S_T0}, s{S_T0}, 13')
        for bf in range(2):
            A.I(f's_add_u32 s{S_T1}, s{S_T0}, {L_WO + bf * L_HALF}')
            for nb in range(2):
                VT[(nb, bf, cu)] = r
                A.I(f'v_add_u32 v{r}, s{S_T1}, v{14 + nb}')
                r += 1
    A.I(f'v_lshl_add_u32 v13, v9, 1, v8')
    A.I(f'v_lshl_add_u32 v13, v10, 2, v13')
    A.I(f'v_lshlrev_b32 v14, 13, v13')
    A.I(f'v_lshl_add_u32 v14, v11, 11, v14')
    A.I(f'v_lshl_add_u32 v14, v13, 5, v14')
    A.I(f'v_lshl_add_u32 v14, v7, 3, v14')
    A.I(f's_lshl_b32 s{S_T0}, s{S_WV}, 8')
    A.I(f'v_add_u32 v14, s{S_T0}, v14')
    VTO = {0: 20, 1: 21}
    A.I(f'v_add_u32 v20, {L_WO}, v14')
    A.I(f'v_add_u32 v21, {L_WO + L_HALF}, v14')
    WOT = 32

    def dma(sc):
        buf = L_WO + (sc & 1) * L_HALF
        if sc < 6:
            mat, hh = sc >> 1, sc & 1
            make_srd(A, S_W, ptr_sgprs[mat], 512 * 8192)
            A.I(f's_lshl_b32 s{S_T0}, s{S_WV}, 15')
            A.I(f's_lshl_b32 s{S_T1}, s{S_H}, 8')
            A.I(f's_add_u32 s{S_T0}, s{S_T0}, s{S_T1}')
            A.I(f's_add_u32 s{S_T0}, s{S_T0}, {hh << 21}')
            A.I(f's_lshl_b32 s{S_T1}, s{S_WV}, 10')
            A.I(f's_add_u32 s{S_T1}, s{S_T1}, {buf}')
            for i in range(16):
                A.I(f's_mov_b32 m0, s{S_T1}')
                A.I(f'buffer_load_dwordx4 v{VD1 if i & 1 else VD0}, s[{S_W}:{S_W + 3}], s{S_T0} offen lds')
                if i < 15:
                    A.I(f's_add_u32 s{S_T0}, s{S_T0}, {4 * 32768}')
                    A.I(f's_add_u32 s{S_T1}, s{S_T1}, 4096')
        else:
            t2 = sc & 1
            make_srd(A, S_W, ptr_sgprs[3], 4096 * 1024)
            A.I(f's_and_b32 s{S_T0}, s{S_WV}, 1')
            A.I(f's_lshl_b32 s{S_T0}, s{S_T0}, 13')
            A.I(f's_lshr_b32 s{S_T1}, s{S_WV}, 1')
            A.I(f's_lshl_b32 s{S_T1}, s{S_T1}, 15')
            A.I(f's_add_u32 s{S_T0}, s{S_T0}, s{S_T1}')
            A.I(f's_lshl_b32 s{S_T1}, s{S_H}, 17')
            A.I(f's_add_u32 s{S_T0}, s{S_T0}, s{S_T1}')
            A.I(f's_add_u32 s{S_T0}, s{S_T0}, {t2 << 16}')
            A.I(f's_lshl_b32 s{S_T1}, s{S_WV}, 11')
            A.I(f's_add_u32 s{S_T1}, s{S_T1}, {buf}')
            for f in range(8):
                for x in range(2):
                    row = (f & 1) + 2 * x + 4 * ((f >> 1) & 1) + 16 * (f >> 2)
                    A.I(f's_add_u32 s{S_T2}, s{S_T1}, {(8 * f + x) * 1024 + 32 * f}')
                    A.I(f's_add_u32 s{S_T3}, s{S_T0}, {row * 1024}')
                    A.I(f's_mov_b32 m0, s{S_T2}')
                    A.I(f'buffer_load_dwordx4 v{V_L16}, s[{S_W}:{S_W + 3}], s{S_T3} offen lds')

    TCH = E('STOUCH', 0)
    if TCH:
        A.I(f'v_lshrrev_b32 v16, 1, v{LANE}')
        A.I('v_lshlrev_b32 v16, 13, v16')
        A.I(f'v_and_b32 v17, 1, v{LANE}')
        A.I('v_lshl_add_u32 v16, v17, 7, v16')
        A.I(f'v_lshlrev_b32 v17, 7, v{LANE}')

    def touch(sc):
        if not TCH or sc > 7:
            return
        chk = A.check
        A.check = False
        if sc < 6:
            make_srd(A, S_W, ptr_sgprs[sc >> 1], 512 * 8192)
            A.I(f's_lshl_b32 s{S_T0}, s{S_WV}, 19')
            A.I(f's_lshl_b32 s{S_T1}, s{S_H}, 8')
            A.I(f's_add_u32 s{S_T0}, s{S_T0}, s{S_T1}')
            A.I(f's_add_u32 s{S_T0}, s{S_T0}, {(sc & 1) << 21}')
            A.I(f's_add_u32 s{S_T1}, s{S_T0}, {32 * 8192}')
            va_ = 16
        else:
            make_srd(A, S_W, ptr_sgprs[3], 4096 * 1024)
            A.I(f's_lshl_b32 s{S_T0}, s{S_WV}, 14')
            A.I(f's_lshl_b32 s{S_T1}, s{S_H}, 17')
            A.I(f's_add_u32 s{S_T0}, s{S_T0}, s{S_T1}')
            A.I(f's_add_u32 s{S_T0}, s{S_T0}, {(sc & 1) << 16}')
            A.I(f's_add_u32 s{S_T1}, s{S_T0}, 8192')
            va_ = 17
        A.I(f'buffer_load_dword v22, v{va_}, s[{S_W}:{S_W + 3}], s{S_T0} offen')
        A.I(f'buffer_load_dword v22, v{va_}, s[{S_W}:{S_W + 3}], s{S_T1} offen')
        A.check = chk

    q_ = []

    def younger(names):
        idx = max(i for i, (nm, c) in enumerate(q_) if nm in names)
        return sum(c for nm, c in q_[idx + 1:])

    dma(0); q_.append(('d0', 16))
    dma(1); q_.append(('d1', 16))
    if hook:
        hook(); q_.append(('init', 6 if hook_sc else 0))
    for k in range(2, 2 + TCH):
        touch(k); q_.append(('t', 2))
    for sc in range(8):
        need_ = [f'd{sc}']
        if sc == 1 and hook:
            need_.append('init')
        if sc == 5 and hook_issue:
            need_.append('gb')
        A.I(f's_waitcnt vmcnt({0 if sc == 7 else younger(need_)})')
        A.I('s_barrier')
        if hook_sc:
            hook_sc(sc)
        if sc == 7 and hook_check:
            hook_check()
        cnt = 0
        if sc < 6:
            mat, hh = 'qkv'[sc >> 1], sc & 1
            for nb in range(2):
                for t in range(8):
                    for x in range(2):
                        c, nhi = t >> 1, t & 1
                        imm = (8 * nhi + x) * 256
                        if cnt >= 12:
                            A.I('s_waitcnt lgkmcnt(8)')
                            cnt = 8
                        A.I(f'ds_read_b64_tr_b16 {u(HOME[(mat, nb, t)] + 4 * hh + 2 * x, 2)}, v{VT[(nb, sc & 1, c)]} offset:{imm}')
                        cnt += 1
        else:
            for nbo in range(8):
                for hh in range(2):
                    for x in range(2):
                        imm = (x + 4 * hh) * 1024 + 32 * nbo
                        if cnt >= 12:
                            A.I('s_waitcnt lgkmcnt(8)')
                            cnt = 8
                        A.I(f'ds_read_b64_tr_b16 {v(WOT + nbo * 8 + 4 * hh + 2 * x, 2)}, v{VTO[sc & 1]} offset:{imm}')
                        cnt += 1
        A.I('s_waitcnt lgkmcnt(0)')
        A.I('s_barrier')
        if sc + 2 < 8:
            dma(sc + 2); q_.append((f'd{sc + 2}', 16))
            if TCH and sc + 2 + TCH <= 7:
                touch(sc + 2 + TCH); q_.append(('t', 2))
        if sc in (3, 5) and hook_issue:
            hook_issue(sc); q_.append(('gb', 1) if sc == 3 else ('batch', 4))
        if sc >= 6:
            t2 = sc & 1
            va = V_WO1 if t2 else V_WO0
            k = 0
            for f, (hf, sl) in LDS_SLOT.items():
                if hf != t2:
                    continue
                src = (WOT + f[1] * 8) if f[0] == 'o' else HOME[f]
                for hh in range(2):
                    A.I(f'ds_write_b128 v{va}, {u(src + 4 * hh, 4)} offset:{sl * 2048 + hh * 1024}')
                k += 1
                if k & 1 == 0:
                    A.I('s_waitcnt lgkmcnt(4)')
            A.I('s_waitcnt lgkmcnt(0)')
            for nbo in range(6):
                hm = HOME[('o', nbo, t2)]
                for r in range(8):
                    if hm >= 256:
                        A.I(f'v_accvgpr_write_b32 a{hm - 256 + r}, v{WOT + nbo * 8 + r}')
                    else:
                        A.I(f'v_mov_b32 v{hm + r}, v{WOT + nbo * 8 + r}')


def setup_consts(A):
    g, n = 2, 3
    lane_fields(A, LANE, g, n)
    A.I(f's_lshl_b32 s{S_W11}, s{S_WV}, 11')
    A.I(f'v_bfe_u32 v4, v{n}, 1, 1')
    A.I(f'v_mul_u32_u24 v4, 0xaaaa, v4')
    A.I(f'v_add_u32 v{V_IDX}, 0x4444, v4')
    A.I(f'v_lshlrev_b32 v{V_L16}, 4, v{LANE}')
    A.I(f's_mul_i32 s{S_T0}, s{S_WV}, 640')
    A.I(f'v_lshrrev_b32 v4, 2, v{n}')
    A.I(f'v_mul_u32_u24 v4, 160, v4')
    A.I(f'v_lshl_add_u32 v4, v{g}, 4, v4')
    A.I(f'v_and_b32 v5, 3, v{n}')
    A.I(f'v_lshl_add_u32 v4, v5, 2, v4')
    A.I(f'v_add_u32 v{V_QKW}, s{S_T0}, v4')
    A.I(f'v_mul_u32_u24 v6, 160, v{g}')
    A.I(f'v_and_b32 v4, 1, v{n}')
    A.I(f'v_bfe_u32 v5, v{n}, 1, 2')
    A.I(f'v_lshl_add_u32 v4, v4, 2, v5')
    A.I(f'v_lshl_add_u32 v{V_QR}, v4, 4, v6')
    A.I(f'v_and_b32 v4, 1, v{n}')
    A.I(f'v_lshrrev_b32 v5, 2, v{n}')
    A.I(f'v_and_b32 v7, 2, v{n}')
    A.I(f'v_xor_b32 v5, v5, v7')
    A.I(f'v_lshl_add_u32 v4, v4, 2, v5')
    A.I(f'v_lshl_add_u32 v{V_KR}, v4, 4, v6')
    A.I(f'v_add_u32 v{V_KR}, {L_KX_}, v{V_KR}')
    A.I(f's_lshl_b32 s{S_T0}, s{S_WV}, 9')
    A.I(f's_add_u32 s{S_T0}, s{S_T0}, {L_OX}')
    A.I(f'v_lshrrev_b32 v4, 1, v{g}')
    A.I(f'v_lshlrev_b32 v4, 8, v4')
    A.I(f'v_lshrrev_b32 v5, 1, v{n}')
    A.I(f'v_lshl_add_u32 v4, v5, 6, v4')
    A.I(f'v_and_b32 v5, 1, v{g}')
    A.I(f'v_lshl_add_u32 v4, v5, 5, v4')
    A.I(f'v_and_b32 v5, 1, v{n}')
    A.I(f'v_lshl_add_u32 v4, v5, 4, v4')
    A.I(f'v_add_u32 v4, s{S_T0}, v4')
    A.I(f'v_add_u32 v5, {L_QX}, v{V_L16}')
    A.I(f'v_cmp_gt_u32 vcc, 8, v{n}')
    A.I(f'v_cndmask_b32 v{V_OW}, v5, v4, vcc')
    A.I(f's_lshl_b32 s{S_T0}, s{S_WV}, 14')
    A.I(f's_add_u32 s{S_T0}, s{S_T0}, {L_WO}')
    A.I(f'v_add_u32 v{V_WO0}, s{S_T0}, v{V_L16}')
    A.I(f'v_add_u32 v{V_WO1}, {L_HALF}, v{V_WO0}')
    A.I(f'v_add_u32 v{V_VX}, s{S_W11}, v{V_L16}')
    A.I(f'v_lshrrev_b32 v4, 3, v{n}')
    A.I(f'v_lshl_add_u32 v4, v{g}, 1, v4')
    A.I(f'v_mul_u32_u24 v4, {PB_GRP}, v4')
    A.I(f'v_and_b32 v5, 7, v{n}')
    A.I(f'v_lshl_add_u32 v4, v5, 4, v4')
    A.I(f's_mul_i32 s{S_T0}, s{S_WV}, {8 * PB_GRP}')
    A.I(f's_lshl_b32 s{S_T1}, s{S_H}, 8')
    A.I(f's_add_u32 s{S_T0}, s{S_T0}, s{S_T1}')
    A.I(f'v_add_u32 v{V_PBW}, s{S_T0}, v4')
    A.I(f's_mul_i32 s{S_T0}, s{S_H}, {PB_GRP}')
    A.I(f's_add_u32 s{S_PZ}, s{S_T0}, s{S_W11}')
    A.I(f's_lshl_b32 s{S_T1}, s{S_WV}, 7')
    A.I(f's_add_u32 s{S_T0}, s{S_T0}, s{S_T1}')
    A.I(f'v_lshlrev_b32 v4, 8, v{g}')
    A.I(f'v_lshl_add_u32 v4, v{n}, 3, v4')
    A.I(f'v_add_u32 v{V_RDR}, s{S_T0}, v4')
    A.I(f's_and_b32 s{S_T1}, s{S_H}, 1')
    A.I(f's_lshl_b32 s{S_T1}, s{S_T1}, 10')
    A.I(f's_lshl_b32 s{S_T0}, s{S_WV}, 12')
    A.I(f's_add_u32 s{S_T0}, s{S_T0}, s{S_T1}')
    A.I(f's_lshr_b32 s{S_T1}, s{S_H}, 1')
    A.I(f's_lshl_b32 s{S_T1}, s{S_T1}, 6')
    A.I(f's_add_u32 s{S_T0}, s{S_T0}, s{S_T1}')
    A.I(f'v_lshrrev_b32 v4, 3, v{n}')
    A.I(f'v_lshlrev_b32 v4, 5, v4')
    A.I(f'v_and_b32 v5, 1, v{n}')
    A.I(f'v_lshl_add_u32 v4, v5, 11, v4')
    A.I(f'v_bfe_u32 v5, v{n}, 1, 2')
    A.I(f'v_lshl_add_u32 v4, v5, 2, v4')
    A.I(f'v_add_u32 v4, s{S_T0}, v4')
    A.I(f'v_mov_b32 v5, 0x7f000000')
    A.I(f'v_cmp_gt_u32 vcc, 16, v{LANE}')
    A.I(f'v_cndmask_b32 v{V_MBW}, v5, v4, vcc')
    A.I(f'v_mov_b32 v4, 0x3f80')
    A.I(f'v_mov_b32 v5, 0x3f800000')
    A.I(f'v_and_b32 v6, 1, v{n}')
    A.I(f'v_cmp_eq_u32 vcc, 1, v6')
    A.I(f'v_cndmask_b32 v{V_SEL}, v4, v5, vcc')
    A.I(f'v_lshrrev_b32 v6, 1, v{n}')
    A.I(f'v_cmp_eq_u32 s[{S_M0}:{S_M0 + 1}], 0, v6')
    A.I(f'v_cmp_eq_u32 s[{S_M1}:{S_M1 + 1}], 1, v6')
    c = (128 ** -0.5) * math.log2(math.e)
    cb = struct.unpack("<I", struct.pack("<f", c))[0]
    A.I(f's_mov_b32 s{S_C}, 0x{cb:08x}')
    A.I(f's_mov_b32 s{S_C + 1}, 0x{cb:08x}')
    A.I(f's_mov_b32 s{S_ONE}, 0x3f803f80')
    A.I(f's_mov_b32 s{S_ONE + 1}, 0x3f803f80')


def init_exchange(A, s_mem0, st, rb=0, part=None):
    ws = f's[{S_WS}:{S_WS + 3}]'
    R_ = lambda i: i + rb
    if part in (0, None):
        make_srd(A, S_W, s_mem0, 8192)
        n = R_(3)
        A.I(f'v_and_b32 v{n}, 15, v{LANE}')
        A.I(f's_bfe_u32 s{S_T0}, s{S_H}, 0x20001')
        A.I(f's_lshl_b32 s{S_T0}, s{S_T0}, 11')
        A.I(f's_lshr_b32 s{S_T1}, s{S_H}, 3')
        A.I(f's_lshl_b32 s{S_T1}, s{S_T1}, 8')
        A.I(f's_add_u32 s{S_T0}, s{S_T0}, s{S_T1}')
        A.I(f's_and_b32 s{S_T1}, s{S_WV}, 1')
        A.I(f's_lshl_b32 s{S_T1}, s{S_T1}, 7')
        A.I(f's_add_u32 s{S_T0}, s{S_T0}, s{S_T1}')
        A.I(f's_and_b32 s{S_T1}, s{S_H}, 1')
        A.I(f's_lshl_b32 s{S_T1}, s{S_T1}, 4')
        A.I(f's_add_u32 s{S_T0}, s{S_T0}, s{S_T1}')
        A.I(f'v_and_b32 v{R_(12)}, 1, v{n}')
        A.I(f'v_lshlrev_b32 v{R_(12)}, 6, v{R_(12)}')
        A.I(f'v_lshrrev_b32 v{R_(13)}, 1, v{n}')
        A.I(f'v_lshl_add_u32 v{R_(12)}, v{R_(13)}, 1, v{R_(12)}')
        w = f's[{S_W}:{S_W + 3}]'
        for i, off in enumerate((0, 32, 1024, 1056)):
            A.I(f'buffer_load_ushort v{R_(8 + i)}, v{R_(12)}, {w}, s{S_T0} offen offset:{off}')
    if part in (1, None):
        for r in range(4, 8):
            A.I(f'v_mov_b32 v{R_(r)}, -1')
        for r in range(3):
            A.I(f's_add_u32 s{S_T0}, s{S_PZ}, 0x{WS_PB + r * PB_SLOT:x}')
            for c in range(2):
                A.I(f'buffer_store_dwordx4 {v(R_(4), 4)}, v{V_L16}, {ws}, s{S_T0} offen offset:{1024 * c} {st}')
        le = A.newlabel('L_ie')
        A.I(f's_cmp_ge_u32 s{S_WV}, 2')
        A.br(f's_cbranch_scc1 {le}')
        A.I(f's_mov_b32 s{S_T0}, 0x{WS_MB + 8192:x}')
        A.I(f'buffer_store_dword v{R_(4)}, v{V_MBW}, {ws}, s{S_T0} offen {st}')
        A.I(f'buffer_store_dword v{R_(4)}, v{V_MBW}, {ws}, s{S_T0} offen offset:16 {st}')
        A.I(f's_waitcnt vmcnt({40 if part == 1 else 0})')
        A.I(f'v_lshl_or_b32 v{R_(8)}, v{R_(9)}, 16, v{R_(8)}')
        A.I(f'v_lshl_or_b32 v{R_(10)}, v{R_(11)}, 16, v{R_(10)}')
        A.I(f'v_min_u32 v{R_(8)}, -2, v{R_(8)}')
        A.I(f'v_min_u32 v{R_(10)}, -2, v{R_(10)}')
        A.I(f's_mov_b32 s{S_T0}, 0x{WS_MB:x}')
        A.I(f'buffer_store_dword v{R_(8)}, v{V_MBW}, {ws}, s{S_T0} offen {st}')
        A.I(f'buffer_store_dword v{R_(10)}, v{V_MBW}, {ws}, s{S_T0} offen offset:16 {st}')
        A.label(le)
    if part is None:
        A.I('s_waitcnt vmcnt(0)')


HS = [('q', 0, 0), ('q', 1, 0), ('q', 0, 1), ('q', 1, 1), ('k', 0, 0), ('k', 1, 0), ('k', 0, 1), ('k', 1, 1)]
QBUF = dict(zip(HS, [KX, KX + 8, KX + 16, KX + 24, VX, T, T + 8, ACC + 16]))


def zero(A, r0, n):
    for i in range(0, n, 2):
        A.I(f'v_mov_b64 {v(r0 + i, 2)}, 0')


def q_prefetch(A, part=None):
    for i, f in enumerate(HS):
        if part is not None and (i >> 2) != part:
            continue
        lds_frag_read(A, f, QBUF[f])
        if i == 5:
            A.I('s_waitcnt lgkmcnt(8)')


def kv_dma(A):
    ws = f's[{S_WS}:{S_WS + 3}]'
    A.I(f's_mov_b32 m0, s{S_KVM0}')
    A.I(f's_add_u32 s{S_T0}, s{S_KVN}, 0x{WS_VF - WS_KF:x}')
    A.I(f'buffer_load_dwordx4 v{V_L16}, {ws}, s{S_KVN} offen lds')
    A.I(f'buffer_load_dwordx4 v{V_L16}, {ws}, s{S_KVN} offen offset:1024 lds')
    A.I(f's_add_u32 m0, s{S_KVM0}, 8192')
    A.I(f's_add_u32 s{S_KVN}, s{S_KVN}, 0x40000')
    A.I(f'buffer_load_dwordx4 v{V_L16}, {ws}, s{S_T0} offen lds')
    A.I(f'buffer_load_dwordx4 v{V_L16}, {ws}, s{S_T0} offen offset:1024 lds')


S_AV, S_RA, S_KP, S_RA2 = 21, 22, 24, 26
F_KMP = WS_FLAG + 0x3000
F_PROG = WS_FLAG


def kv_eval(A, vt, vlane16, s_av):
    p, t, u_ = vt, vt + 1, vt + 2
    A.I(f'v_bfe_u32 v{t}, v{vlane16}, 6, 1')
    A.I(f'v_lshl_add_u32 v{t}, v{p}, 1, v{t}')
    A.I(f'v_bfe_u32 v{u_}, v{vlane16}, 7, 1')
    A.I(f'v_lshl_add_u32 v{t}, v{u_}, 5, v{t}')
    A.I(f'v_cmp_le_u32 vcc, 16, v{p}')
    A.I(f'v_mov_b32 v{u_}, 64')
    A.I(f'v_cndmask_b32 v{t}, v{t}, v{u_}, vcc')
    for k in (8, 4, 2, 1):
        A.I(f'v_min_u32_dpp v{t}, v{t}, v{t} row_ror:{k} row_mask:0xf bank_mask:0xf')
    A.I(f'v_readfirstlane_b32 s{s_av}, v{t}')


def kv_load(A, vt, vlane16, s_base):
    ws = f's[{S_WS}:{S_WS + 3}]'
    A.I(f'v_lshrrev_b32 v{vt + 1}, 2, v{vlane16}')
    A.I(f'v_and_b32 v{vt + 1}, 0x7c, v{vt + 1}')
    A.I(f'buffer_load_dword v{vt}, v{vt + 1}, {ws}, s{s_base} offen sc1')


def kv_wait(A, l_exit, s_need, vt, s_av=S_AV, s_base=S_RA, sleep=0, vlane16=V_L16):
    l = A.newlabel('L_kvw')
    A.label(l)
    kv_load(A, vt, vlane16, s_base)
    A.I(f's_sub_u32 s{S_SPIN}, s{S_SPIN}, 1')
    A.I(f's_cbranch_scc1 {l_exit}')
    A.I('s_waitcnt vmcnt(0)')
    kv_eval(A, vt, vlane16, s_av)
    if sleep:
        ld = A.newlabel('L_kvd')
        A.I(f's_cmp_gt_u32 s{s_av}, s{s_need}')
        A.I(f's_cbranch_scc1 {ld}')
        A.I(f's_sleep {sleep}')
        A.br(f's_branch {l}')
        A.label(ld)
    else:
        A.I(f's_cmp_le_u32 s{s_av}, s{s_need}')
        A.br(f's_cbranch_scc1 {l}')


def main_loop(A, st, l_exit, kvcheck=False):
    ws = f's[{S_WS}:{S_WS + 3}]'
    A.I(f's_mov_b32 s{S_STEP}, 0')
    A.I(f's_mov_b32 s{S_MBR}, 0x{WS_MB:x}')
    A.I(f's_mov_b32 s{S_MBW}, 0x{WS_MB + 8192:x}')
    A.I(f's_mov_b32 s{S_PB0}, 0x{WS_PB:x}')
    A.I(f's_mov_b32 s{S_PB1}, 0x{WS_PB + PB_SLOT:x}')
    A.I(f's_lshl_b32 s{S_KMO}, s{S_H}, 12')
    A.I(f's_lshl_b32 s{S_T0}, s{S_WV}, 10')
    A.I(f's_add_u32 s{S_KMO}, s{S_KMO}, s{S_T0}')
    A.I(f's_add_u32 s{S_KMO}, s{S_KMO}, 0x{WS_KM - 0x20000:x}')
    A.I(f's_mul_i32 s{S_W640}, s{S_WV}, 640')
    A.I(f's_lshl_b32 s{S_VMO}, s{S_H}, 11')
    A.I(f's_lshl_b32 s{S_T0}, s{S_WV}, 9')
    A.I(f's_add_u32 s{S_VMO}, s{S_VMO}, s{S_T0}')
    A.I(f's_add_u32 s{S_VMO}, s{S_VMO}, 0x{WS_VM - 0x10000:x}')
    A.I(f's_lshr_b32 s{S_T0}, s{S_WV}, 1')
    A.I(f's_mul_i32 s{S_TCH}, s{S_T0}, 0x{WS_VF - WS_KF:x}')
    A.I(f's_and_b32 s{S_T0}, s{S_WV}, 1')
    A.I(f's_lshl_b32 s{S_T0}, s{S_T0}, 12')
    A.I(f's_add_u32 s{S_TCH}, s{S_TCH}, s{S_T0}')
    A.I(f's_lshl_b32 s{S_T0}, s{S_H}, 13')
    A.I(f's_add_u32 s{S_TCH}, s{S_TCH}, s{S_T0}')
    A.I(f's_add_u32 s{S_TCH}, s{S_TCH}, 0x{WS_KF + TOUCH_AHEAD * 0x40000:x}')

    NST = 12
    order = []

    def stamp(i):
        if not STAMPS:
            return
        order.append(i)
        A.raw(f'    s_memtime s[{64 + 2 * i}:{65 + 2 * i}]')
        A.pos += 1

    def stamp_acc():
        if not STAMPS:
            return
        A.I('s_waitcnt lgkmcnt(0)')
        if E('RAW', 0):
            lk = A.newlabel('L_raw')
            A.I(f's_cmp_lg_u32 s{S_STEP}, {E("RAW", 0)}')
            A.I(f's_cbranch_scc1 {lk}')
            for i in range(NST):
                if i != 6:
                    A.I(f's_mov_b32 s{88 + i}, s{64 + 2 * i}')
            A.label(lk)
            lk = A.newlabel('L_raw')
            A.I(f's_cmp_lg_u32 s{S_STEP}, {E("RAW", 0) - 1}')
            A.I(f's_cbranch_scc1 {lk}')
            A.I(f's_mov_b32 s{88 + 6}, s{64 + 12}')
            A.label(lk)
            return
        prev = 100
        for i in order:
            A.I(f's_sub_u32 s101, s{64 + 2 * i}, s{prev}')
            A.I(f's_add_u32 s{88 + i}, s{88 + i}, s101')
            prev = 64 + 2 * i
        A.I(f's_mov_b32 s100, s{prev}')
    if STAMPS:
        for i in range(NST):
            A.I(f's_mov_b32 s{88 + i}, 0')
        A.I(f's_memtime s[64:65]')
        A.I('s_waitcnt lgkmcnt(0)')
        for i in range(NST):
            A.I(f's_mov_b32 s{64 + 2 * i}, s64')
        A.I(f's_mov_b32 s100, s64')

    L_top = A.newlabel('L_rec')
    L_af = A.newlabel('L_afpoll')
    L_red = A.newlabel('L_red')
    L_bh = A.newlabel('L_bh')
    L_w23 = A.newlabel('L_w23')
    L_fin = A.newlabel('L_fin')
    HS_ = E('HSTAMP', 0)
    _stamp = stamp
    if HS_:
        order.extend([2, 3, 7, 9, 10])

    def hstamp(i):
        if STAMPS and HS_:
            A.raw(f'    s_memtime s[{64 + 2 * i}:{65 + 2 * i}]')
            A.pos += 1

    def stamp(i):
        if HS_ and i in (2, 3, 9, 10):
            return
        if HS_ and i == 7:
            return hstamp(7)
        _stamp(i)

    L_pslow = A.newlabel('L_pslow')
    L_aslow = A.newlabel('L_aslow')
    L_afok = A.newlabel('L_afok')
    L_afchk = A.newlabel('L_afchk')
    RA, RB, SEL, RD = 0, 16, ACC + 8, ACC + 12
    mx, tm = V_MX, V_TM
    TWO_PB, TWO_AF = E('TWO_PB', 1), E('TWO_AF', 1)

    def addr3():
        A.I(f'v_xor_b32 v{V_MX}, 2048, v{V_VX}')
        A.I(f'v_xor_b32 v{V_TM}, 4096, v{V_VX}')
        A.I(f'v_xor_b32 v{V_SP}, 6144, v{V_VX}')

    A.I(f's_mov_b32 s{S_TAG}, 0')
    if kvcheck:
        A.I(f's_mov_b32 s{S_RA2}, s{S_RA}')
    zero(A, ACC, 8)
    q_prefetch(A)
    A.br(f's_branch {L_af}')

    def pb_loads(b):
        for i in range(8):
            so = S_PB0 if i < 4 else S_PB0H
            A.I(f'buffer_load_dwordx2 {v(b + 2 * i, 2)}, v{V_RDR}, {ws}, s{so} offen offset:{(i & 3) * 1024} {LDF}')

    def red(b, base):
        for i in range(4):
            A.I(f's_waitcnt vmcnt({base + 6 - 2 * i})')
            c = '0' if i == 0 else v(RD, 4)
            A.I(f'v_mfma_f32_16x16x32_bf16 {v(RD, 4)}, {v(SEL, 4)}, {v(b + 4 * i, 4)}, {c}')
            r = b + 4 * i
            tt = 0
            for idx in range(8):
                a_, b_, s_ = (idx >> 2) & 1, (idx >> 1) & 1, idx & 1
                if (a_ ^ s_) | (b_ ^ s_):
                    tt |= 1 << idx
            d = mx if i == 0 else tm
            A.I(f'v_bitop3_b32 v{d}, v{r}, v{r + 2}, s{S_TAG} bitop3:0x{tt:x}')
            if i:
                A.I(f'v_or_b32 v{mx}, v{mx}, v{tm}')
        A.I(f'v_and_b32 v{mx}, 1, v{mx}')
        A.I(f'v_cmp_eq_u32 vcc, 1, v{mx}')

    def af_loads(b):
        for i in range(2):
            A.I(f'buffer_load_dwordx4 {v(b + 4 * i, 4)}, v{V_L16}, {ws}, s{S_AFO} offen offset:{i * 1024} {LDF}')

    def af_chk(b, tmp):
        A.I(f'ds_write_b128 v{V_VX}, {v(b, 4)} offset:{L_AF}')
        A.I(f'v_max3_u32 v{tmp}, v{b}, v{b + 1}, v{b + 2}')
        A.I(f'v_max3_u32 v{tmp}, v{tmp}, v{b + 3}, v{b + 4}')
        A.I(f'ds_write_b128 v{V_VX}, {v(b + 4, 4)} offset:{L_AF + 1024}')
        A.I(f'v_max3_u32 v{tmp}, v{tmp}, v{b + 5}, v{b + 6}')
        A.I(f'v_max_u32 v{tmp}, v{tmp}, v{b + 7}')
        A.I(f'v_cmp_eq_u32 vcc, -1, v{tmp}')

    A.raw('.p2align 6')
    A.label(L_top)
    A.forget_loads()
    A.check = False
    red(RA, 8 if TWO_PB else 0)
    hstamp(3)
    A.I(f's_cbranch_vccnz {L_pslow}')
    A.label(L_red, flush=False)
    A.I(f'v_mov_b32 v{tm}, -1')
    A.I('s_nop 2')
    A.I(f'v_cvt_pk_bf16_f32 v{RD}, v{RD}, v{RD + 1}')
    A.I(f'v_cvt_pk_bf16_f32 v{RD + 2}, v{RD + 2}, v{RD + 3}')
    A.I(f'buffer_store_dword v{RD}, v{V_MBW}, {ws}, s{S_MBW} offen {st}')
    A.I(f'buffer_store_dword v{RD + 2}, v{V_MBW}, {ws}, s{S_MBW} offen offset:16 {st}')
    A.I(f'buffer_store_dword v{tm}, v{V_MBW}, {ws}, s{S_MBR} offen {st}')
    A.I(f'buffer_store_dword v{tm}, v{V_MBW}, {ws}, s{S_MBR} offen offset:16 {st}')
    if E('AFW', 0):
        A.I('s_waitcnt vmcnt(2)')
    A.label(L_bh, flush=False)
    stamp(7)
    A.I('s_barrier')
    A.I(f's_mov_b32 s{S_T0}, s{S_MBR}')
    A.I(f's_mov_b32 s{S_MBR}, s{S_MBW}')
    A.I(f's_mov_b32 s{S_MBW}, s{S_T0}')
    A.I(f's_mov_b32 s{S_T0}, s{S_PB0}')
    A.I(f's_mov_b32 s{S_PB0}, s{S_PB1}')
    A.I(f's_mov_b32 s{S_PB1}, s{S_T0}')
    A.I(f's_add_u32 s{S_STEP}, s{S_STEP}, 1')
    A.I(f's_bfe_u32 s{S_TAG}, s{S_STEP}, 0x10001')
    A.label(L_af, flush=False)
    A.I(f's_add_u32 s{S_AFO}, s{S_MBR}, s{S_W11}')
    zero(A, ACC + 8, 8)
    addr3()
    for i in range(AF_DELAY):
        A.I('s_nop 7')
    ASETS = [0, 24, 16]
    af_loads(0)
    hstamp(9)
    for b in ASETS[1:]:
        for i in range(AF_GAP):
            A.I('s_nop 7')
        af_loads(b)

    def mf(mat, nb, t, src=None):
        acc = ACC + ('qkv'.index(mat) * 2 + nb) * 4
        if src is None:
            src = QBUF.get((mat, nb, t))
        b = v(src, 8) if src is not None else u(HOME[(mat, nb, t)], 8)
        A.I(f'v_smfmac_f32_16x16x64_bf16 {v(acc, 4)}, {v(AF + 4 * t, 4)}, {b}, v{V_IDX}')

    A.label(L_afchk, flush=False)
    A.I(f's_waitcnt vmcnt(4) lgkmcnt(0)')
    A.label(L_afok, flush=False)
    hstamp(10)
    tmp = 8
    A.I(f'ds_write_b128 v{V_VX}, {v(0, 4)} offset:{L_AF}')
    A.I(f'ds_write_b128 v{V_VX}, {v(4, 4)} offset:{L_AF + 1024}')
    mf('q', 0, 0)
    A.I(f'v_max3_u32 v{tmp}, v0, v1, v2')
    A.I(f'v_max3_u32 v{tmp}, v{tmp}, v3, v4')
    mf('q', 1, 0)
    A.I(f'v_max3_u32 v{tmp}, v{tmp}, v5, v6')
    A.I(f'v_max_u32 v{tmp}, v{tmp}, v7')
    A.I(f'v_cmp_eq_u32 vcc, -1, v{tmp}')
    A.I(f's_cbranch_vccnz {L_aslow}')
    stamp(8)
    A.check = True
    A.forget_loads()
    A.I('s_waitcnt lgkmcnt(0)')
    A.I('s_barrier')
    stamp(0)
    pend = []
    ar = {1: V_MX, 2: V_TM, 3: V_SP}
    hs = [('q', 0, 1), ('q', 1, 1), ('k', 0, 0), ('k', 1, 0), ('k', 0, 1), ('k', 1, 1)]

    def afr(uu):
        A.I(f'ds_read_b128 {v(AF + 4 * uu, 4)}, v{ar[uu >> 1]} offset:{L_AF + 1024 * (uu & 1)}')
        pend.append(('af', uu))
    afr(2); afr(3)
    mf(*hs[0])
    A.I(f'v_lshlrev_b32 v{V_MX}, 2, v{V_L16}')
    mf(*hs[1])
    mf(*hs[2])
    mf(*hs[3])
    KBUF = {}

    def kload(nb, t, b):
        KBUF[(nb, t)] = b
        lds_frag_read(A, ('k', nb, t), b)
        pend.extend([('k', t), ('k', t)])

    kload(0, 2, QBUF[('q', 0, 0)])
    mf(*hs[4])
    kload(1, 2, QBUF[('q', 1, 0)])
    mf(*hs[5])
    A.I('s_waitcnt vmcnt(0)')
    for uu in range(4, 8):
        afr(uu)
    A.I(f'v_lshrrev_b32 v{V_TM}, 2, v{V_L16}')
    if kvcheck:
        L_kvc, L_kvr = A.newlabel('L_kvc'), A.newlabel('L_kvr')
        A.I(f's_add_u32 s23, s{S_STEP}, 1')
        A.I(f's_cmp_ge_u32 s23, s{S_AV}')
        A.I(f's_cbranch_scc1 {L_kvc}')
        A.label(L_kvr, flush=False)
    if not E('NODMA', 0):
        A.I(f'buffer_load_dword v{V_SP}, v{V_MX}, {ws}, s{S_TCH} offen')
    if kvcheck:
        A.check = False
        A.I(f'buffer_load_dword v{V_SP}, v{V_TM}, {ws}, s{S_RA2} offen sc1')
        A.check = True

    def wait_for(name):
        if name not in pend:
            return
        idx = max(i for i, p in enumerate(pend) if p == name)
        n = len(pend) - 1 - idx
        A.I(f's_waitcnt lgkmcnt({n})')
        del pend[:idx + 1]

    EXP, EXV = ACC + 16, ACC + 20
    for t in range(2, 8):
        wait_for(('af', t))
        mf('q', 0, t)
        if t == 2:
            kload(0, 3, QBUF[('q', 0, 1)])
        if t == 3:
            kload(1, 3, QBUF[('q', 1, 1)])
        if t == 4:
            A.I(f'v_add_u32 v{EXP}, s{S_W640}, v{V_KR}')
        if t == 5:
            A.I(f'v_lshrrev_b32 v{EXV}, 2, v{V_VX}')
        if t == 6:
            A.I(f'ds_read_b64 {v(EXV, 2)}, v{EXV} offset:{L_VM}')
            pend.append(('ex', 1))
        mf('q', 1, t)
        if t == 4:
            A.I(f'ds_read_b128 {v(EXP, 4)}, v{EXP}')
            pend.append(('ex', 0))
        if t == 5:
            A.I(f'v_lshl_add_u32 v{EXV}, v{V_MX}, 0, v{EXV}' if False else f'v_add_u32 v{EXV}, v{EXV}, v{V_TM}')
        if t >= 6:
            A.I(f'ds_read_b128 {v(VX + 4 * (t - 6), 4)}, v{V_VX} offset:{L_KV + 8192 + 1024 * (t - 6)}')
            pend.append(('vx', t))
    stamp(1)
    q0, q1, k0, k1 = ACC, ACC + 4, ACC + 8, ACC + 12
    QF = T

    def kmf(t, nb):
        mf('k', nb, t, KBUF.get((nb, t)))

    def pack(b0, b1):
        return [f'v_add_f32 v{b0}, v{b0}, v{b0 + 2}',
                f'v_add_f32 v{b0 + 1}, v{b0 + 1}, v{b0 + 3}',
                f'v_add_f32 v{b1}, v{b1}, v{b1 + 2}',
                f'v_add_f32 v{b1 + 1}, v{b1 + 1}, v{b1 + 3}',
                f'v_cvt_pk_bf16_f32 v{b0}, v{b0}, v{b1}',
                f'v_cvt_pk_bf16_f32 v{b0 + 1}, v{b0 + 1}, v{b1 + 1}']

    wait_for(('k', 2))
    kmf(2, 0)
    A.I(f's_add_u32 s{S_TCH}, s{S_TCH}, 0x40000')
    A.I(f'v_lshrrev_b32 v{V_TM}, 1, v{V_L16}')
    kmf(2, 1)
    wait_for(('ex', 1))
    if not E('NOEXP', 0):
        A.I(f'buffer_store_dwordx4 {v(EXP, 4)}, v{V_L16}, {ws}, s{S_KMO} offen {EXF}')
    kmf(3, 0)
    if not E('NOEXP', 0):
        A.I(f'buffer_store_dwordx2 {v(EXV, 2)}, v{V_TM}, {ws}, s{S_VMO} offen {EXF}')
    A.I(f's_add_u32 s{S_KMO}, s{S_KMO}, 0x20000')
    A.I(f's_add_u32 s{S_VMO}, s{S_VMO}, 0x10000')
    kmf(3, 1)
    if kvcheck:
        A.I(f'v_mov_b32 v{V_TM}, s{S_STEP}')
        A.I('s_mov_b64 exec, 1')
        A.I(f'buffer_store_dword v{V_TM}, off, {ws}, s{S_KP} sc1')
        A.I('s_mov_b64 exec, -1')
    kxr = [f'ds_read_b128 {v(KX + 4 * f, 4)}, v{V_L16} offset:{L_KV + 1024 * f}' for f in range(8)]
    pq = pack(q0, q1) + [f'ds_write2_b32 v{V_QKW}, v{q0}, v{q0 + 1} offset0:0 offset1:16']
    fl = []
    for i in range(8):
        fl.append([kxr[i]] + ([pq[i]] if i < 7 else []) + ([f'v_mov_b64 {v(ACC + 16 + (i - 4) * 2, 2)}, 0'] if i >= 4 else []))
    for i, (t, nb) in enumerate([(t, nb) for t in range(4, 8) for nb in range(2)]):
        for x in fl[i]:
            A.I(x)
        kmf(t, nb)
    stamp(2)
    pk = pack(k0, k1)
    mf('v', 0, 0)
    mf('v', 1, 0)
    A.I('s_nop 4')
    A.I(pk[0]); A.I(pk[1]); A.I(pk[2])
    mf('v', 0, 1)
    A.I(pk[3]); A.I(pk[4]); A.I(pk[5])
    A.I(f'ds_write_b32 v{V_QKW}, v{k0} offset:{L_KX_}')
    A.I(f'ds_write_b32 v{V_QKW}, v{k0 + 1} offset:{L_KX_ + 64}')
    mf('v', 1, 1)
    mf('v', 0, 2)
    mf('v', 1, 2)
    mf('v', 0, 3)
    A.I(f's_cmp_eq_u32 s{S_STEP}, {NSTEPS}')
    A.I('s_waitcnt lgkmcnt(0)')
    A.I(f's_cbranch_scc1 {L_fin}')
    A.I('s_barrier')
    stamp(3)
    KMF, ONES = 0, 20
    for ks in range(4):
        A.I(f'ds_read_b128 {v(QF + 4 * ks, 4)}, v{V_QR} offset:{640 * ks}')
        if ks == 1:
            mf('v', 1, 3)
    mf('v', 0, 4)
    for ks in range(4):
        A.I(f'ds_read_b128 {v(KMF + 4 * ks, 4)}, v{V_KR} offset:{640 * ks}')
        if ks == 1:
            mf('v', 1, 4)
    dm = []
    if not E('NODMA', 0):
        dm = [f's_mov_b32 m0, s{S_KVM0}\ns_add_u32 s{S_T0}, s{S_KVN}, 0x{WS_VF - WS_KF:x}\nbuffer_load_dwordx4 v{V_L16}, {ws}, s{S_KVN} offen lds',
              f'buffer_load_dwordx4 v{V_L16}, {ws}, s{S_KVN} offen offset:1024 lds\ns_add_u32 m0, s{S_KVM0}, 8192\ns_add_u32 s{S_KVN}, s{S_KVN}, 0x40000',
              f'buffer_load_dwordx4 v{V_L16}, {ws}, s{S_T0} offen lds',
              f'buffer_load_dwordx4 v{V_L16}, {ws}, s{S_T0} offen offset:1024 lds']
    else:
        dm = ['s_nop 0'] * 4
    mf('v', 0, 5)
    mf('v', 1, 5)
    mf('v', 0, 6)
    mf('v', 1, 6)
    X0, X1, M, P = q0, q1, k0, k1
    O0, O1, Lr, PMA, PMB = KX + 16, KX + 20, KX + 24, KX + 28, KX + 30

    def sx(i):
        ks, kb = i >> 1, i & 1
        X = X1 if kb else X0
        c = '0' if ks == 0 else v(X, 4)
        A.I(f'v_mfma_f32_16x16x32_bf16 {v(X, 4)}, {v(KX + 16 * kb + 4 * ks, 4)}, {v(QF + 4 * ks, 4)}, {c}')

    for ks in range(4):
        A.I(f's_waitcnt lgkmcnt({7 - ks})')
        sx(2 * ks)
        if ks == 2:
            A.I(f'v_mov_b64 {v(ONES, 2)}, s[{S_ONE}:{S_ONE + 1}]')
        if ks == 3:
            A.I(f'v_mov_b64 {v(ONES + 2, 2)}, s[{S_ONE}:{S_ONE + 1}]')
        sx(2 * ks + 1)
    stamp(9)
    A.I('s_waitcnt lgkmcnt(0)')
    for ks in range(4):
        cm = '0' if ks == 0 else v(M, 4)
        A.I(f'v_mfma_f32_16x16x32_bf16 {v(M, 4)}, {v(KMF + 4 * ks, 4)}, {v(QF + 4 * ks, 4)}, {cm}')
        if ks == 0:
            A.I(f'v_mov_b32 v{PMA + 1}, 0')
            A.I(f'v_mov_b32 v{PMB}, 0')
        if ks == 1:
            A.I('s_nop 1')
            A.I(f'v_max3_f32 v{mx}, v{X0}, v{X0 + 1}, v{X0 + 2}')
            A.I(f'v_max3_f32 v{tm}, v{X1}, v{X1 + 1}, v{X1 + 2}')
        if ks == 2:
            A.I(f'v_max3_f32 v{mx}, v{mx}, v{X0 + 3}, v{X1 + 3}')
            A.I(f'v_max_f32 v{mx}, v{mx}, v{tm}')
        if ks == 3:
            A.I(f'v_mov_b32 v{tm}, v{mx}')
    mf('v', 0, 7)
    A.I('s_nop 0')
    A.I(f'v_permlane32_swap_b32 v{mx}, v{tm}')
    mf('v', 1, 7)
    A.I(f'v_max_f32 v{mx}, v{mx}, v{tm}')
    A.I('s_nop 1')
    A.I(f'v_max3_f32 v{tm}, v{M}, v{M + 1}, v{M + 2}')
    A.I(f'v_max3_f32 v{mx}, v{tm}, v{M + 3}, v{mx}')
    A.I(f'v_mov_b32 v{tm}, v{mx}')
    sets = [X1, KX, O0, T]
    A.I(f'v_mov_b64 {v(sets[1], 2)}, 0')
    A.I(f'v_mov_b64 {v(sets[1] + 2, 2)}, 0')
    A.I(f'v_permlane16_swap_b32 v{mx}, v{tm}')
    A.I(f'v_max_f32 v{mx}, v{mx}, v{tm}')
    A.I(f'v_mul_f32_e64 v{mx}, -s{S_C}, v{mx}')

    def pkfma(r):
        A.I(f'v_pk_fma_f32 {v(r, 2)}, {v(r, 2)}, s[{S_C}:{S_C + 1}], {v(mx, 2)} op_sel:[0,0,0] op_sel_hi:[1,1,0]')

    va, vb = ACC + 16, ACC + 20
    VMP = va + 2
    for r in (M, X0, X0 + 2, X1, X1 + 2):
        pkfma(r)
    A.I(f'v_exp_f32 v{M}, v{M}')
    A.I(f'v_exp_f32 v{M + 1}, v{M + 1}')
    A.I(f'v_pk_add_f32 {v(va, 2)}, {v(va, 2)}, {v(va + 2, 2)}')
    A.I(f'v_pk_add_f32 {v(vb, 2)}, {v(vb, 2)}, {v(vb + 2, 2)}')
    A.I(f'v_cvt_pk_bf16_f32 v{PMA}, v{M}, v{M + 1}')
    A.I(f'v_cvt_pk_bf16_f32 v{PMB + 1}, v{M}, v{M + 1}')
    A.I(f'v_cvt_pk_bf16_f32 v{VMP}, v{va}, v{va + 1}')
    A.I(f'v_cvt_pk_bf16_f32 v{VMP + 1}, v{vb}, v{vb + 1}')
    A.I(f'v_exp_f32 v{X0}, v{X0}')
    stamp(10)
    A.I(f'v_mfma_f32_16x16x16_bf16 {v(Lr, 4)}, {v(ONES, 2)}, {v(PMA, 2)}, 0')
    A.I(f'v_exp_f32 v{X0 + 1}, v{X0 + 1}')
    A.I(f'v_mfma_f32_16x16x16_bf16 {v(O0, 4)}, {v(VMP, 2)}, {v(PMA, 2)}, 0')
    A.I(f'v_exp_f32 v{X0 + 2}, v{X0 + 2}')
    A.I(f'v_mfma_f32_16x16x16_bf16 {v(O1, 4)}, {v(VMP, 2)}, {v(PMB, 2)}, 0')
    A.I(f'v_exp_f32 v{X0 + 3}, v{X0 + 3}')
    A.I(f'v_cvt_pk_bf16_f32 v{P}, v{X0}, v{X0 + 1}')
    A.I(f'v_exp_f32 v{X1}, v{X1}')
    A.I(f'v_exp_f32 v{X1 + 1}, v{X1 + 1}')
    A.I(f'v_cvt_pk_bf16_f32 v{P + 1}, v{X0 + 2}, v{X0 + 3}')
    A.I(f'v_exp_f32 v{X1 + 2}, v{X1 + 2}')
    A.I(f'v_exp_f32 v{X1 + 3}, v{X1 + 3}')
    A.I(f'v_cvt_pk_bf16_f32 v{P + 2}, v{X1}, v{X1 + 1}')
    A.I(f'v_cvt_pk_bf16_f32 v{P + 3}, v{X1 + 2}, v{X1 + 3}')
    A.I(f'v_lshrrev_b32 v{tm}, 2, v{V_VX}')
    A.I(f'v_mov_b64 {v(sets[0], 2)}, 0')
    A.I(f'v_mfma_f32_16x16x32_bf16 {v(Lr, 4)}, {v(ONES, 4)}, {v(P, 4)}, {v(Lr, 4)}')
    A.I(f'v_mov_b64 {v(sets[0] + 2, 2)}, 0')
    A.I(f'v_mov_b64 {v(sets[0] + 4, 2)}, 0')
    A.I(f'v_mfma_f32_16x16x32_bf16 {v(O0, 4)}, {v(VX, 4)}, {v(P, 4)}, {v(O0, 4)}')
    A.I(f'v_mov_b64 {v(sets[0] + 6, 2)}, 0')
    A.I(f'v_mov_b64 {v(sets[1] + 4, 2)}, 0')
    A.I(f'v_mfma_f32_16x16x32_bf16 {v(O1, 4)}, {v(VX + 4, 4)}, {v(P, 4)}, {v(O1, 4)}')
    A.I(f'v_mov_b64 {v(sets[1] + 6, 2)}, 0')
    A.I(f'v_mov_b64 {v(sets[3], 2)}, 0')
    A.I(f'v_rcp_f32 v{mx}, v{Lr}')
    A.I(f'v_mov_b64 {v(sets[3] + 2, 2)}, 0')
    A.I(f'v_mov_b64 {v(sets[3] + 4, 2)}, 0')
    OW = X0

    def pkmul(r):
        A.I(f'v_pk_mul_f32 {v(r, 2)}, {v(r, 2)}, {v(mx, 2)} op_sel:[0,0] op_sel_hi:[1,0]')

    pkmul(O0)
    pkmul(O0 + 2)
    A.I(f'v_cvt_pk_bf16_f32 v{OW}, v{O0}, v{O0 + 1}')
    A.I(f'v_cvt_pk_bf16_f32 v{OW + 1}, v{O0 + 2}, v{O0 + 3}')
    pkmul(O1)
    pkmul(O1 + 2)
    A.I(f'v_cvt_pk_bf16_f32 v{OW + 2}, v{O1}, v{O1 + 1}')
    A.I(f'v_cvt_pk_bf16_f32 v{OW + 3}, v{O1 + 2}, v{O1 + 3}')
    A.I(f'ds_write_b128 v{V_OW}, {v(OW, 4)}')
    stamp(4)
    A.I(f'v_lshrrev_b32 v{mx}, 2, v{V_L16}')
    A.I(f'v_add_u32 v{tm}, v{tm}, v{mx}')
    A.I(f'ds_write_b64 v{tm}, {v(VMP, 2)} offset:{L_VM}')
    zero(A, sets[2], 8)
    A.I(f'v_mov_b64 {v(sets[3] + 6, 2)}, 0')
    A.I('s_waitcnt lgkmcnt(1)')
    A.I('s_barrier')
    OF = VX
    A.I(f'ds_read_b128 {v(OF, 4)}, v{V_L16} offset:{L_OX}')
    A.I(f'ds_read_b128 {v(OF + 4, 4)}, v{V_L16} offset:{L_OX + 1024}')
    OBUF = {(6, 0): 0, (7, 0): 8, (6, 1): 24, (7, 1): KX + 8}
    A.I(f's_add_u32 s{S_PB0H}, s{S_PB0}, 4096')
    A.I('s_waitcnt lgkmcnt(1)')
    stamp(5)

    def post(c):
        a0, b0 = sets[c], sets[c] + 4
        o = (OW if c < 2 else P) + 2 * (c & 1)
        if c == 3:
            l = [f'v_pk_add_f32 {v(a0, 2)}, {v(a0, 2)}, {v(a0 + 2, 2)}',
                 f'v_pk_add_f32 {v(b0, 2)}, {v(b0, 2)}, {v(b0 + 2, 2)}']
        else:
            l = [f'v_add_f32 v{a0}, v{a0}, v{a0 + 2}', f'v_add_f32 v{a0 + 1}, v{a0 + 1}, v{a0 + 3}',
                 f'v_add_f32 v{b0}, v{b0}, v{b0 + 2}', f'v_add_f32 v{b0 + 1}, v{b0 + 1}, v{b0 + 3}']
        l += [f'v_cvt_pk_bf16_f32 v{o}, v{a0}, v{b0}',
              f'v_cvt_pk_bf16_f32 v{o + 1}, v{a0 + 1}, v{b0 + 1}',
              f'v_bfi_b32 v{o}, 1, s{S_TAG}, v{o}']
        if c & 1:
            l.append(f'buffer_store_dwordx4 {v(o - 2, 4)}, v{V_PBW}, {ws}, s{S_PB0} offen offset:{128 * (c >> 1)} {st}')
        return l

    def womf(c, t2, bb):
        nbo = 2 * c + bb
        b = v(OBUF[(nbo, t2)], 8) if (nbo, t2) in OBUF else u(HOME[('o', nbo, t2)], 8)
        A.I(f'v_smfmac_f32_16x16x64_bf16 {v(sets[c] + 4 * bb, 4)}, {v(OF + 4 * t2, 4)}, {b}, v{V_IDX}')

    obr = []
    for f, b in OBUF.items():
        hf, sl = LDS_SLOT[('o',) + f]
        va_ = V_WO1 if hf else V_WO0
        obr.append(f'ds_read_b128 {v(b, 4)}, v{va_} offset:{sl * 2048}')
        obr.append(f'ds_read_b128 {v(b + 4, 4)}, v{va_} offset:{sl * 2048 + 1024}')
    seq = [(c, t2, bb) for c in range(4) for t2 in range(2) for bb in range(2)]
    fill = {i: [] for i in range(16)}
    for i in range(8):
        fill[2 + i // 2 if i < 6 else 5].append(obr[i])
    DM0 = E('DM0', 0)
    for i in range(4):
        fill[DM0 + i].append(dm[i])
    p0, p1, p2 = post(0), post(1), post(2)
    for k, x in enumerate(p0):
        fill[6 + k // 2].append(x)
    for k, x in enumerate(p1):
        fill[10 + k // 2].append(x)
    for k, x in enumerate(p2):
        fill[14 + min(k // 2, 1)].append(x)
    for i, (c, t2, bb) in enumerate(seq):
        if i == 2:
            A.I('s_waitcnt lgkmcnt(0)')
        if i == 12:
            A.I('s_waitcnt lgkmcnt(0)')
        womf(c, t2, bb)
        for x in fill[i]:
            A.I(x)
    A.I(f's_cmp_ge_u32 s{S_WV}, 2')
    for x in post(3):
        A.I(x)
    stamp(6)
    stamp_acc()
    if STAMPS:
        A.I(f's_cmp_ge_u32 s{S_WV}, 2')
    if kvcheck:
        lke = A.newlabel('L_ke')
        A.I(f's_cmp_lg_u32 s{S_RA2}, s{S_RA}')
        A.I(f's_cbranch_scc1 {lke}')
        A.I('s_waitcnt vmcnt(9)')
        A.I(f'v_mov_b32 v{T + 8}, v{V_SP}')
        kv_eval(A, T + 8, V_L16, S_AV)
        lk2 = A.newlabel('L_ke2')
        A.br(f's_branch {lk2}')
        A.label(lke)
        for i in range(3):
            A.I('s_nop 7')
        A.label(lk2)
        A.I(f's_add_u32 s23, s{S_STEP}, 8')
        A.I('s_min_u32 s23, s23, 64')
        A.I(f's_cmp_lt_u32 s{S_AV}, s23')
        A.I(f's_cselect_b32 s{S_RA2}, s{S_RA}, 0x7f000000')
        A.I(f's_cmp_ge_u32 s{S_WV}, 2')
    zero(A, ACC, 8)
    A.I(f's_cbranch_scc1 {L_w23}')
    A.I(f'v_cndmask_b32 v{SEL}, 0, v{V_SEL}, s[{S_M0}:{S_M0 + 1}]')
    A.I(f'v_cndmask_b32 v{SEL + 1}, 0, v{V_SEL}, s[{S_M1}:{S_M1 + 1}]')
    A.I(f'v_mov_b64 {v(SEL + 2, 2)}, {v(SEL, 2)}')
    if E('PBW', 0):
        A.I('s_waitcnt vmcnt(0)')
    for i in range(PB_DELAY - (4 if kvcheck else 0)):
        A.I('s_nop 7')
    pb_loads(RA)
    hstamp(2)
    q_prefetch(A, 0)
    for i in range(PB_GAP):
        A.I('s_nop 7')
    if TWO_PB:
        pb_loads(RB)
    q_prefetch(A, 1)
    A.br(f's_branch {L_top}')
    A.label(L_w23)
    A.forget_loads()
    q_prefetch(A)
    if os.environ.get('DIAG2'):
        ld_ = A.newlabel('L_d2')
        A.I(f's_add_u32 s80, s{S_H}, s{S_WV}')
        A.I('s_cmp_lg_u32 s80, 2')
        A.I(f's_cbranch_scc1 {ld_}')
        A.I('s_mov_b32 s64, 0')
        for i, st_ in enumerate((1, 8, 20, 36, 52)):
            A.I(f's_cmp_eq_u32 s{S_STEP}, {st_}')
            A.I(f's_cselect_b32 s64, {44 + 4 * i}, s64')
        A.I('s_cmp_eq_u32 s64, 0')
        A.I(f's_cbranch_scc1 {ld_}')
        A.I('s_memrealtime s[80:81]')
        A.I('s_waitcnt lgkmcnt(0)')
        A.I('s_sub_u32 s80, s80, s58')
        A.I('v_mov_b32 v0, s80')
        A.I('buffer_store_dword v0, off, s[84:87], s64')
        A.label(ld_)
    if os.environ.get('STEPT'):
        A.I('s_memrealtime s[80:81]')
        A.I('s_waitcnt lgkmcnt(0)')
        A.I('v_mov_b32 v0, s80')
        A.I(f's_lshl_b32 s80, s{S_STEP}, 2')
        A.I(f's_lshl_b32 s81, s{S_H}, 8')
        A.I('s_add_u32 s80, s80, s81')
        A.I(f's_add_u32 s80, s80, 0x{WS_DBG + 0x20000:x}')
        A.I(f'buffer_store_dword v0, off, {ws}, s80')
        A.I('s_memtime s[64:65]')
        A.I('s_waitcnt lgkmcnt(0)')
        A.I('v_mov_b32 v1, s64')
        A.I(f's_add_u32 s80, s80, 0x4000')
        A.I(f'buffer_store_dword v1, off, {ws}, s80')
    hstamp(2); hstamp(3)
    A.br(f's_branch {L_bh}')

    A.check = False
    A.label(L_pslow)
    if TWO_PB:
        red(RB, 0)
        A.I(f's_cbranch_vccz {L_red}')
    pb_loads(RA)
    A.I(f's_sub_u32 s{S_SPIN}, s{S_SPIN}, 1')
    A.I(f's_cbranch_scc1 {l_exit}')
    if TWO_PB:
        for i in range(3):
            A.I('s_nop 7')
        pb_loads(RB)
    A.br(f's_branch {L_top}')
    A.label(L_aslow)
    af_loads(0)
    zero(A, ACC, 8)
    for b in ASETS[1:]:
        A.I('s_waitcnt vmcnt(4)')
        A.I(f'v_max3_u32 v8, v{b}, v{b + 1}, v{b + 2}')
        A.I(f'v_max3_u32 v9, v{b + 3}, v{b + 4}, v{b + 5}')
        A.I(f'v_mov_b64 {v(10, 2)}, {v(b, 2)}')
        A.I(f'v_max3_u32 v8, v8, v{b + 6}, v{b + 7}')
        A.I(f'v_max_u32 v8, v8, v9')
        A.I(f'v_cmp_eq_u32 vcc, -1, v8')
        lf = A.newlabel('L_af_f')
        A.I(f's_cbranch_vccnz {lf}')
        for i in range(0, 8, 2):
            A.I(f'v_mov_b64 {v(i, 2)}, {v(b + i, 2)}')
        A.br(f's_branch {L_afok}')
        A.label(lf)
        af_loads(b)
    A.I(f's_sub_u32 s{S_SPIN}, s{S_SPIN}, 1')
    A.I(f's_cbranch_scc1 {l_exit}')
    A.br(f's_branch {L_afchk}')
    if kvcheck:
        A.label(L_kvc)
        A.I(f's_cmp_eq_u32 s23, 64')
        A.I(f's_cbranch_scc1 {L_kvr}')
        kv_wait(A, l_exit, 23, ACC + 16)
        A.br(f's_branch {L_kvr}')
    A.label(L_fin)
    A.I(f'v_add_u32 v{V_MX}, s{S_W640}, v{V_KR}')
    A.I(f'ds_read_b128 {v(T, 4)}, v{V_MX}')
    mf('v', 1, 3)
    for t in range(4, 8):
        mf('v', 0, t)
        mf('v', 1, t)
    A.I(f'v_lshrrev_b32 v{V_TM}, 1, v{V_L16}')
    A.I('s_waitcnt lgkmcnt(0)')
    A.I(f'buffer_store_dwordx4 {v(T, 4)}, v{V_L16}, {ws}, s{S_KMO} offen sc1')
    A.I(f'v_pk_add_f32 {v(va, 2)}, {v(va, 2)}, {v(va + 2, 2)}')
    A.I(f'v_pk_add_f32 {v(vb, 2)}, {v(vb, 2)}, {v(vb + 2, 2)}')
    A.I(f'v_cvt_pk_bf16_f32 v{VMP}, v{va}, v{va + 1}')
    A.I(f'v_cvt_pk_bf16_f32 v{VMP + 1}, v{vb}, v{vb + 1}')
    A.I(f'buffer_store_dwordx2 {v(VMP, 2)}, v{V_TM}, {ws}, s{S_VMO} offen sc1')
    if kvcheck:
        A.I('v_mov_b32 v6, 65')
        A.I('s_waitcnt vmcnt(0)')
        A.I('s_mov_b64 exec, 1')
        A.I(f'buffer_store_dword v6, off, {ws}, s{S_KP} sc1')
        A.I('s_mov_b64 exec, -1')
    A.br(f's_branch {l_exit}')
    A.check = True
    A.forget_loads()


def rec_kernel(A, name):
    kernel_begin(A, name)
    l_exit = A.newlabel('L_exit')
    P_WS, P_DBG, P_Q, P_K, P_V, P_O, P_M0 = 16, 18, 20, 22, 24, 26, 28
    A.I(f's_cmp_ge_u32 s2, 256')
    A.I(f's_cbranch_scc1 {l_exit}')
    A.I(f's_load_dwordx2 s[{P_WS}:{P_WS + 1}], s[0:1], {KA_WS}')
    A.I(f's_load_dwordx2 s[{P_DBG}:{P_DBG + 1}], s[0:1], {KA_DBG}')
    A.I(f's_load_dwordx4 s[{P_Q}:{P_Q + 3}], s[0:1], {KA_WQ}')
    A.I(f's_load_dwordx4 s[{P_V}:{P_V + 3}], s[0:1], {KA_WV}')
    A.I(f's_load_dwordx2 s[{P_M0}:{P_M0 + 1}], s[0:1], {KA_MEM0}')
    A.I('v_lshrrev_b32 v1, 6, v0')
    A.I(f'v_and_b32 v{LANE}, 63, v0')
    A.I(f'v_readfirstlane_b32 s{S_WV}, v1')
    A.I(f's_getreg_b32 s{S_T0}, hwreg(HW_REG_XCC_ID)')
    A.I(f's_and_b32 s{S_T0}, s{S_T0}, 15')
    A.I('s_waitcnt lgkmcnt(0)')
    make_srd(A, S_WS, P_WS, WS_SIZE)
    make_srd(A, S_DBG, P_DBG, 256)
    A.I(f's_cmp_lg_u32 s{S_T0}, 0')
    A.I(f's_cbranch_scc1 {l_exit}')
    A.I(f's_mov_b32 s{S_SPIN}, 2000000')
    dbg = f's[{S_DBG}:{S_DBG + 3}]'
    A.I('v_mov_b32 v2, 1')
    A.I('v_mov_b32 v3, 0')
    A.I('v_cmp_eq_u32 vcc, 0, v0')
    A.I('s_and_saveexec_b64 s[30:31], vcc')
    lsk = A.newlabel('L_sk')
    A.I(f's_cbranch_execz {lsk}')
    A.I(f'buffer_atomic_add v2, v3, {dbg}, 0 offen sc0')
    A.I('s_waitcnt vmcnt(0)')
    A.I('ds_write_b32 v3, v2')
    A.I('s_waitcnt lgkmcnt(0)')
    A.label(lsk)
    A.I('s_mov_b64 exec, s[30:31]')
    A.I('s_barrier')
    A.I('ds_read_b32 v2, v3')
    A.I('s_waitcnt lgkmcnt(0)')
    A.I(f'v_readfirstlane_b32 s{S_H}, v2')
    A.I('s_barrier')
    A.I(f's_cmp_ge_u32 s{S_H}, 32')
    A.I(f's_cbranch_scc1 {l_exit}')
    A.I(f's_memrealtime s[{S_TS}:{S_TS + 1}]')
    setup_consts(A)
    st = STF
    init_exchange(A, P_M0, st)
    A.I('s_barrier')
    A.I('v_mov_b32 v2, 1')
    A.I('v_mov_b32 v3, 64')
    A.I('v_cmp_eq_u32 vcc, 0, v0')
    A.I('s_and_saveexec_b64 s[30:31], vcc')
    lsk = A.newlabel('L_sk')
    A.I(f's_cbranch_execz {lsk}')
    A.I(f'buffer_atomic_add v2, v3, {dbg}, 0 offen')
    A.label(lsk)
    A.I('s_mov_b64 exec, s[30:31]')
    A.I('s_waitcnt vmcnt(0)')
    stage_weights(A, [P_Q, P_K, P_V, P_O])
    A.I(f's_lshl_b32 s{S_KVN}, s{S_H}, 13')
    A.I(f's_add_u32 s{S_KVN}, s{S_KVN}, s{S_W11}')
    A.I(f's_add_u32 s{S_KVN}, s{S_KVN}, 0x{WS_KF:x}')
    A.I(f's_add_u32 s{S_KVM0}, s{S_W11}, {L_KV}')
    kv_dma(A)
    lw = A.newlabel('L_tw')
    A.I('v_mov_b32 v3, 64')
    A.label(lw)
    A.I(f'buffer_load_dword v2, v3, {dbg}, 0 offen sc1')
    A.I(f's_sub_u32 s{S_SPIN}, s{S_SPIN}, 1')
    A.I(f's_cbranch_scc1 {l_exit}')
    A.I('s_waitcnt vmcnt(0)')
    A.I(f'v_readfirstlane_b32 s{S_T0}, v2')
    A.I(f's_cmp_lt_u32 s{S_T0}, 32')
    A.I(f's_cbranch_scc1 {lw}')
    A.I('s_barrier')
    A.I(f's_memrealtime s[{S_TS + 2}:{S_TS + 3}]')
    A.I('s_waitcnt lgkmcnt(0)')
    l_done = A.newlabel('L_done')
    main_loop(A, st, l_done)
    A.label(l_done)
    A.forget_loads()
    A.I(f's_memrealtime s[{S_TS + 4}:{S_TS + 5}]')
    A.I('s_waitcnt lgkmcnt(0) vmcnt(0)')
    A.I(f's_lshl_b32 s{S_T0}, s{S_H}, 2')
    A.I(f's_add_u32 s{S_T0}, s{S_T0}, s{S_WV}')
    A.I(f's_lshl_b32 s{S_T0}, s{S_T0}, 5')
    A.I(f's_add_u32 s{S_T0}, s{S_T0}, 0x{WS_DBG:x}')
    for i in range(6):
        A.I(f'v_mov_b32 v{i}, s{S_TS + i}')
    A.I(f'v_mov_b32 v6, s{S_STEP}')
    A.I(f'v_mov_b32 v7, s{S_SPIN}')
    A.I('v_mov_b32 v8, 0')
    A.I(f'buffer_store_dwordx4 v[0:3], v8, s[{S_WS}:{S_WS + 3}], s{S_T0} offen')
    A.I(f'buffer_store_dwordx4 v[4:7], v8, s[{S_WS}:{S_WS + 3}], s{S_T0} offen offset:16')
    if STAMPS:
        A.I(f's_add_u32 s{S_T0}, s{S_T0}, s{S_T0}')
        A.I(f's_sub_u32 s{S_T0}, s{S_T0}, 0x{WS_DBG - 0x10000:x}')
        for i in range(12):
            A.I(f'v_mov_b32 v{12 + i}, s{88 + i}')
        for i in range(3):
            A.I(f'buffer_store_dwordx4 {v(12 + 4 * i, 4)}, v8, s[{S_WS}:{S_WS + 3}], s{S_T0} offen offset:{16 * i}')
    A.label(l_exit)
    A.I('s_endpgm')


if __name__ == '__main__':
    A = Asm()
    rec_kernel(A, 'rec_kernel')
    txt = header([('rec_kernel', 256, 256, L_TOTAL)]) + A.text() + '.section .rodata,"a"\n' + kernel_desc('rec_kernel', 512, 256)
    open('work/' + OUT, 'w').write(txt)
    print('ok', len(txt))
```

```python
import os
os.environ.setdefault('PB_DELAY', '7'); os.environ.setdefault('AF_DELAY', '2'); os.environ.setdefault('AF_GAP', '2')
from common import *
import tok2 as T
import rec9 as R
from tok2 import f32, S_WS, S_W, S_X, S_H, S_WV, S_G, S_T0, S_T1, S_T2, S_T3

S_DBG = 84
S_SPIN = R.S_SPIN
S_XCC = 83
S_LNO = 82
F_OPC = WS_FLAG + 0x4000
F_LH = WS_FLAG + 0x6000
F_LU = WS_FLAG + 0x8000
F_GF = WS_FLAG + 0x8400
S_FAST = S_XCC
D_GB, D_OVF, D_WEIRD, D_TS, D_TI = 128, 36, 40, 192, 196
S_J, S_BO2, S_LB2 = 100, 101, 3
S_J2 = 63
S_W1, S_B1, S_W2 = 88, 92, 96
NEARLY = int(os.environ.get('NEARLY', 2))
STAG = int(os.environ.get('STAG', 4))
STAG0 = int(os.environ.get('STAG0', 1))
TIMING = bool(os.environ.get('TIMING'))
OPRING = int(os.environ.get('OPRING', 0))
WARM = int(os.environ.get('WARM', 0))
E_IMM = int(os.environ.get('IMM', 62))
SPEC = int(os.environ.get('SPEC', 0))
WBL = int(os.environ.get('WBL', 0))
DIAG = bool(os.environ.get('DIAG'))
TAIL_BYTES = int(os.environ.get('TAIL_BYTES', 24576))
CODET = int(os.environ.get('CODET', 0))
CODE_BYTES = int(os.environ.get('CODE_BYTES', 57344))
PLF = os.environ.get('PLF', 'sc1').replace('_', ' ')


def lane0(A, body):
    A.I('s_mov_b64 exec, 1')
    body()
    A.I('s_mov_b64 exec, -1')


def poll_eq(A, srd, s_off, imm, expect, vt, l_exit, sleep=0):
    l = A.newlabel('L_poll')
    A.label(l)
    so = f's{s_off}' if s_off is not None else '0'
    A.I(f'buffer_load_dword v{vt}, off, {srd}, {so} offset:{imm} sc1')
    A.I(f's_sub_u32 s{S_SPIN}, s{S_SPIN}, 1')
    A.I(f's_cbranch_scc1 {l_exit}')
    A.I('s_waitcnt vmcnt(0)')
    A.I(f'v_readfirstlane_b32 s{S_T0}, v{vt}')
    ld = A.newlabel('L_pd')
    A.I(f's_cmp_eq_u32 s{S_T0}, {expect}')
    A.I(f's_cbranch_scc1 {ld}')
    if sleep:
        A.I(f's_sleep {sleep}')
    A.br(f's_branch {l}')
    A.label(ld)


def poll_flags(A, s_off, nlanes, width, vt, va, l_exit, sleep=0, mask=None):
    ws = f's[{S_WS}:{S_WS + 3}]'
    l, ld = A.newlabel('L_pf'), A.newlabel('L_pfd')
    A.I(f'v_lshlrev_b32 v{va}, {2 if width == 1 else 3}, v0')
    assert nlanes <= 32
    A.I(f's_mov_b32 exec_lo, 0x{((1 << nlanes) - 1) if mask is None else mask:x}')
    A.I('s_mov_b32 exec_hi, 0')
    A.label(l)
    if width == 1:
        A.I(f'buffer_load_dword v{vt}, v{va}, {ws}, s{s_off} offen {PLF}')
    else:
        A.I(f'buffer_load_dwordx2 {v(vt, 2)}, v{va}, {ws}, s{s_off} offen {PLF}')
    A.I(f's_sub_u32 s{S_SPIN}, s{S_SPIN}, 1')
    A.I(f's_cbranch_scc1 {l_exit}')
    A.I('s_waitcnt vmcnt(0)')
    if width == 2:
        A.I(f'v_min_u32 v{vt}, v{vt}, v{vt + 1}')
    A.I(f'v_cmp_eq_u32 vcc, 0, v{vt}')
    A.I(f's_cbranch_vccz {ld}')
    if sleep:
        A.I(f's_sleep {sleep}')
    A.br(f's_branch {l}')
    A.label(ld)
    A.I('s_mov_b64 exec, -1')


def flag_store(A, s_addr, vt):
    ws = f's[{S_WS}:{S_WS + 3}]'
    l1, l2 = A.newlabel('L_fs'), A.newlabel('L_fs')
    A.I(f'v_mov_b32 v{vt}, 1')
    A.I('s_mov_b64 exec, 1')
    A.I(f's_cmp_eq_u32 s{S_FAST}, 0')
    A.br(f's_cbranch_scc1 {l1}')
    A.I(f'buffer_store_dword v{vt}, off, {ws}, s{s_addr}')
    A.br(f's_branch {l2}')
    A.label(l1)
    A.I(f'buffer_store_dword v{vt}, off, {ws}, s{s_addr} sc1')
    A.label(l2)
    A.I('s_mov_b64 exec, -1')


def garrive(A, s_line, s_goff, vt, l_exit):
    ws = f's[{S_WS}:{S_WS + 3}]'
    A.I(f's_lshl_b32 s{S_T1}, s{S_H}, 2')
    A.I(f's_add_u32 s{S_T1}, s{S_T1}, s{s_line}')
    flag_store(A, S_T1, vt)
    l = A.newlabel('L_ga')
    A.I(f's_cmp_lg_u32 s{S_H}, 0')
    A.br(f's_cbranch_scc1 {l}')
    poll_flags(A, s_line, 32, 1, vt, vt + 1, l_exit)
    A.I(f'v_lshlrev_b32 v{vt + 1}, 9, v0')
    A.I(f'v_mov_b32 v{vt}, 1')
    A.I('s_mov_b64 exec, 0xff')
    A.I(f'buffer_store_dword v{vt}, v{vt + 1}, {ws}, s{s_goff} offen sc1')
    A.I('s_mov_b64 exec, -1')
    A.label(l)


def wg_poll_eq(A, srd, s_off, imm, expect, vt, l_exit, sleep=0):
    l0 = A.newlabel('L_wgp')
    A.I(f's_cmp_lg_u32 s{S_WV}, 0')
    A.br(f's_cbranch_scc1 {l0}')
    poll_eq(A, srd, s_off, imm, expect, vt, l_exit, sleep)
    A.label(l0)
    A.I('s_barrier')


L_TS = 160000


def tstamp(A, idx, r=14):
    if not TIMING:
        return
    l = A.newlabel('L_ts')
    A.I(f's_cmp_lg_u32 s{S_WV}, 0')
    A.br(f's_cbranch_scc1 {l}')
    chk = A.check
    A.check = False
    A.I('s_memrealtime s[80:81]')
    A.I('s_waitcnt lgkmcnt(0)')
    if idx in (0, 1, 2, 7, 8):
        A.I(f'v_mov_b32 v{r}, s80')
        A.I(f'v_mov_b32 v{r + 1}, s81')
        A.I(f's_lshl_b32 s80, s{S_G}, 5')
        A.I(f's_add_u32 s80, s80, s{S_H}')
        A.I('s_lshl_b32 s80, s80, 8')
        A.I(f's_add_u32 s80, s80, 0x{WS_DBG:x}')
        A.I(f'buffer_store_dwordx2 {v(r, 2)}, off, s[{S_WS}:{S_WS + 3}], s80 offset:{8 * idx}')
    else:
        A.I(f'v_mov_b32 v{r}, s80')
        A.I(f'v_mov_b32 v{r + 1}, {L_TS + 8 * idx}')
        A.I(f'ds_write_b32 v{r + 1}, v{r}')
        A.I(f'v_mov_b32 v{r}, s81')
        A.I(f'ds_write_b32 v{r + 1}, v{r} offset:4')
        if idx == 6:
            A.I(f'v_lshlrev_b32 v{r}, 2, v0')
            A.I(f'v_add_u32 v{r + 1}, {L_TS}, v{r}')
            A.I('s_waitcnt lgkmcnt(0)')
            A.I(f'ds_read_b32 v{r + 1}, v{r + 1}')
            A.I(f's_lshl_b32 s80, s{S_G}, 5')
            A.I(f's_add_u32 s80, s80, s{S_H}')
            A.I('s_lshl_b32 s80, s80, 8')
            A.I(f's_add_u32 s80, s80, 0x{WS_DBG + 0x40000:x}')
            A.I('s_waitcnt lgkmcnt(0)')
            A.I(f'buffer_store_dword v{r + 1}, v{r}, s[{S_WS}:{S_WS + 3}], s80 offen')
    A.check = chk
    A.label(l)


def mega_kernel(A, name):
    kernel_begin(A, name)
    l_exit = A.newlabel('L_exit')
    P_WS, P_DBG, P_Q, P_K, P_V, P_O, P_M0, P_X = 16, 18, 20, 22, 24, 26, 28, 30
    ws, dbg, sx = f's[{S_WS}:{S_WS + 3}]', f's[{S_DBG}:{S_DBG + 3}]', f's[{S_X}:{S_X + 3}]'
    A.I('s_cmp_ge_u32 s2, 256')
    A.I(f's_cbranch_scc1 {l_exit}')
    if DIAG:
        A.I('s_memrealtime s[58:59]')
    A.I(f's_load_dwordx2 s[{P_WS}:{P_WS + 1}], s[0:1], {KA_WS}')
    A.I(f's_load_dwordx2 s[{P_DBG}:{P_DBG + 1}], s[0:1], {KA_DBG}')
    A.I(f's_load_dwordx4 s[{P_Q}:{P_Q + 3}], s[0:1], {KA_WQ}')
    A.I(f's_load_dwordx4 s[{P_V}:{P_V + 3}], s[0:1], {KA_WV}')
    A.I(f's_load_dwordx2 s[{P_M0}:{P_M0 + 1}], s[0:1], {KA_MEM0}')
    A.I(f's_load_dwordx2 s[{P_X}:{P_X + 1}], s[0:1], {KA_X}')
    A.I('v_lshrrev_b32 v1, 6, v0')
    A.I('v_and_b32 v0, 63, v0')
    A.I(f'v_readfirstlane_b32 s{S_WV}, v1')
    A.I(f's_getreg_b32 s{S_XCC}, hwreg(HW_REG_XCC_ID)')
    if os.environ.get('FAKE') == '1':
        A.I(f's_lshr_b32 s{S_XCC}, s2, 5')
    if os.environ.get('FAKE') == '2':
        A.I(f's_lshr_b32 s{S_XCC}, s2, 5')
        A.I(f's_max_u32 s{S_XCC}, s{S_XCC}, 2')
    if os.environ.get('FAKE') == '3':
        A.I(f's_lshr_b32 s{S_XCC}, s2, 4')
    A.I(f's_mov_b32 s{S_SPIN}, 0x80000')
    A.I('s_waitcnt lgkmcnt(0)')
    make_srd(A, S_WS, P_WS, WS_SIZE)
    make_srd(A, S_DBG, P_DBG, 256)
    make_srd(A, S_X, P_X, 2048 * 1024)
    LX, LF = 32, 48
    lnl = A.newlabel('L_l0')
    A.I('v_and_b32 v24, 15, v0')
    A.I('v_lshrrev_b32 v25, 4, v0')
    A.I('s_cmp_ge_u32 s2, 128')
    A.br(f's_cbranch_scc1 {lnl}')
    A.I('v_lshlrev_b32 v26, 10, v24')
    A.I('v_lshl_add_u32 v26, v25, 4, v26')
    A.I(f's_lshl_b32 s{S_LNO}, s2, 14')
    A.I(f's_lshl_b32 s{S_T0}, s{S_WV}, 8')
    A.I(f's_add_u32 s{S_T0}, s{S_T0}, s{S_LNO}')
    for i in range(4):
        A.I(f'buffer_load_dwordx4 {v(LX + 4 * i, 4)}, v26, {sx}, s{S_T0} offen offset:{64 * i}')
    A.label(lnl)
    A.forget_loads()
    if CODET:
        lct = A.newlabel('L_ct')
        A.I(f's_cmp_lg_u32 s{S_WV}, 3')
        A.br(f's_cbranch_scc1 {lct}')
        A.I('s_cmp_ge_u32 s2, 16')
        A.br(f's_cbranch_scc1 {lct}')
        code_touch(A, name, l_exit, CODE_BYTES, 255, 3)
        A.label(lct)
    lr = A.newlabel('L_role_done')
    lr0 = A.newlabel('L_role0')
    A.I('s_mov_b32 s60, 0')
    A.I(f's_cmp_eq_u32 s{S_WV}, 0')
    A.br(f's_cbranch_scc1 {lr0}')
    if SPEC:
        A.I(f's_cmp_ge_u32 s{S_XCC}, 3')
        A.br(f's_cbranch_scc1 {lr}')
        A.I(f's_cmp_eq_u32 s{S_WV}, 3')
        A.br(f's_cbranch_scc1 {lr}')
        A.I(f's_cmp_eq_u32 s{S_XCC}, 0')
        A.I(f's_cselect_b32 s{S_W}, s{P_Q}, s{P_K}')
        A.I(f's_cselect_b32 s{S_W + 1}, s{P_Q + 1}, s{P_K + 1}')
        A.I(f's_and_b32 s{S_W + 1}, s{S_W + 1}, 0xffff')
        A.I(f's_mov_b32 s{S_W + 2}, 0x400000')
        A.I(f's_mov_b32 s{S_W + 3}, 0x{SRD3:x}')
        A.I('v_lshrrev_b32 v2, 1, v0')
        A.I('v_lshlrev_b32 v2, 13, v2')
        A.I('v_and_b32 v3, 1, v0')
        A.I('v_lshl_add_u32 v2, v3, 7, v2')
        A.I(f's_lshr_b32 s{S_T0}, s2, 3')
        A.I(f's_lshl_b32 s{S_T0}, s{S_T0}, 8')
        A.I(f's_sub_u32 s{S_T1}, s{S_WV}, 1')
        A.I(f's_lshl_b32 s{S_T1}, s{S_T1}, 18')
        A.I(f's_add_u32 s{S_T0}, s{S_T0}, s{S_T1}')
        A.check = False
        for i in range(8):
            A.I(f'buffer_load_dword v255, v2, s[{S_W}:{S_W + 3}], s{S_T0} offen')
            A.I(f's_add_u32 s{S_T0}, s{S_T0}, {64 * 8192}')
        A.I('s_waitcnt vmcnt(8)')
        A.I('s_mov_b32 s60, 1')
        A.check = True
        A.forget_loads()
    A.br(f's_branch {lr}')
    A.label(lr0)
    A.I('s_mov_b64 exec, 1')
    A.I('v_mov_b32 v2, 1')
    lw = A.newlabel('L_nw')
    A.I(f's_cmp_lt_u32 s{S_XCC}, 8')
    A.br(f's_cbranch_scc1 {lw}')
    A.I(f'buffer_atomic_or v2, off, {dbg}, 0 offset:{D_WEIRD}')
    A.I('s_waitcnt vmcnt(0)')
    A.label(lw)
    A.I(f's_and_b32 s{S_G}, s{S_XCC}, 7')
    A.I(f's_lshl_b32 s{S_T0}, s{S_G}, 2')
    A.I(f'buffer_atomic_add v2, off, {dbg}, s{S_T0} sc0')
    A.I('s_waitcnt vmcnt(0)')
    A.I(f'v_readfirstlane_b32 s{S_H}, v2')
    lok = A.newlabel('L_rok')
    A.I(f's_cmp_lt_u32 s{S_H}, 32')
    A.br(f's_cbranch_scc1 {lok}')
    A.I('v_mov_b32 v2, 1')
    A.I(f'buffer_atomic_add v2, off, {dbg}, 0 offset:{D_OVF} sc0')
    A.I('s_waitcnt vmcnt(0)')
    A.I(f'v_readfirstlane_b32 s{S_T3}, v2')
    lo = A.newlabel('L_ovf')
    A.label(lo)
    A.I(f'buffer_load_dwordx4 v[4:7], off, {dbg}, 0 sc1')
    A.I(f'buffer_load_dwordx4 v[8:11], off, {dbg}, 0 offset:16 sc1')
    A.I(f's_sub_u32 s{S_SPIN}, s{S_SPIN}, 1')
    A.I(f's_cbranch_scc1 {l_exit}')
    A.I('s_waitcnt vmcnt(0)')
    A.I(f's_mov_b32 s{S_T0}, 0')
    for i in range(8):
        A.I(f'v_readfirstlane_b32 s{64 + i}, v{4 + i}')
    for i in range(8):
        A.I(f's_add_u32 s{S_T0}, s{S_T0}, s{64 + i}')
    A.I(f's_cmp_lt_u32 s{S_T0}, 256')
    A.br(f's_cbranch_scc1 {lo}')
    for g in range(8):
        A.I(f's_min_u32 s{S_T0}, s{64 + g}, 32')
        A.I(f's_sub_u32 s{S_T1}, 32, s{S_T0}')
        A.I(f's_mov_b32 s{S_G}, {g}')
        A.I(f's_add_u32 s{S_H}, s{S_T0}, s{S_T3}')
        A.I(f's_cmp_lt_u32 s{S_T3}, s{S_T1}')
        A.br(f's_cbranch_scc1 {lok}')
        A.I(f's_sub_u32 s{S_T3}, s{S_T3}, s{S_T1}')
    A.I(f's_mov_b32 s{S_G}, 0x100')
    A.I(f's_mov_b32 s{S_H}, 0')
    A.label(lok)
    A.I(f's_lshl_b32 s{S_T0}, s{S_G}, 8')
    A.I(f's_or_b32 s{S_T0}, s{S_T0}, s{S_H}')
    A.I(f'v_mov_b32 v2, s{S_T0}')
    A.I('v_mov_b32 v3, 0')
    A.I('ds_write_b32 v3, v2')
    A.I('s_waitcnt lgkmcnt(0)')
    A.I('s_mov_b64 exec, -1')
    A.label(lr)
    lno, lnd = A.newlabel('L_lno'), A.newlabel('L_lnd')
    A.I('s_cmp_ge_u32 s2, 128')
    A.br(f's_cbranch_scc1 {lno}')
    A.I(f's_lshl_b32 s{S_T0}, s{S_WV}, 2')
    A.I('v_lshlrev_b32 v27, 4, v24')
    A.I(f'v_add_u32 v26, s{S_T0}, v27')
    lsw = A.newlabel('L_sw')
    A.I('s_cmp_eq_u32 s60, 1')
    A.br(f's_cbranch_scc1 {lsw}')
    A.I('s_waitcnt vmcnt(0)')
    A.label(lsw)
    for i in range(16):
        A.I(f'v_lshlrev_b32 v{LF + 2 * i}, 16, v{LX + i}')
        A.I(f'v_and_b32 v{LF + 2 * i + 1}, 0xffff0000, v{LX + i}')
    A.I(f'v_add_f32 v28, v{LF}, v{LF + 1}')
    A.I(f'v_add_f32 v29, v{LF + 2}, v{LF + 3}')
    for i in range(4, 32, 2):
        A.I(f'v_add_f32 v28, v28, v{LF + i}')
        A.I(f'v_add_f32 v29, v29, v{LF + i + 1}')
    A.I('v_add_f32 v28, v28, v29')
    T.xreduce(A, 'v_add_f32', 28, 29)
    A.I('ds_write_b32 v26, v28 offset:64')
    A.I('s_waitcnt lgkmcnt(0)')
    A.I('s_barrier')
    A.I('v_mov_b32 v3, 0')
    A.I('ds_read_b32 v2, v3')
    A.I('ds_read_b128 v[28:31], v27 offset:64')
    A.I('s_waitcnt lgkmcnt(0)')
    A.I('v_add_f32 v28, v28, v29')
    A.I('v_add_f32 v30, v30, v31')
    A.I('v_add_f32 v28, v28, v30')
    A.I(f'v_mul_f32 v28, {f32(1 / 512)}, v28')
    A.I('v_mov_b32 v29, 0')
    A.I('v_mov_b32 v30, 0')
    for i in range(0, 32, 2):
        A.I(f'v_sub_f32 v{LF + i}, v{LF + i}, v28')
        A.I(f'v_sub_f32 v{LF + i + 1}, v{LF + i + 1}, v28')
        A.I(f'v_fmac_f32 v29, v{LF + i}, v{LF + i}')
        A.I(f'v_fmac_f32 v30, v{LF + i + 1}, v{LF + i + 1}')
    A.I('v_add_f32 v29, v29, v30')
    T.xreduce(A, 'v_add_f32', 29, 30)
    A.I('ds_write_b32 v26, v29 offset:320')
    A.I('s_waitcnt lgkmcnt(0)')
    A.I('s_barrier')
    A.I('ds_read_b128 v[28:31], v27 offset:320')
    A.I('s_waitcnt lgkmcnt(0)')
    A.I('v_add_f32 v28, v28, v29')
    A.I('v_add_f32 v30, v30, v31')
    A.I('v_add_f32 v28, v28, v30')
    A.I(f'v_mov_b32 v29, {f32(1e-5)}')
    A.I(f'v_fmac_f32 v29, {f32(1 / 512)}, v28')
    A.I('v_rsq_f32 v29, v29')
    A.I('v_lshlrev_b32 v26, 4, v0')
    A.I(f's_lshl_b32 s{S_T0}, s{S_WV}, 12')
    A.I(f's_add_u32 s{S_T0}, s{S_T0}, s{S_LNO}')
    A.I(f's_add_u32 s{S_T0}, s{S_T0}, 0x{WS_XN:x}')
    for i in range(4):
        for j in range(4):
            f = LF + 8 * i + 2 * j
            A.I(f'v_mul_f32 v{f}, v{f}, v29')
            A.I(f'v_mul_f32 v{f + 1}, v{f + 1}, v29')
            A.I(f'v_cvt_pk_bf16_f32 v{LX + 4 * i + j}, v{f}, v{f + 1}')
        A.I(f'buffer_store_dwordx4 {v(LX + 4 * i, 4)}, v26, {ws}, s{S_T0} offen offset:{1024 * i} sc1')
    A.br(f's_branch {lnd}')
    A.label(lno)
    A.I('s_barrier')
    A.I('v_mov_b32 v3, 0')
    A.I('ds_read_b32 v2, v3')
    A.I('s_waitcnt lgkmcnt(0)')
    A.label(lnd)
    A.forget_loads()
    A.I(f'v_readfirstlane_b32 s{S_T0}, v2')
    A.I(f's_and_b32 s{S_H}, s{S_T0}, 31')
    A.I(f's_bfe_u32 s{S_G}, s{S_T0}, 0x30008')
    A.I(f's_cmp_ge_u32 s{S_T0}, 0x10000')
    A.I(f's_cbranch_scc1 {l_exit}')
    A.I('s_barrier')
    tstamp(A, 0)

    def arrive(off=D_GB):
        l = A.newlabel('L_na')
        A.I(f's_cmp_lg_u32 s{S_WV}, 0')
        A.br(f's_cbranch_scc1 {l}')
        A.I('v_mov_b32 v23, 1')
        lane0(A, lambda: A.I(f'buffer_atomic_add v23, off, {dbg}, 0 offset:{off}'))
        A.label(l)

    def ln_and_arrive(ln=True):
        A.I('s_waitcnt vmcnt(0)')
        A.I('s_barrier')
        arrive()

    l_tok = A.newlabel('L_tok')
    l_g2 = A.newlabel('L_g2')
    A.I(f's_cmp_lg_u32 s{S_G}, 0')
    A.br(f's_cbranch_scc1 {l_tok}')

    A.I(f'v_mov_b32 v{R.LANE}, v0')
    R.setup_consts(A)

    A.I(f's_lshl_b32 s{S_T0}, s{S_H}, 6')
    A.I(f's_lshl_b32 s{S_T1}, s{S_WV}, 2')
    A.I(f's_add_u32 s{S_T0}, s{S_T0}, s{S_T1}')
    A.I(f's_add_u32 s{S_LNO}, s{S_T0}, 0x{R.F_KMP:x}')
    A.I('v_mov_b32 v24, 0')
    lane0(A, lambda: A.I(f'buffer_store_dword v24, off, {ws}, s{S_LNO} sc1'))
    R.init_exchange(A, P_M0, 'sc1', rb=24, part=0)

    def thook():
        A.check = False
        R.init_exchange(A, P_M0, 'sc1', rb=24, part=1)
        A.check = True
        A.forget_loads()

    def h_sc(sc):
        if sc == 0:
            arrive()
            tstamp(A, 8, 24)
        if sc == 1:
            arrive(D_TI)

    S_OK = 25

    def batch():
        A.I(f'buffer_load_dword v25, off, {dbg}, 0 sc1')
        A.I(f'buffer_load_dword v26, off, {dbg}, 0 offset:{D_WEIRD} sc1')
        A.I(f'buffer_load_dword v27, off, {dbg}, 0 offset:{D_TI} sc1')
        R.kv_load(A, 28, R.V_L16, R.S_RA)

    def h_issue(sc):
        if sc == 3:
            A.I(f'buffer_load_dword v24, off, {dbg}, 0 offset:{D_GB} sc1')
            return
        A.I(f's_lshl_b32 s{R.S_RA}, s{S_H}, 7')
        A.I(f's_add_u32 s{R.S_RA}, s{R.S_RA}, 0x{R.F_PROG:x}')
        A.I(f's_lshl_b32 s{R.S_KVN}, s{S_H}, 13')
        A.I(f's_add_u32 s{R.S_KVN}, s{R.S_KVN}, s{R.S_W11}')
        A.I(f's_add_u32 s{R.S_KVN}, s{R.S_KVN}, 0x{WS_KF:x}')
        A.I(f's_add_u32 s{R.S_KVM0}, s{R.S_W11}, {R.L_KV}')
        batch()

    def evaluate(l_fail):
        R.kv_eval(A, 28, R.V_L16, R.S_AV)
        A.I(f'v_readfirstlane_b32 s{S_T0}, v24')
        A.I(f'v_readfirstlane_b32 s{S_T2}, v25')
        A.I(f'v_readfirstlane_b32 s{S_T3}, v26')
        A.I(f's_cmp_lg_u32 s{S_T0}, 256')
        A.I(f's_cbranch_scc1 {l_fail}')
        A.I(f'v_readfirstlane_b32 s{S_T0}, v27')
        A.I(f's_cmp_lg_u32 s{S_T0}, 32')
        A.I(f's_cbranch_scc1 {l_fail}')
        A.I(f's_cmp_eq_u32 s{R.S_AV}, 0')
        A.I(f's_cbranch_scc1 {l_fail}')
        A.I(f's_cmp_ge_u32 s{S_T2}, 32')
        A.I(f's_cselect_b32 s{S_XCC}, 1, 0')
        A.I(f's_cmp_eq_u32 s{S_T3}, 0')
        A.I(f's_cselect_b32 s{S_XCC}, s{S_XCC}, 0')
        R.kv_dma(A)

    def h_check():
        lf = A.newlabel('L_hf')
        A.I(f's_mov_b32 s{S_OK}, 0')
        evaluate(lf)
        A.I(f's_mov_b32 s{S_OK}, 1')
        A.label(lf)

    R.stage_weights(A, [P_Q, P_K, P_V, P_O], hook=thook, hook_issue=h_issue, hook_check=h_check, hook_sc=h_sc)
    tstamp(A, 1)
    A.I(f's_mov_b32 s{R.S_KP}, s{S_LNO}')
    lgo_, lre = A.newlabel('L_tgo'), A.newlabel('L_tre')
    A.I(f's_cmp_eq_u32 s{S_OK}, 1')
    A.br(f's_cbranch_scc1 {lgo_}')
    A.label(lre)
    A.I('s_sleep 4')
    A.I(f'buffer_load_dword v24, off, {dbg}, 0 offset:{D_GB} sc1')
    A.I('s_waitcnt vmcnt(0)')
    batch()
    A.I(f's_sub_u32 s{S_SPIN}, s{S_SPIN}, 1')
    A.I(f's_cbranch_scc1 {l_exit}')
    A.I('s_waitcnt vmcnt(0)')
    evaluate(lre)
    A.label(lgo_)
    A.I('s_waitcnt vmcnt(0)')
    A.I('s_barrier')
    tstamp(A, 2)
    if DIAG:
        A.I('s_memrealtime s[80:81]')
        A.I('s_waitcnt lgkmcnt(0)')
        A.I('s_sub_u32 s60, s80, s58')
    l_slow = A.newlabel('L_slowmode')
    l_tdone = A.newlabel('L_tdone')
    A.I(f's_cmp_eq_u32 s{S_XCC}, 0')
    if os.environ.get('FORCE_SLOW'):
        A.br(f's_branch {l_slow}')
    else:
        A.br(f's_cbranch_scc1 {l_slow}')
    R.main_loop(A, '', l_tdone, kvcheck=True)
    A.label(l_slow)
    R.main_loop(A, 'sc1', l_tdone, kvcheck=True)
    A.label(l_tdone)
    A.forget_loads()
    A.I(f's_mov_b32 s{S_G}, 0')
    tstamp(A, 3)
    if DIAG:
        A.I('s_memrealtime s[80:81]')
        A.I('s_waitcnt lgkmcnt(0)')
        A.I('s_sub_u32 s61, s80, s58')
    A.I(f'v_lshrrev_b32 v0, 4, v{R.V_L16}')
    j2_calc(A)
    A.I('s_waitcnt vmcnt(0) lgkmcnt(0)')
    A.I('s_barrier')
    g2_setup(A)
    for k in (0, 1, 2, 3, 4, 13):
        g2_dma(A, k)
    A.I(f's_mov_b32 s{S_PRE}, 0')
    A.br(f's_branch {l_g2}')

    A.label(l_tok)
    A.forget_loads()
    S_SEG, S_NX, S_CA, S_END, S_K1, S_AV, S_PB = 36, 41, 42, 43, 44, 45, 46
    j2_calc(A)
    A.I(f's_sub_u32 s{S_G}, s{S_G}, 1')
    A.I(f's_lshl_b32 s{S_J}, s{S_G}, 5')
    A.I(f's_add_u32 s{S_J}, s{S_J}, s{S_H}')

    def tok_init(ln=True):
        A.I(f's_lshl_b32 s{S_CA}, s{S_H}, 7')
        A.I(f's_lshl_b32 s{S_T0}, s{S_G}, 4')
        A.I(f's_add_u32 s{S_CA}, s{S_CA}, s{S_T0}')
        A.I(f's_lshl_b32 s{S_T0}, s{S_WV}, 2')
        A.I(f's_add_u32 s{S_CA}, s{S_CA}, s{S_T0}')
        A.I(f's_add_u32 s{S_CA}, s{S_CA}, 0x{R.F_PROG:x}')
        A.I('v_mov_b32 v22, 0')
        lane0(A, lambda: A.I(f'buffer_store_dword v22, off, {ws}, s{S_CA} sc1'))
        lz = A.newlabel('L_nz')
        A.I(f's_cmp_lg_u32 s{S_J}, 64')
        A.br(f's_cbranch_scc1 {lz}')
        A.I('v_lshlrev_b32 v23, 4, v0')
        for r in range(16, 20):
            A.I(f'v_mov_b32 v{r}, 0')
        A.I(f's_mul_i32 s{S_T0}, s{S_WV}, 6144')
        A.I(f's_add_u32 s{S_T0}, s{S_T0}, 0x{F_OPC:x}')
        A.I(f's_add_u32 s{S_T1}, s{S_T0}, 4096')
        for i in range(4):
            A.I(f'buffer_store_dwordx4 v[16:19], v23, {ws}, s{S_T0} offen offset:{1024 * i} sc1')
        A.I(f'buffer_store_dwordx4 v[16:19], v23, {ws}, s{S_T1} offen sc1')
        A.I(f'buffer_store_dwordx4 v[16:19], v23, {ws}, s{S_T1} offen offset:1024 sc1')
        A.label(lz)
        A.forget_loads()
        if ln:
            ln_and_arrive()
            ts_tok(A, 8)

    l_late = A.newlabel('L_late')
    l_st = A.newlabel('L_st')
    A.I(f's_mov_b32 s{S_K1}, 0')
    l_lt = A.newlabel('L_lt')
    A.I(f's_cmp_ge_u32 s{S_G}, {NEARLY}')
    A.br(f's_cbranch_scc1 {l_lt}')
    tok_init(False)
    A.br(f's_branch {l_st}')
    A.label(l_lt)
    if WARM:
        lwm = A.newlabel('L_wm')
        A.I(f's_cmp_eq_u32 s{S_G}, 3')
        A.br(f's_cbranch_scc1 {lwm}')
        A.I(f's_sub_u32 s{S_T0}, s{S_J}, 96')
        A.I(f's_cmp_eq_u32 s{S_G}, 2')
        A.I(f's_cselect_b32 s{S_T0}, s{S_H}, s{S_T0}')
        A.I(f's_lshl_b32 s{S_T0}, s{S_T0}, 2')
        A.I(f's_add_u32 s{S_T0}, s{S_T0}, s{S_WV}')
        A.I(f's_lshl_b32 s{S_T0}, s{S_T0}, 13')
        A.I('v_lshlrev_b32 v22, 7, v0')
        A.check = False
        for p in (P_Q, P_K, P_V, P_O):
            make_srd(A, S_W, p, 4 << 20)
            A.I(f'buffer_load_dword v255, v22, s[{S_W}:{S_W + 3}], s{S_T0} offen')
        A.check = True
        A.label(lwm)
        A.forget_loads()
    tok_init()
    l_nost = A.newlabel('L_nost')
    wg_poll_eq(A, dbg, None, D_GB, 256, 2, l_exit, sleep=100)
    A.I(f's_cmp_ge_u32 s{S_G}, 4')
    A.br(f's_cbranch_scc1 {l_nost}')
    lsg, lsd = A.newlabel('L_sg'), A.newlabel('L_sd')
    A.I(f's_cmp_lg_u32 s{S_WV}, 0')
    A.br(f's_cbranch_scc1 {lsd}')
    A.I(f's_cmp_eq_u32 s{S_G}, 3')
    A.I(f's_cselect_b32 s{S_T1}, {STAG}, {STAG0}')
    A.I(f's_lshl_b32 s{S_T2}, s{S_H}, 6')
    A.I(f's_add_u32 s{S_T2}, s{S_T2}, 0x{R.F_KMP:x}')
    A.label(lsg)
    A.I(f'buffer_load_dword v2, off, {ws}, s{S_T2} sc1')
    A.I(f's_sub_u32 s{S_SPIN}, s{S_SPIN}, 1')
    A.I(f's_cbranch_scc1 {l_exit}')
    A.I('s_waitcnt vmcnt(0)')
    A.I(f'v_readfirstlane_b32 s{S_T0}, v2')
    A.I(f's_cmp_ge_u32 s{S_T0}, s{S_T1}')
    A.I(f's_cbranch_scc1 {lsd}')
    A.I('s_sleep 40')
    A.br(f's_branch {lsg}')
    A.label(lsd)
    A.I('s_barrier')
    A.I(f's_mov_b32 s{S_K1}, 1')
    A.label(l_st)

    def hook(sc):
        if sc != 0:
            return
        l = A.newlabel('L_hk')
        A.I(f's_cmp_eq_u32 s{S_K1}, 1')
        A.br(f's_cbranch_scc1 {l}')
        arrive()
        ts_tok(A, 8)
        A.label(l)

    T.qkv_stage(A, [P_Q, P_K, P_V], hook_sc=hook)
    A.label(l_nost)
    ts_tok(A, 1)
    wg_poll_eq(A, dbg, None, D_GB, 256, 2, l_exit, sleep=8)
    ts_tok(A, 7)
    A.I(f's_lshl_b32 s{S_T0}, s{S_G}, 2')
    A.I(f'buffer_load_dword v2, off, {dbg}, s{S_T0} offset:4 sc1')
    A.I(f'buffer_load_dword v3, off, {dbg}, 0 offset:{D_WEIRD} sc1')
    A.I('s_waitcnt vmcnt(0)')
    A.I(f'v_readfirstlane_b32 s{S_T2}, v2')
    A.I(f'v_readfirstlane_b32 s{S_T3}, v3')
    A.I(f's_cmp_ge_u32 s{S_T2}, 32')
    A.I(f's_cselect_b32 s{S_FAST}, 1, 0')
    A.I(f's_cmp_eq_u32 s{S_T3}, 0')
    A.I(f's_cselect_b32 s{S_FAST}, s{S_FAST}, 0')
    if os.environ.get('FORCE_SLOW'):
        A.I(f's_mov_b32 s{S_FAST}, 0')
    l_nop1 = A.newlabel('L_nop1')
    A.I(f's_cmp_ge_u32 s{S_G}, 4')
    A.br(f's_cbranch_scc1 {l_nop1}')
    A.I(f's_lshr_b32 s{S_T0}, s{S_G}, 1')
    A.I(f's_lshl_b32 s{S_T0}, s{S_T0}, 5')
    A.I(f's_add_u32 s{S_END}, s{S_T0}, 32')
    A.I(f's_and_b32 s{S_NX}, s{S_G}, 1')
    A.I(f's_add_u32 s{S_NX}, s{S_NX}, s{S_T0}')
    A.I('v_mov_b32 v2, 0')

    def signal():
        lane0(A, lambda: A.I(f'buffer_store_dword v2, off, {ws}, s{S_CA} sc1'))

    def after():
        A.I('v_add_u32 v2, 1, v2')

    T.qkv_segments(A, 2, 'sc1', after_seg=after, mid_seg=signal, first=S_NX, end=f's{S_END}')
    A.I('s_waitcnt vmcnt(0)')
    signal()
    A.label(l_nop1)
    ts_tok(A, 2)
    T.att_stage(A, P_O)
    T.att_consts(A)
    A.I(f's_load_dwordx4 s[16:19], s[0:1], {KA_W1}')
    A.I('s_waitcnt lgkmcnt(0)')
    make_srd(A, S_W1, 16, 2048 * 3584)
    make_srd(A, S_B1, 18, 3584)
    g2_setup(A)
    A.I(f's_mov_b32 s{S_PRE}, 0')
    for i in range(16):
        A.I(f'v_mov_b32 v{G1ACC + i}, 0')
    A.I(f's_mov_b32 s{S_K1}, 0')
    g1_w1_dma(A, S_K1, first=True)
    A.I(f's_lshl_b32 s{S_OPS}, s{S_G}, 1')
    masks = seg_masks()
    for g in range(7):
        A.I(f's_cmp_eq_u32 s{S_G}, {g}')
        A.I(f's_cselect_b32 s{S_MSK}, 0x{masks[g] & 0xffffffff:x}, s{S_MSK}')
        A.I(f's_cselect_b32 s{S_MSK + 1}, 0x{masks[g] >> 32:x}, s{S_MSK + 1}')
    A.I(f's_ff1_i32_b64 s{S_SEG}, s[{S_MSK}:{S_MSK + 1}]')
    A.I(f's_bitset0_b64 s[{S_MSK}:{S_MSK + 1}], s{S_SEG}')
    A.I(f's_mov_b32 s{S_AV}, 0')
    A.I(f's_lshl_b32 s{S_PB}, s{S_H}, 7')
    A.I(f's_add_u32 s{S_PB}, s{S_PB}, 0x{R.F_PROG:x}')
    R.kv_wait(A, l_exit, S_SEG, 192, s_av=S_AV, s_base=S_PB, sleep=4, vlane16=1)
    T.att_load_qkv(A, S_SEG)
    x_prefetch(A, S_SEG, sx)
    L = A.newlabel('L_p2')
    L_att = A.newlabel('L_att')
    L_fin = A.newlabel('L_p2fin')
    A.label(L)
    A.check = False
    A.I(f's_cmp_ge_u32 s{S_K1}, 16')
    A.I(f's_cbranch_scc1 {L_fin}')
    lq2 = A.newlabel('L_lp2')
    ldec = A.newlabel('L_dec')
    A.I(f's_cmp_lg_u32 s{S_WV}, 0')
    A.br(f's_cbranch_scc1 {ldec}')
    A.I(f's_lshl_b32 s{S_CA}, s{S_H}, 6')
    A.I(f's_add_u32 s{S_CA}, s{S_CA}, 0x{R.F_KMP:x}')
    A.I(f's_add_u32 s40, s{S_SEG}, 2')
    A.I(f's_lshl_b32 s{S_T1}, s{S_K1}, 4')
    A.I(f's_lshl_b32 s{S_T2}, s{S_G}, 9')
    A.I(f's_add_u32 s{S_T1}, s{S_T1}, s{S_T2}')
    A.I(f's_add_u32 s{S_T1}, s{S_T1}, 0x{F_GF + 512:x}')
    lq, lgo, lnk = A.newlabel('L_lp'), A.newlabel('L_go'), A.newlabel('L_nk')
    A.label(lq)
    A.I(f'buffer_load_dwordx4 v[192:195], off, {ws}, s{S_CA} {PLF}')
    A.I(f'buffer_load_dwordx4 v[196:199], off, {ws}, s{S_T1} {PLF}')
    A.I(f'buffer_load_dwordx4 v[200:203], off, {ws}, s{S_T1} offset:16 {PLF}')
    A.I(f's_sub_u32 s{S_SPIN}, s{S_SPIN}, 1')
    A.I(f's_cbranch_scc1 {l_exit}')
    A.I('s_waitcnt vmcnt(0)')
    A.I('v_min_u32 v6, v192, v193')
    A.I('v_min3_u32 v6, v6, v194, v195')
    A.I(f'v_readfirstlane_b32 s{S_T0}, v6')
    A.I('v_min_u32 v7, v196, v197')
    A.I('v_min3_u32 v7, v7, v198, v199')
    A.I('v_cmp_eq_u32 vcc, 0, v7')
    A.I(f's_mov_b32 s{S_T3}, 1')
    A.I(f's_cmp_ge_u32 s{S_T0}, s40')
    A.I(f's_cbranch_scc1 {lgo}')
    A.label(lnk)
    lsl = A.newlabel('L_sl')
    A.I(f's_add_u32 s{S_T0}, s{S_T0}, 2')
    A.I(f's_cmp_lt_u32 s40, {E_IMM}')
    A.I(f's_cselect_b32 s{S_T0}, 0, s{S_T0}')
    A.I(f's_cmp_ge_u32 s{S_T0}, s40')
    A.I(f's_cbranch_scc1 {lq}')
    A.I(f's_mul_i32 s{S_T2}, s{S_PRE}, 3')
    A.I(f's_add_u32 s{S_T2}, s{S_T2}, 5')
    A.I(f's_cmp_lt_u32 s{S_PRE}, 2')
    A.I(f's_cselect_b32 s{S_T2}, s{S_T2}, 99')
    A.I(f's_mov_b32 s{S_T3}, 3')
    A.I(f's_cmp_ge_u32 s{S_K1}, s{S_T2}')
    A.I(f's_cbranch_scc1 {lgo}')
    A.I('v_min_u32 v6, v200, v201')
    A.I('v_min3_u32 v6, v6, v202, v203')
    A.I(f'v_readfirstlane_b32 s{S_T2}, v6')
    A.I(f's_cmp_eq_u32 s{S_K1}, 15')
    A.I(f's_cselect_b32 s{S_T2}, 0, s{S_T2}')
    A.I(f's_cmp_eq_u32 s{S_T2}, 0')
    A.I(f's_cselect_b32 s{S_T3}, 2, 4')
    A.I(f's_cbranch_vccz {lgo}')
    lns = A.newlabel('L_nsl')
    A.I(f's_mov_b32 s{S_T3}, 3')
    A.I(f's_cmp_lt_u32 s{S_K1}, 3')
    A.I(f's_cbranch_scc1 {lns}')
    A.I(f's_cmp_lt_u32 s{S_SEG}, 64')
    A.I(f's_cselect_b32 s{S_T2}, 2, 3')
    A.I(f's_cmp_lt_u32 s{S_PRE}, s{S_T2}')
    A.I(f's_cbranch_scc1 {lgo}')
    A.label(lns)
    A.I('s_sleep 4')
    A.I(f's_cmp_ge_u32 s{S_K1}, 14')
    A.I(f's_cbranch_scc1 {lq}')
    A.I(f's_sleep {int(os.environ.get("SLP", 12))}')
    A.br(f's_branch {lq}')
    A.label(lgo)
    A.I(f'v_mov_b32 v6, s{S_T3}')
    A.I(f'v_mov_b32 v7, 156000')
    A.I('ds_write_b32 v7, v6')
    A.I('s_waitcnt lgkmcnt(0)')
    A.label(ldec)
    A.I('s_barrier')
    A.I(f'v_mov_b32 v7, 156000')
    A.I('ds_read_b32 v6, v7')
    A.I('s_waitcnt lgkmcnt(0)')
    A.I(f'v_readfirstlane_b32 s{S_T0}, v6')
    A.I(f's_cmp_eq_u32 s{S_T0}, 1')
    A.br(f's_cbranch_scc1 {lq2}')
    lch = A.newlabel('L_ch')
    A.I(f's_mov_b32 s{S_NX}, s{S_T0}')
    A.I(f's_cmp_lg_u32 s{S_T0}, 3')
    A.br(f's_cbranch_scc1 {lch}')
    for rnd in range(4):
        lpr = A.newlabel('L_pr')
        A.I(f's_cmp_lg_u32 s{S_PRE}, {rnd}')
        A.br(f's_cbranch_scc1 {lpr}')
        g2_pre(A, rnd)
        A.br(f's_branch {L}')
        A.label(lpr)
    A.label(lch)
    ts_tok(A, 16)
    g1_chunk(A, S_K1, l_exit)
    A.I(f's_add_u32 s{S_K1}, s{S_K1}, 1')
    if CODET:
        lct = A.newlabel('L_ct')
        A.I(f's_cmp_lg_u32 s{S_K1}, 12')
        A.br(f's_cbranch_scc1 {lct}')
        A.I(f's_lshl_b32 s{S_T0}, s{S_H}, 2')
        A.I(f's_add_u32 s{S_T0}, s{S_T0}, s{S_WV}')
        A.I(f's_cmp_lg_u32 s{S_T0}, 7')
        A.br(f's_cbranch_scc1 {L}')
        code_touch(A, L, l_exit, TAIL_BYTES, 5, 143)
        A.br(f's_branch {L}')
        A.label(lct)
    lw2 = A.newlabel('L_w2')
    A.I(f's_cmp_lg_u32 s{S_K1}, 3')
    A.br(f's_cbranch_scc1 {lw2}')
    for k in range(5):
        g2_dma(A, k)
    A.label(lw2)
    A.I(f's_cmp_lg_u32 s{S_NX}, 4')
    A.br(f's_cbranch_scc1 {L}')
    A.I(f's_mov_b32 s{S_NX}, 2')
    A.I('s_barrier')
    A.br(f's_branch {lch}')
    A.label(lq2)
    ts_tok(A, 10)
    T.att_load_mem(A, S_SEG, 'sc1')
    A.I('s_waitcnt vmcnt(0)')
    ts_tok(A, 11)
    A.check = True
    A.forget_loads()
    T.att_compute1(A)
    T.att_xchg(A, L_RED)
    saved_ = (list(A.vm), list(A.lg))
    lc1, lc2 = A.newlabel('L_c2s'), A.newlabel('L_c2e')
    A.I(f's_cmp_eq_u32 s{S_FAST}, 0')
    A.br(f's_cbranch_scc1 {lc1}')
    T.att_compute2(A, S_OPS, '')
    A.br(f's_branch {lc2}')
    A.label(lc1)
    A.vm, A.lg = saved_
    T.att_compute2(A, S_OPS, 'sc1')
    A.label(lc2)
    ts_tok(A, 12)
    A.I('s_waitcnt vmcnt(0)')
    A.I('s_barrier')
    ts_tok(A, 13)
    A.I(f's_lshl_b32 s{S_CA}, s{S_SEG}, 7')
    A.I(f's_add_u32 s{S_CA}, s{S_CA}, 0x{F_OPC:x}')
    l0 = A.newlabel('L_n0')
    A.I(f's_cmp_lg_u32 s{S_WV}, 0')
    A.br(f's_cbranch_scc1 {l0}')
    A.I(f's_lshl_b32 s{S_T1}, s{S_H}, 2')
    A.I(f's_add_u32 s{S_T1}, s{S_T1}, s{S_CA}')
    flag_store(A, S_T1, 6)
    poll_flags(A, S_CA, 32, 1, 6, 7, l_exit)
    A.label(l0)
    A.I('s_barrier')
    ts_tok(A, 14)
    red4(A, S_SEG, sx, l_exit)
    A.I(f's_ff1_i32_b64 s{S_SEG}, s[{S_MSK}:{S_MSK + 1}]')
    A.I(f's_bitset0_b64 s[{S_MSK}:{S_MSK + 1}], s{S_SEG}')
    lnn = A.newlabel('L_nn')
    A.I(f's_cmp_lt_u32 s{S_SEG}, 64')
    A.br(f's_cbranch_scc1 {lnn}')
    A.I(f's_mov_b32 s{S_SEG}, 999')
    if WBL:
        lwb = A.newlabel('L_wb')
        A.I(f's_lshl_b32 s{S_T0}, s{S_H}, 2')
        A.I(f's_add_u32 s{S_T0}, s{S_T0}, s{S_WV}')
        A.I(f's_cmp_lg_u32 s{S_T0}, 7')
        A.br(f's_cbranch_scc1 {lwb}')
        A.I('buffer_wbl2 sc1')
        A.label(lwb)
    ts_tok(A, 3)
    A.br(f's_branch {L}')
    A.label(lnn)
    lav = A.newlabel('L_av')
    A.I(f's_cmp_gt_u32 s{S_AV}, s{S_SEG}')
    A.br(f's_cbranch_scc1 {lav}')
    R.kv_wait(A, l_exit, S_SEG, 192, s_av=S_AV, s_base=S_PB, sleep=4, vlane16=1)
    A.label(lav)
    T.att_load_qkv(A, S_SEG)
    x_prefetch(A, S_SEG, sx)
    A.br(f's_branch {L}')
    A.label(L_fin)
    A.forget_loads()
    ts_tok(A, 4)
    g1_epilogue(A, l_exit)
    A.I(f's_add_u32 s{S_G}, s{S_G}, 1')
    tstamp(A, 17)
    A.label(l_g2)
    A.forget_loads()
    g2_main(A, l_exit)
    tstamp(A, 6, 8)
    if DIAG:
        A.I(f's_add_u32 s{S_T0}, s{S_G}, s{S_H}')
        A.I(f's_add_u32 s{S_T0}, s{S_T0}, s{S_WV}')
        A.I(f's_cmp_lg_u32 s{S_T0}, 0')
        A.br(f's_cbranch_scc1 {l_exit}')
        A.I('s_memrealtime s[80:81]')
        A.I('s_waitcnt lgkmcnt(0)')
        A.I('s_sub_u32 s80, s80, s58')
        A.I('v_mov_b32 v8, s60')
        A.I('v_mov_b32 v9, s61')
        A.I('v_mov_b32 v10, s80')
        A.I('v_mov_b32 v11, 0')
        if os.environ.get('DIAG2'):
            A.I(f'buffer_store_dword v9, off, {dbg}, 0 offset:32')
        else:
            A.I(f'buffer_store_dwordx4 v[8:11], off, {dbg}, 0 offset:48')
    A.label(l_exit)
    A.I('s_endpgm')


S_MSK = 56
S_OPS = 47


def seg_masks():
    c1, c2 = int(os.environ.get('C1', 14)), int(os.environ.get('C2', 27))
    m = [0] * 7
    last = {g: -100 for g in range(7)}
    for s_ in range(64):
        cand = [4, 5, 6] if s_ < c1 else ([4, 5, 6, 0, 1] if s_ < c2 else list(range(7)))
        g = min(cand, key=lambda x: last[x])
        last[g] = s_
        m[g] |= 1 << s_
    return m


def j2_calc(A):
    A.I(f's_lshr_b32 s{S_T0}, s{S_G}, 1')
    A.I(f's_lshl_b32 s{S_T0}, s{S_T0}, 3')
    A.I(f's_lshr_b32 s{S_T1}, s{S_H}, 2')
    A.I(f's_add_u32 s{S_T0}, s{S_T0}, s{S_T1}')
    A.I(f's_lshl_b32 s{S_J2}, s{S_T0}, 3')
    A.I(f's_and_b32 s{S_T0}, s{S_G}, 1')
    A.I(f's_lshl_b32 s{S_T0}, s{S_T0}, 2')
    A.I(f's_and_b32 s{S_T1}, s{S_H}, 3')
    A.I(f's_add_u32 s{S_T0}, s{S_T0}, s{S_T1}')
    A.I(f's_add_u32 s{S_J2}, s{S_J2}, s{S_T0}')


def code_touch(A, l_from, l_end, nbytes, vd, va):
    lh = A.newlabel('L_pc')
    A.I('s_getpc_b64 s[80:81]')
    A.raw(f'{lh}:')
    A.raw(f'    s_sub_u32 s80, s80, {lh}-{l_from}')
    A.raw('    s_subb_u32 s81, s81, 0')
    A.I(f'v_lshlrev_b32 v{va}, 7, v0')
    for i in range(0, nbytes, 8192):
        A.raw(f'    v_min_u32 v{va}, {l_end}-{l_from}, v{va}')
        A.raw(f'    global_load_dword v{vd}, v{va}, s[80:81]')
        A.I(f'v_add_u32 v{va}, 8192, v{va}')


def x_prefetch(A, s_seg, sx):
    A.I('v_lshrrev_b32 v6, 2, v0')
    A.I('v_lshlrev_b32 v6, 6, v6')
    A.I('v_and_b32 v7, 3, v0')
    A.I('v_lshl_add_u32 v6, v7, 3, v6')
    A.I(f's_lshl_b32 s{S_T3}, s{s_seg}, 5')
    A.I(f's_add_u32 s{S_T3}, s{S_T3}, s{S_H}')
    A.I(f's_lshl_b32 s{S_T3}, s{S_T3}, 10')
    A.I(f'buffer_load_dwordx2 v[12:13], v6, {sx}, s{S_T3} offen')
    A.I(f'buffer_load_dwordx2 v[14:15], v6, {sx}, s{S_T3} offen offset:32')


def ts_tok(A, i):
    if TIMING:
        A.I(f's_add_u32 s{S_G}, s{S_G}, 1')
        tstamp(A, i, 14 if i in (1, 2, 7, 8) else 6)
        A.I(f's_sub_u32 s{S_G}, s{S_G}, 1')


G1ACC = 120
G1T = 144
L_G1 = 0
L_RED = 65536
L_W2 = 73728


def g1_lane(A):
    t = G1T
    A.I(f'v_lshrrev_b32 v{t}, 3, v0')
    A.I(f'v_and_b32 v{t + 1}, 7, v0')
    A.I(f'v_bfe_u32 v{t + 2}, v0, 4, 1')
    A.I(f's_and_b32 s{S_T0}, s{S_WV}, 1')
    A.I(f's_lshl_b32 s{S_T0}, s{S_T0}, 1')
    A.I(f'v_or_b32 v{t + 2}, s{S_T0}, v{t + 2}')
    A.I(f'v_lshlrev_b32 v{t + 2}, 1, v{t + 2}')
    A.I(f'v_xor_b32 v{t + 1}, v{t + 1}, v{t + 2}')
    A.I(f'v_lshlrev_b32 v{t + 1}, 4, v{t + 1}')
    A.I(f'v_mul_u32_u24 v136, 3584, v{t}')
    A.I(f'v_add_u32 v136, v136, v{t + 1}')
    A.I(f'v_lshl_add_u32 v137, v{t}, 10, v{t + 1}')
    A.I(f'v_and_b32 v{t}, 15, v0')
    A.I(f'v_lshrrev_b32 v{t + 1}, 4, v0')
    A.I(f'v_lshrrev_b32 v{t + 2}, 2, v{t}')
    A.I(f'v_and_b32 v{t + 3}, 3, v{t}')
    A.I(f'v_lshl_add_u32 v{t + 4}, v{t + 1}, 3, v{t + 2}')
    A.I(f'v_lshlrev_b32 v{t + 4}, 7, v{t + 4}')
    A.I(f'v_lshl_add_u32 v{t + 4}, v{t + 3}, 3, v{t + 4}')
    A.I(f'v_lshrrev_b32 v{t + 5}, 1, v{t + 2}')
    A.I(f'v_and_b32 v{t + 6}, 1, v{t + 1}')
    A.I(f'v_lshl_add_u32 v{t + 5}, v{t + 6}, 1, v{t + 5}')
    A.I(f'v_xor_b32 v{t + 6}, s{S_T0}, v{t + 5}')
    A.I(f'v_lshl_add_u32 v138, v{t + 6}, 5, v{t + 4}')
    A.I(f'v_xor_b32 v139, 32, v138')
    A.I(f's_and_b32 s{S_T0}, s{S_WV}, 2')
    A.I(f'v_xor_b32 v{t + 6}, s{S_T0}, v{t + 5}')
    A.I(f'v_lshl_add_u32 v140, v{t + 6}, 5, v{t + 4}')
    A.I(f'v_add_u32 v140, 16384, v140')
    A.I(f'v_xor_b32 v141, 32, v140')


def g1_w1_dma(A, s_k, first=False, plus=0):
    if first:
        g1_lane(A)
    w1 = f's[{S_W1}:{S_W1 + 3}]'
    A.I(f's_add_u32 s{S_T2}, s{s_k}, {plus}')
    A.I(f's_mul_i32 s{S_T0}, s{S_T2}, {128 * 3584}')
    A.I(f's_mul_i32 s{S_T1}, s{S_WV}, {8 * 3584}')
    A.I(f's_add_u32 s{S_T0}, s{S_T0}, s{S_T1}')
    A.I(f's_lshr_b32 s{S_T1}, s{S_J}, 3')
    A.I(f's_lshl_b32 s{S_T1}, s{S_T1}, 7')
    A.I(f's_add_u32 s{S_T0}, s{S_T0}, s{S_T1}')
    A.I(f's_and_b32 s{S_T1}, s{S_T2}, 1')
    A.I(f's_lshl_b32 s{S_T1}, s{S_T1}, 15')
    A.I(f's_lshl_b32 s{S_T2}, s{S_WV}, 10')
    A.I(f's_add_u32 s{S_T1}, s{S_T1}, s{S_T2}')
    for i in range(4):
        A.I(f's_add_u32 m0, s{S_T1}, {L_G1 + i * 4096}')
        A.I(f's_add_u32 s{S_T2}, s{S_T0}, {i * 32 * 3584}')
        A.I(f'buffer_load_dwordx4 v136, {w1}, s{S_T2} offen lds')


def g1_chunk(A, s_k, l_exit):
    ws = f's[{S_WS}:{S_WS + 3}]'
    A.I(f's_lshl_b32 s{S_T0}, s{s_k}, 17')
    A.I(f's_lshl_b32 s{S_T1}, s{S_WV}, 13')
    A.I(f's_add_u32 s{S_T0}, s{S_T0}, s{S_T1}')
    A.I(f's_and_b32 s{S_T1}, s{S_J}, 7')
    A.I(f's_lshl_b32 s{S_T1}, s{S_T1}, 7')
    A.I(f's_add_u32 s{S_T0}, s{S_T0}, s{S_T1}')
    A.I(f's_add_u32 s{S_T0}, s{S_T0}, 0x{WS_HP:x}')
    A.I(f's_and_b32 s{S_T3}, s{s_k}, 1')
    A.I(f's_lshl_b32 s{S_T3}, s{S_T3}, 15')
    A.I(f's_lshl_b32 s{S_T2}, s{S_WV}, 10')
    A.I(f's_add_u32 s{S_T1}, s{S_T3}, s{S_T2}')
    for i in range(4):
        A.I(f's_add_u32 m0, s{S_T1}, {L_G1 + 16384 + i * 4096}')
        A.I(f's_add_u32 s{S_T2}, s{S_T0}, {i * 32 * 1024}')
        A.I(f'buffer_load_dwordx4 v137, {ws}, s{S_T2} offen lds')
    AD = G1T
    for j in range(4):
        A.I(f'v_add_u32 v{AD + j}, s{S_T3}, v{138 + j}')
    l13, l14 = A.newlabel('L_13'), A.newlabel('L_14')
    A.I(f's_cmp_eq_u32 s{s_k}, 15')
    A.br(f's_cbranch_scc1 {l13}')
    g1_w1_dma(A, s_k, plus=1)
    A.br(f's_branch {l14}')
    A.label(l13)
    A.I(f's_lshr_b32 s{S_T2}, s{S_J}, 3')
    A.I(f's_lshl_b32 s{S_T0}, s{S_T2}, 7')
    A.I(f's_and_b32 s{S_T1}, s{S_WV}, 1')
    A.I(f's_lshl_b32 s{S_T1}, s{S_T1}, 6')
    A.I(f's_add_u32 s{S_T0}, s{S_T0}, s{S_T1}')
    A.I('v_lshrrev_b32 v20, 4, v0')
    A.I('v_lshlrev_b32 v20, 3, v20')
    A.I(f'buffer_load_dwordx2 v[16:17], v20, s[{S_B1}:{S_B1 + 3}], s{S_T0} offen')
    A.I(f'buffer_load_dwordx2 v[18:19], v20, s[{S_B1}:{S_B1 + 3}], s{S_T0} offen offset:32')
    g2_dma(A, 13)
    A.label(l14)
    A.I('s_waitcnt vmcnt(4)')
    A.I('s_barrier')
    FR = G1T + 8

    def rd(ks):
        for j in range(4):
            for x in range(2):
                A.I(f'ds_read_b64_tr_b16 {v(FR + 16 * ks + 4 * j + 2 * x, 2)}, v{AD + j} offset:{L_G1 + (32 * ks + 4 * x) * 128}')

    rd(0)
    for ks in range(4):
        if ks < 3:
            rd(ks + 1)
            A.I('s_waitcnt lgkmcnt(8)')
        else:
            A.I('s_waitcnt lgkmcnt(0)')
        f = FR + 16 * ks
        for mbp in range(2):
            for nbp in range(2):
                d = G1ACC + (mbp * 2 + nbp) * 4
                A.I(f'v_mfma_f32_16x16x32_bf16 {v(d, 4)}, {v(f + 4 * mbp, 4)}, {v(f + 8 + 4 * nbp, 4)}, {v(d, 4)}')


def g1_epilogue(A, l_exit):
    import math
    ws, b1 = f's[{S_WS}:{S_WS + 3}]', f's[{S_B1}:{S_B1 + 3}]'
    ACC, BI, Z, Pk, TT, O = G1ACC, 150, 160, 168, 172, 188
    A.I(f's_lshr_b32 s{S_T2}, s{S_J}, 3')
    A.I(f's_and_b32 s{S_T0}, s{S_J}, 7')
    A.I(f's_lshl_b32 s{S_T0}, s{S_T0}, 2')
    A.I(f's_and_b32 s{S_T1}, s{S_WV}, 2')
    A.I(f's_add_u32 s{S_T0}, s{S_T0}, s{S_T1}')
    A.I(f's_mul_i32 s{S_T0}, s{S_T0}, 56')
    A.I(f's_lshl_b32 s{S_T1}, s{S_T2}, 1')
    A.I(f's_add_u32 s{S_T0}, s{S_T0}, s{S_T1}')
    A.I(f's_and_b32 s{S_T1}, s{S_WV}, 1')
    A.I(f's_add_u32 s{S_T0}, s{S_T0}, s{S_T1}')
    A.I(f's_lshl_b32 s{S_T0}, s{S_T0}, 10')
    A.I(f's_add_u32 s{S_T0}, s{S_T0}, 0x{WS_U:x}')
    k1 = -2 * math.sqrt(2 / math.pi) * math.log2(math.e)
    A.I(f's_mov_b32 s{S_T2}, {f32(k1)}')
    A.I(f's_mov_b32 s{S_T3}, {f32(k1 * 0.044715)}')
    A.I('v_lshlrev_b32 v145, 4, v0')
    for i in range(4):
        A.I(f'v_lshlrev_b32 v{BI + 2 * i}, 16, v{16 + i}')
        A.I(f'v_and_b32 v{BI + 2 * i + 1}, 0xffff0000, v{16 + i}')
    for nbp in range(2):
        for mbp in range(2):
            for r in range(4):
                A.I(f'v_mov_b32 v{Z + 4 * mbp + r}, v{ACC + (mbp * 2 + nbp) * 4 + r}')
        T.round_bf16(A, Z, Pk)
        for i in range(8):
            A.I(f'v_add_f32 v{Z + i}, v{Z + i}, v{BI + i}')
        T.round_bf16(A, Z, Pk)
        for i in range(8):
            t = TT + i
            A.I(f'v_mul_f32 v{t}, v{Z + i}, v{Z + i}')
            A.I(f'v_mov_b32 v{t + 8}, s{S_T2}')
            A.I(f'v_fmac_f32 v{t + 8}, s{S_T3}, v{t}')
            A.I(f'v_mul_f32 v{t}, v{t + 8}, v{Z + i}')
            A.I(f'v_exp_f32 v{t}, v{t}')
        for i in range(8):
            A.I(f'v_add_f32 v{TT + i}, 1.0, v{TT + i}')
            A.I(f'v_rcp_f32 v{TT + i}, v{TT + i}')
        for i in range(8):
            A.I(f'v_mul_f32 v{Z + i}, v{Z + i}, v{TT + i}')
        o = O + 4 * nbp
        for i in range(4):
            A.I(f'v_cvt_pk_bf16_f32 v{o + i}, v{Z + 2 * i}, v{Z + 2 * i + 1}')
        A.I(f'buffer_store_dwordx4 {v(o, 4)}, v145, {ws}, s{S_T0} offen sc1')
        A.I(f's_add_u32 s{S_T0}, s{S_T0}, {56 * 1024}')
    A.I('s_waitcnt vmcnt(0)')
    A.I('s_barrier')
    l = A.newlabel('L_ue')
    A.I(f's_cmp_lg_u32 s{S_WV}, 0')
    A.br(f's_cbranch_scc1 {l}')
    A.I(f's_lshl_b32 s{S_T2}, s{S_G}, 7')
    A.I(f's_add_u32 s{S_T2}, s{S_T2}, 0x{F_LU:x}')
    A.I(f's_lshl_b32 s{S_T3}, s{S_G}, 2')
    A.I(f's_add_u32 s{S_T3}, s{S_T3}, 0x{F_GF + 256:x}')
    garrive(A, S_T2, S_T3, 144, l_exit)
    A.label(l)


G2_SLOT = {0: 0, 1: 1, 2: 2, 3: 3, 4: 4, 5: 0, 6: 1, 7: 2, 8: 3, 9: 4, 10: 0, 11: 1, 12: 2, 13: 0}
G2_READ = [[0, 1, 2, 3, 4], [5, 6, 7], [8, 9, 10, 11, 12], [13]]
G2_NEXT = [[5, 6, 7, 8, 9], [10, 11, 12], [], []]


def g2_slot(k):
    return 0 if k == 13 else L_W2 + 16384 * G2_SLOT[k]


def g2_areg(k):
    return (128 + 16 * k) if k < 8 else 16 * (k - 8)


S_PRE = 62


def g2_pre(A, rnd):
    t = G1T
    A.I(f'v_and_b32 v{t}, 15, v0')
    A.I(f'v_lshrrev_b32 v{t + 1}, 4, v0')
    A.I(f'v_lshrrev_b32 v{t + 2}, 2, v{t}')
    A.I(f'v_and_b32 v{t + 3}, 3, v{t}')
    A.I(f'v_lshl_add_u32 v{t + 2}, v{t + 1}, 2, v{t + 2}')
    A.I(f'v_bfe_u32 v{t + 1}, v{t + 2}, 1, 2')
    A.I(f'v_lshlrev_b32 v{t + 2}, 7, v{t + 2}')
    A.I(f'v_lshl_add_u32 v{t + 2}, v{t + 3}, 3, v{t + 2}')
    A.I(f'v_lshl_add_u32 v{t + 2}, v{t + 1}, 5, v{t + 2}')
    A.I(f's_lshl_b32 s{S_T0}, s{S_WV}, 12')
    A.I(f's_add_u32 s{S_T0}, s{S_T0}, {L_W2}')
    for j in range(4):
        A.I(f'v_xor_b32 v{t + 4 + j}, {32 * j}, v{t + 2}')
        A.I(f'v_add_u32 v{t + 4 + j}, s{S_T0}, v{t + 4 + j}')
        A.I(f'v_add_u32 v{t + 8 + j}, 49152, v{t + 4 + j}')
    A.I('s_waitcnt vmcnt(0)')
    A.I('s_barrier')
    for k in G2_READ[rnd]:
        so = 16384 * G2_SLOT[k]
        ab = t + 4
        if so >= 49152:
            so -= 49152
            ab = t + 8
        if k == 13:
            so = 0
            for j in range(4):
                A.I(f'v_subrev_u32 v{ab + j}, {L_W2}, v{ab + j}')
        for j in range(4):
            for x in range(2):
                A.I(f'ds_read_b64_tr_b16 {a(g2_areg(k) + 4 * j + 2 * x, 2)}, v{ab + j} offset:{so + 16 * x * 128}')
        A.I('s_waitcnt lgkmcnt(4)')
    A.I('s_waitcnt lgkmcnt(0)')
    if G2_NEXT[rnd]:
        A.I('s_barrier')
        for k in G2_NEXT[rnd]:
            g2_dma(A, k)
    A.I(f's_mov_b32 s{S_PRE}, {rnd + 1}')


def g2_setup(A):
    A.I(f's_load_dwordx2 s[16:17], s[0:1], {KA_W2}')
    A.I('s_waitcnt lgkmcnt(0)')
    make_srd(A, S_W2, 16, 1792 * 4096)
    A.I(f's_load_dwordx4 s[16:19], s[0:1], {KA_B2}')
    A.I('s_waitcnt lgkmcnt(0)')
    t = G1T
    A.I(f'v_lshrrev_b32 v{t}, 3, v0')
    A.I(f'v_and_b32 v{t + 1}, 7, v0')
    A.I(f'v_lshrrev_b32 v{t + 2}, 4, v0')
    A.I(f'v_lshlrev_b32 v{t + 2}, 1, v{t + 2}')
    A.I(f'v_xor_b32 v{t + 1}, v{t + 1}, v{t + 2}')
    A.I(f'v_lshlrev_b32 v{t + 1}, 4, v{t + 1}')
    A.I(f'v_lshl_add_u32 v142, v{t}, 12, v{t + 1}')
    A.I(f's_lshl_b32 s{S_BO2}, s{S_WV}, 15')
    A.I(f's_lshr_b32 s{S_T0}, s{S_J2}, 3')
    A.I(f's_lshl_b32 s{S_T0}, s{S_T0}, 7')
    A.I(f's_add_u32 s{S_BO2}, s{S_BO2}, s{S_T0}')
    A.I(f's_lshl_b32 s{S_LB2}, s{S_WV}, 10')


def g2_dma(A, k, vr=142):
    w2 = f's[{S_W2}:{S_W2 + 3}]'
    for i in range(4):
        A.I(f's_add_u32 m0, s{S_LB2}, {g2_slot(k) + i * 4096}')
        A.I(f's_add_u32 s{S_T0}, s{S_BO2}, {(k * 128 + i * 32) * 4096}')
        A.I(f'buffer_load_dwordx4 v{vr}, {w2}, s{S_T0} offen lds')


def g2_touch(A, k0):
    w2 = f's[{S_W2}:{S_W2 + 3}]'
    A.I('v_lshlrev_b32 v143, 12, v0')
    A.I(f's_lshr_b32 s{S_T0}, s{S_J2}, 3')
    A.I(f's_lshl_b32 s{S_T0}, s{S_T0}, 7')
    A.I(f's_lshl_b32 s{S_T1}, s{S_WV}, 18')
    A.I(f's_add_u32 s{S_T0}, s{S_T0}, s{S_T1}')
    for r0 in range(k0 * 128, 1792, 256):
        A.I(f's_add_u32 s{S_T1}, s{S_T0}, {r0 * 4096}')
        A.I(f'buffer_load_dword v5, v143, {w2}, s{S_T1} offen')


def g2_main(A, l_exit):
    ws = f's[{S_WS}:{S_WS + 3}]'
    S_O, S_B2 = S_W1, S_B1
    tstamp(A, 20, 8)
    for rnd in range(4):
        l = A.newlabel('L_pre')
        A.I(f's_cmp_gt_u32 s{S_PRE}, {rnd}')
        A.br(f's_cbranch_scc1 {l}')
        g2_pre(A, rnd)
        A.label(l)
        A.forget_loads()
    A.I('s_waitcnt lgkmcnt(0)')
    make_srd(A, S_B2, 16, 4096)
    make_srd(A, S_O, 18, 2048 * 1024)
    b2, out = f's[{S_B2}:{S_B2 + 3}]', f's[{S_O}:{S_O + 3}]'
    S_AO, S_EO = 36, 37
    A.I(f's_and_b32 s{S_T0}, s{S_J2}, 7')
    A.I(f's_mul_i32 s{S_AO}, s{S_T0}, {4 * 56 * 1024}')
    A.I(f's_lshl_b32 s{S_T1}, s{S_WV}, 10')
    A.I(f's_add_u32 s{S_AO}, s{S_AO}, s{S_T1}')
    A.I(f's_add_u32 s{S_AO}, s{S_AO}, 0x{WS_U:x}')
    A.I(f's_lshl_b32 s{S_T0}, s{S_T0}, 2')
    A.I(f's_add_u32 s{S_T0}, s{S_T0}, s{S_WV}')
    A.I(f's_lshr_b32 s{S_T1}, s{S_J2}, 3')
    A.I(f's_lshl_b32 s{S_EO}, s{S_T1}, 16')
    A.I(f's_lshl_b32 s{S_T0}, s{S_T0}, 5')
    A.I(f's_add_u32 s{S_EO}, s{S_EO}, s{S_T0}')
    A.I('v_lshlrev_b32 v5, 4, v0')
    A.I('v_and_b32 v1, 15, v0')
    A.I('v_lshrrev_b32 v2, 4, v0')
    A.I('v_lshlrev_b32 v3, 10, v1')
    A.I('v_lshl_add_u32 v3, v2, 3, v3')
    A.I('v_lshlrev_b32 v4, 1, v1')
    A.I(f's_lshl_b32 s{S_T1}, s{S_T1}, 7')
    HB, BB, ACC, AR = 10, 18, 24, 88
    NA = 42
    A.I(f's_mov_b32 s39, s{S_T1}')
    masks = seg_masks()
    late = [g for g in range(7) if masks[g] >> 61] if os.environ.get('TWOPH') else []
    earlyg = [g for g in range(7) if g not in late]
    korder = [k for g in earlyg + late for k in (2 * g, 2 * g + 1)]
    nearly = min(8 * len(earlyg), NA)
    S_FL = 38
    A.I(f's_lshl_b32 s{S_FL}, s{S_G}, 9')
    A.I(f's_add_u32 s{S_FL}, s{S_FL}, 0x{F_GF + 256:x}')

    def wait_groups(gs):
        l0 = A.newlabel('L_g20')
        A.I(f's_cmp_lg_u32 s{S_WV}, 0')
        A.br(f's_cbranch_scc1 {l0}')
        A.check = False
        poll_flags(A, S_FL, 7, 1, 6, 7, l_exit, sleep=1, mask=sum(1 << g for g in gs))
        A.check = True
        A.label(l0)
        A.I('s_barrier')

    tstamp(A, 21, 8)
    wait_groups(earlyg)
    tstamp(A, 5, 8)
    vmq = []

    def aload(i):
        k, db = korder[i >> 2], i & 3
        off = db * 56 * 1024 + k * 4096
        A.I(f's_add_u32 s{S_T1}, s{S_AO}, {off}')
        A.I(f'buffer_load_dwordx4 {v(AR + 4 * (i % NA), 4)}, v5, {ws}, s{S_T1} offen')
        vmq.append(('a', i))

    def need(names):
        idx = max([i for i, p in enumerate(vmq) if p in names] + [-1])
        if idx >= 0:
            A.I(f's_waitcnt vmcnt({len(vmq) - 1 - idx})')
            del vmq[:idx + 1]

    PD = int(os.environ.get('PD', 20))
    for i in range(PD):
        aload(i)
    tstamp(A, 19, 8)
    nxt = PD
    for i in range(56):
        k, db = korder[i >> 2], i & 3
        need([('a', i)])
        for nb in range(4):
            d = ACC + 16 * db + 4 * nb
            c = '0' if i < 4 else v(d, 4)
            A.I(f'v_mfma_f32_16x16x32_bf16 {v(d, 4)}, {v(AR + 4 * (i % NA), 4)}, {a(g2_areg(k) + 4 * nb, 4)}, {c}')
            if nb in (0, 2) and nxt < 56 and nxt - i < NA - 1 and (nb == 0 or nxt - i < int(os.environ.get('PD2', 32))):
                aload(nxt)
                nxt += 1
                if nxt == 56:
                    for q in range(4):
                        A.I(f's_add_u32 s{S_T0}, s{S_EO}, 0x{WS_H + q * 16384:x}')
                        A.I(f'buffer_load_dwordx2 {v(HB + 2 * q, 2)}, v3, {ws}, s{S_T0} offen')
                        vmq.append(('h', 0))
                        A.I(f'buffer_load_ushort v{BB + q}, v4, {b2}, s39 offen offset:{32 * q}')
                        vmq.append(('h', 0))
    A.I(f's_lshl_b32 s{S_T0}, s{S_WV}, 12')
    A.I(f'v_add_u32 v6, s{S_T0}, v5')
    for db in range(4):
        for nb in range(4):
            A.I(f'ds_write_b128 v6, {v(ACC + 16 * db + 4 * nb, 4)} offset:{db * 16384 + nb * 1024}')
        A.I('s_waitcnt lgkmcnt(8)')
    A.I(f's_lshl_b32 s{S_T0}, s{S_WV}, 14')
    A.I(f'v_add_u32 v6, s{S_T0}, v5')
    A.I('s_waitcnt lgkmcnt(0)')
    A.I('s_barrier')
    for j in range(16):
        A.I(f'ds_read_b128 {v(ACC + 4 * j, 4)}, v6 offset:{1024 * j}')
        if j == 11:
            A.I('s_waitcnt lgkmcnt(8)')
    A.I('s_waitcnt lgkmcnt(0) vmcnt(0)')
    tstamp(A, 18, 8)
    for r in range(0, 16, 2):
        A.I(f'v_pk_add_f32 {v(ACC + r, 2)}, {v(ACC + r, 2)}, {v(ACC + 16 + r, 2)}')
        A.I(f'v_pk_add_f32 {v(ACC + 32 + r, 2)}, {v(ACC + 32 + r, 2)}, {v(ACC + 48 + r, 2)}')
    for r in range(0, 16, 2):
        A.I(f'v_pk_add_f32 {v(ACC + r, 2)}, {v(ACC + r, 2)}, {v(ACC + 32 + r, 2)}')
    for nb in range(4):
        d = ACC + 4 * nb
        t = 88
        A.I(f'v_cvt_pk_bf16_f32 v{t}, v{d}, v{d + 1}')
        A.I(f'v_cvt_pk_bf16_f32 v{t + 1}, v{d + 2}, v{d + 3}')
        A.I(f'v_lshlrev_b32 v{t + 2}, 16, v{BB + nb}')
        for i in range(2):
            A.I(f'v_lshlrev_b32 v{d + 2 * i}, 16, v{t + i}')
            A.I(f'v_and_b32 v{d + 2 * i + 1}, 0xffff0000, v{t + i}')
        for r in range(4):
            A.I(f'v_add_f32 v{d + r}, v{d + r}, v{t + 2}')
        A.I(f'v_cvt_pk_bf16_f32 v{t}, v{d}, v{d + 1}')
        A.I(f'v_cvt_pk_bf16_f32 v{t + 1}, v{d + 2}, v{d + 3}')
        for i in range(2):
            A.I(f'v_lshlrev_b32 v{d + 2 * i}, 16, v{t + i}')
            A.I(f'v_and_b32 v{d + 2 * i + 1}, 0xffff0000, v{t + i}')
            A.I(f'v_lshlrev_b32 v{t + 2}, 16, v{HB + 2 * nb + i}')
            A.I(f'v_and_b32 v{t + 3}, 0xffff0000, v{HB + 2 * nb + i}')
            A.I(f'v_add_f32 v{d + 2 * i}, v{d + 2 * i}, v{t + 2}')
            A.I(f'v_add_f32 v{d + 2 * i + 1}, v{d + 2 * i + 1}, v{t + 3}')
        o = 92 + 2 * nb
        A.I(f'v_cvt_pk_bf16_f32 v{o}, v{d}, v{d + 1}')
        A.I(f'v_cvt_pk_bf16_f32 v{o + 1}, v{d + 2}, v{d + 3}')
        A.I(f's_add_u32 s{S_T0}, s{S_EO}, {nb * 16384}')
        A.I(f'buffer_store_dwordx2 {v(o, 2)}, v3, {out}, s{S_T0} offen')


def red4(A, s_seg, srd_x, l_exit):
    ws = f's[{S_WS}:{S_WS + 3}]'
    B, Z, Pk, XR, t0, t1, va = 192, 144, 152, 12, 160, 161, 162
    A.I(f's_lshl_b32 s{S_T2}, s{s_seg}, 5')
    A.I(f's_add_u32 s{S_T2}, s{S_T2}, s{S_H}')
    A.I(f's_lshl_b32 s{S_T0}, s{S_OPS}, 5')
    A.I(f's_add_u32 s{S_T0}, s{S_T0}, s{S_H}')
    A.I(f's_lshl_b32 s{S_T0}, s{S_T0}, 15')
    A.I(f's_xor_b32 s{S_OPS}, s{S_OPS}, 1')
    A.I(f's_lshl_b32 s{S_T1}, s{S_WV}, 13')
    A.I(f's_add_u32 s{S_T0}, s{S_T0}, s{S_T1}')
    A.I(f's_add_u32 s{S_T0}, s{S_T0}, 0x{WS_OP:x}')
    A.I(f's_add_u32 s{S_T1}, s{S_T0}, 4096')
    for hh in range(8):
        so = S_T0 if hh < 4 else S_T1
        A.I(f'buffer_load_dwordx4 {v(B + 4 * hh, 4)}, v1, {ws}, s{so} offen offset:{1024 * (hh & 3)} sc1')
    A.I(f's_lshl_b32 s{S_T3}, s{S_T2}, 10')
    A.I(f'v_lshrrev_b32 v{va}, 2, v0')
    A.I(f'v_lshlrev_b32 v{va}, 6, v{va}')
    A.I(f'v_and_b32 v{t0}, 3, v0')
    A.I(f'v_lshl_add_u32 v{va}, v{t0}, 3, v{va}')
    for hh in range(8):
        A.I(f's_waitcnt vmcnt({7 - hh})')
        for i in range(4):
            r = B + 4 * hh + i
            if hh == 0:
                A.I(f'v_lshlrev_b32 v{Z + 2 * i}, 16, v{r}')
                A.I(f'v_and_b32 v{Z + 2 * i + 1}, 0xffff0000, v{r}')
            else:
                A.I(f'v_lshlrev_b32 v{t0}, 16, v{r}')
                A.I(f'v_and_b32 v{t1}, 0xffff0000, v{r}')
                A.I(f'v_add_f32 v{Z + 2 * i}, v{Z + 2 * i}, v{t0}')
                A.I(f'v_add_f32 v{Z + 2 * i + 1}, v{Z + 2 * i + 1}, v{t1}')
    A.I(f's_lshl_b32 s{S_T0}, s{S_WV}, 11')
    A.I(f'v_add_u32 v{t0}, s{S_T0}, v1')
    A.I(f'v_add_u32 v{t0}, {L_RED}, v{t0}')
    A.I(f'ds_write_b128 v{t0}, {v(Z, 4)}')
    A.I(f'ds_write_b128 v{t0}, {v(Z + 4, 4)} offset:1024')
    A.I('s_waitcnt lgkmcnt(0) vmcnt(0)')
    A.I('s_barrier')
    ts_tok(A, 15)
    l = A.newlabel('L_r4')
    A.I(f's_cmp_lg_u32 s{S_WV}, 0')
    A.br(f's_cbranch_scc1 {l}')
    for w_ in range(1, 4):
        for j in range(2):
            A.I(f'ds_read_b128 {v(B + 8 * w_ + 4 * j, 4)}, v{t0} offset:{2048 * w_ + 1024 * j}')
    A.I('s_waitcnt lgkmcnt(0)')
    for w_ in range(1, 4):
        for i in range(8):
            A.I(f'v_add_f32 v{Z + i}, v{Z + i}, v{B + 8 * w_ + i}')
    T.round_bf16(A, Z, Pk)
    for i in range(4):
        A.I(f'v_lshlrev_b32 v{t0}, 16, v{XR + i}')
        A.I(f'v_and_b32 v{t1}, 0xffff0000, v{XR + i}')
        A.I(f'v_add_f32 v{Z + 2 * i}, v{Z + 2 * i}, v{t0}')
        A.I(f'v_add_f32 v{Z + 2 * i + 1}, v{Z + 2 * i + 1}, v{t1}')
    T.round_bf16(A, Z, Pk)
    A.I(f's_add_u32 s{S_T0}, s{S_T3}, 0x{WS_H:x}')
    A.I(f'buffer_store_dwordx2 {v(Pk, 2)}, v{va}, {ws}, s{S_T0} offen sc1')
    A.I(f'buffer_store_dwordx2 {v(Pk + 2, 2)}, v{va}, {ws}, s{S_T0} offen offset:32 sc1')
    T.ln_regs(A, Z, t0, t1)
    T.round_bf16(A, Z, XR)
    T.ln_regs(A, Z, t0, t1)
    for i in range(4):
        A.I(f'v_cvt_pk_bf16_f32 v{XR + i}, v{Z + 2 * i}, v{Z + 2 * i + 1}')
    A.I(f's_add_u32 s{S_T0}, s{S_T3}, 0x{WS_HP:x}')
    A.I(f'buffer_store_dwordx2 {v(XR, 2)}, v{va}, {ws}, s{S_T0} offen sc1')
    A.I(f'buffer_store_dwordx2 {v(XR + 2, 2)}, v{va}, {ws}, s{S_T0} offen offset:32 sc1')
    A.I(f's_lshl_b32 s{S_T2}, s{s_seg}, 7')
    A.I(f's_add_u32 s{S_T2}, s{S_T2}, 0x{F_LH:x}')
    A.I(f's_lshl_b32 s{S_T3}, s{s_seg}, 2')
    A.I(f's_add_u32 s{S_T3}, s{S_T3}, 0x{F_GF:x}')
    A.I('s_waitcnt vmcnt(0)')
    garrive(A, S_T2, S_T3, t0, l_exit)
    A.label(l)


if __name__ == '__main__':
    A = Asm()
    nm = NAME + '_kernel'
    mega_kernel(A, nm)
    hd = header([(nm, 256, 256, R.L_TOTAL)])
    if os.environ.get('FINAL'):
        hd = hd.replace(f'@launch kernel={nm} ', '@launch ')
    txt = hd + A.text() + '.section .rodata,"a"\n' + kernel_desc(nm, 512, 256)
    out = os.environ.get('OUT', 'm3.s')
    open(out, 'w').write(txt)
    print(len(txt))
```

```python
import os
os.environ.setdefault('PB_DELAY', '7'); os.environ.setdefault('AF_DELAY', '2'); os.environ.setdefault('AF_GAP', '2')
from common import *
import tok2 as T
import rec9 as R
from tok2 import f32, S_WS, S_W, S_X, S_H, S_WV, S_G, S_T0, S_T1, S_T2, S_T3

S_DBG = 84
S_SPIN = R.S_SPIN
S_XCC = 83
S_LNO = 82
F_OPC = WS_FLAG + 0x4000
F_LH = WS_FLAG + 0x6000
F_LU = WS_FLAG + 0x8000
F_GF = WS_FLAG + 0x8400
S_FAST = S_XCC
D_GB, D_OVF, D_WEIRD, D_TS, D_TI = 128, 36, 40, 192, 196
S_J, S_BO2, S_LB2 = 100, 101, 3
S_J2 = 63
S_W1, S_B1, S_W2 = 88, 92, 96
NEARLY = int(os.environ.get('NEARLY', 2))
STAG = int(os.environ.get('STAG', 4))
STAG0 = int(os.environ.get('STAG0', 1))
TIMING = bool(os.environ.get('TIMING'))
OPRING = int(os.environ.get('OPRING', 0))
WARM = int(os.environ.get('WARM', 0))
E_IMM = int(os.environ.get('IMM', 62))
SPEC = int(os.environ.get('SPEC', 0))
WBL = int(os.environ.get('WBL', 0))
SENT = int(os.environ.get('SENT', 0))
DIAG = bool(os.environ.get('DIAG'))
TAIL_BYTES = int(os.environ.get('TAIL_BYTES', 24576))
CODET = int(os.environ.get('CODET', 0))
CODE_BYTES = int(os.environ.get('CODE_BYTES', 57344))
PLF = os.environ.get('PLF', 'sc1').replace('_', ' ')


def lane0(A, body):
    A.I('s_mov_b64 exec, 1')
    body()
    A.I('s_mov_b64 exec, -1')


def poll_eq(A, srd, s_off, imm, expect, vt, l_exit, sleep=0):
    l = A.newlabel('L_poll')
    A.label(l)
    so = f's{s_off}' if s_off is not None else '0'
    A.I(f'buffer_load_dword v{vt}, off, {srd}, {so} offset:{imm} sc1')
    A.I(f's_sub_u32 s{S_SPIN}, s{S_SPIN}, 1')
    A.I(f's_cbranch_scc1 {l_exit}')
    A.I('s_waitcnt vmcnt(0)')
    A.I(f'v_readfirstlane_b32 s{S_T0}, v{vt}')
    ld = A.newlabel('L_pd')
    A.I(f's_cmp_eq_u32 s{S_T0}, {expect}')
    A.I(f's_cbranch_scc1 {ld}')
    if sleep:
        A.I(f's_sleep {sleep}')
    A.br(f's_branch {l}')
    A.label(ld)


def poll_flags(A, s_off, nlanes, width, vt, va, l_exit, sleep=0, mask=None):
    ws = f's[{S_WS}:{S_WS + 3}]'
    l, ld = A.newlabel('L_pf'), A.newlabel('L_pfd')
    A.I(f'v_lshlrev_b32 v{va}, {2 if width == 1 else 3}, v0')
    assert nlanes <= 32
    A.I(f's_mov_b32 exec_lo, 0x{((1 << nlanes) - 1) if mask is None else mask:x}')
    A.I('s_mov_b32 exec_hi, 0')
    A.label(l)
    if width == 1:
        A.I(f'buffer_load_dword v{vt}, v{va}, {ws}, s{s_off} offen {PLF}')
    else:
        A.I(f'buffer_load_dwordx2 {v(vt, 2)}, v{va}, {ws}, s{s_off} offen {PLF}')
    A.I(f's_sub_u32 s{S_SPIN}, s{S_SPIN}, 1')
    A.I(f's_cbranch_scc1 {l_exit}')
    A.I('s_waitcnt vmcnt(0)')
    if width == 2:
        A.I(f'v_min_u32 v{vt}, v{vt}, v{vt + 1}')
    A.I(f'v_cmp_eq_u32 vcc, 0, v{vt}')
    A.I(f's_cbranch_vccz {ld}')
    if sleep:
        A.I(f's_sleep {sleep}')
    A.br(f's_branch {l}')
    A.label(ld)
    A.I('s_mov_b64 exec, -1')


def flag_store(A, s_addr, vt):
    ws = f's[{S_WS}:{S_WS + 3}]'
    l1, l2 = A.newlabel('L_fs'), A.newlabel('L_fs')
    A.I(f'v_mov_b32 v{vt}, 1')
    A.I('s_mov_b64 exec, 1')
    A.I(f's_cmp_eq_u32 s{S_FAST}, 0')
    A.br(f's_cbranch_scc1 {l1}')
    A.I(f'buffer_store_dword v{vt}, off, {ws}, s{s_addr}')
    A.br(f's_branch {l2}')
    A.label(l1)
    A.I(f'buffer_store_dword v{vt}, off, {ws}, s{s_addr} sc1')
    A.label(l2)
    A.I('s_mov_b64 exec, -1')


def garrive(A, s_line, s_goff, vt, l_exit):
    ws = f's[{S_WS}:{S_WS + 3}]'
    A.I(f's_lshl_b32 s{S_T1}, s{S_H}, 2')
    A.I(f's_add_u32 s{S_T1}, s{S_T1}, s{s_line}')
    flag_store(A, S_T1, vt)
    l = A.newlabel('L_ga')
    A.I(f's_cmp_lg_u32 s{S_H}, 0')
    A.br(f's_cbranch_scc1 {l}')
    poll_flags(A, s_line, 32, 1, vt, vt + 1, l_exit)
    A.I(f'v_lshlrev_b32 v{vt + 1}, 9, v0')
    A.I(f'v_mov_b32 v{vt}, 1')
    A.I('s_mov_b64 exec, 0xff')
    A.I(f'buffer_store_dword v{vt}, v{vt + 1}, {ws}, s{s_goff} offen sc1')
    A.I('s_mov_b64 exec, -1')
    A.label(l)


def wg_poll_eq(A, srd, s_off, imm, expect, vt, l_exit, sleep=0):
    l0 = A.newlabel('L_wgp')
    A.I(f's_cmp_lg_u32 s{S_WV}, 0')
    A.br(f's_cbranch_scc1 {l0}')
    poll_eq(A, srd, s_off, imm, expect, vt, l_exit, sleep)
    A.label(l0)
    A.I('s_barrier')


L_TS = 160000


def tstamp(A, idx, r=14):
    if not TIMING:
        return
    l = A.newlabel('L_ts')
    A.I(f's_cmp_lg_u32 s{S_WV}, 0')
    A.br(f's_cbranch_scc1 {l}')
    chk = A.check
    A.check = False
    A.I('s_memrealtime s[80:81]')
    A.I('s_waitcnt lgkmcnt(0)')
    if idx in (0, 1, 2, 7, 8):
        A.I(f'v_mov_b32 v{r}, s80')
        A.I(f'v_mov_b32 v{r + 1}, s81')
        A.I(f's_lshl_b32 s80, s{S_G}, 5')
        A.I(f's_add_u32 s80, s80, s{S_H}')
        A.I('s_lshl_b32 s80, s80, 8')
        A.I(f's_add_u32 s80, s80, 0x{WS_DBG:x}')
        A.I(f'buffer_store_dwordx2 {v(r, 2)}, off, s[{S_WS}:{S_WS + 3}], s80 offset:{8 * idx}')
    else:
        A.I(f'v_mov_b32 v{r}, s80')
        A.I(f'v_mov_b32 v{r + 1}, {L_TS + 8 * idx}')
        A.I(f'ds_write_b32 v{r + 1}, v{r}')
        A.I(f'v_mov_b32 v{r}, s81')
        A.I(f'ds_write_b32 v{r + 1}, v{r} offset:4')
        if idx == 6:
            A.I(f'v_lshlrev_b32 v{r}, 2, v0')
            A.I(f'v_add_u32 v{r + 1}, {L_TS}, v{r}')
            A.I('s_waitcnt lgkmcnt(0)')
            A.I(f'ds_read_b32 v{r + 1}, v{r + 1}')
            A.I(f's_lshl_b32 s80, s{S_G}, 5')
            A.I(f's_add_u32 s80, s80, s{S_H}')
            A.I('s_lshl_b32 s80, s80, 8')
            A.I(f's_add_u32 s80, s80, 0x{WS_DBG + 0x40000:x}')
            A.I('s_waitcnt lgkmcnt(0)')
            A.I(f'buffer_store_dword v{r + 1}, v{r}, s[{S_WS}:{S_WS + 3}], s80 offen')
    A.check = chk
    A.label(l)


def mega_kernel(A, name):
    kernel_begin(A, name)
    l_exit = A.newlabel('L_exit')
    P_WS, P_DBG, P_Q, P_K, P_V, P_O, P_M0, P_X = 16, 18, 20, 22, 24, 26, 28, 30
    ws, dbg, sx = f's[{S_WS}:{S_WS + 3}]', f's[{S_DBG}:{S_DBG + 3}]', f's[{S_X}:{S_X + 3}]'
    A.I('s_cmp_ge_u32 s2, 256')
    A.I(f's_cbranch_scc1 {l_exit}')
    if DIAG:
        A.I('s_memrealtime s[58:59]')
    A.I(f's_load_dwordx2 s[{P_WS}:{P_WS + 1}], s[0:1], {KA_WS}')
    A.I(f's_load_dwordx2 s[{P_DBG}:{P_DBG + 1}], s[0:1], {KA_DBG}')
    A.I(f's_load_dwordx4 s[{P_Q}:{P_Q + 3}], s[0:1], {KA_WQ}')
    A.I(f's_load_dwordx4 s[{P_V}:{P_V + 3}], s[0:1], {KA_WV}')
    A.I(f's_load_dwordx2 s[{P_M0}:{P_M0 + 1}], s[0:1], {KA_MEM0}')
    A.I(f's_load_dwordx2 s[{P_X}:{P_X + 1}], s[0:1], {KA_X}')
    A.I('v_lshrrev_b32 v1, 6, v0')
    A.I('v_and_b32 v0, 63, v0')
    A.I(f'v_readfirstlane_b32 s{S_WV}, v1')
    A.I(f's_getreg_b32 s{S_XCC}, hwreg(HW_REG_XCC_ID)')
    if os.environ.get('FAKE') == '1':
        A.I(f's_lshr_b32 s{S_XCC}, s2, 5')
    if os.environ.get('FAKE') == '2':
        A.I(f's_lshr_b32 s{S_XCC}, s2, 5')
        A.I(f's_max_u32 s{S_XCC}, s{S_XCC}, 2')
    if os.environ.get('FAKE') == '3':
        A.I(f's_lshr_b32 s{S_XCC}, s2, 4')
    A.I(f's_mov_b32 s{S_SPIN}, 0x80000')
    A.I('s_waitcnt lgkmcnt(0)')
    make_srd(A, S_WS, P_WS, WS_SIZE)
    make_srd(A, S_DBG, P_DBG, 256)
    make_srd(A, S_X, P_X, 2048 * 1024)
    LX, LF = 32, 48
    lnl = A.newlabel('L_l0')
    A.I('v_and_b32 v24, 15, v0')
    A.I('v_lshrrev_b32 v25, 4, v0')
    A.I('s_cmp_ge_u32 s2, 128')
    A.br(f's_cbranch_scc1 {lnl}')
    A.I('v_lshlrev_b32 v26, 10, v24')
    A.I('v_lshl_add_u32 v26, v25, 4, v26')
    A.I(f's_lshl_b32 s{S_LNO}, s2, 14')
    A.I(f's_lshl_b32 s{S_T0}, s{S_WV}, 8')
    A.I(f's_add_u32 s{S_T0}, s{S_T0}, s{S_LNO}')
    for i in range(4):
        A.I(f'buffer_load_dwordx4 {v(LX + 4 * i, 4)}, v26, {sx}, s{S_T0} offen offset:{64 * i}')
    A.label(lnl)
    A.forget_loads()
    if CODET:
        lct = A.newlabel('L_ct')
        A.I(f's_cmp_lg_u32 s{S_WV}, 3')
        A.br(f's_cbranch_scc1 {lct}')
        A.I('s_cmp_ge_u32 s2, 16')
        A.br(f's_cbranch_scc1 {lct}')
        code_touch(A, name, l_exit, CODE_BYTES, 255, 3)
        A.label(lct)
    lr = A.newlabel('L_role_done')
    lr0 = A.newlabel('L_role0')
    A.I('s_mov_b32 s60, 0')
    A.I(f's_cmp_eq_u32 s{S_WV}, 0')
    A.br(f's_cbranch_scc1 {lr0}')
    if SPEC:
        A.I(f's_cmp_ge_u32 s{S_XCC}, 3')
        A.br(f's_cbranch_scc1 {lr}')
        A.I(f's_cmp_eq_u32 s{S_WV}, 3')
        A.br(f's_cbranch_scc1 {lr}')
        A.I(f's_cmp_eq_u32 s{S_XCC}, 0')
        A.I(f's_cselect_b32 s{S_W}, s{P_Q}, s{P_K}')
        A.I(f's_cselect_b32 s{S_W + 1}, s{P_Q + 1}, s{P_K + 1}')
        A.I(f's_and_b32 s{S_W + 1}, s{S_W + 1}, 0xffff')
        A.I(f's_mov_b32 s{S_W + 2}, 0x400000')
        A.I(f's_mov_b32 s{S_W + 3}, 0x{SRD3:x}')
        A.I('v_lshrrev_b32 v2, 1, v0')
        A.I('v_lshlrev_b32 v2, 13, v2')
        A.I('v_and_b32 v3, 1, v0')
        A.I('v_lshl_add_u32 v2, v3, 7, v2')
        A.I(f's_lshr_b32 s{S_T0}, s2, 3')
        A.I(f's_lshl_b32 s{S_T0}, s{S_T0}, 8')
        A.I(f's_sub_u32 s{S_T1}, s{S_WV}, 1')
        A.I(f's_lshl_b32 s{S_T1}, s{S_T1}, 18')
        A.I(f's_add_u32 s{S_T0}, s{S_T0}, s{S_T1}')
        A.check = False
        for i in range(8):
            A.I(f'buffer_load_dword v255, v2, s[{S_W}:{S_W + 3}], s{S_T0} offen')
            A.I(f's_add_u32 s{S_T0}, s{S_T0}, {64 * 8192}')
        A.I('s_waitcnt vmcnt(8)')
        A.I('s_mov_b32 s60, 1')
        A.check = True
        A.forget_loads()
    A.br(f's_branch {lr}')
    A.label(lr0)
    A.I('s_mov_b64 exec, 1')
    A.I('v_mov_b32 v2, 1')
    lw = A.newlabel('L_nw')
    A.I(f's_cmp_lt_u32 s{S_XCC}, 8')
    A.br(f's_cbranch_scc1 {lw}')
    A.I(f'buffer_atomic_or v2, off, {dbg}, 0 offset:{D_WEIRD}')
    A.I('s_waitcnt vmcnt(0)')
    A.label(lw)
    A.I(f's_and_b32 s{S_G}, s{S_XCC}, 7')
    A.I(f's_lshl_b32 s{S_T0}, s{S_G}, 2')
    A.I(f'buffer_atomic_add v2, off, {dbg}, s{S_T0} sc0')
    A.I('s_waitcnt vmcnt(0)')
    A.I(f'v_readfirstlane_b32 s{S_H}, v2')
    lok = A.newlabel('L_rok')
    A.I(f's_cmp_lt_u32 s{S_H}, 32')
    A.br(f's_cbranch_scc1 {lok}')
    A.I('v_mov_b32 v2, 1')
    A.I(f'buffer_atomic_add v2, off, {dbg}, 0 offset:{D_OVF} sc0')
    A.I('s_waitcnt vmcnt(0)')
    A.I(f'v_readfirstlane_b32 s{S_T3}, v2')
    lo = A.newlabel('L_ovf')
    A.label(lo)
    A.I(f'buffer_load_dwordx4 v[4:7], off, {dbg}, 0 sc1')
    A.I(f'buffer_load_dwordx4 v[8:11], off, {dbg}, 0 offset:16 sc1')
    A.I(f's_sub_u32 s{S_SPIN}, s{S_SPIN}, 1')
    A.I(f's_cbranch_scc1 {l_exit}')
    A.I('s_waitcnt vmcnt(0)')
    A.I(f's_mov_b32 s{S_T0}, 0')
    for i in range(8):
        A.I(f'v_readfirstlane_b32 s{64 + i}, v{4 + i}')
    for i in range(8):
        A.I(f's_add_u32 s{S_T0}, s{S_T0}, s{64 + i}')
    A.I(f's_cmp_lt_u32 s{S_T0}, 256')
    A.br(f's_cbranch_scc1 {lo}')
    for g in range(8):
        A.I(f's_min_u32 s{S_T0}, s{64 + g}, 32')
        A.I(f's_sub_u32 s{S_T1}, 32, s{S_T0}')
        A.I(f's_mov_b32 s{S_G}, {g}')
        A.I(f's_add_u32 s{S_H}, s{S_T0}, s{S_T3}')
        A.I(f's_cmp_lt_u32 s{S_T3}, s{S_T1}')
        A.br(f's_cbranch_scc1 {lok}')
        A.I(f's_sub_u32 s{S_T3}, s{S_T3}, s{S_T1}')
    A.I(f's_mov_b32 s{S_G}, 0x100')
    A.I(f's_mov_b32 s{S_H}, 0')
    A.label(lok)
    A.I(f's_lshl_b32 s{S_T0}, s{S_G}, 8')
    A.I(f's_or_b32 s{S_T0}, s{S_T0}, s{S_H}')
    A.I(f'v_mov_b32 v2, s{S_T0}')
    A.I('v_mov_b32 v3, 0')
    A.I('ds_write_b32 v3, v2')
    A.I('s_waitcnt lgkmcnt(0)')
    A.I('s_mov_b64 exec, -1')
    A.label(lr)
    lno, lnd = A.newlabel('L_lno'), A.newlabel('L_lnd')
    A.I('s_cmp_ge_u32 s2, 128')
    A.br(f's_cbranch_scc1 {lno}')
    A.I(f's_lshl_b32 s{S_T0}, s{S_WV}, 2')
    A.I('v_lshlrev_b32 v27, 4, v24')
    A.I(f'v_add_u32 v26, s{S_T0}, v27')
    lsw = A.newlabel('L_sw')
    A.I('s_cmp_eq_u32 s60, 1')
    A.br(f's_cbranch_scc1 {lsw}')
    A.I('s_waitcnt vmcnt(0)')
    A.label(lsw)
    for i in range(16):
        A.I(f'v_lshlrev_b32 v{LF + 2 * i}, 16, v{LX + i}')
        A.I(f'v_and_b32 v{LF + 2 * i + 1}, 0xffff0000, v{LX + i}')
    A.I(f'v_add_f32 v28, v{LF}, v{LF + 1}')
    A.I(f'v_add_f32 v29, v{LF + 2}, v{LF + 3}')
    for i in range(4, 32, 2):
        A.I(f'v_add_f32 v28, v28, v{LF + i}')
        A.I(f'v_add_f32 v29, v29, v{LF + i + 1}')
    A.I('v_add_f32 v28, v28, v29')
    T.xreduce(A, 'v_add_f32', 28, 29)
    A.I('ds_write_b32 v26, v28 offset:64')
    A.I('s_waitcnt lgkmcnt(0)')
    A.I('s_barrier')
    A.I('v_mov_b32 v3, 0')
    A.I('ds_read_b32 v2, v3')
    A.I('ds_read_b128 v[28:31], v27 offset:64')
    A.I('s_waitcnt lgkmcnt(0)')
    A.I('v_add_f32 v28, v28, v29')
    A.I('v_add_f32 v30, v30, v31')
    A.I('v_add_f32 v28, v28, v30')
    A.I(f'v_mul_f32 v28, {f32(1 / 512)}, v28')
    A.I('v_mov_b32 v29, 0')
    A.I('v_mov_b32 v30, 0')
    for i in range(0, 32, 2):
        A.I(f'v_sub_f32 v{LF + i}, v{LF + i}, v28')
        A.I(f'v_sub_f32 v{LF + i + 1}, v{LF + i + 1}, v28')
        A.I(f'v_fmac_f32 v29, v{LF + i}, v{LF + i}')
        A.I(f'v_fmac_f32 v30, v{LF + i + 1}, v{LF + i + 1}')
    A.I('v_add_f32 v29, v29, v30')
    T.xreduce(A, 'v_add_f32', 29, 30)
    A.I('ds_write_b32 v26, v29 offset:320')
    A.I('s_waitcnt lgkmcnt(0)')
    A.I('s_barrier')
    A.I('ds_read_b128 v[28:31], v27 offset:320')
    A.I('s_waitcnt lgkmcnt(0)')
    A.I('v_add_f32 v28, v28, v29')
    A.I('v_add_f32 v30, v30, v31')
    A.I('v_add_f32 v28, v28, v30')
    A.I(f'v_mov_b32 v29, {f32(1e-5)}')
    A.I(f'v_fmac_f32 v29, {f32(1 / 512)}, v28')
    A.I('v_rsq_f32 v29, v29')
    A.I('v_lshlrev_b32 v26, 4, v0')
    A.I(f's_lshl_b32 s{S_T0}, s{S_WV}, 12')
    A.I(f's_add_u32 s{S_T0}, s{S_T0}, s{S_LNO}')
    A.I(f's_add_u32 s{S_T0}, s{S_T0}, 0x{WS_XN:x}')
    for i in range(4):
        for j in range(4):
            f = LF + 8 * i + 2 * j
            A.I(f'v_mul_f32 v{f}, v{f}, v29')
            A.I(f'v_mul_f32 v{f + 1}, v{f + 1}, v29')
            A.I(f'v_cvt_pk_bf16_f32 v{LX + 4 * i + j}, v{f}, v{f + 1}')
        A.I(f'buffer_store_dwordx4 {v(LX + 4 * i, 4)}, v26, {ws}, s{S_T0} offen offset:{1024 * i} sc1')
    A.br(f's_branch {lnd}')
    A.label(lno)
    A.I('s_barrier')
    A.I('v_mov_b32 v3, 0')
    A.I('ds_read_b32 v2, v3')
    A.I('s_waitcnt lgkmcnt(0)')
    A.label(lnd)
    A.forget_loads()
    A.I(f'v_readfirstlane_b32 s{S_T0}, v2')
    A.I(f's_and_b32 s{S_H}, s{S_T0}, 31')
    A.I(f's_bfe_u32 s{S_G}, s{S_T0}, 0x30008')
    A.I(f's_cmp_ge_u32 s{S_T0}, 0x10000')
    A.I(f's_cbranch_scc1 {l_exit}')
    A.I('s_barrier')
    tstamp(A, 0)

    def arrive(off=D_GB):
        l = A.newlabel('L_na')
        A.I(f's_cmp_lg_u32 s{S_WV}, 0')
        A.br(f's_cbranch_scc1 {l}')
        A.I('v_mov_b32 v23, 1')
        lane0(A, lambda: A.I(f'buffer_atomic_add v23, off, {dbg}, 0 offset:{off}'))
        A.label(l)

    def ln_and_arrive(ln=True):
        A.I('s_waitcnt vmcnt(0)')
        A.I('s_barrier')
        arrive()

    l_tok = A.newlabel('L_tok')
    l_g2 = A.newlabel('L_g2')
    A.I(f's_cmp_lg_u32 s{S_G}, 0')
    A.br(f's_cbranch_scc1 {l_tok}')

    A.I(f'v_mov_b32 v{R.LANE}, v0')
    R.setup_consts(A)

    A.I(f's_lshl_b32 s{S_T0}, s{S_H}, 6')
    A.I(f's_lshl_b32 s{S_T1}, s{S_WV}, 2')
    A.I(f's_add_u32 s{S_T0}, s{S_T0}, s{S_T1}')
    A.I(f's_add_u32 s{S_LNO}, s{S_T0}, 0x{R.F_KMP:x}')
    A.I('v_mov_b32 v24, 0')
    lane0(A, lambda: A.I(f'buffer_store_dword v24, off, {ws}, s{S_LNO} sc1'))
    R.init_exchange(A, P_M0, 'sc1', rb=24, part=0)

    def thook():
        A.check = False
        R.init_exchange(A, P_M0, 'sc1', rb=24, part=1)
        A.check = True
        A.forget_loads()

    def h_sc(sc):
        if sc == 0:
            arrive()
            tstamp(A, 8, 24)
        if sc == 1:
            arrive(D_TI)

    S_OK = 25

    def batch():
        A.I(f'buffer_load_dword v25, off, {dbg}, 0 sc1')
        A.I(f'buffer_load_dword v26, off, {dbg}, 0 offset:{D_WEIRD} sc1')
        A.I(f'buffer_load_dword v27, off, {dbg}, 0 offset:{D_TI} sc1')
        R.kv_load(A, 28, R.V_L16, R.S_RA)

    def h_issue(sc):
        if sc == 3:
            A.I(f'buffer_load_dword v24, off, {dbg}, 0 offset:{D_GB} sc1')
            return
        A.I(f's_lshl_b32 s{R.S_RA}, s{S_H}, 7')
        A.I(f's_add_u32 s{R.S_RA}, s{R.S_RA}, 0x{R.F_PROG:x}')
        A.I(f's_mul_i32 s{R.S_KVN}, s{S_H}, {BH * 8192}')
        A.I(f's_add_u32 s{R.S_KVN}, s{R.S_KVN}, s{R.S_W11}')
        A.I(f's_add_u32 s{R.S_KVN}, s{R.S_KVN}, 0x{WS_KF:x}')
        A.I(f's_add_u32 s{R.S_KVM0}, s{R.S_W11}, {R.L_KV}')
        batch()

    def evaluate(l_fail):
        R.kv_eval(A, 28, R.V_L16, R.S_AV)
        A.I(f'v_readfirstlane_b32 s{S_T0}, v24')
        A.I(f'v_readfirstlane_b32 s{S_T2}, v25')
        A.I(f'v_readfirstlane_b32 s{S_T3}, v26')
        A.I(f's_cmp_lg_u32 s{S_T0}, 256')
        A.I(f's_cbranch_scc1 {l_fail}')
        A.I(f'v_readfirstlane_b32 s{S_T0}, v27')
        A.I(f's_cmp_lg_u32 s{S_T0}, 32')
        A.I(f's_cbranch_scc1 {l_fail}')
        A.I(f's_cmp_eq_u32 s{R.S_AV}, 0')
        A.I(f's_cbranch_scc1 {l_fail}')
        A.I(f's_cmp_ge_u32 s{S_T2}, 32')
        A.I(f's_cselect_b32 s{S_XCC}, 1, 0')
        A.I(f's_cmp_eq_u32 s{S_T3}, 0')
        A.I(f's_cselect_b32 s{S_XCC}, s{S_XCC}, 0')
        R.kv_dma(A)

    def h_check():
        lf = A.newlabel('L_hf')
        A.I(f's_mov_b32 s{S_OK}, 0')
        evaluate(lf)
        A.I(f's_mov_b32 s{S_OK}, 1')
        A.label(lf)

    R.stage_weights(A, [P_Q, P_K, P_V, P_O], hook=thook, hook_issue=h_issue, hook_check=h_check, hook_sc=h_sc)
    tstamp(A, 1)
    A.I(f's_mov_b32 s{R.S_KP}, s{S_LNO}')
    lgo_, lre = A.newlabel('L_tgo'), A.newlabel('L_tre')
    A.I(f's_cmp_eq_u32 s{S_OK}, 1')
    A.br(f's_cbranch_scc1 {lgo_}')
    A.label(lre)
    A.I('s_sleep 4')
    A.I(f'buffer_load_dword v24, off, {dbg}, 0 offset:{D_GB} sc1')
    A.I('s_waitcnt vmcnt(0)')
    batch()
    A.I(f's_sub_u32 s{S_SPIN}, s{S_SPIN}, 1')
    A.I(f's_cbranch_scc1 {l_exit}')
    A.I('s_waitcnt vmcnt(0)')
    evaluate(lre)
    A.label(lgo_)
    A.I('s_waitcnt vmcnt(0)')
    A.I('s_barrier')
    tstamp(A, 2)
    if DIAG:
        A.I('s_memrealtime s[80:81]')
        A.I('s_waitcnt lgkmcnt(0)')
        A.I('s_sub_u32 s60, s80, s58')
    l_slow = A.newlabel('L_slowmode')
    l_tdone = A.newlabel('L_tdone')
    A.I(f's_cmp_eq_u32 s{S_XCC}, 0')
    if os.environ.get('FORCE_SLOW'):
        A.br(f's_branch {l_slow}')
    else:
        A.br(f's_cbranch_scc1 {l_slow}')
    R.main_loop(A, '', l_tdone, kvcheck=True)
    A.label(l_slow)
    R.main_loop(A, 'sc1', l_tdone, kvcheck=True)
    A.label(l_tdone)
    A.forget_loads()
    A.I(f's_mov_b32 s{S_G}, 0')
    tstamp(A, 3)
    if DIAG:
        A.I('s_memrealtime s[80:81]')
        A.I('s_waitcnt lgkmcnt(0)')
        A.I('s_sub_u32 s61, s80, s58')
    A.I(f'v_lshrrev_b32 v0, 4, v{R.V_L16}')
    j2_calc(A)
    A.I('s_waitcnt vmcnt(0) lgkmcnt(0)')
    A.I('s_barrier')
    g2_setup(A)
    for k in (0, 1, 2, 3, 4, 13):
        g2_dma(A, k)
    A.I(f's_mov_b32 s{S_PRE}, 0')
    A.br(f's_branch {l_g2}')

    A.label(l_tok)
    A.forget_loads()
    S_SEG, S_NX, S_CA, S_END, S_K1, S_AV, S_PB = 36, 41, 42, 43, 44, 45, 46
    j2_calc(A)
    A.I(f's_sub_u32 s{S_G}, s{S_G}, 1')
    A.I(f's_lshl_b32 s{S_J}, s{S_G}, 5')
    A.I(f's_add_u32 s{S_J}, s{S_J}, s{S_H}')

    def tok_init(ln=True):
        if SENT:
            lps = A.newlabel('L_ps')
            A.I(f's_cmp_lt_u32 s{S_G}, 5')
            A.br(f's_cbranch_scc1 {lps}')
            for r in range(16, 20):
                A.I(f'v_mov_b32 v{r}, -1')
            A.I('v_lshlrev_b32 v20, 4, v0')
            A.I('v_lshlrev_b32 v21, 3, v0')
            A.I(f's_add_u32 s{S_T0}, s{S_J}, {57 * 32}')
            A.I(f's_lshl_b32 s{S_T0}, s{S_T0}, 2')
            A.I(f's_add_u32 s{S_T0}, s{S_T0}, s{S_WV}')
            A.I(f's_lshl_b32 s{S_T1}, s{S_T0}, 10')
            A.I(f's_add_u32 s{S_T1}, s{S_T1}, 0x{WS_KM:x}')
            A.I(f'buffer_store_dwordx4 v[16:19], v20, {ws}, s{S_T1} offen sc1')
            A.I(f's_lshl_b32 s{S_T1}, s{S_T0}, 9')
            A.I(f's_add_u32 s{S_T1}, s{S_T1}, 0x{WS_VM:x}')
            A.I(f'buffer_store_dwordx2 v[16:17], v21, {ws}, s{S_T1} offen sc1')
            A.label(lps)
        A.I(f's_lshl_b32 s{S_CA}, s{S_H}, 7')
        A.I(f's_lshl_b32 s{S_T0}, s{S_G}, 4')
        A.I(f's_add_u32 s{S_CA}, s{S_CA}, s{S_T0}')
        A.I(f's_lshl_b32 s{S_T0}, s{S_WV}, 2')
        A.I(f's_add_u32 s{S_CA}, s{S_CA}, s{S_T0}')
        A.I(f's_add_u32 s{S_CA}, s{S_CA}, 0x{R.F_PROG:x}')
        A.I('v_mov_b32 v22, 0')
        lane0(A, lambda: A.I(f'buffer_store_dword v22, off, {ws}, s{S_CA} sc1'))
        lz = A.newlabel('L_nz')
        A.I(f's_cmp_lg_u32 s{S_J}, 64')
        A.br(f's_cbranch_scc1 {lz}')
        A.I('v_lshlrev_b32 v23, 4, v0')
        for r in range(16, 20):
            A.I(f'v_mov_b32 v{r}, 0')
        A.I(f's_mul_i32 s{S_T0}, s{S_WV}, 6144')
        A.I(f's_add_u32 s{S_T0}, s{S_T0}, 0x{F_OPC:x}')
        A.I(f's_add_u32 s{S_T1}, s{S_T0}, 4096')
        for i in range(4):
            A.I(f'buffer_store_dwordx4 v[16:19], v23, {ws}, s{S_T0} offen offset:{1024 * i} sc1')
        A.I(f'buffer_store_dwordx4 v[16:19], v23, {ws}, s{S_T1} offen sc1')
        A.I(f'buffer_store_dwordx4 v[16:19], v23, {ws}, s{S_T1} offen offset:1024 sc1')
        A.label(lz)
        A.forget_loads()
        if ln:
            ln_and_arrive()
            ts_tok(A, 8)

    l_late = A.newlabel('L_late')
    l_st = A.newlabel('L_st')
    A.I(f's_mov_b32 s{S_K1}, 0')
    l_lt = A.newlabel('L_lt')
    A.I(f's_cmp_ge_u32 s{S_G}, {NEARLY}')
    A.br(f's_cbranch_scc1 {l_lt}')
    tok_init(False)
    A.br(f's_branch {l_st}')
    A.label(l_lt)
    if WARM:
        lwm = A.newlabel('L_wm')
        A.I(f's_cmp_eq_u32 s{S_G}, 3')
        A.br(f's_cbranch_scc1 {lwm}')
        A.I(f's_sub_u32 s{S_T0}, s{S_J}, 96')
        A.I(f's_cmp_eq_u32 s{S_G}, 2')
        A.I(f's_cselect_b32 s{S_T0}, s{S_H}, s{S_T0}')
        A.I(f's_lshl_b32 s{S_T0}, s{S_T0}, 2')
        A.I(f's_add_u32 s{S_T0}, s{S_T0}, s{S_WV}')
        A.I(f's_lshl_b32 s{S_T0}, s{S_T0}, 13')
        A.I('v_lshlrev_b32 v22, 7, v0')
        A.check = False
        for p in (P_Q, P_K, P_V, P_O):
            make_srd(A, S_W, p, 4 << 20)
            A.I(f'buffer_load_dword v255, v22, s[{S_W}:{S_W + 3}], s{S_T0} offen')
        A.check = True
        A.label(lwm)
        A.forget_loads()
    tok_init()
    l_nost = A.newlabel('L_nost')
    wg_poll_eq(A, dbg, None, D_GB, 256, 2, l_exit, sleep=100)
    A.I(f's_cmp_ge_u32 s{S_G}, 4')
    A.br(f's_cbranch_scc1 {l_nost}')
    lsg, lsd = A.newlabel('L_sg'), A.newlabel('L_sd')
    A.I(f's_cmp_lg_u32 s{S_WV}, 0')
    A.br(f's_cbranch_scc1 {lsd}')
    A.I(f's_cmp_eq_u32 s{S_G}, 3')
    A.I(f's_cselect_b32 s{S_T1}, {STAG}, {STAG0}')
    A.I(f's_lshl_b32 s{S_T2}, s{S_H}, 6')
    A.I(f's_add_u32 s{S_T2}, s{S_T2}, 0x{R.F_KMP:x}')
    A.label(lsg)
    A.I(f'buffer_load_dword v2, off, {ws}, s{S_T2} sc1')
    A.I(f's_sub_u32 s{S_SPIN}, s{S_SPIN}, 1')
    A.I(f's_cbranch_scc1 {l_exit}')
    A.I('s_waitcnt vmcnt(0)')
    A.I(f'v_readfirstlane_b32 s{S_T0}, v2')
    A.I(f's_cmp_ge_u32 s{S_T0}, s{S_T1}')
    A.I(f's_cbranch_scc1 {lsd}')
    A.I('s_sleep 40')
    A.br(f's_branch {lsg}')
    A.label(lsd)
    A.I('s_barrier')
    A.I(f's_mov_b32 s{S_K1}, 1')
    A.label(l_st)

    def hook(sc):
        if sc != 0:
            return
        l = A.newlabel('L_hk')
        A.I(f's_cmp_eq_u32 s{S_K1}, 1')
        A.br(f's_cbranch_scc1 {l}')
        arrive()
        ts_tok(A, 8)
        A.label(l)

    T.qkv_stage(A, [P_Q, P_K, P_V], hook_sc=hook)
    A.label(l_nost)
    ts_tok(A, 1)
    wg_poll_eq(A, dbg, None, D_GB, 256, 2, l_exit, sleep=8)
    ts_tok(A, 7)
    A.I(f's_lshl_b32 s{S_T0}, s{S_G}, 2')
    A.I(f'buffer_load_dword v2, off, {dbg}, s{S_T0} offset:4 sc1')
    A.I(f'buffer_load_dword v3, off, {dbg}, 0 offset:{D_WEIRD} sc1')
    A.I('s_waitcnt vmcnt(0)')
    A.I(f'v_readfirstlane_b32 s{S_T2}, v2')
    A.I(f'v_readfirstlane_b32 s{S_T3}, v3')
    A.I(f's_cmp_ge_u32 s{S_T2}, 32')
    A.I(f's_cselect_b32 s{S_FAST}, 1, 0')
    A.I(f's_cmp_eq_u32 s{S_T3}, 0')
    A.I(f's_cselect_b32 s{S_FAST}, s{S_FAST}, 0')
    if os.environ.get('FORCE_SLOW'):
        A.I(f's_mov_b32 s{S_FAST}, 0')
    l_nop1 = A.newlabel('L_nop1')
    A.I(f's_cmp_ge_u32 s{S_G}, 4')
    A.br(f's_cbranch_scc1 {l_nop1}')
    A.I(f's_lshr_b32 s{S_T0}, s{S_G}, 1')
    A.I(f's_lshl_b32 s{S_T0}, s{S_T0}, 5')
    A.I(f's_add_u32 s{S_END}, s{S_T0}, 32')
    A.I(f's_and_b32 s{S_NX}, s{S_G}, 1')
    A.I(f's_add_u32 s{S_NX}, s{S_NX}, s{S_T0}')
    A.I('v_mov_b32 v2, 0')

    def signal():
        lane0(A, lambda: A.I(f'buffer_store_dword v2, off, {ws}, s{S_CA} sc1'))

    def after():
        A.I('v_add_u32 v2, 1, v2')

    T.qkv_segments(A, 2, 'sc1', after_seg=after, mid_seg=signal, first=S_NX, end=f's{S_END}')
    A.I('s_waitcnt vmcnt(0)')
    signal()
    A.label(l_nop1)
    ts_tok(A, 2)
    T.att_stage(A, P_O)
    T.att_consts(A)
    A.I(f's_load_dwordx4 s[16:19], s[0:1], {KA_W1}')
    A.I('s_waitcnt lgkmcnt(0)')
    make_srd(A, S_W1, 16, 2048 * 3584)
    make_srd(A, S_B1, 18, 3584)
    g2_setup(A)
    A.I(f's_mov_b32 s{S_PRE}, 0')
    for i in range(16):
        A.I(f'v_mov_b32 v{G1ACC + i}, 0')
    A.I(f's_mov_b32 s{S_K1}, 0')
    g1_w1_dma(A, S_K1, first=True)
    A.I(f's_lshl_b32 s{S_OPS}, s{S_G}, 1')
    masks = seg_masks()
    for g in range(7):
        A.I(f's_cmp_eq_u32 s{S_G}, {g}')
        A.I(f's_cselect_b32 s{S_MSK}, 0x{masks[g] & 0xffffffff:x}, s{S_MSK}')
        A.I(f's_cselect_b32 s{S_MSK + 1}, 0x{masks[g] >> 32:x}, s{S_MSK + 1}')
    A.I(f's_ff1_i32_b64 s{S_SEG}, s[{S_MSK}:{S_MSK + 1}]')
    A.I(f's_bitset0_b64 s[{S_MSK}:{S_MSK + 1}], s{S_SEG}')
    A.I(f's_mov_b32 s{S_AV}, 0')
    A.I(f's_lshl_b32 s{S_PB}, s{S_H}, 7')
    A.I(f's_add_u32 s{S_PB}, s{S_PB}, 0x{R.F_PROG:x}')
    R.kv_wait(A, l_exit, S_SEG, 192, s_av=S_AV, s_base=S_PB, sleep=4, vlane16=1)
    T.att_load_qkv(A, S_SEG)
    x_prefetch(A, S_SEG, sx)
    L = A.newlabel('L_p2')
    L_att = A.newlabel('L_att')
    L_fin = A.newlabel('L_p2fin')
    A.label(L)
    A.check = False
    A.I(f's_cmp_ge_u32 s{S_K1}, 16')
    A.I(f's_cbranch_scc1 {L_fin}')
    lq2 = A.newlabel('L_lp2')
    ldec = A.newlabel('L_dec')
    A.I(f's_cmp_lg_u32 s{S_WV}, 0')
    A.br(f's_cbranch_scc1 {ldec}')
    A.I(f's_lshl_b32 s{S_CA}, s{S_H}, 6')
    A.I(f's_add_u32 s{S_CA}, s{S_CA}, 0x{R.F_KMP:x}')
    A.I(f's_add_u32 s40, s{S_SEG}, 2')
    if SENT:
        A.I('s_sub_u32 s61, s40, 64')
        A.I('s_cmp_lt_u32 s61, 2')
        A.I('s_cselect_b32 s40, 63, s40')
    A.I(f's_lshl_b32 s{S_T1}, s{S_K1}, 4')
    A.I(f's_lshl_b32 s{S_T2}, s{S_G}, 9')
    A.I(f's_add_u32 s{S_T1}, s{S_T1}, s{S_T2}')
    A.I(f's_add_u32 s{S_T1}, s{S_T1}, 0x{F_GF + 512:x}')
    lq, lgo, lnk = A.newlabel('L_lp'), A.newlabel('L_go'), A.newlabel('L_nk')
    A.label(lq)
    A.I(f'buffer_load_dwordx4 v[192:195], off, {ws}, s{S_CA} {PLF}')
    A.I(f'buffer_load_dwordx4 v[196:199], off, {ws}, s{S_T1} {PLF}')
    A.I(f'buffer_load_dwordx4 v[200:203], off, {ws}, s{S_T1} offset:16 {PLF}')
    A.I(f's_sub_u32 s{S_SPIN}, s{S_SPIN}, 1')
    A.I(f's_cbranch_scc1 {l_exit}')
    A.I('s_waitcnt vmcnt(0)')
    A.I('v_min_u32 v6, v192, v193')
    A.I('v_min3_u32 v6, v6, v194, v195')
    A.I(f'v_readfirstlane_b32 s{S_T0}, v6')
    A.I('v_min_u32 v7, v196, v197')
    A.I('v_min3_u32 v7, v7, v198, v199')
    A.I('v_cmp_eq_u32 vcc, 0, v7')
    A.I(f's_mov_b32 s{S_T3}, 1')
    A.I(f's_cmp_ge_u32 s{S_T0}, s40')
    A.I(f's_cbranch_scc1 {lgo}')
    A.label(lnk)
    lsl = A.newlabel('L_sl')
    A.I(f's_add_u32 s{S_T0}, s{S_T0}, 2')
    A.I(f's_cmp_lt_u32 s40, {E_IMM}')
    A.I(f's_cselect_b32 s{S_T0}, 0, s{S_T0}')
    A.I(f's_cmp_ge_u32 s{S_T0}, s40')
    A.I(f's_cbranch_scc1 {lq}')
    A.I(f's_mul_i32 s{S_T2}, s{S_PRE}, 3')
    A.I(f's_add_u32 s{S_T2}, s{S_T2}, 5')
    A.I(f's_cmp_lt_u32 s{S_PRE}, 2')
    A.I(f's_cselect_b32 s{S_T2}, s{S_T2}, 99')
    A.I(f's_mov_b32 s{S_T3}, 3')
    A.I(f's_cmp_ge_u32 s{S_K1}, s{S_T2}')
    A.I(f's_cbranch_scc1 {lgo}')
    A.I('v_min_u32 v6, v200, v201')
    A.I('v_min3_u32 v6, v6, v202, v203')
    A.I(f'v_readfirstlane_b32 s{S_T2}, v6')
    A.I(f's_cmp_eq_u32 s{S_K1}, 15')
    A.I(f's_cselect_b32 s{S_T2}, 0, s{S_T2}')
    A.I(f's_cmp_eq_u32 s{S_T2}, 0')
    A.I(f's_cselect_b32 s{S_T3}, 2, 4')
    A.I(f's_cbranch_vccz {lgo}')
    lns = A.newlabel('L_nsl')
    A.I(f's_mov_b32 s{S_T3}, 3')
    A.I(f's_cmp_lt_u32 s{S_K1}, 3')
    A.I(f's_cbranch_scc1 {lns}')
    A.I(f's_cmp_lt_u32 s{S_SEG}, 64')
    A.I(f's_cselect_b32 s{S_T2}, 2, 3')
    A.I(f's_cmp_lt_u32 s{S_PRE}, s{S_T2}')
    A.I(f's_cbranch_scc1 {lgo}')
    A.label(lns)
    A.I('s_sleep 4')
    A.I(f's_cmp_ge_u32 s{S_K1}, 14')
    A.I(f's_cbranch_scc1 {lq}')
    A.I(f's_sleep {int(os.environ.get("SLP", 12))}')
    A.br(f's_branch {lq}')
    A.label(lgo)
    A.I(f'v_mov_b32 v6, s{S_T3}')
    A.I(f'v_mov_b32 v7, 156000')
    A.I('ds_write_b32 v7, v6')
    A.I('s_waitcnt lgkmcnt(0)')
    A.label(ldec)
    A.I('s_barrier')
    A.I(f'v_mov_b32 v7, 156000')
    A.I('ds_read_b32 v6, v7')
    A.I('s_waitcnt lgkmcnt(0)')
    A.I(f'v_readfirstlane_b32 s{S_T0}, v6')
    A.I(f's_cmp_eq_u32 s{S_T0}, 1')
    A.br(f's_cbranch_scc1 {lq2}')
    lch = A.newlabel('L_ch')
    A.I(f's_mov_b32 s{S_NX}, s{S_T0}')
    A.I(f's_cmp_lg_u32 s{S_T0}, 3')
    A.br(f's_cbranch_scc1 {lch}')
    for rnd in range(4):
        lpr = A.newlabel('L_pr')
        A.I(f's_cmp_lg_u32 s{S_PRE}, {rnd}')
        A.br(f's_cbranch_scc1 {lpr}')
        g2_pre(A, rnd)
        A.br(f's_branch {L}')
        A.label(lpr)
    A.label(lch)
    ts_tok(A, 16)
    g1_chunk(A, S_K1, l_exit)
    A.I(f's_add_u32 s{S_K1}, s{S_K1}, 1')
    if CODET:
        lct = A.newlabel('L_ct')
        A.I(f's_cmp_lg_u32 s{S_K1}, 12')
        A.br(f's_cbranch_scc1 {lct}')
        A.I(f's_lshl_b32 s{S_T0}, s{S_H}, 2')
        A.I(f's_add_u32 s{S_T0}, s{S_T0}, s{S_WV}')
        A.I(f's_cmp_lg_u32 s{S_T0}, 7')
        A.br(f's_cbranch_scc1 {L}')
        code_touch(A, L, l_exit, TAIL_BYTES, 5, 143)
        A.br(f's_branch {L}')
        A.label(lct)
    lw2 = A.newlabel('L_w2')
    A.I(f's_cmp_lg_u32 s{S_K1}, 3')
    A.br(f's_cbranch_scc1 {lw2}')
    for k in range(5):
        g2_dma(A, k)
    A.label(lw2)
    A.I(f's_cmp_lg_u32 s{S_NX}, 4')
    A.br(f's_cbranch_scc1 {L}')
    A.I(f's_mov_b32 s{S_NX}, 2')
    A.I('s_barrier')
    A.br(f's_branch {lch}')
    A.label(lq2)
    ts_tok(A, 10)
    lsn = A.newlabel('L_sn')
    A.label(lsn)
    T.att_load_mem(A, S_SEG, 'sc1')
    if SENT:
        A.I(f's_sub_u32 s{S_SPIN}, s{S_SPIN}, 1')
        A.I(f's_cbranch_scc1 {l_exit}')
    A.I('s_waitcnt vmcnt(0)')
    if SENT:
        b = T.AT_KM
        A.I(f'v_max3_u32 v6, v{b}, v{b + 1}, v{b + 2}')
        A.I(f'v_max_u32 v6, v6, v{b + 3}')
        for i in range(4, 24, 2):
            A.I(f'v_max3_u32 v6, v6, v{b + i}, v{b + i + 1}')
        A.I('v_cmp_eq_u32 vcc, -1, v6')
        A.I(f's_cbranch_vccnz {lsn}')
    ts_tok(A, 11)
    A.check = True
    A.forget_loads()
    T.att_compute1(A)
    T.att_xchg(A, L_RED)
    saved_ = (list(A.vm), list(A.lg))
    lc1, lc2 = A.newlabel('L_c2s'), A.newlabel('L_c2e')
    A.I(f's_cmp_eq_u32 s{S_FAST}, 0')
    A.br(f's_cbranch_scc1 {lc1}')
    T.att_compute2(A, S_OPS, '')
    A.br(f's_branch {lc2}')
    A.label(lc1)
    A.vm, A.lg = saved_
    T.att_compute2(A, S_OPS, 'sc1')
    A.label(lc2)
    ts_tok(A, 12)
    A.I('s_waitcnt vmcnt(0)')
    A.I('s_barrier')
    ts_tok(A, 13)
    A.I(f's_lshl_b32 s{S_CA}, s{S_SEG}, 7')
    A.I(f's_add_u32 s{S_CA}, s{S_CA}, 0x{F_OPC:x}')
    l0 = A.newlabel('L_n0')
    A.I(f's_cmp_lg_u32 s{S_WV}, 0')
    A.br(f's_cbranch_scc1 {l0}')
    A.I(f's_lshl_b32 s{S_T1}, s{S_H}, 2')
    A.I(f's_add_u32 s{S_T1}, s{S_T1}, s{S_CA}')
    flag_store(A, S_T1, 6)
    poll_flags(A, S_CA, 32, 1, 6, 7, l_exit)
    A.label(l0)
    A.I('s_barrier')
    ts_tok(A, 14)
    red4(A, S_SEG, sx, l_exit)
    A.I(f's_ff1_i32_b64 s{S_SEG}, s[{S_MSK}:{S_MSK + 1}]')
    A.I(f's_bitset0_b64 s[{S_MSK}:{S_MSK + 1}], s{S_SEG}')
    lnn = A.newlabel('L_nn')
    A.I(f's_cmp_lt_u32 s{S_SEG}, 64')
    A.br(f's_cbranch_scc1 {lnn}')
    A.I(f's_mov_b32 s{S_SEG}, 999')
    if WBL:
        lwb = A.newlabel('L_wb')
        A.I(f's_lshl_b32 s{S_T0}, s{S_H}, 2')
        A.I(f's_add_u32 s{S_T0}, s{S_T0}, s{S_WV}')
        A.I(f's_cmp_lg_u32 s{S_T0}, 7')
        A.br(f's_cbranch_scc1 {lwb}')
        A.I('buffer_wbl2 sc1')
        A.label(lwb)
    ts_tok(A, 3)
    A.br(f's_branch {L}')
    A.label(lnn)
    lav = A.newlabel('L_av')
    A.I(f's_cmp_gt_u32 s{S_AV}, s{S_SEG}')
    A.br(f's_cbranch_scc1 {lav}')
    R.kv_wait(A, l_exit, S_SEG, 192, s_av=S_AV, s_base=S_PB, sleep=4, vlane16=1)
    A.label(lav)
    T.att_load_qkv(A, S_SEG)
    x_prefetch(A, S_SEG, sx)
    A.br(f's_branch {L}')
    A.label(L_fin)
    A.forget_loads()
    ts_tok(A, 4)
    g1_epilogue(A, l_exit)
    A.I(f's_add_u32 s{S_G}, s{S_G}, 1')
    tstamp(A, 17)
    A.label(l_g2)
    A.forget_loads()
    g2_main(A, l_exit)
    tstamp(A, 6, 8)
    if DIAG:
        A.I(f's_add_u32 s{S_T0}, s{S_G}, s{S_H}')
        A.I(f's_add_u32 s{S_T0}, s{S_T0}, s{S_WV}')
        A.I(f's_cmp_lg_u32 s{S_T0}, 0')
        A.br(f's_cbranch_scc1 {l_exit}')
        A.I('s_memrealtime s[80:81]')
        A.I('s_waitcnt lgkmcnt(0)')
        A.I('s_sub_u32 s80, s80, s58')
        A.I('v_mov_b32 v8, s60')
        A.I('v_mov_b32 v9, s61')
        A.I('v_mov_b32 v10, s80')
        A.I('v_mov_b32 v11, 0')
        if os.environ.get('DIAG2'):
            A.I(f'buffer_store_dword v9, off, {dbg}, 0 offset:32')
        else:
            A.I(f'buffer_store_dwordx4 v[8:11], off, {dbg}, 0 offset:48')
    A.label(l_exit)
    A.I('s_endpgm')


S_MSK = 56
S_OPS = 47


def seg_masks():
    c1, c2 = int(os.environ.get('C1', 14)), int(os.environ.get('C2', 27))
    m = [0] * 7
    last = {g: -100 for g in range(7)}
    for s_ in range(64):
        cand = [4, 5, 6] if s_ < c1 else ([4, 5, 6, 0, 1] if s_ < c2 else list(range(7)))
        g = min(cand, key=lambda x: last[x])
        last[g] = s_
        m[g] |= 1 << s_
    return m


def j2_calc(A):
    A.I(f's_lshr_b32 s{S_T0}, s{S_G}, 1')
    A.I(f's_lshl_b32 s{S_T0}, s{S_T0}, 3')
    A.I(f's_lshr_b32 s{S_T1}, s{S_H}, 2')
    A.I(f's_add_u32 s{S_T0}, s{S_T0}, s{S_T1}')
    A.I(f's_lshl_b32 s{S_J2}, s{S_T0}, 3')
    A.I(f's_and_b32 s{S_T0}, s{S_G}, 1')
    A.I(f's_lshl_b32 s{S_T0}, s{S_T0}, 2')
    A.I(f's_and_b32 s{S_T1}, s{S_H}, 3')
    A.I(f's_add_u32 s{S_T0}, s{S_T0}, s{S_T1}')
    A.I(f's_add_u32 s{S_J2}, s{S_J2}, s{S_T0}')


def code_touch(A, l_from, l_end, nbytes, vd, va):
    lh = A.newlabel('L_pc')
    A.I('s_getpc_b64 s[80:81]')
    A.raw(f'{lh}:')
    A.raw(f'    s_sub_u32 s80, s80, {lh}-{l_from}')
    A.raw('    s_subb_u32 s81, s81, 0')
    A.I(f'v_lshlrev_b32 v{va}, 7, v0')
    for i in range(0, nbytes, 8192):
        A.raw(f'    v_min_u32 v{va}, {l_end}-{l_from}, v{va}')
        A.raw(f'    global_load_dword v{vd}, v{va}, s[80:81]')
        A.I(f'v_add_u32 v{va}, 8192, v{va}')


def x_prefetch(A, s_seg, sx):
    A.I('v_lshrrev_b32 v6, 2, v0')
    A.I('v_lshlrev_b32 v6, 6, v6')
    A.I('v_and_b32 v7, 3, v0')
    A.I('v_lshl_add_u32 v6, v7, 3, v6')
    A.I(f's_lshl_b32 s{S_T3}, s{s_seg}, 5')
    A.I(f's_add_u32 s{S_T3}, s{S_T3}, s{S_H}')
    A.I(f's_lshl_b32 s{S_T3}, s{S_T3}, 10')
    A.I(f'buffer_load_dwordx2 v[12:13], v6, {sx}, s{S_T3} offen')
    A.I(f'buffer_load_dwordx2 v[14:15], v6, {sx}, s{S_T3} offen offset:32')


def ts_tok(A, i):
    if TIMING:
        A.I(f's_add_u32 s{S_G}, s{S_G}, 1')
        tstamp(A, i, 14 if i in (1, 2, 7, 8) else 6)
        A.I(f's_sub_u32 s{S_G}, s{S_G}, 1')


G1ACC = 120
G1T = 144
L_G1 = 0
L_RED = 65536
L_W2 = 73728


def g1_lane(A):
    t = G1T
    A.I(f'v_lshrrev_b32 v{t}, 3, v0')
    A.I(f'v_and_b32 v{t + 1}, 7, v0')
    A.I(f'v_bfe_u32 v{t + 2}, v0, 4, 1')
    A.I(f's_and_b32 s{S_T0}, s{S_WV}, 1')
    A.I(f's_lshl_b32 s{S_T0}, s{S_T0}, 1')
    A.I(f'v_or_b32 v{t + 2}, s{S_T0}, v{t + 2}')
    A.I(f'v_lshlrev_b32 v{t + 2}, 1, v{t + 2}')
    A.I(f'v_xor_b32 v{t + 1}, v{t + 1}, v{t + 2}')
    A.I(f'v_lshlrev_b32 v{t + 1}, 4, v{t + 1}')
    A.I(f'v_mul_u32_u24 v136, 3584, v{t}')
    A.I(f'v_add_u32 v136, v136, v{t + 1}')
    A.I(f'v_lshl_add_u32 v137, v{t}, 10, v{t + 1}')
    A.I(f'v_and_b32 v{t}, 15, v0')
    A.I(f'v_lshrrev_b32 v{t + 1}, 4, v0')
    A.I(f'v_lshrrev_b32 v{t + 2}, 2, v{t}')
    A.I(f'v_and_b32 v{t + 3}, 3, v{t}')
    A.I(f'v_lshl_add_u32 v{t + 4}, v{t + 1}, 3, v{t + 2}')
    A.I(f'v_lshlrev_b32 v{t + 4}, 7, v{t + 4}')
    A.I(f'v_lshl_add_u32 v{t + 4}, v{t + 3}, 3, v{t + 4}')
    A.I(f'v_lshrrev_b32 v{t + 5}, 1, v{t + 2}')
    A.I(f'v_and_b32 v{t + 6}, 1, v{t + 1}')
    A.I(f'v_lshl_add_u32 v{t + 5}, v{t + 6}, 1, v{t + 5}')
    A.I(f'v_xor_b32 v{t + 6}, s{S_T0}, v{t + 5}')
    A.I(f'v_lshl_add_u32 v138, v{t + 6}, 5, v{t + 4}')
    A.I(f'v_xor_b32 v139, 32, v138')
    A.I(f's_and_b32 s{S_T0}, s{S_WV}, 2')
    A.I(f'v_xor_b32 v{t + 6}, s{S_T0}, v{t + 5}')
    A.I(f'v_lshl_add_u32 v140, v{t + 6}, 5, v{t + 4}')
    A.I(f'v_add_u32 v140, 16384, v140')
    A.I(f'v_xor_b32 v141, 32, v140')


def g1_w1_dma(A, s_k, first=False, plus=0):
    if first:
        g1_lane(A)
    w1 = f's[{S_W1}:{S_W1 + 3}]'
    A.I(f's_add_u32 s{S_T2}, s{s_k}, {plus}')
    A.I(f's_mul_i32 s{S_T0}, s{S_T2}, {128 * 3584}')
    A.I(f's_mul_i32 s{S_T1}, s{S_WV}, {8 * 3584}')
    A.I(f's_add_u32 s{S_T0}, s{S_T0}, s{S_T1}')
    A.I(f's_lshr_b32 s{S_T1}, s{S_J}, 3')
    A.I(f's_lshl_b32 s{S_T1}, s{S_T1}, 7')
    A.I(f's_add_u32 s{S_T0}, s{S_T0}, s{S_T1}')
    A.I(f's_and_b32 s{S_T1}, s{S_T2}, 1')
    A.I(f's_lshl_b32 s{S_T1}, s{S_T1}, 15')
    A.I(f's_lshl_b32 s{S_T2}, s{S_WV}, 10')
    A.I(f's_add_u32 s{S_T1}, s{S_T1}, s{S_T2}')
    for i in range(4):
        A.I(f's_add_u32 m0, s{S_T1}, {L_G1 + i * 4096}')
        A.I(f's_add_u32 s{S_T2}, s{S_T0}, {i * 32 * 3584}')
        A.I(f'buffer_load_dwordx4 v136, {w1}, s{S_T2} offen lds')


def g1_chunk(A, s_k, l_exit):
    ws = f's[{S_WS}:{S_WS + 3}]'
    A.I(f's_lshl_b32 s{S_T0}, s{s_k}, 17')
    A.I(f's_lshl_b32 s{S_T1}, s{S_WV}, 13')
    A.I(f's_add_u32 s{S_T0}, s{S_T0}, s{S_T1}')
    A.I(f's_and_b32 s{S_T1}, s{S_J}, 7')
    A.I(f's_lshl_b32 s{S_T1}, s{S_T1}, 7')
    A.I(f's_add_u32 s{S_T0}, s{S_T0}, s{S_T1}')
    A.I(f's_add_u32 s{S_T0}, s{S_T0}, 0x{WS_HP:x}')
    A.I(f's_and_b32 s{S_T3}, s{s_k}, 1')
    A.I(f's_lshl_b32 s{S_T3}, s{S_T3}, 15')
    A.I(f's_lshl_b32 s{S_T2}, s{S_WV}, 10')
    A.I(f's_add_u32 s{S_T1}, s{S_T3}, s{S_T2}')
    for i in range(4):
        A.I(f's_add_u32 m0, s{S_T1}, {L_G1 + 16384 + i * 4096}')
        A.I(f's_add_u32 s{S_T2}, s{S_T0}, {i * 32 * 1024}')
        A.I(f'buffer_load_dwordx4 v137, {ws}, s{S_T2} offen lds')
    AD = G1T
    for j in range(4):
        A.I(f'v_add_u32 v{AD + j}, s{S_T3}, v{138 + j}')
    l13, l14 = A.newlabel('L_13'), A.newlabel('L_14')
    A.I(f's_cmp_eq_u32 s{s_k}, 15')
    A.br(f's_cbranch_scc1 {l13}')
    g1_w1_dma(A, s_k, plus=1)
    A.br(f's_branch {l14}')
    A.label(l13)
    A.I(f's_lshr_b32 s{S_T2}, s{S_J}, 3')
    A.I(f's_lshl_b32 s{S_T0}, s{S_T2}, 7')
    A.I(f's_and_b32 s{S_T1}, s{S_WV}, 1')
    A.I(f's_lshl_b32 s{S_T1}, s{S_T1}, 6')
    A.I(f's_add_u32 s{S_T0}, s{S_T0}, s{S_T1}')
    A.I('v_lshrrev_b32 v20, 4, v0')
    A.I('v_lshlrev_b32 v20, 3, v20')
    A.I(f'buffer_load_dwordx2 v[16:17], v20, s[{S_B1}:{S_B1 + 3}], s{S_T0} offen')
    A.I(f'buffer_load_dwordx2 v[18:19], v20, s[{S_B1}:{S_B1 + 3}], s{S_T0} offen offset:32')
    g2_dma(A, 13)
    A.label(l14)
    A.I('s_waitcnt vmcnt(4)')
    A.I('s_barrier')
    FR = G1T + 8

    def rd(ks):
        for j in range(4):
            for x in range(2):
                A.I(f'ds_read_b64_tr_b16 {v(FR + 16 * ks + 4 * j + 2 * x, 2)}, v{AD + j} offset:{L_G1 + (32 * ks + 4 * x) * 128}')

    rd(0)
    for ks in range(4):
        if ks < 3:
            rd(ks + 1)
            A.I('s_waitcnt lgkmcnt(8)')
        else:
            A.I('s_waitcnt lgkmcnt(0)')
        f = FR + 16 * ks
        for mbp in range(2):
            for nbp in range(2):
                d = G1ACC + (mbp * 2 + nbp) * 4
                A.I(f'v_mfma_f32_16x16x32_bf16 {v(d, 4)}, {v(f + 4 * mbp, 4)}, {v(f + 8 + 4 * nbp, 4)}, {v(d, 4)}')


def g1_epilogue(A, l_exit):
    import math
    ws, b1 = f's[{S_WS}:{S_WS + 3}]', f's[{S_B1}:{S_B1 + 3}]'
    ACC, BI, Z, Pk, TT, O = G1ACC, 150, 160, 168, 172, 188
    A.I(f's_lshr_b32 s{S_T2}, s{S_J}, 3')
    A.I(f's_and_b32 s{S_T0}, s{S_J}, 7')
    A.I(f's_lshl_b32 s{S_T0}, s{S_T0}, 2')
    A.I(f's_and_b32 s{S_T1}, s{S_WV}, 2')
    A.I(f's_add_u32 s{S_T0}, s{S_T0}, s{S_T1}')
    A.I(f's_mul_i32 s{S_T0}, s{S_T0}, 56')
    A.I(f's_lshl_b32 s{S_T1}, s{S_T2}, 1')
    A.I(f's_add_u32 s{S_T0}, s{S_T0}, s{S_T1}')
    A.I(f's_and_b32 s{S_T1}, s{S_WV}, 1')
    A.I(f's_add_u32 s{S_T0}, s{S_T0}, s{S_T1}')
    A.I(f's_lshl_b32 s{S_T0}, s{S_T0}, 10')
    A.I(f's_add_u32 s{S_T0}, s{S_T0}, 0x{WS_U:x}')
    k1 = -2 * math.sqrt(2 / math.pi) * math.log2(math.e)
    A.I(f's_mov_b32 s{S_T2}, {f32(k1)}')
    A.I(f's_mov_b32 s{S_T3}, {f32(k1 * 0.044715)}')
    A.I('v_lshlrev_b32 v145, 4, v0')
    for i in range(4):
        A.I(f'v_lshlrev_b32 v{BI + 2 * i}, 16, v{16 + i}')
        A.I(f'v_and_b32 v{BI + 2 * i + 1}, 0xffff0000, v{16 + i}')
    for nbp in range(2):
        for mbp in range(2):
            for r in range(4):
                A.I(f'v_mov_b32 v{Z + 4 * mbp + r}, v{ACC + (mbp * 2 + nbp) * 4 + r}')
        T.round_bf16(A, Z, Pk)
        for i in range(8):
            A.I(f'v_add_f32 v{Z + i}, v{Z + i}, v{BI + i}')
        T.round_bf16(A, Z, Pk)
        for i in range(8):
            t = TT + i
            A.I(f'v_mul_f32 v{t}, v{Z + i}, v{Z + i}')
            A.I(f'v_mov_b32 v{t + 8}, s{S_T2}')
            A.I(f'v_fmac_f32 v{t + 8}, s{S_T3}, v{t}')
            A.I(f'v_mul_f32 v{t}, v{t + 8}, v{Z + i}')
            A.I(f'v_exp_f32 v{t}, v{t}')
        for i in range(8):
            A.I(f'v_add_f32 v{TT + i}, 1.0, v{TT + i}')
            A.I(f'v_rcp_f32 v{TT + i}, v{TT + i}')
        for i in range(8):
            A.I(f'v_mul_f32 v{Z + i}, v{Z + i}, v{TT + i}')
        o = O + 4 * nbp
        for i in range(4):
            A.I(f'v_cvt_pk_bf16_f32 v{o + i}, v{Z + 2 * i}, v{Z + 2 * i + 1}')
        A.I(f'buffer_store_dwordx4 {v(o, 4)}, v145, {ws}, s{S_T0} offen sc1')
        A.I(f's_add_u32 s{S_T0}, s{S_T0}, {56 * 1024}')
    A.I('s_waitcnt vmcnt(0)')
    A.I('s_barrier')
    l = A.newlabel('L_ue')
    A.I(f's_cmp_lg_u32 s{S_WV}, 0')
    A.br(f's_cbranch_scc1 {l}')
    A.I(f's_lshl_b32 s{S_T2}, s{S_G}, 7')
    A.I(f's_add_u32 s{S_T2}, s{S_T2}, 0x{F_LU:x}')
    A.I(f's_lshl_b32 s{S_T3}, s{S_G}, 2')
    A.I(f's_add_u32 s{S_T3}, s{S_T3}, 0x{F_GF + 256:x}')
    garrive(A, S_T2, S_T3, 144, l_exit)
    A.label(l)


G2_SLOT = {0: 0, 1: 1, 2: 2, 3: 3, 4: 4, 5: 0, 6: 1, 7: 2, 8: 3, 9: 4, 10: 0, 11: 1, 12: 2, 13: 0}
G2_READ = [[0, 1, 2, 3, 4], [5, 6, 7], [8, 9, 10, 11, 12], [13]]
G2_NEXT = [[5, 6, 7, 8, 9], [10, 11, 12], [], []]


def g2_slot(k):
    return 0 if k == 13 else L_W2 + 16384 * G2_SLOT[k]


def g2_areg(k):
    return (128 + 16 * k) if k < 8 else 16 * (k - 8)


S_PRE = 62


def g2_pre(A, rnd):
    t = G1T
    A.I(f'v_and_b32 v{t}, 15, v0')
    A.I(f'v_lshrrev_b32 v{t + 1}, 4, v0')
    A.I(f'v_lshrrev_b32 v{t + 2}, 2, v{t}')
    A.I(f'v_and_b32 v{t + 3}, 3, v{t}')
    A.I(f'v_lshl_add_u32 v{t + 2}, v{t + 1}, 2, v{t + 2}')
    A.I(f'v_bfe_u32 v{t + 1}, v{t + 2}, 1, 2')
    A.I(f'v_lshlrev_b32 v{t + 2}, 7, v{t + 2}')
    A.I(f'v_lshl_add_u32 v{t + 2}, v{t + 3}, 3, v{t + 2}')
    A.I(f'v_lshl_add_u32 v{t + 2}, v{t + 1}, 5, v{t + 2}')
    A.I(f's_lshl_b32 s{S_T0}, s{S_WV}, 12')
    A.I(f's_add_u32 s{S_T0}, s{S_T0}, {L_W2}')
    for j in range(4):
        A.I(f'v_xor_b32 v{t + 4 + j}, {32 * j}, v{t + 2}')
        A.I(f'v_add_u32 v{t + 4 + j}, s{S_T0}, v{t + 4 + j}')
        A.I(f'v_add_u32 v{t + 8 + j}, 49152, v{t + 4 + j}')
    A.I('s_waitcnt vmcnt(0)')
    A.I('s_barrier')
    for k in G2_READ[rnd]:
        so = 16384 * G2_SLOT[k]
        ab = t + 4
        if so >= 49152:
            so -= 49152
            ab = t + 8
        if k == 13:
            so = 0
            for j in range(4):
                A.I(f'v_subrev_u32 v{ab + j}, {L_W2}, v{ab + j}')
        for j in range(4):
            for x in range(2):
                A.I(f'ds_read_b64_tr_b16 {a(g2_areg(k) + 4 * j + 2 * x, 2)}, v{ab + j} offset:{so + 16 * x * 128}')
        A.I('s_waitcnt lgkmcnt(4)')
    A.I('s_waitcnt lgkmcnt(0)')
    if G2_NEXT[rnd]:
        A.I('s_barrier')
        for k in G2_NEXT[rnd]:
            g2_dma(A, k)
    A.I(f's_mov_b32 s{S_PRE}, {rnd + 1}')


def g2_setup(A):
    A.I(f's_load_dwordx2 s[16:17], s[0:1], {KA_W2}')
    A.I('s_waitcnt lgkmcnt(0)')
    make_srd(A, S_W2, 16, 1792 * 4096)
    A.I(f's_load_dwordx4 s[16:19], s[0:1], {KA_B2}')
    A.I('s_waitcnt lgkmcnt(0)')
    t = G1T
    A.I(f'v_lshrrev_b32 v{t}, 3, v0')
    A.I(f'v_and_b32 v{t + 1}, 7, v0')
    A.I(f'v_lshrrev_b32 v{t + 2}, 4, v0')
    A.I(f'v_lshlrev_b32 v{t + 2}, 1, v{t + 2}')
    A.I(f'v_xor_b32 v{t + 1}, v{t + 1}, v{t + 2}')
    A.I(f'v_lshlrev_b32 v{t + 1}, 4, v{t + 1}')
    A.I(f'v_lshl_add_u32 v142, v{t}, 12, v{t + 1}')
    A.I(f's_lshl_b32 s{S_BO2}, s{S_WV}, 15')
    A.I(f's_lshr_b32 s{S_T0}, s{S_J2}, 3')
    A.I(f's_lshl_b32 s{S_T0}, s{S_T0}, 7')
    A.I(f's_add_u32 s{S_BO2}, s{S_BO2}, s{S_T0}')
    A.I(f's_lshl_b32 s{S_LB2}, s{S_WV}, 10')


def g2_dma(A, k, vr=142):
    w2 = f's[{S_W2}:{S_W2 + 3}]'
    for i in range(4):
        A.I(f's_add_u32 m0, s{S_LB2}, {g2_slot(k) + i * 4096}')
        A.I(f's_add_u32 s{S_T0}, s{S_BO2}, {(k * 128 + i * 32) * 4096}')
        A.I(f'buffer_load_dwordx4 v{vr}, {w2}, s{S_T0} offen lds')


def g2_touch(A, k0):
    w2 = f's[{S_W2}:{S_W2 + 3}]'
    A.I('v_lshlrev_b32 v143, 12, v0')
    A.I(f's_lshr_b32 s{S_T0}, s{S_J2}, 3')
    A.I(f's_lshl_b32 s{S_T0}, s{S_T0}, 7')
    A.I(f's_lshl_b32 s{S_T1}, s{S_WV}, 18')
    A.I(f's_add_u32 s{S_T0}, s{S_T0}, s{S_T1}')
    for r0 in range(k0 * 128, 1792, 256):
        A.I(f's_add_u32 s{S_T1}, s{S_T0}, {r0 * 4096}')
        A.I(f'buffer_load_dword v5, v143, {w2}, s{S_T1} offen')


def g2_main(A, l_exit):
    ws = f's[{S_WS}:{S_WS + 3}]'
    S_O, S_B2 = S_W1, S_B1
    tstamp(A, 20, 8)
    for rnd in range(4):
        l = A.newlabel('L_pre')
        A.I(f's_cmp_gt_u32 s{S_PRE}, {rnd}')
        A.br(f's_cbranch_scc1 {l}')
        g2_pre(A, rnd)
        A.label(l)
        A.forget_loads()
    A.I('s_waitcnt lgkmcnt(0)')
    make_srd(A, S_B2, 16, 4096)
    make_srd(A, S_O, 18, 2048 * 1024)
    b2, out = f's[{S_B2}:{S_B2 + 3}]', f's[{S_O}:{S_O + 3}]'
    S_AO, S_EO = 36, 37
    A.I(f's_and_b32 s{S_T0}, s{S_J2}, 7')
    A.I(f's_mul_i32 s{S_AO}, s{S_T0}, {4 * 56 * 1024}')
    A.I(f's_lshl_b32 s{S_T1}, s{S_WV}, 10')
    A.I(f's_add_u32 s{S_AO}, s{S_AO}, s{S_T1}')
    A.I(f's_add_u32 s{S_AO}, s{S_AO}, 0x{WS_U:x}')
    A.I(f's_lshl_b32 s{S_T0}, s{S_T0}, 2')
    A.I(f's_add_u32 s{S_T0}, s{S_T0}, s{S_WV}')
    A.I(f's_lshr_b32 s{S_T1}, s{S_J2}, 3')
    A.I(f's_lshl_b32 s{S_EO}, s{S_T1}, 16')
    A.I(f's_lshl_b32 s{S_T0}, s{S_T0}, 5')
    A.I(f's_add_u32 s{S_EO}, s{S_EO}, s{S_T0}')
    A.I('v_lshlrev_b32 v5, 4, v0')
    A.I('v_and_b32 v1, 15, v0')
    A.I('v_lshrrev_b32 v2, 4, v0')
    A.I('v_lshlrev_b32 v3, 10, v1')
    A.I('v_lshl_add_u32 v3, v2, 3, v3')
    A.I('v_lshlrev_b32 v4, 1, v1')
    A.I(f's_lshl_b32 s{S_T1}, s{S_T1}, 7')
    HB, BB, ACC, AR = 10, 18, 24, 88
    NA = 42
    A.I(f's_mov_b32 s39, s{S_T1}')
    masks = seg_masks()
    late = [g for g in range(7) if masks[g] >> 61] if os.environ.get('TWOPH') else []
    earlyg = [g for g in range(7) if g not in late]
    korder = [k for g in earlyg + late for k in (2 * g, 2 * g + 1)]
    nearly = min(8 * len(earlyg), NA)
    S_FL = 38
    A.I(f's_lshl_b32 s{S_FL}, s{S_G}, 9')
    A.I(f's_add_u32 s{S_FL}, s{S_FL}, 0x{F_GF + 256:x}')

    def wait_groups(gs):
        l0 = A.newlabel('L_g20')
        A.I(f's_cmp_lg_u32 s{S_WV}, 0')
        A.br(f's_cbranch_scc1 {l0}')
        A.check = False
        poll_flags(A, S_FL, 7, 1, 6, 7, l_exit, sleep=1, mask=sum(1 << g for g in gs))
        A.check = True
        A.label(l0)
        A.I('s_barrier')

    tstamp(A, 21, 8)
    wait_groups(earlyg)
    tstamp(A, 5, 8)
    vmq = []

    def aload(i):
        k, db = korder[i >> 2], i & 3
        off = db * 56 * 1024 + k * 4096
        A.I(f's_add_u32 s{S_T1}, s{S_AO}, {off}')
        A.I(f'buffer_load_dwordx4 {v(AR + 4 * (i % NA), 4)}, v5, {ws}, s{S_T1} offen')
        vmq.append(('a', i))

    def need(names):
        idx = max([i for i, p in enumerate(vmq) if p in names] + [-1])
        if idx >= 0:
            A.I(f's_waitcnt vmcnt({len(vmq) - 1 - idx})')
            del vmq[:idx + 1]

    PD = int(os.environ.get('PD', 20))
    for i in range(PD):
        aload(i)
    tstamp(A, 19, 8)
    nxt = PD
    for i in range(56):
        k, db = korder[i >> 2], i & 3
        need([('a', i)])
        for nb in range(4):
            d = ACC + 16 * db + 4 * nb
            c = '0' if i < 4 else v(d, 4)
            A.I(f'v_mfma_f32_16x16x32_bf16 {v(d, 4)}, {v(AR + 4 * (i % NA), 4)}, {a(g2_areg(k) + 4 * nb, 4)}, {c}')
            if nb in (0, 2) and nxt < 56 and nxt - i < NA - 1 and (nb == 0 or nxt - i < int(os.environ.get('PD2', 32))):
                aload(nxt)
                nxt += 1
                if nxt == 56:
                    for q in range(4):
                        A.I(f's_add_u32 s{S_T0}, s{S_EO}, 0x{WS_H + q * 16384:x}')
                        A.I(f'buffer_load_dwordx2 {v(HB + 2 * q, 2)}, v3, {ws}, s{S_T0} offen')
                        vmq.append(('h', 0))
                        A.I(f'buffer_load_ushort v{BB + q}, v4, {b2}, s39 offen offset:{32 * q}')
                        vmq.append(('h', 0))
    A.I(f's_lshl_b32 s{S_T0}, s{S_WV}, 12')
    A.I(f'v_add_u32 v6, s{S_T0}, v5')
    for db in range(4):
        for nb in range(4):
            A.I(f'ds_write_b128 v6, {v(ACC + 16 * db + 4 * nb, 4)} offset:{db * 16384 + nb * 1024}')
        A.I('s_waitcnt lgkmcnt(8)')
    A.I(f's_lshl_b32 s{S_T0}, s{S_WV}, 14')
    A.I(f'v_add_u32 v6, s{S_T0}, v5')
    A.I('s_waitcnt lgkmcnt(0)')
    A.I('s_barrier')
    for j in range(16):
        A.I(f'ds_read_b128 {v(ACC + 4 * j, 4)}, v6 offset:{1024 * j}')
        if j == 11:
            A.I('s_waitcnt lgkmcnt(8)')
    A.I('s_waitcnt lgkmcnt(0) vmcnt(0)')
    tstamp(A, 18, 8)
    for r in range(0, 16, 2):
        A.I(f'v_pk_add_f32 {v(ACC + r, 2)}, {v(ACC + r, 2)}, {v(ACC + 16 + r, 2)}')
        A.I(f'v_pk_add_f32 {v(ACC + 32 + r, 2)}, {v(ACC + 32 + r, 2)}, {v(ACC + 48 + r, 2)}')
    for r in range(0, 16, 2):
        A.I(f'v_pk_add_f32 {v(ACC + r, 2)}, {v(ACC + r, 2)}, {v(ACC + 32 + r, 2)}')
    for nb in range(4):
        d = ACC + 4 * nb
        t = 88
        A.I(f'v_cvt_pk_bf16_f32 v{t}, v{d}, v{d + 1}')
        A.I(f'v_cvt_pk_bf16_f32 v{t + 1}, v{d + 2}, v{d + 3}')
        A.I(f'v_lshlrev_b32 v{t + 2}, 16, v{BB + nb}')
        for i in range(2):
            A.I(f'v_lshlrev_b32 v{d + 2 * i}, 16, v{t + i}')
            A.I(f'v_and_b32 v{d + 2 * i + 1}, 0xffff0000, v{t + i}')
        for r in range(4):
            A.I(f'v_add_f32 v{d + r}, v{d + r}, v{t + 2}')
        A.I(f'v_cvt_pk_bf16_f32 v{t}, v{d}, v{d + 1}')
        A.I(f'v_cvt_pk_bf16_f32 v{t + 1}, v{d + 2}, v{d + 3}')
        for i in range(2):
            A.I(f'v_lshlrev_b32 v{d + 2 * i}, 16, v{t + i}')
            A.I(f'v_and_b32 v{d + 2 * i + 1}, 0xffff0000, v{t + i}')
            A.I(f'v_lshlrev_b32 v{t + 2}, 16, v{HB + 2 * nb + i}')
            A.I(f'v_and_b32 v{t + 3}, 0xffff0000, v{HB + 2 * nb + i}')
            A.I(f'v_add_f32 v{d + 2 * i}, v{d + 2 * i}, v{t + 2}')
            A.I(f'v_add_f32 v{d + 2 * i + 1}, v{d + 2 * i + 1}, v{t + 3}')
        o = 92 + 2 * nb
        A.I(f'v_cvt_pk_bf16_f32 v{o}, v{d}, v{d + 1}')
        A.I(f'v_cvt_pk_bf16_f32 v{o + 1}, v{d + 2}, v{d + 3}')
        A.I(f's_add_u32 s{S_T0}, s{S_EO}, {nb * 16384}')
        A.I(f'buffer_store_dwordx2 {v(o, 2)}, v3, {out}, s{S_T0} offen')


def red4(A, s_seg, srd_x, l_exit):
    ws = f's[{S_WS}:{S_WS + 3}]'
    B, Z, Pk, XR, t0, t1, va = 192, 144, 152, 12, 160, 161, 162
    A.I(f's_lshl_b32 s{S_T2}, s{s_seg}, 5')
    A.I(f's_add_u32 s{S_T2}, s{S_T2}, s{S_H}')
    A.I(f's_lshl_b32 s{S_T0}, s{S_OPS}, 5')
    A.I(f's_add_u32 s{S_T0}, s{S_T0}, s{S_H}')
    A.I(f's_lshl_b32 s{S_T0}, s{S_T0}, 15')
    A.I(f's_xor_b32 s{S_OPS}, s{S_OPS}, 1')
    A.I(f's_lshl_b32 s{S_T1}, s{S_WV}, 13')
    A.I(f's_add_u32 s{S_T0}, s{S_T0}, s{S_T1}')
    A.I(f's_add_u32 s{S_T0}, s{S_T0}, 0x{WS_OP:x}')
    A.I(f's_add_u32 s{S_T1}, s{S_T0}, 4096')
    for hh in range(8):
        so = S_T0 if hh < 4 else S_T1
        A.I(f'buffer_load_dwordx4 {v(B + 4 * hh, 4)}, v1, {ws}, s{so} offen offset:{1024 * (hh & 3)} sc1')
    A.I(f's_lshl_b32 s{S_T3}, s{S_T2}, 10')
    A.I(f'v_lshrrev_b32 v{va}, 2, v0')
    A.I(f'v_lshlrev_b32 v{va}, 6, v{va}')
    A.I(f'v_and_b32 v{t0}, 3, v0')
    A.I(f'v_lshl_add_u32 v{va}, v{t0}, 3, v{va}')
    for hh in range(8):
        A.I(f's_waitcnt vmcnt({7 - hh})')
        for i in range(4):
            r = B + 4 * hh + i
            if hh == 0:
                A.I(f'v_lshlrev_b32 v{Z + 2 * i}, 16, v{r}')
                A.I(f'v_and_b32 v{Z + 2 * i + 1}, 0xffff0000, v{r}')
            else:
                A.I(f'v_lshlrev_b32 v{t0}, 16, v{r}')
                A.I(f'v_and_b32 v{t1}, 0xffff0000, v{r}')
                A.I(f'v_add_f32 v{Z + 2 * i}, v{Z + 2 * i}, v{t0}')
                A.I(f'v_add_f32 v{Z + 2 * i + 1}, v{Z + 2 * i + 1}, v{t1}')
    A.I(f's_lshl_b32 s{S_T0}, s{S_WV}, 11')
    A.I(f'v_add_u32 v{t0}, s{S_T0}, v1')
    A.I(f'v_add_u32 v{t0}, {L_RED}, v{t0}')
    A.I(f'ds_write_b128 v{t0}, {v(Z, 4)}')
    A.I(f'ds_write_b128 v{t0}, {v(Z + 4, 4)} offset:1024')
    A.I('s_waitcnt lgkmcnt(0) vmcnt(0)')
    A.I('s_barrier')
    ts_tok(A, 15)
    l = A.newlabel('L_r4')
    A.I(f's_cmp_lg_u32 s{S_WV}, 0')
    A.br(f's_cbranch_scc1 {l}')
    for w_ in range(1, 4):
        for j in range(2):
            A.I(f'ds_read_b128 {v(B + 8 * w_ + 4 * j, 4)}, v{t0} offset:{2048 * w_ + 1024 * j}')
    A.I('s_waitcnt lgkmcnt(0)')
    for w_ in range(1, 4):
        for i in range(8):
            A.I(f'v_add_f32 v{Z + i}, v{Z + i}, v{B + 8 * w_ + i}')
    T.round_bf16(A, Z, Pk)
    for i in range(4):
        A.I(f'v_lshlrev_b32 v{t0}, 16, v{XR + i}')
        A.I(f'v_and_b32 v{t1}, 0xffff0000, v{XR + i}')
        A.I(f'v_add_f32 v{Z + 2 * i}, v{Z + 2 * i}, v{t0}')
        A.I(f'v_add_f32 v{Z + 2 * i + 1}, v{Z + 2 * i + 1}, v{t1}')
    T.round_bf16(A, Z, Pk)
    A.I(f's_add_u32 s{S_T0}, s{S_T3}, 0x{WS_H:x}')
    A.I(f'buffer_store_dwordx2 {v(Pk, 2)}, v{va}, {ws}, s{S_T0} offen sc1')
    A.I(f'buffer_store_dwordx2 {v(Pk + 2, 2)}, v{va}, {ws}, s{S_T0} offen offset:32 sc1')
    T.ln_regs(A, Z, t0, t1)
    T.round_bf16(A, Z, XR)
    T.ln_regs(A, Z, t0, t1)
    for i in range(4):
        A.I(f'v_cvt_pk_bf16_f32 v{XR + i}, v{Z + 2 * i}, v{Z + 2 * i + 1}')
    A.I(f's_add_u32 s{S_T0}, s{S_T3}, 0x{WS_HP:x}')
    A.I(f'buffer_store_dwordx2 {v(XR, 2)}, v{va}, {ws}, s{S_T0} offen sc1')
    A.I(f'buffer_store_dwordx2 {v(XR + 2, 2)}, v{va}, {ws}, s{S_T0} offen offset:32 sc1')
    A.I(f's_lshl_b32 s{S_T2}, s{s_seg}, 7')
    A.I(f's_add_u32 s{S_T2}, s{S_T2}, 0x{F_LH:x}')
    A.I(f's_lshl_b32 s{S_T3}, s{s_seg}, 2')
    A.I(f's_add_u32 s{S_T3}, s{S_T3}, 0x{F_GF:x}')
    A.I('s_waitcnt vmcnt(0)')
    garrive(A, S_T2, S_T3, t0, l_exit)
    A.label(l)


if __name__ == '__main__':
    A = Asm()
    nm = NAME + '_kernel'
    mega_kernel(A, nm)
    hd = header([(nm, 256, 256, R.L_TOTAL)])
    if os.environ.get('FINAL'):
        hd = hd.replace(f'@launch kernel={nm} ', '@launch ')
    txt = hd + A.text() + '.section .rodata,"a"\n' + kernel_desc(nm, 512, 256)
    out = os.environ.get('OUT', 'm3.s')
    open(out, 'w').write(txt)
    print(len(txt))
```

```python
from asmlib import *

NAME = 'sequential_preLN__memory_aug_recurrent_mem_tr__mixer_token_mlp__prompt'

KA_X, KA_MEM0, KA_WQ, KA_WK, KA_WV, KA_WO, KA_SEG, KA_BX, KA_W1, KA_B1, KA_W2, KA_B2, KA_OUT, KA_DBG, KA_WS = [8 * i for i in range(15)]

WS_XN = 0x0000000
WS_QF = 0x0200000
WS_KF = 0x1400000
WS_VF = 0x2600000
WS_KM = 0xA020000
WS_VM = 0xAA10000
WS_PB = 0x3E00000
WS_MB = 0x3F00000
WS_FLAG = 0x3F80000
WS_OP = 0x4000000
WS_H = 0x8000000
WS_HP = 0x8200000
WS_U = 0x8400000
WS_DBG = 0x9000000
WS_SIZE = 0x10000000

import os as _os
BH, SS = (65, 1) if int(_os.environ.get('HMAJ', 0)) else (1, 32)
SRD3 = 0x00020000


def header(launches):
    ref = open(f'cdna_kernels/{NAME}.s.ref').read().split('\n')
    out = []
    for ln in ref:
        if ln.startswith('; @launch') or ln.startswith('; Override') or ln.startswith('; grid=ceil'):
            continue
        if not ln.startswith(';'):
            break
        out.append(ln)
    for (k, g, b, lds) in launches:
        out.append(f'; @launch kernel={k} grid=({g},1,1) block=({b},1,1) lds={lds}')
    out.append('.amdgcn_target "amdgcn-amd-amdhsa--gfx950"')
    out.append('.text')
    return '\n'.join(out) + '\n'


def kernel_begin(A, name):
    A.raw(f'.globl {name}')
    A.raw('.p2align 8')
    A.raw(f'.type {name},@function')
    A.raw(f'{name}:')
    A.w.clear(); A.rc.clear(); A.sd.clear(); A.forget_loads()


def kernel_desc(name, nvgpr, accum, nsgpr=102):
    return f'''.p2align 6
.amdhsa_kernel {name}
  .amdhsa_next_free_vgpr {nvgpr}
  .amdhsa_next_free_sgpr {nsgpr}
  .amdhsa_accum_offset {accum}
  .amdhsa_group_segment_fixed_size 0
  .amdhsa_kernarg_size 120
  .amdhsa_user_sgpr_count 2
  .amdhsa_user_sgpr_kernarg_segment_ptr 1
  .amdhsa_system_sgpr_workgroup_id_x 1
.end_amdhsa_kernel
'''


def make_srd(A, d, base, nbytes):
    A.I(f's_mov_b32 s{d}, s{base}')
    A.I(f's_and_b32 s{d + 1}, s{base + 1}, 0xffff')
    A.I(f's_mov_b32 s{d + 2}, 0x{nbytes:x}')
    A.I(f's_mov_b32 s{d + 3}, 0x{SRD3:x}')
```

```python
from common import *
import os, math, struct
STAMPS = bool(os.environ.get('STAMPS'))
NSTEPS = 63
LDF = os.environ.get('LDF', 'sc1').replace('_', ' ')
STF = os.environ.get('STF', '').replace('_', ' ')
EXF = os.environ.get('EXF', 'sc1')
E = lambda k, d: int(os.environ.get(k, d))
TOUCH_AHEAD = E('TOUCH_AHEAD', 1)
PB_DELAY, PB_GAP, AF_DELAY, AF_GAP = E('PB_DELAY', 0), E('PB_GAP', 0), E('AF_DELAY', 0), E('AF_GAP', 3)
OUT = os.environ.get('OUT', 'rec_test.s')

L_QX = 0
L_KX_ = 2560
L_VM = 5120
L_AF = 7168
L_OX = L_AF
L_KV = 15360
L_WO = 31744
L_HALF = 65792
L_TOTAL = L_WO + 2 * L_HALF

PB_GRP = 8448
PB_SLOT = 0x48000

S_WS, S_W, S_DBG = 4, 8, 12
S_H, S_WV, S_STEP = 32, 33, 34
S_SPIN = 35
S_MBR, S_MBW = 36, 37
S_TAG = 47
S_PB0, S_PB1 = 38, 39
S_PB0H = 40
S_AFO = 41
S_TCH = 42
S_KVN = 44
S_KMO, S_VMO = 45, 46
S_T0, S_T1, S_T2, S_T3 = 48, 49, 50, 51
S_C = 52
S_ONE = 54
S_TS = 56
S_M0, S_M1 = 16, 18
S_W640 = 20
S_KVM0 = 62
S_W11 = 63

AF = 0
ACC = 32
KX = 56
VX = 88
T = 96
V_IDX, V_L16, V_QKW, V_QR, V_KR, V_OW, V_WO0, V_WO1, V_PBW, V_RDR, V_MBW, V_SEL, V_VX, V_SP, V_MX, V_TM = range(112, 128)
S_PZ = 43
LANE = 100

LDS_SLOT = {}
_l0 = [('q', 0, 0), ('q', 1, 0), ('q', 0, 1), ('q', 1, 1), ('k', 0, 0), ('k', 1, 0), ('o', 6, 0), ('o', 7, 0)]
_l1 = [('k', 0, 1), ('k', 1, 1), ('k', 0, 2), ('k', 1, 2), ('k', 0, 3), ('k', 1, 3), ('o', 6, 1), ('o', 7, 1)]
for i, f in enumerate(_l0):
    LDS_SLOT[f] = (0, i)
for i, f in enumerate(_l1):
    LDS_SLOT[f] = (1, i)
HOME = {}
_h = 0
for mat in 'qkv':
    for nb in range(2):
        for t in range(8):
            HOME[(mat, nb, t)] = (256 + _h * 8) if _h < 32 else (128 + (_h - 32) * 8)
            _h += 1
for t2 in range(2):
    vac = [f for f, (hf, sl) in LDS_SLOT.items() if hf == t2 and f[0] != 'o']
    assert len(vac) == 6
    for nbo in range(6):
        HOME[('o', nbo, t2)] = HOME[vac[nbo]]


def lds_frag_read(A, f, b):
    hf, sl = LDS_SLOT[f]
    va = V_WO1 if hf else V_WO0
    A.I(f'ds_read_b128 {v(b, 4)}, v{va} offset:{sl * 2048}')
    A.I(f'ds_read_b128 {v(b + 4, 4)}, v{va} offset:{sl * 2048 + 1024}')


def lane_fields(A, vt, vg, vn):
    A.I(f'v_and_b32 v{vn}, 15, v{vt}')
    A.I(f'v_bfe_u32 v{vg}, v{vt}, 4, 2')


def stage_weights(A, ptr_sgprs, hook=None, hook_issue=None, hook_check=None, hook_sc=None):
    g, n = 2, 3
    lane_fields(A, LANE, g, n)
    VD0, VD1 = 4, 5
    A.I(f'v_lshrrev_b32 v6, 5, v{LANE}')
    A.I(f's_and_b32 s{S_T0}, s{S_WV}, 1')
    A.I(f's_lshl_b32 s{S_T0}, s{S_T0}, 1')
    A.I(f'v_or_b32 v6, s{S_T0}, v6')
    A.I(f'v_lshlrev_b32 v6, 1, v6')
    A.I(f'v_xor_b32 v6, v6, v{n}')
    A.I(f'v_lshlrev_b32 v6, 4, v6')
    A.I(f'v_lshlrev_b32 v7, 13, v{g}')
    A.I(f'v_or_b32 v{VD0}, v6, v7')
    A.I(f'v_xor_b32 v{VD1}, 0x80, v{VD0}')
    A.I(f'v_lshrrev_b32 v6, 2, v{n}')
    A.I(f'v_and_b32 v7, 3, v{n}')
    A.I(f'v_and_b32 v8, 1, v6')
    A.I(f'v_lshrrev_b32 v9, 1, v6')
    A.I(f'v_and_b32 v10, 1, v{g}')
    A.I(f'v_lshrrev_b32 v11, 1, v{g}')
    A.I(f'v_lshlrev_b32 v12, 7, v11')
    A.I(f'v_lshl_add_u32 v12, v10, 1, v12')
    A.I(f'v_lshl_add_u32 v12, v8, 4, v12')
    A.I(f'v_lshl_add_u32 v12, v9, 2, v12')
    A.I(f'v_lshl_add_u32 v13, v9, 1, v10')
    A.I(f'v_lshl_add_u32 v13, v8, 2, v13')
    A.I(f's_lshl_b32 s{S_T0}, s{S_WV}, 1')
    A.I(f'v_xor_b32 v13, s{S_T0}, v13')
    A.I(f'v_lshlrev_b32 v14, 8, v12')
    A.I(f'v_lshl_add_u32 v14, v13, 5, v14')
    A.I(f'v_lshl_add_u32 v14, v7, 3, v14')
    VT = {}
    A.I(f'v_xor_b32 v15, 32, v14')
    r = 64
    for cu in range(4):
        A.I(f's_xor_b32 s{S_T0}, s{S_WV}, {cu}')
        A.I(f's_lshl_b32 s{S_T0}, s{S_T0}, 13')
        for bf in range(2):
            A.I(f's_add_u32 s{S_T1}, s{S_T0}, {L_WO + bf * L_HALF}')
            for nb in range(2):
                VT[(nb, bf, cu)] = r
                A.I(f'v_add_u32 v{r}, s{S_T1}, v{14 + nb}')
                r += 1
    A.I(f'v_lshl_add_u32 v13, v9, 1, v8')
    A.I(f'v_lshl_add_u32 v13, v10, 2, v13')
    A.I(f'v_lshlrev_b32 v14, 13, v13')
    A.I(f'v_lshl_add_u32 v14, v11, 11, v14')
    A.I(f'v_lshl_add_u32 v14, v13, 5, v14')
    A.I(f'v_lshl_add_u32 v14, v7, 3, v14')
    A.I(f's_lshl_b32 s{S_T0}, s{S_WV}, 8')
    A.I(f'v_add_u32 v14, s{S_T0}, v14')
    VTO = {0: 20, 1: 21}
    A.I(f'v_add_u32 v20, {L_WO}, v14')
    A.I(f'v_add_u32 v21, {L_WO + L_HALF}, v14')
    WOT = 32

    def dma(sc):
        buf = L_WO + (sc & 1) * L_HALF
        if sc < 6:
            mat, hh = sc >> 1, sc & 1
            make_srd(A, S_W, ptr_sgprs[mat], 512 * 8192)
            A.I(f's_lshl_b32 s{S_T0}, s{S_WV}, 15')
            A.I(f's_lshl_b32 s{S_T1}, s{S_H}, 8')
            A.I(f's_add_u32 s{S_T0}, s{S_T0}, s{S_T1}')
            A.I(f's_add_u32 s{S_T0}, s{S_T0}, {hh << 21}')
            A.I(f's_lshl_b32 s{S_T1}, s{S_WV}, 10')
            A.I(f's_add_u32 s{S_T1}, s{S_T1}, {buf}')
            for i in range(16):
                A.I(f's_mov_b32 m0, s{S_T1}')
                A.I(f'buffer_load_dwordx4 v{VD1 if i & 1 else VD0}, s[{S_W}:{S_W + 3}], s{S_T0} offen lds')
                if i < 15:
                    A.I(f's_add_u32 s{S_T0}, s{S_T0}, {4 * 32768}')
                    A.I(f's_add_u32 s{S_T1}, s{S_T1}, 4096')
        else:
            t2 = sc & 1
            make_srd(A, S_W, ptr_sgprs[3], 4096 * 1024)
            A.I(f's_and_b32 s{S_T0}, s{S_WV}, 1')
            A.I(f's_lshl_b32 s{S_T0}, s{S_T0}, 13')
            A.I(f's_lshr_b32 s{S_T1}, s{S_WV}, 1')
            A.I(f's_lshl_b32 s{S_T1}, s{S_T1}, 15')
            A.I(f's_add_u32 s{S_T0}, s{S_T0}, s{S_T1}')
            A.I(f's_lshl_b32 s{S_T1}, s{S_H}, 17')
            A.I(f's_add_u32 s{S_T0}, s{S_T0}, s{S_T1}')
            A.I(f's_add_u32 s{S_T0}, s{S_T0}, {t2 << 16}')
            A.I(f's_lshl_b32 s{S_T1}, s{S_WV}, 11')
            A.I(f's_add_u32 s{S_T1}, s{S_T1}, {buf}')
            for f in range(8):
                for x in range(2):
                    row = (f & 1) + 2 * x + 4 * ((f >> 1) & 1) + 16 * (f >> 2)
                    A.I(f's_add_u32 s{S_T2}, s{S_T1}, {(8 * f + x) * 1024 + 32 * f}')
                    A.I(f's_add_u32 s{S_T3}, s{S_T0}, {row * 1024}')
                    A.I(f's_mov_b32 m0, s{S_T2}')
                    A.I(f'buffer_load_dwordx4 v{V_L16}, s[{S_W}:{S_W + 3}], s{S_T3} offen lds')

    TCH = E('STOUCH', 0)
    if TCH:
        A.I(f'v_lshrrev_b32 v16, 1, v{LANE}')
        A.I('v_lshlrev_b32 v16, 13, v16')
        A.I(f'v_and_b32 v17, 1, v{LANE}')
        A.I('v_lshl_add_u32 v16, v17, 7, v16')
        A.I(f'v_lshlrev_b32 v17, 7, v{LANE}')

    def touch(sc):
        if not TCH or sc > 7:
            return
        chk = A.check
        A.check = False
        if sc < 6:
            make_srd(A, S_W, ptr_sgprs[sc >> 1], 512 * 8192)
            A.I(f's_lshl_b32 s{S_T0}, s{S_WV}, 19')
            A.I(f's_lshl_b32 s{S_T1}, s{S_H}, 8')
            A.I(f's_add_u32 s{S_T0}, s{S_T0}, s{S_T1}')
            A.I(f's_add_u32 s{S_T0}, s{S_T0}, {(sc & 1) << 21}')
            A.I(f's_add_u32 s{S_T1}, s{S_T0}, {32 * 8192}')
            va_ = 16
        else:
            make_srd(A, S_W, ptr_sgprs[3], 4096 * 1024)
            A.I(f's_lshl_b32 s{S_T0}, s{S_WV}, 14')
            A.I(f's_lshl_b32 s{S_T1}, s{S_H}, 17')
            A.I(f's_add_u32 s{S_T0}, s{S_T0}, s{S_T1}')
            A.I(f's_add_u32 s{S_T0}, s{S_T0}, {(sc & 1) << 16}')
            A.I(f's_add_u32 s{S_T1}, s{S_T0}, 8192')
            va_ = 17
        A.I(f'buffer_load_dword v22, v{va_}, s[{S_W}:{S_W + 3}], s{S_T0} offen')
        A.I(f'buffer_load_dword v22, v{va_}, s[{S_W}:{S_W + 3}], s{S_T1} offen')
        A.check = chk

    q_ = []

    def younger(names):
        idx = max(i for i, (nm, c) in enumerate(q_) if nm in names)
        return sum(c for nm, c in q_[idx + 1:])

    dma(0); q_.append(('d0', 16))
    dma(1); q_.append(('d1', 16))
    if hook:
        hook(); q_.append(('init', 6 if hook_sc else 0))
    for k in range(2, 2 + TCH):
        touch(k); q_.append(('t', 2))
    for sc in range(8):
        need_ = [f'd{sc}']
        if sc == 1 and hook:
            need_.append('init')
        if sc == 5 and hook_issue:
            need_.append('gb')
        A.I(f's_waitcnt vmcnt({0 if sc == 7 else younger(need_)})')
        A.I('s_barrier')
        if hook_sc:
            hook_sc(sc)
        if sc == 7 and hook_check:
            hook_check()
        cnt = 0
        if sc < 6:
            mat, hh = 'qkv'[sc >> 1], sc & 1
            for nb in range(2):
                for t in range(8):
                    for x in range(2):
                        c, nhi = t >> 1, t & 1
                        imm = (8 * nhi + x) * 256
                        if cnt >= 12:
                            A.I('s_waitcnt lgkmcnt(8)')
                            cnt = 8
                        A.I(f'ds_read_b64_tr_b16 {u(HOME[(mat, nb, t)] + 4 * hh + 2 * x, 2)}, v{VT[(nb, sc & 1, c)]} offset:{imm}')
                        cnt += 1
        else:
            for nbo in range(8):
                for hh in range(2):
                    for x in range(2):
                        imm = (x + 4 * hh) * 1024 + 32 * nbo
                        if cnt >= 12:
                            A.I('s_waitcnt lgkmcnt(8)')
                            cnt = 8
                        A.I(f'ds_read_b64_tr_b16 {v(WOT + nbo * 8 + 4 * hh + 2 * x, 2)}, v{VTO[sc & 1]} offset:{imm}')
                        cnt += 1
        A.I('s_waitcnt lgkmcnt(0)')
        A.I('s_barrier')
        if sc + 2 < 8:
            dma(sc + 2); q_.append((f'd{sc + 2}', 16))
            if TCH and sc + 2 + TCH <= 7:
                touch(sc + 2 + TCH); q_.append(('t', 2))
        if sc in (3, 5) and hook_issue:
            hook_issue(sc); q_.append(('gb', 1) if sc == 3 else ('batch', 4))
        if sc >= 6:
            t2 = sc & 1
            va = V_WO1 if t2 else V_WO0
            k = 0
            for f, (hf, sl) in LDS_SLOT.items():
                if hf != t2:
                    continue
                src = (WOT + f[1] * 8) if f[0] == 'o' else HOME[f]
                for hh in range(2):
                    A.I(f'ds_write_b128 v{va}, {u(src + 4 * hh, 4)} offset:{sl * 2048 + hh * 1024}')
                k += 1
                if k & 1 == 0:
                    A.I('s_waitcnt lgkmcnt(4)')
            A.I('s_waitcnt lgkmcnt(0)')
            for nbo in range(6):
                hm = HOME[('o', nbo, t2)]
                for r in range(8):
                    if hm >= 256:
                        A.I(f'v_accvgpr_write_b32 a{hm - 256 + r}, v{WOT + nbo * 8 + r}')
                    else:
                        A.I(f'v_mov_b32 v{hm + r}, v{WOT + nbo * 8 + r}')


def setup_consts(A):
    g, n = 2, 3
    lane_fields(A, LANE, g, n)
    A.I(f's_lshl_b32 s{S_W11}, s{S_WV}, 11')
    A.I(f'v_bfe_u32 v4, v{n}, 1, 1')
    A.I(f'v_mul_u32_u24 v4, 0xaaaa, v4')
    A.I(f'v_add_u32 v{V_IDX}, 0x4444, v4')
    A.I(f'v_lshlrev_b32 v{V_L16}, 4, v{LANE}')
    A.I(f's_mul_i32 s{S_T0}, s{S_WV}, 640')
    A.I(f'v_lshrrev_b32 v4, 2, v{n}')
    A.I(f'v_mul_u32_u24 v4, 160, v4')
    A.I(f'v_lshl_add_u32 v4, v{g}, 4, v4')
    A.I(f'v_and_b32 v5, 3, v{n}')
    A.I(f'v_lshl_add_u32 v4, v5, 2, v4')
    A.I(f'v_add_u32 v{V_QKW}, s{S_T0}, v4')
    A.I(f'v_mul_u32_u24 v6, 160, v{g}')
    A.I(f'v_and_b32 v4, 1, v{n}')
    A.I(f'v_bfe_u32 v5, v{n}, 1, 2')
    A.I(f'v_lshl_add_u32 v4, v4, 2, v5')
    A.I(f'v_lshl_add_u32 v{V_QR}, v4, 4, v6')
    A.I(f'v_and_b32 v4, 1, v{n}')
    A.I(f'v_lshrrev_b32 v5, 2, v{n}')
    A.I(f'v_and_b32 v7, 2, v{n}')
    A.I(f'v_xor_b32 v5, v5, v7')
    A.I(f'v_lshl_add_u32 v4, v4, 2, v5')
    A.I(f'v_lshl_add_u32 v{V_KR}, v4, 4, v6')
    A.I(f'v_add_u32 v{V_KR}, {L_KX_}, v{V_KR}')
    A.I(f's_lshl_b32 s{S_T0}, s{S_WV}, 9')
    A.I(f's_add_u32 s{S_T0}, s{S_T0}, {L_OX}')
    A.I(f'v_lshrrev_b32 v4, 1, v{g}')
    A.I(f'v_lshlrev_b32 v4, 8, v4')
    A.I(f'v_lshrrev_b32 v5, 1, v{n}')
    A.I(f'v_lshl_add_u32 v4, v5, 6, v4')
    A.I(f'v_and_b32 v5, 1, v{g}')
    A.I(f'v_lshl_add_u32 v4, v5, 5, v4')
    A.I(f'v_and_b32 v5, 1, v{n}')
    A.I(f'v_lshl_add_u32 v4, v5, 4, v4')
    A.I(f'v_add_u32 v4, s{S_T0}, v4')
    A.I(f'v_add_u32 v5, {L_QX}, v{V_L16}')
    A.I(f'v_cmp_gt_u32 vcc, 8, v{n}')
    A.I(f'v_cndmask_b32 v{V_OW}, v5, v4, vcc')
    A.I(f's_lshl_b32 s{S_T0}, s{S_WV}, 14')
    A.I(f's_add_u32 s{S_T0}, s{S_T0}, {L_WO}')
    A.I(f'v_add_u32 v{V_WO0}, s{S_T0}, v{V_L16}')
    A.I(f'v_add_u32 v{V_WO1}, {L_HALF}, v{V_WO0}')
    A.I(f'v_add_u32 v{V_VX}, s{S_W11}, v{V_L16}')
    A.I(f'v_lshrrev_b32 v4, 3, v{n}')
    A.I(f'v_lshl_add_u32 v4, v{g}, 1, v4')
    A.I(f'v_mul_u32_u24 v4, {PB_GRP}, v4')
    A.I(f'v_and_b32 v5, 7, v{n}')
    A.I(f'v_lshl_add_u32 v4, v5, 4, v4')
    A.I(f's_mul_i32 s{S_T0}, s{S_WV}, {8 * PB_GRP}')
    A.I(f's_lshl_b32 s{S_T1}, s{S_H}, 8')
    A.I(f's_add_u32 s{S_T0}, s{S_T0}, s{S_T1}')
    A.I(f'v_add_u32 v{V_PBW}, s{S_T0}, v4')
    A.I(f's_mul_i32 s{S_T0}, s{S_H}, {PB_GRP}')
    A.I(f's_add_u32 s{S_PZ}, s{S_T0}, s{S_W11}')
    A.I(f's_lshl_b32 s{S_T1}, s{S_WV}, 7')
    A.I(f's_add_u32 s{S_T0}, s{S_T0}, s{S_T1}')
    A.I(f'v_lshlrev_b32 v4, 8, v{g}')
    A.I(f'v_lshl_add_u32 v4, v{n}, 3, v4')
    A.I(f'v_add_u32 v{V_RDR}, s{S_T0}, v4')
    A.I(f's_and_b32 s{S_T1}, s{S_H}, 1')
    A.I(f's_lshl_b32 s{S_T1}, s{S_T1}, 10')
    A.I(f's_lshl_b32 s{S_T0}, s{S_WV}, 12')
    A.I(f's_add_u32 s{S_T0}, s{S_T0}, s{S_T1}')
    A.I(f's_lshr_b32 s{S_T1}, s{S_H}, 1')
    A.I(f's_lshl_b32 s{S_T1}, s{S_T1}, 6')
    A.I(f's_add_u32 s{S_T0}, s{S_T0}, s{S_T1}')
    A.I(f'v_lshrrev_b32 v4, 3, v{n}')
    A.I(f'v_lshlrev_b32 v4, 5, v4')
    A.I(f'v_and_b32 v5, 1, v{n}')
    A.I(f'v_lshl_add_u32 v4, v5, 11, v4')
    A.I(f'v_bfe_u32 v5, v{n}, 1, 2')
    A.I(f'v_lshl_add_u32 v4, v5, 2, v4')
    A.I(f'v_add_u32 v4, s{S_T0}, v4')
    A.I(f'v_mov_b32 v5, 0x7f000000')
    A.I(f'v_cmp_gt_u32 vcc, 16, v{LANE}')
    A.I(f'v_cndmask_b32 v{V_MBW}, v5, v4, vcc')
    A.I(f'v_mov_b32 v4, 0x3f80')
    A.I(f'v_mov_b32 v5, 0x3f800000')
    A.I(f'v_and_b32 v6, 1, v{n}')
    A.I(f'v_cmp_eq_u32 vcc, 1, v6')
    A.I(f'v_cndmask_b32 v{V_SEL}, v4, v5, vcc')
    A.I(f'v_lshrrev_b32 v6, 1, v{n}')
    A.I(f'v_cmp_eq_u32 s[{S_M0}:{S_M0 + 1}], 0, v6')
    A.I(f'v_cmp_eq_u32 s[{S_M1}:{S_M1 + 1}], 1, v6')
    c = (128 ** -0.5) * math.log2(math.e)
    cb = struct.unpack("<I", struct.pack("<f", c))[0]
    A.I(f's_mov_b32 s{S_C}, 0x{cb:08x}')
    A.I(f's_mov_b32 s{S_C + 1}, 0x{cb:08x}')
    A.I(f's_mov_b32 s{S_ONE}, 0x3f803f80')
    A.I(f's_mov_b32 s{S_ONE + 1}, 0x3f803f80')


def init_exchange(A, s_mem0, st, rb=0, part=None):
    ws = f's[{S_WS}:{S_WS + 3}]'
    R_ = lambda i: i + rb
    if part in (0, None):
        make_srd(A, S_W, s_mem0, 8192)
        n = R_(3)
        A.I(f'v_and_b32 v{n}, 15, v{LANE}')
        A.I(f's_bfe_u32 s{S_T0}, s{S_H}, 0x20001')
        A.I(f's_lshl_b32 s{S_T0}, s{S_T0}, 11')
        A.I(f's_lshr_b32 s{S_T1}, s{S_H}, 3')
        A.I(f's_lshl_b32 s{S_T1}, s{S_T1}, 8')
        A.I(f's_add_u32 s{S_T0}, s{S_T0}, s{S_T1}')
        A.I(f's_and_b32 s{S_T1}, s{S_WV}, 1')
        A.I(f's_lshl_b32 s{S_T1}, s{S_T1}, 7')
        A.I(f's_add_u32 s{S_T0}, s{S_T0}, s{S_T1}')
        A.I(f's_and_b32 s{S_T1}, s{S_H}, 1')
        A.I(f's_lshl_b32 s{S_T1}, s{S_T1}, 4')
        A.I(f's_add_u32 s{S_T0}, s{S_T0}, s{S_T1}')
        A.I(f'v_and_b32 v{R_(12)}, 1, v{n}')
        A.I(f'v_lshlrev_b32 v{R_(12)}, 6, v{R_(12)}')
        A.I(f'v_lshrrev_b32 v{R_(13)}, 1, v{n}')
        A.I(f'v_lshl_add_u32 v{R_(12)}, v{R_(13)}, 1, v{R_(12)}')
        w = f's[{S_W}:{S_W + 3}]'
        for i, off in enumerate((0, 32, 1024, 1056)):
            A.I(f'buffer_load_ushort v{R_(8 + i)}, v{R_(12)}, {w}, s{S_T0} offen offset:{off}')
    if part in (1, None):
        for r in range(4, 8):
            A.I(f'v_mov_b32 v{R_(r)}, -1')
        for r in range(3):
            A.I(f's_add_u32 s{S_T0}, s{S_PZ}, 0x{WS_PB + r * PB_SLOT:x}')
            for c in range(2):
                A.I(f'buffer_store_dwordx4 {v(R_(4), 4)}, v{V_L16}, {ws}, s{S_T0} offen offset:{1024 * c} {st}')
        le = A.newlabel('L_ie')
        A.I(f's_cmp_ge_u32 s{S_WV}, 2')
        A.br(f's_cbranch_scc1 {le}')
        A.I(f's_mov_b32 s{S_T0}, 0x{WS_MB + 8192:x}')
        A.I(f'buffer_store_dword v{R_(4)}, v{V_MBW}, {ws}, s{S_T0} offen {st}')
        A.I(f'buffer_store_dword v{R_(4)}, v{V_MBW}, {ws}, s{S_T0} offen offset:16 {st}')
        A.I(f's_waitcnt vmcnt({40 if part == 1 else 0})')
        A.I(f'v_lshl_or_b32 v{R_(8)}, v{R_(9)}, 16, v{R_(8)}')
        A.I(f'v_lshl_or_b32 v{R_(10)}, v{R_(11)}, 16, v{R_(10)}')
        A.I(f'v_min_u32 v{R_(8)}, -2, v{R_(8)}')
        A.I(f'v_min_u32 v{R_(10)}, -2, v{R_(10)}')
        A.I(f's_mov_b32 s{S_T0}, 0x{WS_MB:x}')
        A.I(f'buffer_store_dword v{R_(8)}, v{V_MBW}, {ws}, s{S_T0} offen {st}')
        A.I(f'buffer_store_dword v{R_(10)}, v{V_MBW}, {ws}, s{S_T0} offen offset:16 {st}')
        A.label(le)
    if part is None:
        A.I('s_waitcnt vmcnt(0)')


HS = [('q', 0, 0), ('q', 1, 0), ('q', 0, 1), ('q', 1, 1), ('k', 0, 0), ('k', 1, 0), ('k', 0, 1), ('k', 1, 1)]
QBUF = dict(zip(HS, [KX, KX + 8, KX + 16, KX + 24, VX, T, T + 8, ACC + 16]))


def zero(A, r0, n):
    for i in range(0, n, 2):
        A.I(f'v_mov_b64 {v(r0 + i, 2)}, 0')


def q_prefetch(A, part=None):
    for i, f in enumerate(HS):
        if part is not None and (i >> 2) != part:
            continue
        lds_frag_read(A, f, QBUF[f])
        if i == 5:
            A.I('s_waitcnt lgkmcnt(8)')


def kv_dma(A):
    ws = f's[{S_WS}:{S_WS + 3}]'
    A.I(f's_mov_b32 m0, s{S_KVM0}')
    A.I(f's_add_u32 s{S_T0}, s{S_KVN}, 0x{WS_VF - WS_KF:x}')
    A.I(f'buffer_load_dwordx4 v{V_L16}, {ws}, s{S_KVN} offen lds')
    A.I(f'buffer_load_dwordx4 v{V_L16}, {ws}, s{S_KVN} offen offset:1024 lds')
    A.I(f's_add_u32 m0, s{S_KVM0}, 8192')
    A.I(f's_add_u32 s{S_KVN}, s{S_KVN}, {SS * 8192}')
    A.I(f'buffer_load_dwordx4 v{V_L16}, {ws}, s{S_T0} offen lds')
    A.I(f'buffer_load_dwordx4 v{V_L16}, {ws}, s{S_T0} offen offset:1024 lds')


S_AV, S_RA, S_KP, S_RA2 = 21, 22, 24, 26
F_KMP = WS_FLAG + 0x3000
F_PROG = WS_FLAG


def kv_eval(A, vt, vlane16, s_av):
    p, t, u_ = vt, vt + 1, vt + 2
    A.I(f'v_bfe_u32 v{t}, v{vlane16}, 6, 1')
    A.I(f'v_lshl_add_u32 v{t}, v{p}, 1, v{t}')
    A.I(f'v_bfe_u32 v{u_}, v{vlane16}, 7, 1')
    A.I(f'v_lshl_add_u32 v{t}, v{u_}, 5, v{t}')
    A.I(f'v_cmp_le_u32 vcc, 16, v{p}')
    A.I(f'v_mov_b32 v{u_}, 64')
    A.I(f'v_cndmask_b32 v{t}, v{t}, v{u_}, vcc')
    for k in (8, 4, 2, 1):
        A.I(f'v_min_u32_dpp v{t}, v{t}, v{t} row_ror:{k} row_mask:0xf bank_mask:0xf')
    A.I(f'v_readfirstlane_b32 s{s_av}, v{t}')


def kv_load(A, vt, vlane16, s_base):
    ws = f's[{S_WS}:{S_WS + 3}]'
    A.I(f'v_lshrrev_b32 v{vt + 1}, 2, v{vlane16}')
    A.I(f'v_and_b32 v{vt + 1}, 0x7c, v{vt + 1}')
    A.I(f'buffer_load_dword v{vt}, v{vt + 1}, {ws}, s{s_base} offen sc1')


def kv_wait(A, l_exit, s_need, vt, s_av=S_AV, s_base=S_RA, sleep=0, vlane16=V_L16):
    l = A.newlabel('L_kvw')
    A.label(l)
    kv_load(A, vt, vlane16, s_base)
    A.I(f's_sub_u32 s{S_SPIN}, s{S_SPIN}, 1')
    A.I(f's_cbranch_scc1 {l_exit}')
    A.I('s_waitcnt vmcnt(0)')
    kv_eval(A, vt, vlane16, s_av)
    if sleep:
        ld = A.newlabel('L_kvd')
        A.I(f's_cmp_gt_u32 s{s_av}, s{s_need}')
        A.I(f's_cbranch_scc1 {ld}')
        A.I(f's_sleep {sleep}')
        A.br(f's_branch {l}')
        A.label(ld)
    else:
        A.I(f's_cmp_le_u32 s{s_av}, s{s_need}')
        A.br(f's_cbranch_scc1 {l}')


def main_loop(A, st, l_exit, kvcheck=False):
    ws = f's[{S_WS}:{S_WS + 3}]'
    A.I(f's_mov_b32 s{S_STEP}, 0')
    A.I(f's_mov_b32 s{S_MBR}, 0x{WS_MB:x}')
    A.I(f's_mov_b32 s{S_MBW}, 0x{WS_MB + 8192:x}')
    A.I(f's_mov_b32 s{S_PB0}, 0x{WS_PB:x}')
    A.I(f's_mov_b32 s{S_PB1}, 0x{WS_PB + PB_SLOT:x}')
    A.I(f's_mul_i32 s{S_KMO}, s{S_H}, {BH * 4096}')
    A.I(f's_lshl_b32 s{S_T0}, s{S_WV}, 10')
    A.I(f's_add_u32 s{S_KMO}, s{S_KMO}, s{S_T0}')
    A.I(f's_add_u32 s{S_KMO}, s{S_KMO}, 0x{WS_KM - SS * 4096:x}')
    A.I(f's_mul_i32 s{S_W640}, s{S_WV}, 640')
    A.I(f's_mul_i32 s{S_VMO}, s{S_H}, {BH * 2048}')
    A.I(f's_lshl_b32 s{S_T0}, s{S_WV}, 9')
    A.I(f's_add_u32 s{S_VMO}, s{S_VMO}, s{S_T0}')
    A.I(f's_add_u32 s{S_VMO}, s{S_VMO}, 0x{WS_VM - SS * 2048:x}')
    A.I(f's_lshr_b32 s{S_T0}, s{S_WV}, 1')
    A.I(f's_mul_i32 s{S_TCH}, s{S_T0}, 0x{WS_VF - WS_KF:x}')
    A.I(f's_and_b32 s{S_T0}, s{S_WV}, 1')
    A.I(f's_lshl_b32 s{S_T0}, s{S_T0}, 12')
    A.I(f's_add_u32 s{S_TCH}, s{S_TCH}, s{S_T0}')
    A.I(f's_mul_i32 s{S_T0}, s{S_H}, {BH * 8192}')
    A.I(f's_add_u32 s{S_TCH}, s{S_TCH}, s{S_T0}')
    A.I(f's_add_u32 s{S_TCH}, s{S_TCH}, 0x{WS_KF + TOUCH_AHEAD * SS * 8192:x}')

    NST = 12
    order = []

    def stamp(i):
        if not STAMPS:
            return
        order.append(i)
        A.raw(f'    s_memtime s[{64 + 2 * i}:{65 + 2 * i}]')
        A.pos += 1

    def stamp_acc():
        if not STAMPS:
            return
        A.I('s_waitcnt lgkmcnt(0)')
        if E('RAW', 0):
            lk = A.newlabel('L_raw')
            A.I(f's_cmp_lg_u32 s{S_STEP}, {E("RAW", 0)}')
            A.I(f's_cbranch_scc1 {lk}')
            for i in range(NST):
                if i != 6:
                    A.I(f's_mov_b32 s{88 + i}, s{64 + 2 * i}')
            A.label(lk)
            lk = A.newlabel('L_raw')
            A.I(f's_cmp_lg_u32 s{S_STEP}, {E("RAW", 0) - 1}')
            A.I(f's_cbranch_scc1 {lk}')
            A.I(f's_mov_b32 s{88 + 6}, s{64 + 12}')
            A.label(lk)
            return
        prev = 100
        for i in order:
            A.I(f's_sub_u32 s101, s{64 + 2 * i}, s{prev}')
            A.I(f's_add_u32 s{88 + i}, s{88 + i}, s101')
            prev = 64 + 2 * i
        A.I(f's_mov_b32 s100, s{prev}')
    if STAMPS:
        for i in range(NST):
            A.I(f's_mov_b32 s{88 + i}, 0')
        A.I(f's_memtime s[64:65]')
        A.I('s_waitcnt lgkmcnt(0)')
        for i in range(NST):
            A.I(f's_mov_b32 s{64 + 2 * i}, s64')
        A.I(f's_mov_b32 s100, s64')

    L_top = A.newlabel('L_rec')
    L_af = A.newlabel('L_afpoll')
    L_red = A.newlabel('L_red')
    L_bh = A.newlabel('L_bh')
    L_w23 = A.newlabel('L_w23')
    L_fin = A.newlabel('L_fin')
    HS_ = E('HSTAMP', 0)
    _stamp = stamp
    if HS_:
        order.extend([2, 3, 7, 9, 10])

    def hstamp(i):
        if STAMPS and HS_:
            A.raw(f'    s_memtime s[{64 + 2 * i}:{65 + 2 * i}]')
            A.pos += 1

    def stamp(i):
        if HS_ and i in (2, 3, 9, 10):
            return
        if HS_ and i == 7:
            return hstamp(7)
        _stamp(i)

    L_pslow = A.newlabel('L_pslow')
    L_aslow = A.newlabel('L_aslow')
    L_afok = A.newlabel('L_afok')
    L_afchk = A.newlabel('L_afchk')
    RA, RB, SEL, RD = 0, 16, ACC + 8, ACC + 12
    mx, tm = V_MX, V_TM
    TWO_PB, TWO_AF = E('TWO_PB', 1), E('TWO_AF', 1)

    def addr3():
        A.I(f'v_xor_b32 v{V_MX}, 2048, v{V_VX}')
        A.I(f'v_xor_b32 v{V_TM}, 4096, v{V_VX}')
        A.I(f'v_xor_b32 v{V_SP}, 6144, v{V_VX}')

    A.I(f's_mov_b32 s{S_TAG}, 0')
    if kvcheck:
        A.I(f's_mov_b32 s{S_RA2}, s{S_RA}')
    zero(A, ACC, 8)
    q_prefetch(A)
    A.br(f's_branch {L_af}')

    def pb_loads(b):
        for i in range(8):
            so = S_PB0 if i < 4 else S_PB0H
            A.I(f'buffer_load_dwordx2 {v(b + 2 * i, 2)}, v{V_RDR}, {ws}, s{so} offen offset:{(i & 3) * 1024} {LDF}')

    def red(b, base):
        for i in range(4):
            A.I(f's_waitcnt vmcnt({base + 6 - 2 * i})')
            c = '0' if i == 0 else v(RD, 4)
            A.I(f'v_mfma_f32_16x16x32_bf16 {v(RD, 4)}, {v(SEL, 4)}, {v(b + 4 * i, 4)}, {c}')
            r = b + 4 * i
            tt = 0
            for idx in range(8):
                a_, b_, s_ = (idx >> 2) & 1, (idx >> 1) & 1, idx & 1
                if (a_ ^ s_) | (b_ ^ s_):
                    tt |= 1 << idx
            d = mx if i == 0 else tm
            A.I(f'v_bitop3_b32 v{d}, v{r}, v{r + 2}, s{S_TAG} bitop3:0x{tt:x}')
            if i:
                A.I(f'v_or_b32 v{mx}, v{mx}, v{tm}')
        A.I(f'v_and_b32 v{mx}, 1, v{mx}')
        A.I(f'v_cmp_eq_u32 vcc, 1, v{mx}')

    def af_loads(b):
        for i in range(2):
            A.I(f'buffer_load_dwordx4 {v(b + 4 * i, 4)}, v{V_L16}, {ws}, s{S_AFO} offen offset:{i * 1024} {LDF}')

    def af_chk(b, tmp):
        A.I(f'ds_write_b128 v{V_VX}, {v(b, 4)} offset:{L_AF}')
        A.I(f'v_max3_u32 v{tmp}, v{b}, v{b + 1}, v{b + 2}')
        A.I(f'v_max3_u32 v{tmp}, v{tmp}, v{b + 3}, v{b + 4}')
        A.I(f'ds_write_b128 v{V_VX}, {v(b + 4, 4)} offset:{L_AF + 1024}')
        A.I(f'v_max3_u32 v{tmp}, v{tmp}, v{b + 5}, v{b + 6}')
        A.I(f'v_max_u32 v{tmp}, v{tmp}, v{b + 7}')
        A.I(f'v_cmp_eq_u32 vcc, -1, v{tmp}')

    A.raw('.p2align 6')
    A.label(L_top)
    A.forget_loads()
    A.check = False
    red(RA, 8 if TWO_PB else 0)
    hstamp(3)
    A.I(f's_cbranch_vccnz {L_pslow}')
    A.label(L_red, flush=False)
    A.I(f'v_mov_b32 v{tm}, -1')
    A.I('s_nop 2')
    A.I(f'v_cvt_pk_bf16_f32 v{RD}, v{RD}, v{RD + 1}')
    A.I(f'v_cvt_pk_bf16_f32 v{RD + 2}, v{RD + 2}, v{RD + 3}')
    A.I(f'buffer_store_dword v{RD}, v{V_MBW}, {ws}, s{S_MBW} offen {st}')
    A.I(f'buffer_store_dword v{RD + 2}, v{V_MBW}, {ws}, s{S_MBW} offen offset:16 {st}')
    A.I(f'buffer_store_dword v{tm}, v{V_MBW}, {ws}, s{S_MBR} offen {st}')
    A.I(f'buffer_store_dword v{tm}, v{V_MBW}, {ws}, s{S_MBR} offen offset:16 {st}')
    if E('AFW', 0):
        A.I('s_waitcnt vmcnt(2)')
    A.label(L_bh, flush=False)
    stamp(7)
    A.I('s_barrier')
    A.I(f's_mov_b32 s{S_T0}, s{S_MBR}')
    A.I(f's_mov_b32 s{S_MBR}, s{S_MBW}')
    A.I(f's_mov_b32 s{S_MBW}, s{S_T0}')
    A.I(f's_mov_b32 s{S_T0}, s{S_PB0}')
    A.I(f's_mov_b32 s{S_PB0}, s{S_PB1}')
    A.I(f's_mov_b32 s{S_PB1}, s{S_T0}')
    A.I(f's_add_u32 s{S_STEP}, s{S_STEP}, 1')
    A.I(f's_bfe_u32 s{S_TAG}, s{S_STEP}, 0x10001')
    A.label(L_af, flush=False)
    A.I(f's_add_u32 s{S_AFO}, s{S_MBR}, s{S_W11}')
    zero(A, ACC + 8, 8)
    addr3()
    for i in range(AF_DELAY):
        A.I('s_nop 7')
    ASETS = [0, 24, 16]
    af_loads(0)
    hstamp(9)
    for b in ASETS[1:]:
        for i in range(AF_GAP):
            A.I('s_nop 7')
        af_loads(b)

    def mf(mat, nb, t, src=None):
        acc = ACC + ('qkv'.index(mat) * 2 + nb) * 4
        if src is None:
            src = QBUF.get((mat, nb, t))
        b = v(src, 8) if src is not None else u(HOME[(mat, nb, t)], 8)
        A.I(f'v_smfmac_f32_16x16x64_bf16 {v(acc, 4)}, {v(AF + 4 * t, 4)}, {b}, v{V_IDX}')

    A.label(L_afchk, flush=False)
    A.I(f's_waitcnt vmcnt(4) lgkmcnt(0)')
    A.label(L_afok, flush=False)
    hstamp(10)
    tmp = 8
    A.I(f'ds_write_b128 v{V_VX}, {v(0, 4)} offset:{L_AF}')
    A.I(f'ds_write_b128 v{V_VX}, {v(4, 4)} offset:{L_AF + 1024}')
    mf('q', 0, 0)
    A.I(f'v_max3_u32 v{tmp}, v0, v1, v2')
    A.I(f'v_max3_u32 v{tmp}, v{tmp}, v3, v4')
    mf('q', 1, 0)
    A.I(f'v_max3_u32 v{tmp}, v{tmp}, v5, v6')
    A.I(f'v_max_u32 v{tmp}, v{tmp}, v7')
    A.I(f'v_cmp_eq_u32 vcc, -1, v{tmp}')
    A.I(f's_cbranch_vccnz {L_aslow}')
    stamp(8)
    A.check = True
    A.forget_loads()
    A.I('s_waitcnt lgkmcnt(0)')
    A.I('s_barrier')
    stamp(0)
    pend = []
    ar = {1: V_MX, 2: V_TM, 3: V_SP}
    hs = [('q', 0, 1), ('q', 1, 1), ('k', 0, 0), ('k', 1, 0), ('k', 0, 1), ('k', 1, 1)]

    def afr(uu):
        A.I(f'ds_read_b128 {v(AF + 4 * uu, 4)}, v{ar[uu >> 1]} offset:{L_AF + 1024 * (uu & 1)}')
        pend.append(('af', uu))
    afr(2); afr(3)
    mf(*hs[0])
    A.I(f'v_lshlrev_b32 v{V_MX}, 2, v{V_L16}')
    mf(*hs[1])
    mf(*hs[2])
    mf(*hs[3])
    KBUF = {}

    def kload(nb, t, b):
        KBUF[(nb, t)] = b
        lds_frag_read(A, ('k', nb, t), b)
        pend.extend([('k', t), ('k', t)])

    kload(0, 2, QBUF[('q', 0, 0)])
    mf(*hs[4])
    kload(1, 2, QBUF[('q', 1, 0)])
    mf(*hs[5])
    A.I('s_waitcnt vmcnt(0)')
    for uu in range(4, 8):
        afr(uu)
    A.I(f'v_lshrrev_b32 v{V_TM}, 2, v{V_L16}')
    if kvcheck:
        L_kvc, L_kvr = A.newlabel('L_kvc'), A.newlabel('L_kvr')
        A.I(f's_add_u32 s23, s{S_STEP}, 1')
        A.I(f's_cmp_ge_u32 s23, s{S_AV}')
        A.I(f's_cbranch_scc1 {L_kvc}')
        A.label(L_kvr, flush=False)
    if not E('NODMA', 0):
        A.I(f'buffer_load_dword v{V_SP}, v{V_MX}, {ws}, s{S_TCH} offen')
    if kvcheck:
        A.check = False
        A.I(f'buffer_load_dword v{V_SP}, v{V_TM}, {ws}, s{S_RA2} offen sc1')
        A.check = True

    def wait_for(name):
        if name not in pend:
            return
        idx = max(i for i, p in enumerate(pend) if p == name)
        n = len(pend) - 1 - idx
        A.I(f's_waitcnt lgkmcnt({n})')
        del pend[:idx + 1]

    EXP, EXV = ACC + 16, ACC + 20
    for t in range(2, 8):
        wait_for(('af', t))
        mf('q', 0, t)
        if t == 2:
            kload(0, 3, QBUF[('q', 0, 1)])
        if t == 3:
            kload(1, 3, QBUF[('q', 1, 1)])
        if t == 4:
            A.I(f'v_add_u32 v{EXP}, s{S_W640}, v{V_KR}')
        if t == 5:
            A.I(f'v_lshrrev_b32 v{EXV}, 2, v{V_VX}')
        if t == 6:
            A.I(f'ds_read_b64 {v(EXV, 2)}, v{EXV} offset:{L_VM}')
            pend.append(('ex', 1))
        mf('q', 1, t)
        if t == 4:
            A.I(f'ds_read_b128 {v(EXP, 4)}, v{EXP}')
            pend.append(('ex', 0))
        if t == 5:
            A.I(f'v_lshl_add_u32 v{EXV}, v{V_MX}, 0, v{EXV}' if False else f'v_add_u32 v{EXV}, v{EXV}, v{V_TM}')
        if t >= 6:
            A.I(f'ds_read_b128 {v(VX + 4 * (t - 6), 4)}, v{V_VX} offset:{L_KV + 8192 + 1024 * (t - 6)}')
            pend.append(('vx', t))
    stamp(1)
    q0, q1, k0, k1 = ACC, ACC + 4, ACC + 8, ACC + 12
    QF = T

    def kmf(t, nb):
        mf('k', nb, t, KBUF.get((nb, t)))

    def pack(b0, b1):
        return [f'v_add_f32 v{b0}, v{b0}, v{b0 + 2}',
                f'v_add_f32 v{b0 + 1}, v{b0 + 1}, v{b0 + 3}',
                f'v_add_f32 v{b1}, v{b1}, v{b1 + 2}',
                f'v_add_f32 v{b1 + 1}, v{b1 + 1}, v{b1 + 3}',
                f'v_cvt_pk_bf16_f32 v{b0}, v{b0}, v{b1}',
                f'v_cvt_pk_bf16_f32 v{b0 + 1}, v{b0 + 1}, v{b1 + 1}']

    wait_for(('k', 2))
    kmf(2, 0)
    A.I(f's_add_u32 s{S_TCH}, s{S_TCH}, {SS * 8192}')
    A.I(f'v_lshrrev_b32 v{V_TM}, 1, v{V_L16}')
    kmf(2, 1)
    wait_for(('ex', 1))
    if not E('NOEXP', 0):
        A.I(f'buffer_store_dwordx4 {v(EXP, 4)}, v{V_L16}, {ws}, s{S_KMO} offen {EXF}')
    kmf(3, 0)
    if not E('NOEXP', 0):
        A.I(f'buffer_store_dwordx2 {v(EXV, 2)}, v{V_TM}, {ws}, s{S_VMO} offen {EXF}')
    A.I(f's_add_u32 s{S_KMO}, s{S_KMO}, {SS * 4096}')
    A.I(f's_add_u32 s{S_VMO}, s{S_VMO}, {SS * 2048}')
    kmf(3, 1)
    if kvcheck:
        A.I(f'v_mov_b32 v{V_TM}, s{S_STEP}')
        A.I('s_mov_b64 exec, 1')
        A.I(f'buffer_store_dword v{V_TM}, off, {ws}, s{S_KP} sc1')
        A.I('s_mov_b64 exec, -1')
    kxr = [f'ds_read_b128 {v(KX + 4 * f, 4)}, v{V_L16} offset:{L_KV + 1024 * f}' for f in range(8)]
    pq = pack(q0, q1) + [f'ds_write2_b32 v{V_QKW}, v{q0}, v{q0 + 1} offset0:0 offset1:16']
    fl = []
    for i in range(8):
        fl.append([kxr[i]] + ([pq[i]] if i < 7 else []) + ([f'v_mov_b64 {v(ACC + 16 + (i - 4) * 2, 2)}, 0'] if i >= 4 else []))
    for i, (t, nb) in enumerate([(t, nb) for t in range(4, 8) for nb in range(2)]):
        for x in fl[i]:
            A.I(x)
        kmf(t, nb)
    stamp(2)
    pk = pack(k0, k1)
    mf('v', 0, 0)
    mf('v', 1, 0)
    A.I('s_nop 4')
    A.I(pk[0]); A.I(pk[1]); A.I(pk[2])
    mf('v', 0, 1)
    A.I(pk[3]); A.I(pk[4]); A.I(pk[5])
    A.I(f'ds_write_b32 v{V_QKW}, v{k0} offset:{L_KX_}')
    A.I(f'ds_write_b32 v{V_QKW}, v{k0 + 1} offset:{L_KX_ + 64}')
    mf('v', 1, 1)
    mf('v', 0, 2)
    mf('v', 1, 2)
    mf('v', 0, 3)
    A.I(f's_cmp_eq_u32 s{S_STEP}, {NSTEPS}')
    A.I('s_waitcnt lgkmcnt(0)')
    A.I(f's_cbranch_scc1 {L_fin}')
    A.I('s_barrier')
    stamp(3)
    KMF, ONES = 0, 20
    for ks in range(4):
        A.I(f'ds_read_b128 {v(QF + 4 * ks, 4)}, v{V_QR} offset:{640 * ks}')
        if ks == 1:
            mf('v', 1, 3)
    mf('v', 0, 4)
    for ks in range(4):
        A.I(f'ds_read_b128 {v(KMF + 4 * ks, 4)}, v{V_KR} offset:{640 * ks}')
        if ks == 1:
            mf('v', 1, 4)
    dm = []
    if not E('NODMA', 0):
        dm = [f's_mov_b32 m0, s{S_KVM0}\ns_add_u32 s{S_T0}, s{S_KVN}, 0x{WS_VF - WS_KF:x}\nbuffer_load_dwordx4 v{V_L16}, {ws}, s{S_KVN} offen lds',
              f'buffer_load_dwordx4 v{V_L16}, {ws}, s{S_KVN} offen offset:1024 lds\ns_add_u32 m0, s{S_KVM0}, 8192\ns_add_u32 s{S_KVN}, s{S_KVN}, {SS * 8192}',
              f'buffer_load_dwordx4 v{V_L16}, {ws}, s{S_T0} offen lds',
              f'buffer_load_dwordx4 v{V_L16}, {ws}, s{S_T0} offen offset:1024 lds']
    else:
        dm = ['s_nop 0'] * 4
    mf('v', 0, 5)
    mf('v', 1, 5)
    mf('v', 0, 6)
    mf('v', 1, 6)
    X0, X1, M, P = q0, q1, k0, k1
    O0, O1, Lr, PMA, PMB = KX + 16, KX + 20, KX + 24, KX + 28, KX + 30

    def sx(i):
        ks, kb = i >> 1, i & 1
        X = X1 if kb else X0
        c = '0' if ks == 0 else v(X, 4)
        A.I(f'v_mfma_f32_16x16x32_bf16 {v(X, 4)}, {v(KX + 16 * kb + 4 * ks, 4)}, {v(QF + 4 * ks, 4)}, {c}')

    for ks in range(4):
        A.I(f's_waitcnt lgkmcnt({7 - ks})')
        sx(2 * ks)
        if ks == 2:
            A.I(f'v_mov_b64 {v(ONES, 2)}, s[{S_ONE}:{S_ONE + 1}]')
        if ks == 3:
            A.I(f'v_mov_b64 {v(ONES + 2, 2)}, s[{S_ONE}:{S_ONE + 1}]')
        sx(2 * ks + 1)
    stamp(9)
    A.I('s_waitcnt lgkmcnt(0)')
    for ks in range(4):
        cm = '0' if ks == 0 else v(M, 4)
        A.I(f'v_mfma_f32_16x16x32_bf16 {v(M, 4)}, {v(KMF + 4 * ks, 4)}, {v(QF + 4 * ks, 4)}, {cm}')
        if ks == 0:
            A.I(f'v_mov_b32 v{PMA + 1}, 0')
            A.I(f'v_mov_b32 v{PMB}, 0')
        if ks == 1:
            A.I('s_nop 1')
            A.I(f'v_max3_f32 v{mx}, v{X0}, v{X0 + 1}, v{X0 + 2}')
            A.I(f'v_max3_f32 v{tm}, v{X1}, v{X1 + 1}, v{X1 + 2}')
        if ks == 2:
            A.I(f'v_max3_f32 v{mx}, v{mx}, v{X0 + 3}, v{X1 + 3}')
            A.I(f'v_max_f32 v{mx}, v{mx}, v{tm}')
        if ks == 3:
            A.I(f'v_mov_b32 v{tm}, v{mx}')
    mf('v', 0, 7)
    A.I('s_nop 0')
    A.I(f'v_permlane32_swap_b32 v{mx}, v{tm}')
    mf('v', 1, 7)
    A.I(f'v_max_f32 v{mx}, v{mx}, v{tm}')
    A.I('s_nop 1')
    A.I(f'v_max3_f32 v{tm}, v{M}, v{M + 1}, v{M + 2}')
    A.I(f'v_max3_f32 v{mx}, v{tm}, v{M + 3}, v{mx}')
    A.I(f'v_mov_b32 v{tm}, v{mx}')
    sets = [X1, KX, O0, T]
    A.I(f'v_mov_b64 {v(sets[1], 2)}, 0')
    A.I(f'v_mov_b64 {v(sets[1] + 2, 2)}, 0')
    A.I(f'v_permlane16_swap_b32 v{mx}, v{tm}')
    A.I(f'v_max_f32 v{mx}, v{mx}, v{tm}')
    A.I(f'v_mul_f32_e64 v{mx}, -s{S_C}, v{mx}')

    def pkfma(r):
        A.I(f'v_pk_fma_f32 {v(r, 2)}, {v(r, 2)}, s[{S_C}:{S_C + 1}], {v(mx, 2)} op_sel:[0,0,0] op_sel_hi:[1,1,0]')

    va, vb = ACC + 16, ACC + 20
    VMP = va + 2
    for r in (M, X0, X0 + 2, X1, X1 + 2):
        pkfma(r)
    A.I(f'v_exp_f32 v{M}, v{M}')
    A.I(f'v_exp_f32 v{M + 1}, v{M + 1}')
    A.I(f'v_pk_add_f32 {v(va, 2)}, {v(va, 2)}, {v(va + 2, 2)}')
    A.I(f'v_pk_add_f32 {v(vb, 2)}, {v(vb, 2)}, {v(vb + 2, 2)}')
    A.I(f'v_cvt_pk_bf16_f32 v{PMA}, v{M}, v{M + 1}')
    A.I(f'v_cvt_pk_bf16_f32 v{PMB + 1}, v{M}, v{M + 1}')
    A.I(f'v_cvt_pk_bf16_f32 v{VMP}, v{va}, v{va + 1}')
    A.I(f'v_cvt_pk_bf16_f32 v{VMP + 1}, v{vb}, v{vb + 1}')
    A.I(f'v_exp_f32 v{X0}, v{X0}')
    stamp(10)
    A.I(f'v_mfma_f32_16x16x16_bf16 {v(Lr, 4)}, {v(ONES, 2)}, {v(PMA, 2)}, 0')
    A.I(f'v_exp_f32 v{X0 + 1}, v{X0 + 1}')
    A.I(f'v_mfma_f32_16x16x16_bf16 {v(O0, 4)}, {v(VMP, 2)}, {v(PMA, 2)}, 0')
    A.I(f'v_exp_f32 v{X0 + 2}, v{X0 + 2}')
    A.I(f'v_mfma_f32_16x16x16_bf16 {v(O1, 4)}, {v(VMP, 2)}, {v(PMB, 2)}, 0')
    A.I(f'v_exp_f32 v{X0 + 3}, v{X0 + 3}')
    A.I(f'v_cvt_pk_bf16_f32 v{P}, v{X0}, v{X0 + 1}')
    A.I(f'v_exp_f32 v{X1}, v{X1}')
    A.I(f'v_exp_f32 v{X1 + 1}, v{X1 + 1}')
    A.I(f'v_cvt_pk_bf16_f32 v{P + 1}, v{X0 + 2}, v{X0 + 3}')
    A.I(f'v_exp_f32 v{X1 + 2}, v{X1 + 2}')
    A.I(f'v_exp_f32 v{X1 + 3}, v{X1 + 3}')
    A.I(f'v_cvt_pk_bf16_f32 v{P + 2}, v{X1}, v{X1 + 1}')
    A.I(f'v_cvt_pk_bf16_f32 v{P + 3}, v{X1 + 2}, v{X1 + 3}')
    A.I(f'v_lshrrev_b32 v{tm}, 2, v{V_VX}')
    A.I(f'v_mov_b64 {v(sets[0], 2)}, 0')
    A.I(f'v_mfma_f32_16x16x32_bf16 {v(Lr, 4)}, {v(ONES, 4)}, {v(P, 4)}, {v(Lr, 4)}')
    A.I(f'v_mov_b64 {v(sets[0] + 2, 2)}, 0')
    A.I(f'v_mov_b64 {v(sets[0] + 4, 2)}, 0')
    A.I(f'v_mfma_f32_16x16x32_bf16 {v(O0, 4)}, {v(VX, 4)}, {v(P, 4)}, {v(O0, 4)}')
    A.I(f'v_mov_b64 {v(sets[0] + 6, 2)}, 0')
    A.I(f'v_mov_b64 {v(sets[1] + 4, 2)}, 0')
    A.I(f'v_mfma_f32_16x16x32_bf16 {v(O1, 4)}, {v(VX + 4, 4)}, {v(P, 4)}, {v(O1, 4)}')
    A.I(f'v_mov_b64 {v(sets[1] + 6, 2)}, 0')
    A.I(f'v_mov_b64 {v(sets[3], 2)}, 0')
    A.I(f'v_rcp_f32 v{mx}, v{Lr}')
    A.I(f'v_mov_b64 {v(sets[3] + 2, 2)}, 0')
    A.I(f'v_mov_b64 {v(sets[3] + 4, 2)}, 0')
    OW = X0

    def pkmul(r):
        A.I(f'v_pk_mul_f32 {v(r, 2)}, {v(r, 2)}, {v(mx, 2)} op_sel:[0,0] op_sel_hi:[1,0]')

    pkmul(O0)
    pkmul(O0 + 2)
    A.I(f'v_cvt_pk_bf16_f32 v{OW}, v{O0}, v{O0 + 1}')
    A.I(f'v_cvt_pk_bf16_f32 v{OW + 1}, v{O0 + 2}, v{O0 + 3}')
    pkmul(O1)
    pkmul(O1 + 2)
    A.I(f'v_cvt_pk_bf16_f32 v{OW + 2}, v{O1}, v{O1 + 1}')
    A.I(f'v_cvt_pk_bf16_f32 v{OW + 3}, v{O1 + 2}, v{O1 + 3}')
    A.I(f'ds_write_b128 v{V_OW}, {v(OW, 4)}')
    stamp(4)
    A.I(f'v_lshrrev_b32 v{mx}, 2, v{V_L16}')
    A.I(f'v_add_u32 v{tm}, v{tm}, v{mx}')
    A.I(f'ds_write_b64 v{tm}, {v(VMP, 2)} offset:{L_VM}')
    zero(A, sets[2], 8)
    A.I(f'v_mov_b64 {v(sets[3] + 6, 2)}, 0')
    A.I('s_waitcnt lgkmcnt(1)')
    A.I('s_barrier')
    OF = VX
    A.I(f'ds_read_b128 {v(OF, 4)}, v{V_L16} offset:{L_OX}')
    A.I(f'ds_read_b128 {v(OF + 4, 4)}, v{V_L16} offset:{L_OX + 1024}')
    OBUF = {(6, 0): 0, (7, 0): 8, (6, 1): 24, (7, 1): KX + 8}
    A.I(f's_add_u32 s{S_PB0H}, s{S_PB0}, 4096')
    A.I('s_waitcnt lgkmcnt(1)')
    stamp(5)

    def post(c):
        a0, b0 = sets[c], sets[c] + 4
        o = (OW if c < 2 else P) + 2 * (c & 1)
        if c == 3:
            l = [f'v_pk_add_f32 {v(a0, 2)}, {v(a0, 2)}, {v(a0 + 2, 2)}',
                 f'v_pk_add_f32 {v(b0, 2)}, {v(b0, 2)}, {v(b0 + 2, 2)}']
        else:
            l = [f'v_add_f32 v{a0}, v{a0}, v{a0 + 2}', f'v_add_f32 v{a0 + 1}, v{a0 + 1}, v{a0 + 3}',
                 f'v_add_f32 v{b0}, v{b0}, v{b0 + 2}', f'v_add_f32 v{b0 + 1}, v{b0 + 1}, v{b0 + 3}']
        l += [f'v_cvt_pk_bf16_f32 v{o}, v{a0}, v{b0}',
              f'v_cvt_pk_bf16_f32 v{o + 1}, v{a0 + 1}, v{b0 + 1}',
              f'v_bfi_b32 v{o}, 1, s{S_TAG}, v{o}']
        if c & 1:
            l.append(f'buffer_store_dwordx4 {v(o - 2, 4)}, v{V_PBW}, {ws}, s{S_PB0} offen offset:{128 * (c >> 1)} {st}')
        return l

    def womf(c, t2, bb):
        nbo = 2 * c + bb
        b = v(OBUF[(nbo, t2)], 8) if (nbo, t2) in OBUF else u(HOME[('o', nbo, t2)], 8)
        A.I(f'v_smfmac_f32_16x16x64_bf16 {v(sets[c] + 4 * bb, 4)}, {v(OF + 4 * t2, 4)}, {b}, v{V_IDX}')

    obr = []
    for f, b in OBUF.items():
        hf, sl = LDS_SLOT[('o',) + f]
        va_ = V_WO1 if hf else V_WO0
        obr.append(f'ds_read_b128 {v(b, 4)}, v{va_} offset:{sl * 2048}')
        obr.append(f'ds_read_b128 {v(b + 4, 4)}, v{va_} offset:{sl * 2048 + 1024}')
    seq = [(c, t2, bb) for c in range(4) for t2 in range(2) for bb in range(2)]
    fill = {i: [] for i in range(16)}
    for i in range(8):
        fill[2 + i // 2 if i < 6 else 5].append(obr[i])
    DM0 = E('DM0', 0)
    for i in range(4):
        fill[DM0 + i].append(dm[i])
    p0, p1, p2 = post(0), post(1), post(2)
    for k, x in enumerate(p0):
        fill[6 + k // 2].append(x)
    for k, x in enumerate(p1):
        fill[10 + k // 2].append(x)
    for k, x in enumerate(p2):
        fill[14 + min(k // 2, 1)].append(x)
    for i, (c, t2, bb) in enumerate(seq):
        if i == 2:
            A.I('s_waitcnt lgkmcnt(0)')
        if i == 12:
            A.I('s_waitcnt lgkmcnt(0)')
        womf(c, t2, bb)
        for x in fill[i]:
            A.I(x)
    A.I(f's_cmp_ge_u32 s{S_WV}, 2')
    for x in post(3):
        A.I(x)
    stamp(6)
    stamp_acc()
    if STAMPS:
        A.I(f's_cmp_ge_u32 s{S_WV}, 2')
    if kvcheck:
        lke = A.newlabel('L_ke')
        A.I(f's_cmp_lg_u32 s{S_RA2}, s{S_RA}')
        A.I(f's_cbranch_scc1 {lke}')
        A.I('s_waitcnt vmcnt(9)')
        A.I(f'v_mov_b32 v{T + 8}, v{V_SP}')
        kv_eval(A, T + 8, V_L16, S_AV)
        lk2 = A.newlabel('L_ke2')
        A.br(f's_branch {lk2}')
        A.label(lke)
        for i in range(3):
            A.I('s_nop 7')
        A.label(lk2)
        A.I(f's_add_u32 s23, s{S_STEP}, 8')
        A.I('s_min_u32 s23, s23, 64')
        A.I(f's_cmp_lt_u32 s{S_AV}, s23')
        A.I(f's_cselect_b32 s{S_RA2}, s{S_RA}, 0x7f000000')
        A.I(f's_cmp_ge_u32 s{S_WV}, 2')
    zero(A, ACC, 8)
    A.I(f's_cbranch_scc1 {L_w23}')
    A.I(f'v_cndmask_b32 v{SEL}, 0, v{V_SEL}, s[{S_M0}:{S_M0 + 1}]')
    A.I(f'v_cndmask_b32 v{SEL + 1}, 0, v{V_SEL}, s[{S_M1}:{S_M1 + 1}]')
    A.I(f'v_mov_b64 {v(SEL + 2, 2)}, {v(SEL, 2)}')
    if E('PBW', 0):
        A.I('s_waitcnt vmcnt(0)')
    for i in range(PB_DELAY - (4 if kvcheck else 0)):
        A.I('s_nop 7')
    pb_loads(RA)
    hstamp(2)
    q_prefetch(A, 0)
    for i in range(PB_GAP):
        A.I('s_nop 7')
    if TWO_PB:
        pb_loads(RB)
    q_prefetch(A, 1)
    A.br(f's_branch {L_top}')
    A.label(L_w23)
    A.forget_loads()
    q_prefetch(A)
    if os.environ.get('DIAG2'):
        ld_ = A.newlabel('L_d2')
        A.I(f's_add_u32 s80, s{S_H}, s{S_WV}')
        A.I('s_cmp_lg_u32 s80, 2')
        A.I(f's_cbranch_scc1 {ld_}')
        A.I('s_mov_b32 s64, 0')
        for i, st_ in enumerate((1, 8, 20, 36, 52)):
            A.I(f's_cmp_eq_u32 s{S_STEP}, {st_}')
            A.I(f's_cselect_b32 s64, {44 + 4 * i}, s64')
        A.I('s_cmp_eq_u32 s64, 0')
        A.I(f's_cbranch_scc1 {ld_}')
        A.I('s_memrealtime s[80:81]')
        A.I('s_waitcnt lgkmcnt(0)')
        A.I('s_sub_u32 s80, s80, s58')
        A.I('v_mov_b32 v0, s80')
        A.I('buffer_store_dword v0, off, s[84:87], s64')
        A.label(ld_)
    if os.environ.get('STEPT'):
        A.I('s_memrealtime s[80:81]')
        A.I('s_waitcnt lgkmcnt(0)')
        A.I('v_mov_b32 v0, s80')
        A.I(f's_lshl_b32 s80, s{S_STEP}, 2')
        A.I(f's_lshl_b32 s81, s{S_H}, 8')
        A.I('s_add_u32 s80, s80, s81')
        A.I(f's_add_u32 s80, s80, 0x{WS_DBG + 0x20000:x}')
        A.I(f'buffer_store_dword v0, off, {ws}, s80')
        A.I('s_memtime s[64:65]')
        A.I('s_waitcnt lgkmcnt(0)')
        A.I('v_mov_b32 v1, s64')
        A.I(f's_add_u32 s80, s80, 0x4000')
        A.I(f'buffer_store_dword v1, off, {ws}, s80')
    hstamp(2); hstamp(3)
    A.br(f's_branch {L_bh}')

    A.check = False
    A.label(L_pslow)
    if TWO_PB:
        red(RB, 0)
        A.I(f's_cbranch_vccz {L_red}')
    pb_loads(RA)
    A.I(f's_sub_u32 s{S_SPIN}, s{S_SPIN}, 1')
    A.I(f's_cbranch_scc1 {l_exit}')
    if TWO_PB:
        for i in range(3):
            A.I('s_nop 7')
        pb_loads(RB)
    A.br(f's_branch {L_top}')
    A.label(L_aslow)
    af_loads(0)
    zero(A, ACC, 8)
    for b in ASETS[1:]:
        A.I('s_waitcnt vmcnt(4)')
        A.I(f'v_max3_u32 v8, v{b}, v{b + 1}, v{b + 2}')
        A.I(f'v_max3_u32 v9, v{b + 3}, v{b + 4}, v{b + 5}')
        A.I(f'v_mov_b64 {v(10, 2)}, {v(b, 2)}')
        A.I(f'v_max3_u32 v8, v8, v{b + 6}, v{b + 7}')
        A.I(f'v_max_u32 v8, v8, v9')
        A.I(f'v_cmp_eq_u32 vcc, -1, v8')
        lf = A.newlabel('L_af_f')
        A.I(f's_cbranch_vccnz {lf}')
        for i in range(0, 8, 2):
            A.I(f'v_mov_b64 {v(i, 2)}, {v(b + i, 2)}')
        A.br(f's_branch {L_afok}')
        A.label(lf)
        af_loads(b)
    A.I(f's_sub_u32 s{S_SPIN}, s{S_SPIN}, 1')
    A.I(f's_cbranch_scc1 {l_exit}')
    A.br(f's_branch {L_afchk}')
    if kvcheck:
        A.label(L_kvc)
        A.I(f's_cmp_eq_u32 s23, 64')
        A.I(f's_cbranch_scc1 {L_kvr}')
        kv_wait(A, l_exit, 23, ACC + 16)
        A.br(f's_branch {L_kvr}')
    A.label(L_fin)
    A.I(f'v_add_u32 v{V_MX}, s{S_W640}, v{V_KR}')
    A.I(f'ds_read_b128 {v(T, 4)}, v{V_MX}')
    mf('v', 1, 3)
    for t in range(4, 8):
        mf('v', 0, t)
        mf('v', 1, t)
    A.I(f'v_lshrrev_b32 v{V_TM}, 1, v{V_L16}')
    A.I('s_waitcnt lgkmcnt(0)')
    A.I(f'buffer_store_dwordx4 {v(T, 4)}, v{V_L16}, {ws}, s{S_KMO} offen sc1')
    A.I(f'v_pk_add_f32 {v(va, 2)}, {v(va, 2)}, {v(va + 2, 2)}')
    A.I(f'v_pk_add_f32 {v(vb, 2)}, {v(vb, 2)}, {v(vb + 2, 2)}')
    A.I(f'v_cvt_pk_bf16_f32 v{VMP}, v{va}, v{va + 1}')
    A.I(f'v_cvt_pk_bf16_f32 v{VMP + 1}, v{vb}, v{vb + 1}')
    A.I(f'buffer_store_dwordx2 {v(VMP, 2)}, v{V_TM}, {ws}, s{S_VMO} offen sc1')
    if kvcheck:
        A.I('v_mov_b32 v6, 65')
        A.I('s_waitcnt vmcnt(0)')
        A.I('s_mov_b64 exec, 1')
        A.I(f'buffer_store_dword v6, off, {ws}, s{S_KP} sc1')
        A.I('s_mov_b64 exec, -1')
    A.br(f's_branch {l_exit}')
    A.check = True
    A.forget_loads()


def rec_kernel(A, name):
    kernel_begin(A, name)
    l_exit = A.newlabel('L_exit')
    P_WS, P_DBG, P_Q, P_K, P_V, P_O, P_M0 = 16, 18, 20, 22, 24, 26, 28
    A.I(f's_cmp_ge_u32 s2, 256')
    A.I(f's_cbranch_scc1 {l_exit}')
    A.I(f's_load_dwordx2 s[{P_WS}:{P_WS + 1}], s[0:1], {KA_WS}')
    A.I(f's_load_dwordx2 s[{P_DBG}:{P_DBG + 1}], s[0:1], {KA_DBG}')
    A.I(f's_load_dwordx4 s[{P_Q}:{P_Q + 3}], s[0:1], {KA_WQ}')
    A.I(f's_load_dwordx4 s[{P_V}:{P_V + 3}], s[0:1], {KA_WV}')
    A.I(f's_load_dwordx2 s[{P_M0}:{P_M0 + 1}], s[0:1], {KA_MEM0}')
    A.I('v_lshrrev_b32 v1, 6, v0')
    A.I(f'v_and_b32 v{LANE}, 63, v0')
    A.I(f'v_readfirstlane_b32 s{S_WV}, v1')
    A.I(f's_getreg_b32 s{S_T0}, hwreg(HW_REG_XCC_ID)')
    A.I(f's_and_b32 s{S_T0}, s{S_T0}, 15')
    A.I('s_waitcnt lgkmcnt(0)')
    make_srd(A, S_WS, P_WS, WS_SIZE)
    make_srd(A, S_DBG, P_DBG, 256)
    A.I(f's_cmp_lg_u32 s{S_T0}, 0')
    A.I(f's_cbranch_scc1 {l_exit}')
    A.I(f's_mov_b32 s{S_SPIN}, 2000000')
    dbg = f's[{S_DBG}:{S_DBG + 3}]'
    A.I('v_mov_b32 v2, 1')
    A.I('v_mov_b32 v3, 0')
    A.I('v_cmp_eq_u32 vcc, 0, v0')
    A.I('s_and_saveexec_b64 s[30:31], vcc')
    lsk = A.newlabel('L_sk')
    A.I(f's_cbranch_execz {lsk}')
    A.I(f'buffer_atomic_add v2, v3, {dbg}, 0 offen sc0')
    A.I('s_waitcnt vmcnt(0)')
    A.I('ds_write_b32 v3, v2')
    A.I('s_waitcnt lgkmcnt(0)')
    A.label(lsk)
    A.I('s_mov_b64 exec, s[30:31]')
    A.I('s_barrier')
    A.I('ds_read_b32 v2, v3')
    A.I('s_waitcnt lgkmcnt(0)')
    A.I(f'v_readfirstlane_b32 s{S_H}, v2')
    A.I('s_barrier')
    A.I(f's_cmp_ge_u32 s{S_H}, 32')
    A.I(f's_cbranch_scc1 {l_exit}')
    A.I(f's_memrealtime s[{S_TS}:{S_TS + 1}]')
    setup_consts(A)
    st = STF
    init_exchange(A, P_M0, st)
    A.I('s_barrier')
    A.I('v_mov_b32 v2, 1')
    A.I('v_mov_b32 v3, 64')
    A.I('v_cmp_eq_u32 vcc, 0, v0')
    A.I('s_and_saveexec_b64 s[30:31], vcc')
    lsk = A.newlabel('L_sk')
    A.I(f's_cbranch_execz {lsk}')
    A.I(f'buffer_atomic_add v2, v3, {dbg}, 0 offen')
    A.label(lsk)
    A.I('s_mov_b64 exec, s[30:31]')
    A.I('s_waitcnt vmcnt(0)')
    stage_weights(A, [P_Q, P_K, P_V, P_O])
    A.I(f's_mul_i32 s{S_KVN}, s{S_H}, {BH * 8192}')
    A.I(f's_add_u32 s{S_KVN}, s{S_KVN}, s{S_W11}')
    A.I(f's_add_u32 s{S_KVN}, s{S_KVN}, 0x{WS_KF:x}')
    A.I(f's_add_u32 s{S_KVM0}, s{S_W11}, {L_KV}')
    kv_dma(A)
    lw = A.newlabel('L_tw')
    A.I('v_mov_b32 v3, 64')
    A.label(lw)
    A.I(f'buffer_load_dword v2, v3, {dbg}, 0 offen sc1')
    A.I(f's_sub_u32 s{S_SPIN}, s{S_SPIN}, 1')
    A.I(f's_cbranch_scc1 {l_exit}')
    A.I('s_waitcnt vmcnt(0)')
    A.I(f'v_readfirstlane_b32 s{S_T0}, v2')
    A.I(f's_cmp_lt_u32 s{S_T0}, 32')
    A.I(f's_cbranch_scc1 {lw}')
    A.I('s_barrier')
    A.I(f's_memrealtime s[{S_TS + 2}:{S_TS + 3}]')
    A.I('s_waitcnt lgkmcnt(0)')
    l_done = A.newlabel('L_done')
    main_loop(A, st, l_done)
    A.label(l_done)
    A.forget_loads()
    A.I(f's_memrealtime s[{S_TS + 4}:{S_TS + 5}]')
    A.I('s_waitcnt lgkmcnt(0) vmcnt(0)')
    A.I(f's_lshl_b32 s{S_T0}, s{S_H}, 2')
    A.I(f's_add_u32 s{S_T0}, s{S_T0}, s{S_WV}')
    A.I(f's_lshl_b32 s{S_T0}, s{S_T0}, 5')
    A.I(f's_add_u32 s{S_T0}, s{S_T0}, 0x{WS_DBG:x}')
    for i in range(6):
        A.I(f'v_mov_b32 v{i}, s{S_TS + i}')
    A.I(f'v_mov_b32 v6, s{S_STEP}')
    A.I(f'v_mov_b32 v7, s{S_SPIN}')
    A.I('v_mov_b32 v8, 0')
    A.I(f'buffer_store_dwordx4 v[0:3], v8, s[{S_WS}:{S_WS + 3}], s{S_T0} offen')
    A.I(f'buffer_store_dwordx4 v[4:7], v8, s[{S_WS}:{S_WS + 3}], s{S_T0} offen offset:16')
    if STAMPS:
        A.I(f's_add_u32 s{S_T0}, s{S_T0}, s{S_T0}')
        A.I(f's_sub_u32 s{S_T0}, s{S_T0}, 0x{WS_DBG - 0x10000:x}')
        for i in range(12):
            A.I(f'v_mov_b32 v{12 + i}, s{88 + i}')
        for i in range(3):
            A.I(f'buffer_store_dwordx4 {v(12 + 4 * i, 4)}, v8, s[{S_WS}:{S_WS + 3}], s{S_T0} offen offset:{16 * i}')
    A.label(l_exit)
    A.I('s_endpgm')


if __name__ == '__main__':
    A = Asm()
    rec_kernel(A, 'rec_kernel')
    txt = header([('rec_kernel', 256, 256, L_TOTAL)]) + A.text() + '.section .rodata,"a"\n' + kernel_desc('rec_kernel', 512, 256)
    open('work/' + OUT, 'w').write(txt)
    print('ok', len(txt))
```

```python
from common import *
import math, struct, os

def f32(x):
    return '0x%08x' % struct.unpack('<I', struct.pack('<f', x))[0]

S_WS, S_W, S_X = 4, 8, 12
S_H, S_WV, S_G = 32, 33, 34
S_T0, S_T1, S_T2, S_T3 = 48, 49, 50, 51


def prologue(A, ptrs, nwg, l_exit):
    A.I(f's_cmp_ge_u32 s2, {nwg}')
    A.I(f's_cbranch_scc1 {l_exit}')
    for sg, off in ptrs.items():
        A.I(f's_load_dwordx2 s[{sg}:{sg + 1}], s[0:1], {off}')
    A.I('v_lshrrev_b32 v1, 6, v0')
    A.I('v_and_b32 v0, 63, v0')
    A.I(f'v_readfirstlane_b32 s{S_WV}, v1')
    A.I('s_waitcnt lgkmcnt(0)')


def xreduce(A, op, r, t, rows16=True):
    for sw in ('v_permlane32_swap_b32', 'v_permlane16_swap_b32'):
        A.I(f'v_mov_b32 v{t}, v{r}')
        A.I(f'{sw} v{r}, v{t}')
        A.I(f'{op} v{r}, v{r}, v{t}')


LN_X, LN_F, LN_T = 32, 96, 24


def ln1_load(A, s_task, srd_x, s_off):
    X, T_ = LN_X, LN_T
    A.I(f'v_and_b32 v{T_}, 15, v0')
    A.I(f'v_lshrrev_b32 v{T_ + 1}, 4, v0')
    A.I(f'v_lshlrev_b32 v{T_}, 10, v{T_}')
    A.I(f'v_lshl_add_u32 v{T_}, v{T_ + 1}, 4, v{T_}')
    A.I(f's_lshl_b32 s{s_off}, s{s_task}, 14')
    for ks in range(16):
        A.I(f'buffer_load_dwordx4 {v(X + 4 * ks, 4)}, v{T_}, {srd_x}, s{s_off} offen offset:{64 * ks}')


def ln1_compute(A, srd_ws, s_off, st='', younger=0):
    X, F = LN_X, LN_F
    a0, a1, a2, ad = LN_T + 1, LN_T + 2, LN_T + 3, LN_T
    A.I(f'v_mov_b32 v{a0}, 0')
    A.I(f'v_mov_b32 v{a1}, 0')
    A.I(f's_waitcnt vmcnt({younger})')
    for ks in range(16):
        for i in range(4):
            r = X + 4 * ks + i
            f = F + 8 * ks + 2 * i
            A.I(f'v_lshlrev_b32 v{f}, 16, v{r}')
            A.I(f'v_and_b32 v{f + 1}, 0xffff0000, v{r}')
            A.I(f'v_add_f32 v{a0}, v{a0}, v{f}')
            A.I(f'v_add_f32 v{a1}, v{a1}, v{f + 1}')
    A.I(f'v_add_f32 v{a0}, v{a0}, v{a1}')
    xreduce(A, 'v_add_f32', a0, a1)
    A.I(f'v_mul_f32 v{a0}, {f32(1 / 512)}, v{a0}')
    A.I(f'v_mov_b32 v{a1}, 0')
    A.I(f'v_mov_b32 v{a2}, 0')
    for i in range(0, 128, 2):
        A.I(f'v_sub_f32 v{F + i}, v{F + i}, v{a0}')
        A.I(f'v_sub_f32 v{F + i + 1}, v{F + i + 1}, v{a0}')
        A.I(f'v_fmac_f32 v{a1}, v{F + i}, v{F + i}')
        A.I(f'v_fmac_f32 v{a2}, v{F + i + 1}, v{F + i + 1}')
    A.I(f'v_add_f32 v{a1}, v{a1}, v{a2}')
    xreduce(A, 'v_add_f32', a1, a2)
    A.I(f'v_mov_b32 v{a2}, {f32(1e-5)}')
    A.I(f'v_fmac_f32 v{a2}, {f32(1 / 512)}, v{a1}')
    A.I(f'v_rsq_f32 v{a2}, v{a2}')
    A.I(f'v_lshlrev_b32 v{ad}, 4, v0')
    A.I(f's_add_u32 s{s_off}, s{s_off}, 0x{WS_XN:x}')
    for ks in range(16):
        for i in range(4):
            f = F + 8 * ks + 2 * i
            A.I(f'v_mul_f32 v{f}, v{f}, v{a2}')
            A.I(f'v_mul_f32 v{f + 1}, v{f + 1}, v{a2}')
            A.I(f'v_cvt_pk_bf16_f32 v{X + 4 * ks + i}, v{f}, v{f + 1}')
        if ks and ks % 4 == 0:
            A.I(f's_add_u32 s{s_off}, s{s_off}, 4096')
        A.I(f'buffer_store_dwordx4 {v(X + 4 * ks, 4)}, v{ad}, {srd_ws}, s{s_off} offen offset:{1024 * (ks & 3)} {st}')


def ln1_body(A, s_task, srd_x, srd_ws, st=''):
    ln1_load(A, s_task, srd_x, 47)
    ln1_compute(A, srd_ws, 47, st)


def ln1_kernel(A, name):
    kernel_begin(A, name)
    le = A.newlabel('L_exit')
    prologue(A, {16: KA_WS, 18: KA_X}, 32, le)
    make_srd(A, S_WS, 16, WS_SIZE)
    make_srd(A, S_X, 18, 2048 * 1024)
    A.I(f's_lshl_b32 s{S_G}, s2, 2')
    A.I(f's_add_u32 s{S_G}, s{S_G}, s{S_WV}')
    ln1_body(A, S_G, f's[{S_X}:{S_X + 3}]', f's[{S_WS}:{S_WS + 3}]')
    A.label(le)
    A.I('s_endpgm')


def wt(mat, nb, ks):
    f = (mat * 2 + nb) * 16 + ks
    return (256 + 4 * f) if f < 64 else (128 + 4 * (f - 64))


Q_BUF0, Q_BUF1 = 0, 65536


def qkv_stage(A, ptrs, order=(1, 2, 0), hook=None, hook_sc=None):
    A.I('v_and_b32 v3, 15, v0')
    A.I('v_lshrrev_b32 v2, 4, v0')
    A.I(f's_lshr_b32 s{S_T0}, s{S_WV}, 1')
    A.I(f's_lshl_b32 s{S_T0}, s{S_T0}, 2')
    A.I(f'v_or_b32 v6, s{S_T0}, v2')
    A.I('v_lshlrev_b32 v6, 1, v6')
    A.I('v_xor_b32 v6, v6, v3')
    A.I('v_lshlrev_b32 v6, 4, v6')
    A.I('v_lshl_add_u32 v4, v2, 13, v6')
    A.I('v_lshrrev_b32 v6, 2, v3')
    A.I('v_and_b32 v7, 3, v3')
    A.I('v_lshl_add_u32 v8, v2, 3, v6')
    A.I('v_and_b32 v9, 1, v2')
    A.I('v_lshl_add_u32 v9, v9, 2, v6')
    A.I(f's_lshl_b32 s{S_T0}, s{S_WV}, 1')
    A.I(f'v_xor_b32 v9, s{S_T0}, v9')
    A.I('v_lshlrev_b32 v10, 8, v8')
    A.I('v_lshl_add_u32 v10, v9, 5, v10')
    A.I('v_lshl_add_u32 v10, v7, 3, v10')
    A.I('v_xor_b32 v11, 32, v10')
    A.I(f'v_add_u32 v12, {Q_BUF1}, v10')
    A.I(f'v_add_u32 v13, {Q_BUF1}, v11')
    VT = {(0, 0): 10, (1, 0): 11, (0, 1): 12, (1, 1): 13}
    chunks = [(m, hh) for m in order for hh in range(2)]

    def dma(sc):
        mat, hh = chunks[sc]
        buf = Q_BUF1 if sc & 1 else Q_BUF0
        make_srd(A, S_W, ptrs[mat], 512 * 8192)
        A.I(f's_lshl_b32 s{S_T0}, s{S_WV}, 15')
        A.I(f's_lshl_b32 s{S_T1}, s{S_H}, 8')
        A.I(f's_add_u32 s{S_T0}, s{S_T0}, s{S_T1}')
        A.I(f's_add_u32 s{S_T0}, s{S_T0}, {hh << 21}')
        A.I(f's_lshl_b32 s{S_T1}, s{S_WV}, 10')
        A.I(f's_add_u32 s{S_T1}, s{S_T1}, {buf}')
        for i in range(16):
            A.I(f's_mov_b32 m0, s{S_T1}')
            A.I(f'buffer_load_dwordx4 v4, s[{S_W}:{S_W + 3}], s{S_T0} offen lds')
            if i < 15:
                A.I(f's_add_u32 s{S_T0}, s{S_T0}, {4 * 32768}')
                A.I(f's_add_u32 s{S_T1}, s{S_T1}, 4096')

    dma(0)
    dma(1)
    if hook:
        hook()
    n = len(chunks)
    for sc in range(n):
        mat, hh = chunks[sc]
        A.I(f's_waitcnt vmcnt({16 if sc < n - 1 else 0})')
        A.I('s_barrier')
        if hook_sc:
            hook_sc(sc)
        cnt = 0
        for nb in range(2):
            for k8 in range(8):
                for x in range(2):
                    if cnt >= 12:
                        A.I('s_waitcnt lgkmcnt(8)')
                        cnt = 8
                    A.I(f'ds_read_b64_tr_b16 {u(wt(mat, nb, 8 * hh + k8) + 2 * x, 2)}, v{VT[(nb, sc & 1)]} offset:{(32 * k8 + 4 * x) * 256}')
                    cnt += 1
        A.I('s_waitcnt lgkmcnt(0)')
        A.I('s_barrier')
        if sc + 2 < n:
            dma(sc + 2)


def qkv_segments(A, stride, st='', after_seg=None, mid_seg=None, first=None, end='64'):
    ws = f's[{S_WS}:{S_WS + 3}]'
    ACC, XB = 8, 56
    NB = 8
    S_SEG, S_XO, S_XN, S_OO = 36, 37, 38, 39
    A.I('v_lshlrev_b32 v1, 4, v0')
    A.I(f's_mov_b32 s{S_SEG}, s{S_G if first is None else first}')
    A.I(f's_lshl_b32 s{S_XO}, s{S_SEG}, 15')
    A.I(f's_add_u32 s{S_XO}, s{S_XO}, 0x{WS_XN:x}')

    def acc(mat, nb, tb):
        return ACC + ((mat * 2 + nb) * 2 + tb) * 4

    def xload(ks, base):
        b = XB + 8 * (ks % NB)
        l = []
        for tb in range(2):
            off = tb * 16384 + ks * 1024
            l.append(f's_add_u32 s{S_T0 + tb}, s{base}, {off & ~4095}\n'
                     f'buffer_load_dwordx4 {v(b + 4 * tb, 4)}, v1, {ws}, s{S_T0 + tb} offen offset:{off & 4095}')
        return l

    for ks in range(NB - 1):
        for x in xload(ks, S_XO):
            A.I(x)
    L = A.newlabel('L_seg')
    A.label(L)
    A.check = False
    A.I(f's_add_u32 s{S_T2}, s{S_SEG}, {stride}')
    A.I(f's_cmp_lt_u32 s{S_T2}, {end}')
    A.I(f's_cselect_b32 s{S_T2}, s{S_T2}, s{S_SEG}')
    A.I(f's_lshl_b32 s{S_XN}, s{S_T2}, 15')
    A.I(f's_add_u32 s{S_XN}, s{S_XN}, 0x{WS_XN:x}')
    for ks in range(16):
        nk = ks + NB - 1
        ld = xload(nk, S_XO) if nk < 16 else xload(nk - 16, S_XN)
        A.I(f's_waitcnt vmcnt({2 * (NB - 2)})')
        if ks == 8 and mid_seg:
            mid_seg()
        b = XB + 8 * (ks % NB)
        i = 0
        for mat in (1, 2, 0):
            for nb in range(2):
                for tb in range(2):
                    d = acc(mat, nb, tb)
                    c = '0' if ks == 0 else v(d, 4)
                    w_ = u(wt(mat, nb, ks), 4)
                    x_ = v(b + 4 * tb, 4)
                    if mat == 2:
                        A.I(f'v_mfma_f32_16x16x32_bf16 {v(d, 4)}, {x_}, {w_}, {c}')
                    else:
                        A.I(f'v_mfma_f32_16x16x32_bf16 {v(d, 4)}, {w_}, {x_}, {c}')
                    if i in (1, 3):
                        A.I(ld[i >> 1])
                    i += 1
    A.I(f's_mul_i32 s{S_OO}, s{S_SEG}, {SS}')
    A.I(f's_mul_i32 s{S_T2}, s{S_H}, {BH}')
    A.I(f's_add_u32 s{S_OO}, s{S_OO}, s{S_T2}')
    A.I(f's_lshl_b32 s{S_OO}, s{S_OO}, 13')
    A.I(f's_lshl_b32 s{S_T2}, s{S_WV}, 10')
    A.I(f's_add_u32 s{S_T3}, s{S_OO}, s{S_T2}')
    for mat, base in ((1, WS_KF), (2, WS_VF), (0, WS_QF)):
        if mat == 2:
            A.I(f's_add_u32 s{S_T0}, s{S_T3}, s{S_T2}')
            A.I(f's_add_u32 s{S_T0}, s{S_T0}, 0x{base:x}')
            for nb in range(2):
                a_, b_ = acc(2, nb, 0), acc(2, nb, 1)
                A.I(f'v_cvt_pk_bf16_f32 v{a_}, v{a_}, v{a_ + 1}')
                A.I(f'v_cvt_pk_bf16_f32 v{a_ + 1}, v{a_ + 2}, v{a_ + 3}')
                A.I(f'v_cvt_pk_bf16_f32 v{a_ + 2}, v{b_}, v{b_ + 1}')
                A.I(f'v_cvt_pk_bf16_f32 v{a_ + 3}, v{b_ + 2}, v{b_ + 3}')
                A.I(f'buffer_store_dwordx4 {v(a_, 4)}, v1, {ws}, s{S_T0} offen offset:{1024 * nb} {st}')
        else:
            for tb in range(2):
                A.I(f's_add_u32 s{S_T0}, s{S_T3}, 0x{base + 4096 * tb:x}')
                a_, b_ = acc(mat, 0, tb), acc(mat, 1, tb)
                for r in range(4):
                    A.I(f'v_cvt_pk_bf16_f32 v{a_ + r}, v{a_ + r}, v{b_ + r}')
                A.I(f'buffer_store_dwordx4 {v(a_, 4)}, v1, {ws}, s{S_T0} offen {st}')
    if after_seg:
        after_seg()
    A.I(f's_add_u32 s{S_SEG}, s{S_SEG}, {stride}')
    A.I(f's_mov_b32 s{S_XO}, s{S_XN}')
    A.I(f's_cmp_lt_u32 s{S_SEG}, {end}')
    A.br(f's_cbranch_scc1 {L}')
    A.check = True
    A.forget_loads()


def qkv_kernel(A, name):
    kernel_begin(A, name)
    le = A.newlabel('L_exit')
    prologue(A, {16: KA_WS, 20: KA_WQ, 22: KA_WK, 24: KA_WV}, 256, le)
    make_srd(A, S_WS, 16, WS_SIZE)
    A.I(f's_lshr_b32 s{S_H}, s2, 3')
    A.I(f's_and_b32 s{S_G}, s2, 7')
    qkv_stage(A, [20, 22, 24])
    qkv_segments(A, 8)
    A.label(le)
    A.I('s_endpgm')


def att_stage(A, p_wo):
    A.I('v_and_b32 v3, 15, v0')
    A.I('v_lshrrev_b32 v2, 4, v0')
    A.I('v_lshlrev_b32 v1, 4, v0')
    make_srd(A, S_W, p_wo, 4096 * 1024)
    A.I(f's_lshl_b32 s{S_T0}, s{S_H}, 17')
    A.I(f's_lshl_b32 s{S_T1}, s{S_WV}, 13')
    A.I(f's_add_u32 s{S_T0}, s{S_T0}, s{S_T1}')
    A.I(f's_lshl_b32 s{S_T1}, s{S_WV}, 10')
    for f in range(8):
        for a_ in range(4):
            A.I(f's_add_u32 m0, s{S_T1}, {(16 * f + 4 * a_) * 1024 + 32 * f}')
            A.I(f's_add_u32 s{S_T3}, s{S_T0}, {(f + 32 * a_) * 1024}')
            A.I(f'buffer_load_dwordx4 v1, s[{S_W}:{S_W + 3}], s{S_T3} offen lds')
    A.I('v_lshrrev_b32 v6, 2, v3')
    A.I('v_and_b32 v7, 3, v3')
    A.I('v_and_b32 v8, 1, v2')
    A.I('v_lshl_add_u32 v8, v8, 2, v6')
    A.I('v_lshrrev_b32 v9, 1, v2')
    A.I('v_lshlrev_b32 v10, 14, v8')
    A.I('v_lshl_add_u32 v10, v9, 10, v10')
    A.I('v_lshl_add_u32 v10, v8, 5, v10')
    A.I('v_lshl_add_u32 v10, v7, 3, v10')
    A.I(f's_lshl_b32 s{S_T0}, s{S_WV}, 8')
    A.I(f'v_add_u32 v10, s{S_T0}, v10')
    A.I('s_waitcnt vmcnt(0)')
    A.I('s_barrier')
    cnt = 0
    for mb in range(8):
        for ks in range(4):
            for x in range(2):
                if cnt >= 12:
                    A.I('s_waitcnt lgkmcnt(8)')
                    cnt = 8
                A.I(f'ds_read_b64_tr_b16 {a((mb * 4 + ks) * 4 + 2 * x, 2)}, v10 offset:{(4 * ks + 2 * x) * 1024 + 32 * mb}')
                cnt += 1
    A.I('s_waitcnt lgkmcnt(0)')
    A.I('s_barrier')


S_MASK = 64
S_CC, S_ONE = 52, 54


def att_consts(A):
    A.I('v_and_b32 v3, 15, v0')
    A.I('v_lshrrev_b32 v2, 4, v0')
    A.I('v_lshlrev_b32 v1, 4, v0')
    A.I(f's_and_b32 s{S_T0}, s{S_WV}, 1')
    A.I(f's_lshl_b32 s{S_T0}, s{S_T0}, 4')
    A.I(f'v_add_u32 v4, s{S_T0}, v3')
    A.I('v_lshlrev_b32 v5, 2, v2')
    A.I('v_sub_u32 v4, v4, v5')
    for kb in range(2):
        for r in range(4):
            m = S_MASK + 2 * (4 * kb + r)
            A.I(f'v_cmp_le_i32 s[{m}:{m + 1}], {16 * kb + r}, v4')
    c = (128 ** -0.5) * math.log2(math.e)
    A.I(f's_mov_b32 s{S_CC}, {f32(c)}')
    A.I(f's_mov_b32 s{S_CC + 1}, {f32(c)}')
    A.I('v_lshlrev_b32 v5, 15, v3')
    A.I('v_lshl_add_u32 v3, v2, 4, v5')
    A.I('v_lshlrev_b32 v2, 3, v0')
    A.I(f'v_mov_b32 v4, {f32(-1e9 * 128 ** 0.5)}')
    for i in range(4):
        A.I(f'v_mov_b32 v{8 + i}, 0x3f803f80')


AT_Q, AT_K, AT_V, AT_KM, AT_VM = 16, 32, 64, 96, 112
AT_S, AT_P, AT_PM, AT_L = 192, 204, 208, 212
AT_O, AT_OB, AT_ACC = 144, 176, 192


def att_load_qkv(A, s_seg, ld=''):
    ws = f's[{S_WS}:{S_WS + 3}]'
    A.I(f's_mul_i32 s{S_T0}, s{s_seg}, {SS}')
    A.I(f's_mul_i32 s{S_T1}, s{S_H}, {BH}')
    A.I(f's_add_u32 s{S_T0}, s{S_T0}, s{S_T1}')
    A.I(f's_lshl_b32 s{S_T0}, s{S_T0}, 13')
    A.I(f's_and_b32 s{S_T1}, s{S_WV}, 1')
    A.I(f's_lshl_b32 s{S_T1}, s{S_T1}, 12')
    A.I(f's_add_u32 s{S_T1}, s{S_T1}, s{S_T0}')
    A.I(f's_add_u32 s{S_T1}, s{S_T1}, 0x{WS_QF:x}')
    for ks in range(4):
        A.I(f'buffer_load_dwordx4 {v(AT_Q + 4 * ks, 4)}, v1, {ws}, s{S_T1} offen offset:{1024 * ks} {ld}')
    for base, reg in ((WS_KF, AT_K), (WS_VF, AT_V)):
        for hf in range(2):
            A.I(f's_add_u32 s{S_T1}, s{S_T0}, 0x{base + 4096 * hf:x}')
            for i in range(4):
                A.I(f'buffer_load_dwordx4 {v(reg + 16 * hf + 4 * i, 4)}, v1, {ws}, s{S_T1} offen offset:{1024 * i} {ld}')


def att_load_mem(A, s_seg, ld=''):
    ws = f's[{S_WS}:{S_WS + 3}]'
    A.I(f's_mul_i32 s{S_T0}, s{s_seg}, {SS}')
    A.I(f's_mul_i32 s{S_T1}, s{S_H}, {BH}')
    A.I(f's_add_u32 s{S_T0}, s{S_T0}, s{S_T1}')
    A.I(f's_lshl_b32 s{S_T1}, s{S_T0}, 12')
    A.I(f's_add_u32 s{S_T1}, s{S_T1}, 0x{WS_KM:x}')
    for ks in range(4):
        A.I(f'buffer_load_dwordx4 {v(AT_KM + 4 * ks, 4)}, v1, {ws}, s{S_T1} offen offset:{1024 * ks} {ld}')
    A.I(f's_lshl_b32 s{S_T1}, s{S_T0}, 11')
    A.I(f's_add_u32 s{S_T1}, s{S_T1}, 0x{WS_VM:x}')
    for w_ in range(4):
        A.I(f'buffer_load_dwordx2 {v(AT_VM + 2 * w_, 2)}, v2, {ws}, s{S_T1} offen offset:{512 * w_} {ld}')


def att_compute1(A):
    X0, X1, M = AT_S, AT_S + 4, AT_S + 8
    ONES = 8
    mx, tm = 6, 7
    for ks in range(4):
        for (d, k_) in ((X0, AT_K + 4 * ks), (X1, AT_K + 16 + 4 * ks), (M, AT_KM + 4 * ks)):
            c = '0' if ks == 0 else v(d, 4)
            A.I(f'v_mfma_f32_16x16x32_bf16 {v(d, 4)}, {v(k_, 4)}, {v(AT_Q + 4 * ks, 4)}, {c}')
    A.I(f'v_mov_b32 v{AT_PM + 1}, 0')
    A.I(f'v_mov_b32 v{AT_PM + 2}, 0')
    for i in range(8):
        m = S_MASK + 2 * i
        A.I(f'v_cndmask_b32 v{X0 + i}, v4, v{X0 + i}, s[{m}:{m + 1}]')
    A.I(f'v_max3_f32 v{mx}, v{X0}, v{X0 + 1}, v{X0 + 2}')
    A.I(f'v_max3_f32 v{tm}, v{X0 + 3}, v{X1}, v{X1 + 1}')
    A.I(f'v_max3_f32 v{mx}, v{mx}, v{X1 + 2}, v{X1 + 3}')
    A.I(f'v_max3_f32 v{tm}, v{tm}, v{M}, v{M + 1}')
    A.I(f'v_max_f32 v{mx}, v{mx}, v{tm}')
    xreduce(A, 'v_max_f32', mx, tm)
    A.I(f'v_mul_f32_e64 v{mx}, -s{S_CC}, v{mx}')
    for r in (M, X0, X0 + 2, X1, X1 + 2):
        A.I(f'v_pk_fma_f32 {v(r, 2)}, {v(r, 2)}, s[{S_CC}:{S_CC + 1}], {v(mx, 2)} op_sel:[0,0,0] op_sel_hi:[1,1,0]')
    A.I(f'v_exp_f32 v{M}, v{M}')
    A.I(f'v_exp_f32 v{M + 1}, v{M + 1}')
    for i in range(8):
        A.I(f'v_exp_f32 v{X0 + i}, v{X0 + i}')
    A.I(f'v_cvt_pk_bf16_f32 v{AT_PM}, v{M}, v{M + 1}')
    A.I(f'v_cvt_pk_bf16_f32 v{AT_PM + 3}, v{M}, v{M + 1}')
    for i in range(4):
        A.I(f'v_cvt_pk_bf16_f32 v{AT_P + i}, v{X0 + 2 * i}, v{X0 + 2 * i + 1}')
    A.I(f'v_mfma_f32_16x16x16_bf16 {v(AT_L, 4)}, {v(ONES, 2)}, {v(AT_PM, 2)}, 0')
    for mb in range(8):
        A.I(f'v_mfma_f32_16x16x16_bf16 {v(AT_O + 4 * mb, 4)}, {v(AT_VM + 2 * (mb >> 1), 2)}, {v(AT_PM + 2 * (mb & 1), 2)}, 0')
    A.I(f'v_mfma_f32_16x16x32_bf16 {v(AT_L, 4)}, {v(ONES, 4)}, {v(AT_P, 4)}, {v(AT_L, 4)}')
    for mb in range(8):
        A.I(f'v_mfma_f32_16x16x32_bf16 {v(AT_O + 4 * mb, 4)}, {v(AT_V + 4 * mb, 4)}, {v(AT_P, 4)}, {v(AT_O + 4 * mb, 4)}')
    A.I(f'v_rcp_f32 v{mx}, v{AT_L}')
    for mb in range(8):
        o = AT_O + 4 * mb
        for r in range(4):
            A.I(f'v_mul_f32 v{o + r}, v{o + r}, v{mx}')
        A.I(f'v_cvt_pk_bf16_f32 v{AT_OB + 2 * mb}, v{o}, v{o + 1}')
        A.I(f'v_cvt_pk_bf16_f32 v{AT_OB + 2 * mb + 1}, v{o + 2}, v{o + 3}')


AT_OB2 = 144


def att_xchg(A, lds_base):
    A.I(f's_and_b32 s{S_T2}, s{S_WV}, 1')
    A.I(f's_lshl_b32 s{S_T2}, s{S_T2}, 12')
    A.I(f's_add_u32 s{S_T2}, s{S_T2}, {lds_base}')
    A.I(f'v_add_u32 v6, s{S_T2}, v1')
    l = A.newlabel('L_xc')
    A.I(f's_cmp_ge_u32 s{S_WV}, 2')
    A.br(f's_cbranch_scc1 {l}')
    for ks in range(4):
        A.I(f'ds_write_b128 v6, {v(AT_OB + 4 * ks, 4)} offset:{1024 * ks}')
    A.I('s_waitcnt lgkmcnt(0)')
    A.label(l)
    A.I('v_xor_b32 v6, 4096, v6')
    A.I('s_barrier')
    for ks in range(4):
        A.I(f'ds_read_b128 {v(AT_OB2 + 4 * ks, 4)}, v6 offset:{1024 * ks}')


def att_compute2(A, s_seg, st=''):
    ws = f's[{S_WS}:{S_WS + 3}]'
    S_OO, S_O2 = 39, 38
    A.I(f's_lshl_b32 s{S_OO}, s{s_seg}, 1')
    A.I(f's_and_b32 s{S_T2}, s{S_WV}, 1')
    A.I(f's_add_u32 s{S_OO}, s{S_OO}, s{S_T2}')
    A.I(f's_lshl_b32 s{S_OO}, s{S_OO}, 19')
    A.I(f's_lshl_b32 s{S_T2}, s{S_H}, 10')
    A.I(f's_add_u32 s{S_OO}, s{S_OO}, s{S_T2}')
    A.I(f's_lshl_b32 s{S_T2}, s{S_WV}, 8')
    A.I(f's_add_u32 s{S_OO}, s{S_OO}, s{S_T2}')
    A.I(f's_xor_b32 s{S_O2}, s{S_OO}, 0x80000')
    A.I(f's_add_u32 s{S_OO}, s{S_OO}, 0x{WS_OP:x}')
    A.I(f's_add_u32 s{S_O2}, s{S_O2}, 0x{WS_OP:x}')

    def post(c):
        a_, b_ = AT_ACC + 8 * c, AT_ACC + 8 * c + 4
        so = S_OO if c < 4 else S_O2
        return [f'v_cvt_pk_bf16_f32 v{a_}, v{a_}, v{a_ + 1}',
                f'v_cvt_pk_bf16_f32 v{a_ + 1}, v{a_ + 2}, v{a_ + 3}',
                f'v_cvt_pk_bf16_f32 v{a_ + 2}, v{b_}, v{b_ + 1}',
                f'v_cvt_pk_bf16_f32 v{a_ + 3}, v{b_ + 2}, v{b_ + 3}',
                f'buffer_store_dwordx4 {v(a_, 4)}, v3, {ws}, s{so} offen offset:{64 * (c & 3)} {st}']

    pend = []
    for c in range(8):
        i = 0
        ob = AT_OB if c < 4 else AT_OB2
        if c == 4:
            A.I('s_waitcnt lgkmcnt(0)')
        for ks in range(4):
            for bb in range(2):
                mb = 2 * (c & 3) + bb
                d = AT_ACC + 8 * c + 4 * bb
                cc = '0' if ks == 0 else v(d, 4)
                A.I(f'v_mfma_f32_16x16x32_bf16 {v(d, 4)}, {a((mb * 4 + ks) * 4, 4)}, {v(ob + 4 * ks, 4)}, {cc}')
                if i >= 3 and pend:
                    A.I(pend.pop(0))
                i += 1
        pend = post(c)
    for x in pend:
        A.I(x)


def att_kernel(A, name):
    kernel_begin(A, name)
    le = A.newlabel('L_exit')
    prologue(A, {16: KA_WS, 26: KA_WO}, 256, le)
    make_srd(A, S_WS, 16, WS_SIZE)
    A.I(f's_lshr_b32 s{S_H}, s2, 3')
    A.I(f's_and_b32 s{S_G}, s2, 7')
    att_stage(A, 26)
    att_consts(A)
    S_SEG, S_NX = 36, 37
    A.I(f's_mov_b32 s{S_SEG}, s{S_G}')
    att_load_qkv(A, S_SEG)
    att_load_mem(A, S_SEG)
    L = A.newlabel('L_att')
    A.label(L)
    A.I('s_waitcnt vmcnt(0)')
    att_compute1(A)
    A.I(f's_add_u32 s{S_NX}, s{S_SEG}, 8')
    A.I(f's_cmp_lt_u32 s{S_NX}, 64')
    A.I(f's_cselect_b32 s{S_T3}, s{S_NX}, s{S_SEG}')
    A.I(f's_mov_b32 s40, s{S_T3}')
    att_load_qkv(A, 40)
    att_load_mem(A, 40)
    att_compute2(A, S_SEG)
    A.I(f's_mov_b32 s{S_SEG}, s{S_NX}')
    A.I(f's_cmp_lt_u32 s{S_SEG}, 64')
    A.br(f's_cbranch_scc1 {L}')
    A.forget_loads()
    A.label(le)
    A.I('s_endpgm')


def wave_sum(A, r, t):
    for k in (8, 4, 2, 1):
        A.I(f'v_add_f32_dpp v{r}, v{r}, v{r} row_ror:{k} row_mask:0xf bank_mask:0xf')
    xreduce(A, 'v_add_f32', r, t)


def ln_regs(A, Z, t0, t1):
    A.I(f'v_add_f32 v{t0}, v{Z}, v{Z + 1}')
    for i in range(2, 8):
        A.I(f'v_add_f32 v{t0}, v{t0}, v{Z + i}')
    wave_sum(A, t0, t1)
    A.I(f'v_mul_f32 v{t0}, {f32(1 / 512)}, v{t0}')
    for i in range(8):
        A.I(f'v_sub_f32 v{Z + i}, v{Z + i}, v{t0}')
    A.I(f'v_mul_f32 v{t0}, v{Z}, v{Z}')
    for i in range(1, 8):
        A.I(f'v_fmac_f32 v{t0}, v{Z + i}, v{Z + i}')
    wave_sum(A, t0, t1)
    A.I(f'v_mov_b32 v{t1}, {f32(1e-5)}')
    A.I(f'v_fmac_f32 v{t1}, {f32(1 / 512)}, v{t0}')
    A.I(f'v_rsq_f32 v{t1}, v{t1}')
    for i in range(8):
        A.I(f'v_mul_f32 v{Z + i}, v{Z + i}, v{t1}')


def round_bf16(A, Z, Pk):
    for i in range(4):
        A.I(f'v_cvt_pk_bf16_f32 v{Pk + i}, v{Z + 2 * i}, v{Z + 2 * i + 1}')
    for i in range(4):
        A.I(f'v_lshlrev_b32 v{Z + 2 * i}, 16, v{Pk + i}')
        A.I(f'v_and_b32 v{Z + 2 * i + 1}, 0xffff0000, v{Pk + i}')


def red_row(A, s_row, srd_x, ld='', st='', B=32):
    ws = f's[{S_WS}:{S_WS + 3}]'
    Z, Pk, XR = 8, 16, 20
    A.I('v_lshlrev_b32 v1, 4, v0')
    A.I(f's_lshl_b32 s{S_T0}, s{s_row}, 15')
    A.I(f's_add_u32 s{S_T0}, s{S_T0}, 0x{WS_OP:x}')
    for hh in range(32):
        if hh and hh % 4 == 0:
            A.I(f's_add_u32 s{S_T0}, s{S_T0}, 4096')
        A.I(f'buffer_load_dwordx4 {v(B + 4 * hh, 4)}, v1, {ws}, s{S_T0} offen offset:{1024 * (hh & 3)} {ld}')
    A.I('v_lshrrev_b32 v2, 2, v0')
    A.I('v_lshlrev_b32 v2, 6, v2')
    A.I('v_and_b32 v3, 3, v0')
    A.I('v_lshl_add_u32 v2, v3, 3, v2')
    A.I(f's_lshl_b32 s{S_T1}, s{s_row}, 10')
    A.I(f'buffer_load_dwordx2 {v(XR, 2)}, v2, {srd_x}, s{S_T1} offen')
    A.I(f'buffer_load_dwordx2 {v(XR + 2, 2)}, v2, {srd_x}, s{S_T1} offen offset:32')
    for i in range(8):
        A.I(f'v_mov_b32 v{Z + i}, 0')
    for hh in range(32):
        A.I(f's_waitcnt vmcnt({33 - hh})')
        for i in range(4):
            r = B + 4 * hh + i
            A.I(f'v_lshlrev_b32 v4, 16, v{r}')
            A.I(f'v_and_b32 v5, 0xffff0000, v{r}')
            A.I(f'v_add_f32 v{Z + 2 * i}, v{Z + 2 * i}, v4')
            A.I(f'v_add_f32 v{Z + 2 * i + 1}, v{Z + 2 * i + 1}, v5')
    round_bf16(A, Z, Pk)
    A.I('s_waitcnt vmcnt(0)')
    for i in range(4):
        A.I(f'v_lshlrev_b32 v4, 16, v{XR + i}')
        A.I(f'v_and_b32 v5, 0xffff0000, v{XR + i}')
        A.I(f'v_add_f32 v{Z + 2 * i}, v{Z + 2 * i}, v4')
        A.I(f'v_add_f32 v{Z + 2 * i + 1}, v{Z + 2 * i + 1}, v5')
    round_bf16(A, Z, Pk)
    A.I(f's_add_u32 s{S_T0}, s{S_T1}, 0x{WS_H:x}')
    A.I(f'buffer_store_dwordx2 {v(Pk, 2)}, v2, {ws}, s{S_T0} offen {st}')
    A.I(f'buffer_store_dwordx2 {v(Pk + 2, 2)}, v2, {ws}, s{S_T0} offen offset:32 {st}')
    ln_regs(A, Z, 4, 5)
    round_bf16(A, Z, XR)
    ln_regs(A, Z, 4, 5)
    for i in range(4):
        A.I(f'v_cvt_pk_bf16_f32 v{XR + i}, v{Z + 2 * i}, v{Z + 2 * i + 1}')
    A.I(f's_add_u32 s{S_T0}, s{S_T1}, 0x{WS_HP:x}')
    A.I(f'buffer_store_dwordx2 {v(XR, 2)}, v2, {ws}, s{S_T0} offen {st}')
    A.I(f'buffer_store_dwordx2 {v(XR + 2, 2)}, v2, {ws}, s{S_T0} offen offset:32 {st}')


def red_kernel(A, name):
    kernel_begin(A, name)
    le = A.newlabel('L_exit')
    prologue(A, {16: KA_WS, 18: KA_X}, 512, le)
    make_srd(A, S_WS, 16, WS_SIZE)
    make_srd(A, S_X, 18, 2048 * 1024)
    A.I(f's_lshl_b32 s{S_G}, s2, 2')
    A.I(f's_add_u32 s{S_G}, s{S_G}, s{S_WV}')
    red_row(A, S_G, f's[{S_X}:{S_X + 3}]')
    A.label(le)
    A.I('s_endpgm')


def g1_kernel(A, name):
    kernel_begin(A, name)
    le = A.newlabel('L_exit')
    prologue(A, {16: KA_WS, 18: KA_W1, 20: KA_B1}, 224, le)
    make_srd(A, S_WS, 16, WS_SIZE)
    make_srd(A, S_W, 18, 2048 * 3584)
    make_srd(A, S_X, 20, 3584)
    ws, w1, b1 = f's[{S_WS}:{S_WS + 3}]', f's[{S_W}:{S_W + 3}]', f's[{S_X}:{S_X + 3}]'
    S_FT, S_DT, S_AO, S_BO, S_LB = 36, 37, 38, 39, 40
    A.I(f's_and_b32 s{S_DT}, s2, 7')
    A.I(f's_lshr_b32 s{S_FT}, s2, 3')
    A.I('v_lshrrev_b32 v1, 3, v0')
    A.I('v_and_b32 v2, 7, v0')
    A.I('v_bfe_u32 v3, v0, 4, 1')
    A.I(f's_and_b32 s{S_T0}, s{S_WV}, 1')
    A.I(f's_lshl_b32 s{S_T0}, s{S_T0}, 1')
    A.I(f'v_or_b32 v3, s{S_T0}, v3')
    A.I('v_lshlrev_b32 v3, 1, v3')
    A.I('v_xor_b32 v2, v2, v3')
    A.I('v_lshlrev_b32 v2, 4, v2')
    A.I('v_mul_u32_u24 v4, 3584, v1')
    A.I('v_add_u32 v4, v4, v2')
    A.I('v_lshl_add_u32 v5, v1, 10, v2')
    A.I(f's_mul_i32 s{S_AO}, s{S_WV}, {8 * 3584}')
    A.I(f's_lshl_b32 s{S_T0}, s{S_FT}, 7')
    A.I(f's_add_u32 s{S_AO}, s{S_AO}, s{S_T0}')
    A.I(f's_lshl_b32 s{S_BO}, s{S_WV}, 13')
    A.I(f's_lshl_b32 s{S_T0}, s{S_DT}, 7')
    A.I(f's_add_u32 s{S_BO}, s{S_BO}, s{S_T0}')
    A.I(f's_add_u32 s{S_BO}, s{S_BO}, 0x{WS_HP:x}')
    A.I(f's_lshl_b32 s{S_LB}, s{S_WV}, 10')
    A.I('v_and_b32 v1, 15, v0')
    A.I('v_lshrrev_b32 v2, 4, v0')
    A.I('v_lshrrev_b32 v3, 2, v1')
    A.I('v_and_b32 v6, 3, v1')
    A.I('v_lshl_add_u32 v7, v2, 3, v3')
    A.I('v_lshlrev_b32 v7, 7, v7')
    A.I('v_lshl_add_u32 v7, v6, 3, v7')
    A.I('v_lshrrev_b32 v8, 1, v3')
    A.I('v_and_b32 v9, 1, v2')
    A.I('v_lshl_add_u32 v8, v9, 1, v8')
    A.I(f's_and_b32 s{S_T0}, s{S_WV}, 1')
    A.I(f's_lshl_b32 s{S_T0}, s{S_T0}, 1')
    A.I(f'v_xor_b32 v9, s{S_T0}, v8')
    A.I('v_lshl_add_u32 v10, v9, 5, v7')
    A.I('v_xor_b32 v11, 32, v10')
    A.I(f's_and_b32 s{S_T0}, s{S_WV}, 2')
    A.I(f'v_xor_b32 v9, s{S_T0}, v8')
    A.I('v_lshl_add_u32 v12, v9, 5, v7')
    A.I('v_add_u32 v12, 16384, v12')
    A.I('v_xor_b32 v13, 32, v12')
    for i in range(4):
        A.I(f'v_add_u32 v{14 + i}, 0x10000, v{10 + i}')
    A.I(f's_lshl_b32 s{S_T0}, s{S_FT}, 7')
    A.I(f's_and_b32 s{S_T1}, s{S_WV}, 1')
    A.I(f's_lshl_b32 s{S_T1}, s{S_T1}, 6')
    A.I(f's_add_u32 s{S_T0}, s{S_T0}, s{S_T1}')
    A.I('v_lshlrev_b32 v1, 3, v2')
    A.I(f'buffer_load_dwordx2 v[20:21], v1, {b1}, s{S_T0} offen')
    A.I(f'buffer_load_dwordx2 v[22:23], v1, {b1}, s{S_T0} offen offset:32')
    ACC, FR = 24, 40
    NS = 4

    def dma(k):
        st = (k % NS) * 32768
        for i in range(4):
            A.I(f's_add_u32 m0, s{S_LB}, {st + i * 4096}')
            A.I(f's_add_u32 s{S_T0}, s{S_AO}, {(k * 128 + i * 32) * 3584}')
            A.I(f'buffer_load_dwordx4 v4, {w1}, s{S_T0} offen lds')
            A.I(f's_add_u32 m0, s{S_LB}, {st + 16384 + i * 4096}')
            A.I(f's_add_u32 s{S_T1}, s{S_BO}, {(k * 128 + i * 32) * 1024}')
            A.I(f'buffer_load_dwordx4 v5, {ws}, s{S_T1} offen lds')

    NK = 16
    for k in range(NS - 1):
        dma(k)
    for k in range(NK):
        rem = min(NS - 2, NK - 1 - k)
        A.I(f's_waitcnt vmcnt({8 * rem})')
        A.I('s_barrier')
        if k + NS - 1 < NK:
            dma(k + NS - 1)
        sl = k % NS
        ab = 10 if sl < 2 else 14
        so = (sl & 1) * 32768

        def rd(ks):
            for j in range(4):
                for x in range(2):
                    A.I(f'ds_read_b64_tr_b16 {v(FR + 16 * ks + 4 * j + 2 * x, 2)}, v{ab + j} offset:{so + (32 * ks + 4 * x) * 128}')

        rd(0)
        for ks in range(4):
            if ks < 3:
                if ks:
                    pass
                A.I('s_waitcnt lgkmcnt(0)') if False else None
                rd(ks + 1)
                A.I('s_waitcnt lgkmcnt(8)')
            else:
                A.I('s_waitcnt lgkmcnt(0)')
            f = FR + 16 * ks
            for mbp in range(2):
                for nbp in range(2):
                    d = ACC + (mbp * 2 + nbp) * 4
                    c = '0' if (k == 0 and ks == 0) else v(d, 4)
                    A.I(f'v_mfma_f32_16x16x32_bf16 {v(d, 4)}, {v(f + 4 * mbp, 4)}, {v(f + 8 + 4 * nbp, 4)}, {c}')
    BI = 40
    for i in range(4):
        A.I(f'v_lshlrev_b32 v{BI + 2 * i}, 16, v{20 + i}')
        A.I(f'v_and_b32 v{BI + 2 * i + 1}, 0xffff0000, v{20 + i}')
    k1 = -2 * math.sqrt(2 / math.pi) * math.log2(math.e)
    A.I(f's_mov_b32 s{S_T2}, {f32(k1)}')
    A.I(f's_mov_b32 s{S_T3}, {f32(k1 * 0.044715)}')
    A.I(f's_lshl_b32 s{S_T0}, s{S_DT}, 2')
    A.I(f's_and_b32 s{S_T1}, s{S_WV}, 2')
    A.I(f's_add_u32 s{S_T0}, s{S_T0}, s{S_T1}')
    A.I(f's_mul_i32 s{S_T0}, s{S_T0}, 56')
    A.I(f's_lshl_b32 s{S_T1}, s{S_FT}, 1')
    A.I(f's_add_u32 s{S_T0}, s{S_T0}, s{S_T1}')
    A.I(f's_and_b32 s{S_T1}, s{S_WV}, 1')
    A.I(f's_add_u32 s{S_T0}, s{S_T0}, s{S_T1}')
    A.I(f's_lshl_b32 s{S_T0}, s{S_T0}, 10')
    A.I(f's_add_u32 s{S_T0}, s{S_T0}, 0x{WS_U:x}')
    A.I('v_lshlrev_b32 v1, 4, v0')
    for nbp in range(2):
        Z, Pk = 48, 56
        for mbp in range(2):
            for r in range(4):
                A.I(f'v_mov_b32 v{Z + 4 * mbp + r}, v{ACC + (mbp * 2 + nbp) * 4 + r}')
        round_bf16(A, Z, Pk)
        for i in range(8):
            A.I(f'v_add_f32 v{Z + i}, v{Z + i}, v{BI + i}')
        round_bf16(A, Z, Pk)
        for i in range(8):
            t = 60 + i
            A.I(f'v_mul_f32 v{t}, v{Z + i}, v{Z + i}')
            A.I(f'v_mov_b32 v{t + 8}, s{S_T2}')
            A.I(f'v_fmac_f32 v{t + 8}, s{S_T3}, v{t}')
            A.I(f'v_mul_f32 v{t}, v{t + 8}, v{Z + i}')
            A.I(f'v_exp_f32 v{t}, v{t}')
        for i in range(8):
            t = 60 + i
            A.I(f'v_add_f32 v{t}, 1.0, v{t}')
            A.I(f'v_rcp_f32 v{t}, v{t}')
        for i in range(8):
            A.I(f'v_mul_f32 v{Z + i}, v{Z + i}, v{60 + i}')
        o = 76 + 4 * nbp
        for i in range(4):
            A.I(f'v_cvt_pk_bf16_f32 v{o + i}, v{Z + 2 * i}, v{Z + 2 * i + 1}')
        A.I(f'buffer_store_dwordx4 {v(o, 4)}, v1, {ws}, s{S_T0} offen')
        A.I(f's_add_u32 s{S_T0}, s{S_T0}, {56 * 1024}')
    A.label(le)
    A.I('s_endpgm')


def g2_kernel(A, name):
    kernel_begin(A, name)
    le = A.newlabel('L_exit')
    prologue(A, {16: KA_WS, 18: KA_W2, 20: KA_B2, 22: KA_OUT}, 256, le)
    S_O = 24
    make_srd(A, S_WS, 16, WS_SIZE)
    make_srd(A, S_W, 18, 1792 * 4096)
    make_srd(A, S_X, 20, 4096)
    make_srd(A, S_O, 22, 2048 * 1024)
    ws, w2, b2, out = (f's[{x}:{x + 3}]' for x in (S_WS, S_W, S_X, S_O))
    S_ST, S_DT, S_AO, S_BO, S_LB = 36, 37, 38, 39, 40
    A.I(f's_and_b32 s{S_DT}, s2, 7')
    A.I(f's_lshr_b32 s{S_ST}, s2, 3')
    A.I('v_lshrrev_b32 v1, 3, v0')
    A.I('v_and_b32 v2, 7, v0')
    A.I('v_lshrrev_b32 v3, 4, v0')
    A.I('v_lshlrev_b32 v3, 1, v3')
    A.I('v_xor_b32 v2, v2, v3')
    A.I('v_lshlrev_b32 v2, 4, v2')
    A.I('v_lshl_add_u32 v4, v1, 12, v2')
    A.I('v_lshlrev_b32 v5, 4, v0')
    A.I(f's_lshl_b32 s{S_BO}, s{S_WV}, 15')
    A.I(f's_lshl_b32 s{S_T0}, s{S_ST}, 7')
    A.I(f's_add_u32 s{S_BO}, s{S_BO}, s{S_T0}')
    A.I(f's_lshl_b32 s{S_T0}, s{S_DT}, 2')
    A.I(f's_add_u32 s{S_T0}, s{S_T0}, s{S_WV}')
    A.I(f's_mul_i32 s{S_AO}, s{S_T0}, {56 * 1024}')
    A.I(f's_add_u32 s{S_AO}, s{S_AO}, 0x{WS_U:x}')
    A.I(f's_lshl_b32 s{S_LB}, s{S_WV}, 10')
    A.I('v_and_b32 v1, 15, v0')
    A.I('v_lshrrev_b32 v2, 4, v0')
    A.I('v_lshrrev_b32 v3, 2, v1')
    A.I('v_and_b32 v6, 3, v1')
    A.I('v_lshl_add_u32 v7, v2, 2, v3')
    A.I('v_bfe_u32 v8, v7, 1, 2')
    A.I('v_lshlrev_b32 v7, 7, v7')
    A.I('v_lshl_add_u32 v7, v6, 3, v7')
    A.I('v_lshl_add_u32 v10, v8, 5, v7')
    for j in range(1, 4):
        A.I(f'v_xor_b32 v{10 + j}, {32 * j}, v10')
    A.I('v_lshlrev_b32 v14, 10, v1')
    A.I('v_lshl_add_u32 v14, v2, 3, v14')
    A.I(f's_lshl_b32 s41, s{S_ST}, 16')
    A.I(f's_lshl_b32 s{S_T0}, s{S_T0}, 5')
    A.I(f's_add_u32 s41, s41, s{S_T0}')
    A.I('v_lshlrev_b32 v15, 1, v1')
    A.I(f's_lshl_b32 s{S_T1}, s{S_ST}, 7')
    HB, BB = 16, 24
    for nb in range(4):
        A.I(f's_add_u32 s{S_T0}, s41, 0x{WS_H + nb * 16384:x}')
        A.I(f'buffer_load_dwordx2 {v(HB + 2 * nb, 2)}, v14, {ws}, s{S_T0} offen')
        A.I(f'buffer_load_ushort v{BB + nb}, v15, {b2}, s{S_T1} offen offset:{32 * nb}')
    ACC, FR, AR = 28, 44, 108
    NS, NK = 4, 14

    def dma(k):
        st = (k % NS) * 16384
        for i in range(4):
            A.I(f's_add_u32 m0, s{S_LB}, {st + i * 4096}')
            A.I(f's_add_u32 s{S_T0}, s{S_BO}, {(k * 128 + i * 32) * 4096}')
            A.I(f'buffer_load_dwordx4 v4, {w2}, s{S_T0} offen lds')
        A.I(f's_add_u32 s{S_T1}, s{S_AO}, {k * 4096}')
        for ks in range(4):
            A.I(f'buffer_load_dwordx4 {v(AR + 16 * (k % NS) + 4 * ks, 4)}, v5, {ws}, s{S_T1} offen offset:{1024 * ks}')

    for k in range(NS - 1):
        dma(k)
    for k in range(NK):
        rem = min(NS - 2, NK - 1 - k)
        A.I(f's_waitcnt vmcnt({8 * rem})')
        A.I('s_barrier')
        if k + NS - 1 < NK:
            dma(k + NS - 1)
        so = (k % NS) * 16384

        def rd(ks):
            for j in range(4):
                for x in range(2):
                    A.I(f'ds_read_b64_tr_b16 {v(FR + 16 * ks + 4 * j + 2 * x, 2)}, v{10 + j} offset:{so + (32 * ks + 16 * x) * 128}')

        rd(0)
        for ks in range(4):
            if ks < 3:
                rd(ks + 1)
                A.I('s_waitcnt lgkmcnt(8)')
            else:
                A.I('s_waitcnt lgkmcnt(0)')
            for nb in range(4):
                d = ACC + 4 * nb
                c = '0' if (k == 0 and ks == 0) else v(d, 4)
                A.I(f'v_mfma_f32_16x16x32_bf16 {v(d, 4)}, {v(AR + 16 * (k % NS) + 4 * ks, 4)}, {v(FR + 16 * ks + 4 * nb, 4)}, {c}')
    for nb in range(4):
        d = ACC + 4 * nb
        t = 44
        A.I(f'v_cvt_pk_bf16_f32 v{t}, v{d}, v{d + 1}')
        A.I(f'v_cvt_pk_bf16_f32 v{t + 1}, v{d + 2}, v{d + 3}')
        A.I(f'v_lshlrev_b32 v{t + 2}, 16, v{BB + nb}')
        for i in range(2):
            A.I(f'v_lshlrev_b32 v{d + 2 * i}, 16, v{t + i}')
            A.I(f'v_and_b32 v{d + 2 * i + 1}, 0xffff0000, v{t + i}')
        for r in range(4):
            A.I(f'v_add_f32 v{d + r}, v{d + r}, v{t + 2}')
        A.I(f'v_cvt_pk_bf16_f32 v{t}, v{d}, v{d + 1}')
        A.I(f'v_cvt_pk_bf16_f32 v{t + 1}, v{d + 2}, v{d + 3}')
        for i in range(2):
            A.I(f'v_lshlrev_b32 v{d + 2 * i}, 16, v{t + i}')
            A.I(f'v_and_b32 v{d + 2 * i + 1}, 0xffff0000, v{t + i}')
            A.I(f'v_lshlrev_b32 v{t + 2}, 16, v{HB + 2 * nb + i}')
            A.I(f'v_and_b32 v{t + 3}, 0xffff0000, v{HB + 2 * nb + i}')
            A.I(f'v_add_f32 v{d + 2 * i}, v{d + 2 * i}, v{t + 2}')
            A.I(f'v_add_f32 v{d + 2 * i + 1}, v{d + 2 * i + 1}, v{t + 3}')
        o = 48 + 2 * nb
        A.I(f'v_cvt_pk_bf16_f32 v{o}, v{d}, v{d + 1}')
        A.I(f'v_cvt_pk_bf16_f32 v{o + 1}, v{d + 2}, v{d + 3}')
        A.I(f's_add_u32 s{S_T0}, s41, {nb * 16384}')
        A.I(f'buffer_store_dwordx2 {v(o, 2)}, v14, {out}, s{S_T0} offen')
    A.label(le)
    A.I('s_endpgm')
```
